```python
import torch

def _softmax(x, axis=-1):
    return torch.softmax(x, dim=axis)
def _gelu(x):
    return torch.nn.functional.gelu(x, approximate="tanh")
def _silu(x):
    return torch.nn.functional.silu(x)
def _sigmoid(x):
    return torch.sigmoid(x)
def _layernorm(x, axis=-1, eps=1e-5):
    m = x.mean(dim=axis, keepdim=True)
    v = x.var(dim=axis, keepdim=True, unbiased=False)
    return (x - m) / torch.sqrt(v + eps)
def _scatter_add(tgt, idx, src, axis=0):
    return tgt.clone().index_add_(axis, idx, src)
def _segment_sum(src, seg, n):
    out = torch.zeros((n,) + src.shape[1:], dtype=src.dtype)
    return out.index_add_(0, seg, src)
def _pad(x, pw):
    flat = tuple(v for pair in reversed(pw) for v in pair)
    return torch.nn.functional.pad(x, flat)

kernel_name = 'sequential_preLN__grouped_kv_mqa__dense_activation_squared_relu__prompt'

def setup_inputs():

    _w = (lambda a: (lambda t: t.to(torch.bfloat16) if t.is_floating_point() else t)(torch.as_tensor(a)))
    def _A_setup():
        B, S, D, H = 1, 2048, 512, 32
        Dh = D // H
        return {
            "x": _w((lambda *s: torch.randn(*s, dtype=torch.bfloat16) * 0.05)(B, S, D)),
            "wq": _w((lambda *s: torch.randn(*s, dtype=torch.bfloat16) * 0.05)(D, H * Dh)),
            "wk": _w((lambda *s: torch.randn(*s, dtype=torch.bfloat16) * 0.05)(D, Dh)),
            "wv": _w((lambda *s: torch.randn(*s, dtype=torch.bfloat16) * 0.05)(D, Dh)),
            "wo": _w((lambda *s: torch.randn(*s, dtype=torch.bfloat16) * 0.05)(H * Dh, D)),
        }
    _A_in = _A_setup()

    def _B_setup():
        B, S, D, F = 1, 2048, 512, 1792
        return {
            "x": _w((lambda *s: torch.randn(*s, dtype=torch.bfloat16) * 0.05)(B, S, D)),
            "w1": _w((lambda *s: torch.randn(*s, dtype=torch.bfloat16) * 0.05)(D, F)),
            "b1": _w((lambda *s: torch.randn(*s, dtype=torch.bfloat16) * 0.4)(F)),
            "w2": _w((lambda *s: torch.randn(*s, dtype=torch.bfloat16) * 0.05)(F, D)),
            "b2": _w((lambda *s: torch.randn(*s, dtype=torch.bfloat16) * 1.6)(D)),
        }
    _B_in = _B_setup()

    return {
        "A_x": _A_in["x"],
        "A_wq": _A_in["wq"],
        "A_wk": _A_in["wk"],
        "A_wv": _A_in["wv"],
        "A_wo": _A_in["wo"],
        "B_x": _B_in["x"],
        "B_w1": _B_in["w1"],
        "B_b1": _B_in["b1"],
        "B_w2": _B_in["w2"],
        "B_b2": _B_in["b2"],
    }

def reference(A_x, A_wq, A_wk, A_wv, A_wo, B_x, B_w1, B_b1, B_w2, B_b2):
    def _A_ref(x, wq, wk, wv, wo):
        B, S, D = x.shape
        H = 32
        Dh = D // H
        q = (lambda x, *d: x.permute(*d))((x @ wq).reshape(B, S, H, Dh), 0, 2, 1, 3)
        k = x @ wk
        v = x @ wv
        scores = torch.einsum("bhqd,bkd->bhqk", q, k) * (Dh ** -0.5)
        p = _softmax(scores, axis=-1)
        o = torch.einsum("bhqk,bkd->bhqd", p, v)
        return (lambda x, *d: x.permute(*d))(o, 0, 2, 1, 3).reshape(B, S, H * Dh) @ wo

    def _B_ref(x, w1, b1, w2, b2):
        h = torch.einsum("bsd,df->bsf", x, w1) + b1
        zero = torch.zeros_like(h)
        r = torch.where(h > zero, h, zero)
        h = r * r
        out = torch.einsum("bsf,fd->bsd", h, w2) + b2
        return out

    x = A_x
    h = x + _A_ref(_layernorm(x, axis=-1), A_wq, A_wk, A_wv, A_wo)
    h2 = h + _B_ref(_layernorm(h, axis=-1), B_w1, B_b1, B_w2, B_b2)
    return h2
```

```python
import re

class Ins:
    __slots__ = ("text", "op", "ops", "mods", "label", "comment")
    def __init__(self, text):
        self.text = text
        self.label = None
        t = text.split(";")[0].strip()
        self.comment = text
        if t.endswith(":"):
            self.label = t[:-1]; self.op = None; self.ops = []; self.mods = ""
            return
        if t.startswith(".") or t == "":
            self.op = None; self.ops = []; self.mods = ""
            return
        parts = t.split(None, 1)
        self.op = parts[0]
        rest = parts[1] if len(parts) > 1 else ""
        ops = []; depth = 0; cur = ""
        for ch in rest:
            if ch in "[(": depth += 1
            if ch in "])": depth -= 1
            if ch == "," and depth == 0:
                ops.append(cur.strip()); cur = ""
            else:
                cur += ch
        if cur.strip(): ops.append(cur.strip())
        self.mods = ""
        if ops:
            last = ops[-1].split(None, 1)
            if len(last) > 1 and not last[0].endswith(","):
                ops[-1] = last[0]; self.mods = last[1]
        self.ops = ops

def regset(o):
    o = o.strip()
    neg = o.lstrip("-")
    if neg.startswith("abs(") or neg.startswith("|"):
        neg = neg.replace("abs(", "").replace(")", "").replace("|", "")
    o = neg
    m = re.fullmatch(r"([vsa])(\d+)", o)
    if m: return {(m.group(1), int(m.group(2)))}
    m = re.fullmatch(r"([vsa])\[(\d+):(\d+)\]", o)
    if m: return {(m.group(1), i) for i in range(int(m.group(2)), int(m.group(3)) + 1)}
    if o == "vcc": return {("s", "vcc")}
    if o in ("vcc_lo", "vcc_hi"): return {("s", "vcc")}
    if o == "exec": return {("s", "exec")}
    if o == "m0": return {("s", "m0")}
    return set()

TRANS = ("v_exp_", "v_log_", "v_rcp_", "v_rsq_", "v_sqrt_", "v_sin_", "v_cos_")
def is_mfma(i): return i.op and i.op.startswith("v_mfma")
def is_valu(i): return i.op and i.op.startswith("v_") and not is_mfma(i)
def is_trans(i): return i.op and i.op.startswith(TRANS)
def is_vmem(i): return i.op and (i.op.startswith("buffer_") or i.op.startswith("global_") or i.op.startswith("flat_"))
def is_ds(i): return i.op and i.op.startswith("ds_")
def is_salu(i): return i.op and i.op.startswith("s_")
def mfma_passes(i):
    if "32x32x16" in i.op: return 8
    if "16x16x32" in i.op: return 4
    raise ValueError(i.op)

def rw(i):
    op, ops = i.op, i.ops
    W, R = set(), set()
    if op is None: return W, R
    rs = [regset(o) for o in ops]
    if is_mfma(i):
        W |= rs[0]; R |= rs[1] | rs[2] | rs[3]
    elif op.startswith("v_cmp"):
        W |= rs[0]
        for r in rs[1:]: R |= r
    elif op.startswith("v_readfirstlane") or op.startswith("v_readlane"):
        W |= rs[0]
        for r in rs[1:]: R |= r
    elif op.startswith("v_permlane") and "swap" in op:
        W |= rs[0] | rs[1]; R |= rs[0] | rs[1]
    elif op.startswith(("v_add_co", "v_sub_co", "v_addc_co", "v_subb_co", "v_subrev_co")):
        W |= rs[0] | rs[1]
        for r in rs[2:]: R |= r
    elif is_valu(i):
        W |= rs[0]
        for r in rs[1:]: R |= r
        if op.startswith(("v_fmac", "v_dot2c", "v_mac", "v_writelane")) or "UNUSED_PRESERVE" in i.mods or "_dpp" in op or "op_sel" in i.mods and "cvt_pk" in op:
            R |= rs[0]
        if op.startswith("v_cndmask") and len(ops) == 3:
            R |= {("s", "vcc")}
    elif is_ds(i):
        if op.startswith("ds_read") or op.startswith("ds_bpermute") or op.startswith("ds_swizzle") or op.startswith("ds_permute"):
            W |= rs[0]
            for r in rs[1:]: R |= r
        else:
            for r in rs: R |= r
    elif is_vmem(i):
        if op.startswith("buffer_load"):
            if "lds" in i.mods.split():
                for r in rs: R |= r
                R |= {("s", "m0")}
            else:
                W |= rs[0]
                for r in rs[1:]: R |= r
        elif op.startswith("buffer_store") or op.startswith("buffer_atomic"):
            for r in rs: R |= r
            if op.startswith("buffer_atomic") and "sc0" in i.mods.split(): W |= rs[0]
        elif op.startswith("global_load_lds"):
            for r in rs: R |= r
            R |= {("s", "m0")}
        elif op.startswith("global_load"):
            W |= rs[0]
            for r in rs[1:]: R |= r
        elif op.startswith("global_store"):
            for r in rs: R |= r
        elif op.startswith("global_atomic"):
            if "sc0" in i.mods.split():
                W |= rs[0]
                for r in rs[1:]: R |= r
            else:
                for r in rs: R |= r
        else:
            pass
    elif is_salu(i):
        if op.startswith(("s_cmp", "s_bitcmp", "s_cbranch", "s_branch", "s_waitcnt", "s_nop", "s_barrier", "s_endpgm", "s_sleep", "s_setprio")):
            for r in rs: R |= r
        elif op.startswith("s_and_saveexec") or op.startswith("s_or_saveexec"):
            W |= rs[0] | {("s", "exec")}; R |= rs[1] | {("s", "exec")}
        else:
            if rs: W |= rs[0]
            for r in rs[1:]: R |= r
    return W, R

def states(i):
    if i.op is None: return 0
    if i.op == "s_nop": return int(i.ops[0], 0) + 1
    return 1

def vonly(s): return {r for r in s if r[0] in "va"}
def sonly(s): return {r for r in s if r[0] == "s"}

def need(p, c):
    pw, pr = rw(p); cw, cr = rw(c)
    n = 0
    if p.op.startswith("v_dot"):
        pv = vonly(pw)
        if c.op == p.op and len(c.ops) == 4 and not (pv & (regset(c.ops[1]) | regset(c.ops[2]))):
            pass
        elif pv & (cr | cw):
            n = max(n, 3)
    if is_valu(p):
        pv = vonly(pw); ps = sonly(pw)
        if pv:
            if is_mfma(c) and pv & cr: n = max(n, 2)
            if c.op.startswith(("v_readlane", "v_readfirstlane")) and pv & cr: n = max(n, 1)
            if "_dpp" in c.op and pv & cr: n = max(n, 2)
            if c.op.startswith("v_permlane") and pv & cr: n = max(n, 2)
            if is_trans(p) and is_valu(c) and not is_trans(c) and pv & cr: n = max(n, 1)
            if is_trans(p) and is_mfma(c) and pv & cr: n = max(n, 2)
            if ("sdwa" in p.op or "op_sel" in p.mods) and is_valu(c) and pv & (cr | cw): n = max(n, 1)
        if ps:
            if is_vmem(c) and ps & cr: n = max(n, 5)
            if is_valu(c) and ps & cr:
                n = max(n, 4 if c.op.startswith(("v_readlane", "v_writelane")) else 2)
            if is_valu(c) and c.op.startswith("v_cndmask") and len(c.ops) == 3 and ("s", "vcc") in ps: n = max(n, 2)
            if is_salu(c) and ps & cr and not c.op.startswith("s_cbranch"): n = max(n, 1)
            if c.op.startswith("s_cbranch_vcc") and ("s", "vcc") in ps: n = max(n, 1)
    if is_mfma(p):
        ps_ = mfma_passes(p)
        D = pw
        if is_mfma(c):
            A = regset(c.ops[1]) | regset(c.ops[2]); C = regset(c.ops[3])
            if D & A: n = max(n, {4: 8, 8: 12}[ps_])
            if D & C:
                if C == D and mfma_passes(c) == ps_: pass
                else: n = max(n, {4: 6, 8: 10}[ps_])
            elif D & cw:
                n = max(n, {4: 6, 8: 10}[ps_])
        else:
            if D & (cr | cw) and (is_valu(c) or is_vmem(c) or is_ds(c)): n = max(n, {4: 8, 8: 12}[ps_])
        Cp = regset(p.ops[3])
        if is_valu(c) and Cp & cw and not (Cp & D): n = max(n, {4: 3, 8: 7}[ps_])
    if is_vmem(p) and p.op.startswith(("buffer_store_dwordx4", "buffer_store_dwordx3", "global_store_dwordx4", "global_store_dwordx3")):
        data = regset(p.ops[0]) if p.op.startswith("buffer") else regset(p.ops[1])
        if data & cw:
            n = max(n, 2 if is_valu(c) else 1)
    if is_ds(p) and p.op.startswith(("ds_write_b128", "ds_write_b96")):
        data = regset(p.ops[1])
        if data & cw and is_valu(c): n = max(n, 2)
    if is_salu(p) and ("s", "m0") in pw:
        if is_vmem(c) and ("s", "m0") in cr: n = max(n, 1)
    return n

MAXW = 14
def hazard_pass(lines, verbose=False):
    total = 0
    for it in range(50):
        ins = [Ins(l) for l in lines]
        labels = {i.label: k for k, i in enumerate(ins) if i.label}
        preds = [[] for _ in ins]
        for k, i in enumerate(ins):
            if k + 1 < len(ins) and not (i.op in ("s_branch", "s_endpgm")):
                preds[k + 1].append(k)
            if i.op and (i.op.startswith("s_cbranch") or i.op == "s_branch"):
                t = labels.get(i.ops[0])
                if t is not None: preds[t].append(k)
        fix = None
        for k, c in enumerate(ins):
            if c.op is None or c.op in ("s_nop",): continue
            worst = 0; who = None
            stack = [(p, 0) for p in preds[k]]
            seen = {}
            while stack:
                p, d = stack.pop()
                if d >= MAXW: continue
                if p in seen and seen[p] <= d: continue
                seen[p] = d
                pi = ins[p]
                if pi.op is not None and pi.op != "s_nop":
                    n = need(pi, c)
                    if n > d and n - d > worst:
                        worst = n - d; who = p
                for q in preds[p]:
                    stack.append((q, d + states(pi)))
            if worst > 0:
                fix = (k, worst, who); break
        if fix is None:
            return lines, total
        k, w, who = fix
        if verbose: print(f"hazard: +{w} before line {k}: {lines[k].strip()}   (producer: {lines[who].strip()})")
        nops = []
        while w > 0:
            c_ = min(w, 16); nops.append(f"    s_nop {c_-1}"); w -= c_
        lines = lines[:k] + nops + lines[k:]
        total += 1
        if it == 49: raise RuntimeError("too many hazard iterations")
    return lines, total

def hazard_pass_all(lines, verbose=False):
    total = 0
    while True:
        try:
            lines, n = _pass_many(lines, verbose)
        except RecursionError:
            raise
        total += n
        if n == 0: return lines, total

def _pass_many(lines, verbose):
    ins = [Ins(l) for l in lines]
    labels = {i.label: k for k, i in enumerate(ins) if i.label}
    preds = [[] for _ in ins]
    for k, i in enumerate(ins):
        if k + 1 < len(ins) and not (i.op in ("s_branch", "s_endpgm")):
            preds[k + 1].append(k)
        if i.op and (i.op.startswith("s_cbranch") or i.op == "s_branch"):
            t = labels.get(i.ops[0])
            if t is not None: preds[t].append(k)
    fixes = []
    extra = {}
    for k, c in enumerate(ins):
        if c.op is None or c.op == "s_nop": continue
        worst = 0; who = None
        stack = [(p, extra.get(k, 0)) for p in preds[k]]
        seen = {}
        while stack:
            p, d = stack.pop()
            if d >= MAXW: continue
            if p in seen and seen[p] <= d: continue
            seen[p] = d
            pi = ins[p]
            if pi.op is not None and pi.op != "s_nop":
                n = need(pi, c)
                if n > d and n - d > worst:
                    worst = n - d; who = p
            for q in preds[p]:
                stack.append((q, d + states(pi) + extra.get(p, 0)))
        if worst > 0:
            fixes.append((k, worst, who)); extra[k] = extra.get(k, 0) + worst
    for k, w, who in reversed(fixes):
        if verbose: print(f"hazard: +{w} before: {lines[k].strip()}   (producer: {lines[who].strip()})")
        nops = []
        while w > 0:
            c_ = min(w, 16); nops.append(f"    s_nop {c_-1}"); w -= c_
        lines = lines[:k] + nops + lines[k:]
    return lines, len(fixes)

class Asm:
    def __init__(self):
        self.lines = []
        self.vm = []
        self.lg = []
        self.uid = 0
    def __call__(self, s):
        for l in s.split("\n"):
            l = l.rstrip()
            if l.strip() == "": continue
            t = l.strip()
            self.lines.append(t if (t.endswith(":") and " " not in t) else "    " + t)
    def label(self, name): self.lines.append(name + ":")
    def newlabel(self, base):
        self.uid += 1
        return f"{base}_{self.uid}"
    def c(self, text): self.lines.append("    ; " + text)
    def vmem(self, s, tag=None):
        self(s); self.vm.append(tag)
    def wait_vm(self, tag):
        idx = max((k for k, t in enumerate(self.vm) if t == tag), default=None)
        if idx is None: return
        n = len(self.vm) - 1 - idx
        assert n <= 63, n
        self(f"s_waitcnt vmcnt({n})")
        self.vm = self.vm[idx + 1:]
    def wait_vm_all(self):
        self("s_waitcnt vmcnt(0)"); self.vm = []
    def ds(self, s, tag=None):
        self(s); self.lg.append(tag)
    def wait_lg(self, tag):
        idx = max((k for k, t in enumerate(self.lg) if t == tag), default=None)
        if idx is None: return
        n = len(self.lg) - 1 - idx
        if n > 15:
            n = 15
            idx = len(self.lg) - 1 - n
        self(f"s_waitcnt lgkmcnt({n})")
        self.lg = self.lg[idx + 1:]
    def wait_lg_all(self):
        self("s_waitcnt lgkmcnt(0)"); self.lg = []
```

```python
import sys
sys.path.insert(0, "work")
from asmlib import Asm, hazard_pass_all

NAME = "sequential_preLN__grouped_kv_mqa__dense_activation_squared_relu__prompt"
KNAME = NAME + "_kernel"

WS_EPOCH = 0x0
WS_FLKV  = 0x1000
WS_FLWT  = 0x3000
WS_FLO   = 0x4000
WS_FLH   = 0x6000
WS_FLHID = 0x8000
WS_KV    = 0x10000
WS_ST    = 0x60000
WS_O     = 0x100000
WS_H     = 0x300000
WS_HID   = 0x500000
WS_WOF   = 0xC00000
WS_W1F   = 0xC80000
WS_W2F   = 0xE40000
WS_DBG   = 0x1000000
WS_PROF  = 0x1800000
WS_SIZE  = 0x2000000

SRD_X, SRD_WQ, SRD_WK, SRD_WV = 8, 12, 16, 20
SRD_WO, SRD_W1, SRD_W2, SRD_B1 = 24, 28, 32, 36
SRD_B2, SRD_OUT, SRD_WS, SRD_T = 40, 44, 48, 52
def srd(b): return f"s[{b}:{b+3}]"
sW, sM, sC, sT0, sTag, sFast = "s56", "s57", "s58", "s59", "s60", "s61"
sFT, sTT, sKH, sXCC = "s62", "s63", "s90", "s91"
sID = "s2"
sA, sB, sD, sE_, sF, sG = "s92", "s93", "s94", "s95", "s96", "s97"
sCnt, sPh = "s98", "s99"
sX64 = "s[4:5]"; sY64 = "s[6:7]"

LOG2E = 1.4426950408889634
def f32bits(x):
    import struct
    return struct.unpack("<I", struct.pack("<f", x))[0]
def vr(b, n): return f"v[{b}:{b+n-1}]"

class Gen:
    def __init__(self, stop=None, prof=False, opt=None):
        self.a = Asm()
        self.stop = stop
        self.prof = prof
        self.opt = opt or {}
        self.nstamp = 0

    def stamp(self, name):
        if not self.prof: return
        i = self.nstamp; self.nstamp += 1
        assert i < 12
        self.a(f"s_memtime s[{64+2*i}:{65+2*i}]")
        self.stamp_names = getattr(self, "stamp_names", []) + [name]

    def dump_stamps(self):
        if not self.prof: return
        a = self.a
        a("s_waitcnt lgkmcnt(0)")
        a(f"s_lshl_b32 {sA}, {sID}, 3")
        a(f"s_add_u32 {sA}, {sA}, {sW}")
        a(f"s_lshl_b32 {sA}, {sA}, 6")
        a(f"s_add_u32 {sA}, {sA}, {WS_PROF}")
        a("v_mov_b32 v3, 0")
        a("s_mov_b64 exec, 1")
        for i in range(self.nstamp):
            a(f"v_mov_b32 v4, s{64+2*i}")
            a(f"buffer_store_dword v4, v3, {srd(SRD_WS)}, {sA} offen offset:{4*i}")
        a("s_mov_b64 exec, -1")
        a("s_waitcnt vmcnt(0)")

    def prologue(self):
        a = self.a
        a(f"s_cmp_ge_u32 {sID}, 256")
        a("s_cbranch_scc1 L_end")
        a("s_load_dwordx16 s[64:79], s[0:1], 0")
        a("s_load_dwordx8 s[80:87], s[0:1], 64")
        a("s_load_dwordx2 s[88:89], s[0:1], 96")
        a(f"s_and_b32 {sA}, {sID}, 7")
        a(f"s_lshr_b32 {sB}, {sID}, 6")
        a(f"s_lshl_b32 {sB}, {sB}, 3")
        a(f"s_add_u32 {sC}, {sA}, {sB}")
        a(f"s_lshr_b32 {sM}, {sID}, 3")
        a(f"s_and_b32 {sM}, {sM}, 7")
        a(f"s_lshl_b32 {sT0}, {sC}, 6")
        a(f"s_getreg_b32 {sXCC}, hwreg(HW_REG_XCC_ID)")
        a(f"s_and_b32 {sXCC}, {sXCC}, 7")
        a("v_lshrrev_b32 v3, 6, v0")
        a("v_and_b32 v1, 63, v0")
        a(f"v_readfirstlane_b32 {sW}, v3")
        a("v_lshlrev_b32 v2, 4, v1")
        a(f"s_lshr_b32 {sFT}, {sW}, 2")
        a(f"s_lshr_b32 {sTT}, {sW}, 1")
        a(f"s_and_b32 {sTT}, {sTT}, 1")
        a(f"s_and_b32 {sKH}, {sW}, 1")
        a("s_waitcnt lgkmcnt(0)")
        def mk(b, lo, size):
            a(f"s_mov_b32 s{b}, s{lo}")
            a(f"s_mov_b32 s{b+1}, s{lo+1}")
            a(f"s_mov_b32 s{b+2}, 0x{size:x}")
            a(f"s_mov_b32 s{b+3}, 0x20000")
        mk(SRD_X, 64, 0x200000)
        mk(SRD_WS, 88, WS_SIZE)
        a(f"s_load_dword {sTag}, s[88:89], {WS_EPOCH}")
        mk(SRD_WK, 68, 0x4000)
        mk(SRD_WV, 70, 0x4000)
        mk(SRD_WQ, 66, 0x80000)
        self.mk = mk

    def rest_srds(self):
        mk = self.mk
        mk(SRD_WO, 72, 0x80000)
        mk(SRD_W1, 76, 0x1C0000)
        mk(SRD_B1, 78, 3584)
        mk(SRD_W2, 80, 0x1C0000)
        mk(SRD_B2, 82, 1024)
        mk(SRD_OUT, 84, 0x200000)

    def dma(self, voff, srdb, soff, m0, tag, extra=""):
        a = self.a
        a(f"s_mov_b32 m0, {m0}")
        a.vmem(f"buffer_load_dwordx4 {voff}, {srd(srdb)}, {soff} offen {extra} lds", tag)

    def p1(self):
        a = self.a
        ROW = 4
        vXa, vXb, vKVo, vWAo = "v16", "v17", "v18", "v19"
        LDS_SCR = 64 * 1024
        LDS_WA = 66 * 1024
        LDS_WK = 128 * 1024
        LDS_WV = 144 * 1024
        a(f"s_lshl_b32 {sA}, {sM}, 3")
        a(f"s_add_u32 {sA}, {sA}, {sT0}")
        a(f"s_add_u32 {sB}, {sA}, {sW}")
        a(f"s_lshl_b32 {sB}, {sB}, 10")
        a.vmem(f"buffer_load_dwordx4 {vr(ROW,4)}, v2, {srd(SRD_X)}, {sB} offen", "row")
        a("v_lshrrev_b32 v8, 3, v1")
        a("v_and_b32 v9, 7, v1")
        a("v_lshrrev_b32 v10, 1, v8")
        a("v_xor_b32 v10, v10, v9")
        a(f"s_and_b32 {sB}, {sM}, 1")
        a(f"s_lshl_b32 {sB}, {sB}, 2")
        a(f"v_xor_b32 v10, {sB}, v10")
        a("v_lshlrev_b32 v10, 4, v10")
        a(f"v_lshl_add_u32 {vXa}, v8, 10, v10")
        a(f"v_xor_b32 {vXb}, 64, {vXa}")
        def xa_dma(gs, voff, tag):
            a(f"s_lshl_b32 {sD}, {gs}, 3")
            a(f"s_add_u32 {sD}, {sD}, {sT0}")
            a(f"s_lshl_b32 {sD}, {sD}, 10")
            a(f"s_lshl_b32 {sE_}, {sW}, 7")
            a(f"s_add_u32 {sD}, {sD}, {sE_}")
            a(f"s_lshl_b32 {sE_}, {sW}, 13")
            a(f"s_lshl_b32 {sF}, {gs}, 10")
            a(f"s_add_u32 {sE_}, {sE_}, {sF}")
            self.dma(voff, SRD_X, sD, sE_, tag)
        xa_dma(sM, vXa, "kv0")
        a("v_lshrrev_b32 v8, 1, v1")
        a("v_and_b32 v9, 0x13, v8")
        a("v_bfe_u32 v10, v8, 2, 1")
        a("v_lshl_or_b32 v9, v10, 3, v9")
        a("v_bfe_u32 v10, v8, 3, 1")
        a("v_lshl_or_b32 v9, v10, 2, v9")
        a("v_lshlrev_b32 v9, 5, v9")
        a("v_and_b32 v10, 1, v1")
        a(f"v_lshl_or_b32 {vKVo}, v10, 4, v9")
        a(f"s_lshl_b32 {sD}, {sW}, 11")
        a(f"s_add_u32 {sE_}, {sD}, {LDS_WK}")
        self.dma(vKVo, SRD_WK, sD, sE_, "kv0")
        a(f"s_add_u32 {sE_}, {sD}, {LDS_WV}")
        self.dma(vKVo, SRD_WV, sD, sE_, "kv0")
        a(f"s_add_u32 {sD}, {sD}, 1024")
        a(f"s_add_u32 {sE_}, {sD}, {LDS_WK}")
        self.dma(vKVo, SRD_WK, sD, sE_, "kv0")
        a(f"s_add_u32 {sE_}, {sD}, {LDS_WV}")
        self.dma(vKVo, SRD_WV, sD, sE_, "kv0")
        for i in range(1, 8):
            a(f"s_add_u32 {sB}, {sM}, {i}")
            a(f"s_and_b32 {sB}, {sB}, 7")
            xa_dma(sB, vXa if i % 2 == 0 else vXb, "xa")
        a("v_lshrrev_b32 v8, 3, v1")
        a("v_and_b32 v9, 7, v1")
        a("v_bfe_u32 v10, v1, 4, 1")
        a("v_lshlrev_b32 v10, 2, v10")
        a("v_xor_b32 v9, v9, v10")
        a("v_lshlrev_b32 v9, 4, v9")
        a(f"v_lshl_add_u32 {vWAo}, v8, 10, v9")
        a(f"s_lshl_b32 {sD}, {sW}, 13")
        a(f"s_lshl_b32 {sE_}, {sM}, 7")
        a(f"s_add_u32 {sD}, {sD}, {sE_}")
        a(f"s_lshl_b32 {sE_}, {sW}, 10")
        a(f"s_add_u32 {sE_}, {sE_}, {LDS_WA}")
        for c in range(7):
            self.dma(vWAo, SRD_WQ, sD, sE_, "wa")
            a(f"s_add_u32 {sD}, {sD}, {64*1024}")
            a(f"s_add_u32 {sE_}, {sE_}, 8192")
        a(f"s_cmp_ge_u32 {sW}, 6")
        a("s_cbranch_scc1 L_skip_c7")
        a(f"s_mov_b32 m0, {sE_}")
        a(f"buffer_load_dwordx4 {vWAo}, {srd(SRD_WQ)}, {sD} offen lds")
        a.label("L_skip_c7")
        self.rest_srds()
        XF, WF = 64, 128
        a(f"s_cmp_ge_u32 {sW}, 2")
        a("s_cbranch_scc1 L_no_ones")
        for i in range(64):
            a(f"v_mov_b32 v{XF+i}, 0x3f803f80" if i == 0 else f"v_mov_b32 v{XF+i}, v{XF}")
        a.label("L_no_ones")
        a("s_waitcnt vmcnt(19)")
        a("s_mov_b32 s3, 0x3f803f80")
        a(f"v_dot2_f32_bf16 v8, v{ROW}, s3, 0")
        a(f"v_dot2_f32_bf16 v9, v{ROW}, v{ROW}, 0")
        for i in range(1, 4):
            a(f"v_dot2_f32_bf16 v8, v{ROW+i}, s3, v8")
            a(f"v_dot2_f32_bf16 v9, v{ROW+i}, v{ROW+i}, v9")
        self.wave_reduce(["v8", "v9"], "add", ["v10", "v11"])
        a(f"v_mul_f32 v8, 0x{f32bits(1/512):x}, v8")
        a(f"v_mul_f32 v9, 0x{f32bits(1/512):x}, v9")
        a("v_fma_f32 v9, -v8, v8, v9")
        a("v_max_f32 v9, 0, v9")
        a(f"v_add_f32 v9, 0x{f32bits(1e-5):x}, v9")
        a("v_rsq_f32 v9, v9")
        a(f"s_lshl_b32 {sA}, {sW}, 3")
        a(f"s_add_u32 {sA}, {sA}, {LDS_SCR}")
        a(f"v_mov_b32 v10, {sA}")
        a("s_mov_b64 exec, 1")
        a("ds_write_b64 v10, v[8:9]")
        a("s_mov_b64 exec, -1")
        a("s_waitcnt vmcnt(14) lgkmcnt(0)")
        a("s_barrier")
        a(f"s_cmp_ge_u32 {sW}, 2")
        a("s_cbranch_scc1 L_kv_done")
        a("v_and_b32 v8, 7, v1")
        a(f"s_lshl_b32 {sA}, {sM}, 3")
        a(f"v_add_u32 v8, {sA}, v8")
        a("v_bfe_u32 v9, v8, 1, 3")
        a("v_lshrrev_b32 v10, 4, v1")
        a("v_xor_b32 v9, v9, v10")
        a("v_lshlrev_b32 v9, 4, v9")
        a("v_lshl_add_u32 v20, v8, 7, v9")
        a("v_xor_b32 v21, 64, v20")
        a("v_bfe_u32 v8, v1, 4, 1")
        a("v_bfe_u32 v9, v1, 2, 2")
        a("v_lshl_add_u32 v8, v8, 2, v9")
        a("v_lshlrev_b32 v8, 5, v8")
        a("v_lshrrev_b32 v9, 5, v1")
        a("v_lshl_add_u32 v8, v9, 9, v8")
        a("v_and_b32 v9, 3, v1")
        a("v_lshl_add_u32 v8, v9, 3, v8")
        a(f"s_lshl_b32 {sA}, {sW}, 14")
        a(f"s_add_u32 {sA}, {sA}, {LDS_WK}")
        a(f"v_add_u32 v22, {sA}, v8")
        a("s_mov_b32 exec_lo, 0x00ff00ff")
        a("s_mov_b32 exec_hi, 0x00ff00ff")
        for s in range(16):
            a.ds(f"ds_read_b128 {vr(XF+4*s,4)}, {'v20' if s%2==0 else 'v21'} offset:{(s>>1)*8192}", f"x{s}")
        a("s_mov_b64 exec, -1")
        D = 24
        a(f"s_cmp_eq_u32 {sW}, 1")
        a("s_cbranch_scc1 L_vwave")
        saved_lg = list(a.lg)
        for wave in ("K", "V"):
            a.lg = list(saved_lg)
            if wave == "V": a.label("L_vwave")
            def wread(s):
                a.ds(f"ds_read_b64_tr_b16 {vr(WF+4*s,2)}, v22 offset:{s*1024}", f"w{s}")
                a.ds(f"ds_read_b64_tr_b16 {vr(WF+4*s+2,2)}, v22 offset:{s*1024+256}", f"w{s}")
            for s in range(4): wread(s)
            for s in range(16):
                a.wait_lg(f"w{s}")
                srcC = "0" if s == 0 else vr(D, 4)
                if wave == "K":
                    a(f"v_mfma_f32_16x16x32_bf16 {vr(D,4)}, {vr(WF+4*s,4)}, {vr(XF+4*s,4)}, {srcC}")
                else:
                    a(f"v_mfma_f32_16x16x32_bf16 {vr(D,4)}, {vr(XF+4*s,4)}, {vr(WF+4*s,4)}, {srcC}")
                if s + 4 < 16: wread(s + 4)
            a(f"s_lshl_b32 {sA}, {sC}, 3")
            a(f"s_add_u32 {sA}, {sA}, {sM}")
            a(f"s_lshl_b32 {sB}, {sA}, 10")
            a(f"s_add_u32 {sB}, {sB}, {WS_KV}")
            if wave == "K":
                a("v_and_b32 v8, 7, v1")
                a("v_lshlrev_b32 v8, 3, v8")
                a(f"v_add_u32 v8, {LDS_SCR}, v8")
                a.ds("ds_read_b64 v[10:11], v8", "st")
                for r in range(4):
                    a(f"v_mov_b32_dpp v{28+r}, v{D+r} row_ror:8 row_mask:0xf bank_mask:0xf")
                a.wait_lg("st")
                for r in range(4):
                    a(f"v_fma_f32 v{D+r}, -v10, v{28+r}, v{D+r}")
                for r in range(4):
                    a(f"v_mul_f32 v{D+r}, v11, v{D+r}")
                a(f"v_cvt_pk_bf16_f32 v32, v{D}, v{D+1}")
                a(f"v_cvt_pk_bf16_f32 v33, v{D+2}, v{D+3}")
                a("v_mov_b32 v34, v32")
                a("v_mov_b32 v35, v33")
                a("v_permlane32_swap_b32 v32, v34")
                a("v_permlane32_swap_b32 v33, v35")
                a("v_bfe_u32 v8, v1, 4, 1")
                a("v_and_b32 v9, 7, v1")
                a("v_lshlrev_b32 v9, 4, v9")
                a("v_lshl_add_u32 v8, v8, 7, v9")
                a("s_mov_b32 exec_lo, 0x00ff00ff")
                a("s_mov_b32 exec_hi, 0")
                a(f"buffer_store_dwordx4 v[32:35], v8, {srd(SRD_WS)}, {sB} offen sc1")
                a("s_mov_b64 exec, -1")
                a("v_dot2_f32_bf16 v12, v32, v32, 0")
                for i in (33, 34, 35):
                    a(f"v_dot2_f32_bf16 v12, v{i}, v{i}, v12")
                a("v_mov_b32 v13, v12")
                a("v_permlane16_swap_b32 v12, v13")
                a("v_add_f32 v12, v12, v13")
                a("v_and_b32 v13, 8, v1")
                a("v_cmp_eq_u32 vcc, 0, v13")
                a("v_cndmask_b32 v12, 0, v12, vcc")
                for n in (8, 4, 2, 1):
                    a(f"v_max_f32_dpp v12, v12, v12 row_ror:{n} row_mask:0xf bank_mask:0xf")
                a(f"v_readlane_b32 {sD}, v12, 0")
                a(f"s_add_u32 {sD}, {sD}, 8")
                a(f"s_and_b32 {sD}, {sD}, 0xfffffff8")
                a(f"s_or_b32 {sD}, {sD}, {sXCC}")
                a(f"s_mov_b32 s3, {sD}")
                a(f"s_mov_b32 {sG}, {sA}")
                a("s_branch L_kv_done")
            else:
                a("v_bfe_u32 v8, v1, 4, 1")
                a("v_lshlrev_b32 v8, 5, v8")
                a(f"v_add_u32 v8, {LDS_SCR}, v8")
                a.ds("ds_read_b128 v[12:15], v8", "st")
                a.ds("ds_read_b128 v[36:39], v8 offset:16", "st")
                a("v_and_b32 v9, 7, v1")
                a("v_lshlrev_b32 v9, 3, v9")
                a(f"v_add_u32 v40, {LDS_SCR}, v9")
                a.ds("ds_read_b64 v[42:43], v40", "st")
                a(f"v_mov_b32 v28, v{D}")
                a(f"v_mov_b32 v29, v{D}")
                a("v_permlane32_swap_b32 v28, v29")
                a.wait_lg("st")
                st = [(12, 13), (14, 15), (36, 37), (38, 39)]
                for r in range(4):
                    a(f"v_fma_f32 v{D+r}, -v{st[r][0]}, v29, v{D+r}")
                for r in range(4):
                    a(f"v_mul_f32 v{D+r}, v{st[r][1]}, v{D+r}")
                a(f"v_cvt_pk_bf16_f32 v32, v{D}, v{D+1}")
                a(f"v_cvt_pk_bf16_f32 v33, v{D+2}, v{D+3}")
                a("v_mov_b32 v34, v32")
                a("v_mov_b32 v35, v33")
                a("v_permlane16_swap_b32 v32, v34")
                a("v_permlane16_swap_b32 v33, v35")
                a("v_add_u32 v8, 256, v2")
                a("s_mov_b64 exec, 0xffff")
                a(f"buffer_store_dwordx4 v[32:35], v8, {srd(SRD_WS)}, {sB} offen sc1")
                a("s_mov_b64 exec, 0xff")
                a("v_add_u32 v9, 512, v9")
                a(f"buffer_store_dwordx2 v[42:43], v9, {srd(SRD_WS)}, {sB} offen sc1")
                a("s_mov_b64 exec, -1")
                a(f"s_mov_b32 {sG}, {sA}")
        a.lg = []
        a.label("L_kv_done")
        a(f"s_cmp_ge_u32 {sW}, 2")
        a("s_cbranch_scc1 L_b2_w")
        a("s_waitcnt vmcnt(2) lgkmcnt(0)")
        a(f"s_cmp_eq_u32 {sW}, 1")
        a("s_cbranch_scc1 L_b2")
        a("s_waitcnt vmcnt(1)")
        a("s_branch L_b2")
        a.label("L_b2_w")
        a("s_waitcnt vmcnt(0)")
        a.label("L_b2")
        a("s_barrier")
        a.vm = []
        a(f"s_cmp_eq_u32 {sKH}, 0")
        a("s_cbranch_scc1 L_nodelay")
        a(f"s_lshl_b32 {sE_}, {sM}, 7")
        a(f"s_add_u32 {sD}, {sE_}, {496*1024}")
        a(f"s_mov_b32 m0, {LDS_WA + 7*8192 + 6*1024}")
        a(f"buffer_load_dwordx4 {vWAo}, {srd(SRD_WQ)}, {sD} offen lds")
        a(f"s_add_u32 {sD}, {sE_}, {504*1024}")
        a(f"s_mov_b32 m0, {LDS_WA + 7*8192 + 7*1024}")
        a(f"buffer_load_dwordx4 {vWAo}, {srd(SRD_WQ)}, {sD} offen lds")
        a.label("L_nodelay")
        AF, BF, ACC, CS = 64, 128, 32, 48
        vAe, vAo = "v20", "v21"
        vB = ["v22", "v23", "v24", "v25"]
        a("v_bfe_u32 v8, v1, 2, 2")
        a("v_lshrrev_b32 v9, 5, v1")
        a("v_lshl_add_u32 v9, v9, 3, v8")
        a("v_lshlrev_b32 v9, 7, v9")
        a("v_bfe_u32 v10, v1, 4, 1")
        a(f"v_xor_b32 v10, {sKH}, v10")
        a("v_lshlrev_b32 v10, 5, v10")
        a("v_and_b32 v11, 3, v1")
        a("v_lshl_add_u32 v10, v11, 3, v10")
        a(f"s_lshl_b32 {sA}, {sFT}, 6")
        a(f"v_add_u32 v10, {sA}, v10")
        a("v_bfe_u32 v11, v1, 3, 1")
        a("v_lshlrev_b32 v11, 6, v11")
        a("v_xor_b32 v10, v10, v11")
        a("v_add_u32 v9, v9, v10")
        a(f"s_lshl_b32 {sA}, {sKH}, 15")
        a(f"s_add_u32 {sA}, {sA}, {LDS_WA}")
        a(f"s_lshl_b32 {sB}, {sTT}, 11")
        a(f"s_add_u32 {sD}, {sA}, {sB}")
        a(f"v_add_u32 {vAe}, {sD}, v9")
        a(f"s_sub_u32 {sD}, {sA}, {sB}")
        a(f"v_add_u32 {vAo}, {sD}, v9")
        a("v_and_b32 v8, 31, v1")
        a("v_bfe_u32 v9, v1, 1, 3")
        a("v_lshrrev_b32 v10, 5, v1")
        a("v_xor_b32 v9, v9, v10")
        a("v_lshlrev_b32 v9, 4, v9")
        a("v_lshl_add_u32 v8, v8, 7, v9")
        a(f"s_lshl_b32 {sA}, {sKH}, 15")
        a(f"s_lshl_b32 {sB}, {sTT}, 12")
        a(f"s_add_u32 {sA}, {sA}, {sB}")
        a(f"v_add_u32 v8, {sA}, v8")
        a(f"s_lshl_b32 {sB}, {sTT}, 5")
        a(f"v_xor_b32 {vB[0]}, {sB}, v8")
        a(f"v_xor_b32 {vB[1]}, 32, {vB[0]}")
        a(f"v_xor_b32 {vB[2]}, 64, {vB[0]}")
        a(f"v_xor_b32 {vB[3]}, 96, {vB[0]}")
        a("s_mov_b32 s5, 0x3f803f80")
        NB = 5
        def qread(p):
            c, q = p >> 2, p & 3
            sl = p % NB
            va = vAe if q % 2 == 0 else vAo
            off = c * 8192 + q * 2048
            a.ds(f"ds_read_b64_tr_b16 {vr(AF+4*sl,2)}, {va} offset:{off}", f"q{p}")
            a.ds(f"ds_read_b64_tr_b16 {vr(AF+4*sl+2,2)}, {va} offset:{off+512}", f"q{p}")
            a.ds(f"ds_read_b128 {vr(BF+4*sl,4)}, {vB[q]} offset:{c*8192}", f"q{p}")
        PRE = 4
        for p in range(PRE): qread(p)
        for p in range(16):
            sl = p % NB
            a.wait_lg(f"q{p}")
            srcC = "0" if p == 0 else vr(ACC, 16)
            a(f"v_mfma_f32_32x32x16_bf16 {vr(ACC,16)}, {vr(AF+4*sl,4)}, {vr(BF+4*sl,4)}, {srcC}")
            if p % 2 == 0:
                for i in range(4):
                    src2 = "0" if (p == 0 and i == 0) else f"v{CS}"
                    a(f"v_dot2_f32_bf16 v{CS}, v{AF+4*sl+i}, s5, {src2}")
            nx = p + PRE
            if nx == 14:
                a("s_waitcnt vmcnt(0)")
                self.kv_flag()
            if nx < 16: qread(nx)
        LDS_E = 132 * 1024
        LDS_CS = 148 * 1024
        a(f"s_lshl_b32 {sA}, {sW}, 11")
        a(f"s_add_u32 {sA}, {sA}, {LDS_E}")
        a(f"v_add_u32 v8, {sA}, v2")
        a(f"ds_write_b128 v8, {vr(ACC+8,4)}")
        a(f"ds_write_b128 v8, {vr(ACC+12,4)} offset:1024")
        a(f"v_mov_b32 v9, v{CS}")
        a(f"v_permlane32_swap_b32 v{CS}, v9")
        a(f"v_add_f32 v9, v{CS}, v9")
        a("v_and_b32 v10, 31, v1")
        a(f"s_lshl_b32 {sA}, {sKH}, 4")
        a(f"v_xor_b32 v10, {sA}, v10")
        a(f"s_lshl_b32 {sA}, {sKH}, 1")
        a(f"s_add_u32 {sA}, {sA}, {sTT}")
        a(f"s_lshl_b32 {sA}, {sA}, 1")
        a(f"s_add_u32 {sA}, {sA}, {sFT}")
        a(f"s_lshl_b32 {sA}, {sA}, 7")
        a(f"s_add_u32 {sA}, {sA}, {LDS_CS}")
        a("v_lshlrev_b32 v10, 2, v10")
        a(f"v_add_u32 v10, {sA}, v10")
        a("ds_write_b32 v10, v9")
        a("s_waitcnt lgkmcnt(0)")
        a("s_barrier")
        a.lg = []
        a(f"s_xor_b32 {sA}, {sW}, 1")
        a(f"s_lshl_b32 {sA}, {sA}, 11")
        a(f"s_add_u32 {sA}, {sA}, {LDS_E}")
        a(f"v_add_u32 v8, {sA}, v2")
        a.ds(f"ds_read_b128 {vr(64,4)}, v8", "e")
        a.ds(f"ds_read_b128 {vr(68,4)}, v8 offset:1024", "e")
        a("v_lshrrev_b32 v9, 5, v1")
        a("v_lshlrev_b32 v9, 4, v9")
        a(f"s_lshl_b32 {sA}, {sFT}, 7")
        a(f"s_lshl_b32 {sB}, {sKH}, 6")
        a(f"s_add_u32 {sA}, {sA}, {sB}")
        a(f"s_add_u32 {sA}, {sA}, {LDS_CS}")
        a(f"v_add_u32 v9, {sA}, v9")
        for q in range(4):
            a.ds(f"ds_read_b128 {vr(72+8*q,4)}, v9 offset:{q*256}", "cs")
            a.ds(f"ds_read_b128 {vr(76+8*q,4)}, v9 offset:{q*256+32}", "cs")
        a.wait_lg("e")
        for i in range(8):
            a(f"v_add_f32 v{ACC+i}, v{ACC+i}, v{64+i}")
        a.wait_lg("cs")
        for i in range(8):
            a(f"v_add_f32 v{72+i}, v{72+i}, v{80+i}")
            a(f"v_add_f32 v{88+i}, v{88+i}, v{96+i}")
        for i in range(8):
            a(f"v_add_f32 v{40+i}, v{72+i}, v{88+i}")


    def poll_begin(self, name, limit=200000):
        a = self.a
        a(f"s_mov_b32 {sCnt}, {limit}")
        a.label(f"L_poll_{name}")
    def poll_end(self, name, sleep=1):
        a = self.a
        a(f"s_cbranch_vccz L_pollok_{name}")
        a(f"s_sub_u32 {sCnt}, {sCnt}, 1")
        a(f"s_cmp_eq_u32 {sCnt}, 0")
        a(f"s_cbranch_scc1 L_pollok_{name}")
        if sleep: a(f"s_sleep {sleep}")
        a(f"s_branch L_poll_{name}")
        a.label(f"L_pollok_{name}")

    def p2(self):
        a = self.a
        LDS_E = 132 * 1024
        Q, NEGM, S0, S1, P, O, KF, VF = 4, 8, 24, 40, 56, 64, 80, 88
        vKa, vVa = "v104", "v105"
        W1 = 128
        sTG = "s3"
        a(f"s_add_u32 {sTG}, {sTag}, 1")
        self.stamp("b3")
        if self.opt.get("kvsleep", 0):
            a(f"s_sleep {self.opt['kvsleep']}")
        a("v_lshlrev_b32 v3, 6, v1")
        a(f"s_mov_b32 {sA}, {WS_FLKV}")
        self.poll_begin("kv")
        for q in range(4):
            a(f"buffer_load_dwordx4 {vr(64+4*q,4)}, v3, {srd(SRD_WS)}, {sA} offen offset:{16*q} sc1")
        a("s_waitcnt vmcnt(0)")
        a(f"v_xor_b32 v80, {sTG}, v64")
        a(f"v_xor_b32 v81, {sTG}, v66")
        a("v_or_b32 v80, v80, v81")
        for q in range(1, 4):
            a(f"v_xor_b32 v81, {sTG}, v{64+4*q}")
            a("v_or_b32 v80, v80, v81")
            a(f"v_xor_b32 v81, {sTG}, v{66+4*q}")
            a("v_or_b32 v80, v80, v81")
        a("v_cmp_ne_u32 vcc, 0, v80")
        self.poll_end("kv", sleep=2)
        self.stamp("kvok")
        a("v_bfe_u32 v8, v1, 3, 2")
        a("v_and_b32 v9, 7, v1")
        a("v_lshlrev_b32 v9, 3, v9")
        a("v_lshl_add_u32 v8, v8, 10, v9")
        a(f"s_lshl_b32 {sA}, {sC}, 3")
        a(f"s_lshl_b32 {sB}, {sTT}, 2")
        a(f"s_add_u32 {sA}, {sA}, {sB}")
        a(f"s_lshl_b32 {sA}, {sA}, 10")
        a(f"s_add_u32 {sA}, {sA}, {WS_KV + 512}")
        a(f"buffer_load_dwordx2 v[10:11], v8, {srd(SRD_WS)}, {sA} offen sc1")
        a("v_and_b32 v12, 31, v1")
        a("v_and_b32 v13, 0x13, v12")
        a("v_bfe_u32 v14, v12, 2, 1")
        a("v_lshl_or_b32 v13, v14, 3, v13")
        a("v_bfe_u32 v14, v12, 3, 1")
        a("v_lshl_or_b32 v13, v14, 2, v13")
        a("v_lshrrev_b32 v14, 3, v13")
        a("v_lshlrev_b32 v14, 10, v14")
        a("v_and_b32 v13, 7, v13")
        a("v_lshl_or_b32 v14, v13, 4, v14")
        a("v_lshrrev_b32 v13, 5, v1")
        a("v_lshl_or_b32 v14, v13, 7, v14")
        a("v_lshrrev_b32 v15, 4, v1")
        a("v_lshlrev_b32 v15, 10, v15")
        a("v_and_b32 v13, 15, v1")
        a("v_lshl_or_b32 v15, v13, 4, v15")
        a("v_add_u32 v15, 256, v15")
        a(f"s_lshr_b32 {sF}, {sID}, 3")
        a(f"s_lshl_b32 {sF}, {sF}, 1")
        a(f"s_add_u32 {sF}, {sF}, {sW}")
        a(f"s_lshl_b32 {sE_}, {sW}, 11")
        for i in range(8):
            a(f"s_and_b32 {sD}, {sF}, 63")
            a(f"s_lshl_b32 {sD}, {sD}, 12")
            a(f"s_add_u32 {sD}, {sD}, {WS_KV}")
            a(f"s_mov_b32 m0, {sE_}")
            a(f"buffer_load_dwordx4 v14, {srd(SRD_WS)}, {sD} offen sc1 lds")
            a(f"s_add_u32 {sB}, {sE_}, 1024")
            a(f"s_mov_b32 m0, {sB}")
            a(f"buffer_load_dwordx4 v15, {srd(SRD_WS)}, {sD} offen sc1 lds")
            if i < 7:
                a(f"s_add_u32 {sF}, {sF}, 8")
                a(f"s_add_u32 {sE_}, {sE_}, {8*2048}")
        self.wt_issue()
        a("v_and_b32 v80, -8, v65")
        for q in range(1, 4):
            a(f"v_and_b32 v81, -8, v{65+4*q}")
            a("v_max_f32 v80, v80, v81")
        a(f"v_xor_b32 v82, {sXCC}, v65")
        for q in range(1, 4):
            a(f"v_xor_b32 v81, {sXCC}, v{65+4*q}")
            a("v_or_b32 v82, v82, v81")
        a("v_and_b32 v82, 7, v82")
        a("v_cmp_ne_u32 vcc, 0, v82")
        a(f"s_lshl_b32 {sA}, {sC}, 1")
        a(f"s_lshr_b64 {sX64}, vcc, {sA}")
        a(f"s_and_b32 {sFast}, s4, 3")
        if self.opt.get("slow"): a(f"s_mov_b32 {sFast}, 1")
        self.wave_reduce(["v80"], "max", ["v81"])
        a("v_sqrt_f32 v80, v80")
        a(f"s_or_b32 {sA}, {sID}, {sW}")
        a(f"s_cmp_lg_u32 {sA}, 0")
        a("s_cbranch_scc1 L_noepoch")
        a(f"v_mov_b32 v81, {sTG}")
        a("v_mov_b32 v82, 0")
        a("s_mov_b64 exec, 1")
        a(f"buffer_store_dword v81, v82, {srd(SRD_WS)}, 0 offen")
        a("s_mov_b64 exec, -1")
        a.label("L_noepoch")
        a("s_waitcnt vmcnt(18)")
        a(f"v_mul_f32 v11, 0x{f32bits(0.25*LOG2E):x}, v11")
        for i in range(8):
            a(f"v_fma_f32 v{32+i}, -v10, v{40+i}, v{32+i}")
        for i in range(8):
            a(f"v_mul_f32 v{32+i}, v11, v{32+i}")
        for i in range(4):
            a(f"v_cvt_pk_bf16_f32 v{Q+i}, v{32+2*i}, v{33+2*i}")
        if self.stop == "q":
            self.dump_regs(0, [Q, Q+1, Q+2, Q+3], WS_DBG)
            return
        a(f"v_dot2_f32_bf16 v12, v{Q}, v{Q}, 0")
        for i in range(1, 4):
            a(f"v_dot2_f32_bf16 v12, v{Q+i}, v{Q+i}, v12")
        a("v_mov_b32 v13, v12")
        a("v_permlane32_swap_b32 v12, v13")
        a("v_add_f32 v12, v12, v13")
        a("v_sqrt_f32 v12, v12")
        a("v_mul_f32 v12, v12, v80")
        a(f"v_mul_f32 v12, 0x{f32bits(1.0078125):x}, v12")
        a(f"v_cmp_lt_f32 vcc, 0x{f32bits(48.0):x}, v12")
        a("v_cmp_u_f32 s[4:5], v12, v12")
        a("s_or_b64 vcc, vcc, s[4:5]")
        a("s_cmp_lg_u64 vcc, 0")
        a(f"s_cselect_b32 {sG}, 1, 0")
        if self.opt.get("forcefb"): a(f"s_mov_b32 {sG}, 1")
        if self.opt.get("fixm"): a("v_mov_b32 v12, 0x41a00000")
        if self.opt.get("dumpm"):
            self.dump_regs(0, [12, 80], WS_DBG)
        a(f"v_sub_f32 v{NEGM}, 0, v12")
        for i in range(1, 16):
            a(f"v_mov_b32 v{NEGM+i}, v{NEGM}")
        a(f"v_mov_b32 v{VF}, 0x3f803f80")
        for i in range(1, 16):
            a(f"v_mov_b32 v{VF+i}, v{VF}")
        for i in range(16):
            a(f"v_mov_b32 v{O+i}, 0")
        a(f"v_mov_b32 {vKa}, v2")
        a("v_and_b32 v106, 15, v1")
        a("v_lshlrev_b32 v106, 4, v106")
        a("v_lshrrev_b32 v107, 5, v1")
        a("v_lshl_or_b32 v106, v107, 8, v106")
        a(f"v_add_u32 {vVa}, 1024, v106")
        a("s_mov_b32 s6, 0x0000ffff")
        a("s_mov_b32 s7, 0x0000ffff")
        a("s_waitcnt vmcnt(0)" if self.opt.get("b4all") else "s_waitcnt vmcnt(14)")
        a("s_barrier")
        self.stamp("b4")

        def kread(buf, off): a(f"ds_read_b128 {vr(KF+4*buf,4)}, {vKa} offset:{off}")
        def vread(buf, off):
            a("s_mov_b64 exec, s[6:7]")
            a(f"ds_read_b128 {vr(VF+8*buf,4)}, {vVa} offset:{off}")
            a(f"ds_read_b128 {vr(VF+8*buf+4,4)}, {vVa} offset:{off+512}")
            a("s_mov_b64 exec, -1")
        def pipe_prologue():
            kread(0, 0)
            kread(1, 2048)
            vread(0, 0)
            a("s_waitcnt lgkmcnt(3)")
            a(f"v_mfma_f32_32x32x16_bf16 {vr(S0,16)}, {vr(KF,4)}, {vr(Q,4)}, {vr(NEGM,16)}")
            a("s_nop 11")
        a(f"s_mov_b32 {sPh}, 0")
        a(f"s_cmp_eq_u32 {sG}, 1")
        a("s_cbranch_scc1 L_sw0")
        pipe_prologue()
        a(f"s_mov_b32 {sCnt}, 3")
        a.label("L_body")
        for j in range(4):
            cur = S0 if j % 2 == 0 else S1
            nxt = S1 if j % 2 == 0 else S0
            kb = (j + 1) % 2
            vb = j % 2
            for i in range(4): a(f"v_exp_f32 v{cur+i}, v{cur+i}")
            a("s_waitcnt lgkmcnt(2)")
            a(f"v_mfma_f32_32x32x16_bf16 {vr(nxt,16)}, {vr(KF+4*kb,4)}, {vr(Q,4)}, {vr(NEGM,16)}")
            kread(j % 2, (j + 2) * 2048)
            for i in range(4, 8): a(f"v_exp_f32 v{cur+i}, v{cur+i}")
            for i in range(4): a(f"v_cvt_pk_bf16_f32 v{P+i}, v{cur+2*i}, v{cur+2*i+1}")
            a("s_waitcnt lgkmcnt(1)")
            vread((j + 1) % 2, (j + 1) * 2048)
            a(f"v_mfma_f32_32x32x16_bf16 {vr(O,16)}, {vr(VF+8*vb,4)}, {vr(P,4)}, {vr(O,16)}")
            for i in range(8, 14): a(f"v_exp_f32 v{cur+i}, v{cur+i}")
            a(f"v_cvt_pk_bf16_f32 v{P+4}, v{cur+8}, v{cur+9}")
            a(f"v_exp_f32 v{cur+14}, v{cur+14}")
            a(f"v_cvt_pk_bf16_f32 v{P+5}, v{cur+10}, v{cur+11}")
            a(f"v_exp_f32 v{cur+15}, v{cur+15}")
            a(f"v_cvt_pk_bf16_f32 v{P+6}, v{cur+12}, v{cur+13}")
            a(f"v_cvt_pk_bf16_f32 v{P+7}, v{cur+14}, v{cur+15}")
            if j == 3:
                a(f"v_add_u32 {vKa}, 8192, {vKa}")
                a(f"v_add_u32 {vVa}, 8192, {vVa}")
            a(f"v_mfma_f32_32x32x16_bf16 {vr(O,16)}, {vr(VF+8*vb+4,4)}, {vr(P+4,4)}, {vr(O,16)}")
        a(f"s_sub_u32 {sCnt}, {sCnt}, 1")
        a(f"s_cmp_lg_u32 {sCnt}, 0")
        a("s_cbranch_scc1 L_body")
        a(f"s_add_u32 {sPh}, {sPh}, 1")
        a(f"s_cmp_eq_u32 {sPh}, 2")
        a("s_cbranch_scc1 L_sw1")
        a(f"s_cmp_eq_u32 {sPh}, 3")
        a("s_cbranch_scc1 L_sw2")
        a(f"s_cmp_eq_u32 {sPh}, 4")
        a("s_cbranch_scc1 L_attn_done")
        a.label("L_sw0")
        a("s_waitcnt vmcnt(0)")
        a("s_barrier")
        self.wt_process()
        a(f"s_mov_b32 {sCnt}, 1")
        a(f"s_cmp_eq_u32 {sG}, 0")
        a("s_cbranch_scc1 L_body")
        a(f"s_mov_b32 {sPh}, 1")
        a(f"v_mov_b32 v106, {vKa}")
        a("v_mov_b32 v107, 0xff800000")
        a(f"s_mov_b32 {sCnt}, 64")
        a.label("L_fb")
        a(f"ds_read_b128 {vr(KF,4)}, v106")
        a("v_add_u32 v106, 2048, v106")
        a("s_waitcnt lgkmcnt(0)")
        a(f"v_mfma_f32_32x32x16_bf16 {vr(S0,16)}, {vr(KF,4)}, {vr(Q,4)}, 0")
        for i in range(8):
            a(f"v_max3_f32 v107, v{S0+2*i}, v{S0+2*i+1}, v107")
        a(f"s_sub_u32 {sCnt}, {sCnt}, 1")
        a(f"s_cmp_lg_u32 {sCnt}, 0")
        a("s_cbranch_scc1 L_fb")
        a("v_mov_b32 v106, v107")
        a("v_permlane32_swap_b32 v106, v107")
        a("v_max_f32 v107, v106, v107")
        a(f"v_sub_f32 v{NEGM}, 0, v107")
        for i in range(1, 16):
            a(f"v_mov_b32 v{NEGM+i}, v{NEGM}")
        pipe_prologue()
        a(f"s_mov_b32 {sCnt}, 4")
        a("s_branch L_body")
        a.label("L_sw1")
        a("s_waitcnt vmcnt(0)")
        a("s_barrier")
        a(f"s_cmp_lg_u32 {sW}, 0")
        a("s_cbranch_scc1 L_sw1b")
        a(f"s_lshl_b32 {sA}, {sID}, 2")
        a(f"s_add_u32 {sA}, {sA}, {WS_FLWT}")
        a(f"v_mov_b32 v106, {sTG}")
        a("v_mov_b32 v107, 0")
        a("s_mov_b64 exec, 1")
        a(f"buffer_store_dword v106, v107, {srd(SRD_WS)}, {sA} offen sc1")
        a("s_mov_b64 exec, -1")
        a.label("L_sw1b")
        a(f"s_mov_b32 {sCnt}, 3")
        a("s_branch L_body")
        a.label("L_sw2")
        a(f"s_mov_b32 {sA}, {WS_FLWT}")
        self.poll_begin("wt")
        a(f"buffer_load_dwordx4 v[108:111], v2, {srd(SRD_WS)}, {sA} offen sc1")
        a("s_waitcnt vmcnt(0)")
        for i in range(4): a(f"v_xor_b32 v{108+i}, {sTG}, v{108+i}")
        a("v_or_b32 v108, v108, v109")
        a("v_or_b32 v110, v110, v111")
        a("v_or_b32 v108, v108, v110")
        a("v_cmp_ne_u32 vcc, 0, v108")
        self.poll_end("wt", sleep=2)
        a(f"s_cmp_eq_u32 {sW}, 7")
        a("s_cbranch_scc1 L_sw2b")
        a(f"s_mul_i32 {sA}, {sM}, 7")
        a(f"s_add_u32 {sA}, {sA}, {sW}")
        a(f"s_lshl_b32 {sA}, {sA}, 15")
        a(f"s_add_u32 {sA}, {sA}, {WS_W1F}")
        for s_ in range(32):
            a(f"buffer_load_dwordx4 {vr(W1+4*s_,4)}, v2, {srd(SRD_WS)}, {sA} offen offset:{(s_%4)*1024} sc1")
            if s_ % 4 == 3 and s_ < 31: a(f"s_add_u32 {sA}, {sA}, 4096")
        a.label("L_sw2b")
        a(f"s_mov_b32 {sCnt}, 9")
        a("s_branch L_body")
        a.label("L_attn_done")
        self.stamp("attn")
        a(f"v_rcp_f32 v12, v{O+8}")
        for i in range(8):
            a(f"v_mul_f32 v{O+i}, v12, v{O+i}")
        for i in range(4):
            a(f"v_cvt_pk_bf16_f32 v{12+i}, v{O+2*i}, v{O+2*i+1}")
        a(f"s_lshl_b32 {sA}, {sM}, 2")
        a(f"s_lshl_b32 {sB}, {sFT}, 1")
        a(f"s_add_u32 {sA}, {sA}, {sB}")
        a(f"s_add_u32 {sA}, {sA}, {sKH}")
        a(f"s_lshl_b32 {sB}, {sA}, 1")
        a(f"s_add_u32 {sB}, {sB}, {sTT}")
        a(f"s_lshl_b32 {sB}, {sB}, 10")
        a(f"s_lshl_b32 {sD}, {sC}, 16")
        a(f"s_add_u32 {sB}, {sB}, {sD}")
        a(f"s_add_u32 {sB}, {sB}, {WS_O}")
        a(f"s_lshl_b32 {sD}, {sTT}, 5")
        a(f"s_add_u32 {sD}, {sD}, {sA}")
        a(f"s_lshl_b32 {sD}, {sD}, 2")
        a(f"s_lshl_b32 {sE_}, {sC}, 8")
        a(f"s_add_u32 {sD}, {sD}, {sE_}")
        a(f"s_add_u32 {sD}, {sD}, {WS_FLO}")
        self.publish("o", [("dwordx4", "v[12:15]", "v2", sB, 0)], sD)

    def publish(self, name, stores, sflag, pre_exec=None):
        a = self.a
        a(f"v_mov_b32 v126, s3")
        a(f"v_mov_b32 v127, 0")
        a(f"s_cmp_eq_u32 {sFast}, 0")
        a(f"s_cbranch_scc0 L_pub_slow_{name}")
        for variant, mod in (("fast", ""), ("slow", " sc1")):
            if variant == "slow": a.label(f"L_pub_slow_{name}")
            for st in stores:
                ty, data, voff, soff, io = st[:5]
                if len(st) > 5: a(f"s_mov_b32 exec_hi, 0")
                a(f"buffer_store_{ty} {data}, {voff}, {srd(SRD_WS)}, {soff} offen offset:{io}{mod}")
                if len(st) > 5: a("s_mov_b64 exec, -1")
            a("s_waitcnt vmcnt(0)")
            a("s_mov_b64 exec, 1")
            a(f"buffer_store_dword v126, v127, {srd(SRD_WS)}, {sflag} offen{mod}")
            a("s_mov_b64 exec, -1")
            if variant == "fast": a(f"s_branch L_pub_done_{name}")
        a.label(f"L_pub_done_{name}")

    def wt_issue(self):
        a = self.a
        LDS_E = 132 * 1024
        a(f"s_lshl_b32 {sA}, {sID}, 3")
        a(f"s_add_u32 {sA}, {sA}, {sW}")
        a(f"s_cmp_lt_u32 {sA}, 256")
        a("s_cbranch_scc1 L_wt_wo")
        a(f"s_cmp_lt_u32 {sA}, 1152")
        a("s_cbranch_scc1 L_wt_w1")
        a(f"s_sub_u32 {sA}, {sA}, 1152")
        a(f"s_mul_i32 {sB}, {sA}, 9363")
        a(f"s_lshr_b32 {sB}, {sB}, 20")
        a(f"s_mul_i32 {sD}, {sB}, 112")
        a(f"s_sub_u32 {sD}, {sA}, {sD}")
        for i in range(4): a(f"s_mov_b32 s{SRD_T+i}, s{SRD_W2+i}")
        a(f"s_mov_b32 {sF}, 1024")
        a(f"s_mul_i32 s88, {sB}, {2*112}")
        a(f"s_add_u32 s88, s88, {sD}")
        a("s_lshl_b32 s88, s88, 10")
        a(f"s_add_u32 s88, s88, {WS_W2F}")
        a(f"s_mov_b32 s89, {112*1024}")
        a("s_branch L_wt_go")
        a.label("L_wt_w1")
        a(f"s_sub_u32 {sA}, {sA}, 256")
        a(f"s_lshr_b32 {sB}, {sA}, 5")
        a(f"s_and_b32 {sD}, {sA}, 31")
        for i in range(4): a(f"s_mov_b32 s{SRD_T+i}, s{SRD_W1+i}")
        a(f"s_mov_b32 {sF}, 3584")
        a(f"s_lshl_b32 s88, {sB}, 6")
        a(f"s_add_u32 s88, s88, {sD}")
        a("s_lshl_b32 s88, s88, 10")
        a(f"s_add_u32 s88, s88, {WS_W1F}")
        a(f"s_mov_b32 s89, {32*1024}")
        a("s_branch L_wt_go")
        a.label("L_wt_wo")
        a(f"s_lshr_b32 {sB}, {sA}, 5")
        a(f"s_and_b32 {sD}, {sA}, 31")
        for i in range(4): a(f"s_mov_b32 s{SRD_T+i}, s{SRD_WO+i}")
        a(f"s_mov_b32 {sF}, 1024")
        a(f"s_lshl_b32 s88, {sB}, 6")
        a(f"s_add_u32 s88, s88, {sD}")
        a("s_lshl_b32 s88, s88, 10")
        a(f"s_add_u32 s88, s88, {WS_WOF}")
        a(f"s_mov_b32 s89, {32*1024}")
        a.label("L_wt_go")
        a(f"s_mul_i32 {sD}, {sD}, {sF}")
        a(f"s_lshl_b32 {sD}, {sD}, 4")
        a(f"s_lshl_b32 {sB}, {sB}, 7")
        a(f"s_add_u32 {sD}, {sD}, {sB}")
        a("v_lshrrev_b32 v16, 3, v1")
        a(f"v_mul_lo_u32 v16, v16, {sF}")
        a("v_and_b32 v17, 7, v1")
        a("v_bfe_u32 v18, v1, 4, 1")
        a("v_lshlrev_b32 v18, 2, v18")
        a("v_xor_b32 v17, v17, v18")
        a("v_lshl_add_u32 v16, v17, 4, v16")
        a(f"s_xor_b32 {sA}, {sW}, 1")
        a(f"s_lshl_b32 {sA}, {sA}, 11")
        a(f"s_add_u32 {sA}, {sA}, {LDS_E}")
        a(f"s_mov_b32 m0, {sA}")
        a(f"buffer_load_dwordx4 v16, {srd(SRD_T)}, {sD} offen lds")
        a(f"s_lshl_b32 {sB}, {sF}, 3")
        a(f"s_add_u32 {sD}, {sD}, {sB}")
        a(f"s_add_u32 {sA}, {sA}, 1024")
        a(f"s_mov_b32 m0, {sA}")
        a(f"buffer_load_dwordx4 v16, {srd(SRD_T)}, {sD} offen lds")

    def wt_process(self):
        a = self.a
        LDS_E = 132 * 1024
        a("v_bfe_u32 v106, v1, 2, 2")
        a("v_lshrrev_b32 v107, 5, v1")
        a("v_lshl_add_u32 v107, v107, 2, v106")
        a("v_lshlrev_b32 v107, 7, v107")
        a("v_bfe_u32 v108, v1, 4, 1")
        a("v_lshlrev_b32 v108, 5, v108")
        a("v_and_b32 v109, 3, v1")
        a("v_lshl_add_u32 v108, v109, 3, v108")
        a("v_bfe_u32 v109, v1, 3, 1")
        a("v_lshlrev_b32 v109, 6, v109")
        a("v_xor_b32 v108, v108, v109")
        a("v_add_u32 v107, v107, v108")
        a(f"s_xor_b32 {sA}, {sW}, 1")
        a(f"s_lshl_b32 {sA}, {sA}, 11")
        a(f"s_add_u32 {sA}, {sA}, {LDS_E}")
        a(f"v_add_u32 v107, {sA}, v107")
        a("v_xor_b32 v108, 64, v107")
        a("ds_read_b64_tr_b16 v[112:113], v107")
        a("ds_read_b64_tr_b16 v[114:115], v107 offset:1024")
        a("ds_read_b64_tr_b16 v[116:117], v108")
        a("ds_read_b64_tr_b16 v[118:119], v108 offset:1024")
        a("s_waitcnt lgkmcnt(0)")
        a(f"buffer_store_dwordx4 v[112:115], v2, {srd(SRD_WS)}, s88 offen sc1")
        a("s_add_u32 s88, s88, s89")
        a(f"buffer_store_dwordx4 v[116:119], v2, {srd(SRD_WS)}, s88 offen sc1")


    def p3(self):
        a = self.a
        HB, X, ACC, BR, WO, W1 = 4, 8, 16, 32, 64, 128
        LDS_OF, LDS_E2, LDS_CS1 = 0, 128 * 1024, 145 * 1024
        sS = "s88"
        a(f"s_lshl_b32 {sS}, {sM}, 2")
        a(f"s_lshl_b32 {sB}, {sFT}, 1")
        a(f"s_add_u32 {sS}, {sS}, {sB}")
        a(f"s_add_u32 {sS}, {sS}, {sKH}")
        a(f"s_lshl_b32 {sA}, {sM}, 1")
        a(f"s_add_u32 {sA}, {sA}, {sFT}")
        a(f"s_lshl_b32 {sA}, {sA}, 5")
        a(f"s_lshl_b32 {sB}, {sKH}, 4")
        a(f"s_add_u32 {sA}, {sA}, {sB}")
        a(f"s_lshl_b32 {sA}, {sA}, 10")
        a(f"s_add_u32 {sA}, {sA}, {WS_WOF}")
        a(f"s_lshl_b32 {sB}, {sKH}, 8")
        a(f"v_xor_b32 v3, {sB}, v2")
        for i in range(16):
            a(f"buffer_load_dwordx4 {vr(WO+4*i,4)}, v3, {srd(SRD_WS)}, {sA} offen offset:{(i%4)*1024} sc1")
            if i % 4 == 3 and i < 15: a(f"s_add_u32 {sA}, {sA}, 4096")
        a("v_and_b32 v12, 31, v1")
        a("v_lshlrev_b32 v12, 10, v12")
        a("v_lshrrev_b32 v13, 5, v1")
        a("v_lshl_or_b32 v12, v13, 3, v12")
        a(f"s_lshl_b32 {sA}, {sTT}, 5")
        a(f"s_add_u32 {sA}, {sA}, {sT0}")
        a(f"s_lshl_b32 {sA}, {sA}, 10")
        a(f"s_lshl_b32 {sB}, {sS}, 5")
        a(f"s_add_u32 {sA}, {sA}, {sB}")
        a(f"buffer_load_dwordx2 {vr(X,2)}, v12, {srd(SRD_X)}, {sA} offen")
        a(f"buffer_load_dwordx2 {vr(X+2,2)}, v12, {srd(SRD_X)}, {sA} offen offset:16")
        a(f"s_cmp_eq_u32 {sW}, 7")
        a("s_cbranch_scc1 L_nocs1")
        a("s_mov_b32 s5, 0x3f803f80")
        for i in range(128):
            r = "v14" if i % 2 == 0 else "v15"
            a(f"v_dot2_f32_bf16 {r}, v{W1+i}, s5, {'0' if i < 2 else r}")
        a("v_add_f32 v14, v14, v15")
        a("v_mov_b32 v15, v14")
        a("v_permlane32_swap_b32 v14, v15")
        a("v_add_f32 v14, v14, v15")
        a("v_and_b32 v15, 31, v1")
        a("v_lshlrev_b32 v15, 2, v15")
        a(f"s_lshl_b32 {sA}, {sW}, 7")
        a(f"s_add_u32 {sA}, {sA}, {LDS_CS1}")
        a(f"v_add_u32 v15, {sA}, v15")
        a("ds_write_b32 v15, v14")
        a.label("L_nocs1")
        a("s_waitcnt lgkmcnt(0)")
        a("s_barrier")
        self.stamp("b7")
        a(f"s_lshl_b32 {sA}, {sTT}, 5")
        a(f"s_lshl_b32 {sB}, {sKH}, 4")
        a(f"s_add_u32 {sA}, {sA}, {sB}")
        a(f"s_lshl_b32 {sA}, {sA}, 2")
        a(f"s_lshl_b32 {sB}, {sC}, 8")
        a(f"s_add_u32 {sA}, {sA}, {sB}")
        a(f"s_add_u32 {sA}, {sA}, {WS_FLO}")
        a("v_and_b32 v12, 15, v1")
        a("v_lshlrev_b32 v12, 2, v12")
        self.poll_begin("o")
        a(f"buffer_load_dword v13, v12, {srd(SRD_WS)}, {sA} offen sc1")
        a("s_waitcnt vmcnt(0)")
        a("v_cmp_ne_u32 vcc, s3, v13")
        self.poll_end("o", sleep=1)
        self.stamp("ook")
        a(f"s_lshl_b32 {sA}, {sKH}, 4")
        a(f"s_lshl_b32 {sB}, {sFT}, 2")
        a(f"s_add_u32 {sA}, {sA}, {sB}")
        a(f"s_lshl_b32 {sA}, {sA}, 1")
        a(f"s_add_u32 {sA}, {sA}, {sTT}")
        a(f"s_lshl_b32 {sA}, {sA}, 10")
        a(f"s_lshl_b32 {sB}, {sC}, 16")
        a(f"s_add_u32 {sB}, {sB}, {sA}")
        a(f"s_add_u32 {sB}, {sB}, {WS_O}")
        for st in range(2):
            for i in range(4):
                d = (st * 8 + i) * 2048
                a(f"s_add_u32 {sD}, {sA}, {d + LDS_OF}")
                a(f"s_add_u32 {sE_}, {sB}, {d}")
                a(f"s_mov_b32 m0, {sD}")
                a(f"buffer_load_dwordx4 v2, {srd(SRD_WS)}, {sE_} offen sc1 lds")
        a(f"s_lshl_b32 {sA}, {sKH}, 15")
        a(f"s_lshl_b32 {sB}, {sTT}, 10")
        a(f"s_add_u32 {sA}, {sA}, {sB}")
        a(f"v_add_u32 v12, {sA}, v2")
        a.lg = []
        for st in range(2):
            a(f"s_waitcnt vmcnt({4 if st == 0 else 0})")
            a("s_barrier")
            for i in range(8):
                a.ds(f"ds_read_b128 {vr(BR+4*i,4)}, v12 offset:{(st*8+i)*2048}", f"b{st}{i}")
            for i in range(8):
                a.wait_lg(f"b{st}{i}")
                k = st * 8 + i
                srcC = "0" if k == 0 else vr(ACC, 16)
                a(f"v_mfma_f32_32x32x16_bf16 {vr(ACC,16)}, {vr(WO+4*k,4)}, {vr(BR+4*i,4)}, {srcC}")
        a(f"s_lshl_b32 {sA}, {sW}, 11")
        a(f"s_add_u32 {sA}, {sA}, {LDS_E2}")
        a(f"v_add_u32 v12, {sA}, v2")
        a(f"ds_write_b128 v12, {vr(ACC+8,4)}")
        a(f"ds_write_b128 v12, {vr(ACC+12,4)} offset:1024")
        a("s_waitcnt lgkmcnt(0)")
        a("s_barrier")
        a("v_xor_b32 v12, 2048, v12")
        a(f"ds_read_b128 {vr(BR,4)}, v12")
        a(f"ds_read_b128 {vr(BR+4,4)}, v12 offset:1024")
        for i in range(4):
            a(f"v_lshlrev_b32 v{BR+8+2*i}, 16, v{X+i}")
            a(f"v_and_b32 v{BR+9+2*i}, 0xffff0000, v{X+i}")
        a("s_waitcnt lgkmcnt(0)")
        for i in range(8):
            a(f"v_add_f32 v{ACC+i}, v{ACC+i}, v{BR+i}")
        for i in range(8):
            a(f"v_add_f32 v{ACC+i}, v{ACC+i}, v{BR+8+i}")
        for i in range(4):
            a(f"v_cvt_pk_bf16_f32 v{HB+i}, v{ACC+2*i}, v{ACC+2*i+1}")
        a("s_mov_b32 s5, 0x3f803f80")
        a(f"v_dot2_f32_bf16 v12, v{HB}, s5, 0")
        a(f"v_dot2_f32_bf16 v13, v{HB}, v{HB}, 0")
        for i in range(1, 4):
            a(f"v_dot2_f32_bf16 v12, v{HB+i}, s5, v12")
            a(f"v_dot2_f32_bf16 v13, v{HB+i}, v{HB+i}, v13")
        a("v_mov_b32 v14, v12")
        a("v_mov_b32 v15, v13")
        a("v_permlane32_swap_b32 v12, v14")
        a("v_permlane32_swap_b32 v13, v15")
        a("v_add_f32 v12, v12, v14")
        a("v_add_f32 v13, v13, v15")
        a(f"s_lshl_b32 {sA}, {sS}, 1")
        a(f"s_add_u32 {sA}, {sA}, {sTT}")
        a(f"s_lshl_b32 {sA}, {sA}, 10")
        a(f"s_lshl_b32 {sB}, {sC}, 16")
        a(f"s_add_u32 {sA}, {sA}, {sB}")
        a(f"s_add_u32 {sA}, {sA}, {WS_H}")
        a(f"s_lshl_b32 {sD}, {sTT}, 5")
        a(f"s_add_u32 {sD}, {sD}, {sS}")
        a(f"s_lshl_b32 {sB}, {sD}, 8")
        a(f"s_lshl_b32 {sE_}, {sC}, 14")
        a(f"s_add_u32 {sB}, {sB}, {sE_}")
        a(f"s_add_u32 {sB}, {sB}, {WS_ST}")
        a(f"s_lshl_b32 {sD}, {sD}, 2")
        a(f"s_lshl_b32 {sE_}, {sC}, 8")
        a(f"s_add_u32 {sD}, {sD}, {sE_}")
        a(f"s_add_u32 {sD}, {sD}, {WS_FLH}")
        a("v_lshlrev_b32 v14, 3, v1")
        self.publish("h", [("dwordx4", vr(HB, 4), "v2", sA, 0), ("dwordx2", "v[12:13]", "v14", sB, 0, "lo32")], sD)
        self.stamp("hpub")

    def p4(self):
        a = self.a
        HB, B1, ACC, BR, W1 = 4, 8, 16, 48, 128
        LDS_HF, LDS_ST2, LDS_CS1 = 64 * 1024, 144 * 1024, 145 * 1024
        a(f"s_cmp_eq_u32 {sW}, 7")
        a("s_cbranch_scc1 L_nob1")
        a(f"s_mul_i32 {sA}, {sM}, 7")
        a(f"s_add_u32 {sA}, {sA}, {sW}")
        a(f"s_lshl_b32 {sA}, {sA}, 6")
        a("v_lshrrev_b32 v3, 5, v1")
        a("v_lshlrev_b32 v3, 3, v3")
        for q in range(4):
            a(f"buffer_load_dwordx2 {vr(B1+2*q,2)}, v3, {srd(SRD_B1)}, {sA} offen offset:{16*q}")
        a.label("L_nob1")
        a(f"s_lshl_b32 {sA}, {sC}, 8")
        a(f"s_add_u32 {sA}, {sA}, {WS_FLH}")
        a("v_lshlrev_b32 v3, 2, v1")
        self.poll_begin("h")
        a(f"buffer_load_dword v80, v3, {srd(SRD_WS)}, {sA} offen sc1")
        a("s_waitcnt vmcnt(0)")
        a("v_cmp_ne_u32 vcc, s3, v80")
        self.poll_end("h", sleep=1)
        self.stamp("hok")
        a(f"s_lshl_b32 {sA}, {sW}, 11")
        a(f"s_lshl_b32 {sB}, {sC}, 16")
        a(f"s_add_u32 {sB}, {sB}, {sA}")
        a(f"s_add_u32 {sB}, {sB}, {WS_H}")
        for i in range(4):
            for tt in range(2):
                d = i * 8 * 2048 + tt * 1024
                a(f"s_add_u32 {sD}, {sA}, {d + LDS_HF}")
                a(f"s_add_u32 {sE_}, {sB}, {d}")
                a(f"s_mov_b32 m0, {sD}")
                a(f"buffer_load_dwordx4 v2, {srd(SRD_WS)}, {sE_} offen sc1 lds")
        a(f"s_lshl_b32 {sA}, {sM}, 1")
        a(f"s_add_u32 {sA}, {sA}, {sFT}")
        a(f"s_mul_i32 {sA}, {sA}, 112")
        a(f"s_and_b32 {sB}, {sW}, 3")
        a(f"s_mul_i32 {sB}, {sB}, 28")
        a(f"s_add_u32 {sA}, {sA}, {sB}")
        a(f"s_lshl_b32 {sA}, {sA}, 10")
        a(f"s_add_u32 s89, {sA}, {WS_W2F}")
        a(f"s_cmp_eq_u32 {sW}, 7")
        a("s_cbranch_scc1 L_p4_w7")
        a(f"v_add_u32 v80, {LDS_HF}, v2")
        a.lg = []
        def hread(k):
            sl = k % 4
            a.ds(f"ds_read_b128 {vr(BR+8*sl,4)}, v80 offset:{k*2048}", f"h{k}")
            a.ds(f"ds_read_b128 {vr(BR+8*sl+4,4)}, v80 offset:{k*2048+1024}", f"h{k}")
        a("s_waitcnt vmcnt(4)")
        a("s_barrier")
        for k in range(3): hread(k)
        for k in range(32):
            if k == 13:
                a("s_waitcnt vmcnt(13)")
                a("s_barrier")
            if k + 3 < 32: hread(k + 3)
            a.wait_lg(f"h{k}")
            sl = k % 4
            for tt in range(2):
                srcC = "0" if k == 0 else vr(ACC + 16 * tt, 16)
                a(f"v_mfma_f32_32x32x16_bf16 {vr(ACC+16*tt,16)}, {vr(W1+4*k,4)}, {vr(BR+8*sl+4*tt,4)}, {srcC}")
            if k < 28:
                a(f"s_add_u32 {sA}, s89, {k*1024}")
                a(f"buffer_load_dwordx4 {vr(W1+4*k,4)}, v2, {srd(SRD_WS)}, {sA} offen sc1")
        a("s_barrier")
        a.lg = []
        a("v_and_b32 v80, 31, v1")
        a("v_lshlrev_b32 v80, 3, v80")
        a(f"v_add_u32 v80, {LDS_ST2}, v80")
        a("ds_read_b64 v[82:83], v80")
        a("ds_read_b64 v[84:85], v80 offset:256")
        a("v_lshrrev_b32 v81, 5, v1")
        a("v_lshlrev_b32 v81, 4, v81")
        a(f"s_lshl_b32 {sA}, {sW}, 7")
        a(f"s_add_u32 {sA}, {sA}, {LDS_CS1}")
        a(f"v_add_u32 v81, {sA}, v81")
        CS = 48
        for q in range(4):
            a(f"ds_read_b128 {vr(CS+4*q,4)}, v81 offset:{32*q}")
        BF = 64
        for i in range(8):
            a(f"v_lshlrev_b32 v{BF+2*i}, 16, v{B1+i}")
            a(f"v_and_b32 v{BF+2*i+1}, 0xffff0000, v{B1+i}")
        a("s_waitcnt lgkmcnt(0)")
        self.stamp("ffn1")
        for tt in range(2):
            mu, rs = 82 + 2 * tt, 83 + 2 * tt
            A = ACC + 16 * tt
            for r in range(16): a(f"v_fma_f32 v{A+r}, -v{mu}, v{CS+r}, v{A+r}")
            for r in range(16): a(f"v_fma_f32 v{A+r}, v{A+r}, v{rs}, v{BF+r}")
            for r in range(16): a(f"v_max_f32 v{A+r}, 0, v{A+r}")
            for r in range(16): a(f"v_mul_f32 v{A+r}, v{A+r}, v{A+r}")
            for i in range(8): a(f"v_cvt_pk_bf16_f32 v{88+8*tt+i}, v{A+2*i}, v{A+2*i+1}")
        a(f"s_mul_i32 {sA}, {sM}, 7")
        a(f"s_add_u32 {sA}, {sA}, {sW}")
        a(f"s_lshl_b32 {sB}, {sA}, 12")
        a(f"s_mul_i32 {sD}, {sC}, {224*1024}")
        a(f"s_add_u32 {sB}, {sB}, {sD}")
        a(f"s_add_u32 {sB}, {sB}, {WS_HID}")
        a(f"s_lshl_b32 {sD}, {sA}, 2")
        a(f"s_lshl_b32 {sE_}, {sC}, 8")
        a(f"s_add_u32 {sD}, {sD}, {sE_}")
        a(f"s_add_u32 {sD}, {sD}, {WS_FLHID}")
        st = []
        for u in range(2):
            for tt in range(2):
                st.append(("dwordx4", vr(88 + 8 * tt + 4 * u, 4), "v2", sB, u * 2048 + tt * 1024))
        self.publish("hid", st, sD)
        a("s_branch L_p4_done")
        a.label("L_p4_w7")
        a("s_waitcnt vmcnt(4)")
        a("s_barrier")
        a("v_lshrrev_b32 v80, 5, v1")
        a("v_lshlrev_b32 v80, 13, v80")
        a("v_and_b32 v81, 31, v1")
        a("v_lshl_or_b32 v80, v81, 3, v80")
        a(f"s_lshl_b32 {sA}, {sC}, 14")
        a(f"s_add_u32 {sA}, {sA}, {WS_ST}")
        for k in range(32):
            a(f"buffer_load_dwordx2 {vr(16+2*k,2)}, v80, {srd(SRD_WS)}, {sA} offen offset:{(k%16)*256} sc1")
            if k == 15: a(f"s_add_u32 {sA}, {sA}, 4096")
        a("s_waitcnt vmcnt(32)")
        a("s_barrier")
        for k in range(28):
            a(f"s_add_u32 {sA}, s89, {k*1024}")
            a(f"buffer_load_dwordx4 {vr(W1+4*k,4)}, v2, {srd(SRD_WS)}, {sA} offen sc1")
        a("s_waitcnt vmcnt(28)")
        for k in range(1, 32):
            a(f"v_add_f32 v16, v16, v{16+2*k}")
            a(f"v_add_f32 v17, v17, v{17+2*k}")
        a(f"v_mul_f32 v16, 0x{f32bits(1/512):x}, v16")
        a(f"v_mul_f32 v17, 0x{f32bits(1/512):x}, v17")
        a("v_fma_f32 v17, -v16, v16, v17")
        a("v_max_f32 v17, 0, v17")
        a(f"v_add_f32 v17, 0x{f32bits(1e-5):x}, v17")
        a("v_rsq_f32 v17, v17")
        a("v_lshlrev_b32 v80, 3, v1")
        a(f"v_add_u32 v80, {LDS_ST2}, v80")
        a("ds_write_b64 v80, v[16:17]")
        a("s_waitcnt lgkmcnt(0)")
        a("s_barrier")
        a.label("L_p4_done")

    def p5(self):
        a = self.a
        HB, B2R, ACC, BR, W2 = 4, 8, 16, 48, 128
        sKQ = "s88"
        a(f"s_and_b32 {sKQ}, {sW}, 3")
        a(f"s_lshl_b32 {sA}, {sM}, 7")
        a(f"s_lshl_b32 {sB}, {sFT}, 6")
        a(f"s_add_u32 {sA}, {sA}, {sB}")
        a(f"s_lshl_b32 {sB}, {sKH}, 5")
        a(f"s_add_u32 s89, {sA}, {sB}")
        a("v_lshrrev_b32 v3, 5, v1")
        a("v_lshlrev_b32 v3, 3, v3")
        a(f"buffer_load_dwordx2 {vr(B2R,2)}, v3, {srd(SRD_B2)}, s89 offen")
        a(f"buffer_load_dwordx2 {vr(B2R+2,2)}, v3, {srd(SRD_B2)}, s89 offen offset:16")
        a(f"s_mul_i32 {sA}, {sKQ}, 56")
        a(f"s_lshl_b32 {sB}, {sC}, 8")
        a(f"s_add_u32 {sA}, {sA}, {sB}")
        a(f"s_add_u32 {sA}, {sA}, {WS_FLHID}")
        a("v_min_u32 v3, 13, v1")
        a("v_lshlrev_b32 v3, 2, v3")
        self.poll_begin("hid")
        a(f"buffer_load_dword v80, v3, {srd(SRD_WS)}, {sA} offen sc1")
        a("s_waitcnt vmcnt(0)")
        a("v_cmp_ne_u32 vcc, s3, v80")
        self.poll_end("hid", sleep=1)
        self.stamp("hidok")
        a(f"s_mul_i32 {sA}, {sKQ}, {28*2048}")
        a(f"s_lshl_b32 {sB}, {sFT}, 10")
        a(f"s_add_u32 {sA}, {sA}, {sB}")
        a(f"s_mul_i32 {sD}, {sC}, {224*1024}")
        a(f"s_add_u32 {sA}, {sA}, {sD}")
        a(f"s_add_u32 {sA}, {sA}, {WS_HID}")
        a(f"s_lshl_b32 {sE_}, {sKQ}, 13")
        a(f"s_add_u32 {sB}, {sB}, {sE_}")
        def stage_dma(j):
            for i in range(4):
                a(f"s_add_u32 {sD}, {sB}, {(j%4)*32768 + i*2048}")
                a(f"s_add_u32 {sE_}, {sA}, {(4*j+i)*2048}")
                a(f"s_mov_b32 m0, {sD}")
                a(f"buffer_load_dwordx4 v2, {srd(SRD_WS)}, {sE_} offen sc1 lds")
        for j in range(4): stage_dma(j)
        a(f"s_lshl_b32 {sF}, {sKQ}, 13")
        a(f"v_add_u32 v80, {sF}, v2")
        a("v_add_u32 v81, 65536, v80")
        issued = 16
        a.lg = []
        for j in range(7):
            done_needed = 4 * (j + 1)
            a(f"s_waitcnt vmcnt({issued - done_needed})")
            a("s_barrier")
            if j >= 1 and j + 3 < 7:
                stage_dma(j + 3); issued += 4
            base = "v80" if (j % 4) < 2 else "v81"
            so = (j % 2) * 32768
            for i in range(4):
                for tt in range(2):
                    a.ds(f"ds_read_b128 {vr(BR+8*i+4*tt,4)}, {base} offset:{so + i*2048 + tt*1024}", f"r{j}{i}")
            for i in range(4):
                a.wait_lg(f"r{j}{i}")
                k = 4 * j + i
                for tt in range(2):
                    srcC = "0" if k == 0 else vr(ACC + 16 * tt, 16)
                    a(f"v_mfma_f32_32x32x16_bf16 {vr(ACC+16*tt,16)}, {vr(W2+4*k,4)}, {vr(BR+8*i+4*tt,4)}, {srcC}")
        self.stamp("ffn2")
        a("s_barrier")
        for p in range(4):
            tt, half = p >> 1, p & 1
            A = ACC + 16 * tt + 8 * half
            a(f"s_cmp_eq_u32 {sKQ}, {p}")
            a(f"s_cbranch_scc1 L_rs_skip{p}")
            a(f"s_sub_u32 {sA}, {sKQ}, {p+1}")
            a(f"s_and_b32 {sA}, {sA}, 3")
            a(f"s_lshl_b32 {sB}, {sFT}, 2")
            a(f"s_add_u32 {sB}, {sB}, {p}")
            a(f"s_mul_i32 {sB}, {sB}, 3")
            a(f"s_add_u32 {sA}, {sA}, {sB}")
            a(f"s_lshl_b32 {sA}, {sA}, 11")
            a(f"v_add_u32 v3, {sA}, v2")
            a(f"ds_write_b128 v3, {vr(A,4)}")
            a(f"ds_write_b128 v3, {vr(A+4,4)} offset:1024")
            a(f"s_branch L_rs_next{p}")
            a.label(f"L_rs_skip{p}")
            for i in range(8): a(f"v_mov_b32 v{80+i}, v{A+i}")
            a.label(f"L_rs_next{p}")
        a("s_waitcnt lgkmcnt(0)")
        a("s_barrier")
        a(f"s_mul_i32 {sA}, {sW}, {3*2048}")
        a(f"v_add_u32 v3, {sA}, v2")
        for q in range(3):
            a(f"ds_read_b128 {vr(48+8*q,4)}, v3 offset:{q*2048}")
            a(f"ds_read_b128 {vr(52+8*q,4)}, v3 offset:{q*2048+1024}")
        for i in range(4):
            a(f"v_lshlrev_b32 v{16+2*i}, 16, v{HB+i}")
            a(f"v_and_b32 v{17+2*i}, 0xffff0000, v{HB+i}")
            a(f"v_lshlrev_b32 v{24+2*i}, 16, v{B2R+i}")
            a(f"v_and_b32 v{25+2*i}, 0xffff0000, v{B2R+i}")
        a("s_waitcnt lgkmcnt(0)")
        for i in range(8):
            a(f"v_add_f32 v{80+i}, v{80+i}, v{48+i}")
            a(f"v_add_f32 v{56+i}, v{56+i}, v{64+i}")
        for i in range(8):
            a(f"v_add_f32 v{80+i}, v{80+i}, v{56+i}")
            a(f"v_add_f32 v{16+i}, v{16+i}, v{24+i}")
        for i in range(8):
            a(f"v_add_f32 v{80+i}, v{80+i}, v{16+i}")
        for i in range(4):
            a(f"v_cvt_pk_bf16_f32 v{88+i}, v{80+2*i}, v{81+2*i}")
        a("v_permlane32_swap_b32 v88, v90")
        a("v_permlane32_swap_b32 v89, v91")
        a("v_and_b32 v3, 31, v1")
        a("v_lshlrev_b32 v3, 10, v3")
        a("v_lshrrev_b32 v12, 5, v1")
        a("v_lshl_or_b32 v3, v12, 4, v3")
        a(f"s_lshl_b32 {sA}, {sTT}, 5")
        a(f"s_add_u32 {sA}, {sA}, {sT0}")
        a(f"s_lshl_b32 {sA}, {sA}, 10")
        a(f"s_add_u32 {sA}, {sA}, s89")
        a(f"buffer_store_dwordx4 v[88:91], v3, {srd(SRD_OUT)}, {sA} offen")
        self.stamp("end")

    def kv_flag(self):
        a = self.a
        a(f"s_cmp_ge_u32 {sW}, 2")
        a("s_cbranch_scc1 L_noflag")
        a(f"s_add_u32 {sD}, {sTag}, 1")
        a(f"s_lshl_b32 {sA}, {sG}, 4")
        a(f"s_add_u32 {sA}, {sA}, {WS_FLKV}")
        a(f"v_mov_b32 v8, {sD}")
        a("v_mov_b32 v9, s3")
        a("v_mov_b32 v10, 0")
        a("s_mov_b64 exec, 1")
        a(f"s_cmp_eq_u32 {sW}, 1")
        a("s_cbranch_scc1 L_flagv")
        a(f"buffer_store_dwordx2 v[8:9], v10, {srd(SRD_WS)}, {sA} offen sc1")
        a("s_branch L_flagd")
        a.label("L_flagv")
        a(f"buffer_store_dword v8, v10, {srd(SRD_WS)}, {sA} offen offset:8 sc1")
        a.label("L_flagd")
        a("s_mov_b64 exec, -1")
        a.label("L_noflag")

    def wave_reduce(self, regs, op, tmps):
        a = self.a
        for n in (8, 4, 2, 1):
            for r in regs:
                a(f"v_{op}_f32_dpp {r}, {r}, {r} row_ror:{n} row_mask:0xf bank_mask:0xf")
        for sw in ("16", "32"):
            for r, t in zip(regs, tmps):
                a(f"v_mov_b32 {t}, {r}")
            for r, t in zip(regs, tmps):
                a(f"v_permlane{sw}_swap_b32 {r}, {t}")
            for r, t in zip(regs, tmps):
                a(f"v_{op}_f32 {r}, {r}, {t}")

    def finish(self):
        a = self.a
        a.label("L_end")
        a("s_endpgm")

    def dump_regs(self, base, regs, off):
        a = self.a
        n = len(regs)
        a(f"s_lshl_b32 {sA}, {sID}, 3")
        a(f"s_add_u32 {sA}, {sA}, {sW}")
        a(f"s_mul_i32 {sA}, {sA}, {n*256}")
        a(f"s_add_u32 {sA}, {sA}, {off}")
        a("v_lshlrev_b32 v3, 2, v1")
        for i, r in enumerate(regs):
            a(f"buffer_store_dword v{r}, v3, {srd(SRD_WS)}, {sA} offen offset:{i*256}")
        a("s_waitcnt vmcnt(0)")

    def build(self):
        self.prologue()
        self.p1()
        if self.stop == "p1":
            self.dump_regs(0, list(range(32, 48)), WS_DBG)
            self.a("s_waitcnt vmcnt(0)")
            self.finish(); return self.text()
        self.p2()
        if self.stop in ("q", "attn"):
            self.a("s_waitcnt vmcnt(0)")
            self.dump_stamps()
            self.finish(); return self.text()
        for nm, fn in (("h", self.p3), ("hid", self.p4), ("out", self.p5)):
            fn()
            if self.stop == nm: break
        self.a("s_waitcnt vmcnt(0)")
        self.dump_stamps()
        self.finish()
        return self.text()

    def text(self):
        lines, n = hazard_pass_all(self.a.lines)
        head = f"""; @launch grid=(256,1,1) block=(512,1,1) lds=163840
.amdgcn_target "amdgcn-amd-amdhsa--gfx950"
.text
.globl {KNAME}
.p2align 8
.type {KNAME},@function
{KNAME}:
"""
        tail = f""".section .rodata,"a"
.p2align 6
.amdhsa_kernel {KNAME}
  .amdhsa_next_free_vgpr 256
  .amdhsa_next_free_sgpr 102
  .amdhsa_accum_offset 256
  .amdhsa_group_segment_fixed_size 0
  .amdhsa_kernarg_size 104
  .amdhsa_user_sgpr_count 2
  .amdhsa_user_sgpr_kernarg_segment_ptr 1
  .amdhsa_system_sgpr_workgroup_id_x 1
.end_amdhsa_kernel
"""
        return head + "\n".join(lines) + "\n" + tail

if __name__ == "__main__":
    import argparse
    ap = argparse.ArgumentParser()
    ap.add_argument("--stop", default=None)
    ap.add_argument("-o", default="k.s")
    ap.add_argument("--prof", action="store_true")
    ap.add_argument("--opt", nargs="*", default=[])
    args = ap.parse_args()
    opt = dict((kv.split("=")[0], int(kv.split("=")[1])) for kv in args.opt)
    g = Gen(stop=args.stop, prof=args.prof, opt=opt)
    open(args.o, "w").write(g.build())
    print("wrote", args.o)
```

```python
import sys
sys.path.insert(0, "work")
from asmlib import Asm, hazard_pass_all

NAME = "sequential_preLN__grouped_kv_mqa__dense_activation_squared_relu__prompt"
KNAME = NAME + "_kernel"

WS_EPOCH = 0x0
WS_FLKV  = 0x1000
WS_FLWT  = 0x3000
WS_FLO   = 0x4000
WS_FLH   = 0x6000
WS_FLHID = 0x8000
WS_KV    = 0x10000
WS_ST    = 0x60000
WS_O     = 0x100000
WS_H     = 0x300000
WS_HID   = 0x500000
WS_WOF   = 0xC00000
WS_W1F   = 0xC80000
WS_W2F   = 0xE40000
WS_DBG   = 0x1000000
WS_PROF  = 0x1800000
WS_SIZE  = 0x2000000

SRD_X, SRD_WQ, SRD_WK, SRD_WV = 8, 12, 16, 20
SRD_WO, SRD_W1, SRD_W2, SRD_B1 = 24, 28, 32, 36
SRD_B2, SRD_OUT, SRD_WS, SRD_T = 40, 44, 48, 52
def srd(b): return f"s[{b}:{b+3}]"
sW, sM, sC, sT0, sTag, sFast = "s56", "s57", "s58", "s59", "s60", "s61"
sFT, sTT, sKH, sXCC = "s62", "s63", "s90", "s91"
sID = "s2"
sA, sB, sD, sE_, sF, sG = "s92", "s93", "s94", "s95", "s96", "s97"
sCnt, sPh = "s98", "s99"
sX64 = "s[4:5]"; sY64 = "s[6:7]"

LOG2E = 1.4426950408889634
def f32bits(x):
    import struct
    return struct.unpack("<I", struct.pack("<f", x))[0]
def vr(b, n): return f"v[{b}:{b+n-1}]"

class Gen:
    def __init__(self, stop=None, prof=False, opt=None):
        self.a = Asm()
        self.stop = stop
        self.prof = prof
        self.opt = opt or {}
        self.nstamp = 0

    def stamp(self, name):
        if not self.prof: return
        i = self.nstamp; self.nstamp += 1
        assert i < 16
        self.stamp_names = getattr(self, "stamp_names", []) + [name]
        a = self.a
        a(f"s_memtime s[4:5]")
        a("s_waitcnt lgkmcnt(0)")
        a("s_sub_u32 s4, s4, s100")
        a(f"v_writelane_b32 v0, s4, {i}")

    def dump_stamps(self):
        if not self.prof: return
        a = self.a
        a(f"s_lshl_b32 {sA}, {sID}, 3")
        a(f"s_add_u32 {sA}, {sA}, {sW}")
        a(f"s_lshl_b32 {sA}, {sA}, 6")
        a(f"s_add_u32 {sA}, {sA}, {WS_PROF}")
        a("v_lshlrev_b32 v3, 2, v1")
        a("s_mov_b64 exec, 0xffff")
        a(f"buffer_store_dword v0, v3, {srd(SRD_WS)}, {sA} offen")
        a(f"s_lshl_b32 {sA}, {sID}, 3")
        a(f"s_add_u32 {sA}, {sA}, {sW}")
        a(f"s_cmp_lg_u32 {sA}, {self.opt.get('profw', 0)}")
        a("s_cbranch_scc1 L_nodbgst")
        a("s_load_dwordx2 s[52:53], s[0:1], 88")
        a("s_waitcnt lgkmcnt(0)")
        a("s_mov_b32 s54, 256")
        a("s_mov_b32 s55, 0x20000")
        a("buffer_store_dword v0, v3, s[52:55], 0 offen")
        a.label("L_nodbgst")
        a("s_mov_b64 exec, -1")
        a("s_waitcnt vmcnt(0)")

    def prologue(self):
        a = self.a
        a(f"s_cmp_ge_u32 {sID}, 256")
        a("s_cbranch_scc1 L_end")
        if self.prof: a("s_memtime s[100:101]")
        a("s_load_dwordx16 s[64:79], s[0:1], 0")
        a("s_load_dwordx8 s[80:87], s[0:1], 64")
        a("s_load_dwordx2 s[88:89], s[0:1], 96")
        a(f"s_and_b32 {sA}, {sID}, 7")
        a(f"s_lshr_b32 {sB}, {sID}, 6")
        a(f"s_lshl_b32 {sB}, {sB}, 3")
        a(f"s_add_u32 {sC}, {sA}, {sB}")
        a(f"s_lshr_b32 {sM}, {sID}, 3")
        a(f"s_and_b32 {sM}, {sM}, 7")
        a(f"s_lshl_b32 {sT0}, {sC}, 6")
        a(f"s_getreg_b32 {sXCC}, hwreg(HW_REG_XCC_ID)")
        a(f"s_and_b32 {sXCC}, {sXCC}, 7")
        a("v_lshrrev_b32 v3, 6, v0")
        a("v_and_b32 v1, 63, v0")
        a(f"v_readfirstlane_b32 {sW}, v3")
        a("v_lshlrev_b32 v2, 4, v1")
        a(f"s_lshr_b32 {sFT}, {sW}, 2")
        a(f"s_lshr_b32 {sTT}, {sW}, 1")
        a(f"s_and_b32 {sTT}, {sTT}, 1")
        a(f"s_and_b32 {sKH}, {sW}, 1")
        a("s_waitcnt lgkmcnt(0)")
        if self.prof: a("v_mov_b32 v0, 0")
        self.stamp("args")
        def mk(b, lo, size):
            a(f"s_mov_b32 s{b}, s{lo}")
            a(f"s_mov_b32 s{b+1}, s{lo+1}")
            a(f"s_mov_b32 s{b+2}, 0x{size:x}")
            a(f"s_mov_b32 s{b+3}, 0x20000")
        mk(SRD_X, 64, 0x200000)
        mk(SRD_WS, 88, WS_SIZE)
        a(f"s_load_dword {sTag}, s[88:89], {WS_EPOCH}")
        mk(SRD_WK, 68, 0x4000)
        mk(SRD_WV, 70, 0x4000)
        mk(SRD_WQ, 66, 0x80000)
        self.mk = mk

    def rest_srds(self):
        mk = self.mk
        mk(SRD_WO, 72, 0x80000)
        mk(SRD_W1, 76, 0x1C0000)
        mk(SRD_B1, 78, 3584)
        mk(SRD_W2, 80, 0x1C0000)
        mk(SRD_B2, 82, 1024)
        mk(SRD_OUT, 84, 0x200000)

    def dma(self, voff, srdb, soff, m0, tag, extra=""):
        a = self.a
        a(f"s_mov_b32 m0, {m0}")
        a.vmem(f"buffer_load_dwordx4 {voff}, {srd(srdb)}, {soff} offen {extra} lds", tag)

    def p1(self):
        a = self.a
        ROW = 4
        vXa, vXb, vKVo, vWAo = "v16", "v17", "v18", "v19"
        LDS_SCR = 64 * 1024
        LDS_WA = 66 * 1024
        LDS_WK = 128 * 1024
        LDS_WV = 144 * 1024
        a(f"s_lshl_b32 {sA}, {sM}, 3")
        a(f"s_add_u32 {sA}, {sA}, {sT0}")
        a(f"s_add_u32 {sB}, {sA}, {sW}")
        a(f"s_lshl_b32 {sB}, {sB}, 10")
        a.vmem(f"buffer_load_dwordx4 {vr(ROW,4)}, v2, {srd(SRD_X)}, {sB} offen", "row")
        a("v_lshrrev_b32 v8, 3, v1")
        a("v_and_b32 v9, 7, v1")
        a("v_lshrrev_b32 v10, 1, v8")
        a("v_xor_b32 v10, v10, v9")
        a(f"s_and_b32 {sB}, {sM}, 1")
        a(f"s_lshl_b32 {sB}, {sB}, 2")
        a(f"v_xor_b32 v10, {sB}, v10")
        a("v_lshlrev_b32 v10, 4, v10")
        a(f"v_lshl_add_u32 {vXa}, v8, 10, v10")
        a(f"v_xor_b32 {vXb}, 64, {vXa}")
        def xa_dma(gs, voff, tag):
            a(f"s_lshl_b32 {sD}, {gs}, 3")
            a(f"s_add_u32 {sD}, {sD}, {sT0}")
            a(f"s_lshl_b32 {sD}, {sD}, 10")
            a(f"s_lshl_b32 {sE_}, {sW}, 7")
            a(f"s_add_u32 {sD}, {sD}, {sE_}")
            a(f"s_lshl_b32 {sE_}, {sW}, 13")
            a(f"s_lshl_b32 {sF}, {gs}, 10")
            a(f"s_add_u32 {sE_}, {sE_}, {sF}")
            self.dma(voff, SRD_X, sD, sE_, tag)
        xa_dma(sM, vXa, "kv0")
        a("v_lshrrev_b32 v8, 1, v1")
        a("v_and_b32 v9, 0x13, v8")
        a("v_bfe_u32 v10, v8, 2, 1")
        a("v_lshl_or_b32 v9, v10, 3, v9")
        a("v_bfe_u32 v10, v8, 3, 1")
        a("v_lshl_or_b32 v9, v10, 2, v9")
        a("v_lshlrev_b32 v9, 5, v9")
        a("v_and_b32 v10, 1, v1")
        a(f"v_lshl_or_b32 {vKVo}, v10, 4, v9")
        a(f"s_lshl_b32 {sD}, {sW}, 11")
        a(f"s_add_u32 {sE_}, {sD}, {LDS_WK}")
        self.dma(vKVo, SRD_WK, sD, sE_, "kv0")
        a(f"s_add_u32 {sE_}, {sD}, {LDS_WV}")
        self.dma(vKVo, SRD_WV, sD, sE_, "kv0")
        a(f"s_add_u32 {sD}, {sD}, 1024")
        a(f"s_add_u32 {sE_}, {sD}, {LDS_WK}")
        self.dma(vKVo, SRD_WK, sD, sE_, "kv0")
        a(f"s_add_u32 {sE_}, {sD}, {LDS_WV}")
        self.dma(vKVo, SRD_WV, sD, sE_, "kv0")
        for i in range(1, 8):
            a(f"s_add_u32 {sB}, {sM}, {i}")
            a(f"s_and_b32 {sB}, {sB}, 7")
            xa_dma(sB, vXa if i % 2 == 0 else vXb, "xa")
        a("v_lshrrev_b32 v8, 3, v1")
        a("v_and_b32 v9, 7, v1")
        a("v_bfe_u32 v10, v1, 4, 1")
        a("v_lshlrev_b32 v10, 2, v10")
        a("v_xor_b32 v9, v9, v10")
        a("v_lshlrev_b32 v9, 4, v9")
        a(f"v_lshl_add_u32 {vWAo}, v8, 10, v9")
        a(f"s_lshl_b32 {sD}, {sW}, 13")
        a(f"s_lshl_b32 {sE_}, {sM}, 7")
        a(f"s_add_u32 {sD}, {sD}, {sE_}")
        a(f"s_lshl_b32 {sE_}, {sW}, 10")
        a(f"s_add_u32 {sE_}, {sE_}, {LDS_WA}")
        for c in range(7):
            self.dma(vWAo, SRD_WQ, sD, sE_, "wa")
            a(f"s_add_u32 {sD}, {sD}, {64*1024}")
            a(f"s_add_u32 {sE_}, {sE_}, 8192")
        a(f"s_cmp_ge_u32 {sW}, 6")
        a("s_cbranch_scc1 L_skip_c7")
        a(f"s_mov_b32 m0, {sE_}")
        a(f"buffer_load_dwordx4 {vWAo}, {srd(SRD_WQ)}, {sD} offen lds")
        a.label("L_skip_c7")
        self.rest_srds()
        XF, WF = 64, 128
        a(f"s_cmp_ge_u32 {sW}, 2")
        a("s_cbranch_scc1 L_no_ones")
        for i in range(64):
            a(f"v_mov_b32 v{XF+i}, 0x3f803f80" if i == 0 else f"v_mov_b32 v{XF+i}, v{XF}")
        a.label("L_no_ones")
        a("s_waitcnt vmcnt(19)")
        a("s_mov_b32 s3, 0x3f803f80")
        a(f"v_dot2_f32_bf16 v8, v{ROW}, s3, 0")
        a(f"v_dot2_f32_bf16 v9, v{ROW}, v{ROW}, 0")
        for i in range(1, 4):
            a(f"v_dot2_f32_bf16 v8, v{ROW+i}, s3, v8")
            a(f"v_dot2_f32_bf16 v9, v{ROW+i}, v{ROW+i}, v9")
        self.wave_reduce(["v8", "v9"], "add", ["v10", "v11"])
        a(f"v_mul_f32 v8, 0x{f32bits(1/512):x}, v8")
        a(f"v_mul_f32 v9, 0x{f32bits(1/512):x}, v9")
        a("v_fma_f32 v9, -v8, v8, v9")
        a("v_max_f32 v9, 0, v9")
        a(f"v_add_f32 v9, 0x{f32bits(1e-5):x}, v9")
        a("v_rsq_f32 v9, v9")
        a(f"s_lshl_b32 {sA}, {sW}, 3")
        a(f"s_add_u32 {sA}, {sA}, {LDS_SCR}")
        a(f"v_mov_b32 v10, {sA}")
        a("s_mov_b64 exec, 1")
        a("ds_write_b64 v10, v[8:9]")
        a("s_mov_b64 exec, -1")
        a("s_waitcnt vmcnt(14) lgkmcnt(0)")
        a("s_barrier")
        self.stamp("b1")
        a(f"s_cmp_ge_u32 {sW}, 2")
        a("s_cbranch_scc1 L_kv_done")
        a("v_and_b32 v8, 7, v1")
        a(f"s_lshl_b32 {sA}, {sM}, 3")
        a(f"v_add_u32 v8, {sA}, v8")
        a("v_bfe_u32 v9, v8, 1, 3")
        a("v_lshrrev_b32 v10, 4, v1")
        a("v_xor_b32 v9, v9, v10")
        a("v_lshlrev_b32 v9, 4, v9")
        a("v_lshl_add_u32 v20, v8, 7, v9")
        a("v_xor_b32 v21, 64, v20")
        a("v_bfe_u32 v8, v1, 4, 1")
        a("v_bfe_u32 v9, v1, 2, 2")
        a("v_lshl_add_u32 v8, v8, 2, v9")
        a("v_lshlrev_b32 v8, 5, v8")
        a("v_lshrrev_b32 v9, 5, v1")
        a("v_lshl_add_u32 v8, v9, 9, v8")
        a("v_and_b32 v9, 3, v1")
        a("v_lshl_add_u32 v8, v9, 3, v8")
        a(f"s_lshl_b32 {sA}, {sW}, 14")
        a(f"s_add_u32 {sA}, {sA}, {LDS_WK}")
        a(f"v_add_u32 v22, {sA}, v8")
        a("s_mov_b32 exec_lo, 0x00ff00ff")
        a("s_mov_b32 exec_hi, 0x00ff00ff")
        for s in range(16):
            a.ds(f"ds_read_b128 {vr(XF+4*s,4)}, {'v20' if s%2==0 else 'v21'} offset:{(s>>1)*8192}", f"x{s}")
        a("s_mov_b64 exec, -1")
        D = 24
        a(f"s_cmp_eq_u32 {sW}, 1")
        a("s_cbranch_scc1 L_vwave")
        saved_lg = list(a.lg)
        for wave in ("K", "V"):
            a.lg = list(saved_lg)
            if wave == "V": a.label("L_vwave")
            def wread(s):
                a.ds(f"ds_read_b64_tr_b16 {vr(WF+4*s,2)}, v22 offset:{s*1024}", f"w{s}")
                a.ds(f"ds_read_b64_tr_b16 {vr(WF+4*s+2,2)}, v22 offset:{s*1024+256}", f"w{s}")
            for s in range(4): wread(s)
            for s in range(16):
                a.wait_lg(f"w{s}")
                srcC = "0" if s == 0 else vr(D, 4)
                if wave == "K":
                    a(f"v_mfma_f32_16x16x32_bf16 {vr(D,4)}, {vr(WF+4*s,4)}, {vr(XF+4*s,4)}, {srcC}")
                else:
                    a(f"v_mfma_f32_16x16x32_bf16 {vr(D,4)}, {vr(XF+4*s,4)}, {vr(WF+4*s,4)}, {srcC}")
                if s + 4 < 16: wread(s + 4)
            a(f"s_lshl_b32 {sA}, {sC}, 3")
            a(f"s_add_u32 {sA}, {sA}, {sM}")
            a(f"s_lshl_b32 {sB}, {sA}, 10")
            a(f"s_add_u32 {sB}, {sB}, {WS_KV}")
            if wave == "K":
                a("v_and_b32 v8, 7, v1")
                a("v_lshlrev_b32 v8, 3, v8")
                a(f"v_add_u32 v8, {LDS_SCR}, v8")
                a.ds("ds_read_b64 v[10:11], v8", "st")
                for r in range(4):
                    a(f"v_mov_b32_dpp v{28+r}, v{D+r} row_ror:8 row_mask:0xf bank_mask:0xf")
                a.wait_lg("st")
                for r in range(4):
                    a(f"v_fma_f32 v{D+r}, -v10, v{28+r}, v{D+r}")
                for r in range(4):
                    a(f"v_mul_f32 v{D+r}, v11, v{D+r}")
                a(f"v_cvt_pk_bf16_f32 v32, v{D}, v{D+1}")
                a(f"v_cvt_pk_bf16_f32 v33, v{D+2}, v{D+3}")
                a("v_mov_b32 v34, v32")
                a("v_mov_b32 v35, v33")
                a("v_permlane32_swap_b32 v32, v34")
                a("v_permlane32_swap_b32 v33, v35")
                a("v_bfe_u32 v8, v1, 4, 1")
                a("v_and_b32 v9, 7, v1")
                a("v_lshlrev_b32 v9, 4, v9")
                a("v_lshl_add_u32 v8, v8, 7, v9")
                a("s_mov_b32 exec_lo, 0x00ff00ff")
                a("s_mov_b32 exec_hi, 0")
                a(f"buffer_store_dwordx4 v[32:35], v8, {srd(SRD_WS)}, {sB} offen sc1")
                a("s_mov_b64 exec, -1")
                a("v_dot2_f32_bf16 v12, v32, v32, 0")
                for i in (33, 34, 35):
                    a(f"v_dot2_f32_bf16 v12, v{i}, v{i}, v12")
                a("v_mov_b32 v13, v12")
                a("v_permlane16_swap_b32 v12, v13")
                a("v_add_f32 v12, v12, v13")
                a("v_and_b32 v13, 8, v1")
                a("v_cmp_eq_u32 vcc, 0, v13")
                a("v_cndmask_b32 v12, 0, v12, vcc")
                for n in (8, 4, 2, 1):
                    a(f"v_max_f32_dpp v12, v12, v12 row_ror:{n} row_mask:0xf bank_mask:0xf")
                a(f"v_readlane_b32 {sD}, v12, 0")
                a(f"s_add_u32 {sD}, {sD}, 8")
                a(f"s_and_b32 {sD}, {sD}, 0xfffffff8")
                a(f"s_or_b32 {sD}, {sD}, {sXCC}")
                a(f"s_mov_b32 s3, {sD}")
                a(f"s_mov_b32 {sG}, {sA}")
                a("s_branch L_kv_done")
            else:
                a("v_bfe_u32 v8, v1, 4, 1")
                a("v_lshlrev_b32 v8, 5, v8")
                a(f"v_add_u32 v8, {LDS_SCR}, v8")
                a.ds("ds_read_b128 v[12:15], v8", "st")
                a.ds("ds_read_b128 v[36:39], v8 offset:16", "st")
                a("v_and_b32 v9, 7, v1")
                a("v_lshlrev_b32 v9, 3, v9")
                a(f"v_add_u32 v40, {LDS_SCR}, v9")
                a.ds("ds_read_b64 v[42:43], v40", "st")
                a(f"v_mov_b32 v28, v{D}")
                a(f"v_mov_b32 v29, v{D}")
                a("v_permlane32_swap_b32 v28, v29")
                a.wait_lg("st")
                st = [(12, 13), (14, 15), (36, 37), (38, 39)]
                for r in range(4):
                    a(f"v_fma_f32 v{D+r}, -v{st[r][0]}, v29, v{D+r}")
                for r in range(4):
                    a(f"v_mul_f32 v{D+r}, v{st[r][1]}, v{D+r}")
                a(f"v_cvt_pk_bf16_f32 v32, v{D}, v{D+1}")
                a(f"v_cvt_pk_bf16_f32 v33, v{D+2}, v{D+3}")
                a("v_mov_b32 v34, v32")
                a("v_mov_b32 v35, v33")
                a("v_permlane16_swap_b32 v32, v34")
                a("v_permlane16_swap_b32 v33, v35")
                a("v_add_u32 v8, 256, v2")
                a("s_mov_b64 exec, 0xffff")
                a(f"buffer_store_dwordx4 v[32:35], v8, {srd(SRD_WS)}, {sB} offen sc1")
                a("s_mov_b64 exec, 0xff")
                a("v_add_u32 v9, 512, v9")
                a(f"buffer_store_dwordx2 v[42:43], v9, {srd(SRD_WS)}, {sB} offen sc1")
                a("s_mov_b64 exec, -1")
                a(f"s_mov_b32 {sG}, {sA}")
        a.lg = []
        a.label("L_kv_done")
        a(f"s_cmp_ge_u32 {sW}, 2")
        a("s_cbranch_scc1 L_b2_w")
        a("s_waitcnt vmcnt(2) lgkmcnt(0)")
        a(f"s_cmp_eq_u32 {sW}, 1")
        a("s_cbranch_scc1 L_b2")
        a("s_waitcnt vmcnt(1)")
        a("s_branch L_b2")
        a.label("L_b2_w")
        a("s_waitcnt vmcnt(0)")
        a.label("L_b2")
        a("s_barrier")
        self.stamp("b2")
        a.vm = []
        a(f"s_cmp_eq_u32 {sKH}, 0")
        a("s_cbranch_scc1 L_nodelay")
        a(f"s_lshl_b32 {sE_}, {sM}, 7")
        a(f"s_add_u32 {sD}, {sE_}, {496*1024}")
        a(f"s_mov_b32 m0, {LDS_WA + 7*8192 + 6*1024}")
        a(f"buffer_load_dwordx4 {vWAo}, {srd(SRD_WQ)}, {sD} offen lds")
        a(f"s_add_u32 {sD}, {sE_}, {504*1024}")
        a(f"s_mov_b32 m0, {LDS_WA + 7*8192 + 7*1024}")
        a(f"buffer_load_dwordx4 {vWAo}, {srd(SRD_WQ)}, {sD} offen lds")
        a.label("L_nodelay")
        AF, BF, ACC, CS = 64, 128, 32, 48
        vAe, vAo = "v20", "v21"
        vB = ["v22", "v23", "v24", "v25"]
        a("v_bfe_u32 v8, v1, 2, 2")
        a("v_lshrrev_b32 v9, 5, v1")
        a("v_lshl_add_u32 v9, v9, 3, v8")
        a("v_lshlrev_b32 v9, 7, v9")
        a("v_bfe_u32 v10, v1, 4, 1")
        a(f"v_xor_b32 v10, {sKH}, v10")
        a("v_lshlrev_b32 v10, 5, v10")
        a("v_and_b32 v11, 3, v1")
        a("v_lshl_add_u32 v10, v11, 3, v10")
        a(f"s_lshl_b32 {sA}, {sFT}, 6")
        a(f"v_add_u32 v10, {sA}, v10")
        a("v_bfe_u32 v11, v1, 3, 1")
        a("v_lshlrev_b32 v11, 6, v11")
        a("v_xor_b32 v10, v10, v11")
        a("v_add_u32 v9, v9, v10")
        a(f"s_lshl_b32 {sA}, {sKH}, 15")
        a(f"s_add_u32 {sA}, {sA}, {LDS_WA}")
        a(f"s_lshl_b32 {sB}, {sTT}, 11")
        a(f"s_add_u32 {sD}, {sA}, {sB}")
        a(f"v_add_u32 {vAe}, {sD}, v9")
        a(f"s_sub_u32 {sD}, {sA}, {sB}")
        a(f"v_add_u32 {vAo}, {sD}, v9")
        a("v_and_b32 v8, 31, v1")
        a("v_bfe_u32 v9, v1, 1, 3")
        a("v_lshrrev_b32 v10, 5, v1")
        a("v_xor_b32 v9, v9, v10")
        a("v_lshlrev_b32 v9, 4, v9")
        a("v_lshl_add_u32 v8, v8, 7, v9")
        a(f"s_lshl_b32 {sA}, {sKH}, 15")
        a(f"s_lshl_b32 {sB}, {sTT}, 12")
        a(f"s_add_u32 {sA}, {sA}, {sB}")
        a(f"v_add_u32 v8, {sA}, v8")
        a(f"s_lshl_b32 {sB}, {sTT}, 5")
        a(f"v_xor_b32 {vB[0]}, {sB}, v8")
        a(f"v_xor_b32 {vB[1]}, 32, {vB[0]}")
        a(f"v_xor_b32 {vB[2]}, 64, {vB[0]}")
        a(f"v_xor_b32 {vB[3]}, 96, {vB[0]}")
        a("s_mov_b32 s5, 0x3f803f80")
        NB = 5
        def qread(p):
            c, q = p >> 2, p & 3
            sl = p % NB
            va = vAe if q % 2 == 0 else vAo
            off = c * 8192 + q * 2048
            a.ds(f"ds_read_b64_tr_b16 {vr(AF+4*sl,2)}, {va} offset:{off}", f"q{p}")
            a.ds(f"ds_read_b64_tr_b16 {vr(AF+4*sl+2,2)}, {va} offset:{off+512}", f"q{p}")
            a.ds(f"ds_read_b128 {vr(BF+4*sl,4)}, {vB[q]} offset:{c*8192}", f"q{p}")
        PRE = 4
        for p in range(PRE): qread(p)
        for p in range(16):
            sl = p % NB
            a.wait_lg(f"q{p}")
            srcC = "0" if p == 0 else vr(ACC, 16)
            a(f"v_mfma_f32_32x32x16_bf16 {vr(ACC,16)}, {vr(AF+4*sl,4)}, {vr(BF+4*sl,4)}, {srcC}")
            if p % 2 == 0:
                for i in range(4):
                    src2 = "0" if (p == 0 and i == 0) else f"v{CS}"
                    a(f"v_dot2_f32_bf16 v{CS}, v{AF+4*sl+i}, s5, {src2}")
            nx = p + PRE
            if nx == 14:
                a("s_waitcnt vmcnt(0)")
                self.kv_flag()
            if nx < 16: qread(nx)
        LDS_E = 132 * 1024
        LDS_CS = 148 * 1024
        a(f"s_lshl_b32 {sA}, {sW}, 11")
        a(f"s_add_u32 {sA}, {sA}, {LDS_E}")
        a(f"v_add_u32 v8, {sA}, v2")
        a(f"ds_write_b128 v8, {vr(ACC+8,4)}")
        a(f"ds_write_b128 v8, {vr(ACC+12,4)} offset:1024")
        a(f"v_mov_b32 v9, v{CS}")
        a(f"v_permlane32_swap_b32 v{CS}, v9")
        a(f"v_add_f32 v9, v{CS}, v9")
        a("v_and_b32 v10, 31, v1")
        a(f"s_lshl_b32 {sA}, {sKH}, 4")
        a(f"v_xor_b32 v10, {sA}, v10")
        a(f"s_lshl_b32 {sA}, {sKH}, 1")
        a(f"s_add_u32 {sA}, {sA}, {sTT}")
        a(f"s_lshl_b32 {sA}, {sA}, 1")
        a(f"s_add_u32 {sA}, {sA}, {sFT}")
        a(f"s_lshl_b32 {sA}, {sA}, 7")
        a(f"s_add_u32 {sA}, {sA}, {LDS_CS}")
        a("v_lshlrev_b32 v10, 2, v10")
        a(f"v_add_u32 v10, {sA}, v10")
        a("ds_write_b32 v10, v9")
        a("s_waitcnt lgkmcnt(0)")
        a("s_barrier")
        a.lg = []
        a(f"s_xor_b32 {sA}, {sW}, 1")
        a(f"s_lshl_b32 {sA}, {sA}, 11")
        a(f"s_add_u32 {sA}, {sA}, {LDS_E}")
        a(f"v_add_u32 v8, {sA}, v2")
        a.ds(f"ds_read_b128 {vr(64,4)}, v8", "e")
        a.ds(f"ds_read_b128 {vr(68,4)}, v8 offset:1024", "e")
        a("v_lshrrev_b32 v9, 5, v1")
        a("v_lshlrev_b32 v9, 4, v9")
        a(f"s_lshl_b32 {sA}, {sFT}, 7")
        a(f"s_lshl_b32 {sB}, {sKH}, 6")
        a(f"s_add_u32 {sA}, {sA}, {sB}")
        a(f"s_add_u32 {sA}, {sA}, {LDS_CS}")
        a(f"v_add_u32 v9, {sA}, v9")
        for q in range(4):
            a.ds(f"ds_read_b128 {vr(72+8*q,4)}, v9 offset:{q*256}", "cs")
            a.ds(f"ds_read_b128 {vr(76+8*q,4)}, v9 offset:{q*256+32}", "cs")
        a.wait_lg("e")
        for i in range(8):
            a(f"v_add_f32 v{ACC+i}, v{ACC+i}, v{64+i}")
        a.wait_lg("cs")
        for i in range(8):
            a(f"v_add_f32 v{72+i}, v{72+i}, v{80+i}")
            a(f"v_add_f32 v{88+i}, v{88+i}, v{96+i}")
        for i in range(8):
            a(f"v_add_f32 v{40+i}, v{72+i}, v{88+i}")


    def poll_begin(self, name, limit=200000):
        a = self.a
        a(f"s_mov_b32 {sCnt}, {limit}")
        a.label(f"L_poll_{name}")
    def poll_end(self, name, sleep=1):
        a = self.a
        a(f"s_cbranch_vccz L_pollok_{name}")
        a(f"s_sub_u32 {sCnt}, {sCnt}, 1")
        a(f"s_cmp_eq_u32 {sCnt}, 0")
        a(f"s_cbranch_scc1 L_pollok_{name}")
        if sleep: a(f"s_sleep {sleep}")
        a(f"s_branch L_poll_{name}")
        a.label(f"L_pollok_{name}")

    def p2(self):
        a = self.a
        LDS_E = 132 * 1024
        Q, NEGM, S0, S1, P, O, KF, VF = 4, 8, 24, 40, 56, 64, 80, 88
        vKa, vVa = "v104", "v105"
        W1 = 128
        sTG = "s3"
        a(f"s_add_u32 {sTG}, {sTag}, 1")
        self.stamp("b3")
        if self.opt.get("kvsleep", 0):
            a(f"s_sleep {self.opt['kvsleep']}")
        a("v_lshlrev_b32 v3, 6, v1")
        a(f"s_mov_b32 {sA}, {WS_FLKV}")
        self.poll_begin("kv")
        for q in range(4):
            a(f"buffer_load_dwordx4 {vr(64+4*q,4)}, v3, {srd(SRD_WS)}, {sA} offen offset:{16*q} sc1")
        a("s_waitcnt vmcnt(0)")
        a(f"v_xor_b32 v80, {sTG}, v64")
        a(f"v_xor_b32 v81, {sTG}, v66")
        a("v_or_b32 v80, v80, v81")
        for q in range(1, 4):
            a(f"v_xor_b32 v81, {sTG}, v{64+4*q}")
            a("v_or_b32 v80, v80, v81")
            a(f"v_xor_b32 v81, {sTG}, v{66+4*q}")
            a("v_or_b32 v80, v80, v81")
        a("v_cmp_ne_u32 vcc, 0, v80")
        self.poll_end("kv", sleep=2)
        self.stamp("kvok")
        a("v_bfe_u32 v8, v1, 3, 2")
        a("v_and_b32 v9, 7, v1")
        a("v_lshlrev_b32 v9, 3, v9")
        a("v_lshl_add_u32 v8, v8, 10, v9")
        a(f"s_lshl_b32 {sA}, {sC}, 3")
        a(f"s_lshl_b32 {sB}, {sTT}, 2")
        a(f"s_add_u32 {sA}, {sA}, {sB}")
        a(f"s_lshl_b32 {sA}, {sA}, 10")
        a(f"s_add_u32 {sA}, {sA}, {WS_KV + 512}")
        a(f"buffer_load_dwordx2 v[10:11], v8, {srd(SRD_WS)}, {sA} offen sc1")
        a("v_and_b32 v12, 31, v1")
        a("v_and_b32 v13, 0x13, v12")
        a("v_bfe_u32 v14, v12, 2, 1")
        a("v_lshl_or_b32 v13, v14, 3, v13")
        a("v_bfe_u32 v14, v12, 3, 1")
        a("v_lshl_or_b32 v13, v14, 2, v13")
        a("v_lshrrev_b32 v14, 3, v13")
        a("v_lshlrev_b32 v14, 10, v14")
        a("v_and_b32 v13, 7, v13")
        a("v_lshl_or_b32 v14, v13, 4, v14")
        a("v_lshrrev_b32 v13, 5, v1")
        a("v_lshl_or_b32 v14, v13, 7, v14")
        a("v_lshrrev_b32 v15, 4, v1")
        a("v_lshlrev_b32 v15, 10, v15")
        a("v_and_b32 v13, 15, v1")
        a("v_lshl_or_b32 v15, v13, 4, v15")
        a("v_add_u32 v15, 256, v15")
        a(f"s_lshr_b32 {sF}, {sID}, 3")
        a(f"s_lshl_b32 {sF}, {sF}, 1")
        a(f"s_add_u32 {sF}, {sF}, {sW}")
        a(f"s_lshl_b32 {sE_}, {sW}, 11")
        for i in range(8):
            a(f"s_and_b32 {sD}, {sF}, 63")
            a(f"s_lshl_b32 {sD}, {sD}, 12")
            a(f"s_add_u32 {sD}, {sD}, {WS_KV}")
            a(f"s_mov_b32 m0, {sE_}")
            a(f"buffer_load_dwordx4 v14, {srd(SRD_WS)}, {sD} offen sc1 lds")
            a(f"s_add_u32 {sB}, {sE_}, 1024")
            a(f"s_mov_b32 m0, {sB}")
            a(f"buffer_load_dwordx4 v15, {srd(SRD_WS)}, {sD} offen sc1 lds")
            if i < 7:
                a(f"s_add_u32 {sF}, {sF}, 8")
                a(f"s_add_u32 {sE_}, {sE_}, {8*2048}")
        self.wt_issue()
        a("v_and_b32 v80, -8, v65")
        for q in range(1, 4):
            a(f"v_and_b32 v81, -8, v{65+4*q}")
            a("v_max_f32 v80, v80, v81")
        a(f"v_xor_b32 v82, {sXCC}, v65")
        for q in range(1, 4):
            a(f"v_xor_b32 v81, {sXCC}, v{65+4*q}")
            a("v_or_b32 v82, v82, v81")
        a("v_and_b32 v82, 7, v82")
        a("v_cmp_ne_u32 vcc, 0, v82")
        a(f"s_lshl_b32 {sA}, {sC}, 1")
        a(f"s_lshr_b64 {sX64}, vcc, {sA}")
        a(f"s_and_b32 {sFast}, s4, 3")
        if self.opt.get("slow"): a(f"s_mov_b32 {sFast}, 1")
        self.wave_reduce(["v80"], "max", ["v81"])
        a("v_sqrt_f32 v80, v80")
        a(f"s_or_b32 {sA}, {sID}, {sW}")
        a(f"s_cmp_lg_u32 {sA}, 0")
        a("s_cbranch_scc1 L_noepoch")
        a(f"v_mov_b32 v81, {sTG}")
        a("v_mov_b32 v82, 0")
        a("s_mov_b64 exec, 1")
        a(f"buffer_store_dword v81, v82, {srd(SRD_WS)}, 0 offen")
        a("s_mov_b64 exec, -1")
        a.label("L_noepoch")
        a("s_waitcnt vmcnt(18)")
        a(f"v_mul_f32 v11, 0x{f32bits(0.25*LOG2E):x}, v11")
        for i in range(8):
            a(f"v_fma_f32 v{32+i}, -v10, v{40+i}, v{32+i}")
        for i in range(8):
            a(f"v_mul_f32 v{32+i}, v11, v{32+i}")
        for i in range(4):
            a(f"v_cvt_pk_bf16_f32 v{Q+i}, v{32+2*i}, v{33+2*i}")
        if self.stop == "q":
            self.dump_regs(0, [Q, Q+1, Q+2, Q+3], WS_DBG)
            return
        a(f"v_dot2_f32_bf16 v12, v{Q}, v{Q}, 0")
        for i in range(1, 4):
            a(f"v_dot2_f32_bf16 v12, v{Q+i}, v{Q+i}, v12")
        a("v_mov_b32 v13, v12")
        a("v_permlane32_swap_b32 v12, v13")
        a("v_add_f32 v12, v12, v13")
        a("v_sqrt_f32 v12, v12")
        a("v_mul_f32 v12, v12, v80")
        a(f"v_mul_f32 v12, 0x{f32bits(1.0078125):x}, v12")
        a(f"v_cmp_lt_f32 vcc, 0x{f32bits(48.0):x}, v12")
        a("v_cmp_u_f32 s[4:5], v12, v12")
        a("s_or_b64 vcc, vcc, s[4:5]")
        a("s_cmp_lg_u64 vcc, 0")
        a(f"s_cselect_b32 {sG}, 1, 0")
        if self.opt.get("forcefb"): a(f"s_mov_b32 {sG}, 1")
        if self.opt.get("fixm"): a("v_mov_b32 v12, 0x41a00000")
        if self.opt.get("dumpm"):
            self.dump_regs(0, [12, 80], WS_DBG)
        a(f"v_sub_f32 v{NEGM}, 0, v12")
        for i in range(1, 16):
            a(f"v_mov_b32 v{NEGM+i}, v{NEGM}")
        a(f"v_mov_b32 v{VF}, 0x3f803f80")
        for i in range(1, 16):
            a(f"v_mov_b32 v{VF+i}, v{VF}")
        for i in range(16):
            a(f"v_mov_b32 v{O+i}, 0")
        a(f"v_mov_b32 {vKa}, v2")
        a("v_and_b32 v106, 15, v1")
        a("v_lshlrev_b32 v106, 4, v106")
        a("v_lshrrev_b32 v107, 5, v1")
        a("v_lshl_or_b32 v106, v107, 8, v106")
        a(f"v_add_u32 {vVa}, 1024, v106")
        a("s_mov_b32 s6, 0x0000ffff")
        a("s_mov_b32 s7, 0x0000ffff")
        a("s_waitcnt vmcnt(0)" if self.opt.get("b4all") else "s_waitcnt vmcnt(14)")
        a("s_barrier")
        self.stamp("b4")

        def kread(buf, off): a(f"ds_read_b128 {vr(KF+4*buf,4)}, {vKa} offset:{off}")
        def vread(buf, off):
            a("s_mov_b64 exec, s[6:7]")
            a(f"ds_read_b128 {vr(VF+8*buf,4)}, {vVa} offset:{off}")
            a(f"ds_read_b128 {vr(VF+8*buf+4,4)}, {vVa} offset:{off+512}")
            a("s_mov_b64 exec, -1")
        def pipe_prologue():
            kread(0, 0)
            kread(1, 2048)
            vread(0, 0)
            a("s_waitcnt lgkmcnt(3)")
            a(f"v_mfma_f32_32x32x16_bf16 {vr(S0,16)}, {vr(KF,4)}, {vr(Q,4)}, {vr(NEGM,16)}")
            a("s_nop 11")
        a(f"s_mov_b32 {sPh}, 0")
        a(f"s_cmp_eq_u32 {sG}, 1")
        a("s_cbranch_scc1 L_sw0")
        pipe_prologue()
        a(f"s_mov_b32 {sCnt}, 3")
        a.label("L_body")
        for j in range(4):
            cur = S0 if j % 2 == 0 else S1
            nxt = S1 if j % 2 == 0 else S0
            kb = (j + 1) % 2
            vb = j % 2
            for i in range(4): a(f"v_exp_f32 v{cur+i}, v{cur+i}")
            a("s_waitcnt lgkmcnt(2)")
            a(f"v_mfma_f32_32x32x16_bf16 {vr(nxt,16)}, {vr(KF+4*kb,4)}, {vr(Q,4)}, {vr(NEGM,16)}")
            kread(j % 2, (j + 2) * 2048)
            for i in range(4, 8): a(f"v_exp_f32 v{cur+i}, v{cur+i}")
            for i in range(4): a(f"v_cvt_pk_bf16_f32 v{P+i}, v{cur+2*i}, v{cur+2*i+1}")
            a("s_waitcnt lgkmcnt(1)")
            vread((j + 1) % 2, (j + 1) * 2048)
            a(f"v_mfma_f32_32x32x16_bf16 {vr(O,16)}, {vr(VF+8*vb,4)}, {vr(P,4)}, {vr(O,16)}")
            for i in range(8, 14): a(f"v_exp_f32 v{cur+i}, v{cur+i}")
            a(f"v_cvt_pk_bf16_f32 v{P+4}, v{cur+8}, v{cur+9}")
            a(f"v_exp_f32 v{cur+14}, v{cur+14}")
            a(f"v_cvt_pk_bf16_f32 v{P+5}, v{cur+10}, v{cur+11}")
            a(f"v_exp_f32 v{cur+15}, v{cur+15}")
            a(f"v_cvt_pk_bf16_f32 v{P+6}, v{cur+12}, v{cur+13}")
            a(f"v_cvt_pk_bf16_f32 v{P+7}, v{cur+14}, v{cur+15}")
            if j == 3:
                a(f"v_add_u32 {vKa}, 8192, {vKa}")
                a(f"v_add_u32 {vVa}, 8192, {vVa}")
            a(f"v_mfma_f32_32x32x16_bf16 {vr(O,16)}, {vr(VF+8*vb+4,4)}, {vr(P+4,4)}, {vr(O,16)}")
        a(f"s_sub_u32 {sCnt}, {sCnt}, 1")
        a(f"s_cmp_lg_u32 {sCnt}, 0")
        a("s_cbranch_scc1 L_body")
        a(f"s_add_u32 {sPh}, {sPh}, 1")
        a(f"s_cmp_eq_u32 {sPh}, 2")
        a("s_cbranch_scc1 L_sw1")
        a(f"s_cmp_eq_u32 {sPh}, 3")
        a("s_cbranch_scc1 L_sw2")
        a(f"s_cmp_eq_u32 {sPh}, 4")
        a("s_cbranch_scc1 L_attn_done")
        a.label("L_sw0")
        a("s_waitcnt vmcnt(0)")
        a("s_barrier")
        self.wt_process()
        a(f"s_mov_b32 {sCnt}, 1")
        a(f"s_cmp_eq_u32 {sG}, 0")
        a("s_cbranch_scc1 L_body")
        a(f"s_mov_b32 {sPh}, 1")
        a(f"v_mov_b32 v106, {vKa}")
        a("v_mov_b32 v107, 0xff800000")
        a(f"s_mov_b32 {sCnt}, 64")
        a.label("L_fb")
        a(f"ds_read_b128 {vr(KF,4)}, v106")
        a("v_add_u32 v106, 2048, v106")
        a("s_waitcnt lgkmcnt(0)")
        a(f"v_mfma_f32_32x32x16_bf16 {vr(S0,16)}, {vr(KF,4)}, {vr(Q,4)}, 0")
        for i in range(8):
            a(f"v_max3_f32 v107, v{S0+2*i}, v{S0+2*i+1}, v107")
        a(f"s_sub_u32 {sCnt}, {sCnt}, 1")
        a(f"s_cmp_lg_u32 {sCnt}, 0")
        a("s_cbranch_scc1 L_fb")
        a("v_mov_b32 v106, v107")
        a("v_permlane32_swap_b32 v106, v107")
        a("v_max_f32 v107, v106, v107")
        a(f"v_sub_f32 v{NEGM}, 0, v107")
        for i in range(1, 16):
            a(f"v_mov_b32 v{NEGM+i}, v{NEGM}")
        pipe_prologue()
        a(f"s_mov_b32 {sCnt}, 4")
        a("s_branch L_body")
        a.label("L_sw1")
        a("s_waitcnt vmcnt(0)")
        a("s_barrier")
        a(f"s_cmp_lg_u32 {sW}, 0")
        a("s_cbranch_scc1 L_sw1b")
        a(f"s_lshl_b32 {sA}, {sID}, 2")
        a(f"s_add_u32 {sA}, {sA}, {WS_FLWT}")
        a(f"v_mov_b32 v106, {sTG}")
        a("v_mov_b32 v107, 0")
        a("s_mov_b64 exec, 1")
        a(f"buffer_store_dword v106, v107, {srd(SRD_WS)}, {sA} offen sc1")
        a("s_mov_b64 exec, -1")
        a.label("L_sw1b")
        a(f"s_mov_b32 {sCnt}, 3")
        a("s_branch L_body")
        a.label("L_sw2")
        a(f"s_mov_b32 {sA}, {WS_FLWT}")
        self.poll_begin("wt")
        a(f"buffer_load_dwordx4 v[108:111], v2, {srd(SRD_WS)}, {sA} offen sc1")
        a("s_waitcnt vmcnt(0)")
        for i in range(4): a(f"v_xor_b32 v{108+i}, {sTG}, v{108+i}")
        a("v_or_b32 v108, v108, v109")
        a("v_or_b32 v110, v110, v111")
        a("v_or_b32 v108, v108, v110")
        a("v_cmp_ne_u32 vcc, 0, v108")
        self.poll_end("wt", sleep=2)
        a(f"s_cmp_eq_u32 {sW}, 7")
        a("s_cbranch_scc1 L_sw2b")
        a(f"s_mul_i32 {sA}, {sM}, 7")
        a(f"s_add_u32 {sA}, {sA}, {sW}")
        a(f"s_lshl_b32 {sA}, {sA}, 15")
        a(f"s_add_u32 {sA}, {sA}, {WS_W1F}")
        for s_ in range(32):
            a(f"buffer_load_dwordx4 {vr(W1+4*s_,4)}, v2, {srd(SRD_WS)}, {sA} offen offset:{(s_%4)*1024} sc1")
            if s_ % 4 == 3 and s_ < 31: a(f"s_add_u32 {sA}, {sA}, 4096")
        a.label("L_sw2b")
        a(f"s_mov_b32 {sCnt}, 9")
        a("s_branch L_body")
        a.label("L_attn_done")
        self.stamp("attn")
        a(f"v_rcp_f32 v12, v{O+8}")
        for i in range(8):
            a(f"v_mul_f32 v{O+i}, v12, v{O+i}")
        for i in range(4):
            a(f"v_cvt_pk_bf16_f32 v{12+i}, v{O+2*i}, v{O+2*i+1}")
        a(f"s_lshl_b32 {sA}, {sM}, 2")
        a(f"s_lshl_b32 {sB}, {sFT}, 1")
        a(f"s_add_u32 {sA}, {sA}, {sB}")
        a(f"s_add_u32 {sA}, {sA}, {sKH}")
        a(f"s_lshl_b32 {sB}, {sA}, 1")
        a(f"s_add_u32 {sB}, {sB}, {sTT}")
        a(f"s_lshl_b32 {sB}, {sB}, 10")
        a(f"s_lshl_b32 {sD}, {sC}, 16")
        a(f"s_add_u32 {sB}, {sB}, {sD}")
        a(f"s_add_u32 {sB}, {sB}, {WS_O}")
        a(f"s_lshl_b32 {sD}, {sTT}, 5")
        a(f"s_add_u32 {sD}, {sD}, {sA}")
        a(f"s_lshl_b32 {sD}, {sD}, 2")
        a(f"s_lshl_b32 {sE_}, {sC}, 8")
        a(f"s_add_u32 {sD}, {sD}, {sE_}")
        a(f"s_add_u32 {sD}, {sD}, {WS_FLO}")
        self.publish("o", [("dwordx4", "v[12:15]", "v2", sB, 0)], sD)

    def publish(self, name, stores, sflag, pre_exec=None):
        a = self.a
        a(f"v_mov_b32 v126, s3")
        a(f"v_mov_b32 v127, 0")
        a(f"s_cmp_eq_u32 {sFast}, 0")
        a(f"s_cbranch_scc0 L_pub_slow_{name}")
        for variant, mod in (("fast", ""), ("slow", " sc1")):
            if variant == "slow": a.label(f"L_pub_slow_{name}")
            for st in stores:
                ty, data, voff, soff, io = st[:5]
                if len(st) > 5: a(f"s_mov_b32 exec_hi, 0")
                a(f"buffer_store_{ty} {data}, {voff}, {srd(SRD_WS)}, {soff} offen offset:{io}{mod}")
                if len(st) > 5: a("s_mov_b64 exec, -1")
            a("s_waitcnt vmcnt(0)")
            a("s_mov_b64 exec, 1")
            a(f"buffer_store_dword v126, v127, {srd(SRD_WS)}, {sflag} offen{mod}")
            a("s_mov_b64 exec, -1")
            if variant == "fast": a(f"s_branch L_pub_done_{name}")
        a.label(f"L_pub_done_{name}")

    def wt_issue(self):
        a = self.a
        LDS_E = 132 * 1024
        a(f"s_lshl_b32 {sA}, {sID}, 3")
        a(f"s_add_u32 {sA}, {sA}, {sW}")
        a(f"s_cmp_lt_u32 {sA}, 256")
        a("s_cbranch_scc1 L_wt_wo")
        a(f"s_cmp_lt_u32 {sA}, 1152")
        a("s_cbranch_scc1 L_wt_w1")
        a(f"s_sub_u32 {sA}, {sA}, 1152")
        a(f"s_mul_i32 {sB}, {sA}, 9363")
        a(f"s_lshr_b32 {sB}, {sB}, 20")
        a(f"s_mul_i32 {sD}, {sB}, 112")
        a(f"s_sub_u32 {sD}, {sA}, {sD}")
        for i in range(4): a(f"s_mov_b32 s{SRD_T+i}, s{SRD_W2+i}")
        a(f"s_mov_b32 {sF}, 1024")
        a(f"s_mul_i32 s88, {sB}, {2*112}")
        a(f"s_add_u32 s88, s88, {sD}")
        a("s_lshl_b32 s88, s88, 10")
        a(f"s_add_u32 s88, s88, {WS_W2F}")
        a(f"s_mov_b32 s89, {112*1024}")
        a("s_branch L_wt_go")
        a.label("L_wt_w1")
        a(f"s_sub_u32 {sA}, {sA}, 256")
        a(f"s_lshr_b32 {sB}, {sA}, 5")
        a(f"s_and_b32 {sD}, {sA}, 31")
        for i in range(4): a(f"s_mov_b32 s{SRD_T+i}, s{SRD_W1+i}")
        a(f"s_mov_b32 {sF}, 3584")
        a(f"s_lshl_b32 s88, {sB}, 6")
        a(f"s_add_u32 s88, s88, {sD}")
        a("s_lshl_b32 s88, s88, 10")
        a(f"s_add_u32 s88, s88, {WS_W1F}")
        a(f"s_mov_b32 s89, {32*1024}")
        a("s_branch L_wt_go")
        a.label("L_wt_wo")
        a(f"s_lshr_b32 {sB}, {sA}, 5")
        a(f"s_and_b32 {sD}, {sA}, 31")
        for i in range(4): a(f"s_mov_b32 s{SRD_T+i}, s{SRD_WO+i}")
        a(f"s_mov_b32 {sF}, 1024")
        a(f"s_lshl_b32 s88, {sB}, 6")
        a(f"s_add_u32 s88, s88, {sD}")
        a("s_lshl_b32 s88, s88, 10")
        a(f"s_add_u32 s88, s88, {WS_WOF}")
        a(f"s_mov_b32 s89, {32*1024}")
        a.label("L_wt_go")
        a(f"s_mul_i32 {sD}, {sD}, {sF}")
        a(f"s_lshl_b32 {sD}, {sD}, 4")
        a(f"s_lshl_b32 {sB}, {sB}, 7")
        a(f"s_add_u32 {sD}, {sD}, {sB}")
        a("v_lshrrev_b32 v16, 3, v1")
        a(f"v_mul_lo_u32 v16, v16, {sF}")
        a("v_and_b32 v17, 7, v1")
        a("v_bfe_u32 v18, v1, 4, 1")
        a("v_lshlrev_b32 v18, 2, v18")
        a("v_xor_b32 v17, v17, v18")
        a("v_lshl_add_u32 v16, v17, 4, v16")
        a(f"s_xor_b32 {sA}, {sW}, 1")
        a(f"s_lshl_b32 {sA}, {sA}, 11")
        a(f"s_add_u32 {sA}, {sA}, {LDS_E}")
        a(f"s_mov_b32 m0, {sA}")
        a(f"buffer_load_dwordx4 v16, {srd(SRD_T)}, {sD} offen lds")
        a(f"s_lshl_b32 {sB}, {sF}, 3")
        a(f"s_add_u32 {sD}, {sD}, {sB}")
        a(f"s_add_u32 {sA}, {sA}, 1024")
        a(f"s_mov_b32 m0, {sA}")
        a(f"buffer_load_dwordx4 v16, {srd(SRD_T)}, {sD} offen lds")

    def wt_process(self):
        a = self.a
        LDS_E = 132 * 1024
        a("v_bfe_u32 v106, v1, 2, 2")
        a("v_lshrrev_b32 v107, 5, v1")
        a("v_lshl_add_u32 v107, v107, 2, v106")
        a("v_lshlrev_b32 v107, 7, v107")
        a("v_bfe_u32 v108, v1, 4, 1")
        a("v_lshlrev_b32 v108, 5, v108")
        a("v_and_b32 v109, 3, v1")
        a("v_lshl_add_u32 v108, v109, 3, v108")
        a("v_bfe_u32 v109, v1, 3, 1")
        a("v_lshlrev_b32 v109, 6, v109")
        a("v_xor_b32 v108, v108, v109")
        a("v_add_u32 v107, v107, v108")
        a(f"s_xor_b32 {sA}, {sW}, 1")
        a(f"s_lshl_b32 {sA}, {sA}, 11")
        a(f"s_add_u32 {sA}, {sA}, {LDS_E}")
        a(f"v_add_u32 v107, {sA}, v107")
        a("v_xor_b32 v108, 64, v107")
        a("ds_read_b64_tr_b16 v[112:113], v107")
        a("ds_read_b64_tr_b16 v[114:115], v107 offset:1024")
        a("ds_read_b64_tr_b16 v[116:117], v108")
        a("ds_read_b64_tr_b16 v[118:119], v108 offset:1024")
        a("s_waitcnt lgkmcnt(0)")
        a(f"buffer_store_dwordx4 v[112:115], v2, {srd(SRD_WS)}, s88 offen sc1")
        a("s_add_u32 s88, s88, s89")
        a(f"buffer_store_dwordx4 v[116:119], v2, {srd(SRD_WS)}, s88 offen sc1")


    def p3(self):
        a = self.a
        HB, X, ACC, BR, WO, W1 = 4, 8, 16, 32, 64, 128
        LDS_OF, LDS_E2, LDS_CS1 = 0, 128 * 1024, 145 * 1024
        sS = "s88"
        a(f"s_lshl_b32 {sS}, {sM}, 2")
        a(f"s_lshl_b32 {sB}, {sFT}, 1")
        a(f"s_add_u32 {sS}, {sS}, {sB}")
        a(f"s_add_u32 {sS}, {sS}, {sKH}")
        a(f"s_lshl_b32 {sA}, {sM}, 1")
        a(f"s_add_u32 {sA}, {sA}, {sFT}")
        a(f"s_lshl_b32 {sA}, {sA}, 5")
        a(f"s_lshl_b32 {sB}, {sKH}, 4")
        a(f"s_add_u32 {sA}, {sA}, {sB}")
        a(f"s_lshl_b32 {sA}, {sA}, 10")
        a(f"s_add_u32 {sA}, {sA}, {WS_WOF}")
        a(f"s_lshl_b32 {sB}, {sKH}, 8")
        a(f"v_xor_b32 v3, {sB}, v2")
        for i in range(16):
            a(f"buffer_load_dwordx4 {vr(WO+4*i,4)}, v3, {srd(SRD_WS)}, {sA} offen offset:{(i%4)*1024} sc1")
            if i % 4 == 3 and i < 15: a(f"s_add_u32 {sA}, {sA}, 4096")
        a("v_and_b32 v12, 31, v1")
        a("v_lshlrev_b32 v12, 10, v12")
        a("v_lshrrev_b32 v13, 5, v1")
        a("v_lshl_or_b32 v12, v13, 3, v12")
        a(f"s_lshl_b32 {sA}, {sTT}, 5")
        a(f"s_add_u32 {sA}, {sA}, {sT0}")
        a(f"s_lshl_b32 {sA}, {sA}, 10")
        a(f"s_lshl_b32 {sB}, {sS}, 5")
        a(f"s_add_u32 {sA}, {sA}, {sB}")
        a(f"buffer_load_dwordx2 {vr(X,2)}, v12, {srd(SRD_X)}, {sA} offen")
        a(f"buffer_load_dwordx2 {vr(X+2,2)}, v12, {srd(SRD_X)}, {sA} offen offset:16")
        a(f"s_cmp_eq_u32 {sW}, 7")
        a("s_cbranch_scc1 L_nocs1")
        a("s_mov_b32 s5, 0x3f803f80")
        for i in range(128):
            r = "v14" if i % 2 == 0 else "v15"
            a(f"v_dot2_f32_bf16 {r}, v{W1+i}, s5, {'0' if i < 2 else r}")
        a("v_add_f32 v14, v14, v15")
        a("v_mov_b32 v15, v14")
        a("v_permlane32_swap_b32 v14, v15")
        a("v_add_f32 v14, v14, v15")
        a("v_and_b32 v15, 31, v1")
        a("v_lshlrev_b32 v15, 2, v15")
        a(f"s_lshl_b32 {sA}, {sW}, 7")
        a(f"s_add_u32 {sA}, {sA}, {LDS_CS1}")
        a(f"v_add_u32 v15, {sA}, v15")
        a("ds_write_b32 v15, v14")
        a.label("L_nocs1")
        a("s_waitcnt lgkmcnt(0)")
        a("s_barrier")
        self.stamp("b7")
        a(f"s_lshl_b32 {sA}, {sTT}, 5")
        a(f"s_lshl_b32 {sB}, {sKH}, 4")
        a(f"s_add_u32 {sA}, {sA}, {sB}")
        a(f"s_lshl_b32 {sA}, {sA}, 2")
        a(f"s_lshl_b32 {sB}, {sC}, 8")
        a(f"s_add_u32 {sA}, {sA}, {sB}")
        a(f"s_add_u32 {sA}, {sA}, {WS_FLO}")
        a("v_and_b32 v12, 15, v1")
        a("v_lshlrev_b32 v12, 2, v12")
        self.poll_begin("o")
        a(f"buffer_load_dword v13, v12, {srd(SRD_WS)}, {sA} offen sc1")
        a("s_waitcnt vmcnt(0)")
        a("v_cmp_ne_u32 vcc, s3, v13")
        self.poll_end("o", sleep=1)
        self.stamp("ook")
        a(f"s_lshl_b32 {sA}, {sKH}, 4")
        a(f"s_lshl_b32 {sB}, {sFT}, 2")
        a(f"s_add_u32 {sA}, {sA}, {sB}")
        a(f"s_lshl_b32 {sA}, {sA}, 1")
        a(f"s_add_u32 {sA}, {sA}, {sTT}")
        a(f"s_lshl_b32 {sA}, {sA}, 10")
        a(f"s_lshl_b32 {sB}, {sC}, 16")
        a(f"s_add_u32 {sB}, {sB}, {sA}")
        a(f"s_add_u32 {sB}, {sB}, {WS_O}")
        for st in range(2):
            for i in range(4):
                d = (st * 8 + i) * 2048
                a(f"s_add_u32 {sD}, {sA}, {d + LDS_OF}")
                a(f"s_add_u32 {sE_}, {sB}, {d}")
                a(f"s_mov_b32 m0, {sD}")
                a(f"buffer_load_dwordx4 v2, {srd(SRD_WS)}, {sE_} offen sc1 lds")
        a(f"s_lshl_b32 {sA}, {sKH}, 15")
        a(f"s_lshl_b32 {sB}, {sTT}, 10")
        a(f"s_add_u32 {sA}, {sA}, {sB}")
        a(f"v_add_u32 v12, {sA}, v2")
        a.lg = []
        for st in range(2):
            a(f"s_waitcnt vmcnt({4 if st == 0 else 0})")
            a("s_barrier")
            for i in range(8):
                a.ds(f"ds_read_b128 {vr(BR+4*i,4)}, v12 offset:{(st*8+i)*2048}", f"b{st}{i}")
            for i in range(8):
                a.wait_lg(f"b{st}{i}")
                k = st * 8 + i
                srcC = "0" if k == 0 else vr(ACC, 16)
                a(f"v_mfma_f32_32x32x16_bf16 {vr(ACC,16)}, {vr(WO+4*k,4)}, {vr(BR+4*i,4)}, {srcC}")
        a(f"s_lshl_b32 {sA}, {sW}, 11")
        a(f"s_add_u32 {sA}, {sA}, {LDS_E2}")
        a(f"v_add_u32 v12, {sA}, v2")
        a(f"ds_write_b128 v12, {vr(ACC+8,4)}")
        a(f"ds_write_b128 v12, {vr(ACC+12,4)} offset:1024")
        a("s_waitcnt lgkmcnt(0)")
        a("s_barrier")
        a("v_xor_b32 v12, 2048, v12")
        a(f"ds_read_b128 {vr(BR,4)}, v12")
        a(f"ds_read_b128 {vr(BR+4,4)}, v12 offset:1024")
        for i in range(4):
            a(f"v_lshlrev_b32 v{BR+8+2*i}, 16, v{X+i}")
            a(f"v_and_b32 v{BR+9+2*i}, 0xffff0000, v{X+i}")
        a("s_waitcnt lgkmcnt(0)")
        for i in range(8):
            a(f"v_add_f32 v{ACC+i}, v{ACC+i}, v{BR+i}")
        for i in range(8):
            a(f"v_add_f32 v{ACC+i}, v{ACC+i}, v{BR+8+i}")
        for i in range(4):
            a(f"v_cvt_pk_bf16_f32 v{HB+i}, v{ACC+2*i}, v{ACC+2*i+1}")
        a("s_mov_b32 s5, 0x3f803f80")
        a(f"v_dot2_f32_bf16 v12, v{HB}, s5, 0")
        a(f"v_dot2_f32_bf16 v13, v{HB}, v{HB}, 0")
        for i in range(1, 4):
            a(f"v_dot2_f32_bf16 v12, v{HB+i}, s5, v12")
            a(f"v_dot2_f32_bf16 v13, v{HB+i}, v{HB+i}, v13")
        a("v_mov_b32 v14, v12")
        a("v_mov_b32 v15, v13")
        a("v_permlane32_swap_b32 v12, v14")
        a("v_permlane32_swap_b32 v13, v15")
        a("v_add_f32 v12, v12, v14")
        a("v_add_f32 v13, v13, v15")
        a(f"s_lshl_b32 {sA}, {sS}, 1")
        a(f"s_add_u32 {sA}, {sA}, {sTT}")
        a(f"s_lshl_b32 {sA}, {sA}, 10")
        a(f"s_lshl_b32 {sB}, {sC}, 16")
        a(f"s_add_u32 {sA}, {sA}, {sB}")
        a(f"s_add_u32 {sA}, {sA}, {WS_H}")
        a(f"s_lshl_b32 {sD}, {sTT}, 5")
        a(f"s_add_u32 {sD}, {sD}, {sS}")
        a(f"s_lshl_b32 {sB}, {sD}, 8")
        a(f"s_lshl_b32 {sE_}, {sC}, 14")
        a(f"s_add_u32 {sB}, {sB}, {sE_}")
        a(f"s_add_u32 {sB}, {sB}, {WS_ST}")
        a(f"s_lshl_b32 {sD}, {sD}, 2")
        a(f"s_lshl_b32 {sE_}, {sC}, 8")
        a(f"s_add_u32 {sD}, {sD}, {sE_}")
        a(f"s_add_u32 {sD}, {sD}, {WS_FLH}")
        a("v_lshlrev_b32 v14, 3, v1")
        self.publish("h", [("dwordx4", vr(HB, 4), "v2", sA, 0), ("dwordx2", "v[12:13]", "v14", sB, 0, "lo32")], sD)
        self.stamp("hpub")

    def p4(self):
        a = self.a
        HB, B1, ACC, BR, W1 = 4, 8, 16, 48, 128
        LDS_HF, LDS_ST2, LDS_CS1 = 64 * 1024, 144 * 1024, 145 * 1024
        a(f"s_cmp_eq_u32 {sW}, 7")
        a("s_cbranch_scc1 L_nob1")
        a(f"s_mul_i32 {sA}, {sM}, 7")
        a(f"s_add_u32 {sA}, {sA}, {sW}")
        a(f"s_lshl_b32 {sA}, {sA}, 6")
        a("v_lshrrev_b32 v3, 5, v1")
        a("v_lshlrev_b32 v3, 3, v3")
        for q in range(4):
            a(f"buffer_load_dwordx2 {vr(B1+2*q,2)}, v3, {srd(SRD_B1)}, {sA} offen offset:{16*q}")
        a.label("L_nob1")
        a(f"s_lshl_b32 {sA}, {sC}, 8")
        a(f"s_add_u32 {sA}, {sA}, {WS_FLH}")
        a("v_lshlrev_b32 v3, 2, v1")
        self.poll_begin("h")
        a(f"buffer_load_dword v80, v3, {srd(SRD_WS)}, {sA} offen sc1")
        a("s_waitcnt vmcnt(0)")
        a("v_cmp_ne_u32 vcc, s3, v80")
        self.poll_end("h", sleep=1)
        self.stamp("hok")
        a(f"s_lshl_b32 {sA}, {sW}, 11")
        a(f"s_lshl_b32 {sB}, {sC}, 16")
        a(f"s_add_u32 {sB}, {sB}, {sA}")
        a(f"s_add_u32 {sB}, {sB}, {WS_H}")
        for i in range(4):
            for tt in range(2):
                d = i * 8 * 2048 + tt * 1024
                a(f"s_add_u32 {sD}, {sA}, {d + LDS_HF}")
                a(f"s_add_u32 {sE_}, {sB}, {d}")
                a(f"s_mov_b32 m0, {sD}")
                a(f"buffer_load_dwordx4 v2, {srd(SRD_WS)}, {sE_} offen sc1 lds")
        a(f"s_lshl_b32 {sA}, {sM}, 1")
        a(f"s_add_u32 {sA}, {sA}, {sFT}")
        a(f"s_mul_i32 {sA}, {sA}, 112")
        a(f"s_and_b32 {sB}, {sW}, 3")
        a(f"s_mul_i32 {sB}, {sB}, 28")
        a(f"s_add_u32 {sA}, {sA}, {sB}")
        a(f"s_lshl_b32 {sA}, {sA}, 10")
        a(f"s_add_u32 s89, {sA}, {WS_W2F}")
        a(f"s_cmp_eq_u32 {sW}, 7")
        a("s_cbranch_scc1 L_p4_w7")
        a(f"v_add_u32 v80, {LDS_HF}, v2")
        a.lg = []
        def hread(k):
            sl = k % 4
            a.ds(f"ds_read_b128 {vr(BR+8*sl,4)}, v80 offset:{k*2048}", f"h{k}")
            a.ds(f"ds_read_b128 {vr(BR+8*sl+4,4)}, v80 offset:{k*2048+1024}", f"h{k}")
        a("s_waitcnt vmcnt(4)")
        a("s_barrier")
        for k in range(3): hread(k)
        for k in range(32):
            if k == 13:
                a("s_waitcnt vmcnt(13)")
                a("s_barrier")
            if k + 3 < 32: hread(k + 3)
            a.wait_lg(f"h{k}")
            sl = k % 4
            for tt in range(2):
                srcC = "0" if k == 0 else vr(ACC + 16 * tt, 16)
                a(f"v_mfma_f32_32x32x16_bf16 {vr(ACC+16*tt,16)}, {vr(W1+4*k,4)}, {vr(BR+8*sl+4*tt,4)}, {srcC}")
            if k < 28:
                a(f"s_add_u32 {sA}, s89, {k*1024}")
                a(f"buffer_load_dwordx4 {vr(W1+4*k,4)}, v2, {srd(SRD_WS)}, {sA} offen sc1")
        a("s_barrier")
        a.lg = []
        a("v_and_b32 v80, 31, v1")
        a("v_lshlrev_b32 v80, 3, v80")
        a(f"v_add_u32 v80, {LDS_ST2}, v80")
        a("ds_read_b64 v[82:83], v80")
        a("ds_read_b64 v[84:85], v80 offset:256")
        a("v_lshrrev_b32 v81, 5, v1")
        a("v_lshlrev_b32 v81, 4, v81")
        a(f"s_lshl_b32 {sA}, {sW}, 7")
        a(f"s_add_u32 {sA}, {sA}, {LDS_CS1}")
        a(f"v_add_u32 v81, {sA}, v81")
        CS = 48
        for q in range(4):
            a(f"ds_read_b128 {vr(CS+4*q,4)}, v81 offset:{32*q}")
        BF = 64
        for i in range(8):
            a(f"v_lshlrev_b32 v{BF+2*i}, 16, v{B1+i}")
            a(f"v_and_b32 v{BF+2*i+1}, 0xffff0000, v{B1+i}")
        a("s_waitcnt lgkmcnt(0)")
        self.stamp("ffn1")
        for tt in range(2):
            mu, rs = 82 + 2 * tt, 83 + 2 * tt
            A = ACC + 16 * tt
            for r in range(16): a(f"v_fma_f32 v{A+r}, -v{mu}, v{CS+r}, v{A+r}")
            for r in range(16): a(f"v_fma_f32 v{A+r}, v{A+r}, v{rs}, v{BF+r}")
            for r in range(16): a(f"v_max_f32 v{A+r}, 0, v{A+r}")
            for r in range(16): a(f"v_mul_f32 v{A+r}, v{A+r}, v{A+r}")
            for i in range(8): a(f"v_cvt_pk_bf16_f32 v{88+8*tt+i}, v{A+2*i}, v{A+2*i+1}")
        a(f"s_mul_i32 {sA}, {sM}, 7")
        a(f"s_add_u32 {sA}, {sA}, {sW}")
        a(f"s_lshl_b32 {sB}, {sA}, 12")
        a(f"s_mul_i32 {sD}, {sC}, {224*1024}")
        a(f"s_add_u32 {sB}, {sB}, {sD}")
        a(f"s_add_u32 {sB}, {sB}, {WS_HID}")
        a(f"s_lshl_b32 {sD}, {sA}, 2")
        a(f"s_lshl_b32 {sE_}, {sC}, 8")
        a(f"s_add_u32 {sD}, {sD}, {sE_}")
        a(f"s_add_u32 {sD}, {sD}, {WS_FLHID}")
        st = []
        for u in range(2):
            for tt in range(2):
                st.append(("dwordx4", vr(88 + 8 * tt + 4 * u, 4), "v2", sB, u * 2048 + tt * 1024))
        self.publish("hid", st, sD)
        a("s_branch L_p4_done")
        a.label("L_p4_w7")
        a("s_waitcnt vmcnt(4)")
        a("s_barrier")
        a("v_lshrrev_b32 v80, 5, v1")
        a("v_lshlrev_b32 v80, 13, v80")
        a("v_and_b32 v81, 31, v1")
        a("v_lshl_or_b32 v80, v81, 3, v80")
        a(f"s_lshl_b32 {sA}, {sC}, 14")
        a(f"s_add_u32 {sA}, {sA}, {WS_ST}")
        for k in range(32):
            a(f"buffer_load_dwordx2 {vr(16+2*k,2)}, v80, {srd(SRD_WS)}, {sA} offen offset:{(k%16)*256} sc1")
            if k == 15: a(f"s_add_u32 {sA}, {sA}, 4096")
        a("s_waitcnt vmcnt(32)")
        a("s_barrier")
        for k in range(28):
            a(f"s_add_u32 {sA}, s89, {k*1024}")
            a(f"buffer_load_dwordx4 {vr(W1+4*k,4)}, v2, {srd(SRD_WS)}, {sA} offen sc1")
        a("s_waitcnt vmcnt(28)")
        for k in range(1, 32):
            a(f"v_add_f32 v16, v16, v{16+2*k}")
            a(f"v_add_f32 v17, v17, v{17+2*k}")
        a(f"v_mul_f32 v16, 0x{f32bits(1/512):x}, v16")
        a(f"v_mul_f32 v17, 0x{f32bits(1/512):x}, v17")
        a("v_fma_f32 v17, -v16, v16, v17")
        a("v_max_f32 v17, 0, v17")
        a(f"v_add_f32 v17, 0x{f32bits(1e-5):x}, v17")
        a("v_rsq_f32 v17, v17")
        a("v_lshlrev_b32 v80, 3, v1")
        a(f"v_add_u32 v80, {LDS_ST2}, v80")
        a("ds_write_b64 v80, v[16:17]")
        a("s_waitcnt lgkmcnt(0)")
        a("s_barrier")
        a.label("L_p4_done")

    def p5(self):
        a = self.a
        HB, B2R, ACC, BR, W2 = 4, 8, 16, 48, 128
        sKQ = "s88"
        a(f"s_and_b32 {sKQ}, {sW}, 3")
        a(f"s_lshl_b32 {sA}, {sM}, 7")
        a(f"s_lshl_b32 {sB}, {sFT}, 6")
        a(f"s_add_u32 {sA}, {sA}, {sB}")
        a(f"s_lshl_b32 {sB}, {sKH}, 5")
        a(f"s_add_u32 s89, {sA}, {sB}")
        a("v_lshrrev_b32 v3, 5, v1")
        a("v_lshlrev_b32 v3, 3, v3")
        a(f"buffer_load_dwordx2 {vr(B2R,2)}, v3, {srd(SRD_B2)}, s89 offen")
        a(f"buffer_load_dwordx2 {vr(B2R+2,2)}, v3, {srd(SRD_B2)}, s89 offen offset:16")
        a(f"s_mul_i32 {sA}, {sKQ}, 56")
        a(f"s_lshl_b32 {sB}, {sC}, 8")
        a(f"s_add_u32 {sA}, {sA}, {sB}")
        a(f"s_add_u32 {sA}, {sA}, {WS_FLHID}")
        a("v_min_u32 v3, 13, v1")
        a("v_lshlrev_b32 v3, 2, v3")
        self.poll_begin("hid")
        a(f"buffer_load_dword v80, v3, {srd(SRD_WS)}, {sA} offen sc1")
        a("s_waitcnt vmcnt(0)")
        a("v_cmp_ne_u32 vcc, s3, v80")
        self.poll_end("hid", sleep=1)
        self.stamp("hidok")
        a(f"s_mul_i32 {sA}, {sKQ}, {28*2048}")
        a(f"s_lshl_b32 {sB}, {sFT}, 10")
        a(f"s_add_u32 {sA}, {sA}, {sB}")
        a(f"s_mul_i32 {sD}, {sC}, {224*1024}")
        a(f"s_add_u32 {sA}, {sA}, {sD}")
        a(f"s_add_u32 {sA}, {sA}, {WS_HID}")
        a(f"s_lshl_b32 {sE_}, {sKQ}, 13")
        a(f"s_add_u32 {sB}, {sB}, {sE_}")
        def stage_dma(j):
            for i in range(4):
                a(f"s_add_u32 {sD}, {sB}, {(j%4)*32768 + i*2048}")
                a(f"s_add_u32 {sE_}, {sA}, {(4*j+i)*2048}")
                a(f"s_mov_b32 m0, {sD}")
                a(f"buffer_load_dwordx4 v2, {srd(SRD_WS)}, {sE_} offen sc1 lds")
        for j in range(4): stage_dma(j)
        a(f"s_lshl_b32 {sF}, {sKQ}, 13")
        a(f"v_add_u32 v80, {sF}, v2")
        a("v_add_u32 v81, 65536, v80")
        issued = 16
        a.lg = []
        for j in range(7):
            done_needed = 4 * (j + 1)
            a(f"s_waitcnt vmcnt({issued - done_needed})")
            a("s_barrier")
            if j >= 1 and j + 3 < 7:
                stage_dma(j + 3); issued += 4
            base = "v80" if (j % 4) < 2 else "v81"
            so = (j % 2) * 32768
            for i in range(4):
                for tt in range(2):
                    a.ds(f"ds_read_b128 {vr(BR+8*i+4*tt,4)}, {base} offset:{so + i*2048 + tt*1024}", f"r{j}{i}")
            for i in range(4):
                a.wait_lg(f"r{j}{i}")
                k = 4 * j + i
                for tt in range(2):
                    srcC = "0" if k == 0 else vr(ACC + 16 * tt, 16)
                    a(f"v_mfma_f32_32x32x16_bf16 {vr(ACC+16*tt,16)}, {vr(W2+4*k,4)}, {vr(BR+8*i+4*tt,4)}, {srcC}")
        self.stamp("ffn2")
        a("s_barrier")
        for p in range(4):
            tt, half = p >> 1, p & 1
            A = ACC + 16 * tt + 8 * half
            a(f"s_cmp_eq_u32 {sKQ}, {p}")
            a(f"s_cbranch_scc1 L_rs_skip{p}")
            a(f"s_sub_u32 {sA}, {sKQ}, {p+1}")
            a(f"s_and_b32 {sA}, {sA}, 3")
            a(f"s_lshl_b32 {sB}, {sFT}, 2")
            a(f"s_add_u32 {sB}, {sB}, {p}")
            a(f"s_mul_i32 {sB}, {sB}, 3")
            a(f"s_add_u32 {sA}, {sA}, {sB}")
            a(f"s_lshl_b32 {sA}, {sA}, 11")
            a(f"v_add_u32 v3, {sA}, v2")
            a(f"ds_write_b128 v3, {vr(A,4)}")
            a(f"ds_write_b128 v3, {vr(A+4,4)} offset:1024")
            a(f"s_branch L_rs_next{p}")
            a.label(f"L_rs_skip{p}")
            for i in range(8): a(f"v_mov_b32 v{80+i}, v{A+i}")
            a.label(f"L_rs_next{p}")
        a("s_waitcnt lgkmcnt(0)")
        a("s_barrier")
        a(f"s_mul_i32 {sA}, {sW}, {3*2048}")
        a(f"v_add_u32 v3, {sA}, v2")
        for q in range(3):
            a(f"ds_read_b128 {vr(48+8*q,4)}, v3 offset:{q*2048}")
            a(f"ds_read_b128 {vr(52+8*q,4)}, v3 offset:{q*2048+1024}")
        for i in range(4):
            a(f"v_lshlrev_b32 v{16+2*i}, 16, v{HB+i}")
            a(f"v_and_b32 v{17+2*i}, 0xffff0000, v{HB+i}")
            a(f"v_lshlrev_b32 v{24+2*i}, 16, v{B2R+i}")
            a(f"v_and_b32 v{25+2*i}, 0xffff0000, v{B2R+i}")
        a("s_waitcnt lgkmcnt(0)")
        for i in range(8):
            a(f"v_add_f32 v{80+i}, v{80+i}, v{48+i}")
            a(f"v_add_f32 v{56+i}, v{56+i}, v{64+i}")
        for i in range(8):
            a(f"v_add_f32 v{80+i}, v{80+i}, v{56+i}")
            a(f"v_add_f32 v{16+i}, v{16+i}, v{24+i}")
        for i in range(8):
            a(f"v_add_f32 v{80+i}, v{80+i}, v{16+i}")
        for i in range(4):
            a(f"v_cvt_pk_bf16_f32 v{88+i}, v{80+2*i}, v{81+2*i}")
        a("v_permlane32_swap_b32 v88, v90")
        a("v_permlane32_swap_b32 v89, v91")
        a("v_and_b32 v3, 31, v1")
        a("v_lshlrev_b32 v3, 10, v3")
        a("v_lshrrev_b32 v12, 5, v1")
        a("v_lshl_or_b32 v3, v12, 4, v3")
        a(f"s_lshl_b32 {sA}, {sTT}, 5")
        a(f"s_add_u32 {sA}, {sA}, {sT0}")
        a(f"s_lshl_b32 {sA}, {sA}, 10")
        a(f"s_add_u32 {sA}, {sA}, s89")
        a(f"buffer_store_dwordx4 v[88:91], v3, {srd(SRD_OUT)}, {sA} offen")
        self.stamp("end")

    def kv_flag(self):
        a = self.a
        a(f"s_cmp_ge_u32 {sW}, 2")
        a("s_cbranch_scc1 L_noflag")
        a(f"s_add_u32 {sD}, {sTag}, 1")
        a(f"s_lshl_b32 {sA}, {sG}, 4")
        a(f"s_add_u32 {sA}, {sA}, {WS_FLKV}")
        a(f"v_mov_b32 v8, {sD}")
        a("v_mov_b32 v9, s3")
        a("v_mov_b32 v10, 0")
        a("s_mov_b64 exec, 1")
        a(f"s_cmp_eq_u32 {sW}, 1")
        a("s_cbranch_scc1 L_flagv")
        a(f"buffer_store_dwordx2 v[8:9], v10, {srd(SRD_WS)}, {sA} offen sc1")
        a("s_branch L_flagd")
        a.label("L_flagv")
        a(f"buffer_store_dword v8, v10, {srd(SRD_WS)}, {sA} offen offset:8 sc1")
        a.label("L_flagd")
        a("s_mov_b64 exec, -1")
        a.label("L_noflag")

    def wave_reduce(self, regs, op, tmps):
        a = self.a
        for n in (8, 4, 2, 1):
            for r in regs:
                a(f"v_{op}_f32_dpp {r}, {r}, {r} row_ror:{n} row_mask:0xf bank_mask:0xf")
        for sw in ("16", "32"):
            for r, t in zip(regs, tmps):
                a(f"v_mov_b32 {t}, {r}")
            for r, t in zip(regs, tmps):
                a(f"v_permlane{sw}_swap_b32 {r}, {t}")
            for r, t in zip(regs, tmps):
                a(f"v_{op}_f32 {r}, {r}, {t}")

    def finish(self):
        a = self.a
        a.label("L_end")
        a("s_endpgm")

    def dump_regs(self, base, regs, off):
        a = self.a
        n = len(regs)
        a(f"s_lshl_b32 {sA}, {sID}, 3")
        a(f"s_add_u32 {sA}, {sA}, {sW}")
        a(f"s_mul_i32 {sA}, {sA}, {n*256}")
        a(f"s_add_u32 {sA}, {sA}, {off}")
        a("v_lshlrev_b32 v3, 2, v1")
        for i, r in enumerate(regs):
            a(f"buffer_store_dword v{r}, v3, {srd(SRD_WS)}, {sA} offen offset:{i*256}")
        a("s_waitcnt vmcnt(0)")

    def build(self):
        self.prologue()
        self.p1()
        if self.stop == "p1":
            self.dump_regs(0, list(range(32, 48)), WS_DBG)
            self.a("s_waitcnt vmcnt(0)")
            self.finish(); return self.text()
        self.p2()
        if self.stop in ("q", "attn"):
            self.a("s_waitcnt vmcnt(0)")
            self.dump_stamps()
            self.finish(); return self.text()
        for nm, fn in (("h", self.p3), ("hid", self.p4), ("out", self.p5)):
            fn()
            if self.stop == nm: break
        self.a("s_waitcnt vmcnt(0)")
        self.dump_stamps()
        self.finish()
        return self.text()

    def text(self):
        lines, n = hazard_pass_all(self.a.lines)
        head = f"""; @launch grid=(256,1,1) block=(512,1,1) lds=163840
.amdgcn_target "amdgcn-amd-amdhsa--gfx950"
.text
.globl {KNAME}
.p2align 8
.type {KNAME},@function
{KNAME}:
"""
        tail = f""".section .rodata,"a"
.p2align 6
.amdhsa_kernel {KNAME}
  .amdhsa_next_free_vgpr 256
  .amdhsa_next_free_sgpr 102
  .amdhsa_accum_offset 256
  .amdhsa_group_segment_fixed_size 0
  .amdhsa_kernarg_size 104
  .amdhsa_user_sgpr_count 2
  .amdhsa_user_sgpr_kernarg_segment_ptr 1
  .amdhsa_system_sgpr_workgroup_id_x 1
.end_amdhsa_kernel
"""
        return head + "\n".join(lines) + "\n" + tail

if __name__ == "__main__":
    import argparse
    ap = argparse.ArgumentParser()
    ap.add_argument("--stop", default=None)
    ap.add_argument("-o", default="k.s")
    ap.add_argument("--prof", action="store_true")
    ap.add_argument("--opt", nargs="*", default=[])
    args = ap.parse_args()
    opt = dict((kv.split("=")[0], int(kv.split("=")[1])) for kv in args.opt)
    g = Gen(stop=args.stop, prof=args.prof, opt=opt)
    open(args.o, "w").write(g.build())
    print("wrote", args.o)
```

```python
import sys
sys.path.insert(0, "work")
from asmlib import Asm, hazard_pass_all

NAME = "sequential_preLN__grouped_kv_mqa__dense_activation_squared_relu__prompt"
KNAME = NAME + "_kernel"

WS_EPOCH = 0x0
WS_FLKV  = 0x1000
WS_FLWT  = 0x3000
WS_FLO   = 0x4000
WS_FLH   = 0x6000
WS_FLHID = 0x8000
WS_KV    = 0x10000
WS_ST    = 0x60000
WS_O     = 0x100000
WS_H     = 0x300000
WS_HID   = 0x500000
WS_WOF   = 0xC00000
WS_W1F   = 0xC80000
WS_W2F   = 0xE40000
WS_DBG   = 0x1000000
WS_PROF  = 0x1800000
WS_SIZE  = 0x2000000

SRD_X, SRD_WQ, SRD_WK, SRD_WV = 8, 12, 16, 20
SRD_WO, SRD_W1, SRD_W2, SRD_B1 = 24, 28, 32, 36
SRD_B2, SRD_OUT, SRD_WS, SRD_T = 40, 44, 48, 52
def srd(b): return f"s[{b}:{b+3}]"
sW, sM, sC, sT0, sTag, sFast = "s56", "s57", "s58", "s59", "s60", "s61"
sFT, sTT, sKH, sXCC = "s62", "s63", "s90", "s91"
sID = "s2"
sA, sB, sD, sE_, sF, sG = "s92", "s93", "s94", "s95", "s96", "s97"
sCnt, sPh = "s98", "s99"
sX64 = "s[4:5]"; sY64 = "s[6:7]"

LOG2E = 1.4426950408889634
def f32bits(x):
    import struct
    return struct.unpack("<I", struct.pack("<f", x))[0]
def vr(b, n): return f"v[{b}:{b+n-1}]"

class Gen:
    def __init__(self, stop=None, prof=False, opt=None):
        self.a = Asm()
        self.stop = stop
        self.prof = prof
        self.opt = opt or {}
        self.nstamp = 0

    def stamp(self, name):
        if not self.prof: return
        i = self.nstamp; self.nstamp += 1
        assert i < 16
        self.stamp_names = getattr(self, "stamp_names", []) + [name]
        a = self.a
        a(f"s_memtime s[4:5]")
        a("s_waitcnt lgkmcnt(0)")
        a("s_sub_u32 s4, s4, s100")
        a(f"v_writelane_b32 v0, s4, {i}")

    def dump_stamps(self):
        if not self.prof: return
        a = self.a
        a("s_memrealtime s[4:5]")
        a("s_waitcnt lgkmcnt(0)")
        a("s_sub_u32 s4, s4, s101")
        a("v_writelane_b32 v0, s4, 15")
        a(f"s_lshl_b32 {sA}, {sID}, 3")
        a(f"s_add_u32 {sA}, {sA}, {sW}")
        a(f"s_lshl_b32 {sA}, {sA}, 6")
        a(f"s_add_u32 {sA}, {sA}, {WS_PROF}")
        a("v_lshlrev_b32 v3, 2, v1")
        a("s_mov_b64 exec, 0xffff")
        a(f"buffer_store_dword v0, v3, {srd(SRD_WS)}, {sA} offen")
        a(f"s_lshl_b32 {sA}, {sID}, 3")
        a(f"s_add_u32 {sA}, {sA}, {sW}")
        a(f"s_cmp_lg_u32 {sA}, {self.opt.get('profw', 0)}")
        a("s_cbranch_scc1 L_nodbgst")
        a("s_load_dwordx2 s[52:53], s[0:1], 88")
        a("s_waitcnt lgkmcnt(0)")
        a("s_mov_b32 s54, 256")
        a("s_mov_b32 s55, 0x20000")
        a("buffer_store_dword v0, v3, s[52:55], 0 offen")
        a.label("L_nodbgst")
        a("s_mov_b64 exec, -1")
        a("s_waitcnt vmcnt(0)")

    def prologue(self):
        a = self.a
        a(f"s_cmp_ge_u32 {sID}, 256")
        a("s_cbranch_scc1 L_end")
        if self.prof:
            a("s_memtime s[100:101]")
            a("s_memrealtime s[6:7]")
        a("s_load_dwordx16 s[64:79], s[0:1], 0")
        a("s_load_dwordx8 s[80:87], s[0:1], 64")
        a("s_load_dwordx2 s[88:89], s[0:1], 96")
        a(f"s_and_b32 {sA}, {sID}, 7")
        a(f"s_lshr_b32 {sB}, {sID}, 6")
        a(f"s_lshl_b32 {sB}, {sB}, 3")
        a(f"s_add_u32 {sC}, {sA}, {sB}")
        a(f"s_lshr_b32 {sM}, {sID}, 3")
        a(f"s_and_b32 {sM}, {sM}, 7")
        a(f"s_lshl_b32 {sT0}, {sC}, 6")
        a(f"s_getreg_b32 {sXCC}, hwreg(HW_REG_XCC_ID)")
        a(f"s_and_b32 {sXCC}, {sXCC}, 7")
        a("v_lshrrev_b32 v3, 6, v0")
        a("v_and_b32 v1, 63, v0")
        a(f"v_readfirstlane_b32 {sW}, v3")
        a("v_lshlrev_b32 v2, 4, v1")
        a(f"s_lshr_b32 {sFT}, {sW}, 2")
        a(f"s_lshr_b32 {sTT}, {sW}, 1")
        a(f"s_and_b32 {sTT}, {sTT}, 1")
        a(f"s_and_b32 {sKH}, {sW}, 1")
        a("s_waitcnt lgkmcnt(0)")
        if self.prof:
            a("v_mov_b32 v0, 0")
            a("s_mov_b32 s101, s6")
        self.stamp("args")
        def mk(b, lo, size):
            a(f"s_mov_b32 s{b}, s{lo}")
            a(f"s_mov_b32 s{b+1}, s{lo+1}")
            a(f"s_mov_b32 s{b+2}, 0x{size:x}")
            a(f"s_mov_b32 s{b+3}, 0x20000")
        mk(SRD_X, 64, 0x200000)
        mk(SRD_WS, 88, WS_SIZE)
        a(f"s_load_dword {sTag}, s[88:89], {WS_EPOCH}")
        mk(SRD_WK, 68, 0x4000)
        mk(SRD_WV, 70, 0x4000)
        mk(SRD_WQ, 66, 0x80000)
        self.mk = mk

    def rest_srds(self):
        mk = self.mk
        mk(SRD_WO, 72, 0x80000)
        mk(SRD_W1, 76, 0x1C0000)
        mk(SRD_B1, 78, 3584)
        mk(SRD_W2, 80, 0x1C0000)
        mk(SRD_B2, 82, 1024)
        mk(SRD_OUT, 84, 0x200000)

    def dma(self, voff, srdb, soff, m0, tag, extra=""):
        a = self.a
        a(f"s_mov_b32 m0, {m0}")
        a.vmem(f"buffer_load_dwordx4 {voff}, {srd(srdb)}, {soff} offen {extra} lds", tag)

    def p1(self):
        a = self.a
        ROW = 4
        vXa, vXb, vKVo, vWAo = "v16", "v17", "v18", "v19"
        LDS_SCR = 64 * 1024
        LDS_WA = 66 * 1024
        LDS_WK = 128 * 1024
        LDS_WV = 144 * 1024
        a(f"s_lshl_b32 {sA}, {sM}, 3")
        a(f"s_add_u32 {sA}, {sA}, {sT0}")
        a(f"s_add_u32 {sB}, {sA}, {sW}")
        a(f"s_lshl_b32 {sB}, {sB}, 10")
        a.vmem(f"buffer_load_dwordx4 {vr(ROW,4)}, v2, {srd(SRD_X)}, {sB} offen", "row")
        a("v_lshrrev_b32 v8, 3, v1")
        a("v_and_b32 v9, 7, v1")
        a("v_lshrrev_b32 v10, 1, v8")
        a("v_xor_b32 v10, v10, v9")
        a(f"s_and_b32 {sB}, {sM}, 1")
        a(f"s_lshl_b32 {sB}, {sB}, 2")
        a(f"v_xor_b32 v10, {sB}, v10")
        a("v_lshlrev_b32 v10, 4, v10")
        a(f"v_lshl_add_u32 {vXa}, v8, 10, v10")
        a(f"v_xor_b32 {vXb}, 64, {vXa}")
        def xa_dma(gs, voff, tag):
            a(f"s_lshl_b32 {sD}, {gs}, 3")
            a(f"s_add_u32 {sD}, {sD}, {sT0}")
            a(f"s_lshl_b32 {sD}, {sD}, 10")
            a(f"s_lshl_b32 {sE_}, {sW}, 7")
            a(f"s_add_u32 {sD}, {sD}, {sE_}")
            a(f"s_lshl_b32 {sE_}, {sW}, 13")
            a(f"s_lshl_b32 {sF}, {gs}, 10")
            a(f"s_add_u32 {sE_}, {sE_}, {sF}")
            self.dma(voff, SRD_X, sD, sE_, tag)
        xa_dma(sM, vXa, "kv0")
        a("v_lshrrev_b32 v8, 1, v1")
        a("v_and_b32 v9, 0x13, v8")
        a("v_bfe_u32 v10, v8, 2, 1")
        a("v_lshl_or_b32 v9, v10, 3, v9")
        a("v_bfe_u32 v10, v8, 3, 1")
        a("v_lshl_or_b32 v9, v10, 2, v9")
        a("v_lshlrev_b32 v9, 5, v9")
        a("v_and_b32 v10, 1, v1")
        a(f"v_lshl_or_b32 {vKVo}, v10, 4, v9")
        a(f"s_lshl_b32 {sD}, {sW}, 11")
        a(f"s_add_u32 {sE_}, {sD}, {LDS_WK}")
        self.dma(vKVo, SRD_WK, sD, sE_, "kv0")
        a(f"s_add_u32 {sE_}, {sD}, {LDS_WV}")
        self.dma(vKVo, SRD_WV, sD, sE_, "kv0")
        a(f"s_add_u32 {sD}, {sD}, 1024")
        a(f"s_add_u32 {sE_}, {sD}, {LDS_WK}")
        self.dma(vKVo, SRD_WK, sD, sE_, "kv0")
        a(f"s_add_u32 {sE_}, {sD}, {LDS_WV}")
        self.dma(vKVo, SRD_WV, sD, sE_, "kv0")
        for i in range(1, 8):
            a(f"s_add_u32 {sB}, {sM}, {i}")
            a(f"s_and_b32 {sB}, {sB}, 7")
            xa_dma(sB, vXa if i % 2 == 0 else vXb, "xa")
        a("v_lshrrev_b32 v8, 3, v1")
        a("v_and_b32 v9, 7, v1")
        a("v_bfe_u32 v10, v1, 4, 1")
        a("v_lshlrev_b32 v10, 2, v10")
        a("v_xor_b32 v9, v9, v10")
        a("v_lshlrev_b32 v9, 4, v9")
        a(f"v_lshl_add_u32 {vWAo}, v8, 10, v9")
        a(f"s_lshl_b32 {sD}, {sW}, 13")
        a(f"s_lshl_b32 {sE_}, {sM}, 7")
        a(f"s_add_u32 {sD}, {sD}, {sE_}")
        a(f"s_lshl_b32 {sE_}, {sW}, 10")
        a(f"s_add_u32 {sE_}, {sE_}, {LDS_WA}")
        for c in range(7):
            self.dma(vWAo, SRD_WQ, sD, sE_, "wa")
            a(f"s_add_u32 {sD}, {sD}, {64*1024}")
            a(f"s_add_u32 {sE_}, {sE_}, 8192")
        a(f"s_cmp_ge_u32 {sW}, 6")
        a("s_cbranch_scc1 L_skip_c7")
        a(f"s_mov_b32 m0, {sE_}")
        a(f"buffer_load_dwordx4 {vWAo}, {srd(SRD_WQ)}, {sD} offen lds")
        a.label("L_skip_c7")
        self.rest_srds()
        XF, WF = 64, 128
        a(f"s_cmp_ge_u32 {sW}, 2")
        a("s_cbranch_scc1 L_no_ones")
        for i in range(64):
            a(f"v_mov_b32 v{XF+i}, 0x3f803f80" if i == 0 else f"v_mov_b32 v{XF+i}, v{XF}")
        a.label("L_no_ones")
        a("s_waitcnt vmcnt(19)")
        a("s_mov_b32 s3, 0x3f803f80")
        a(f"v_dot2_f32_bf16 v8, v{ROW}, s3, 0")
        a(f"v_dot2_f32_bf16 v9, v{ROW}, v{ROW}, 0")
        for i in range(1, 4):
            a(f"v_dot2_f32_bf16 v8, v{ROW+i}, s3, v8")
            a(f"v_dot2_f32_bf16 v9, v{ROW+i}, v{ROW+i}, v9")
        self.wave_reduce(["v8", "v9"], "add", ["v10", "v11"])
        a(f"v_mul_f32 v8, 0x{f32bits(1/512):x}, v8")
        a(f"v_mul_f32 v9, 0x{f32bits(1/512):x}, v9")
        a("v_fma_f32 v9, -v8, v8, v9")
        a("v_max_f32 v9, 0, v9")
        a(f"v_add_f32 v9, 0x{f32bits(1e-5):x}, v9")
        a("v_rsq_f32 v9, v9")
        a(f"s_lshl_b32 {sA}, {sW}, 3")
        a(f"s_add_u32 {sA}, {sA}, {LDS_SCR}")
        a(f"v_mov_b32 v10, {sA}")
        a("s_mov_b64 exec, 1")
        a("ds_write_b64 v10, v[8:9]")
        a("s_mov_b64 exec, -1")
        a("s_waitcnt vmcnt(14) lgkmcnt(0)")
        a("s_barrier")
        self.stamp("b1")
        a(f"s_cmp_ge_u32 {sW}, 2")
        a("s_cbranch_scc1 L_kv_done")
        a("v_and_b32 v8, 7, v1")
        a(f"s_lshl_b32 {sA}, {sM}, 3")
        a(f"v_add_u32 v8, {sA}, v8")
        a("v_bfe_u32 v9, v8, 1, 3")
        a("v_lshrrev_b32 v10, 4, v1")
        a("v_xor_b32 v9, v9, v10")
        a("v_lshlrev_b32 v9, 4, v9")
        a("v_lshl_add_u32 v20, v8, 7, v9")
        a("v_xor_b32 v21, 64, v20")
        a("v_bfe_u32 v8, v1, 4, 1")
        a("v_bfe_u32 v9, v1, 2, 2")
        a("v_lshl_add_u32 v8, v8, 2, v9")
        a("v_lshlrev_b32 v8, 5, v8")
        a("v_lshrrev_b32 v9, 5, v1")
        a("v_lshl_add_u32 v8, v9, 9, v8")
        a("v_and_b32 v9, 3, v1")
        a("v_lshl_add_u32 v8, v9, 3, v8")
        a(f"s_lshl_b32 {sA}, {sW}, 14")
        a(f"s_add_u32 {sA}, {sA}, {LDS_WK}")
        a(f"v_add_u32 v22, {sA}, v8")
        a("s_mov_b32 exec_lo, 0x00ff00ff")
        a("s_mov_b32 exec_hi, 0x00ff00ff")
        for s in range(16):
            a.ds(f"ds_read_b128 {vr(XF+4*s,4)}, {'v20' if s%2==0 else 'v21'} offset:{(s>>1)*8192}", f"x{s}")
        a("s_mov_b64 exec, -1")
        D = 24
        a(f"s_cmp_eq_u32 {sW}, 1")
        a("s_cbranch_scc1 L_vwave")
        saved_lg = list(a.lg)
        for wave in ("K", "V"):
            a.lg = list(saved_lg)
            if wave == "V": a.label("L_vwave")
            def wread(s):
                a.ds(f"ds_read_b64_tr_b16 {vr(WF+4*s,2)}, v22 offset:{s*1024}", f"w{s}")
                a.ds(f"ds_read_b64_tr_b16 {vr(WF+4*s+2,2)}, v22 offset:{s*1024+256}", f"w{s}")
            for s in range(4): wread(s)
            for s in range(16):
                a.wait_lg(f"w{s}")
                srcC = "0" if s == 0 else vr(D, 4)
                if wave == "K":
                    a(f"v_mfma_f32_16x16x32_bf16 {vr(D,4)}, {vr(WF+4*s,4)}, {vr(XF+4*s,4)}, {srcC}")
                else:
                    a(f"v_mfma_f32_16x16x32_bf16 {vr(D,4)}, {vr(XF+4*s,4)}, {vr(WF+4*s,4)}, {srcC}")
                if s + 4 < 16: wread(s + 4)
            a(f"s_lshl_b32 {sA}, {sC}, 3")
            a(f"s_add_u32 {sA}, {sA}, {sM}")
            a(f"s_lshl_b32 {sB}, {sA}, 10")
            a(f"s_add_u32 {sB}, {sB}, {WS_KV}")
            if wave == "K":
                a("v_and_b32 v8, 7, v1")
                a("v_lshlrev_b32 v8, 3, v8")
                a(f"v_add_u32 v8, {LDS_SCR}, v8")
                a.ds("ds_read_b64 v[10:11], v8", "st")
                for r in range(4):
                    a(f"v_mov_b32_dpp v{28+r}, v{D+r} row_ror:8 row_mask:0xf bank_mask:0xf")
                a.wait_lg("st")
                for r in range(4):
                    a(f"v_fma_f32 v{D+r}, -v10, v{28+r}, v{D+r}")
                for r in range(4):
                    a(f"v_mul_f32 v{D+r}, v11, v{D+r}")
                a(f"v_cvt_pk_bf16_f32 v32, v{D}, v{D+1}")
                a(f"v_cvt_pk_bf16_f32 v33, v{D+2}, v{D+3}")
                a("v_mov_b32 v34, v32")
                a("v_mov_b32 v35, v33")
                a("v_permlane32_swap_b32 v32, v34")
                a("v_permlane32_swap_b32 v33, v35")
                a("v_bfe_u32 v8, v1, 4, 1")
                a("v_and_b32 v9, 7, v1")
                a("v_lshlrev_b32 v9, 4, v9")
                a("v_lshl_add_u32 v8, v8, 7, v9")
                a("s_mov_b32 exec_lo, 0x00ff00ff")
                a("s_mov_b32 exec_hi, 0")
                a(f"buffer_store_dwordx4 v[32:35], v8, {srd(SRD_WS)}, {sB} offen sc1")
                a("s_mov_b64 exec, -1")
                a("v_dot2_f32_bf16 v12, v32, v32, 0")
                for i in (33, 34, 35):
                    a(f"v_dot2_f32_bf16 v12, v{i}, v{i}, v12")
                a("v_mov_b32 v13, v12")
                a("v_permlane16_swap_b32 v12, v13")
                a("v_add_f32 v12, v12, v13")
                a("v_and_b32 v13, 8, v1")
                a("v_cmp_eq_u32 vcc, 0, v13")
                a("v_cndmask_b32 v12, 0, v12, vcc")
                for n in (8, 4, 2, 1):
                    a(f"v_max_f32_dpp v12, v12, v12 row_ror:{n} row_mask:0xf bank_mask:0xf")
                a(f"v_readlane_b32 {sD}, v12, 0")
                a(f"s_add_u32 {sD}, {sD}, 8")
                a(f"s_and_b32 {sD}, {sD}, 0xfffffff8")
                a(f"s_or_b32 {sD}, {sD}, {sXCC}")
                a(f"s_mov_b32 s3, {sD}")
                a(f"s_mov_b32 {sG}, {sA}")
                a("s_branch L_kv_done")
            else:
                a("v_bfe_u32 v8, v1, 4, 1")
                a("v_lshlrev_b32 v8, 5, v8")
                a(f"v_add_u32 v8, {LDS_SCR}, v8")
                a.ds("ds_read_b128 v[12:15], v8", "st")
                a.ds("ds_read_b128 v[36:39], v8 offset:16", "st")
                a("v_and_b32 v9, 7, v1")
                a("v_lshlrev_b32 v9, 3, v9")
                a(f"v_add_u32 v40, {LDS_SCR}, v9")
                a.ds("ds_read_b64 v[42:43], v40", "st")
                a(f"v_mov_b32 v28, v{D}")
                a(f"v_mov_b32 v29, v{D}")
                a("v_permlane32_swap_b32 v28, v29")
                a.wait_lg("st")
                st = [(12, 13), (14, 15), (36, 37), (38, 39)]
                for r in range(4):
                    a(f"v_fma_f32 v{D+r}, -v{st[r][0]}, v29, v{D+r}")
                for r in range(4):
                    a(f"v_mul_f32 v{D+r}, v{st[r][1]}, v{D+r}")
                a(f"v_cvt_pk_bf16_f32 v32, v{D}, v{D+1}")
                a(f"v_cvt_pk_bf16_f32 v33, v{D+2}, v{D+3}")
                a("v_mov_b32 v34, v32")
                a("v_mov_b32 v35, v33")
                a("v_permlane16_swap_b32 v32, v34")
                a("v_permlane16_swap_b32 v33, v35")
                a("v_add_u32 v8, 256, v2")
                a("s_mov_b64 exec, 0xffff")
                a(f"buffer_store_dwordx4 v[32:35], v8, {srd(SRD_WS)}, {sB} offen sc1")
                a("s_mov_b64 exec, 0xff")
                a("v_add_u32 v9, 512, v9")
                a(f"buffer_store_dwordx2 v[42:43], v9, {srd(SRD_WS)}, {sB} offen sc1")
                a("s_mov_b64 exec, -1")
                a(f"s_mov_b32 {sG}, {sA}")
        a.lg = []
        a.label("L_kv_done")
        a(f"s_cmp_ge_u32 {sW}, 2")
        a("s_cbranch_scc1 L_b2_w")
        a("s_waitcnt vmcnt(2) lgkmcnt(0)")
        a(f"s_cmp_eq_u32 {sW}, 1")
        a("s_cbranch_scc1 L_b2")
        a("s_waitcnt vmcnt(1)")
        a("s_branch L_b2")
        a.label("L_b2_w")
        a("s_waitcnt vmcnt(0)")
        a.label("L_b2")
        a("s_barrier")
        self.stamp("b2")
        a.vm = []
        a(f"s_cmp_eq_u32 {sKH}, 0")
        a("s_cbranch_scc1 L_nodelay")
        a(f"s_lshl_b32 {sE_}, {sM}, 7")
        a(f"s_add_u32 {sD}, {sE_}, {496*1024}")
        a(f"s_mov_b32 m0, {LDS_WA + 7*8192 + 6*1024}")
        a(f"buffer_load_dwordx4 {vWAo}, {srd(SRD_WQ)}, {sD} offen lds")
        a(f"s_add_u32 {sD}, {sE_}, {504*1024}")
        a(f"s_mov_b32 m0, {LDS_WA + 7*8192 + 7*1024}")
        a(f"buffer_load_dwordx4 {vWAo}, {srd(SRD_WQ)}, {sD} offen lds")
        a.label("L_nodelay")
        AF, BF, ACC, CS = 64, 128, 32, 48
        vAe, vAo = "v20", "v21"
        vB = ["v22", "v23", "v24", "v25"]
        a("v_bfe_u32 v8, v1, 2, 2")
        a("v_lshrrev_b32 v9, 5, v1")
        a("v_lshl_add_u32 v9, v9, 3, v8")
        a("v_lshlrev_b32 v9, 7, v9")
        a("v_bfe_u32 v10, v1, 4, 1")
        a(f"v_xor_b32 v10, {sKH}, v10")
        a("v_lshlrev_b32 v10, 5, v10")
        a("v_and_b32 v11, 3, v1")
        a("v_lshl_add_u32 v10, v11, 3, v10")
        a(f"s_lshl_b32 {sA}, {sFT}, 6")
        a(f"v_add_u32 v10, {sA}, v10")
        a("v_bfe_u32 v11, v1, 3, 1")
        a("v_lshlrev_b32 v11, 6, v11")
        a("v_xor_b32 v10, v10, v11")
        a("v_add_u32 v9, v9, v10")
        a(f"s_lshl_b32 {sA}, {sKH}, 15")
        a(f"s_add_u32 {sA}, {sA}, {LDS_WA}")
        a(f"s_lshl_b32 {sB}, {sTT}, 11")
        a(f"s_add_u32 {sD}, {sA}, {sB}")
        a(f"v_add_u32 {vAe}, {sD}, v9")
        a(f"s_sub_u32 {sD}, {sA}, {sB}")
        a(f"v_add_u32 {vAo}, {sD}, v9")
        a("v_and_b32 v8, 31, v1")
        a("v_bfe_u32 v9, v1, 1, 3")
        a("v_lshrrev_b32 v10, 5, v1")
        a("v_xor_b32 v9, v9, v10")
        a("v_lshlrev_b32 v9, 4, v9")
        a("v_lshl_add_u32 v8, v8, 7, v9")
        a(f"s_lshl_b32 {sA}, {sKH}, 15")
        a(f"s_lshl_b32 {sB}, {sTT}, 12")
        a(f"s_add_u32 {sA}, {sA}, {sB}")
        a(f"v_add_u32 v8, {sA}, v8")
        a(f"s_lshl_b32 {sB}, {sTT}, 5")
        a(f"v_xor_b32 {vB[0]}, {sB}, v8")
        a(f"v_xor_b32 {vB[1]}, 32, {vB[0]}")
        a(f"v_xor_b32 {vB[2]}, 64, {vB[0]}")
        a(f"v_xor_b32 {vB[3]}, 96, {vB[0]}")
        a("s_mov_b32 s5, 0x3f803f80")
        NB = 5
        def qread(p):
            c, q = p >> 2, p & 3
            sl = p % NB
            va = vAe if q % 2 == 0 else vAo
            off = c * 8192 + q * 2048
            a.ds(f"ds_read_b64_tr_b16 {vr(AF+4*sl,2)}, {va} offset:{off}", f"q{p}")
            a.ds(f"ds_read_b64_tr_b16 {vr(AF+4*sl+2,2)}, {va} offset:{off+512}", f"q{p}")
            a.ds(f"ds_read_b128 {vr(BF+4*sl,4)}, {vB[q]} offset:{c*8192}", f"q{p}")
        PRE = 4
        for p in range(PRE): qread(p)
        for p in range(16):
            sl = p % NB
            a.wait_lg(f"q{p}")
            srcC = "0" if p == 0 else vr(ACC, 16)
            a(f"v_mfma_f32_32x32x16_bf16 {vr(ACC,16)}, {vr(AF+4*sl,4)}, {vr(BF+4*sl,4)}, {srcC}")
            if p % 2 == 0:
                for i in range(4):
                    src2 = "0" if (p == 0 and i == 0) else f"v{CS}"
                    a(f"v_dot2_f32_bf16 v{CS}, v{AF+4*sl+i}, s5, {src2}")
            nx = p + PRE
            if nx == 14:
                a("s_waitcnt vmcnt(0)")
                self.kv_flag()
            if nx < 16: qread(nx)
        LDS_E = 132 * 1024
        LDS_CS = 148 * 1024
        a(f"s_lshl_b32 {sA}, {sW}, 11")
        a(f"s_add_u32 {sA}, {sA}, {LDS_E}")
        a(f"v_add_u32 v8, {sA}, v2")
        a(f"ds_write_b128 v8, {vr(ACC+8,4)}")
        a(f"ds_write_b128 v8, {vr(ACC+12,4)} offset:1024")
        a(f"v_mov_b32 v9, v{CS}")
        a(f"v_permlane32_swap_b32 v{CS}, v9")
        a(f"v_add_f32 v9, v{CS}, v9")
        a("v_and_b32 v10, 31, v1")
        a(f"s_lshl_b32 {sA}, {sKH}, 4")
        a(f"v_xor_b32 v10, {sA}, v10")
        a(f"s_lshl_b32 {sA}, {sKH}, 1")
        a(f"s_add_u32 {sA}, {sA}, {sTT}")
        a(f"s_lshl_b32 {sA}, {sA}, 1")
        a(f"s_add_u32 {sA}, {sA}, {sFT}")
        a(f"s_lshl_b32 {sA}, {sA}, 7")
        a(f"s_add_u32 {sA}, {sA}, {LDS_CS}")
        a("v_lshlrev_b32 v10, 2, v10")
        a(f"v_add_u32 v10, {sA}, v10")
        a("ds_write_b32 v10, v9")
        a("s_waitcnt lgkmcnt(0)")
        a("s_barrier")
        a.lg = []
        a(f"s_xor_b32 {sA}, {sW}, 1")
        a(f"s_lshl_b32 {sA}, {sA}, 11")
        a(f"s_add_u32 {sA}, {sA}, {LDS_E}")
        a(f"v_add_u32 v8, {sA}, v2")
        a.ds(f"ds_read_b128 {vr(64,4)}, v8", "e")
        a.ds(f"ds_read_b128 {vr(68,4)}, v8 offset:1024", "e")
        a("v_lshrrev_b32 v9, 5, v1")
        a("v_lshlrev_b32 v9, 4, v9")
        a(f"s_lshl_b32 {sA}, {sFT}, 7")
        a(f"s_lshl_b32 {sB}, {sKH}, 6")
        a(f"s_add_u32 {sA}, {sA}, {sB}")
        a(f"s_add_u32 {sA}, {sA}, {LDS_CS}")
        a(f"v_add_u32 v9, {sA}, v9")
        for q in range(4):
            a.ds(f"ds_read_b128 {vr(72+8*q,4)}, v9 offset:{q*256}", "cs")
            a.ds(f"ds_read_b128 {vr(76+8*q,4)}, v9 offset:{q*256+32}", "cs")
        a.wait_lg("e")
        for i in range(8):
            a(f"v_add_f32 v{ACC+i}, v{ACC+i}, v{64+i}")
        a.wait_lg("cs")
        for i in range(8):
            a(f"v_add_f32 v{72+i}, v{72+i}, v{80+i}")
            a(f"v_add_f32 v{88+i}, v{88+i}, v{96+i}")
        for i in range(8):
            a(f"v_add_f32 v{40+i}, v{72+i}, v{88+i}")


    def poll_begin(self, name, limit=200000):
        a = self.a
        a(f"s_mov_b32 {sCnt}, {limit}")
        a.label(f"L_poll_{name}")
    def poll_end(self, name, sleep=1):
        a = self.a
        a(f"s_cbranch_vccz L_pollok_{name}")
        a(f"s_sub_u32 {sCnt}, {sCnt}, 1")
        a(f"s_cmp_eq_u32 {sCnt}, 0")
        a(f"s_cbranch_scc1 L_pollok_{name}")
        if sleep: a(f"s_sleep {sleep}")
        a(f"s_branch L_poll_{name}")
        a.label(f"L_pollok_{name}")

    def p2(self):
        a = self.a
        LDS_E = 132 * 1024
        Q, NEGM, S0, S1, P, O, KF, VF = 4, 8, 24, 40, 56, 64, 80, 88
        vKa, vVa = "v104", "v105"
        W1 = 128
        sTG = "s3"
        a(f"s_add_u32 {sTG}, {sTag}, 1")
        self.stamp("b3")
        if self.opt.get("kvsleep", 0):
            a(f"s_sleep {self.opt['kvsleep']}")
        a("v_lshlrev_b32 v3, 6, v1")
        a(f"s_mov_b32 {sA}, {WS_FLKV}")
        self.poll_begin("kv")
        for q in range(4):
            a(f"buffer_load_dwordx4 {vr(64+4*q,4)}, v3, {srd(SRD_WS)}, {sA} offen offset:{16*q} sc1")
        a("s_waitcnt vmcnt(0)")
        a(f"v_xor_b32 v80, {sTG}, v64")
        a(f"v_xor_b32 v81, {sTG}, v66")
        a("v_or_b32 v80, v80, v81")
        for q in range(1, 4):
            a(f"v_xor_b32 v81, {sTG}, v{64+4*q}")
            a("v_or_b32 v80, v80, v81")
            a(f"v_xor_b32 v81, {sTG}, v{66+4*q}")
            a("v_or_b32 v80, v80, v81")
        a("v_cmp_ne_u32 vcc, 0, v80")
        self.poll_end("kv", sleep=2)
        self.stamp("kvok")
        a("v_bfe_u32 v8, v1, 3, 2")
        a("v_and_b32 v9, 7, v1")
        a("v_lshlrev_b32 v9, 3, v9")
        a("v_lshl_add_u32 v8, v8, 10, v9")
        a(f"s_lshl_b32 {sA}, {sC}, 3")
        a(f"s_lshl_b32 {sB}, {sTT}, 2")
        a(f"s_add_u32 {sA}, {sA}, {sB}")
        a(f"s_lshl_b32 {sA}, {sA}, 10")
        a(f"s_add_u32 {sA}, {sA}, {WS_KV + 512}")
        a(f"buffer_load_dwordx2 v[10:11], v8, {srd(SRD_WS)}, {sA} offen sc1")
        a("v_and_b32 v12, 31, v1")
        a("v_and_b32 v13, 0x13, v12")
        a("v_bfe_u32 v14, v12, 2, 1")
        a("v_lshl_or_b32 v13, v14, 3, v13")
        a("v_bfe_u32 v14, v12, 3, 1")
        a("v_lshl_or_b32 v13, v14, 2, v13")
        a("v_lshrrev_b32 v14, 3, v13")
        a("v_lshlrev_b32 v14, 10, v14")
        a("v_and_b32 v13, 7, v13")
        a("v_lshl_or_b32 v14, v13, 4, v14")
        a("v_lshrrev_b32 v13, 5, v1")
        a("v_lshl_or_b32 v14, v13, 7, v14")
        a("v_lshrrev_b32 v15, 4, v1")
        a("v_lshlrev_b32 v15, 10, v15")
        a("v_and_b32 v13, 15, v1")
        a("v_lshl_or_b32 v15, v13, 4, v15")
        a("v_add_u32 v15, 256, v15")
        a(f"s_lshr_b32 {sF}, {sID}, 3")
        a(f"s_lshl_b32 {sF}, {sF}, 1")
        a(f"s_add_u32 {sF}, {sF}, {sW}")
        a(f"s_lshl_b32 {sE_}, {sW}, 11")
        for i in range(8):
            a(f"s_and_b32 {sD}, {sF}, 63")
            a(f"s_lshl_b32 {sD}, {sD}, 12")
            a(f"s_add_u32 {sD}, {sD}, {WS_KV}")
            a(f"s_mov_b32 m0, {sE_}")
            a(f"buffer_load_dwordx4 v14, {srd(SRD_WS)}, {sD} offen sc1 lds")
            a(f"s_add_u32 {sB}, {sE_}, 1024")
            a(f"s_mov_b32 m0, {sB}")
            a(f"buffer_load_dwordx4 v15, {srd(SRD_WS)}, {sD} offen sc1 lds")
            if i < 7:
                a(f"s_add_u32 {sF}, {sF}, 8")
                a(f"s_add_u32 {sE_}, {sE_}, {8*2048}")
        self.wt_issue()
        a("v_and_b32 v80, -8, v65")
        for q in range(1, 4):
            a(f"v_and_b32 v81, -8, v{65+4*q}")
            a("v_max_f32 v80, v80, v81")
        a(f"v_xor_b32 v82, {sXCC}, v65")
        for q in range(1, 4):
            a(f"v_xor_b32 v81, {sXCC}, v{65+4*q}")
            a("v_or_b32 v82, v82, v81")
        a("v_and_b32 v82, 7, v82")
        a("v_cmp_ne_u32 vcc, 0, v82")
        a(f"s_lshl_b32 {sA}, {sC}, 1")
        a(f"s_lshr_b64 {sX64}, vcc, {sA}")
        a(f"s_and_b32 {sFast}, s4, 3")
        if self.opt.get("slow"): a(f"s_mov_b32 {sFast}, 1")
        self.wave_reduce(["v80"], "max", ["v81"])
        a("v_sqrt_f32 v80, v80")
        a(f"s_or_b32 {sA}, {sID}, {sW}")
        a(f"s_cmp_lg_u32 {sA}, 0")
        a("s_cbranch_scc1 L_noepoch")
        a(f"v_mov_b32 v81, {sTG}")
        a("v_mov_b32 v82, 0")
        a("s_mov_b64 exec, 1")
        a(f"buffer_store_dword v81, v82, {srd(SRD_WS)}, 0 offen")
        a("s_mov_b64 exec, -1")
        a.label("L_noepoch")
        a("s_waitcnt vmcnt(18)")
        a(f"v_mul_f32 v11, 0x{f32bits(0.25*LOG2E):x}, v11")
        for i in range(8):
            a(f"v_fma_f32 v{32+i}, -v10, v{40+i}, v{32+i}")
        for i in range(8):
            a(f"v_mul_f32 v{32+i}, v11, v{32+i}")
        for i in range(4):
            a(f"v_cvt_pk_bf16_f32 v{Q+i}, v{32+2*i}, v{33+2*i}")
        if self.stop == "q":
            self.dump_regs(0, [Q, Q+1, Q+2, Q+3], WS_DBG)
            return
        a(f"v_dot2_f32_bf16 v12, v{Q}, v{Q}, 0")
        for i in range(1, 4):
            a(f"v_dot2_f32_bf16 v12, v{Q+i}, v{Q+i}, v12")
        a("v_mov_b32 v13, v12")
        a("v_permlane32_swap_b32 v12, v13")
        a("v_add_f32 v12, v12, v13")
        a("v_sqrt_f32 v12, v12")
        a("v_mul_f32 v12, v12, v80")
        a(f"v_mul_f32 v12, 0x{f32bits(1.0078125):x}, v12")
        a(f"v_cmp_lt_f32 vcc, 0x{f32bits(48.0):x}, v12")
        a("v_cmp_u_f32 s[4:5], v12, v12")
        a("s_or_b64 vcc, vcc, s[4:5]")
        a("s_cmp_lg_u64 vcc, 0")
        a(f"s_cselect_b32 {sG}, 1, 0")
        if self.opt.get("forcefb"): a(f"s_mov_b32 {sG}, 1")
        if self.opt.get("fixm"): a("v_mov_b32 v12, 0x41a00000")
        if self.opt.get("dumpm"):
            self.dump_regs(0, [12, 80], WS_DBG)
        a(f"v_sub_f32 v{NEGM}, 0, v12")
        for i in range(1, 16):
            a(f"v_mov_b32 v{NEGM+i}, v{NEGM}")
        a(f"v_mov_b32 v{VF}, 0x3f803f80")
        for i in range(1, 16):
            a(f"v_mov_b32 v{VF+i}, v{VF}")
        for i in range(16):
            a(f"v_mov_b32 v{O+i}, 0")
        a(f"v_mov_b32 {vKa}, v2")
        a("v_and_b32 v106, 15, v1")
        a("v_lshlrev_b32 v106, 4, v106")
        a("v_lshrrev_b32 v107, 5, v1")
        a("v_lshl_or_b32 v106, v107, 8, v106")
        a(f"v_add_u32 {vVa}, 1024, v106")
        a("s_mov_b32 s6, 0x0000ffff")
        a("s_mov_b32 s7, 0x0000ffff")
        a("s_waitcnt vmcnt(0)" if self.opt.get("b4all") else "s_waitcnt vmcnt(14)")
        a("s_barrier")
        self.stamp("b4")

        def kread(buf, off): a(f"ds_read_b128 {vr(KF+4*buf,4)}, {vKa} offset:{off}")
        def vread(buf, off):
            a("s_mov_b64 exec, s[6:7]")
            a(f"ds_read_b128 {vr(VF+8*buf,4)}, {vVa} offset:{off}")
            a(f"ds_read_b128 {vr(VF+8*buf+4,4)}, {vVa} offset:{off+512}")
            a("s_mov_b64 exec, -1")
        def pipe_prologue():
            kread(0, 0)
            kread(1, 2048)
            vread(0, 0)
            a("s_waitcnt lgkmcnt(3)")
            a(f"v_mfma_f32_32x32x16_bf16 {vr(S0,16)}, {vr(KF,4)}, {vr(Q,4)}, {vr(NEGM,16)}")
            a("s_nop 11")
        a(f"s_mov_b32 {sPh}, 0")
        a(f"s_cmp_eq_u32 {sG}, 1")
        a("s_cbranch_scc1 L_sw0")
        pipe_prologue()
        a(f"s_mov_b32 {sCnt}, 3")
        a.label("L_body")
        for j in range(4):
            cur = S0 if j % 2 == 0 else S1
            nxt = S1 if j % 2 == 0 else S0
            kb = (j + 1) % 2
            vb = j % 2
            for i in range(4): a(f"v_exp_f32 v{cur+i}, v{cur+i}")
            a("s_waitcnt lgkmcnt(2)")
            a(f"v_mfma_f32_32x32x16_bf16 {vr(nxt,16)}, {vr(KF+4*kb,4)}, {vr(Q,4)}, {vr(NEGM,16)}")
            kread(j % 2, (j + 2) * 2048)
            for i in range(4, 8): a(f"v_exp_f32 v{cur+i}, v{cur+i}")
            for i in range(4): a(f"v_cvt_pk_bf16_f32 v{P+i}, v{cur+2*i}, v{cur+2*i+1}")
            a("s_waitcnt lgkmcnt(1)")
            vread((j + 1) % 2, (j + 1) * 2048)
            a(f"v_mfma_f32_32x32x16_bf16 {vr(O,16)}, {vr(VF+8*vb,4)}, {vr(P,4)}, {vr(O,16)}")
            for i in range(8, 14): a(f"v_exp_f32 v{cur+i}, v{cur+i}")
            a(f"v_cvt_pk_bf16_f32 v{P+4}, v{cur+8}, v{cur+9}")
            a(f"v_exp_f32 v{cur+14}, v{cur+14}")
            a(f"v_cvt_pk_bf16_f32 v{P+5}, v{cur+10}, v{cur+11}")
            a(f"v_exp_f32 v{cur+15}, v{cur+15}")
            a(f"v_cvt_pk_bf16_f32 v{P+6}, v{cur+12}, v{cur+13}")
            a(f"v_cvt_pk_bf16_f32 v{P+7}, v{cur+14}, v{cur+15}")
            if j == 3:
                a(f"v_add_u32 {vKa}, 8192, {vKa}")
                a(f"v_add_u32 {vVa}, 8192, {vVa}")
            a(f"v_mfma_f32_32x32x16_bf16 {vr(O,16)}, {vr(VF+8*vb+4,4)}, {vr(P+4,4)}, {vr(O,16)}")
        a(f"s_sub_u32 {sCnt}, {sCnt}, 1")
        a(f"s_cmp_lg_u32 {sCnt}, 0")
        a("s_cbranch_scc1 L_body")
        a(f"s_add_u32 {sPh}, {sPh}, 1")
        a(f"s_cmp_eq_u32 {sPh}, 2")
        a("s_cbranch_scc1 L_sw1")
        a(f"s_cmp_eq_u32 {sPh}, 3")
        a("s_cbranch_scc1 L_sw2")
        a(f"s_cmp_eq_u32 {sPh}, 4")
        a("s_cbranch_scc1 L_attn_done")
        a.label("L_sw0")
        a("s_waitcnt vmcnt(0)")
        a("s_barrier")
        self.wt_process()
        a(f"s_mov_b32 {sCnt}, 1")
        a(f"s_cmp_eq_u32 {sG}, 0")
        a("s_cbranch_scc1 L_body")
        a(f"s_mov_b32 {sPh}, 1")
        a(f"v_mov_b32 v106, {vKa}")
        a("v_mov_b32 v107, 0xff800000")
        a(f"s_mov_b32 {sCnt}, 64")
        a.label("L_fb")
        a(f"ds_read_b128 {vr(KF,4)}, v106")
        a("v_add_u32 v106, 2048, v106")
        a("s_waitcnt lgkmcnt(0)")
        a(f"v_mfma_f32_32x32x16_bf16 {vr(S0,16)}, {vr(KF,4)}, {vr(Q,4)}, 0")
        for i in range(8):
            a(f"v_max3_f32 v107, v{S0+2*i}, v{S0+2*i+1}, v107")
        a(f"s_sub_u32 {sCnt}, {sCnt}, 1")
        a(f"s_cmp_lg_u32 {sCnt}, 0")
        a("s_cbranch_scc1 L_fb")
        a("v_mov_b32 v106, v107")
        a("v_permlane32_swap_b32 v106, v107")
        a("v_max_f32 v107, v106, v107")
        a(f"v_sub_f32 v{NEGM}, 0, v107")
        for i in range(1, 16):
            a(f"v_mov_b32 v{NEGM+i}, v{NEGM}")
        pipe_prologue()
        a(f"s_mov_b32 {sCnt}, 4")
        a("s_branch L_body")
        a.label("L_sw1")
        a("s_waitcnt vmcnt(0)")
        a("s_barrier")
        a(f"s_cmp_lg_u32 {sW}, 0")
        a("s_cbranch_scc1 L_sw1b")
        a(f"s_lshl_b32 {sA}, {sID}, 2")
        a(f"s_add_u32 {sA}, {sA}, {WS_FLWT}")
        a(f"v_mov_b32 v106, {sTG}")
        a("v_mov_b32 v107, 0")
        a("s_mov_b64 exec, 1")
        a(f"buffer_store_dword v106, v107, {srd(SRD_WS)}, {sA} offen sc1")
        a("s_mov_b64 exec, -1")
        a.label("L_sw1b")
        a(f"s_mov_b32 {sCnt}, 3")
        a("s_branch L_body")
        a.label("L_sw2")
        a(f"s_mov_b32 {sA}, {WS_FLWT}")
        self.poll_begin("wt")
        a(f"buffer_load_dwordx4 v[108:111], v2, {srd(SRD_WS)}, {sA} offen sc1")
        a("s_waitcnt vmcnt(0)")
        for i in range(4): a(f"v_xor_b32 v{108+i}, {sTG}, v{108+i}")
        a("v_or_b32 v108, v108, v109")
        a("v_or_b32 v110, v110, v111")
        a("v_or_b32 v108, v108, v110")
        a("v_cmp_ne_u32 vcc, 0, v108")
        self.poll_end("wt", sleep=2)
        a(f"s_cmp_eq_u32 {sW}, 7")
        a("s_cbranch_scc1 L_sw2b")
        a(f"s_mul_i32 {sA}, {sM}, 7")
        a(f"s_add_u32 {sA}, {sA}, {sW}")
        a(f"s_lshl_b32 {sA}, {sA}, 15")
        a(f"s_add_u32 {sA}, {sA}, {WS_W1F}")
        for s_ in range(32):
            a(f"buffer_load_dwordx4 {vr(W1+4*s_,4)}, v2, {srd(SRD_WS)}, {sA} offen offset:{(s_%4)*1024} sc1")
            if s_ % 4 == 3 and s_ < 31: a(f"s_add_u32 {sA}, {sA}, 4096")
        a.label("L_sw2b")
        a(f"s_mov_b32 {sCnt}, 9")
        a("s_branch L_body")
        a.label("L_attn_done")
        self.stamp("attn")
        a(f"v_rcp_f32 v12, v{O+8}")
        for i in range(8):
            a(f"v_mul_f32 v{O+i}, v12, v{O+i}")
        for i in range(4):
            a(f"v_cvt_pk_bf16_f32 v{12+i}, v{O+2*i}, v{O+2*i+1}")
        a(f"s_lshl_b32 {sA}, {sM}, 2")
        a(f"s_lshl_b32 {sB}, {sFT}, 1")
        a(f"s_add_u32 {sA}, {sA}, {sB}")
        a(f"s_add_u32 {sA}, {sA}, {sKH}")
        a(f"s_lshl_b32 {sB}, {sA}, 1")
        a(f"s_add_u32 {sB}, {sB}, {sTT}")
        a(f"s_lshl_b32 {sB}, {sB}, 10")
        a(f"s_lshl_b32 {sD}, {sC}, 16")
        a(f"s_add_u32 {sB}, {sB}, {sD}")
        a(f"s_add_u32 {sB}, {sB}, {WS_O}")
        a(f"s_lshl_b32 {sD}, {sTT}, 5")
        a(f"s_add_u32 {sD}, {sD}, {sA}")
        a(f"s_lshl_b32 {sD}, {sD}, 2")
        a(f"s_lshl_b32 {sE_}, {sC}, 8")
        a(f"s_add_u32 {sD}, {sD}, {sE_}")
        a(f"s_add_u32 {sD}, {sD}, {WS_FLO}")
        self.publish("o", [("dwordx4", "v[12:15]", "v2", sB, 0)], sD)

    def publish(self, name, stores, sflag, pre_exec=None):
        a = self.a
        a(f"v_mov_b32 v126, s3")
        a(f"v_mov_b32 v127, 0")
        a(f"s_cmp_eq_u32 {sFast}, 0")
        a(f"s_cbranch_scc0 L_pub_slow_{name}")
        for variant, mod in (("fast", ""), ("slow", " sc1")):
            if variant == "slow": a.label(f"L_pub_slow_{name}")
            for st in stores:
                ty, data, voff, soff, io = st[:5]
                if len(st) > 5: a(f"s_mov_b32 exec_hi, 0")
                a(f"buffer_store_{ty} {data}, {voff}, {srd(SRD_WS)}, {soff} offen offset:{io}{mod}")
                if len(st) > 5: a("s_mov_b64 exec, -1")
            a("s_waitcnt vmcnt(0)")
            a("s_mov_b64 exec, 1")
            a(f"buffer_store_dword v126, v127, {srd(SRD_WS)}, {sflag} offen{mod}")
            a("s_mov_b64 exec, -1")
            if variant == "fast": a(f"s_branch L_pub_done_{name}")
        a.label(f"L_pub_done_{name}")

    def wt_issue(self):
        a = self.a
        LDS_E = 132 * 1024
        a(f"s_lshl_b32 {sA}, {sID}, 3")
        a(f"s_add_u32 {sA}, {sA}, {sW}")
        a(f"s_cmp_lt_u32 {sA}, 256")
        a("s_cbranch_scc1 L_wt_wo")
        a(f"s_cmp_lt_u32 {sA}, 1152")
        a("s_cbranch_scc1 L_wt_w1")
        a(f"s_sub_u32 {sA}, {sA}, 1152")
        a(f"s_mul_i32 {sB}, {sA}, 9363")
        a(f"s_lshr_b32 {sB}, {sB}, 20")
        a(f"s_mul_i32 {sD}, {sB}, 112")
        a(f"s_sub_u32 {sD}, {sA}, {sD}")
        for i in range(4): a(f"s_mov_b32 s{SRD_T+i}, s{SRD_W2+i}")
        a(f"s_mov_b32 {sF}, 1024")
        a(f"s_mul_i32 s88, {sB}, {2*112}")
        a(f"s_add_u32 s88, s88, {sD}")
        a("s_lshl_b32 s88, s88, 10")
        a(f"s_add_u32 s88, s88, {WS_W2F}")
        a(f"s_mov_b32 s89, {112*1024}")
        a("s_branch L_wt_go")
        a.label("L_wt_w1")
        a(f"s_sub_u32 {sA}, {sA}, 256")
        a(f"s_lshr_b32 {sB}, {sA}, 5")
        a(f"s_and_b32 {sD}, {sA}, 31")
        for i in range(4): a(f"s_mov_b32 s{SRD_T+i}, s{SRD_W1+i}")
        a(f"s_mov_b32 {sF}, 3584")
        a(f"s_lshl_b32 s88, {sB}, 6")
        a(f"s_add_u32 s88, s88, {sD}")
        a("s_lshl_b32 s88, s88, 10")
        a(f"s_add_u32 s88, s88, {WS_W1F}")
        a(f"s_mov_b32 s89, {32*1024}")
        a("s_branch L_wt_go")
        a.label("L_wt_wo")
        a(f"s_lshr_b32 {sB}, {sA}, 5")
        a(f"s_and_b32 {sD}, {sA}, 31")
        for i in range(4): a(f"s_mov_b32 s{SRD_T+i}, s{SRD_WO+i}")
        a(f"s_mov_b32 {sF}, 1024")
        a(f"s_lshl_b32 s88, {sB}, 6")
        a(f"s_add_u32 s88, s88, {sD}")
        a("s_lshl_b32 s88, s88, 10")
        a(f"s_add_u32 s88, s88, {WS_WOF}")
        a(f"s_mov_b32 s89, {32*1024}")
        a.label("L_wt_go")
        a(f"s_mul_i32 {sD}, {sD}, {sF}")
        a(f"s_lshl_b32 {sD}, {sD}, 4")
        a(f"s_lshl_b32 {sB}, {sB}, 7")
        a(f"s_add_u32 {sD}, {sD}, {sB}")
        a("v_lshrrev_b32 v16, 3, v1")
        a(f"v_mul_lo_u32 v16, v16, {sF}")
        a("v_and_b32 v17, 7, v1")
        a("v_bfe_u32 v18, v1, 4, 1")
        a("v_lshlrev_b32 v18, 2, v18")
        a("v_xor_b32 v17, v17, v18")
        a("v_lshl_add_u32 v16, v17, 4, v16")
        a(f"s_xor_b32 {sA}, {sW}, 1")
        a(f"s_lshl_b32 {sA}, {sA}, 11")
        a(f"s_add_u32 {sA}, {sA}, {LDS_E}")
        a(f"s_mov_b32 m0, {sA}")
        a(f"buffer_load_dwordx4 v16, {srd(SRD_T)}, {sD} offen lds")
        a(f"s_lshl_b32 {sB}, {sF}, 3")
        a(f"s_add_u32 {sD}, {sD}, {sB}")
        a(f"s_add_u32 {sA}, {sA}, 1024")
        a(f"s_mov_b32 m0, {sA}")
        a(f"buffer_load_dwordx4 v16, {srd(SRD_T)}, {sD} offen lds")

    def wt_process(self):
        a = self.a
        LDS_E = 132 * 1024
        a("v_bfe_u32 v106, v1, 2, 2")
        a("v_lshrrev_b32 v107, 5, v1")
        a("v_lshl_add_u32 v107, v107, 2, v106")
        a("v_lshlrev_b32 v107, 7, v107")
        a("v_bfe_u32 v108, v1, 4, 1")
        a("v_lshlrev_b32 v108, 5, v108")
        a("v_and_b32 v109, 3, v1")
        a("v_lshl_add_u32 v108, v109, 3, v108")
        a("v_bfe_u32 v109, v1, 3, 1")
        a("v_lshlrev_b32 v109, 6, v109")
        a("v_xor_b32 v108, v108, v109")
        a("v_add_u32 v107, v107, v108")
        a(f"s_xor_b32 {sA}, {sW}, 1")
        a(f"s_lshl_b32 {sA}, {sA}, 11")
        a(f"s_add_u32 {sA}, {sA}, {LDS_E}")
        a(f"v_add_u32 v107, {sA}, v107")
        a("v_xor_b32 v108, 64, v107")
        a("ds_read_b64_tr_b16 v[112:113], v107")
        a("ds_read_b64_tr_b16 v[114:115], v107 offset:1024")
        a("ds_read_b64_tr_b16 v[116:117], v108")
        a("ds_read_b64_tr_b16 v[118:119], v108 offset:1024")
        a("s_waitcnt lgkmcnt(0)")
        a(f"buffer_store_dwordx4 v[112:115], v2, {srd(SRD_WS)}, s88 offen sc1")
        a("s_add_u32 s88, s88, s89")
        a(f"buffer_store_dwordx4 v[116:119], v2, {srd(SRD_WS)}, s88 offen sc1")


    def p3(self):
        a = self.a
        HB, X, ACC, BR, WO, W1 = 4, 8, 16, 32, 64, 128
        LDS_OF, LDS_E2, LDS_CS1 = 0, 128 * 1024, 145 * 1024
        sS = "s88"
        a(f"s_lshl_b32 {sS}, {sM}, 2")
        a(f"s_lshl_b32 {sB}, {sFT}, 1")
        a(f"s_add_u32 {sS}, {sS}, {sB}")
        a(f"s_add_u32 {sS}, {sS}, {sKH}")
        a(f"s_lshl_b32 {sA}, {sM}, 1")
        a(f"s_add_u32 {sA}, {sA}, {sFT}")
        a(f"s_lshl_b32 {sA}, {sA}, 5")
        a(f"s_lshl_b32 {sB}, {sKH}, 4")
        a(f"s_add_u32 {sA}, {sA}, {sB}")
        a(f"s_lshl_b32 {sA}, {sA}, 10")
        a(f"s_add_u32 {sA}, {sA}, {WS_WOF}")
        a(f"s_lshl_b32 {sB}, {sKH}, 8")
        a(f"v_xor_b32 v3, {sB}, v2")
        for i in range(16):
            a(f"buffer_load_dwordx4 {vr(WO+4*i,4)}, v3, {srd(SRD_WS)}, {sA} offen offset:{(i%4)*1024} sc1")
            if i % 4 == 3 and i < 15: a(f"s_add_u32 {sA}, {sA}, 4096")
        a("v_and_b32 v12, 31, v1")
        a("v_lshlrev_b32 v12, 10, v12")
        a("v_lshrrev_b32 v13, 5, v1")
        a("v_lshl_or_b32 v12, v13, 3, v12")
        a(f"s_lshl_b32 {sA}, {sTT}, 5")
        a(f"s_add_u32 {sA}, {sA}, {sT0}")
        a(f"s_lshl_b32 {sA}, {sA}, 10")
        a(f"s_lshl_b32 {sB}, {sS}, 5")
        a(f"s_add_u32 {sA}, {sA}, {sB}")
        a(f"buffer_load_dwordx2 {vr(X,2)}, v12, {srd(SRD_X)}, {sA} offen")
        a(f"buffer_load_dwordx2 {vr(X+2,2)}, v12, {srd(SRD_X)}, {sA} offen offset:16")
        a(f"s_cmp_eq_u32 {sW}, 7")
        a("s_cbranch_scc1 L_nocs1")
        a("s_mov_b32 s5, 0x3f803f80")
        for i in range(128):
            r = "v14" if i % 2 == 0 else "v15"
            a(f"v_dot2_f32_bf16 {r}, v{W1+i}, s5, {'0' if i < 2 else r}")
        a("v_add_f32 v14, v14, v15")
        a("v_mov_b32 v15, v14")
        a("v_permlane32_swap_b32 v14, v15")
        a("v_add_f32 v14, v14, v15")
        a("v_and_b32 v15, 31, v1")
        a("v_lshlrev_b32 v15, 2, v15")
        a(f"s_lshl_b32 {sA}, {sW}, 7")
        a(f"s_add_u32 {sA}, {sA}, {LDS_CS1}")
        a(f"v_add_u32 v15, {sA}, v15")
        a("ds_write_b32 v15, v14")
        a.label("L_nocs1")
        a("s_waitcnt lgkmcnt(0)")
        a("s_barrier")
        self.stamp("b7")
        a(f"s_lshl_b32 {sA}, {sTT}, 5")
        a(f"s_lshl_b32 {sB}, {sKH}, 4")
        a(f"s_add_u32 {sA}, {sA}, {sB}")
        a(f"s_lshl_b32 {sA}, {sA}, 2")
        a(f"s_lshl_b32 {sB}, {sC}, 8")
        a(f"s_add_u32 {sA}, {sA}, {sB}")
        a(f"s_add_u32 {sA}, {sA}, {WS_FLO}")
        a("v_and_b32 v12, 15, v1")
        a("v_lshlrev_b32 v12, 2, v12")
        self.poll_begin("o")
        a(f"buffer_load_dword v13, v12, {srd(SRD_WS)}, {sA} offen sc1")
        a("s_waitcnt vmcnt(0)")
        a("v_cmp_ne_u32 vcc, s3, v13")
        self.poll_end("o", sleep=1)
        self.stamp("ook")
        a(f"s_lshl_b32 {sA}, {sKH}, 4")
        a(f"s_lshl_b32 {sB}, {sFT}, 2")
        a(f"s_add_u32 {sA}, {sA}, {sB}")
        a(f"s_lshl_b32 {sA}, {sA}, 1")
        a(f"s_add_u32 {sA}, {sA}, {sTT}")
        a(f"s_lshl_b32 {sA}, {sA}, 10")
        a(f"s_lshl_b32 {sB}, {sC}, 16")
        a(f"s_add_u32 {sB}, {sB}, {sA}")
        a(f"s_add_u32 {sB}, {sB}, {WS_O}")
        for st in range(2):
            for i in range(4):
                d = (st * 8 + i) * 2048
                a(f"s_add_u32 {sD}, {sA}, {d + LDS_OF}")
                a(f"s_add_u32 {sE_}, {sB}, {d}")
                a(f"s_mov_b32 m0, {sD}")
                a(f"buffer_load_dwordx4 v2, {srd(SRD_WS)}, {sE_} offen sc1 lds")
        a(f"s_lshl_b32 {sA}, {sKH}, 15")
        a(f"s_lshl_b32 {sB}, {sTT}, 10")
        a(f"s_add_u32 {sA}, {sA}, {sB}")
        a(f"v_add_u32 v12, {sA}, v2")
        a.lg = []
        for st in range(2):
            a(f"s_waitcnt vmcnt({4 if st == 0 else 0})")
            a("s_barrier")
            for i in range(8):
                a.ds(f"ds_read_b128 {vr(BR+4*i,4)}, v12 offset:{(st*8+i)*2048}", f"b{st}{i}")
            for i in range(8):
                a.wait_lg(f"b{st}{i}")
                k = st * 8 + i
                srcC = "0" if k == 0 else vr(ACC, 16)
                a(f"v_mfma_f32_32x32x16_bf16 {vr(ACC,16)}, {vr(WO+4*k,4)}, {vr(BR+4*i,4)}, {srcC}")
        a(f"s_lshl_b32 {sA}, {sW}, 11")
        a(f"s_add_u32 {sA}, {sA}, {LDS_E2}")
        a(f"v_add_u32 v12, {sA}, v2")
        a(f"ds_write_b128 v12, {vr(ACC+8,4)}")
        a(f"ds_write_b128 v12, {vr(ACC+12,4)} offset:1024")
        a("s_waitcnt lgkmcnt(0)")
        a("s_barrier")
        a("v_xor_b32 v12, 2048, v12")
        a(f"ds_read_b128 {vr(BR,4)}, v12")
        a(f"ds_read_b128 {vr(BR+4,4)}, v12 offset:1024")
        for i in range(4):
            a(f"v_lshlrev_b32 v{BR+8+2*i}, 16, v{X+i}")
            a(f"v_and_b32 v{BR+9+2*i}, 0xffff0000, v{X+i}")
        a("s_waitcnt lgkmcnt(0)")
        for i in range(8):
            a(f"v_add_f32 v{ACC+i}, v{ACC+i}, v{BR+i}")
        for i in range(8):
            a(f"v_add_f32 v{ACC+i}, v{ACC+i}, v{BR+8+i}")
        for i in range(4):
            a(f"v_cvt_pk_bf16_f32 v{HB+i}, v{ACC+2*i}, v{ACC+2*i+1}")
        a("s_mov_b32 s5, 0x3f803f80")
        a(f"v_dot2_f32_bf16 v12, v{HB}, s5, 0")
        a(f"v_dot2_f32_bf16 v13, v{HB}, v{HB}, 0")
        for i in range(1, 4):
            a(f"v_dot2_f32_bf16 v12, v{HB+i}, s5, v12")
            a(f"v_dot2_f32_bf16 v13, v{HB+i}, v{HB+i}, v13")
        a("v_mov_b32 v14, v12")
        a("v_mov_b32 v15, v13")
        a("v_permlane32_swap_b32 v12, v14")
        a("v_permlane32_swap_b32 v13, v15")
        a("v_add_f32 v12, v12, v14")
        a("v_add_f32 v13, v13, v15")
        a(f"s_lshl_b32 {sA}, {sS}, 1")
        a(f"s_add_u32 {sA}, {sA}, {sTT}")
        a(f"s_lshl_b32 {sA}, {sA}, 10")
        a(f"s_lshl_b32 {sB}, {sC}, 16")
        a(f"s_add_u32 {sA}, {sA}, {sB}")
        a(f"s_add_u32 {sA}, {sA}, {WS_H}")
        a(f"s_lshl_b32 {sD}, {sTT}, 5")
        a(f"s_add_u32 {sD}, {sD}, {sS}")
        a(f"s_lshl_b32 {sB}, {sD}, 8")
        a(f"s_lshl_b32 {sE_}, {sC}, 14")
        a(f"s_add_u32 {sB}, {sB}, {sE_}")
        a(f"s_add_u32 {sB}, {sB}, {WS_ST}")
        a(f"s_lshl_b32 {sD}, {sD}, 2")
        a(f"s_lshl_b32 {sE_}, {sC}, 8")
        a(f"s_add_u32 {sD}, {sD}, {sE_}")
        a(f"s_add_u32 {sD}, {sD}, {WS_FLH}")
        a("v_lshlrev_b32 v14, 3, v1")
        self.publish("h", [("dwordx4", vr(HB, 4), "v2", sA, 0), ("dwordx2", "v[12:13]", "v14", sB, 0, "lo32")], sD)
        self.stamp("hpub")

    def p4(self):
        a = self.a
        HB, B1, ACC, BR, W1 = 4, 8, 16, 48, 128
        LDS_HF, LDS_ST2, LDS_CS1 = 64 * 1024, 144 * 1024, 145 * 1024
        a(f"s_cmp_eq_u32 {sW}, 7")
        a("s_cbranch_scc1 L_nob1")
        a(f"s_mul_i32 {sA}, {sM}, 7")
        a(f"s_add_u32 {sA}, {sA}, {sW}")
        a(f"s_lshl_b32 {sA}, {sA}, 6")
        a("v_lshrrev_b32 v3, 5, v1")
        a("v_lshlrev_b32 v3, 3, v3")
        for q in range(4):
            a(f"buffer_load_dwordx2 {vr(B1+2*q,2)}, v3, {srd(SRD_B1)}, {sA} offen offset:{16*q}")
        a.label("L_nob1")
        a(f"s_lshl_b32 {sA}, {sC}, 8")
        a(f"s_add_u32 {sA}, {sA}, {WS_FLH}")
        a("v_lshlrev_b32 v3, 2, v1")
        self.poll_begin("h")
        a(f"buffer_load_dword v80, v3, {srd(SRD_WS)}, {sA} offen sc1")
        a("s_waitcnt vmcnt(0)")
        a("v_cmp_ne_u32 vcc, s3, v80")
        self.poll_end("h", sleep=1)
        self.stamp("hok")
        a(f"s_lshl_b32 {sA}, {sW}, 11")
        a(f"s_lshl_b32 {sB}, {sC}, 16")
        a(f"s_add_u32 {sB}, {sB}, {sA}")
        a(f"s_add_u32 {sB}, {sB}, {WS_H}")
        for i in range(4):
            for tt in range(2):
                d = i * 8 * 2048 + tt * 1024
                a(f"s_add_u32 {sD}, {sA}, {d + LDS_HF}")
                a(f"s_add_u32 {sE_}, {sB}, {d}")
                a(f"s_mov_b32 m0, {sD}")
                a(f"buffer_load_dwordx4 v2, {srd(SRD_WS)}, {sE_} offen sc1 lds")
        a(f"s_lshl_b32 {sA}, {sM}, 1")
        a(f"s_add_u32 {sA}, {sA}, {sFT}")
        a(f"s_mul_i32 {sA}, {sA}, 112")
        a(f"s_and_b32 {sB}, {sW}, 3")
        a(f"s_mul_i32 {sB}, {sB}, 28")
        a(f"s_add_u32 {sA}, {sA}, {sB}")
        a(f"s_lshl_b32 {sA}, {sA}, 10")
        a(f"s_add_u32 s89, {sA}, {WS_W2F}")
        a(f"s_cmp_eq_u32 {sW}, 7")
        a("s_cbranch_scc1 L_p4_w7")
        a(f"v_add_u32 v80, {LDS_HF}, v2")
        a.lg = []
        def hread(k):
            sl = k % 4
            a.ds(f"ds_read_b128 {vr(BR+8*sl,4)}, v80 offset:{k*2048}", f"h{k}")
            a.ds(f"ds_read_b128 {vr(BR+8*sl+4,4)}, v80 offset:{k*2048+1024}", f"h{k}")
        a("s_waitcnt vmcnt(4)")
        a("s_barrier")
        for k in range(3): hread(k)
        for k in range(32):
            if k == 13:
                a("s_waitcnt vmcnt(13)")
                a("s_barrier")
            if k + 3 < 32: hread(k + 3)
            a.wait_lg(f"h{k}")
            sl = k % 4
            for tt in range(2):
                srcC = "0" if k == 0 else vr(ACC + 16 * tt, 16)
                a(f"v_mfma_f32_32x32x16_bf16 {vr(ACC+16*tt,16)}, {vr(W1+4*k,4)}, {vr(BR+8*sl+4*tt,4)}, {srcC}")
            if k < 28:
                a(f"s_add_u32 {sA}, s89, {k*1024}")
                a(f"buffer_load_dwordx4 {vr(W1+4*k,4)}, v2, {srd(SRD_WS)}, {sA} offen sc1")
        a("s_barrier")
        a.lg = []
        a("v_and_b32 v80, 31, v1")
        a("v_lshlrev_b32 v80, 3, v80")
        a(f"v_add_u32 v80, {LDS_ST2}, v80")
        a("ds_read_b64 v[82:83], v80")
        a("ds_read_b64 v[84:85], v80 offset:256")
        a("v_lshrrev_b32 v81, 5, v1")
        a("v_lshlrev_b32 v81, 4, v81")
        a(f"s_lshl_b32 {sA}, {sW}, 7")
        a(f"s_add_u32 {sA}, {sA}, {LDS_CS1}")
        a(f"v_add_u32 v81, {sA}, v81")
        CS = 48
        for q in range(4):
            a(f"ds_read_b128 {vr(CS+4*q,4)}, v81 offset:{32*q}")
        BF = 64
        for i in range(8):
            a(f"v_lshlrev_b32 v{BF+2*i}, 16, v{B1+i}")
            a(f"v_and_b32 v{BF+2*i+1}, 0xffff0000, v{B1+i}")
        a("s_waitcnt lgkmcnt(0)")
        self.stamp("ffn1")
        for tt in range(2):
            mu, rs = 82 + 2 * tt, 83 + 2 * tt
            A = ACC + 16 * tt
            for r in range(16): a(f"v_fma_f32 v{A+r}, -v{mu}, v{CS+r}, v{A+r}")
            for r in range(16): a(f"v_fma_f32 v{A+r}, v{A+r}, v{rs}, v{BF+r}")
            for r in range(16): a(f"v_max_f32 v{A+r}, 0, v{A+r}")
            for r in range(16): a(f"v_mul_f32 v{A+r}, v{A+r}, v{A+r}")
            for i in range(8): a(f"v_cvt_pk_bf16_f32 v{88+8*tt+i}, v{A+2*i}, v{A+2*i+1}")
        a(f"s_mul_i32 {sA}, {sM}, 7")
        a(f"s_add_u32 {sA}, {sA}, {sW}")
        a(f"s_lshl_b32 {sB}, {sA}, 12")
        a(f"s_mul_i32 {sD}, {sC}, {224*1024}")
        a(f"s_add_u32 {sB}, {sB}, {sD}")
        a(f"s_add_u32 {sB}, {sB}, {WS_HID}")
        a(f"s_lshl_b32 {sD}, {sA}, 2")
        a(f"s_lshl_b32 {sE_}, {sC}, 8")
        a(f"s_add_u32 {sD}, {sD}, {sE_}")
        a(f"s_add_u32 {sD}, {sD}, {WS_FLHID}")
        st = []
        for u in range(2):
            for tt in range(2):
                st.append(("dwordx4", vr(88 + 8 * tt + 4 * u, 4), "v2", sB, u * 2048 + tt * 1024))
        self.publish("hid", st, sD)
        a("s_branch L_p4_done")
        a.label("L_p4_w7")
        a("s_waitcnt vmcnt(4)")
        a("s_barrier")
        a("v_lshrrev_b32 v80, 5, v1")
        a("v_lshlrev_b32 v80, 13, v80")
        a("v_and_b32 v81, 31, v1")
        a("v_lshl_or_b32 v80, v81, 3, v80")
        a(f"s_lshl_b32 {sA}, {sC}, 14")
        a(f"s_add_u32 {sA}, {sA}, {WS_ST}")
        for k in range(32):
            a(f"buffer_load_dwordx2 {vr(16+2*k,2)}, v80, {srd(SRD_WS)}, {sA} offen offset:{(k%16)*256} sc1")
            if k == 15: a(f"s_add_u32 {sA}, {sA}, 4096")
        a("s_waitcnt vmcnt(32)")
        a("s_barrier")
        for k in range(28):
            a(f"s_add_u32 {sA}, s89, {k*1024}")
            a(f"buffer_load_dwordx4 {vr(W1+4*k,4)}, v2, {srd(SRD_WS)}, {sA} offen sc1")
        a("s_waitcnt vmcnt(28)")
        for k in range(1, 32):
            a(f"v_add_f32 v16, v16, v{16+2*k}")
            a(f"v_add_f32 v17, v17, v{17+2*k}")
        a(f"v_mul_f32 v16, 0x{f32bits(1/512):x}, v16")
        a(f"v_mul_f32 v17, 0x{f32bits(1/512):x}, v17")
        a("v_fma_f32 v17, -v16, v16, v17")
        a("v_max_f32 v17, 0, v17")
        a(f"v_add_f32 v17, 0x{f32bits(1e-5):x}, v17")
        a("v_rsq_f32 v17, v17")
        a("v_lshlrev_b32 v80, 3, v1")
        a(f"v_add_u32 v80, {LDS_ST2}, v80")
        a("ds_write_b64 v80, v[16:17]")
        a("s_waitcnt lgkmcnt(0)")
        a("s_barrier")
        a.label("L_p4_done")

    def p5(self):
        a = self.a
        HB, B2R, ACC, BR, W2 = 4, 8, 16, 48, 128
        sKQ = "s88"
        a(f"s_and_b32 {sKQ}, {sW}, 3")
        a(f"s_lshl_b32 {sA}, {sM}, 7")
        a(f"s_lshl_b32 {sB}, {sFT}, 6")
        a(f"s_add_u32 {sA}, {sA}, {sB}")
        a(f"s_lshl_b32 {sB}, {sKH}, 5")
        a(f"s_add_u32 s89, {sA}, {sB}")
        a("v_lshrrev_b32 v3, 5, v1")
        a("v_lshlrev_b32 v3, 3, v3")
        a(f"buffer_load_dwordx2 {vr(B2R,2)}, v3, {srd(SRD_B2)}, s89 offen")
        a(f"buffer_load_dwordx2 {vr(B2R+2,2)}, v3, {srd(SRD_B2)}, s89 offen offset:16")
        a(f"s_mul_i32 {sA}, {sKQ}, 56")
        a(f"s_lshl_b32 {sB}, {sC}, 8")
        a(f"s_add_u32 {sA}, {sA}, {sB}")
        a(f"s_add_u32 {sA}, {sA}, {WS_FLHID}")
        a("v_min_u32 v3, 13, v1")
        a("v_lshlrev_b32 v3, 2, v3")
        self.poll_begin("hid")
        a(f"buffer_load_dword v80, v3, {srd(SRD_WS)}, {sA} offen sc1")
        a("s_waitcnt vmcnt(0)")
        a("v_cmp_ne_u32 vcc, s3, v80")
        self.poll_end("hid", sleep=1)
        self.stamp("hidok")
        a(f"s_mul_i32 {sA}, {sKQ}, {28*2048}")
        a(f"s_lshl_b32 {sB}, {sFT}, 10")
        a(f"s_add_u32 {sA}, {sA}, {sB}")
        a(f"s_mul_i32 {sD}, {sC}, {224*1024}")
        a(f"s_add_u32 {sA}, {sA}, {sD}")
        a(f"s_add_u32 {sA}, {sA}, {WS_HID}")
        a(f"s_lshl_b32 {sE_}, {sKQ}, 13")
        a(f"s_add_u32 {sB}, {sB}, {sE_}")
        def stage_dma(j):
            for i in range(4):
                a(f"s_add_u32 {sD}, {sB}, {(j%4)*32768 + i*2048}")
                a(f"s_add_u32 {sE_}, {sA}, {(4*j+i)*2048}")
                a(f"s_mov_b32 m0, {sD}")
                a(f"buffer_load_dwordx4 v2, {srd(SRD_WS)}, {sE_} offen sc1 lds")
        for j in range(4): stage_dma(j)
        a(f"s_lshl_b32 {sF}, {sKQ}, 13")
        a(f"v_add_u32 v80, {sF}, v2")
        a("v_add_u32 v81, 65536, v80")
        issued = 16
        a.lg = []
        for j in range(7):
            done_needed = 4 * (j + 1)
            a(f"s_waitcnt vmcnt({issued - done_needed})")
            a("s_barrier")
            if j >= 1 and j + 3 < 7:
                stage_dma(j + 3); issued += 4
            base = "v80" if (j % 4) < 2 else "v81"
            so = (j % 2) * 32768
            for i in range(4):
                for tt in range(2):
                    a.ds(f"ds_read_b128 {vr(BR+8*i+4*tt,4)}, {base} offset:{so + i*2048 + tt*1024}", f"r{j}{i}")
            for i in range(4):
                a.wait_lg(f"r{j}{i}")
                k = 4 * j + i
                for tt in range(2):
                    srcC = "0" if k == 0 else vr(ACC + 16 * tt, 16)
                    a(f"v_mfma_f32_32x32x16_bf16 {vr(ACC+16*tt,16)}, {vr(W2+4*k,4)}, {vr(BR+8*i+4*tt,4)}, {srcC}")
        self.stamp("ffn2")
        a("s_barrier")
        for p in range(4):
            tt, half = p >> 1, p & 1
            A = ACC + 16 * tt + 8 * half
            a(f"s_cmp_eq_u32 {sKQ}, {p}")
            a(f"s_cbranch_scc1 L_rs_skip{p}")
            a(f"s_sub_u32 {sA}, {sKQ}, {p+1}")
            a(f"s_and_b32 {sA}, {sA}, 3")
            a(f"s_lshl_b32 {sB}, {sFT}, 2")
            a(f"s_add_u32 {sB}, {sB}, {p}")
            a(f"s_mul_i32 {sB}, {sB}, 3")
            a(f"s_add_u32 {sA}, {sA}, {sB}")
            a(f"s_lshl_b32 {sA}, {sA}, 11")
            a(f"v_add_u32 v3, {sA}, v2")
            a(f"ds_write_b128 v3, {vr(A,4)}")
            a(f"ds_write_b128 v3, {vr(A+4,4)} offset:1024")
            a(f"s_branch L_rs_next{p}")
            a.label(f"L_rs_skip{p}")
            for i in range(8): a(f"v_mov_b32 v{80+i}, v{A+i}")
            a.label(f"L_rs_next{p}")
        a("s_waitcnt lgkmcnt(0)")
        a("s_barrier")
        a(f"s_mul_i32 {sA}, {sW}, {3*2048}")
        a(f"v_add_u32 v3, {sA}, v2")
        for q in range(3):
            a(f"ds_read_b128 {vr(48+8*q,4)}, v3 offset:{q*2048}")
            a(f"ds_read_b128 {vr(52+8*q,4)}, v3 offset:{q*2048+1024}")
        for i in range(4):
            a(f"v_lshlrev_b32 v{16+2*i}, 16, v{HB+i}")
            a(f"v_and_b32 v{17+2*i}, 0xffff0000, v{HB+i}")
            a(f"v_lshlrev_b32 v{24+2*i}, 16, v{B2R+i}")
            a(f"v_and_b32 v{25+2*i}, 0xffff0000, v{B2R+i}")
        a("s_waitcnt lgkmcnt(0)")
        for i in range(8):
            a(f"v_add_f32 v{80+i}, v{80+i}, v{48+i}")
            a(f"v_add_f32 v{56+i}, v{56+i}, v{64+i}")
        for i in range(8):
            a(f"v_add_f32 v{80+i}, v{80+i}, v{56+i}")
            a(f"v_add_f32 v{16+i}, v{16+i}, v{24+i}")
        for i in range(8):
            a(f"v_add_f32 v{80+i}, v{80+i}, v{16+i}")
        for i in range(4):
            a(f"v_cvt_pk_bf16_f32 v{88+i}, v{80+2*i}, v{81+2*i}")
        a("v_permlane32_swap_b32 v88, v90")
        a("v_permlane32_swap_b32 v89, v91")
        a("v_and_b32 v3, 31, v1")
        a("v_lshlrev_b32 v3, 10, v3")
        a("v_lshrrev_b32 v12, 5, v1")
        a("v_lshl_or_b32 v3, v12, 4, v3")
        a(f"s_lshl_b32 {sA}, {sTT}, 5")
        a(f"s_add_u32 {sA}, {sA}, {sT0}")
        a(f"s_lshl_b32 {sA}, {sA}, 10")
        a(f"s_add_u32 {sA}, {sA}, s89")
        a(f"buffer_store_dwordx4 v[88:91], v3, {srd(SRD_OUT)}, {sA} offen")
        self.stamp("end")

    def kv_flag(self):
        a = self.a
        a(f"s_cmp_ge_u32 {sW}, 2")
        a("s_cbranch_scc1 L_noflag")
        a(f"s_add_u32 {sD}, {sTag}, 1")
        a(f"s_lshl_b32 {sA}, {sG}, 4")
        a(f"s_add_u32 {sA}, {sA}, {WS_FLKV}")
        a(f"v_mov_b32 v8, {sD}")
        a("v_mov_b32 v9, s3")
        a("v_mov_b32 v10, 0")
        a("s_mov_b64 exec, 1")
        a(f"s_cmp_eq_u32 {sW}, 1")
        a("s_cbranch_scc1 L_flagv")
        a(f"buffer_store_dwordx2 v[8:9], v10, {srd(SRD_WS)}, {sA} offen sc1")
        a("s_branch L_flagd")
        a.label("L_flagv")
        a(f"buffer_store_dword v8, v10, {srd(SRD_WS)}, {sA} offen offset:8 sc1")
        a.label("L_flagd")
        a("s_mov_b64 exec, -1")
        a.label("L_noflag")

    def wave_reduce(self, regs, op, tmps):
        a = self.a
        for n in (8, 4, 2, 1):
            for r in regs:
                a(f"v_{op}_f32_dpp {r}, {r}, {r} row_ror:{n} row_mask:0xf bank_mask:0xf")
        for sw in ("16", "32"):
            for r, t in zip(regs, tmps):
                a(f"v_mov_b32 {t}, {r}")
            for r, t in zip(regs, tmps):
                a(f"v_permlane{sw}_swap_b32 {r}, {t}")
            for r, t in zip(regs, tmps):
                a(f"v_{op}_f32 {r}, {r}, {t}")

    def finish(self):
        a = self.a
        a.label("L_end")
        a("s_endpgm")

    def dump_regs(self, base, regs, off):
        a = self.a
        n = len(regs)
        a(f"s_lshl_b32 {sA}, {sID}, 3")
        a(f"s_add_u32 {sA}, {sA}, {sW}")
        a(f"s_mul_i32 {sA}, {sA}, {n*256}")
        a(f"s_add_u32 {sA}, {sA}, {off}")
        a("v_lshlrev_b32 v3, 2, v1")
        for i, r in enumerate(regs):
            a(f"buffer_store_dword v{r}, v3, {srd(SRD_WS)}, {sA} offen offset:{i*256}")
        a("s_waitcnt vmcnt(0)")

    def build(self):
        self.prologue()
        self.p1()
        if self.stop == "p1":
            self.dump_regs(0, list(range(32, 48)), WS_DBG)
            self.a("s_waitcnt vmcnt(0)")
            self.finish(); return self.text()
        self.p2()
        if self.stop in ("q", "attn"):
            self.a("s_waitcnt vmcnt(0)")
            self.dump_stamps()
            self.finish(); return self.text()
        for nm, fn in (("h", self.p3), ("hid", self.p4), ("out", self.p5)):
            fn()
            if self.stop == nm: break
        self.a("s_waitcnt vmcnt(0)")
        self.dump_stamps()
        self.finish()
        return self.text()

    def text(self):
        lines, n = hazard_pass_all(self.a.lines)
        head = f"""; @launch grid=(256,1,1) block=(512,1,1) lds=163840
.amdgcn_target "amdgcn-amd-amdhsa--gfx950"
.text
.globl {KNAME}
.p2align 8
.type {KNAME},@function
{KNAME}:
"""
        tail = f""".section .rodata,"a"
.p2align 6
.amdhsa_kernel {KNAME}
  .amdhsa_next_free_vgpr 256
  .amdhsa_next_free_sgpr 102
  .amdhsa_accum_offset 256
  .amdhsa_group_segment_fixed_size 0
  .amdhsa_kernarg_size 104
  .amdhsa_user_sgpr_count 2
  .amdhsa_user_sgpr_kernarg_segment_ptr 1
  .amdhsa_system_sgpr_workgroup_id_x 1
.end_amdhsa_kernel
"""
        return head + "\n".join(lines) + "\n" + tail

if __name__ == "__main__":
    import argparse
    ap = argparse.ArgumentParser()
    ap.add_argument("--stop", default=None)
    ap.add_argument("-o", default="k.s")
    ap.add_argument("--prof", action="store_true")
    ap.add_argument("--opt", nargs="*", default=[])
    args = ap.parse_args()
    opt = dict((kv.split("=")[0], int(kv.split("=")[1])) for kv in args.opt)
    g = Gen(stop=args.stop, prof=args.prof, opt=opt)
    open(args.o, "w").write(g.build())
    print("wrote", args.o)
```

```python
import re

class Ins:
    __slots__ = ("text", "op", "ops", "mods", "label", "comment")
    def __init__(self, text):
        self.text = text
        self.label = None
        t = text.split(";")[0].strip()
        self.comment = text
        if t.endswith(":"):
            self.label = t[:-1]; self.op = None; self.ops = []; self.mods = ""
            return
        if t.startswith(".") or t == "":
            self.op = None; self.ops = []; self.mods = ""
            return
        parts = t.split(None, 1)
        self.op = parts[0]
        rest = parts[1] if len(parts) > 1 else ""
        ops = []; depth = 0; cur = ""
        for ch in rest:
            if ch in "[(": depth += 1
            if ch in "])": depth -= 1
            if ch == "," and depth == 0:
                ops.append(cur.strip()); cur = ""
            else:
                cur += ch
        if cur.strip(): ops.append(cur.strip())
        self.mods = ""
        if ops:
            last = ops[-1].split(None, 1)
            if len(last) > 1 and not last[0].endswith(","):
                ops[-1] = last[0]; self.mods = last[1]
        self.ops = ops

def regset(o):
    o = o.strip()
    neg = o.lstrip("-")
    if neg.startswith("abs(") or neg.startswith("|"):
        neg = neg.replace("abs(", "").replace(")", "").replace("|", "")
    o = neg
    m = re.fullmatch(r"([vsa])(\d+)", o)
    if m: return {(m.group(1), int(m.group(2)))}
    m = re.fullmatch(r"([vsa])\[(\d+):(\d+)\]", o)
    if m: return {(m.group(1), i) for i in range(int(m.group(2)), int(m.group(3)) + 1)}
    if o == "vcc": return {("s", "vcc")}
    if o in ("vcc_lo", "vcc_hi"): return {("s", "vcc")}
    if o == "exec": return {("s", "exec")}
    if o == "m0": return {("s", "m0")}
    return set()

TRANS = ("v_exp_", "v_log_", "v_rcp_", "v_rsq_", "v_sqrt_", "v_sin_", "v_cos_")
def is_mfma(i): return i.op and (i.op.startswith("v_mfma") or i.op.startswith("v_smfmac"))
def is_valu(i): return i.op and i.op.startswith("v_") and not is_mfma(i)
def mf_ab(i):
    if i.op.startswith("v_smfmac"): return regset(i.ops[1]) | regset(i.ops[2]) | regset(i.ops[3])
    return regset(i.ops[1]) | regset(i.ops[2])
def mf_c(i):
    if i.op.startswith("v_smfmac"): return regset(i.ops[0])
    return regset(i.ops[3])
def is_trans(i): return i.op and i.op.startswith(TRANS)
def is_vmem(i): return i.op and (i.op.startswith("buffer_") or i.op.startswith("global_") or i.op.startswith("flat_"))
def is_ds(i): return i.op and i.op.startswith("ds_")
def is_salu(i): return i.op and i.op.startswith("s_")
def mfma_passes(i):
    if "32x32x16" in i.op or "32x32x32" in i.op: return 8
    if "16x16x32" in i.op: return 4
    raise ValueError(i.op)

def rw(i):
    op, ops = i.op, i.ops
    W, R = set(), set()
    if op is None: return W, R
    rs = [regset(o) for o in ops]
    if is_mfma(i):
        W |= rs[0]; R |= rs[1] | rs[2] | rs[3]
        if op.startswith("v_smfmac"): R |= rs[0]
    elif op.startswith("v_cmp"):
        W |= rs[0]
        for r in rs[1:]: R |= r
    elif op.startswith("v_readfirstlane") or op.startswith("v_readlane"):
        W |= rs[0]
        for r in rs[1:]: R |= r
    elif op.startswith("v_permlane") and "swap" in op:
        W |= rs[0] | rs[1]; R |= rs[0] | rs[1]
    elif op.startswith(("v_add_co", "v_sub_co", "v_addc_co", "v_subb_co", "v_subrev_co")):
        W |= rs[0] | rs[1]
        for r in rs[2:]: R |= r
    elif is_valu(i):
        W |= rs[0]
        for r in rs[1:]: R |= r
        if op.startswith(("v_fmac", "v_dot2c", "v_mac", "v_writelane")) or "UNUSED_PRESERVE" in i.mods or "_dpp" in op or "op_sel" in i.mods and "cvt_pk" in op:
            R |= rs[0]
        if op.startswith("v_cndmask") and len(ops) == 3:
            R |= {("s", "vcc")}
    elif is_ds(i):
        if op.startswith("ds_read") or op.startswith("ds_bpermute") or op.startswith("ds_swizzle") or op.startswith("ds_permute"):
            W |= rs[0]
            for r in rs[1:]: R |= r
        else:
            for r in rs: R |= r
    elif is_vmem(i):
        if op.startswith("buffer_load"):
            if "lds" in i.mods.split():
                for r in rs: R |= r
                R |= {("s", "m0")}
            else:
                W |= rs[0]
                for r in rs[1:]: R |= r
        elif op.startswith("buffer_store") or op.startswith("buffer_atomic"):
            for r in rs: R |= r
            if op.startswith("buffer_atomic") and "sc0" in i.mods.split(): W |= rs[0]
        elif op.startswith("global_load_lds"):
            for r in rs: R |= r
            R |= {("s", "m0")}
        elif op.startswith("global_load"):
            W |= rs[0]
            for r in rs[1:]: R |= r
        elif op.startswith("global_store"):
            for r in rs: R |= r
        elif op.startswith("global_atomic"):
            if "sc0" in i.mods.split():
                W |= rs[0]
                for r in rs[1:]: R |= r
            else:
                for r in rs: R |= r
        else:
            pass
    elif is_salu(i):
        if op.startswith(("s_cmp", "s_bitcmp", "s_cbranch", "s_branch", "s_waitcnt", "s_nop", "s_barrier", "s_endpgm", "s_sleep", "s_setprio")):
            for r in rs: R |= r
        elif op.startswith("s_and_saveexec") or op.startswith("s_or_saveexec"):
            W |= rs[0] | {("s", "exec")}; R |= rs[1] | {("s", "exec")}
        else:
            if rs: W |= rs[0]
            for r in rs[1:]: R |= r
    return W, R

def states(i):
    if i.op is None: return 0
    if i.op == "s_nop": return int(i.ops[0], 0) + 1
    return 1

def vonly(s): return {r for r in s if r[0] in "va"}
def sonly(s): return {r for r in s if r[0] == "s"}

def need(p, c):
    pw, pr = rw(p); cw, cr = rw(c)
    n = 0
    if p.op.startswith("v_dot"):
        pv = vonly(pw)
        if c.op == p.op and len(c.ops) == 4 and not (pv & (regset(c.ops[1]) | regset(c.ops[2]))):
            pass
        elif pv & (cr | cw):
            n = max(n, 3)
    if is_valu(p):
        pv = vonly(pw); ps = sonly(pw)
        if pv:
            if is_mfma(c) and pv & cr: n = max(n, 2)
            if c.op.startswith(("v_readlane", "v_readfirstlane")) and pv & cr: n = max(n, 1)
            if "_dpp" in c.op and pv & cr: n = max(n, 2)
            if c.op.startswith("v_permlane") and pv & cr: n = max(n, 2)
            if is_trans(p) and is_valu(c) and not is_trans(c) and pv & cr: n = max(n, 1)
            if is_trans(p) and is_mfma(c) and pv & cr: n = max(n, 2)
            if ("sdwa" in p.op or "op_sel" in p.mods) and is_valu(c) and pv & (cr | cw): n = max(n, 1)
        if ps:
            if is_vmem(c) and ps & cr: n = max(n, 5)
            if is_valu(c) and ps & cr:
                n = max(n, 4 if c.op.startswith(("v_readlane", "v_writelane")) else 2)
            if is_valu(c) and c.op.startswith("v_cndmask") and len(c.ops) == 3 and ("s", "vcc") in ps: n = max(n, 2)
            if is_salu(c) and ps & cr and not c.op.startswith("s_cbranch"): n = max(n, 1)
            if c.op.startswith("s_cbranch_vcc") and ("s", "vcc") in ps: n = max(n, 1)
    if is_mfma(p):
        ps_ = mfma_passes(p)
        D = pw
        if is_mfma(c):
            A = mf_ab(c); C = mf_c(c)
            if D & A: n = max(n, {4: 8, 8: 12}[ps_])
            if D & C:
                if C == D and mfma_passes(c) == ps_: pass
                else: n = max(n, {4: 6, 8: 10}[ps_])
            elif D & cw:
                n = max(n, {4: 6, 8: 10}[ps_])
        else:
            if D & (cr | cw) and (is_valu(c) or is_vmem(c) or is_ds(c)): n = max(n, {4: 8, 8: 12}[ps_])
        Cp = mf_c(p)
        if is_valu(c) and Cp & cw and not (Cp & D): n = max(n, {4: 3, 8: 7}[ps_])
    if is_vmem(p) and p.op.startswith(("buffer_store_dwordx4", "buffer_store_dwordx3", "global_store_dwordx4", "global_store_dwordx3")):
        data = regset(p.ops[0]) if p.op.startswith("buffer") else regset(p.ops[1])
        if data & cw:
            n = max(n, 2 if is_valu(c) else 1)
    if is_ds(p) and p.op.startswith(("ds_write_b128", "ds_write_b96")):
        data = regset(p.ops[1])
        if data & cw and is_valu(c): n = max(n, 2)
    if is_salu(p) and ("s", "m0") in pw:
        if is_vmem(c) and ("s", "m0") in cr: n = max(n, 1)
    return n

MAXW = 14
def hazard_pass(lines, verbose=False):
    total = 0
    for it in range(50):
        ins = [Ins(l) for l in lines]
        labels = {i.label: k for k, i in enumerate(ins) if i.label}
        preds = [[] for _ in ins]
        for k, i in enumerate(ins):
            if k + 1 < len(ins) and not (i.op in ("s_branch", "s_endpgm")):
                preds[k + 1].append(k)
            if i.op and (i.op.startswith("s_cbranch") or i.op == "s_branch"):
                t = labels.get(i.ops[0])
                if t is not None: preds[t].append(k)
        fix = None
        for k, c in enumerate(ins):
            if c.op is None or c.op in ("s_nop",): continue
            worst = 0; who = None
            stack = [(p, 0) for p in preds[k]]
            seen = {}
            while stack:
                p, d = stack.pop()
                if d >= MAXW: continue
                if p in seen and seen[p] <= d: continue
                seen[p] = d
                pi = ins[p]
                if pi.op is not None and pi.op != "s_nop":
                    n = need(pi, c)
                    if n > d and n - d > worst:
                        worst = n - d; who = p
                for q in preds[p]:
                    stack.append((q, d + states(pi)))
            if worst > 0:
                fix = (k, worst, who); break
        if fix is None:
            return lines, total
        k, w, who = fix
        if verbose: print(f"hazard: +{w} before line {k}: {lines[k].strip()}   (producer: {lines[who].strip()})")
        nops = []
        while w > 0:
            c_ = min(w, 16); nops.append(f"    s_nop {c_-1}"); w -= c_
        lines = lines[:k] + nops + lines[k:]
        total += 1
        if it == 49: raise RuntimeError("too many hazard iterations")
    return lines, total

def hazard_pass_all(lines, verbose=False):
    total = 0
    while True:
        try:
            lines, n = _pass_many(lines, verbose)
        except RecursionError:
            raise
        total += n
        if n == 0: return lines, total

def _pass_many(lines, verbose):
    ins = [Ins(l) for l in lines]
    labels = {i.label: k for k, i in enumerate(ins) if i.label}
    preds = [[] for _ in ins]
    for k, i in enumerate(ins):
        if k + 1 < len(ins) and not (i.op in ("s_branch", "s_endpgm")):
            preds[k + 1].append(k)
        if i.op and (i.op.startswith("s_cbranch") or i.op == "s_branch"):
            t = labels.get(i.ops[0])
            if t is not None: preds[t].append(k)
    fixes = []
    extra = {}
    for k, c in enumerate(ins):
        if c.op is None or c.op == "s_nop": continue
        worst = 0; who = None
        stack = [(p, extra.get(k, 0)) for p in preds[k]]
        seen = {}
        while stack:
            p, d = stack.pop()
            if d >= MAXW: continue
            if p in seen and seen[p] <= d: continue
            seen[p] = d
            pi = ins[p]
            if pi.op is not None and pi.op != "s_nop":
                n = need(pi, c)
                if n > d and n - d > worst:
                    worst = n - d; who = p
            for q in preds[p]:
                stack.append((q, d + states(pi) + extra.get(p, 0)))
        if worst > 0:
            fixes.append((k, worst, who)); extra[k] = extra.get(k, 0) + worst
    for k, w, who in reversed(fixes):
        if verbose: print(f"hazard: +{w} before: {lines[k].strip()}   (producer: {lines[who].strip()})")
        nops = []
        while w > 0:
            c_ = min(w, 16); nops.append(f"    s_nop {c_-1}"); w -= c_
        lines = lines[:k] + nops + lines[k:]
    return lines, len(fixes)

class Asm:
    def __init__(self):
        self.lines = []
        self.vm = []
        self.lg = []
        self.uid = 0
    def __call__(self, s):
        for l in s.split("\n"):
            l = l.rstrip()
            if l.strip() == "": continue
            t = l.strip()
            self.lines.append(t if (t.endswith(":") and " " not in t) else "    " + t)
    def label(self, name): self.lines.append(name + ":")
    def newlabel(self, base):
        self.uid += 1
        return f"{base}_{self.uid}"
    def c(self, text): self.lines.append("    ; " + text)
    def vmem(self, s, tag=None):
        self(s); self.vm.append(tag)
    def wait_vm(self, tag):
        idx = max((k for k, t in enumerate(self.vm) if t == tag), default=None)
        if idx is None: return
        n = len(self.vm) - 1 - idx
        assert n <= 63, n
        self(f"s_waitcnt vmcnt({n})")
        self.vm = self.vm[idx + 1:]
    def wait_vm_all(self):
        self("s_waitcnt vmcnt(0)"); self.vm = []
    def ds(self, s, tag=None):
        self(s); self.lg.append(tag)
    def wait_lg(self, tag):
        idx = max((k for k, t in enumerate(self.lg) if t == tag), default=None)
        if idx is None: return
        n = len(self.lg) - 1 - idx
        if n > 15:
            n = 15
            idx = len(self.lg) - 1 - n
        self(f"s_waitcnt lgkmcnt({n})")
        self.lg = self.lg[idx + 1:]
    def wait_lg_all(self):
        self("s_waitcnt lgkmcnt(0)"); self.lg = []
```

```python
import sys
sys.path.insert(0, "work")
from asmlib import Asm, hazard_pass_all

NAME = "sequential_preLN__grouped_kv_mqa__dense_activation_squared_relu__prompt"
KNAME = NAME + "_kernel"

WS_EPOCH = 0x0
WS_FLKV  = 0x1000
WS_FLWT  = 0x3000
WS_FLO   = 0x4000
WS_FLH   = 0x6000
WS_FLHID = 0x8000
WS_FLWT2 = 0xA000
WS_KV    = 0x10000
WS_ST    = 0x60000
WS_O     = 0x100000
WS_H     = 0x300000
WS_HID   = 0x500000
WS_WOF   = 0xC00000
WS_W1F   = 0xC80000
WS_W2F   = 0xE40000
WS_DBG   = 0x1000000
WS_PROF  = 0x1800000
WS_SIZE  = 0x2000000

SRD_X, SRD_WQ, SRD_WK, SRD_WV = 8, 12, 16, 20
SRD_WO, SRD_W1, SRD_W2, SRD_B1 = 24, 28, 32, 36
SRD_B2, SRD_OUT, SRD_WS, SRD_T = 40, 44, 48, 52
def srd(b): return f"s[{b}:{b+3}]"
sW, sM, sC, sT0, sTag, sFast = "s56", "s57", "s58", "s59", "s60", "s61"
sFT, sTT, sKH, sXCC = "s62", "s63", "s90", "s91"
sID = "s2"
sA, sB, sD, sE_, sF, sG = "s92", "s93", "s94", "s95", "s96", "s97"
sCnt, sPh = "s98", "s99"
sW1B = "s65"
sX64 = "s[4:5]"; sY64 = "s[6:7]"

LOG2E = 1.4426950408889634
def f32bits(x):
    import struct
    return struct.unpack("<I", struct.pack("<f", x))[0]
def vr(b, n): return f"v[{b}:{b+n-1}]"

class Gen:
    def __init__(self, stop=None, prof=False, opt=None):
        self.a = Asm()
        self.stop = stop
        self.prof = prof
        self.opt = opt or {}
        self.nstamp = 0

    def stamp(self, name):
        if not self.prof: return
        i = self.nstamp; self.nstamp += 1
        assert i < 16
        self.stamp_names = getattr(self, "stamp_names", []) + [name]
        a = self.a
        a(f"s_memtime s[4:5]")
        a("s_waitcnt lgkmcnt(0)")
        a("s_sub_u32 s4, s4, s100")
        a(f"v_writelane_b32 v0, s4, {i}")

    def dump_stamps(self):
        if not self.prof: return
        a = self.a
        a("s_memrealtime s[4:5]")
        a("s_waitcnt lgkmcnt(0)")
        a("s_sub_u32 s4, s4, s101")
        a("v_writelane_b32 v0, s4, 15")
        a(f"s_lshl_b32 {sA}, {sID}, 3")
        a(f"s_add_u32 {sA}, {sA}, {sW}")
        a(f"s_lshl_b32 {sA}, {sA}, 6")
        a(f"s_add_u32 {sA}, {sA}, {WS_PROF}")
        a("v_lshlrev_b32 v3, 2, v1")
        a("s_mov_b64 exec, 0xffff")
        a(f"buffer_store_dword v0, v3, {srd(SRD_WS)}, {sA} offen")
        a(f"s_lshl_b32 {sA}, {sID}, 3")
        a(f"s_add_u32 {sA}, {sA}, {sW}")
        a(f"s_cmp_lg_u32 {sA}, {self.opt.get('profw', 0)}")
        a("s_cbranch_scc1 L_nodbgst")
        a("s_load_dwordx2 s[52:53], s[0:1], 88")
        a("s_waitcnt lgkmcnt(0)")
        a("s_mov_b32 s54, 256")
        a("s_mov_b32 s55, 0x20000")
        a("buffer_store_dword v0, v3, s[52:55], 0 offen")
        a.label("L_nodbgst")
        a("s_mov_b64 exec, -1")
        a("s_waitcnt vmcnt(0)")

    def prologue(self):
        a = self.a
        a(f"s_cmp_ge_u32 {sID}, 256")
        a("s_cbranch_scc1 L_end")
        if self.prof:
            a("s_memtime s[100:101]")
            a("s_memrealtime s[6:7]")
        a("s_load_dwordx16 s[64:79], s[0:1], 0")
        a("s_load_dwordx8 s[80:87], s[0:1], 64")
        a("s_load_dwordx2 s[88:89], s[0:1], 96")
        a(f"s_and_b32 {sA}, {sID}, 7")
        a(f"s_lshr_b32 {sB}, {sID}, 6")
        a(f"s_lshl_b32 {sB}, {sB}, 3")
        a(f"s_add_u32 {sC}, {sA}, {sB}")
        a(f"s_lshr_b32 {sM}, {sID}, 3")
        a(f"s_and_b32 {sM}, {sM}, 7")
        a(f"s_lshl_b32 {sT0}, {sC}, 6")
        a(f"s_getreg_b32 {sXCC}, hwreg(HW_REG_XCC_ID)")
        a(f"s_and_b32 {sXCC}, {sXCC}, 7")
        a("v_lshrrev_b32 v3, 6, v0")
        a("v_and_b32 v1, 63, v0")
        a(f"v_readfirstlane_b32 {sW}, v3")
        a("v_lshlrev_b32 v2, 4, v1")
        a(f"s_lshr_b32 {sFT}, {sW}, 2")
        a(f"s_lshr_b32 {sTT}, {sW}, 1")
        a(f"s_and_b32 {sTT}, {sTT}, 1")
        a(f"s_and_b32 {sKH}, {sW}, 1")
        a("s_waitcnt lgkmcnt(0)")
        if self.prof:
            a("v_mov_b32 v0, 0")
            a("s_mov_b32 s101, s6")
        self.stamp("args")
        def mk(b, lo, size):
            a(f"s_mov_b32 s{b}, s{lo}")
            a(f"s_mov_b32 s{b+1}, s{lo+1}")
            a(f"s_mov_b32 s{b+2}, 0x{size:x}")
            a(f"s_mov_b32 s{b+3}, 0x20000")
        mk(SRD_X, 64, 0x200000)
        mk(SRD_WS, 88, WS_SIZE)
        a(f"s_load_dword {sTag}, s[88:89], {WS_EPOCH}")
        mk(SRD_WK, 68, 0x4000)
        mk(SRD_WV, 70, 0x4000)
        mk(SRD_WQ, 66, 0x80000)
        self.mk = mk

    def rest_srds(self):
        mk = self.mk
        mk(SRD_WO, 72, 0x80000)
        mk(SRD_W1, 76, 0x1C0000)
        mk(SRD_B1, 78, 3584)
        mk(SRD_W2, 80, 0x1C0000)
        mk(SRD_B2, 82, 1024)
        mk(SRD_OUT, 84, 0x200000)

    def dma(self, voff, srdb, soff, m0, tag, extra=""):
        a = self.a
        a(f"s_mov_b32 m0, {m0}")
        a.vmem(f"buffer_load_dwordx4 {voff}, {srd(srdb)}, {soff} offen {extra} lds", tag)

    def p1(self):
        a = self.a
        ROW = 4
        vXa, vXb, vKVo, vWAo = "v16", "v17", "v18", "v19"
        LDS_SCR = 64 * 1024
        LDS_WA = 66 * 1024
        LDS_WK = 128 * 1024
        LDS_WV = 144 * 1024
        a(f"s_lshl_b32 {sA}, {sM}, 3")
        a(f"s_add_u32 {sA}, {sA}, {sT0}")
        a(f"s_add_u32 {sB}, {sA}, {sW}")
        a(f"s_lshl_b32 {sB}, {sB}, 10")
        a.vmem(f"buffer_load_dwordx4 {vr(ROW,4)}, v2, {srd(SRD_X)}, {sB} offen", "row")
        a("v_lshrrev_b32 v8, 3, v1")
        a("v_and_b32 v9, 7, v1")
        a("v_lshrrev_b32 v10, 1, v8")
        a("v_xor_b32 v10, v10, v9")
        a(f"s_and_b32 {sB}, {sM}, 1")
        a(f"s_lshl_b32 {sB}, {sB}, 2")
        a(f"v_xor_b32 v10, {sB}, v10")
        a("v_lshlrev_b32 v10, 4, v10")
        a(f"v_lshl_add_u32 {vXa}, v8, 10, v10")
        a(f"v_xor_b32 {vXb}, 64, {vXa}")
        def xa_dma(gs, voff, tag):
            a(f"s_lshl_b32 {sD}, {gs}, 3")
            a(f"s_add_u32 {sD}, {sD}, {sT0}")
            a(f"s_lshl_b32 {sD}, {sD}, 10")
            a(f"s_lshl_b32 {sE_}, {sW}, 7")
            a(f"s_add_u32 {sD}, {sD}, {sE_}")
            a(f"s_lshl_b32 {sE_}, {sW}, 13")
            a(f"s_lshl_b32 {sF}, {gs}, 10")
            a(f"s_add_u32 {sE_}, {sE_}, {sF}")
            self.dma(voff, SRD_X, sD, sE_, tag)
        xa_dma(sM, vXa, "kv0")
        a("v_lshrrev_b32 v8, 1, v1")
        a("v_and_b32 v9, 0x13, v8")
        a("v_bfe_u32 v10, v8, 2, 1")
        a("v_lshl_or_b32 v9, v10, 3, v9")
        a("v_bfe_u32 v10, v8, 3, 1")
        a("v_lshl_or_b32 v9, v10, 2, v9")
        a("v_lshlrev_b32 v9, 5, v9")
        a("v_and_b32 v10, 1, v1")
        a(f"v_lshl_or_b32 {vKVo}, v10, 4, v9")
        a(f"s_lshl_b32 {sD}, {sW}, 11")
        a(f"s_add_u32 {sE_}, {sD}, {LDS_WK}")
        self.dma(vKVo, SRD_WK, sD, sE_, "kv0")
        a(f"s_add_u32 {sE_}, {sD}, {LDS_WV}")
        self.dma(vKVo, SRD_WV, sD, sE_, "kv0")
        a(f"s_add_u32 {sD}, {sD}, 1024")
        a(f"s_add_u32 {sE_}, {sD}, {LDS_WK}")
        self.dma(vKVo, SRD_WK, sD, sE_, "kv0")
        a(f"s_add_u32 {sE_}, {sD}, {LDS_WV}")
        self.dma(vKVo, SRD_WV, sD, sE_, "kv0")
        for i in range(1, 8):
            a(f"s_add_u32 {sB}, {sM}, {i}")
            a(f"s_and_b32 {sB}, {sB}, 7")
            xa_dma(sB, vXa if i % 2 == 0 else vXb, "xa")
        a("v_lshrrev_b32 v8, 3, v1")
        a("v_and_b32 v9, 7, v1")
        a("v_bfe_u32 v10, v1, 4, 1")
        a("v_lshlrev_b32 v10, 2, v10")
        a("v_xor_b32 v9, v9, v10")
        a("v_lshlrev_b32 v9, 4, v9")
        a(f"v_lshl_add_u32 {vWAo}, v8, 10, v9")
        a(f"s_lshl_b32 {sD}, {sW}, 13")
        a(f"s_lshl_b32 {sE_}, {sM}, 7")
        a(f"s_add_u32 {sD}, {sD}, {sE_}")
        a(f"s_lshl_b32 {sE_}, {sW}, 10")
        a(f"s_add_u32 {sE_}, {sE_}, {LDS_WA}")
        for c in range(7):
            self.dma(vWAo, SRD_WQ, sD, sE_, "wa")
            a(f"s_add_u32 {sD}, {sD}, {64*1024}")
            a(f"s_add_u32 {sE_}, {sE_}, 8192")
        a(f"s_cmp_ge_u32 {sW}, 6")
        a("s_cbranch_scc1 L_skip_c7")
        a(f"s_mov_b32 m0, {sE_}")
        a(f"buffer_load_dwordx4 {vWAo}, {srd(SRD_WQ)}, {sD} offen lds")
        a.label("L_skip_c7")
        self.rest_srds()
        XF, WF = 64, 128
        a(f"s_cmp_ge_u32 {sW}, 2")
        a("s_cbranch_scc1 L_no_ones")
        for i in range(64):
            a(f"v_mov_b32 v{XF+i}, 0x3f803f80" if i == 0 else f"v_mov_b32 v{XF+i}, v{XF}")
        a.label("L_no_ones")
        a("s_waitcnt vmcnt(19)")
        a("s_mov_b32 s3, 0x3f803f80")
        a(f"v_dot2_f32_bf16 v8, v{ROW}, s3, 0")
        a(f"v_dot2_f32_bf16 v9, v{ROW}, v{ROW}, 0")
        for i in range(1, 4):
            a(f"v_dot2_f32_bf16 v8, v{ROW+i}, s3, v8")
            a(f"v_dot2_f32_bf16 v9, v{ROW+i}, v{ROW+i}, v9")
        self.wave_reduce(["v8", "v9"], "add", ["v10", "v11"])
        a(f"v_mul_f32 v8, 0x{f32bits(1/512):x}, v8")
        a(f"v_mul_f32 v9, 0x{f32bits(1/512):x}, v9")
        a("v_fma_f32 v9, -v8, v8, v9")
        a("v_max_f32 v9, 0, v9")
        a(f"v_add_f32 v9, 0x{f32bits(1e-5):x}, v9")
        a("v_rsq_f32 v9, v9")
        a(f"s_lshl_b32 {sA}, {sW}, 3")
        a(f"s_add_u32 {sA}, {sA}, {LDS_SCR}")
        a(f"v_mov_b32 v10, {sA}")
        a("s_mov_b64 exec, 1")
        a("ds_write_b64 v10, v[8:9]")
        a("s_mov_b64 exec, -1")
        a("s_waitcnt vmcnt(14) lgkmcnt(0)")
        a("s_barrier")
        self.stamp("b1")
        a(f"s_cmp_ge_u32 {sW}, 2")
        a("s_cbranch_scc1 L_kv_done")
        a("v_and_b32 v8, 7, v1")
        a(f"s_lshl_b32 {sA}, {sM}, 3")
        a(f"v_add_u32 v8, {sA}, v8")
        a("v_bfe_u32 v9, v8, 1, 3")
        a("v_lshrrev_b32 v10, 4, v1")
        a("v_xor_b32 v9, v9, v10")
        a("v_lshlrev_b32 v9, 4, v9")
        a("v_lshl_add_u32 v20, v8, 7, v9")
        a("v_xor_b32 v21, 64, v20")
        a("v_bfe_u32 v8, v1, 4, 1")
        a("v_bfe_u32 v9, v1, 2, 2")
        a("v_lshl_add_u32 v8, v8, 2, v9")
        a("v_lshlrev_b32 v8, 5, v8")
        a("v_lshrrev_b32 v9, 5, v1")
        a("v_lshl_add_u32 v8, v9, 9, v8")
        a("v_and_b32 v9, 3, v1")
        a("v_lshl_add_u32 v8, v9, 3, v8")
        a(f"s_lshl_b32 {sA}, {sW}, 14")
        a(f"s_add_u32 {sA}, {sA}, {LDS_WK}")
        a(f"v_add_u32 v22, {sA}, v8")
        a("s_mov_b32 exec_lo, 0x00ff00ff")
        a("s_mov_b32 exec_hi, 0x00ff00ff")
        for s in range(16):
            a.ds(f"ds_read_b128 {vr(XF+4*s,4)}, {'v20' if s%2==0 else 'v21'} offset:{(s>>1)*8192}", f"x{s}")
        a("s_mov_b64 exec, -1")
        D = 24
        a(f"s_cmp_eq_u32 {sW}, 1")
        a("s_cbranch_scc1 L_vwave")
        saved_lg = list(a.lg)
        for wave in ("K", "V"):
            a.lg = list(saved_lg)
            if wave == "V": a.label("L_vwave")
            def wread(s):
                a.ds(f"ds_read_b64_tr_b16 {vr(WF+4*s,2)}, v22 offset:{s*1024}", f"w{s}")
                a.ds(f"ds_read_b64_tr_b16 {vr(WF+4*s+2,2)}, v22 offset:{s*1024+256}", f"w{s}")
            for s in range(4): wread(s)
            for s in range(16):
                a.wait_lg(f"w{s}")
                srcC = "0" if s == 0 else vr(D, 4)
                if wave == "K":
                    a(f"v_mfma_f32_16x16x32_bf16 {vr(D,4)}, {vr(WF+4*s,4)}, {vr(XF+4*s,4)}, {srcC}")
                else:
                    a(f"v_mfma_f32_16x16x32_bf16 {vr(D,4)}, {vr(XF+4*s,4)}, {vr(WF+4*s,4)}, {srcC}")
                if s + 4 < 16: wread(s + 4)
            a(f"s_lshl_b32 {sA}, {sC}, 3")
            a(f"s_add_u32 {sA}, {sA}, {sM}")
            a(f"s_lshl_b32 {sB}, {sA}, 10")
            a(f"s_add_u32 {sB}, {sB}, {WS_KV}")
            if wave == "K":
                a("v_and_b32 v8, 7, v1")
                a("v_lshlrev_b32 v8, 3, v8")
                a(f"v_add_u32 v8, {LDS_SCR}, v8")
                a.ds("ds_read_b64 v[10:11], v8", "st")
                for r in range(4):
                    a(f"v_mov_b32_dpp v{28+r}, v{D+r} row_ror:8 row_mask:0xf bank_mask:0xf")
                a.wait_lg("st")
                for r in range(4):
                    a(f"v_fma_f32 v{D+r}, -v10, v{28+r}, v{D+r}")
                for r in range(4):
                    a(f"v_mul_f32 v{D+r}, v11, v{D+r}")
                a(f"v_cvt_pk_bf16_f32 v32, v{D}, v{D+1}")
                a(f"v_cvt_pk_bf16_f32 v33, v{D+2}, v{D+3}")
                a("v_mov_b32 v34, v32")
                a("v_mov_b32 v35, v33")
                a("v_permlane32_swap_b32 v32, v34")
                a("v_permlane32_swap_b32 v33, v35")
                a("v_bfe_u32 v8, v1, 4, 1")
                a("v_and_b32 v9, 7, v1")
                a("v_lshlrev_b32 v9, 4, v9")
                a("v_lshl_add_u32 v8, v8, 7, v9")
                a("s_mov_b32 exec_lo, 0x00ff00ff")
                a("s_mov_b32 exec_hi, 0")
                a(f"buffer_store_dwordx4 v[32:35], v8, {srd(SRD_WS)}, {sB} offen sc1")
                a("s_mov_b64 exec, -1")
                a("v_dot2_f32_bf16 v12, v32, v32, 0")
                for i in (33, 34, 35):
                    a(f"v_dot2_f32_bf16 v12, v{i}, v{i}, v12")
                a("v_mov_b32 v13, v12")
                a("v_permlane16_swap_b32 v12, v13")
                a("v_add_f32 v12, v12, v13")
                a("v_and_b32 v13, 8, v1")
                a("v_cmp_eq_u32 vcc, 0, v13")
                a("v_cndmask_b32 v12, 0, v12, vcc")
                for n in (8, 4, 2, 1):
                    a(f"v_max_f32_dpp v12, v12, v12 row_ror:{n} row_mask:0xf bank_mask:0xf")
                a(f"v_readlane_b32 {sD}, v12, 0")
                a(f"s_add_u32 {sD}, {sD}, 8")
                a(f"s_and_b32 {sD}, {sD}, 0xfffffff8")
                a(f"s_or_b32 {sD}, {sD}, {sXCC}")
                a(f"s_mov_b32 s3, {sD}")
                a(f"s_mov_b32 {sG}, {sA}")
                a("s_branch L_kv_done")
            else:
                a("v_bfe_u32 v8, v1, 4, 1")
                a("v_lshlrev_b32 v8, 5, v8")
                a(f"v_add_u32 v8, {LDS_SCR}, v8")
                a.ds("ds_read_b128 v[12:15], v8", "st")
                a.ds("ds_read_b128 v[36:39], v8 offset:16", "st")
                a("v_and_b32 v9, 7, v1")
                a("v_lshlrev_b32 v9, 3, v9")
                a(f"v_add_u32 v40, {LDS_SCR}, v9")
                a.ds("ds_read_b64 v[42:43], v40", "st")
                a(f"v_mov_b32 v28, v{D}")
                a(f"v_mov_b32 v29, v{D}")
                a("v_permlane32_swap_b32 v28, v29")
                a.wait_lg("st")
                st = [(12, 13), (14, 15), (36, 37), (38, 39)]
                for r in range(4):
                    a(f"v_fma_f32 v{D+r}, -v{st[r][0]}, v29, v{D+r}")
                for r in range(4):
                    a(f"v_mul_f32 v{D+r}, v{st[r][1]}, v{D+r}")
                a(f"v_cvt_pk_bf16_f32 v32, v{D}, v{D+1}")
                a(f"v_cvt_pk_bf16_f32 v33, v{D+2}, v{D+3}")
                a("v_mov_b32 v34, v32")
                a("v_mov_b32 v35, v33")
                a("v_permlane16_swap_b32 v32, v34")
                a("v_permlane16_swap_b32 v33, v35")
                a("v_add_u32 v8, 256, v2")
                a("s_mov_b64 exec, 0xffff")
                a(f"buffer_store_dwordx4 v[32:35], v8, {srd(SRD_WS)}, {sB} offen sc1")
                a("s_mov_b64 exec, 0xff")
                a("v_add_u32 v9, 512, v9")
                a(f"buffer_store_dwordx2 v[42:43], v9, {srd(SRD_WS)}, {sB} offen sc1")
                a("s_mov_b64 exec, -1")
                a(f"s_mov_b32 {sG}, {sA}")
        a.lg = []
        a.label("L_kv_done")
        a(f"s_cmp_ge_u32 {sW}, 2")
        a("s_cbranch_scc1 L_b2_w")
        a("s_waitcnt vmcnt(2) lgkmcnt(0)")
        a(f"s_cmp_eq_u32 {sW}, 1")
        a("s_cbranch_scc1 L_b2")
        a("s_waitcnt vmcnt(1)")
        a("s_branch L_b2")
        a.label("L_b2_w")
        a("s_waitcnt vmcnt(0)")
        a.label("L_b2")
        a("s_barrier")
        self.stamp("b2")
        a.vm = []
        a(f"s_cmp_eq_u32 {sKH}, 0")
        a("s_cbranch_scc1 L_nodelay")
        a(f"s_lshl_b32 {sE_}, {sM}, 7")
        a(f"s_add_u32 {sD}, {sE_}, {496*1024}")
        a(f"s_mov_b32 m0, {LDS_WA + 7*8192 + 6*1024}")
        a(f"buffer_load_dwordx4 {vWAo}, {srd(SRD_WQ)}, {sD} offen lds")
        a(f"s_add_u32 {sD}, {sE_}, {504*1024}")
        a(f"s_mov_b32 m0, {LDS_WA + 7*8192 + 7*1024}")
        a(f"buffer_load_dwordx4 {vWAo}, {srd(SRD_WQ)}, {sD} offen lds")
        a.label("L_nodelay")
        AF, BF, ACC, CS = 64, 128, 32, 48
        vAe, vAo = "v20", "v21"
        vB = ["v22", "v23", "v24", "v25"]
        a("v_bfe_u32 v8, v1, 2, 2")
        a("v_lshrrev_b32 v9, 5, v1")
        a("v_lshl_add_u32 v9, v9, 3, v8")
        a("v_lshlrev_b32 v9, 7, v9")
        a("v_bfe_u32 v10, v1, 4, 1")
        a(f"v_xor_b32 v10, {sKH}, v10")
        a("v_lshlrev_b32 v10, 5, v10")
        a("v_and_b32 v11, 3, v1")
        a("v_lshl_add_u32 v10, v11, 3, v10")
        a(f"s_lshl_b32 {sA}, {sFT}, 6")
        a(f"v_add_u32 v10, {sA}, v10")
        a("v_bfe_u32 v11, v1, 3, 1")
        a("v_lshlrev_b32 v11, 6, v11")
        a("v_xor_b32 v10, v10, v11")
        a("v_add_u32 v9, v9, v10")
        a(f"s_lshl_b32 {sA}, {sKH}, 15")
        a(f"s_add_u32 {sA}, {sA}, {LDS_WA}")
        a(f"s_lshl_b32 {sB}, {sTT}, 11")
        a(f"s_add_u32 {sD}, {sA}, {sB}")
        a(f"v_add_u32 {vAe}, {sD}, v9")
        a(f"s_sub_u32 {sD}, {sA}, {sB}")
        a(f"v_add_u32 {vAo}, {sD}, v9")
        a("v_and_b32 v8, 31, v1")
        a("v_bfe_u32 v9, v1, 1, 3")
        a("v_lshrrev_b32 v10, 5, v1")
        a("v_xor_b32 v9, v9, v10")
        a("v_lshlrev_b32 v9, 4, v9")
        a("v_lshl_add_u32 v8, v8, 7, v9")
        a(f"s_lshl_b32 {sA}, {sKH}, 15")
        a(f"s_lshl_b32 {sB}, {sTT}, 12")
        a(f"s_add_u32 {sA}, {sA}, {sB}")
        a(f"v_add_u32 v8, {sA}, v8")
        a(f"s_lshl_b32 {sB}, {sTT}, 5")
        a(f"v_xor_b32 {vB[0]}, {sB}, v8")
        a(f"v_xor_b32 {vB[1]}, 32, {vB[0]}")
        a(f"v_xor_b32 {vB[2]}, 64, {vB[0]}")
        a(f"v_xor_b32 {vB[3]}, 96, {vB[0]}")
        a("s_mov_b32 s5, 0x3f803f80")
        NB = 5
        def qread(p):
            c, q = p >> 2, p & 3
            sl = p % NB
            va = vAe if q % 2 == 0 else vAo
            off = c * 8192 + q * 2048
            a.ds(f"ds_read_b64_tr_b16 {vr(AF+4*sl,2)}, {va} offset:{off}", f"q{p}")
            a.ds(f"ds_read_b64_tr_b16 {vr(AF+4*sl+2,2)}, {va} offset:{off+512}", f"q{p}")
            a.ds(f"ds_read_b128 {vr(BF+4*sl,4)}, {vB[q]} offset:{c*8192}", f"q{p}")
        PRE = 4
        for p in range(PRE): qread(p)
        for p in range(16):
            sl = p % NB
            a.wait_lg(f"q{p}")
            srcC = "0" if p == 0 else vr(ACC, 16)
            a(f"v_mfma_f32_32x32x16_bf16 {vr(ACC,16)}, {vr(AF+4*sl,4)}, {vr(BF+4*sl,4)}, {srcC}")
            if p % 2 == 0:
                for i in range(4):
                    src2 = "0" if (p == 0 and i == 0) else f"v{CS}"
                    a(f"v_dot2_f32_bf16 v{CS}, v{AF+4*sl+i}, s5, {src2}")
            nx = p + PRE
            if nx == 14:
                a("s_waitcnt vmcnt(0)")
                self.kv_flag()
            if nx < 16: qread(nx)
        LDS_E = 132 * 1024
        LDS_CS = 148 * 1024
        a(f"s_lshl_b32 {sA}, {sW}, 11")
        a(f"s_add_u32 {sA}, {sA}, {LDS_E}")
        a(f"v_add_u32 v8, {sA}, v2")
        a(f"ds_write_b128 v8, {vr(ACC+8,4)}")
        a(f"ds_write_b128 v8, {vr(ACC+12,4)} offset:1024")
        a(f"v_mov_b32 v9, v{CS}")
        a(f"v_permlane32_swap_b32 v{CS}, v9")
        a(f"v_add_f32 v9, v{CS}, v9")
        a("v_and_b32 v10, 31, v1")
        a(f"s_lshl_b32 {sA}, {sKH}, 4")
        a(f"v_xor_b32 v10, {sA}, v10")
        a(f"s_lshl_b32 {sA}, {sKH}, 1")
        a(f"s_add_u32 {sA}, {sA}, {sTT}")
        a(f"s_lshl_b32 {sA}, {sA}, 1")
        a(f"s_add_u32 {sA}, {sA}, {sFT}")
        a(f"s_lshl_b32 {sA}, {sA}, 7")
        a(f"s_add_u32 {sA}, {sA}, {LDS_CS}")
        a("v_lshlrev_b32 v10, 2, v10")
        a(f"v_add_u32 v10, {sA}, v10")
        a("ds_write_b32 v10, v9")
        a("s_waitcnt lgkmcnt(0)")
        a("s_barrier")
        a.lg = []
        a(f"s_xor_b32 {sA}, {sW}, 1")
        a(f"s_lshl_b32 {sA}, {sA}, 11")
        a(f"s_add_u32 {sA}, {sA}, {LDS_E}")
        a(f"v_add_u32 v8, {sA}, v2")
        a.ds(f"ds_read_b128 {vr(64,4)}, v8", "e")
        a.ds(f"ds_read_b128 {vr(68,4)}, v8 offset:1024", "e")
        a("v_lshrrev_b32 v9, 5, v1")
        a("v_lshlrev_b32 v9, 4, v9")
        a(f"s_lshl_b32 {sA}, {sFT}, 7")
        a(f"s_lshl_b32 {sB}, {sKH}, 6")
        a(f"s_add_u32 {sA}, {sA}, {sB}")
        a(f"s_add_u32 {sA}, {sA}, {LDS_CS}")
        a(f"v_add_u32 v9, {sA}, v9")
        for q in range(4):
            a.ds(f"ds_read_b128 {vr(72+8*q,4)}, v9 offset:{q*256}", "cs")
            a.ds(f"ds_read_b128 {vr(76+8*q,4)}, v9 offset:{q*256+32}", "cs")
        a.wait_lg("e")
        for i in range(8):
            a(f"v_add_f32 v{ACC+i}, v{ACC+i}, v{64+i}")
        a.wait_lg("cs")
        for i in range(8):
            a(f"v_add_f32 v{72+i}, v{72+i}, v{80+i}")
            a(f"v_add_f32 v{88+i}, v{88+i}, v{96+i}")
        for i in range(8):
            a(f"v_add_f32 v{40+i}, v{72+i}, v{88+i}")


    def poll_begin(self, name, limit=200000):
        a = self.a
        a(f"s_mov_b32 {sCnt}, {limit}")
        a.label(f"L_poll_{name}")
    def poll_end(self, name, sleep=1):
        a = self.a
        a(f"s_cbranch_vccz L_pollok_{name}")
        a(f"s_sub_u32 {sCnt}, {sCnt}, 1")
        a(f"s_cmp_eq_u32 {sCnt}, 0")
        a(f"s_cbranch_scc1 L_pollok_{name}")
        if sleep: a(f"s_sleep {sleep}")
        a(f"s_branch L_poll_{name}")
        a.label(f"L_pollok_{name}")

    def p2(self):
        a = self.a
        X = self.opt
        LDS_E = 132 * 1024
        Q, NEGM, S0, S1, IDX, O, KF, VF = 4, 8, 24, 40, 56, 64, 80, 88
        vKa, vVa, vKb, vVb = "v104", "v105", "v106", "v107"
        vT1, vT2 = "v108", "v109"
        PL = 110
        WD = 112
        W1 = 128
        sTG = "s3"
        a(f"s_add_u32 {sTG}, {sTag}, 1")
        self.stamp("b3")
        if X.get("kvsleep", 0):
            a(f"s_sleep {X['kvsleep']}")
        a("v_lshlrev_b32 v3, 6, v1")
        a(f"s_mov_b32 {sA}, {WS_FLKV}")
        self.poll_begin("kv")
        for q in range(4):
            a(f"buffer_load_dwordx4 {vr(64+4*q,4)}, v3, {srd(SRD_WS)}, {sA} offen offset:{16*q} sc1")
        a("s_waitcnt vmcnt(0)")
        a(f"v_xor_b32 v80, {sTG}, v64")
        a(f"v_xor_b32 v81, {sTG}, v66")
        a("v_or_b32 v80, v80, v81")
        for q in range(1, 4):
            a(f"v_xor_b32 v81, {sTG}, v{64+4*q}")
            a("v_or_b32 v80, v80, v81")
            a(f"v_xor_b32 v81, {sTG}, v{66+4*q}")
            a("v_or_b32 v80, v80, v81")
        a("v_cmp_ne_u32 vcc, 0, v80")
        self.poll_end("kv", sleep=2)
        self.stamp("kvok")
        a("v_bfe_u32 v8, v1, 3, 2")
        a("v_and_b32 v9, 7, v1")
        a("v_lshlrev_b32 v9, 3, v9")
        a("v_lshl_add_u32 v8, v8, 10, v9")
        a(f"s_lshl_b32 {sA}, {sC}, 3")
        a(f"s_lshl_b32 {sB}, {sTT}, 2")
        a(f"s_add_u32 {sA}, {sA}, {sB}")
        a(f"s_lshl_b32 {sA}, {sA}, 10")
        a(f"s_add_u32 {sA}, {sA}, {WS_KV + 512}")
        a(f"buffer_load_dwordx2 v[10:11], v8, {srd(SRD_WS)}, {sA} offen sc1")
        vDK, vDV = "v59", "v60"
        a("v_bfe_u32 v59, v1, 3, 2")
        a("v_lshlrev_b32 v59, 10, v59")
        a("v_and_b32 v13, 7, v1")
        a("v_lshl_or_b32 v59, v13, 4, v59")
        a("v_lshrrev_b32 v13, 5, v1")
        a("v_lshl_or_b32 v59, v13, 7, v59")
        a("v_lshrrev_b32 v60, 4, v1")
        a("v_lshlrev_b32 v60, 10, v60")
        a("v_and_b32 v13, 15, v1")
        a("v_lshl_or_b32 v60, v13, 4, v60")
        a("v_add_u32 v60, 256, v60")
        sRot = "s64"
        a(f"s_lshr_b32 {sRot}, {sID}, 3")
        a(f"s_lshl_b32 {sRot}, {sRot}, 1")
        def kv_tile(spos):
            a(f"s_add_u32 {sD}, {spos}, {sRot}")
            a(f"s_and_b32 {sD}, {sD}, 63")
            a(f"s_lshl_b32 {sD}, {sD}, 12")
            a(f"s_add_u32 {sD}, {sD}, {WS_KV}")
            a(f"s_lshl_b32 {sE_}, {spos}, 11")
            a(f"s_mov_b32 m0, {sE_}")
            a(f"buffer_load_dwordx4 {vDK}, {srd(SRD_WS)}, {sD} offen sc1 lds")
            a(f"s_add_u32 {sE_}, {sE_}, 1024")
            a(f"s_mov_b32 m0, {sE_}")
            a(f"buffer_load_dwordx4 {vDV}, {srd(SRD_WS)}, {sD} offen sc1 lds")
        a(f"s_mov_b32 {sF}, {sW}")
        kv_tile(sF)
        a(f"s_add_u32 {sF}, {sW}, 8")
        kv_tile(sF)
        self.wt_issue()
        a("v_and_b32 v80, -8, v65")
        for q in range(1, 4):
            a(f"v_and_b32 v81, -8, v{65+4*q}")
            a("v_max_f32 v80, v80, v81")
        a(f"v_xor_b32 v82, {sXCC}, v65")
        for q in range(1, 4):
            a(f"v_xor_b32 v81, {sXCC}, v{65+4*q}")
            a("v_or_b32 v82, v82, v81")
        a("v_and_b32 v82, 7, v82")
        a("v_cmp_ne_u32 vcc, 0, v82")
        a(f"s_lshl_b32 {sA}, {sC}, 1")
        a(f"s_lshr_b64 {sX64}, vcc, {sA}")
        a(f"s_and_b32 {sFast}, s4, 3")
        if X.get("slow"): a(f"s_mov_b32 {sFast}, 1")
        self.wave_reduce(["v80"], "max", ["v81"])
        a("v_sqrt_f32 v80, v80")
        a(f"s_or_b32 {sA}, {sID}, {sW}")
        a(f"s_cmp_lg_u32 {sA}, 0")
        a("s_cbranch_scc1 L_noepoch")
        a(f"v_mov_b32 v81, {sTG}")
        a("v_mov_b32 v82, 0")
        a("s_mov_b64 exec, 1")
        a(f"buffer_store_dword v81, v82, {srd(SRD_WS)}, 0 offen")
        a("s_mov_b64 exec, -1")
        a.label("L_noepoch")
        a("s_waitcnt vmcnt(6)")
        a(f"v_mul_f32 v11, 0x{f32bits(0.25*LOG2E):x}, v11")
        for i in range(8):
            a(f"v_fma_f32 v{32+i}, -v10, v{40+i}, v{32+i}")
        for i in range(8):
            a(f"v_mul_f32 v{32+i}, v11, v{32+i}")
        for i in range(4):
            a(f"v_cvt_pk_bf16_f32 v{Q+i}, v{32+2*i}, v{33+2*i}")
        if self.stop == "q":
            self.dump_regs(0, [Q, Q+1, Q+2, Q+3], WS_DBG)
            return
        a(f"v_dot2_f32_bf16 v12, v{Q}, v{Q}, 0")
        for i in range(1, 4):
            a(f"v_dot2_f32_bf16 v12, v{Q+i}, v{Q+i}, v12")
        a("v_mov_b32 v13, v12")
        a("v_permlane32_swap_b32 v12, v13")
        a("v_add_f32 v12, v12, v13")
        a("v_sqrt_f32 v12, v12")
        a("v_mul_f32 v12, v12, v80")
        a(f"v_mul_f32 v12, 0x{f32bits(1.0078125):x}, v12")
        a(f"v_cmp_lt_f32 vcc, 0x{f32bits(48.0):x}, v12")
        a("v_cmp_u_f32 s[4:5], v12, v12")
        a("s_or_b64 vcc, vcc, s[4:5]")
        a("s_cmp_lg_u64 vcc, 0")
        a(f"s_cselect_b32 {sG}, 1, 0")
        if X.get("forcefb"): a(f"s_mov_b32 {sG}, 1")
        a(f"v_sub_f32 v{NEGM}, 0, v12")
        for i in range(1, 16):
            a(f"v_mov_b32 v{NEGM+i}, v{NEGM}")
        a(f"v_mov_b32 v{VF}, 0x3f803f80")
        for i in range(1, 16):
            a(f"v_mov_b32 v{VF+i}, v{VF}")
        for i in range(16):
            a(f"v_mov_b32 v{O+i}, 0")
        a(f"v_mov_b32 v{IDX}, 0xdddddddd")
        a(f"v_mov_b32 {vKa}, v2")
        a(f"v_add_u32 {vKb}, 0x10000, v2")
        a("v_and_b32 v3, 15, v1")
        a("v_lshlrev_b32 v3, 4, v3")
        a("v_lshrrev_b32 v61, 5, v1")
        a("v_lshl_or_b32 v3, v61, 8, v3")
        a(f"v_add_u32 {vVa}, 1024, v3")
        a(f"v_add_u32 {vVb}, 0x10000, {vVa}")
        self.wt_addr(vT1, vT2)
        self.wt_poll_addr()
        a("s_mov_b32 s6, 0x0000ffff")
        a("s_mov_b32 s7, 0x0000ffff")
        a("s_waitcnt vmcnt(2)")
        a("s_barrier")
        self.stamp("b4")
        a(f"s_cmp_eq_u32 {sFT}, 0")
        a("s_cbranch_scc1 L_clsA")
        a(f"s_add_u32 {sF}, {sW}, 12")
        a(f"s_mov_b32 {sCnt}, 12")
        a.label("L_kvrest")
        kv_tile(sF)
        a(f"s_add_u32 {sF}, {sF}, 4")
        a(f"s_sub_u32 {sCnt}, {sCnt}, 1")
        a(f"s_cmp_lg_u32 {sCnt}, 0")
        a("s_cbranch_scc1 L_kvrest")
        a("s_setprio 1")
        a("s_waitcnt vmcnt(0)")
        a("s_barrier")
        a(f"s_mov_b32 {sPh}, 1")
        a("s_branch L_clsD")
        a.label("L_clsA")
        a("s_setprio 2")
        a(f"s_mov_b32 {sPh}, 0")
        a.label("L_clsD")
        a(f"s_cmp_eq_u32 {sG}, 0")
        a("s_cbranch_scc1 L_nofb")
        a(f"s_cmp_eq_u32 {sPh}, 1")
        a("s_cbranch_scc1 L_fb0")
        a("s_barrier")
        a(f"s_mov_b32 {sPh}, 1")
        a.label("L_fb0")
        a(f"v_mov_b32 v61, {vKa}")
        a("v_mov_b32 v62, 0xff800000")
        a(f"s_mov_b32 {sCnt}, 64")
        a.label("L_fb")
        a(f"ds_read_b128 {vr(KF,4)}, v61")
        a("v_add_u32 v61, 2048, v61")
        a("s_waitcnt lgkmcnt(0)")
        a(f"v_mfma_f32_32x32x16_bf16 {vr(S0,16)}, {vr(KF,4)}, {vr(Q,4)}, 0")
        for i in range(8):
            a(f"v_max3_f32 v62, v{S0+2*i}, v{S0+2*i+1}, v62")
        a(f"s_sub_u32 {sCnt}, {sCnt}, 1")
        a(f"s_cmp_lg_u32 {sCnt}, 0")
        a("s_cbranch_scc1 L_fb")
        a("v_mov_b32 v61, v62")
        a("v_permlane32_swap_b32 v61, v62")
        a("v_max_f32 v62, v61, v62")
        a(f"v_sub_f32 v{NEGM}, 0, v62")
        for i in range(1, 16):
            a(f"v_mov_b32 v{NEGM+i}, v{NEGM}")
        a("s_nop 1")
        a.label("L_nofb")

        def kread(t):
            base = vKa if t < 32 else vKb
            a.ds(f"ds_read_b128 {vr(KF+4*(t%2),4)}, {base} offset:{(t%32)*2048}", f"K{t}")
        def vread(t):
            base = vVa if t < 32 else vVb
            a("s_mov_b64 exec, s[6:7]")
            a.ds(f"ds_read_b128 {vr(VF+8*(t%2),4)}, {base} offset:{(t%32)*2048}", f"V{t}")
            a.ds(f"ds_read_b128 {vr(VF+8*(t%2)+4,4)}, {base} offset:{(t%32)*2048+512}", f"V{t}")
            a("s_mov_b64 exec, -1")
        def Sr(t): return S0 if t % 2 == 0 else S1
        def ms(t):
            a.wait_lg(f"K{t}")
            a(f"v_mfma_f32_32x32x16_bf16 {vr(Sr(t),16)}, {vr(KF+4*(t%2),4)}, {vr(Q,4)}, {vr(NEGM,16)}")
        def sm(t, half):
            a.wait_lg(f"V{t}")
            a(f"v_smfmac_f32_32x32x32_bf16 {vr(O,16)}, {vr(VF+8*(t%2)+4*half,4)}, {vr(Sr(t)+8*half,8)}, v{IDX}")
        def E(t, lo, hi):
            for i in range(lo, hi + 1): a(f"v_exp_f32 v{Sr(t)+i}, v{Sr(t)+i}")

        TA = dict(wt=X.get("Awt", 10), fl=X.get("Afl", 17), bar=13, sw=X.get("sw", 50))
        TB = dict(wt=X.get("Bwt", 0), fl=X.get("Bfl", 2))
        TPOLL, TCHK, TLD0 = X.get("tpoll", 30), X.get("tchk", 32), X.get("tld", 32)
        def cond(cls, name, fn):
            lab = a.newlabel(f"L_{name}")
            a(f"s_cmp_eq_u32 {sFT}, {cls}")
            a(f"s_cbranch_scc0 {lab}")
            fn()
            a.label(lab)
        def b_wt():
            a("s_waitcnt vmcnt(0)")
            a(f"ds_read_b64_tr_b16 v[{WD}:{WD+1}], {vT1}")
            a(f"ds_read_b64_tr_b16 v[{WD+2}:{WD+3}], {vT1} offset:1024")
            a(f"ds_read_b64_tr_b16 v[{WD+4}:{WD+5}], {vT2}")
            a(f"ds_read_b64_tr_b16 v[{WD+6}:{WD+7}], {vT2} offset:1024")
            a("s_waitcnt lgkmcnt(0)")
            a(f"buffer_store_dwordx4 v[{WD}:{WD+3}], v2, {srd(SRD_WS)}, s88 offen sc1")
            a("s_add_u32 s88, s88, s89")
            a(f"buffer_store_dwordx4 v[{WD+4}:{WD+7}], v2, {srd(SRD_WS)}, s88 offen sc1")
        def b_fl():
            a("s_waitcnt vmcnt(0)")
            a(f"s_lshl_b32 {sA}, {sID}, 3")
            a(f"s_add_u32 {sA}, {sA}, {sW}")
            a(f"s_lshl_b32 {sA}, {sA}, 2")
            a(f"s_add_u32 {sA}, {sA}, {WS_FLWT2}")
            a(f"v_mov_b32 v{WD}, {sTG}")
            a(f"v_mov_b32 v{WD+1}, 0")
            a("s_mov_b64 exec, 1")
            a(f"buffer_store_dword v{WD}, v{WD+1}, {srd(SRD_WS)}, {sA} offen sc1")
            a("s_mov_b64 exec, -1")
        def b_bar():
            lab = a.newlabel("L_b5")
            a(f"s_cmp_eq_u32 {sPh}, 1")
            a(f"s_cbranch_scc1 {lab}")
            a("s_barrier")
            a.label(lab)
        def poll_issue():
            a(f"buffer_load_dword v{PL}, v57, {srd(SRD_WS)}, 0 offen sc1")
            a(f"buffer_load_dword v{PL+1}, v58, {srd(SRD_WS)}, 0 offen sc1")
        def poll_check():
            a("s_waitcnt vmcnt(0)")
            a(f"s_mov_b32 {sCnt}, 200000")
            a.label("L_wtchk")
            a(f"v_xor_b32 v{PL}, {sTG}, v{PL}")
            a(f"v_xor_b32 v{PL+1}, {sTG}, v{PL+1}")
            a(f"v_or_b32 v{PL}, v{PL}, v{PL+1}")
            a(f"v_cmp_ne_u32 vcc, 0, v{PL}")
            a("s_cbranch_vccz L_wtok")
            a(f"s_sub_u32 {sCnt}, {sCnt}, 1")
            a(f"s_cmp_eq_u32 {sCnt}, 0")
            a("s_cbranch_scc1 L_wtok")
            a("s_sleep 2")
            poll_issue()
            a("s_waitcnt vmcnt(0)")
            a("s_branch L_wtchk")
            a.label("L_wtok")
        extras = {t: [] for t in range(64)}
        mid = {t: [] for t in range(64)}
        extras[TA["wt"]].append(lambda: cond(0, "wtA", b_wt))
        extras[TB["wt"]].append(lambda: cond(1, "wtB", b_wt))
        extras[TA["fl"]].append(lambda: cond(0, "flA", b_fl))
        extras[TB["fl"]].append(lambda: cond(1, "flB", b_fl))
        extras[TA["bar"]].append(b_bar)
        extras[TA["sw"]].append(lambda: cond(0, "swA", lambda: a("s_setprio 0")))
        extras[TPOLL].append(poll_issue)
        extras[TCHK - 1].append(poll_check)
        def w1load(s_):
            def f():
                a(f"buffer_load_dwordx4 {vr(W1+4*s_,4)}, v2, {srd(SRD_WS)}, {sW1B} offen offset:{(s_%4)*1024} sc1")
                if s_ % 4 == 3 and s_ < 31: a(f"s_add_u32 {sW1B}, {sW1B}, 4096")
            return f
        for s_ in range(32):
            mid[TLD0 + s_ // 2].append(w1load(s_))

        a.lg = []
        kread(0); kread(1); vread(0)
        ms(0)
        a("s_nop 11")
        for t in range(64):
            E(t, 0, 1)
            if t > 0: sm(t - 1, 1)
            if t + 1 < 64: vread(t + 1)
            E(t, 2, 5)
            if t + 1 < 64: ms(t + 1)
            if t + 2 < 64: kread(t + 2)
            if mid[t]: mid[t][0]()
            E(t, 6, 11)
            sm(t, 0)
            for f in mid[t][1:]: f()
            E(t, 12, 15)
            for f in extras[t]: f()
        a("s_nop 1")
        sm(63, 1)
        a("s_setprio 0")
        self.stamp("attn")
        a("s_nop 7")
        a("s_nop 3")
        a(f"v_rcp_f32 v12, v{O+8}")
        for i in range(8):
            a(f"v_mul_f32 v{O+i}, v12, v{O+i}")
        for i in range(4):
            a(f"v_cvt_pk_bf16_f32 v{12+i}, v{O+2*i}, v{O+2*i+1}")
        a(f"s_lshl_b32 {sA}, {sM}, 2")
        a(f"s_lshl_b32 {sB}, {sFT}, 1")
        a(f"s_add_u32 {sA}, {sA}, {sB}")
        a(f"s_add_u32 {sA}, {sA}, {sKH}")
        a(f"s_lshl_b32 {sB}, {sA}, 1")
        a(f"s_add_u32 {sB}, {sB}, {sTT}")
        a(f"s_lshl_b32 {sB}, {sB}, 10")
        a(f"s_lshl_b32 {sD}, {sC}, 16")
        a(f"s_add_u32 {sB}, {sB}, {sD}")
        a(f"s_add_u32 {sB}, {sB}, {WS_O}")
        a(f"s_lshl_b32 {sD}, {sTT}, 5")
        a(f"s_add_u32 {sD}, {sD}, {sA}")
        a(f"s_lshl_b32 {sD}, {sD}, 2")
        a(f"s_lshl_b32 {sE_}, {sC}, 8")
        a(f"s_add_u32 {sD}, {sD}, {sE_}")
        a(f"s_add_u32 {sD}, {sD}, {WS_FLO}")
        self.publish("o", [("dwordx4", "v[12:15]", "v2", sB, 0)], sD)

    def wt_addr(self, vT1, vT2):
        a = self.a
        LDS_E = 132 * 1024
        a("v_bfe_u32 v61, v1, 2, 2")
        a("v_lshrrev_b32 v62, 5, v1")
        a("v_lshl_add_u32 v62, v62, 2, v61")
        a("v_lshlrev_b32 v62, 7, v62")
        a("v_bfe_u32 v63, v1, 4, 1")
        a("v_lshlrev_b32 v63, 5, v63")
        a("v_and_b32 v61, 3, v1")
        a("v_lshl_add_u32 v63, v61, 3, v63")
        a("v_bfe_u32 v61, v1, 3, 1")
        a("v_lshlrev_b32 v61, 6, v61")
        a("v_xor_b32 v63, v63, v61")
        a("v_add_u32 v62, v62, v63")
        a(f"s_xor_b32 {sA}, {sW}, 1")
        a(f"s_lshl_b32 {sA}, {sA}, 11")
        a(f"s_add_u32 {sA}, {sA}, {LDS_E}")
        a(f"v_add_u32 {vT1}, {sA}, v62")
        a(f"v_xor_b32 {vT2}, 64, {vT1}")

    def wt_poll_addr(self):
        a = self.a
        a(f"s_cmp_eq_u32 {sW}, 7")
        a("s_cbranch_scc1 L_pa7")
        a(f"s_mul_i32 {sA}, {sM}, 7")
        a(f"s_add_u32 {sA}, {sA}, {sW}")
        a(f"s_lshl_b32 {sW1B}, {sA}, 15")
        a(f"s_add_u32 {sW1B}, {sW1B}, {WS_W1F}")
        a(f"s_lshr_b32 {sA}, {sA}, 1")
        a(f"s_lshl_b32 {sA}, {sA}, 5")
        a(f"s_add_u32 {sA}, {sA}, 256")
        a("s_branch L_pad")
        a.label("L_pa7")
        a(f"s_lshl_b32 {sA}, {sM}, 1")
        a(f"s_add_u32 {sA}, {sA}, 1")
        a(f"s_mul_i32 {sA}, {sA}, 112")
        a(f"s_add_u32 {sA}, {sA}, 84")
        a(f"s_lshl_b32 {sW1B}, {sA}, 10")
        a(f"s_add_u32 {sW1B}, {sW1B}, {WS_W2F}")
        a(f"s_mul_i32 {sA}, {sM}, 112")
        a(f"s_add_u32 {sA}, {sA}, {1152 + 80}")
        a.label("L_pad")
        a(f"s_lshl_b32 {sB}, {sM}, 5")
        a(f"s_sub_u32 {sB}, {sB}, 32")
        a(f"v_mov_b32 v57, {sA}")
        a(f"v_mov_b32 v58, {sB}")
        a("v_cmp_gt_u32 vcc, 32, v1")
        a("v_cndmask_b32 v57, v58, v57, vcc")
        a("v_add_u32 v57, v57, v1")
        a("v_lshlrev_b32 v57, 2, v57")
        a(f"v_add_u32 v57, {WS_FLWT2}, v57")
        a(f"s_mul_i32 {sA}, {sM}, 112")
        a(f"s_and_b32 {sB}, {sW}, 3")
        a(f"s_mul_i32 {sB}, {sB}, 28")
        a(f"s_add_u32 {sA}, {sA}, {sB}")
        a(f"s_add_u32 {sA}, {sA}, 1152")
        a("v_min_u32 v58, 27, v1")
        a(f"v_add_u32 v58, {sA}, v58")
        a("v_lshlrev_b32 v58, 2, v58")
        a(f"v_add_u32 v58, {WS_FLWT2}, v58")

    def publish(self, name, stores, sflag, pre_exec=None):
        a = self.a
        a(f"v_mov_b32 v126, s3")
        a(f"v_mov_b32 v127, 0")
        a(f"s_cmp_eq_u32 {sFast}, 0")
        a(f"s_cbranch_scc0 L_pub_slow_{name}")
        for variant, mod in (("fast", ""), ("slow", " sc1")):
            if variant == "slow": a.label(f"L_pub_slow_{name}")
            for st in stores:
                ty, data, voff, soff, io = st[:5]
                if len(st) > 5: a(f"s_mov_b32 exec_hi, 0")
                a(f"buffer_store_{ty} {data}, {voff}, {srd(SRD_WS)}, {soff} offen offset:{io}{mod}")
                if len(st) > 5: a("s_mov_b64 exec, -1")
            a("s_waitcnt vmcnt(0)")
            a("s_mov_b64 exec, 1")
            a(f"buffer_store_dword v126, v127, {srd(SRD_WS)}, {sflag} offen{mod}")
            a("s_mov_b64 exec, -1")
            if variant == "fast": a(f"s_branch L_pub_done_{name}")
        a.label(f"L_pub_done_{name}")

    def wt_issue(self):
        a = self.a
        LDS_E = 132 * 1024
        a(f"s_lshl_b32 {sA}, {sID}, 3")
        a(f"s_add_u32 {sA}, {sA}, {sW}")
        a(f"s_cmp_lt_u32 {sA}, 256")
        a("s_cbranch_scc1 L_wt_wo")
        a(f"s_cmp_lt_u32 {sA}, 1152")
        a("s_cbranch_scc1 L_wt_w1")
        a(f"s_sub_u32 {sA}, {sA}, 1152")
        a(f"s_mul_i32 {sB}, {sA}, 9363")
        a(f"s_lshr_b32 {sB}, {sB}, 20")
        a(f"s_mul_i32 {sD}, {sB}, 112")
        a(f"s_sub_u32 {sD}, {sA}, {sD}")
        for i in range(4): a(f"s_mov_b32 s{SRD_T+i}, s{SRD_W2+i}")
        a(f"s_mov_b32 {sF}, 1024")
        a(f"s_mul_i32 s88, {sB}, {2*112}")
        a(f"s_add_u32 s88, s88, {sD}")
        a("s_lshl_b32 s88, s88, 10")
        a(f"s_add_u32 s88, s88, {WS_W2F}")
        a(f"s_mov_b32 s89, {112*1024}")
        a("s_branch L_wt_go")
        a.label("L_wt_w1")
        a(f"s_sub_u32 {sA}, {sA}, 256")
        a(f"s_lshr_b32 {sB}, {sA}, 5")
        a(f"s_and_b32 {sD}, {sA}, 31")
        for i in range(4): a(f"s_mov_b32 s{SRD_T+i}, s{SRD_W1+i}")
        a(f"s_mov_b32 {sF}, 3584")
        a(f"s_lshl_b32 s88, {sB}, 6")
        a(f"s_add_u32 s88, s88, {sD}")
        a("s_lshl_b32 s88, s88, 10")
        a(f"s_add_u32 s88, s88, {WS_W1F}")
        a(f"s_mov_b32 s89, {32*1024}")
        a("s_branch L_wt_go")
        a.label("L_wt_wo")
        a(f"s_lshr_b32 {sB}, {sA}, 5")
        a(f"s_and_b32 {sD}, {sA}, 31")
        for i in range(4): a(f"s_mov_b32 s{SRD_T+i}, s{SRD_WO+i}")
        a(f"s_mov_b32 {sF}, 1024")
        a(f"s_lshl_b32 s88, {sB}, 6")
        a(f"s_add_u32 s88, s88, {sD}")
        a("s_lshl_b32 s88, s88, 10")
        a(f"s_add_u32 s88, s88, {WS_WOF}")
        a(f"s_mov_b32 s89, {32*1024}")
        a.label("L_wt_go")
        a(f"s_mul_i32 {sD}, {sD}, {sF}")
        a(f"s_lshl_b32 {sD}, {sD}, 4")
        a(f"s_lshl_b32 {sB}, {sB}, 7")
        a(f"s_add_u32 {sD}, {sD}, {sB}")
        a("v_lshrrev_b32 v16, 3, v1")
        a(f"v_mul_lo_u32 v16, v16, {sF}")
        a("v_and_b32 v17, 7, v1")
        a("v_bfe_u32 v18, v1, 4, 1")
        a("v_lshlrev_b32 v18, 2, v18")
        a("v_xor_b32 v17, v17, v18")
        a("v_lshl_add_u32 v16, v17, 4, v16")
        a(f"s_xor_b32 {sA}, {sW}, 1")
        a(f"s_lshl_b32 {sA}, {sA}, 11")
        a(f"s_add_u32 {sA}, {sA}, {LDS_E}")
        a(f"s_mov_b32 m0, {sA}")
        a(f"buffer_load_dwordx4 v16, {srd(SRD_T)}, {sD} offen lds")
        a(f"s_lshl_b32 {sB}, {sF}, 3")
        a(f"s_add_u32 {sD}, {sD}, {sB}")
        a(f"s_add_u32 {sA}, {sA}, 1024")
        a(f"s_mov_b32 m0, {sA}")
        a(f"buffer_load_dwordx4 v16, {srd(SRD_T)}, {sD} offen lds")

    def wt_process(self):
        a = self.a
        LDS_E = 132 * 1024
        a("v_bfe_u32 v106, v1, 2, 2")
        a("v_lshrrev_b32 v107, 5, v1")
        a("v_lshl_add_u32 v107, v107, 2, v106")
        a("v_lshlrev_b32 v107, 7, v107")
        a("v_bfe_u32 v108, v1, 4, 1")
        a("v_lshlrev_b32 v108, 5, v108")
        a("v_and_b32 v109, 3, v1")
        a("v_lshl_add_u32 v108, v109, 3, v108")
        a("v_bfe_u32 v109, v1, 3, 1")
        a("v_lshlrev_b32 v109, 6, v109")
        a("v_xor_b32 v108, v108, v109")
        a("v_add_u32 v107, v107, v108")
        a(f"s_xor_b32 {sA}, {sW}, 1")
        a(f"s_lshl_b32 {sA}, {sA}, 11")
        a(f"s_add_u32 {sA}, {sA}, {LDS_E}")
        a(f"v_add_u32 v107, {sA}, v107")
        a("v_xor_b32 v108, 64, v107")
        a("ds_read_b64_tr_b16 v[112:113], v107")
        a("ds_read_b64_tr_b16 v[114:115], v107 offset:1024")
        a("ds_read_b64_tr_b16 v[116:117], v108")
        a("ds_read_b64_tr_b16 v[118:119], v108 offset:1024")
        a("s_waitcnt lgkmcnt(0)")
        a(f"buffer_store_dwordx4 v[112:115], v2, {srd(SRD_WS)}, s88 offen sc1")
        a("s_add_u32 s88, s88, s89")
        a(f"buffer_store_dwordx4 v[116:119], v2, {srd(SRD_WS)}, s88 offen sc1")


    def p3(self):
        a = self.a
        HB, X, ACC, BR, WO, W1 = 4, 8, 16, 32, 64, 128
        LDS_OF, LDS_E2, LDS_CS1 = 0, 128 * 1024, 145 * 1024
        sS = "s88"
        a(f"s_lshl_b32 {sS}, {sM}, 2")
        a(f"s_lshl_b32 {sB}, {sFT}, 1")
        a(f"s_add_u32 {sS}, {sS}, {sB}")
        a(f"s_add_u32 {sS}, {sS}, {sKH}")
        a(f"s_lshl_b32 {sA}, {sM}, 1")
        a(f"s_add_u32 {sA}, {sA}, {sFT}")
        a(f"s_lshl_b32 {sA}, {sA}, 5")
        a(f"s_lshl_b32 {sB}, {sKH}, 4")
        a(f"s_add_u32 {sA}, {sA}, {sB}")
        a(f"s_lshl_b32 {sA}, {sA}, 10")
        a(f"s_add_u32 {sA}, {sA}, {WS_WOF}")
        a(f"s_lshl_b32 {sB}, {sKH}, 8")
        a(f"v_xor_b32 v3, {sB}, v2")
        for i in range(16):
            a(f"buffer_load_dwordx4 {vr(WO+4*i,4)}, v3, {srd(SRD_WS)}, {sA} offen offset:{(i%4)*1024} sc1")
            if i % 4 == 3 and i < 15: a(f"s_add_u32 {sA}, {sA}, 4096")
        a("v_and_b32 v12, 31, v1")
        a("v_lshlrev_b32 v12, 10, v12")
        a("v_lshrrev_b32 v13, 5, v1")
        a("v_lshl_or_b32 v12, v13, 3, v12")
        a(f"s_lshl_b32 {sA}, {sTT}, 5")
        a(f"s_add_u32 {sA}, {sA}, {sT0}")
        a(f"s_lshl_b32 {sA}, {sA}, 10")
        a(f"s_lshl_b32 {sB}, {sS}, 5")
        a(f"s_add_u32 {sA}, {sA}, {sB}")
        a(f"buffer_load_dwordx2 {vr(X,2)}, v12, {srd(SRD_X)}, {sA} offen")
        a(f"buffer_load_dwordx2 {vr(X+2,2)}, v12, {srd(SRD_X)}, {sA} offen offset:16")
        a(f"s_cmp_eq_u32 {sW}, 7")
        a("s_cbranch_scc1 L_nocs1")
        a("s_mov_b32 s5, 0x3f803f80")
        for i in range(128):
            r = "v14" if i % 2 == 0 else "v15"
            a(f"v_dot2_f32_bf16 {r}, v{W1+i}, s5, {'0' if i < 2 else r}")
        a("v_add_f32 v14, v14, v15")
        a("v_mov_b32 v15, v14")
        a("v_permlane32_swap_b32 v14, v15")
        a("v_add_f32 v14, v14, v15")
        a("v_and_b32 v15, 31, v1")
        a("v_lshlrev_b32 v15, 2, v15")
        a(f"s_lshl_b32 {sA}, {sW}, 7")
        a(f"s_add_u32 {sA}, {sA}, {LDS_CS1}")
        a(f"v_add_u32 v15, {sA}, v15")
        a("ds_write_b32 v15, v14")
        a.label("L_nocs1")
        a("s_waitcnt lgkmcnt(0)")
        a("s_barrier")
        self.stamp("b7")
        a(f"s_lshl_b32 {sA}, {sTT}, 5")
        a(f"s_lshl_b32 {sB}, {sKH}, 4")
        a(f"s_add_u32 {sA}, {sA}, {sB}")
        a(f"s_lshl_b32 {sA}, {sA}, 2")
        a(f"s_lshl_b32 {sB}, {sC}, 8")
        a(f"s_add_u32 {sA}, {sA}, {sB}")
        a(f"s_add_u32 {sA}, {sA}, {WS_FLO}")
        a("v_and_b32 v12, 15, v1")
        a("v_lshlrev_b32 v12, 2, v12")
        self.poll_begin("o")
        a(f"buffer_load_dword v13, v12, {srd(SRD_WS)}, {sA} offen sc1")
        a("s_waitcnt vmcnt(0)")
        a("v_cmp_ne_u32 vcc, s3, v13")
        self.poll_end("o", sleep=1)
        self.stamp("ook")
        a(f"s_lshl_b32 {sA}, {sKH}, 4")
        a(f"s_lshl_b32 {sB}, {sFT}, 2")
        a(f"s_add_u32 {sA}, {sA}, {sB}")
        a(f"s_lshl_b32 {sA}, {sA}, 1")
        a(f"s_add_u32 {sA}, {sA}, {sTT}")
        a(f"s_lshl_b32 {sA}, {sA}, 10")
        a(f"s_lshl_b32 {sB}, {sC}, 16")
        a(f"s_add_u32 {sB}, {sB}, {sA}")
        a(f"s_add_u32 {sB}, {sB}, {WS_O}")
        for st in range(2):
            for i in range(4):
                d = (st * 8 + i) * 2048
                a(f"s_add_u32 {sD}, {sA}, {d + LDS_OF}")
                a(f"s_add_u32 {sE_}, {sB}, {d}")
                a(f"s_mov_b32 m0, {sD}")
                a(f"buffer_load_dwordx4 v2, {srd(SRD_WS)}, {sE_} offen sc1 lds")
        a(f"s_lshl_b32 {sA}, {sKH}, 15")
        a(f"s_lshl_b32 {sB}, {sTT}, 10")
        a(f"s_add_u32 {sA}, {sA}, {sB}")
        a(f"v_add_u32 v12, {sA}, v2")
        a.lg = []
        for st in range(2):
            a(f"s_waitcnt vmcnt({4 if st == 0 else 0})")
            a("s_barrier")
            for i in range(8):
                a.ds(f"ds_read_b128 {vr(BR+4*i,4)}, v12 offset:{(st*8+i)*2048}", f"b{st}{i}")
            for i in range(8):
                a.wait_lg(f"b{st}{i}")
                k = st * 8 + i
                srcC = "0" if k == 0 else vr(ACC, 16)
                a(f"v_mfma_f32_32x32x16_bf16 {vr(ACC,16)}, {vr(WO+4*k,4)}, {vr(BR+4*i,4)}, {srcC}")
        a(f"s_lshl_b32 {sA}, {sW}, 11")
        a(f"s_add_u32 {sA}, {sA}, {LDS_E2}")
        a(f"v_add_u32 v12, {sA}, v2")
        a(f"ds_write_b128 v12, {vr(ACC+8,4)}")
        a(f"ds_write_b128 v12, {vr(ACC+12,4)} offset:1024")
        a("s_waitcnt lgkmcnt(0)")
        a("s_barrier")
        a("v_xor_b32 v12, 2048, v12")
        a(f"ds_read_b128 {vr(BR,4)}, v12")
        a(f"ds_read_b128 {vr(BR+4,4)}, v12 offset:1024")
        for i in range(4):
            a(f"v_lshlrev_b32 v{BR+8+2*i}, 16, v{X+i}")
            a(f"v_and_b32 v{BR+9+2*i}, 0xffff0000, v{X+i}")
        a("s_waitcnt lgkmcnt(0)")
        for i in range(8):
            a(f"v_add_f32 v{ACC+i}, v{ACC+i}, v{BR+i}")
        for i in range(8):
            a(f"v_add_f32 v{ACC+i}, v{ACC+i}, v{BR+8+i}")
        for i in range(4):
            a(f"v_cvt_pk_bf16_f32 v{HB+i}, v{ACC+2*i}, v{ACC+2*i+1}")
        a("s_mov_b32 s5, 0x3f803f80")
        a(f"v_dot2_f32_bf16 v12, v{HB}, s5, 0")
        a(f"v_dot2_f32_bf16 v13, v{HB}, v{HB}, 0")
        for i in range(1, 4):
            a(f"v_dot2_f32_bf16 v12, v{HB+i}, s5, v12")
            a(f"v_dot2_f32_bf16 v13, v{HB+i}, v{HB+i}, v13")
        a("v_mov_b32 v14, v12")
        a("v_mov_b32 v15, v13")
        a("v_permlane32_swap_b32 v12, v14")
        a("v_permlane32_swap_b32 v13, v15")
        a("v_add_f32 v12, v12, v14")
        a("v_add_f32 v13, v13, v15")
        a(f"s_lshl_b32 {sA}, {sS}, 1")
        a(f"s_add_u32 {sA}, {sA}, {sTT}")
        a(f"s_lshl_b32 {sA}, {sA}, 10")
        a(f"s_lshl_b32 {sB}, {sC}, 16")
        a(f"s_add_u32 {sA}, {sA}, {sB}")
        a(f"s_add_u32 {sA}, {sA}, {WS_H}")
        a(f"s_lshl_b32 {sD}, {sTT}, 5")
        a(f"s_add_u32 {sD}, {sD}, {sS}")
        a(f"s_lshl_b32 {sB}, {sD}, 8")
        a(f"s_lshl_b32 {sE_}, {sC}, 14")
        a(f"s_add_u32 {sB}, {sB}, {sE_}")
        a(f"s_add_u32 {sB}, {sB}, {WS_ST}")
        a(f"s_lshl_b32 {sD}, {sD}, 2")
        a(f"s_lshl_b32 {sE_}, {sC}, 8")
        a(f"s_add_u32 {sD}, {sD}, {sE_}")
        a(f"s_add_u32 {sD}, {sD}, {WS_FLH}")
        a("v_lshlrev_b32 v14, 3, v1")
        self.publish("h", [("dwordx4", vr(HB, 4), "v2", sA, 0), ("dwordx2", "v[12:13]", "v14", sB, 0, "lo32")], sD)
        self.stamp("hpub")

    def p4(self):
        a = self.a
        HB, B1, ACC, BR, W1 = 4, 8, 16, 48, 128
        LDS_HF, LDS_ST2, LDS_CS1 = 64 * 1024, 144 * 1024, 145 * 1024
        a(f"s_cmp_eq_u32 {sW}, 7")
        a("s_cbranch_scc1 L_nob1")
        a(f"s_mul_i32 {sA}, {sM}, 7")
        a(f"s_add_u32 {sA}, {sA}, {sW}")
        a(f"s_lshl_b32 {sA}, {sA}, 6")
        a("v_lshrrev_b32 v3, 5, v1")
        a("v_lshlrev_b32 v3, 3, v3")
        for q in range(4):
            a(f"buffer_load_dwordx2 {vr(B1+2*q,2)}, v3, {srd(SRD_B1)}, {sA} offen offset:{16*q}")
        a.label("L_nob1")
        a(f"s_lshl_b32 {sA}, {sC}, 8")
        a(f"s_add_u32 {sA}, {sA}, {WS_FLH}")
        a("v_lshlrev_b32 v3, 2, v1")
        self.poll_begin("h")
        a(f"buffer_load_dword v80, v3, {srd(SRD_WS)}, {sA} offen sc1")
        a("s_waitcnt vmcnt(0)")
        a("v_cmp_ne_u32 vcc, s3, v80")
        self.poll_end("h", sleep=1)
        self.stamp("hok")
        a(f"s_lshl_b32 {sA}, {sW}, 11")
        a(f"s_lshl_b32 {sB}, {sC}, 16")
        a(f"s_add_u32 {sB}, {sB}, {sA}")
        a(f"s_add_u32 {sB}, {sB}, {WS_H}")
        for i in range(4):
            for tt in range(2):
                d = i * 8 * 2048 + tt * 1024
                a(f"s_add_u32 {sD}, {sA}, {d + LDS_HF}")
                a(f"s_add_u32 {sE_}, {sB}, {d}")
                a(f"s_mov_b32 m0, {sD}")
                a(f"buffer_load_dwordx4 v2, {srd(SRD_WS)}, {sE_} offen sc1 lds")
        a(f"s_lshl_b32 {sA}, {sM}, 1")
        a(f"s_add_u32 {sA}, {sA}, {sFT}")
        a(f"s_mul_i32 {sA}, {sA}, 112")
        a(f"s_and_b32 {sB}, {sW}, 3")
        a(f"s_mul_i32 {sB}, {sB}, 28")
        a(f"s_add_u32 {sA}, {sA}, {sB}")
        a(f"s_lshl_b32 {sA}, {sA}, 10")
        a(f"s_add_u32 s89, {sA}, {WS_W2F}")
        a(f"s_cmp_eq_u32 {sW}, 7")
        a("s_cbranch_scc1 L_p4_w7")
        a(f"v_add_u32 v80, {LDS_HF}, v2")
        a.lg = []
        def hread(k):
            sl = k % 4
            a.ds(f"ds_read_b128 {vr(BR+8*sl,4)}, v80 offset:{k*2048}", f"h{k}")
            a.ds(f"ds_read_b128 {vr(BR+8*sl+4,4)}, v80 offset:{k*2048+1024}", f"h{k}")
        a("s_waitcnt vmcnt(4)")
        a("s_barrier")
        for k in range(3): hread(k)
        for k in range(32):
            if k == 13:
                a("s_waitcnt vmcnt(13)")
                a("s_barrier")
            if k + 3 < 32: hread(k + 3)
            a.wait_lg(f"h{k}")
            sl = k % 4
            for tt in range(2):
                srcC = "0" if k == 0 else vr(ACC + 16 * tt, 16)
                a(f"v_mfma_f32_32x32x16_bf16 {vr(ACC+16*tt,16)}, {vr(W1+4*k,4)}, {vr(BR+8*sl+4*tt,4)}, {srcC}")
            if k < 28:
                a(f"s_add_u32 {sA}, s89, {k*1024}")
                a(f"buffer_load_dwordx4 {vr(W1+4*k,4)}, v2, {srd(SRD_WS)}, {sA} offen sc1")
        a("s_barrier")
        a.lg = []
        a("v_and_b32 v80, 31, v1")
        a("v_lshlrev_b32 v80, 3, v80")
        a(f"v_add_u32 v80, {LDS_ST2}, v80")
        a("ds_read_b64 v[82:83], v80")
        a("ds_read_b64 v[84:85], v80 offset:256")
        a("v_lshrrev_b32 v81, 5, v1")
        a("v_lshlrev_b32 v81, 4, v81")
        a(f"s_lshl_b32 {sA}, {sW}, 7")
        a(f"s_add_u32 {sA}, {sA}, {LDS_CS1}")
        a(f"v_add_u32 v81, {sA}, v81")
        CS = 48
        for q in range(4):
            a(f"ds_read_b128 {vr(CS+4*q,4)}, v81 offset:{32*q}")
        BF = 64
        for i in range(8):
            a(f"v_lshlrev_b32 v{BF+2*i}, 16, v{B1+i}")
            a(f"v_and_b32 v{BF+2*i+1}, 0xffff0000, v{B1+i}")
        a("s_waitcnt lgkmcnt(0)")
        self.stamp("ffn1")
        for tt in range(2):
            mu, rs = 82 + 2 * tt, 83 + 2 * tt
            A = ACC + 16 * tt
            for r in range(16): a(f"v_fma_f32 v{A+r}, -v{mu}, v{CS+r}, v{A+r}")
            for r in range(16): a(f"v_fma_f32 v{A+r}, v{A+r}, v{rs}, v{BF+r}")
            for r in range(16): a(f"v_max_f32 v{A+r}, 0, v{A+r}")
            for r in range(16): a(f"v_mul_f32 v{A+r}, v{A+r}, v{A+r}")
            for i in range(8): a(f"v_cvt_pk_bf16_f32 v{88+8*tt+i}, v{A+2*i}, v{A+2*i+1}")
        a(f"s_mul_i32 {sA}, {sM}, 7")
        a(f"s_add_u32 {sA}, {sA}, {sW}")
        a(f"s_lshl_b32 {sB}, {sA}, 12")
        a(f"s_mul_i32 {sD}, {sC}, {224*1024}")
        a(f"s_add_u32 {sB}, {sB}, {sD}")
        a(f"s_add_u32 {sB}, {sB}, {WS_HID}")
        a(f"s_lshl_b32 {sD}, {sA}, 2")
        a(f"s_lshl_b32 {sE_}, {sC}, 8")
        a(f"s_add_u32 {sD}, {sD}, {sE_}")
        a(f"s_add_u32 {sD}, {sD}, {WS_FLHID}")
        st = []
        for u in range(2):
            for tt in range(2):
                st.append(("dwordx4", vr(88 + 8 * tt + 4 * u, 4), "v2", sB, u * 2048 + tt * 1024))
        self.publish("hid", st, sD)
        a("s_branch L_p4_done")
        a.label("L_p4_w7")
        a("s_waitcnt vmcnt(4)")
        a("s_barrier")
        a("v_lshrrev_b32 v80, 5, v1")
        a("v_lshlrev_b32 v80, 13, v80")
        a("v_and_b32 v81, 31, v1")
        a("v_lshl_or_b32 v80, v81, 3, v80")
        a(f"s_lshl_b32 {sA}, {sC}, 14")
        a(f"s_add_u32 {sA}, {sA}, {WS_ST}")
        for k in range(32):
            a(f"buffer_load_dwordx2 {vr(16+2*k,2)}, v80, {srd(SRD_WS)}, {sA} offen offset:{(k%16)*256} sc1")
            if k == 15: a(f"s_add_u32 {sA}, {sA}, 4096")
        a("s_waitcnt vmcnt(32)")
        a("s_barrier")
        a("s_waitcnt vmcnt(0)")
        for k in range(1, 32):
            a(f"v_add_f32 v16, v16, v{16+2*k}")
            a(f"v_add_f32 v17, v17, v{17+2*k}")
        a(f"v_mul_f32 v16, 0x{f32bits(1/512):x}, v16")
        a(f"v_mul_f32 v17, 0x{f32bits(1/512):x}, v17")
        a("v_fma_f32 v17, -v16, v16, v17")
        a("v_max_f32 v17, 0, v17")
        a(f"v_add_f32 v17, 0x{f32bits(1e-5):x}, v17")
        a("v_rsq_f32 v17, v17")
        a("v_lshlrev_b32 v80, 3, v1")
        a(f"v_add_u32 v80, {LDS_ST2}, v80")
        a("ds_write_b64 v80, v[16:17]")
        a("s_waitcnt lgkmcnt(0)")
        a("s_barrier")
        a.label("L_p4_done")

    def p5(self):
        a = self.a
        HB, B2R, ACC, BR, W2 = 4, 8, 16, 48, 128
        sKQ = "s88"
        a(f"s_and_b32 {sKQ}, {sW}, 3")
        a(f"s_lshl_b32 {sA}, {sM}, 7")
        a(f"s_lshl_b32 {sB}, {sFT}, 6")
        a(f"s_add_u32 {sA}, {sA}, {sB}")
        a(f"s_lshl_b32 {sB}, {sKH}, 5")
        a(f"s_add_u32 s89, {sA}, {sB}")
        a("v_lshrrev_b32 v3, 5, v1")
        a("v_lshlrev_b32 v3, 3, v3")
        a(f"buffer_load_dwordx2 {vr(B2R,2)}, v3, {srd(SRD_B2)}, s89 offen")
        a(f"buffer_load_dwordx2 {vr(B2R+2,2)}, v3, {srd(SRD_B2)}, s89 offen offset:16")
        a(f"s_mul_i32 {sA}, {sKQ}, 56")
        a(f"s_lshl_b32 {sB}, {sC}, 8")
        a(f"s_add_u32 {sA}, {sA}, {sB}")
        a(f"s_add_u32 {sA}, {sA}, {WS_FLHID}")
        a("v_min_u32 v3, 13, v1")
        a("v_lshlrev_b32 v3, 2, v3")
        self.poll_begin("hid")
        a(f"buffer_load_dword v80, v3, {srd(SRD_WS)}, {sA} offen sc1")
        a("s_waitcnt vmcnt(0)")
        a("v_cmp_ne_u32 vcc, s3, v80")
        self.poll_end("hid", sleep=1)
        self.stamp("hidok")
        a(f"s_mul_i32 {sA}, {sKQ}, {28*2048}")
        a(f"s_lshl_b32 {sB}, {sFT}, 10")
        a(f"s_add_u32 {sA}, {sA}, {sB}")
        a(f"s_mul_i32 {sD}, {sC}, {224*1024}")
        a(f"s_add_u32 {sA}, {sA}, {sD}")
        a(f"s_add_u32 {sA}, {sA}, {WS_HID}")
        a(f"s_lshl_b32 {sE_}, {sKQ}, 13")
        a(f"s_add_u32 {sB}, {sB}, {sE_}")
        def stage_dma(j):
            for i in range(4):
                a(f"s_add_u32 {sD}, {sB}, {(j%4)*32768 + i*2048}")
                a(f"s_add_u32 {sE_}, {sA}, {(4*j+i)*2048}")
                a(f"s_mov_b32 m0, {sD}")
                a(f"buffer_load_dwordx4 v2, {srd(SRD_WS)}, {sE_} offen sc1 lds")
        for j in range(4): stage_dma(j)
        a(f"s_lshl_b32 {sF}, {sKQ}, 13")
        a(f"v_add_u32 v80, {sF}, v2")
        a("v_add_u32 v81, 65536, v80")
        issued = 16
        a.lg = []
        for j in range(7):
            done_needed = 4 * (j + 1)
            a(f"s_waitcnt vmcnt({issued - done_needed})")
            a("s_barrier")
            if j >= 1 and j + 3 < 7:
                stage_dma(j + 3); issued += 4
            base = "v80" if (j % 4) < 2 else "v81"
            so = (j % 2) * 32768
            for i in range(4):
                for tt in range(2):
                    a.ds(f"ds_read_b128 {vr(BR+8*i+4*tt,4)}, {base} offset:{so + i*2048 + tt*1024}", f"r{j}{i}")
            for i in range(4):
                a.wait_lg(f"r{j}{i}")
                k = 4 * j + i
                for tt in range(2):
                    srcC = "0" if k == 0 else vr(ACC + 16 * tt, 16)
                    a(f"v_mfma_f32_32x32x16_bf16 {vr(ACC+16*tt,16)}, {vr(W2+4*k,4)}, {vr(BR+8*i+4*tt,4)}, {srcC}")
        self.stamp("ffn2")
        a("s_barrier")
        for p in range(4):
            tt, half = p >> 1, p & 1
            A = ACC + 16 * tt + 8 * half
            a(f"s_cmp_eq_u32 {sKQ}, {p}")
            a(f"s_cbranch_scc1 L_rs_skip{p}")
            a(f"s_sub_u32 {sA}, {sKQ}, {p+1}")
            a(f"s_and_b32 {sA}, {sA}, 3")
            a(f"s_lshl_b32 {sB}, {sFT}, 2")
            a(f"s_add_u32 {sB}, {sB}, {p}")
            a(f"s_mul_i32 {sB}, {sB}, 3")
            a(f"s_add_u32 {sA}, {sA}, {sB}")
            a(f"s_lshl_b32 {sA}, {sA}, 11")
            a(f"v_add_u32 v3, {sA}, v2")
            a(f"ds_write_b128 v3, {vr(A,4)}")
            a(f"ds_write_b128 v3, {vr(A+4,4)} offset:1024")
            a(f"s_branch L_rs_next{p}")
            a.label(f"L_rs_skip{p}")
            for i in range(8): a(f"v_mov_b32 v{80+i}, v{A+i}")
            a.label(f"L_rs_next{p}")
        a("s_waitcnt lgkmcnt(0)")
        a("s_barrier")
        a(f"s_mul_i32 {sA}, {sW}, {3*2048}")
        a(f"v_add_u32 v3, {sA}, v2")
        for q in range(3):
            a(f"ds_read_b128 {vr(48+8*q,4)}, v3 offset:{q*2048}")
            a(f"ds_read_b128 {vr(52+8*q,4)}, v3 offset:{q*2048+1024}")
        for i in range(4):
            a(f"v_lshlrev_b32 v{16+2*i}, 16, v{HB+i}")
            a(f"v_and_b32 v{17+2*i}, 0xffff0000, v{HB+i}")
            a(f"v_lshlrev_b32 v{24+2*i}, 16, v{B2R+i}")
            a(f"v_and_b32 v{25+2*i}, 0xffff0000, v{B2R+i}")
        a("s_waitcnt lgkmcnt(0)")
        for i in range(8):
            a(f"v_add_f32 v{80+i}, v{80+i}, v{48+i}")
            a(f"v_add_f32 v{56+i}, v{56+i}, v{64+i}")
        for i in range(8):
            a(f"v_add_f32 v{80+i}, v{80+i}, v{56+i}")
            a(f"v_add_f32 v{16+i}, v{16+i}, v{24+i}")
        for i in range(8):
            a(f"v_add_f32 v{80+i}, v{80+i}, v{16+i}")
        for i in range(4):
            a(f"v_cvt_pk_bf16_f32 v{88+i}, v{80+2*i}, v{81+2*i}")
        a("v_permlane32_swap_b32 v88, v90")
        a("v_permlane32_swap_b32 v89, v91")
        a("v_and_b32 v3, 31, v1")
        a("v_lshlrev_b32 v3, 10, v3")
        a("v_lshrrev_b32 v12, 5, v1")
        a("v_lshl_or_b32 v3, v12, 4, v3")
        a(f"s_lshl_b32 {sA}, {sTT}, 5")
        a(f"s_add_u32 {sA}, {sA}, {sT0}")
        a(f"s_lshl_b32 {sA}, {sA}, 10")
        a(f"s_add_u32 {sA}, {sA}, s89")
        a(f"buffer_store_dwordx4 v[88:91], v3, {srd(SRD_OUT)}, {sA} offen")
        self.stamp("end")

    def kv_flag(self):
        a = self.a
        a(f"s_cmp_ge_u32 {sW}, 2")
        a("s_cbranch_scc1 L_noflag")
        a(f"s_add_u32 {sD}, {sTag}, 1")
        a(f"s_lshl_b32 {sA}, {sG}, 4")
        a(f"s_add_u32 {sA}, {sA}, {WS_FLKV}")
        a(f"v_mov_b32 v8, {sD}")
        a("v_mov_b32 v9, s3")
        a("v_mov_b32 v10, 0")
        a("s_mov_b64 exec, 1")
        a(f"s_cmp_eq_u32 {sW}, 1")
        a("s_cbranch_scc1 L_flagv")
        a(f"buffer_store_dwordx2 v[8:9], v10, {srd(SRD_WS)}, {sA} offen sc1")
        a("s_branch L_flagd")
        a.label("L_flagv")
        a(f"buffer_store_dword v8, v10, {srd(SRD_WS)}, {sA} offen offset:8 sc1")
        a.label("L_flagd")
        a("s_mov_b64 exec, -1")
        a.label("L_noflag")

    def wave_reduce(self, regs, op, tmps):
        a = self.a
        for n in (8, 4, 2, 1):
            for r in regs:
                a(f"v_{op}_f32_dpp {r}, {r}, {r} row_ror:{n} row_mask:0xf bank_mask:0xf")
        for sw in ("16", "32"):
            for r, t in zip(regs, tmps):
                a(f"v_mov_b32 {t}, {r}")
            for r, t in zip(regs, tmps):
                a(f"v_permlane{sw}_swap_b32 {r}, {t}")
            for r, t in zip(regs, tmps):
                a(f"v_{op}_f32 {r}, {r}, {t}")

    def finish(self):
        a = self.a
        a.label("L_end")
        a("s_endpgm")

    def dump_regs(self, base, regs, off):
        a = self.a
        n = len(regs)
        a(f"s_lshl_b32 {sA}, {sID}, 3")
        a(f"s_add_u32 {sA}, {sA}, {sW}")
        a(f"s_mul_i32 {sA}, {sA}, {n*256}")
        a(f"s_add_u32 {sA}, {sA}, {off}")
        a("v_lshlrev_b32 v3, 2, v1")
        for i, r in enumerate(regs):
            a(f"buffer_store_dword v{r}, v3, {srd(SRD_WS)}, {sA} offen offset:{i*256}")
        a("s_waitcnt vmcnt(0)")

    def build(self):
        self.prologue()
        self.p1()
        if self.stop == "p1":
            self.dump_regs(0, list(range(32, 48)), WS_DBG)
            self.a("s_waitcnt vmcnt(0)")
            self.finish(); return self.text()
        self.p2()
        if self.stop in ("q", "attn"):
            self.a("s_waitcnt vmcnt(0)")
            self.dump_stamps()
            self.finish(); return self.text()
        for nm, fn in (("h", self.p3), ("hid", self.p4), ("out", self.p5)):
            fn()
            if self.stop == nm: break
        self.a("s_waitcnt vmcnt(0)")
        self.dump_stamps()
        self.finish()
        return self.text()

    def text(self):
        lines, n = hazard_pass_all(self.a.lines)
        head = f"""; @launch grid=(256,1,1) block=(512,1,1) lds=163840
.amdgcn_target "amdgcn-amd-amdhsa--gfx950"
.text
.globl {KNAME}
.p2align 8
.type {KNAME},@function
{KNAME}:
"""
        tail = f""".section .rodata,"a"
.p2align 6
.amdhsa_kernel {KNAME}
  .amdhsa_next_free_vgpr 256
  .amdhsa_next_free_sgpr 102
  .amdhsa_accum_offset 256
  .amdhsa_group_segment_fixed_size 0
  .amdhsa_kernarg_size 104
  .amdhsa_user_sgpr_count 2
  .amdhsa_user_sgpr_kernarg_segment_ptr 1
  .amdhsa_system_sgpr_workgroup_id_x 1
.end_amdhsa_kernel
"""
        return head + "\n".join(lines) + "\n" + tail

if __name__ == "__main__":
    import argparse
    ap = argparse.ArgumentParser()
    ap.add_argument("--stop", default=None)
    ap.add_argument("-o", default="k.s")
    ap.add_argument("--prof", action="store_true")
    ap.add_argument("--opt", nargs="*", default=[])
    args = ap.parse_args()
    opt = dict((kv.split("=")[0], int(kv.split("=")[1])) for kv in args.opt)
    g = Gen(stop=args.stop, prof=args.prof, opt=opt)
    open(args.o, "w").write(g.build())
    print("wrote", args.o)
```

```python
import sys
sys.path.insert(0, "work")
from asmlib import Asm, hazard_pass_all

NAME = "sequential_preLN__grouped_kv_mqa__dense_activation_squared_relu__prompt"
KNAME = NAME + "_kernel"

WS_EPOCH = 0x0
WS_FLKV  = 0x1000
WS_FLWT  = 0x3000
WS_FLO   = 0x4000
WS_FLH   = 0x6000
WS_FLHID = 0x8000
WS_FLWT2 = 0xA000
WS_KV    = 0x10000
WS_ST    = 0x60000
WS_O     = 0x100000
WS_H     = 0x300000
WS_HID   = 0x500000
WS_WOF   = 0xC00000
WS_W1F   = 0xC80000
WS_W2F   = 0xE40000
WS_DBG   = 0x1000000
WS_PROF  = 0x1800000
WS_SIZE  = 0x2000000

SRD_X, SRD_WQ, SRD_WK, SRD_WV = 8, 12, 16, 20
SRD_WO, SRD_W1, SRD_W2, SRD_B1 = 24, 28, 32, 36
SRD_B2, SRD_OUT, SRD_WS, SRD_T = 40, 44, 48, 52
def srd(b): return f"s[{b}:{b+3}]"
sW, sM, sC, sT0, sTag, sFast = "s56", "s57", "s58", "s59", "s60", "s61"
sFT, sTT, sKH, sXCC = "s62", "s63", "s90", "s91"
sID = "s2"
sA, sB, sD, sE_, sF, sG = "s92", "s93", "s94", "s95", "s96", "s97"
sCnt, sPh = "s98", "s99"
sW1B = "s65"
sWOB = "s66"
sPF = "s69"
NW1PRE = 26
W1H = [152 + 4 * k for k in range(26)] + [40, 44, 48, 52, 96, 100]
WOH = [8, 12, 16, 20, 60] + [108 + 4 * k for k in range(11)]
NW2E = 7
W2H0 = [8, 12, 16, 20, 24, 28, 32, 36, 56, 60, 132, 136, 140, 144]
W2H1 = W1H[:14]
sX64 = "s[4:5]"; sY64 = "s[6:7]"

LOG2E = 1.4426950408889634
def f32bits(x):
    import struct
    return struct.unpack("<I", struct.pack("<f", x))[0]
def vr(b, n): return f"v[{b}:{b+n-1}]"

class Gen:
    def __init__(self, stop=None, prof=False, opt=None, skip=()):
        self.skip = set(skip)
        self.a = Asm()
        self.stop = stop
        self.prof = prof
        self.opt = opt or {}
        self.nstamp = 0

    def stamp(self, name):
        if not self.prof: return
        if name in self.skip:
            self.skipped_last = True
            return
        self.skipped_last = False
        i = self.nstamp; self.nstamp += 1
        assert i < 16
        self.stamp_names = getattr(self, "stamp_names", []) + [name]
        a = self.a
        a(f"s_memtime s[4:5]")
        a("s_waitcnt lgkmcnt(0)")
        a("s_sub_u32 s4, s4, s100")
        a(f"v_writelane_b32 v0, s4, {i}")

    def dump_stamps(self):
        if not self.prof: return
        a = self.a
        a("s_memrealtime s[4:5]")
        a("s_waitcnt lgkmcnt(0)")
        a("s_sub_u32 s4, s4, s101")
        a("v_writelane_b32 v0, s4, 15")
        a(f"s_lshl_b32 {sA}, {sID}, 3")
        a(f"s_add_u32 {sA}, {sA}, {sW}")
        a(f"s_lshl_b32 {sA}, {sA}, 6")
        a(f"s_add_u32 {sA}, {sA}, {WS_PROF}")
        a("v_lshlrev_b32 v3, 2, v1")
        a("s_mov_b64 exec, 0xffff")
        a(f"buffer_store_dword v0, v3, {srd(SRD_WS)}, {sA} offen")
        a(f"s_lshl_b32 {sA}, {sID}, 3")
        a(f"s_add_u32 {sA}, {sA}, {sW}")
        a(f"s_cmp_lg_u32 {sA}, {self.opt.get('profw', 0)}")
        a("s_cbranch_scc1 L_nodbgst")
        a("s_load_dwordx2 s[52:53], s[0:1], 88")
        a("s_waitcnt lgkmcnt(0)")
        a("s_mov_b32 s54, 256")
        a("s_mov_b32 s55, 0x20000")
        a("buffer_store_dword v0, v3, s[52:55], 0 offen")
        a.label("L_nodbgst")
        a("s_mov_b64 exec, -1")
        a("s_waitcnt vmcnt(0)")

    def prologue(self):
        a = self.a
        a(f"s_cmp_ge_u32 {sID}, 256")
        a("s_cbranch_scc1 L_end")
        if self.prof:
            a("s_memtime s[100:101]")
            a("s_memrealtime s[6:7]")
        a("s_load_dwordx16 s[64:79], s[0:1], 0")
        a("s_load_dwordx8 s[80:87], s[0:1], 64")
        a("s_load_dwordx2 s[88:89], s[0:1], 96")
        a(f"s_and_b32 {sA}, {sID}, 7")
        a(f"s_lshr_b32 {sB}, {sID}, 6")
        a(f"s_lshl_b32 {sB}, {sB}, 3")
        a(f"s_add_u32 {sC}, {sA}, {sB}")
        a(f"s_lshr_b32 {sM}, {sID}, 3")
        a(f"s_and_b32 {sM}, {sM}, 7")
        a(f"s_lshl_b32 {sT0}, {sC}, 6")
        a(f"s_getreg_b32 {sXCC}, hwreg(HW_REG_XCC_ID)")
        a(f"s_and_b32 {sXCC}, {sXCC}, 7")
        a("v_lshrrev_b32 v3, 6, v0")
        a("v_and_b32 v1, 63, v0")
        a(f"v_readfirstlane_b32 {sW}, v3")
        a("v_lshlrev_b32 v2, 4, v1")
        a(f"s_lshr_b32 {sFT}, {sW}, 2")
        a(f"s_lshr_b32 {sTT}, {sW}, 1")
        a(f"s_and_b32 {sTT}, {sTT}, 1")
        a(f"s_and_b32 {sKH}, {sW}, 1")
        a("s_waitcnt lgkmcnt(0)")
        if self.prof:
            a("v_mov_b32 v0, 0")
            a("s_mov_b32 s101, s6")
        self.stamp("args")
        def mk(b, lo, size):
            a(f"s_mov_b32 s{b}, s{lo}")
            a(f"s_mov_b32 s{b+1}, s{lo+1}")
            a(f"s_mov_b32 s{b+2}, 0x{size:x}")
            a(f"s_mov_b32 s{b+3}, 0x20000")
        mk(SRD_X, 64, 0x200000)
        mk(SRD_WS, 88, WS_SIZE)
        a(f"s_load_dword {sTag}, s[88:89], {WS_EPOCH}")
        mk(SRD_WK, 68, 0x4000)
        mk(SRD_WV, 70, 0x4000)
        mk(SRD_WQ, 66, 0x80000)
        self.mk = mk

    def rest_srds(self):
        mk = self.mk
        mk(SRD_WO, 72, 0x80000)
        mk(SRD_W1, 76, 0x1C0000)
        mk(SRD_B1, 78, 3584)
        mk(SRD_W2, 80, 0x1C0000)
        mk(SRD_B2, 82, 1024)
        mk(SRD_OUT, 84, 0x200000)

    def dma(self, voff, srdb, soff, m0, tag, extra=""):
        a = self.a
        a(f"s_mov_b32 m0, {m0}")
        a.vmem(f"buffer_load_dwordx4 {voff}, {srd(srdb)}, {soff} offen {extra} lds", tag)

    def p1(self):
        a = self.a
        ROW = 4
        vXa, vXb, vKVo, vWAo = "v16", "v17", "v18", "v19"
        LDS_SCR = 64 * 1024
        LDS_WA = 66 * 1024
        LDS_WK = 128 * 1024
        LDS_WV = 144 * 1024
        a(f"s_lshl_b32 {sA}, {sM}, 3")
        a(f"s_add_u32 {sA}, {sA}, {sT0}")
        a(f"s_add_u32 {sB}, {sA}, {sW}")
        a(f"s_lshl_b32 {sB}, {sB}, 10")
        a.vmem(f"buffer_load_dwordx4 {vr(ROW,4)}, v2, {srd(SRD_X)}, {sB} offen", "row")
        a("v_lshrrev_b32 v8, 3, v1")
        a("v_and_b32 v9, 7, v1")
        a("v_lshrrev_b32 v10, 1, v8")
        a("v_xor_b32 v10, v10, v9")
        a(f"s_and_b32 {sB}, {sM}, 1")
        a(f"s_lshl_b32 {sB}, {sB}, 2")
        a(f"v_xor_b32 v10, {sB}, v10")
        a("v_lshlrev_b32 v10, 4, v10")
        a(f"v_lshl_add_u32 {vXa}, v8, 10, v10")
        a(f"v_xor_b32 {vXb}, 64, {vXa}")
        def xa_dma(gs, voff, tag):
            a(f"s_lshl_b32 {sD}, {gs}, 3")
            a(f"s_add_u32 {sD}, {sD}, {sT0}")
            a(f"s_lshl_b32 {sD}, {sD}, 10")
            a(f"s_lshl_b32 {sE_}, {sW}, 7")
            a(f"s_add_u32 {sD}, {sD}, {sE_}")
            a(f"s_lshl_b32 {sE_}, {sW}, 13")
            a(f"s_lshl_b32 {sF}, {gs}, 10")
            a(f"s_add_u32 {sE_}, {sE_}, {sF}")
            self.dma(voff, SRD_X, sD, sE_, tag)
        xa_dma(sM, vXa, "kv0")
        a("v_lshrrev_b32 v8, 1, v1")
        a("v_and_b32 v9, 0x13, v8")
        a("v_bfe_u32 v10, v8, 2, 1")
        a("v_lshl_or_b32 v9, v10, 3, v9")
        a("v_bfe_u32 v10, v8, 3, 1")
        a("v_lshl_or_b32 v9, v10, 2, v9")
        a("v_lshlrev_b32 v9, 5, v9")
        a("v_and_b32 v10, 1, v1")
        a(f"v_lshl_or_b32 {vKVo}, v10, 4, v9")
        a(f"s_lshl_b32 {sD}, {sW}, 11")
        a(f"s_add_u32 {sE_}, {sD}, {LDS_WK}")
        self.dma(vKVo, SRD_WK, sD, sE_, "kv0")
        a(f"s_add_u32 {sE_}, {sD}, {LDS_WV}")
        self.dma(vKVo, SRD_WV, sD, sE_, "kv0")
        a(f"s_add_u32 {sD}, {sD}, 1024")
        a(f"s_add_u32 {sE_}, {sD}, {LDS_WK}")
        self.dma(vKVo, SRD_WK, sD, sE_, "kv0")
        a(f"s_add_u32 {sE_}, {sD}, {LDS_WV}")
        self.dma(vKVo, SRD_WV, sD, sE_, "kv0")
        for i in range(1, 8):
            a(f"s_add_u32 {sB}, {sM}, {i}")
            a(f"s_and_b32 {sB}, {sB}, 7")
            xa_dma(sB, vXa if i % 2 == 0 else vXb, "xa")
        a("v_lshrrev_b32 v8, 3, v1")
        a("v_and_b32 v9, 7, v1")
        a("v_bfe_u32 v10, v1, 4, 1")
        a("v_lshlrev_b32 v10, 2, v10")
        a("v_xor_b32 v9, v9, v10")
        a("v_lshlrev_b32 v9, 4, v9")
        a(f"v_lshl_add_u32 {vWAo}, v8, 10, v9")
        a(f"s_lshl_b32 {sD}, {sW}, 13")
        a(f"s_lshl_b32 {sE_}, {sM}, 7")
        a(f"s_add_u32 {sD}, {sD}, {sE_}")
        a(f"s_lshl_b32 {sE_}, {sW}, 10")
        a(f"s_add_u32 {sE_}, {sE_}, {LDS_WA}")
        for c in range(7):
            self.dma(vWAo, SRD_WQ, sD, sE_, "wa")
            a(f"s_add_u32 {sD}, {sD}, {64*1024}")
            a(f"s_add_u32 {sE_}, {sE_}, 8192")
        a(f"s_cmp_ge_u32 {sW}, 6")
        a("s_cbranch_scc1 L_skip_c7")
        a(f"s_mov_b32 m0, {sE_}")
        a(f"buffer_load_dwordx4 {vWAo}, {srd(SRD_WQ)}, {sD} offen lds")
        a.label("L_skip_c7")
        self.rest_srds()
        XF, WF = 64, 128
        a(f"s_cmp_ge_u32 {sW}, 2")
        a("s_cbranch_scc1 L_no_ones")
        for i in range(64):
            a(f"v_mov_b32 v{XF+i}, 0x3f803f80" if i == 0 else f"v_mov_b32 v{XF+i}, v{XF}")
        a.label("L_no_ones")
        a("s_waitcnt vmcnt(19)")
        a("s_mov_b32 s3, 0x3f803f80")
        a(f"v_dot2_f32_bf16 v8, v{ROW}, s3, 0")
        a(f"v_dot2_f32_bf16 v9, v{ROW}, v{ROW}, 0")
        for i in range(1, 4):
            a(f"v_dot2_f32_bf16 v8, v{ROW+i}, s3, v8")
            a(f"v_dot2_f32_bf16 v9, v{ROW+i}, v{ROW+i}, v9")
        self.wave_reduce(["v8", "v9"], "add", ["v10", "v11"])
        a(f"v_mul_f32 v8, 0x{f32bits(1/512):x}, v8")
        a(f"v_mul_f32 v9, 0x{f32bits(1/512):x}, v9")
        a("v_fma_f32 v9, -v8, v8, v9")
        a("v_max_f32 v9, 0, v9")
        a(f"v_add_f32 v9, 0x{f32bits(1e-5):x}, v9")
        a("v_rsq_f32 v9, v9")
        a(f"s_lshl_b32 {sA}, {sW}, 3")
        a(f"s_add_u32 {sA}, {sA}, {LDS_SCR}")
        a(f"v_mov_b32 v10, {sA}")
        a("s_mov_b64 exec, 1")
        a("ds_write_b64 v10, v[8:9]")
        a("s_mov_b64 exec, -1")
        a("s_waitcnt vmcnt(14) lgkmcnt(0)")
        a("s_barrier")
        self.stamp("b1")
        a(f"s_cmp_ge_u32 {sW}, 2")
        a("s_cbranch_scc1 L_kv_done")
        a("v_and_b32 v8, 7, v1")
        a(f"s_lshl_b32 {sA}, {sM}, 3")
        a(f"v_add_u32 v8, {sA}, v8")
        a("v_bfe_u32 v9, v8, 1, 3")
        a("v_lshrrev_b32 v10, 4, v1")
        a("v_xor_b32 v9, v9, v10")
        a("v_lshlrev_b32 v9, 4, v9")
        a("v_lshl_add_u32 v20, v8, 7, v9")
        a("v_xor_b32 v21, 64, v20")
        a("v_bfe_u32 v8, v1, 4, 1")
        a("v_bfe_u32 v9, v1, 2, 2")
        a("v_lshl_add_u32 v8, v8, 2, v9")
        a("v_lshlrev_b32 v8, 5, v8")
        a("v_lshrrev_b32 v9, 5, v1")
        a("v_lshl_add_u32 v8, v9, 9, v8")
        a("v_and_b32 v9, 3, v1")
        a("v_lshl_add_u32 v8, v9, 3, v8")
        a(f"s_lshl_b32 {sA}, {sW}, 14")
        a(f"s_add_u32 {sA}, {sA}, {LDS_WK}")
        a(f"v_add_u32 v22, {sA}, v8")
        a("s_mov_b32 exec_lo, 0x00ff00ff")
        a("s_mov_b32 exec_hi, 0x00ff00ff")
        for s in range(16):
            a.ds(f"ds_read_b128 {vr(XF+4*s,4)}, {'v20' if s%2==0 else 'v21'} offset:{(s>>1)*8192}", f"x{s}")
        a("s_mov_b64 exec, -1")
        D = 24
        a(f"s_cmp_eq_u32 {sW}, 1")
        a("s_cbranch_scc1 L_vwave")
        saved_lg = list(a.lg)
        for wave in ("K", "V"):
            a.lg = list(saved_lg)
            if wave == "V": a.label("L_vwave")
            def wread(s):
                a.ds(f"ds_read_b64_tr_b16 {vr(WF+4*s,2)}, v22 offset:{s*1024}", f"w{s}")
                a.ds(f"ds_read_b64_tr_b16 {vr(WF+4*s+2,2)}, v22 offset:{s*1024+256}", f"w{s}")
            for s in range(4): wread(s)
            for s in range(16):
                a.wait_lg(f"w{s}")
                srcC = "0" if s == 0 else vr(D, 4)
                if wave == "K":
                    a(f"v_mfma_f32_16x16x32_bf16 {vr(D,4)}, {vr(WF+4*s,4)}, {vr(XF+4*s,4)}, {srcC}")
                else:
                    a(f"v_mfma_f32_16x16x32_bf16 {vr(D,4)}, {vr(XF+4*s,4)}, {vr(WF+4*s,4)}, {srcC}")
                if s + 4 < 16: wread(s + 4)
            a(f"s_lshl_b32 {sA}, {sC}, 3")
            a(f"s_add_u32 {sA}, {sA}, {sM}")
            a(f"s_lshl_b32 {sB}, {sA}, 10")
            a(f"s_add_u32 {sB}, {sB}, {WS_KV}")
            if wave == "K":
                a("v_and_b32 v8, 7, v1")
                a("v_lshlrev_b32 v8, 3, v8")
                a(f"v_add_u32 v8, {LDS_SCR}, v8")
                a.ds("ds_read_b64 v[10:11], v8", "st")
                for r in range(4):
                    a(f"v_mov_b32_dpp v{28+r}, v{D+r} row_ror:8 row_mask:0xf bank_mask:0xf")
                a.wait_lg("st")
                for r in range(4):
                    a(f"v_fma_f32 v{D+r}, -v10, v{28+r}, v{D+r}")
                for r in range(4):
                    a(f"v_mul_f32 v{D+r}, v11, v{D+r}")
                a(f"v_cvt_pk_bf16_f32 v32, v{D}, v{D+1}")
                a(f"v_cvt_pk_bf16_f32 v33, v{D+2}, v{D+3}")
                a("v_mov_b32 v34, v32")
                a("v_mov_b32 v35, v33")
                a("v_permlane32_swap_b32 v32, v34")
                a("v_permlane32_swap_b32 v33, v35")
                a("v_bfe_u32 v8, v1, 4, 1")
                a("v_and_b32 v9, 7, v1")
                a("v_lshlrev_b32 v9, 4, v9")
                a("v_lshl_add_u32 v8, v8, 7, v9")
                a("s_mov_b32 exec_lo, 0x00ff00ff")
                a("s_mov_b32 exec_hi, 0")
                a(f"buffer_store_dwordx4 v[32:35], v8, {srd(SRD_WS)}, {sB} offen sc1")
                a("s_mov_b64 exec, -1")
                a("v_dot2_f32_bf16 v12, v32, v32, 0")
                for i in (33, 34, 35):
                    a(f"v_dot2_f32_bf16 v12, v{i}, v{i}, v12")
                a("v_mov_b32 v13, v12")
                a("v_permlane16_swap_b32 v12, v13")
                a("v_add_f32 v12, v12, v13")
                a("v_and_b32 v13, 8, v1")
                a("v_cmp_eq_u32 vcc, 0, v13")
                a("v_cndmask_b32 v12, 0, v12, vcc")
                for n in (8, 4, 2, 1):
                    a(f"v_max_f32_dpp v12, v12, v12 row_ror:{n} row_mask:0xf bank_mask:0xf")
                a(f"v_readlane_b32 {sD}, v12, 0")
                a(f"s_add_u32 {sD}, {sD}, 8")
                a(f"s_and_b32 {sD}, {sD}, 0xfffffff8")
                a(f"s_or_b32 {sD}, {sD}, {sXCC}")
                a(f"s_mov_b32 s3, {sD}")
                a(f"s_mov_b32 {sG}, {sA}")
                a("s_branch L_kv_done")
            else:
                a("v_bfe_u32 v8, v1, 4, 1")
                a("v_lshlrev_b32 v8, 5, v8")
                a(f"v_add_u32 v8, {LDS_SCR}, v8")
                a.ds("ds_read_b128 v[12:15], v8", "st")
                a.ds("ds_read_b128 v[36:39], v8 offset:16", "st")
                a("v_and_b32 v9, 7, v1")
                a("v_lshlrev_b32 v9, 3, v9")
                a(f"v_add_u32 v40, {LDS_SCR}, v9")
                a.ds("ds_read_b64 v[42:43], v40", "st")
                a(f"v_mov_b32 v28, v{D}")
                a(f"v_mov_b32 v29, v{D}")
                a("v_permlane32_swap_b32 v28, v29")
                a.wait_lg("st")
                st = [(12, 13), (14, 15), (36, 37), (38, 39)]
                for r in range(4):
                    a(f"v_fma_f32 v{D+r}, -v{st[r][0]}, v29, v{D+r}")
                for r in range(4):
                    a(f"v_mul_f32 v{D+r}, v{st[r][1]}, v{D+r}")
                a(f"v_cvt_pk_bf16_f32 v32, v{D}, v{D+1}")
                a(f"v_cvt_pk_bf16_f32 v33, v{D+2}, v{D+3}")
                a("v_mov_b32 v34, v32")
                a("v_mov_b32 v35, v33")
                a("v_permlane16_swap_b32 v32, v34")
                a("v_permlane16_swap_b32 v33, v35")
                a("v_add_u32 v8, 256, v2")
                a("s_mov_b64 exec, 0xffff")
                a(f"buffer_store_dwordx4 v[32:35], v8, {srd(SRD_WS)}, {sB} offen sc1")
                a("s_mov_b64 exec, 0xff")
                a("v_add_u32 v9, 512, v9")
                a(f"buffer_store_dwordx2 v[42:43], v9, {srd(SRD_WS)}, {sB} offen sc1")
                a("s_mov_b64 exec, -1")
                a(f"s_mov_b32 {sG}, {sA}")
        a.lg = []
        a.label("L_kv_done")
        a(f"s_cmp_ge_u32 {sW}, 2")
        a("s_cbranch_scc1 L_b2_w")
        a("s_waitcnt vmcnt(2) lgkmcnt(0)")
        a(f"s_cmp_eq_u32 {sW}, 1")
        a("s_cbranch_scc1 L_b2")
        a("s_waitcnt vmcnt(1)")
        a("s_branch L_b2")
        a.label("L_b2_w")
        a("s_waitcnt vmcnt(0)")
        a.label("L_b2")
        a("s_barrier")
        self.stamp("b2")
        a.vm = []
        a(f"s_cmp_eq_u32 {sKH}, 0")
        a("s_cbranch_scc1 L_nodelay")
        a(f"s_lshl_b32 {sE_}, {sM}, 7")
        a(f"s_add_u32 {sD}, {sE_}, {496*1024}")
        a(f"s_mov_b32 m0, {LDS_WA + 7*8192 + 6*1024}")
        a(f"buffer_load_dwordx4 {vWAo}, {srd(SRD_WQ)}, {sD} offen lds")
        a(f"s_add_u32 {sD}, {sE_}, {504*1024}")
        a(f"s_mov_b32 m0, {LDS_WA + 7*8192 + 7*1024}")
        a(f"buffer_load_dwordx4 {vWAo}, {srd(SRD_WQ)}, {sD} offen lds")
        a.label("L_nodelay")
        AF, BF, ACC, CS = 64, 128, 32, 48
        vAe, vAo = "v20", "v21"
        vB = ["v22", "v23", "v24", "v25"]
        a("v_bfe_u32 v8, v1, 2, 2")
        a("v_lshrrev_b32 v9, 5, v1")
        a("v_lshl_add_u32 v9, v9, 3, v8")
        a("v_lshlrev_b32 v9, 7, v9")
        a("v_bfe_u32 v10, v1, 4, 1")
        a(f"v_xor_b32 v10, {sKH}, v10")
        a("v_lshlrev_b32 v10, 5, v10")
        a("v_and_b32 v11, 3, v1")
        a("v_lshl_add_u32 v10, v11, 3, v10")
        a(f"s_lshl_b32 {sA}, {sFT}, 6")
        a(f"v_add_u32 v10, {sA}, v10")
        a("v_bfe_u32 v11, v1, 3, 1")
        a("v_lshlrev_b32 v11, 6, v11")
        a("v_xor_b32 v10, v10, v11")
        a("v_add_u32 v9, v9, v10")
        a(f"s_lshl_b32 {sA}, {sKH}, 15")
        a(f"s_add_u32 {sA}, {sA}, {LDS_WA}")
        a(f"s_lshl_b32 {sB}, {sTT}, 11")
        a(f"s_add_u32 {sD}, {sA}, {sB}")
        a(f"v_add_u32 {vAe}, {sD}, v9")
        a(f"s_sub_u32 {sD}, {sA}, {sB}")
        a(f"v_add_u32 {vAo}, {sD}, v9")
        a("v_and_b32 v8, 31, v1")
        a("v_bfe_u32 v9, v1, 1, 3")
        a("v_lshrrev_b32 v10, 5, v1")
        a("v_xor_b32 v9, v9, v10")
        a("v_lshlrev_b32 v9, 4, v9")
        a("v_lshl_add_u32 v8, v8, 7, v9")
        a(f"s_lshl_b32 {sA}, {sKH}, 15")
        a(f"s_lshl_b32 {sB}, {sTT}, 12")
        a(f"s_add_u32 {sA}, {sA}, {sB}")
        a(f"v_add_u32 v8, {sA}, v8")
        a(f"s_lshl_b32 {sB}, {sTT}, 5")
        a(f"v_xor_b32 {vB[0]}, {sB}, v8")
        a(f"v_xor_b32 {vB[1]}, 32, {vB[0]}")
        a(f"v_xor_b32 {vB[2]}, 64, {vB[0]}")
        a(f"v_xor_b32 {vB[3]}, 96, {vB[0]}")
        a("s_mov_b32 s5, 0x3f803f80")
        NB = 5
        def qread(p):
            c, q = p >> 2, p & 3
            sl = p % NB
            va = vAe if q % 2 == 0 else vAo
            off = c * 8192 + q * 2048
            a.ds(f"ds_read_b64_tr_b16 {vr(AF+4*sl,2)}, {va} offset:{off}", f"q{p}")
            a.ds(f"ds_read_b64_tr_b16 {vr(AF+4*sl+2,2)}, {va} offset:{off+512}", f"q{p}")
            a.ds(f"ds_read_b128 {vr(BF+4*sl,4)}, {vB[q]} offset:{c*8192}", f"q{p}")
        PRE = 4
        for p in range(PRE): qread(p)
        for p in range(16):
            sl = p % NB
            a.wait_lg(f"q{p}")
            srcC = "0" if p == 0 else vr(ACC, 16)
            a(f"v_mfma_f32_32x32x16_bf16 {vr(ACC,16)}, {vr(AF+4*sl,4)}, {vr(BF+4*sl,4)}, {srcC}")
            if p % 2 == 0:
                for i in range(4):
                    src2 = "0" if (p == 0 and i == 0) else f"v{CS}"
                    a(f"v_dot2_f32_bf16 v{CS}, v{AF+4*sl+i}, s5, {src2}")
            nx = p + PRE
            if nx == 14:
                a("s_waitcnt vmcnt(0)")
                self.kv_flag()
            if nx < 16: qread(nx)
        LDS_E = 132 * 1024
        LDS_CS = 148 * 1024
        a(f"s_lshl_b32 {sA}, {sW}, 11")
        a(f"s_add_u32 {sA}, {sA}, {LDS_E}")
        a(f"v_add_u32 v8, {sA}, v2")
        a(f"ds_write_b128 v8, {vr(ACC+8,4)}")
        a(f"ds_write_b128 v8, {vr(ACC+12,4)} offset:1024")
        a(f"v_mov_b32 v9, v{CS}")
        a(f"v_permlane32_swap_b32 v{CS}, v9")
        a(f"v_add_f32 v9, v{CS}, v9")
        a("v_and_b32 v10, 31, v1")
        a(f"s_lshl_b32 {sA}, {sKH}, 4")
        a(f"v_xor_b32 v10, {sA}, v10")
        a(f"s_lshl_b32 {sA}, {sKH}, 1")
        a(f"s_add_u32 {sA}, {sA}, {sTT}")
        a(f"s_lshl_b32 {sA}, {sA}, 1")
        a(f"s_add_u32 {sA}, {sA}, {sFT}")
        a(f"s_lshl_b32 {sA}, {sA}, 7")
        a(f"s_add_u32 {sA}, {sA}, {LDS_CS}")
        a("v_lshlrev_b32 v10, 2, v10")
        a(f"v_add_u32 v10, {sA}, v10")
        a("ds_write_b32 v10, v9")
        a("s_waitcnt lgkmcnt(0)")
        a("s_barrier")
        a.lg = []
        a(f"s_xor_b32 {sA}, {sW}, 1")
        a(f"s_lshl_b32 {sA}, {sA}, 11")
        a(f"s_add_u32 {sA}, {sA}, {LDS_E}")
        a(f"v_add_u32 v8, {sA}, v2")
        a.ds(f"ds_read_b128 {vr(64,4)}, v8", "e")
        a.ds(f"ds_read_b128 {vr(68,4)}, v8 offset:1024", "e")
        a("v_lshrrev_b32 v9, 5, v1")
        a("v_lshlrev_b32 v9, 4, v9")
        a(f"s_lshl_b32 {sA}, {sFT}, 7")
        a(f"s_lshl_b32 {sB}, {sKH}, 6")
        a(f"s_add_u32 {sA}, {sA}, {sB}")
        a(f"s_add_u32 {sA}, {sA}, {LDS_CS}")
        a(f"v_add_u32 v9, {sA}, v9")
        for q in range(4):
            a.ds(f"ds_read_b128 {vr(72+8*q,4)}, v9 offset:{q*256}", "cs")
            a.ds(f"ds_read_b128 {vr(76+8*q,4)}, v9 offset:{q*256+32}", "cs")
        a.wait_lg("e")
        for i in range(8):
            a(f"v_add_f32 v{ACC+i}, v{ACC+i}, v{64+i}")
        a.wait_lg("cs")
        for i in range(8):
            a(f"v_add_f32 v{72+i}, v{72+i}, v{80+i}")
            a(f"v_add_f32 v{88+i}, v{88+i}, v{96+i}")
        for i in range(8):
            a(f"v_add_f32 v{40+i}, v{72+i}, v{88+i}")


    def poll_begin(self, name, limit=200000):
        a = self.a
        a(f"s_mov_b32 {sCnt}, {limit}")
        a.label(f"L_poll_{name}")
    def poll_end(self, name, sleep=1):
        a = self.a
        a(f"s_cbranch_vccz L_pollok_{name}")
        a(f"s_sub_u32 {sCnt}, {sCnt}, 1")
        a(f"s_cmp_eq_u32 {sCnt}, 0")
        a(f"s_cbranch_scc1 L_pollok_{name}")
        if sleep: a(f"s_sleep {sleep}")
        a(f"s_branch L_poll_{name}")
        a.label(f"L_pollok_{name}")

    def p2(self):
        a = self.a
        X = self.opt
        LDS_E = 132 * 1024
        Q, NEGM, S0, S1, IDX, O, KF, VF = 4, 8, 24, 40, 56, 64, 80, 88
        vKa, vVa, vKb, vVb = "v104", "v105", "v106", "v107"
        vT1, vT2 = "v108", "v109"
        PL = 110
        WD = 112
        W1 = 128
        sTG = "s3"
        a(f"s_add_u32 {sTG}, {sTag}, 1")
        self.stamp("b3")
        if X.get("kvsleep", 0):
            a(f"s_sleep {X['kvsleep']}")
        a("v_lshlrev_b32 v3, 6, v1")
        a(f"s_mov_b32 {sA}, {WS_FLKV}")
        self.poll_begin("kv")
        for q in range(4):
            a(f"buffer_load_dwordx4 {vr(64+4*q,4)}, v3, {srd(SRD_WS)}, {sA} offen offset:{16*q} sc1")
        a("s_waitcnt vmcnt(0)")
        a(f"v_xor_b32 v80, {sTG}, v64")
        a(f"v_xor_b32 v81, {sTG}, v66")
        a("v_or_b32 v80, v80, v81")
        for q in range(1, 4):
            a(f"v_xor_b32 v81, {sTG}, v{64+4*q}")
            a("v_or_b32 v80, v80, v81")
            a(f"v_xor_b32 v81, {sTG}, v{66+4*q}")
            a("v_or_b32 v80, v80, v81")
        a("v_cmp_ne_u32 vcc, 0, v80")
        self.poll_end("kv", sleep=2)
        self.stamp("kvok")
        a("v_bfe_u32 v8, v1, 3, 2")
        a("v_and_b32 v9, 7, v1")
        a("v_lshlrev_b32 v9, 3, v9")
        a("v_lshl_add_u32 v8, v8, 10, v9")
        a(f"s_lshl_b32 {sA}, {sC}, 3")
        a(f"s_lshl_b32 {sB}, {sTT}, 2")
        a(f"s_add_u32 {sA}, {sA}, {sB}")
        a(f"s_lshl_b32 {sA}, {sA}, 10")
        a(f"s_add_u32 {sA}, {sA}, {WS_KV + 512}")
        a(f"buffer_load_dwordx2 v[10:11], v8, {srd(SRD_WS)}, {sA} offen sc1")
        vDK, vDV = "v59", "v60"
        a("v_bfe_u32 v59, v1, 3, 2")
        a("v_lshlrev_b32 v59, 10, v59")
        a("v_and_b32 v13, 7, v1")
        a("v_lshl_or_b32 v59, v13, 4, v59")
        a("v_lshrrev_b32 v13, 5, v1")
        a("v_lshl_or_b32 v59, v13, 7, v59")
        a("v_lshrrev_b32 v60, 4, v1")
        a("v_lshlrev_b32 v60, 10, v60")
        a("v_and_b32 v13, 15, v1")
        a("v_lshl_or_b32 v60, v13, 4, v60")
        a("v_add_u32 v60, 256, v60")
        sRot = "s64"
        a(f"s_lshr_b32 {sRot}, {sID}, 3")
        a(f"s_lshl_b32 {sRot}, {sRot}, 1")
        def kv_tile(spos):
            a(f"s_add_u32 {sD}, {spos}, {sRot}")
            a(f"s_and_b32 {sD}, {sD}, 63")
            a(f"s_lshl_b32 {sD}, {sD}, 12")
            a(f"s_add_u32 {sD}, {sD}, {WS_KV}")
            a(f"s_lshl_b32 {sE_}, {spos}, 11")
            a(f"s_mov_b32 m0, {sE_}")
            a(f"buffer_load_dwordx4 {vDK}, {srd(SRD_WS)}, {sD} offen sc1 lds")
            a(f"s_add_u32 {sE_}, {sE_}, 1024")
            a(f"s_mov_b32 m0, {sE_}")
            a(f"buffer_load_dwordx4 {vDV}, {srd(SRD_WS)}, {sD} offen sc1 lds")
        a(f"s_mov_b32 {sF}, {sW}")
        kv_tile(sF)
        a(f"s_add_u32 {sF}, {sW}, 8")
        kv_tile(sF)
        self.wt_issue()
        a("v_and_b32 v80, -8, v65")
        for q in range(1, 4):
            a(f"v_and_b32 v81, -8, v{65+4*q}")
            a("v_max_f32 v80, v80, v81")
        a(f"v_xor_b32 v82, {sXCC}, v65")
        for q in range(1, 4):
            a(f"v_xor_b32 v81, {sXCC}, v{65+4*q}")
            a("v_or_b32 v82, v82, v81")
        a("v_and_b32 v82, 7, v82")
        a("v_cmp_ne_u32 vcc, 0, v82")
        a(f"s_lshl_b32 {sA}, {sC}, 1")
        a(f"s_lshr_b64 {sX64}, vcc, {sA}")
        a(f"s_and_b32 {sFast}, s4, 3")
        if X.get("slow"): a(f"s_mov_b32 {sFast}, 1")
        self.wave_reduce(["v80"], "max", ["v81"])
        a("v_sqrt_f32 v80, v80")
        a(f"s_or_b32 {sA}, {sID}, {sW}")
        a(f"s_cmp_lg_u32 {sA}, 0")
        a("s_cbranch_scc1 L_noepoch")
        a(f"v_mov_b32 v81, {sTG}")
        a("v_mov_b32 v82, 0")
        a("s_mov_b64 exec, 1")
        a(f"buffer_store_dword v81, v82, {srd(SRD_WS)}, 0 offen")
        a("s_mov_b64 exec, -1")
        a.label("L_noepoch")
        a("s_waitcnt vmcnt(6)")
        a(f"v_mul_f32 v11, 0x{f32bits(0.25*LOG2E):x}, v11")
        for i in range(8):
            a(f"v_fma_f32 v{32+i}, -v10, v{40+i}, v{32+i}")
        for i in range(8):
            a(f"v_mul_f32 v{32+i}, v11, v{32+i}")
        for i in range(4):
            a(f"v_cvt_pk_bf16_f32 v{Q+i}, v{32+2*i}, v{33+2*i}")
        if self.stop == "q":
            self.dump_regs(0, [Q, Q+1, Q+2, Q+3], WS_DBG)
            return
        a(f"v_dot2_f32_bf16 v12, v{Q}, v{Q}, 0")
        for i in range(1, 4):
            a(f"v_dot2_f32_bf16 v12, v{Q+i}, v{Q+i}, v12")
        a("v_mov_b32 v13, v12")
        a("v_permlane32_swap_b32 v12, v13")
        a("v_add_f32 v12, v12, v13")
        a("v_sqrt_f32 v12, v12")
        a("v_mul_f32 v12, v12, v80")
        a(f"v_mul_f32 v12, 0x{f32bits(1.0078125):x}, v12")
        a(f"v_cmp_lt_f32 vcc, 0x{f32bits(48.0):x}, v12")
        a("v_cmp_u_f32 s[4:5], v12, v12")
        a("s_or_b64 vcc, vcc, s[4:5]")
        a("s_cmp_lg_u64 vcc, 0")
        a(f"s_cselect_b32 {sG}, 1, 0")
        if X.get("forcefb"): a(f"s_mov_b32 {sG}, 1")
        a(f"v_mov_b32 v{VF}, 0x3f803f80")
        for i in range(1, 16):
            a(f"v_mov_b32 v{VF+i}, v{VF}")
        for i in range(16):
            a(f"v_mov_b32 v{O+i}, 0")
        a(f"v_mov_b32 v{IDX}, 0xdddddddd")
        a(f"v_mov_b32 {vKa}, v2")
        a(f"v_add_u32 {vKb}, 0x10000, v2")
        a("v_and_b32 v3, 15, v1")
        a("v_lshlrev_b32 v3, 4, v3")
        a("v_lshrrev_b32 v61, 5, v1")
        a("v_lshl_or_b32 v3, v61, 8, v3")
        a(f"v_add_u32 {vVa}, 1024, v3")
        a(f"v_add_u32 {vVb}, 0x10000, {vVa}")
        self.wt_addr(vT1, vT2)
        self.wt_poll_addr()
        a("s_mov_b32 s6, 0x0000ffff")
        a("s_mov_b32 s7, 0x0000ffff")
        a("s_waitcnt vmcnt(2)")
        a("s_barrier")
        self.stamp("b4")
        a(f"s_cmp_eq_u32 {sFT}, 0")
        a("s_cbranch_scc1 L_clsA")
        a(f"s_add_u32 {sF}, {sW}, 12")
        a(f"s_mov_b32 {sCnt}, 12")
        a.label("L_kvrest")
        kv_tile(sF)
        a(f"s_add_u32 {sF}, {sF}, 4")
        a(f"s_sub_u32 {sCnt}, {sCnt}, 1")
        a(f"s_cmp_lg_u32 {sCnt}, 0")
        a("s_cbranch_scc1 L_kvrest")
        a("s_setprio 1")
        a("s_waitcnt vmcnt(0)")
        a("s_barrier")
        a(f"s_mov_b32 {sPh}, 1")
        a("s_branch L_clsD")
        a.label("L_clsA")
        a("s_setprio 2")
        a(f"s_mov_b32 {sPh}, 0")
        a.label("L_clsD")

        def kread(t):
            base = vKa if t < 32 else vKb
            a.ds(f"ds_read_b128 {vr(KF+4*(t%2),4)}, {base} offset:{(t%32)*2048}", f"K{t}")
        def vread(t):
            base = vVa if t < 32 else vVb
            a("s_mov_b64 exec, s[6:7]")
            a.ds(f"ds_read_b128 {vr(VF+8*(t%2),4)}, {base} offset:{(t%32)*2048}", f"V{t}")
            a.ds(f"ds_read_b128 {vr(VF+8*(t%2)+4,4)}, {base} offset:{(t%32)*2048+512}", f"V{t}")
            a("s_mov_b64 exec, -1")
        def Sr(t): return S0 if t % 2 == 0 else S1
        def ms(t):
            a.wait_lg(f"K{t}")
            a(f"v_mfma_f32_32x32x16_bf16 {vr(Sr(t),16)}, {vr(KF+4*(t%2),4)}, {vr(Q,4)}, 0")
        def sm(t, half):
            a.wait_lg(f"V{t}")
            a(f"v_smfmac_f32_32x32x32_bf16 {vr(O,16)}, {vr(VF+8*(t%2)+4*half,4)}, {vr(Sr(t)+8*half,8)}, v{IDX}")
        def E(t, lo, hi):
            for i in range(lo, hi + 1): a(f"v_exp_f32 v{Sr(t)+i}, v{Sr(t)+i}")

        TA = dict(wt=X.get("Awt", 10), fl=X.get("Afl", 17), bar=13, sw=X.get("sw", 50))
        TB = dict(wt=X.get("Bwt", 0), fl=X.get("Bfl", 2))
        TPOLL, TCHK, TLD0 = X.get("tpoll", 30), X.get("tchk", 32), X.get("tld", 32)
        def cond(cls, name, fn):
            lab = a.newlabel(f"L_{name}")
            a(f"s_cmp_eq_u32 {sFT}, {cls}")
            a(f"s_cbranch_scc0 {lab}")
            fn()
            a.label(lab)
        def b_wt():
            a("s_waitcnt vmcnt(0)")
            a(f"ds_read_b64_tr_b16 v[{WD}:{WD+1}], {vT1}")
            a(f"ds_read_b64_tr_b16 v[{WD+2}:{WD+3}], {vT1} offset:1024")
            a(f"ds_read_b64_tr_b16 v[{WD+4}:{WD+5}], {vT2}")
            a(f"ds_read_b64_tr_b16 v[{WD+6}:{WD+7}], {vT2} offset:1024")
            a("s_waitcnt lgkmcnt(0)")
            a(f"buffer_store_dwordx4 v[{WD}:{WD+3}], v2, {srd(SRD_WS)}, s88 offen sc1")
            a("s_add_u32 s88, s88, s89")
            a(f"buffer_store_dwordx4 v[{WD+4}:{WD+7}], v2, {srd(SRD_WS)}, s88 offen sc1")
        def b_fl():
            a("s_waitcnt vmcnt(0)")
            a(f"s_lshl_b32 {sA}, {sID}, 3")
            a(f"s_add_u32 {sA}, {sA}, {sW}")
            a(f"s_lshl_b32 {sA}, {sA}, 2")
            a(f"s_add_u32 {sA}, {sA}, {WS_FLWT2}")
            a(f"v_mov_b32 v{WD}, {sTG}")
            a(f"v_mov_b32 v{WD+1}, 0")
            a("s_mov_b64 exec, 1")
            a(f"buffer_store_dword v{WD}, v{WD+1}, {srd(SRD_WS)}, {sA} offen sc1")
            a("s_mov_b64 exec, -1")
        def b_bar():
            lab = a.newlabel("L_b5")
            a(f"s_cmp_eq_u32 {sPh}, 1")
            a(f"s_cbranch_scc1 {lab}")
            a("s_barrier")
            a.label(lab)
        def poll_issue():
            a(f"buffer_load_dword v{PL}, v57, {srd(SRD_WS)}, 0 offen sc1")
            a(f"buffer_load_dword v{PL+1}, v58, {srd(SRD_WS)}, 0 offen sc1")
        def poll_check():
            a("s_waitcnt vmcnt(0)")
            a(f"s_mov_b32 {sCnt}, 200000")
            a.label("L_wtchk")
            a(f"v_xor_b32 v{PL}, {sTG}, v{PL}")
            a(f"v_xor_b32 v{PL+1}, {sTG}, v{PL+1}")
            a(f"v_or_b32 v{PL}, v{PL}, v{PL+1}")
            a(f"v_cmp_ne_u32 vcc, 0, v{PL}")
            a("s_cbranch_vccz L_wtok")
            a(f"s_sub_u32 {sCnt}, {sCnt}, 1")
            a(f"s_cmp_eq_u32 {sCnt}, 0")
            a("s_cbranch_scc1 L_wtok")
            a("s_sleep 2")
            poll_issue()
            a("s_waitcnt vmcnt(0)")
            a("s_branch L_wtchk")
            a.label("L_wtok")
        extras = {t: [] for t in range(64)}
        mid = {t: [] for t in range(64)}
        extras[TA["wt"]].append(lambda: cond(0, "wtA", b_wt))
        extras[TB["wt"]].append(lambda: cond(1, "wtB", b_wt))
        extras[TA["fl"]].append(lambda: cond(0, "flA", b_fl))
        extras[TB["fl"]].append(lambda: cond(1, "flB", b_fl))
        extras[TA["bar"]].append(b_bar)
        extras[TA["sw"]].append(lambda: cond(0, "swA", lambda: a("s_setprio 0")))
        extras[TPOLL].append(poll_issue)
        extras[TCHK - 1].append(poll_check)
        def w1load(s_):
            def f():
                a(f"buffer_load_dwordx4 {vr(W1H[s_],4)}, v2, {srd(SRD_WS)}, {sW1B} offen offset:{(s_%4)*1024} sc1")
                if s_ % 4 == 3: a(f"s_add_u32 {sW1B}, {sW1B}, 4096")
            return f
        for s_ in range(NW1PRE):
            mid[TLD0 + s_ // 2].append(w1load(s_))
        def wo_addr():
            a(f"s_lshl_b32 {sA}, {sM}, 1")
            a(f"s_add_u32 {sA}, {sA}, {sFT}")
            a(f"s_lshl_b32 {sA}, {sA}, 5")
            a(f"s_lshl_b32 {sB}, {sKH}, 4")
            a(f"s_add_u32 {sA}, {sA}, {sB}")
            a(f"s_lshl_b32 {sA}, {sA}, 10")
            a(f"s_add_u32 {sWOB}, {sA}, {WS_WOF}")
            a(f"s_lshl_b32 {sB}, {sKH}, 8")
            a(f"v_xor_b32 v57, {sB}, v2")
        extras[TCHK].append(wo_addr)
        def woload(i):
            def f():
                a(f"buffer_load_dwordx4 {vr(WOH[i],4)}, v57, {srd(SRD_WS)}, {sWOB} offen offset:{(i%4)*1024} sc1")
                if i % 4 == 3 and i < 15: a(f"s_add_u32 {sWOB}, {sWOB}, 4096")
            return f
        TWO = TLD0 + NW1PRE // 2
        for i in range(16):
            mid[TWO + i // 2].append(woload(i))

        def pf_addr():
            a(f"s_lshl_b32 {sA}, {sM}, 1")
            a(f"s_add_u32 {sA}, {sA}, {sFT}")
            a(f"s_mul_i32 {sA}, {sA}, 112")
            a(f"s_and_b32 {sB}, {sW}, 3")
            a(f"s_mul_i32 {sB}, {sB}, 28")
            a(f"s_add_u32 {sA}, {sA}, {sB}")
            a(f"s_lshl_b32 {sA}, {sA}, 10")
            a(f"s_add_u32 {sPF}, {sA}, {WS_W2F}")
            a("v_lshlrev_b32 v58, 6, v1")
        def pf(i):
            def f():
                a(f"buffer_load_dword v59, v58, {srd(SRD_WS)}, {sPF} offen sc1")
                a(f"s_add_u32 {sPF}, {sPF}, 4096")
            return f
        def pf_w1():
            a(f"s_add_u32 {sPF}, {sW1B}, 2048")
            a(f"buffer_load_dword v59, v58, {srd(SRD_WS)}, {sPF} offen sc1")
            a(f"buffer_load_dword v59, v58, {srd(SRD_WS)}, {sPF} offen offset:2048 sc1")
        if X.get("pf"):
            TPF = TWO + 8
            extras[TPF - 1].append(pf_addr)
            for i in range(7): mid[TPF + i].append(pf(i))
            mid[TPF + 7].append(pf_w1)

        a.lg = []
        kread(0); kread(1); vread(0)
        ms(0)
        a("s_nop 11")
        for t in range(64):
            E(t, 0, 1)
            if t > 0: sm(t - 1, 1)
            if t + 1 < 64: vread(t + 1)
            E(t, 2, 5)
            if t + 1 < 64: ms(t + 1)
            if t + 2 < 64: kread(t + 2)
            if mid[t]: mid[t][0]()
            E(t, 6, 11)
            sm(t, 0)
            for f in mid[t][1:]: f()
            E(t, 12, 15)
            for f in extras[t]: f()
        a("s_nop 1")
        sm(63, 1)
        a("s_setprio 0")
        self.stamp("attn")
        a("s_nop 7")
        a("s_nop 3")
        a(f"v_rcp_f32 v3, v{O+8}")
        a(f"v_mul_f32 v80, 0, v{O}")
        a(f"v_mul_f32 v81, 0, v{O+1}")
        for i in range(2, 8, 2):
            a(f"v_fma_f32 v80, v{O+i}, 0, v80")
            a(f"v_fma_f32 v81, v{O+i+1}, 0, v81")
        a("v_add_f32 v80, v80, v81")
        a("v_cmp_u_f32 vcc, v80, v80")
        a("s_cmp_lg_u64 vcc, 0")
        a(f"s_cselect_b32 {sA}, 1, 0")
        a(f"s_or_b32 {sA}, {sA}, {sG}")
        a(f"s_cmp_eq_u32 {sA}, 0")
        a("s_cbranch_scc1 L_nofb")
        a(f"v_mov_b32 v57, {vKa}")
        a("v_mov_b32 v58, 0xff800000")
        a(f"s_mov_b32 {sCnt}, 64")
        a.label("L_fb")
        a(f"ds_read_b128 {vr(KF,4)}, v57")
        a("v_add_u32 v57, 2048, v57")
        a("s_waitcnt lgkmcnt(0)")
        a(f"v_mfma_f32_32x32x16_bf16 {vr(S0,16)}, {vr(KF,4)}, {vr(Q,4)}, 0")
        for i in range(8):
            a(f"v_max3_f32 v58, v{S0+2*i}, v{S0+2*i+1}, v58")
        a(f"s_sub_u32 {sCnt}, {sCnt}, 1")
        a(f"s_cmp_lg_u32 {sCnt}, 0")
        a("s_cbranch_scc1 L_fb")
        a("v_mov_b32 v57, v58")
        a("v_permlane32_swap_b32 v57, v58")
        a("v_max_f32 v58, v57, v58")
        a(f"v_sub_f32 v{S1}, 0, v58")
        for i in range(1, 16):
            a(f"v_mov_b32 v{S1+i}, v{S1}")
        for i in range(16):
            a(f"v_mov_b32 v{O+i}, 0")
        a(f"v_mov_b32 v57, {vKa}")
        a(f"v_mov_b32 v58, {vVa}")
        a(f"s_mov_b32 {sCnt}, 64")
        a.label("L_fb2")
        a(f"ds_read_b128 {vr(KF,4)}, v57")
        a("s_mov_b64 exec, s[6:7]")
        a(f"ds_read_b128 {vr(VF,4)}, v58")
        a(f"ds_read_b128 {vr(VF+4,4)}, v58 offset:512")
        a("s_mov_b64 exec, -1")
        a("v_add_u32 v57, 2048, v57")
        a("v_add_u32 v58, 2048, v58")
        a("s_waitcnt lgkmcnt(0)")
        a(f"v_mfma_f32_32x32x16_bf16 {vr(S0,16)}, {vr(KF,4)}, {vr(Q,4)}, {vr(S1,16)}")
        for i in range(16):
            a(f"v_exp_f32 v{S0+i}, v{S0+i}")
        a(f"v_smfmac_f32_32x32x32_bf16 {vr(O,16)}, {vr(VF,4)}, {vr(S0,8)}, v{IDX}")
        a(f"v_smfmac_f32_32x32x32_bf16 {vr(O,16)}, {vr(VF+4,4)}, {vr(S0+8,8)}, v{IDX}")
        a(f"s_sub_u32 {sCnt}, {sCnt}, 1")
        a(f"s_cmp_lg_u32 {sCnt}, 0")
        a("s_nop 7")
        a("s_nop 7")
        a("s_cbranch_scc1 L_fb2")
        a(f"v_rcp_f32 v3, v{O+8}")
        a.label("L_nofb")
        OP = 40
        for i in range(8):
            a(f"v_mul_f32 v{O+i}, v3, v{O+i}")
        for i in range(4):
            a(f"v_cvt_pk_bf16_f32 v{OP+i}, v{O+2*i}, v{O+2*i+1}")
        a(f"s_lshl_b32 s88, {sM}, 2")
        a(f"s_lshl_b32 {sB}, {sFT}, 1")
        a(f"s_add_u32 s88, s88, {sB}")
        a(f"s_add_u32 s88, s88, {sKH}")
        a(f"s_lshl_b32 {sB}, s88, 1")
        a(f"s_add_u32 {sB}, {sB}, {sTT}")
        a(f"s_lshl_b32 {sB}, {sB}, 10")
        a(f"s_lshl_b32 {sD}, {sC}, 16")
        a(f"s_add_u32 {sB}, {sB}, {sD}")
        a(f"s_add_u32 {sB}, {sB}, {WS_O}")
        a(f"s_lshl_b32 {sD}, {sTT}, 5")
        a(f"s_add_u32 {sD}, {sD}, s88")
        a(f"s_lshl_b32 {sD}, {sD}, 2")
        a(f"s_lshl_b32 {sE_}, {sC}, 8")
        a(f"s_add_u32 {sD}, {sD}, {sE_}")
        a(f"s_add_u32 {sD}, {sD}, {WS_FLO}")
        self.publish("o", [("dwordx4", vr(OP, 4), "v2", sB, 0)], sD)
        self.stamp("opub")

    def wt_addr(self, vT1, vT2):
        a = self.a
        LDS_E = 132 * 1024
        a("v_bfe_u32 v61, v1, 2, 2")
        a("v_lshrrev_b32 v62, 5, v1")
        a("v_lshl_add_u32 v62, v62, 2, v61")
        a("v_lshlrev_b32 v62, 7, v62")
        a("v_bfe_u32 v63, v1, 4, 1")
        a("v_lshlrev_b32 v63, 5, v63")
        a("v_and_b32 v61, 3, v1")
        a("v_lshl_add_u32 v63, v61, 3, v63")
        a("v_bfe_u32 v61, v1, 3, 1")
        a("v_lshlrev_b32 v61, 6, v61")
        a("v_xor_b32 v63, v63, v61")
        a("v_add_u32 v62, v62, v63")
        a(f"s_xor_b32 {sA}, {sW}, 1")
        a(f"s_lshl_b32 {sA}, {sA}, 11")
        a(f"s_add_u32 {sA}, {sA}, {LDS_E}")
        a(f"v_add_u32 {vT1}, {sA}, v62")
        a(f"v_xor_b32 {vT2}, 64, {vT1}")

    def wt_poll_addr(self):
        a = self.a
        a(f"s_cmp_eq_u32 {sW}, 7")
        a("s_cbranch_scc1 L_pa7")
        a(f"s_mul_i32 {sA}, {sM}, 7")
        a(f"s_add_u32 {sA}, {sA}, {sW}")
        a(f"s_lshl_b32 {sW1B}, {sA}, 15")
        a(f"s_add_u32 {sW1B}, {sW1B}, {WS_W1F}")
        a(f"s_lshr_b32 {sA}, {sA}, 1")
        a(f"s_lshl_b32 {sA}, {sA}, 5")
        a(f"s_add_u32 {sA}, {sA}, 256")
        a("s_branch L_pad")
        a.label("L_pa7")
        a(f"s_lshl_b32 {sA}, {sM}, 1")
        a(f"s_add_u32 {sA}, {sA}, 1")
        a(f"s_mul_i32 {sA}, {sA}, 112")
        a(f"s_add_u32 {sA}, {sA}, 98")
        a(f"s_lshl_b32 {sW1B}, {sA}, 10")
        a(f"s_add_u32 {sW1B}, {sW1B}, {WS_W2F}")
        a(f"s_mul_i32 {sA}, {sM}, 112")
        a(f"s_add_u32 {sA}, {sA}, {1152 + 80}")
        a.label("L_pad")
        a(f"s_lshl_b32 {sB}, {sM}, 5")
        a(f"s_sub_u32 {sB}, {sB}, 32")
        a(f"v_mov_b32 v57, {sA}")
        a(f"v_mov_b32 v58, {sB}")
        a("v_cmp_gt_u32 vcc, 32, v1")
        a("v_cndmask_b32 v57, v58, v57, vcc")
        a("v_add_u32 v57, v57, v1")
        a("v_lshlrev_b32 v57, 2, v57")
        a(f"v_add_u32 v57, {WS_FLWT2}, v57")
        a(f"s_mul_i32 {sA}, {sM}, 112")
        a(f"s_mul_i32 {sB}, {sW}, 14")
        a(f"s_add_u32 {sA}, {sA}, {sB}")
        a(f"s_add_u32 {sA}, {sA}, 1152")
        a("v_min_u32 v58, 13, v1")
        a(f"v_add_u32 v58, {sA}, v58")
        a("v_lshlrev_b32 v58, 2, v58")
        a(f"v_add_u32 v58, {WS_FLWT2}, v58")

    def publish(self, name, stores, sflag, pre_exec=None):
        a = self.a
        a(f"v_mov_b32 v104, s3")
        a(f"v_mov_b32 v105, 0")
        a(f"s_cmp_eq_u32 {sFast}, 0")
        a(f"s_cbranch_scc0 L_pub_slow_{name}")
        for variant, mod in (("fast", ""), ("slow", " sc1")):
            if variant == "slow": a.label(f"L_pub_slow_{name}")
            for st in stores:
                ty, data, voff, soff, io = st[:5]
                if len(st) > 5: a(f"s_mov_b32 exec_hi, 0")
                a(f"buffer_store_{ty} {data}, {voff}, {srd(SRD_WS)}, {soff} offen offset:{io}{mod}")
                if len(st) > 5: a("s_mov_b64 exec, -1")
            a("s_waitcnt vmcnt(0)")
            a("s_mov_b64 exec, 1")
            a(f"buffer_store_dword v104, v105, {srd(SRD_WS)}, {sflag} offen{mod}")
            a("s_mov_b64 exec, -1")
            if variant == "fast": a(f"s_branch L_pub_done_{name}")
        a.label(f"L_pub_done_{name}")

    def wt_issue(self):
        a = self.a
        LDS_E = 132 * 1024
        a(f"s_lshl_b32 {sA}, {sID}, 3")
        a(f"s_add_u32 {sA}, {sA}, {sW}")
        a(f"s_cmp_lt_u32 {sA}, 256")
        a("s_cbranch_scc1 L_wt_wo")
        a(f"s_cmp_lt_u32 {sA}, 1152")
        a("s_cbranch_scc1 L_wt_w1")
        a(f"s_sub_u32 {sA}, {sA}, 1152")
        a(f"s_mul_i32 {sB}, {sA}, 9363")
        a(f"s_lshr_b32 {sB}, {sB}, 20")
        a(f"s_mul_i32 {sD}, {sB}, 112")
        a(f"s_sub_u32 {sD}, {sA}, {sD}")
        for i in range(4): a(f"s_mov_b32 s{SRD_T+i}, s{SRD_W2+i}")
        a(f"s_mov_b32 {sF}, 1024")
        a(f"s_mul_i32 s88, {sB}, {2*112}")
        a(f"s_add_u32 s88, s88, {sD}")
        a("s_lshl_b32 s88, s88, 10")
        a(f"s_add_u32 s88, s88, {WS_W2F}")
        a(f"s_mov_b32 s89, {112*1024}")
        a("s_branch L_wt_go")
        a.label("L_wt_w1")
        a(f"s_sub_u32 {sA}, {sA}, 256")
        a(f"s_lshr_b32 {sB}, {sA}, 5")
        a(f"s_and_b32 {sD}, {sA}, 31")
        for i in range(4): a(f"s_mov_b32 s{SRD_T+i}, s{SRD_W1+i}")
        a(f"s_mov_b32 {sF}, 3584")
        a(f"s_lshl_b32 s88, {sB}, 6")
        a(f"s_add_u32 s88, s88, {sD}")
        a("s_lshl_b32 s88, s88, 10")
        a(f"s_add_u32 s88, s88, {WS_W1F}")
        a(f"s_mov_b32 s89, {32*1024}")
        a("s_branch L_wt_go")
        a.label("L_wt_wo")
        a(f"s_lshr_b32 {sB}, {sA}, 5")
        a(f"s_and_b32 {sD}, {sA}, 31")
        for i in range(4): a(f"s_mov_b32 s{SRD_T+i}, s{SRD_WO+i}")
        a(f"s_mov_b32 {sF}, 1024")
        a(f"s_lshl_b32 s88, {sB}, 6")
        a(f"s_add_u32 s88, s88, {sD}")
        a("s_lshl_b32 s88, s88, 10")
        a(f"s_add_u32 s88, s88, {WS_WOF}")
        a(f"s_mov_b32 s89, {32*1024}")
        a.label("L_wt_go")
        a(f"s_mul_i32 {sD}, {sD}, {sF}")
        a(f"s_lshl_b32 {sD}, {sD}, 4")
        a(f"s_lshl_b32 {sB}, {sB}, 7")
        a(f"s_add_u32 {sD}, {sD}, {sB}")
        a("v_lshrrev_b32 v16, 3, v1")
        a(f"v_mul_lo_u32 v16, v16, {sF}")
        a("v_and_b32 v17, 7, v1")
        a("v_bfe_u32 v18, v1, 4, 1")
        a("v_lshlrev_b32 v18, 2, v18")
        a("v_xor_b32 v17, v17, v18")
        a("v_lshl_add_u32 v16, v17, 4, v16")
        a(f"s_xor_b32 {sA}, {sW}, 1")
        a(f"s_lshl_b32 {sA}, {sA}, 11")
        a(f"s_add_u32 {sA}, {sA}, {LDS_E}")
        a(f"s_mov_b32 m0, {sA}")
        a(f"buffer_load_dwordx4 v16, {srd(SRD_T)}, {sD} offen lds")
        a(f"s_lshl_b32 {sB}, {sF}, 3")
        a(f"s_add_u32 {sD}, {sD}, {sB}")
        a(f"s_add_u32 {sA}, {sA}, 1024")
        a(f"s_mov_b32 m0, {sA}")
        a(f"buffer_load_dwordx4 v16, {srd(SRD_T)}, {sD} offen lds")

    def wt_process(self):
        a = self.a
        LDS_E = 132 * 1024
        a("v_bfe_u32 v106, v1, 2, 2")
        a("v_lshrrev_b32 v107, 5, v1")
        a("v_lshl_add_u32 v107, v107, 2, v106")
        a("v_lshlrev_b32 v107, 7, v107")
        a("v_bfe_u32 v108, v1, 4, 1")
        a("v_lshlrev_b32 v108, 5, v108")
        a("v_and_b32 v109, 3, v1")
        a("v_lshl_add_u32 v108, v109, 3, v108")
        a("v_bfe_u32 v109, v1, 3, 1")
        a("v_lshlrev_b32 v109, 6, v109")
        a("v_xor_b32 v108, v108, v109")
        a("v_add_u32 v107, v107, v108")
        a(f"s_xor_b32 {sA}, {sW}, 1")
        a(f"s_lshl_b32 {sA}, {sA}, 11")
        a(f"s_add_u32 {sA}, {sA}, {LDS_E}")
        a(f"v_add_u32 v107, {sA}, v107")
        a("v_xor_b32 v108, 64, v107")
        a("ds_read_b64_tr_b16 v[112:113], v107")
        a("ds_read_b64_tr_b16 v[114:115], v107 offset:1024")
        a("ds_read_b64_tr_b16 v[116:117], v108")
        a("ds_read_b64_tr_b16 v[118:119], v108 offset:1024")
        a("s_waitcnt lgkmcnt(0)")
        a(f"buffer_store_dwordx4 v[112:115], v2, {srd(SRD_WS)}, s88 offen sc1")
        a("s_add_u32 s88, s88, s89")
        a(f"buffer_store_dwordx4 v[116:119], v2, {srd(SRD_WS)}, s88 offen sc1")


    def colsum(self, homes, first):
        a = self.a
        n = 0
        a("s_mov_b32 s5, 0x3f803f80")
        for hm in homes:
            for i in range(4):
                r = "v106" if n % 2 == 0 else "v107"
                a(f"v_dot2_f32_bf16 {r}, v{hm+i}, s5, {'0' if (first and n < 2) else r}")
                n += 1

    def p3(self):
        a = self.a
        X_ = self.opt
        HB, X, ACC, BR = 4, 56, 24, 64
        LDS_OF, LDS_E2 = 0, 128 * 1024
        sS = "s88"
        a("v_and_b32 v3, 31, v1")
        a("v_lshlrev_b32 v3, 10, v3")
        a("v_lshrrev_b32 v104, 5, v1")
        a("v_lshl_or_b32 v3, v104, 3, v3")
        a(f"s_lshl_b32 {sA}, {sTT}, 5")
        a(f"s_add_u32 {sA}, {sA}, {sT0}")
        a(f"s_lshl_b32 {sA}, {sA}, 10")
        a(f"s_lshl_b32 {sB}, {sS}, 5")
        a(f"s_add_u32 {sA}, {sA}, {sB}")
        a(f"buffer_load_dwordx2 {vr(X,2)}, v3, {srd(SRD_X)}, {sA} offen")
        a(f"buffer_load_dwordx2 {vr(X+2,2)}, v3, {srd(SRD_X)}, {sA} offen offset:16")
        a("s_barrier")
        self.stamp("b7")
        a(f"s_cmp_eq_u32 {sW}, 7")
        a("s_cbranch_scc1 L_nocs1")
        self.colsum(W1H[:NW1PRE], True)
        a.label("L_nocs1")
        a(f"s_lshl_b32 {sA}, {sTT}, 5")
        a(f"s_lshl_b32 {sB}, {sKH}, 4")
        a(f"s_add_u32 {sA}, {sA}, {sB}")
        a(f"s_lshl_b32 {sA}, {sA}, 2")
        a(f"s_lshl_b32 {sB}, {sC}, 8")
        a(f"s_add_u32 {sA}, {sA}, {sB}")
        a(f"s_add_u32 {sA}, {sA}, {WS_FLO}")
        a("v_and_b32 v3, 15, v1")
        a("v_lshlrev_b32 v3, 2, v3")
        self.poll_begin("o")
        a(f"buffer_load_dword v104, v3, {srd(SRD_WS)}, {sA} offen sc1")
        a("s_waitcnt vmcnt(0)")
        a("v_cmp_ne_u32 vcc, s3, v104")
        self.poll_end("o", sleep=1)
        self.stamp("ook")
        a(f"s_lshl_b32 {sA}, {sKH}, 4")
        a(f"s_lshl_b32 {sB}, {sFT}, 2")
        a(f"s_add_u32 {sA}, {sA}, {sB}")
        a(f"s_lshl_b32 {sA}, {sA}, 1")
        a(f"s_add_u32 {sA}, {sA}, {sTT}")
        a(f"s_lshl_b32 {sA}, {sA}, 10")
        a(f"s_lshl_b32 {sB}, {sC}, 16")
        a(f"s_add_u32 {sB}, {sB}, {sA}")
        a(f"s_add_u32 {sB}, {sB}, {WS_O}")
        for st in range(2):
            for i in range(4):
                d = (st * 8 + i) * 2048
                a(f"s_add_u32 {sD}, {sA}, {d + LDS_OF}")
                a(f"s_add_u32 {sE_}, {sB}, {d}")
                a(f"s_mov_b32 m0, {sD}")
                a(f"buffer_load_dwordx4 v2, {srd(SRD_WS)}, {sE_} offen sc1 lds")
        nrest = 32 - NW1PRE
        a(f"s_lshl_b32 {sA}, {sKH}, 15")
        a(f"s_lshl_b32 {sB}, {sTT}, 10")
        a(f"s_add_u32 {sA}, {sA}, {sB}")
        a(f"v_add_u32 v104, {sA}, v2")
        def late_loads():
            for s_ in range(NW1PRE, 32):
                a(f"buffer_load_dwordx4 {vr(W1H[s_],4)}, v2, {srd(SRD_WS)}, {sW1B} offen offset:{(s_%4)*1024} sc1")
                if s_ % 4 == 3 and s_ < 31: a(f"s_add_u32 {sW1B}, {sW1B}, 4096")
        a.lg = []
        for st in range(2):
            a(f"s_waitcnt vmcnt({4 if st == 0 else 0})")
            a("s_barrier")
            for i in range(8):
                a.ds(f"ds_read_b128 {vr(BR+4*i,4)}, v104 offset:{(st*8+i)*2048}", f"b{st}{i}")
            if st == 1: late_loads()
            for i in range(8):
                a.wait_lg(f"b{st}{i}")
                k = st * 8 + i
                srcC = "0" if k == 0 else vr(ACC, 16)
                a(f"v_mfma_f32_32x32x16_bf16 {vr(ACC,16)}, {vr(WOH[k],4)}, {vr(BR+4*i,4)}, {srcC}")
        self.stamp("p3mm")
        a(f"s_lshl_b32 {sA}, {sW}, 11")
        a(f"s_add_u32 {sA}, {sA}, {LDS_E2}")
        a(f"v_add_u32 v104, {sA}, v2")
        a(f"ds_write_b128 v104, {vr(ACC+8,4)}")
        a(f"ds_write_b128 v104, {vr(ACC+12,4)} offset:1024")
        a("s_waitcnt lgkmcnt(0)")
        a("s_barrier")
        a("v_xor_b32 v104, 2048, v104")
        a(f"ds_read_b128 {vr(BR,4)}, v104")
        a(f"ds_read_b128 {vr(BR+4,4)}, v104 offset:1024")
        for i in range(4):
            a(f"v_lshlrev_b32 v{BR+8+2*i}, 16, v{X+i}")
            a(f"v_and_b32 v{BR+9+2*i}, 0xffff0000, v{X+i}")
        a(f"s_lshl_b32 {sA}, {sS}, 1")
        a(f"s_add_u32 {sA}, {sA}, {sTT}")
        a(f"s_lshl_b32 {sA}, {sA}, 10")
        a(f"s_lshl_b32 {sB}, {sC}, 16")
        a(f"s_add_u32 {sA}, {sA}, {sB}")
        a(f"s_add_u32 {sA}, {sA}, {WS_H}")
        a(f"s_lshl_b32 {sD}, {sTT}, 5")
        a(f"s_add_u32 {sD}, {sD}, {sS}")
        a(f"s_lshl_b32 {sD}, {sD}, 2")
        a(f"s_lshl_b32 {sE_}, {sC}, 8")
        a(f"s_add_u32 {sD}, {sD}, {sE_}")
        a(f"s_add_u32 {sD}, {sD}, {WS_FLH}")
        for i in range(8):
            a(f"v_add_f32 v{ACC+i}, v{ACC+i}, v{BR+8+i}")
        a("s_waitcnt lgkmcnt(0)")
        for i in range(8):
            a(f"v_add_f32 v{ACC+i}, v{ACC+i}, v{BR+i}")
        for i in range(4):
            a(f"v_cvt_pk_bf16_f32 v{HB+i}, v{ACC+2*i}, v{ACC+2*i+1}")
        a("s_mov_b32 s5, 0x3f803f80")
        a(f"v_dot2_f32_bf16 v56, v{HB}, s5, 0")
        a(f"v_dot2_f32_bf16 v57, v{HB}, v{HB}, 0")
        for i in range(1, 4):
            a(f"v_dot2_f32_bf16 v56, v{HB+i}, s5, v56")
            a(f"v_dot2_f32_bf16 v57, v{HB+i}, v{HB+i}, v57")
        a("v_mov_b32 v58, v56")
        a("v_mov_b32 v59, v57")
        a("v_permlane32_swap_b32 v56, v58")
        a("v_permlane32_swap_b32 v57, v59")
        a("v_add_f32 v56, v56, v58")
        a("v_add_f32 v57, v57, v59")
        a(f"s_lshl_b32 {sB}, {sTT}, 5")
        a(f"s_add_u32 {sB}, {sB}, {sS}")
        a(f"s_lshl_b32 {sB}, {sB}, 8")
        a(f"s_lshl_b32 {sE_}, {sC}, 14")
        a(f"s_add_u32 {sB}, {sB}, {sE_}")
        a(f"s_add_u32 {sB}, {sB}, {WS_ST}")
        a("v_lshlrev_b32 v3, 3, v1")
        self.publish("h", [("dwordx4", vr(HB, 4), "v2", sA, 0), ("dwordx2", "v[56:57]", "v3", sB, 0, "lo32")], sD)
        self.stamp("hpub")

    def w2load(self, f, i):
        a = self.a
        hm = (W2H0 if f == 0 else W2H1)[i]
        off = (f * 112 + i) * 1024
        a(f"s_add_u32 {sA}, s89, {off}")
        a(f"buffer_load_dwordx4 {vr(hm,4)}, v2, {srd(SRD_WS)}, {sA} offen sc1")

    def p4(self):
        a = self.a
        HB, ACC, BR = 4, 64, 108
        LDS_HF, LDS_ST2, LDS_CS1, LDS_B1 = 64 * 1024, 144 * 1024, 145 * 1024, 146 * 1024
        a(f"s_mul_i32 {sA}, {sM}, 224")
        a(f"s_mul_i32 {sB}, {sW}, 14")
        a(f"s_add_u32 {sA}, {sA}, {sB}")
        a(f"s_lshl_b32 {sA}, {sA}, 10")
        a(f"s_add_u32 s89, {sA}, {WS_W2F}")
        for i in range(NW2E): self.w2load(0, i)
        a(f"s_cmp_eq_u32 {sW}, 7")
        a("s_cbranch_scc1 L_p4_pre7")
        self.colsum(W1H[NW1PRE:], False)
        a("v_add_f32 v106, v106, v107")
        a("v_mov_b32 v107, v106")
        a("v_permlane32_swap_b32 v106, v107")
        a("v_add_f32 v106, v106, v107")
        a("v_and_b32 v107, 31, v1")
        a("v_lshlrev_b32 v107, 2, v107")
        a(f"s_lshl_b32 {sA}, {sW}, 7")
        a(f"s_add_u32 {sA}, {sA}, {LDS_CS1}")
        a(f"v_add_u32 v107, {sA}, v107")
        a("ds_write_b32 v107, v106")
        a("s_branch L_p4_pre")
        a.label("L_p4_pre7")
        a(f"s_mul_i32 {sA}, {sM}, 448")
        a("v_lshlrev_b32 v3, 3, v1")
        a("v_min_u32 v3, 440, v3")
        a(f"buffer_load_dwordx2 v[106:107], v3, {srd(SRD_B1)}, {sA} offen")
        a("s_waitcnt vmcnt(0)")
        a("v_lshlrev_b32 v108, 16, v106")
        a("v_and_b32 v109, 0xffff0000, v106")
        a("v_lshlrev_b32 v110, 16, v107")
        a("v_and_b32 v111, 0xffff0000, v107")
        for i in range(4): a(f"v_mul_f32 v{108+i}, 0.5, v{108+i}")
        a("v_lshlrev_b32 v3, 1, v3")
        a(f"v_add_u32 v3, {LDS_B1}, v3")
        a("ds_write_b128 v3, v[108:111]")
        a.label("L_p4_pre")
        a(f"s_lshl_b32 {sA}, {sC}, 8")
        a(f"s_add_u32 {sA}, {sA}, {WS_FLH}")
        a("v_lshlrev_b32 v3, 2, v1")
        self.poll_begin("h")
        a(f"buffer_load_dword v104, v3, {srd(SRD_WS)}, {sA} offen sc1")
        a("s_waitcnt vmcnt(0)")
        a("v_cmp_ne_u32 vcc, s3, v104")
        self.poll_end("h", sleep=1)
        self.stamp("hok")
        a(f"s_lshl_b32 s67, {sW}, 11")
        a(f"s_lshl_b32 {sB}, {sC}, 16")
        a(f"s_add_u32 {sB}, {sB}, s67")
        a(f"s_add_u32 s68, {sB}, {WS_H}")
        def hdma(i):
            for tt in range(2):
                d = i * 8 * 2048 + tt * 1024
                a(f"s_add_u32 {sD}, s67, {d + LDS_HF}")
                a(f"s_add_u32 {sE_}, s68, {d}")
                a(f"s_mov_b32 m0, {sD}")
                a(f"buffer_load_dwordx4 v2, {srd(SRD_WS)}, {sE_} offen sc1 lds")
        hdma(0); hdma(1)
        a(f"v_add_u32 v104, {LDS_HF}, v2")
        a("s_waitcnt vmcnt(2)")
        a("s_barrier")
        self.stamp("f1a")
        hdma(2); hdma(3)
        a(f"s_cmp_eq_u32 {sW}, 7")
        a("s_cbranch_scc1 L_p4_w7")
        a.lg = []
        NR = 3
        def hread(k):
            sl = k % NR
            a.ds(f"ds_read_b128 {vr(BR+8*sl,4)}, v104 offset:{k*2048}", f"h{k}")
            a.ds(f"ds_read_b128 {vr(BR+8*sl+4,4)}, v104 offset:{k*2048+1024}", f"h{k}")
        for k in range(NR - 1): hread(k)
        lst = [(0, i) for i in range(NW2E, 14)] + [(1, i) for i in range(14)]
        sched = {}
        for n, (f, i) in enumerate(lst):
            st = (n * 30) // len(lst) + 1
            if f == 1: st = max(st, i)
            sched.setdefault(st, []).append((f, i))
        issued = 0
        for k in range(32):
            if k == 8 - (NR - 1):
                a(f"s_waitcnt vmcnt({4 + issued})")
                a("s_barrier")
            if k == 16 - (NR - 1):
                a(f"s_waitcnt vmcnt({issued})")
                a("s_barrier")
                self.stamp("f1b")
            if k + NR - 1 < 32: hread(k + NR - 1)
            a.wait_lg(f"h{k}")
            sl = k % NR
            for tt in range(2):
                srcC = "0" if k == 0 else vr(ACC + 16 * tt, 16)
                a(f"v_mfma_f32_32x32x16_bf16 {vr(ACC+16*tt,16)}, {vr(W1H[k],4)}, {vr(BR+8*sl+4*tt,4)}, {srcC}")
            for (f, i) in (sched.get(k, []) if not self.opt.get("now2") else []):
                self.w2load(f, i)
                issued += 1
        self.stamp("f1c")
        a("s_barrier")
        a.lg = []
        CS, BF = 108, 208
        a("v_and_b32 v3, 31, v1")
        a("v_lshlrev_b32 v3, 3, v3")
        a(f"v_add_u32 v3, {LDS_ST2}, v3")
        a("ds_read_b64 v[104:105], v3")
        a("ds_read_b64 v[106:107], v3 offset:256")
        a("v_lshrrev_b32 v3, 5, v1")
        a("v_lshlrev_b32 v3, 4, v3")
        a(f"s_lshl_b32 {sA}, {sW}, 7")
        a(f"s_add_u32 {sA}, {sA}, {LDS_CS1}")
        a(f"v_add_u32 v3, {sA}, v3")
        for q in range(4):
            a(f"ds_read_b128 {vr(CS+4*q,4)}, v3 offset:{32*q}")
        for q in range(4):
            a(f"ds_read_b128 {vr(BF+4*q,4)}, v3 offset:{1024 + 32*q}")
        a("s_waitcnt lgkmcnt(0)")
        self.stamp("ffn1")
        HP = 236
        for tt in range(2):
            mu, rs = 104 + 2 * tt, 105 + 2 * tt
            A = ACC + 16 * tt
            for r in range(16): a(f"v_fma_f32 v{A+r}, -v{mu}, v{CS+r}, v{A+r}")
            for r in range(16): a(f"v_fma_f32 v{A+r}, v{A+r}, v{rs}, v{BF+r}")
            for r in range(16): a(f"v_add_f32 v{A+r}, v{A+r}, |v{A+r}|")
            for r in range(16): a(f"v_mul_f32 v{A+r}, v{A+r}, v{A+r}")
            for i in range(8): a(f"v_cvt_pk_bf16_f32 v{HP+8*tt+i}, v{A+2*i}, v{A+2*i+1}")
        a(f"s_mul_i32 {sA}, {sM}, 7")
        a(f"s_add_u32 {sA}, {sA}, {sW}")
        a(f"s_lshl_b32 {sB}, {sA}, 12")
        a(f"s_mul_i32 {sD}, {sC}, {224*1024}")
        a(f"s_add_u32 {sB}, {sB}, {sD}")
        a(f"s_add_u32 {sB}, {sB}, {WS_HID}")
        a(f"s_lshl_b32 {sD}, {sA}, 2")
        a(f"s_lshl_b32 {sE_}, {sC}, 8")
        a(f"s_add_u32 {sD}, {sD}, {sE_}")
        a(f"s_add_u32 {sD}, {sD}, {WS_FLHID}")
        st = []
        for u in range(2):
            for tt in range(2):
                st.append(("dwordx4", vr(HP + 8 * tt + 4 * u, 4), "v2", sB, u * 2048 + tt * 1024))
        self.publish("hid", st, sD)
        a("s_branch L_p4_done")
        a.label("L_p4_w7")
        SL = 64
        a("v_lshlrev_b32 v3, 4, v1")
        a(f"s_lshl_b32 {sA}, {sC}, 14")
        a(f"s_add_u32 {sA}, {sA}, {WS_ST}")
        for q in range(16):
            a(f"buffer_load_dwordx4 {vr(SL+4*q,4)}, v3, {srd(SRD_WS)}, {sA} offen offset:{(q%4)*1024} sc1")
            if q % 4 == 3 and q < 15: a(f"s_add_u32 {sA}, {sA}, 4096")
        a("s_waitcnt vmcnt(20)")
        a("s_barrier")
        a("s_waitcnt vmcnt(16)")
        a("s_barrier")
        for i in range(NW2E, 14): self.w2load(0, i)
        a(f"s_waitcnt vmcnt({14 - NW2E})")
        for tt in range(2):
            B = SL + 32 * tt
            for q in range(1, 8):
                for c in range(4): a(f"v_add_f32 v{B+c}, v{B+c}, v{B+4*q+c}")
        R = [SL + c for c in range(4)] + [SL + 32 + c for c in range(4)]
        T = [SL + 8 + c for c in range(8)]
        for sw in ("16", "32"):
            for r, t in zip(R, T): a(f"v_mov_b32 v{t}, v{r}")
            for r, t in zip(R, T): a(f"v_permlane{sw}_swap_b32 v{r}, v{t}")
            for r, t in zip(R, T): a(f"v_add_f32 v{r}, v{r}, v{t}")
        for tt in range(2):
            for u in range(2):
                s_, q_ = SL + 32 * tt + 2 * u, SL + 32 * tt + 2 * u + 1
                a(f"v_mul_f32 v{s_}, 0x{f32bits(1/512):x}, v{s_}")
                a(f"v_mul_f32 v{q_}, 0x{f32bits(1/512):x}, v{q_}")
                a(f"v_fma_f32 v{q_}, -v{s_}, v{s_}, v{q_}")
                a(f"v_max_f32 v{q_}, 0, v{q_}")
                a(f"v_add_f32 v{q_}, 0x{f32bits(1e-5):x}, v{q_}")
                a(f"v_rsq_f32 v{q_}, v{q_}")
                a(f"v_mul_f32 v{q_}, 0.5, v{q_}")
        a("v_and_b32 v3, 15, v1")
        a("v_lshlrev_b32 v3, 4, v3")
        a(f"v_add_u32 v3, {LDS_ST2}, v3")
        a("s_mov_b64 exec, 0xffff")
        a(f"ds_write_b128 v3, {vr(SL,4)}")
        a(f"ds_write_b128 v3, {vr(SL+32,4)} offset:256")
        a("s_mov_b64 exec, -1")
        a("s_waitcnt lgkmcnt(0)")
        a("s_barrier")
        if self.prof and "ffn1" not in self.skip:
            self.nstamp = self.stamp_names.index("ffn1")
            nm = list(self.stamp_names)
            self.stamp("ffn1")
            self.stamp_names = nm
            self.nstamp = len(nm)
        a.label("L_p4_done")

    def p5(self):
        a = self.a
        HB, B2R = 4, 148
        ACCS = [[64, 208], [80, 224]]
        BQ = [40, 44, 48, 52, 96, 100, 108, 112, 116, 120, 124, 128, 240, 244]
        a(f"s_lshl_b32 {sA}, {sM}, 7")
        a(f"s_lshl_b32 {sB}, {sFT}, 6")
        a(f"s_add_u32 {sA}, {sA}, {sB}")
        a(f"s_lshl_b32 {sB}, {sKH}, 5")
        a(f"s_add_u32 s89, {sA}, {sB}")
        a("v_lshrrev_b32 v3, 5, v1")
        a("v_lshlrev_b32 v3, 3, v3")
        a(f"buffer_load_dwordx2 {vr(B2R,2)}, v3, {srd(SRD_B2)}, s89 offen")
        a(f"buffer_load_dwordx2 {vr(B2R+2,2)}, v3, {srd(SRD_B2)}, s89 offen offset:16")
        a(f"s_mul_i32 {sA}, {sW}, 28")
        a(f"s_lshl_b32 {sB}, {sC}, 8")
        a(f"s_add_u32 {sA}, {sA}, {sB}")
        a(f"s_add_u32 {sA}, {sA}, {WS_FLHID}")
        a("v_min_u32 v3, 6, v1")
        a("v_lshlrev_b32 v3, 2, v3")
        self.poll_begin("hid")
        a(f"buffer_load_dword v104, v3, {srd(SRD_WS)}, {sA} offen sc1")
        a("s_waitcnt vmcnt(0)")
        a("v_cmp_ne_u32 vcc, s3, v104")
        self.poll_end("hid", sleep=1)
        self.stamp("hidok")
        a(f"s_mul_i32 {sA}, {sW}, {14*2048}")
        a(f"s_mul_i32 {sD}, {sC}, {224*1024}")
        a(f"s_add_u32 {sA}, {sA}, {sD}")
        a(f"s_add_u32 s67, {sA}, {WS_HID}")
        def bload(tt, i):
            a(f"s_add_u32 {sA}, s67, {i*2048 + tt*1024}")
            a(f"buffer_load_dwordx4 {vr(BQ[i],4)}, v2, {srd(SRD_WS)}, {sA} offen sc1")
        for i in range(14): bload(0, i)
        a(f"s_lshl_b32 {sA}, {sW}, 11")
        a(f"v_add_u32 v104, {sA}, v2")
        a("v_add_u32 v105, 65536, v104")
        def wr_piece(tt, f, half):
            p = 4 * f + 2 * tt + half
            A = ACCS[tt][f] + 8 * half
            base = "v104" if p < 4 else "v105"
            off = (p % 4) * 16384
            a(f"ds_write_b128 {base}, {vr(A,4)} offset:{off}")
            a(f"ds_write_b128 {base}, {vr(A+4,4)} offset:{off+1024}")
        issued = 14
        done = 0
        for tt in range(2):
            for i in range(14):
                n = tt * 14 + i
                a(f"s_waitcnt vmcnt({issued - n - 1})")
                for f in range(2):
                    hm = (W2H0 if f == 0 else W2H1)[i]
                    srcC = "0" if i == 0 else vr(ACCS[tt][f], 16)
                    a(f"v_mfma_f32_32x32x16_bf16 {vr(ACCS[tt][f],16)}, {vr(hm,4)}, {vr(BQ[i],4)}, {srcC}")
                if tt == 0:
                    bload(1, i); issued += 1
                if tt == 1 and i in (2, 4, 6, 8):
                    j = (i - 2) // 2
                    wr_piece(0, j >> 1, j & 1)
        self.stamp("ffn2")
        for f in range(2):
            for half in range(2): wr_piece(1, f, half)
        for i in range(4):
            a(f"v_lshlrev_b32 v{16+2*i}, 16, v{HB+i}")
            a(f"v_and_b32 v{17+2*i}, 0xffff0000, v{HB+i}")
            a(f"v_lshlrev_b32 v{24+2*i}, 16, v{B2R+i}")
            a(f"v_and_b32 v{25+2*i}, 0xffff0000, v{B2R+i}")
        for i in range(8):
            a(f"v_add_f32 v{16+i}, v{16+i}, v{24+i}")
        a("v_and_b32 v3, 31, v1")
        a("v_lshlrev_b32 v3, 10, v3")
        a("v_lshrrev_b32 v12, 5, v1")
        a("v_lshl_or_b32 v3, v12, 4, v3")
        a(f"s_lshl_b32 {sB}, {sW}, 14")
        a(f"v_add_u32 v106, {sB}, v2")
        a(f"s_lshl_b32 {sA}, {sTT}, 5")
        a(f"s_add_u32 {sA}, {sA}, {sT0}")
        a(f"s_lshl_b32 {sA}, {sA}, 10")
        a(f"s_add_u32 {sA}, {sA}, s89")
        a("s_waitcnt lgkmcnt(0)")
        a("s_barrier")
        RD = 152
        a.lg = []
        for q in range(8):
            a.ds(f"ds_read_b128 {vr(RD+8*q,4)}, v106 offset:{q*2048}", f"q{q}")
            a.ds(f"ds_read_b128 {vr(RD+8*q+4,4)}, v106 offset:{q*2048+1024}", f"q{q}")
        for q in range(8):
            a.wait_lg(f"q{q}")
            for i in range(8):
                a(f"v_add_f32 v{16+i}, v{16+i}, v{RD+8*q+i}")
        for i in range(4):
            a(f"v_cvt_pk_bf16_f32 v{88+i}, v{16+2*i}, v{17+2*i}")
        a("v_permlane32_swap_b32 v88, v90")
        a("v_permlane32_swap_b32 v89, v91")
        a(f"buffer_store_dwordx4 v[88:91], v3, {srd(SRD_OUT)}, {sA} offen")
        self.stamp("end")

    def kv_flag(self):
        a = self.a
        a(f"s_cmp_ge_u32 {sW}, 2")
        a("s_cbranch_scc1 L_noflag")
        a(f"s_add_u32 {sD}, {sTag}, 1")
        a(f"s_lshl_b32 {sA}, {sG}, 4")
        a(f"s_add_u32 {sA}, {sA}, {WS_FLKV}")
        a(f"v_mov_b32 v8, {sD}")
        a("v_mov_b32 v9, s3")
        a("v_mov_b32 v10, 0")
        a("s_mov_b64 exec, 1")
        a(f"s_cmp_eq_u32 {sW}, 1")
        a("s_cbranch_scc1 L_flagv")
        a(f"buffer_store_dwordx2 v[8:9], v10, {srd(SRD_WS)}, {sA} offen sc1")
        a("s_branch L_flagd")
        a.label("L_flagv")
        a(f"buffer_store_dword v8, v10, {srd(SRD_WS)}, {sA} offen offset:8 sc1")
        a.label("L_flagd")
        a("s_mov_b64 exec, -1")
        a.label("L_noflag")

    def wave_reduce(self, regs, op, tmps):
        a = self.a
        for n in (8, 4, 2, 1):
            for r in regs:
                a(f"v_{op}_f32_dpp {r}, {r}, {r} row_ror:{n} row_mask:0xf bank_mask:0xf")
        for sw in ("16", "32"):
            for r, t in zip(regs, tmps):
                a(f"v_mov_b32 {t}, {r}")
            for r, t in zip(regs, tmps):
                a(f"v_permlane{sw}_swap_b32 {r}, {t}")
            for r, t in zip(regs, tmps):
                a(f"v_{op}_f32 {r}, {r}, {t}")

    def finish(self):
        a = self.a
        a.label("L_end")
        a("s_endpgm")

    def dump_regs(self, base, regs, off):
        a = self.a
        n = len(regs)
        a(f"s_lshl_b32 {sA}, {sID}, 3")
        a(f"s_add_u32 {sA}, {sA}, {sW}")
        a(f"s_mul_i32 {sA}, {sA}, {n*256}")
        a(f"s_add_u32 {sA}, {sA}, {off}")
        a("v_lshlrev_b32 v3, 2, v1")
        for i, r in enumerate(regs):
            a(f"buffer_store_dword v{r}, v3, {srd(SRD_WS)}, {sA} offen offset:{i*256}")
        a("s_waitcnt vmcnt(0)")

    def build(self):
        self.prologue()
        self.p1()
        if self.stop == "p1":
            self.dump_regs(0, list(range(32, 48)), WS_DBG)
            self.a("s_waitcnt vmcnt(0)")
            self.finish(); return self.text()
        self.p2()
        if self.stop in ("q", "attn"):
            self.a("s_waitcnt vmcnt(0)")
            self.dump_stamps()
            self.finish(); return self.text()
        for nm, fn in (("h", self.p3), ("hid", self.p4), ("out", self.p5)):
            fn()
            if self.stop == nm: break
        self.a("s_waitcnt vmcnt(0)")
        self.dump_stamps()
        self.finish()
        return self.text()

    def text(self):
        lines, n = hazard_pass_all(self.a.lines)
        head = f"""; @launch grid=(256,1,1) block=(512,1,1) lds=163840
.amdgcn_target "amdgcn-amd-amdhsa--gfx950"
.text
.globl {KNAME}
.p2align 8
.type {KNAME},@function
{KNAME}:
"""
        tail = f""".section .rodata,"a"
.p2align 6
.amdhsa_kernel {KNAME}
  .amdhsa_next_free_vgpr 256
  .amdhsa_next_free_sgpr 102
  .amdhsa_accum_offset 256
  .amdhsa_group_segment_fixed_size 0
  .amdhsa_kernarg_size 104
  .amdhsa_user_sgpr_count 2
  .amdhsa_user_sgpr_kernarg_segment_ptr 1
  .amdhsa_system_sgpr_workgroup_id_x 1
.end_amdhsa_kernel
"""
        return head + "\n".join(lines) + "\n" + tail

if __name__ == "__main__":
    import argparse
    ap = argparse.ArgumentParser()
    ap.add_argument("--stop", default=None)
    ap.add_argument("-o", default="k.s")
    ap.add_argument("--prof", action="store_true")
    ap.add_argument("--opt", nargs="*", default=[])
    ap.add_argument("--skip", nargs="*", default=["args", "b1", "f1a", "f1b", "f1c"])
    args = ap.parse_args()
    opt = dict((kv.split("=")[0], int(kv.split("=")[1])) for kv in args.opt)
    g = Gen(stop=args.stop, prof=args.prof, opt=opt, skip=args.skip)
    open(args.o, "w").write(g.build())
    print("wrote", args.o, "stamps:", getattr(g, "stamp_names", None))
```

```python
import sys
sys.path.insert(0, "work")
from asmlib import Asm, hazard_pass_all

NAME = "sequential_preLN__grouped_kv_mqa__dense_activation_squared_relu__prompt"
KNAME = NAME + "_kernel"

WS_EPOCH = 0x0
WS_FLKV  = 0x1000
WS_FLWT  = 0x3000
WS_FLO   = 0x4000
WS_FLH   = 0x6000
WS_FLHID = 0x8000
WS_FLWT2 = 0xA000
WS_KV    = 0x10000
WS_ST    = 0x60000
WS_O     = 0x100000
WS_H     = 0x300000
WS_HID   = 0x500000
WS_WOF   = 0xC00000
WS_W1F   = 0xC80000
WS_W2F   = 0xE40000
WS_DBG   = 0x1000000
WS_PROF  = 0x1800000
WS_SIZE  = 0x2000000

SRD_X, SRD_WQ, SRD_WK, SRD_WV = 8, 12, 16, 20
SRD_WO, SRD_W1, SRD_W2, SRD_B1 = 24, 28, 32, 36
SRD_B2, SRD_OUT, SRD_WS, SRD_T = 40, 44, 48, 52
def srd(b): return f"s[{b}:{b+3}]"
sW, sM, sC, sT0, sTag, sFast = "s56", "s57", "s58", "s59", "s60", "s61"
sFT, sTT, sKH, sXCC = "s62", "s63", "s90", "s91"
sID = "s2"
sA, sB, sD, sE_, sF, sG = "s92", "s93", "s94", "s95", "s96", "s97"
sCnt, sPh = "s98", "s99"
sW1B = "s65"
sWOB = "s66"
sPF = "s69"
NW1PRE = 26
W1H = [152 + 4 * k for k in range(26)] + [40, 44, 48, 52, 96, 100]
WOH = [8, 12, 16, 20, 60] + [108 + 4 * k for k in range(11)]
NW2E = 7
W2H0 = [8, 12, 16, 20, 24, 28, 32, 36, 56, 60, 132, 136, 140, 144]
W2H1 = W1H[:14]
sX64 = "s[4:5]"; sY64 = "s[6:7]"

LOG2E = 1.4426950408889634
def f32bits(x):
    import struct
    return struct.unpack("<I", struct.pack("<f", x))[0]
def vr(b, n): return f"v[{b}:{b+n-1}]"

class Gen:
    def __init__(self, stop=None, prof=False, opt=None, skip=()):
        self.skip = set(skip)
        self.a = Asm()
        self.stop = stop
        self.prof = prof
        self.opt = opt or {}
        self.nstamp = 0

    def stamp(self, name):
        if not self.prof: return
        if name in self.skip:
            self.skipped_last = True
            return
        self.skipped_last = False
        i = self.nstamp; self.nstamp += 1
        assert i < 16
        self.stamp_names = getattr(self, "stamp_names", []) + [name]
        a = self.a
        a(f"s_memtime s[4:5]")
        a("s_waitcnt lgkmcnt(0)")
        a("s_sub_u32 s4, s4, s100")
        a(f"v_writelane_b32 v0, s4, {i}")

    def dump_stamps(self):
        if not self.prof: return
        a = self.a
        a("s_memrealtime s[4:5]")
        a("s_waitcnt lgkmcnt(0)")
        a("s_sub_u32 s4, s4, s101")
        a("v_writelane_b32 v0, s4, 15")
        a(f"s_lshl_b32 {sA}, {sID}, 3")
        a(f"s_add_u32 {sA}, {sA}, {sW}")
        a(f"s_lshl_b32 {sA}, {sA}, 6")
        a(f"s_add_u32 {sA}, {sA}, {WS_PROF}")
        a("v_lshlrev_b32 v3, 2, v1")
        a("s_mov_b64 exec, 0xffff")
        a(f"buffer_store_dword v0, v3, {srd(SRD_WS)}, {sA} offen")
        a(f"s_lshl_b32 {sA}, {sID}, 3")
        a(f"s_add_u32 {sA}, {sA}, {sW}")
        a(f"s_cmp_lg_u32 {sA}, {self.opt.get('profw', 0)}")
        a("s_cbranch_scc1 L_nodbgst")
        a("s_load_dwordx2 s[52:53], s[0:1], 88")
        a("s_waitcnt lgkmcnt(0)")
        a("s_mov_b32 s54, 256")
        a("s_mov_b32 s55, 0x20000")
        a("buffer_store_dword v0, v3, s[52:55], 0 offen")
        a.label("L_nodbgst")
        a("s_mov_b64 exec, -1")
        a("s_waitcnt vmcnt(0)")

    def prologue(self):
        a = self.a
        a(f"s_cmp_ge_u32 {sID}, 256")
        a("s_cbranch_scc1 L_end")
        if self.prof:
            a("s_memtime s[100:101]")
            a("s_memrealtime s[6:7]")
        a("s_load_dwordx16 s[64:79], s[0:1], 0")
        a("s_load_dwordx8 s[80:87], s[0:1], 64")
        a("s_load_dwordx2 s[88:89], s[0:1], 96")
        a(f"s_and_b32 {sA}, {sID}, 7")
        a(f"s_lshr_b32 {sB}, {sID}, 6")
        a(f"s_lshl_b32 {sB}, {sB}, 3")
        a(f"s_add_u32 {sC}, {sA}, {sB}")
        a(f"s_lshr_b32 {sM}, {sID}, 3")
        a(f"s_and_b32 {sM}, {sM}, 7")
        a(f"s_lshl_b32 {sT0}, {sC}, 6")
        a(f"s_getreg_b32 {sXCC}, hwreg(HW_REG_XCC_ID)")
        a(f"s_and_b32 {sXCC}, {sXCC}, 7")
        a("v_lshrrev_b32 v3, 6, v0")
        a("v_and_b32 v1, 63, v0")
        a(f"v_readfirstlane_b32 {sW}, v3")
        a("v_lshlrev_b32 v2, 4, v1")
        a(f"s_lshr_b32 {sFT}, {sW}, 2")
        a(f"s_lshr_b32 {sTT}, {sW}, 1")
        a(f"s_and_b32 {sTT}, {sTT}, 1")
        a(f"s_and_b32 {sKH}, {sW}, 1")
        a("s_waitcnt lgkmcnt(0)")
        if self.prof:
            a("v_mov_b32 v0, 0")
            a("s_mov_b32 s101, s6")
        self.stamp("args")
        def mk(b, lo, size):
            a(f"s_mov_b32 s{b}, s{lo}")
            a(f"s_mov_b32 s{b+1}, s{lo+1}")
            a(f"s_mov_b32 s{b+2}, 0x{size:x}")
            a(f"s_mov_b32 s{b+3}, 0x20000")
        mk(SRD_X, 64, 0x200000)
        mk(SRD_WS, 88, WS_SIZE)
        a(f"s_load_dword {sTag}, s[88:89], {WS_EPOCH}")
        mk(SRD_WK, 68, 0x4000)
        mk(SRD_WV, 70, 0x4000)
        mk(SRD_WQ, 66, 0x80000)
        self.mk = mk

    def rest_srds(self):
        mk = self.mk
        mk(SRD_WO, 72, 0x80000)
        mk(SRD_W1, 76, 0x1C0000)
        mk(SRD_B1, 78, 3584)
        mk(SRD_W2, 80, 0x1C0000)
        mk(SRD_B2, 82, 1024)
        mk(SRD_OUT, 84, 0x200000)

    def dma(self, voff, srdb, soff, m0, tag, extra=""):
        a = self.a
        a(f"s_mov_b32 m0, {m0}")
        a.vmem(f"buffer_load_dwordx4 {voff}, {srd(srdb)}, {soff} offen {extra} lds", tag)

    def p1(self):
        a = self.a
        X = self.opt
        ROW = 4
        vXa, vKVo, vWAo, vXt = "v16", "v18", "v19", "v17"
        LDS_WK = 64 * 1024
        LDS_WV = 80 * 1024
        LDS_WA = 96 * 1024
        sG1 = "s67"
        a(f"s_lshl_b32 {sA}, {sM}, 3")
        a(f"s_add_u32 {sA}, {sA}, {sT0}")
        a(f"s_add_u32 {sB}, {sA}, {sW}")
        a(f"s_lshl_b32 {sB}, {sB}, 10")
        a(f"buffer_load_dwordx4 {vr(ROW,4)}, v2, {srd(SRD_X)}, {sB} offen")
        a("v_lshrrev_b32 v8, 3, v1")
        a("v_and_b32 v9, 7, v1")
        a("v_lshrrev_b32 v10, 1, v8")
        a("v_xor_b32 v10, v10, v9")
        a(f"s_and_b32 {sB}, {sM}, 1")
        a(f"s_lshl_b32 {sB}, {sB}, 2")
        a(f"v_xor_b32 v10, {sB}, v10")
        a("v_lshlrev_b32 v10, 4, v10")
        a(f"v_lshl_add_u32 {vXa}, v8, 10, v10")
        def xa_dma(gs, cs, voff):
            a(f"s_lshl_b32 {sD}, {gs}, 13")
            a(f"s_lshl_b32 {sE_}, {cs}, 7")
            a(f"s_add_u32 {sD}, {sD}, {sE_}")
            a(f"s_add_u32 {sD}, {sD}, s68")
            a(f"s_lshl_b32 {sE_}, {cs}, 13")
            a(f"s_lshl_b32 {sF}, {gs}, 10")
            a(f"s_add_u32 m0, {sE_}, {sF}")
            a(f"buffer_load_dwordx4 {voff}, {srd(SRD_X)}, {sD} offen lds")
        self.xa_dma = xa_dma
        a(f"s_lshl_b32 s68, {sT0}, 10")
        xa_dma(sM, sW, vXa)
        a("v_lshrrev_b32 v8, 1, v1")
        a("v_and_b32 v9, 0x13, v8")
        a("v_bfe_u32 v10, v8, 2, 1")
        a("v_lshl_or_b32 v9, v10, 3, v9")
        a("v_bfe_u32 v10, v8, 3, 1")
        a("v_lshl_or_b32 v9, v10, 2, v9")
        a("v_lshlrev_b32 v9, 5, v9")
        a("v_and_b32 v10, 1, v1")
        a(f"v_lshl_or_b32 {vKVo}, v10, 4, v9")
        a(f"s_lshl_b32 {sD}, {sW}, 11")
        for k in range(2):
            a(f"s_add_u32 m0, {sD}, {LDS_WK}")
            a(f"buffer_load_dwordx4 {vKVo}, {srd(SRD_WK)}, {sD} offen lds")
            a(f"s_add_u32 m0, {sD}, {LDS_WV}")
            a(f"buffer_load_dwordx4 {vKVo}, {srd(SRD_WV)}, {sD} offen lds")
            if k == 0: a(f"s_add_u32 {sD}, {sD}, 1024")
        a("v_lshrrev_b32 v8, 3, v1")
        a("v_and_b32 v9, 7, v1")
        a("v_bfe_u32 v10, v1, 4, 1")
        a("v_lshlrev_b32 v10, 2, v10")
        a("v_xor_b32 v9, v9, v10")
        a("v_lshlrev_b32 v9, 4, v9")
        a(f"v_lshl_add_u32 {vWAo}, v8, 10, v9")
        a(f"s_add_u32 {sG1}, {sM}, 1")
        a(f"s_and_b32 {sG1}, {sG1}, 7")
        NBULK = 20
        def bulk():
            a(f"s_sub_u32 {sA}, {sW}, 2")
            a(f"s_add_u32 {sB}, {sA}, 2")
            for i in range(9):
                a(f"s_lshr_b32 s4, {sB}, 3")
                a(f"s_add_u32 s4, s4, 1")
                a(f"s_and_b32 s5, s4, 1")
                a(f"s_lshl_b32 s5, s5, 6")
                a(f"v_xor_b32 {vXt}, s5, {vXa}")
                a(f"s_add_u32 s4, s4, {sM}")
                a(f"s_and_b32 s4, s4, 7")
                a(f"s_and_b32 s5, {sB}, 7")
                xa_dma("s4", "s5", vXt)
                if i < 8: a(f"s_add_u32 {sB}, {sB}, 6")
            a(f"s_lshl_b32 {sD}, {sA}, 13")
            a(f"s_lshl_b32 {sE_}, {sM}, 7")
            a(f"s_add_u32 {sD}, {sD}, {sE_}")
            a(f"s_lshl_b32 {sE_}, {sA}, 10")
            a(f"s_add_u32 {sE_}, {sE_}, {LDS_WA}")
            for i in range(11):
                if i == 10:
                    a(f"s_cmp_ge_u32 {sA}, 4")
                    a("s_cbranch_scc1 L_blk_done")
                a(f"s_mov_b32 m0, {sE_}")
                a(f"buffer_load_dwordx4 {vWAo}, {srd(SRD_WQ)}, {sD} offen lds")
                if i < 10:
                    a(f"s_add_u32 {sD}, {sD}, {6*8192}")
                    a(f"s_add_u32 {sE_}, {sE_}, {6*1024}")
            a.label("L_blk_done")
        early = X.get("bulk", 0) == 1
        if early:
            a("s_barrier")
            a(f"s_cmp_lt_u32 {sW}, 2")
            a("s_cbranch_scc1 L_nobulk0")
            bulk()
            a.label("L_nobulk0")
        self.rest_srds()
        XF, WF = 64, 128
        a(f"s_cmp_ge_u32 {sW}, 2")
        a("s_cbranch_scc1 L_no_ones")
        for i in range(64):
            a(f"v_mov_b32 v{XF+i}, 0x3f803f80" if i == 0 else f"v_mov_b32 v{XF+i}, v{XF}")
        a.label("L_no_ones")
        if early:
            a(f"s_cmp_lt_u32 {sW}, 2")
            a("s_cbranch_scc1 L_rw0")
            a("s_waitcnt vmcnt(24)")
            a("s_branch L_rw1")
            a.label("L_rw0")
            a("s_waitcnt vmcnt(5)")
            a.label("L_rw1")
        else:
            a("s_waitcnt vmcnt(5)")
        a("s_mov_b32 s3, 0x3f803f80")
        a(f"v_dot2_f32_bf16 v8, v{ROW}, s3, 0")
        a(f"v_dot2_f32_bf16 v9, v{ROW}, v{ROW}, 0")
        for i in range(1, 4):
            a(f"v_dot2_f32_bf16 v8, v{ROW+i}, s3, v8")
            a(f"v_dot2_f32_bf16 v9, v{ROW+i}, v{ROW+i}, v9")
        self.wave_reduce(["v8", "v9"], "add", ["v10", "v11"])
        a(f"v_mul_f32 v8, 0x{f32bits(1/512):x}, v8")
        a(f"v_mul_f32 v9, 0x{f32bits(1/512):x}, v9")
        a("v_fma_f32 v9, -v8, v8, v9")
        a("v_max_f32 v9, 0, v9")
        a(f"v_add_f32 v9, 0x{f32bits(1e-5):x}, v9")
        a("v_rsq_f32 v9, v9")
        a(f"s_lshl_b32 {sA}, {sW}, 3")
        a(f"s_lshl_b32 {sB}, {sG1}, 10")
        a(f"s_add_u32 {sA}, {sA}, {sB}")
        a(f"v_lshlrev_b32 v10, 13, v1")
        a(f"v_add_u32 v10, {sA}, v10")
        a("s_mov_b64 exec, 3")
        a("ds_write_b64 v10, v[8:9]")
        a("s_mov_b64 exec, -1")
        if early:
            a(f"s_cmp_lt_u32 {sW}, 2")
            a("s_cbranch_scc1 L_b1a")
            a("s_waitcnt vmcnt(19) lgkmcnt(0)")
            a("s_branch L_b1b")
            a.label("L_b1a")
            a("s_waitcnt vmcnt(0) lgkmcnt(0)")
            a.label("L_b1b")
        else:
            a("s_waitcnt vmcnt(0) lgkmcnt(0)")
        a("s_barrier")
        self.stamp("b1")
        a(f"s_cmp_lt_u32 {sW}, 2")
        a("s_cbranch_scc1 L_kv_go")
        if not early: bulk()
        a("s_branch L_kv_done")
        a.label("L_kv_go")
        a("v_and_b32 v8, 7, v1")
        a(f"s_lshl_b32 {sA}, {sM}, 3")
        a(f"v_add_u32 v8, {sA}, v8")
        a("v_bfe_u32 v9, v8, 1, 3")
        a("v_lshrrev_b32 v10, 4, v1")
        a("v_xor_b32 v9, v9, v10")
        a("v_lshlrev_b32 v9, 4, v9")
        a("v_lshl_add_u32 v20, v8, 7, v9")
        a("v_xor_b32 v21, 64, v20")
        a("v_bfe_u32 v8, v1, 4, 1")
        a("v_bfe_u32 v9, v1, 2, 2")
        a("v_lshl_add_u32 v8, v8, 2, v9")
        a("v_lshlrev_b32 v8, 5, v8")
        a("v_lshrrev_b32 v9, 5, v1")
        a("v_lshl_add_u32 v8, v9, 9, v8")
        a("v_and_b32 v9, 3, v1")
        a("v_lshl_add_u32 v8, v9, 3, v8")
        a(f"s_lshl_b32 {sA}, {sW}, 14")
        a(f"s_add_u32 {sA}, {sA}, {LDS_WK}")
        a(f"v_add_u32 v22, {sA}, v8")
        a("s_mov_b32 exec_lo, 0x00ff00ff")
        a("s_mov_b32 exec_hi, 0x00ff00ff")
        for s in range(16):
            a.ds(f"ds_read_b128 {vr(XF+4*s,4)}, {'v20' if s%2==0 else 'v21'} offset:{(s>>1)*8192}", f"x{s}")
        a("s_mov_b64 exec, -1")
        D = 24
        a(f"s_cmp_eq_u32 {sW}, 1")
        a("s_cbranch_scc1 L_vwave")
        saved_lg = list(a.lg)
        for wave in ("K", "V"):
            a.lg = list(saved_lg)
            if wave == "V": a.label("L_vwave")
            def wread(s):
                a.ds(f"ds_read_b64_tr_b16 {vr(WF+4*s,2)}, v22 offset:{s*1024}", f"w{s}")
                a.ds(f"ds_read_b64_tr_b16 {vr(WF+4*s+2,2)}, v22 offset:{s*1024+256}", f"w{s}")
            for s in range(4): wread(s)
            for s in range(16):
                a.wait_lg(f"w{s}")
                srcC = "0" if s == 0 else vr(D, 4)
                if wave == "K":
                    a(f"v_mfma_f32_16x16x32_bf16 {vr(D,4)}, {vr(WF+4*s,4)}, {vr(XF+4*s,4)}, {srcC}")
                else:
                    a(f"v_mfma_f32_16x16x32_bf16 {vr(D,4)}, {vr(XF+4*s,4)}, {vr(WF+4*s,4)}, {srcC}")
                if s + 4 < 16: wread(s + 4)
            a(f"s_lshl_b32 {sA}, {sC}, 3")
            a(f"s_add_u32 {sA}, {sA}, {sM}")
            a(f"s_lshl_b32 {sB}, {sA}, 10")
            a(f"s_add_u32 {sB}, {sB}, {WS_KV}")
            if wave == "K":
                a("v_and_b32 v8, 7, v1")
                a("v_lshlrev_b32 v8, 3, v8")
                a(f"s_lshl_b32 s4, {sG1}, 10")
                a(f"v_add_u32 v8, s4, v8")
                a.ds("ds_read_b64 v[10:11], v8", "st")
                for r in range(4):
                    a(f"v_mov_b32_dpp v{28+r}, v{D+r} row_ror:8 row_mask:0xf bank_mask:0xf")
                a.wait_lg("st")
                for r in range(4):
                    a(f"v_fma_f32 v{D+r}, -v10, v{28+r}, v{D+r}")
                for r in range(4):
                    a(f"v_mul_f32 v{D+r}, v11, v{D+r}")
                a(f"v_cvt_pk_bf16_f32 v32, v{D}, v{D+1}")
                a(f"v_cvt_pk_bf16_f32 v33, v{D+2}, v{D+3}")
                a("v_mov_b32 v34, v32")
                a("v_mov_b32 v35, v33")
                a("v_permlane32_swap_b32 v32, v34")
                a("v_permlane32_swap_b32 v33, v35")
                a("v_bfe_u32 v8, v1, 4, 1")
                a("v_and_b32 v9, 7, v1")
                a("v_lshlrev_b32 v9, 4, v9")
                a("v_lshl_add_u32 v8, v8, 7, v9")
                a("s_mov_b32 exec_lo, 0x00ff00ff")
                a("s_mov_b32 exec_hi, 0")
                a(f"buffer_store_dwordx4 v[32:35], v8, {srd(SRD_WS)}, {sB} offen sc1")
                a("s_mov_b64 exec, -1")
                a("v_dot2_f32_bf16 v12, v32, v32, 0")
                for i in (33, 34, 35):
                    a(f"v_dot2_f32_bf16 v12, v{i}, v{i}, v12")
                a("v_mov_b32 v13, v12")
                a("v_permlane16_swap_b32 v12, v13")
                a("v_add_f32 v12, v12, v13")
                a("v_and_b32 v13, 8, v1")
                a("v_cmp_eq_u32 vcc, 0, v13")
                a("v_cndmask_b32 v12, 0, v12, vcc")
                for n in (8, 4, 2, 1):
                    a(f"v_max_f32_dpp v12, v12, v12 row_ror:{n} row_mask:0xf bank_mask:0xf")
                a(f"v_readlane_b32 {sD}, v12, 0")
                a(f"s_add_u32 {sD}, {sD}, 8")
                a(f"s_and_b32 {sD}, {sD}, 0xfffffff8")
                a(f"s_or_b32 {sD}, {sD}, {sXCC}")
                a(f"s_mov_b32 s3, {sD}")
                a(f"s_mov_b32 {sG}, {sA}")
                a("s_branch L_kv_fin")
            else:
                a("v_bfe_u32 v8, v1, 4, 1")
                a("v_lshlrev_b32 v8, 5, v8")
                a(f"s_lshl_b32 s4, {sG1}, 10")
                a(f"s_add_u32 s4, s4, 8192")
                a(f"v_add_u32 v8, s4, v8")
                a.ds("ds_read_b128 v[12:15], v8", "st")
                a.ds("ds_read_b128 v[36:39], v8 offset:16", "st")
                a("v_and_b32 v9, 7, v1")
                a("v_lshlrev_b32 v9, 3, v9")
                a(f"v_add_u32 v40, s4, v9")
                a.ds("ds_read_b64 v[42:43], v40", "st")
                a(f"v_mov_b32 v28, v{D}")
                a(f"v_mov_b32 v29, v{D}")
                a("v_permlane32_swap_b32 v28, v29")
                a.wait_lg("st")
                st = [(12, 13), (14, 15), (36, 37), (38, 39)]
                for r in range(4):
                    a(f"v_fma_f32 v{D+r}, -v{st[r][0]}, v29, v{D+r}")
                for r in range(4):
                    a(f"v_mul_f32 v{D+r}, v{st[r][1]}, v{D+r}")
                a(f"v_cvt_pk_bf16_f32 v32, v{D}, v{D+1}")
                a(f"v_cvt_pk_bf16_f32 v33, v{D+2}, v{D+3}")
                a("v_mov_b32 v34, v32")
                a("v_mov_b32 v35, v33")
                a("v_permlane16_swap_b32 v32, v34")
                a("v_permlane16_swap_b32 v33, v35")
                a("v_add_u32 v8, 256, v2")
                a("s_mov_b64 exec, 0xffff")
                a(f"buffer_store_dwordx4 v[32:35], v8, {srd(SRD_WS)}, {sB} offen sc1")
                a("s_mov_b64 exec, 0xff")
                a("v_add_u32 v9, 512, v9")
                a(f"buffer_store_dwordx2 v[42:43], v9, {srd(SRD_WS)}, {sB} offen sc1")
                a("s_mov_b64 exec, -1")
                a(f"s_mov_b32 {sG}, {sA}")
        a.lg = []
        a.label("L_kv_fin")
        self.stamp("kvst")
        a(f"v_xor_b32 {vXt}, 64, {vXa}")
        xa_dma(sG1, sW, vXt)
        a("s_waitcnt vmcnt(1)")
        self.kv_flag()
        self.stamp("kvfl")
        a("s_waitcnt vmcnt(1)")
        a("s_branch L_b2")
        a.label("L_kv_done")
        a("s_waitcnt vmcnt(0)")
        a.label("L_b2")
        a("s_barrier")
        self.stamp("b2")
        a.vm = []
        AF, BF, ACC, CS = 64, 128, 32, 48
        vAe, vAo = "v20", "v21"
        vB = ["v22", "v23", "v24", "v25"]
        a("v_bfe_u32 v8, v1, 2, 2")
        a("v_lshrrev_b32 v9, 5, v1")
        a("v_lshl_add_u32 v9, v9, 3, v8")
        a("v_lshlrev_b32 v9, 7, v9")
        a("v_bfe_u32 v10, v1, 4, 1")
        a(f"v_xor_b32 v10, {sKH}, v10")
        a("v_lshlrev_b32 v10, 5, v10")
        a("v_and_b32 v11, 3, v1")
        a("v_lshl_add_u32 v10, v11, 3, v10")
        a(f"s_lshl_b32 {sA}, {sFT}, 6")
        a(f"v_add_u32 v10, {sA}, v10")
        a("v_bfe_u32 v11, v1, 3, 1")
        a("v_lshlrev_b32 v11, 6, v11")
        a("v_xor_b32 v10, v10, v11")
        a("v_add_u32 v9, v9, v10")
        a(f"s_lshl_b32 {sA}, {sKH}, 15")
        a(f"s_add_u32 {sA}, {sA}, {LDS_WA}")
        a(f"s_lshl_b32 {sB}, {sTT}, 11")
        a(f"s_add_u32 {sD}, {sA}, {sB}")
        a(f"v_add_u32 {vAe}, {sD}, v9")
        a(f"s_sub_u32 {sD}, {sA}, {sB}")
        a(f"v_add_u32 {vAo}, {sD}, v9")
        a("v_and_b32 v8, 31, v1")
        a("v_bfe_u32 v9, v1, 1, 3")
        a("v_lshrrev_b32 v10, 5, v1")
        a("v_xor_b32 v9, v9, v10")
        a("v_lshlrev_b32 v9, 4, v9")
        a("v_lshl_add_u32 v8, v8, 7, v9")
        a(f"s_lshl_b32 {sA}, {sKH}, 15")
        a(f"s_lshl_b32 {sB}, {sTT}, 12")
        a(f"s_add_u32 {sA}, {sA}, {sB}")
        a(f"v_add_u32 v8, {sA}, v8")
        a(f"s_lshl_b32 {sB}, {sTT}, 5")
        a(f"v_xor_b32 {vB[0]}, {sB}, v8")
        a(f"v_xor_b32 {vB[1]}, 32, {vB[0]}")
        a(f"v_xor_b32 {vB[2]}, 64, {vB[0]}")
        a(f"v_xor_b32 {vB[3]}, 96, {vB[0]}")
        a("s_mov_b32 s5, 0x3f803f80")
        NB = 5
        def qread(p):
            c, q = p >> 2, p & 3
            sl = p % NB
            va = vAe if q % 2 == 0 else vAo
            off = c * 8192 + q * 2048
            a.ds(f"ds_read_b64_tr_b16 {vr(AF+4*sl,2)}, {va} offset:{off}", f"q{p}")
            a.ds(f"ds_read_b64_tr_b16 {vr(AF+4*sl+2,2)}, {va} offset:{off+512}", f"q{p}")
            a.ds(f"ds_read_b128 {vr(BF+4*sl,4)}, {vB[q]} offset:{c*8192}", f"q{p}")
        PRE = 4
        self.stamp("q0")
        for p in range(PRE): qread(p)
        for p in range(16):
            sl = p % NB
            a.wait_lg(f"q{p}")
            srcC = "0" if p == 0 else vr(ACC, 16)
            a(f"v_mfma_f32_32x32x16_bf16 {vr(ACC,16)}, {vr(AF+4*sl,4)}, {vr(BF+4*sl,4)}, {srcC}")
            if p % 2 == 0:
                for i in range(4):
                    src2 = "0" if (p == 0 and i == 0) else f"v{CS}"
                    a(f"v_dot2_f32_bf16 v{CS}, v{AF+4*sl+i}, s5, {src2}")
            nx = p + PRE
            if nx < 16: qread(nx)
        self.stamp("q1")
        LDS_E = 64 * 1024
        LDS_CS = 80 * 1024
        a(f"s_lshl_b32 {sA}, {sW}, 11")
        a(f"s_add_u32 {sA}, {sA}, {LDS_E}")
        a(f"v_add_u32 v8, {sA}, v2")
        a(f"ds_write_b128 v8, {vr(ACC+8,4)}")
        a(f"ds_write_b128 v8, {vr(ACC+12,4)} offset:1024")
        a(f"v_mov_b32 v9, v{CS}")
        a(f"v_permlane32_swap_b32 v{CS}, v9")
        a(f"v_add_f32 v9, v{CS}, v9")
        a("v_and_b32 v10, 31, v1")
        a(f"s_lshl_b32 {sA}, {sKH}, 4")
        a(f"v_xor_b32 v10, {sA}, v10")
        a(f"s_lshl_b32 {sA}, {sKH}, 1")
        a(f"s_add_u32 {sA}, {sA}, {sTT}")
        a(f"s_lshl_b32 {sA}, {sA}, 1")
        a(f"s_add_u32 {sA}, {sA}, {sFT}")
        a(f"s_lshl_b32 {sA}, {sA}, 7")
        a(f"s_add_u32 {sA}, {sA}, {LDS_CS}")
        a("v_lshlrev_b32 v10, 2, v10")
        a(f"v_add_u32 v10, {sA}, v10")
        a("ds_write_b32 v10, v9")
        a("s_waitcnt lgkmcnt(0)")
        a("s_barrier")
        self.stamp("q2")
        a.lg = []
        a(f"s_xor_b32 {sA}, {sW}, 1")
        a(f"s_lshl_b32 {sA}, {sA}, 11")
        a(f"s_add_u32 {sA}, {sA}, {LDS_E}")
        a(f"v_add_u32 v8, {sA}, v2")
        a.ds(f"ds_read_b128 {vr(64,4)}, v8", "e")
        a.ds(f"ds_read_b128 {vr(68,4)}, v8 offset:1024", "e")
        a("v_lshrrev_b32 v9, 5, v1")
        a("v_lshlrev_b32 v9, 4, v9")
        a(f"s_lshl_b32 {sA}, {sFT}, 7")
        a(f"s_lshl_b32 {sB}, {sKH}, 6")
        a(f"s_add_u32 {sA}, {sA}, {sB}")
        a(f"s_add_u32 {sA}, {sA}, {LDS_CS}")
        a(f"v_add_u32 v9, {sA}, v9")
        for q in range(4):
            a.ds(f"ds_read_b128 {vr(72+8*q,4)}, v9 offset:{q*256}", "cs")
            a.ds(f"ds_read_b128 {vr(76+8*q,4)}, v9 offset:{q*256+32}", "cs")
        a.wait_lg("e")
        for i in range(8):
            a(f"v_add_f32 v{ACC+i}, v{ACC+i}, v{64+i}")
        a.wait_lg("cs")
        for i in range(8):
            a(f"v_add_f32 v{72+i}, v{72+i}, v{80+i}")
            a(f"v_add_f32 v{88+i}, v{88+i}, v{96+i}")
        for i in range(8):
            a(f"v_add_f32 v{40+i}, v{72+i}, v{88+i}")


    def poll_begin(self, name, limit=200000):
        a = self.a
        a(f"s_mov_b32 {sCnt}, {limit}")
        a.label(f"L_poll_{name}")
    def poll_end(self, name, sleep=1):
        a = self.a
        a(f"s_cbranch_vccz L_pollok_{name}")
        a(f"s_sub_u32 {sCnt}, {sCnt}, 1")
        a(f"s_cmp_eq_u32 {sCnt}, 0")
        a(f"s_cbranch_scc1 L_pollok_{name}")
        if sleep: a(f"s_sleep {sleep}")
        a(f"s_branch L_poll_{name}")
        a.label(f"L_pollok_{name}")

    def p2(self):
        a = self.a
        X = self.opt
        LDS_E = 132 * 1024
        Q, NEGM, S0, S1, IDX, O, KF, VF = 4, 8, 24, 40, 56, 64, 80, 88
        vKa, vVa, vKb, vVb = "v104", "v105", "v106", "v107"
        vT1, vT2 = "v108", "v109"
        PL = 110
        WD = 112
        W1 = 128
        sTG = "s3"
        a(f"s_add_u32 {sTG}, {sTag}, 1")
        self.stamp("b3")
        if X.get("kvsleep", 0):
            a(f"s_sleep {X['kvsleep']}")
        LDS_BC = 156 * 1024
        vDK, vDV = "v59", "v60"
        a("v_bfe_u32 v59, v1, 3, 2")
        a("v_lshlrev_b32 v59, 10, v59")
        a("v_and_b32 v13, 7, v1")
        a("v_lshl_or_b32 v59, v13, 4, v59")
        a("v_lshrrev_b32 v13, 5, v1")
        a("v_lshl_or_b32 v59, v13, 7, v59")
        a("v_lshrrev_b32 v60, 4, v1")
        a("v_lshlrev_b32 v60, 10, v60")
        a("v_and_b32 v13, 15, v1")
        a("v_lshl_or_b32 v60, v13, 4, v60")
        a("v_add_u32 v60, 256, v60")
        sRot = "s64"
        a(f"s_lshr_b32 {sRot}, {sID}, 3")
        a(f"s_lshl_b32 {sRot}, {sRot}, 1")
        a("v_bfe_u32 v8, v1, 3, 2")
        a("v_and_b32 v9, 7, v1")
        a("v_lshlrev_b32 v9, 3, v9")
        a("v_lshl_add_u32 v8, v8, 10, v9")
        a(f"s_lshl_b32 {sA}, {sC}, 3")
        a(f"s_lshl_b32 {sB}, {sTT}, 2")
        a(f"s_add_u32 {sA}, {sA}, {sB}")
        a(f"s_lshl_b32 {sA}, {sA}, 10")
        a(f"s_add_u32 s65, {sA}, {WS_KV + 512}")
        allpoll = X.get("allpoll", 0)
        if not allpoll:
            a(f"s_cmp_eq_u32 {sW}, 7")
            a("s_cbranch_scc0 L_nopollkv")
        a("v_lshlrev_b32 v3, 6, v1")
        a(f"s_mov_b32 {sA}, {WS_FLKV}")
        self.poll_begin("kv")
        for q in range(4):
            a(f"buffer_load_dwordx4 {vr(64+4*q,4)}, v3, {srd(SRD_WS)}, {sA} offen offset:{16*q} sc1")
        a("s_waitcnt vmcnt(0)")
        a(f"v_xor_b32 v80, {sTG}, v64")
        a(f"v_xor_b32 v81, {sTG}, v66")
        a("v_or_b32 v80, v80, v81")
        for q in range(1, 4):
            a(f"v_xor_b32 v81, {sTG}, v{64+4*q}")
            a("v_or_b32 v80, v80, v81")
            a(f"v_xor_b32 v81, {sTG}, v{66+4*q}")
            a("v_or_b32 v80, v80, v81")
        a("v_cmp_ne_u32 vcc, 0, v80")
        self.poll_end("kv", sleep=X.get("kvsl", 2))
        if not allpoll:
            a.label("L_nopollkv")
            a("s_barrier")
        self.stamp("kvok")
        a(f"buffer_load_dwordx2 v[10:11], v8, {srd(SRD_WS)}, s65 offen sc1")
        def kv_tile(spos):
            a(f"s_add_u32 {sD}, {spos}, {sRot}")
            a(f"s_and_b32 {sD}, {sD}, 63")
            a(f"s_lshl_b32 {sD}, {sD}, 12")
            a(f"s_add_u32 {sD}, {sD}, {WS_KV}")
            a(f"s_lshl_b32 {sE_}, {spos}, 11")
            a(f"s_mov_b32 m0, {sE_}")
            a(f"buffer_load_dwordx4 {vDK}, {srd(SRD_WS)}, {sD} offen sc1 lds")
            a(f"s_add_u32 {sE_}, {sE_}, 1024")
            a(f"s_mov_b32 m0, {sE_}")
            a(f"buffer_load_dwordx4 {vDV}, {srd(SRD_WS)}, {sD} offen sc1 lds")
        a(f"s_mov_b32 {sF}, {sW}")
        kv_tile(sF)
        a(f"s_add_u32 {sF}, {sW}, 8")
        kv_tile(sF)
        self.wt_issue()
        a(f"s_cmp_eq_u32 {sW}, 7")
        a("s_cbranch_scc0 L_nobc")
        a("v_and_b32 v80, -8, v65")
        for q in range(1, 4):
            a(f"v_and_b32 v81, -8, v{65+4*q}")
            a("v_max_f32 v80, v80, v81")
        a(f"v_xor_b32 v82, {sXCC}, v65")
        for q in range(1, 4):
            a(f"v_xor_b32 v81, {sXCC}, v{65+4*q}")
            a("v_or_b32 v82, v82, v81")
        a("v_and_b32 v82, 7, v82")
        a("v_cmp_ne_u32 vcc, 0, v82")
        a(f"s_lshl_b32 {sA}, {sC}, 1")
        a(f"s_lshr_b64 {sX64}, vcc, {sA}")
        a(f"s_and_b32 {sFast}, s4, 3")
        if X.get("slow"): a(f"s_mov_b32 {sFast}, 1")
        self.wave_reduce(["v80"], "max", ["v81"])
        a("v_sqrt_f32 v80, v80")
        a(f"v_mov_b32 v81, {sFast}")
        a(f"v_mov_b32 v82, {LDS_BC}")
        a("s_mov_b64 exec, 1")
        a("ds_write_b64 v82, v[80:81]")
        a("s_mov_b64 exec, -1")
        a.label("L_nobc")
        a(f"s_or_b32 {sA}, {sID}, {sW}")
        a(f"s_cmp_lg_u32 {sA}, 0")
        a("s_cbranch_scc1 L_noepoch")
        a(f"v_mov_b32 v81, {sTG}")
        a("v_mov_b32 v82, 0")
        a("s_mov_b64 exec, 1")
        a(f"buffer_store_dword v81, v82, {srd(SRD_WS)}, 0 offen")
        a("s_mov_b64 exec, -1")
        a.label("L_noepoch")
        a("s_waitcnt vmcnt(6)")
        a(f"v_mul_f32 v11, 0x{f32bits(0.25*LOG2E):x}, v11")
        for i in range(8):
            a(f"v_fma_f32 v{32+i}, -v10, v{40+i}, v{32+i}")
        for i in range(8):
            a(f"v_mul_f32 v{32+i}, v11, v{32+i}")
        for i in range(4):
            a(f"v_cvt_pk_bf16_f32 v{Q+i}, v{32+2*i}, v{33+2*i}")
        if self.stop == "q":
            self.dump_regs(0, [Q, Q+1, Q+2, Q+3], WS_DBG)
            return
        a(f"v_dot2_f32_bf16 v12, v{Q}, v{Q}, 0")
        for i in range(1, 4):
            a(f"v_dot2_f32_bf16 v12, v{Q+i}, v{Q+i}, v12")
        a("v_mov_b32 v13, v12")
        a("v_permlane32_swap_b32 v12, v13")
        a("v_add_f32 v12, v12, v13")
        a("v_sqrt_f32 v12, v12")
        a(f"v_mul_f32 v12, 0x{f32bits(1.0078125):x}, v12")
        def bound_check():
            a("v_mul_f32 v12, v12, v62")
            a(f"v_cmp_lt_f32 vcc, 0x{f32bits(48.0):x}, v12")
            a("v_cmp_u_f32 s[4:5], v12, v12")
            a("s_or_b64 vcc, vcc, s[4:5]")
            a("s_cmp_lg_u64 vcc, 0")
            a(f"s_cselect_b32 {sG}, 1, 0")
            a(f"v_readfirstlane_b32 {sFast}, v63")
            if X.get("forcefb"): a(f"s_mov_b32 {sG}, 1")
        a(f"v_mov_b32 v{VF}, 0x3f803f80")
        for i in range(1, 16):
            a(f"v_mov_b32 v{VF+i}, v{VF}")
        for i in range(16):
            a(f"v_mov_b32 v{O+i}, 0")
        a(f"v_mov_b32 v{IDX}, 0xdddddddd")
        a(f"v_mov_b32 {vKa}, v2")
        a(f"v_add_u32 {vKb}, 0x10000, v2")
        a("v_and_b32 v3, 15, v1")
        a("v_lshlrev_b32 v3, 4, v3")
        a("v_lshrrev_b32 v61, 5, v1")
        a("v_lshl_or_b32 v3, v61, 8, v3")
        a(f"v_add_u32 {vVa}, 1024, v3")
        a(f"v_add_u32 {vVb}, 0x10000, {vVa}")
        self.wt_addr(vT1, vT2)
        self.wt_poll_addr()
        a("s_mov_b32 s6, 0x0000ffff")
        a("s_mov_b32 s7, 0x0000ffff")
        a(f"v_mov_b32 v61, {LDS_BC}")
        a("s_waitcnt vmcnt(2) lgkmcnt(0)")
        a("s_barrier")
        self.stamp("b4")
        a(f"s_cmp_eq_u32 {sFT}, 0")
        a("s_cbranch_scc1 L_clsA")
        a(f"s_add_u32 {sF}, {sW}, 12")
        a(f"s_mov_b32 {sCnt}, 12")
        a.label("L_kvrest")
        kv_tile(sF)
        a(f"s_add_u32 {sF}, {sF}, 4")
        a(f"s_sub_u32 {sCnt}, {sCnt}, 1")
        a(f"s_cmp_lg_u32 {sCnt}, 0")
        a("s_cbranch_scc1 L_kvrest")
        a("s_setprio 1")
        a("s_waitcnt vmcnt(0)")
        a("s_barrier")
        a(f"s_mov_b32 {sPh}, 1")
        a("s_branch L_clsD")
        a.label("L_clsA")
        a("s_setprio 2")
        a(f"s_mov_b32 {sPh}, 0")
        a.label("L_clsD")

        def kread(t):
            base = vKa if t < 32 else vKb
            a.ds(f"ds_read_b128 {vr(KF+4*(t%2),4)}, {base} offset:{(t%32)*2048}", f"K{t}")
        def vread(t):
            base = vVa if t < 32 else vVb
            a("s_mov_b64 exec, s[6:7]")
            a.ds(f"ds_read_b128 {vr(VF+8*(t%2),4)}, {base} offset:{(t%32)*2048}", f"V{t}")
            a.ds(f"ds_read_b128 {vr(VF+8*(t%2)+4,4)}, {base} offset:{(t%32)*2048+512}", f"V{t}")
            a("s_mov_b64 exec, -1")
        def Sr(t): return S0 if t % 2 == 0 else S1
        def ms(t):
            a.wait_lg(f"K{t}")
            a(f"v_mfma_f32_32x32x16_bf16 {vr(Sr(t),16)}, {vr(KF+4*(t%2),4)}, {vr(Q,4)}, 0")
        def sm(t, half):
            a.wait_lg(f"V{t}")
            a(f"v_smfmac_f32_32x32x32_bf16 {vr(O,16)}, {vr(VF+8*(t%2)+4*half,4)}, {vr(Sr(t)+8*half,8)}, v{IDX}")
        def E(t, lo, hi):
            for i in range(lo, hi + 1): a(f"v_exp_f32 v{Sr(t)+i}, v{Sr(t)+i}")

        TA = dict(wt=X.get("Awt", 10), fl=X.get("Afl", 17), bar=13, sw=X.get("sw", 50))
        TB = dict(wt=X.get("Bwt", 0), fl=X.get("Bfl", 2))
        TPOLL, TCHK, TLD0 = X.get("tpoll", 30), X.get("tchk", 32), X.get("tld", 32)
        def cond(cls, name, fn):
            lab = a.newlabel(f"L_{name}")
            a(f"s_cmp_eq_u32 {sFT}, {cls}")
            a(f"s_cbranch_scc0 {lab}")
            fn()
            a.label(lab)
        def b_wt():
            a("s_waitcnt vmcnt(0)")
            a(f"ds_read_b64_tr_b16 v[{WD}:{WD+1}], {vT1}")
            a(f"ds_read_b64_tr_b16 v[{WD+2}:{WD+3}], {vT1} offset:1024")
            a(f"ds_read_b64_tr_b16 v[{WD+4}:{WD+5}], {vT2}")
            a(f"ds_read_b64_tr_b16 v[{WD+6}:{WD+7}], {vT2} offset:1024")
            a("s_waitcnt lgkmcnt(0)")
            a(f"buffer_store_dwordx4 v[{WD}:{WD+3}], v2, {srd(SRD_WS)}, s88 offen sc1")
            a("s_add_u32 s88, s88, s89")
            a(f"buffer_store_dwordx4 v[{WD+4}:{WD+7}], v2, {srd(SRD_WS)}, s88 offen sc1")
        def b_fl():
            a("s_waitcnt vmcnt(0)")
            a(f"s_lshl_b32 {sA}, {sID}, 3")
            a(f"s_add_u32 {sA}, {sA}, {sW}")
            a(f"s_lshl_b32 {sA}, {sA}, 2")
            a(f"s_add_u32 {sA}, {sA}, {WS_FLWT2}")
            a(f"v_mov_b32 v{WD}, {sTG}")
            a(f"v_mov_b32 v{WD+1}, 0")
            a("s_mov_b64 exec, 1")
            a(f"buffer_store_dword v{WD}, v{WD+1}, {srd(SRD_WS)}, {sA} offen sc1")
            a("s_mov_b64 exec, -1")
        def b_bar():
            lab = a.newlabel("L_b5")
            a(f"s_cmp_eq_u32 {sPh}, 1")
            a(f"s_cbranch_scc1 {lab}")
            a("s_barrier")
            a.label(lab)
        def poll_issue():
            a(f"buffer_load_dword v{PL}, v57, {srd(SRD_WS)}, 0 offen sc1")
            a(f"buffer_load_dword v{PL+1}, v58, {srd(SRD_WS)}, 0 offen sc1")
        def poll_check():
            a("s_waitcnt vmcnt(0)")
            a(f"s_mov_b32 {sCnt}, 200000")
            a.label("L_wtchk")
            a(f"v_xor_b32 v{PL}, {sTG}, v{PL}")
            a(f"v_xor_b32 v{PL+1}, {sTG}, v{PL+1}")
            a(f"v_or_b32 v{PL}, v{PL}, v{PL+1}")
            a(f"v_cmp_ne_u32 vcc, 0, v{PL}")
            a("s_cbranch_vccz L_wtok")
            a(f"s_sub_u32 {sCnt}, {sCnt}, 1")
            a(f"s_cmp_eq_u32 {sCnt}, 0")
            a("s_cbranch_scc1 L_wtok")
            a("s_sleep 2")
            poll_issue()
            a("s_waitcnt vmcnt(0)")
            a("s_branch L_wtchk")
            a.label("L_wtok")
        extras = {t: [] for t in range(64)}
        mid = {t: [] for t in range(64)}
        extras[TA["wt"]].append(lambda: cond(0, "wtA", b_wt))
        extras[TB["wt"]].append(lambda: cond(1, "wtB", b_wt))
        extras[TA["fl"]].append(lambda: cond(0, "flA", b_fl))
        extras[TB["fl"]].append(lambda: cond(1, "flB", b_fl))
        extras[TA["bar"]].append(b_bar)
        extras[TA["sw"]].append(lambda: cond(0, "swA", lambda: a("s_setprio 0")))
        def dirty():
            n = X["dirty"]
            a(f"s_lshl_b32 {sA}, {sID}, 3")
            a(f"s_add_u32 {sA}, {sA}, {sW}")
            a(f"s_mul_i32 {sA}, {sA}, {n*1024}")
            a(f"s_add_u32 {sA}, {sA}, {WS_DBG}")
            for i in range(n):
                a(f"buffer_store_dwordx4 v[4:7], v2, {srd(SRD_WS)}, {sA} offen")
                a(f"s_add_u32 {sA}, {sA}, 1024")
        if X.get("dirty"): extras[20].append(dirty)
        extras[0].insert(0, bound_check)
        extras[TPOLL].append(poll_issue)
        extras[TCHK - 1].append(poll_check)
        def w1load(s_):
            def f():
                a(f"buffer_load_dwordx4 {vr(W1H[s_],4)}, v2, {srd(SRD_WS)}, {sW1B} offen offset:{(s_%4)*1024} sc1")
                if s_ % 4 == 3: a(f"s_add_u32 {sW1B}, {sW1B}, 4096")
            return f
        for s_ in range(NW1PRE):
            mid[TLD0 + s_ // 2].append(w1load(s_))
        def wo_addr():
            a(f"s_lshl_b32 {sA}, {sM}, 1")
            a(f"s_add_u32 {sA}, {sA}, {sFT}")
            a(f"s_lshl_b32 {sA}, {sA}, 5")
            a(f"s_lshl_b32 {sB}, {sKH}, 4")
            a(f"s_add_u32 {sA}, {sA}, {sB}")
            a(f"s_lshl_b32 {sA}, {sA}, 10")
            a(f"s_add_u32 {sWOB}, {sA}, {WS_WOF}")
            a(f"s_lshl_b32 {sB}, {sKH}, 8")
            a(f"v_xor_b32 v57, {sB}, v2")
        extras[TCHK].append(wo_addr)
        def woload(i):
            def f():
                a(f"buffer_load_dwordx4 {vr(WOH[i],4)}, v57, {srd(SRD_WS)}, {sWOB} offen offset:{(i%4)*1024} sc1")
                if i % 4 == 3 and i < 15: a(f"s_add_u32 {sWOB}, {sWOB}, 4096")
            return f
        TWO = TLD0 + NW1PRE // 2
        for i in range(16):
            mid[TWO + i // 2].append(woload(i))

        def pf_addr():
            a(f"s_lshl_b32 {sA}, {sM}, 1")
            a(f"s_add_u32 {sA}, {sA}, {sFT}")
            a(f"s_mul_i32 {sA}, {sA}, 112")
            a(f"s_and_b32 {sB}, {sW}, 3")
            a(f"s_mul_i32 {sB}, {sB}, 28")
            a(f"s_add_u32 {sA}, {sA}, {sB}")
            a(f"s_lshl_b32 {sA}, {sA}, 10")
            a(f"s_add_u32 {sPF}, {sA}, {WS_W2F}")
            a("v_lshlrev_b32 v58, 6, v1")
        def pf(i):
            def f():
                a(f"buffer_load_dword v59, v58, {srd(SRD_WS)}, {sPF} offen sc1")
                a(f"s_add_u32 {sPF}, {sPF}, 4096")
            return f
        def pf_w1():
            a(f"s_add_u32 {sPF}, {sW1B}, 2048")
            a(f"buffer_load_dword v59, v58, {srd(SRD_WS)}, {sPF} offen sc1")
            a(f"buffer_load_dword v59, v58, {srd(SRD_WS)}, {sPF} offen offset:2048 sc1")
        if X.get("pf"):
            TPF = TWO + 8
            extras[TPF - 1].append(pf_addr)
            for i in range(7): mid[TPF + i].append(pf(i))
            mid[TPF + 7].append(pf_w1)

        a.lg = []
        a.ds("ds_read_b64 v[62:63], v61", "bc")
        kread(0); kread(1); vread(0)
        ms(0)
        a("s_nop 11")
        for t in range(64):
            E(t, 0, 1)
            if t > 0: sm(t - 1, 1)
            if t + 1 < 64: vread(t + 1)
            E(t, 2, 5)
            if t + 1 < 64: ms(t + 1)
            if t + 2 < 64: kread(t + 2)
            if mid[t]: mid[t][0]()
            E(t, 6, 11)
            sm(t, 0)
            for f in mid[t][1:]: f()
            E(t, 12, 15)
            for f in extras[t]: f()
        a("s_nop 1")
        sm(63, 1)
        a("s_setprio 0")
        self.stamp("attn")
        a("s_nop 7")
        a("s_nop 3")
        a(f"v_rcp_f32 v3, v{O+8}")
        a(f"v_mul_f32 v80, 0, v{O}")
        a(f"v_mul_f32 v81, 0, v{O+1}")
        for i in range(2, 8, 2):
            a(f"v_fma_f32 v80, v{O+i}, 0, v80")
            a(f"v_fma_f32 v81, v{O+i+1}, 0, v81")
        a("v_add_f32 v80, v80, v81")
        a("v_cmp_u_f32 vcc, v80, v80")
        a("s_cmp_lg_u64 vcc, 0")
        a(f"s_cselect_b32 {sA}, 1, 0")
        a(f"s_or_b32 {sA}, {sA}, {sG}")
        a(f"s_cmp_eq_u32 {sA}, 0")
        a("s_cbranch_scc1 L_nofb")
        a(f"v_mov_b32 v57, {vKa}")
        a("v_mov_b32 v58, 0xff800000")
        a(f"s_mov_b32 {sCnt}, 64")
        a.label("L_fb")
        a(f"ds_read_b128 {vr(KF,4)}, v57")
        a("v_add_u32 v57, 2048, v57")
        a("s_waitcnt lgkmcnt(0)")
        a(f"v_mfma_f32_32x32x16_bf16 {vr(S0,16)}, {vr(KF,4)}, {vr(Q,4)}, 0")
        for i in range(8):
            a(f"v_max3_f32 v58, v{S0+2*i}, v{S0+2*i+1}, v58")
        a(f"s_sub_u32 {sCnt}, {sCnt}, 1")
        a(f"s_cmp_lg_u32 {sCnt}, 0")
        a("s_cbranch_scc1 L_fb")
        a("v_mov_b32 v57, v58")
        a("v_permlane32_swap_b32 v57, v58")
        a("v_max_f32 v58, v57, v58")
        a(f"v_sub_f32 v{S1}, 0, v58")
        for i in range(1, 16):
            a(f"v_mov_b32 v{S1+i}, v{S1}")
        for i in range(16):
            a(f"v_mov_b32 v{O+i}, 0")
        a(f"v_mov_b32 v57, {vKa}")
        a(f"v_mov_b32 v58, {vVa}")
        a(f"s_mov_b32 {sCnt}, 64")
        a.label("L_fb2")
        a(f"ds_read_b128 {vr(KF,4)}, v57")
        a("s_mov_b64 exec, s[6:7]")
        a(f"ds_read_b128 {vr(VF,4)}, v58")
        a(f"ds_read_b128 {vr(VF+4,4)}, v58 offset:512")
        a("s_mov_b64 exec, -1")
        a("v_add_u32 v57, 2048, v57")
        a("v_add_u32 v58, 2048, v58")
        a("s_waitcnt lgkmcnt(0)")
        a(f"v_mfma_f32_32x32x16_bf16 {vr(S0,16)}, {vr(KF,4)}, {vr(Q,4)}, {vr(S1,16)}")
        for i in range(16):
            a(f"v_exp_f32 v{S0+i}, v{S0+i}")
        a(f"v_smfmac_f32_32x32x32_bf16 {vr(O,16)}, {vr(VF,4)}, {vr(S0,8)}, v{IDX}")
        a(f"v_smfmac_f32_32x32x32_bf16 {vr(O,16)}, {vr(VF+4,4)}, {vr(S0+8,8)}, v{IDX}")
        a(f"s_sub_u32 {sCnt}, {sCnt}, 1")
        a(f"s_cmp_lg_u32 {sCnt}, 0")
        a("s_nop 7")
        a("s_nop 7")
        a("s_cbranch_scc1 L_fb2")
        a(f"v_rcp_f32 v3, v{O+8}")
        a.label("L_nofb")
        OP = 40
        for i in range(8):
            a(f"v_mul_f32 v{O+i}, v3, v{O+i}")
        for i in range(4):
            a(f"v_cvt_pk_bf16_f32 v{OP+i}, v{O+2*i}, v{O+2*i+1}")
        a(f"s_lshl_b32 s88, {sM}, 2")
        a(f"s_lshl_b32 {sB}, {sFT}, 1")
        a(f"s_add_u32 s88, s88, {sB}")
        a(f"s_add_u32 s88, s88, {sKH}")
        a(f"s_lshl_b32 {sB}, s88, 1")
        a(f"s_add_u32 {sB}, {sB}, {sTT}")
        a(f"s_lshl_b32 {sB}, {sB}, 10")
        a(f"s_lshl_b32 {sD}, {sC}, 16")
        a(f"s_add_u32 {sB}, {sB}, {sD}")
        a(f"s_add_u32 {sB}, {sB}, {WS_O}")
        a(f"s_lshl_b32 {sD}, {sTT}, 5")
        a(f"s_add_u32 {sD}, {sD}, s88")
        a(f"s_lshl_b32 {sD}, {sD}, 2")
        a(f"s_lshl_b32 {sE_}, {sC}, 8")
        a(f"s_add_u32 {sD}, {sD}, {sE_}")
        a(f"s_add_u32 {sD}, {sD}, {WS_FLO}")
        self.publish("o", [("dwordx4", vr(OP, 4), "v2", sB, 0)], sD)
        self.stamp("opub")

    def wt_addr(self, vT1, vT2):
        a = self.a
        LDS_E = 132 * 1024
        a("v_bfe_u32 v61, v1, 2, 2")
        a("v_lshrrev_b32 v62, 5, v1")
        a("v_lshl_add_u32 v62, v62, 2, v61")
        a("v_lshlrev_b32 v62, 7, v62")
        a("v_bfe_u32 v63, v1, 4, 1")
        a("v_lshlrev_b32 v63, 5, v63")
        a("v_and_b32 v61, 3, v1")
        a("v_lshl_add_u32 v63, v61, 3, v63")
        a("v_bfe_u32 v61, v1, 3, 1")
        a("v_lshlrev_b32 v61, 6, v61")
        a("v_xor_b32 v63, v63, v61")
        a("v_add_u32 v62, v62, v63")
        a(f"s_xor_b32 {sA}, {sW}, 1")
        a(f"s_lshl_b32 {sA}, {sA}, 11")
        a(f"s_add_u32 {sA}, {sA}, {LDS_E}")
        a(f"v_add_u32 {vT1}, {sA}, v62")
        a(f"v_xor_b32 {vT2}, 64, {vT1}")

    def wt_poll_addr(self):
        a = self.a
        a(f"s_cmp_eq_u32 {sW}, 7")
        a("s_cbranch_scc1 L_pa7")
        a(f"s_mul_i32 {sA}, {sM}, 7")
        a(f"s_add_u32 {sA}, {sA}, {sW}")
        a(f"s_lshl_b32 {sW1B}, {sA}, 15")
        a(f"s_add_u32 {sW1B}, {sW1B}, {WS_W1F}")
        a(f"s_lshr_b32 {sA}, {sA}, 1")
        a(f"s_lshl_b32 {sA}, {sA}, 5")
        a(f"s_add_u32 {sA}, {sA}, 256")
        a("s_branch L_pad")
        a.label("L_pa7")
        a(f"s_lshl_b32 {sA}, {sM}, 1")
        a(f"s_add_u32 {sA}, {sA}, 1")
        a(f"s_mul_i32 {sA}, {sA}, 112")
        a(f"s_add_u32 {sA}, {sA}, 98")
        a(f"s_lshl_b32 {sW1B}, {sA}, 10")
        a(f"s_add_u32 {sW1B}, {sW1B}, {WS_W2F}")
        a(f"s_mul_i32 {sA}, {sM}, 112")
        a(f"s_add_u32 {sA}, {sA}, {1152 + 80}")
        a.label("L_pad")
        a(f"s_lshl_b32 {sB}, {sM}, 5")
        a(f"s_sub_u32 {sB}, {sB}, 32")
        a(f"v_mov_b32 v57, {sA}")
        a(f"v_mov_b32 v58, {sB}")
        a("v_cmp_gt_u32 vcc, 32, v1")
        a("v_cndmask_b32 v57, v58, v57, vcc")
        a("v_add_u32 v57, v57, v1")
        a("v_lshlrev_b32 v57, 2, v57")
        a(f"v_add_u32 v57, {WS_FLWT2}, v57")
        a(f"s_mul_i32 {sA}, {sM}, 112")
        a(f"s_mul_i32 {sB}, {sW}, 14")
        a(f"s_add_u32 {sA}, {sA}, {sB}")
        a(f"s_add_u32 {sA}, {sA}, 1152")
        a("v_min_u32 v58, 13, v1")
        a(f"v_add_u32 v58, {sA}, v58")
        a("v_lshlrev_b32 v58, 2, v58")
        a(f"v_add_u32 v58, {WS_FLWT2}, v58")

    def publish(self, name, stores, sflag, pre_exec=None):
        a = self.a
        a(f"v_mov_b32 v104, s3")
        a(f"v_mov_b32 v105, 0")
        a(f"s_cmp_eq_u32 {sFast}, 0")
        a(f"s_cbranch_scc0 L_pub_slow_{name}")
        for variant, mod in (("fast", ""), ("slow", " sc1")):
            if variant == "slow": a.label(f"L_pub_slow_{name}")
            for st in stores:
                ty, data, voff, soff, io = st[:5]
                if len(st) > 5: a(f"s_mov_b32 exec_hi, 0")
                a(f"buffer_store_{ty} {data}, {voff}, {srd(SRD_WS)}, {soff} offen offset:{io}{mod}")
                if len(st) > 5: a("s_mov_b64 exec, -1")
            a("s_waitcnt vmcnt(0)")
            a("s_mov_b64 exec, 1")
            a(f"buffer_store_dword v104, v105, {srd(SRD_WS)}, {sflag} offen{mod}")
            a("s_mov_b64 exec, -1")
            if variant == "fast": a(f"s_branch L_pub_done_{name}")
        a.label(f"L_pub_done_{name}")

    def wt_issue(self):
        a = self.a
        LDS_E = 132 * 1024
        a(f"s_lshl_b32 {sA}, {sID}, 3")
        a(f"s_add_u32 {sA}, {sA}, {sW}")
        a(f"s_cmp_lt_u32 {sA}, 256")
        a("s_cbranch_scc1 L_wt_wo")
        a(f"s_cmp_lt_u32 {sA}, 1152")
        a("s_cbranch_scc1 L_wt_w1")
        a(f"s_sub_u32 {sA}, {sA}, 1152")
        a(f"s_mul_i32 {sB}, {sA}, 9363")
        a(f"s_lshr_b32 {sB}, {sB}, 20")
        a(f"s_mul_i32 {sD}, {sB}, 112")
        a(f"s_sub_u32 {sD}, {sA}, {sD}")
        for i in range(4): a(f"s_mov_b32 s{SRD_T+i}, s{SRD_W2+i}")
        a(f"s_mov_b32 {sF}, 1024")
        a(f"s_mul_i32 s88, {sB}, {2*112}")
        a(f"s_add_u32 s88, s88, {sD}")
        a("s_lshl_b32 s88, s88, 10")
        a(f"s_add_u32 s88, s88, {WS_W2F}")
        a(f"s_mov_b32 s89, {112*1024}")
        a("s_branch L_wt_go")
        a.label("L_wt_w1")
        a(f"s_sub_u32 {sA}, {sA}, 256")
        a(f"s_lshr_b32 {sB}, {sA}, 5")
        a(f"s_and_b32 {sD}, {sA}, 31")
        for i in range(4): a(f"s_mov_b32 s{SRD_T+i}, s{SRD_W1+i}")
        a(f"s_mov_b32 {sF}, 3584")
        a(f"s_lshl_b32 s88, {sB}, 6")
        a(f"s_add_u32 s88, s88, {sD}")
        a("s_lshl_b32 s88, s88, 10")
        a(f"s_add_u32 s88, s88, {WS_W1F}")
        a(f"s_mov_b32 s89, {32*1024}")
        a("s_branch L_wt_go")
        a.label("L_wt_wo")
        a(f"s_lshr_b32 {sB}, {sA}, 5")
        a(f"s_and_b32 {sD}, {sA}, 31")
        for i in range(4): a(f"s_mov_b32 s{SRD_T+i}, s{SRD_WO+i}")
        a(f"s_mov_b32 {sF}, 1024")
        a(f"s_lshl_b32 s88, {sB}, 6")
        a(f"s_add_u32 s88, s88, {sD}")
        a("s_lshl_b32 s88, s88, 10")
        a(f"s_add_u32 s88, s88, {WS_WOF}")
        a(f"s_mov_b32 s89, {32*1024}")
        a.label("L_wt_go")
        a(f"s_mul_i32 {sD}, {sD}, {sF}")
        a(f"s_lshl_b32 {sD}, {sD}, 4")
        a(f"s_lshl_b32 {sB}, {sB}, 7")
        a(f"s_add_u32 {sD}, {sD}, {sB}")
        a("v_lshrrev_b32 v16, 3, v1")
        a(f"v_mul_lo_u32 v16, v16, {sF}")
        a("v_and_b32 v17, 7, v1")
        a("v_bfe_u32 v18, v1, 4, 1")
        a("v_lshlrev_b32 v18, 2, v18")
        a("v_xor_b32 v17, v17, v18")
        a("v_lshl_add_u32 v16, v17, 4, v16")
        a(f"s_xor_b32 {sA}, {sW}, 1")
        a(f"s_lshl_b32 {sA}, {sA}, 11")
        a(f"s_add_u32 {sA}, {sA}, {LDS_E}")
        a(f"s_mov_b32 m0, {sA}")
        a(f"buffer_load_dwordx4 v16, {srd(SRD_T)}, {sD} offen lds")
        a(f"s_lshl_b32 {sB}, {sF}, 3")
        a(f"s_add_u32 {sD}, {sD}, {sB}")
        a(f"s_add_u32 {sA}, {sA}, 1024")
        a(f"s_mov_b32 m0, {sA}")
        a(f"buffer_load_dwordx4 v16, {srd(SRD_T)}, {sD} offen lds")

    def wt_process(self):
        a = self.a
        LDS_E = 132 * 1024
        a("v_bfe_u32 v106, v1, 2, 2")
        a("v_lshrrev_b32 v107, 5, v1")
        a("v_lshl_add_u32 v107, v107, 2, v106")
        a("v_lshlrev_b32 v107, 7, v107")
        a("v_bfe_u32 v108, v1, 4, 1")
        a("v_lshlrev_b32 v108, 5, v108")
        a("v_and_b32 v109, 3, v1")
        a("v_lshl_add_u32 v108, v109, 3, v108")
        a("v_bfe_u32 v109, v1, 3, 1")
        a("v_lshlrev_b32 v109, 6, v109")
        a("v_xor_b32 v108, v108, v109")
        a("v_add_u32 v107, v107, v108")
        a(f"s_xor_b32 {sA}, {sW}, 1")
        a(f"s_lshl_b32 {sA}, {sA}, 11")
        a(f"s_add_u32 {sA}, {sA}, {LDS_E}")
        a(f"v_add_u32 v107, {sA}, v107")
        a("v_xor_b32 v108, 64, v107")
        a("ds_read_b64_tr_b16 v[112:113], v107")
        a("ds_read_b64_tr_b16 v[114:115], v107 offset:1024")
        a("ds_read_b64_tr_b16 v[116:117], v108")
        a("ds_read_b64_tr_b16 v[118:119], v108 offset:1024")
        a("s_waitcnt lgkmcnt(0)")
        a(f"buffer_store_dwordx4 v[112:115], v2, {srd(SRD_WS)}, s88 offen sc1")
        a("s_add_u32 s88, s88, s89")
        a(f"buffer_store_dwordx4 v[116:119], v2, {srd(SRD_WS)}, s88 offen sc1")


    def colsum(self, homes, first):
        a = self.a
        n = 0
        a("s_mov_b32 s5, 0x3f803f80")
        for hm in homes:
            for i in range(4):
                r = "v106" if n % 2 == 0 else "v107"
                a(f"v_dot2_f32_bf16 {r}, v{hm+i}, s5, {'0' if (first and n < 2) else r}")
                n += 1

    def p3(self):
        a = self.a
        X_ = self.opt
        HB, X, ACC, BR = 4, 56, 24, 64
        LDS_OF, LDS_E2 = 0, 128 * 1024
        sS = "s88"
        a("v_and_b32 v3, 31, v1")
        a("v_lshlrev_b32 v3, 10, v3")
        a("v_lshrrev_b32 v104, 5, v1")
        a("v_lshl_or_b32 v3, v104, 3, v3")
        a(f"s_lshl_b32 {sA}, {sTT}, 5")
        a(f"s_add_u32 {sA}, {sA}, {sT0}")
        a(f"s_lshl_b32 {sA}, {sA}, 10")
        a(f"s_lshl_b32 {sB}, {sS}, 5")
        a(f"s_add_u32 {sA}, {sA}, {sB}")
        a(f"buffer_load_dwordx2 {vr(X,2)}, v3, {srd(SRD_X)}, {sA} offen")
        a(f"buffer_load_dwordx2 {vr(X+2,2)}, v3, {srd(SRD_X)}, {sA} offen offset:16")
        a("s_barrier")
        self.stamp("b7")
        a(f"s_cmp_eq_u32 {sW}, 7")
        a("s_cbranch_scc1 L_nocs1")
        self.colsum(W1H[:NW1PRE], True)
        a.label("L_nocs1")
        a(f"s_lshl_b32 {sA}, {sTT}, 5")
        a(f"s_lshl_b32 {sB}, {sKH}, 4")
        a(f"s_add_u32 {sA}, {sA}, {sB}")
        a(f"s_lshl_b32 {sA}, {sA}, 2")
        a(f"s_lshl_b32 {sB}, {sC}, 8")
        a(f"s_add_u32 {sA}, {sA}, {sB}")
        a(f"s_add_u32 {sA}, {sA}, {WS_FLO}")
        a("v_and_b32 v3, 15, v1")
        a("v_lshlrev_b32 v3, 2, v3")
        self.poll_begin("o")
        a(f"buffer_load_dword v104, v3, {srd(SRD_WS)}, {sA} offen sc1")
        a("s_waitcnt vmcnt(0)")
        a("v_cmp_ne_u32 vcc, s3, v104")
        self.poll_end("o", sleep=1)
        self.stamp("ook")
        a(f"s_lshl_b32 {sA}, {sKH}, 4")
        a(f"s_lshl_b32 {sB}, {sFT}, 2")
        a(f"s_add_u32 {sA}, {sA}, {sB}")
        a(f"s_lshl_b32 {sA}, {sA}, 1")
        a(f"s_add_u32 {sA}, {sA}, {sTT}")
        a(f"s_lshl_b32 {sA}, {sA}, 10")
        a(f"s_lshl_b32 {sB}, {sC}, 16")
        a(f"s_add_u32 {sB}, {sB}, {sA}")
        a(f"s_add_u32 {sB}, {sB}, {WS_O}")
        for st in range(2):
            for i in range(4):
                d = (st * 8 + i) * 2048
                a(f"s_add_u32 {sD}, {sA}, {d + LDS_OF}")
                a(f"s_add_u32 {sE_}, {sB}, {d}")
                a(f"s_mov_b32 m0, {sD}")
                a(f"buffer_load_dwordx4 v2, {srd(SRD_WS)}, {sE_} offen sc1 lds")
        nrest = 32 - NW1PRE
        a(f"s_lshl_b32 {sA}, {sKH}, 15")
        a(f"s_lshl_b32 {sB}, {sTT}, 10")
        a(f"s_add_u32 {sA}, {sA}, {sB}")
        a(f"v_add_u32 v104, {sA}, v2")
        def late_loads():
            for s_ in range(NW1PRE, 32):
                a(f"buffer_load_dwordx4 {vr(W1H[s_],4)}, v2, {srd(SRD_WS)}, {sW1B} offen offset:{(s_%4)*1024} sc1")
                if s_ % 4 == 3 and s_ < 31: a(f"s_add_u32 {sW1B}, {sW1B}, 4096")
        a.lg = []
        for st in range(2):
            a(f"s_waitcnt vmcnt({4 if st == 0 else 0})")
            a("s_barrier")
            for i in range(8):
                a.ds(f"ds_read_b128 {vr(BR+4*i,4)}, v104 offset:{(st*8+i)*2048}", f"b{st}{i}")
            if st == 1: late_loads()
            for i in range(8):
                a.wait_lg(f"b{st}{i}")
                k = st * 8 + i
                srcC = "0" if k == 0 else vr(ACC, 16)
                a(f"v_mfma_f32_32x32x16_bf16 {vr(ACC,16)}, {vr(WOH[k],4)}, {vr(BR+4*i,4)}, {srcC}")
        self.stamp("p3mm")
        a(f"s_lshl_b32 {sA}, {sW}, 11")
        a(f"s_add_u32 {sA}, {sA}, {LDS_E2}")
        a(f"v_add_u32 v104, {sA}, v2")
        a(f"ds_write_b128 v104, {vr(ACC+8,4)}")
        a(f"ds_write_b128 v104, {vr(ACC+12,4)} offset:1024")
        a("s_waitcnt lgkmcnt(0)")
        a("s_barrier")
        a("v_xor_b32 v104, 2048, v104")
        a(f"ds_read_b128 {vr(BR,4)}, v104")
        a(f"ds_read_b128 {vr(BR+4,4)}, v104 offset:1024")
        for i in range(4):
            a(f"v_lshlrev_b32 v{BR+8+2*i}, 16, v{X+i}")
            a(f"v_and_b32 v{BR+9+2*i}, 0xffff0000, v{X+i}")
        a(f"s_lshl_b32 {sA}, {sS}, 1")
        a(f"s_add_u32 {sA}, {sA}, {sTT}")
        a(f"s_lshl_b32 {sA}, {sA}, 10")
        a(f"s_lshl_b32 {sB}, {sC}, 16")
        a(f"s_add_u32 {sA}, {sA}, {sB}")
        a(f"s_add_u32 {sA}, {sA}, {WS_H}")
        a(f"s_lshl_b32 {sD}, {sTT}, 5")
        a(f"s_add_u32 {sD}, {sD}, {sS}")
        a(f"s_lshl_b32 {sD}, {sD}, 2")
        a(f"s_lshl_b32 {sE_}, {sC}, 8")
        a(f"s_add_u32 {sD}, {sD}, {sE_}")
        a(f"s_add_u32 {sD}, {sD}, {WS_FLH}")
        for i in range(8):
            a(f"v_add_f32 v{ACC+i}, v{ACC+i}, v{BR+8+i}")
        a("s_waitcnt lgkmcnt(0)")
        for i in range(8):
            a(f"v_add_f32 v{ACC+i}, v{ACC+i}, v{BR+i}")
        for i in range(4):
            a(f"v_cvt_pk_bf16_f32 v{HB+i}, v{ACC+2*i}, v{ACC+2*i+1}")
        a("s_mov_b32 s5, 0x3f803f80")
        a(f"v_dot2_f32_bf16 v56, v{HB}, s5, 0")
        a(f"v_dot2_f32_bf16 v57, v{HB}, v{HB}, 0")
        for i in range(1, 4):
            a(f"v_dot2_f32_bf16 v56, v{HB+i}, s5, v56")
            a(f"v_dot2_f32_bf16 v57, v{HB+i}, v{HB+i}, v57")
        a("v_mov_b32 v58, v56")
        a("v_mov_b32 v59, v57")
        a("v_permlane32_swap_b32 v56, v58")
        a("v_permlane32_swap_b32 v57, v59")
        a("v_add_f32 v56, v56, v58")
        a("v_add_f32 v57, v57, v59")
        a(f"s_lshl_b32 {sB}, {sTT}, 5")
        a(f"s_add_u32 {sB}, {sB}, {sS}")
        a(f"s_lshl_b32 {sB}, {sB}, 8")
        a(f"s_lshl_b32 {sE_}, {sC}, 14")
        a(f"s_add_u32 {sB}, {sB}, {sE_}")
        a(f"s_add_u32 {sB}, {sB}, {WS_ST}")
        a("v_lshlrev_b32 v3, 3, v1")
        self.publish("h", [("dwordx4", vr(HB, 4), "v2", sA, 0), ("dwordx2", "v[56:57]", "v3", sB, 0, "lo32")], sD)
        self.stamp("hpub")

    def w2load(self, f, i):
        a = self.a
        hm = (W2H0 if f == 0 else W2H1)[i]
        off = (f * 112 + i) * 1024
        a(f"s_add_u32 {sA}, s89, {off}")
        a(f"buffer_load_dwordx4 {vr(hm,4)}, v2, {srd(SRD_WS)}, {sA} offen sc1")

    def p4(self):
        a = self.a
        HB, ACC, BR = 4, 64, 108
        LDS_HF, LDS_ST2, LDS_CS1, LDS_B1 = 64 * 1024, 144 * 1024, 145 * 1024, 146 * 1024
        a(f"s_mul_i32 {sA}, {sM}, 224")
        a(f"s_mul_i32 {sB}, {sW}, 14")
        a(f"s_add_u32 {sA}, {sA}, {sB}")
        a(f"s_lshl_b32 {sA}, {sA}, 10")
        a(f"s_add_u32 s89, {sA}, {WS_W2F}")
        for i in range(NW2E): self.w2load(0, i)
        a(f"s_cmp_eq_u32 {sW}, 7")
        a("s_cbranch_scc1 L_p4_pre7")
        self.colsum(W1H[NW1PRE:], False)
        a("v_add_f32 v106, v106, v107")
        a("v_mov_b32 v107, v106")
        a("v_permlane32_swap_b32 v106, v107")
        a("v_add_f32 v106, v106, v107")
        a("v_and_b32 v107, 31, v1")
        a("v_lshlrev_b32 v107, 2, v107")
        a(f"s_lshl_b32 {sA}, {sW}, 7")
        a(f"s_add_u32 {sA}, {sA}, {LDS_CS1}")
        a(f"v_add_u32 v107, {sA}, v107")
        a("ds_write_b32 v107, v106")
        a("s_branch L_p4_pre")
        a.label("L_p4_pre7")
        a(f"s_mul_i32 {sA}, {sM}, 448")
        a("v_lshlrev_b32 v3, 3, v1")
        a("v_min_u32 v3, 440, v3")
        a(f"buffer_load_dwordx2 v[106:107], v3, {srd(SRD_B1)}, {sA} offen")
        a("s_waitcnt vmcnt(0)")
        a("v_lshlrev_b32 v108, 16, v106")
        a("v_and_b32 v109, 0xffff0000, v106")
        a("v_lshlrev_b32 v110, 16, v107")
        a("v_and_b32 v111, 0xffff0000, v107")
        for i in range(4): a(f"v_mul_f32 v{108+i}, 0.5, v{108+i}")
        a("v_lshlrev_b32 v3, 1, v3")
        a(f"v_add_u32 v3, {LDS_B1}, v3")
        a("ds_write_b128 v3, v[108:111]")
        a.label("L_p4_pre")
        a(f"s_lshl_b32 {sA}, {sC}, 8")
        a(f"s_add_u32 {sA}, {sA}, {WS_FLH}")
        a("v_lshlrev_b32 v3, 2, v1")
        self.poll_begin("h")
        a(f"buffer_load_dword v104, v3, {srd(SRD_WS)}, {sA} offen sc1")
        a("s_waitcnt vmcnt(0)")
        a("v_cmp_ne_u32 vcc, s3, v104")
        self.poll_end("h", sleep=1)
        self.stamp("hok")
        a(f"s_lshl_b32 s67, {sW}, 11")
        a(f"s_lshl_b32 {sB}, {sC}, 16")
        a(f"s_add_u32 {sB}, {sB}, s67")
        a(f"s_add_u32 s68, {sB}, {WS_H}")
        def hdma(i):
            for tt in range(2):
                d = i * 8 * 2048 + tt * 1024
                a(f"s_add_u32 {sD}, s67, {d + LDS_HF}")
                a(f"s_add_u32 {sE_}, s68, {d}")
                a(f"s_mov_b32 m0, {sD}")
                a(f"buffer_load_dwordx4 v2, {srd(SRD_WS)}, {sE_} offen sc1 lds")
        hdma(0); hdma(1)
        a(f"v_add_u32 v104, {LDS_HF}, v2")
        a("s_waitcnt vmcnt(2)")
        a("s_barrier")
        self.stamp("f1a")
        hdma(2); hdma(3)
        a(f"s_cmp_eq_u32 {sW}, 7")
        a("s_cbranch_scc1 L_p4_w7")
        a.lg = []
        NR = 3
        def hread(k):
            sl = k % NR
            a.ds(f"ds_read_b128 {vr(BR+8*sl,4)}, v104 offset:{k*2048}", f"h{k}")
            a.ds(f"ds_read_b128 {vr(BR+8*sl+4,4)}, v104 offset:{k*2048+1024}", f"h{k}")
        for k in range(NR - 1): hread(k)
        lst = [(0, i) for i in range(NW2E, 14)] + [(1, i) for i in range(14)]
        sched = {}
        for n, (f, i) in enumerate(lst):
            st = (n * 30) // len(lst) + 1
            if f == 1: st = max(st, i)
            sched.setdefault(st, []).append((f, i))
        issued = 0
        for k in range(32):
            if k == 8 - (NR - 1):
                a(f"s_waitcnt vmcnt({4 + issued})")
                a("s_barrier")
            if k == 16 - (NR - 1):
                a(f"s_waitcnt vmcnt({issued})")
                a("s_barrier")
                self.stamp("f1b")
            if k + NR - 1 < 32: hread(k + NR - 1)
            a.wait_lg(f"h{k}")
            sl = k % NR
            for tt in range(2):
                srcC = "0" if k == 0 else vr(ACC + 16 * tt, 16)
                a(f"v_mfma_f32_32x32x16_bf16 {vr(ACC+16*tt,16)}, {vr(W1H[k],4)}, {vr(BR+8*sl+4*tt,4)}, {srcC}")
            for (f, i) in (sched.get(k, []) if not self.opt.get("now2") else []):
                self.w2load(f, i)
                issued += 1
        self.stamp("f1c")
        a("s_barrier")
        a.lg = []
        CS, BF = 108, 208
        a("v_and_b32 v3, 31, v1")
        a("v_lshlrev_b32 v3, 3, v3")
        a(f"v_add_u32 v3, {LDS_ST2}, v3")
        a("ds_read_b64 v[104:105], v3")
        a("ds_read_b64 v[106:107], v3 offset:256")
        a("v_lshrrev_b32 v3, 5, v1")
        a("v_lshlrev_b32 v3, 4, v3")
        a(f"s_lshl_b32 {sA}, {sW}, 7")
        a(f"s_add_u32 {sA}, {sA}, {LDS_CS1}")
        a(f"v_add_u32 v3, {sA}, v3")
        for q in range(4):
            a(f"ds_read_b128 {vr(CS+4*q,4)}, v3 offset:{32*q}")
        for q in range(4):
            a(f"ds_read_b128 {vr(BF+4*q,4)}, v3 offset:{1024 + 32*q}")
        a("s_waitcnt lgkmcnt(0)")
        self.stamp("ffn1")
        HP = 236
        for tt in range(2):
            mu, rs = 104 + 2 * tt, 105 + 2 * tt
            A = ACC + 16 * tt
            for r in range(16): a(f"v_fma_f32 v{A+r}, -v{mu}, v{CS+r}, v{A+r}")
            for r in range(16): a(f"v_fma_f32 v{A+r}, v{A+r}, v{rs}, v{BF+r}")
            for r in range(16): a(f"v_add_f32 v{A+r}, v{A+r}, |v{A+r}|")
            for r in range(16): a(f"v_mul_f32 v{A+r}, v{A+r}, v{A+r}")
            for i in range(8): a(f"v_cvt_pk_bf16_f32 v{HP+8*tt+i}, v{A+2*i}, v{A+2*i+1}")
        a(f"s_mul_i32 {sA}, {sM}, 7")
        a(f"s_add_u32 {sA}, {sA}, {sW}")
        a(f"s_lshl_b32 {sB}, {sA}, 12")
        a(f"s_mul_i32 {sD}, {sC}, {224*1024}")
        a(f"s_add_u32 {sB}, {sB}, {sD}")
        a(f"s_add_u32 {sB}, {sB}, {WS_HID}")
        a(f"s_lshl_b32 {sD}, {sA}, 2")
        a(f"s_lshl_b32 {sE_}, {sC}, 8")
        a(f"s_add_u32 {sD}, {sD}, {sE_}")
        a(f"s_add_u32 {sD}, {sD}, {WS_FLHID}")
        st = []
        for u in range(2):
            for tt in range(2):
                st.append(("dwordx4", vr(HP + 8 * tt + 4 * u, 4), "v2", sB, u * 2048 + tt * 1024))
        self.publish("hid", st, sD)
        if self.opt.get("wbl2"):
            a(f"s_cmp_eq_u32 {sW}, 0")
            a("s_cbranch_scc0 L_nowb")
            a(f"s_cmp_lt_u32 {sID}, {self.opt['wbl2']}")
            a("s_cbranch_scc0 L_nowb")
            a("buffer_wbl2 sc1")
            a.label("L_nowb")
        a("s_branch L_p4_done")
        a.label("L_p4_w7")
        SL = 64
        a("v_lshlrev_b32 v3, 4, v1")
        a(f"s_lshl_b32 {sA}, {sC}, 14")
        a(f"s_add_u32 {sA}, {sA}, {WS_ST}")
        for q in range(16):
            a(f"buffer_load_dwordx4 {vr(SL+4*q,4)}, v3, {srd(SRD_WS)}, {sA} offen offset:{(q%4)*1024} sc1")
            if q % 4 == 3 and q < 15: a(f"s_add_u32 {sA}, {sA}, 4096")
        a("s_waitcnt vmcnt(20)")
        a("s_barrier")
        a("s_waitcnt vmcnt(16)")
        a("s_barrier")
        for i in range(NW2E, 14): self.w2load(0, i)
        a(f"s_waitcnt vmcnt({14 - NW2E})")
        for tt in range(2):
            B = SL + 32 * tt
            for q in range(1, 8):
                for c in range(4): a(f"v_add_f32 v{B+c}, v{B+c}, v{B+4*q+c}")
        R = [SL + c for c in range(4)] + [SL + 32 + c for c in range(4)]
        T = [SL + 8 + c for c in range(8)]
        for sw in ("16", "32"):
            for r, t in zip(R, T): a(f"v_mov_b32 v{t}, v{r}")
            for r, t in zip(R, T): a(f"v_permlane{sw}_swap_b32 v{r}, v{t}")
            for r, t in zip(R, T): a(f"v_add_f32 v{r}, v{r}, v{t}")
        for tt in range(2):
            for u in range(2):
                s_, q_ = SL + 32 * tt + 2 * u, SL + 32 * tt + 2 * u + 1
                a(f"v_mul_f32 v{s_}, 0x{f32bits(1/512):x}, v{s_}")
                a(f"v_mul_f32 v{q_}, 0x{f32bits(1/512):x}, v{q_}")
                a(f"v_fma_f32 v{q_}, -v{s_}, v{s_}, v{q_}")
                a(f"v_max_f32 v{q_}, 0, v{q_}")
                a(f"v_add_f32 v{q_}, 0x{f32bits(1e-5):x}, v{q_}")
                a(f"v_rsq_f32 v{q_}, v{q_}")
                a(f"v_mul_f32 v{q_}, 0.5, v{q_}")
        a("v_and_b32 v3, 15, v1")
        a("v_lshlrev_b32 v3, 4, v3")
        a(f"v_add_u32 v3, {LDS_ST2}, v3")
        a("s_mov_b64 exec, 0xffff")
        a(f"ds_write_b128 v3, {vr(SL,4)}")
        a(f"ds_write_b128 v3, {vr(SL+32,4)} offset:256")
        a("s_mov_b64 exec, -1")
        a("s_waitcnt lgkmcnt(0)")
        a("s_barrier")
        if self.prof and "ffn1" not in self.skip:
            self.nstamp = self.stamp_names.index("ffn1")
            nm = list(self.stamp_names)
            self.stamp("ffn1")
            self.stamp_names = nm
            self.nstamp = len(nm)
        a.label("L_p4_done")

    def p5(self):
        a = self.a
        HB, B2R = 4, 148
        ACCS = [[64, 208], [80, 224]]
        BQ = [40, 44, 48, 52, 96, 100, 108, 112, 116, 120, 124, 128, 240, 244]
        a(f"s_lshl_b32 {sA}, {sM}, 7")
        a(f"s_lshl_b32 {sB}, {sFT}, 6")
        a(f"s_add_u32 {sA}, {sA}, {sB}")
        a(f"s_lshl_b32 {sB}, {sKH}, 5")
        a(f"s_add_u32 s89, {sA}, {sB}")
        a("v_lshrrev_b32 v3, 5, v1")
        a("v_lshlrev_b32 v3, 3, v3")
        a(f"buffer_load_dwordx2 {vr(B2R,2)}, v3, {srd(SRD_B2)}, s89 offen")
        a(f"buffer_load_dwordx2 {vr(B2R+2,2)}, v3, {srd(SRD_B2)}, s89 offen offset:16")
        a(f"s_mul_i32 {sA}, {sW}, 28")
        a(f"s_lshl_b32 {sB}, {sC}, 8")
        a(f"s_add_u32 {sA}, {sA}, {sB}")
        a(f"s_add_u32 {sA}, {sA}, {WS_FLHID}")
        a("v_min_u32 v3, 6, v1")
        a("v_lshlrev_b32 v3, 2, v3")
        self.poll_begin("hid")
        a(f"buffer_load_dword v104, v3, {srd(SRD_WS)}, {sA} offen sc1")
        a("s_waitcnt vmcnt(0)")
        a("v_cmp_ne_u32 vcc, s3, v104")
        self.poll_end("hid", sleep=1)
        self.stamp("hidok")
        a(f"s_mul_i32 {sA}, {sW}, {14*2048}")
        a(f"s_mul_i32 {sD}, {sC}, {224*1024}")
        a(f"s_add_u32 {sA}, {sA}, {sD}")
        a(f"s_add_u32 s67, {sA}, {WS_HID}")
        def bload(tt, i):
            a(f"s_add_u32 {sA}, s67, {i*2048 + tt*1024}")
            a(f"buffer_load_dwordx4 {vr(BQ[i],4)}, v2, {srd(SRD_WS)}, {sA} offen sc1")
        for i in range(14): bload(0, i)
        a(f"s_lshl_b32 {sA}, {sW}, 11")
        a(f"v_add_u32 v104, {sA}, v2")
        a("v_add_u32 v105, 65536, v104")
        def wr_piece(tt, f, half):
            p = 4 * f + 2 * tt + half
            A = ACCS[tt][f] + 8 * half
            base = "v104" if p < 4 else "v105"
            off = (p % 4) * 16384
            a(f"ds_write_b128 {base}, {vr(A,4)} offset:{off}")
            a(f"ds_write_b128 {base}, {vr(A+4,4)} offset:{off+1024}")
        issued = 14
        done = 0
        for tt in range(2):
            for i in range(14):
                n = tt * 14 + i
                a(f"s_waitcnt vmcnt({issued - n - 1})")
                for f in range(2):
                    hm = (W2H0 if f == 0 else W2H1)[i]
                    srcC = "0" if i == 0 else vr(ACCS[tt][f], 16)
                    a(f"v_mfma_f32_32x32x16_bf16 {vr(ACCS[tt][f],16)}, {vr(hm,4)}, {vr(BQ[i],4)}, {srcC}")
                if tt == 0:
                    bload(1, i); issued += 1
                if tt == 1 and i in (2, 4, 6, 8):
                    j = (i - 2) // 2
                    wr_piece(0, j >> 1, j & 1)
        self.stamp("ffn2")
        for f in range(2):
            for half in range(2): wr_piece(1, f, half)
        for i in range(4):
            a(f"v_lshlrev_b32 v{16+2*i}, 16, v{HB+i}")
            a(f"v_and_b32 v{17+2*i}, 0xffff0000, v{HB+i}")
            a(f"v_lshlrev_b32 v{24+2*i}, 16, v{B2R+i}")
            a(f"v_and_b32 v{25+2*i}, 0xffff0000, v{B2R+i}")
        for i in range(8):
            a(f"v_add_f32 v{16+i}, v{16+i}, v{24+i}")
        a("v_and_b32 v3, 31, v1")
        a("v_lshlrev_b32 v3, 10, v3")
        a("v_lshrrev_b32 v12, 5, v1")
        a("v_lshl_or_b32 v3, v12, 4, v3")
        a(f"s_lshl_b32 {sB}, {sW}, 14")
        a(f"v_add_u32 v106, {sB}, v2")
        a(f"s_lshl_b32 {sA}, {sTT}, 5")
        a(f"s_add_u32 {sA}, {sA}, {sT0}")
        a(f"s_lshl_b32 {sA}, {sA}, 10")
        a(f"s_add_u32 {sA}, {sA}, s89")
        a("s_waitcnt lgkmcnt(0)")
        a("s_barrier")
        RD = 152
        a.lg = []
        for q in range(8):
            a.ds(f"ds_read_b128 {vr(RD+8*q,4)}, v106 offset:{q*2048}", f"q{q}")
            a.ds(f"ds_read_b128 {vr(RD+8*q+4,4)}, v106 offset:{q*2048+1024}", f"q{q}")
        for q in range(8):
            a.wait_lg(f"q{q}")
            for i in range(8):
                a(f"v_add_f32 v{16+i}, v{16+i}, v{RD+8*q+i}")
        for i in range(4):
            a(f"v_cvt_pk_bf16_f32 v{88+i}, v{16+2*i}, v{17+2*i}")
        a("v_permlane32_swap_b32 v88, v90")
        a("v_permlane32_swap_b32 v89, v91")
        om = {0: "", 1: " sc1", 2: " nt", 3: " sc0 sc1"}[self.opt.get("outmod", 0)]
        a(f"buffer_store_dwordx4 v[88:91], v3, {srd(SRD_OUT)}, {sA} offen{om}")
        self.stamp("end")

    def kv_flag(self):
        a = self.a
        a(f"s_add_u32 {sD}, {sTag}, 1")
        a(f"s_lshl_b32 {sA}, {sG}, 4")
        a(f"s_add_u32 {sA}, {sA}, {WS_FLKV}")
        a(f"v_mov_b32 v8, {sD}")
        a("v_mov_b32 v9, s3")
        a("v_mov_b32 v10, 0")
        a("s_mov_b64 exec, 1")
        a(f"s_cmp_eq_u32 {sW}, 1")
        a("s_cbranch_scc1 L_flagv")
        a(f"buffer_store_dwordx2 v[8:9], v10, {srd(SRD_WS)}, {sA} offen sc1")
        a("s_branch L_flagd")
        a.label("L_flagv")
        a(f"buffer_store_dword v8, v10, {srd(SRD_WS)}, {sA} offen offset:8 sc1")
        a.label("L_flagd")
        a("s_mov_b64 exec, -1")

    def wave_reduce(self, regs, op, tmps):
        a = self.a
        for n in (8, 4, 2, 1):
            for r in regs:
                a(f"v_{op}_f32_dpp {r}, {r}, {r} row_ror:{n} row_mask:0xf bank_mask:0xf")
        for sw in ("16", "32"):
            for r, t in zip(regs, tmps):
                a(f"v_mov_b32 {t}, {r}")
            for r, t in zip(regs, tmps):
                a(f"v_permlane{sw}_swap_b32 {r}, {t}")
            for r, t in zip(regs, tmps):
                a(f"v_{op}_f32 {r}, {r}, {t}")

    def finish(self):
        a = self.a
        a.label("L_end")
        a("s_endpgm")

    def dump_regs(self, base, regs, off):
        a = self.a
        n = len(regs)
        a(f"s_lshl_b32 {sA}, {sID}, 3")
        a(f"s_add_u32 {sA}, {sA}, {sW}")
        a(f"s_mul_i32 {sA}, {sA}, {n*256}")
        a(f"s_add_u32 {sA}, {sA}, {off}")
        a("v_lshlrev_b32 v3, 2, v1")
        for i, r in enumerate(regs):
            a(f"buffer_store_dword v{r}, v3, {srd(SRD_WS)}, {sA} offen offset:{i*256}")
        a("s_waitcnt vmcnt(0)")

    def build(self):
        self.prologue()
        self.p1()
        if self.stop == "p1":
            self.dump_regs(0, list(range(32, 48)), WS_DBG)
            self.a("s_waitcnt vmcnt(0)")
            self.finish(); return self.text()
        self.p2()
        if self.stop in ("q", "attn"):
            self.a("s_waitcnt vmcnt(0)")
            self.dump_stamps()
            self.finish(); return self.text()
        for nm, fn in (("h", self.p3), ("hid", self.p4), ("out", self.p5)):
            fn()
            if self.stop == nm: break
        self.a("s_waitcnt vmcnt(0)")
        self.dump_stamps()
        self.finish()
        return self.text()

    def text(self):
        lines, n = hazard_pass_all(self.a.lines)
        head = f"""; @launch grid=(256,1,1) block=(512,1,1) lds=163840
.amdgcn_target "amdgcn-amd-amdhsa--gfx950"
.text
.globl {KNAME}
.p2align 8
.type {KNAME},@function
{KNAME}:
"""
        tail = f""".section .rodata,"a"
.p2align 6
.amdhsa_kernel {KNAME}
  .amdhsa_next_free_vgpr 256
  .amdhsa_next_free_sgpr 102
  .amdhsa_accum_offset 256
  .amdhsa_group_segment_fixed_size 0
  .amdhsa_kernarg_size 104
  .amdhsa_user_sgpr_count 2
  .amdhsa_user_sgpr_kernarg_segment_ptr 1
  .amdhsa_system_sgpr_workgroup_id_x 1
.end_amdhsa_kernel
"""
        return head + "\n".join(lines) + "\n" + tail

if __name__ == "__main__":
    import argparse
    ap = argparse.ArgumentParser()
    ap.add_argument("--stop", default=None)
    ap.add_argument("-o", default="k.s")
    ap.add_argument("--prof", action="store_true")
    ap.add_argument("--opt", nargs="*", default=[])
    ap.add_argument("--skip", nargs="*", default=["args", "b1", "f1a", "f1b", "f1c"])
    args = ap.parse_args()
    opt = dict((kv.split("=")[0], int(kv.split("=")[1])) for kv in args.opt)
    g = Gen(stop=args.stop, prof=args.prof, opt=opt, skip=args.skip)
    open(args.o, "w").write(g.build())
    print("wrote", args.o, "stamps:", getattr(g, "stamp_names", None))
```

```python
import sys
sys.path.insert(0, "work")
from asmlib import Asm, hazard_pass_all

NAME = "sequential_preLN__grouped_kv_mqa__dense_activation_squared_relu__prompt"
KNAME = NAME + "_kernel"

WS_EPOCH = 0x0
WS_FLKV  = 0x1000
WS_FLWT  = 0x3000
WS_FLO   = 0x4000
WS_FLH   = 0x6000
WS_FLHID = 0x8000
WS_FLWT2 = 0xA000
WS_KV    = 0x10000
WS_ST    = 0x60000
WS_O     = 0x100000
WS_H     = 0x300000
WS_HID   = 0x500000
WS_WOF   = 0xC00000
WS_W1F   = 0xC80000
WS_W2F   = 0xE40000
WS_DBG   = 0x1000000
WS_PROF  = 0x1800000
WS_SIZE  = 0x2000000

SRD_X, SRD_WQ, SRD_WK, SRD_WV = 8, 12, 16, 20
SRD_WO, SRD_W1, SRD_W2, SRD_B1 = 24, 28, 32, 36
SRD_B2, SRD_OUT, SRD_WS, SRD_T = 40, 44, 48, 52
def srd(b): return f"s[{b}:{b+3}]"
sW, sM, sC, sT0, sTag, sFast = "s56", "s57", "s58", "s59", "s60", "s61"
sFT, sTT, sKH, sXCC = "s62", "s63", "s90", "s91"
sID = "s2"
sA, sB, sD, sE_, sF, sG = "s92", "s93", "s94", "s95", "s96", "s97"
sCnt, sPh = "s98", "s99"
sW1B = "s65"
sWOB = "s66"
sPF = "s69"
NW1PRE = 26
W1H = [152 + 4 * k for k in range(26)] + [40, 44, 48, 52, 96, 100]
WOH = [8, 12, 16, 20, 60] + [108 + 4 * k for k in range(11)]
NW2E = 7
W2H0 = [8, 12, 16, 20, 24, 28, 32, 36, 56, 60, 132, 136, 140, 144]
W2H1 = W1H[:14]
sX64 = "s[4:5]"; sY64 = "s[6:7]"

LOG2E = 1.4426950408889634
def f32bits(x):
    import struct
    return struct.unpack("<I", struct.pack("<f", x))[0]
def vr(b, n): return f"v[{b}:{b+n-1}]"

class Gen:
    def __init__(self, stop=None, prof=False, opt=None, skip=()):
        self.skip = set(skip)
        self.a = Asm()
        self.stop = stop
        self.prof = prof
        self.opt = opt or {}
        self.nstamp = 0

    def stamp(self, name):
        if not self.prof: return
        if name in self.skip:
            self.skipped_last = True
            return
        self.skipped_last = False
        i = self.nstamp; self.nstamp += 1
        assert i < 16
        self.stamp_names = getattr(self, "stamp_names", []) + [name]
        a = self.a
        a(f"s_memtime s[4:5]")
        a("s_waitcnt lgkmcnt(0)")
        a("s_sub_u32 s4, s4, s100")
        a(f"v_writelane_b32 v0, s4, {i}")

    def dump_stamps(self):
        if not self.prof: return
        a = self.a
        a("s_memrealtime s[4:5]")
        a("s_waitcnt lgkmcnt(0)")
        a("s_sub_u32 s4, s4, s101")
        a("v_writelane_b32 v0, s4, 15")
        a(f"s_lshl_b32 {sA}, {sID}, 3")
        a(f"s_add_u32 {sA}, {sA}, {sW}")
        a(f"s_lshl_b32 {sA}, {sA}, 6")
        a(f"s_add_u32 {sA}, {sA}, {WS_PROF}")
        a("v_lshlrev_b32 v3, 2, v1")
        a("s_mov_b64 exec, 0xffff")
        a(f"buffer_store_dword v0, v3, {srd(SRD_WS)}, {sA} offen")
        a(f"s_lshl_b32 {sA}, {sID}, 3")
        a(f"s_add_u32 {sA}, {sA}, {sW}")
        a(f"s_cmp_lg_u32 {sA}, {self.opt.get('profw', 0)}")
        a("s_cbranch_scc1 L_nodbgst")
        a("s_load_dwordx2 s[52:53], s[0:1], 88")
        a("s_waitcnt lgkmcnt(0)")
        a("s_mov_b32 s54, 256")
        a("s_mov_b32 s55, 0x20000")
        a("buffer_store_dword v0, v3, s[52:55], 0 offen")
        a.label("L_nodbgst")
        a("s_mov_b64 exec, -1")
        a("s_waitcnt vmcnt(0)")

    def prologue(self):
        a = self.a
        a(f"s_cmp_ge_u32 {sID}, 256")
        a("s_cbranch_scc1 L_end")
        if self.prof:
            a("s_memtime s[100:101]")
            a("s_memrealtime s[6:7]")
        a("s_load_dwordx16 s[64:79], s[0:1], 0")
        a("s_load_dwordx8 s[80:87], s[0:1], 64")
        a("s_load_dwordx2 s[88:89], s[0:1], 96")
        a(f"s_and_b32 {sA}, {sID}, 7")
        a(f"s_lshr_b32 {sB}, {sID}, 6")
        a(f"s_lshl_b32 {sB}, {sB}, 3")
        a(f"s_add_u32 {sC}, {sA}, {sB}")
        a(f"s_lshr_b32 {sM}, {sID}, 3")
        a(f"s_and_b32 {sM}, {sM}, 7")
        a(f"s_lshl_b32 {sT0}, {sC}, 6")
        a(f"s_getreg_b32 {sXCC}, hwreg(HW_REG_XCC_ID)")
        a(f"s_and_b32 {sXCC}, {sXCC}, 7")
        a("v_lshrrev_b32 v3, 6, v0")
        a("v_and_b32 v1, 63, v0")
        a(f"v_readfirstlane_b32 {sW}, v3")
        a("v_lshlrev_b32 v2, 4, v1")
        a(f"s_lshr_b32 {sFT}, {sW}, 2")
        a(f"s_lshr_b32 {sTT}, {sW}, 1")
        a(f"s_and_b32 {sTT}, {sTT}, 1")
        a(f"s_and_b32 {sKH}, {sW}, 1")
        a("s_waitcnt lgkmcnt(0)")
        if self.prof:
            a("v_mov_b32 v0, 0")
            a("s_mov_b32 s101, s6")
        self.stamp("args")
        def mk(b, lo, size):
            a(f"s_mov_b32 s{b}, s{lo}")
            a(f"s_mov_b32 s{b+1}, s{lo+1}")
            a(f"s_mov_b32 s{b+2}, 0x{size:x}")
            a(f"s_mov_b32 s{b+3}, 0x20000")
        mk(SRD_X, 64, 0x200000)
        mk(SRD_WS, 88, WS_SIZE)
        a(f"s_load_dword {sTag}, s[88:89], {WS_EPOCH}")
        mk(SRD_WK, 68, 0x4000)
        mk(SRD_WV, 70, 0x4000)
        mk(SRD_WQ, 66, 0x80000)
        self.mk = mk

    def rest_srds(self):
        mk = self.mk
        mk(SRD_WO, 72, 0x80000)
        mk(SRD_W1, 76, 0x1C0000)
        mk(SRD_B1, 78, 3584)
        mk(SRD_W2, 80, 0x1C0000)
        mk(SRD_B2, 82, 1024)
        mk(SRD_OUT, 84, 0x200000)

    def dma(self, voff, srdb, soff, m0, tag, extra=""):
        a = self.a
        a(f"s_mov_b32 m0, {m0}")
        a.vmem(f"buffer_load_dwordx4 {voff}, {srd(srdb)}, {soff} offen {extra} lds", tag)

    def p1(self):
        a = self.a
        X = self.opt
        ROW = 4
        vXa, vKVo, vWAo, vXt = "v16", "v18", "v19", "v17"
        LDS_WK = 64 * 1024
        LDS_WV = 80 * 1024
        LDS_WA = 96 * 1024
        sG1 = "s67"
        a(f"s_lshl_b32 {sA}, {sM}, 3")
        a(f"s_add_u32 {sA}, {sA}, {sT0}")
        a(f"s_add_u32 {sB}, {sA}, {sW}")
        a(f"s_lshl_b32 {sB}, {sB}, 10")
        a(f"buffer_load_dwordx4 {vr(ROW,4)}, v2, {srd(SRD_X)}, {sB} offen")
        a("v_lshrrev_b32 v8, 3, v1")
        a("v_and_b32 v9, 7, v1")
        a("v_lshrrev_b32 v10, 1, v8")
        a("v_xor_b32 v10, v10, v9")
        a(f"s_and_b32 {sB}, {sM}, 1")
        a(f"s_lshl_b32 {sB}, {sB}, 2")
        a(f"v_xor_b32 v10, {sB}, v10")
        a("v_lshlrev_b32 v10, 4, v10")
        a(f"v_lshl_add_u32 {vXa}, v8, 10, v10")
        def xa_dma(gs, cs, voff):
            a(f"s_lshl_b32 {sD}, {gs}, 13")
            a(f"s_lshl_b32 {sE_}, {cs}, 7")
            a(f"s_add_u32 {sD}, {sD}, {sE_}")
            a(f"s_add_u32 {sD}, {sD}, s68")
            a(f"s_lshl_b32 {sE_}, {cs}, 13")
            a(f"s_lshl_b32 {sF}, {gs}, 10")
            a(f"s_add_u32 m0, {sE_}, {sF}")
            a(f"buffer_load_dwordx4 {voff}, {srd(SRD_X)}, {sD} offen lds")
        self.xa_dma = xa_dma
        a(f"s_lshl_b32 s68, {sT0}, 10")
        xa_dma(sM, sW, vXa)
        a("v_lshrrev_b32 v8, 1, v1")
        a("v_and_b32 v9, 0x13, v8")
        a("v_bfe_u32 v10, v8, 2, 1")
        a("v_lshl_or_b32 v9, v10, 3, v9")
        a("v_bfe_u32 v10, v8, 3, 1")
        a("v_lshl_or_b32 v9, v10, 2, v9")
        a("v_lshlrev_b32 v9, 5, v9")
        a("v_and_b32 v10, 1, v1")
        a(f"v_lshl_or_b32 {vKVo}, v10, 4, v9")
        a(f"s_lshl_b32 {sD}, {sW}, 11")
        for k in range(2):
            a(f"s_add_u32 m0, {sD}, {LDS_WK}")
            a(f"buffer_load_dwordx4 {vKVo}, {srd(SRD_WK)}, {sD} offen lds")
            a(f"s_add_u32 m0, {sD}, {LDS_WV}")
            a(f"buffer_load_dwordx4 {vKVo}, {srd(SRD_WV)}, {sD} offen lds")
            if k == 0: a(f"s_add_u32 {sD}, {sD}, 1024")
        a("v_lshrrev_b32 v8, 3, v1")
        a("v_and_b32 v9, 7, v1")
        a("v_bfe_u32 v10, v1, 4, 1")
        a("v_lshlrev_b32 v10, 2, v10")
        a("v_xor_b32 v9, v9, v10")
        a("v_lshlrev_b32 v9, 4, v9")
        a(f"v_lshl_add_u32 {vWAo}, v8, 10, v9")
        a(f"s_add_u32 {sG1}, {sM}, 1")
        a(f"s_and_b32 {sG1}, {sG1}, 7")
        NBULK = 20
        def bulk():
            a(f"s_sub_u32 {sA}, {sW}, 2")
            a(f"s_add_u32 {sB}, {sA}, 2")
            for i in range(9):
                a(f"s_lshr_b32 s4, {sB}, 3")
                a(f"s_add_u32 s4, s4, 1")
                a(f"s_and_b32 s5, s4, 1")
                a(f"s_lshl_b32 s5, s5, 6")
                a(f"v_xor_b32 {vXt}, s5, {vXa}")
                a(f"s_add_u32 s4, s4, {sM}")
                a(f"s_and_b32 s4, s4, 7")
                a(f"s_and_b32 s5, {sB}, 7")
                xa_dma("s4", "s5", vXt)
                if i < 8: a(f"s_add_u32 {sB}, {sB}, 6")
            a(f"s_lshl_b32 {sD}, {sA}, 13")
            a(f"s_lshl_b32 {sE_}, {sM}, 7")
            a(f"s_add_u32 {sD}, {sD}, {sE_}")
            a(f"s_lshl_b32 {sE_}, {sA}, 10")
            a(f"s_add_u32 {sE_}, {sE_}, {LDS_WA}")
            for i in range(11):
                if i == 10:
                    a(f"s_cmp_ge_u32 {sA}, 4")
                    a("s_cbranch_scc1 L_blk_done")
                a(f"s_mov_b32 m0, {sE_}")
                a(f"buffer_load_dwordx4 {vWAo}, {srd(SRD_WQ)}, {sD} offen lds")
                if i < 10:
                    a(f"s_add_u32 {sD}, {sD}, {6*8192}")
                    a(f"s_add_u32 {sE_}, {sE_}, {6*1024}")
            a.label("L_blk_done")
        early = X.get("bulk", 0) == 1
        if early:
            a("s_barrier")
            a(f"s_cmp_lt_u32 {sW}, 2")
            a("s_cbranch_scc1 L_nobulk0")
            bulk()
            a.label("L_nobulk0")
        self.rest_srds()
        XF, WF = 64, 128
        a(f"s_cmp_ge_u32 {sW}, 2")
        a("s_cbranch_scc1 L_no_ones")
        for i in range(64):
            a(f"v_mov_b32 v{XF+i}, 0x3f803f80" if i == 0 else f"v_mov_b32 v{XF+i}, v{XF}")
        a.label("L_no_ones")
        if early:
            a(f"s_cmp_lt_u32 {sW}, 2")
            a("s_cbranch_scc1 L_rw0")
            a("s_waitcnt vmcnt(24)")
            a("s_branch L_rw1")
            a.label("L_rw0")
            a("s_waitcnt vmcnt(5)")
            a.label("L_rw1")
        else:
            a("s_waitcnt vmcnt(5)")
        a("s_mov_b32 s3, 0x3f803f80")
        a(f"v_dot2_f32_bf16 v8, v{ROW}, s3, 0")
        a(f"v_dot2_f32_bf16 v9, v{ROW}, v{ROW}, 0")
        for i in range(1, 4):
            a(f"v_dot2_f32_bf16 v8, v{ROW+i}, s3, v8")
            a(f"v_dot2_f32_bf16 v9, v{ROW+i}, v{ROW+i}, v9")
        self.wave_reduce(["v8", "v9"], "add", ["v10", "v11"])
        a(f"v_mul_f32 v8, 0x{f32bits(1/512):x}, v8")
        a(f"v_mul_f32 v9, 0x{f32bits(1/512):x}, v9")
        a("v_fma_f32 v9, -v8, v8, v9")
        a("v_max_f32 v9, 0, v9")
        a(f"v_add_f32 v9, 0x{f32bits(1e-5):x}, v9")
        a("v_rsq_f32 v9, v9")
        a(f"s_lshl_b32 {sA}, {sW}, 3")
        a(f"s_lshl_b32 {sB}, {sG1}, 10")
        a(f"s_add_u32 {sA}, {sA}, {sB}")
        a(f"v_lshlrev_b32 v10, 13, v1")
        a(f"v_add_u32 v10, {sA}, v10")
        a("s_mov_b64 exec, 3")
        a("ds_write_b64 v10, v[8:9]")
        a("s_mov_b64 exec, -1")
        if early:
            a(f"s_cmp_lt_u32 {sW}, 2")
            a("s_cbranch_scc1 L_b1a")
            a("s_waitcnt vmcnt(19) lgkmcnt(0)")
            a("s_branch L_b1b")
            a.label("L_b1a")
            a("s_waitcnt vmcnt(0) lgkmcnt(0)")
            a.label("L_b1b")
        else:
            a("s_waitcnt vmcnt(0) lgkmcnt(0)")
        a("s_barrier")
        self.stamp("b1")
        a(f"s_cmp_lt_u32 {sW}, 2")
        a("s_cbranch_scc1 L_kv_go")
        if not early: bulk()
        a("s_branch L_kv_done")
        a.label("L_kv_go")
        a("v_and_b32 v8, 7, v1")
        a(f"s_lshl_b32 {sA}, {sM}, 3")
        a(f"v_add_u32 v8, {sA}, v8")
        a("v_bfe_u32 v9, v8, 1, 3")
        a("v_lshrrev_b32 v10, 4, v1")
        a("v_xor_b32 v9, v9, v10")
        a("v_lshlrev_b32 v9, 4, v9")
        a("v_lshl_add_u32 v20, v8, 7, v9")
        a("v_xor_b32 v21, 64, v20")
        a("v_bfe_u32 v8, v1, 4, 1")
        a("v_bfe_u32 v9, v1, 2, 2")
        a("v_lshl_add_u32 v8, v8, 2, v9")
        a("v_lshlrev_b32 v8, 5, v8")
        a("v_lshrrev_b32 v9, 5, v1")
        a("v_lshl_add_u32 v8, v9, 9, v8")
        a("v_and_b32 v9, 3, v1")
        a("v_lshl_add_u32 v8, v9, 3, v8")
        a(f"s_lshl_b32 {sA}, {sW}, 14")
        a(f"s_add_u32 {sA}, {sA}, {LDS_WK}")
        a(f"v_add_u32 v22, {sA}, v8")
        a("s_mov_b32 exec_lo, 0x00ff00ff")
        a("s_mov_b32 exec_hi, 0x00ff00ff")
        for s in range(16):
            a.ds(f"ds_read_b128 {vr(XF+4*s,4)}, {'v20' if s%2==0 else 'v21'} offset:{(s>>1)*8192}", f"x{s}")
        a("s_mov_b64 exec, -1")
        D = 24
        a(f"s_cmp_eq_u32 {sW}, 1")
        a("s_cbranch_scc1 L_vwave")
        saved_lg = list(a.lg)
        for wave in ("K", "V"):
            a.lg = list(saved_lg)
            if wave == "V": a.label("L_vwave")
            def wread(s):
                a.ds(f"ds_read_b64_tr_b16 {vr(WF+4*s,2)}, v22 offset:{s*1024}", f"w{s}")
                a.ds(f"ds_read_b64_tr_b16 {vr(WF+4*s+2,2)}, v22 offset:{s*1024+256}", f"w{s}")
            for s in range(4): wread(s)
            for s in range(16):
                a.wait_lg(f"w{s}")
                srcC = "0" if s == 0 else vr(D, 4)
                if wave == "K":
                    a(f"v_mfma_f32_16x16x32_bf16 {vr(D,4)}, {vr(WF+4*s,4)}, {vr(XF+4*s,4)}, {srcC}")
                else:
                    a(f"v_mfma_f32_16x16x32_bf16 {vr(D,4)}, {vr(XF+4*s,4)}, {vr(WF+4*s,4)}, {srcC}")
                if s + 4 < 16: wread(s + 4)
            a(f"s_lshl_b32 {sA}, {sC}, 3")
            a(f"s_add_u32 {sA}, {sA}, {sM}")
            a(f"s_lshl_b32 {sB}, {sA}, 10")
            a(f"s_add_u32 {sB}, {sB}, {WS_KV}")
            if wave == "K":
                a("v_and_b32 v8, 7, v1")
                a("v_lshlrev_b32 v8, 3, v8")
                a(f"s_lshl_b32 s4, {sG1}, 10")
                a(f"v_add_u32 v8, s4, v8")
                a.ds("ds_read_b64 v[10:11], v8", "st")
                for r in range(4):
                    a(f"v_mov_b32_dpp v{28+r}, v{D+r} row_ror:8 row_mask:0xf bank_mask:0xf")
                a.wait_lg("st")
                for r in range(4):
                    a(f"v_fma_f32 v{D+r}, -v10, v{28+r}, v{D+r}")
                for r in range(4):
                    a(f"v_mul_f32 v{D+r}, v11, v{D+r}")
                a(f"v_cvt_pk_bf16_f32 v32, v{D}, v{D+1}")
                a(f"v_cvt_pk_bf16_f32 v33, v{D+2}, v{D+3}")
                a("v_mov_b32 v34, v32")
                a("v_mov_b32 v35, v33")
                a("v_permlane32_swap_b32 v32, v34")
                a("v_permlane32_swap_b32 v33, v35")
                a("v_bfe_u32 v8, v1, 4, 1")
                a("v_and_b32 v9, 7, v1")
                a("v_lshlrev_b32 v9, 4, v9")
                a("v_lshl_add_u32 v8, v8, 7, v9")
                a("s_mov_b32 exec_lo, 0x00ff00ff")
                a("s_mov_b32 exec_hi, 0")
                a(f"buffer_store_dwordx4 v[32:35], v8, {srd(SRD_WS)}, {sB} offen sc1")
                a("s_mov_b64 exec, -1")
                a("v_dot2_f32_bf16 v12, v32, v32, 0")
                for i in (33, 34, 35):
                    a(f"v_dot2_f32_bf16 v12, v{i}, v{i}, v12")
                a("v_mov_b32 v13, v12")
                a("v_permlane16_swap_b32 v12, v13")
                a("v_add_f32 v12, v12, v13")
                a("v_and_b32 v13, 8, v1")
                a("v_cmp_eq_u32 vcc, 0, v13")
                a("v_cndmask_b32 v12, 0, v12, vcc")
                for n in (8, 4, 2, 1):
                    a(f"v_max_f32_dpp v12, v12, v12 row_ror:{n} row_mask:0xf bank_mask:0xf")
                a(f"v_readlane_b32 {sD}, v12, 0")
                a(f"s_add_u32 {sD}, {sD}, 8")
                a(f"s_and_b32 {sD}, {sD}, 0xfffffff8")
                a(f"s_or_b32 {sD}, {sD}, {sXCC}")
                a(f"s_mov_b32 s3, {sD}")
                a(f"s_mov_b32 {sG}, {sA}")
                a("s_branch L_kv_fin")
            else:
                a("v_bfe_u32 v8, v1, 4, 1")
                a("v_lshlrev_b32 v8, 5, v8")
                a(f"s_lshl_b32 s4, {sG1}, 10")
                a(f"s_add_u32 s4, s4, 8192")
                a(f"v_add_u32 v8, s4, v8")
                a.ds("ds_read_b128 v[12:15], v8", "st")
                a.ds("ds_read_b128 v[36:39], v8 offset:16", "st")
                a("v_and_b32 v9, 7, v1")
                a("v_lshlrev_b32 v9, 3, v9")
                a(f"v_add_u32 v40, s4, v9")
                a.ds("ds_read_b64 v[42:43], v40", "st")
                a(f"v_mov_b32 v28, v{D}")
                a(f"v_mov_b32 v29, v{D}")
                a("v_permlane32_swap_b32 v28, v29")
                a.wait_lg("st")
                st = [(12, 13), (14, 15), (36, 37), (38, 39)]
                for r in range(4):
                    a(f"v_fma_f32 v{D+r}, -v{st[r][0]}, v29, v{D+r}")
                for r in range(4):
                    a(f"v_mul_f32 v{D+r}, v{st[r][1]}, v{D+r}")
                a(f"v_cvt_pk_bf16_f32 v32, v{D}, v{D+1}")
                a(f"v_cvt_pk_bf16_f32 v33, v{D+2}, v{D+3}")
                a("v_mov_b32 v34, v32")
                a("v_mov_b32 v35, v33")
                a("v_permlane16_swap_b32 v32, v34")
                a("v_permlane16_swap_b32 v33, v35")
                a("v_add_u32 v8, 256, v2")
                a("s_mov_b64 exec, 0xffff")
                a(f"buffer_store_dwordx4 v[32:35], v8, {srd(SRD_WS)}, {sB} offen sc1")
                a("s_mov_b64 exec, 0xff")
                a("v_add_u32 v9, 512, v9")
                a(f"buffer_store_dwordx2 v[42:43], v9, {srd(SRD_WS)}, {sB} offen sc1")
                a("s_mov_b64 exec, -1")
                a(f"s_mov_b32 {sG}, {sA}")
        a.lg = []
        a.label("L_kv_fin")
        self.stamp("kvst")
        a(f"v_xor_b32 {vXt}, 64, {vXa}")
        xa_dma(sG1, sW, vXt)
        a("s_waitcnt vmcnt(1)")
        self.kv_flag()
        self.stamp("kvfl")
        a("s_waitcnt vmcnt(1)")
        a("s_branch L_b2")
        a.label("L_kv_done")
        a("s_waitcnt vmcnt(0)")
        a.label("L_b2")
        a("s_barrier")
        self.stamp("b2")
        a.vm = []
        AF, BF, ACC, CS = 64, 128, 32, 48
        vAe, vAo = "v20", "v21"
        vB = ["v22", "v23", "v24", "v25"]
        a("v_bfe_u32 v8, v1, 2, 2")
        a("v_lshrrev_b32 v9, 5, v1")
        a("v_lshl_add_u32 v9, v9, 3, v8")
        a("v_lshlrev_b32 v9, 7, v9")
        a("v_bfe_u32 v10, v1, 4, 1")
        a(f"v_xor_b32 v10, {sKH}, v10")
        a("v_lshlrev_b32 v10, 5, v10")
        a("v_and_b32 v11, 3, v1")
        a("v_lshl_add_u32 v10, v11, 3, v10")
        a(f"s_lshl_b32 {sA}, {sFT}, 6")
        a(f"v_add_u32 v10, {sA}, v10")
        a("v_bfe_u32 v11, v1, 3, 1")
        a("v_lshlrev_b32 v11, 6, v11")
        a("v_xor_b32 v10, v10, v11")
        a("v_add_u32 v9, v9, v10")
        a(f"s_lshl_b32 {sA}, {sKH}, 15")
        a(f"s_add_u32 {sA}, {sA}, {LDS_WA}")
        a(f"s_lshl_b32 {sB}, {sTT}, 11")
        a(f"s_add_u32 {sD}, {sA}, {sB}")
        a(f"v_add_u32 {vAe}, {sD}, v9")
        a(f"s_sub_u32 {sD}, {sA}, {sB}")
        a(f"v_add_u32 {vAo}, {sD}, v9")
        a("v_and_b32 v8, 31, v1")
        a("v_bfe_u32 v9, v1, 1, 3")
        a("v_lshrrev_b32 v10, 5, v1")
        a("v_xor_b32 v9, v9, v10")
        a("v_lshlrev_b32 v9, 4, v9")
        a("v_lshl_add_u32 v8, v8, 7, v9")
        a(f"s_lshl_b32 {sA}, {sKH}, 15")
        a(f"s_lshl_b32 {sB}, {sTT}, 12")
        a(f"s_add_u32 {sA}, {sA}, {sB}")
        a(f"v_add_u32 v8, {sA}, v8")
        a(f"s_lshl_b32 {sB}, {sTT}, 5")
        a(f"v_xor_b32 {vB[0]}, {sB}, v8")
        a(f"v_xor_b32 {vB[1]}, 32, {vB[0]}")
        a(f"v_xor_b32 {vB[2]}, 64, {vB[0]}")
        a(f"v_xor_b32 {vB[3]}, 96, {vB[0]}")
        a("s_mov_b32 s5, 0x3f803f80")
        NB = 5
        def qread(p):
            c, q = p >> 2, p & 3
            sl = p % NB
            va = vAe if q % 2 == 0 else vAo
            off = c * 8192 + q * 2048
            a.ds(f"ds_read_b64_tr_b16 {vr(AF+4*sl,2)}, {va} offset:{off}", f"q{p}")
            a.ds(f"ds_read_b64_tr_b16 {vr(AF+4*sl+2,2)}, {va} offset:{off+512}", f"q{p}")
            a.ds(f"ds_read_b128 {vr(BF+4*sl,4)}, {vB[q]} offset:{c*8192}", f"q{p}")
        PRE = 4
        self.stamp("q0")
        for p in range(PRE): qread(p)
        for p in range(16):
            sl = p % NB
            a.wait_lg(f"q{p}")
            srcC = "0" if p == 0 else vr(ACC, 16)
            a(f"v_mfma_f32_32x32x16_bf16 {vr(ACC,16)}, {vr(AF+4*sl,4)}, {vr(BF+4*sl,4)}, {srcC}")
            if p % 2 == 0:
                for i in range(4):
                    src2 = "0" if (p == 0 and i == 0) else f"v{CS}"
                    a(f"v_dot2_f32_bf16 v{CS}, v{AF+4*sl+i}, s5, {src2}")
            nx = p + PRE
            if nx < 16: qread(nx)
        self.stamp("q1")
        LDS_E = 64 * 1024
        LDS_CS = 80 * 1024
        a(f"s_lshl_b32 {sA}, {sW}, 11")
        a(f"s_add_u32 {sA}, {sA}, {LDS_E}")
        a(f"v_add_u32 v8, {sA}, v2")
        a(f"ds_write_b128 v8, {vr(ACC+8,4)}")
        a(f"ds_write_b128 v8, {vr(ACC+12,4)} offset:1024")
        a(f"v_mov_b32 v9, v{CS}")
        a(f"v_permlane32_swap_b32 v{CS}, v9")
        a(f"v_add_f32 v9, v{CS}, v9")
        a("v_and_b32 v10, 31, v1")
        a(f"s_lshl_b32 {sA}, {sKH}, 4")
        a(f"v_xor_b32 v10, {sA}, v10")
        a(f"s_lshl_b32 {sA}, {sKH}, 1")
        a(f"s_add_u32 {sA}, {sA}, {sTT}")
        a(f"s_lshl_b32 {sA}, {sA}, 1")
        a(f"s_add_u32 {sA}, {sA}, {sFT}")
        a(f"s_lshl_b32 {sA}, {sA}, 7")
        a(f"s_add_u32 {sA}, {sA}, {LDS_CS}")
        a("v_lshlrev_b32 v10, 2, v10")
        a(f"v_add_u32 v10, {sA}, v10")
        a("ds_write_b32 v10, v9")
        a("s_waitcnt lgkmcnt(0)")
        a("s_barrier")
        self.stamp("q2")
        a.lg = []
        a(f"s_xor_b32 {sA}, {sW}, 1")
        a(f"s_lshl_b32 {sA}, {sA}, 11")
        a(f"s_add_u32 {sA}, {sA}, {LDS_E}")
        a(f"v_add_u32 v8, {sA}, v2")
        a.ds(f"ds_read_b128 {vr(64,4)}, v8", "e")
        a.ds(f"ds_read_b128 {vr(68,4)}, v8 offset:1024", "e")
        a("v_lshrrev_b32 v9, 5, v1")
        a("v_lshlrev_b32 v9, 4, v9")
        a(f"s_lshl_b32 {sA}, {sFT}, 7")
        a(f"s_lshl_b32 {sB}, {sKH}, 6")
        a(f"s_add_u32 {sA}, {sA}, {sB}")
        a(f"s_add_u32 {sA}, {sA}, {LDS_CS}")
        a(f"v_add_u32 v9, {sA}, v9")
        for q in range(4):
            a.ds(f"ds_read_b128 {vr(72+8*q,4)}, v9 offset:{q*256}", "cs")
            a.ds(f"ds_read_b128 {vr(76+8*q,4)}, v9 offset:{q*256+32}", "cs")
        a.wait_lg("e")
        for i in range(8):
            a(f"v_add_f32 v{ACC+i}, v{ACC+i}, v{64+i}")
        a.wait_lg("cs")
        for i in range(8):
            a(f"v_add_f32 v{72+i}, v{72+i}, v{80+i}")
            a(f"v_add_f32 v{88+i}, v{88+i}, v{96+i}")
        for i in range(8):
            a(f"v_add_f32 v{40+i}, v{72+i}, v{88+i}")


    def poll_begin(self, name, limit=200000):
        a = self.a
        a(f"s_mov_b32 {sCnt}, {limit}")
        a.label(f"L_poll_{name}")
    def poll_end(self, name, sleep=1):
        a = self.a
        a(f"s_cbranch_vccz L_pollok_{name}")
        a(f"s_sub_u32 {sCnt}, {sCnt}, 1")
        a(f"s_cmp_eq_u32 {sCnt}, 0")
        a(f"s_cbranch_scc1 L_pollok_{name}")
        if sleep: a(f"s_sleep {sleep}")
        a(f"s_branch L_poll_{name}")
        a.label(f"L_pollok_{name}")

    def p2(self):
        a = self.a
        X = self.opt
        LDS_E = 132 * 1024
        Q, NEGM, S0, S1, IDX, O, KF, VF = 4, 8, 24, 40, 56, 64, 80, 88
        vKa, vVa, vKb, vVb = "v104", "v105", "v106", "v107"
        vT1, vT2 = "v108", "v109"
        PL = 110
        WD = 112
        W1 = 128
        sTG = "s3"
        a(f"s_add_u32 {sTG}, {sTag}, 1")
        self.stamp("b3")
        if X.get("kvsleep", 0):
            a(f"s_sleep {X['kvsleep']}")
        LDS_BC = 156 * 1024
        vDK, vDV = "v59", "v60"
        a("v_bfe_u32 v59, v1, 3, 2")
        a("v_lshlrev_b32 v59, 10, v59")
        a("v_and_b32 v13, 7, v1")
        a("v_lshl_or_b32 v59, v13, 4, v59")
        a("v_lshrrev_b32 v13, 5, v1")
        a("v_lshl_or_b32 v59, v13, 7, v59")
        a("v_lshrrev_b32 v60, 4, v1")
        a("v_lshlrev_b32 v60, 10, v60")
        a("v_and_b32 v13, 15, v1")
        a("v_lshl_or_b32 v60, v13, 4, v60")
        a("v_add_u32 v60, 256, v60")
        sRot = "s64"
        a(f"s_lshr_b32 {sRot}, {sID}, 3")
        a(f"s_lshl_b32 {sRot}, {sRot}, 1")
        a("v_bfe_u32 v8, v1, 3, 2")
        a("v_and_b32 v9, 7, v1")
        a("v_lshlrev_b32 v9, 3, v9")
        a("v_lshl_add_u32 v8, v8, 10, v9")
        a(f"s_lshl_b32 {sA}, {sC}, 3")
        a(f"s_lshl_b32 {sB}, {sTT}, 2")
        a(f"s_add_u32 {sA}, {sA}, {sB}")
        a(f"s_lshl_b32 {sA}, {sA}, 10")
        a(f"s_add_u32 s65, {sA}, {WS_KV + 512}")
        allpoll = X.get("allpoll", 0)
        if not allpoll:
            a(f"s_cmp_eq_u32 {sW}, 7")
            a("s_cbranch_scc0 L_nopollkv")
        a("v_lshlrev_b32 v3, 6, v1")
        a(f"s_mov_b32 {sA}, {WS_FLKV}")
        self.poll_begin("kv")
        for q in range(4):
            a(f"buffer_load_dwordx4 {vr(64+4*q,4)}, v3, {srd(SRD_WS)}, {sA} offen offset:{16*q} sc1")
        a("s_waitcnt vmcnt(0)")
        a(f"v_xor_b32 v80, {sTG}, v64")
        a(f"v_xor_b32 v81, {sTG}, v66")
        a("v_or_b32 v80, v80, v81")
        for q in range(1, 4):
            a(f"v_xor_b32 v81, {sTG}, v{64+4*q}")
            a("v_or_b32 v80, v80, v81")
            a(f"v_xor_b32 v81, {sTG}, v{66+4*q}")
            a("v_or_b32 v80, v80, v81")
        a("v_cmp_ne_u32 vcc, 0, v80")
        self.poll_end("kv", sleep=X.get("kvsl", 2))
        if not allpoll:
            a.label("L_nopollkv")
            a("s_barrier")
        self.stamp("kvok")
        a(f"buffer_load_dwordx2 v[10:11], v8, {srd(SRD_WS)}, s65 offen sc1")
        def kv_tile(spos):
            a(f"s_add_u32 {sD}, {spos}, {sRot}")
            a(f"s_and_b32 {sD}, {sD}, 63")
            a(f"s_lshl_b32 {sD}, {sD}, 12")
            a(f"s_add_u32 {sD}, {sD}, {WS_KV}")
            a(f"s_lshl_b32 {sE_}, {spos}, 11")
            a(f"s_mov_b32 m0, {sE_}")
            a(f"buffer_load_dwordx4 {vDK}, {srd(SRD_WS)}, {sD} offen sc1 lds")
            a(f"s_add_u32 {sE_}, {sE_}, 1024")
            a(f"s_mov_b32 m0, {sE_}")
            a(f"buffer_load_dwordx4 {vDV}, {srd(SRD_WS)}, {sD} offen sc1 lds")
        a(f"s_mov_b32 {sF}, {sW}")
        kv_tile(sF)
        a(f"s_add_u32 {sF}, {sW}, 8")
        kv_tile(sF)
        self.wt_issue()
        a(f"s_cmp_eq_u32 {sW}, 7")
        a("s_cbranch_scc0 L_nobc")
        a("v_and_b32 v80, -8, v65")
        for q in range(1, 4):
            a(f"v_and_b32 v81, -8, v{65+4*q}")
            a("v_max_f32 v80, v80, v81")
        a(f"v_xor_b32 v82, {sXCC}, v65")
        for q in range(1, 4):
            a(f"v_xor_b32 v81, {sXCC}, v{65+4*q}")
            a("v_or_b32 v82, v82, v81")
        a("v_and_b32 v82, 7, v82")
        a("v_cmp_ne_u32 vcc, 0, v82")
        a(f"s_lshl_b32 {sA}, {sC}, 1")
        a(f"s_lshr_b64 {sX64}, vcc, {sA}")
        a(f"s_and_b32 {sFast}, s4, 3")
        if X.get("slow"): a(f"s_mov_b32 {sFast}, 1")
        self.wave_reduce(["v80"], "max", ["v81"])
        a("v_sqrt_f32 v80, v80")
        a(f"v_mov_b32 v81, {sFast}")
        a(f"v_mov_b32 v82, {LDS_BC}")
        a("s_mov_b64 exec, 1")
        a("ds_write_b64 v82, v[80:81]")
        a("s_mov_b64 exec, -1")
        a.label("L_nobc")
        a(f"s_or_b32 {sA}, {sID}, {sW}")
        a(f"s_cmp_lg_u32 {sA}, 0")
        a("s_cbranch_scc1 L_noepoch")
        a(f"v_mov_b32 v81, {sTG}")
        a("v_mov_b32 v82, 0")
        a("s_mov_b64 exec, 1")
        a(f"buffer_store_dword v81, v82, {srd(SRD_WS)}, 0 offen")
        a("s_mov_b64 exec, -1")
        a.label("L_noepoch")
        a("s_waitcnt vmcnt(6)")
        a(f"v_mul_f32 v11, 0x{f32bits(0.25*LOG2E):x}, v11")
        for i in range(8):
            a(f"v_fma_f32 v{32+i}, -v10, v{40+i}, v{32+i}")
        for i in range(8):
            a(f"v_mul_f32 v{32+i}, v11, v{32+i}")
        for i in range(4):
            a(f"v_cvt_pk_bf16_f32 v{Q+i}, v{32+2*i}, v{33+2*i}")
        if self.stop == "q":
            self.dump_regs(0, [Q, Q+1, Q+2, Q+3], WS_DBG)
            return
        a(f"v_dot2_f32_bf16 v12, v{Q}, v{Q}, 0")
        for i in range(1, 4):
            a(f"v_dot2_f32_bf16 v12, v{Q+i}, v{Q+i}, v12")
        a("v_mov_b32 v13, v12")
        a("v_permlane32_swap_b32 v12, v13")
        a("v_add_f32 v12, v12, v13")
        a("v_sqrt_f32 v12, v12")
        a(f"v_mul_f32 v12, 0x{f32bits(1.0078125):x}, v12")
        def bound_check():
            a("v_mul_f32 v12, v12, v62")
            a(f"v_cmp_lt_f32 vcc, 0x{f32bits(48.0):x}, v12")
            a("v_cmp_u_f32 s[4:5], v12, v12")
            a("s_or_b64 vcc, vcc, s[4:5]")
            a("s_cmp_lg_u64 vcc, 0")
            a(f"s_cselect_b32 {sG}, 1, 0")
            a(f"v_readfirstlane_b32 {sFast}, v63")
            if X.get("forcefb"): a(f"s_mov_b32 {sG}, 1")
        a(f"v_mov_b32 v{VF}, 0x3f803f80")
        for i in range(1, 16):
            a(f"v_mov_b32 v{VF+i}, v{VF}")
        for i in range(16):
            a(f"v_mov_b32 v{O+i}, 0")
        a(f"v_mov_b32 v{IDX}, 0xdddddddd")
        a(f"v_mov_b32 {vKa}, v2")
        a(f"v_add_u32 {vKb}, 0x10000, v2")
        a("v_and_b32 v3, 15, v1")
        a("v_lshlrev_b32 v3, 4, v3")
        a("v_lshrrev_b32 v61, 5, v1")
        a("v_lshl_or_b32 v3, v61, 8, v3")
        a(f"v_add_u32 {vVa}, 1024, v3")
        a(f"v_add_u32 {vVb}, 0x10000, {vVa}")
        self.wt_addr(vT1, vT2)
        self.wt_poll_addr()
        a("s_mov_b32 s6, 0x0000ffff")
        a("s_mov_b32 s7, 0x0000ffff")
        a(f"v_mov_b32 v61, {LDS_BC}")
        a("s_waitcnt vmcnt(2) lgkmcnt(0)")
        a("s_barrier")
        self.stamp("b4")
        a(f"s_cmp_eq_u32 {sFT}, 0")
        a("s_cbranch_scc1 L_clsA")
        a(f"s_add_u32 {sF}, {sW}, 12")
        a(f"s_mov_b32 {sCnt}, 12")
        a.label("L_kvrest")
        kv_tile(sF)
        a(f"s_add_u32 {sF}, {sF}, 4")
        a(f"s_sub_u32 {sCnt}, {sCnt}, 1")
        a(f"s_cmp_lg_u32 {sCnt}, 0")
        a("s_cbranch_scc1 L_kvrest")
        a("s_setprio 1")
        a("s_waitcnt vmcnt(0)")
        a("s_barrier")
        a(f"s_mov_b32 {sPh}, 1")
        a("s_branch L_clsD")
        a.label("L_clsA")
        a("s_setprio 2")
        a(f"s_mov_b32 {sPh}, 0")
        a.label("L_clsD")

        def kread(t):
            base = vKa if t < 32 else vKb
            a.ds(f"ds_read_b128 {vr(KF+4*(t%2),4)}, {base} offset:{(t%32)*2048}", f"K{t}")
        def vread(t):
            base = vVa if t < 32 else vVb
            a("s_mov_b64 exec, s[6:7]")
            a.ds(f"ds_read_b128 {vr(VF+8*(t%2),4)}, {base} offset:{(t%32)*2048}", f"V{t}")
            a.ds(f"ds_read_b128 {vr(VF+8*(t%2)+4,4)}, {base} offset:{(t%32)*2048+512}", f"V{t}")
            a("s_mov_b64 exec, -1")
        def Sr(t): return S0 if t % 2 == 0 else S1
        def ms(t):
            a.wait_lg(f"K{t}")
            a(f"v_mfma_f32_32x32x16_bf16 {vr(Sr(t),16)}, {vr(KF+4*(t%2),4)}, {vr(Q,4)}, 0")
        def sm(t, half):
            a.wait_lg(f"V{t}")
            a(f"v_smfmac_f32_32x32x32_bf16 {vr(O,16)}, {vr(VF+8*(t%2)+4*half,4)}, {vr(Sr(t)+8*half,8)}, v{IDX}")
        def E(t, lo, hi):
            for i in range(lo, hi + 1): a(f"v_exp_f32 v{Sr(t)+i}, v{Sr(t)+i}")

        TA = dict(wt=X.get("Awt", 10), fl=X.get("Afl", 17), bar=13, sw=X.get("sw", 50))
        TB = dict(wt=X.get("Bwt", 0), fl=X.get("Bfl", 2))
        TPOLL, TCHK, TLD0 = X.get("tpoll", 30), X.get("tchk", 32), X.get("tld", 32)
        def cond(cls, name, fn):
            lab = a.newlabel(f"L_{name}")
            a(f"s_cmp_eq_u32 {sFT}, {cls}")
            a(f"s_cbranch_scc0 {lab}")
            fn()
            a.label(lab)
        def b_wt():
            a("s_waitcnt vmcnt(0)")
            a(f"ds_read_b64_tr_b16 v[{WD}:{WD+1}], {vT1}")
            a(f"ds_read_b64_tr_b16 v[{WD+2}:{WD+3}], {vT1} offset:1024")
            a(f"ds_read_b64_tr_b16 v[{WD+4}:{WD+5}], {vT2}")
            a(f"ds_read_b64_tr_b16 v[{WD+6}:{WD+7}], {vT2} offset:1024")
            a("s_waitcnt lgkmcnt(0)")
            a(f"buffer_store_dwordx4 v[{WD}:{WD+3}], v2, {srd(SRD_WS)}, s88 offen sc1")
            a("s_add_u32 s88, s88, s89")
            a(f"buffer_store_dwordx4 v[{WD+4}:{WD+7}], v2, {srd(SRD_WS)}, s88 offen sc1")
        def b_fl():
            a("s_waitcnt vmcnt(0)")
            a(f"s_lshl_b32 {sA}, {sID}, 3")
            a(f"s_add_u32 {sA}, {sA}, {sW}")
            a(f"s_lshl_b32 {sA}, {sA}, 2")
            a(f"s_add_u32 {sA}, {sA}, {WS_FLWT2}")
            a(f"v_mov_b32 v{WD}, {sTG}")
            a(f"v_mov_b32 v{WD+1}, 0")
            a("s_mov_b64 exec, 1")
            a(f"buffer_store_dword v{WD}, v{WD+1}, {srd(SRD_WS)}, {sA} offen sc1")
            a("s_mov_b64 exec, -1")
        def b_bar():
            lab = a.newlabel("L_b5")
            a(f"s_cmp_eq_u32 {sPh}, 1")
            a(f"s_cbranch_scc1 {lab}")
            a("s_barrier")
            a.label(lab)
        def poll_issue():
            a(f"buffer_load_dword v{PL}, v57, {srd(SRD_WS)}, 0 offen sc1")
            a(f"buffer_load_dword v{PL+1}, v58, {srd(SRD_WS)}, 0 offen sc1")
        def poll_check():
            a("s_waitcnt vmcnt(0)")
            a(f"s_mov_b32 {sCnt}, 200000")
            a.label("L_wtchk")
            a(f"v_xor_b32 v{PL}, {sTG}, v{PL}")
            a(f"v_xor_b32 v{PL+1}, {sTG}, v{PL+1}")
            a(f"v_or_b32 v{PL}, v{PL}, v{PL+1}")
            a(f"v_cmp_ne_u32 vcc, 0, v{PL}")
            a("s_cbranch_vccz L_wtok")
            a(f"s_sub_u32 {sCnt}, {sCnt}, 1")
            a(f"s_cmp_eq_u32 {sCnt}, 0")
            a("s_cbranch_scc1 L_wtok")
            a("s_sleep 2")
            poll_issue()
            a("s_waitcnt vmcnt(0)")
            a("s_branch L_wtchk")
            a.label("L_wtok")
        extras = {t: [] for t in range(64)}
        mid = {t: [] for t in range(64)}
        extras[TA["wt"]].append(lambda: cond(0, "wtA", b_wt))
        extras[TB["wt"]].append(lambda: cond(1, "wtB", b_wt))
        extras[TA["fl"]].append(lambda: cond(0, "flA", b_fl))
        extras[TB["fl"]].append(lambda: cond(1, "flB", b_fl))
        extras[TA["bar"]].append(b_bar)
        extras[TA["sw"]].append(lambda: cond(0, "swA", lambda: a("s_setprio 0")))
        def dirty():
            n = X["dirty"]
            a(f"s_lshl_b32 {sA}, {sID}, 3")
            a(f"s_add_u32 {sA}, {sA}, {sW}")
            a(f"s_mul_i32 {sA}, {sA}, {n*1024}")
            a(f"s_add_u32 {sA}, {sA}, {WS_DBG}")
            for i in range(n):
                a(f"buffer_store_dwordx4 v[4:7], v2, {srd(SRD_WS)}, {sA} offen")
                a(f"s_add_u32 {sA}, {sA}, 1024")
        if X.get("dirty"): extras[20].append(dirty)
        extras[0].insert(0, bound_check)
        extras[TPOLL].append(poll_issue)
        extras[TCHK - 1].append(poll_check)
        def w1load(s_):
            def f():
                a(f"buffer_load_dwordx4 {vr(W1H[s_],4)}, v2, {srd(SRD_WS)}, {sW1B} offen offset:{(s_%4)*1024} sc1")
                if s_ % 4 == 3: a(f"s_add_u32 {sW1B}, {sW1B}, 4096")
            return f
        for s_ in range(NW1PRE):
            mid[TLD0 + s_ // 2].append(w1load(s_))
        def wo_addr():
            a(f"s_lshl_b32 {sA}, {sM}, 1")
            a(f"s_add_u32 {sA}, {sA}, {sFT}")
            a(f"s_lshl_b32 {sA}, {sA}, 5")
            a(f"s_lshl_b32 {sB}, {sKH}, 4")
            a(f"s_add_u32 {sA}, {sA}, {sB}")
            a(f"s_lshl_b32 {sA}, {sA}, 10")
            a(f"s_add_u32 {sWOB}, {sA}, {WS_WOF}")
            a(f"s_lshl_b32 {sB}, {sKH}, 8")
            a(f"v_xor_b32 v57, {sB}, v2")
        extras[TCHK].append(wo_addr)
        def woload(i):
            def f():
                a(f"buffer_load_dwordx4 {vr(WOH[i],4)}, v57, {srd(SRD_WS)}, {sWOB} offen offset:{(i%4)*1024} sc1")
                if i % 4 == 3 and i < 15: a(f"s_add_u32 {sWOB}, {sWOB}, 4096")
            return f
        TWO = TLD0 + NW1PRE // 2
        for i in range(16):
            mid[TWO + i // 2].append(woload(i))

        def pf_addr():
            a(f"s_lshl_b32 {sA}, {sM}, 1")
            a(f"s_add_u32 {sA}, {sA}, {sFT}")
            a(f"s_mul_i32 {sA}, {sA}, 112")
            a(f"s_and_b32 {sB}, {sW}, 3")
            a(f"s_mul_i32 {sB}, {sB}, 28")
            a(f"s_add_u32 {sA}, {sA}, {sB}")
            a(f"s_lshl_b32 {sA}, {sA}, 10")
            a(f"s_add_u32 {sPF}, {sA}, {WS_W2F}")
            a("v_lshlrev_b32 v58, 6, v1")
        def pf(i):
            def f():
                a(f"buffer_load_dword v59, v58, {srd(SRD_WS)}, {sPF} offen sc1")
                a(f"s_add_u32 {sPF}, {sPF}, 4096")
            return f
        def pf_w1():
            a(f"s_add_u32 {sPF}, {sW1B}, 2048")
            a(f"buffer_load_dword v59, v58, {srd(SRD_WS)}, {sPF} offen sc1")
            a(f"buffer_load_dword v59, v58, {srd(SRD_WS)}, {sPF} offen offset:2048 sc1")
        if X.get("pf"):
            TPF = TWO + 8
            extras[TPF - 1].append(pf_addr)
            for i in range(7): mid[TPF + i].append(pf(i))
            mid[TPF + 7].append(pf_w1)

        a.lg = []
        a.ds("ds_read_b64 v[62:63], v61", "bc")
        kread(0); kread(1); vread(0)
        ms(0)
        a("s_nop 11")
        for t in range(64):
            E(t, 0, 1)
            if t > 0: sm(t - 1, 1)
            if t + 1 < 64: vread(t + 1)
            E(t, 2, 5)
            if t + 1 < 64: ms(t + 1)
            if t + 2 < 64: kread(t + 2)
            if mid[t]: mid[t][0]()
            E(t, 6, 11)
            sm(t, 0)
            for f in mid[t][1:]: f()
            E(t, 12, 15)
            for f in extras[t]: f()
        a("s_nop 1")
        sm(63, 1)
        a("s_setprio 0")
        self.stamp("attn")
        a("s_nop 7")
        a("s_nop 3")
        a(f"v_rcp_f32 v3, v{O+8}")
        a(f"v_mul_f32 v80, 0, v{O}")
        a(f"v_mul_f32 v81, 0, v{O+1}")
        for i in range(2, 8, 2):
            a(f"v_fma_f32 v80, v{O+i}, 0, v80")
            a(f"v_fma_f32 v81, v{O+i+1}, 0, v81")
        a("v_add_f32 v80, v80, v81")
        a("v_cmp_u_f32 vcc, v80, v80")
        a("s_cmp_lg_u64 vcc, 0")
        a(f"s_cselect_b32 {sA}, 1, 0")
        a(f"s_or_b32 {sA}, {sA}, {sG}")
        a(f"s_cmp_eq_u32 {sA}, 0")
        a("s_cbranch_scc1 L_nofb")
        a(f"v_mov_b32 v57, {vKa}")
        a("v_mov_b32 v58, 0xff800000")
        a(f"s_mov_b32 {sCnt}, 64")
        a.label("L_fb")
        a(f"ds_read_b128 {vr(KF,4)}, v57")
        a("v_add_u32 v57, 2048, v57")
        a("s_waitcnt lgkmcnt(0)")
        a(f"v_mfma_f32_32x32x16_bf16 {vr(S0,16)}, {vr(KF,4)}, {vr(Q,4)}, 0")
        for i in range(8):
            a(f"v_max3_f32 v58, v{S0+2*i}, v{S0+2*i+1}, v58")
        a(f"s_sub_u32 {sCnt}, {sCnt}, 1")
        a(f"s_cmp_lg_u32 {sCnt}, 0")
        a("s_cbranch_scc1 L_fb")
        a("v_mov_b32 v57, v58")
        a("v_permlane32_swap_b32 v57, v58")
        a("v_max_f32 v58, v57, v58")
        a(f"v_sub_f32 v{S1}, 0, v58")
        for i in range(1, 16):
            a(f"v_mov_b32 v{S1+i}, v{S1}")
        for i in range(16):
            a(f"v_mov_b32 v{O+i}, 0")
        a(f"v_mov_b32 v57, {vKa}")
        a(f"v_mov_b32 v58, {vVa}")
        a(f"s_mov_b32 {sCnt}, 64")
        a.label("L_fb2")
        a(f"ds_read_b128 {vr(KF,4)}, v57")
        a("s_mov_b64 exec, s[6:7]")
        a(f"ds_read_b128 {vr(VF,4)}, v58")
        a(f"ds_read_b128 {vr(VF+4,4)}, v58 offset:512")
        a("s_mov_b64 exec, -1")
        a("v_add_u32 v57, 2048, v57")
        a("v_add_u32 v58, 2048, v58")
        a("s_waitcnt lgkmcnt(0)")
        a(f"v_mfma_f32_32x32x16_bf16 {vr(S0,16)}, {vr(KF,4)}, {vr(Q,4)}, {vr(S1,16)}")
        for i in range(16):
            a(f"v_exp_f32 v{S0+i}, v{S0+i}")
        a(f"v_smfmac_f32_32x32x32_bf16 {vr(O,16)}, {vr(VF,4)}, {vr(S0,8)}, v{IDX}")
        a(f"v_smfmac_f32_32x32x32_bf16 {vr(O,16)}, {vr(VF+4,4)}, {vr(S0+8,8)}, v{IDX}")
        a(f"s_sub_u32 {sCnt}, {sCnt}, 1")
        a(f"s_cmp_lg_u32 {sCnt}, 0")
        a("s_nop 7")
        a("s_nop 7")
        a("s_cbranch_scc1 L_fb2")
        a(f"v_rcp_f32 v3, v{O+8}")
        a.label("L_nofb")
        OP = 40
        for i in range(8):
            a(f"v_mul_f32 v{O+i}, v3, v{O+i}")
        for i in range(4):
            a(f"v_cvt_pk_bf16_f32 v{OP+i}, v{O+2*i}, v{O+2*i+1}")
        a(f"s_lshl_b32 s88, {sM}, 2")
        a(f"s_lshl_b32 {sB}, {sFT}, 1")
        a(f"s_add_u32 s88, s88, {sB}")
        a(f"s_add_u32 s88, s88, {sKH}")
        a(f"s_lshl_b32 {sB}, s88, 1")
        a(f"s_add_u32 {sB}, {sB}, {sTT}")
        a(f"s_lshl_b32 {sB}, {sB}, 10")
        a(f"s_lshl_b32 {sD}, {sC}, 16")
        a(f"s_add_u32 {sB}, {sB}, {sD}")
        a(f"s_add_u32 {sB}, {sB}, {WS_O}")
        a(f"s_lshl_b32 {sD}, {sTT}, 5")
        a(f"s_add_u32 {sD}, {sD}, s88")
        a(f"s_lshl_b32 {sD}, {sD}, 2")
        a(f"s_lshl_b32 {sE_}, {sC}, 8")
        a(f"s_add_u32 {sD}, {sD}, {sE_}")
        a(f"s_add_u32 {sD}, {sD}, {WS_FLO}")
        self.publish("o", [("dwordx4", vr(OP, 4), "v2", sB, 0)], sD)
        self.stamp("opub")

    def wt_addr(self, vT1, vT2):
        a = self.a
        LDS_E = 132 * 1024
        a("v_bfe_u32 v61, v1, 2, 2")
        a("v_lshrrev_b32 v62, 5, v1")
        a("v_lshl_add_u32 v62, v62, 2, v61")
        a("v_lshlrev_b32 v62, 7, v62")
        a("v_bfe_u32 v63, v1, 4, 1")
        a("v_lshlrev_b32 v63, 5, v63")
        a("v_and_b32 v61, 3, v1")
        a("v_lshl_add_u32 v63, v61, 3, v63")
        a("v_bfe_u32 v61, v1, 3, 1")
        a("v_lshlrev_b32 v61, 6, v61")
        a("v_xor_b32 v63, v63, v61")
        a("v_add_u32 v62, v62, v63")
        a(f"s_xor_b32 {sA}, {sW}, 1")
        a(f"s_lshl_b32 {sA}, {sA}, 11")
        a(f"s_add_u32 {sA}, {sA}, {LDS_E}")
        a(f"v_add_u32 {vT1}, {sA}, v62")
        a(f"v_xor_b32 {vT2}, 64, {vT1}")

    def wt_poll_addr(self):
        a = self.a
        a(f"s_cmp_eq_u32 {sW}, 7")
        a("s_cbranch_scc1 L_pa7")
        a(f"s_mul_i32 {sA}, {sM}, 7")
        a(f"s_add_u32 {sA}, {sA}, {sW}")
        a(f"s_lshl_b32 {sW1B}, {sA}, 15")
        a(f"s_add_u32 {sW1B}, {sW1B}, {WS_W1F}")
        a(f"s_lshr_b32 {sA}, {sA}, 1")
        a(f"s_lshl_b32 {sA}, {sA}, 5")
        a(f"s_add_u32 {sA}, {sA}, 256")
        a("s_branch L_pad")
        a.label("L_pa7")
        a(f"s_lshl_b32 {sA}, {sM}, 1")
        a(f"s_add_u32 {sA}, {sA}, 1")
        a(f"s_mul_i32 {sA}, {sA}, 112")
        a(f"s_add_u32 {sA}, {sA}, 98")
        a(f"s_lshl_b32 {sW1B}, {sA}, 10")
        a(f"s_add_u32 {sW1B}, {sW1B}, {WS_W2F}")
        a(f"s_mul_i32 {sA}, {sM}, 112")
        a(f"s_add_u32 {sA}, {sA}, {1152 + 80}")
        a.label("L_pad")
        a(f"s_lshl_b32 {sB}, {sM}, 5")
        a(f"s_sub_u32 {sB}, {sB}, 32")
        a(f"v_mov_b32 v57, {sA}")
        a(f"v_mov_b32 v58, {sB}")
        a("v_cmp_gt_u32 vcc, 32, v1")
        a("v_cndmask_b32 v57, v58, v57, vcc")
        a("v_add_u32 v57, v57, v1")
        a("v_lshlrev_b32 v57, 2, v57")
        a(f"v_add_u32 v57, {WS_FLWT2}, v57")
        a(f"s_mul_i32 {sA}, {sM}, 112")
        a(f"s_mul_i32 {sB}, {sW}, 14")
        a(f"s_add_u32 {sA}, {sA}, {sB}")
        a(f"s_add_u32 {sA}, {sA}, 1152")
        a("v_min_u32 v58, 13, v1")
        a(f"v_add_u32 v58, {sA}, v58")
        a("v_lshlrev_b32 v58, 2, v58")
        a(f"v_add_u32 v58, {WS_FLWT2}, v58")

    def publish(self, name, stores, sflag, pre_exec=None):
        a = self.a
        a(f"v_mov_b32 v104, s3")
        a(f"v_mov_b32 v105, 0")
        a(f"s_cmp_eq_u32 {sFast}, 0")
        a(f"s_cbranch_scc0 L_pub_slow_{name}")
        for variant, mod in (("fast", ""), ("slow", " sc1")):
            if variant == "slow": a.label(f"L_pub_slow_{name}")
            for st in stores:
                ty, data, voff, soff, io = st[:5]
                if len(st) > 5: a(f"s_mov_b32 exec_hi, 0")
                a(f"buffer_store_{ty} {data}, {voff}, {srd(SRD_WS)}, {soff} offen offset:{io}{mod}")
                if len(st) > 5: a("s_mov_b64 exec, -1")
            a("s_waitcnt vmcnt(0)")
            a("s_mov_b64 exec, 1")
            a(f"buffer_store_dword v104, v105, {srd(SRD_WS)}, {sflag} offen{mod}")
            a("s_mov_b64 exec, -1")
            if variant == "fast": a(f"s_branch L_pub_done_{name}")
        a.label(f"L_pub_done_{name}")

    def wt_issue(self):
        a = self.a
        LDS_E = 132 * 1024
        a(f"s_lshl_b32 {sA}, {sID}, 3")
        a(f"s_add_u32 {sA}, {sA}, {sW}")
        a(f"s_cmp_lt_u32 {sA}, 256")
        a("s_cbranch_scc1 L_wt_wo")
        a(f"s_cmp_lt_u32 {sA}, 1152")
        a("s_cbranch_scc1 L_wt_w1")
        a(f"s_sub_u32 {sA}, {sA}, 1152")
        a(f"s_mul_i32 {sB}, {sA}, 9363")
        a(f"s_lshr_b32 {sB}, {sB}, 20")
        a(f"s_mul_i32 {sD}, {sB}, 112")
        a(f"s_sub_u32 {sD}, {sA}, {sD}")
        for i in range(4): a(f"s_mov_b32 s{SRD_T+i}, s{SRD_W2+i}")
        a(f"s_mov_b32 {sF}, 1024")
        a(f"s_mul_i32 s88, {sB}, {2*112}")
        a(f"s_add_u32 s88, s88, {sD}")
        a("s_lshl_b32 s88, s88, 10")
        a(f"s_add_u32 s88, s88, {WS_W2F}")
        a(f"s_mov_b32 s89, {112*1024}")
        a("s_branch L_wt_go")
        a.label("L_wt_w1")
        a(f"s_sub_u32 {sA}, {sA}, 256")
        a(f"s_lshr_b32 {sB}, {sA}, 5")
        a(f"s_and_b32 {sD}, {sA}, 31")
        for i in range(4): a(f"s_mov_b32 s{SRD_T+i}, s{SRD_W1+i}")
        a(f"s_mov_b32 {sF}, 3584")
        a(f"s_lshl_b32 s88, {sB}, 6")
        a(f"s_add_u32 s88, s88, {sD}")
        a("s_lshl_b32 s88, s88, 10")
        a(f"s_add_u32 s88, s88, {WS_W1F}")
        a(f"s_mov_b32 s89, {32*1024}")
        a("s_branch L_wt_go")
        a.label("L_wt_wo")
        a(f"s_lshr_b32 {sB}, {sA}, 5")
        a(f"s_and_b32 {sD}, {sA}, 31")
        for i in range(4): a(f"s_mov_b32 s{SRD_T+i}, s{SRD_WO+i}")
        a(f"s_mov_b32 {sF}, 1024")
        a(f"s_lshl_b32 s88, {sB}, 6")
        a(f"s_add_u32 s88, s88, {sD}")
        a("s_lshl_b32 s88, s88, 10")
        a(f"s_add_u32 s88, s88, {WS_WOF}")
        a(f"s_mov_b32 s89, {32*1024}")
        a.label("L_wt_go")
        a(f"s_mul_i32 {sD}, {sD}, {sF}")
        a(f"s_lshl_b32 {sD}, {sD}, 4")
        a(f"s_lshl_b32 {sB}, {sB}, 7")
        a(f"s_add_u32 {sD}, {sD}, {sB}")
        a("v_lshrrev_b32 v16, 3, v1")
        a(f"v_mul_lo_u32 v16, v16, {sF}")
        a("v_and_b32 v17, 7, v1")
        a("v_bfe_u32 v18, v1, 4, 1")
        a("v_lshlrev_b32 v18, 2, v18")
        a("v_xor_b32 v17, v17, v18")
        a("v_lshl_add_u32 v16, v17, 4, v16")
        a(f"s_xor_b32 {sA}, {sW}, 1")
        a(f"s_lshl_b32 {sA}, {sA}, 11")
        a(f"s_add_u32 {sA}, {sA}, {LDS_E}")
        a(f"s_mov_b32 m0, {sA}")
        a(f"buffer_load_dwordx4 v16, {srd(SRD_T)}, {sD} offen lds")
        a(f"s_lshl_b32 {sB}, {sF}, 3")
        a(f"s_add_u32 {sD}, {sD}, {sB}")
        a(f"s_add_u32 {sA}, {sA}, 1024")
        a(f"s_mov_b32 m0, {sA}")
        a(f"buffer_load_dwordx4 v16, {srd(SRD_T)}, {sD} offen lds")

    def wt_process(self):
        a = self.a
        LDS_E = 132 * 1024
        a("v_bfe_u32 v106, v1, 2, 2")
        a("v_lshrrev_b32 v107, 5, v1")
        a("v_lshl_add_u32 v107, v107, 2, v106")
        a("v_lshlrev_b32 v107, 7, v107")
        a("v_bfe_u32 v108, v1, 4, 1")
        a("v_lshlrev_b32 v108, 5, v108")
        a("v_and_b32 v109, 3, v1")
        a("v_lshl_add_u32 v108, v109, 3, v108")
        a("v_bfe_u32 v109, v1, 3, 1")
        a("v_lshlrev_b32 v109, 6, v109")
        a("v_xor_b32 v108, v108, v109")
        a("v_add_u32 v107, v107, v108")
        a(f"s_xor_b32 {sA}, {sW}, 1")
        a(f"s_lshl_b32 {sA}, {sA}, 11")
        a(f"s_add_u32 {sA}, {sA}, {LDS_E}")
        a(f"v_add_u32 v107, {sA}, v107")
        a("v_xor_b32 v108, 64, v107")
        a("ds_read_b64_tr_b16 v[112:113], v107")
        a("ds_read_b64_tr_b16 v[114:115], v107 offset:1024")
        a("ds_read_b64_tr_b16 v[116:117], v108")
        a("ds_read_b64_tr_b16 v[118:119], v108 offset:1024")
        a("s_waitcnt lgkmcnt(0)")
        a(f"buffer_store_dwordx4 v[112:115], v2, {srd(SRD_WS)}, s88 offen sc1")
        a("s_add_u32 s88, s88, s89")
        a(f"buffer_store_dwordx4 v[116:119], v2, {srd(SRD_WS)}, s88 offen sc1")


    def colsum(self, homes, first):
        a = self.a
        n = 0
        a("s_mov_b32 s5, 0x3f803f80")
        for hm in homes:
            for i in range(4):
                r = "v106" if n % 2 == 0 else "v107"
                a(f"v_dot2_f32_bf16 {r}, v{hm+i}, s5, {'0' if (first and n < 2) else r}")
                n += 1

    def p3(self):
        a = self.a
        X_ = self.opt
        HB, X, ACC, BR = 4, 56, 24, 64
        LDS_OF, LDS_E2 = 0, 128 * 1024
        sS = "s88"
        a("v_and_b32 v3, 31, v1")
        a("v_lshlrev_b32 v3, 10, v3")
        a("v_lshrrev_b32 v104, 5, v1")
        a("v_lshl_or_b32 v3, v104, 3, v3")
        a(f"s_lshl_b32 {sA}, {sTT}, 5")
        a(f"s_add_u32 {sA}, {sA}, {sT0}")
        a(f"s_lshl_b32 {sA}, {sA}, 10")
        a(f"s_lshl_b32 {sB}, {sS}, 5")
        a(f"s_add_u32 {sA}, {sA}, {sB}")
        a(f"buffer_load_dwordx2 {vr(X,2)}, v3, {srd(SRD_X)}, {sA} offen")
        a(f"buffer_load_dwordx2 {vr(X+2,2)}, v3, {srd(SRD_X)}, {sA} offen offset:16")
        a("s_barrier")
        self.stamp("b7")
        a(f"s_cmp_eq_u32 {sW}, 7")
        a("s_cbranch_scc1 L_nocs1")
        self.colsum(W1H[:NW1PRE], True)
        a.label("L_nocs1")
        a(f"s_lshl_b32 {sA}, {sTT}, 5")
        a(f"s_lshl_b32 {sB}, {sKH}, 4")
        a(f"s_add_u32 {sA}, {sA}, {sB}")
        a(f"s_lshl_b32 {sA}, {sA}, 2")
        a(f"s_lshl_b32 {sB}, {sC}, 8")
        a(f"s_add_u32 {sA}, {sA}, {sB}")
        a(f"s_add_u32 {sA}, {sA}, {WS_FLO}")
        a("v_and_b32 v3, 15, v1")
        a("v_lshlrev_b32 v3, 2, v3")
        self.poll_begin("o")
        a(f"buffer_load_dword v104, v3, {srd(SRD_WS)}, {sA} offen sc1")
        a("s_waitcnt vmcnt(0)")
        a("v_cmp_ne_u32 vcc, s3, v104")
        self.poll_end("o", sleep=1)
        self.stamp("ook")
        a(f"s_lshl_b32 {sA}, {sKH}, 4")
        a(f"s_lshl_b32 {sB}, {sFT}, 2")
        a(f"s_add_u32 {sA}, {sA}, {sB}")
        a(f"s_lshl_b32 {sA}, {sA}, 1")
        a(f"s_add_u32 {sA}, {sA}, {sTT}")
        a(f"s_lshl_b32 {sA}, {sA}, 10")
        a(f"s_lshl_b32 {sB}, {sC}, 16")
        a(f"s_add_u32 {sB}, {sB}, {sA}")
        a(f"s_add_u32 {sB}, {sB}, {WS_O}")
        for st in range(2):
            for i in range(4):
                d = (st * 8 + i) * 2048
                a(f"s_add_u32 {sD}, {sA}, {d + LDS_OF}")
                a(f"s_add_u32 {sE_}, {sB}, {d}")
                a(f"s_mov_b32 m0, {sD}")
                a(f"buffer_load_dwordx4 v2, {srd(SRD_WS)}, {sE_} offen sc1 lds")
        nrest = 32 - NW1PRE
        a(f"s_lshl_b32 {sA}, {sKH}, 15")
        a(f"s_lshl_b32 {sB}, {sTT}, 10")
        a(f"s_add_u32 {sA}, {sA}, {sB}")
        a(f"v_add_u32 v104, {sA}, v2")
        def late_loads():
            for s_ in range(NW1PRE, 32):
                a(f"buffer_load_dwordx4 {vr(W1H[s_],4)}, v2, {srd(SRD_WS)}, {sW1B} offen offset:{(s_%4)*1024} sc1")
                if s_ % 4 == 3 and s_ < 31: a(f"s_add_u32 {sW1B}, {sW1B}, 4096")
        a.lg = []
        for st in range(2):
            a(f"s_waitcnt vmcnt({4 if st == 0 else 0})")
            a("s_barrier")
            for i in range(8):
                a.ds(f"ds_read_b128 {vr(BR+4*i,4)}, v104 offset:{(st*8+i)*2048}", f"b{st}{i}")
            if st == 1: late_loads()
            for i in range(8):
                a.wait_lg(f"b{st}{i}")
                k = st * 8 + i
                srcC = "0" if k == 0 else vr(ACC, 16)
                a(f"v_mfma_f32_32x32x16_bf16 {vr(ACC,16)}, {vr(WOH[k],4)}, {vr(BR+4*i,4)}, {srcC}")
        self.stamp("p3mm")
        a(f"s_lshl_b32 {sA}, {sW}, 11")
        a(f"s_add_u32 {sA}, {sA}, {LDS_E2}")
        a(f"v_add_u32 v104, {sA}, v2")
        a(f"ds_write_b128 v104, {vr(ACC+8,4)}")
        a(f"ds_write_b128 v104, {vr(ACC+12,4)} offset:1024")
        a("s_waitcnt lgkmcnt(0)")
        a("s_barrier")
        a("v_xor_b32 v104, 2048, v104")
        a(f"ds_read_b128 {vr(BR,4)}, v104")
        a(f"ds_read_b128 {vr(BR+4,4)}, v104 offset:1024")
        for i in range(4):
            a(f"v_lshlrev_b32 v{BR+8+2*i}, 16, v{X+i}")
            a(f"v_and_b32 v{BR+9+2*i}, 0xffff0000, v{X+i}")
        a(f"s_lshl_b32 {sA}, {sS}, 1")
        a(f"s_add_u32 {sA}, {sA}, {sTT}")
        a(f"s_lshl_b32 {sA}, {sA}, 10")
        a(f"s_lshl_b32 {sB}, {sC}, 16")
        a(f"s_add_u32 {sA}, {sA}, {sB}")
        a(f"s_add_u32 {sA}, {sA}, {WS_H}")
        a(f"s_lshl_b32 {sD}, {sTT}, 5")
        a(f"s_add_u32 {sD}, {sD}, {sS}")
        a(f"s_lshl_b32 {sD}, {sD}, 2")
        a(f"s_lshl_b32 {sE_}, {sC}, 8")
        a(f"s_add_u32 {sD}, {sD}, {sE_}")
        a(f"s_add_u32 {sD}, {sD}, {WS_FLH}")
        for i in range(8):
            a(f"v_add_f32 v{ACC+i}, v{ACC+i}, v{BR+8+i}")
        a("s_waitcnt lgkmcnt(0)")
        for i in range(8):
            a(f"v_add_f32 v{ACC+i}, v{ACC+i}, v{BR+i}")
        for i in range(4):
            a(f"v_cvt_pk_bf16_f32 v{HB+i}, v{ACC+2*i}, v{ACC+2*i+1}")
        a("s_mov_b32 s5, 0x3f803f80")
        a(f"v_dot2_f32_bf16 v56, v{HB}, s5, 0")
        a(f"v_dot2_f32_bf16 v57, v{HB}, v{HB}, 0")
        for i in range(1, 4):
            a(f"v_dot2_f32_bf16 v56, v{HB+i}, s5, v56")
            a(f"v_dot2_f32_bf16 v57, v{HB+i}, v{HB+i}, v57")
        a("v_mov_b32 v58, v56")
        a("v_mov_b32 v59, v57")
        a("v_permlane32_swap_b32 v56, v58")
        a("v_permlane32_swap_b32 v57, v59")
        a("v_add_f32 v56, v56, v58")
        a("v_add_f32 v57, v57, v59")
        a(f"s_lshl_b32 {sB}, {sTT}, 5")
        a(f"s_add_u32 {sB}, {sB}, {sS}")
        a(f"s_lshl_b32 {sB}, {sB}, 8")
        a(f"s_lshl_b32 {sE_}, {sC}, 14")
        a(f"s_add_u32 {sB}, {sB}, {sE_}")
        a(f"s_add_u32 {sB}, {sB}, {WS_ST}")
        a("v_lshlrev_b32 v3, 3, v1")
        self.publish("h", [("dwordx4", vr(HB, 4), "v2", sA, 0), ("dwordx2", "v[56:57]", "v3", sB, 0, "lo32")], sD)
        self.stamp("hpub")

    def w2load(self, f, i):
        a = self.a
        hm = (W2H0 if f == 0 else W2H1)[i]
        off = (f * 112 + i) * 1024
        a(f"s_add_u32 {sA}, s89, {off}")
        a(f"buffer_load_dwordx4 {vr(hm,4)}, v2, {srd(SRD_WS)}, {sA} offen sc1")

    def p4(self):
        a = self.a
        HB, ACC, BR = 4, 64, 108
        LDS_HF, LDS_ST2, LDS_CS1, LDS_B1 = 64 * 1024, 144 * 1024, 145 * 1024, 146 * 1024
        a(f"s_mul_i32 {sA}, {sM}, 224")
        a(f"s_mul_i32 {sB}, {sW}, 14")
        a(f"s_add_u32 {sA}, {sA}, {sB}")
        a(f"s_lshl_b32 {sA}, {sA}, 10")
        a(f"s_add_u32 s89, {sA}, {WS_W2F}")
        for i in range(NW2E): self.w2load(0, i)
        a(f"s_cmp_eq_u32 {sW}, 7")
        a("s_cbranch_scc1 L_p4_pre7")
        self.colsum(W1H[NW1PRE:], False)
        a("v_add_f32 v106, v106, v107")
        a("v_mov_b32 v107, v106")
        a("v_permlane32_swap_b32 v106, v107")
        a("v_add_f32 v106, v106, v107")
        a("v_and_b32 v107, 31, v1")
        a("v_lshlrev_b32 v107, 2, v107")
        a(f"s_lshl_b32 {sA}, {sW}, 7")
        a(f"s_add_u32 {sA}, {sA}, {LDS_CS1}")
        a(f"v_add_u32 v107, {sA}, v107")
        a("ds_write_b32 v107, v106")
        a("s_branch L_p4_pre")
        a.label("L_p4_pre7")
        a(f"s_mul_i32 {sA}, {sM}, 448")
        a("v_lshlrev_b32 v3, 3, v1")
        a("v_min_u32 v3, 440, v3")
        a(f"buffer_load_dwordx2 v[106:107], v3, {srd(SRD_B1)}, {sA} offen")
        a("s_waitcnt vmcnt(0)")
        a("v_lshlrev_b32 v108, 16, v106")
        a("v_and_b32 v109, 0xffff0000, v106")
        a("v_lshlrev_b32 v110, 16, v107")
        a("v_and_b32 v111, 0xffff0000, v107")
        for i in range(4): a(f"v_mul_f32 v{108+i}, 0.5, v{108+i}")
        a("v_lshlrev_b32 v3, 1, v3")
        a(f"v_add_u32 v3, {LDS_B1}, v3")
        a("ds_write_b128 v3, v[108:111]")
        a.label("L_p4_pre")
        a(f"s_lshl_b32 {sA}, {sC}, 8")
        a(f"s_add_u32 {sA}, {sA}, {WS_FLH}")
        a("v_lshlrev_b32 v3, 2, v1")
        self.poll_begin("h")
        a(f"buffer_load_dword v104, v3, {srd(SRD_WS)}, {sA} offen sc1")
        a("s_waitcnt vmcnt(0)")
        a("v_cmp_ne_u32 vcc, s3, v104")
        self.poll_end("h", sleep=1)
        self.stamp("hok")
        a(f"s_lshl_b32 s67, {sW}, 11")
        a(f"s_lshl_b32 {sB}, {sC}, 16")
        a(f"s_add_u32 {sB}, {sB}, s67")
        a(f"s_add_u32 s68, {sB}, {WS_H}")
        def hdma(i):
            for tt in range(2):
                d = i * 8 * 2048 + tt * 1024
                a(f"s_add_u32 {sD}, s67, {d + LDS_HF}")
                a(f"s_add_u32 {sE_}, s68, {d}")
                a(f"s_mov_b32 m0, {sD}")
                a(f"buffer_load_dwordx4 v2, {srd(SRD_WS)}, {sE_} offen sc1 lds")
        hdma(0); hdma(1)
        a(f"v_add_u32 v104, {LDS_HF}, v2")
        a("s_waitcnt vmcnt(2)")
        a("s_barrier")
        self.stamp("f1a")
        hdma(2); hdma(3)
        a(f"s_cmp_eq_u32 {sW}, 7")
        a("s_cbranch_scc1 L_p4_w7")
        a.lg = []
        NR = 3
        def hread(k):
            sl = k % NR
            a.ds(f"ds_read_b128 {vr(BR+8*sl,4)}, v104 offset:{k*2048}", f"h{k}")
            a.ds(f"ds_read_b128 {vr(BR+8*sl+4,4)}, v104 offset:{k*2048+1024}", f"h{k}")
        for k in range(NR - 1): hread(k)
        lst = [(0, i) for i in range(NW2E, 14)] + [(1, i) for i in range(14)]
        sched = {}
        for n, (f, i) in enumerate(lst):
            st = (n * 30) // len(lst) + 1
            if f == 1: st = max(st, i)
            sched.setdefault(st, []).append((f, i))
        issued = 0
        for k in range(32):
            if k == 8 - (NR - 1):
                a(f"s_waitcnt vmcnt({4 + issued})")
                a("s_barrier")
            if k == 16 - (NR - 1):
                a(f"s_waitcnt vmcnt({issued})")
                a("s_barrier")
                self.stamp("f1b")
            if k + NR - 1 < 32: hread(k + NR - 1)
            a.wait_lg(f"h{k}")
            sl = k % NR
            for tt in range(2):
                srcC = "0" if k == 0 else vr(ACC + 16 * tt, 16)
                a(f"v_mfma_f32_32x32x16_bf16 {vr(ACC+16*tt,16)}, {vr(W1H[k],4)}, {vr(BR+8*sl+4*tt,4)}, {srcC}")
            for (f, i) in (sched.get(k, []) if not self.opt.get("now2") else []):
                self.w2load(f, i)
                issued += 1
        self.stamp("f1c")
        a("s_barrier")
        a.lg = []
        CS, BF = 108, 208
        a("v_and_b32 v3, 31, v1")
        a("v_lshlrev_b32 v3, 3, v3")
        a(f"v_add_u32 v3, {LDS_ST2}, v3")
        a("ds_read_b64 v[104:105], v3")
        a("ds_read_b64 v[106:107], v3 offset:256")
        a("v_lshrrev_b32 v3, 5, v1")
        a("v_lshlrev_b32 v3, 4, v3")
        a(f"s_lshl_b32 {sA}, {sW}, 7")
        a(f"s_add_u32 {sA}, {sA}, {LDS_CS1}")
        a(f"v_add_u32 v3, {sA}, v3")
        for q in range(4):
            a(f"ds_read_b128 {vr(CS+4*q,4)}, v3 offset:{32*q}")
        for q in range(4):
            a(f"ds_read_b128 {vr(BF+4*q,4)}, v3 offset:{1024 + 32*q}")
        a("s_waitcnt lgkmcnt(0)")
        self.stamp("ffn1")
        HP = 236
        for tt in range(2):
            mu, rs = 104 + 2 * tt, 105 + 2 * tt
            A = ACC + 16 * tt
            for r in range(16): a(f"v_fma_f32 v{A+r}, -v{mu}, v{CS+r}, v{A+r}")
            for r in range(16): a(f"v_fma_f32 v{A+r}, v{A+r}, v{rs}, v{BF+r}")
            for r in range(16): a(f"v_add_f32 v{A+r}, v{A+r}, |v{A+r}|")
            for r in range(16): a(f"v_mul_f32 v{A+r}, v{A+r}, v{A+r}")
            for i in range(8): a(f"v_cvt_pk_bf16_f32 v{HP+8*tt+i}, v{A+2*i}, v{A+2*i+1}")
        a(f"s_mul_i32 {sA}, {sM}, 7")
        a(f"s_add_u32 {sA}, {sA}, {sW}")
        a(f"s_lshl_b32 {sB}, {sA}, 12")
        a(f"s_mul_i32 {sD}, {sC}, {224*1024}")
        a(f"s_add_u32 {sB}, {sB}, {sD}")
        a(f"s_add_u32 {sB}, {sB}, {WS_HID}")
        a(f"s_lshl_b32 {sD}, {sA}, 2")
        a(f"s_lshl_b32 {sE_}, {sC}, 8")
        a(f"s_add_u32 {sD}, {sD}, {sE_}")
        a(f"s_add_u32 {sD}, {sD}, {WS_FLHID}")
        st = []
        for u in range(2):
            for tt in range(2):
                st.append(("dwordx4", vr(HP + 8 * tt + 4 * u, 4), "v2", sB, u * 2048 + tt * 1024))
        self.publish("hid", st, sD)
        if self.opt.get("wbl2"):
            a(f"s_cmp_eq_u32 {sW}, 0")
            a("s_cbranch_scc0 L_nowb")
            a(f"s_cmp_lt_u32 {sID}, {self.opt['wbl2']}")
            a("s_cbranch_scc0 L_nowb")
            a("buffer_wbl2 sc1")
            a.label("L_nowb")
        a("s_branch L_p4_done")
        a.label("L_p4_w7")
        SL = 64
        a("v_lshlrev_b32 v3, 4, v1")
        a(f"s_lshl_b32 {sA}, {sC}, 14")
        a(f"s_add_u32 {sA}, {sA}, {WS_ST}")
        for q in range(16):
            a(f"buffer_load_dwordx4 {vr(SL+4*q,4)}, v3, {srd(SRD_WS)}, {sA} offen offset:{(q%4)*1024} sc1")
            if q % 4 == 3 and q < 15: a(f"s_add_u32 {sA}, {sA}, 4096")
        a("s_waitcnt vmcnt(20)")
        a("s_barrier")
        a("s_waitcnt vmcnt(16)")
        a("s_barrier")
        for i in range(NW2E, 14): self.w2load(0, i)
        a(f"s_waitcnt vmcnt({14 - NW2E})")
        for tt in range(2):
            B = SL + 32 * tt
            for q in range(1, 8):
                for c in range(4): a(f"v_add_f32 v{B+c}, v{B+c}, v{B+4*q+c}")
        R = [SL + c for c in range(4)] + [SL + 32 + c for c in range(4)]
        T = [SL + 8 + c for c in range(8)]
        for sw in ("16", "32"):
            for r, t in zip(R, T): a(f"v_mov_b32 v{t}, v{r}")
            for r, t in zip(R, T): a(f"v_permlane{sw}_swap_b32 v{r}, v{t}")
            for r, t in zip(R, T): a(f"v_add_f32 v{r}, v{r}, v{t}")
        for tt in range(2):
            for u in range(2):
                s_, q_ = SL + 32 * tt + 2 * u, SL + 32 * tt + 2 * u + 1
                a(f"v_mul_f32 v{s_}, 0x{f32bits(1/512):x}, v{s_}")
                a(f"v_mul_f32 v{q_}, 0x{f32bits(1/512):x}, v{q_}")
                a(f"v_fma_f32 v{q_}, -v{s_}, v{s_}, v{q_}")
                a(f"v_max_f32 v{q_}, 0, v{q_}")
                a(f"v_add_f32 v{q_}, 0x{f32bits(1e-5):x}, v{q_}")
                a(f"v_rsq_f32 v{q_}, v{q_}")
                a(f"v_mul_f32 v{q_}, 0.5, v{q_}")
        a("v_and_b32 v3, 15, v1")
        a("v_lshlrev_b32 v3, 4, v3")
        a(f"v_add_u32 v3, {LDS_ST2}, v3")
        a("s_mov_b64 exec, 0xffff")
        a(f"ds_write_b128 v3, {vr(SL,4)}")
        a(f"ds_write_b128 v3, {vr(SL+32,4)} offset:256")
        a("s_mov_b64 exec, -1")
        a("s_waitcnt lgkmcnt(0)")
        a("s_barrier")
        if self.prof and "ffn1" not in self.skip:
            self.nstamp = self.stamp_names.index("ffn1")
            nm = list(self.stamp_names)
            self.stamp("ffn1")
            self.stamp_names = nm
            self.nstamp = len(nm)
        a.label("L_p4_done")

    def p5(self):
        a = self.a
        HB, B2R = 4, 148
        ACCS = [[64, 208], [80, 224]]
        BQ = [40, 44, 48, 52, 96, 100, 108, 112, 116, 120, 124, 128, 240, 244]
        a(f"s_lshl_b32 {sA}, {sM}, 7")
        a(f"s_lshl_b32 {sB}, {sFT}, 6")
        a(f"s_add_u32 {sA}, {sA}, {sB}")
        a(f"s_lshl_b32 {sB}, {sKH}, 5")
        a(f"s_add_u32 s89, {sA}, {sB}")
        a("v_lshrrev_b32 v3, 5, v1")
        a("v_lshlrev_b32 v3, 3, v3")
        a(f"buffer_load_dwordx2 {vr(B2R,2)}, v3, {srd(SRD_B2)}, s89 offen")
        a(f"buffer_load_dwordx2 {vr(B2R+2,2)}, v3, {srd(SRD_B2)}, s89 offen offset:16")
        a(f"s_mul_i32 {sA}, {sW}, 28")
        a(f"s_lshl_b32 {sB}, {sC}, 8")
        a(f"s_add_u32 {sA}, {sA}, {sB}")
        a(f"s_add_u32 {sA}, {sA}, {WS_FLHID}")
        a("v_min_u32 v3, 6, v1")
        a("v_lshlrev_b32 v3, 2, v3")
        self.poll_begin("hid")
        a(f"buffer_load_dword v104, v3, {srd(SRD_WS)}, {sA} offen sc1")
        a("s_waitcnt vmcnt(0)")
        a("v_cmp_ne_u32 vcc, s3, v104")
        self.poll_end("hid", sleep=1)
        self.stamp("hidok")
        a(f"s_mul_i32 {sA}, {sW}, {14*2048}")
        a(f"s_mul_i32 {sD}, {sC}, {224*1024}")
        a(f"s_add_u32 {sA}, {sA}, {sD}")
        a(f"s_add_u32 s67, {sA}, {WS_HID}")
        def bload(tt, i):
            a(f"s_add_u32 {sA}, s67, {i*2048 + tt*1024}")
            a(f"buffer_load_dwordx4 {vr(BQ[i],4)}, v2, {srd(SRD_WS)}, {sA} offen sc1")
        for i in range(14): bload(0, i)
        a(f"s_lshl_b32 {sA}, {sW}, 11")
        a(f"v_add_u32 v104, {sA}, v2")
        a("v_add_u32 v105, 65536, v104")
        def wr_piece(tt, f, half):
            p = 4 * f + 2 * tt + half
            A = ACCS[tt][f] + 8 * half
            base = "v104" if p < 4 else "v105"
            off = (p % 4) * 16384
            a(f"ds_write_b128 {base}, {vr(A,4)} offset:{off}")
            a(f"ds_write_b128 {base}, {vr(A+4,4)} offset:{off+1024}")
        issued = 14
        done = 0
        for tt in range(2):
            for i in range(14):
                n = tt * 14 + i
                a(f"s_waitcnt vmcnt({issued - n - 1})")
                for f in range(2):
                    hm = (W2H0 if f == 0 else W2H1)[i]
                    srcC = "0" if i == 0 else vr(ACCS[tt][f], 16)
                    a(f"v_mfma_f32_32x32x16_bf16 {vr(ACCS[tt][f],16)}, {vr(hm,4)}, {vr(BQ[i],4)}, {srcC}")
                if tt == 0:
                    bload(1, i); issued += 1
                if tt == 1 and i in (2, 4, 6, 8):
                    j = (i - 2) // 2
                    wr_piece(0, j >> 1, j & 1)
        self.stamp("ffn2")
        for f in range(2):
            for half in range(2): wr_piece(1, f, half)
        for i in range(4):
            a(f"v_lshlrev_b32 v{16+2*i}, 16, v{HB+i}")
            a(f"v_and_b32 v{17+2*i}, 0xffff0000, v{HB+i}")
            a(f"v_lshlrev_b32 v{24+2*i}, 16, v{B2R+i}")
            a(f"v_and_b32 v{25+2*i}, 0xffff0000, v{B2R+i}")
        for i in range(8):
            a(f"v_add_f32 v{16+i}, v{16+i}, v{24+i}")
        a("v_and_b32 v3, 31, v1")
        a("v_lshlrev_b32 v3, 10, v3")
        a("v_lshrrev_b32 v12, 5, v1")
        a("v_lshl_or_b32 v3, v12, 4, v3")
        a(f"s_lshl_b32 {sB}, {sW}, 14")
        a(f"v_add_u32 v106, {sB}, v2")
        a(f"s_lshl_b32 {sA}, {sTT}, 5")
        a(f"s_add_u32 {sA}, {sA}, {sT0}")
        a(f"s_lshl_b32 {sA}, {sA}, 10")
        a(f"s_add_u32 {sA}, {sA}, s89")
        a("s_waitcnt lgkmcnt(0)")
        a("s_barrier")
        RD = 152
        a.lg = []
        for q in range(8):
            a.ds(f"ds_read_b128 {vr(RD+8*q,4)}, v106 offset:{q*2048}", f"q{q}")
            a.ds(f"ds_read_b128 {vr(RD+8*q+4,4)}, v106 offset:{q*2048+1024}", f"q{q}")
        for q in range(8):
            a.wait_lg(f"q{q}")
            for i in range(8):
                a(f"v_add_f32 v{16+i}, v{16+i}, v{RD+8*q+i}")
        for i in range(4):
            a(f"v_cvt_pk_bf16_f32 v{88+i}, v{16+2*i}, v{17+2*i}")
        a("v_permlane32_swap_b32 v88, v90")
        a("v_permlane32_swap_b32 v89, v91")
        om = {0: "", 1: " sc1", 2: " nt", 3: " sc0 sc1"}[self.opt.get("outmod", 0)]
        a(f"buffer_store_dwordx4 v[88:91], v3, {srd(SRD_OUT)}, {sA} offen{om}")
        self.stamp("end")

    def kv_flag(self):
        a = self.a
        a(f"s_add_u32 {sD}, {sTag}, 1")
        a(f"s_lshl_b32 {sA}, {sG}, 4")
        a(f"s_add_u32 {sA}, {sA}, {WS_FLKV}")
        a(f"v_mov_b32 v8, {sD}")
        a("v_mov_b32 v9, s3")
        a("v_mov_b32 v10, 0")
        a("s_mov_b64 exec, 1")
        a(f"s_cmp_eq_u32 {sW}, 1")
        a("s_cbranch_scc1 L_flagv")
        a(f"buffer_store_dwordx2 v[8:9], v10, {srd(SRD_WS)}, {sA} offen sc1")
        a("s_branch L_flagd")
        a.label("L_flagv")
        a(f"buffer_store_dword v8, v10, {srd(SRD_WS)}, {sA} offen offset:8 sc1")
        a.label("L_flagd")
        a("s_mov_b64 exec, -1")

    def wave_reduce(self, regs, op, tmps):
        a = self.a
        for n in (8, 4, 2, 1):
            for r in regs:
                a(f"v_{op}_f32_dpp {r}, {r}, {r} row_ror:{n} row_mask:0xf bank_mask:0xf")
        for sw in ("16", "32"):
            for r, t in zip(regs, tmps):
                a(f"v_mov_b32 {t}, {r}")
            for r, t in zip(regs, tmps):
                a(f"v_permlane{sw}_swap_b32 {r}, {t}")
            for r, t in zip(regs, tmps):
                a(f"v_{op}_f32 {r}, {r}, {t}")

    def finish(self):
        a = self.a
        a.label("L_end")
        a("s_endpgm")

    def dump_regs(self, base, regs, off):
        a = self.a
        n = len(regs)
        a(f"s_lshl_b32 {sA}, {sID}, 3")
        a(f"s_add_u32 {sA}, {sA}, {sW}")
        a(f"s_mul_i32 {sA}, {sA}, {n*256}")
        a(f"s_add_u32 {sA}, {sA}, {off}")
        a("v_lshlrev_b32 v3, 2, v1")
        for i, r in enumerate(regs):
            a(f"buffer_store_dword v{r}, v3, {srd(SRD_WS)}, {sA} offen offset:{i*256}")
        a("s_waitcnt vmcnt(0)")

    def build(self):
        self.prologue()
        self.p1()
        if self.stop == "p1":
            self.dump_regs(0, list(range(32, 48)), WS_DBG)
            self.a("s_waitcnt vmcnt(0)")
            self.finish(); return self.text()
        self.p2()
        if self.stop in ("q", "attn"):
            self.a("s_waitcnt vmcnt(0)")
            self.dump_stamps()
            self.finish(); return self.text()
        for nm, fn in (("h", self.p3), ("hid", self.p4), ("out", self.p5)):
            fn()
            if self.stop == nm: break
        if self.opt.get("dirtyend"):
            a = self.a
            n = self.opt["dirtyend"]
            a(f"s_lshl_b32 {sA}, {sID}, 3")
            a(f"s_add_u32 {sA}, {sA}, {sW}")
            a(f"s_mul_i32 {sA}, {sA}, {n*1024}")
            a(f"s_add_u32 {sA}, {sA}, {WS_DBG}")
            for i in range(n):
                a(f"buffer_store_dwordx4 v[4:7], v2, {srd(SRD_WS)}, {sA} offen")
                a(f"s_add_u32 {sA}, {sA}, 1024")
        self.a("s_waitcnt vmcnt(0)")
        self.dump_stamps()
        self.finish()
        return self.text()

    def text(self):
        lines, n = hazard_pass_all(self.a.lines)
        head = f"""; @launch grid=(256,1,1) block=(512,1,1) lds=163840
.amdgcn_target "amdgcn-amd-amdhsa--gfx950"
.text
.globl {KNAME}
.p2align 8
.type {KNAME},@function
{KNAME}:
"""
        tail = f""".section .rodata,"a"
.p2align 6
.amdhsa_kernel {KNAME}
  .amdhsa_next_free_vgpr 256
  .amdhsa_next_free_sgpr 102
  .amdhsa_accum_offset 256
  .amdhsa_group_segment_fixed_size 0
  .amdhsa_kernarg_size 104
  .amdhsa_user_sgpr_count 2
  .amdhsa_user_sgpr_kernarg_segment_ptr 1
  .amdhsa_system_sgpr_workgroup_id_x 1
.end_amdhsa_kernel
"""
        return head + "\n".join(lines) + "\n" + tail

if __name__ == "__main__":
    import argparse
    ap = argparse.ArgumentParser()
    ap.add_argument("--stop", default=None)
    ap.add_argument("-o", default="k.s")
    ap.add_argument("--prof", action="store_true")
    ap.add_argument("--opt", nargs="*", default=[])
    ap.add_argument("--skip", nargs="*", default=["args", "b1", "f1a", "f1b", "f1c"])
    args = ap.parse_args()
    opt = dict((kv.split("=")[0], int(kv.split("=")[1])) for kv in args.opt)
    g = Gen(stop=args.stop, prof=args.prof, opt=opt, skip=args.skip)
    open(args.o, "w").write(g.build())
    print("wrote", args.o, "stamps:", getattr(g, "stamp_names", None))
```

```python
import sys
sys.path.insert(0, "work")
from asmlib import Asm, hazard_pass_all

NAME = "sequential_preLN__grouped_kv_mqa__dense_activation_squared_relu__prompt"
KNAME = NAME + "_kernel"

WS_EPOCH = 0x0
WS_FLKV  = 0x1000
WS_FLWT  = 0x3000
WS_FLO   = 0x4000
WS_FLH   = 0x6000
WS_FLHID = 0x8000
WS_FLWT2 = 0xA000
WS_KV    = 0x10000
WS_ST    = 0x60000
WS_O     = 0x100000
WS_H     = 0x300000
WS_HID   = 0x500000
WS_WOF   = 0xC00000
WS_W1F   = 0xC80000
WS_W2F   = 0xE40000
WS_DBG   = 0x1000000
WS_PROF  = 0x1800000
WS_SIZE  = 0x2000000

SRD_X, SRD_WQ, SRD_WK, SRD_WV = 8, 12, 16, 20
SRD_WO, SRD_W1, SRD_W2, SRD_B1 = 24, 28, 32, 36
SRD_B2, SRD_OUT, SRD_WS, SRD_T = 40, 44, 48, 52
def srd(b): return f"s[{b}:{b+3}]"
sW, sM, sC, sT0, sTag, sFast = "s56", "s57", "s58", "s59", "s60", "s61"
sFT, sTT, sKH, sXCC = "s62", "s63", "s90", "s91"
sID = "s2"
sA, sB, sD, sE_, sF, sG = "s92", "s93", "s94", "s95", "s96", "s97"
sCnt, sPh = "s98", "s99"
sW1B = "s65"
sWOB = "s66"
sPF = "s69"
NW1PRE = 26
W1H = [152 + 4 * k for k in range(26)] + [40, 44, 48, 52, 96, 100]
WOH = [8, 12, 16, 20, 60] + [108 + 4 * k for k in range(11)]
NW2E = 7
W2H0 = [8, 12, 16, 20, 24, 28, 32, 36, 56, 60, 132, 136, 140, 144]
W2H1 = W1H[:14]
sX64 = "s[4:5]"; sY64 = "s[6:7]"

LOG2E = 1.4426950408889634
def f32bits(x):
    import struct
    return struct.unpack("<I", struct.pack("<f", x))[0]
def vr(b, n): return f"v[{b}:{b+n-1}]"

class Gen:
    def __init__(self, stop=None, prof=False, opt=None, skip=()):
        self.skip = set(skip)
        self.a = Asm()
        self.stop = stop
        self.prof = prof
        self.opt = opt or {}
        self.nstamp = 0

    def stamp(self, name):
        if not self.prof: return
        if name in self.skip:
            self.skipped_last = True
            return
        self.skipped_last = False
        i = self.nstamp; self.nstamp += 1
        assert i < 16
        self.stamp_names = getattr(self, "stamp_names", []) + [name]
        a = self.a
        a(f"s_memtime s[4:5]")
        a("s_waitcnt lgkmcnt(0)")
        a("s_sub_u32 s4, s4, s100")
        a(f"v_writelane_b32 v0, s4, {i}")

    def dump_stamps(self):
        if not self.prof: return
        a = self.a
        a("s_memrealtime s[4:5]")
        a("s_waitcnt lgkmcnt(0)")
        a("s_sub_u32 s4, s4, s101")
        a("v_writelane_b32 v0, s4, 15")
        a(f"s_lshl_b32 {sA}, {sID}, 3")
        a(f"s_add_u32 {sA}, {sA}, {sW}")
        a(f"s_lshl_b32 {sA}, {sA}, 6")
        a(f"s_add_u32 {sA}, {sA}, {WS_PROF}")
        a("v_lshlrev_b32 v3, 2, v1")
        a("s_mov_b64 exec, 0xffff")
        a(f"buffer_store_dword v0, v3, {srd(SRD_WS)}, {sA} offen")
        a(f"s_lshl_b32 {sA}, {sID}, 3")
        a(f"s_add_u32 {sA}, {sA}, {sW}")
        a(f"s_cmp_lg_u32 {sA}, {self.opt.get('profw', 0)}")
        a("s_cbranch_scc1 L_nodbgst")
        a("s_load_dwordx2 s[52:53], s[0:1], 88")
        a("s_waitcnt lgkmcnt(0)")
        a("s_mov_b32 s54, 256")
        a("s_mov_b32 s55, 0x20000")
        a("buffer_store_dword v0, v3, s[52:55], 0 offen")
        a.label("L_nodbgst")
        a("s_mov_b64 exec, -1")
        a("s_waitcnt vmcnt(0)")

    def prologue(self):
        a = self.a
        a(f"s_cmp_ge_u32 {sID}, 256")
        a("s_cbranch_scc1 L_end")
        if self.prof:
            a("s_memtime s[100:101]")
            a("s_memrealtime s[6:7]")
        a("s_load_dwordx16 s[64:79], s[0:1], 0")
        a("s_load_dwordx8 s[80:87], s[0:1], 64")
        a("s_load_dwordx2 s[88:89], s[0:1], 96")
        a(f"s_and_b32 {sA}, {sID}, 7")
        a(f"s_lshr_b32 {sB}, {sID}, 6")
        a(f"s_lshl_b32 {sB}, {sB}, 3")
        a(f"s_add_u32 {sC}, {sA}, {sB}")
        a(f"s_lshr_b32 {sM}, {sID}, 3")
        a(f"s_and_b32 {sM}, {sM}, 7")
        a(f"s_lshl_b32 {sT0}, {sC}, 6")
        a(f"s_getreg_b32 {sXCC}, hwreg(HW_REG_XCC_ID)")
        a(f"s_and_b32 {sXCC}, {sXCC}, 7")
        a("v_lshrrev_b32 v3, 6, v0")
        a("v_and_b32 v1, 63, v0")
        a(f"v_readfirstlane_b32 {sW}, v3")
        a("v_lshlrev_b32 v2, 4, v1")
        a(f"s_lshr_b32 {sFT}, {sW}, 2")
        a(f"s_lshr_b32 {sTT}, {sW}, 1")
        a(f"s_and_b32 {sTT}, {sTT}, 1")
        a(f"s_and_b32 {sKH}, {sW}, 1")
        a("s_waitcnt lgkmcnt(0)")
        if self.prof:
            a("v_mov_b32 v0, 0")
            a("s_mov_b32 s101, s6")
        self.stamp("args")
        def mk(b, lo, size):
            a(f"s_mov_b32 s{b}, s{lo}")
            a(f"s_mov_b32 s{b+1}, s{lo+1}")
            a(f"s_mov_b32 s{b+2}, 0x{size:x}")
            a(f"s_mov_b32 s{b+3}, 0x20000")
        mk(SRD_X, 64, 0x200000)
        mk(SRD_WS, 88, WS_SIZE)
        a(f"s_load_dword {sTag}, s[88:89], {WS_EPOCH}")
        mk(SRD_WK, 68, 0x4000)
        mk(SRD_WV, 70, 0x4000)
        mk(SRD_WQ, 66, 0x80000)
        self.mk = mk

    def rest_srds(self):
        mk = self.mk
        mk(SRD_WO, 72, 0x80000)
        mk(SRD_W1, 76, 0x1C0000)
        mk(SRD_B1, 78, 3584)
        mk(SRD_W2, 80, 0x1C0000)
        mk(SRD_B2, 82, 1024)
        mk(SRD_OUT, 84, 0x200000)

    def dma(self, voff, srdb, soff, m0, tag, extra=""):
        a = self.a
        a(f"s_mov_b32 m0, {m0}")
        a.vmem(f"buffer_load_dwordx4 {voff}, {srd(srdb)}, {soff} offen {extra} lds", tag)

    def p1(self):
        a = self.a
        X = self.opt
        ROW = 4
        vXa, vKVo, vWAo, vXt = "v16", "v18", "v19", "v17"
        LDS_WK = 64 * 1024
        LDS_WV = 80 * 1024
        LDS_WA = 96 * 1024
        sG1 = "s67"
        a(f"s_lshl_b32 {sA}, {sM}, 3")
        a(f"s_add_u32 {sA}, {sA}, {sT0}")
        a(f"s_add_u32 {sB}, {sA}, {sW}")
        a(f"s_lshl_b32 {sB}, {sB}, 10")
        a(f"buffer_load_dwordx4 {vr(ROW,4)}, v2, {srd(SRD_X)}, {sB} offen")
        a("v_lshrrev_b32 v8, 3, v1")
        a("v_and_b32 v9, 7, v1")
        a("v_lshrrev_b32 v10, 1, v8")
        a("v_xor_b32 v10, v10, v9")
        a(f"s_and_b32 {sB}, {sM}, 1")
        a(f"s_lshl_b32 {sB}, {sB}, 2")
        a(f"v_xor_b32 v10, {sB}, v10")
        a("v_lshlrev_b32 v10, 4, v10")
        a(f"v_lshl_add_u32 {vXa}, v8, 10, v10")
        def xa_dma(gs, cs, voff):
            a(f"s_lshl_b32 {sD}, {gs}, 13")
            a(f"s_lshl_b32 {sE_}, {cs}, 7")
            a(f"s_add_u32 {sD}, {sD}, {sE_}")
            a(f"s_add_u32 {sD}, {sD}, s68")
            a(f"s_lshl_b32 {sE_}, {cs}, 13")
            a(f"s_lshl_b32 {sF}, {gs}, 10")
            a(f"s_add_u32 m0, {sE_}, {sF}")
            a(f"buffer_load_dwordx4 {voff}, {srd(SRD_X)}, {sD} offen lds")
        self.xa_dma = xa_dma
        a(f"s_lshl_b32 s68, {sT0}, 10")
        xa_dma(sM, sW, vXa)
        a("v_lshrrev_b32 v8, 1, v1")
        a("v_and_b32 v9, 0x13, v8")
        a("v_bfe_u32 v10, v8, 2, 1")
        a("v_lshl_or_b32 v9, v10, 3, v9")
        a("v_bfe_u32 v10, v8, 3, 1")
        a("v_lshl_or_b32 v9, v10, 2, v9")
        a("v_lshlrev_b32 v9, 5, v9")
        a("v_and_b32 v10, 1, v1")
        a(f"v_lshl_or_b32 {vKVo}, v10, 4, v9")
        a(f"s_lshl_b32 {sD}, {sW}, 11")
        for k in range(2):
            a(f"s_add_u32 m0, {sD}, {LDS_WK}")
            a(f"buffer_load_dwordx4 {vKVo}, {srd(SRD_WK)}, {sD} offen lds")
            a(f"s_add_u32 m0, {sD}, {LDS_WV}")
            a(f"buffer_load_dwordx4 {vKVo}, {srd(SRD_WV)}, {sD} offen lds")
            if k == 0: a(f"s_add_u32 {sD}, {sD}, 1024")
        a("v_lshrrev_b32 v8, 3, v1")
        a("v_and_b32 v9, 7, v1")
        a("v_bfe_u32 v10, v1, 4, 1")
        a("v_lshlrev_b32 v10, 2, v10")
        a("v_xor_b32 v9, v9, v10")
        a("v_lshlrev_b32 v9, 4, v9")
        a(f"v_lshl_add_u32 {vWAo}, v8, 10, v9")
        a(f"s_add_u32 {sG1}, {sM}, 1")
        a(f"s_and_b32 {sG1}, {sG1}, 7")
        NBULK = 20
        def bulk():
            a(f"s_sub_u32 {sA}, {sW}, 2")
            a(f"s_add_u32 {sB}, {sA}, 2")
            for i in range(9):
                a(f"s_lshr_b32 s4, {sB}, 3")
                a(f"s_add_u32 s4, s4, 1")
                a(f"s_and_b32 s5, s4, 1")
                a(f"s_lshl_b32 s5, s5, 6")
                a(f"v_xor_b32 {vXt}, s5, {vXa}")
                a(f"s_add_u32 s4, s4, {sM}")
                a(f"s_and_b32 s4, s4, 7")
                a(f"s_and_b32 s5, {sB}, 7")
                xa_dma("s4", "s5", vXt)
                if i < 8: a(f"s_add_u32 {sB}, {sB}, 6")
            a(f"s_lshl_b32 {sD}, {sA}, 13")
            a(f"s_lshl_b32 {sE_}, {sM}, 7")
            a(f"s_add_u32 {sD}, {sD}, {sE_}")
            a(f"s_lshl_b32 {sE_}, {sA}, 10")
            a(f"s_add_u32 {sE_}, {sE_}, {LDS_WA}")
            for i in range(11):
                if i == 10:
                    a(f"s_cmp_ge_u32 {sA}, 4")
                    a("s_cbranch_scc1 L_blk_done")
                a(f"s_mov_b32 m0, {sE_}")
                a(f"buffer_load_dwordx4 {vWAo}, {srd(SRD_WQ)}, {sD} offen lds")
                if i < 10:
                    a(f"s_add_u32 {sD}, {sD}, {6*8192}")
                    a(f"s_add_u32 {sE_}, {sE_}, {6*1024}")
            a.label("L_blk_done")
        early = X.get("bulk", 0) == 1
        if early:
            a("s_barrier")
            a(f"s_cmp_lt_u32 {sW}, 2")
            a("s_cbranch_scc1 L_nobulk0")
            bulk()
            a.label("L_nobulk0")
        self.rest_srds()
        XF, WF = 64, 128
        a(f"s_cmp_ge_u32 {sW}, 2")
        a("s_cbranch_scc1 L_no_ones")
        for i in range(64):
            a(f"v_mov_b32 v{XF+i}, 0x3f803f80" if i == 0 else f"v_mov_b32 v{XF+i}, v{XF}")
        a.label("L_no_ones")
        if early:
            a(f"s_cmp_lt_u32 {sW}, 2")
            a("s_cbranch_scc1 L_rw0")
            a("s_waitcnt vmcnt(24)")
            a("s_branch L_rw1")
            a.label("L_rw0")
            a("s_waitcnt vmcnt(5)")
            a.label("L_rw1")
        else:
            a("s_waitcnt vmcnt(5)")
        a("s_mov_b32 s3, 0x3f803f80")
        a(f"v_dot2_f32_bf16 v8, v{ROW}, s3, 0")
        a(f"v_dot2_f32_bf16 v9, v{ROW}, v{ROW}, 0")
        for i in range(1, 4):
            a(f"v_dot2_f32_bf16 v8, v{ROW+i}, s3, v8")
            a(f"v_dot2_f32_bf16 v9, v{ROW+i}, v{ROW+i}, v9")
        self.wave_reduce(["v8", "v9"], "add", ["v10", "v11"])
        a(f"v_mul_f32 v8, 0x{f32bits(1/512):x}, v8")
        a(f"v_mul_f32 v9, 0x{f32bits(1/512):x}, v9")
        a("v_fma_f32 v9, -v8, v8, v9")
        a("v_max_f32 v9, 0, v9")
        a(f"v_add_f32 v9, 0x{f32bits(1e-5):x}, v9")
        a("v_rsq_f32 v9, v9")
        a(f"s_lshl_b32 {sA}, {sW}, 3")
        a(f"s_lshl_b32 {sB}, {sG1}, 10")
        a(f"s_add_u32 {sA}, {sA}, {sB}")
        a(f"v_lshlrev_b32 v10, 13, v1")
        a(f"v_add_u32 v10, {sA}, v10")
        a("s_mov_b64 exec, 3")
        a("ds_write_b64 v10, v[8:9]")
        a("s_mov_b64 exec, -1")
        if early:
            a(f"s_cmp_lt_u32 {sW}, 2")
            a("s_cbranch_scc1 L_b1a")
            a("s_waitcnt vmcnt(19) lgkmcnt(0)")
            a("s_branch L_b1b")
            a.label("L_b1a")
            a("s_waitcnt vmcnt(0) lgkmcnt(0)")
            a.label("L_b1b")
        else:
            a("s_waitcnt vmcnt(0) lgkmcnt(0)")
        a("s_barrier")
        self.stamp("b1")
        a(f"s_cmp_lt_u32 {sW}, 2")
        a("s_cbranch_scc1 L_kv_go")
        if not early: bulk()
        a("s_branch L_kv_done")
        a.label("L_kv_go")
        a("v_and_b32 v8, 7, v1")
        a(f"s_lshl_b32 {sA}, {sM}, 3")
        a(f"v_add_u32 v8, {sA}, v8")
        a("v_bfe_u32 v9, v8, 1, 3")
        a("v_lshrrev_b32 v10, 4, v1")
        a("v_xor_b32 v9, v9, v10")
        a("v_lshlrev_b32 v9, 4, v9")
        a("v_lshl_add_u32 v20, v8, 7, v9")
        a("v_xor_b32 v21, 64, v20")
        a("v_bfe_u32 v8, v1, 4, 1")
        a("v_bfe_u32 v9, v1, 2, 2")
        a("v_lshl_add_u32 v8, v8, 2, v9")
        a("v_lshlrev_b32 v8, 5, v8")
        a("v_lshrrev_b32 v9, 5, v1")
        a("v_lshl_add_u32 v8, v9, 9, v8")
        a("v_and_b32 v9, 3, v1")
        a("v_lshl_add_u32 v8, v9, 3, v8")
        a(f"s_lshl_b32 {sA}, {sW}, 14")
        a(f"s_add_u32 {sA}, {sA}, {LDS_WK}")
        a(f"v_add_u32 v22, {sA}, v8")
        a("s_mov_b32 exec_lo, 0x00ff00ff")
        a("s_mov_b32 exec_hi, 0x00ff00ff")
        for s in range(16):
            a.ds(f"ds_read_b128 {vr(XF+4*s,4)}, {'v20' if s%2==0 else 'v21'} offset:{(s>>1)*8192}", f"x{s}")
        a("s_mov_b64 exec, -1")
        D = 24
        a(f"s_cmp_eq_u32 {sW}, 1")
        a("s_cbranch_scc1 L_vwave")
        saved_lg = list(a.lg)
        for wave in ("K", "V"):
            a.lg = list(saved_lg)
            if wave == "V": a.label("L_vwave")
            def wread(s):
                a.ds(f"ds_read_b64_tr_b16 {vr(WF+4*s,2)}, v22 offset:{s*1024}", f"w{s}")
                a.ds(f"ds_read_b64_tr_b16 {vr(WF+4*s+2,2)}, v22 offset:{s*1024+256}", f"w{s}")
            for s in range(4): wread(s)
            for s in range(16):
                a.wait_lg(f"w{s}")
                srcC = "0" if s == 0 else vr(D, 4)
                if wave == "K":
                    a(f"v_mfma_f32_16x16x32_bf16 {vr(D,4)}, {vr(WF+4*s,4)}, {vr(XF+4*s,4)}, {srcC}")
                else:
                    a(f"v_mfma_f32_16x16x32_bf16 {vr(D,4)}, {vr(XF+4*s,4)}, {vr(WF+4*s,4)}, {srcC}")
                if s + 4 < 16: wread(s + 4)
            a(f"s_lshl_b32 {sA}, {sC}, 3")
            a(f"s_add_u32 {sA}, {sA}, {sM}")
            a(f"s_lshl_b32 {sB}, {sA}, 10")
            a(f"s_add_u32 {sB}, {sB}, {WS_KV}")
            if wave == "K":
                a("v_and_b32 v8, 7, v1")
                a("v_lshlrev_b32 v8, 3, v8")
                a(f"s_lshl_b32 s4, {sG1}, 10")
                a(f"v_add_u32 v8, s4, v8")
                a.ds("ds_read_b64 v[10:11], v8", "st")
                for r in range(4):
                    a(f"v_mov_b32_dpp v{28+r}, v{D+r} row_ror:8 row_mask:0xf bank_mask:0xf")
                a.wait_lg("st")
                for r in range(4):
                    a(f"v_fma_f32 v{D+r}, -v10, v{28+r}, v{D+r}")
                for r in range(4):
                    a(f"v_mul_f32 v{D+r}, v11, v{D+r}")
                a(f"v_cvt_pk_bf16_f32 v32, v{D}, v{D+1}")
                a(f"v_cvt_pk_bf16_f32 v33, v{D+2}, v{D+3}")
                a("v_mov_b32 v34, v32")
                a("v_mov_b32 v35, v33")
                a("v_permlane32_swap_b32 v32, v34")
                a("v_permlane32_swap_b32 v33, v35")
                a("v_bfe_u32 v8, v1, 4, 1")
                a("v_and_b32 v9, 7, v1")
                a("v_lshlrev_b32 v9, 4, v9")
                a("v_lshl_add_u32 v8, v8, 7, v9")
                a("s_mov_b32 exec_lo, 0x00ff00ff")
                a("s_mov_b32 exec_hi, 0")
                a(f"buffer_store_dwordx4 v[32:35], v8, {srd(SRD_WS)}, {sB} offen sc1")
                a("s_mov_b64 exec, -1")
                a("v_dot2_f32_bf16 v12, v32, v32, 0")
                for i in (33, 34, 35):
                    a(f"v_dot2_f32_bf16 v12, v{i}, v{i}, v12")
                a("v_mov_b32 v13, v12")
                a("v_permlane16_swap_b32 v12, v13")
                a("v_add_f32 v12, v12, v13")
                a("v_and_b32 v13, 8, v1")
                a("v_cmp_eq_u32 vcc, 0, v13")
                a("v_cndmask_b32 v12, 0, v12, vcc")
                for n in (8, 4, 2, 1):
                    a(f"v_max_f32_dpp v12, v12, v12 row_ror:{n} row_mask:0xf bank_mask:0xf")
                a(f"v_readlane_b32 {sD}, v12, 0")
                a(f"s_add_u32 {sD}, {sD}, 8")
                a(f"s_and_b32 {sD}, {sD}, 0xfffffff8")
                a(f"s_or_b32 {sD}, {sD}, {sXCC}")
                a(f"s_mov_b32 s3, {sD}")
                a(f"s_mov_b32 {sG}, {sA}")
                a("s_branch L_kv_fin")
            else:
                a("v_bfe_u32 v8, v1, 4, 1")
                a("v_lshlrev_b32 v8, 5, v8")
                a(f"s_lshl_b32 s4, {sG1}, 10")
                a(f"s_add_u32 s4, s4, 8192")
                a(f"v_add_u32 v8, s4, v8")
                a.ds("ds_read_b128 v[12:15], v8", "st")
                a.ds("ds_read_b128 v[36:39], v8 offset:16", "st")
                a("v_and_b32 v9, 7, v1")
                a("v_lshlrev_b32 v9, 3, v9")
                a(f"v_add_u32 v40, s4, v9")
                a.ds("ds_read_b64 v[42:43], v40", "st")
                a(f"v_mov_b32 v28, v{D}")
                a(f"v_mov_b32 v29, v{D}")
                a("v_permlane32_swap_b32 v28, v29")
                a.wait_lg("st")
                st = [(12, 13), (14, 15), (36, 37), (38, 39)]
                for r in range(4):
                    a(f"v_fma_f32 v{D+r}, -v{st[r][0]}, v29, v{D+r}")
                for r in range(4):
                    a(f"v_mul_f32 v{D+r}, v{st[r][1]}, v{D+r}")
                a(f"v_cvt_pk_bf16_f32 v32, v{D}, v{D+1}")
                a(f"v_cvt_pk_bf16_f32 v33, v{D+2}, v{D+3}")
                a("v_mov_b32 v34, v32")
                a("v_mov_b32 v35, v33")
                a("v_permlane16_swap_b32 v32, v34")
                a("v_permlane16_swap_b32 v33, v35")
                a("v_add_u32 v8, 256, v2")
                a("s_mov_b64 exec, 0xffff")
                a(f"buffer_store_dwordx4 v[32:35], v8, {srd(SRD_WS)}, {sB} offen sc1")
                a("s_mov_b64 exec, 0xff")
                a("v_add_u32 v9, 512, v9")
                a(f"buffer_store_dwordx2 v[42:43], v9, {srd(SRD_WS)}, {sB} offen sc1")
                a("s_mov_b64 exec, -1")
                a(f"s_mov_b32 {sG}, {sA}")
        a.lg = []
        a.label("L_kv_fin")
        self.stamp("kvst")
        a(f"v_xor_b32 {vXt}, 64, {vXa}")
        xa_dma(sG1, sW, vXt)
        a("s_waitcnt vmcnt(1)")
        self.kv_flag()
        self.stamp("kvfl")
        a("s_waitcnt vmcnt(1)")
        a("s_branch L_b2")
        a.label("L_kv_done")
        a("s_waitcnt vmcnt(0)")
        a.label("L_b2")
        a("s_barrier")
        self.stamp("b2")
        a.vm = []
        AF, BF, ACC, CS = 64, 128, 32, 48
        vAe, vAo = "v20", "v21"
        vB = ["v22", "v23", "v24", "v25"]
        a("v_bfe_u32 v8, v1, 2, 2")
        a("v_lshrrev_b32 v9, 5, v1")
        a("v_lshl_add_u32 v9, v9, 3, v8")
        a("v_lshlrev_b32 v9, 7, v9")
        a("v_bfe_u32 v10, v1, 4, 1")
        a(f"v_xor_b32 v10, {sKH}, v10")
        a("v_lshlrev_b32 v10, 5, v10")
        a("v_and_b32 v11, 3, v1")
        a("v_lshl_add_u32 v10, v11, 3, v10")
        a(f"s_lshl_b32 {sA}, {sFT}, 6")
        a(f"v_add_u32 v10, {sA}, v10")
        a("v_bfe_u32 v11, v1, 3, 1")
        a("v_lshlrev_b32 v11, 6, v11")
        a("v_xor_b32 v10, v10, v11")
        a("v_add_u32 v9, v9, v10")
        a(f"s_lshl_b32 {sA}, {sKH}, 15")
        a(f"s_add_u32 {sA}, {sA}, {LDS_WA}")
        a(f"s_lshl_b32 {sB}, {sTT}, 11")
        a(f"s_add_u32 {sD}, {sA}, {sB}")
        a(f"v_add_u32 {vAe}, {sD}, v9")
        a(f"s_sub_u32 {sD}, {sA}, {sB}")
        a(f"v_add_u32 {vAo}, {sD}, v9")
        a("v_and_b32 v8, 31, v1")
        a("v_bfe_u32 v9, v1, 1, 3")
        a("v_lshrrev_b32 v10, 5, v1")
        a("v_xor_b32 v9, v9, v10")
        a("v_lshlrev_b32 v9, 4, v9")
        a("v_lshl_add_u32 v8, v8, 7, v9")
        a(f"s_lshl_b32 {sA}, {sKH}, 15")
        a(f"s_lshl_b32 {sB}, {sTT}, 12")
        a(f"s_add_u32 {sA}, {sA}, {sB}")
        a(f"v_add_u32 v8, {sA}, v8")
        a(f"s_lshl_b32 {sB}, {sTT}, 5")
        a(f"v_xor_b32 {vB[0]}, {sB}, v8")
        a(f"v_xor_b32 {vB[1]}, 32, {vB[0]}")
        a(f"v_xor_b32 {vB[2]}, 64, {vB[0]}")
        a(f"v_xor_b32 {vB[3]}, 96, {vB[0]}")
        a("s_mov_b32 s5, 0x3f803f80")
        NB = 5
        def qread(p):
            c, q = p >> 2, p & 3
            sl = p % NB
            va = vAe if q % 2 == 0 else vAo
            off = c * 8192 + q * 2048
            a.ds(f"ds_read_b64_tr_b16 {vr(AF+4*sl,2)}, {va} offset:{off}", f"q{p}")
            a.ds(f"ds_read_b64_tr_b16 {vr(AF+4*sl+2,2)}, {va} offset:{off+512}", f"q{p}")
            a.ds(f"ds_read_b128 {vr(BF+4*sl,4)}, {vB[q]} offset:{c*8192}", f"q{p}")
        PRE = 4
        self.stamp("q0")
        for p in range(PRE): qread(p)
        for p in range(16):
            sl = p % NB
            a.wait_lg(f"q{p}")
            srcC = "0" if p == 0 else vr(ACC, 16)
            a(f"v_mfma_f32_32x32x16_bf16 {vr(ACC,16)}, {vr(AF+4*sl,4)}, {vr(BF+4*sl,4)}, {srcC}")
            if p % 2 == 0:
                for i in range(4):
                    src2 = "0" if (p == 0 and i == 0) else f"v{CS}"
                    a(f"v_dot2_f32_bf16 v{CS}, v{AF+4*sl+i}, s5, {src2}")
            nx = p + PRE
            if nx < 16: qread(nx)
        self.stamp("q1")
        LDS_E = 64 * 1024
        LDS_CS = 80 * 1024
        a(f"s_lshl_b32 {sA}, {sW}, 11")
        a(f"s_add_u32 {sA}, {sA}, {LDS_E}")
        a(f"v_add_u32 v8, {sA}, v2")
        a(f"ds_write_b128 v8, {vr(ACC+8,4)}")
        a(f"ds_write_b128 v8, {vr(ACC+12,4)} offset:1024")
        a(f"v_mov_b32 v9, v{CS}")
        a(f"v_permlane32_swap_b32 v{CS}, v9")
        a(f"v_add_f32 v9, v{CS}, v9")
        a("v_and_b32 v10, 31, v1")
        a(f"s_lshl_b32 {sA}, {sKH}, 4")
        a(f"v_xor_b32 v10, {sA}, v10")
        a(f"s_lshl_b32 {sA}, {sKH}, 1")
        a(f"s_add_u32 {sA}, {sA}, {sTT}")
        a(f"s_lshl_b32 {sA}, {sA}, 1")
        a(f"s_add_u32 {sA}, {sA}, {sFT}")
        a(f"s_lshl_b32 {sA}, {sA}, 7")
        a(f"s_add_u32 {sA}, {sA}, {LDS_CS}")
        a("v_lshlrev_b32 v10, 2, v10")
        a(f"v_add_u32 v10, {sA}, v10")
        a("ds_write_b32 v10, v9")
        a("s_waitcnt lgkmcnt(0)")
        a("s_barrier")
        self.stamp("q2")
        a.lg = []
        a(f"s_xor_b32 {sA}, {sW}, 1")
        a(f"s_lshl_b32 {sA}, {sA}, 11")
        a(f"s_add_u32 {sA}, {sA}, {LDS_E}")
        a(f"v_add_u32 v8, {sA}, v2")
        a.ds(f"ds_read_b128 {vr(64,4)}, v8", "e")
        a.ds(f"ds_read_b128 {vr(68,4)}, v8 offset:1024", "e")
        a("v_lshrrev_b32 v9, 5, v1")
        a("v_lshlrev_b32 v9, 4, v9")
        a(f"s_lshl_b32 {sA}, {sFT}, 7")
        a(f"s_lshl_b32 {sB}, {sKH}, 6")
        a(f"s_add_u32 {sA}, {sA}, {sB}")
        a(f"s_add_u32 {sA}, {sA}, {LDS_CS}")
        a(f"v_add_u32 v9, {sA}, v9")
        for q in range(4):
            a.ds(f"ds_read_b128 {vr(72+8*q,4)}, v9 offset:{q*256}", "cs")
            a.ds(f"ds_read_b128 {vr(76+8*q,4)}, v9 offset:{q*256+32}", "cs")
        a.wait_lg("e")
        for i in range(8):
            a(f"v_add_f32 v{ACC+i}, v{ACC+i}, v{64+i}")
        a.wait_lg("cs")
        for i in range(8):
            a(f"v_add_f32 v{72+i}, v{72+i}, v{80+i}")
            a(f"v_add_f32 v{88+i}, v{88+i}, v{96+i}")
        for i in range(8):
            a(f"v_add_f32 v{40+i}, v{72+i}, v{88+i}")


    def poll_begin(self, name, limit=200000):
        a = self.a
        a(f"s_mov_b32 {sCnt}, {limit}")
        a.label(f"L_poll_{name}")
    def poll_end(self, name, sleep=1):
        a = self.a
        a(f"s_cbranch_vccz L_pollok_{name}")
        a(f"s_sub_u32 {sCnt}, {sCnt}, 1")
        a(f"s_cmp_eq_u32 {sCnt}, 0")
        a(f"s_cbranch_scc1 L_pollok_{name}")
        if sleep: a(f"s_sleep {sleep}")
        a(f"s_branch L_poll_{name}")
        a.label(f"L_pollok_{name}")

    def p2(self):
        a = self.a
        X = self.opt
        LDS_E = 132 * 1024
        Q, NEGM, S0, S1, IDX, O, KF, VF = 4, 8, 24, 40, 56, 64, 80, 88
        vKa, vVa, vKb, vVb = "v104", "v105", "v106", "v107"
        vT1, vT2 = "v108", "v109"
        PL = 110
        WD = 112
        W1 = 128
        sTG = "s3"
        a(f"s_add_u32 {sTG}, {sTag}, 1")
        self.stamp("b3")
        if X.get("kvsleep", 0):
            a(f"s_sleep {X['kvsleep']}")
        LDS_BC = 156 * 1024
        vDK, vDV = "v59", "v60"
        a("v_bfe_u32 v59, v1, 3, 2")
        a("v_lshlrev_b32 v59, 10, v59")
        a("v_and_b32 v13, 7, v1")
        a("v_lshl_or_b32 v59, v13, 4, v59")
        a("v_lshrrev_b32 v13, 5, v1")
        a("v_lshl_or_b32 v59, v13, 7, v59")
        a("v_lshrrev_b32 v60, 4, v1")
        a("v_lshlrev_b32 v60, 10, v60")
        a("v_and_b32 v13, 15, v1")
        a("v_lshl_or_b32 v60, v13, 4, v60")
        a("v_add_u32 v60, 256, v60")
        sRot = "s64"
        a(f"s_lshr_b32 {sRot}, {sID}, 3")
        a(f"s_lshl_b32 {sRot}, {sRot}, 1")
        a("v_bfe_u32 v8, v1, 3, 2")
        a("v_and_b32 v9, 7, v1")
        a("v_lshlrev_b32 v9, 3, v9")
        a("v_lshl_add_u32 v8, v8, 10, v9")
        a(f"s_lshl_b32 {sA}, {sC}, 3")
        a(f"s_lshl_b32 {sB}, {sTT}, 2")
        a(f"s_add_u32 {sA}, {sA}, {sB}")
        a(f"s_lshl_b32 {sA}, {sA}, 10")
        a(f"s_add_u32 s65, {sA}, {WS_KV + 512}")
        allpoll = X.get("allpoll", 0)
        if not allpoll:
            a(f"s_cmp_eq_u32 {sW}, 7")
            a("s_cbranch_scc0 L_nopollkv")
        a("v_lshlrev_b32 v3, 6, v1")
        a(f"s_mov_b32 {sA}, {WS_FLKV}")
        self.poll_begin("kv")
        for q in range(4):
            a(f"buffer_load_dwordx4 {vr(64+4*q,4)}, v3, {srd(SRD_WS)}, {sA} offen offset:{16*q} sc1")
        a("s_waitcnt vmcnt(0)")
        a(f"v_xor_b32 v80, {sTG}, v64")
        a(f"v_xor_b32 v81, {sTG}, v66")
        a("v_or_b32 v80, v80, v81")
        for q in range(1, 4):
            a(f"v_xor_b32 v81, {sTG}, v{64+4*q}")
            a("v_or_b32 v80, v80, v81")
            a(f"v_xor_b32 v81, {sTG}, v{66+4*q}")
            a("v_or_b32 v80, v80, v81")
        a("v_cmp_ne_u32 vcc, 0, v80")
        self.poll_end("kv", sleep=X.get("kvsl", 2))
        if not allpoll:
            a.label("L_nopollkv")
            a("s_barrier")
        self.stamp("kvok")
        a(f"buffer_load_dwordx2 v[10:11], v8, {srd(SRD_WS)}, s65 offen sc1")
        def kv_tile(spos):
            a(f"s_add_u32 {sD}, {spos}, {sRot}")
            a(f"s_and_b32 {sD}, {sD}, 63")
            a(f"s_lshl_b32 {sD}, {sD}, 12")
            a(f"s_add_u32 {sD}, {sD}, {WS_KV}")
            a(f"s_lshl_b32 {sE_}, {spos}, 11")
            a(f"s_mov_b32 m0, {sE_}")
            a(f"buffer_load_dwordx4 {vDK}, {srd(SRD_WS)}, {sD} offen sc1 lds")
            a(f"s_add_u32 {sE_}, {sE_}, 1024")
            a(f"s_mov_b32 m0, {sE_}")
            a(f"buffer_load_dwordx4 {vDV}, {srd(SRD_WS)}, {sD} offen sc1 lds")
        a(f"s_mov_b32 {sF}, {sW}")
        kv_tile(sF)
        a(f"s_add_u32 {sF}, {sW}, 8")
        kv_tile(sF)
        self.wt_issue()
        a(f"s_cmp_eq_u32 {sW}, 7")
        a("s_cbranch_scc0 L_nobc")
        a("v_and_b32 v80, -8, v65")
        for q in range(1, 4):
            a(f"v_and_b32 v81, -8, v{65+4*q}")
            a("v_max_f32 v80, v80, v81")
        a(f"v_xor_b32 v82, {sXCC}, v65")
        for q in range(1, 4):
            a(f"v_xor_b32 v81, {sXCC}, v{65+4*q}")
            a("v_or_b32 v82, v82, v81")
        a("v_and_b32 v82, 7, v82")
        a("v_cmp_ne_u32 vcc, 0, v82")
        a(f"s_lshl_b32 {sA}, {sC}, 1")
        a(f"s_lshr_b64 {sX64}, vcc, {sA}")
        a(f"s_and_b32 {sFast}, s4, 3")
        if X.get("slow"): a(f"s_mov_b32 {sFast}, 1")
        self.wave_reduce(["v80"], "max", ["v81"])
        a("v_sqrt_f32 v80, v80")
        a(f"v_mov_b32 v81, {sFast}")
        a(f"v_mov_b32 v82, {LDS_BC}")
        a("s_mov_b64 exec, 1")
        a("ds_write_b64 v82, v[80:81]")
        a("s_mov_b64 exec, -1")
        a.label("L_nobc")
        a(f"s_or_b32 {sA}, {sID}, {sW}")
        a(f"s_cmp_lg_u32 {sA}, 0")
        a("s_cbranch_scc1 L_noepoch")
        a(f"v_mov_b32 v81, {sTG}")
        a("v_mov_b32 v82, 0")
        a("s_mov_b64 exec, 1")
        a(f"buffer_store_dword v81, v82, {srd(SRD_WS)}, 0 offen")
        a("s_mov_b64 exec, -1")
        a.label("L_noepoch")
        a("s_waitcnt vmcnt(6)")
        a(f"v_mul_f32 v11, 0x{f32bits(0.25*LOG2E):x}, v11")
        for i in range(8):
            a(f"v_fma_f32 v{32+i}, -v10, v{40+i}, v{32+i}")
        for i in range(8):
            a(f"v_mul_f32 v{32+i}, v11, v{32+i}")
        for i in range(4):
            a(f"v_cvt_pk_bf16_f32 v{Q+i}, v{32+2*i}, v{33+2*i}")
        if self.stop == "q":
            self.dump_regs(0, [Q, Q+1, Q+2, Q+3], WS_DBG)
            return
        a(f"v_dot2_f32_bf16 v12, v{Q}, v{Q}, 0")
        for i in range(1, 4):
            a(f"v_dot2_f32_bf16 v12, v{Q+i}, v{Q+i}, v12")
        a("v_mov_b32 v13, v12")
        a("v_permlane32_swap_b32 v12, v13")
        a("v_add_f32 v12, v12, v13")
        a("v_sqrt_f32 v12, v12")
        a(f"v_mul_f32 v12, 0x{f32bits(1.0078125):x}, v12")
        def bound_check():
            a("v_mul_f32 v12, v12, v62")
            a(f"v_cmp_lt_f32 vcc, 0x{f32bits(48.0):x}, v12")
            a("v_cmp_u_f32 s[4:5], v12, v12")
            a("s_or_b64 vcc, vcc, s[4:5]")
            a("s_cmp_lg_u64 vcc, 0")
            a(f"s_cselect_b32 {sG}, 1, 0")
            a(f"v_readfirstlane_b32 {sFast}, v63")
            if X.get("forcefb"): a(f"s_mov_b32 {sG}, 1")
        a(f"v_mov_b32 v{VF}, 0x3f803f80")
        for i in range(1, 16):
            a(f"v_mov_b32 v{VF+i}, v{VF}")
        for i in range(16):
            a(f"v_mov_b32 v{O+i}, 0")
        a(f"v_mov_b32 v{IDX}, 0xdddddddd")
        a(f"v_mov_b32 {vKa}, v2")
        a(f"v_add_u32 {vKb}, 0x10000, v2")
        a("v_and_b32 v3, 15, v1")
        a("v_lshlrev_b32 v3, 4, v3")
        a("v_lshrrev_b32 v61, 5, v1")
        a("v_lshl_or_b32 v3, v61, 8, v3")
        a(f"v_add_u32 {vVa}, 1024, v3")
        a(f"v_add_u32 {vVb}, 0x10000, {vVa}")
        self.wt_addr(vT1, vT2)
        self.wt_poll_addr()
        a("s_mov_b32 s6, 0x0000ffff")
        a("s_mov_b32 s7, 0x0000ffff")
        a(f"v_mov_b32 v61, {LDS_BC}")
        a("s_waitcnt vmcnt(2) lgkmcnt(0)")
        a("s_barrier")
        self.stamp("b4")
        a(f"s_cmp_eq_u32 {sFT}, 0")
        a("s_cbranch_scc1 L_clsA")
        a(f"s_add_u32 {sF}, {sW}, 12")
        a(f"s_mov_b32 {sCnt}, 12")
        a.label("L_kvrest")
        kv_tile(sF)
        a(f"s_add_u32 {sF}, {sF}, 4")
        a(f"s_sub_u32 {sCnt}, {sCnt}, 1")
        a(f"s_cmp_lg_u32 {sCnt}, 0")
        a("s_cbranch_scc1 L_kvrest")
        a("s_setprio 1")
        a("s_waitcnt vmcnt(0)")
        a("s_barrier")
        a(f"s_mov_b32 {sPh}, 1")
        a("s_branch L_clsD")
        a.label("L_clsA")
        a("s_setprio 2")
        a(f"s_mov_b32 {sPh}, 0")
        a.label("L_clsD")

        def kread(t):
            base = vKa if t < 32 else vKb
            a.ds(f"ds_read_b128 {vr(KF+4*(t%2),4)}, {base} offset:{(t%32)*2048}", f"K{t}")
        def vread(t):
            base = vVa if t < 32 else vVb
            a("s_mov_b64 exec, s[6:7]")
            a.ds(f"ds_read_b128 {vr(VF+8*(t%2),4)}, {base} offset:{(t%32)*2048}", f"V{t}")
            a.ds(f"ds_read_b128 {vr(VF+8*(t%2)+4,4)}, {base} offset:{(t%32)*2048+512}", f"V{t}")
            a("s_mov_b64 exec, -1")
        def Sr(t): return S0 if t % 2 == 0 else S1
        def ms(t):
            a.wait_lg(f"K{t}")
            a(f"v_mfma_f32_32x32x16_bf16 {vr(Sr(t),16)}, {vr(KF+4*(t%2),4)}, {vr(Q,4)}, 0")
        def sm(t, half):
            a.wait_lg(f"V{t}")
            a(f"v_smfmac_f32_32x32x32_bf16 {vr(O,16)}, {vr(VF+8*(t%2)+4*half,4)}, {vr(Sr(t)+8*half,8)}, v{IDX}")
        def E(t, lo, hi):
            for i in range(lo, hi + 1): a(f"v_exp_f32 v{Sr(t)+i}, v{Sr(t)+i}")

        TA = dict(wt=X.get("Awt", 10), fl=X.get("Afl", 17), bar=13, sw=X.get("sw", 50))
        TB = dict(wt=X.get("Bwt", 0), fl=X.get("Bfl", 2))
        TPOLL, TCHK, TLD0 = X.get("tpoll", 30), X.get("tchk", 32), X.get("tld", 32)
        def cond(cls, name, fn):
            lab = a.newlabel(f"L_{name}")
            a(f"s_cmp_eq_u32 {sFT}, {cls}")
            a(f"s_cbranch_scc0 {lab}")
            fn()
            a.label(lab)
        def b_wt():
            a("s_waitcnt vmcnt(0)")
            a(f"ds_read_b64_tr_b16 v[{WD}:{WD+1}], {vT1}")
            a(f"ds_read_b64_tr_b16 v[{WD+2}:{WD+3}], {vT1} offset:1024")
            a(f"ds_read_b64_tr_b16 v[{WD+4}:{WD+5}], {vT2}")
            a(f"ds_read_b64_tr_b16 v[{WD+6}:{WD+7}], {vT2} offset:1024")
            a("s_waitcnt lgkmcnt(0)")
            a(f"buffer_store_dwordx4 v[{WD}:{WD+3}], v2, {srd(SRD_WS)}, s88 offen sc1")
            a("s_add_u32 s88, s88, s89")
            a(f"buffer_store_dwordx4 v[{WD+4}:{WD+7}], v2, {srd(SRD_WS)}, s88 offen sc1")
        def b_fl():
            a("s_waitcnt vmcnt(0)")
            a(f"s_lshl_b32 {sA}, {sID}, 3")
            a(f"s_add_u32 {sA}, {sA}, {sW}")
            a(f"s_lshl_b32 {sA}, {sA}, 2")
            a(f"s_add_u32 {sA}, {sA}, {WS_FLWT2}")
            a(f"v_mov_b32 v{WD}, {sTG}")
            a(f"v_mov_b32 v{WD+1}, 0")
            a("s_mov_b64 exec, 1")
            a(f"buffer_store_dword v{WD}, v{WD+1}, {srd(SRD_WS)}, {sA} offen sc1")
            a("s_mov_b64 exec, -1")
        def b_bar():
            lab = a.newlabel("L_b5")
            a(f"s_cmp_eq_u32 {sPh}, 1")
            a(f"s_cbranch_scc1 {lab}")
            a("s_barrier")
            a.label(lab)
        def poll_issue():
            a(f"buffer_load_dword v{PL}, v57, {srd(SRD_WS)}, 0 offen sc1")
            a(f"buffer_load_dword v{PL+1}, v58, {srd(SRD_WS)}, 0 offen sc1")
        def poll_check():
            a("s_waitcnt vmcnt(0)")
            a(f"s_mov_b32 {sCnt}, 200000")
            a.label("L_wtchk")
            a(f"v_xor_b32 v{PL}, {sTG}, v{PL}")
            a(f"v_xor_b32 v{PL+1}, {sTG}, v{PL+1}")
            a(f"v_or_b32 v{PL}, v{PL}, v{PL+1}")
            a(f"v_cmp_ne_u32 vcc, 0, v{PL}")
            a("s_cbranch_vccz L_wtok")
            a(f"s_sub_u32 {sCnt}, {sCnt}, 1")
            a(f"s_cmp_eq_u32 {sCnt}, 0")
            a("s_cbranch_scc1 L_wtok")
            a("s_sleep 2")
            poll_issue()
            a("s_waitcnt vmcnt(0)")
            a("s_branch L_wtchk")
            a.label("L_wtok")
        extras = {t: [] for t in range(64)}
        mid = {t: [] for t in range(64)}
        extras[TA["wt"]].append(lambda: cond(0, "wtA", b_wt))
        extras[TB["wt"]].append(lambda: cond(1, "wtB", b_wt))
        extras[TA["fl"]].append(lambda: cond(0, "flA", b_fl))
        extras[TB["fl"]].append(lambda: cond(1, "flB", b_fl))
        extras[TA["bar"]].append(b_bar)
        extras[TA["sw"]].append(lambda: cond(0, "swA", lambda: a("s_setprio 0")))
        def dirty():
            n = X["dirty"]
            a(f"s_lshl_b32 {sA}, {sID}, 3")
            a(f"s_add_u32 {sA}, {sA}, {sW}")
            a(f"s_mul_i32 {sA}, {sA}, {n*1024}")
            a(f"s_add_u32 {sA}, {sA}, {WS_DBG}")
            for i in range(n):
                a(f"buffer_store_dwordx4 v[4:7], v2, {srd(SRD_WS)}, {sA} offen")
                a(f"s_add_u32 {sA}, {sA}, 1024")
        if X.get("dirty"): extras[20].append(dirty)
        def pretouch():
            D = "v[112:115]" if False else "v[60:63]"
            mod = " sc1" if X.get("ptsc1", 1) else ""
            a(f"s_lshl_b32 {sA}, {sM}, 2")
            a(f"s_lshl_b32 {sB}, {sFT}, 1")
            a(f"s_add_u32 {sA}, {sA}, {sB}")
            a(f"s_add_u32 {sA}, {sA}, {sKH}")
            a(f"s_lshl_b32 {sA}, {sA}, 1")
            a(f"s_add_u32 {sA}, {sA}, {sTT}")
            a(f"s_lshl_b32 {sB}, {sA}, 10")
            a(f"s_lshl_b32 {sD}, {sC}, 16")
            a(f"s_add_u32 {sB}, {sB}, {sD}")
            a(f"s_add_u32 {sE_}, {sB}, {WS_O}")
            a(f"buffer_load_dwordx4 {D}, v2, {srd(SRD_WS)}, {sE_} offen{mod}")
            a(f"s_add_u32 {sE_}, {sB}, {WS_H}")
            a(f"buffer_load_dwordx4 {D}, v2, {srd(SRD_WS)}, {sE_} offen{mod}")
            a(f"s_lshr_b32 {sB}, {sA}, 1")
            a(f"s_lshl_b32 {sE_}, {sTT}, 5")
            a(f"s_add_u32 {sB}, {sB}, {sE_}")
            a(f"s_lshl_b32 {sB}, {sB}, 8")
            a(f"s_lshl_b32 {sE_}, {sC}, 14")
            a(f"s_add_u32 {sB}, {sB}, {sE_}")
            a(f"s_add_u32 {sB}, {sB}, {WS_ST}")
            a("s_mov_b64 exec, 0xffff")
            a(f"buffer_load_dwordx4 {D}, v2, {srd(SRD_WS)}, {sB} offen{mod}")
            a(f"s_lshl_b32 {sB}, {sC}, 8")
            for fl in (WS_FLO, WS_FLH, WS_FLHID):
                a(f"s_add_u32 {sE_}, {sB}, {fl}")
                a(f"buffer_load_dwordx4 {D}, v2, {srd(SRD_WS)}, {sE_} offen sc1")
            a("s_mov_b64 exec, -1")
            a("v_and_b32 v59, 31, v1")
            a("v_lshlrev_b32 v59, 10, v59")
            a(f"s_lshl_b32 {sB}, {sTT}, 5")
            a(f"s_add_u32 {sB}, {sB}, {sT0}")
            a(f"s_lshl_b32 {sB}, {sB}, 10")
            a(f"s_lshl_b32 {sE_}, {sM}, 7")
            a(f"s_add_u32 {sB}, {sB}, {sE_}")
            a(f"buffer_load_dword v60, v59, {srd(SRD_OUT)}, {sB} offen")
            if False:
                a(f"s_lshl_b32 {sA}, {sC}, 19")
                a(f"s_lshl_b32 {sB}, {sW}, 16")
                a(f"s_add_u32 {sA}, {sA}, {sB}")
                a(f"s_lshl_b32 {sB}, {sM}, 10")
                a(f"s_add_u32 {sA}, {sA}, {sB}")
                a(f"s_add_u32 {sA}, {sA}, {WS_P}")
                for p in range(8):
                    a(f"buffer_load_dwordx4 {D}, v2, {srd(SRD_WS)}, {sA} offen{mod}")
                    a(f"s_add_u32 {sA}, {sA}, 8192")
            else:
                a(f"s_mul_i32 {sA}, {sM}, 7")
                a(f"s_add_u32 {sA}, {sA}, {sW}")
                a(f"s_min_u32 {sA}, {sA}, 55")
                a(f"s_lshl_b32 {sB}, {sA}, 12")
                a(f"s_mul_i32 {sD}, {sC}, {224*1024}")
                a(f"s_add_u32 {sB}, {sB}, {sD}")
                a(f"s_add_u32 {sB}, {sB}, {WS_HID}")
                for p in range(4):
                    a(f"buffer_load_dwordx4 {D}, v2, {srd(SRD_WS)}, {sB} offen offset:{p*1024}{mod}")
        if X.get("pt"): extras[X["pt"]].append(pretouch)
        extras[0].insert(0, bound_check)
        extras[TPOLL].append(poll_issue)
        extras[TCHK - 1].append(poll_check)
        def w1load(s_):
            def f():
                a(f"buffer_load_dwordx4 {vr(W1H[s_],4)}, v2, {srd(SRD_WS)}, {sW1B} offen offset:{(s_%4)*1024} sc1")
                if s_ % 4 == 3: a(f"s_add_u32 {sW1B}, {sW1B}, 4096")
            return f
        for s_ in range(NW1PRE):
            mid[TLD0 + s_ // 2].append(w1load(s_))
        def wo_addr():
            a(f"s_lshl_b32 {sA}, {sM}, 1")
            a(f"s_add_u32 {sA}, {sA}, {sFT}")
            a(f"s_lshl_b32 {sA}, {sA}, 5")
            a(f"s_lshl_b32 {sB}, {sKH}, 4")
            a(f"s_add_u32 {sA}, {sA}, {sB}")
            a(f"s_lshl_b32 {sA}, {sA}, 10")
            a(f"s_add_u32 {sWOB}, {sA}, {WS_WOF}")
            a(f"s_lshl_b32 {sB}, {sKH}, 8")
            a(f"v_xor_b32 v57, {sB}, v2")
        extras[TCHK].append(wo_addr)
        def woload(i):
            def f():
                a(f"buffer_load_dwordx4 {vr(WOH[i],4)}, v57, {srd(SRD_WS)}, {sWOB} offen offset:{(i%4)*1024} sc1")
                if i % 4 == 3 and i < 15: a(f"s_add_u32 {sWOB}, {sWOB}, 4096")
            return f
        TWO = TLD0 + NW1PRE // 2
        for i in range(16):
            mid[TWO + i // 2].append(woload(i))

        def pf_addr():
            a(f"s_lshl_b32 {sA}, {sM}, 1")
            a(f"s_add_u32 {sA}, {sA}, {sFT}")
            a(f"s_mul_i32 {sA}, {sA}, 112")
            a(f"s_and_b32 {sB}, {sW}, 3")
            a(f"s_mul_i32 {sB}, {sB}, 28")
            a(f"s_add_u32 {sA}, {sA}, {sB}")
            a(f"s_lshl_b32 {sA}, {sA}, 10")
            a(f"s_add_u32 {sPF}, {sA}, {WS_W2F}")
            a("v_lshlrev_b32 v58, 6, v1")
        def pf(i):
            def f():
                a(f"buffer_load_dword v59, v58, {srd(SRD_WS)}, {sPF} offen sc1")
                a(f"s_add_u32 {sPF}, {sPF}, 4096")
            return f
        def pf_w1():
            a(f"s_add_u32 {sPF}, {sW1B}, 2048")
            a(f"buffer_load_dword v59, v58, {srd(SRD_WS)}, {sPF} offen sc1")
            a(f"buffer_load_dword v59, v58, {srd(SRD_WS)}, {sPF} offen offset:2048 sc1")
        if X.get("pf"):
            TPF = TWO + 8
            extras[TPF - 1].append(pf_addr)
            for i in range(7): mid[TPF + i].append(pf(i))
            mid[TPF + 7].append(pf_w1)

        a.lg = []
        a.ds("ds_read_b64 v[62:63], v61", "bc")
        kread(0); kread(1); vread(0)
        ms(0)
        a("s_nop 11")
        for t in range(64):
            E(t, 0, 1)
            if t > 0: sm(t - 1, 1)
            if t + 1 < 64: vread(t + 1)
            E(t, 2, 5)
            if t + 1 < 64: ms(t + 1)
            if t + 2 < 64: kread(t + 2)
            if mid[t]: mid[t][0]()
            E(t, 6, 11)
            sm(t, 0)
            for f in mid[t][1:]: f()
            E(t, 12, 15)
            for f in extras[t]: f()
        a("s_nop 1")
        sm(63, 1)
        a("s_setprio 0")
        self.stamp("attn")
        a("s_nop 7")
        a("s_nop 3")
        a(f"v_rcp_f32 v3, v{O+8}")
        a(f"v_mul_f32 v80, 0, v{O}")
        a(f"v_mul_f32 v81, 0, v{O+1}")
        for i in range(2, 8, 2):
            a(f"v_fma_f32 v80, v{O+i}, 0, v80")
            a(f"v_fma_f32 v81, v{O+i+1}, 0, v81")
        a("v_add_f32 v80, v80, v81")
        a("v_cmp_u_f32 vcc, v80, v80")
        a("s_cmp_lg_u64 vcc, 0")
        a(f"s_cselect_b32 {sA}, 1, 0")
        a(f"s_or_b32 {sA}, {sA}, {sG}")
        a(f"s_cmp_eq_u32 {sA}, 0")
        a("s_cbranch_scc1 L_nofb")
        a(f"v_mov_b32 v57, {vKa}")
        a("v_mov_b32 v58, 0xff800000")
        a(f"s_mov_b32 {sCnt}, 64")
        a.label("L_fb")
        a(f"ds_read_b128 {vr(KF,4)}, v57")
        a("v_add_u32 v57, 2048, v57")
        a("s_waitcnt lgkmcnt(0)")
        a(f"v_mfma_f32_32x32x16_bf16 {vr(S0,16)}, {vr(KF,4)}, {vr(Q,4)}, 0")
        for i in range(8):
            a(f"v_max3_f32 v58, v{S0+2*i}, v{S0+2*i+1}, v58")
        a(f"s_sub_u32 {sCnt}, {sCnt}, 1")
        a(f"s_cmp_lg_u32 {sCnt}, 0")
        a("s_cbranch_scc1 L_fb")
        a("v_mov_b32 v57, v58")
        a("v_permlane32_swap_b32 v57, v58")
        a("v_max_f32 v58, v57, v58")
        a(f"v_sub_f32 v{S1}, 0, v58")
        for i in range(1, 16):
            a(f"v_mov_b32 v{S1+i}, v{S1}")
        for i in range(16):
            a(f"v_mov_b32 v{O+i}, 0")
        a(f"v_mov_b32 v57, {vKa}")
        a(f"v_mov_b32 v58, {vVa}")
        a(f"s_mov_b32 {sCnt}, 64")
        a.label("L_fb2")
        a(f"ds_read_b128 {vr(KF,4)}, v57")
        a("s_mov_b64 exec, s[6:7]")
        a(f"ds_read_b128 {vr(VF,4)}, v58")
        a(f"ds_read_b128 {vr(VF+4,4)}, v58 offset:512")
        a("s_mov_b64 exec, -1")
        a("v_add_u32 v57, 2048, v57")
        a("v_add_u32 v58, 2048, v58")
        a("s_waitcnt lgkmcnt(0)")
        a(f"v_mfma_f32_32x32x16_bf16 {vr(S0,16)}, {vr(KF,4)}, {vr(Q,4)}, {vr(S1,16)}")
        for i in range(16):
            a(f"v_exp_f32 v{S0+i}, v{S0+i}")
        a(f"v_smfmac_f32_32x32x32_bf16 {vr(O,16)}, {vr(VF,4)}, {vr(S0,8)}, v{IDX}")
        a(f"v_smfmac_f32_32x32x32_bf16 {vr(O,16)}, {vr(VF+4,4)}, {vr(S0+8,8)}, v{IDX}")
        a(f"s_sub_u32 {sCnt}, {sCnt}, 1")
        a(f"s_cmp_lg_u32 {sCnt}, 0")
        a("s_nop 7")
        a("s_nop 7")
        a("s_cbranch_scc1 L_fb2")
        a(f"v_rcp_f32 v3, v{O+8}")
        a.label("L_nofb")
        OP = 40
        for i in range(8):
            a(f"v_mul_f32 v{O+i}, v3, v{O+i}")
        for i in range(4):
            a(f"v_cvt_pk_bf16_f32 v{OP+i}, v{O+2*i}, v{O+2*i+1}")
        a(f"s_lshl_b32 s88, {sM}, 2")
        a(f"s_lshl_b32 {sB}, {sFT}, 1")
        a(f"s_add_u32 s88, s88, {sB}")
        a(f"s_add_u32 s88, s88, {sKH}")
        a(f"s_lshl_b32 {sB}, s88, 1")
        a(f"s_add_u32 {sB}, {sB}, {sTT}")
        a(f"s_lshl_b32 {sB}, {sB}, 10")
        a(f"s_lshl_b32 {sD}, {sC}, 16")
        a(f"s_add_u32 {sB}, {sB}, {sD}")
        a(f"s_add_u32 {sB}, {sB}, {WS_O}")
        a(f"s_lshl_b32 {sD}, {sTT}, 5")
        a(f"s_add_u32 {sD}, {sD}, s88")
        a(f"s_lshl_b32 {sD}, {sD}, 2")
        a(f"s_lshl_b32 {sE_}, {sC}, 8")
        a(f"s_add_u32 {sD}, {sD}, {sE_}")
        a(f"s_add_u32 {sD}, {sD}, {WS_FLO}")
        self.publish("o", [("dwordx4", vr(OP, 4), "v2", sB, 0)], sD)
        self.stamp("opub")

    def wt_addr(self, vT1, vT2):
        a = self.a
        LDS_E = 132 * 1024
        a("v_bfe_u32 v61, v1, 2, 2")
        a("v_lshrrev_b32 v62, 5, v1")
        a("v_lshl_add_u32 v62, v62, 2, v61")
        a("v_lshlrev_b32 v62, 7, v62")
        a("v_bfe_u32 v63, v1, 4, 1")
        a("v_lshlrev_b32 v63, 5, v63")
        a("v_and_b32 v61, 3, v1")
        a("v_lshl_add_u32 v63, v61, 3, v63")
        a("v_bfe_u32 v61, v1, 3, 1")
        a("v_lshlrev_b32 v61, 6, v61")
        a("v_xor_b32 v63, v63, v61")
        a("v_add_u32 v62, v62, v63")
        a(f"s_xor_b32 {sA}, {sW}, 1")
        a(f"s_lshl_b32 {sA}, {sA}, 11")
        a(f"s_add_u32 {sA}, {sA}, {LDS_E}")
        a(f"v_add_u32 {vT1}, {sA}, v62")
        a(f"v_xor_b32 {vT2}, 64, {vT1}")

    def wt_poll_addr(self):
        a = self.a
        a(f"s_cmp_eq_u32 {sW}, 7")
        a("s_cbranch_scc1 L_pa7")
        a(f"s_mul_i32 {sA}, {sM}, 7")
        a(f"s_add_u32 {sA}, {sA}, {sW}")
        a(f"s_lshl_b32 {sW1B}, {sA}, 15")
        a(f"s_add_u32 {sW1B}, {sW1B}, {WS_W1F}")
        a(f"s_lshr_b32 {sA}, {sA}, 1")
        a(f"s_lshl_b32 {sA}, {sA}, 5")
        a(f"s_add_u32 {sA}, {sA}, 256")
        a("s_branch L_pad")
        a.label("L_pa7")
        a(f"s_lshl_b32 {sA}, {sM}, 1")
        a(f"s_add_u32 {sA}, {sA}, 1")
        a(f"s_mul_i32 {sA}, {sA}, 112")
        a(f"s_add_u32 {sA}, {sA}, 98")
        a(f"s_lshl_b32 {sW1B}, {sA}, 10")
        a(f"s_add_u32 {sW1B}, {sW1B}, {WS_W2F}")
        a(f"s_mul_i32 {sA}, {sM}, 112")
        a(f"s_add_u32 {sA}, {sA}, {1152 + 80}")
        a.label("L_pad")
        a(f"s_lshl_b32 {sB}, {sM}, 5")
        a(f"s_sub_u32 {sB}, {sB}, 32")
        a(f"v_mov_b32 v57, {sA}")
        a(f"v_mov_b32 v58, {sB}")
        a("v_cmp_gt_u32 vcc, 32, v1")
        a("v_cndmask_b32 v57, v58, v57, vcc")
        a("v_add_u32 v57, v57, v1")
        a("v_lshlrev_b32 v57, 2, v57")
        a(f"v_add_u32 v57, {WS_FLWT2}, v57")
        a(f"s_mul_i32 {sA}, {sM}, 112")
        a(f"s_mul_i32 {sB}, {sW}, 14")
        a(f"s_add_u32 {sA}, {sA}, {sB}")
        a(f"s_add_u32 {sA}, {sA}, 1152")
        a("v_min_u32 v58, 13, v1")
        a(f"v_add_u32 v58, {sA}, v58")
        a("v_lshlrev_b32 v58, 2, v58")
        a(f"v_add_u32 v58, {WS_FLWT2}, v58")

    def publish(self, name, stores, sflag, pre_exec=None):
        a = self.a
        a(f"v_mov_b32 v104, s3")
        a(f"v_mov_b32 v105, 0")
        a(f"s_cmp_eq_u32 {sFast}, 0")
        a(f"s_cbranch_scc0 L_pub_slow_{name}")
        for variant, mod in (("fast", ""), ("slow", " sc1")):
            if variant == "slow": a.label(f"L_pub_slow_{name}")
            for st in stores:
                ty, data, voff, soff, io = st[:5]
                if len(st) > 5: a(f"s_mov_b32 exec_hi, 0")
                a(f"buffer_store_{ty} {data}, {voff}, {srd(SRD_WS)}, {soff} offen offset:{io}{mod}")
                if len(st) > 5: a("s_mov_b64 exec, -1")
            a("s_waitcnt vmcnt(0)")
            a("s_mov_b64 exec, 1")
            a(f"buffer_store_dword v104, v105, {srd(SRD_WS)}, {sflag} offen{mod}")
            a("s_mov_b64 exec, -1")
            if variant == "fast": a(f"s_branch L_pub_done_{name}")
        a.label(f"L_pub_done_{name}")

    def wt_issue(self):
        a = self.a
        LDS_E = 132 * 1024
        a(f"s_lshl_b32 {sA}, {sID}, 3")
        a(f"s_add_u32 {sA}, {sA}, {sW}")
        a(f"s_cmp_lt_u32 {sA}, 256")
        a("s_cbranch_scc1 L_wt_wo")
        a(f"s_cmp_lt_u32 {sA}, 1152")
        a("s_cbranch_scc1 L_wt_w1")
        a(f"s_sub_u32 {sA}, {sA}, 1152")
        a(f"s_mul_i32 {sB}, {sA}, 9363")
        a(f"s_lshr_b32 {sB}, {sB}, 20")
        a(f"s_mul_i32 {sD}, {sB}, 112")
        a(f"s_sub_u32 {sD}, {sA}, {sD}")
        for i in range(4): a(f"s_mov_b32 s{SRD_T+i}, s{SRD_W2+i}")
        a(f"s_mov_b32 {sF}, 1024")
        a(f"s_mul_i32 s88, {sB}, {2*112}")
        a(f"s_add_u32 s88, s88, {sD}")
        a("s_lshl_b32 s88, s88, 10")
        a(f"s_add_u32 s88, s88, {WS_W2F}")
        a(f"s_mov_b32 s89, {112*1024}")
        a("s_branch L_wt_go")
        a.label("L_wt_w1")
        a(f"s_sub_u32 {sA}, {sA}, 256")
        a(f"s_lshr_b32 {sB}, {sA}, 5")
        a(f"s_and_b32 {sD}, {sA}, 31")
        for i in range(4): a(f"s_mov_b32 s{SRD_T+i}, s{SRD_W1+i}")
        a(f"s_mov_b32 {sF}, 3584")
        a(f"s_lshl_b32 s88, {sB}, 6")
        a(f"s_add_u32 s88, s88, {sD}")
        a("s_lshl_b32 s88, s88, 10")
        a(f"s_add_u32 s88, s88, {WS_W1F}")
        a(f"s_mov_b32 s89, {32*1024}")
        a("s_branch L_wt_go")
        a.label("L_wt_wo")
        a(f"s_lshr_b32 {sB}, {sA}, 5")
        a(f"s_and_b32 {sD}, {sA}, 31")
        for i in range(4): a(f"s_mov_b32 s{SRD_T+i}, s{SRD_WO+i}")
        a(f"s_mov_b32 {sF}, 1024")
        a(f"s_lshl_b32 s88, {sB}, 6")
        a(f"s_add_u32 s88, s88, {sD}")
        a("s_lshl_b32 s88, s88, 10")
        a(f"s_add_u32 s88, s88, {WS_WOF}")
        a(f"s_mov_b32 s89, {32*1024}")
        a.label("L_wt_go")
        a(f"s_mul_i32 {sD}, {sD}, {sF}")
        a(f"s_lshl_b32 {sD}, {sD}, 4")
        a(f"s_lshl_b32 {sB}, {sB}, 7")
        a(f"s_add_u32 {sD}, {sD}, {sB}")
        a("v_lshrrev_b32 v16, 3, v1")
        a(f"v_mul_lo_u32 v16, v16, {sF}")
        a("v_and_b32 v17, 7, v1")
        a("v_bfe_u32 v18, v1, 4, 1")
        a("v_lshlrev_b32 v18, 2, v18")
        a("v_xor_b32 v17, v17, v18")
        a("v_lshl_add_u32 v16, v17, 4, v16")
        a(f"s_xor_b32 {sA}, {sW}, 1")
        a(f"s_lshl_b32 {sA}, {sA}, 11")
        a(f"s_add_u32 {sA}, {sA}, {LDS_E}")
        a(f"s_mov_b32 m0, {sA}")
        a(f"buffer_load_dwordx4 v16, {srd(SRD_T)}, {sD} offen lds")
        a(f"s_lshl_b32 {sB}, {sF}, 3")
        a(f"s_add_u32 {sD}, {sD}, {sB}")
        a(f"s_add_u32 {sA}, {sA}, 1024")
        a(f"s_mov_b32 m0, {sA}")
        a(f"buffer_load_dwordx4 v16, {srd(SRD_T)}, {sD} offen lds")

    def wt_process(self):
        a = self.a
        LDS_E = 132 * 1024
        a("v_bfe_u32 v106, v1, 2, 2")
        a("v_lshrrev_b32 v107, 5, v1")
        a("v_lshl_add_u32 v107, v107, 2, v106")
        a("v_lshlrev_b32 v107, 7, v107")
        a("v_bfe_u32 v108, v1, 4, 1")
        a("v_lshlrev_b32 v108, 5, v108")
        a("v_and_b32 v109, 3, v1")
        a("v_lshl_add_u32 v108, v109, 3, v108")
        a("v_bfe_u32 v109, v1, 3, 1")
        a("v_lshlrev_b32 v109, 6, v109")
        a("v_xor_b32 v108, v108, v109")
        a("v_add_u32 v107, v107, v108")
        a(f"s_xor_b32 {sA}, {sW}, 1")
        a(f"s_lshl_b32 {sA}, {sA}, 11")
        a(f"s_add_u32 {sA}, {sA}, {LDS_E}")
        a(f"v_add_u32 v107, {sA}, v107")
        a("v_xor_b32 v108, 64, v107")
        a("ds_read_b64_tr_b16 v[112:113], v107")
        a("ds_read_b64_tr_b16 v[114:115], v107 offset:1024")
        a("ds_read_b64_tr_b16 v[116:117], v108")
        a("ds_read_b64_tr_b16 v[118:119], v108 offset:1024")
        a("s_waitcnt lgkmcnt(0)")
        a(f"buffer_store_dwordx4 v[112:115], v2, {srd(SRD_WS)}, s88 offen sc1")
        a("s_add_u32 s88, s88, s89")
        a(f"buffer_store_dwordx4 v[116:119], v2, {srd(SRD_WS)}, s88 offen sc1")


    def colsum(self, homes, first):
        a = self.a
        n = 0
        a("s_mov_b32 s5, 0x3f803f80")
        for hm in homes:
            for i in range(4):
                r = "v106" if n % 2 == 0 else "v107"
                a(f"v_dot2_f32_bf16 {r}, v{hm+i}, s5, {'0' if (first and n < 2) else r}")
                n += 1

    def p3(self):
        a = self.a
        X_ = self.opt
        HB, X, ACC, BR = 4, 56, 24, 64
        LDS_OF, LDS_E2 = 0, 128 * 1024
        sS = "s88"
        a("v_and_b32 v3, 31, v1")
        a("v_lshlrev_b32 v3, 10, v3")
        a("v_lshrrev_b32 v104, 5, v1")
        a("v_lshl_or_b32 v3, v104, 3, v3")
        a(f"s_lshl_b32 {sA}, {sTT}, 5")
        a(f"s_add_u32 {sA}, {sA}, {sT0}")
        a(f"s_lshl_b32 {sA}, {sA}, 10")
        a(f"s_lshl_b32 {sB}, {sS}, 5")
        a(f"s_add_u32 {sA}, {sA}, {sB}")
        a(f"buffer_load_dwordx2 {vr(X,2)}, v3, {srd(SRD_X)}, {sA} offen")
        a(f"buffer_load_dwordx2 {vr(X+2,2)}, v3, {srd(SRD_X)}, {sA} offen offset:16")
        a("s_barrier")
        self.stamp("b7")
        a(f"s_cmp_eq_u32 {sW}, 7")
        a("s_cbranch_scc1 L_nocs1")
        self.colsum(W1H[:NW1PRE], True)
        a.label("L_nocs1")
        a(f"s_lshl_b32 {sA}, {sTT}, 5")
        a(f"s_lshl_b32 {sB}, {sKH}, 4")
        a(f"s_add_u32 {sA}, {sA}, {sB}")
        a(f"s_lshl_b32 {sA}, {sA}, 2")
        a(f"s_lshl_b32 {sB}, {sC}, 8")
        a(f"s_add_u32 {sA}, {sA}, {sB}")
        a(f"s_add_u32 {sA}, {sA}, {WS_FLO}")
        a("v_and_b32 v3, 15, v1")
        a("v_lshlrev_b32 v3, 2, v3")
        self.poll_begin("o")
        a(f"buffer_load_dword v104, v3, {srd(SRD_WS)}, {sA} offen sc1")
        a("s_waitcnt vmcnt(0)")
        a("v_cmp_ne_u32 vcc, s3, v104")
        self.poll_end("o", sleep=1)
        self.stamp("ook")
        a(f"s_lshl_b32 {sA}, {sKH}, 4")
        a(f"s_lshl_b32 {sB}, {sFT}, 2")
        a(f"s_add_u32 {sA}, {sA}, {sB}")
        a(f"s_lshl_b32 {sA}, {sA}, 1")
        a(f"s_add_u32 {sA}, {sA}, {sTT}")
        a(f"s_lshl_b32 {sA}, {sA}, 10")
        a(f"s_lshl_b32 {sB}, {sC}, 16")
        a(f"s_add_u32 {sB}, {sB}, {sA}")
        a(f"s_add_u32 {sB}, {sB}, {WS_O}")
        for st in range(2):
            for i in range(4):
                d = (st * 8 + i) * 2048
                a(f"s_add_u32 {sD}, {sA}, {d + LDS_OF}")
                a(f"s_add_u32 {sE_}, {sB}, {d}")
                a(f"s_mov_b32 m0, {sD}")
                a(f"buffer_load_dwordx4 v2, {srd(SRD_WS)}, {sE_} offen sc1 lds")
        nrest = 32 - NW1PRE
        a(f"s_lshl_b32 {sA}, {sKH}, 15")
        a(f"s_lshl_b32 {sB}, {sTT}, 10")
        a(f"s_add_u32 {sA}, {sA}, {sB}")
        a(f"v_add_u32 v104, {sA}, v2")
        def late_loads():
            for s_ in range(NW1PRE, 32):
                a(f"buffer_load_dwordx4 {vr(W1H[s_],4)}, v2, {srd(SRD_WS)}, {sW1B} offen offset:{(s_%4)*1024} sc1")
                if s_ % 4 == 3 and s_ < 31: a(f"s_add_u32 {sW1B}, {sW1B}, 4096")
        a.lg = []
        for st in range(2):
            a(f"s_waitcnt vmcnt({4 if st == 0 else 0})")
            a("s_barrier")
            for i in range(8):
                a.ds(f"ds_read_b128 {vr(BR+4*i,4)}, v104 offset:{(st*8+i)*2048}", f"b{st}{i}")
            if st == 1: late_loads()
            for i in range(8):
                a.wait_lg(f"b{st}{i}")
                k = st * 8 + i
                srcC = "0" if k == 0 else vr(ACC, 16)
                a(f"v_mfma_f32_32x32x16_bf16 {vr(ACC,16)}, {vr(WOH[k],4)}, {vr(BR+4*i,4)}, {srcC}")
        self.stamp("p3mm")
        a(f"s_lshl_b32 {sA}, {sW}, 11")
        a(f"s_add_u32 {sA}, {sA}, {LDS_E2}")
        a(f"v_add_u32 v104, {sA}, v2")
        a(f"ds_write_b128 v104, {vr(ACC+8,4)}")
        a(f"ds_write_b128 v104, {vr(ACC+12,4)} offset:1024")
        a("s_waitcnt lgkmcnt(0)")
        a("s_barrier")
        a("v_xor_b32 v104, 2048, v104")
        a(f"ds_read_b128 {vr(BR,4)}, v104")
        a(f"ds_read_b128 {vr(BR+4,4)}, v104 offset:1024")
        for i in range(4):
            a(f"v_lshlrev_b32 v{BR+8+2*i}, 16, v{X+i}")
            a(f"v_and_b32 v{BR+9+2*i}, 0xffff0000, v{X+i}")
        a(f"s_lshl_b32 {sA}, {sS}, 1")
        a(f"s_add_u32 {sA}, {sA}, {sTT}")
        a(f"s_lshl_b32 {sA}, {sA}, 10")
        a(f"s_lshl_b32 {sB}, {sC}, 16")
        a(f"s_add_u32 {sA}, {sA}, {sB}")
        a(f"s_add_u32 {sA}, {sA}, {WS_H}")
        a(f"s_lshl_b32 {sD}, {sTT}, 5")
        a(f"s_add_u32 {sD}, {sD}, {sS}")
        a(f"s_lshl_b32 {sD}, {sD}, 2")
        a(f"s_lshl_b32 {sE_}, {sC}, 8")
        a(f"s_add_u32 {sD}, {sD}, {sE_}")
        a(f"s_add_u32 {sD}, {sD}, {WS_FLH}")
        for i in range(8):
            a(f"v_add_f32 v{ACC+i}, v{ACC+i}, v{BR+8+i}")
        a("s_waitcnt lgkmcnt(0)")
        for i in range(8):
            a(f"v_add_f32 v{ACC+i}, v{ACC+i}, v{BR+i}")
        for i in range(4):
            a(f"v_cvt_pk_bf16_f32 v{HB+i}, v{ACC+2*i}, v{ACC+2*i+1}")
        a("s_mov_b32 s5, 0x3f803f80")
        a(f"v_dot2_f32_bf16 v56, v{HB}, s5, 0")
        a(f"v_dot2_f32_bf16 v57, v{HB}, v{HB}, 0")
        for i in range(1, 4):
            a(f"v_dot2_f32_bf16 v56, v{HB+i}, s5, v56")
            a(f"v_dot2_f32_bf16 v57, v{HB+i}, v{HB+i}, v57")
        a("v_mov_b32 v58, v56")
        a("v_mov_b32 v59, v57")
        a("v_permlane32_swap_b32 v56, v58")
        a("v_permlane32_swap_b32 v57, v59")
        a("v_add_f32 v56, v56, v58")
        a("v_add_f32 v57, v57, v59")
        a(f"s_lshl_b32 {sB}, {sTT}, 5")
        a(f"s_add_u32 {sB}, {sB}, {sS}")
        a(f"s_lshl_b32 {sB}, {sB}, 8")
        a(f"s_lshl_b32 {sE_}, {sC}, 14")
        a(f"s_add_u32 {sB}, {sB}, {sE_}")
        a(f"s_add_u32 {sB}, {sB}, {WS_ST}")
        a("v_lshlrev_b32 v3, 3, v1")
        self.publish("h", [("dwordx4", vr(HB, 4), "v2", sA, 0), ("dwordx2", "v[56:57]", "v3", sB, 0, "lo32")], sD)
        self.stamp("hpub")

    def w2load(self, f, i):
        a = self.a
        hm = (W2H0 if f == 0 else W2H1)[i]
        off = (f * 112 + i) * 1024
        a(f"s_add_u32 {sA}, s89, {off}")
        a(f"buffer_load_dwordx4 {vr(hm,4)}, v2, {srd(SRD_WS)}, {sA} offen sc1")

    def p4(self):
        a = self.a
        HB, ACC, BR = 4, 64, 108
        LDS_HF, LDS_ST2, LDS_CS1, LDS_B1 = 64 * 1024, 144 * 1024, 145 * 1024, 146 * 1024
        a(f"s_mul_i32 {sA}, {sM}, 224")
        a(f"s_mul_i32 {sB}, {sW}, 14")
        a(f"s_add_u32 {sA}, {sA}, {sB}")
        a(f"s_lshl_b32 {sA}, {sA}, 10")
        a(f"s_add_u32 s89, {sA}, {WS_W2F}")
        for i in range(NW2E): self.w2load(0, i)
        a(f"s_cmp_eq_u32 {sW}, 7")
        a("s_cbranch_scc1 L_p4_pre7")
        self.colsum(W1H[NW1PRE:], False)
        a("v_add_f32 v106, v106, v107")
        a("v_mov_b32 v107, v106")
        a("v_permlane32_swap_b32 v106, v107")
        a("v_add_f32 v106, v106, v107")
        a("v_and_b32 v107, 31, v1")
        a("v_lshlrev_b32 v107, 2, v107")
        a(f"s_lshl_b32 {sA}, {sW}, 7")
        a(f"s_add_u32 {sA}, {sA}, {LDS_CS1}")
        a(f"v_add_u32 v107, {sA}, v107")
        a("ds_write_b32 v107, v106")
        a("s_branch L_p4_pre")
        a.label("L_p4_pre7")
        a(f"s_mul_i32 {sA}, {sM}, 448")
        a("v_lshlrev_b32 v3, 3, v1")
        a("v_min_u32 v3, 440, v3")
        a(f"buffer_load_dwordx2 v[106:107], v3, {srd(SRD_B1)}, {sA} offen")
        a("s_waitcnt vmcnt(0)")
        a("v_lshlrev_b32 v108, 16, v106")
        a("v_and_b32 v109, 0xffff0000, v106")
        a("v_lshlrev_b32 v110, 16, v107")
        a("v_and_b32 v111, 0xffff0000, v107")
        for i in range(4): a(f"v_mul_f32 v{108+i}, 0.5, v{108+i}")
        a("v_lshlrev_b32 v3, 1, v3")
        a(f"v_add_u32 v3, {LDS_B1}, v3")
        a("ds_write_b128 v3, v[108:111]")
        a.label("L_p4_pre")
        a(f"s_lshl_b32 {sA}, {sC}, 8")
        a(f"s_add_u32 {sA}, {sA}, {WS_FLH}")
        a("v_lshlrev_b32 v3, 2, v1")
        self.poll_begin("h")
        a(f"buffer_load_dword v104, v3, {srd(SRD_WS)}, {sA} offen sc1")
        a("s_waitcnt vmcnt(0)")
        a("v_cmp_ne_u32 vcc, s3, v104")
        self.poll_end("h", sleep=1)
        self.stamp("hok")
        a(f"s_lshl_b32 s67, {sW}, 11")
        a(f"s_lshl_b32 {sB}, {sC}, 16")
        a(f"s_add_u32 {sB}, {sB}, s67")
        a(f"s_add_u32 s68, {sB}, {WS_H}")
        def hdma(i):
            for tt in range(2):
                d = i * 8 * 2048 + tt * 1024
                a(f"s_add_u32 {sD}, s67, {d + LDS_HF}")
                a(f"s_add_u32 {sE_}, s68, {d}")
                a(f"s_mov_b32 m0, {sD}")
                a(f"buffer_load_dwordx4 v2, {srd(SRD_WS)}, {sE_} offen sc1 lds")
        hdma(0); hdma(1)
        a(f"v_add_u32 v104, {LDS_HF}, v2")
        a("s_waitcnt vmcnt(2)")
        a("s_barrier")
        self.stamp("f1a")
        hdma(2); hdma(3)
        a(f"s_cmp_eq_u32 {sW}, 7")
        a("s_cbranch_scc1 L_p4_w7")
        a.lg = []
        NR = 3
        def hread(k):
            sl = k % NR
            a.ds(f"ds_read_b128 {vr(BR+8*sl,4)}, v104 offset:{k*2048}", f"h{k}")
            a.ds(f"ds_read_b128 {vr(BR+8*sl+4,4)}, v104 offset:{k*2048+1024}", f"h{k}")
        for k in range(NR - 1): hread(k)
        lst = [(0, i) for i in range(NW2E, 14)] + [(1, i) for i in range(14)]
        sched = {}
        for n, (f, i) in enumerate(lst):
            st = (n * 30) // len(lst) + 1
            if f == 1: st = max(st, i)
            sched.setdefault(st, []).append((f, i))
        issued = 0
        for k in range(32):
            if k == 8 - (NR - 1):
                a(f"s_waitcnt vmcnt({4 + issued})")
                a("s_barrier")
            if k == 16 - (NR - 1):
                a(f"s_waitcnt vmcnt({issued})")
                a("s_barrier")
                self.stamp("f1b")
            if k + NR - 1 < 32: hread(k + NR - 1)
            a.wait_lg(f"h{k}")
            sl = k % NR
            for tt in range(2):
                srcC = "0" if k == 0 else vr(ACC + 16 * tt, 16)
                a(f"v_mfma_f32_32x32x16_bf16 {vr(ACC+16*tt,16)}, {vr(W1H[k],4)}, {vr(BR+8*sl+4*tt,4)}, {srcC}")
            for (f, i) in (sched.get(k, []) if not self.opt.get("now2") else []):
                self.w2load(f, i)
                issued += 1
        self.stamp("f1c")
        a("s_barrier")
        a.lg = []
        CS, BF = 108, 208
        a("v_and_b32 v3, 31, v1")
        a("v_lshlrev_b32 v3, 3, v3")
        a(f"v_add_u32 v3, {LDS_ST2}, v3")
        a("ds_read_b64 v[104:105], v3")
        a("ds_read_b64 v[106:107], v3 offset:256")
        a("v_lshrrev_b32 v3, 5, v1")
        a("v_lshlrev_b32 v3, 4, v3")
        a(f"s_lshl_b32 {sA}, {sW}, 7")
        a(f"s_add_u32 {sA}, {sA}, {LDS_CS1}")
        a(f"v_add_u32 v3, {sA}, v3")
        for q in range(4):
            a(f"ds_read_b128 {vr(CS+4*q,4)}, v3 offset:{32*q}")
        for q in range(4):
            a(f"ds_read_b128 {vr(BF+4*q,4)}, v3 offset:{1024 + 32*q}")
        a("s_waitcnt lgkmcnt(0)")
        self.stamp("ffn1")
        HP = 236
        for tt in range(2):
            mu, rs = 104 + 2 * tt, 105 + 2 * tt
            A = ACC + 16 * tt
            for r in range(16): a(f"v_fma_f32 v{A+r}, -v{mu}, v{CS+r}, v{A+r}")
            for r in range(16): a(f"v_fma_f32 v{A+r}, v{A+r}, v{rs}, v{BF+r}")
            for r in range(16): a(f"v_add_f32 v{A+r}, v{A+r}, |v{A+r}|")
            for r in range(16): a(f"v_mul_f32 v{A+r}, v{A+r}, v{A+r}")
            for i in range(8): a(f"v_cvt_pk_bf16_f32 v{HP+8*tt+i}, v{A+2*i}, v{A+2*i+1}")
        a(f"s_mul_i32 {sA}, {sM}, 7")
        a(f"s_add_u32 {sA}, {sA}, {sW}")
        a(f"s_lshl_b32 {sB}, {sA}, 12")
        a(f"s_mul_i32 {sD}, {sC}, {224*1024}")
        a(f"s_add_u32 {sB}, {sB}, {sD}")
        a(f"s_add_u32 {sB}, {sB}, {WS_HID}")
        a(f"s_lshl_b32 {sD}, {sA}, 2")
        a(f"s_lshl_b32 {sE_}, {sC}, 8")
        a(f"s_add_u32 {sD}, {sD}, {sE_}")
        a(f"s_add_u32 {sD}, {sD}, {WS_FLHID}")
        st = []
        for u in range(2):
            for tt in range(2):
                st.append(("dwordx4", vr(HP + 8 * tt + 4 * u, 4), "v2", sB, u * 2048 + tt * 1024))
        self.publish("hid", st, sD)
        if self.opt.get("wbl2"):
            a(f"s_cmp_eq_u32 {sW}, 0")
            a("s_cbranch_scc0 L_nowb")
            a(f"s_cmp_lt_u32 {sID}, {self.opt['wbl2']}")
            a("s_cbranch_scc0 L_nowb")
            a("buffer_wbl2 sc1")
            a.label("L_nowb")
        a("s_branch L_p4_done")
        a.label("L_p4_w7")
        SL = 64
        a("v_lshlrev_b32 v3, 4, v1")
        a(f"s_lshl_b32 {sA}, {sC}, 14")
        a(f"s_add_u32 {sA}, {sA}, {WS_ST}")
        for q in range(16):
            a(f"buffer_load_dwordx4 {vr(SL+4*q,4)}, v3, {srd(SRD_WS)}, {sA} offen offset:{(q%4)*1024} sc1")
            if q % 4 == 3 and q < 15: a(f"s_add_u32 {sA}, {sA}, 4096")
        a("s_waitcnt vmcnt(20)")
        a("s_barrier")
        a("s_waitcnt vmcnt(16)")
        a("s_barrier")
        for i in range(NW2E, 14): self.w2load(0, i)
        a(f"s_waitcnt vmcnt({14 - NW2E})")
        for tt in range(2):
            B = SL + 32 * tt
            for q in range(1, 8):
                for c in range(4): a(f"v_add_f32 v{B+c}, v{B+c}, v{B+4*q+c}")
        R = [SL + c for c in range(4)] + [SL + 32 + c for c in range(4)]
        T = [SL + 8 + c for c in range(8)]
        for sw in ("16", "32"):
            for r, t in zip(R, T): a(f"v_mov_b32 v{t}, v{r}")
            for r, t in zip(R, T): a(f"v_permlane{sw}_swap_b32 v{r}, v{t}")
            for r, t in zip(R, T): a(f"v_add_f32 v{r}, v{r}, v{t}")
        for tt in range(2):
            for u in range(2):
                s_, q_ = SL + 32 * tt + 2 * u, SL + 32 * tt + 2 * u + 1
                a(f"v_mul_f32 v{s_}, 0x{f32bits(1/512):x}, v{s_}")
                a(f"v_mul_f32 v{q_}, 0x{f32bits(1/512):x}, v{q_}")
                a(f"v_fma_f32 v{q_}, -v{s_}, v{s_}, v{q_}")
                a(f"v_max_f32 v{q_}, 0, v{q_}")
                a(f"v_add_f32 v{q_}, 0x{f32bits(1e-5):x}, v{q_}")
                a(f"v_rsq_f32 v{q_}, v{q_}")
                a(f"v_mul_f32 v{q_}, 0.5, v{q_}")
        a("v_and_b32 v3, 15, v1")
        a("v_lshlrev_b32 v3, 4, v3")
        a(f"v_add_u32 v3, {LDS_ST2}, v3")
        a("s_mov_b64 exec, 0xffff")
        a(f"ds_write_b128 v3, {vr(SL,4)}")
        a(f"ds_write_b128 v3, {vr(SL+32,4)} offset:256")
        a("s_mov_b64 exec, -1")
        a("s_waitcnt lgkmcnt(0)")
        a("s_barrier")
        if self.prof and "ffn1" not in self.skip:
            self.nstamp = self.stamp_names.index("ffn1")
            nm = list(self.stamp_names)
            self.stamp("ffn1")
            self.stamp_names = nm
            self.nstamp = len(nm)
        a.label("L_p4_done")

    def p5(self):
        a = self.a
        HB, B2R = 4, 148
        ACCS = [[64, 208], [80, 224]]
        BQ = [40, 44, 48, 52, 96, 100, 108, 112, 116, 120, 124, 128, 240, 244]
        a(f"s_lshl_b32 {sA}, {sM}, 7")
        a(f"s_lshl_b32 {sB}, {sFT}, 6")
        a(f"s_add_u32 {sA}, {sA}, {sB}")
        a(f"s_lshl_b32 {sB}, {sKH}, 5")
        a(f"s_add_u32 s89, {sA}, {sB}")
        a("v_lshrrev_b32 v3, 5, v1")
        a("v_lshlrev_b32 v3, 3, v3")
        a(f"buffer_load_dwordx2 {vr(B2R,2)}, v3, {srd(SRD_B2)}, s89 offen")
        a(f"buffer_load_dwordx2 {vr(B2R+2,2)}, v3, {srd(SRD_B2)}, s89 offen offset:16")
        a(f"s_mul_i32 {sA}, {sW}, 28")
        a(f"s_lshl_b32 {sB}, {sC}, 8")
        a(f"s_add_u32 {sA}, {sA}, {sB}")
        a(f"s_add_u32 {sA}, {sA}, {WS_FLHID}")
        a("v_min_u32 v3, 6, v1")
        a("v_lshlrev_b32 v3, 2, v3")
        self.poll_begin("hid")
        a(f"buffer_load_dword v104, v3, {srd(SRD_WS)}, {sA} offen sc1")
        a("s_waitcnt vmcnt(0)")
        a("v_cmp_ne_u32 vcc, s3, v104")
        self.poll_end("hid", sleep=1)
        self.stamp("hidok")
        a(f"s_mul_i32 {sA}, {sW}, {14*2048}")
        a(f"s_mul_i32 {sD}, {sC}, {224*1024}")
        a(f"s_add_u32 {sA}, {sA}, {sD}")
        a(f"s_add_u32 s67, {sA}, {WS_HID}")
        def bload(tt, i):
            a(f"s_add_u32 {sA}, s67, {i*2048 + tt*1024}")
            a(f"buffer_load_dwordx4 {vr(BQ[i],4)}, v2, {srd(SRD_WS)}, {sA} offen sc1")
        for i in range(14): bload(0, i)
        a(f"s_lshl_b32 {sA}, {sW}, 11")
        a(f"v_add_u32 v104, {sA}, v2")
        a("v_add_u32 v105, 65536, v104")
        def wr_piece(tt, f, half):
            p = 4 * f + 2 * tt + half
            A = ACCS[tt][f] + 8 * half
            base = "v104" if p < 4 else "v105"
            off = (p % 4) * 16384
            a(f"ds_write_b128 {base}, {vr(A,4)} offset:{off}")
            a(f"ds_write_b128 {base}, {vr(A+4,4)} offset:{off+1024}")
        issued = 14
        done = 0
        for tt in range(2):
            for i in range(14):
                n = tt * 14 + i
                a(f"s_waitcnt vmcnt({issued - n - 1})")
                for f in range(2):
                    hm = (W2H0 if f == 0 else W2H1)[i]
                    srcC = "0" if i == 0 else vr(ACCS[tt][f], 16)
                    a(f"v_mfma_f32_32x32x16_bf16 {vr(ACCS[tt][f],16)}, {vr(hm,4)}, {vr(BQ[i],4)}, {srcC}")
                if tt == 0:
                    bload(1, i); issued += 1
                if tt == 1 and i in (2, 4, 6, 8):
                    j = (i - 2) // 2
                    wr_piece(0, j >> 1, j & 1)
        self.stamp("ffn2")
        for f in range(2):
            for half in range(2): wr_piece(1, f, half)
        for i in range(4):
            a(f"v_lshlrev_b32 v{16+2*i}, 16, v{HB+i}")
            a(f"v_and_b32 v{17+2*i}, 0xffff0000, v{HB+i}")
            a(f"v_lshlrev_b32 v{24+2*i}, 16, v{B2R+i}")
            a(f"v_and_b32 v{25+2*i}, 0xffff0000, v{B2R+i}")
        for i in range(8):
            a(f"v_add_f32 v{16+i}, v{16+i}, v{24+i}")
        a("v_and_b32 v3, 31, v1")
        a("v_lshlrev_b32 v3, 10, v3")
        a("v_lshrrev_b32 v12, 5, v1")
        a("v_lshl_or_b32 v3, v12, 4, v3")
        a(f"s_lshl_b32 {sB}, {sW}, 14")
        a(f"v_add_u32 v106, {sB}, v2")
        a(f"s_lshl_b32 {sA}, {sTT}, 5")
        a(f"s_add_u32 {sA}, {sA}, {sT0}")
        a(f"s_lshl_b32 {sA}, {sA}, 10")
        a(f"s_add_u32 {sA}, {sA}, s89")
        a("s_waitcnt lgkmcnt(0)")
        a("s_barrier")
        RD = 152
        a.lg = []
        for q in range(8):
            a.ds(f"ds_read_b128 {vr(RD+8*q,4)}, v106 offset:{q*2048}", f"q{q}")
            a.ds(f"ds_read_b128 {vr(RD+8*q+4,4)}, v106 offset:{q*2048+1024}", f"q{q}")
        for q in range(8):
            a.wait_lg(f"q{q}")
            for i in range(8):
                a(f"v_add_f32 v{16+i}, v{16+i}, v{RD+8*q+i}")
        for i in range(4):
            a(f"v_cvt_pk_bf16_f32 v{88+i}, v{16+2*i}, v{17+2*i}")
        a("v_permlane32_swap_b32 v88, v90")
        a("v_permlane32_swap_b32 v89, v91")
        om = {0: "", 1: " sc1", 2: " nt", 3: " sc0 sc1"}[self.opt.get("outmod", 0)]
        a(f"buffer_store_dwordx4 v[88:91], v3, {srd(SRD_OUT)}, {sA} offen{om}")
        self.stamp("end")

    def kv_flag(self):
        a = self.a
        a(f"s_add_u32 {sD}, {sTag}, 1")
        a(f"s_lshl_b32 {sA}, {sG}, 4")
        a(f"s_add_u32 {sA}, {sA}, {WS_FLKV}")
        a(f"v_mov_b32 v8, {sD}")
        a("v_mov_b32 v9, s3")
        a("v_mov_b32 v10, 0")
        a("s_mov_b64 exec, 1")
        a(f"s_cmp_eq_u32 {sW}, 1")
        a("s_cbranch_scc1 L_flagv")
        a(f"buffer_store_dwordx2 v[8:9], v10, {srd(SRD_WS)}, {sA} offen sc1")
        a("s_branch L_flagd")
        a.label("L_flagv")
        a(f"buffer_store_dword v8, v10, {srd(SRD_WS)}, {sA} offen offset:8 sc1")
        a.label("L_flagd")
        a("s_mov_b64 exec, -1")

    def wave_reduce(self, regs, op, tmps):
        a = self.a
        for n in (8, 4, 2, 1):
            for r in regs:
                a(f"v_{op}_f32_dpp {r}, {r}, {r} row_ror:{n} row_mask:0xf bank_mask:0xf")
        for sw in ("16", "32"):
            for r, t in zip(regs, tmps):
                a(f"v_mov_b32 {t}, {r}")
            for r, t in zip(regs, tmps):
                a(f"v_permlane{sw}_swap_b32 {r}, {t}")
            for r, t in zip(regs, tmps):
                a(f"v_{op}_f32 {r}, {r}, {t}")

    def finish(self):
        a = self.a
        a.label("L_end")
        a("s_endpgm")

    def dump_regs(self, base, regs, off):
        a = self.a
        n = len(regs)
        a(f"s_lshl_b32 {sA}, {sID}, 3")
        a(f"s_add_u32 {sA}, {sA}, {sW}")
        a(f"s_mul_i32 {sA}, {sA}, {n*256}")
        a(f"s_add_u32 {sA}, {sA}, {off}")
        a("v_lshlrev_b32 v3, 2, v1")
        for i, r in enumerate(regs):
            a(f"buffer_store_dword v{r}, v3, {srd(SRD_WS)}, {sA} offen offset:{i*256}")
        a("s_waitcnt vmcnt(0)")

    def build(self):
        self.prologue()
        self.p1()
        if self.stop == "p1":
            self.dump_regs(0, list(range(32, 48)), WS_DBG)
            self.a("s_waitcnt vmcnt(0)")
            self.finish(); return self.text()
        self.p2()
        if self.stop in ("q", "attn"):
            self.a("s_waitcnt vmcnt(0)")
            self.dump_stamps()
            self.finish(); return self.text()
        for nm, fn in (("h", self.p3), ("hid", self.p4), ("out", self.p5)):
            fn()
            if self.stop == nm: break
        if self.opt.get("dirtyend"):
            a = self.a
            n = self.opt["dirtyend"]
            a(f"s_lshl_b32 {sA}, {sID}, 3")
            a(f"s_add_u32 {sA}, {sA}, {sW}")
            a(f"s_mul_i32 {sA}, {sA}, {n*1024}")
            a(f"s_add_u32 {sA}, {sA}, {WS_DBG}")
            for i in range(n):
                a(f"buffer_store_dwordx4 v[4:7], v2, {srd(SRD_WS)}, {sA} offen")
                a(f"s_add_u32 {sA}, {sA}, 1024")
        self.a("s_waitcnt vmcnt(0)")
        self.dump_stamps()
        self.finish()
        return self.text()

    def text(self):
        lines, n = hazard_pass_all(self.a.lines)
        head = f"""; @launch grid=(256,1,1) block=(512,1,1) lds=163840
.amdgcn_target "amdgcn-amd-amdhsa--gfx950"
.text
.globl {KNAME}
.p2align 8
.type {KNAME},@function
{KNAME}:
"""
        tail = f""".section .rodata,"a"
.p2align 6
.amdhsa_kernel {KNAME}
  .amdhsa_next_free_vgpr 256
  .amdhsa_next_free_sgpr 102
  .amdhsa_accum_offset 256
  .amdhsa_group_segment_fixed_size 0
  .amdhsa_kernarg_size 104
  .amdhsa_user_sgpr_count 2
  .amdhsa_user_sgpr_kernarg_segment_ptr 1
  .amdhsa_system_sgpr_workgroup_id_x 1
.end_amdhsa_kernel
"""
        return head + "\n".join(lines) + "\n" + tail

if __name__ == "__main__":
    import argparse
    ap = argparse.ArgumentParser()
    ap.add_argument("--stop", default=None)
    ap.add_argument("-o", default="k.s")
    ap.add_argument("--prof", action="store_true")
    ap.add_argument("--opt", nargs="*", default=[])
    ap.add_argument("--skip", nargs="*", default=["args", "b1", "f1a", "f1b", "f1c"])
    args = ap.parse_args()
    opt = dict((kv.split("=")[0], int(kv.split("=")[1])) for kv in args.opt)
    g = Gen(stop=args.stop, prof=args.prof, opt=opt, skip=args.skip)
    open(args.o, "w").write(g.build())
    print("wrote", args.o, "stamps:", getattr(g, "stamp_names", None))
```

```python
import sys
sys.path.insert(0, "work")
from asmlib import Asm, hazard_pass_all

NAME = "sequential_preLN__grouped_kv_mqa__dense_activation_squared_relu__prompt"
KNAME = NAME + "_kernel"

WS_EPOCH = 0x0
WS_FLKV  = 0x1000
WS_FLWT  = 0x3000
WS_FLO   = 0x4000
WS_FLH   = 0x6000
WS_FLHID = 0x8000
WS_FLWT2 = 0xA000
WS_KV    = 0x10000
WS_ST    = 0x60000
WS_O     = 0x100000
WS_H     = 0x300000
WS_HID   = 0x500000
WS_WOF   = 0xC00000
WS_W1F   = 0xC80000
WS_W2F   = 0xE40000
WS_DBG   = 0x1000000
WS_PROF  = 0x1800000
WS_SIZE  = 0x2000000

SRD_X, SRD_WQ, SRD_WK, SRD_WV = 8, 12, 16, 20
SRD_WO, SRD_W1, SRD_W2, SRD_B1 = 24, 28, 32, 36
SRD_B2, SRD_OUT, SRD_WS, SRD_T = 40, 44, 48, 52
def srd(b): return f"s[{b}:{b+3}]"
sW, sM, sC, sT0, sTag, sFast = "s56", "s57", "s58", "s59", "s60", "s61"
sFT, sTT, sKH, sXCC = "s62", "s63", "s90", "s91"
sID = "s2"
sA, sB, sD, sE_, sF, sG = "s92", "s93", "s94", "s95", "s96", "s97"
sCnt, sPh = "s98", "s99"
sW1B = "s65"
sWOB = "s66"
sPF = "s69"
NW1PRE = 26
W1H = [152 + 4 * k for k in range(26)] + [40, 44, 48, 52, 96, 100]
WOH = [8, 12, 16, 20, 60] + [108 + 4 * k for k in range(11)]
NW2E = 7
W2H0 = [8, 12, 16, 20, 24, 28, 32, 36, 56, 60, 132, 136, 140, 144]
W2H1 = W1H[:14]
sX64 = "s[4:5]"; sY64 = "s[6:7]"

LOG2E = 1.4426950408889634
def f32bits(x):
    import struct
    return struct.unpack("<I", struct.pack("<f", x))[0]
def vr(b, n): return f"v[{b}:{b+n-1}]"

class Gen:
    def __init__(self, stop=None, prof=False, opt=None, skip=()):
        self.skip = set(skip)
        self.a = Asm()
        self.stop = stop
        self.prof = prof
        self.opt = opt or {}
        self.nstamp = 0

    def stamp(self, name):
        if not self.prof: return
        if name in self.skip:
            self.skipped_last = True
            return
        self.skipped_last = False
        i = self.nstamp; self.nstamp += 1
        assert i < 16
        self.stamp_names = getattr(self, "stamp_names", []) + [name]
        a = self.a
        a(f"s_memtime s[4:5]")
        a("s_waitcnt lgkmcnt(0)")
        a("s_sub_u32 s4, s4, s100")
        a(f"v_writelane_b32 v0, s4, {i}")

    def dump_stamps(self):
        if not self.prof: return
        a = self.a
        a("s_memrealtime s[4:5]")
        a("s_waitcnt lgkmcnt(0)")
        a("s_sub_u32 s4, s4, s101")
        a("v_writelane_b32 v0, s4, 15")
        a(f"s_lshl_b32 {sA}, {sID}, 3")
        a(f"s_add_u32 {sA}, {sA}, {sW}")
        a(f"s_lshl_b32 {sA}, {sA}, 6")
        a(f"s_add_u32 {sA}, {sA}, {WS_PROF}")
        a("v_lshlrev_b32 v3, 2, v1")
        a("s_mov_b64 exec, 0xffff")
        a(f"buffer_store_dword v0, v3, {srd(SRD_WS)}, {sA} offen")
        a(f"s_lshl_b32 {sA}, {sID}, 3")
        a(f"s_add_u32 {sA}, {sA}, {sW}")
        a(f"s_cmp_lg_u32 {sA}, {self.opt.get('profw', 0)}")
        a("s_cbranch_scc1 L_nodbgst")
        a("s_load_dwordx2 s[52:53], s[0:1], 88")
        a("s_waitcnt lgkmcnt(0)")
        a("s_mov_b32 s54, 256")
        a("s_mov_b32 s55, 0x20000")
        a("buffer_store_dword v0, v3, s[52:55], 0 offen")
        a.label("L_nodbgst")
        a("s_mov_b64 exec, -1")
        a("s_waitcnt vmcnt(0)")

    def prologue(self):
        a = self.a
        a(f"s_cmp_ge_u32 {sID}, 256")
        a("s_cbranch_scc1 L_end")
        if self.prof:
            a("s_memtime s[100:101]")
            a("s_memrealtime s[6:7]")
        a("s_load_dwordx16 s[64:79], s[0:1], 0")
        a("s_load_dwordx8 s[80:87], s[0:1], 64")
        a("s_load_dwordx2 s[88:89], s[0:1], 96")
        a(f"s_and_b32 {sA}, {sID}, 7")
        a(f"s_lshr_b32 {sB}, {sID}, 6")
        a(f"s_lshl_b32 {sB}, {sB}, 3")
        a(f"s_add_u32 {sC}, {sA}, {sB}")
        a(f"s_lshr_b32 {sM}, {sID}, 3")
        a(f"s_and_b32 {sM}, {sM}, 7")
        a(f"s_lshl_b32 {sT0}, {sC}, 6")
        a(f"s_getreg_b32 {sXCC}, hwreg(HW_REG_XCC_ID)")
        a(f"s_and_b32 {sXCC}, {sXCC}, 7")
        a("v_lshrrev_b32 v3, 6, v0")
        a("v_and_b32 v1, 63, v0")
        a(f"v_readfirstlane_b32 {sW}, v3")
        a("v_lshlrev_b32 v2, 4, v1")
        a(f"s_lshr_b32 {sFT}, {sW}, 2")
        a(f"s_lshr_b32 {sTT}, {sW}, 1")
        a(f"s_and_b32 {sTT}, {sTT}, 1")
        a(f"s_and_b32 {sKH}, {sW}, 1")
        a("s_waitcnt lgkmcnt(0)")
        if self.prof:
            a("v_mov_b32 v0, 0")
            a("s_mov_b32 s101, s6")
        self.stamp("args")
        def mk(b, lo, size):
            a(f"s_mov_b32 s{b}, s{lo}")
            a(f"s_mov_b32 s{b+1}, s{lo+1}")
            a(f"s_mov_b32 s{b+2}, 0x{size:x}")
            a(f"s_mov_b32 s{b+3}, 0x20000")
        mk(SRD_X, 64, 0x200000)
        mk(SRD_WS, 88, WS_SIZE)
        a(f"s_load_dword {sTag}, s[88:89], {WS_EPOCH}")
        mk(SRD_WK, 68, 0x4000)
        mk(SRD_WV, 70, 0x4000)
        mk(SRD_WQ, 66, 0x80000)
        self.mk = mk

    def rest_srds(self):
        mk = self.mk
        mk(SRD_WO, 72, 0x80000)
        mk(SRD_W1, 76, 0x1C0000)
        mk(SRD_B1, 78, 3584)
        mk(SRD_W2, 80, 0x1C0000)
        mk(SRD_B2, 82, 1024)
        mk(SRD_OUT, 84, 0x200000)

    def dma(self, voff, srdb, soff, m0, tag, extra=""):
        a = self.a
        a(f"s_mov_b32 m0, {m0}")
        a.vmem(f"buffer_load_dwordx4 {voff}, {srd(srdb)}, {soff} offen {extra} lds", tag)

    def p1(self):
        a = self.a
        X = self.opt
        ROW = 4
        vXa, vKVo, vWAo, vXt = "v16", "v18", "v19", "v17"
        LDS_WK = 64 * 1024
        LDS_WV = 80 * 1024
        LDS_WA = 96 * 1024
        sG1 = "s67"
        a(f"s_lshl_b32 {sA}, {sM}, 3")
        a(f"s_add_u32 {sA}, {sA}, {sT0}")
        a(f"s_add_u32 {sB}, {sA}, {sW}")
        a(f"s_lshl_b32 {sB}, {sB}, 10")
        a(f"buffer_load_dwordx4 {vr(ROW,4)}, v2, {srd(SRD_X)}, {sB} offen")
        a("v_lshrrev_b32 v8, 3, v1")
        a("v_and_b32 v9, 7, v1")
        a("v_lshrrev_b32 v10, 1, v8")
        a("v_xor_b32 v10, v10, v9")
        a(f"s_and_b32 {sB}, {sM}, 1")
        a(f"s_lshl_b32 {sB}, {sB}, 2")
        a(f"v_xor_b32 v10, {sB}, v10")
        a("v_lshlrev_b32 v10, 4, v10")
        a(f"v_lshl_add_u32 {vXa}, v8, 10, v10")
        def xa_dma(gs, cs, voff):
            a(f"s_lshl_b32 {sD}, {gs}, 13")
            a(f"s_lshl_b32 {sE_}, {cs}, 7")
            a(f"s_add_u32 {sD}, {sD}, {sE_}")
            a(f"s_add_u32 {sD}, {sD}, s68")
            a(f"s_lshl_b32 {sE_}, {cs}, 13")
            a(f"s_lshl_b32 {sF}, {gs}, 10")
            a(f"s_add_u32 m0, {sE_}, {sF}")
            a(f"buffer_load_dwordx4 {voff}, {srd(SRD_X)}, {sD} offen lds")
        self.xa_dma = xa_dma
        a(f"s_lshl_b32 s68, {sT0}, 10")
        xa_dma(sM, sW, vXa)
        a("v_lshrrev_b32 v8, 1, v1")
        a("v_and_b32 v9, 0x13, v8")
        a("v_bfe_u32 v10, v8, 2, 1")
        a("v_lshl_or_b32 v9, v10, 3, v9")
        a("v_bfe_u32 v10, v8, 3, 1")
        a("v_lshl_or_b32 v9, v10, 2, v9")
        a("v_lshlrev_b32 v9, 5, v9")
        a("v_and_b32 v10, 1, v1")
        a(f"v_lshl_or_b32 {vKVo}, v10, 4, v9")
        a(f"s_lshl_b32 {sD}, {sW}, 11")
        for k in range(2):
            a(f"s_add_u32 m0, {sD}, {LDS_WK}")
            a(f"buffer_load_dwordx4 {vKVo}, {srd(SRD_WK)}, {sD} offen lds")
            a(f"s_add_u32 m0, {sD}, {LDS_WV}")
            a(f"buffer_load_dwordx4 {vKVo}, {srd(SRD_WV)}, {sD} offen lds")
            if k == 0: a(f"s_add_u32 {sD}, {sD}, 1024")
        a("v_lshrrev_b32 v8, 3, v1")
        a("v_and_b32 v9, 7, v1")
        a("v_bfe_u32 v10, v1, 4, 1")
        a("v_lshlrev_b32 v10, 2, v10")
        a("v_xor_b32 v9, v9, v10")
        a("v_lshlrev_b32 v9, 4, v9")
        a(f"v_lshl_add_u32 {vWAo}, v8, 10, v9")
        a(f"s_add_u32 {sG1}, {sM}, 1")
        a(f"s_and_b32 {sG1}, {sG1}, 7")
        NBULK = 20
        def bulk():
            a(f"s_sub_u32 {sA}, {sW}, 2")
            a(f"s_add_u32 {sB}, {sA}, 2")
            for i in range(9):
                a(f"s_lshr_b32 s4, {sB}, 3")
                a(f"s_add_u32 s4, s4, 1")
                a(f"s_and_b32 s5, s4, 1")
                a(f"s_lshl_b32 s5, s5, 6")
                a(f"v_xor_b32 {vXt}, s5, {vXa}")
                a(f"s_add_u32 s4, s4, {sM}")
                a(f"s_and_b32 s4, s4, 7")
                a(f"s_and_b32 s5, {sB}, 7")
                xa_dma("s4", "s5", vXt)
                if i < 8: a(f"s_add_u32 {sB}, {sB}, 6")
            a(f"s_lshl_b32 {sD}, {sA}, 13")
            a(f"s_lshl_b32 {sE_}, {sM}, 7")
            a(f"s_add_u32 {sD}, {sD}, {sE_}")
            a(f"s_lshl_b32 {sE_}, {sA}, 10")
            a(f"s_add_u32 {sE_}, {sE_}, {LDS_WA}")
            for i in range(11):
                if i == 10:
                    a(f"s_cmp_ge_u32 {sA}, 4")
                    a("s_cbranch_scc1 L_blk_done")
                a(f"s_mov_b32 m0, {sE_}")
                a(f"buffer_load_dwordx4 {vWAo}, {srd(SRD_WQ)}, {sD} offen lds")
                if i < 10:
                    a(f"s_add_u32 {sD}, {sD}, {6*8192}")
                    a(f"s_add_u32 {sE_}, {sE_}, {6*1024}")
            a.label("L_blk_done")
        early = X.get("bulk", 0) == 1
        if early:
            a("s_barrier")
            a(f"s_cmp_lt_u32 {sW}, 2")
            a("s_cbranch_scc1 L_nobulk0")
            bulk()
            a.label("L_nobulk0")
        self.rest_srds()
        XF, WF = 64, 128
        a(f"s_cmp_ge_u32 {sW}, 2")
        a("s_cbranch_scc1 L_no_ones")
        for i in range(64):
            a(f"v_mov_b32 v{XF+i}, 0x3f803f80" if i == 0 else f"v_mov_b32 v{XF+i}, v{XF}")
        a.label("L_no_ones")
        if early:
            a(f"s_cmp_lt_u32 {sW}, 2")
            a("s_cbranch_scc1 L_rw0")
            a("s_waitcnt vmcnt(24)")
            a("s_branch L_rw1")
            a.label("L_rw0")
            a("s_waitcnt vmcnt(5)")
            a.label("L_rw1")
        else:
            a("s_waitcnt vmcnt(5)")
        a("s_mov_b32 s3, 0x3f803f80")
        a(f"v_dot2_f32_bf16 v8, v{ROW}, s3, 0")
        a(f"v_dot2_f32_bf16 v9, v{ROW}, v{ROW}, 0")
        for i in range(1, 4):
            a(f"v_dot2_f32_bf16 v8, v{ROW+i}, s3, v8")
            a(f"v_dot2_f32_bf16 v9, v{ROW+i}, v{ROW+i}, v9")
        self.wave_reduce(["v8", "v9"], "add", ["v10", "v11"])
        a(f"v_mul_f32 v8, 0x{f32bits(1/512):x}, v8")
        a(f"v_mul_f32 v9, 0x{f32bits(1/512):x}, v9")
        a("v_fma_f32 v9, -v8, v8, v9")
        a("v_max_f32 v9, 0, v9")
        a(f"v_add_f32 v9, 0x{f32bits(1e-5):x}, v9")
        a("v_rsq_f32 v9, v9")
        a(f"s_lshl_b32 {sA}, {sW}, 3")
        a(f"s_lshl_b32 {sB}, {sG1}, 10")
        a(f"s_add_u32 {sA}, {sA}, {sB}")
        a(f"v_lshlrev_b32 v10, 13, v1")
        a(f"v_add_u32 v10, {sA}, v10")
        a("s_mov_b64 exec, 3")
        a("ds_write_b64 v10, v[8:9]")
        a("s_mov_b64 exec, -1")
        if early:
            a(f"s_cmp_lt_u32 {sW}, 2")
            a("s_cbranch_scc1 L_b1a")
            a("s_waitcnt vmcnt(19) lgkmcnt(0)")
            a("s_branch L_b1b")
            a.label("L_b1a")
            a("s_waitcnt vmcnt(0) lgkmcnt(0)")
            a.label("L_b1b")
        else:
            a("s_waitcnt vmcnt(0) lgkmcnt(0)")
        a("s_barrier")
        self.stamp("b1")
        a(f"s_cmp_lt_u32 {sW}, 2")
        a("s_cbranch_scc1 L_kv_go")
        if not early: bulk()
        a("s_branch L_kv_done")
        a.label("L_kv_go")
        a("v_and_b32 v8, 7, v1")
        a(f"s_lshl_b32 {sA}, {sM}, 3")
        a(f"v_add_u32 v8, {sA}, v8")
        a("v_bfe_u32 v9, v8, 1, 3")
        a("v_lshrrev_b32 v10, 4, v1")
        a("v_xor_b32 v9, v9, v10")
        a("v_lshlrev_b32 v9, 4, v9")
        a("v_lshl_add_u32 v20, v8, 7, v9")
        a("v_xor_b32 v21, 64, v20")
        a("v_bfe_u32 v8, v1, 4, 1")
        a("v_bfe_u32 v9, v1, 2, 2")
        a("v_lshl_add_u32 v8, v8, 2, v9")
        a("v_lshlrev_b32 v8, 5, v8")
        a("v_lshrrev_b32 v9, 5, v1")
        a("v_lshl_add_u32 v8, v9, 9, v8")
        a("v_and_b32 v9, 3, v1")
        a("v_lshl_add_u32 v8, v9, 3, v8")
        a(f"s_lshl_b32 {sA}, {sW}, 14")
        a(f"s_add_u32 {sA}, {sA}, {LDS_WK}")
        a(f"v_add_u32 v22, {sA}, v8")
        a("s_mov_b32 exec_lo, 0x00ff00ff")
        a("s_mov_b32 exec_hi, 0x00ff00ff")
        for s in range(16):
            a.ds(f"ds_read_b128 {vr(XF+4*s,4)}, {'v20' if s%2==0 else 'v21'} offset:{(s>>1)*8192}", f"x{s}")
        a("s_mov_b64 exec, -1")
        D = 24
        a(f"s_cmp_eq_u32 {sW}, 1")
        a("s_cbranch_scc1 L_vwave")
        saved_lg = list(a.lg)
        for wave in ("K", "V"):
            a.lg = list(saved_lg)
            if wave == "V": a.label("L_vwave")
            def wread(s):
                a.ds(f"ds_read_b64_tr_b16 {vr(WF+4*s,2)}, v22 offset:{s*1024}", f"w{s}")
                a.ds(f"ds_read_b64_tr_b16 {vr(WF+4*s+2,2)}, v22 offset:{s*1024+256}", f"w{s}")
            for s in range(4): wread(s)
            for s in range(16):
                a.wait_lg(f"w{s}")
                srcC = "0" if s == 0 else vr(D, 4)
                if wave == "K":
                    a(f"v_mfma_f32_16x16x32_bf16 {vr(D,4)}, {vr(WF+4*s,4)}, {vr(XF+4*s,4)}, {srcC}")
                else:
                    a(f"v_mfma_f32_16x16x32_bf16 {vr(D,4)}, {vr(XF+4*s,4)}, {vr(WF+4*s,4)}, {srcC}")
                if s + 4 < 16: wread(s + 4)
            a(f"s_lshl_b32 {sA}, {sC}, 3")
            a(f"s_add_u32 {sA}, {sA}, {sM}")
            a(f"s_lshl_b32 {sB}, {sA}, 10")
            a(f"s_add_u32 {sB}, {sB}, {WS_KV}")
            if wave == "K":
                a("v_and_b32 v8, 7, v1")
                a("v_lshlrev_b32 v8, 3, v8")
                a(f"s_lshl_b32 s4, {sG1}, 10")
                a(f"v_add_u32 v8, s4, v8")
                a.ds("ds_read_b64 v[10:11], v8", "st")
                for r in range(4):
                    a(f"v_mov_b32_dpp v{28+r}, v{D+r} row_ror:8 row_mask:0xf bank_mask:0xf")
                a.wait_lg("st")
                for r in range(4):
                    a(f"v_fma_f32 v{D+r}, -v10, v{28+r}, v{D+r}")
                for r in range(4):
                    a(f"v_mul_f32 v{D+r}, v11, v{D+r}")
                a(f"v_cvt_pk_bf16_f32 v32, v{D}, v{D+1}")
                a(f"v_cvt_pk_bf16_f32 v33, v{D+2}, v{D+3}")
                a("v_mov_b32 v34, v32")
                a("v_mov_b32 v35, v33")
                a("v_permlane32_swap_b32 v32, v34")
                a("v_permlane32_swap_b32 v33, v35")
                a("v_bfe_u32 v8, v1, 4, 1")
                a("v_and_b32 v9, 7, v1")
                a("v_lshlrev_b32 v9, 4, v9")
                a("v_lshl_add_u32 v8, v8, 7, v9")
                a("s_mov_b32 exec_lo, 0x00ff00ff")
                a("s_mov_b32 exec_hi, 0")
                a(f"buffer_store_dwordx4 v[32:35], v8, {srd(SRD_WS)}, {sB} offen sc1")
                a("s_mov_b64 exec, -1")
                a("v_dot2_f32_bf16 v12, v32, v32, 0")
                for i in (33, 34, 35):
                    a(f"v_dot2_f32_bf16 v12, v{i}, v{i}, v12")
                a("v_mov_b32 v13, v12")
                a("v_permlane16_swap_b32 v12, v13")
                a("v_add_f32 v12, v12, v13")
                a("v_and_b32 v13, 8, v1")
                a("v_cmp_eq_u32 vcc, 0, v13")
                a("v_cndmask_b32 v12, 0, v12, vcc")
                for n in (8, 4, 2, 1):
                    a(f"v_max_f32_dpp v12, v12, v12 row_ror:{n} row_mask:0xf bank_mask:0xf")
                a(f"v_readlane_b32 {sD}, v12, 0")
                a(f"s_add_u32 {sD}, {sD}, 8")
                a(f"s_and_b32 {sD}, {sD}, 0xfffffff8")
                a(f"s_or_b32 {sD}, {sD}, {sXCC}")
                a(f"s_mov_b32 s3, {sD}")
                a(f"s_mov_b32 {sG}, {sA}")
                a("s_branch L_kv_fin")
            else:
                a("v_bfe_u32 v8, v1, 4, 1")
                a("v_lshlrev_b32 v8, 5, v8")
                a(f"s_lshl_b32 s4, {sG1}, 10")
                a(f"s_add_u32 s4, s4, 8192")
                a(f"v_add_u32 v8, s4, v8")
                a.ds("ds_read_b128 v[12:15], v8", "st")
                a.ds("ds_read_b128 v[36:39], v8 offset:16", "st")
                a("v_and_b32 v9, 7, v1")
                a("v_lshlrev_b32 v9, 3, v9")
                a(f"v_add_u32 v40, s4, v9")
                a.ds("ds_read_b64 v[42:43], v40", "st")
                a(f"v_mov_b32 v28, v{D}")
                a(f"v_mov_b32 v29, v{D}")
                a("v_permlane32_swap_b32 v28, v29")
                a.wait_lg("st")
                st = [(12, 13), (14, 15), (36, 37), (38, 39)]
                for r in range(4):
                    a(f"v_fma_f32 v{D+r}, -v{st[r][0]}, v29, v{D+r}")
                for r in range(4):
                    a(f"v_mul_f32 v{D+r}, v{st[r][1]}, v{D+r}")
                a(f"v_cvt_pk_bf16_f32 v32, v{D}, v{D+1}")
                a(f"v_cvt_pk_bf16_f32 v33, v{D+2}, v{D+3}")
                a("v_mov_b32 v34, v32")
                a("v_mov_b32 v35, v33")
                a("v_permlane16_swap_b32 v32, v34")
                a("v_permlane16_swap_b32 v33, v35")
                a("v_add_u32 v8, 256, v2")
                a("s_mov_b64 exec, 0xffff")
                a(f"buffer_store_dwordx4 v[32:35], v8, {srd(SRD_WS)}, {sB} offen sc1")
                a("s_mov_b64 exec, 0xff")
                a("v_add_u32 v9, 512, v9")
                a(f"buffer_store_dwordx2 v[42:43], v9, {srd(SRD_WS)}, {sB} offen sc1")
                a("s_mov_b64 exec, -1")
                a(f"s_mov_b32 {sG}, {sA}")
        a.lg = []
        a.label("L_kv_fin")
        self.stamp("kvst")
        a(f"v_xor_b32 {vXt}, 64, {vXa}")
        xa_dma(sG1, sW, vXt)
        a("s_waitcnt vmcnt(1)")
        self.kv_flag()
        self.stamp("kvfl")
        a("s_waitcnt vmcnt(1)")
        a("s_branch L_b2")
        a.label("L_kv_done")
        a("s_waitcnt vmcnt(0)")
        a.label("L_b2")
        a("s_barrier")
        self.stamp("b2")
        a.vm = []
        AF, BF, ACC, CS = 64, 128, 32, 48
        vAe, vAo = "v20", "v21"
        vB = ["v22", "v23", "v24", "v25"]
        a("v_bfe_u32 v8, v1, 2, 2")
        a("v_lshrrev_b32 v9, 5, v1")
        a("v_lshl_add_u32 v9, v9, 3, v8")
        a("v_lshlrev_b32 v9, 7, v9")
        a("v_bfe_u32 v10, v1, 4, 1")
        a(f"v_xor_b32 v10, {sKH}, v10")
        a("v_lshlrev_b32 v10, 5, v10")
        a("v_and_b32 v11, 3, v1")
        a("v_lshl_add_u32 v10, v11, 3, v10")
        a(f"s_lshl_b32 {sA}, {sFT}, 6")
        a(f"v_add_u32 v10, {sA}, v10")
        a("v_bfe_u32 v11, v1, 3, 1")
        a("v_lshlrev_b32 v11, 6, v11")
        a("v_xor_b32 v10, v10, v11")
        a("v_add_u32 v9, v9, v10")
        a(f"s_lshl_b32 {sA}, {sKH}, 15")
        a(f"s_add_u32 {sA}, {sA}, {LDS_WA}")
        a(f"s_lshl_b32 {sB}, {sTT}, 11")
        a(f"s_add_u32 {sD}, {sA}, {sB}")
        a(f"v_add_u32 {vAe}, {sD}, v9")
        a(f"s_sub_u32 {sD}, {sA}, {sB}")
        a(f"v_add_u32 {vAo}, {sD}, v9")
        a("v_and_b32 v8, 31, v1")
        a("v_bfe_u32 v9, v1, 1, 3")
        a("v_lshrrev_b32 v10, 5, v1")
        a("v_xor_b32 v9, v9, v10")
        a("v_lshlrev_b32 v9, 4, v9")
        a("v_lshl_add_u32 v8, v8, 7, v9")
        a(f"s_lshl_b32 {sA}, {sKH}, 15")
        a(f"s_lshl_b32 {sB}, {sTT}, 12")
        a(f"s_add_u32 {sA}, {sA}, {sB}")
        a(f"v_add_u32 v8, {sA}, v8")
        a(f"s_lshl_b32 {sB}, {sTT}, 5")
        a(f"v_xor_b32 {vB[0]}, {sB}, v8")
        a(f"v_xor_b32 {vB[1]}, 32, {vB[0]}")
        a(f"v_xor_b32 {vB[2]}, 64, {vB[0]}")
        a(f"v_xor_b32 {vB[3]}, 96, {vB[0]}")
        a("s_mov_b32 s5, 0x3f803f80")
        NB = 5
        def qread(p):
            c, q = p >> 2, p & 3
            sl = p % NB
            va = vAe if q % 2 == 0 else vAo
            off = c * 8192 + q * 2048
            a.ds(f"ds_read_b64_tr_b16 {vr(AF+4*sl,2)}, {va} offset:{off}", f"q{p}")
            a.ds(f"ds_read_b64_tr_b16 {vr(AF+4*sl+2,2)}, {va} offset:{off+512}", f"q{p}")
            a.ds(f"ds_read_b128 {vr(BF+4*sl,4)}, {vB[q]} offset:{c*8192}", f"q{p}")
        PRE = 4
        self.stamp("q0")
        for p in range(PRE): qread(p)
        for p in range(16):
            sl = p % NB
            a.wait_lg(f"q{p}")
            srcC = "0" if p == 0 else vr(ACC, 16)
            a(f"v_mfma_f32_32x32x16_bf16 {vr(ACC,16)}, {vr(AF+4*sl,4)}, {vr(BF+4*sl,4)}, {srcC}")
            if p % 2 == 0:
                for i in range(4):
                    src2 = "0" if (p == 0 and i == 0) else f"v{CS}"
                    a(f"v_dot2_f32_bf16 v{CS}, v{AF+4*sl+i}, s5, {src2}")
            nx = p + PRE
            if nx < 16: qread(nx)
        self.stamp("q1")
        LDS_E = 64 * 1024
        LDS_CS = 80 * 1024
        a(f"s_lshl_b32 {sA}, {sW}, 11")
        a(f"s_add_u32 {sA}, {sA}, {LDS_E}")
        a(f"v_add_u32 v8, {sA}, v2")
        a(f"ds_write_b128 v8, {vr(ACC+8,4)}")
        a(f"ds_write_b128 v8, {vr(ACC+12,4)} offset:1024")
        a(f"v_mov_b32 v9, v{CS}")
        a(f"v_permlane32_swap_b32 v{CS}, v9")
        a(f"v_add_f32 v9, v{CS}, v9")
        a("v_and_b32 v10, 31, v1")
        a(f"s_lshl_b32 {sA}, {sKH}, 4")
        a(f"v_xor_b32 v10, {sA}, v10")
        a(f"s_lshl_b32 {sA}, {sKH}, 1")
        a(f"s_add_u32 {sA}, {sA}, {sTT}")
        a(f"s_lshl_b32 {sA}, {sA}, 1")
        a(f"s_add_u32 {sA}, {sA}, {sFT}")
        a(f"s_lshl_b32 {sA}, {sA}, 7")
        a(f"s_add_u32 {sA}, {sA}, {LDS_CS}")
        a("v_lshlrev_b32 v10, 2, v10")
        a(f"v_add_u32 v10, {sA}, v10")
        a("ds_write_b32 v10, v9")
        a("s_waitcnt lgkmcnt(0)")
        a("s_barrier")
        self.stamp("q2")
        a.lg = []
        a(f"s_xor_b32 {sA}, {sW}, 1")
        a(f"s_lshl_b32 {sA}, {sA}, 11")
        a(f"s_add_u32 {sA}, {sA}, {LDS_E}")
        a(f"v_add_u32 v8, {sA}, v2")
        a.ds(f"ds_read_b128 {vr(64,4)}, v8", "e")
        a.ds(f"ds_read_b128 {vr(68,4)}, v8 offset:1024", "e")
        a("v_lshrrev_b32 v9, 5, v1")
        a("v_lshlrev_b32 v9, 4, v9")
        a(f"s_lshl_b32 {sA}, {sFT}, 7")
        a(f"s_lshl_b32 {sB}, {sKH}, 6")
        a(f"s_add_u32 {sA}, {sA}, {sB}")
        a(f"s_add_u32 {sA}, {sA}, {LDS_CS}")
        a(f"v_add_u32 v9, {sA}, v9")
        for q in range(4):
            a.ds(f"ds_read_b128 {vr(72+8*q,4)}, v9 offset:{q*256}", "cs")
            a.ds(f"ds_read_b128 {vr(76+8*q,4)}, v9 offset:{q*256+32}", "cs")
        a.wait_lg("e")
        for i in range(8):
            a(f"v_add_f32 v{ACC+i}, v{ACC+i}, v{64+i}")
        a.wait_lg("cs")
        for i in range(8):
            a(f"v_add_f32 v{72+i}, v{72+i}, v{80+i}")
            a(f"v_add_f32 v{88+i}, v{88+i}, v{96+i}")
        for i in range(8):
            a(f"v_add_f32 v{40+i}, v{72+i}, v{88+i}")


    def poll_begin(self, name, limit=200000):
        a = self.a
        a(f"s_mov_b32 {sCnt}, {limit}")
        a.label(f"L_poll_{name}")
    def poll_end(self, name, sleep=1):
        a = self.a
        a(f"s_cbranch_vccz L_pollok_{name}")
        a(f"s_sub_u32 {sCnt}, {sCnt}, 1")
        a(f"s_cmp_eq_u32 {sCnt}, 0")
        a(f"s_cbranch_scc1 L_pollok_{name}")
        if sleep: a(f"s_sleep {sleep}")
        a(f"s_branch L_poll_{name}")
        a.label(f"L_pollok_{name}")

    def p2(self):
        a = self.a
        X = self.opt
        LDS_E = 132 * 1024
        Q, NEGM, S0, S1, IDX, O, KF, VF = 4, 8, 24, 40, 56, 64, 80, 88
        vKa, vVa, vKb, vVb = "v104", "v105", "v106", "v107"
        vT1, vT2 = "v108", "v109"
        PL = 110
        WD = 112
        W1 = 128
        sTG = "s3"
        a(f"s_add_u32 {sTG}, {sTag}, 1")
        self.stamp("b3")
        if X.get("kvsleep", 0):
            a(f"s_sleep {X['kvsleep']}")
        LDS_BC = 156 * 1024
        vDK, vDV = "v59", "v60"
        a("v_bfe_u32 v59, v1, 3, 2")
        a("v_lshlrev_b32 v59, 10, v59")
        a("v_and_b32 v13, 7, v1")
        a("v_lshl_or_b32 v59, v13, 4, v59")
        a("v_lshrrev_b32 v13, 5, v1")
        a("v_lshl_or_b32 v59, v13, 7, v59")
        a("v_lshrrev_b32 v60, 4, v1")
        a("v_lshlrev_b32 v60, 10, v60")
        a("v_and_b32 v13, 15, v1")
        a("v_lshl_or_b32 v60, v13, 4, v60")
        a("v_add_u32 v60, 256, v60")
        sRot = "s64"
        a(f"s_lshr_b32 {sRot}, {sID}, 3")
        a(f"s_lshl_b32 {sRot}, {sRot}, 1")
        a("v_bfe_u32 v8, v1, 3, 2")
        a("v_and_b32 v9, 7, v1")
        a("v_lshlrev_b32 v9, 3, v9")
        a("v_lshl_add_u32 v8, v8, 10, v9")
        a(f"s_lshl_b32 {sA}, {sC}, 3")
        a(f"s_lshl_b32 {sB}, {sTT}, 2")
        a(f"s_add_u32 {sA}, {sA}, {sB}")
        a(f"s_lshl_b32 {sA}, {sA}, 10")
        a(f"s_add_u32 s65, {sA}, {WS_KV + 512}")
        allpoll = X.get("allpoll", 0)
        if not allpoll:
            a(f"s_cmp_eq_u32 {sW}, 7")
            a("s_cbranch_scc0 L_nopollkv")
        a("v_lshlrev_b32 v3, 6, v1")
        a(f"s_mov_b32 {sA}, {WS_FLKV}")
        self.poll_begin("kv")
        for q in range(4):
            a(f"buffer_load_dwordx4 {vr(64+4*q,4)}, v3, {srd(SRD_WS)}, {sA} offen offset:{16*q} sc1")
        a("s_waitcnt vmcnt(0)")
        a(f"v_xor_b32 v80, {sTG}, v64")
        a(f"v_xor_b32 v81, {sTG}, v66")
        a("v_or_b32 v80, v80, v81")
        for q in range(1, 4):
            a(f"v_xor_b32 v81, {sTG}, v{64+4*q}")
            a("v_or_b32 v80, v80, v81")
            a(f"v_xor_b32 v81, {sTG}, v{66+4*q}")
            a("v_or_b32 v80, v80, v81")
        a("v_cmp_ne_u32 vcc, 0, v80")
        self.poll_end("kv", sleep=X.get("kvsl", 2))
        if not allpoll:
            a.label("L_nopollkv")
            a("s_barrier")
        self.stamp("kvok")
        a(f"buffer_load_dwordx2 v[10:11], v8, {srd(SRD_WS)}, s65 offen sc1")
        def kv_tile(spos):
            a(f"s_add_u32 {sD}, {spos}, {sRot}")
            a(f"s_and_b32 {sD}, {sD}, 63")
            a(f"s_lshl_b32 {sD}, {sD}, 12")
            a(f"s_add_u32 {sD}, {sD}, {WS_KV}")
            a(f"s_lshl_b32 {sE_}, {spos}, 11")
            a(f"s_mov_b32 m0, {sE_}")
            a(f"buffer_load_dwordx4 {vDK}, {srd(SRD_WS)}, {sD} offen sc1 lds")
            a(f"s_add_u32 {sE_}, {sE_}, 1024")
            a(f"s_mov_b32 m0, {sE_}")
            a(f"buffer_load_dwordx4 {vDV}, {srd(SRD_WS)}, {sD} offen sc1 lds")
        a(f"s_mov_b32 {sF}, {sW}")
        kv_tile(sF)
        a(f"s_add_u32 {sF}, {sW}, 8")
        kv_tile(sF)
        self.wt_issue()
        a(f"s_cmp_eq_u32 {sW}, 7")
        a("s_cbranch_scc0 L_nobc")
        a("v_and_b32 v80, -8, v65")
        for q in range(1, 4):
            a(f"v_and_b32 v81, -8, v{65+4*q}")
            a("v_max_f32 v80, v80, v81")
        a(f"v_xor_b32 v82, {sXCC}, v65")
        for q in range(1, 4):
            a(f"v_xor_b32 v81, {sXCC}, v{65+4*q}")
            a("v_or_b32 v82, v82, v81")
        a("v_and_b32 v82, 7, v82")
        a("v_cmp_ne_u32 vcc, 0, v82")
        a(f"s_lshl_b32 {sA}, {sC}, 1")
        a(f"s_lshr_b64 {sX64}, vcc, {sA}")
        a(f"s_and_b32 {sFast}, s4, 3")
        if X.get("slow"): a(f"s_mov_b32 {sFast}, 1")
        self.wave_reduce(["v80"], "max", ["v81"])
        a("v_sqrt_f32 v80, v80")
        a(f"v_mov_b32 v81, {sFast}")
        a(f"v_mov_b32 v82, {LDS_BC}")
        a("s_mov_b64 exec, 1")
        a("ds_write_b64 v82, v[80:81]")
        a("s_mov_b64 exec, -1")
        a.label("L_nobc")
        a(f"s_or_b32 {sA}, {sID}, {sW}")
        a(f"s_cmp_lg_u32 {sA}, 0")
        a("s_cbranch_scc1 L_noepoch")
        a(f"v_mov_b32 v81, {sTG}")
        a("v_mov_b32 v82, 0")
        a("s_mov_b64 exec, 1")
        a(f"buffer_store_dword v81, v82, {srd(SRD_WS)}, 0 offen")
        a("s_mov_b64 exec, -1")
        a.label("L_noepoch")
        a("s_waitcnt vmcnt(6)")
        a(f"v_mul_f32 v11, 0x{f32bits(0.25*LOG2E):x}, v11")
        for i in range(8):
            a(f"v_fma_f32 v{32+i}, -v10, v{40+i}, v{32+i}")
        for i in range(8):
            a(f"v_mul_f32 v{32+i}, v11, v{32+i}")
        for i in range(4):
            a(f"v_cvt_pk_bf16_f32 v{Q+i}, v{32+2*i}, v{33+2*i}")
        if self.stop == "q":
            self.dump_regs(0, [Q, Q+1, Q+2, Q+3], WS_DBG)
            return
        a(f"v_dot2_f32_bf16 v12, v{Q}, v{Q}, 0")
        for i in range(1, 4):
            a(f"v_dot2_f32_bf16 v12, v{Q+i}, v{Q+i}, v12")
        a("v_mov_b32 v13, v12")
        a("v_permlane32_swap_b32 v12, v13")
        a("v_add_f32 v12, v12, v13")
        a("v_sqrt_f32 v12, v12")
        a(f"v_mul_f32 v12, 0x{f32bits(1.0078125):x}, v12")
        def bound_check():
            a("v_mul_f32 v12, v12, v62")
            a(f"v_cmp_lt_f32 vcc, 0x{f32bits(48.0):x}, v12")
            a("v_cmp_u_f32 s[4:5], v12, v12")
            a("s_or_b64 vcc, vcc, s[4:5]")
            a("s_cmp_lg_u64 vcc, 0")
            a(f"s_cselect_b32 {sG}, 1, 0")
            a(f"v_readfirstlane_b32 {sFast}, v63")
            if X.get("forcefb"): a(f"s_mov_b32 {sG}, 1")
        a(f"v_mov_b32 v{VF}, 0x3f803f80")
        for i in range(1, 16):
            a(f"v_mov_b32 v{VF+i}, v{VF}")
        for i in range(16):
            a(f"v_mov_b32 v{O+i}, 0")
        a(f"v_mov_b32 v{IDX}, 0xdddddddd")
        a(f"v_mov_b32 {vKa}, v2")
        a(f"v_add_u32 {vKb}, 0x10000, v2")
        a("v_and_b32 v3, 15, v1")
        a("v_lshlrev_b32 v3, 4, v3")
        a("v_lshrrev_b32 v61, 5, v1")
        a("v_lshl_or_b32 v3, v61, 8, v3")
        a(f"v_add_u32 {vVa}, 1024, v3")
        a(f"v_add_u32 {vVb}, 0x10000, {vVa}")
        self.wt_addr(vT1, vT2)
        self.wt_poll_addr()
        a("s_mov_b32 s6, 0x0000ffff")
        a("s_mov_b32 s7, 0x0000ffff")
        a(f"v_mov_b32 v61, {LDS_BC}")
        a("s_waitcnt vmcnt(2) lgkmcnt(0)")
        a("s_barrier")
        self.stamp("b4")
        a(f"s_cmp_eq_u32 {sFT}, 0")
        a("s_cbranch_scc1 L_clsA")
        a(f"s_add_u32 {sF}, {sW}, 12")
        a(f"s_mov_b32 {sCnt}, 12")
        a.label("L_kvrest")
        kv_tile(sF)
        a(f"s_add_u32 {sF}, {sF}, 4")
        a(f"s_sub_u32 {sCnt}, {sCnt}, 1")
        a(f"s_cmp_lg_u32 {sCnt}, 0")
        a("s_cbranch_scc1 L_kvrest")
        a("s_setprio 1")
        a("s_waitcnt vmcnt(0)")
        a("s_barrier")
        a(f"s_mov_b32 {sPh}, 1")
        a("s_branch L_clsD")
        a.label("L_clsA")
        a("s_setprio 2")
        a(f"s_mov_b32 {sPh}, 0")
        a.label("L_clsD")

        def kread(t):
            base = vKa if t < 32 else vKb
            a.ds(f"ds_read_b128 {vr(KF+4*(t%2),4)}, {base} offset:{(t%32)*2048}", f"K{t}")
        def vread(t):
            base = vVa if t < 32 else vVb
            a("s_mov_b64 exec, s[6:7]")
            a.ds(f"ds_read_b128 {vr(VF+8*(t%2),4)}, {base} offset:{(t%32)*2048}", f"V{t}")
            a.ds(f"ds_read_b128 {vr(VF+8*(t%2)+4,4)}, {base} offset:{(t%32)*2048+512}", f"V{t}")
            a("s_mov_b64 exec, -1")
        def Sr(t): return S0 if t % 2 == 0 else S1
        def ms(t):
            a.wait_lg(f"K{t}")
            a(f"v_mfma_f32_32x32x16_bf16 {vr(Sr(t),16)}, {vr(KF+4*(t%2),4)}, {vr(Q,4)}, 0")
        def sm(t, half):
            a.wait_lg(f"V{t}")
            a(f"v_smfmac_f32_32x32x32_bf16 {vr(O,16)}, {vr(VF+8*(t%2)+4*half,4)}, {vr(Sr(t)+8*half,8)}, v{IDX}")
        def E(t, lo, hi):
            for i in range(lo, hi + 1): a(f"v_exp_f32 v{Sr(t)+i}, v{Sr(t)+i}")

        TA = dict(wt=X.get("Awt", 10), fl=X.get("Afl", 17), bar=13, sw=X.get("sw", 50))
        TB = dict(wt=X.get("Bwt", 0), fl=X.get("Bfl", 2))
        TPOLL, TCHK, TLD0 = X.get("tpoll", 30), X.get("tchk", 32), X.get("tld", 32)
        def cond(cls, name, fn):
            lab = a.newlabel(f"L_{name}")
            a(f"s_cmp_eq_u32 {sFT}, {cls}")
            a(f"s_cbranch_scc0 {lab}")
            fn()
            a.label(lab)
        def b_wt():
            a("s_waitcnt vmcnt(0)")
            a(f"ds_read_b64_tr_b16 v[{WD}:{WD+1}], {vT1}")
            a(f"ds_read_b64_tr_b16 v[{WD+2}:{WD+3}], {vT1} offset:1024")
            a(f"ds_read_b64_tr_b16 v[{WD+4}:{WD+5}], {vT2}")
            a(f"ds_read_b64_tr_b16 v[{WD+6}:{WD+7}], {vT2} offset:1024")
            a("s_waitcnt lgkmcnt(0)")
            a(f"buffer_store_dwordx4 v[{WD}:{WD+3}], v2, {srd(SRD_WS)}, s88 offen sc1")
            a("s_add_u32 s88, s88, s89")
            a(f"buffer_store_dwordx4 v[{WD+4}:{WD+7}], v2, {srd(SRD_WS)}, s88 offen sc1")
        def b_fl():
            a("s_waitcnt vmcnt(0)")
            a(f"s_lshl_b32 {sA}, {sID}, 3")
            a(f"s_add_u32 {sA}, {sA}, {sW}")
            a(f"s_lshl_b32 {sA}, {sA}, 2")
            a(f"s_add_u32 {sA}, {sA}, {WS_FLWT2}")
            a(f"v_mov_b32 v{WD}, {sTG}")
            a(f"v_mov_b32 v{WD+1}, 0")
            a("s_mov_b64 exec, 1")
            a(f"buffer_store_dword v{WD}, v{WD+1}, {srd(SRD_WS)}, {sA} offen sc1")
            a("s_mov_b64 exec, -1")
        def b_bar():
            lab = a.newlabel("L_b5")
            a(f"s_cmp_eq_u32 {sPh}, 1")
            a(f"s_cbranch_scc1 {lab}")
            a("s_barrier")
            a.label(lab)
        def poll_issue():
            a(f"buffer_load_dword v{PL}, v57, {srd(SRD_WS)}, 0 offen sc1")
            a(f"buffer_load_dword v{PL+1}, v58, {srd(SRD_WS)}, 0 offen sc1")
        def poll_check():
            a("s_waitcnt vmcnt(0)")
            a(f"s_mov_b32 {sCnt}, 200000")
            a.label("L_wtchk")
            a(f"v_xor_b32 v{PL}, {sTG}, v{PL}")
            a(f"v_xor_b32 v{PL+1}, {sTG}, v{PL+1}")
            a(f"v_or_b32 v{PL}, v{PL}, v{PL+1}")
            a(f"v_cmp_ne_u32 vcc, 0, v{PL}")
            a("s_cbranch_vccz L_wtok")
            a(f"s_sub_u32 {sCnt}, {sCnt}, 1")
            a(f"s_cmp_eq_u32 {sCnt}, 0")
            a("s_cbranch_scc1 L_wtok")
            a("s_sleep 2")
            poll_issue()
            a("s_waitcnt vmcnt(0)")
            a("s_branch L_wtchk")
            a.label("L_wtok")
        extras = {t: [] for t in range(64)}
        mid = {t: [] for t in range(64)}
        extras[TA["wt"]].append(lambda: cond(0, "wtA", b_wt))
        extras[TB["wt"]].append(lambda: cond(1, "wtB", b_wt))
        extras[TA["fl"]].append(lambda: cond(0, "flA", b_fl))
        extras[TB["fl"]].append(lambda: cond(1, "flB", b_fl))
        extras[TA["bar"]].append(b_bar)
        extras[TA["sw"]].append(lambda: cond(0, "swA", lambda: a("s_setprio 0")))
        def dirty():
            n = X["dirty"]
            a(f"s_lshl_b32 {sA}, {sID}, 3")
            a(f"s_add_u32 {sA}, {sA}, {sW}")
            a(f"s_mul_i32 {sA}, {sA}, {n*1024}")
            a(f"s_add_u32 {sA}, {sA}, {WS_DBG}")
            for i in range(n):
                a(f"buffer_store_dwordx4 v[4:7], v2, {srd(SRD_WS)}, {sA} offen")
                a(f"s_add_u32 {sA}, {sA}, 1024")
        if X.get("dirty"): extras[20].append(dirty)
        def pretouch():
            D = "v[60:63]"
            PM = X.get("ptm", 15)
            mod = " sc1" if X.get("ptsc1", 1) else ""
            a(f"s_lshl_b32 {sA}, {sM}, 2")
            a(f"s_lshl_b32 {sB}, {sFT}, 1")
            a(f"s_add_u32 {sA}, {sA}, {sB}")
            a(f"s_add_u32 {sA}, {sA}, {sKH}")
            a(f"s_lshl_b32 {sA}, {sA}, 1")
            a(f"s_add_u32 {sA}, {sA}, {sTT}")
            a(f"s_lshl_b32 {sB}, {sA}, 10")
            a(f"s_lshl_b32 {sD}, {sC}, 16")
            a(f"s_add_u32 {sB}, {sB}, {sD}")
            a(f"s_add_u32 {sE_}, {sB}, {WS_O}")
            if PM & 1: a(f"buffer_load_dwordx4 {D}, v2, {srd(SRD_WS)}, {sE_} offen{mod}")
            a(f"s_add_u32 {sE_}, {sB}, {WS_H}")
            if PM & 1: a(f"buffer_load_dwordx4 {D}, v2, {srd(SRD_WS)}, {sE_} offen{mod}")
            a(f"s_lshr_b32 {sB}, {sA}, 1")
            a(f"s_lshl_b32 {sE_}, {sTT}, 5")
            a(f"s_add_u32 {sB}, {sB}, {sE_}")
            a(f"s_lshl_b32 {sB}, {sB}, 8")
            a(f"s_lshl_b32 {sE_}, {sC}, 14")
            a(f"s_add_u32 {sB}, {sB}, {sE_}")
            a(f"s_add_u32 {sB}, {sB}, {WS_ST}")
            a("s_mov_b64 exec, 0xffff")
            if PM & 1: a(f"buffer_load_dwordx4 {D}, v2, {srd(SRD_WS)}, {sB} offen{mod}")
            a(f"s_lshl_b32 {sB}, {sC}, 8")
            for fl in (WS_FLO, WS_FLH, WS_FLHID):
                a(f"s_add_u32 {sE_}, {sB}, {fl}")
                if PM & 2: a(f"buffer_load_dwordx4 {D}, v2, {srd(SRD_WS)}, {sE_} offen sc1")
            a("s_mov_b64 exec, -1")
            a("v_and_b32 v59, 31, v1")
            a("v_lshlrev_b32 v59, 10, v59")
            a(f"s_lshl_b32 {sB}, {sTT}, 5")
            a(f"s_add_u32 {sB}, {sB}, {sT0}")
            a(f"s_lshl_b32 {sB}, {sB}, 10")
            a(f"s_lshl_b32 {sE_}, {sM}, 7")
            a(f"s_add_u32 {sB}, {sB}, {sE_}")
            if PM & 4: a(f"buffer_load_dword v60, v59, {srd(SRD_OUT)}, {sB} offen")
            if False:
                a(f"s_lshl_b32 {sA}, {sC}, 19")
                a(f"s_lshl_b32 {sB}, {sW}, 16")
                a(f"s_add_u32 {sA}, {sA}, {sB}")
                a(f"s_lshl_b32 {sB}, {sM}, 10")
                a(f"s_add_u32 {sA}, {sA}, {sB}")
                a(f"s_add_u32 {sA}, {sA}, {WS_P}")
                for p in range(8):
                    if PM & 8: a(f"buffer_load_dwordx4 {D}, v2, {srd(SRD_WS)}, {sA} offen{mod}")
                    a(f"s_add_u32 {sA}, {sA}, 8192")
            else:
                a(f"s_mul_i32 {sA}, {sM}, 7")
                a(f"s_add_u32 {sA}, {sA}, {sW}")
                a(f"s_min_u32 {sA}, {sA}, 55")
                a(f"s_lshl_b32 {sB}, {sA}, 12")
                a(f"s_mul_i32 {sD}, {sC}, {224*1024}")
                a(f"s_add_u32 {sB}, {sB}, {sD}")
                a(f"s_add_u32 {sB}, {sB}, {WS_HID}")
                for p in range(4):
                    if PM & 8: a(f"buffer_load_dwordx4 {D}, v2, {srd(SRD_WS)}, {sB} offen offset:{p*1024}{mod}")
        if X.get("pt"): extras[X["pt"]].append(pretouch)
        def own():
            D = "v[4:7]"
            def body(mod):
                a(f"s_lshl_b32 {sA}, {sM}, 2")
                a(f"s_lshl_b32 {sB}, {sFT}, 1")
                a(f"s_add_u32 {sA}, {sA}, {sB}")
                a(f"s_add_u32 {sA}, {sA}, {sKH}")
                a(f"s_lshl_b32 {sA}, {sA}, 1")
                a(f"s_add_u32 {sA}, {sA}, {sTT}")
                a(f"s_lshl_b32 {sB}, {sA}, 10")
                a(f"s_lshl_b32 {sD}, {sC}, 16")
                a(f"s_add_u32 {sB}, {sB}, {sD}")
                a(f"s_add_u32 {sE_}, {sB}, {WS_O}")
                a(f"buffer_store_dwordx4 {D}, v2, {srd(SRD_WS)}, {sE_} offen{mod}")
                a(f"s_add_u32 {sE_}, {sB}, {WS_H}")
                a(f"buffer_store_dwordx4 {D}, v2, {srd(SRD_WS)}, {sE_} offen{mod}")
                a(f"s_lshr_b32 {sB}, {sA}, 1")
                a(f"s_lshl_b32 {sE_}, {sTT}, 5")
                a(f"s_add_u32 {sB}, {sB}, {sE_}")
                a(f"s_lshl_b32 {sB}, {sB}, 8")
                a(f"s_lshl_b32 {sE_}, {sC}, 14")
                a(f"s_add_u32 {sB}, {sB}, {sE_}")
                a(f"s_add_u32 {sB}, {sB}, {WS_ST}")
                a("s_mov_b64 exec, 0xffff")
                a(f"buffer_store_dwordx4 {D}, v2, {srd(SRD_WS)}, {sB} offen{mod}")
                a("s_mov_b64 exec, -1")
                if X.get("ownout", 1):
                    a("v_and_b32 v59, 31, v1")
                    a("v_lshlrev_b32 v59, 10, v59")
                    a("v_lshrrev_b32 v58, 5, v1")
                    a("v_lshl_or_b32 v59, v58, 4, v59")
                    a(f"s_lshl_b32 {sB}, {sTT}, 5")
                    a(f"s_add_u32 {sB}, {sB}, {sT0}")
                    a(f"s_lshl_b32 {sB}, {sB}, 10")
                    a(f"s_lshl_b32 {sE_}, {sM}, 7")
                    a(f"s_add_u32 {sB}, {sB}, {sE_}")
                    a(f"s_lshl_b32 {sE_}, {sFT}, 6")
                    a(f"s_add_u32 {sB}, {sB}, {sE_}")
                    a(f"s_lshl_b32 {sE_}, {sKH}, 5")
                    a(f"s_add_u32 {sB}, {sB}, {sE_}")
                    a(f"buffer_store_dwordx4 {D}, v59, {srd(SRD_OUT)}, {sB} offen")
                if False:
                    a(f"s_lshl_b32 {sA}, {sC}, 19")
                    a(f"s_lshl_b32 {sB}, {sW}, 16")
                    a(f"s_add_u32 {sA}, {sA}, {sB}")
                    a(f"s_lshl_b32 {sB}, {sM}, 10")
                    a(f"s_add_u32 {sA}, {sA}, {sB}")
                    a(f"s_add_u32 {sA}, {sA}, {WS_P}")
                    for p in range(8):
                        a(f"buffer_store_dwordx4 {D}, v2, {srd(SRD_WS)}, {sA} offen{mod}")
                        a(f"s_add_u32 {sA}, {sA}, 8192")
                else:
                    a(f"s_cmp_eq_u32 {sW}, 7")
                    lab = a.newlabel("L_own7")
                    a(f"s_cbranch_scc1 {lab}")
                    a(f"s_mul_i32 {sA}, {sM}, 7")
                    a(f"s_add_u32 {sA}, {sA}, {sW}")
                    a(f"s_lshl_b32 {sB}, {sA}, 12")
                    a(f"s_mul_i32 {sD}, {sC}, {224*1024}")
                    a(f"s_add_u32 {sB}, {sB}, {sD}")
                    a(f"s_add_u32 {sB}, {sB}, {WS_HID}")
                    for p in range(4):
                        a(f"buffer_store_dwordx4 {D}, v2, {srd(SRD_WS)}, {sB} offen offset:{p*1024}{mod}")
                    a.label(lab)
            l1, l2 = a.newlabel("L_ownS"), a.newlabel("L_ownD")
            a(f"s_cmp_eq_u32 {sFast}, 0")
            a(f"s_cbranch_scc0 {l1}")
            body("")
            a(f"s_branch {l2}")
            a.label(l1)
            body(" sc1")
            a.label(l2)
        if X.get("own"): extras[X["own"]].append(own)
        extras[0].insert(0, bound_check)
        extras[TPOLL].append(poll_issue)
        extras[TCHK - 1].append(poll_check)
        def w1load(s_):
            def f():
                a(f"buffer_load_dwordx4 {vr(W1H[s_],4)}, v2, {srd(SRD_WS)}, {sW1B} offen offset:{(s_%4)*1024} sc1")
                if s_ % 4 == 3: a(f"s_add_u32 {sW1B}, {sW1B}, 4096")
            return f
        for s_ in range(NW1PRE):
            mid[TLD0 + s_ // 2].append(w1load(s_))
        def wo_addr():
            a(f"s_lshl_b32 {sA}, {sM}, 1")
            a(f"s_add_u32 {sA}, {sA}, {sFT}")
            a(f"s_lshl_b32 {sA}, {sA}, 5")
            a(f"s_lshl_b32 {sB}, {sKH}, 4")
            a(f"s_add_u32 {sA}, {sA}, {sB}")
            a(f"s_lshl_b32 {sA}, {sA}, 10")
            a(f"s_add_u32 {sWOB}, {sA}, {WS_WOF}")
            a(f"s_lshl_b32 {sB}, {sKH}, 8")
            a(f"v_xor_b32 v57, {sB}, v2")
        extras[TCHK].append(wo_addr)
        def woload(i):
            def f():
                a(f"buffer_load_dwordx4 {vr(WOH[i],4)}, v57, {srd(SRD_WS)}, {sWOB} offen offset:{(i%4)*1024} sc1")
                if i % 4 == 3 and i < 15: a(f"s_add_u32 {sWOB}, {sWOB}, 4096")
            return f
        TWO = TLD0 + NW1PRE // 2
        for i in range(16):
            mid[TWO + i // 2].append(woload(i))

        def pf_addr():
            a(f"s_lshl_b32 {sA}, {sM}, 1")
            a(f"s_add_u32 {sA}, {sA}, {sFT}")
            a(f"s_mul_i32 {sA}, {sA}, 112")
            a(f"s_and_b32 {sB}, {sW}, 3")
            a(f"s_mul_i32 {sB}, {sB}, 28")
            a(f"s_add_u32 {sA}, {sA}, {sB}")
            a(f"s_lshl_b32 {sA}, {sA}, 10")
            a(f"s_add_u32 {sPF}, {sA}, {WS_W2F}")
            a("v_lshlrev_b32 v58, 6, v1")
        def pf(i):
            def f():
                a(f"buffer_load_dword v59, v58, {srd(SRD_WS)}, {sPF} offen sc1")
                a(f"s_add_u32 {sPF}, {sPF}, 4096")
            return f
        def pf_w1():
            a(f"s_add_u32 {sPF}, {sW1B}, 2048")
            a(f"buffer_load_dword v59, v58, {srd(SRD_WS)}, {sPF} offen sc1")
            a(f"buffer_load_dword v59, v58, {srd(SRD_WS)}, {sPF} offen offset:2048 sc1")
        if X.get("pf"):
            TPF = TWO + 8
            extras[TPF - 1].append(pf_addr)
            for i in range(7): mid[TPF + i].append(pf(i))
            mid[TPF + 7].append(pf_w1)

        a.lg = []
        a.ds("ds_read_b64 v[62:63], v61", "bc")
        kread(0); kread(1); vread(0)
        ms(0)
        a("s_nop 11")
        for t in range(64):
            E(t, 0, 1)
            if t > 0: sm(t - 1, 1)
            if t + 1 < 64: vread(t + 1)
            E(t, 2, 5)
            if t + 1 < 64: ms(t + 1)
            if t + 2 < 64: kread(t + 2)
            if mid[t]: mid[t][0]()
            E(t, 6, 11)
            sm(t, 0)
            for f in mid[t][1:]: f()
            E(t, 12, 15)
            for f in extras[t]: f()
        a("s_nop 1")
        sm(63, 1)
        a("s_setprio 0")
        self.stamp("attn")
        a("s_nop 7")
        a("s_nop 3")
        a(f"v_rcp_f32 v3, v{O+8}")
        a(f"v_mul_f32 v80, 0, v{O}")
        a(f"v_mul_f32 v81, 0, v{O+1}")
        for i in range(2, 8, 2):
            a(f"v_fma_f32 v80, v{O+i}, 0, v80")
            a(f"v_fma_f32 v81, v{O+i+1}, 0, v81")
        a("v_add_f32 v80, v80, v81")
        a("v_cmp_u_f32 vcc, v80, v80")
        a("s_cmp_lg_u64 vcc, 0")
        a(f"s_cselect_b32 {sA}, 1, 0")
        a(f"s_or_b32 {sA}, {sA}, {sG}")
        a(f"s_cmp_eq_u32 {sA}, 0")
        a("s_cbranch_scc1 L_nofb")
        a(f"v_mov_b32 v57, {vKa}")
        a("v_mov_b32 v58, 0xff800000")
        a(f"s_mov_b32 {sCnt}, 64")
        a.label("L_fb")
        a(f"ds_read_b128 {vr(KF,4)}, v57")
        a("v_add_u32 v57, 2048, v57")
        a("s_waitcnt lgkmcnt(0)")
        a(f"v_mfma_f32_32x32x16_bf16 {vr(S0,16)}, {vr(KF,4)}, {vr(Q,4)}, 0")
        for i in range(8):
            a(f"v_max3_f32 v58, v{S0+2*i}, v{S0+2*i+1}, v58")
        a(f"s_sub_u32 {sCnt}, {sCnt}, 1")
        a(f"s_cmp_lg_u32 {sCnt}, 0")
        a("s_cbranch_scc1 L_fb")
        a("v_mov_b32 v57, v58")
        a("v_permlane32_swap_b32 v57, v58")
        a("v_max_f32 v58, v57, v58")
        a(f"v_sub_f32 v{S1}, 0, v58")
        for i in range(1, 16):
            a(f"v_mov_b32 v{S1+i}, v{S1}")
        for i in range(16):
            a(f"v_mov_b32 v{O+i}, 0")
        a(f"v_mov_b32 v57, {vKa}")
        a(f"v_mov_b32 v58, {vVa}")
        a(f"s_mov_b32 {sCnt}, 64")
        a.label("L_fb2")
        a(f"ds_read_b128 {vr(KF,4)}, v57")
        a("s_mov_b64 exec, s[6:7]")
        a(f"ds_read_b128 {vr(VF,4)}, v58")
        a(f"ds_read_b128 {vr(VF+4,4)}, v58 offset:512")
        a("s_mov_b64 exec, -1")
        a("v_add_u32 v57, 2048, v57")
        a("v_add_u32 v58, 2048, v58")
        a("s_waitcnt lgkmcnt(0)")
        a(f"v_mfma_f32_32x32x16_bf16 {vr(S0,16)}, {vr(KF,4)}, {vr(Q,4)}, {vr(S1,16)}")
        for i in range(16):
            a(f"v_exp_f32 v{S0+i}, v{S0+i}")
        a(f"v_smfmac_f32_32x32x32_bf16 {vr(O,16)}, {vr(VF,4)}, {vr(S0,8)}, v{IDX}")
        a(f"v_smfmac_f32_32x32x32_bf16 {vr(O,16)}, {vr(VF+4,4)}, {vr(S0+8,8)}, v{IDX}")
        a(f"s_sub_u32 {sCnt}, {sCnt}, 1")
        a(f"s_cmp_lg_u32 {sCnt}, 0")
        a("s_nop 7")
        a("s_nop 7")
        a("s_cbranch_scc1 L_fb2")
        a(f"v_rcp_f32 v3, v{O+8}")
        a.label("L_nofb")
        OP = 40
        for i in range(8):
            a(f"v_mul_f32 v{O+i}, v3, v{O+i}")
        for i in range(4):
            a(f"v_cvt_pk_bf16_f32 v{OP+i}, v{O+2*i}, v{O+2*i+1}")
        a(f"s_lshl_b32 s88, {sM}, 2")
        a(f"s_lshl_b32 {sB}, {sFT}, 1")
        a(f"s_add_u32 s88, s88, {sB}")
        a(f"s_add_u32 s88, s88, {sKH}")
        a(f"s_lshl_b32 {sB}, s88, 1")
        a(f"s_add_u32 {sB}, {sB}, {sTT}")
        a(f"s_lshl_b32 {sB}, {sB}, 10")
        a(f"s_lshl_b32 {sD}, {sC}, 16")
        a(f"s_add_u32 {sB}, {sB}, {sD}")
        a(f"s_add_u32 {sB}, {sB}, {WS_O}")
        a(f"s_lshl_b32 {sD}, {sTT}, 5")
        a(f"s_add_u32 {sD}, {sD}, s88")
        a(f"s_lshl_b32 {sD}, {sD}, 2")
        a(f"s_lshl_b32 {sE_}, {sC}, 8")
        a(f"s_add_u32 {sD}, {sD}, {sE_}")
        a(f"s_add_u32 {sD}, {sD}, {WS_FLO}")
        self.publish("o", [("dwordx4", vr(OP, 4), "v2", sB, 0)], sD)
        self.stamp("opub")

    def wt_addr(self, vT1, vT2):
        a = self.a
        LDS_E = 132 * 1024
        a("v_bfe_u32 v61, v1, 2, 2")
        a("v_lshrrev_b32 v62, 5, v1")
        a("v_lshl_add_u32 v62, v62, 2, v61")
        a("v_lshlrev_b32 v62, 7, v62")
        a("v_bfe_u32 v63, v1, 4, 1")
        a("v_lshlrev_b32 v63, 5, v63")
        a("v_and_b32 v61, 3, v1")
        a("v_lshl_add_u32 v63, v61, 3, v63")
        a("v_bfe_u32 v61, v1, 3, 1")
        a("v_lshlrev_b32 v61, 6, v61")
        a("v_xor_b32 v63, v63, v61")
        a("v_add_u32 v62, v62, v63")
        a(f"s_xor_b32 {sA}, {sW}, 1")
        a(f"s_lshl_b32 {sA}, {sA}, 11")
        a(f"s_add_u32 {sA}, {sA}, {LDS_E}")
        a(f"v_add_u32 {vT1}, {sA}, v62")
        a(f"v_xor_b32 {vT2}, 64, {vT1}")

    def wt_poll_addr(self):
        a = self.a
        a(f"s_cmp_eq_u32 {sW}, 7")
        a("s_cbranch_scc1 L_pa7")
        a(f"s_mul_i32 {sA}, {sM}, 7")
        a(f"s_add_u32 {sA}, {sA}, {sW}")
        a(f"s_lshl_b32 {sW1B}, {sA}, 15")
        a(f"s_add_u32 {sW1B}, {sW1B}, {WS_W1F}")
        a(f"s_lshr_b32 {sA}, {sA}, 1")
        a(f"s_lshl_b32 {sA}, {sA}, 5")
        a(f"s_add_u32 {sA}, {sA}, 256")
        a("s_branch L_pad")
        a.label("L_pa7")
        a(f"s_lshl_b32 {sA}, {sM}, 1")
        a(f"s_add_u32 {sA}, {sA}, 1")
        a(f"s_mul_i32 {sA}, {sA}, 112")
        a(f"s_add_u32 {sA}, {sA}, 98")
        a(f"s_lshl_b32 {sW1B}, {sA}, 10")
        a(f"s_add_u32 {sW1B}, {sW1B}, {WS_W2F}")
        a(f"s_mul_i32 {sA}, {sM}, 112")
        a(f"s_add_u32 {sA}, {sA}, {1152 + 80}")
        a.label("L_pad")
        a(f"s_lshl_b32 {sB}, {sM}, 5")
        a(f"s_sub_u32 {sB}, {sB}, 32")
        a(f"v_mov_b32 v57, {sA}")
        a(f"v_mov_b32 v58, {sB}")
        a("v_cmp_gt_u32 vcc, 32, v1")
        a("v_cndmask_b32 v57, v58, v57, vcc")
        a("v_add_u32 v57, v57, v1")
        a("v_lshlrev_b32 v57, 2, v57")
        a(f"v_add_u32 v57, {WS_FLWT2}, v57")
        a(f"s_mul_i32 {sA}, {sM}, 112")
        a(f"s_mul_i32 {sB}, {sW}, 14")
        a(f"s_add_u32 {sA}, {sA}, {sB}")
        a(f"s_add_u32 {sA}, {sA}, 1152")
        a("v_min_u32 v58, 13, v1")
        a(f"v_add_u32 v58, {sA}, v58")
        a("v_lshlrev_b32 v58, 2, v58")
        a(f"v_add_u32 v58, {WS_FLWT2}, v58")

    def publish(self, name, stores, sflag, pre_exec=None):
        a = self.a
        a(f"v_mov_b32 v104, s3")
        a(f"v_mov_b32 v105, 0")
        a(f"s_cmp_eq_u32 {sFast}, 0")
        a(f"s_cbranch_scc0 L_pub_slow_{name}")
        for variant, mod in (("fast", ""), ("slow", " sc1")):
            if variant == "slow": a.label(f"L_pub_slow_{name}")
            for st in stores:
                ty, data, voff, soff, io = st[:5]
                if len(st) > 5: a(f"s_mov_b32 exec_hi, 0")
                a(f"buffer_store_{ty} {data}, {voff}, {srd(SRD_WS)}, {soff} offen offset:{io}{mod}")
                if len(st) > 5: a("s_mov_b64 exec, -1")
            a("s_waitcnt vmcnt(0)")
            a("s_mov_b64 exec, 1")
            a(f"buffer_store_dword v104, v105, {srd(SRD_WS)}, {sflag} offen{mod}")
            a("s_mov_b64 exec, -1")
            if variant == "fast": a(f"s_branch L_pub_done_{name}")
        a.label(f"L_pub_done_{name}")

    def wt_issue(self):
        a = self.a
        LDS_E = 132 * 1024
        a(f"s_lshl_b32 {sA}, {sID}, 3")
        a(f"s_add_u32 {sA}, {sA}, {sW}")
        a(f"s_cmp_lt_u32 {sA}, 256")
        a("s_cbranch_scc1 L_wt_wo")
        a(f"s_cmp_lt_u32 {sA}, 1152")
        a("s_cbranch_scc1 L_wt_w1")
        a(f"s_sub_u32 {sA}, {sA}, 1152")
        a(f"s_mul_i32 {sB}, {sA}, 9363")
        a(f"s_lshr_b32 {sB}, {sB}, 20")
        a(f"s_mul_i32 {sD}, {sB}, 112")
        a(f"s_sub_u32 {sD}, {sA}, {sD}")
        for i in range(4): a(f"s_mov_b32 s{SRD_T+i}, s{SRD_W2+i}")
        a(f"s_mov_b32 {sF}, 1024")
        a(f"s_mul_i32 s88, {sB}, {2*112}")
        a(f"s_add_u32 s88, s88, {sD}")
        a("s_lshl_b32 s88, s88, 10")
        a(f"s_add_u32 s88, s88, {WS_W2F}")
        a(f"s_mov_b32 s89, {112*1024}")
        a("s_branch L_wt_go")
        a.label("L_wt_w1")
        a(f"s_sub_u32 {sA}, {sA}, 256")
        a(f"s_lshr_b32 {sB}, {sA}, 5")
        a(f"s_and_b32 {sD}, {sA}, 31")
        for i in range(4): a(f"s_mov_b32 s{SRD_T+i}, s{SRD_W1+i}")
        a(f"s_mov_b32 {sF}, 3584")
        a(f"s_lshl_b32 s88, {sB}, 6")
        a(f"s_add_u32 s88, s88, {sD}")
        a("s_lshl_b32 s88, s88, 10")
        a(f"s_add_u32 s88, s88, {WS_W1F}")
        a(f"s_mov_b32 s89, {32*1024}")
        a("s_branch L_wt_go")
        a.label("L_wt_wo")
        a(f"s_lshr_b32 {sB}, {sA}, 5")
        a(f"s_and_b32 {sD}, {sA}, 31")
        for i in range(4): a(f"s_mov_b32 s{SRD_T+i}, s{SRD_WO+i}")
        a(f"s_mov_b32 {sF}, 1024")
        a(f"s_lshl_b32 s88, {sB}, 6")
        a(f"s_add_u32 s88, s88, {sD}")
        a("s_lshl_b32 s88, s88, 10")
        a(f"s_add_u32 s88, s88, {WS_WOF}")
        a(f"s_mov_b32 s89, {32*1024}")
        a.label("L_wt_go")
        a(f"s_mul_i32 {sD}, {sD}, {sF}")
        a(f"s_lshl_b32 {sD}, {sD}, 4")
        a(f"s_lshl_b32 {sB}, {sB}, 7")
        a(f"s_add_u32 {sD}, {sD}, {sB}")
        a("v_lshrrev_b32 v16, 3, v1")
        a(f"v_mul_lo_u32 v16, v16, {sF}")
        a("v_and_b32 v17, 7, v1")
        a("v_bfe_u32 v18, v1, 4, 1")
        a("v_lshlrev_b32 v18, 2, v18")
        a("v_xor_b32 v17, v17, v18")
        a("v_lshl_add_u32 v16, v17, 4, v16")
        a(f"s_xor_b32 {sA}, {sW}, 1")
        a(f"s_lshl_b32 {sA}, {sA}, 11")
        a(f"s_add_u32 {sA}, {sA}, {LDS_E}")
        a(f"s_mov_b32 m0, {sA}")
        a(f"buffer_load_dwordx4 v16, {srd(SRD_T)}, {sD} offen lds")
        a(f"s_lshl_b32 {sB}, {sF}, 3")
        a(f"s_add_u32 {sD}, {sD}, {sB}")
        a(f"s_add_u32 {sA}, {sA}, 1024")
        a(f"s_mov_b32 m0, {sA}")
        a(f"buffer_load_dwordx4 v16, {srd(SRD_T)}, {sD} offen lds")

    def wt_process(self):
        a = self.a
        LDS_E = 132 * 1024
        a("v_bfe_u32 v106, v1, 2, 2")
        a("v_lshrrev_b32 v107, 5, v1")
        a("v_lshl_add_u32 v107, v107, 2, v106")
        a("v_lshlrev_b32 v107, 7, v107")
        a("v_bfe_u32 v108, v1, 4, 1")
        a("v_lshlrev_b32 v108, 5, v108")
        a("v_and_b32 v109, 3, v1")
        a("v_lshl_add_u32 v108, v109, 3, v108")
        a("v_bfe_u32 v109, v1, 3, 1")
        a("v_lshlrev_b32 v109, 6, v109")
        a("v_xor_b32 v108, v108, v109")
        a("v_add_u32 v107, v107, v108")
        a(f"s_xor_b32 {sA}, {sW}, 1")
        a(f"s_lshl_b32 {sA}, {sA}, 11")
        a(f"s_add_u32 {sA}, {sA}, {LDS_E}")
        a(f"v_add_u32 v107, {sA}, v107")
        a("v_xor_b32 v108, 64, v107")
        a("ds_read_b64_tr_b16 v[112:113], v107")
        a("ds_read_b64_tr_b16 v[114:115], v107 offset:1024")
        a("ds_read_b64_tr_b16 v[116:117], v108")
        a("ds_read_b64_tr_b16 v[118:119], v108 offset:1024")
        a("s_waitcnt lgkmcnt(0)")
        a(f"buffer_store_dwordx4 v[112:115], v2, {srd(SRD_WS)}, s88 offen sc1")
        a("s_add_u32 s88, s88, s89")
        a(f"buffer_store_dwordx4 v[116:119], v2, {srd(SRD_WS)}, s88 offen sc1")


    def colsum(self, homes, first):
        a = self.a
        n = 0
        a("s_mov_b32 s5, 0x3f803f80")
        for hm in homes:
            for i in range(4):
                r = "v106" if n % 2 == 0 else "v107"
                a(f"v_dot2_f32_bf16 {r}, v{hm+i}, s5, {'0' if (first and n < 2) else r}")
                n += 1

    def p3(self):
        a = self.a
        X_ = self.opt
        HB, X, ACC, BR = 4, 56, 24, 64
        LDS_OF, LDS_E2 = 0, 128 * 1024
        sS = "s88"
        a("v_and_b32 v3, 31, v1")
        a("v_lshlrev_b32 v3, 10, v3")
        a("v_lshrrev_b32 v104, 5, v1")
        a("v_lshl_or_b32 v3, v104, 3, v3")
        a(f"s_lshl_b32 {sA}, {sTT}, 5")
        a(f"s_add_u32 {sA}, {sA}, {sT0}")
        a(f"s_lshl_b32 {sA}, {sA}, 10")
        a(f"s_lshl_b32 {sB}, {sS}, 5")
        a(f"s_add_u32 {sA}, {sA}, {sB}")
        a(f"buffer_load_dwordx2 {vr(X,2)}, v3, {srd(SRD_X)}, {sA} offen")
        a(f"buffer_load_dwordx2 {vr(X+2,2)}, v3, {srd(SRD_X)}, {sA} offen offset:16")
        a("s_barrier")
        self.stamp("b7")
        a(f"s_cmp_eq_u32 {sW}, 7")
        a("s_cbranch_scc1 L_nocs1")
        self.colsum(W1H[:NW1PRE], True)
        a.label("L_nocs1")
        a(f"s_lshl_b32 {sA}, {sTT}, 5")
        a(f"s_lshl_b32 {sB}, {sKH}, 4")
        a(f"s_add_u32 {sA}, {sA}, {sB}")
        a(f"s_lshl_b32 {sA}, {sA}, 2")
        a(f"s_lshl_b32 {sB}, {sC}, 8")
        a(f"s_add_u32 {sA}, {sA}, {sB}")
        a(f"s_add_u32 {sA}, {sA}, {WS_FLO}")
        a("v_and_b32 v3, 15, v1")
        a("v_lshlrev_b32 v3, 2, v3")
        self.poll_begin("o")
        a(f"buffer_load_dword v104, v3, {srd(SRD_WS)}, {sA} offen sc1")
        a("s_waitcnt vmcnt(0)")
        a("v_cmp_ne_u32 vcc, s3, v104")
        self.poll_end("o", sleep=1)
        self.stamp("ook")
        a(f"s_lshl_b32 {sA}, {sKH}, 4")
        a(f"s_lshl_b32 {sB}, {sFT}, 2")
        a(f"s_add_u32 {sA}, {sA}, {sB}")
        a(f"s_lshl_b32 {sA}, {sA}, 1")
        a(f"s_add_u32 {sA}, {sA}, {sTT}")
        a(f"s_lshl_b32 {sA}, {sA}, 10")
        a(f"s_lshl_b32 {sB}, {sC}, 16")
        a(f"s_add_u32 {sB}, {sB}, {sA}")
        a(f"s_add_u32 {sB}, {sB}, {WS_O}")
        for st in range(2):
            for i in range(4):
                d = (st * 8 + i) * 2048
                a(f"s_add_u32 {sD}, {sA}, {d + LDS_OF}")
                a(f"s_add_u32 {sE_}, {sB}, {d}")
                a(f"s_mov_b32 m0, {sD}")
                a(f"buffer_load_dwordx4 v2, {srd(SRD_WS)}, {sE_} offen sc1 lds")
        nrest = 32 - NW1PRE
        a(f"s_lshl_b32 {sA}, {sKH}, 15")
        a(f"s_lshl_b32 {sB}, {sTT}, 10")
        a(f"s_add_u32 {sA}, {sA}, {sB}")
        a(f"v_add_u32 v104, {sA}, v2")
        def late_loads():
            for s_ in range(NW1PRE, 32):
                a(f"buffer_load_dwordx4 {vr(W1H[s_],4)}, v2, {srd(SRD_WS)}, {sW1B} offen offset:{(s_%4)*1024} sc1")
                if s_ % 4 == 3 and s_ < 31: a(f"s_add_u32 {sW1B}, {sW1B}, 4096")
        a.lg = []
        for st in range(2):
            a(f"s_waitcnt vmcnt({4 if st == 0 else 0})")
            a("s_barrier")
            for i in range(8):
                a.ds(f"ds_read_b128 {vr(BR+4*i,4)}, v104 offset:{(st*8+i)*2048}", f"b{st}{i}")
            if st == 1: late_loads()
            for i in range(8):
                a.wait_lg(f"b{st}{i}")
                k = st * 8 + i
                srcC = "0" if k == 0 else vr(ACC, 16)
                a(f"v_mfma_f32_32x32x16_bf16 {vr(ACC,16)}, {vr(WOH[k],4)}, {vr(BR+4*i,4)}, {srcC}")
        self.stamp("p3mm")
        a(f"s_lshl_b32 {sA}, {sW}, 11")
        a(f"s_add_u32 {sA}, {sA}, {LDS_E2}")
        a(f"v_add_u32 v104, {sA}, v2")
        a(f"ds_write_b128 v104, {vr(ACC+8,4)}")
        a(f"ds_write_b128 v104, {vr(ACC+12,4)} offset:1024")
        a("s_waitcnt lgkmcnt(0)")
        a("s_barrier")
        a("v_xor_b32 v104, 2048, v104")
        a(f"ds_read_b128 {vr(BR,4)}, v104")
        a(f"ds_read_b128 {vr(BR+4,4)}, v104 offset:1024")
        for i in range(4):
            a(f"v_lshlrev_b32 v{BR+8+2*i}, 16, v{X+i}")
            a(f"v_and_b32 v{BR+9+2*i}, 0xffff0000, v{X+i}")
        a(f"s_lshl_b32 {sA}, {sS}, 1")
        a(f"s_add_u32 {sA}, {sA}, {sTT}")
        a(f"s_lshl_b32 {sA}, {sA}, 10")
        a(f"s_lshl_b32 {sB}, {sC}, 16")
        a(f"s_add_u32 {sA}, {sA}, {sB}")
        a(f"s_add_u32 {sA}, {sA}, {WS_H}")
        a(f"s_lshl_b32 {sD}, {sTT}, 5")
        a(f"s_add_u32 {sD}, {sD}, {sS}")
        a(f"s_lshl_b32 {sD}, {sD}, 2")
        a(f"s_lshl_b32 {sE_}, {sC}, 8")
        a(f"s_add_u32 {sD}, {sD}, {sE_}")
        a(f"s_add_u32 {sD}, {sD}, {WS_FLH}")
        for i in range(8):
            a(f"v_add_f32 v{ACC+i}, v{ACC+i}, v{BR+8+i}")
        a("s_waitcnt lgkmcnt(0)")
        for i in range(8):
            a(f"v_add_f32 v{ACC+i}, v{ACC+i}, v{BR+i}")
        for i in range(4):
            a(f"v_cvt_pk_bf16_f32 v{HB+i}, v{ACC+2*i}, v{ACC+2*i+1}")
        a("s_mov_b32 s5, 0x3f803f80")
        a(f"v_dot2_f32_bf16 v56, v{HB}, s5, 0")
        a(f"v_dot2_f32_bf16 v57, v{HB}, v{HB}, 0")
        for i in range(1, 4):
            a(f"v_dot2_f32_bf16 v56, v{HB+i}, s5, v56")
            a(f"v_dot2_f32_bf16 v57, v{HB+i}, v{HB+i}, v57")
        a("v_mov_b32 v58, v56")
        a("v_mov_b32 v59, v57")
        a("v_permlane32_swap_b32 v56, v58")
        a("v_permlane32_swap_b32 v57, v59")
        a("v_add_f32 v56, v56, v58")
        a("v_add_f32 v57, v57, v59")
        a(f"s_lshl_b32 {sB}, {sTT}, 5")
        a(f"s_add_u32 {sB}, {sB}, {sS}")
        a(f"s_lshl_b32 {sB}, {sB}, 8")
        a(f"s_lshl_b32 {sE_}, {sC}, 14")
        a(f"s_add_u32 {sB}, {sB}, {sE_}")
        a(f"s_add_u32 {sB}, {sB}, {WS_ST}")
        a("v_lshlrev_b32 v3, 3, v1")
        self.publish("h", [("dwordx4", vr(HB, 4), "v2", sA, 0), ("dwordx2", "v[56:57]", "v3", sB, 0, "lo32")], sD)
        self.stamp("hpub")

    def w2load(self, f, i):
        a = self.a
        hm = (W2H0 if f == 0 else W2H1)[i]
        off = (f * 112 + i) * 1024
        a(f"s_add_u32 {sA}, s89, {off}")
        a(f"buffer_load_dwordx4 {vr(hm,4)}, v2, {srd(SRD_WS)}, {sA} offen sc1")

    def p4(self):
        a = self.a
        HB, ACC, BR = 4, 64, 108
        LDS_HF, LDS_ST2, LDS_CS1, LDS_B1 = 64 * 1024, 144 * 1024, 145 * 1024, 146 * 1024
        a(f"s_mul_i32 {sA}, {sM}, 224")
        a(f"s_mul_i32 {sB}, {sW}, 14")
        a(f"s_add_u32 {sA}, {sA}, {sB}")
        a(f"s_lshl_b32 {sA}, {sA}, 10")
        a(f"s_add_u32 s89, {sA}, {WS_W2F}")
        for i in range(NW2E): self.w2load(0, i)
        a(f"s_cmp_eq_u32 {sW}, 7")
        a("s_cbranch_scc1 L_p4_pre7")
        self.colsum(W1H[NW1PRE:], False)
        a("v_add_f32 v106, v106, v107")
        a("v_mov_b32 v107, v106")
        a("v_permlane32_swap_b32 v106, v107")
        a("v_add_f32 v106, v106, v107")
        a("v_and_b32 v107, 31, v1")
        a("v_lshlrev_b32 v107, 2, v107")
        a(f"s_lshl_b32 {sA}, {sW}, 7")
        a(f"s_add_u32 {sA}, {sA}, {LDS_CS1}")
        a(f"v_add_u32 v107, {sA}, v107")
        a("ds_write_b32 v107, v106")
        a("s_branch L_p4_pre")
        a.label("L_p4_pre7")
        a(f"s_mul_i32 {sA}, {sM}, 448")
        a("v_lshlrev_b32 v3, 3, v1")
        a("v_min_u32 v3, 440, v3")
        a(f"buffer_load_dwordx2 v[106:107], v3, {srd(SRD_B1)}, {sA} offen")
        a("s_waitcnt vmcnt(0)")
        a("v_lshlrev_b32 v108, 16, v106")
        a("v_and_b32 v109, 0xffff0000, v106")
        a("v_lshlrev_b32 v110, 16, v107")
        a("v_and_b32 v111, 0xffff0000, v107")
        for i in range(4): a(f"v_mul_f32 v{108+i}, 0.5, v{108+i}")
        a("v_lshlrev_b32 v3, 1, v3")
        a(f"v_add_u32 v3, {LDS_B1}, v3")
        a("ds_write_b128 v3, v[108:111]")
        a.label("L_p4_pre")
        a(f"s_lshl_b32 {sA}, {sC}, 8")
        a(f"s_add_u32 {sA}, {sA}, {WS_FLH}")
        a("v_lshlrev_b32 v3, 2, v1")
        self.poll_begin("h")
        a(f"buffer_load_dword v104, v3, {srd(SRD_WS)}, {sA} offen sc1")
        a("s_waitcnt vmcnt(0)")
        a("v_cmp_ne_u32 vcc, s3, v104")
        self.poll_end("h", sleep=1)
        self.stamp("hok")
        a(f"s_lshl_b32 s67, {sW}, 11")
        a(f"s_lshl_b32 {sB}, {sC}, 16")
        a(f"s_add_u32 {sB}, {sB}, s67")
        a(f"s_add_u32 s68, {sB}, {WS_H}")
        def hdma(i):
            for tt in range(2):
                d = i * 8 * 2048 + tt * 1024
                a(f"s_add_u32 {sD}, s67, {d + LDS_HF}")
                a(f"s_add_u32 {sE_}, s68, {d}")
                a(f"s_mov_b32 m0, {sD}")
                a(f"buffer_load_dwordx4 v2, {srd(SRD_WS)}, {sE_} offen sc1 lds")
        hdma(0); hdma(1)
        a(f"v_add_u32 v104, {LDS_HF}, v2")
        a("s_waitcnt vmcnt(2)")
        a("s_barrier")
        self.stamp("f1a")
        hdma(2); hdma(3)
        a(f"s_cmp_eq_u32 {sW}, 7")
        a("s_cbranch_scc1 L_p4_w7")
        a.lg = []
        NR = 3
        def hread(k):
            sl = k % NR
            a.ds(f"ds_read_b128 {vr(BR+8*sl,4)}, v104 offset:{k*2048}", f"h{k}")
            a.ds(f"ds_read_b128 {vr(BR+8*sl+4,4)}, v104 offset:{k*2048+1024}", f"h{k}")
        for k in range(NR - 1): hread(k)
        lst = [(0, i) for i in range(NW2E, 14)] + [(1, i) for i in range(14)]
        sched = {}
        for n, (f, i) in enumerate(lst):
            st = (n * 30) // len(lst) + 1
            if f == 1: st = max(st, i)
            sched.setdefault(st, []).append((f, i))
        issued = 0
        for k in range(32):
            if k == 8 - (NR - 1):
                a(f"s_waitcnt vmcnt({4 + issued})")
                a("s_barrier")
            if k == 16 - (NR - 1):
                a(f"s_waitcnt vmcnt({issued})")
                a("s_barrier")
                self.stamp("f1b")
            if k + NR - 1 < 32: hread(k + NR - 1)
            a.wait_lg(f"h{k}")
            sl = k % NR
            for tt in range(2):
                srcC = "0" if k == 0 else vr(ACC + 16 * tt, 16)
                a(f"v_mfma_f32_32x32x16_bf16 {vr(ACC+16*tt,16)}, {vr(W1H[k],4)}, {vr(BR+8*sl+4*tt,4)}, {srcC}")
            for (f, i) in (sched.get(k, []) if not self.opt.get("now2") else []):
                self.w2load(f, i)
                issued += 1
        self.stamp("f1c")
        a("s_barrier")
        a.lg = []
        CS, BF = 108, 208
        a("v_and_b32 v3, 31, v1")
        a("v_lshlrev_b32 v3, 3, v3")
        a(f"v_add_u32 v3, {LDS_ST2}, v3")
        a("ds_read_b64 v[104:105], v3")
        a("ds_read_b64 v[106:107], v3 offset:256")
        a("v_lshrrev_b32 v3, 5, v1")
        a("v_lshlrev_b32 v3, 4, v3")
        a(f"s_lshl_b32 {sA}, {sW}, 7")
        a(f"s_add_u32 {sA}, {sA}, {LDS_CS1}")
        a(f"v_add_u32 v3, {sA}, v3")
        for q in range(4):
            a(f"ds_read_b128 {vr(CS+4*q,4)}, v3 offset:{32*q}")
        for q in range(4):
            a(f"ds_read_b128 {vr(BF+4*q,4)}, v3 offset:{1024 + 32*q}")
        a("s_waitcnt lgkmcnt(0)")
        self.stamp("ffn1")
        HP = 236
        for tt in range(2):
            mu, rs = 104 + 2 * tt, 105 + 2 * tt
            A = ACC + 16 * tt
            for r in range(16): a(f"v_fma_f32 v{A+r}, -v{mu}, v{CS+r}, v{A+r}")
            for r in range(16): a(f"v_fma_f32 v{A+r}, v{A+r}, v{rs}, v{BF+r}")
            for r in range(16): a(f"v_add_f32 v{A+r}, v{A+r}, |v{A+r}|")
            for r in range(16): a(f"v_mul_f32 v{A+r}, v{A+r}, v{A+r}")
            for i in range(8): a(f"v_cvt_pk_bf16_f32 v{HP+8*tt+i}, v{A+2*i}, v{A+2*i+1}")
        a(f"s_mul_i32 {sA}, {sM}, 7")
        a(f"s_add_u32 {sA}, {sA}, {sW}")
        a(f"s_lshl_b32 {sB}, {sA}, 12")
        a(f"s_mul_i32 {sD}, {sC}, {224*1024}")
        a(f"s_add_u32 {sB}, {sB}, {sD}")
        a(f"s_add_u32 {sB}, {sB}, {WS_HID}")
        a(f"s_lshl_b32 {sD}, {sA}, 2")
        a(f"s_lshl_b32 {sE_}, {sC}, 8")
        a(f"s_add_u32 {sD}, {sD}, {sE_}")
        a(f"s_add_u32 {sD}, {sD}, {WS_FLHID}")
        st = []
        for u in range(2):
            for tt in range(2):
                st.append(("dwordx4", vr(HP + 8 * tt + 4 * u, 4), "v2", sB, u * 2048 + tt * 1024))
        self.publish("hid", st, sD)
        if self.opt.get("wbl2"):
            a(f"s_cmp_eq_u32 {sW}, 0")
            a("s_cbranch_scc0 L_nowb")
            a(f"s_cmp_lt_u32 {sID}, {self.opt['wbl2']}")
            a("s_cbranch_scc0 L_nowb")
            a("buffer_wbl2 sc1")
            a.label("L_nowb")
        a("s_branch L_p4_done")
        a.label("L_p4_w7")
        SL = 64
        a("v_lshlrev_b32 v3, 4, v1")
        a(f"s_lshl_b32 {sA}, {sC}, 14")
        a(f"s_add_u32 {sA}, {sA}, {WS_ST}")
        for q in range(16):
            a(f"buffer_load_dwordx4 {vr(SL+4*q,4)}, v3, {srd(SRD_WS)}, {sA} offen offset:{(q%4)*1024} sc1")
            if q % 4 == 3 and q < 15: a(f"s_add_u32 {sA}, {sA}, 4096")
        a("s_waitcnt vmcnt(20)")
        a("s_barrier")
        a("s_waitcnt vmcnt(16)")
        a("s_barrier")
        for i in range(NW2E, 14): self.w2load(0, i)
        a(f"s_waitcnt vmcnt({14 - NW2E})")
        for tt in range(2):
            B = SL + 32 * tt
            for q in range(1, 8):
                for c in range(4): a(f"v_add_f32 v{B+c}, v{B+c}, v{B+4*q+c}")
        R = [SL + c for c in range(4)] + [SL + 32 + c for c in range(4)]
        T = [SL + 8 + c for c in range(8)]
        for sw in ("16", "32"):
            for r, t in zip(R, T): a(f"v_mov_b32 v{t}, v{r}")
            for r, t in zip(R, T): a(f"v_permlane{sw}_swap_b32 v{r}, v{t}")
            for r, t in zip(R, T): a(f"v_add_f32 v{r}, v{r}, v{t}")
        for tt in range(2):
            for u in range(2):
                s_, q_ = SL + 32 * tt + 2 * u, SL + 32 * tt + 2 * u + 1
                a(f"v_mul_f32 v{s_}, 0x{f32bits(1/512):x}, v{s_}")
                a(f"v_mul_f32 v{q_}, 0x{f32bits(1/512):x}, v{q_}")
                a(f"v_fma_f32 v{q_}, -v{s_}, v{s_}, v{q_}")
                a(f"v_max_f32 v{q_}, 0, v{q_}")
                a(f"v_add_f32 v{q_}, 0x{f32bits(1e-5):x}, v{q_}")
                a(f"v_rsq_f32 v{q_}, v{q_}")
                a(f"v_mul_f32 v{q_}, 0.5, v{q_}")
        a("v_and_b32 v3, 15, v1")
        a("v_lshlrev_b32 v3, 4, v3")
        a(f"v_add_u32 v3, {LDS_ST2}, v3")
        a("s_mov_b64 exec, 0xffff")
        a(f"ds_write_b128 v3, {vr(SL,4)}")
        a(f"ds_write_b128 v3, {vr(SL+32,4)} offset:256")
        a("s_mov_b64 exec, -1")
        a("s_waitcnt lgkmcnt(0)")
        a("s_barrier")
        if self.prof and "ffn1" not in self.skip:
            self.nstamp = self.stamp_names.index("ffn1")
            nm = list(self.stamp_names)
            self.stamp("ffn1")
            self.stamp_names = nm
            self.nstamp = len(nm)
        a.label("L_p4_done")

    def p5(self):
        a = self.a
        HB, B2R = 4, 148
        ACCS = [[64, 208], [80, 224]]
        BQ = [40, 44, 48, 52, 96, 100, 108, 112, 116, 120, 124, 128, 240, 244]
        a(f"s_lshl_b32 {sA}, {sM}, 7")
        a(f"s_lshl_b32 {sB}, {sFT}, 6")
        a(f"s_add_u32 {sA}, {sA}, {sB}")
        a(f"s_lshl_b32 {sB}, {sKH}, 5")
        a(f"s_add_u32 s89, {sA}, {sB}")
        a("v_lshrrev_b32 v3, 5, v1")
        a("v_lshlrev_b32 v3, 3, v3")
        a(f"buffer_load_dwordx2 {vr(B2R,2)}, v3, {srd(SRD_B2)}, s89 offen")
        a(f"buffer_load_dwordx2 {vr(B2R+2,2)}, v3, {srd(SRD_B2)}, s89 offen offset:16")
        a(f"s_mul_i32 {sA}, {sW}, 28")
        a(f"s_lshl_b32 {sB}, {sC}, 8")
        a(f"s_add_u32 {sA}, {sA}, {sB}")
        a(f"s_add_u32 {sA}, {sA}, {WS_FLHID}")
        a("v_min_u32 v3, 6, v1")
        a("v_lshlrev_b32 v3, 2, v3")
        self.poll_begin("hid")
        a(f"buffer_load_dword v104, v3, {srd(SRD_WS)}, {sA} offen sc1")
        a("s_waitcnt vmcnt(0)")
        a("v_cmp_ne_u32 vcc, s3, v104")
        self.poll_end("hid", sleep=1)
        self.stamp("hidok")
        a(f"s_mul_i32 {sA}, {sW}, {14*2048}")
        a(f"s_mul_i32 {sD}, {sC}, {224*1024}")
        a(f"s_add_u32 {sA}, {sA}, {sD}")
        a(f"s_add_u32 s67, {sA}, {WS_HID}")
        def bload(tt, i):
            a(f"s_add_u32 {sA}, s67, {i*2048 + tt*1024}")
            a(f"buffer_load_dwordx4 {vr(BQ[i],4)}, v2, {srd(SRD_WS)}, {sA} offen sc1")
        for i in range(14): bload(0, i)
        a(f"s_lshl_b32 {sA}, {sW}, 11")
        a(f"v_add_u32 v104, {sA}, v2")
        a("v_add_u32 v105, 65536, v104")
        def wr_piece(tt, f, half):
            p = 4 * f + 2 * tt + half
            A = ACCS[tt][f] + 8 * half
            base = "v104" if p < 4 else "v105"
            off = (p % 4) * 16384
            a(f"ds_write_b128 {base}, {vr(A,4)} offset:{off}")
            a(f"ds_write_b128 {base}, {vr(A+4,4)} offset:{off+1024}")
        issued = 14
        done = 0
        for tt in range(2):
            for i in range(14):
                n = tt * 14 + i
                a(f"s_waitcnt vmcnt({issued - n - 1})")
                for f in range(2):
                    hm = (W2H0 if f == 0 else W2H1)[i]
                    srcC = "0" if i == 0 else vr(ACCS[tt][f], 16)
                    a(f"v_mfma_f32_32x32x16_bf16 {vr(ACCS[tt][f],16)}, {vr(hm,4)}, {vr(BQ[i],4)}, {srcC}")
                if tt == 0:
                    bload(1, i); issued += 1
                if tt == 1 and i in (2, 4, 6, 8):
                    j = (i - 2) // 2
                    wr_piece(0, j >> 1, j & 1)
        self.stamp("ffn2")
        for f in range(2):
            for half in range(2): wr_piece(1, f, half)
        for i in range(4):
            a(f"v_lshlrev_b32 v{16+2*i}, 16, v{HB+i}")
            a(f"v_and_b32 v{17+2*i}, 0xffff0000, v{HB+i}")
            a(f"v_lshlrev_b32 v{24+2*i}, 16, v{B2R+i}")
            a(f"v_and_b32 v{25+2*i}, 0xffff0000, v{B2R+i}")
        for i in range(8):
            a(f"v_add_f32 v{16+i}, v{16+i}, v{24+i}")
        a("v_and_b32 v3, 31, v1")
        a("v_lshlrev_b32 v3, 10, v3")
        a("v_lshrrev_b32 v12, 5, v1")
        a("v_lshl_or_b32 v3, v12, 4, v3")
        a(f"s_lshl_b32 {sB}, {sW}, 14")
        a(f"v_add_u32 v106, {sB}, v2")
        a(f"s_lshl_b32 {sA}, {sTT}, 5")
        a(f"s_add_u32 {sA}, {sA}, {sT0}")
        a(f"s_lshl_b32 {sA}, {sA}, 10")
        a(f"s_add_u32 {sA}, {sA}, s89")
        a("s_waitcnt lgkmcnt(0)")
        a("s_barrier")
        RD = 152
        a.lg = []
        for q in range(8):
            a.ds(f"ds_read_b128 {vr(RD+8*q,4)}, v106 offset:{q*2048}", f"q{q}")
            a.ds(f"ds_read_b128 {vr(RD+8*q+4,4)}, v106 offset:{q*2048+1024}", f"q{q}")
        for q in range(8):
            a.wait_lg(f"q{q}")
            for i in range(8):
                a(f"v_add_f32 v{16+i}, v{16+i}, v{RD+8*q+i}")
        for i in range(4):
            a(f"v_cvt_pk_bf16_f32 v{88+i}, v{16+2*i}, v{17+2*i}")
        a("v_permlane32_swap_b32 v88, v90")
        a("v_permlane32_swap_b32 v89, v91")
        om = {0: "", 1: " sc1", 2: " nt", 3: " sc0 sc1"}[self.opt.get("outmod", 0)]
        a(f"buffer_store_dwordx4 v[88:91], v3, {srd(SRD_OUT)}, {sA} offen{om}")
        self.stamp("end")

    def kv_flag(self):
        a = self.a
        a(f"s_add_u32 {sD}, {sTag}, 1")
        a(f"s_lshl_b32 {sA}, {sG}, 4")
        a(f"s_add_u32 {sA}, {sA}, {WS_FLKV}")
        a(f"v_mov_b32 v8, {sD}")
        a("v_mov_b32 v9, s3")
        a("v_mov_b32 v10, 0")
        a("s_mov_b64 exec, 1")
        a(f"s_cmp_eq_u32 {sW}, 1")
        a("s_cbranch_scc1 L_flagv")
        a(f"buffer_store_dwordx2 v[8:9], v10, {srd(SRD_WS)}, {sA} offen sc1")
        a("s_branch L_flagd")
        a.label("L_flagv")
        a(f"buffer_store_dword v8, v10, {srd(SRD_WS)}, {sA} offen offset:8 sc1")
        a.label("L_flagd")
        a("s_mov_b64 exec, -1")

    def wave_reduce(self, regs, op, tmps):
        a = self.a
        for n in (8, 4, 2, 1):
            for r in regs:
                a(f"v_{op}_f32_dpp {r}, {r}, {r} row_ror:{n} row_mask:0xf bank_mask:0xf")
        for sw in ("16", "32"):
            for r, t in zip(regs, tmps):
                a(f"v_mov_b32 {t}, {r}")
            for r, t in zip(regs, tmps):
                a(f"v_permlane{sw}_swap_b32 {r}, {t}")
            for r, t in zip(regs, tmps):
                a(f"v_{op}_f32 {r}, {r}, {t}")

    def finish(self):
        a = self.a
        a.label("L_end")
        a("s_endpgm")

    def dump_regs(self, base, regs, off):
        a = self.a
        n = len(regs)
        a(f"s_lshl_b32 {sA}, {sID}, 3")
        a(f"s_add_u32 {sA}, {sA}, {sW}")
        a(f"s_mul_i32 {sA}, {sA}, {n*256}")
        a(f"s_add_u32 {sA}, {sA}, {off}")
        a("v_lshlrev_b32 v3, 2, v1")
        for i, r in enumerate(regs):
            a(f"buffer_store_dword v{r}, v3, {srd(SRD_WS)}, {sA} offen offset:{i*256}")
        a("s_waitcnt vmcnt(0)")

    def build(self):
        self.prologue()
        self.p1()
        if self.stop == "p1":
            self.dump_regs(0, list(range(32, 48)), WS_DBG)
            self.a("s_waitcnt vmcnt(0)")
            self.finish(); return self.text()
        self.p2()
        if self.stop in ("q", "attn"):
            self.a("s_waitcnt vmcnt(0)")
            self.dump_stamps()
            self.finish(); return self.text()
        for nm, fn in (("h", self.p3), ("hid", self.p4), ("out", self.p5)):
            fn()
            if self.stop == nm: break
        if self.opt.get("dirtyend"):
            a = self.a
            n = self.opt["dirtyend"]
            a(f"s_lshl_b32 {sA}, {sID}, 3")
            a(f"s_add_u32 {sA}, {sA}, {sW}")
            a(f"s_mul_i32 {sA}, {sA}, {n*1024}")
            a(f"s_add_u32 {sA}, {sA}, {WS_DBG}")
            for i in range(n):
                a(f"buffer_store_dwordx4 v[4:7], v2, {srd(SRD_WS)}, {sA} offen")
                a(f"s_add_u32 {sA}, {sA}, 1024")
        self.a("s_waitcnt vmcnt(0)")
        self.dump_stamps()
        self.finish()
        return self.text()

    def text(self):
        lines, n = hazard_pass_all(self.a.lines)
        head = f"""; @launch grid=(256,1,1) block=(512,1,1) lds=163840
.amdgcn_target "amdgcn-amd-amdhsa--gfx950"
.text
.globl {KNAME}
.p2align 8
.type {KNAME},@function
{KNAME}:
"""
        tail = f""".section .rodata,"a"
.p2align 6
.amdhsa_kernel {KNAME}
  .amdhsa_next_free_vgpr 256
  .amdhsa_next_free_sgpr 102
  .amdhsa_accum_offset 256
  .amdhsa_group_segment_fixed_size 0
  .amdhsa_kernarg_size 104
  .amdhsa_user_sgpr_count 2
  .amdhsa_user_sgpr_kernarg_segment_ptr 1
  .amdhsa_system_sgpr_workgroup_id_x 1
.end_amdhsa_kernel
"""
        return head + "\n".join(lines) + "\n" + tail

if __name__ == "__main__":
    import argparse
    ap = argparse.ArgumentParser()
    ap.add_argument("--stop", default=None)
    ap.add_argument("-o", default="k.s")
    ap.add_argument("--prof", action="store_true")
    ap.add_argument("--opt", nargs="*", default=[])
    ap.add_argument("--skip", nargs="*", default=["args", "b1", "f1a", "f1b", "f1c"])
    args = ap.parse_args()
    opt = dict((kv.split("=")[0], int(kv.split("=")[1])) for kv in args.opt)
    g = Gen(stop=args.stop, prof=args.prof, opt=opt, skip=args.skip)
    open(args.o, "w").write(g.build())
    print("wrote", args.o, "stamps:", getattr(g, "stamp_names", None))
```

```python
import sys
sys.path.insert(0, "work")
from asmlib import Asm, hazard_pass_all

NAME = "sequential_preLN__grouped_kv_mqa__dense_activation_squared_relu__prompt"
KNAME = NAME + "_kernel"

WS_EPOCH = 0x0
WS_FLKV  = 0x1000
WS_FLWT  = 0x3000
WS_FLO   = 0x4000
WS_FLH   = 0x6000
WS_FLHID = 0x8000
WS_FLWT2 = 0xA000
WS_KV    = 0x10000
WS_ST    = 0x60000
WS_O     = 0x100000
WS_H     = 0x300000
WS_HID   = 0x500000
WS_WOF   = 0xC00000
WS_W1F   = 0xC80000
WS_W2F   = 0xE40000
WS_DBG   = 0x1000000
WS_PROF  = 0x1800000
WS_SIZE  = 0x2000000

SRD_X, SRD_WQ, SRD_WK, SRD_WV = 8, 12, 16, 20
SRD_WO, SRD_W1, SRD_W2, SRD_B1 = 24, 28, 32, 36
SRD_B2, SRD_OUT, SRD_WS, SRD_T = 40, 44, 48, 52
def srd(b): return f"s[{b}:{b+3}]"
sW, sM, sC, sT0, sTag, sFast = "s56", "s57", "s58", "s59", "s60", "s61"
sFT, sTT, sKH, sXCC = "s62", "s63", "s90", "s91"
sID = "s2"
sA, sB, sD, sE_, sF, sG = "s92", "s93", "s94", "s95", "s96", "s97"
sCnt, sPh = "s98", "s99"
sW1B = "s65"
sWOB = "s66"
sPF = "s69"
NW1PRE = 26
W1H = [152 + 4 * k for k in range(26)] + [40, 44, 48, 52, 96, 100]
WOH = [8, 12, 16, 20, 60] + [108 + 4 * k for k in range(11)]
NW2E = 7
W2H0 = [8, 12, 16, 20, 24, 28, 32, 36, 56, 60, 132, 136, 140, 144]
W2H1 = W1H[:14]
sX64 = "s[4:5]"; sY64 = "s[6:7]"

LOG2E = 1.4426950408889634
def f32bits(x):
    import struct
    return struct.unpack("<I", struct.pack("<f", x))[0]
def vr(b, n): return f"v[{b}:{b+n-1}]"

class Gen:
    def __init__(self, stop=None, prof=False, opt=None, skip=()):
        self.skip = set(skip)
        self.a = Asm()
        self.stop = stop
        self.prof = prof
        self.opt = opt or {}
        self.nstamp = 0

    def stamp(self, name):
        if not self.prof: return
        if name in self.skip:
            self.skipped_last = True
            return
        self.skipped_last = False
        i = self.nstamp; self.nstamp += 1
        assert i < 16
        self.stamp_names = getattr(self, "stamp_names", []) + [name]
        a = self.a
        a(f"s_memtime s[4:5]")
        a("s_waitcnt lgkmcnt(0)")
        a("s_sub_u32 s4, s4, s100")
        a(f"v_writelane_b32 v0, s4, {i}")

    def dump_stamps(self):
        if not self.prof: return
        a = self.a
        a("s_memrealtime s[4:5]")
        a("s_waitcnt lgkmcnt(0)")
        a("s_sub_u32 s4, s4, s101")
        a("v_writelane_b32 v0, s4, 15")
        a(f"s_lshl_b32 {sA}, {sID}, 3")
        a(f"s_add_u32 {sA}, {sA}, {sW}")
        a(f"s_lshl_b32 {sA}, {sA}, 6")
        a(f"s_add_u32 {sA}, {sA}, {WS_PROF}")
        a("v_lshlrev_b32 v3, 2, v1")
        a("s_mov_b64 exec, 0xffff")
        a(f"buffer_store_dword v0, v3, {srd(SRD_WS)}, {sA} offen")
        a(f"s_lshl_b32 {sA}, {sID}, 3")
        a(f"s_add_u32 {sA}, {sA}, {sW}")
        a(f"s_cmp_lg_u32 {sA}, {self.opt.get('profw', 0)}")
        a("s_cbranch_scc1 L_nodbgst")
        a("s_load_dwordx2 s[52:53], s[0:1], 88")
        a("s_waitcnt lgkmcnt(0)")
        a("s_mov_b32 s54, 256")
        a("s_mov_b32 s55, 0x20000")
        a("buffer_store_dword v0, v3, s[52:55], 0 offen")
        a.label("L_nodbgst")
        a("s_mov_b64 exec, -1")
        a("s_waitcnt vmcnt(0)")

    def prologue(self):
        a = self.a
        a(f"s_cmp_ge_u32 {sID}, 256")
        a("s_cbranch_scc1 L_end")
        if self.prof:
            a("s_memtime s[100:101]")
            a("s_memrealtime s[6:7]")
        a("s_load_dwordx16 s[64:79], s[0:1], 0")
        a("s_load_dwordx8 s[80:87], s[0:1], 64")
        a("s_load_dwordx2 s[88:89], s[0:1], 96")
        a(f"s_and_b32 {sA}, {sID}, 7")
        a(f"s_lshr_b32 {sB}, {sID}, 6")
        a(f"s_lshl_b32 {sB}, {sB}, 3")
        a(f"s_add_u32 {sC}, {sA}, {sB}")
        a(f"s_lshr_b32 {sM}, {sID}, 3")
        a(f"s_and_b32 {sM}, {sM}, 7")
        a(f"s_lshl_b32 {sT0}, {sC}, 6")
        a(f"s_getreg_b32 {sXCC}, hwreg(HW_REG_XCC_ID)")
        a(f"s_and_b32 {sXCC}, {sXCC}, 7")
        a("v_lshrrev_b32 v3, 6, v0")
        a("v_and_b32 v1, 63, v0")
        a(f"v_readfirstlane_b32 {sW}, v3")
        a("v_lshlrev_b32 v2, 4, v1")
        a(f"s_lshr_b32 {sFT}, {sW}, 2")
        a(f"s_lshr_b32 {sTT}, {sW}, 1")
        a(f"s_and_b32 {sTT}, {sTT}, 1")
        a(f"s_and_b32 {sKH}, {sW}, 1")
        a("s_waitcnt lgkmcnt(0)")
        if self.prof:
            a("v_mov_b32 v0, 0")
            a("s_mov_b32 s101, s6")
        self.stamp("args")
        def mk(b, lo, size):
            a(f"s_mov_b32 s{b}, s{lo}")
            a(f"s_mov_b32 s{b+1}, s{lo+1}")
            a(f"s_mov_b32 s{b+2}, 0x{size:x}")
            a(f"s_mov_b32 s{b+3}, 0x20000")
        mk(SRD_X, 64, 0x200000)
        mk(SRD_WS, 88, WS_SIZE)
        a(f"s_load_dword {sTag}, s[88:89], {WS_EPOCH}")
        mk(SRD_WK, 68, 0x4000)
        mk(SRD_WV, 70, 0x4000)
        mk(SRD_WQ, 66, 0x80000)
        self.mk = mk

    def rest_srds(self):
        mk = self.mk
        mk(SRD_WO, 72, 0x80000)
        mk(SRD_W1, 76, 0x1C0000)
        mk(SRD_B1, 78, 3584)
        mk(SRD_W2, 80, 0x1C0000)
        mk(SRD_B2, 82, 1024)
        mk(SRD_OUT, 84, 0x200000)

    def dma(self, voff, srdb, soff, m0, tag, extra=""):
        a = self.a
        a(f"s_mov_b32 m0, {m0}")
        a.vmem(f"buffer_load_dwordx4 {voff}, {srd(srdb)}, {soff} offen {extra} lds", tag)

    def p1(self):
        a = self.a
        X = self.opt
        ROW = 4
        vXa, vKVo, vWAo, vXt = "v16", "v18", "v19", "v17"
        LDS_WK = 64 * 1024
        LDS_WV = 80 * 1024
        LDS_WA = 96 * 1024
        sG1 = "s67"
        a(f"s_lshl_b32 {sA}, {sM}, 3")
        a(f"s_add_u32 {sA}, {sA}, {sT0}")
        a(f"s_add_u32 {sB}, {sA}, {sW}")
        a(f"s_lshl_b32 {sB}, {sB}, 10")
        a(f"buffer_load_dwordx4 {vr(ROW,4)}, v2, {srd(SRD_X)}, {sB} offen")
        a("v_lshrrev_b32 v8, 3, v1")
        a("v_and_b32 v9, 7, v1")
        a("v_lshrrev_b32 v10, 1, v8")
        a("v_xor_b32 v10, v10, v9")
        a(f"s_and_b32 {sB}, {sM}, 1")
        a(f"s_lshl_b32 {sB}, {sB}, 2")
        a(f"v_xor_b32 v10, {sB}, v10")
        a("v_lshlrev_b32 v10, 4, v10")
        a(f"v_lshl_add_u32 {vXa}, v8, 10, v10")
        def xa_dma(gs, cs, voff):
            a(f"s_lshl_b32 {sD}, {gs}, 13")
            a(f"s_lshl_b32 {sE_}, {cs}, 7")
            a(f"s_add_u32 {sD}, {sD}, {sE_}")
            a(f"s_add_u32 {sD}, {sD}, s68")
            a(f"s_lshl_b32 {sE_}, {cs}, 13")
            a(f"s_lshl_b32 {sF}, {gs}, 10")
            a(f"s_add_u32 m0, {sE_}, {sF}")
            a(f"buffer_load_dwordx4 {voff}, {srd(SRD_X)}, {sD} offen lds")
        self.xa_dma = xa_dma
        a(f"s_lshl_b32 s68, {sT0}, 10")
        xa_dma(sM, sW, vXa)
        a("v_lshrrev_b32 v8, 1, v1")
        a("v_and_b32 v9, 0x13, v8")
        a("v_bfe_u32 v10, v8, 2, 1")
        a("v_lshl_or_b32 v9, v10, 3, v9")
        a("v_bfe_u32 v10, v8, 3, 1")
        a("v_lshl_or_b32 v9, v10, 2, v9")
        a("v_lshlrev_b32 v9, 5, v9")
        a("v_and_b32 v10, 1, v1")
        a(f"v_lshl_or_b32 {vKVo}, v10, 4, v9")
        a(f"s_lshl_b32 {sD}, {sW}, 11")
        for k in range(2):
            a(f"s_add_u32 m0, {sD}, {LDS_WK}")
            a(f"buffer_load_dwordx4 {vKVo}, {srd(SRD_WK)}, {sD} offen lds")
            a(f"s_add_u32 m0, {sD}, {LDS_WV}")
            a(f"buffer_load_dwordx4 {vKVo}, {srd(SRD_WV)}, {sD} offen lds")
            if k == 0: a(f"s_add_u32 {sD}, {sD}, 1024")
        if X.get("kvt"):
            a(f"s_lshl_b32 {sA}, {sC}, 3")
            a(f"s_add_u32 {sA}, {sA}, {sM}")
            a(f"s_cmp_eq_u32 {sW}, 2")
            a("s_cbranch_scc0 L_kvt1")
            a(f"s_lshl_b32 {sB}, {sA}, 10")
            a(f"s_add_u32 {sB}, {sB}, {WS_KV}")
            a(f"buffer_load_dwordx4 v[24:27], v2, {srd(SRD_WS)}, {sB} offen sc1")
            a.label("L_kvt1")
            a(f"s_cmp_eq_u32 {sW}, 3")
            a("s_cbranch_scc0 L_kvt2")
            a(f"s_lshl_b32 {sB}, {sA}, 4")
            a(f"s_add_u32 {sB}, {sB}, {WS_FLKV}")
            a("v_mov_b32 v24, 0")
            a(f"buffer_load_dword v25, v24, {srd(SRD_WS)}, {sB} offen sc1")
            a.label("L_kvt2")
        a("v_lshrrev_b32 v8, 3, v1")
        a("v_and_b32 v9, 7, v1")
        a("v_bfe_u32 v10, v1, 4, 1")
        a("v_lshlrev_b32 v10, 2, v10")
        a("v_xor_b32 v9, v9, v10")
        a("v_lshlrev_b32 v9, 4, v9")
        a(f"v_lshl_add_u32 {vWAo}, v8, 10, v9")
        a(f"s_add_u32 {sG1}, {sM}, 1")
        a(f"s_and_b32 {sG1}, {sG1}, 7")
        NBULK = 20
        def bulk():
            a(f"s_sub_u32 {sA}, {sW}, 2")
            a(f"s_add_u32 {sB}, {sA}, 2")
            for i in range(9):
                a(f"s_lshr_b32 s4, {sB}, 3")
                a(f"s_add_u32 s4, s4, 1")
                a(f"s_and_b32 s5, s4, 1")
                a(f"s_lshl_b32 s5, s5, 6")
                a(f"v_xor_b32 {vXt}, s5, {vXa}")
                a(f"s_add_u32 s4, s4, {sM}")
                a(f"s_and_b32 s4, s4, 7")
                a(f"s_and_b32 s5, {sB}, 7")
                xa_dma("s4", "s5", vXt)
                if i < 8: a(f"s_add_u32 {sB}, {sB}, 6")
            a(f"s_lshl_b32 {sD}, {sA}, 13")
            a(f"s_lshl_b32 {sE_}, {sM}, 7")
            a(f"s_add_u32 {sD}, {sD}, {sE_}")
            a(f"s_lshl_b32 {sE_}, {sA}, 10")
            a(f"s_add_u32 {sE_}, {sE_}, {LDS_WA}")
            for i in range(11):
                if i == 10:
                    a(f"s_cmp_ge_u32 {sA}, 4")
                    a("s_cbranch_scc1 L_blk_done")
                a(f"s_mov_b32 m0, {sE_}")
                a(f"buffer_load_dwordx4 {vWAo}, {srd(SRD_WQ)}, {sD} offen lds")
                if i < 10:
                    a(f"s_add_u32 {sD}, {sD}, {6*8192}")
                    a(f"s_add_u32 {sE_}, {sE_}, {6*1024}")
            a.label("L_blk_done")
        early = X.get("bulk", 0) == 1
        if early:
            a("s_barrier")
            a(f"s_cmp_lt_u32 {sW}, 2")
            a("s_cbranch_scc1 L_nobulk0")
            bulk()
            a.label("L_nobulk0")
        self.rest_srds()
        XF, WF = 64, 128
        a(f"s_cmp_ge_u32 {sW}, 2")
        a("s_cbranch_scc1 L_no_ones")
        for i in range(64):
            a(f"v_mov_b32 v{XF+i}, 0x3f803f80" if i == 0 else f"v_mov_b32 v{XF+i}, v{XF}")
        a.label("L_no_ones")
        if early:
            a(f"s_cmp_lt_u32 {sW}, 2")
            a("s_cbranch_scc1 L_rw0")
            a("s_waitcnt vmcnt(24)")
            a("s_branch L_rw1")
            a.label("L_rw0")
            a("s_waitcnt vmcnt(5)")
            a.label("L_rw1")
        else:
            a("s_waitcnt vmcnt(5)")
        a("s_mov_b32 s3, 0x3f803f80")
        a(f"v_dot2_f32_bf16 v8, v{ROW}, s3, 0")
        a(f"v_dot2_f32_bf16 v9, v{ROW}, v{ROW}, 0")
        for i in range(1, 4):
            a(f"v_dot2_f32_bf16 v8, v{ROW+i}, s3, v8")
            a(f"v_dot2_f32_bf16 v9, v{ROW+i}, v{ROW+i}, v9")
        self.wave_reduce(["v8", "v9"], "add", ["v10", "v11"])
        a(f"v_mul_f32 v8, 0x{f32bits(1/512):x}, v8")
        a(f"v_mul_f32 v9, 0x{f32bits(1/512):x}, v9")
        a("v_fma_f32 v9, -v8, v8, v9")
        a("v_max_f32 v9, 0, v9")
        a(f"v_add_f32 v9, 0x{f32bits(1e-5):x}, v9")
        a("v_rsq_f32 v9, v9")
        a(f"s_lshl_b32 {sA}, {sW}, 3")
        a(f"s_lshl_b32 {sB}, {sG1}, 10")
        a(f"s_add_u32 {sA}, {sA}, {sB}")
        a(f"v_lshlrev_b32 v10, 13, v1")
        a(f"v_add_u32 v10, {sA}, v10")
        a("s_mov_b64 exec, 3")
        a("ds_write_b64 v10, v[8:9]")
        a("s_mov_b64 exec, -1")
        if early:
            a(f"s_cmp_lt_u32 {sW}, 2")
            a("s_cbranch_scc1 L_b1a")
            a("s_waitcnt vmcnt(19) lgkmcnt(0)")
            a("s_branch L_b1b")
            a.label("L_b1a")
            a("s_waitcnt vmcnt(0) lgkmcnt(0)")
            a.label("L_b1b")
        else:
            a("s_waitcnt vmcnt(0) lgkmcnt(0)")
        a("s_barrier")
        self.stamp("b1")
        a(f"s_cmp_lt_u32 {sW}, 2")
        a("s_cbranch_scc1 L_kv_go")
        if not early: bulk()
        a("s_branch L_kv_done")
        a.label("L_kv_go")
        a("v_and_b32 v8, 7, v1")
        a(f"s_lshl_b32 {sA}, {sM}, 3")
        a(f"v_add_u32 v8, {sA}, v8")
        a("v_bfe_u32 v9, v8, 1, 3")
        a("v_lshrrev_b32 v10, 4, v1")
        a("v_xor_b32 v9, v9, v10")
        a("v_lshlrev_b32 v9, 4, v9")
        a("v_lshl_add_u32 v20, v8, 7, v9")
        a("v_xor_b32 v21, 64, v20")
        a("v_bfe_u32 v8, v1, 4, 1")
        a("v_bfe_u32 v9, v1, 2, 2")
        a("v_lshl_add_u32 v8, v8, 2, v9")
        a("v_lshlrev_b32 v8, 5, v8")
        a("v_lshrrev_b32 v9, 5, v1")
        a("v_lshl_add_u32 v8, v9, 9, v8")
        a("v_and_b32 v9, 3, v1")
        a("v_lshl_add_u32 v8, v9, 3, v8")
        a(f"s_lshl_b32 {sA}, {sW}, 14")
        a(f"s_add_u32 {sA}, {sA}, {LDS_WK}")
        a(f"v_add_u32 v22, {sA}, v8")
        a("s_mov_b32 exec_lo, 0x00ff00ff")
        a("s_mov_b32 exec_hi, 0x00ff00ff")
        for s in range(16):
            a.ds(f"ds_read_b128 {vr(XF+4*s,4)}, {'v20' if s%2==0 else 'v21'} offset:{(s>>1)*8192}", f"x{s}")
        a("s_mov_b64 exec, -1")
        D = 24
        a(f"s_cmp_eq_u32 {sW}, 1")
        a("s_cbranch_scc1 L_vwave")
        saved_lg = list(a.lg)
        for wave in ("K", "V"):
            a.lg = list(saved_lg)
            if wave == "V": a.label("L_vwave")
            def wread(s):
                a.ds(f"ds_read_b64_tr_b16 {vr(WF+4*s,2)}, v22 offset:{s*1024}", f"w{s}")
                a.ds(f"ds_read_b64_tr_b16 {vr(WF+4*s+2,2)}, v22 offset:{s*1024+256}", f"w{s}")
            for s in range(4): wread(s)
            for s in range(16):
                a.wait_lg(f"w{s}")
                srcC = "0" if s == 0 else vr(D, 4)
                if wave == "K":
                    a(f"v_mfma_f32_16x16x32_bf16 {vr(D,4)}, {vr(WF+4*s,4)}, {vr(XF+4*s,4)}, {srcC}")
                else:
                    a(f"v_mfma_f32_16x16x32_bf16 {vr(D,4)}, {vr(XF+4*s,4)}, {vr(WF+4*s,4)}, {srcC}")
                if s + 4 < 16: wread(s + 4)
            a(f"s_lshl_b32 {sA}, {sC}, 3")
            a(f"s_add_u32 {sA}, {sA}, {sM}")
            a(f"s_lshl_b32 {sB}, {sA}, 10")
            a(f"s_add_u32 {sB}, {sB}, {WS_KV}")
            if wave == "K":
                a("v_and_b32 v8, 7, v1")
                a("v_lshlrev_b32 v8, 3, v8")
                a(f"s_lshl_b32 s4, {sG1}, 10")
                a(f"v_add_u32 v8, s4, v8")
                a.ds("ds_read_b64 v[10:11], v8", "st")
                for r in range(4):
                    a(f"v_mov_b32_dpp v{28+r}, v{D+r} row_ror:8 row_mask:0xf bank_mask:0xf")
                a.wait_lg("st")
                for r in range(4):
                    a(f"v_fma_f32 v{D+r}, -v10, v{28+r}, v{D+r}")
                for r in range(4):
                    a(f"v_mul_f32 v{D+r}, v11, v{D+r}")
                a(f"v_cvt_pk_bf16_f32 v32, v{D}, v{D+1}")
                a(f"v_cvt_pk_bf16_f32 v33, v{D+2}, v{D+3}")
                a("v_mov_b32 v34, v32")
                a("v_mov_b32 v35, v33")
                a("v_permlane32_swap_b32 v32, v34")
                a("v_permlane32_swap_b32 v33, v35")
                a("v_bfe_u32 v8, v1, 4, 1")
                a("v_and_b32 v9, 7, v1")
                a("v_lshlrev_b32 v9, 4, v9")
                a("v_lshl_add_u32 v8, v8, 7, v9")
                a("s_mov_b32 exec_lo, 0x00ff00ff")
                a("s_mov_b32 exec_hi, 0")
                a(f"buffer_store_dwordx4 v[32:35], v8, {srd(SRD_WS)}, {sB} offen sc1")
                a("s_mov_b64 exec, -1")
                a("v_dot2_f32_bf16 v12, v32, v32, 0")
                for i in (33, 34, 35):
                    a(f"v_dot2_f32_bf16 v12, v{i}, v{i}, v12")
                a("v_mov_b32 v13, v12")
                a("v_permlane16_swap_b32 v12, v13")
                a("v_add_f32 v12, v12, v13")
                a("v_and_b32 v13, 8, v1")
                a("v_cmp_eq_u32 vcc, 0, v13")
                a("v_cndmask_b32 v12, 0, v12, vcc")
                for n in (8, 4, 2, 1):
                    a(f"v_max_f32_dpp v12, v12, v12 row_ror:{n} row_mask:0xf bank_mask:0xf")
                a(f"v_readlane_b32 {sD}, v12, 0")
                a(f"s_add_u32 {sD}, {sD}, 8")
                a(f"s_and_b32 {sD}, {sD}, 0xfffffff8")
                a(f"s_or_b32 {sD}, {sD}, {sXCC}")
                a(f"s_mov_b32 s3, {sD}")
                a(f"s_mov_b32 {sG}, {sA}")
                a("s_branch L_kv_fin")
            else:
                a("v_bfe_u32 v8, v1, 4, 1")
                a("v_lshlrev_b32 v8, 5, v8")
                a(f"s_lshl_b32 s4, {sG1}, 10")
                a(f"s_add_u32 s4, s4, 8192")
                a(f"v_add_u32 v8, s4, v8")
                a.ds("ds_read_b128 v[12:15], v8", "st")
                a.ds("ds_read_b128 v[36:39], v8 offset:16", "st")
                a("v_and_b32 v9, 7, v1")
                a("v_lshlrev_b32 v9, 3, v9")
                a(f"v_add_u32 v40, s4, v9")
                a.ds("ds_read_b64 v[42:43], v40", "st")
                a(f"v_mov_b32 v28, v{D}")
                a(f"v_mov_b32 v29, v{D}")
                a("v_permlane32_swap_b32 v28, v29")
                a.wait_lg("st")
                st = [(12, 13), (14, 15), (36, 37), (38, 39)]
                for r in range(4):
                    a(f"v_fma_f32 v{D+r}, -v{st[r][0]}, v29, v{D+r}")
                for r in range(4):
                    a(f"v_mul_f32 v{D+r}, v{st[r][1]}, v{D+r}")
                a(f"v_cvt_pk_bf16_f32 v32, v{D}, v{D+1}")
                a(f"v_cvt_pk_bf16_f32 v33, v{D+2}, v{D+3}")
                a("v_mov_b32 v34, v32")
                a("v_mov_b32 v35, v33")
                a("v_permlane16_swap_b32 v32, v34")
                a("v_permlane16_swap_b32 v33, v35")
                a("v_add_u32 v8, 256, v2")
                a("s_mov_b64 exec, 0xffff")
                a(f"buffer_store_dwordx4 v[32:35], v8, {srd(SRD_WS)}, {sB} offen sc1")
                a("s_mov_b64 exec, 0xff")
                a("v_add_u32 v9, 512, v9")
                a(f"buffer_store_dwordx2 v[42:43], v9, {srd(SRD_WS)}, {sB} offen sc1")
                a("s_mov_b64 exec, -1")
                a(f"s_mov_b32 {sG}, {sA}")
        a.lg = []
        a.label("L_kv_fin")
        self.stamp("kvst")
        a(f"v_xor_b32 {vXt}, 64, {vXa}")
        xa_dma(sG1, sW, vXt)
        a("s_waitcnt vmcnt(1)")
        self.kv_flag()
        self.stamp("kvfl")
        a("s_waitcnt vmcnt(1)")
        a("s_branch L_b2")
        a.label("L_kv_done")
        a("s_waitcnt vmcnt(0)")
        a.label("L_b2")
        a("s_barrier")
        self.stamp("b2")
        a.vm = []
        AF, BF, ACC, CS = 64, 128, 32, 48
        vAe, vAo = "v20", "v21"
        vB = ["v22", "v23", "v24", "v25"]
        a("v_bfe_u32 v8, v1, 2, 2")
        a("v_lshrrev_b32 v9, 5, v1")
        a("v_lshl_add_u32 v9, v9, 3, v8")
        a("v_lshlrev_b32 v9, 7, v9")
        a("v_bfe_u32 v10, v1, 4, 1")
        a(f"v_xor_b32 v10, {sKH}, v10")
        a("v_lshlrev_b32 v10, 5, v10")
        a("v_and_b32 v11, 3, v1")
        a("v_lshl_add_u32 v10, v11, 3, v10")
        a(f"s_lshl_b32 {sA}, {sFT}, 6")
        a(f"v_add_u32 v10, {sA}, v10")
        a("v_bfe_u32 v11, v1, 3, 1")
        a("v_lshlrev_b32 v11, 6, v11")
        a("v_xor_b32 v10, v10, v11")
        a("v_add_u32 v9, v9, v10")
        a(f"s_lshl_b32 {sA}, {sKH}, 15")
        a(f"s_add_u32 {sA}, {sA}, {LDS_WA}")
        a(f"s_lshl_b32 {sB}, {sTT}, 11")
        a(f"s_add_u32 {sD}, {sA}, {sB}")
        a(f"v_add_u32 {vAe}, {sD}, v9")
        a(f"s_sub_u32 {sD}, {sA}, {sB}")
        a(f"v_add_u32 {vAo}, {sD}, v9")
        a("v_and_b32 v8, 31, v1")
        a("v_bfe_u32 v9, v1, 1, 3")
        a("v_lshrrev_b32 v10, 5, v1")
        a("v_xor_b32 v9, v9, v10")
        a("v_lshlrev_b32 v9, 4, v9")
        a("v_lshl_add_u32 v8, v8, 7, v9")
        a(f"s_lshl_b32 {sA}, {sKH}, 15")
        a(f"s_lshl_b32 {sB}, {sTT}, 12")
        a(f"s_add_u32 {sA}, {sA}, {sB}")
        a(f"v_add_u32 v8, {sA}, v8")
        a(f"s_lshl_b32 {sB}, {sTT}, 5")
        a(f"v_xor_b32 {vB[0]}, {sB}, v8")
        a(f"v_xor_b32 {vB[1]}, 32, {vB[0]}")
        a(f"v_xor_b32 {vB[2]}, 64, {vB[0]}")
        a(f"v_xor_b32 {vB[3]}, 96, {vB[0]}")
        self.stamp("q0")
        a("s_mov_b32 s5, 0x3f803f80")
        NB = 5
        def qread(p):
            c, q = p >> 2, p & 3
            sl = p % NB
            va = vAe if q % 2 == 0 else vAo
            off = c * 8192 + q * 2048
            a.ds(f"ds_read_b64_tr_b16 {vr(AF+4*sl,2)}, {va} offset:{off}", f"q{p}")
            a.ds(f"ds_read_b64_tr_b16 {vr(AF+4*sl+2,2)}, {va} offset:{off+512}", f"q{p}")
            a.ds(f"ds_read_b128 {vr(BF+4*sl,4)}, {vB[q]} offset:{c*8192}", f"q{p}")
        PRE = 4
        for p in range(PRE): qread(p)
        for p in range(16):
            sl = p % NB
            a.wait_lg(f"q{p}")
            srcC = "0" if p == 0 else vr(ACC, 16)
            a(f"v_mfma_f32_32x32x16_bf16 {vr(ACC,16)}, {vr(AF+4*sl,4)}, {vr(BF+4*sl,4)}, {srcC}")
            if p % 2 == 0:
                for i in range(4):
                    src2 = "0" if (p == 0 and i == 0) else f"v{CS}"
                    a(f"v_dot2_f32_bf16 v{CS}, v{AF+4*sl+i}, s5, {src2}")
            nx = p + PRE
            if nx < 16: qread(nx)
        self.stamp("q1")
        LDS_E = 64 * 1024
        LDS_CS = 80 * 1024
        a(f"s_lshl_b32 {sA}, {sW}, 11")
        a(f"s_add_u32 {sA}, {sA}, {LDS_E}")
        a(f"v_add_u32 v8, {sA}, v2")
        a(f"ds_write_b128 v8, {vr(ACC+8,4)}")
        a(f"ds_write_b128 v8, {vr(ACC+12,4)} offset:1024")
        a(f"v_mov_b32 v9, v{CS}")
        a(f"v_permlane32_swap_b32 v{CS}, v9")
        a(f"v_add_f32 v9, v{CS}, v9")
        a("v_and_b32 v10, 31, v1")
        a(f"s_lshl_b32 {sA}, {sKH}, 4")
        a(f"v_xor_b32 v10, {sA}, v10")
        a(f"s_lshl_b32 {sA}, {sKH}, 1")
        a(f"s_add_u32 {sA}, {sA}, {sTT}")
        a(f"s_lshl_b32 {sA}, {sA}, 1")
        a(f"s_add_u32 {sA}, {sA}, {sFT}")
        a(f"s_lshl_b32 {sA}, {sA}, 7")
        a(f"s_add_u32 {sA}, {sA}, {LDS_CS}")
        a("v_lshlrev_b32 v10, 2, v10")
        a(f"v_add_u32 v10, {sA}, v10")
        a("ds_write_b32 v10, v9")
        a("s_waitcnt lgkmcnt(0)")
        a("s_barrier")
        self.stamp("q2")
        a.lg = []
        a(f"s_xor_b32 {sA}, {sW}, 1")
        a(f"s_lshl_b32 {sA}, {sA}, 11")
        a(f"s_add_u32 {sA}, {sA}, {LDS_E}")
        a(f"v_add_u32 v8, {sA}, v2")
        a.ds(f"ds_read_b128 {vr(64,4)}, v8", "e")
        a.ds(f"ds_read_b128 {vr(68,4)}, v8 offset:1024", "e")
        a("v_lshrrev_b32 v9, 5, v1")
        a("v_lshlrev_b32 v9, 4, v9")
        a(f"s_lshl_b32 {sA}, {sFT}, 7")
        a(f"s_lshl_b32 {sB}, {sKH}, 6")
        a(f"s_add_u32 {sA}, {sA}, {sB}")
        a(f"s_add_u32 {sA}, {sA}, {LDS_CS}")
        a(f"v_add_u32 v9, {sA}, v9")
        for q in range(4):
            a.ds(f"ds_read_b128 {vr(72+8*q,4)}, v9 offset:{q*256}", "cs")
            a.ds(f"ds_read_b128 {vr(76+8*q,4)}, v9 offset:{q*256+32}", "cs")
        a.wait_lg("e")
        for i in range(8):
            a(f"v_add_f32 v{ACC+i}, v{ACC+i}, v{64+i}")
        a.wait_lg("cs")
        for i in range(8):
            a(f"v_add_f32 v{72+i}, v{72+i}, v{80+i}")
            a(f"v_add_f32 v{88+i}, v{88+i}, v{96+i}")
        for i in range(8):
            a(f"v_add_f32 v{40+i}, v{72+i}, v{88+i}")


    def poll_begin(self, name, limit=200000):
        a = self.a
        a(f"s_mov_b32 {sCnt}, {limit}")
        a.label(f"L_poll_{name}")
    def poll_end(self, name, sleep=1):
        a = self.a
        a(f"s_cbranch_vccz L_pollok_{name}")
        a(f"s_sub_u32 {sCnt}, {sCnt}, 1")
        a(f"s_cmp_eq_u32 {sCnt}, 0")
        a(f"s_cbranch_scc1 L_pollok_{name}")
        if sleep: a(f"s_sleep {sleep}")
        a(f"s_branch L_poll_{name}")
        a.label(f"L_pollok_{name}")

    def p2(self):
        a = self.a
        X = self.opt
        LDS_E = 132 * 1024
        Q, NEGM, S0, S1, IDX, O, KF, VF = 4, 8, 24, 40, 56, 64, 80, 88
        vKa, vVa, vKb, vVb = "v104", "v105", "v106", "v107"
        vT1, vT2 = "v108", "v109"
        PL = 110
        WD = 112
        W1 = 128
        sTG = "s3"
        a(f"s_add_u32 {sTG}, {sTag}, 1")
        self.stamp("b3")
        if X.get("kvsleep", 0):
            a(f"s_sleep {X['kvsleep']}")
        LDS_BC = 156 * 1024
        vDK, vDV = "v59", "v60"
        a("v_bfe_u32 v59, v1, 3, 2")
        a("v_lshlrev_b32 v59, 10, v59")
        a("v_and_b32 v13, 7, v1")
        a("v_lshl_or_b32 v59, v13, 4, v59")
        a("v_lshrrev_b32 v13, 5, v1")
        a("v_lshl_or_b32 v59, v13, 7, v59")
        a("v_lshrrev_b32 v60, 4, v1")
        a("v_lshlrev_b32 v60, 10, v60")
        a("v_and_b32 v13, 15, v1")
        a("v_lshl_or_b32 v60, v13, 4, v60")
        a("v_add_u32 v60, 256, v60")
        sRot = "s64"
        a(f"s_lshr_b32 {sRot}, {sID}, 3")
        a(f"s_lshl_b32 {sRot}, {sRot}, 1")
        a("v_bfe_u32 v8, v1, 3, 2")
        a("v_and_b32 v9, 7, v1")
        a("v_lshlrev_b32 v9, 3, v9")
        a("v_lshl_add_u32 v8, v8, 10, v9")
        a(f"s_lshl_b32 {sA}, {sC}, 3")
        a(f"s_lshl_b32 {sB}, {sTT}, 2")
        a(f"s_add_u32 {sA}, {sA}, {sB}")
        a(f"s_lshl_b32 {sA}, {sA}, 10")
        a(f"s_add_u32 s65, {sA}, {WS_KV + 512}")
        allpoll = X.get("allpoll", 0)
        if not allpoll:
            a(f"s_cmp_eq_u32 {sW}, 7")
            a("s_cbranch_scc0 L_nopollkv")
        a("v_lshlrev_b32 v3, 6, v1")
        a(f"s_mov_b32 {sA}, {WS_FLKV}")
        self.poll_begin("kv")
        for q in range(4):
            a(f"buffer_load_dwordx4 {vr(64+4*q,4)}, v3, {srd(SRD_WS)}, {sA} offen offset:{16*q} sc1")
        a("s_waitcnt vmcnt(0)")
        a(f"v_xor_b32 v80, {sTG}, v64")
        a(f"v_xor_b32 v81, {sTG}, v66")
        a("v_or_b32 v80, v80, v81")
        for q in range(1, 4):
            a(f"v_xor_b32 v81, {sTG}, v{64+4*q}")
            a("v_or_b32 v80, v80, v81")
            a(f"v_xor_b32 v81, {sTG}, v{66+4*q}")
            a("v_or_b32 v80, v80, v81")
        a("v_cmp_ne_u32 vcc, 0, v80")
        self.poll_end("kv", sleep=X.get("kvsl", 2))
        if not allpoll:
            a.label("L_nopollkv")
            a("s_barrier")
        self.stamp("kvok")
        a(f"buffer_load_dwordx2 v[10:11], v8, {srd(SRD_WS)}, s65 offen sc1")
        def kv_tile(spos):
            a(f"s_add_u32 {sD}, {spos}, {sRot}")
            a(f"s_and_b32 {sD}, {sD}, 63")
            a(f"s_lshl_b32 {sD}, {sD}, 12")
            a(f"s_add_u32 {sD}, {sD}, {WS_KV}")
            a(f"s_lshl_b32 {sE_}, {spos}, 11")
            a(f"s_mov_b32 m0, {sE_}")
            a(f"buffer_load_dwordx4 {vDK}, {srd(SRD_WS)}, {sD} offen sc1 lds")
            a(f"s_add_u32 {sE_}, {sE_}, 1024")
            a(f"s_mov_b32 m0, {sE_}")
            a(f"buffer_load_dwordx4 {vDV}, {srd(SRD_WS)}, {sD} offen sc1 lds")
        a(f"s_mov_b32 {sF}, {sW}")
        kv_tile(sF)
        a(f"s_add_u32 {sF}, {sW}, 8")
        kv_tile(sF)
        self.wt_issue()
        a(f"s_cmp_eq_u32 {sW}, 7")
        a("s_cbranch_scc0 L_nobc")
        a("v_and_b32 v80, -8, v65")
        for q in range(1, 4):
            a(f"v_and_b32 v81, -8, v{65+4*q}")
            a("v_max_f32 v80, v80, v81")
        a(f"v_xor_b32 v82, {sXCC}, v65")
        for q in range(1, 4):
            a(f"v_xor_b32 v81, {sXCC}, v{65+4*q}")
            a("v_or_b32 v82, v82, v81")
        a("v_and_b32 v82, 7, v82")
        a("v_cmp_ne_u32 vcc, 0, v82")
        a(f"s_lshl_b32 {sA}, {sC}, 1")
        a(f"s_lshr_b64 {sX64}, vcc, {sA}")
        a(f"s_and_b32 {sFast}, s4, 3")
        if X.get("slow"): a(f"s_mov_b32 {sFast}, 1")
        self.wave_reduce(["v80"], "max", ["v81"])
        a("v_sqrt_f32 v80, v80")
        a(f"v_mov_b32 v81, {sFast}")
        a(f"v_mov_b32 v82, {LDS_BC}")
        a("s_mov_b64 exec, 1")
        a("ds_write_b64 v82, v[80:81]")
        a("s_mov_b64 exec, -1")
        a.label("L_nobc")
        a(f"s_or_b32 {sA}, {sID}, {sW}")
        a(f"s_cmp_lg_u32 {sA}, 0")
        a("s_cbranch_scc1 L_noepoch")
        a(f"v_mov_b32 v81, {sTG}")
        a("v_mov_b32 v82, 0")
        a("s_mov_b64 exec, 1")
        a(f"buffer_store_dword v81, v82, {srd(SRD_WS)}, 0 offen")
        a("s_mov_b64 exec, -1")
        a.label("L_noepoch")
        a("s_waitcnt vmcnt(6)")
        a(f"v_mul_f32 v11, 0x{f32bits(0.25*LOG2E):x}, v11")
        for i in range(8):
            a(f"v_fma_f32 v{32+i}, -v10, v{40+i}, v{32+i}")
        for i in range(8):
            a(f"v_mul_f32 v{32+i}, v11, v{32+i}")
        for i in range(4):
            a(f"v_cvt_pk_bf16_f32 v{Q+i}, v{32+2*i}, v{33+2*i}")
        if self.stop == "q":
            self.dump_regs(0, [Q, Q+1, Q+2, Q+3], WS_DBG)
            return
        a(f"v_dot2_f32_bf16 v12, v{Q}, v{Q}, 0")
        for i in range(1, 4):
            a(f"v_dot2_f32_bf16 v12, v{Q+i}, v{Q+i}, v12")
        a("v_mov_b32 v13, v12")
        a("v_permlane32_swap_b32 v12, v13")
        a("v_add_f32 v12, v12, v13")
        a("v_sqrt_f32 v12, v12")
        a(f"v_mul_f32 v12, 0x{f32bits(1.0078125):x}, v12")
        def bound_check():
            a("v_mul_f32 v12, v12, v62")
            a(f"v_cmp_lt_f32 vcc, 0x{f32bits(48.0):x}, v12")
            a("v_cmp_u_f32 s[4:5], v12, v12")
            a("s_or_b64 vcc, vcc, s[4:5]")
            a("s_cmp_lg_u64 vcc, 0")
            a(f"s_cselect_b32 {sG}, 1, 0")
            a(f"v_readfirstlane_b32 {sFast}, v63")
            if X.get("forcefb"): a(f"s_mov_b32 {sG}, 1")
        a(f"v_mov_b32 v{VF}, 0x3f803f80")
        for i in range(1, 16):
            a(f"v_mov_b32 v{VF+i}, v{VF}")
        for i in range(16):
            a(f"v_mov_b32 v{O+i}, 0")
        a(f"v_mov_b32 v{IDX}, 0xdddddddd")
        a(f"v_mov_b32 {vKa}, v2")
        a(f"v_add_u32 {vKb}, 0x10000, v2")
        a("v_and_b32 v3, 15, v1")
        a("v_lshlrev_b32 v3, 4, v3")
        a("v_lshrrev_b32 v61, 5, v1")
        a("v_lshl_or_b32 v3, v61, 8, v3")
        a(f"v_add_u32 {vVa}, 1024, v3")
        a(f"v_add_u32 {vVb}, 0x10000, {vVa}")
        self.wt_addr(vT1, vT2)
        self.wt_poll_addr()
        a("s_mov_b32 s6, 0x0000ffff")
        a("s_mov_b32 s7, 0x0000ffff")
        a(f"v_mov_b32 v61, {LDS_BC}")
        a("s_waitcnt vmcnt(2) lgkmcnt(0)")
        a("s_barrier")
        self.stamp("b4")
        a(f"s_cmp_eq_u32 {sFT}, 0")
        a("s_cbranch_scc1 L_clsA")
        a(f"s_add_u32 {sF}, {sW}, 12")
        a(f"s_mov_b32 {sCnt}, 12")
        a.label("L_kvrest")
        kv_tile(sF)
        a(f"s_add_u32 {sF}, {sF}, 4")
        a(f"s_sub_u32 {sCnt}, {sCnt}, 1")
        a(f"s_cmp_lg_u32 {sCnt}, 0")
        a("s_cbranch_scc1 L_kvrest")
        a("s_setprio 1")
        a("s_waitcnt vmcnt(0)")
        a("s_barrier")
        a(f"s_mov_b32 {sPh}, 1")
        a("s_branch L_clsD")
        a.label("L_clsA")
        a("s_setprio 2")
        a(f"s_mov_b32 {sPh}, 0")
        a.label("L_clsD")

        def kread(t):
            base = vKa if t < 32 else vKb
            a.ds(f"ds_read_b128 {vr(KF+4*(t%2),4)}, {base} offset:{(t%32)*2048}", f"K{t}")
        def vread(t):
            base = vVa if t < 32 else vVb
            a("s_mov_b64 exec, s[6:7]")
            a.ds(f"ds_read_b128 {vr(VF+8*(t%2),4)}, {base} offset:{(t%32)*2048}", f"V{t}")
            a.ds(f"ds_read_b128 {vr(VF+8*(t%2)+4,4)}, {base} offset:{(t%32)*2048+512}", f"V{t}")
            a("s_mov_b64 exec, -1")
        def Sr(t): return S0 if t % 2 == 0 else S1
        def ms(t):
            a.wait_lg(f"K{t}")
            a(f"v_mfma_f32_32x32x16_bf16 {vr(Sr(t),16)}, {vr(KF+4*(t%2),4)}, {vr(Q,4)}, 0")
        def sm(t, half):
            a.wait_lg(f"V{t}")
            a(f"v_smfmac_f32_32x32x32_bf16 {vr(O,16)}, {vr(VF+8*(t%2)+4*half,4)}, {vr(Sr(t)+8*half,8)}, v{IDX}")
        def E(t, lo, hi):
            for i in range(lo, hi + 1): a(f"v_exp_f32 v{Sr(t)+i}, v{Sr(t)+i}")

        TA = dict(wt=X.get("Awt", 10), fl=X.get("Afl", 17), bar=13, sw=X.get("sw", 50))
        TB = dict(wt=X.get("Bwt", 0), fl=X.get("Bfl", 2))
        TPOLL, TCHK, TLD0 = X.get("tpoll", 30), X.get("tchk", 32), X.get("tld", 32)
        def cond(cls, name, fn):
            lab = a.newlabel(f"L_{name}")
            a(f"s_cmp_eq_u32 {sFT}, {cls}")
            a(f"s_cbranch_scc0 {lab}")
            fn()
            a.label(lab)
        def b_wt():
            a("s_waitcnt vmcnt(0)")
            a(f"ds_read_b64_tr_b16 v[{WD}:{WD+1}], {vT1}")
            a(f"ds_read_b64_tr_b16 v[{WD+2}:{WD+3}], {vT1} offset:1024")
            a(f"ds_read_b64_tr_b16 v[{WD+4}:{WD+5}], {vT2}")
            a(f"ds_read_b64_tr_b16 v[{WD+6}:{WD+7}], {vT2} offset:1024")
            a("s_waitcnt lgkmcnt(0)")
            a(f"buffer_store_dwordx4 v[{WD}:{WD+3}], v2, {srd(SRD_WS)}, s88 offen sc1")
            a("s_add_u32 s88, s88, s89")
            a(f"buffer_store_dwordx4 v[{WD+4}:{WD+7}], v2, {srd(SRD_WS)}, s88 offen sc1")
        def b_fl():
            a("s_waitcnt vmcnt(0)")
            a(f"s_lshl_b32 {sA}, {sID}, 3")
            a(f"s_add_u32 {sA}, {sA}, {sW}")
            a(f"s_lshl_b32 {sA}, {sA}, 2")
            a(f"s_add_u32 {sA}, {sA}, {WS_FLWT2}")
            a(f"v_mov_b32 v{WD}, {sTG}")
            a(f"v_mov_b32 v{WD+1}, 0")
            a("s_mov_b64 exec, 1")
            a(f"buffer_store_dword v{WD}, v{WD+1}, {srd(SRD_WS)}, {sA} offen sc1")
            a("s_mov_b64 exec, -1")
        def b_bar():
            lab = a.newlabel("L_b5")
            a(f"s_cmp_eq_u32 {sPh}, 1")
            a(f"s_cbranch_scc1 {lab}")
            a("s_barrier")
            a.label(lab)
        def poll_issue():
            a(f"buffer_load_dword v{PL}, v57, {srd(SRD_WS)}, 0 offen sc1")
            a(f"buffer_load_dword v{PL+1}, v58, {srd(SRD_WS)}, 0 offen sc1")
        def poll_check():
            a("s_waitcnt vmcnt(0)")
            a(f"s_mov_b32 {sCnt}, 200000")
            a.label("L_wtchk")
            a(f"v_xor_b32 v{PL}, {sTG}, v{PL}")
            a(f"v_xor_b32 v{PL+1}, {sTG}, v{PL+1}")
            a(f"v_or_b32 v{PL}, v{PL}, v{PL+1}")
            a(f"v_cmp_ne_u32 vcc, 0, v{PL}")
            a("s_cbranch_vccz L_wtok")
            a(f"s_sub_u32 {sCnt}, {sCnt}, 1")
            a(f"s_cmp_eq_u32 {sCnt}, 0")
            a("s_cbranch_scc1 L_wtok")
            a("s_sleep 2")
            poll_issue()
            a("s_waitcnt vmcnt(0)")
            a("s_branch L_wtchk")
            a.label("L_wtok")
        extras = {t: [] for t in range(64)}
        mid = {t: [] for t in range(64)}
        extras[TA["wt"]].append(lambda: cond(0, "wtA", b_wt))
        extras[TB["wt"]].append(lambda: cond(1, "wtB", b_wt))
        extras[TA["fl"]].append(lambda: cond(0, "flA", b_fl))
        extras[TB["fl"]].append(lambda: cond(1, "flB", b_fl))
        extras[TA["bar"]].append(b_bar)
        extras[TA["sw"]].append(lambda: cond(0, "swA", lambda: a("s_setprio 0")))
        def dirty():
            n = X["dirty"]
            a(f"s_lshl_b32 {sA}, {sID}, 3")
            a(f"s_add_u32 {sA}, {sA}, {sW}")
            a(f"s_mul_i32 {sA}, {sA}, {n*1024}")
            a(f"s_add_u32 {sA}, {sA}, {WS_DBG}")
            for i in range(n):
                a(f"buffer_store_dwordx4 v[4:7], v2, {srd(SRD_WS)}, {sA} offen")
                a(f"s_add_u32 {sA}, {sA}, 1024")
        if X.get("dirty"): extras[20].append(dirty)
        D_ = vr(W1H[25], 4) if (X.get("spread", 1) and not X.get("w1first")) else vr(WOH[15], 4)
        sPA, sPB = "s70", "s71"
        def pt_addr():
            a(f"s_lshl_b32 {sA}, {sM}, 2")
            a(f"s_lshl_b32 {sB}, {sFT}, 1")
            a(f"s_add_u32 {sA}, {sA}, {sB}")
            a(f"s_add_u32 {sA}, {sA}, {sKH}")
            a(f"s_lshl_b32 {sA}, {sA}, 1")
            a(f"s_add_u32 {sA}, {sA}, {sTT}")
            a(f"s_lshl_b32 {sB}, {sA}, 10")
            a(f"s_lshl_b32 {sD}, {sC}, 16")
            a(f"s_add_u32 {sPA}, {sB}, {sD}")
            a(f"s_lshr_b32 {sB}, {sA}, 1")
            a(f"s_lshl_b32 {sE_}, {sTT}, 5")
            a(f"s_add_u32 {sB}, {sB}, {sE_}")
            a(f"s_lshl_b32 {sB}, {sB}, 8")
            a(f"s_lshl_b32 {sE_}, {sC}, 14")
            a(f"s_add_u32 {sB}, {sB}, {sE_}")
            a(f"s_add_u32 s72, {sB}, {WS_ST}")
            a(f"s_mul_i32 {sA}, {sM}, 7")
            a(f"s_add_u32 {sA}, {sA}, {sW}")
            a(f"s_min_u32 {sA}, {sA}, 55")
            a(f"s_lshl_b32 {sB}, {sA}, 12")
            a(f"s_mul_i32 {sD}, {sC}, {224*1024}")
            a(f"s_add_u32 {sB}, {sB}, {sD}")
            a(f"s_add_u32 {sPB}, {sB}, {WS_HID}")
        def pt_o():
            a(f"s_add_u32 {sA}, {sPA}, {WS_O}")
            a(f"buffer_load_dwordx4 {D_}, v2, {srd(SRD_WS)}, {sA} offen sc1")
        def pt_h():
            a(f"s_add_u32 {sA}, {sPA}, {WS_H}")
            a(f"buffer_load_dwordx4 {D_}, v2, {srd(SRD_WS)}, {sA} offen sc1")
        def pt_st():
            a("s_mov_b64 exec, 0xffff")
            a(f"buffer_load_dwordx4 {D_}, v2, {srd(SRD_WS)}, s72 offen sc1")
            lab = a.newlabel("L_ptf")
            a(f"s_cmp_eq_u32 {sW}, 7")
            a(f"s_cbranch_scc0 {lab}")
            a(f"s_lshl_b32 {sB}, {sC}, 8")
            for fl in (WS_FLO, WS_FLH, WS_FLHID):
                a(f"s_add_u32 {sA}, {sB}, {fl}")
                a(f"buffer_load_dwordx4 {D_}, v2, {srd(SRD_WS)}, {sA} offen sc1")
            a.label(lab)
            a("s_mov_b64 exec, -1")
        def pt_hid(p):
            def f():
                lab = a.newlabel("L_pth")
                a(f"s_cmp_eq_u32 {sW}, 7")
                a(f"s_cbranch_scc1 {lab}")
                a(f"buffer_load_dwordx4 {D_}, v2, {srd(SRD_WS)}, {sPB} offen offset:{p*1024} sc1")
                a.label(lab)
            return f
        if X.get("pt"):
            t0, stp = X["pt"], X.get("ptstep", 2)
            PM = X.get("ptm", 9)
            seq = []
            if PM & 1: seq += [pt_o, pt_h, pt_st]
            if PM & 8: seq += [pt_hid(p) for p in range(4)]
            extras[t0 - 1].append(pt_addr)
            for n, f in enumerate(seq): extras[t0 + n * stp].append(f)
            assert t0 + (len(seq) - 1) * stp < 52
        def own():
            D = "v[4:7]"
            def body(mod):
                a(f"s_lshl_b32 {sA}, {sM}, 2")
                a(f"s_lshl_b32 {sB}, {sFT}, 1")
                a(f"s_add_u32 {sA}, {sA}, {sB}")
                a(f"s_add_u32 {sA}, {sA}, {sKH}")
                a(f"s_lshl_b32 {sA}, {sA}, 1")
                a(f"s_add_u32 {sA}, {sA}, {sTT}")
                a(f"s_lshl_b32 {sB}, {sA}, 10")
                a(f"s_lshl_b32 {sD}, {sC}, 16")
                a(f"s_add_u32 {sB}, {sB}, {sD}")
                a(f"s_add_u32 {sE_}, {sB}, {WS_O}")
                a(f"buffer_store_dwordx4 {D}, v2, {srd(SRD_WS)}, {sE_} offen{mod}")
                a(f"s_add_u32 {sE_}, {sB}, {WS_H}")
                a(f"buffer_store_dwordx4 {D}, v2, {srd(SRD_WS)}, {sE_} offen{mod}")
                a(f"s_lshr_b32 {sB}, {sA}, 1")
                a(f"s_lshl_b32 {sE_}, {sTT}, 5")
                a(f"s_add_u32 {sB}, {sB}, {sE_}")
                a(f"s_lshl_b32 {sB}, {sB}, 8")
                a(f"s_lshl_b32 {sE_}, {sC}, 14")
                a(f"s_add_u32 {sB}, {sB}, {sE_}")
                a(f"s_add_u32 {sB}, {sB}, {WS_ST}")
                a("s_mov_b64 exec, 0xffff")
                a(f"buffer_store_dwordx4 {D}, v2, {srd(SRD_WS)}, {sB} offen{mod}")
                a("s_mov_b64 exec, -1")
                if X.get("ownout", 1):
                    a("v_and_b32 v59, 31, v1")
                    a("v_lshlrev_b32 v59, 10, v59")
                    a("v_lshrrev_b32 v3, 5, v1")
                    a("v_lshl_or_b32 v59, v3, 4, v59")
                    a(f"s_lshl_b32 {sB}, {sTT}, 5")
                    a(f"s_add_u32 {sB}, {sB}, {sT0}")
                    a(f"s_lshl_b32 {sB}, {sB}, 10")
                    a(f"s_lshl_b32 {sE_}, {sM}, 7")
                    a(f"s_add_u32 {sB}, {sB}, {sE_}")
                    a(f"s_lshl_b32 {sE_}, {sFT}, 6")
                    a(f"s_add_u32 {sB}, {sB}, {sE_}")
                    a(f"s_lshl_b32 {sE_}, {sKH}, 5")
                    a(f"s_add_u32 {sB}, {sB}, {sE_}")
                    a(f"buffer_store_dwordx4 {D}, v59, {srd(SRD_OUT)}, {sB} offen")
                if False:
                    a(f"s_lshl_b32 {sA}, {sC}, 19")
                    a(f"s_lshl_b32 {sB}, {sW}, 16")
                    a(f"s_add_u32 {sA}, {sA}, {sB}")
                    a(f"s_lshl_b32 {sB}, {sM}, 10")
                    a(f"s_add_u32 {sA}, {sA}, {sB}")
                    a(f"s_add_u32 {sA}, {sA}, {WS_P}")
                    for p in range(8):
                        a(f"buffer_store_dwordx4 {D}, v2, {srd(SRD_WS)}, {sA} offen{mod}")
                        a(f"s_add_u32 {sA}, {sA}, 8192")
                else:
                    a(f"s_cmp_eq_u32 {sW}, 7")
                    lab = a.newlabel("L_own7")
                    a(f"s_cbranch_scc1 {lab}")
                    a(f"s_mul_i32 {sA}, {sM}, 7")
                    a(f"s_add_u32 {sA}, {sA}, {sW}")
                    a(f"s_lshl_b32 {sB}, {sA}, 12")
                    a(f"s_mul_i32 {sD}, {sC}, {224*1024}")
                    a(f"s_add_u32 {sB}, {sB}, {sD}")
                    a(f"s_add_u32 {sB}, {sB}, {WS_HID}")
                    for p in range(4):
                        a(f"buffer_store_dwordx4 {D}, v2, {srd(SRD_WS)}, {sB} offen offset:{p*1024}{mod}")
                    a.label(lab)
            l1, l2 = a.newlabel("L_ownS"), a.newlabel("L_ownD")
            a(f"s_cmp_eq_u32 {sFast}, 0")
            a(f"s_cbranch_scc0 {l1}")
            body("")
            a(f"s_branch {l2}")
            a.label(l1)
            body(" sc1")
            a.label(l2)
        if X.get("own"): extras[X["own"]].append(own)
        for k in ("ts1", "ts2", "ts3", "ts4", "ts5", "ts6"):
            if X.get(k) is not None:
                extras[X[k]].append(lambda k=k: self.stamp(k))
        extras[0].insert(0, bound_check)
        extras[TPOLL].append(poll_issue)
        extras[TCHK - 1].append(poll_check)
        def w1load(s_):
            def f():
                a(f"buffer_load_dwordx4 {vr(W1H[s_],4)}, v2, {srd(SRD_WS)}, {sW1B} offen offset:{(s_%4)*1024} sc1")
                if s_ % 4 == 3 and not X.get("fakew"): a(f"s_add_u32 {sW1B}, {sW1B}, 4096")
            return f
        def wo_addr():
            a(f"s_lshl_b32 {sA}, {sM}, 1")
            a(f"s_add_u32 {sA}, {sA}, {sFT}")
            a(f"s_lshl_b32 {sA}, {sA}, 5")
            a(f"s_lshl_b32 {sB}, {sKH}, 4")
            a(f"s_add_u32 {sA}, {sA}, {sB}")
            a(f"s_lshl_b32 {sA}, {sA}, 10")
            a(f"s_add_u32 {sWOB}, {sA}, {WS_WOF}")
            a(f"s_lshl_b32 {sB}, {sKH}, 8")
            a(f"v_xor_b32 v57, {sB}, v2")
        extras[TCHK - 1].append(wo_addr)
        if X.get("fakew"):
            extras[TCHK - 1].append(lambda: (a(f"s_mov_b32 {sW1B}, {WS_W1F}"), a(f"s_mov_b32 {sWOB}, {WS_WOF}")))
        def woload(i):
            def f():
                a(f"buffer_load_dwordx4 {vr(WOH[i],4)}, v57, {srd(SRD_WS)}, {sWOB} offen offset:{(i%4)*1024} sc1")
                if i % 4 == 3 and i < 15 and not X.get("fakew"): a(f"s_add_u32 {sWOB}, {sWOB}, 4096")
            return f
        if X.get("spread", 1):
            seq = [woload(i) for i in range(16)] + [w1load(s_) for s_ in range(NW1PRE)]
            if X.get("w1first"): seq = seq[16:] + seq[:16]
            TEND = X.get("tend", 63)
            ntile = TEND - TLD0 + 1
            for n, f in enumerate(seq):
                mid[TLD0 + (n * ntile) // len(seq)].append(f)
            TWO = TLD0
        else:
            for s_ in range(NW1PRE):
                mid[TLD0 + s_ // 2].append(w1load(s_))
            TWO = TLD0 + NW1PRE // 2
            for i in range(16):
                mid[TWO + i // 2].append(woload(i))

        def pf_addr():
            a(f"s_lshl_b32 {sA}, {sM}, 1")
            a(f"s_add_u32 {sA}, {sA}, {sFT}")
            a(f"s_mul_i32 {sA}, {sA}, 112")
            a(f"s_and_b32 {sB}, {sW}, 3")
            a(f"s_mul_i32 {sB}, {sB}, 28")
            a(f"s_add_u32 {sA}, {sA}, {sB}")
            a(f"s_lshl_b32 {sA}, {sA}, 10")
            a(f"s_add_u32 {sPF}, {sA}, {WS_W2F}")
            a("v_lshlrev_b32 v58, 6, v1")
        def pf(i):
            def f():
                a(f"buffer_load_dword v59, v58, {srd(SRD_WS)}, {sPF} offen sc1")
                a(f"s_add_u32 {sPF}, {sPF}, 4096")
            return f
        def pf_w1():
            a(f"s_add_u32 {sPF}, {sW1B}, 2048")
            a(f"buffer_load_dword v59, v58, {srd(SRD_WS)}, {sPF} offen sc1")
            a(f"buffer_load_dword v59, v58, {srd(SRD_WS)}, {sPF} offen offset:2048 sc1")
        if X.get("pf"):
            TPF = TWO + 8
            extras[TPF - 1].append(pf_addr)
            for i in range(7): mid[TPF + i].append(pf(i))
            mid[TPF + 7].append(pf_w1)

        a.lg = []
        a.ds("ds_read_b64 v[62:63], v61", "bc")
        kread(0); kread(1); vread(0)
        ms(0)
        a("s_nop 11")
        for t in range(64):
            E(t, 0, 1)
            if t > 0: sm(t - 1, 1)
            if t + 1 < 64: vread(t + 1)
            E(t, 2, 5)
            if t + 1 < 64: ms(t + 1)
            if t + 2 < 64: kread(t + 2)
            if mid[t]: mid[t][0]()
            E(t, 6, 11)
            sm(t, 0)
            for f in mid[t][1:]: f()
            E(t, 12, 15)
            for f in extras[t]: f()
        a("s_nop 1")
        sm(63, 1)
        a("s_setprio 0")
        self.stamp("attn")
        a("s_nop 7")
        a("s_nop 3")
        a(f"v_rcp_f32 v3, v{O+8}")
        a(f"v_mul_f32 v80, 0, v{O}")
        a(f"v_mul_f32 v81, 0, v{O+1}")
        for i in range(2, 8, 2):
            a(f"v_fma_f32 v80, v{O+i}, 0, v80")
            a(f"v_fma_f32 v81, v{O+i+1}, 0, v81")
        a("v_add_f32 v80, v80, v81")
        a("v_cmp_u_f32 vcc, v80, v80")
        a("s_cmp_lg_u64 vcc, 0")
        a(f"s_cselect_b32 {sA}, 1, 0")
        a(f"s_or_b32 {sA}, {sA}, {sG}")
        a(f"s_cmp_eq_u32 {sA}, 0")
        a("s_cbranch_scc1 L_nofb")
        a(f"v_mov_b32 v57, {vKa}")
        a("v_mov_b32 v58, 0xff800000")
        a(f"s_mov_b32 {sCnt}, 64")
        a.label("L_fb")
        a(f"ds_read_b128 {vr(KF,4)}, v57")
        a("v_add_u32 v57, 2048, v57")
        a("s_waitcnt lgkmcnt(0)")
        a(f"v_mfma_f32_32x32x16_bf16 {vr(S0,16)}, {vr(KF,4)}, {vr(Q,4)}, 0")
        for i in range(8):
            a(f"v_max3_f32 v58, v{S0+2*i}, v{S0+2*i+1}, v58")
        a(f"s_sub_u32 {sCnt}, {sCnt}, 1")
        a(f"s_cmp_lg_u32 {sCnt}, 0")
        a("s_cbranch_scc1 L_fb")
        a("v_mov_b32 v57, v58")
        a("v_permlane32_swap_b32 v57, v58")
        a("v_max_f32 v58, v57, v58")
        a(f"v_sub_f32 v{S1}, 0, v58")
        for i in range(1, 16):
            a(f"v_mov_b32 v{S1+i}, v{S1}")
        for i in range(16):
            a(f"v_mov_b32 v{O+i}, 0")
        a(f"v_mov_b32 v57, {vKa}")
        a(f"v_mov_b32 v58, {vVa}")
        a(f"s_mov_b32 {sCnt}, 64")
        a.label("L_fb2")
        a(f"ds_read_b128 {vr(KF,4)}, v57")
        a("s_mov_b64 exec, s[6:7]")
        a(f"ds_read_b128 {vr(VF,4)}, v58")
        a(f"ds_read_b128 {vr(VF+4,4)}, v58 offset:512")
        a("s_mov_b64 exec, -1")
        a("v_add_u32 v57, 2048, v57")
        a("v_add_u32 v58, 2048, v58")
        a("s_waitcnt lgkmcnt(0)")
        a(f"v_mfma_f32_32x32x16_bf16 {vr(S0,16)}, {vr(KF,4)}, {vr(Q,4)}, {vr(S1,16)}")
        for i in range(16):
            a(f"v_exp_f32 v{S0+i}, v{S0+i}")
        a(f"v_smfmac_f32_32x32x32_bf16 {vr(O,16)}, {vr(VF,4)}, {vr(S0,8)}, v{IDX}")
        a(f"v_smfmac_f32_32x32x32_bf16 {vr(O,16)}, {vr(VF+4,4)}, {vr(S0+8,8)}, v{IDX}")
        a(f"s_sub_u32 {sCnt}, {sCnt}, 1")
        a(f"s_cmp_lg_u32 {sCnt}, 0")
        a("s_nop 7")
        a("s_nop 7")
        a("s_cbranch_scc1 L_fb2")
        a(f"v_rcp_f32 v3, v{O+8}")
        a.label("L_nofb")
        OP = 40
        for i in range(8):
            a(f"v_mul_f32 v{O+i}, v3, v{O+i}")
        for i in range(4):
            a(f"v_cvt_pk_bf16_f32 v{OP+i}, v{O+2*i}, v{O+2*i+1}")
        a(f"s_lshl_b32 s88, {sM}, 2")
        a(f"s_lshl_b32 {sB}, {sFT}, 1")
        a(f"s_add_u32 s88, s88, {sB}")
        a(f"s_add_u32 s88, s88, {sKH}")
        a(f"s_lshl_b32 {sB}, s88, 1")
        a(f"s_add_u32 {sB}, {sB}, {sTT}")
        a(f"s_lshl_b32 {sB}, {sB}, 10")
        a(f"s_lshl_b32 {sD}, {sC}, 16")
        a(f"s_add_u32 {sB}, {sB}, {sD}")
        a(f"s_add_u32 {sB}, {sB}, {WS_O}")
        a(f"s_lshl_b32 {sD}, {sTT}, 5")
        a(f"s_add_u32 {sD}, {sD}, s88")
        a(f"s_lshl_b32 {sD}, {sD}, 2")
        a(f"s_lshl_b32 {sE_}, {sC}, 8")
        a(f"s_add_u32 {sD}, {sD}, {sE_}")
        a(f"s_add_u32 {sD}, {sD}, {WS_FLO}")
        self.publish("o", [("dwordx4", vr(OP, 4), "v2", sB, 0)], sD)
        self.stamp("opub")

    def wt_addr(self, vT1, vT2):
        a = self.a
        LDS_E = 132 * 1024
        a("v_bfe_u32 v61, v1, 2, 2")
        a("v_lshrrev_b32 v62, 5, v1")
        a("v_lshl_add_u32 v62, v62, 2, v61")
        a("v_lshlrev_b32 v62, 7, v62")
        a("v_bfe_u32 v63, v1, 4, 1")
        a("v_lshlrev_b32 v63, 5, v63")
        a("v_and_b32 v61, 3, v1")
        a("v_lshl_add_u32 v63, v61, 3, v63")
        a("v_bfe_u32 v61, v1, 3, 1")
        a("v_lshlrev_b32 v61, 6, v61")
        a("v_xor_b32 v63, v63, v61")
        a("v_add_u32 v62, v62, v63")
        a(f"s_xor_b32 {sA}, {sW}, 1")
        a(f"s_lshl_b32 {sA}, {sA}, 11")
        a(f"s_add_u32 {sA}, {sA}, {LDS_E}")
        a(f"v_add_u32 {vT1}, {sA}, v62")
        a(f"v_xor_b32 {vT2}, 64, {vT1}")

    def wt_poll_addr(self):
        a = self.a
        a(f"s_cmp_eq_u32 {sW}, 7")
        a("s_cbranch_scc1 L_pa7")
        a(f"s_mul_i32 {sA}, {sM}, 7")
        a(f"s_add_u32 {sA}, {sA}, {sW}")
        a(f"s_lshl_b32 {sW1B}, {sA}, 15")
        a(f"s_add_u32 {sW1B}, {sW1B}, {WS_W1F}")
        a(f"s_lshr_b32 {sA}, {sA}, 1")
        a(f"s_lshl_b32 {sA}, {sA}, 5")
        a(f"s_add_u32 {sA}, {sA}, 256")
        a("s_branch L_pad")
        a.label("L_pa7")
        a(f"s_lshl_b32 {sA}, {sM}, 1")
        a(f"s_add_u32 {sA}, {sA}, 1")
        a(f"s_mul_i32 {sA}, {sA}, 112")
        a(f"s_add_u32 {sA}, {sA}, 98")
        a(f"s_lshl_b32 {sW1B}, {sA}, 10")
        a(f"s_add_u32 {sW1B}, {sW1B}, {WS_W2F}")
        a(f"s_mul_i32 {sA}, {sM}, 112")
        a(f"s_add_u32 {sA}, {sA}, {1152 + 80}")
        a.label("L_pad")
        a(f"s_lshl_b32 {sB}, {sM}, 5")
        a(f"s_sub_u32 {sB}, {sB}, 32")
        a(f"v_mov_b32 v57, {sA}")
        a(f"v_mov_b32 v58, {sB}")
        a("v_cmp_gt_u32 vcc, 32, v1")
        a("v_cndmask_b32 v57, v58, v57, vcc")
        a("v_add_u32 v57, v57, v1")
        a("v_lshlrev_b32 v57, 2, v57")
        a(f"v_add_u32 v57, {WS_FLWT2}, v57")
        a(f"s_mul_i32 {sA}, {sM}, 112")
        a(f"s_mul_i32 {sB}, {sW}, 14")
        a(f"s_add_u32 {sA}, {sA}, {sB}")
        a(f"s_add_u32 {sA}, {sA}, 1152")
        a("v_min_u32 v58, 13, v1")
        a(f"v_add_u32 v58, {sA}, v58")
        a("v_lshlrev_b32 v58, 2, v58")
        a(f"v_add_u32 v58, {WS_FLWT2}, v58")

    def publish(self, name, stores, sflag, pre_exec=None):
        a = self.a
        a(f"v_mov_b32 v104, s3")
        a(f"v_mov_b32 v105, 0")
        a(f"s_cmp_eq_u32 {sFast}, 0")
        a(f"s_cbranch_scc0 L_pub_slow_{name}")
        for variant, mod in (("fast", ""), ("slow", " sc1")):
            if variant == "slow": a.label(f"L_pub_slow_{name}")
            for st in stores:
                ty, data, voff, soff, io = st[:5]
                if len(st) > 5: a(f"s_mov_b32 exec_hi, 0")
                a(f"buffer_store_{ty} {data}, {voff}, {srd(SRD_WS)}, {soff} offen offset:{io}{mod}")
                if len(st) > 5: a("s_mov_b64 exec, -1")
            a("s_waitcnt vmcnt(0)")
            a("s_mov_b64 exec, 1")
            a(f"buffer_store_dword v104, v105, {srd(SRD_WS)}, {sflag} offen{mod}")
            a("s_mov_b64 exec, -1")
            if variant == "fast": a(f"s_branch L_pub_done_{name}")
        a.label(f"L_pub_done_{name}")

    def wt_issue(self):
        a = self.a
        LDS_E = 132 * 1024
        a(f"s_lshl_b32 {sA}, {sID}, 3")
        a(f"s_add_u32 {sA}, {sA}, {sW}")
        a(f"s_cmp_lt_u32 {sA}, 256")
        a("s_cbranch_scc1 L_wt_wo")
        a(f"s_cmp_lt_u32 {sA}, 1152")
        a("s_cbranch_scc1 L_wt_w1")
        a(f"s_sub_u32 {sA}, {sA}, 1152")
        a(f"s_mul_i32 {sB}, {sA}, 9363")
        a(f"s_lshr_b32 {sB}, {sB}, 20")
        a(f"s_mul_i32 {sD}, {sB}, 112")
        a(f"s_sub_u32 {sD}, {sA}, {sD}")
        for i in range(4): a(f"s_mov_b32 s{SRD_T+i}, s{SRD_W2+i}")
        a(f"s_mov_b32 {sF}, 1024")
        a(f"s_mul_i32 s88, {sB}, {2*112}")
        a(f"s_add_u32 s88, s88, {sD}")
        a("s_lshl_b32 s88, s88, 10")
        a(f"s_add_u32 s88, s88, {WS_W2F}")
        a(f"s_mov_b32 s89, {112*1024}")
        a("s_branch L_wt_go")
        a.label("L_wt_w1")
        a(f"s_sub_u32 {sA}, {sA}, 256")
        a(f"s_lshr_b32 {sB}, {sA}, 5")
        a(f"s_and_b32 {sD}, {sA}, 31")
        for i in range(4): a(f"s_mov_b32 s{SRD_T+i}, s{SRD_W1+i}")
        a(f"s_mov_b32 {sF}, 3584")
        a(f"s_lshl_b32 s88, {sB}, 6")
        a(f"s_add_u32 s88, s88, {sD}")
        a("s_lshl_b32 s88, s88, 10")
        a(f"s_add_u32 s88, s88, {WS_W1F}")
        a(f"s_mov_b32 s89, {32*1024}")
        a("s_branch L_wt_go")
        a.label("L_wt_wo")
        a(f"s_lshr_b32 {sB}, {sA}, 5")
        a(f"s_and_b32 {sD}, {sA}, 31")
        for i in range(4): a(f"s_mov_b32 s{SRD_T+i}, s{SRD_WO+i}")
        a(f"s_mov_b32 {sF}, 1024")
        a(f"s_lshl_b32 s88, {sB}, 6")
        a(f"s_add_u32 s88, s88, {sD}")
        a("s_lshl_b32 s88, s88, 10")
        a(f"s_add_u32 s88, s88, {WS_WOF}")
        a(f"s_mov_b32 s89, {32*1024}")
        a.label("L_wt_go")
        a(f"s_mul_i32 {sD}, {sD}, {sF}")
        a(f"s_lshl_b32 {sD}, {sD}, 4")
        a(f"s_lshl_b32 {sB}, {sB}, 7")
        a(f"s_add_u32 {sD}, {sD}, {sB}")
        a("v_lshrrev_b32 v16, 3, v1")
        a(f"v_mul_lo_u32 v16, v16, {sF}")
        a("v_and_b32 v17, 7, v1")
        a("v_bfe_u32 v18, v1, 4, 1")
        a("v_lshlrev_b32 v18, 2, v18")
        a("v_xor_b32 v17, v17, v18")
        a("v_lshl_add_u32 v16, v17, 4, v16")
        a(f"s_xor_b32 {sA}, {sW}, 1")
        a(f"s_lshl_b32 {sA}, {sA}, 11")
        a(f"s_add_u32 {sA}, {sA}, {LDS_E}")
        a(f"s_mov_b32 m0, {sA}")
        a(f"buffer_load_dwordx4 v16, {srd(SRD_T)}, {sD} offen lds")
        a(f"s_lshl_b32 {sB}, {sF}, 3")
        a(f"s_add_u32 {sD}, {sD}, {sB}")
        a(f"s_add_u32 {sA}, {sA}, 1024")
        a(f"s_mov_b32 m0, {sA}")
        a(f"buffer_load_dwordx4 v16, {srd(SRD_T)}, {sD} offen lds")

    def wt_process(self):
        a = self.a
        LDS_E = 132 * 1024
        a("v_bfe_u32 v106, v1, 2, 2")
        a("v_lshrrev_b32 v107, 5, v1")
        a("v_lshl_add_u32 v107, v107, 2, v106")
        a("v_lshlrev_b32 v107, 7, v107")
        a("v_bfe_u32 v108, v1, 4, 1")
        a("v_lshlrev_b32 v108, 5, v108")
        a("v_and_b32 v109, 3, v1")
        a("v_lshl_add_u32 v108, v109, 3, v108")
        a("v_bfe_u32 v109, v1, 3, 1")
        a("v_lshlrev_b32 v109, 6, v109")
        a("v_xor_b32 v108, v108, v109")
        a("v_add_u32 v107, v107, v108")
        a(f"s_xor_b32 {sA}, {sW}, 1")
        a(f"s_lshl_b32 {sA}, {sA}, 11")
        a(f"s_add_u32 {sA}, {sA}, {LDS_E}")
        a(f"v_add_u32 v107, {sA}, v107")
        a("v_xor_b32 v108, 64, v107")
        a("ds_read_b64_tr_b16 v[112:113], v107")
        a("ds_read_b64_tr_b16 v[114:115], v107 offset:1024")
        a("ds_read_b64_tr_b16 v[116:117], v108")
        a("ds_read_b64_tr_b16 v[118:119], v108 offset:1024")
        a("s_waitcnt lgkmcnt(0)")
        a(f"buffer_store_dwordx4 v[112:115], v2, {srd(SRD_WS)}, s88 offen sc1")
        a("s_add_u32 s88, s88, s89")
        a(f"buffer_store_dwordx4 v[116:119], v2, {srd(SRD_WS)}, s88 offen sc1")


    def colsum(self, homes, first):
        a = self.a
        n = 0
        a("s_mov_b32 s5, 0x3f803f80")
        for hm in homes:
            for i in range(4):
                r = "v106" if n % 2 == 0 else "v107"
                a(f"v_dot2_f32_bf16 {r}, v{hm+i}, s5, {'0' if (first and n < 2) else r}")
                n += 1

    def p3(self):
        a = self.a
        X_ = self.opt
        HB, X, ACC, BR = 4, 56, 24, 64
        LDS_OF, LDS_E2 = 0, 128 * 1024
        sS = "s88"
        a("v_and_b32 v3, 31, v1")
        a("v_lshlrev_b32 v3, 10, v3")
        a("v_lshrrev_b32 v104, 5, v1")
        a("v_lshl_or_b32 v3, v104, 3, v3")
        a(f"s_lshl_b32 {sA}, {sTT}, 5")
        a(f"s_add_u32 {sA}, {sA}, {sT0}")
        a(f"s_lshl_b32 {sA}, {sA}, 10")
        a(f"s_lshl_b32 {sB}, {sS}, 5")
        a(f"s_add_u32 {sA}, {sA}, {sB}")
        a(f"buffer_load_dwordx2 {vr(X,2)}, v3, {srd(SRD_X)}, {sA} offen")
        a(f"buffer_load_dwordx2 {vr(X+2,2)}, v3, {srd(SRD_X)}, {sA} offen offset:16")
        a("s_barrier")
        self.stamp("b7")
        a(f"s_cmp_eq_u32 {sW}, 7")
        a("s_cbranch_scc1 L_nocs1")
        self.colsum(W1H[:NW1PRE], True)
        a.label("L_nocs1")
        a(f"s_lshl_b32 {sA}, {sTT}, 5")
        a(f"s_lshl_b32 {sB}, {sKH}, 4")
        a(f"s_add_u32 {sA}, {sA}, {sB}")
        a(f"s_lshl_b32 {sA}, {sA}, 2")
        a(f"s_lshl_b32 {sB}, {sC}, 8")
        a(f"s_add_u32 {sA}, {sA}, {sB}")
        a(f"s_add_u32 {sA}, {sA}, {WS_FLO}")
        a("v_and_b32 v3, 15, v1")
        a("v_lshlrev_b32 v3, 2, v3")
        self.poll_begin("o")
        a(f"buffer_load_dword v104, v3, {srd(SRD_WS)}, {sA} offen sc1")
        a("s_waitcnt vmcnt(0)")
        a("v_cmp_ne_u32 vcc, s3, v104")
        self.poll_end("o", sleep=1)
        self.stamp("ook")
        a(f"s_lshl_b32 {sA}, {sKH}, 4")
        a(f"s_lshl_b32 {sB}, {sFT}, 2")
        a(f"s_add_u32 {sA}, {sA}, {sB}")
        a(f"s_lshl_b32 {sA}, {sA}, 1")
        a(f"s_add_u32 {sA}, {sA}, {sTT}")
        a(f"s_lshl_b32 {sA}, {sA}, 10")
        a(f"s_lshl_b32 {sB}, {sC}, 16")
        a(f"s_add_u32 {sB}, {sB}, {sA}")
        a(f"s_add_u32 {sB}, {sB}, {WS_O}")
        for st in range(2):
            for i in range(4):
                d = (st * 8 + i) * 2048
                a(f"s_add_u32 {sD}, {sA}, {d + LDS_OF}")
                a(f"s_add_u32 {sE_}, {sB}, {d}")
                a(f"s_mov_b32 m0, {sD}")
                a(f"buffer_load_dwordx4 v2, {srd(SRD_WS)}, {sE_} offen sc1 lds")
        nrest = 32 - NW1PRE
        a(f"s_lshl_b32 {sA}, {sKH}, 15")
        a(f"s_lshl_b32 {sB}, {sTT}, 10")
        a(f"s_add_u32 {sA}, {sA}, {sB}")
        a(f"v_add_u32 v104, {sA}, v2")
        def late_loads():
            for s_ in range(NW1PRE, 32):
                a(f"buffer_load_dwordx4 {vr(W1H[s_],4)}, v2, {srd(SRD_WS)}, {sW1B} offen offset:{(s_%4)*1024} sc1")
                if s_ % 4 == 3 and s_ < 31: a(f"s_add_u32 {sW1B}, {sW1B}, 4096")
        a.lg = []
        for st in range(2):
            a(f"s_waitcnt vmcnt({4 if st == 0 else 0})")
            a("s_barrier")
            for i in range(8):
                a.ds(f"ds_read_b128 {vr(BR+4*i,4)}, v104 offset:{(st*8+i)*2048}", f"b{st}{i}")
            if st == 1: late_loads()
            for i in range(8):
                a.wait_lg(f"b{st}{i}")
                k = st * 8 + i
                srcC = "0" if k == 0 else vr(ACC, 16)
                a(f"v_mfma_f32_32x32x16_bf16 {vr(ACC,16)}, {vr(WOH[k],4)}, {vr(BR+4*i,4)}, {srcC}")
        self.stamp("p3mm")
        a(f"s_lshl_b32 {sA}, {sW}, 11")
        a(f"s_add_u32 {sA}, {sA}, {LDS_E2}")
        a(f"v_add_u32 v104, {sA}, v2")
        a(f"ds_write_b128 v104, {vr(ACC+8,4)}")
        a(f"ds_write_b128 v104, {vr(ACC+12,4)} offset:1024")
        a("s_waitcnt lgkmcnt(0)")
        a("s_barrier")
        a("v_xor_b32 v104, 2048, v104")
        a(f"ds_read_b128 {vr(BR,4)}, v104")
        a(f"ds_read_b128 {vr(BR+4,4)}, v104 offset:1024")
        for i in range(4):
            a(f"v_lshlrev_b32 v{BR+8+2*i}, 16, v{X+i}")
            a(f"v_and_b32 v{BR+9+2*i}, 0xffff0000, v{X+i}")
        a(f"s_lshl_b32 {sA}, {sS}, 1")
        a(f"s_add_u32 {sA}, {sA}, {sTT}")
        a(f"s_lshl_b32 {sA}, {sA}, 10")
        a(f"s_lshl_b32 {sB}, {sC}, 16")
        a(f"s_add_u32 {sA}, {sA}, {sB}")
        a(f"s_add_u32 {sA}, {sA}, {WS_H}")
        a(f"s_lshl_b32 {sD}, {sTT}, 5")
        a(f"s_add_u32 {sD}, {sD}, {sS}")
        a(f"s_lshl_b32 {sD}, {sD}, 2")
        a(f"s_lshl_b32 {sE_}, {sC}, 8")
        a(f"s_add_u32 {sD}, {sD}, {sE_}")
        a(f"s_add_u32 {sD}, {sD}, {WS_FLH}")
        for i in range(8):
            a(f"v_add_f32 v{ACC+i}, v{ACC+i}, v{BR+8+i}")
        a("s_waitcnt lgkmcnt(0)")
        for i in range(8):
            a(f"v_add_f32 v{ACC+i}, v{ACC+i}, v{BR+i}")
        for i in range(4):
            a(f"v_cvt_pk_bf16_f32 v{HB+i}, v{ACC+2*i}, v{ACC+2*i+1}")
        a("s_mov_b32 s5, 0x3f803f80")
        a(f"v_dot2_f32_bf16 v56, v{HB}, s5, 0")
        a(f"v_dot2_f32_bf16 v57, v{HB}, v{HB}, 0")
        for i in range(1, 4):
            a(f"v_dot2_f32_bf16 v56, v{HB+i}, s5, v56")
            a(f"v_dot2_f32_bf16 v57, v{HB+i}, v{HB+i}, v57")
        a("v_mov_b32 v58, v56")
        a("v_mov_b32 v59, v57")
        a("v_permlane32_swap_b32 v56, v58")
        a("v_permlane32_swap_b32 v57, v59")
        a("v_add_f32 v56, v56, v58")
        a("v_add_f32 v57, v57, v59")
        a(f"s_lshl_b32 {sB}, {sTT}, 5")
        a(f"s_add_u32 {sB}, {sB}, {sS}")
        a(f"s_lshl_b32 {sB}, {sB}, 8")
        a(f"s_lshl_b32 {sE_}, {sC}, 14")
        a(f"s_add_u32 {sB}, {sB}, {sE_}")
        a(f"s_add_u32 {sB}, {sB}, {WS_ST}")
        a("v_lshlrev_b32 v3, 3, v1")
        self.publish("h", [("dwordx4", vr(HB, 4), "v2", sA, 0), ("dwordx2", "v[56:57]", "v3", sB, 0, "lo32")], sD)
        self.stamp("hpub")

    def w2load(self, f, i):
        a = self.a
        hm = (W2H0 if f == 0 else W2H1)[i]
        off = (f * 112 + i) * 1024
        a(f"s_add_u32 {sA}, s89, {off}")
        a(f"buffer_load_dwordx4 {vr(hm,4)}, v2, {srd(SRD_WS)}, {sA} offen sc1")

    def p4(self):
        a = self.a
        HB, ACC, BR = 4, 64, 108
        LDS_HF, LDS_ST2, LDS_CS1, LDS_B1 = 64 * 1024, 144 * 1024, 145 * 1024, 146 * 1024
        a(f"s_mul_i32 {sA}, {sM}, 224")
        a(f"s_mul_i32 {sB}, {sW}, 14")
        a(f"s_add_u32 {sA}, {sA}, {sB}")
        a(f"s_lshl_b32 {sA}, {sA}, 10")
        a(f"s_add_u32 s89, {sA}, {WS_W2F}")
        for i in range(NW2E): self.w2load(0, i)
        a(f"s_cmp_eq_u32 {sW}, 7")
        a("s_cbranch_scc1 L_p4_pre7")
        self.colsum(W1H[NW1PRE:], False)
        a("v_add_f32 v106, v106, v107")
        a("v_mov_b32 v107, v106")
        a("v_permlane32_swap_b32 v106, v107")
        a("v_add_f32 v106, v106, v107")
        a("v_and_b32 v107, 31, v1")
        a("v_lshlrev_b32 v107, 2, v107")
        a(f"s_lshl_b32 {sA}, {sW}, 7")
        a(f"s_add_u32 {sA}, {sA}, {LDS_CS1}")
        a(f"v_add_u32 v107, {sA}, v107")
        a("ds_write_b32 v107, v106")
        a("s_branch L_p4_pre")
        a.label("L_p4_pre7")
        a(f"s_mul_i32 {sA}, {sM}, 448")
        a("v_lshlrev_b32 v3, 3, v1")
        a("v_min_u32 v3, 440, v3")
        a(f"buffer_load_dwordx2 v[106:107], v3, {srd(SRD_B1)}, {sA} offen")
        a("s_waitcnt vmcnt(0)")
        a("v_lshlrev_b32 v108, 16, v106")
        a("v_and_b32 v109, 0xffff0000, v106")
        a("v_lshlrev_b32 v110, 16, v107")
        a("v_and_b32 v111, 0xffff0000, v107")
        for i in range(4): a(f"v_mul_f32 v{108+i}, 0.5, v{108+i}")
        a("v_lshlrev_b32 v3, 1, v3")
        a(f"v_add_u32 v3, {LDS_B1}, v3")
        a("ds_write_b128 v3, v[108:111]")
        a.label("L_p4_pre")
        a(f"s_lshl_b32 {sA}, {sC}, 8")
        a(f"s_add_u32 {sA}, {sA}, {WS_FLH}")
        a("v_lshlrev_b32 v3, 2, v1")
        self.poll_begin("h")
        a(f"buffer_load_dword v104, v3, {srd(SRD_WS)}, {sA} offen sc1")
        a("s_waitcnt vmcnt(0)")
        a("v_cmp_ne_u32 vcc, s3, v104")
        self.poll_end("h", sleep=1)
        self.stamp("hok")
        a(f"s_lshl_b32 s67, {sW}, 11")
        a(f"s_lshl_b32 {sB}, {sC}, 16")
        a(f"s_add_u32 {sB}, {sB}, s67")
        a(f"s_add_u32 s68, {sB}, {WS_H}")
        def hdma(i):
            for tt in range(2):
                d = i * 8 * 2048 + tt * 1024
                a(f"s_add_u32 {sD}, s67, {d + LDS_HF}")
                a(f"s_add_u32 {sE_}, s68, {d}")
                a(f"s_mov_b32 m0, {sD}")
                a(f"buffer_load_dwordx4 v2, {srd(SRD_WS)}, {sE_} offen sc1 lds")
        hdma(0); hdma(1)
        a(f"v_add_u32 v104, {LDS_HF}, v2")
        a("s_waitcnt vmcnt(2)")
        a("s_barrier")
        self.stamp("f1a")
        hdma(2); hdma(3)
        a(f"s_cmp_eq_u32 {sW}, 7")
        a("s_cbranch_scc1 L_p4_w7")
        a.lg = []
        NR = 3
        def hread(k):
            sl = k % NR
            a.ds(f"ds_read_b128 {vr(BR+8*sl,4)}, v104 offset:{k*2048}", f"h{k}")
            a.ds(f"ds_read_b128 {vr(BR+8*sl+4,4)}, v104 offset:{k*2048+1024}", f"h{k}")
        for k in range(NR - 1): hread(k)
        lst = [(0, i) for i in range(NW2E, 14)] + [(1, i) for i in range(14)]
        sched = {}
        for n, (f, i) in enumerate(lst):
            st = (n * 30) // len(lst) + 1
            if f == 1: st = max(st, i)
            sched.setdefault(st, []).append((f, i))
        issued = 0
        for k in range(32):
            if k == 8 - (NR - 1):
                a(f"s_waitcnt vmcnt({4 + issued})")
                a("s_barrier")
            if k == 16 - (NR - 1):
                a(f"s_waitcnt vmcnt({issued})")
                a("s_barrier")
                self.stamp("f1b")
            if k + NR - 1 < 32: hread(k + NR - 1)
            a.wait_lg(f"h{k}")
            sl = k % NR
            for tt in range(2):
                srcC = "0" if k == 0 else vr(ACC + 16 * tt, 16)
                a(f"v_mfma_f32_32x32x16_bf16 {vr(ACC+16*tt,16)}, {vr(W1H[k],4)}, {vr(BR+8*sl+4*tt,4)}, {srcC}")
            for (f, i) in (sched.get(k, []) if not self.opt.get("now2") else []):
                self.w2load(f, i)
                issued += 1
        self.stamp("f1c")
        a("s_barrier")
        a.lg = []
        CS, BF = 108, 208
        a("v_and_b32 v3, 31, v1")
        a("v_lshlrev_b32 v3, 3, v3")
        a(f"v_add_u32 v3, {LDS_ST2}, v3")
        a("ds_read_b64 v[104:105], v3")
        a("ds_read_b64 v[106:107], v3 offset:256")
        a("v_lshrrev_b32 v3, 5, v1")
        a("v_lshlrev_b32 v3, 4, v3")
        a(f"s_lshl_b32 {sA}, {sW}, 7")
        a(f"s_add_u32 {sA}, {sA}, {LDS_CS1}")
        a(f"v_add_u32 v3, {sA}, v3")
        for q in range(4):
            a(f"ds_read_b128 {vr(CS+4*q,4)}, v3 offset:{32*q}")
        for q in range(4):
            a(f"ds_read_b128 {vr(BF+4*q,4)}, v3 offset:{1024 + 32*q}")
        a("s_waitcnt lgkmcnt(0)")
        self.stamp("ffn1")
        HP = 236
        for tt in range(2):
            mu, rs = 104 + 2 * tt, 105 + 2 * tt
            A = ACC + 16 * tt
            for r in range(16): a(f"v_fma_f32 v{A+r}, -v{mu}, v{CS+r}, v{A+r}")
            for r in range(16): a(f"v_fma_f32 v{A+r}, v{A+r}, v{rs}, v{BF+r}")
            for r in range(16): a(f"v_add_f32 v{A+r}, v{A+r}, |v{A+r}|")
            for r in range(16): a(f"v_mul_f32 v{A+r}, v{A+r}, v{A+r}")
            for i in range(8): a(f"v_cvt_pk_bf16_f32 v{HP+8*tt+i}, v{A+2*i}, v{A+2*i+1}")
        a(f"s_mul_i32 {sA}, {sM}, 7")
        a(f"s_add_u32 {sA}, {sA}, {sW}")
        a(f"s_lshl_b32 {sB}, {sA}, 12")
        a(f"s_mul_i32 {sD}, {sC}, {224*1024}")
        a(f"s_add_u32 {sB}, {sB}, {sD}")
        a(f"s_add_u32 {sB}, {sB}, {WS_HID}")
        a(f"s_lshl_b32 {sD}, {sA}, 2")
        a(f"s_lshl_b32 {sE_}, {sC}, 8")
        a(f"s_add_u32 {sD}, {sD}, {sE_}")
        a(f"s_add_u32 {sD}, {sD}, {WS_FLHID}")
        st = []
        for u in range(2):
            for tt in range(2):
                st.append(("dwordx4", vr(HP + 8 * tt + 4 * u, 4), "v2", sB, u * 2048 + tt * 1024))
        self.publish("hid", st, sD)
        if self.opt.get("wbl2"):
            a(f"s_cmp_eq_u32 {sW}, 0")
            a("s_cbranch_scc0 L_nowb")
            a(f"s_cmp_lt_u32 {sID}, {self.opt['wbl2']}")
            a("s_cbranch_scc0 L_nowb")
            a("buffer_wbl2 sc1")
            a.label("L_nowb")
        a("s_branch L_p4_done")
        a.label("L_p4_w7")
        SL = 64
        a("v_lshlrev_b32 v3, 4, v1")
        a(f"s_lshl_b32 {sA}, {sC}, 14")
        a(f"s_add_u32 {sA}, {sA}, {WS_ST}")
        for q in range(16):
            a(f"buffer_load_dwordx4 {vr(SL+4*q,4)}, v3, {srd(SRD_WS)}, {sA} offen offset:{(q%4)*1024} sc1")
            if q % 4 == 3 and q < 15: a(f"s_add_u32 {sA}, {sA}, 4096")
        a("s_waitcnt vmcnt(20)")
        a("s_barrier")
        a("s_waitcnt vmcnt(16)")
        a("s_barrier")
        for i in range(NW2E, 14): self.w2load(0, i)
        a(f"s_waitcnt vmcnt({14 - NW2E})")
        for tt in range(2):
            B = SL + 32 * tt
            for q in range(1, 8):
                for c in range(4): a(f"v_add_f32 v{B+c}, v{B+c}, v{B+4*q+c}")
        R = [SL + c for c in range(4)] + [SL + 32 + c for c in range(4)]
        T = [SL + 8 + c for c in range(8)]
        for sw in ("16", "32"):
            for r, t in zip(R, T): a(f"v_mov_b32 v{t}, v{r}")
            for r, t in zip(R, T): a(f"v_permlane{sw}_swap_b32 v{r}, v{t}")
            for r, t in zip(R, T): a(f"v_add_f32 v{r}, v{r}, v{t}")
        for tt in range(2):
            for u in range(2):
                s_, q_ = SL + 32 * tt + 2 * u, SL + 32 * tt + 2 * u + 1
                a(f"v_mul_f32 v{s_}, 0x{f32bits(1/512):x}, v{s_}")
                a(f"v_mul_f32 v{q_}, 0x{f32bits(1/512):x}, v{q_}")
                a(f"v_fma_f32 v{q_}, -v{s_}, v{s_}, v{q_}")
                a(f"v_max_f32 v{q_}, 0, v{q_}")
                a(f"v_add_f32 v{q_}, 0x{f32bits(1e-5):x}, v{q_}")
                a(f"v_rsq_f32 v{q_}, v{q_}")
                a(f"v_mul_f32 v{q_}, 0.5, v{q_}")
        a("v_and_b32 v3, 15, v1")
        a("v_lshlrev_b32 v3, 4, v3")
        a(f"v_add_u32 v3, {LDS_ST2}, v3")
        a("s_mov_b64 exec, 0xffff")
        a(f"ds_write_b128 v3, {vr(SL,4)}")
        a(f"ds_write_b128 v3, {vr(SL+32,4)} offset:256")
        a("s_mov_b64 exec, -1")
        a("s_waitcnt lgkmcnt(0)")
        a("s_barrier")
        if self.prof and "ffn1" not in self.skip:
            self.nstamp = self.stamp_names.index("ffn1")
            nm = list(self.stamp_names)
            self.stamp("ffn1")
            self.stamp_names = nm
            self.nstamp = len(nm)
        a.label("L_p4_done")

    def p5(self):
        a = self.a
        HB, B2R = 4, 148
        ACCS = [[64, 208], [80, 224]]
        BQ = [40, 44, 48, 52, 96, 100, 108, 112, 116, 120, 124, 128, 240, 244]
        a(f"s_lshl_b32 {sA}, {sM}, 7")
        a(f"s_lshl_b32 {sB}, {sFT}, 6")
        a(f"s_add_u32 {sA}, {sA}, {sB}")
        a(f"s_lshl_b32 {sB}, {sKH}, 5")
        a(f"s_add_u32 s89, {sA}, {sB}")
        a("v_lshrrev_b32 v3, 5, v1")
        a("v_lshlrev_b32 v3, 3, v3")
        a(f"buffer_load_dwordx2 {vr(B2R,2)}, v3, {srd(SRD_B2)}, s89 offen")
        a(f"buffer_load_dwordx2 {vr(B2R+2,2)}, v3, {srd(SRD_B2)}, s89 offen offset:16")
        a(f"s_mul_i32 {sA}, {sW}, 28")
        a(f"s_lshl_b32 {sB}, {sC}, 8")
        a(f"s_add_u32 {sA}, {sA}, {sB}")
        a(f"s_add_u32 {sA}, {sA}, {WS_FLHID}")
        a("v_min_u32 v3, 6, v1")
        a("v_lshlrev_b32 v3, 2, v3")
        self.poll_begin("hid")
        a(f"buffer_load_dword v104, v3, {srd(SRD_WS)}, {sA} offen sc1")
        a("s_waitcnt vmcnt(0)")
        a("v_cmp_ne_u32 vcc, s3, v104")
        self.poll_end("hid", sleep=1)
        self.stamp("hidok")
        a(f"s_mul_i32 {sA}, {sW}, {14*2048}")
        a(f"s_mul_i32 {sD}, {sC}, {224*1024}")
        a(f"s_add_u32 {sA}, {sA}, {sD}")
        a(f"s_add_u32 s67, {sA}, {WS_HID}")
        def bload(tt, i):
            a(f"s_add_u32 {sA}, s67, {i*2048 + tt*1024}")
            a(f"buffer_load_dwordx4 {vr(BQ[i],4)}, v2, {srd(SRD_WS)}, {sA} offen sc1")
        for i in range(14): bload(0, i)
        a(f"s_lshl_b32 {sA}, {sW}, 11")
        a(f"v_add_u32 v104, {sA}, v2")
        a("v_add_u32 v105, 65536, v104")
        def wr_piece(tt, f, half):
            p = 4 * f + 2 * tt + half
            A = ACCS[tt][f] + 8 * half
            base = "v104" if p < 4 else "v105"
            off = (p % 4) * 16384
            a(f"ds_write_b128 {base}, {vr(A,4)} offset:{off}")
            a(f"ds_write_b128 {base}, {vr(A+4,4)} offset:{off+1024}")
        issued = 14
        done = 0
        for tt in range(2):
            for i in range(14):
                n = tt * 14 + i
                a(f"s_waitcnt vmcnt({issued - n - 1})")
                for f in range(2):
                    hm = (W2H0 if f == 0 else W2H1)[i]
                    srcC = "0" if i == 0 else vr(ACCS[tt][f], 16)
                    a(f"v_mfma_f32_32x32x16_bf16 {vr(ACCS[tt][f],16)}, {vr(hm,4)}, {vr(BQ[i],4)}, {srcC}")
                if tt == 0:
                    bload(1, i); issued += 1
                if tt == 1 and i in (2, 4, 6, 8):
                    j = (i - 2) // 2
                    wr_piece(0, j >> 1, j & 1)
        self.stamp("ffn2")
        for f in range(2):
            for half in range(2): wr_piece(1, f, half)
        for i in range(4):
            a(f"v_lshlrev_b32 v{16+2*i}, 16, v{HB+i}")
            a(f"v_and_b32 v{17+2*i}, 0xffff0000, v{HB+i}")
            a(f"v_lshlrev_b32 v{24+2*i}, 16, v{B2R+i}")
            a(f"v_and_b32 v{25+2*i}, 0xffff0000, v{B2R+i}")
        for i in range(8):
            a(f"v_add_f32 v{16+i}, v{16+i}, v{24+i}")
        a("v_and_b32 v3, 31, v1")
        a("v_lshlrev_b32 v3, 10, v3")
        a("v_lshrrev_b32 v12, 5, v1")
        a("v_lshl_or_b32 v3, v12, 4, v3")
        a(f"s_lshl_b32 {sB}, {sW}, 14")
        a(f"v_add_u32 v106, {sB}, v2")
        a(f"s_lshl_b32 {sA}, {sTT}, 5")
        a(f"s_add_u32 {sA}, {sA}, {sT0}")
        a(f"s_lshl_b32 {sA}, {sA}, 10")
        a(f"s_add_u32 {sA}, {sA}, s89")
        a("s_waitcnt lgkmcnt(0)")
        a("s_barrier")
        RD = 152
        a.lg = []
        for q in range(8):
            a.ds(f"ds_read_b128 {vr(RD+8*q,4)}, v106 offset:{q*2048}", f"q{q}")
            a.ds(f"ds_read_b128 {vr(RD+8*q+4,4)}, v106 offset:{q*2048+1024}", f"q{q}")
        for q in range(8):
            a.wait_lg(f"q{q}")
            for i in range(8):
                a(f"v_add_f32 v{16+i}, v{16+i}, v{RD+8*q+i}")
        for i in range(4):
            a(f"v_cvt_pk_bf16_f32 v{88+i}, v{16+2*i}, v{17+2*i}")
        a("v_permlane32_swap_b32 v88, v90")
        a("v_permlane32_swap_b32 v89, v91")
        om = {0: "", 1: " sc1", 2: " nt", 3: " sc0 sc1"}[self.opt.get("outmod", 0)]
        a(f"buffer_store_dwordx4 v[88:91], v3, {srd(SRD_OUT)}, {sA} offen{om}")
        self.stamp("end")

    def kv_flag(self):
        a = self.a
        a(f"s_add_u32 {sD}, {sTag}, 1")
        a(f"s_lshl_b32 {sA}, {sG}, 4")
        a(f"s_add_u32 {sA}, {sA}, {WS_FLKV}")
        a(f"v_mov_b32 v8, {sD}")
        a("v_mov_b32 v9, s3")
        a("v_mov_b32 v10, 0")
        a("s_mov_b64 exec, 1")
        a(f"s_cmp_eq_u32 {sW}, 1")
        a("s_cbranch_scc1 L_flagv")
        a(f"buffer_store_dwordx2 v[8:9], v10, {srd(SRD_WS)}, {sA} offen sc1")
        a("s_branch L_flagd")
        a.label("L_flagv")
        a(f"buffer_store_dword v8, v10, {srd(SRD_WS)}, {sA} offen offset:8 sc1")
        a.label("L_flagd")
        a("s_mov_b64 exec, -1")

    def wave_reduce(self, regs, op, tmps):
        a = self.a
        for n in (8, 4, 2, 1):
            for r in regs:
                a(f"v_{op}_f32_dpp {r}, {r}, {r} row_ror:{n} row_mask:0xf bank_mask:0xf")
        for sw in ("16", "32"):
            for r, t in zip(regs, tmps):
                a(f"v_mov_b32 {t}, {r}")
            for r, t in zip(regs, tmps):
                a(f"v_permlane{sw}_swap_b32 {r}, {t}")
            for r, t in zip(regs, tmps):
                a(f"v_{op}_f32 {r}, {r}, {t}")

    def finish(self):
        a = self.a
        a.label("L_end")
        a("s_endpgm")

    def dump_regs(self, base, regs, off):
        a = self.a
        n = len(regs)
        a(f"s_lshl_b32 {sA}, {sID}, 3")
        a(f"s_add_u32 {sA}, {sA}, {sW}")
        a(f"s_mul_i32 {sA}, {sA}, {n*256}")
        a(f"s_add_u32 {sA}, {sA}, {off}")
        a("v_lshlrev_b32 v3, 2, v1")
        for i, r in enumerate(regs):
            a(f"buffer_store_dword v{r}, v3, {srd(SRD_WS)}, {sA} offen offset:{i*256}")
        a("s_waitcnt vmcnt(0)")

    def build(self):
        self.prologue()
        self.p1()
        if self.stop == "p1":
            self.dump_regs(0, list(range(32, 48)), WS_DBG)
            self.a("s_waitcnt vmcnt(0)")
            self.finish(); return self.text()
        self.p2()
        if self.stop in ("q", "attn"):
            self.a("s_waitcnt vmcnt(0)")
            self.dump_stamps()
            self.finish(); return self.text()
        for nm, fn in (("h", self.p3), ("hid", self.p4), ("out", self.p5)):
            fn()
            if self.stop == nm: break
        if self.opt.get("dirtyend"):
            a = self.a
            n = self.opt["dirtyend"]
            a(f"s_lshl_b32 {sA}, {sID}, 3")
            a(f"s_add_u32 {sA}, {sA}, {sW}")
            a(f"s_mul_i32 {sA}, {sA}, {n*1024}")
            a(f"s_add_u32 {sA}, {sA}, {WS_DBG}")
            for i in range(n):
                a(f"buffer_store_dwordx4 v[4:7], v2, {srd(SRD_WS)}, {sA} offen")
                a(f"s_add_u32 {sA}, {sA}, 1024")
        self.a("s_waitcnt vmcnt(0)")
        self.dump_stamps()
        self.finish()
        return self.text()

    def text(self):
        lines, n = hazard_pass_all(self.a.lines)
        head = f"""; @launch grid=(256,1,1) block=(512,1,1) lds=163840
.amdgcn_target "amdgcn-amd-amdhsa--gfx950"
.text
.globl {KNAME}
.p2align 8
.type {KNAME},@function
{KNAME}:
"""
        tail = f""".section .rodata,"a"
.p2align 6
.amdhsa_kernel {KNAME}
  .amdhsa_next_free_vgpr 256
  .amdhsa_next_free_sgpr 102
  .amdhsa_accum_offset 256
  .amdhsa_group_segment_fixed_size 0
  .amdhsa_kernarg_size 104
  .amdhsa_user_sgpr_count 2
  .amdhsa_user_sgpr_kernarg_segment_ptr 1
  .amdhsa_system_sgpr_workgroup_id_x 1
.end_amdhsa_kernel
"""
        return head + "\n".join(lines) + "\n" + tail

if __name__ == "__main__":
    import argparse
    ap = argparse.ArgumentParser()
    ap.add_argument("--stop", default=None)
    ap.add_argument("-o", default="k.s")
    ap.add_argument("--prof", action="store_true")
    ap.add_argument("--opt", nargs="*", default=[])
    ap.add_argument("--skip", nargs="*", default=["args", "b1", "f1a", "f1b", "f1c"])
    args = ap.parse_args()
    opt = dict((kv.split("=")[0], int(kv.split("=")[1])) for kv in args.opt)
    g = Gen(stop=args.stop, prof=args.prof, opt=opt, skip=args.skip)
    open(args.o, "w").write(g.build())
    print("wrote", args.o, "stamps:", getattr(g, "stamp_names", None))
```

```python
import sys
sys.path.insert(0, "work")
from asmlib import Asm, hazard_pass_all

NAME = "sequential_preLN__grouped_kv_mqa__dense_activation_squared_relu__prompt"
KNAME = NAME + "_kernel"

WS_EPOCH = 0x0
WS_FLKV  = 0x1000
WS_FLWT  = 0x3000
WS_FLO   = 0x4000
WS_FLH   = 0x6000
WS_FLHID = 0x8000
WS_FLWT2 = 0xA000
WS_KV    = 0x10000
WS_ST    = 0x60000
WS_O     = 0x100000
WS_H     = 0x300000
WS_HID   = 0x500000
WS_WOF   = 0xC00000
WS_W1F   = 0xC80000
WS_W2F   = 0xE40000
WS_DBG   = 0x1000000
WS_PROF  = 0x1800000
WS_SIZE  = 0x2000000

SRD_X, SRD_WQ, SRD_WK, SRD_WV = 8, 12, 16, 20
SRD_WO, SRD_W1, SRD_W2, SRD_B1 = 24, 28, 32, 36
SRD_B2, SRD_OUT, SRD_WS, SRD_T = 40, 44, 48, 52
def srd(b): return f"s[{b}:{b+3}]"
sW, sM, sC, sT0, sTag, sFast = "s56", "s57", "s58", "s59", "s60", "s61"
sFT, sTT, sKH, sXCC = "s62", "s63", "s90", "s91"
sID = "s2"
sA, sB, sD, sE_, sF, sG = "s92", "s93", "s94", "s95", "s96", "s97"
sCnt, sPh = "s98", "s99"
sW1B = "s65"
sWOB = "s66"
sPF = "s69"
NW1PRE = 26
W1H = [152 + 4 * k for k in range(26)] + [40, 44, 48, 52, 96, 100]
WOH = [8, 12, 16, 20, 60] + [108 + 4 * k for k in range(11)]
NW2E = 7
W2H0 = [8, 12, 16, 20, 24, 28, 32, 36, 56, 60, 132, 136, 140, 144]
W2H1 = W1H[:14]
sX64 = "s[4:5]"; sY64 = "s[6:7]"

LOG2E = 1.4426950408889634
def f32bits(x):
    import struct
    return struct.unpack("<I", struct.pack("<f", x))[0]
def vr(b, n): return f"v[{b}:{b+n-1}]"

class Gen:
    def __init__(self, stop=None, prof=False, opt=None, skip=()):
        self.skip = set(skip)
        self.a = Asm()
        self.stop = stop
        self.prof = prof
        self.opt = opt or {}
        self.nstamp = 0

    def stamp(self, name):
        if not self.prof: return
        if name in self.skip:
            self.skipped_last = True
            return
        self.skipped_last = False
        i = self.nstamp; self.nstamp += 1
        assert i < 16
        self.stamp_names = getattr(self, "stamp_names", []) + [name]
        a = self.a
        a(f"s_memtime s[4:5]")
        a("s_waitcnt lgkmcnt(0)")
        a("s_sub_u32 s4, s4, s100")
        a(f"v_writelane_b32 v0, s4, {i}")

    def dump_stamps(self):
        if not self.prof: return
        a = self.a
        a("s_memrealtime s[4:5]")
        a("s_waitcnt lgkmcnt(0)")
        a("s_sub_u32 s4, s4, s101")
        a("v_writelane_b32 v0, s4, 15")
        a(f"s_lshl_b32 {sA}, {sID}, 3")
        a(f"s_add_u32 {sA}, {sA}, {sW}")
        a(f"s_lshl_b32 {sA}, {sA}, 6")
        a(f"s_add_u32 {sA}, {sA}, {WS_PROF}")
        a("v_lshlrev_b32 v3, 2, v1")
        a("s_mov_b64 exec, 0xffff")
        a(f"buffer_store_dword v0, v3, {srd(SRD_WS)}, {sA} offen")
        a(f"s_lshl_b32 {sA}, {sID}, 3")
        a(f"s_add_u32 {sA}, {sA}, {sW}")
        a(f"s_cmp_lg_u32 {sA}, {self.opt.get('profw', 0)}")
        a("s_cbranch_scc1 L_nodbgst")
        a("s_load_dwordx2 s[52:53], s[0:1], 88")
        a("s_waitcnt lgkmcnt(0)")
        a("s_mov_b32 s54, 256")
        a("s_mov_b32 s55, 0x20000")
        a("buffer_store_dword v0, v3, s[52:55], 0 offen")
        a.label("L_nodbgst")
        a("s_mov_b64 exec, -1")
        a("s_waitcnt vmcnt(0)")

    def prologue(self):
        a = self.a
        a(f"s_cmp_ge_u32 {sID}, 256")
        a("s_cbranch_scc1 L_end")
        if self.prof:
            a("s_memtime s[100:101]")
            a("s_memrealtime s[6:7]")
        a("s_load_dwordx16 s[64:79], s[0:1], 0")
        a("s_load_dwordx8 s[80:87], s[0:1], 64")
        a("s_load_dwordx2 s[88:89], s[0:1], 96")
        a(f"s_and_b32 {sA}, {sID}, 7")
        a(f"s_lshr_b32 {sB}, {sID}, 6")
        a(f"s_lshl_b32 {sB}, {sB}, 3")
        a(f"s_add_u32 {sC}, {sA}, {sB}")
        a(f"s_lshr_b32 {sM}, {sID}, 3")
        a(f"s_and_b32 {sM}, {sM}, 7")
        a(f"s_lshl_b32 {sT0}, {sC}, 6")
        a(f"s_getreg_b32 {sXCC}, hwreg(HW_REG_XCC_ID)")
        a(f"s_and_b32 {sXCC}, {sXCC}, 7")
        a("v_lshrrev_b32 v3, 6, v0")
        a("v_and_b32 v1, 63, v0")
        a(f"v_readfirstlane_b32 {sW}, v3")
        a("v_lshlrev_b32 v2, 4, v1")
        a(f"s_lshr_b32 {sKH}, {sW}, 2")
        a(f"s_lshr_b32 {sFT}, {sW}, 1")
        a(f"s_and_b32 {sFT}, {sFT}, 1")
        a(f"s_and_b32 {sTT}, {sW}, 1")
        a("s_waitcnt lgkmcnt(0)")
        if self.prof:
            a("v_mov_b32 v0, 0")
            a("s_mov_b32 s101, s6")
        self.stamp("args")
        def mk(b, lo, size):
            a(f"s_mov_b32 s{b}, s{lo}")
            a(f"s_mov_b32 s{b+1}, s{lo+1}")
            a(f"s_mov_b32 s{b+2}, 0x{size:x}")
            a(f"s_mov_b32 s{b+3}, 0x20000")
        mk(SRD_X, 64, 0x200000)
        mk(SRD_WS, 88, WS_SIZE)
        a(f"s_load_dword {sTag}, s[88:89], {WS_EPOCH}")
        mk(SRD_WK, 68, 0x4000)
        mk(SRD_WV, 70, 0x4000)
        mk(SRD_WQ, 66, 0x80000)
        self.mk = mk

    def rest_srds(self):
        mk = self.mk
        mk(SRD_WO, 72, 0x80000)
        mk(SRD_W1, 76, 0x1C0000)
        mk(SRD_B1, 78, 3584)
        mk(SRD_W2, 80, 0x1C0000)
        mk(SRD_B2, 82, 1024)
        mk(SRD_OUT, 84, 0x200000)

    def dma(self, voff, srdb, soff, m0, tag, extra=""):
        a = self.a
        a(f"s_mov_b32 m0, {m0}")
        a.vmem(f"buffer_load_dwordx4 {voff}, {srd(srdb)}, {soff} offen {extra} lds", tag)

    def p1(self):
        a = self.a
        X = self.opt
        ROW = 4
        vXa, vKVo, vWAo, vXt = "v16", "v18", "v19", "v17"
        LDS_WK = 64 * 1024
        LDS_WV = 80 * 1024
        LDS_WA = 96 * 1024
        sG1 = "s67"
        a(f"s_lshl_b32 {sA}, {sM}, 3")
        a(f"s_add_u32 {sA}, {sA}, {sT0}")
        a(f"s_add_u32 {sB}, {sA}, {sW}")
        a(f"s_lshl_b32 {sB}, {sB}, 10")
        a(f"buffer_load_dwordx4 {vr(ROW,4)}, v2, {srd(SRD_X)}, {sB} offen")
        a("v_lshrrev_b32 v8, 3, v1")
        a("v_and_b32 v9, 7, v1")
        a("v_lshrrev_b32 v10, 1, v8")
        a("v_xor_b32 v10, v10, v9")
        a(f"s_and_b32 {sB}, {sM}, 1")
        a(f"s_lshl_b32 {sB}, {sB}, 2")
        a(f"v_xor_b32 v10, {sB}, v10")
        a("v_lshlrev_b32 v10, 4, v10")
        a(f"v_lshl_add_u32 {vXa}, v8, 10, v10")
        def xa_dma(gs, cs, voff):
            a(f"s_lshl_b32 {sD}, {gs}, 13")
            a(f"s_lshl_b32 {sE_}, {cs}, 7")
            a(f"s_add_u32 {sD}, {sD}, {sE_}")
            a(f"s_add_u32 {sD}, {sD}, s68")
            a(f"s_lshl_b32 {sE_}, {cs}, 13")
            a(f"s_lshl_b32 {sF}, {gs}, 10")
            a(f"s_add_u32 m0, {sE_}, {sF}")
            a(f"buffer_load_dwordx4 {voff}, {srd(SRD_X)}, {sD} offen lds")
        self.xa_dma = xa_dma
        a(f"s_lshl_b32 s68, {sT0}, 10")
        xa_dma(sM, sW, vXa)
        a("v_lshrrev_b32 v8, 1, v1")
        a("v_and_b32 v9, 0x13, v8")
        a("v_bfe_u32 v10, v8, 2, 1")
        a("v_lshl_or_b32 v9, v10, 3, v9")
        a("v_bfe_u32 v10, v8, 3, 1")
        a("v_lshl_or_b32 v9, v10, 2, v9")
        a("v_lshlrev_b32 v9, 5, v9")
        a("v_and_b32 v10, 1, v1")
        a(f"v_lshl_or_b32 {vKVo}, v10, 4, v9")
        a(f"s_lshl_b32 {sD}, {sW}, 11")
        for k in range(2):
            a(f"s_add_u32 m0, {sD}, {LDS_WK}")
            a(f"buffer_load_dwordx4 {vKVo}, {srd(SRD_WK)}, {sD} offen lds")
            a(f"s_add_u32 m0, {sD}, {LDS_WV}")
            a(f"buffer_load_dwordx4 {vKVo}, {srd(SRD_WV)}, {sD} offen lds")
            if k == 0: a(f"s_add_u32 {sD}, {sD}, 1024")
        if X.get("kvt"):
            a(f"s_lshl_b32 {sA}, {sC}, 3")
            a(f"s_add_u32 {sA}, {sA}, {sM}")
            a(f"s_cmp_eq_u32 {sW}, 2")
            a("s_cbranch_scc0 L_kvt1")
            a(f"s_lshl_b32 {sB}, {sA}, 10")
            a(f"s_add_u32 {sB}, {sB}, {WS_KV}")
            a(f"buffer_load_dwordx4 v[24:27], v2, {srd(SRD_WS)}, {sB} offen sc1")
            a.label("L_kvt1")
            a(f"s_cmp_eq_u32 {sW}, 3")
            a("s_cbranch_scc0 L_kvt2")
            a(f"s_lshl_b32 {sB}, {sA}, 4")
            a(f"s_add_u32 {sB}, {sB}, {WS_FLKV}")
            a("v_mov_b32 v24, 0")
            a(f"buffer_load_dword v25, v24, {srd(SRD_WS)}, {sB} offen sc1")
            a.label("L_kvt2")
        a("v_lshrrev_b32 v8, 3, v1")
        a("v_and_b32 v9, 7, v1")
        a("v_bfe_u32 v10, v1, 4, 1")
        a("v_lshlrev_b32 v10, 2, v10")
        a("v_xor_b32 v9, v9, v10")
        a("v_lshlrev_b32 v9, 4, v9")
        a(f"v_lshl_add_u32 {vWAo}, v8, 10, v9")
        a(f"s_add_u32 {sG1}, {sM}, 1")
        a(f"s_and_b32 {sG1}, {sG1}, 7")
        NBULK = 20
        def bulk():
            a(f"s_sub_u32 {sA}, {sW}, 2")
            a(f"s_add_u32 {sB}, {sA}, 2")
            for i in range(9):
                a(f"s_lshr_b32 s4, {sB}, 3")
                a(f"s_add_u32 s4, s4, 1")
                a(f"s_and_b32 s5, s4, 1")
                a(f"s_lshl_b32 s5, s5, 6")
                a(f"v_xor_b32 {vXt}, s5, {vXa}")
                a(f"s_add_u32 s4, s4, {sM}")
                a(f"s_and_b32 s4, s4, 7")
                a(f"s_and_b32 s5, {sB}, 7")
                xa_dma("s4", "s5", vXt)
                if i < 8: a(f"s_add_u32 {sB}, {sB}, 6")
            a(f"s_lshl_b32 {sD}, {sA}, 13")
            a(f"s_lshl_b32 {sE_}, {sM}, 7")
            a(f"s_add_u32 {sD}, {sD}, {sE_}")
            a(f"s_lshl_b32 {sE_}, {sA}, 10")
            a(f"s_add_u32 {sE_}, {sE_}, {LDS_WA}")
            for i in range(11):
                if i == 10:
                    a(f"s_cmp_ge_u32 {sA}, 4")
                    a("s_cbranch_scc1 L_blk_done")
                a(f"s_mov_b32 m0, {sE_}")
                a(f"buffer_load_dwordx4 {vWAo}, {srd(SRD_WQ)}, {sD} offen lds")
                if i < 10:
                    a(f"s_add_u32 {sD}, {sD}, {6*8192}")
                    a(f"s_add_u32 {sE_}, {sE_}, {6*1024}")
            a.label("L_blk_done")
        early = X.get("bulk", 0) == 1
        if early:
            a("s_barrier")
            a(f"s_cmp_lt_u32 {sW}, 2")
            a("s_cbranch_scc1 L_nobulk0")
            bulk()
            a.label("L_nobulk0")
        self.rest_srds()
        XF, WF = 64, 128
        a(f"s_cmp_ge_u32 {sW}, 2")
        a("s_cbranch_scc1 L_no_ones")
        for i in range(64):
            a(f"v_mov_b32 v{XF+i}, 0x3f803f80" if i == 0 else f"v_mov_b32 v{XF+i}, v{XF}")
        a.label("L_no_ones")
        if early:
            a(f"s_cmp_lt_u32 {sW}, 2")
            a("s_cbranch_scc1 L_rw0")
            a("s_waitcnt vmcnt(24)")
            a("s_branch L_rw1")
            a.label("L_rw0")
            a("s_waitcnt vmcnt(5)")
            a.label("L_rw1")
        else:
            a("s_waitcnt vmcnt(5)")
        a("s_mov_b32 s3, 0x3f803f80")
        a(f"v_dot2_f32_bf16 v8, v{ROW}, s3, 0")
        a(f"v_dot2_f32_bf16 v9, v{ROW}, v{ROW}, 0")
        for i in range(1, 4):
            a(f"v_dot2_f32_bf16 v8, v{ROW+i}, s3, v8")
            a(f"v_dot2_f32_bf16 v9, v{ROW+i}, v{ROW+i}, v9")
        self.wave_reduce(["v8", "v9"], "add", ["v10", "v11"])
        a(f"v_mul_f32 v8, 0x{f32bits(1/512):x}, v8")
        a(f"v_mul_f32 v9, 0x{f32bits(1/512):x}, v9")
        a("v_fma_f32 v9, -v8, v8, v9")
        a("v_max_f32 v9, 0, v9")
        a(f"v_add_f32 v9, 0x{f32bits(1e-5):x}, v9")
        a("v_rsq_f32 v9, v9")
        a(f"s_lshl_b32 {sA}, {sW}, 3")
        a(f"s_lshl_b32 {sB}, {sG1}, 10")
        a(f"s_add_u32 {sA}, {sA}, {sB}")
        a(f"v_lshlrev_b32 v10, 13, v1")
        a(f"v_add_u32 v10, {sA}, v10")
        a("s_mov_b64 exec, 3")
        a("ds_write_b64 v10, v[8:9]")
        a("s_mov_b64 exec, -1")
        if early:
            a(f"s_cmp_lt_u32 {sW}, 2")
            a("s_cbranch_scc1 L_b1a")
            a("s_waitcnt vmcnt(19) lgkmcnt(0)")
            a("s_branch L_b1b")
            a.label("L_b1a")
            a("s_waitcnt vmcnt(0) lgkmcnt(0)")
            a.label("L_b1b")
        else:
            a("s_waitcnt vmcnt(0) lgkmcnt(0)")
        a("s_barrier")
        self.stamp("b1")
        a(f"s_cmp_lt_u32 {sW}, 2")
        a("s_cbranch_scc1 L_kv_go")
        if not early: bulk()
        a("s_branch L_kv_done")
        a.label("L_kv_go")
        a("v_and_b32 v8, 7, v1")
        a(f"s_lshl_b32 {sA}, {sM}, 3")
        a(f"v_add_u32 v8, {sA}, v8")
        a("v_bfe_u32 v9, v8, 1, 3")
        a("v_lshrrev_b32 v10, 4, v1")
        a("v_xor_b32 v9, v9, v10")
        a("v_lshlrev_b32 v9, 4, v9")
        a("v_lshl_add_u32 v20, v8, 7, v9")
        a("v_xor_b32 v21, 64, v20")
        a("v_bfe_u32 v8, v1, 4, 1")
        a("v_bfe_u32 v9, v1, 2, 2")
        a("v_lshl_add_u32 v8, v8, 2, v9")
        a("v_lshlrev_b32 v8, 5, v8")
        a("v_lshrrev_b32 v9, 5, v1")
        a("v_lshl_add_u32 v8, v9, 9, v8")
        a("v_and_b32 v9, 3, v1")
        a("v_lshl_add_u32 v8, v9, 3, v8")
        a(f"s_lshl_b32 {sA}, {sW}, 14")
        a(f"s_add_u32 {sA}, {sA}, {LDS_WK}")
        a(f"v_add_u32 v22, {sA}, v8")
        a("s_mov_b32 exec_lo, 0x00ff00ff")
        a("s_mov_b32 exec_hi, 0x00ff00ff")
        for s in range(16):
            a.ds(f"ds_read_b128 {vr(XF+4*s,4)}, {'v20' if s%2==0 else 'v21'} offset:{(s>>1)*8192}", f"x{s}")
        a("s_mov_b64 exec, -1")
        D = 24
        a(f"s_cmp_eq_u32 {sW}, 1")
        a("s_cbranch_scc1 L_vwave")
        saved_lg = list(a.lg)
        for wave in ("K", "V"):
            a.lg = list(saved_lg)
            if wave == "V": a.label("L_vwave")
            def wread(s):
                a.ds(f"ds_read_b64_tr_b16 {vr(WF+4*s,2)}, v22 offset:{s*1024}", f"w{s}")
                a.ds(f"ds_read_b64_tr_b16 {vr(WF+4*s+2,2)}, v22 offset:{s*1024+256}", f"w{s}")
            for s in range(4): wread(s)
            for s in range(16):
                a.wait_lg(f"w{s}")
                srcC = "0" if s == 0 else vr(D, 4)
                if wave == "K":
                    a(f"v_mfma_f32_16x16x32_bf16 {vr(D,4)}, {vr(WF+4*s,4)}, {vr(XF+4*s,4)}, {srcC}")
                else:
                    a(f"v_mfma_f32_16x16x32_bf16 {vr(D,4)}, {vr(XF+4*s,4)}, {vr(WF+4*s,4)}, {srcC}")
                if s + 4 < 16: wread(s + 4)
            a(f"s_lshl_b32 {sA}, {sC}, 3")
            a(f"s_add_u32 {sA}, {sA}, {sM}")
            a(f"s_lshl_b32 {sB}, {sA}, 10")
            a(f"s_add_u32 {sB}, {sB}, {WS_KV}")
            if wave == "K":
                a("v_and_b32 v8, 7, v1")
                a("v_lshlrev_b32 v8, 3, v8")
                a(f"s_lshl_b32 s4, {sG1}, 10")
                a(f"v_add_u32 v8, s4, v8")
                a.ds("ds_read_b64 v[10:11], v8", "st")
                for r in range(4):
                    a(f"v_mov_b32_dpp v{28+r}, v{D+r} row_ror:8 row_mask:0xf bank_mask:0xf")
                a.wait_lg("st")
                for r in range(4):
                    a(f"v_fma_f32 v{D+r}, -v10, v{28+r}, v{D+r}")
                for r in range(4):
                    a(f"v_mul_f32 v{D+r}, v11, v{D+r}")
                a(f"v_cvt_pk_bf16_f32 v32, v{D}, v{D+1}")
                a(f"v_cvt_pk_bf16_f32 v33, v{D+2}, v{D+3}")
                a("v_mov_b32 v34, v32")
                a("v_mov_b32 v35, v33")
                a("v_permlane32_swap_b32 v32, v34")
                a("v_permlane32_swap_b32 v33, v35")
                a("v_bfe_u32 v8, v1, 4, 1")
                a("v_and_b32 v9, 7, v1")
                a("v_lshlrev_b32 v9, 4, v9")
                a("v_lshl_add_u32 v8, v8, 7, v9")
                a("s_mov_b32 exec_lo, 0x00ff00ff")
                a("s_mov_b32 exec_hi, 0")
                a(f"buffer_store_dwordx4 v[32:35], v8, {srd(SRD_WS)}, {sB} offen sc1")
                a("s_mov_b64 exec, -1")
                a("v_dot2_f32_bf16 v12, v32, v32, 0")
                for i in (33, 34, 35):
                    a(f"v_dot2_f32_bf16 v12, v{i}, v{i}, v12")
                a("v_mov_b32 v13, v12")
                a("v_permlane16_swap_b32 v12, v13")
                a("v_add_f32 v12, v12, v13")
                a("v_and_b32 v13, 8, v1")
                a("v_cmp_eq_u32 vcc, 0, v13")
                a("v_cndmask_b32 v12, 0, v12, vcc")
                for n in (8, 4, 2, 1):
                    a(f"v_max_f32_dpp v12, v12, v12 row_ror:{n} row_mask:0xf bank_mask:0xf")
                a(f"v_readlane_b32 {sD}, v12, 0")
                a(f"s_add_u32 {sD}, {sD}, 8")
                a(f"s_and_b32 {sD}, {sD}, 0xfffffff8")
                a(f"s_or_b32 {sD}, {sD}, {sXCC}")
                a(f"s_mov_b32 s3, {sD}")
                a(f"s_mov_b32 {sG}, {sA}")
                a("s_branch L_kv_fin")
            else:
                a("v_bfe_u32 v8, v1, 4, 1")
                a("v_lshlrev_b32 v8, 5, v8")
                a(f"s_lshl_b32 s4, {sG1}, 10")
                a(f"s_add_u32 s4, s4, 8192")
                a(f"v_add_u32 v8, s4, v8")
                a.ds("ds_read_b128 v[12:15], v8", "st")
                a.ds("ds_read_b128 v[36:39], v8 offset:16", "st")
                a("v_and_b32 v9, 7, v1")
                a("v_lshlrev_b32 v9, 3, v9")
                a(f"v_add_u32 v40, s4, v9")
                a.ds("ds_read_b64 v[42:43], v40", "st")
                a(f"v_mov_b32 v28, v{D}")
                a(f"v_mov_b32 v29, v{D}")
                a("v_permlane32_swap_b32 v28, v29")
                a.wait_lg("st")
                st = [(12, 13), (14, 15), (36, 37), (38, 39)]
                for r in range(4):
                    a(f"v_fma_f32 v{D+r}, -v{st[r][0]}, v29, v{D+r}")
                for r in range(4):
                    a(f"v_mul_f32 v{D+r}, v{st[r][1]}, v{D+r}")
                a(f"v_cvt_pk_bf16_f32 v32, v{D}, v{D+1}")
                a(f"v_cvt_pk_bf16_f32 v33, v{D+2}, v{D+3}")
                a("v_mov_b32 v34, v32")
                a("v_mov_b32 v35, v33")
                a("v_permlane16_swap_b32 v32, v34")
                a("v_permlane16_swap_b32 v33, v35")
                a("v_add_u32 v8, 256, v2")
                a("s_mov_b64 exec, 0xffff")
                a(f"buffer_store_dwordx4 v[32:35], v8, {srd(SRD_WS)}, {sB} offen sc1")
                a("s_mov_b64 exec, 0xff")
                a("v_add_u32 v9, 512, v9")
                a(f"buffer_store_dwordx2 v[42:43], v9, {srd(SRD_WS)}, {sB} offen sc1")
                a("s_mov_b64 exec, -1")
                a(f"s_mov_b32 {sG}, {sA}")
        a.lg = []
        a.label("L_kv_fin")
        self.stamp("kvst")
        a(f"v_xor_b32 {vXt}, 64, {vXa}")
        xa_dma(sG1, sW, vXt)
        self.q_addr(LDS_WA)
        a("s_waitcnt vmcnt(1)")
        self.kv_flag()
        self.stamp("kvfl")
        a("s_waitcnt vmcnt(1)")
        a("s_branch L_b2")
        a.label("L_kv_done")
        self.q_addr(LDS_WA)
        if X.get("epoll", 0):
            a(f"s_cmp_eq_u32 {sKH}, 0")
            a("s_cbranch_scc1 L_noep")
            if X.get("epsl"): a(f"s_sleep {X['epsl']}")
            self.kv_pload()
            a.label("L_noep")
        a("s_waitcnt vmcnt(0)")
        a.label("L_b2")
        a("s_barrier")
        self.stamp("b2")
        a(f"s_add_u32 s3, {sTag}, 1")
        a.vm = []
        AF, BF, ACC, CS = 64, 128, 32, 48
        vA = "v20"
        vB = ["v22", "v23", "v24", "v25"]
        a(f"s_cmp_eq_u32 {sKH}, 0")
        a("s_cbranch_scc0 L_hwave")
        a.lg = []
        NB = 5
        def qread(p):
            c, q = p >> 2, p & 3
            sl = p % NB
            off = c * 8192 + q * 2048
            a.ds(f"ds_read_b64_tr_b16 {vr(AF+4*sl,2)}, {vA} offset:{off}", f"q{p}")
            a.ds(f"ds_read_b64_tr_b16 {vr(AF+4*sl+2,2)}, {vA} offset:{off+512}", f"q{p}")
            a.ds(f"ds_read_b128 {vr(BF+4*sl,4)}, {vB[q]} offset:{c*8192}", f"q{p}")
        PRE = 4
        for p in range(PRE): qread(p)
        for p in range(32):
            sl = p % NB
            a.wait_lg(f"q{p}")
            srcC = "0" if p == 0 else vr(ACC, 16)
            a(f"v_mfma_f32_32x32x16_bf16 {vr(ACC,16)}, {vr(AF+4*sl,4)}, {vr(BF+4*sl,4)}, {srcC}")
            nx = p + PRE
            if nx < 32: qread(nx)
        self.stamp("q1")
        a("s_branch L_b3a")
        a.label("L_hwave")
        self.h_front()
        a.label("L_b3a")
        a("s_barrier")
        self.stamp("q2")

    def q_addr(self, LDS_WA):
        a = self.a
        a("v_bfe_u32 v8, v1, 2, 2")
        a("v_lshrrev_b32 v9, 5, v1")
        a("v_lshl_add_u32 v9, v9, 3, v8")
        a("v_lshlrev_b32 v9, 7, v9")
        a("v_bfe_u32 v10, v1, 4, 1")
        a("v_lshlrev_b32 v10, 5, v10")
        a("v_and_b32 v11, 3, v1")
        a("v_lshl_add_u32 v10, v11, 3, v10")
        a(f"s_lshl_b32 {sA}, {sFT}, 6")
        a(f"v_add_u32 v10, {sA}, v10")
        a("v_bfe_u32 v11, v1, 3, 1")
        a("v_lshlrev_b32 v11, 6, v11")
        a("v_xor_b32 v10, v10, v11")
        a("v_add_u32 v9, v9, v10")
        a(f"s_and_b32 {sA}, {sKH}, {sTT}")
        a(f"s_lshl_b32 {sA}, {sA}, 15")
        a(f"s_add_u32 {sA}, {sA}, {LDS_WA}")
        a(f"v_add_u32 v20, {sA}, v9")
        a("v_and_b32 v8, 31, v1")
        a("v_bfe_u32 v9, v1, 1, 3")
        a("v_lshrrev_b32 v10, 5, v1")
        a("v_xor_b32 v9, v9, v10")
        a("v_lshlrev_b32 v9, 4, v9")
        a("v_lshl_add_u32 v8, v8, 7, v9")
        a(f"s_lshl_b32 {sB}, {sTT}, 12")
        a(f"v_add_u32 v22, {sB}, v8")
        a("v_xor_b32 v23, 32, v22")
        a("v_xor_b32 v24, 64, v22")
        a("v_xor_b32 v25, 96, v22")
        self.kv_addr()
        a(f"s_mov_b32 s66, {WS_FLKV}")

    def kv_pload(self):
        for q in range(4):
            self.a(f"buffer_load_dwordx4 {vr(64+4*q,4)}, v2, {srd(SRD_WS)}, s66 offen offset:{1024*q} sc1")

    def kv_tile(self, spos):
        a = self.a
        a(f"s_add_u32 {sD}, {spos}, s64")
        a(f"s_and_b32 {sD}, {sD}, 63")
        a(f"s_lshl_b32 {sD}, {sD}, 12")
        a(f"s_add_u32 {sD}, {sD}, {WS_KV}")
        a(f"s_lshl_b32 {sE_}, {spos}, 11")
        a(f"s_mov_b32 m0, {sE_}")
        a(f"buffer_load_dwordx4 v59, {srd(SRD_WS)}, {sD} offen sc1 lds")
        a(f"s_add_u32 m0, {sE_}, 1024")
        a(f"buffer_load_dwordx4 v60, {srd(SRD_WS)}, {sD} offen sc1 lds")

    def kv_addr(self):
        a = self.a
        a("v_bfe_u32 v59, v1, 3, 2")
        a("v_lshlrev_b32 v59, 10, v59")
        a("v_and_b32 v13, 7, v1")
        a("v_lshl_or_b32 v59, v13, 4, v59")
        a("v_lshrrev_b32 v13, 5, v1")
        a("v_lshl_or_b32 v59, v13, 7, v59")
        a("v_lshrrev_b32 v60, 4, v1")
        a("v_lshlrev_b32 v60, 10, v60")
        a("v_and_b32 v13, 15, v1")
        a("v_lshl_or_b32 v60, v13, 4, v60")
        a("v_add_u32 v60, 256, v60")
        a(f"s_lshr_b32 s64, {sID}, 3")
        a(f"s_lshl_b32 s64, s64, 1")
        a("v_bfe_u32 v12, v1, 3, 2")
        a("v_and_b32 v13, 7, v1")
        a("v_lshlrev_b32 v13, 3, v13")
        a("v_lshl_add_u32 v12, v12, 10, v13")
        a(f"s_lshl_b32 {sA}, {sC}, 3")
        a(f"s_lshl_b32 {sB}, {sTT}, 2")
        a(f"s_add_u32 {sA}, {sA}, {sB}")
        a(f"s_lshl_b32 {sA}, {sA}, 10")
        a(f"s_add_u32 s65, {sA}, {WS_KV + 512}")

    def h_front(self):
        a = self.a
        X = self.opt
        AF, CS = 128, 48
        def check(lab_ok):
            a(f"v_xor_b32 v80, s3, v64")
            a(f"v_xor_b32 v81, s3, v66")
            a("v_or_b32 v80, v80, v81")
            for q in range(1, 4):
                a(f"v_xor_b32 v81, s3, v{64+4*q}")
                a("v_or_b32 v80, v80, v81")
                a(f"v_xor_b32 v81, s3, v{66+4*q}")
                a("v_or_b32 v80, v80, v81")
            a("v_cmp_ne_u32 vcc, 0, v80")
            a(f"s_cbranch_vccz {lab_ok}")
        def chunk0():
            a(f"buffer_load_dwordx2 v[10:11], v12, {srd(SRD_WS)}, s65 offen sc1")
            a(f"s_add_u32 {sF}, {sW}, 28")
            for i in range(4):
                self.kv_tile(sF)
                if i < 3: a(f"s_add_u32 {sF}, {sF}, 4")
        NB = 6
        def cread(p):
            c, q = p >> 2, p & 3
            sl = p % NB
            off = c * 8192 + q * 2048
            a.ds(f"ds_read_b64_tr_b16 {vr(AF+4*sl,2)}, v20 offset:{off}", f"c{p}")
            a.ds(f"ds_read_b64_tr_b16 {vr(AF+4*sl+2,2)}, v20 offset:{off+512}", f"c{p}")
        def csteps(lo, hi):
            for p in range(lo, hi):
                sl = p % NB
                a.wait_lg(f"c{p}")
                for i in range(4):
                    src2 = "0" if p == 0 else f"v{CS+i}"
                    a(f"v_dot2_f32_bf16 v{CS+i}, v{AF+4*sl+i}, s74, {src2}")
                if p + 5 < 16: cread(p + 5)
        a("s_mov_b32 s74, 0x3f803f80")
        a(f"s_mov_b32 {sPh}, 0")
        a.lg = []
        for p in range(5): cread(p)
        if X.get("epoll", 0):
            check("L_kv_early")
            self.kv_pload()
            a("s_branch L_kv_late")
            a.label("L_kv_early")
            chunk0()
            a(f"s_mov_b32 {sPh}, 1")
            a.label("L_kv_late")
        else:
            self.kv_pload()
        NH = X.get("csplit", 8)
        csteps(0, NH)
        a(f"s_cmp_eq_u32 {sPh}, 1")
        a("s_cbranch_scc1 L_kv_have")
        a(f"s_mov_b32 {sCnt}, 200000")
        a.label("L_poll_kv")
        a("s_waitcnt vmcnt(0)")
        check("L_pollok_kv")
        a(f"s_sub_u32 {sCnt}, {sCnt}, 1")
        a(f"s_cmp_eq_u32 {sCnt}, 0")
        a("s_cbranch_scc1 L_pollok_kv")
        a(f"s_sleep {X.get('kvsl', 2)}")
        self.kv_pload()
        a("s_branch L_poll_kv")
        a.label("L_pollok_kv")
        self.stamp("kvok")
        chunk0()
        a.label("L_kv_have")
        csteps(NH, 16)
        a(f"v_add_f32 v{CS}, v{CS}, v{CS+1}")
        a(f"v_add_f32 v{CS+2}, v{CS+2}, v{CS+3}")
        a(f"v_add_f32 v{CS}, v{CS}, v{CS+2}")
        a(f"v_mov_b32 v9, v{CS}")
        a(f"v_permlane32_swap_b32 v{CS}, v9")
        a(f"v_add_f32 v{CS}, v{CS}, v9")

    def poll_begin(self, name, limit=200000):
        a = self.a
        a(f"s_mov_b32 {sCnt}, {limit}")
        a.label(f"L_poll_{name}")
    def poll_end(self, name, sleep=1):
        a = self.a
        a(f"s_cbranch_vccz L_pollok_{name}")
        a(f"s_sub_u32 {sCnt}, {sCnt}, 1")
        a(f"s_cmp_eq_u32 {sCnt}, 0")
        a(f"s_cbranch_scc1 L_pollok_{name}")
        if sleep: a(f"s_sleep {sleep}")
        a(f"s_branch L_poll_{name}")
        a.label(f"L_pollok_{name}")

    def p2(self):
        a = self.a
        X = self.opt
        LDS_E = 132 * 1024
        Q, NEGM, S0, S1, IDX, O, KF, VF = 4, 8, 24, 40, 56, 64, 80, 88
        vKa, vVa, vKb, vVb = "v104", "v105", "v106", "v107"
        vT1, vT2 = "v108", "v109"
        PL = 110
        WD = 112
        W1 = 128
        sTG = "s3"
        LDS_BC, LDS_CS, LDS_EX = 156 * 1024, 157 * 1024, 148 * 1024
        ACC, CS = 32, 48
        sRot = "s64"
        kv_tile = self.kv_tile
        a(f"s_cmp_eq_u32 {sKH}, 0")
        a("s_cbranch_scc0 L_p2h")
        a(f"buffer_load_dwordx2 v[10:11], v12, {srd(SRD_WS)}, s65 offen sc1")
        a(f"s_lshl_b32 {sA}, {sW}, 11")
        a(f"s_add_u32 {sA}, {sA}, {LDS_EX}")
        a(f"v_add_u32 v8, {sA}, v2")
        a(f"ds_write_b128 v8, {vr(ACC+8,4)}")
        a(f"ds_write_b128 v8, {vr(ACC+12,4)} offset:1024")
        a("s_branch L_p2j")
        a.label("L_p2h")
        a("v_and_b32 v9, 31, v1")
        a(f"s_lshl_b32 {sA}, {sTT}, 1")
        a(f"s_add_u32 {sA}, {sA}, {sFT}")
        a(f"s_lshl_b32 {sA}, {sA}, 7")
        a(f"s_add_u32 {sA}, {sA}, {LDS_CS}")
        a("v_lshlrev_b32 v9, 2, v9")
        a(f"v_add_u32 v9, {sA}, v9")
        a(f"ds_write_b32 v9, v{CS}")
        a.label("L_p2j")
        a("s_waitcnt lgkmcnt(0)")
        a("s_barrier")
        self.stamp("b3")
        a.lg = []
        a("v_lshrrev_b32 v9, 5, v1")
        a("v_lshlrev_b32 v9, 4, v9")
        a(f"s_lshl_b32 {sA}, {sFT}, 7")
        a(f"s_lshl_b32 {sB}, {sKH}, 6")
        a(f"s_add_u32 {sA}, {sA}, {sB}")
        a(f"s_add_u32 {sA}, {sA}, {LDS_CS}")
        a(f"v_add_u32 v9, {sA}, v9")
        for q in range(2):
            a.ds(f"ds_read_b128 {vr(84+8*q,4)}, v9 offset:{q*256}", "cs")
            a.ds(f"ds_read_b128 {vr(88+8*q,4)}, v9 offset:{q*256+32}", "cs")
        a(f"s_cmp_eq_u32 {sKH}, 0")
        a("s_cbranch_scc1 L_p2k")
        a(f"s_lshl_b32 {sA}, {sW}, 11")
        a(f"s_add_u32 {sA}, {sA}, {LDS_EX - 4*2048}")
        a(f"v_add_u32 v8, {sA}, v2")
        a(f"ds_read_b128 {vr(ACC,4)}, v8")
        a(f"ds_read_b128 {vr(ACC+4,4)}, v8 offset:1024")
        a.label("L_p2k")
        a("s_waitcnt lgkmcnt(0)")
        a.lg = []
        for i in range(8):
            a(f"v_add_f32 v{40+i}, v{84+i}, v{92+i}")
        a(f"s_cmp_eq_u32 {sKH}, 0")
        a("s_cbranch_scc1 L_p2w")
        a("s_waitcnt vmcnt(8)")
        a("s_branch L_p2x")
        a.label("L_p2w")
        a("s_waitcnt vmcnt(0)")
        a.label("L_p2x")
        a(f"v_mul_f32 v11, 0x{f32bits(0.25*LOG2E):x}, v11")
        for i in range(8):
            a(f"v_fma_f32 v{32+i}, -v10, v{40+i}, v{32+i}")
        for i in range(8):
            a(f"v_mul_f32 v{32+i}, v11, v{32+i}")
        for i in range(4):
            a(f"v_cvt_pk_bf16_f32 v{Q+i}, v{32+2*i}, v{33+2*i}")
        if self.stop == "q":
            self.dump_regs(0, [Q, Q+1, Q+2, Q+3], WS_DBG)
            return
        a(f"v_dot2_f32_bf16 v12, v{Q}, v{Q}, 0")
        for i in range(1, 4):
            a(f"v_dot2_f32_bf16 v12, v{Q+i}, v{Q+i}, v12")
        a("v_mov_b32 v13, v12")
        a("v_permlane32_swap_b32 v12, v13")
        a("v_add_f32 v12, v12, v13")
        a("v_sqrt_f32 v12, v12")
        a(f"v_mul_f32 v12, 0x{f32bits(1.0078125):x}, v12")
        self.wt_issue()
        a(f"s_cmp_eq_u32 {sW}, 7")
        a("s_cbranch_scc0 L_nobc")
        a("v_and_b32 v80, -8, v65")
        for q in range(1, 4):
            a(f"v_and_b32 v81, -8, v{65+4*q}")
            a("v_max_f32 v80, v80, v81")
        a(f"s_lshr_b32 {sB}, {sC}, 3")
        a("v_mov_b32 v82, v65")
        for q in range(1, 4):
            a(f"s_cmp_eq_u32 {sB}, {q}")
            a("s_cselect_b64 vcc, -1, 0")
            a(f"v_cndmask_b32 v82, v82, v{65+4*q}, vcc")
        a(f"v_xor_b32 v82, {sXCC}, v82")
        a("v_and_b32 v82, 7, v82")
        a("v_cmp_ne_u32 vcc, 0, v82")
        a(f"s_and_b32 {sA}, {sC}, 7")
        a(f"s_lshl_b32 {sA}, {sA}, 3")
        a(f"s_lshr_b64 {sX64}, vcc, {sA}")
        a(f"s_and_b32 {sFast}, s4, 0xff")
        if X.get("slow"): a(f"s_mov_b32 {sFast}, 1")
        self.wave_reduce(["v80"], "max", ["v81"])
        a("v_sqrt_f32 v80, v80")
        a(f"v_mov_b32 v81, {sFast}")
        a(f"v_mov_b32 v82, {LDS_BC}")
        a("s_mov_b64 exec, 1")
        a("ds_write_b64 v82, v[80:81]")
        a("s_mov_b64 exec, -1")
        a.label("L_nobc")
        def epoch():
            a(f"s_or_b32 {sA}, {sID}, {sW}")
            a(f"s_cmp_lg_u32 {sA}, 0")
            a("s_cbranch_scc1 L_noepoch")
            a(f"v_mov_b32 v62, {sTG}")
            a("v_mov_b32 v63, 0")
            a("s_mov_b64 exec, 1")
            a(f"buffer_store_dword v62, v63, {srd(SRD_WS)}, 0 offen")
            a("s_mov_b64 exec, -1")
            a.label("L_noepoch")
        def bound_check():
            a("v_mul_f32 v12, v12, v62")
            a(f"v_cmp_lt_f32 vcc, 0x{f32bits(48.0):x}, v12")
            a("v_cmp_u_f32 s[4:5], v12, v12")
            a("s_or_b64 vcc, vcc, s[4:5]")
            a("s_cmp_lg_u64 vcc, 0")
            a(f"s_cselect_b32 {sG}, 1, 0")
            a(f"v_readfirstlane_b32 {sFast}, v63")
            if X.get("forcefb"): a(f"s_mov_b32 {sG}, 1")
        a(f"v_mov_b32 v{VF}, 0x3f803f80")
        for i in range(1, 16):
            a(f"v_mov_b32 v{VF+i}, v{VF}")
        for i in range(16):
            a(f"v_mov_b32 v{O+i}, 0")
        a(f"v_mov_b32 v{IDX}, 0xdddddddd")
        a(f"v_mov_b32 {vKa}, v2")
        a(f"v_add_u32 {vKb}, 0x10000, v2")
        a("v_and_b32 v3, 15, v1")
        a("v_lshlrev_b32 v3, 4, v3")
        a("v_lshrrev_b32 v61, 5, v1")
        a("v_lshl_or_b32 v3, v61, 8, v3")
        a(f"v_add_u32 {vVa}, 1024, v3")
        a(f"v_add_u32 {vVb}, 0x10000, {vVa}")
        self.wt_addr(vT1, vT2)
        self.wt_poll_addr()
        a("s_mov_b32 s6, 0x0000ffff")
        a("s_mov_b32 s7, 0x0000ffff")
        a(f"v_mov_b32 v61, {LDS_BC}")
        a("s_waitcnt vmcnt(2) lgkmcnt(0)")
        a("s_barrier")
        self.stamp("b4")
        a(f"s_cmp_eq_u32 {sKH}, 0")
        a("s_cbranch_scc1 L_clsA")
        a(f"s_sub_u32 s67, {sW}, 4")
        a(f"s_mov_b32 {sCnt}, 12")
        a.label("L_kvrest")
        a(f"s_add_u32 {sF}, s67, 16")
        a(f"s_cmp_lt_u32 s67, 32")
        a(f"s_cselect_b32 {sF}, s67, {sF}")
        kv_tile(sF)
        a(f"s_add_u32 s67, s67, 4")
        a(f"s_sub_u32 {sCnt}, {sCnt}, 1")
        a(f"s_cmp_lg_u32 {sCnt}, 0")
        a("s_cbranch_scc1 L_kvrest")
        a("s_setprio 1")
        a("s_waitcnt vmcnt(0)")
        a("s_barrier")
        a(f"s_mov_b32 {sPh}, 1")
        a("s_branch L_clsD")
        a.label("L_clsA")
        a("s_setprio 2")
        a(f"s_mov_b32 {sPh}, 0")
        a.label("L_clsD")

        def pos(t): return t + 32 if t < 16 else (t - 16 if t < 48 else t)
        def kread(t):
            p_ = pos(t)
            base = vKa if p_ < 32 else vKb
            a.ds(f"ds_read_b128 {vr(KF+4*(t%2),4)}, {base} offset:{(p_%32)*2048}", f"K{t}")
        def vread(t):
            p_ = pos(t)
            base = vVa if p_ < 32 else vVb
            a("s_mov_b64 exec, s[6:7]")
            a.ds(f"ds_read_b128 {vr(VF+8*(t%2),4)}, {base} offset:{(p_%32)*2048}", f"V{t}")
            a.ds(f"ds_read_b128 {vr(VF+8*(t%2)+4,4)}, {base} offset:{(p_%32)*2048+512}", f"V{t}")
            a("s_mov_b64 exec, -1")
        def Sr(t): return S0 if t % 2 == 0 else S1
        def ms(t):
            a.wait_lg(f"K{t}")
            a(f"v_mfma_f32_32x32x16_bf16 {vr(Sr(t),16)}, {vr(KF+4*(t%2),4)}, {vr(Q,4)}, 0")
        def sm(t, half):
            a.wait_lg(f"V{t}")
            a(f"v_smfmac_f32_32x32x32_bf16 {vr(O,16)}, {vr(VF+8*(t%2)+4*half,4)}, {vr(Sr(t)+8*half,8)}, v{IDX}")
        def E(t, lo, hi):
            for i in range(lo, hi + 1): a(f"v_exp_f32 v{Sr(t)+i}, v{Sr(t)+i}")

        TA = dict(wt=X.get("Awt", 10), fl=X.get("Afl", 17), bar=13, sw=X.get("sw", 50))
        TB = dict(wt=X.get("Bwt", 0), fl=X.get("Bfl", 2))
        TPOLL, TCHK, TLD0 = X.get("tpoll", 30), X.get("tchk", 32), X.get("tld", 32)
        def cond(cls, name, fn):
            lab = a.newlabel(f"L_{name}")
            a(f"s_cmp_eq_u32 {sKH}, {cls}")
            a(f"s_cbranch_scc0 {lab}")
            fn()
            a.label(lab)
        def b_wt():
            a("s_waitcnt vmcnt(0)")
            a(f"ds_read_b64_tr_b16 v[{WD}:{WD+1}], {vT1}")
            a(f"ds_read_b64_tr_b16 v[{WD+2}:{WD+3}], {vT1} offset:1024")
            a(f"ds_read_b64_tr_b16 v[{WD+4}:{WD+5}], {vT2}")
            a(f"ds_read_b64_tr_b16 v[{WD+6}:{WD+7}], {vT2} offset:1024")
            a("s_waitcnt lgkmcnt(0)")
            a(f"buffer_store_dwordx4 v[{WD}:{WD+3}], v2, {srd(SRD_WS)}, s88 offen sc1")
            a("s_add_u32 s88, s88, s89")
            a(f"buffer_store_dwordx4 v[{WD+4}:{WD+7}], v2, {srd(SRD_WS)}, s88 offen sc1")
        def b_fl():
            a("s_waitcnt vmcnt(0)")
            a(f"s_lshl_b32 {sA}, {sID}, 3")
            a(f"s_add_u32 {sA}, {sA}, {sW}")
            a(f"s_lshl_b32 {sA}, {sA}, 2")
            a(f"s_add_u32 {sA}, {sA}, {WS_FLWT2}")
            a(f"v_mov_b32 v{WD}, {sTG}")
            a(f"v_mov_b32 v{WD+1}, 0")
            a("s_mov_b64 exec, 1")
            a(f"buffer_store_dword v{WD}, v{WD+1}, {srd(SRD_WS)}, {sA} offen sc1")
            a("s_mov_b64 exec, -1")
        def b_bar():
            lab = a.newlabel("L_b5")
            a(f"s_cmp_eq_u32 {sPh}, 1")
            a(f"s_cbranch_scc1 {lab}")
            a("s_barrier")
            a.label(lab)
        def poll_issue():
            a(f"buffer_load_dword v{PL}, v57, {srd(SRD_WS)}, 0 offen sc1")
            a(f"buffer_load_dword v{PL+1}, v58, {srd(SRD_WS)}, 0 offen sc1")
        def poll_check():
            a("s_waitcnt vmcnt(0)")
            a(f"s_mov_b32 {sCnt}, 200000")
            a.label("L_wtchk")
            a(f"v_xor_b32 v{PL}, {sTG}, v{PL}")
            a(f"v_xor_b32 v{PL+1}, {sTG}, v{PL+1}")
            a(f"v_or_b32 v{PL}, v{PL}, v{PL+1}")
            a(f"v_cmp_ne_u32 vcc, 0, v{PL}")
            a("s_cbranch_vccz L_wtok")
            a(f"s_sub_u32 {sCnt}, {sCnt}, 1")
            a(f"s_cmp_eq_u32 {sCnt}, 0")
            a("s_cbranch_scc1 L_wtok")
            a("s_sleep 2")
            poll_issue()
            a("s_waitcnt vmcnt(0)")
            a("s_branch L_wtchk")
            a.label("L_wtok")
        extras = {t: [] for t in range(64)}
        mid = {t: [] for t in range(64)}
        extras[TA["wt"]].append(lambda: cond(0, "wtA", b_wt))
        extras[TB["wt"]].append(lambda: cond(1, "wtB", b_wt))
        extras[TA["fl"]].append(lambda: cond(0, "flA", b_fl))
        extras[TB["fl"]].append(lambda: cond(1, "flB", b_fl))
        extras[TA["bar"]].append(b_bar)
        extras[TA["sw"]].append(lambda: cond(0, "swA", lambda: a("s_setprio 0")))
        def dirty():
            n = X["dirty"]
            a(f"s_lshl_b32 {sA}, {sID}, 3")
            a(f"s_add_u32 {sA}, {sA}, {sW}")
            a(f"s_mul_i32 {sA}, {sA}, {n*1024}")
            a(f"s_add_u32 {sA}, {sA}, {WS_DBG}")
            for i in range(n):
                a(f"buffer_store_dwordx4 v[4:7], v2, {srd(SRD_WS)}, {sA} offen")
                a(f"s_add_u32 {sA}, {sA}, 1024")
        if X.get("dirty"): extras[20].append(dirty)
        D_ = vr(W1H[25], 4) if (X.get("spread", 1) and not X.get("w1first")) else vr(WOH[15], 4)
        sPA, sPB = "s70", "s71"
        def pt_addr():
            a(f"s_lshl_b32 {sA}, {sM}, 2")
            a(f"s_lshl_b32 {sB}, {sFT}, 1")
            a(f"s_add_u32 {sA}, {sA}, {sB}")
            a(f"s_add_u32 {sA}, {sA}, {sKH}")
            a(f"s_lshl_b32 {sA}, {sA}, 1")
            a(f"s_add_u32 {sA}, {sA}, {sTT}")
            a(f"s_lshl_b32 {sB}, {sA}, 10")
            a(f"s_lshl_b32 {sD}, {sC}, 16")
            a(f"s_add_u32 {sPA}, {sB}, {sD}")
            a(f"s_lshr_b32 {sB}, {sA}, 1")
            a(f"s_lshl_b32 {sE_}, {sTT}, 5")
            a(f"s_add_u32 {sB}, {sB}, {sE_}")
            a(f"s_lshl_b32 {sB}, {sB}, 8")
            a(f"s_lshl_b32 {sE_}, {sC}, 14")
            a(f"s_add_u32 {sB}, {sB}, {sE_}")
            a(f"s_add_u32 s72, {sB}, {WS_ST}")
            a(f"s_mul_i32 {sA}, {sM}, 7")
            a(f"s_add_u32 {sA}, {sA}, {sW}")
            a(f"s_min_u32 {sA}, {sA}, 55")
            a(f"s_lshl_b32 {sB}, {sA}, 12")
            a(f"s_mul_i32 {sD}, {sC}, {224*1024}")
            a(f"s_add_u32 {sB}, {sB}, {sD}")
            a(f"s_add_u32 {sPB}, {sB}, {WS_HID}")
        def pt_o():
            a(f"s_add_u32 {sA}, {sPA}, {WS_O}")
            a(f"buffer_load_dwordx4 {D_}, v2, {srd(SRD_WS)}, {sA} offen sc1")
        def pt_h():
            a(f"s_add_u32 {sA}, {sPA}, {WS_H}")
            a(f"buffer_load_dwordx4 {D_}, v2, {srd(SRD_WS)}, {sA} offen sc1")
        def pt_st():
            a("s_mov_b64 exec, 0xffff")
            a(f"buffer_load_dwordx4 {D_}, v2, {srd(SRD_WS)}, s72 offen sc1")
            lab = a.newlabel("L_ptf")
            a(f"s_cmp_eq_u32 {sW}, 7")
            a(f"s_cbranch_scc0 {lab}")
            a(f"s_lshl_b32 {sB}, {sC}, 8")
            for fl in (WS_FLO, WS_FLH, WS_FLHID):
                a(f"s_add_u32 {sA}, {sB}, {fl}")
                a(f"buffer_load_dwordx4 {D_}, v2, {srd(SRD_WS)}, {sA} offen sc1")
            a.label(lab)
            a("s_mov_b64 exec, -1")
        def pt_hid(p):
            def f():
                lab = a.newlabel("L_pth")
                a(f"s_cmp_eq_u32 {sW}, 7")
                a(f"s_cbranch_scc1 {lab}")
                a(f"buffer_load_dwordx4 {D_}, v2, {srd(SRD_WS)}, {sPB} offen offset:{p*1024} sc1")
                a.label(lab)
            return f
        if X.get("pt"):
            t0, stp = X["pt"], X.get("ptstep", 2)
            PM = X.get("ptm", 9)
            seq = []
            if PM & 1: seq += [pt_o, pt_h, pt_st]
            if PM & 8: seq += [pt_hid(p) for p in range(4)]
            extras[t0 - 1].append(pt_addr)
            for n, f in enumerate(seq): extras[t0 + n * stp].append(f)
            assert t0 + (len(seq) - 1) * stp < 52
        def own():
            D = "v[4:7]"
            def body(mod):
                a(f"s_lshl_b32 {sA}, {sM}, 2")
                a(f"s_lshl_b32 {sB}, {sFT}, 1")
                a(f"s_add_u32 {sA}, {sA}, {sB}")
                a(f"s_add_u32 {sA}, {sA}, {sKH}")
                a(f"s_lshl_b32 {sA}, {sA}, 1")
                a(f"s_add_u32 {sA}, {sA}, {sTT}")
                a(f"s_lshl_b32 {sB}, {sA}, 10")
                a(f"s_lshl_b32 {sD}, {sC}, 16")
                a(f"s_add_u32 {sB}, {sB}, {sD}")
                a(f"s_add_u32 {sE_}, {sB}, {WS_O}")
                a(f"buffer_store_dwordx4 {D}, v2, {srd(SRD_WS)}, {sE_} offen{mod}")
                a(f"s_add_u32 {sE_}, {sB}, {WS_H}")
                a(f"buffer_store_dwordx4 {D}, v2, {srd(SRD_WS)}, {sE_} offen{mod}")
                a(f"s_lshr_b32 {sB}, {sA}, 1")
                a(f"s_lshl_b32 {sE_}, {sTT}, 5")
                a(f"s_add_u32 {sB}, {sB}, {sE_}")
                a(f"s_lshl_b32 {sB}, {sB}, 8")
                a(f"s_lshl_b32 {sE_}, {sC}, 14")
                a(f"s_add_u32 {sB}, {sB}, {sE_}")
                a(f"s_add_u32 {sB}, {sB}, {WS_ST}")
                a("s_mov_b64 exec, 0xffff")
                a(f"buffer_store_dwordx4 {D}, v2, {srd(SRD_WS)}, {sB} offen{mod}")
                a("s_mov_b64 exec, -1")
                if X.get("ownout", 1):
                    a("v_and_b32 v59, 31, v1")
                    a("v_lshlrev_b32 v59, 10, v59")
                    a("v_lshrrev_b32 v3, 5, v1")
                    a("v_lshl_or_b32 v59, v3, 4, v59")
                    a(f"s_lshl_b32 {sB}, {sTT}, 5")
                    a(f"s_add_u32 {sB}, {sB}, {sT0}")
                    a(f"s_lshl_b32 {sB}, {sB}, 10")
                    a(f"s_lshl_b32 {sE_}, {sM}, 7")
                    a(f"s_add_u32 {sB}, {sB}, {sE_}")
                    a(f"s_lshl_b32 {sE_}, {sFT}, 6")
                    a(f"s_add_u32 {sB}, {sB}, {sE_}")
                    a(f"s_lshl_b32 {sE_}, {sKH}, 5")
                    a(f"s_add_u32 {sB}, {sB}, {sE_}")
                    a(f"buffer_store_dwordx4 {D}, v59, {srd(SRD_OUT)}, {sB} offen")
                if False:
                    a(f"s_lshl_b32 {sA}, {sC}, 19")
                    a(f"s_lshl_b32 {sB}, {sW}, 16")
                    a(f"s_add_u32 {sA}, {sA}, {sB}")
                    a(f"s_lshl_b32 {sB}, {sM}, 10")
                    a(f"s_add_u32 {sA}, {sA}, {sB}")
                    a(f"s_add_u32 {sA}, {sA}, {WS_P}")
                    for p in range(8):
                        a(f"buffer_store_dwordx4 {D}, v2, {srd(SRD_WS)}, {sA} offen{mod}")
                        a(f"s_add_u32 {sA}, {sA}, 8192")
                else:
                    a(f"s_cmp_eq_u32 {sW}, 7")
                    lab = a.newlabel("L_own7")
                    a(f"s_cbranch_scc1 {lab}")
                    a(f"s_mul_i32 {sA}, {sM}, 7")
                    a(f"s_add_u32 {sA}, {sA}, {sW}")
                    a(f"s_lshl_b32 {sB}, {sA}, 12")
                    a(f"s_mul_i32 {sD}, {sC}, {224*1024}")
                    a(f"s_add_u32 {sB}, {sB}, {sD}")
                    a(f"s_add_u32 {sB}, {sB}, {WS_HID}")
                    for p in range(4):
                        a(f"buffer_store_dwordx4 {D}, v2, {srd(SRD_WS)}, {sB} offen offset:{p*1024}{mod}")
                    a.label(lab)
            l1, l2 = a.newlabel("L_ownS"), a.newlabel("L_ownD")
            a(f"s_cmp_eq_u32 {sFast}, 0")
            a(f"s_cbranch_scc0 {l1}")
            body("")
            a(f"s_branch {l2}")
            a.label(l1)
            body(" sc1")
            a.label(l2)
        if X.get("own"): extras[X["own"]].append(own)
        for k in ("ts1", "ts2", "ts3", "ts4", "ts5", "ts6"):
            if X.get(k) is not None:
                extras[X[k]].append(lambda k=k: self.stamp(k))
        extras[1].append(epoch)
        extras[0].insert(0, bound_check)
        extras[TPOLL].append(poll_issue)
        extras[TCHK - 1].append(poll_check)
        def w1load(s_):
            def f():
                a(f"buffer_load_dwordx4 {vr(W1H[s_],4)}, v2, {srd(SRD_WS)}, {sW1B} offen offset:{(s_%4)*1024} sc1")
                if s_ % 4 == 3 and not X.get("fakew"): a(f"s_add_u32 {sW1B}, {sW1B}, 4096")
            return f
        def wo_addr():
            a(f"s_lshl_b32 {sA}, {sM}, 1")
            a(f"s_add_u32 {sA}, {sA}, {sFT}")
            a(f"s_lshl_b32 {sA}, {sA}, 5")
            a(f"s_lshl_b32 {sB}, {sKH}, 4")
            a(f"s_add_u32 {sA}, {sA}, {sB}")
            a(f"s_lshl_b32 {sA}, {sA}, 10")
            a(f"s_add_u32 {sWOB}, {sA}, {WS_WOF}")
            a(f"s_lshl_b32 {sB}, {sKH}, 8")
            a(f"v_xor_b32 v57, {sB}, v2")
        extras[TCHK - 1].append(wo_addr)
        if X.get("fakew"):
            extras[TCHK - 1].append(lambda: (a(f"s_mov_b32 {sW1B}, {WS_W1F}"), a(f"s_mov_b32 {sWOB}, {WS_WOF}")))
        def woload(i):
            def f():
                a(f"buffer_load_dwordx4 {vr(WOH[i],4)}, v57, {srd(SRD_WS)}, {sWOB} offen offset:{(i%4)*1024} sc1")
                if i % 4 == 3 and i < 15 and not X.get("fakew"): a(f"s_add_u32 {sWOB}, {sWOB}, 4096")
            return f
        if X.get("spread", 1):
            seq = [woload(i) for i in range(16)] + [w1load(s_) for s_ in range(NW1PRE)]
            if X.get("w1first"): seq = seq[16:] + seq[:16]
            TEND = X.get("tend", 63)
            ntile = TEND - TLD0 + 1
            for n, f in enumerate(seq):
                mid[TLD0 + (n * ntile) // len(seq)].append(f)
            TWO = TLD0
        else:
            for s_ in range(NW1PRE):
                mid[TLD0 + s_ // 2].append(w1load(s_))
            TWO = TLD0 + NW1PRE // 2
            for i in range(16):
                mid[TWO + i // 2].append(woload(i))

        def pf_addr():
            a(f"s_lshl_b32 {sA}, {sM}, 1")
            a(f"s_add_u32 {sA}, {sA}, {sFT}")
            a(f"s_mul_i32 {sA}, {sA}, 112")
            a(f"s_and_b32 {sB}, {sW}, 3")
            a(f"s_mul_i32 {sB}, {sB}, 28")
            a(f"s_add_u32 {sA}, {sA}, {sB}")
            a(f"s_lshl_b32 {sA}, {sA}, 10")
            a(f"s_add_u32 {sPF}, {sA}, {WS_W2F}")
            a("v_lshlrev_b32 v58, 6, v1")
        def pf(i):
            def f():
                a(f"buffer_load_dword v59, v58, {srd(SRD_WS)}, {sPF} offen sc1")
                a(f"s_add_u32 {sPF}, {sPF}, 4096")
            return f
        def pf_w1():
            a(f"s_add_u32 {sPF}, {sW1B}, 2048")
            a(f"buffer_load_dword v59, v58, {srd(SRD_WS)}, {sPF} offen sc1")
            a(f"buffer_load_dword v59, v58, {srd(SRD_WS)}, {sPF} offen offset:2048 sc1")
        if X.get("pf"):
            TPF = TWO + 8
            extras[TPF - 1].append(pf_addr)
            for i in range(7): mid[TPF + i].append(pf(i))
            mid[TPF + 7].append(pf_w1)

        a.lg = []
        a.ds("ds_read_b64 v[62:63], v61", "bc")
        kread(0); kread(1); vread(0)
        ms(0)
        a("s_nop 11")
        for t in range(64):
            E(t, 0, 1)
            if t > 0: sm(t - 1, 1)
            if t + 1 < 64: vread(t + 1)
            E(t, 2, 5)
            if t + 1 < 64: ms(t + 1)
            if t + 2 < 64: kread(t + 2)
            if mid[t]: mid[t][0]()
            E(t, 6, 11)
            sm(t, 0)
            for f in mid[t][1:]: f()
            E(t, 12, 15)
            for f in extras[t]: f()
        a("s_nop 1")
        sm(63, 1)
        a("s_setprio 0")
        self.stamp("attn")
        a("s_nop 7")
        a("s_nop 3")
        a(f"v_rcp_f32 v3, v{O+8}")
        a(f"v_mul_f32 v80, 0, v{O}")
        a(f"v_mul_f32 v81, 0, v{O+1}")
        for i in range(2, 8, 2):
            a(f"v_fma_f32 v80, v{O+i}, 0, v80")
            a(f"v_fma_f32 v81, v{O+i+1}, 0, v81")
        a("v_add_f32 v80, v80, v81")
        a("v_cmp_u_f32 vcc, v80, v80")
        a("s_cmp_lg_u64 vcc, 0")
        a(f"s_cselect_b32 {sA}, 1, 0")
        a(f"s_or_b32 {sA}, {sA}, {sG}")
        a(f"s_cmp_eq_u32 {sA}, 0")
        a("s_cbranch_scc1 L_nofb")
        a(f"v_mov_b32 v57, {vKa}")
        a("v_mov_b32 v58, 0xff800000")
        a(f"s_mov_b32 {sCnt}, 64")
        a.label("L_fb")
        a(f"ds_read_b128 {vr(KF,4)}, v57")
        a("v_add_u32 v57, 2048, v57")
        a("s_waitcnt lgkmcnt(0)")
        a(f"v_mfma_f32_32x32x16_bf16 {vr(S0,16)}, {vr(KF,4)}, {vr(Q,4)}, 0")
        for i in range(8):
            a(f"v_max3_f32 v58, v{S0+2*i}, v{S0+2*i+1}, v58")
        a(f"s_sub_u32 {sCnt}, {sCnt}, 1")
        a(f"s_cmp_lg_u32 {sCnt}, 0")
        a("s_cbranch_scc1 L_fb")
        a("v_mov_b32 v57, v58")
        a("v_permlane32_swap_b32 v57, v58")
        a("v_max_f32 v58, v57, v58")
        a(f"v_sub_f32 v{S1}, 0, v58")
        for i in range(1, 16):
            a(f"v_mov_b32 v{S1+i}, v{S1}")
        for i in range(16):
            a(f"v_mov_b32 v{O+i}, 0")
        a(f"v_mov_b32 v57, {vKa}")
        a(f"v_mov_b32 v58, {vVa}")
        a(f"s_mov_b32 {sCnt}, 64")
        a.label("L_fb2")
        a(f"ds_read_b128 {vr(KF,4)}, v57")
        a("s_mov_b64 exec, s[6:7]")
        a(f"ds_read_b128 {vr(VF,4)}, v58")
        a(f"ds_read_b128 {vr(VF+4,4)}, v58 offset:512")
        a("s_mov_b64 exec, -1")
        a("v_add_u32 v57, 2048, v57")
        a("v_add_u32 v58, 2048, v58")
        a("s_waitcnt lgkmcnt(0)")
        a(f"v_mfma_f32_32x32x16_bf16 {vr(S0,16)}, {vr(KF,4)}, {vr(Q,4)}, {vr(S1,16)}")
        for i in range(16):
            a(f"v_exp_f32 v{S0+i}, v{S0+i}")
        a(f"v_smfmac_f32_32x32x32_bf16 {vr(O,16)}, {vr(VF,4)}, {vr(S0,8)}, v{IDX}")
        a(f"v_smfmac_f32_32x32x32_bf16 {vr(O,16)}, {vr(VF+4,4)}, {vr(S0+8,8)}, v{IDX}")
        a(f"s_sub_u32 {sCnt}, {sCnt}, 1")
        a(f"s_cmp_lg_u32 {sCnt}, 0")
        a("s_nop 7")
        a("s_nop 7")
        a("s_cbranch_scc1 L_fb2")
        a(f"v_rcp_f32 v3, v{O+8}")
        a.label("L_nofb")
        OP = 40
        for i in range(8):
            a(f"v_mul_f32 v{O+i}, v3, v{O+i}")
        for i in range(4):
            a(f"v_cvt_pk_bf16_f32 v{OP+i}, v{O+2*i}, v{O+2*i+1}")
        a(f"s_lshl_b32 s88, {sM}, 2")
        a(f"s_lshl_b32 {sB}, {sFT}, 1")
        a(f"s_add_u32 s88, s88, {sB}")
        a(f"s_add_u32 s88, s88, {sKH}")
        a(f"s_lshl_b32 {sB}, s88, 1")
        a(f"s_add_u32 {sB}, {sB}, {sTT}")
        a(f"s_lshl_b32 {sB}, {sB}, 10")
        a(f"s_lshl_b32 {sD}, {sC}, 16")
        a(f"s_add_u32 {sB}, {sB}, {sD}")
        a(f"s_add_u32 {sB}, {sB}, {WS_O}")
        a(f"s_lshl_b32 {sD}, {sTT}, 5")
        a(f"s_add_u32 {sD}, {sD}, s88")
        a(f"s_lshl_b32 {sD}, {sD}, 2")
        a(f"s_lshl_b32 {sE_}, {sC}, 8")
        a(f"s_add_u32 {sD}, {sD}, {sE_}")
        a(f"s_add_u32 {sD}, {sD}, {WS_FLO}")
        self.publish("o", [("dwordx4", vr(OP, 4), "v2", sB, 0)], sD)
        self.stamp("opub")

    def wt_addr(self, vT1, vT2):
        a = self.a
        LDS_E = 132 * 1024
        a("v_bfe_u32 v61, v1, 2, 2")
        a("v_lshrrev_b32 v62, 5, v1")
        a("v_lshl_add_u32 v62, v62, 2, v61")
        a("v_lshlrev_b32 v62, 7, v62")
        a("v_bfe_u32 v63, v1, 4, 1")
        a("v_lshlrev_b32 v63, 5, v63")
        a("v_and_b32 v61, 3, v1")
        a("v_lshl_add_u32 v63, v61, 3, v63")
        a("v_bfe_u32 v61, v1, 3, 1")
        a("v_lshlrev_b32 v61, 6, v61")
        a("v_xor_b32 v63, v63, v61")
        a("v_add_u32 v62, v62, v63")
        a(f"s_xor_b32 {sA}, {sW}, 1")
        a(f"s_lshl_b32 {sA}, {sA}, 11")
        a(f"s_add_u32 {sA}, {sA}, {LDS_E}")
        a(f"v_add_u32 {vT1}, {sA}, v62")
        a(f"v_xor_b32 {vT2}, 64, {vT1}")

    def wt_poll_addr(self):
        a = self.a
        a(f"s_cmp_eq_u32 {sW}, 7")
        a("s_cbranch_scc1 L_pa7")
        a(f"s_mul_i32 {sA}, {sM}, 7")
        a(f"s_add_u32 {sA}, {sA}, {sW}")
        a(f"s_lshl_b32 {sW1B}, {sA}, 15")
        a(f"s_add_u32 {sW1B}, {sW1B}, {WS_W1F}")
        a(f"s_lshr_b32 {sA}, {sA}, 1")
        a(f"s_lshl_b32 {sA}, {sA}, 5")
        a(f"s_add_u32 {sA}, {sA}, 256")
        a("s_branch L_pad")
        a.label("L_pa7")
        a(f"s_lshl_b32 {sA}, {sM}, 1")
        a(f"s_add_u32 {sA}, {sA}, 1")
        a(f"s_mul_i32 {sA}, {sA}, 112")
        a(f"s_add_u32 {sA}, {sA}, 98")
        a(f"s_lshl_b32 {sW1B}, {sA}, 10")
        a(f"s_add_u32 {sW1B}, {sW1B}, {WS_W2F}")
        a(f"s_mul_i32 {sA}, {sM}, 112")
        a(f"s_add_u32 {sA}, {sA}, {1152 + 80}")
        a.label("L_pad")
        a(f"s_lshl_b32 {sB}, {sM}, 5")
        a(f"s_sub_u32 {sB}, {sB}, 32")
        a(f"v_mov_b32 v57, {sA}")
        a(f"v_mov_b32 v58, {sB}")
        a("v_cmp_gt_u32 vcc, 32, v1")
        a("v_cndmask_b32 v57, v58, v57, vcc")
        a("v_add_u32 v57, v57, v1")
        a("v_lshlrev_b32 v57, 2, v57")
        a(f"v_add_u32 v57, {WS_FLWT2}, v57")
        a(f"s_mul_i32 {sA}, {sM}, 112")
        a(f"s_mul_i32 {sB}, {sW}, 14")
        a(f"s_add_u32 {sA}, {sA}, {sB}")
        a(f"s_add_u32 {sA}, {sA}, 1152")
        a("v_min_u32 v58, 13, v1")
        a(f"v_add_u32 v58, {sA}, v58")
        a("v_lshlrev_b32 v58, 2, v58")
        a(f"v_add_u32 v58, {WS_FLWT2}, v58")

    def publish(self, name, stores, sflag, pre_exec=None):
        a = self.a
        a(f"v_mov_b32 v104, s3")
        a(f"v_mov_b32 v105, 0")
        a(f"s_cmp_eq_u32 {sFast}, 0")
        a(f"s_cbranch_scc0 L_pub_slow_{name}")
        for variant, mod in (("fast", ""), ("slow", " sc1")):
            if variant == "slow": a.label(f"L_pub_slow_{name}")
            for st in stores:
                ty, data, voff, soff, io = st[:5]
                if len(st) > 5: a(f"s_mov_b32 exec_hi, 0")
                a(f"buffer_store_{ty} {data}, {voff}, {srd(SRD_WS)}, {soff} offen offset:{io}{mod}")
                if len(st) > 5: a("s_mov_b64 exec, -1")
            a("s_waitcnt vmcnt(0)")
            a("s_mov_b64 exec, 1")
            a(f"buffer_store_dword v104, v105, {srd(SRD_WS)}, {sflag} offen{mod}")
            a("s_mov_b64 exec, -1")
            if variant == "fast": a(f"s_branch L_pub_done_{name}")
        a.label(f"L_pub_done_{name}")

    def wt_issue(self):
        a = self.a
        LDS_E = 132 * 1024
        a(f"s_lshl_b32 {sA}, {sID}, 3")
        a(f"s_add_u32 {sA}, {sA}, {sW}")
        a(f"s_cmp_lt_u32 {sA}, 256")
        a("s_cbranch_scc1 L_wt_wo")
        a(f"s_cmp_lt_u32 {sA}, 1152")
        a("s_cbranch_scc1 L_wt_w1")
        a(f"s_sub_u32 {sA}, {sA}, 1152")
        a(f"s_mul_i32 {sB}, {sA}, 9363")
        a(f"s_lshr_b32 {sB}, {sB}, 20")
        a(f"s_mul_i32 {sD}, {sB}, 112")
        a(f"s_sub_u32 {sD}, {sA}, {sD}")
        for i in range(4): a(f"s_mov_b32 s{SRD_T+i}, s{SRD_W2+i}")
        a(f"s_mov_b32 {sF}, 1024")
        a(f"s_mul_i32 s88, {sB}, {2*112}")
        a(f"s_add_u32 s88, s88, {sD}")
        a("s_lshl_b32 s88, s88, 10")
        a(f"s_add_u32 s88, s88, {WS_W2F}")
        a(f"s_mov_b32 s89, {112*1024}")
        a("s_branch L_wt_go")
        a.label("L_wt_w1")
        a(f"s_sub_u32 {sA}, {sA}, 256")
        a(f"s_lshr_b32 {sB}, {sA}, 5")
        a(f"s_and_b32 {sD}, {sA}, 31")
        for i in range(4): a(f"s_mov_b32 s{SRD_T+i}, s{SRD_W1+i}")
        a(f"s_mov_b32 {sF}, 3584")
        a(f"s_lshl_b32 s88, {sB}, 6")
        a(f"s_add_u32 s88, s88, {sD}")
        a("s_lshl_b32 s88, s88, 10")
        a(f"s_add_u32 s88, s88, {WS_W1F}")
        a(f"s_mov_b32 s89, {32*1024}")
        a("s_branch L_wt_go")
        a.label("L_wt_wo")
        a(f"s_lshr_b32 {sB}, {sA}, 5")
        a(f"s_and_b32 {sD}, {sA}, 31")
        for i in range(4): a(f"s_mov_b32 s{SRD_T+i}, s{SRD_WO+i}")
        a(f"s_mov_b32 {sF}, 1024")
        a(f"s_lshl_b32 s88, {sB}, 6")
        a(f"s_add_u32 s88, s88, {sD}")
        a("s_lshl_b32 s88, s88, 10")
        a(f"s_add_u32 s88, s88, {WS_WOF}")
        a(f"s_mov_b32 s89, {32*1024}")
        a.label("L_wt_go")
        a(f"s_mul_i32 {sD}, {sD}, {sF}")
        a(f"s_lshl_b32 {sD}, {sD}, 4")
        a(f"s_lshl_b32 {sB}, {sB}, 7")
        a(f"s_add_u32 {sD}, {sD}, {sB}")
        a("v_lshrrev_b32 v16, 3, v1")
        a(f"v_mul_lo_u32 v16, v16, {sF}")
        a("v_and_b32 v17, 7, v1")
        a("v_bfe_u32 v18, v1, 4, 1")
        a("v_lshlrev_b32 v18, 2, v18")
        a("v_xor_b32 v17, v17, v18")
        a("v_lshl_add_u32 v16, v17, 4, v16")
        a(f"s_xor_b32 {sA}, {sW}, 1")
        a(f"s_lshl_b32 {sA}, {sA}, 11")
        a(f"s_add_u32 {sA}, {sA}, {LDS_E}")
        a(f"s_mov_b32 m0, {sA}")
        a(f"buffer_load_dwordx4 v16, {srd(SRD_T)}, {sD} offen lds")
        a(f"s_lshl_b32 {sB}, {sF}, 3")
        a(f"s_add_u32 {sD}, {sD}, {sB}")
        a(f"s_add_u32 {sA}, {sA}, 1024")
        a(f"s_mov_b32 m0, {sA}")
        a(f"buffer_load_dwordx4 v16, {srd(SRD_T)}, {sD} offen lds")

    def wt_process(self):
        a = self.a
        LDS_E = 132 * 1024
        a("v_bfe_u32 v106, v1, 2, 2")
        a("v_lshrrev_b32 v107, 5, v1")
        a("v_lshl_add_u32 v107, v107, 2, v106")
        a("v_lshlrev_b32 v107, 7, v107")
        a("v_bfe_u32 v108, v1, 4, 1")
        a("v_lshlrev_b32 v108, 5, v108")
        a("v_and_b32 v109, 3, v1")
        a("v_lshl_add_u32 v108, v109, 3, v108")
        a("v_bfe_u32 v109, v1, 3, 1")
        a("v_lshlrev_b32 v109, 6, v109")
        a("v_xor_b32 v108, v108, v109")
        a("v_add_u32 v107, v107, v108")
        a(f"s_xor_b32 {sA}, {sW}, 1")
        a(f"s_lshl_b32 {sA}, {sA}, 11")
        a(f"s_add_u32 {sA}, {sA}, {LDS_E}")
        a(f"v_add_u32 v107, {sA}, v107")
        a("v_xor_b32 v108, 64, v107")
        a("ds_read_b64_tr_b16 v[112:113], v107")
        a("ds_read_b64_tr_b16 v[114:115], v107 offset:1024")
        a("ds_read_b64_tr_b16 v[116:117], v108")
        a("ds_read_b64_tr_b16 v[118:119], v108 offset:1024")
        a("s_waitcnt lgkmcnt(0)")
        a(f"buffer_store_dwordx4 v[112:115], v2, {srd(SRD_WS)}, s88 offen sc1")
        a("s_add_u32 s88, s88, s89")
        a(f"buffer_store_dwordx4 v[116:119], v2, {srd(SRD_WS)}, s88 offen sc1")


    def colsum(self, homes, first):
        a = self.a
        n = 0
        a("s_mov_b32 s5, 0x3f803f80")
        for hm in homes:
            for i in range(4):
                r = "v106" if n % 2 == 0 else "v107"
                a(f"v_dot2_f32_bf16 {r}, v{hm+i}, s5, {'0' if (first and n < 2) else r}")
                n += 1

    def p3(self):
        a = self.a
        X_ = self.opt
        HB, X, ACC, BR = 4, 56, 24, 64
        LDS_OF, LDS_E2 = 0, 128 * 1024
        sS = "s88"
        a("v_and_b32 v3, 31, v1")
        a("v_lshlrev_b32 v3, 10, v3")
        a("v_lshrrev_b32 v104, 5, v1")
        a("v_lshl_or_b32 v3, v104, 3, v3")
        a(f"s_lshl_b32 {sA}, {sTT}, 5")
        a(f"s_add_u32 {sA}, {sA}, {sT0}")
        a(f"s_lshl_b32 {sA}, {sA}, 10")
        a(f"s_lshl_b32 {sB}, {sS}, 5")
        a(f"s_add_u32 {sA}, {sA}, {sB}")
        a(f"buffer_load_dwordx2 {vr(X,2)}, v3, {srd(SRD_X)}, {sA} offen")
        a(f"buffer_load_dwordx2 {vr(X+2,2)}, v3, {srd(SRD_X)}, {sA} offen offset:16")
        a("s_barrier")
        self.stamp("b7")
        a(f"s_cmp_eq_u32 {sW}, 7")
        a("s_cbranch_scc1 L_nocs1")
        self.colsum(W1H[:NW1PRE], True)
        a.label("L_nocs1")
        a(f"s_lshl_b32 {sA}, {sTT}, 5")
        a(f"s_lshl_b32 {sB}, {sKH}, 4")
        a(f"s_add_u32 {sA}, {sA}, {sB}")
        a(f"s_lshl_b32 {sA}, {sA}, 2")
        a(f"s_lshl_b32 {sB}, {sC}, 8")
        a(f"s_add_u32 {sA}, {sA}, {sB}")
        a(f"s_add_u32 {sA}, {sA}, {WS_FLO}")
        a("v_and_b32 v3, 15, v1")
        a("v_lshlrev_b32 v3, 2, v3")
        self.poll_begin("o")
        a(f"buffer_load_dword v104, v3, {srd(SRD_WS)}, {sA} offen sc1")
        a("s_waitcnt vmcnt(0)")
        a("v_cmp_ne_u32 vcc, s3, v104")
        self.poll_end("o", sleep=1)
        self.stamp("ook")
        a(f"s_lshl_b32 {sA}, {sKH}, 4")
        a(f"s_lshl_b32 {sB}, {sFT}, 2")
        a(f"s_add_u32 {sA}, {sA}, {sB}")
        a(f"s_lshl_b32 {sA}, {sA}, 1")
        a(f"s_add_u32 {sA}, {sA}, {sTT}")
        a(f"s_lshl_b32 {sA}, {sA}, 10")
        a(f"s_lshl_b32 {sB}, {sC}, 16")
        a(f"s_add_u32 {sB}, {sB}, {sA}")
        a(f"s_add_u32 {sB}, {sB}, {WS_O}")
        for st in range(2):
            for i in range(4):
                d = (st * 8 + i) * 2048
                a(f"s_add_u32 {sD}, {sA}, {d + LDS_OF}")
                a(f"s_add_u32 {sE_}, {sB}, {d}")
                a(f"s_mov_b32 m0, {sD}")
                a(f"buffer_load_dwordx4 v2, {srd(SRD_WS)}, {sE_} offen sc1 lds")
        nrest = 32 - NW1PRE
        a(f"s_lshl_b32 {sA}, {sKH}, 15")
        a(f"s_lshl_b32 {sB}, {sTT}, 10")
        a(f"s_add_u32 {sA}, {sA}, {sB}")
        a(f"v_add_u32 v104, {sA}, v2")
        def late_loads():
            for s_ in range(NW1PRE, 32):
                a(f"buffer_load_dwordx4 {vr(W1H[s_],4)}, v2, {srd(SRD_WS)}, {sW1B} offen offset:{(s_%4)*1024} sc1")
                if s_ % 4 == 3 and s_ < 31: a(f"s_add_u32 {sW1B}, {sW1B}, 4096")
        a.lg = []
        for st in range(2):
            a(f"s_waitcnt vmcnt({4 if st == 0 else 0})")
            a("s_barrier")
            for i in range(8):
                a.ds(f"ds_read_b128 {vr(BR+4*i,4)}, v104 offset:{(st*8+i)*2048}", f"b{st}{i}")
            if st == 1: late_loads()
            for i in range(8):
                a.wait_lg(f"b{st}{i}")
                k = st * 8 + i
                srcC = "0" if k == 0 else vr(ACC, 16)
                a(f"v_mfma_f32_32x32x16_bf16 {vr(ACC,16)}, {vr(WOH[k],4)}, {vr(BR+4*i,4)}, {srcC}")
        self.stamp("p3mm")
        a(f"s_lshl_b32 {sA}, {sW}, 11")
        a(f"s_add_u32 {sA}, {sA}, {LDS_E2}")
        a(f"v_add_u32 v104, {sA}, v2")
        a(f"ds_write_b128 v104, {vr(ACC+8,4)}")
        a(f"ds_write_b128 v104, {vr(ACC+12,4)} offset:1024")
        a("s_waitcnt lgkmcnt(0)")
        a("s_barrier")
        a("v_xor_b32 v104, 8192, v104")
        a(f"ds_read_b128 {vr(BR,4)}, v104")
        a(f"ds_read_b128 {vr(BR+4,4)}, v104 offset:1024")
        for i in range(4):
            a(f"v_lshlrev_b32 v{BR+8+2*i}, 16, v{X+i}")
            a(f"v_and_b32 v{BR+9+2*i}, 0xffff0000, v{X+i}")
        a(f"s_lshl_b32 {sA}, {sS}, 1")
        a(f"s_add_u32 {sA}, {sA}, {sTT}")
        a(f"s_lshl_b32 {sA}, {sA}, 10")
        a(f"s_lshl_b32 {sB}, {sC}, 16")
        a(f"s_add_u32 {sA}, {sA}, {sB}")
        a(f"s_add_u32 {sA}, {sA}, {WS_H}")
        a(f"s_lshl_b32 {sD}, {sTT}, 5")
        a(f"s_add_u32 {sD}, {sD}, {sS}")
        a(f"s_lshl_b32 {sD}, {sD}, 2")
        a(f"s_lshl_b32 {sE_}, {sC}, 8")
        a(f"s_add_u32 {sD}, {sD}, {sE_}")
        a(f"s_add_u32 {sD}, {sD}, {WS_FLH}")
        for i in range(8):
            a(f"v_add_f32 v{ACC+i}, v{ACC+i}, v{BR+8+i}")
        a("s_waitcnt lgkmcnt(0)")
        for i in range(8):
            a(f"v_add_f32 v{ACC+i}, v{ACC+i}, v{BR+i}")
        for i in range(4):
            a(f"v_cvt_pk_bf16_f32 v{HB+i}, v{ACC+2*i}, v{ACC+2*i+1}")
        a("s_mov_b32 s5, 0x3f803f80")
        a(f"v_dot2_f32_bf16 v56, v{HB}, s5, 0")
        a(f"v_dot2_f32_bf16 v57, v{HB}, v{HB}, 0")
        for i in range(1, 4):
            a(f"v_dot2_f32_bf16 v56, v{HB+i}, s5, v56")
            a(f"v_dot2_f32_bf16 v57, v{HB+i}, v{HB+i}, v57")
        a("v_mov_b32 v58, v56")
        a("v_mov_b32 v59, v57")
        a("v_permlane32_swap_b32 v56, v58")
        a("v_permlane32_swap_b32 v57, v59")
        a("v_add_f32 v56, v56, v58")
        a("v_add_f32 v57, v57, v59")
        a(f"s_lshl_b32 {sB}, {sTT}, 5")
        a(f"s_add_u32 {sB}, {sB}, {sS}")
        a(f"s_lshl_b32 {sB}, {sB}, 8")
        a(f"s_lshl_b32 {sE_}, {sC}, 14")
        a(f"s_add_u32 {sB}, {sB}, {sE_}")
        a(f"s_add_u32 {sB}, {sB}, {WS_ST}")
        a("v_lshlrev_b32 v3, 3, v1")
        self.publish("h", [("dwordx4", vr(HB, 4), "v2", sA, 0), ("dwordx2", "v[56:57]", "v3", sB, 0, "lo32")], sD)
        self.stamp("hpub")

    def w2load(self, f, i):
        a = self.a
        hm = (W2H0 if f == 0 else W2H1)[i]
        off = (f * 112 + i) * 1024
        a(f"s_add_u32 {sA}, s89, {off}")
        a(f"buffer_load_dwordx4 {vr(hm,4)}, v2, {srd(SRD_WS)}, {sA} offen sc1")

    def p4(self):
        a = self.a
        HB, ACC, BR = 4, 64, 108
        LDS_HF, LDS_ST2, LDS_CS1, LDS_B1 = 64 * 1024, 144 * 1024, 145 * 1024, 146 * 1024
        a(f"s_mul_i32 {sA}, {sM}, 224")
        a(f"s_mul_i32 {sB}, {sW}, 14")
        a(f"s_add_u32 {sA}, {sA}, {sB}")
        a(f"s_lshl_b32 {sA}, {sA}, 10")
        a(f"s_add_u32 s89, {sA}, {WS_W2F}")
        for i in range(NW2E): self.w2load(0, i)
        a(f"s_cmp_eq_u32 {sW}, 7")
        a("s_cbranch_scc1 L_p4_pre7")
        self.colsum(W1H[NW1PRE:], False)
        a("v_add_f32 v106, v106, v107")
        a("v_mov_b32 v107, v106")
        a("v_permlane32_swap_b32 v106, v107")
        a("v_add_f32 v106, v106, v107")
        a("v_and_b32 v107, 31, v1")
        a("v_lshlrev_b32 v107, 2, v107")
        a(f"s_lshl_b32 {sA}, {sW}, 7")
        a(f"s_add_u32 {sA}, {sA}, {LDS_CS1}")
        a(f"v_add_u32 v107, {sA}, v107")
        a("ds_write_b32 v107, v106")
        a("s_branch L_p4_pre")
        a.label("L_p4_pre7")
        a(f"s_mul_i32 {sA}, {sM}, 448")
        a("v_lshlrev_b32 v3, 3, v1")
        a("v_min_u32 v3, 440, v3")
        a(f"buffer_load_dwordx2 v[106:107], v3, {srd(SRD_B1)}, {sA} offen")
        a("s_waitcnt vmcnt(0)")
        a("v_lshlrev_b32 v108, 16, v106")
        a("v_and_b32 v109, 0xffff0000, v106")
        a("v_lshlrev_b32 v110, 16, v107")
        a("v_and_b32 v111, 0xffff0000, v107")
        for i in range(4): a(f"v_mul_f32 v{108+i}, 0.5, v{108+i}")
        a("v_lshlrev_b32 v3, 1, v3")
        a(f"v_add_u32 v3, {LDS_B1}, v3")
        a("ds_write_b128 v3, v[108:111]")
        a.label("L_p4_pre")
        a(f"s_lshl_b32 {sA}, {sC}, 8")
        a(f"s_add_u32 {sA}, {sA}, {WS_FLH}")
        a("v_lshlrev_b32 v3, 2, v1")
        self.poll_begin("h")
        a(f"buffer_load_dword v104, v3, {srd(SRD_WS)}, {sA} offen sc1")
        a("s_waitcnt vmcnt(0)")
        a("v_cmp_ne_u32 vcc, s3, v104")
        self.poll_end("h", sleep=1)
        self.stamp("hok")
        a(f"s_lshl_b32 s67, {sW}, 11")
        a(f"s_lshl_b32 {sB}, {sC}, 16")
        a(f"s_add_u32 {sB}, {sB}, s67")
        a(f"s_add_u32 s68, {sB}, {WS_H}")
        def hdma(i):
            for tt in range(2):
                d = i * 8 * 2048 + tt * 1024
                a(f"s_add_u32 {sD}, s67, {d + LDS_HF}")
                a(f"s_add_u32 {sE_}, s68, {d}")
                a(f"s_mov_b32 m0, {sD}")
                a(f"buffer_load_dwordx4 v2, {srd(SRD_WS)}, {sE_} offen sc1 lds")
        hdma(0); hdma(1)
        a(f"v_add_u32 v104, {LDS_HF}, v2")
        a("s_waitcnt vmcnt(2)")
        a("s_barrier")
        self.stamp("f1a")
        hdma(2); hdma(3)
        a(f"s_cmp_eq_u32 {sW}, 7")
        a("s_cbranch_scc1 L_p4_w7")
        a.lg = []
        NR = 3
        def hread(k):
            sl = k % NR
            a.ds(f"ds_read_b128 {vr(BR+8*sl,4)}, v104 offset:{k*2048}", f"h{k}")
            a.ds(f"ds_read_b128 {vr(BR+8*sl+4,4)}, v104 offset:{k*2048+1024}", f"h{k}")
        for k in range(NR - 1): hread(k)
        lst = [(0, i) for i in range(NW2E, 14)] + [(1, i) for i in range(14)]
        sched = {}
        for n, (f, i) in enumerate(lst):
            st = (n * 30) // len(lst) + 1
            if f == 1: st = max(st, i)
            sched.setdefault(st, []).append((f, i))
        issued = 0
        for k in range(32):
            if k == 8 - (NR - 1):
                a(f"s_waitcnt vmcnt({4 + issued})")
                a("s_barrier")
            if k == 16 - (NR - 1):
                a(f"s_waitcnt vmcnt({issued})")
                a("s_barrier")
                self.stamp("f1b")
            if k + NR - 1 < 32: hread(k + NR - 1)
            a.wait_lg(f"h{k}")
            sl = k % NR
            for tt in range(2):
                srcC = "0" if k == 0 else vr(ACC + 16 * tt, 16)
                a(f"v_mfma_f32_32x32x16_bf16 {vr(ACC+16*tt,16)}, {vr(W1H[k],4)}, {vr(BR+8*sl+4*tt,4)}, {srcC}")
            for (f, i) in (sched.get(k, []) if not self.opt.get("now2") else []):
                self.w2load(f, i)
                issued += 1
        self.stamp("f1c")
        a("s_barrier")
        a.lg = []
        CS, BF = 108, 208
        a("v_and_b32 v3, 31, v1")
        a("v_lshlrev_b32 v3, 3, v3")
        a(f"v_add_u32 v3, {LDS_ST2}, v3")
        a("ds_read_b64 v[104:105], v3")
        a("ds_read_b64 v[106:107], v3 offset:256")
        a("v_lshrrev_b32 v3, 5, v1")
        a("v_lshlrev_b32 v3, 4, v3")
        a(f"s_lshl_b32 {sA}, {sW}, 7")
        a(f"s_add_u32 {sA}, {sA}, {LDS_CS1}")
        a(f"v_add_u32 v3, {sA}, v3")
        for q in range(4):
            a(f"ds_read_b128 {vr(CS+4*q,4)}, v3 offset:{32*q}")
        for q in range(4):
            a(f"ds_read_b128 {vr(BF+4*q,4)}, v3 offset:{1024 + 32*q}")
        a("s_waitcnt lgkmcnt(0)")
        self.stamp("ffn1")
        HP = 236
        for tt in range(2):
            mu, rs = 104 + 2 * tt, 105 + 2 * tt
            A = ACC + 16 * tt
            for r in range(16): a(f"v_fma_f32 v{A+r}, -v{mu}, v{CS+r}, v{A+r}")
            for r in range(16): a(f"v_fma_f32 v{A+r}, v{A+r}, v{rs}, v{BF+r}")
            for r in range(16): a(f"v_add_f32 v{A+r}, v{A+r}, |v{A+r}|")
            for r in range(16): a(f"v_mul_f32 v{A+r}, v{A+r}, v{A+r}")
            for i in range(8): a(f"v_cvt_pk_bf16_f32 v{HP+8*tt+i}, v{A+2*i}, v{A+2*i+1}")
        a(f"s_mul_i32 {sA}, {sM}, 7")
        a(f"s_add_u32 {sA}, {sA}, {sW}")
        a(f"s_lshl_b32 {sB}, {sA}, 12")
        a(f"s_mul_i32 {sD}, {sC}, {224*1024}")
        a(f"s_add_u32 {sB}, {sB}, {sD}")
        a(f"s_add_u32 {sB}, {sB}, {WS_HID}")
        a(f"s_lshl_b32 {sD}, {sA}, 2")
        a(f"s_lshl_b32 {sE_}, {sC}, 8")
        a(f"s_add_u32 {sD}, {sD}, {sE_}")
        a(f"s_add_u32 {sD}, {sD}, {WS_FLHID}")
        st = []
        for u in range(2):
            for tt in range(2):
                st.append(("dwordx4", vr(HP + 8 * tt + 4 * u, 4), "v2", sB, u * 2048 + tt * 1024))
        self.publish("hid", st, sD)
        if self.opt.get("wbl2"):
            a(f"s_cmp_eq_u32 {sW}, 0")
            a("s_cbranch_scc0 L_nowb")
            a(f"s_cmp_lt_u32 {sID}, {self.opt['wbl2']}")
            a("s_cbranch_scc0 L_nowb")
            a("buffer_wbl2 sc1")
            a.label("L_nowb")
        a("s_branch L_p4_done")
        a.label("L_p4_w7")
        SL = 64
        a("v_lshlrev_b32 v3, 4, v1")
        a(f"s_lshl_b32 {sA}, {sC}, 14")
        a(f"s_add_u32 {sA}, {sA}, {WS_ST}")
        for q in range(16):
            a(f"buffer_load_dwordx4 {vr(SL+4*q,4)}, v3, {srd(SRD_WS)}, {sA} offen offset:{(q%4)*1024} sc1")
            if q % 4 == 3 and q < 15: a(f"s_add_u32 {sA}, {sA}, 4096")
        a("s_waitcnt vmcnt(20)")
        a("s_barrier")
        a("s_waitcnt vmcnt(16)")
        a("s_barrier")
        for i in range(NW2E, 14): self.w2load(0, i)
        a(f"s_waitcnt vmcnt({14 - NW2E})")
        for tt in range(2):
            B = SL + 32 * tt
            for q in range(1, 8):
                for c in range(4): a(f"v_add_f32 v{B+c}, v{B+c}, v{B+4*q+c}")
        R = [SL + c for c in range(4)] + [SL + 32 + c for c in range(4)]
        T = [SL + 8 + c for c in range(8)]
        for sw in ("16", "32"):
            for r, t in zip(R, T): a(f"v_mov_b32 v{t}, v{r}")
            for r, t in zip(R, T): a(f"v_permlane{sw}_swap_b32 v{r}, v{t}")
            for r, t in zip(R, T): a(f"v_add_f32 v{r}, v{r}, v{t}")
        for tt in range(2):
            for u in range(2):
                s_, q_ = SL + 32 * tt + 2 * u, SL + 32 * tt + 2 * u + 1
                a(f"v_mul_f32 v{s_}, 0x{f32bits(1/512):x}, v{s_}")
                a(f"v_mul_f32 v{q_}, 0x{f32bits(1/512):x}, v{q_}")
                a(f"v_fma_f32 v{q_}, -v{s_}, v{s_}, v{q_}")
                a(f"v_max_f32 v{q_}, 0, v{q_}")
                a(f"v_add_f32 v{q_}, 0x{f32bits(1e-5):x}, v{q_}")
                a(f"v_rsq_f32 v{q_}, v{q_}")
                a(f"v_mul_f32 v{q_}, 0.5, v{q_}")
        a("v_and_b32 v3, 15, v1")
        a("v_lshlrev_b32 v3, 4, v3")
        a(f"v_add_u32 v3, {LDS_ST2}, v3")
        a("s_mov_b64 exec, 0xffff")
        a(f"ds_write_b128 v3, {vr(SL,4)}")
        a(f"ds_write_b128 v3, {vr(SL+32,4)} offset:256")
        a("s_mov_b64 exec, -1")
        a("s_waitcnt lgkmcnt(0)")
        a("s_barrier")
        if self.prof and "ffn1" not in self.skip:
            self.nstamp = self.stamp_names.index("ffn1")
            nm = list(self.stamp_names)
            self.stamp("ffn1")
            self.stamp_names = nm
            self.nstamp = len(nm)
        a.label("L_p4_done")

    def p5(self):
        a = self.a
        HB, B2R = 4, 148
        ACCS = [[64, 208], [80, 224]]
        BQ = [40, 44, 48, 52, 96, 100, 108, 112, 116, 120, 124, 128, 240, 244]
        a(f"s_lshl_b32 {sA}, {sM}, 7")
        a(f"s_lshl_b32 {sB}, {sFT}, 6")
        a(f"s_add_u32 {sA}, {sA}, {sB}")
        a(f"s_lshl_b32 {sB}, {sKH}, 5")
        a(f"s_add_u32 s89, {sA}, {sB}")
        a("v_lshrrev_b32 v3, 5, v1")
        a("v_lshlrev_b32 v3, 3, v3")
        a(f"buffer_load_dwordx2 {vr(B2R,2)}, v3, {srd(SRD_B2)}, s89 offen")
        a(f"buffer_load_dwordx2 {vr(B2R+2,2)}, v3, {srd(SRD_B2)}, s89 offen offset:16")
        a(f"s_mul_i32 {sA}, {sW}, 28")
        a(f"s_lshl_b32 {sB}, {sC}, 8")
        a(f"s_add_u32 {sA}, {sA}, {sB}")
        a(f"s_add_u32 {sA}, {sA}, {WS_FLHID}")
        a("v_min_u32 v3, 6, v1")
        a("v_lshlrev_b32 v3, 2, v3")
        self.poll_begin("hid")
        a(f"buffer_load_dword v104, v3, {srd(SRD_WS)}, {sA} offen sc1")
        a("s_waitcnt vmcnt(0)")
        a("v_cmp_ne_u32 vcc, s3, v104")
        self.poll_end("hid", sleep=1)
        self.stamp("hidok")
        a(f"s_mul_i32 {sA}, {sW}, {14*2048}")
        a(f"s_mul_i32 {sD}, {sC}, {224*1024}")
        a(f"s_add_u32 {sA}, {sA}, {sD}")
        a(f"s_add_u32 s67, {sA}, {WS_HID}")
        def bload(tt, i):
            a(f"s_add_u32 {sA}, s67, {i*2048 + tt*1024}")
            a(f"buffer_load_dwordx4 {vr(BQ[i],4)}, v2, {srd(SRD_WS)}, {sA} offen sc1")
        for i in range(14): bload(0, i)
        a(f"s_lshl_b32 {sA}, {sW}, 11")
        a(f"v_add_u32 v104, {sA}, v2")
        a("v_add_u32 v105, 65536, v104")
        def wr_piece(tt, f, half):
            p = 4 * half + 2 * f + tt
            A = ACCS[tt][f] + 8 * half
            base = "v104" if p < 4 else "v105"
            off = (p % 4) * 16384
            a(f"ds_write_b128 {base}, {vr(A,4)} offset:{off}")
            a(f"ds_write_b128 {base}, {vr(A+4,4)} offset:{off+1024}")
        issued = 14
        done = 0
        for tt in range(2):
            for i in range(14):
                n = tt * 14 + i
                a(f"s_waitcnt vmcnt({issued - n - 1})")
                for f in range(2):
                    hm = (W2H0 if f == 0 else W2H1)[i]
                    srcC = "0" if i == 0 else vr(ACCS[tt][f], 16)
                    a(f"v_mfma_f32_32x32x16_bf16 {vr(ACCS[tt][f],16)}, {vr(hm,4)}, {vr(BQ[i],4)}, {srcC}")
                if tt == 0:
                    bload(1, i); issued += 1
                if tt == 1 and i in (2, 4, 6, 8):
                    j = (i - 2) // 2
                    wr_piece(0, j >> 1, j & 1)
        self.stamp("ffn2")
        for f in range(2):
            for half in range(2): wr_piece(1, f, half)
        for i in range(4):
            a(f"v_lshlrev_b32 v{16+2*i}, 16, v{HB+i}")
            a(f"v_and_b32 v{17+2*i}, 0xffff0000, v{HB+i}")
            a(f"v_lshlrev_b32 v{24+2*i}, 16, v{B2R+i}")
            a(f"v_and_b32 v{25+2*i}, 0xffff0000, v{B2R+i}")
        for i in range(8):
            a(f"v_add_f32 v{16+i}, v{16+i}, v{24+i}")
        a("v_and_b32 v3, 31, v1")
        a("v_lshlrev_b32 v3, 10, v3")
        a("v_lshrrev_b32 v12, 5, v1")
        a("v_lshl_or_b32 v3, v12, 4, v3")
        a(f"s_lshl_b32 {sB}, {sW}, 14")
        a(f"v_add_u32 v106, {sB}, v2")
        a(f"s_lshl_b32 {sA}, {sTT}, 5")
        a(f"s_add_u32 {sA}, {sA}, {sT0}")
        a(f"s_lshl_b32 {sA}, {sA}, 10")
        a(f"s_add_u32 {sA}, {sA}, s89")
        a("s_waitcnt lgkmcnt(0)")
        a("s_barrier")
        RD = 152
        a.lg = []
        for q in range(8):
            a.ds(f"ds_read_b128 {vr(RD+8*q,4)}, v106 offset:{q*2048}", f"q{q}")
            a.ds(f"ds_read_b128 {vr(RD+8*q+4,4)}, v106 offset:{q*2048+1024}", f"q{q}")
        for q in range(8):
            a.wait_lg(f"q{q}")
            for i in range(8):
                a(f"v_add_f32 v{16+i}, v{16+i}, v{RD+8*q+i}")
        for i in range(4):
            a(f"v_cvt_pk_bf16_f32 v{88+i}, v{16+2*i}, v{17+2*i}")
        a("v_permlane32_swap_b32 v88, v90")
        a("v_permlane32_swap_b32 v89, v91")
        om = {0: "", 1: " sc1", 2: " nt", 3: " sc0 sc1"}[self.opt.get("outmod", 0)]
        a(f"buffer_store_dwordx4 v[88:91], v3, {srd(SRD_OUT)}, {sA} offen{om}")
        self.stamp("end")

    def kv_flag(self):
        a = self.a
        a(f"s_add_u32 {sD}, {sTag}, 1")
        a(f"s_lshl_b32 {sA}, {sG}, 4")
        a(f"s_add_u32 {sA}, {sA}, {WS_FLKV}")
        a(f"v_mov_b32 v8, {sD}")
        a("v_mov_b32 v9, s3")
        a("v_mov_b32 v10, 0")
        a("s_mov_b64 exec, 1")
        a(f"s_cmp_eq_u32 {sW}, 1")
        a("s_cbranch_scc1 L_flagv")
        a(f"buffer_store_dwordx2 v[8:9], v10, {srd(SRD_WS)}, {sA} offen sc1")
        a("s_branch L_flagd")
        a.label("L_flagv")
        a(f"buffer_store_dword v8, v10, {srd(SRD_WS)}, {sA} offen offset:8 sc1")
        a.label("L_flagd")
        a("s_mov_b64 exec, -1")

    def wave_reduce(self, regs, op, tmps):
        a = self.a
        for n in (8, 4, 2, 1):
            for r in regs:
                a(f"v_{op}_f32_dpp {r}, {r}, {r} row_ror:{n} row_mask:0xf bank_mask:0xf")
        for sw in ("16", "32"):
            for r, t in zip(regs, tmps):
                a(f"v_mov_b32 {t}, {r}")
            for r, t in zip(regs, tmps):
                a(f"v_permlane{sw}_swap_b32 {r}, {t}")
            for r, t in zip(regs, tmps):
                a(f"v_{op}_f32 {r}, {r}, {t}")

    def finish(self):
        a = self.a
        a.label("L_end")
        a("s_endpgm")

    def dump_regs(self, base, regs, off):
        a = self.a
        n = len(regs)
        a(f"s_lshl_b32 {sA}, {sID}, 3")
        a(f"s_add_u32 {sA}, {sA}, {sW}")
        a(f"s_mul_i32 {sA}, {sA}, {n*256}")
        a(f"s_add_u32 {sA}, {sA}, {off}")
        a("v_lshlrev_b32 v3, 2, v1")
        for i, r in enumerate(regs):
            a(f"buffer_store_dword v{r}, v3, {srd(SRD_WS)}, {sA} offen offset:{i*256}")
        a("s_waitcnt vmcnt(0)")

    def build(self):
        self.prologue()
        self.p1()
        if self.stop == "p1":
            self.dump_regs(0, list(range(32, 48)), WS_DBG)
            self.a("s_waitcnt vmcnt(0)")
            self.finish(); return self.text()
        self.p2()
        if self.stop in ("q", "attn"):
            self.a("s_waitcnt vmcnt(0)")
            self.dump_stamps()
            self.finish(); return self.text()
        for nm, fn in (("h", self.p3), ("hid", self.p4), ("out", self.p5)):
            fn()
            if self.stop == nm: break
        if self.opt.get("dirtyend"):
            a = self.a
            n = self.opt["dirtyend"]
            a(f"s_lshl_b32 {sA}, {sID}, 3")
            a(f"s_add_u32 {sA}, {sA}, {sW}")
            a(f"s_mul_i32 {sA}, {sA}, {n*1024}")
            a(f"s_add_u32 {sA}, {sA}, {WS_DBG}")
            for i in range(n):
                a(f"buffer_store_dwordx4 v[4:7], v2, {srd(SRD_WS)}, {sA} offen")
                a(f"s_add_u32 {sA}, {sA}, 1024")
        self.a("s_waitcnt vmcnt(0)")
        self.dump_stamps()
        self.finish()
        return self.text()

    def text(self):
        lines, n = hazard_pass_all(self.a.lines)
        head = f"""; @launch grid=(256,1,1) block=(512,1,1) lds=163840
.amdgcn_target "amdgcn-amd-amdhsa--gfx950"
.text
.globl {KNAME}
.p2align 8
.type {KNAME},@function
{KNAME}:
"""
        tail = f""".section .rodata,"a"
.p2align 6
.amdhsa_kernel {KNAME}
  .amdhsa_next_free_vgpr 256
  .amdhsa_next_free_sgpr 102
  .amdhsa_accum_offset 256
  .amdhsa_group_segment_fixed_size 0
  .amdhsa_kernarg_size 104
  .amdhsa_user_sgpr_count 2
  .amdhsa_user_sgpr_kernarg_segment_ptr 1
  .amdhsa_system_sgpr_workgroup_id_x 1
.end_amdhsa_kernel
"""
        return head + "\n".join(lines) + "\n" + tail

if __name__ == "__main__":
    import argparse
    ap = argparse.ArgumentParser()
    ap.add_argument("--stop", default=None)
    ap.add_argument("-o", default="k.s")
    ap.add_argument("--prof", action="store_true")
    ap.add_argument("--opt", nargs="*", default=[])
    ap.add_argument("--skip", nargs="*", default=["args", "b1", "f1a", "f1b", "f1c"])
    args = ap.parse_args()
    opt = dict((kv.split("=")[0], int(kv.split("=")[1])) for kv in args.opt)
    g = Gen(stop=args.stop, prof=args.prof, opt=opt, skip=args.skip)
    open(args.o, "w").write(g.build())
    print("wrote", args.o, "stamps:", getattr(g, "stamp_names", None))
```

```python
import sys
sys.path.insert(0, "work")
from asmlib import Asm, hazard_pass_all

NAME = "sequential_preLN__grouped_kv_mqa__dense_activation_squared_relu__prompt"
KNAME = NAME + "_kernel"

WS_EPOCH = 0x0
WS_FLKV  = 0x1000
WS_FLWT  = 0x3000
WS_FLO   = 0x4000
WS_FLH   = 0x6000
WS_FLHID = 0x8000
WS_FLWT2 = 0xA000
WS_KV    = 0x10000
WS_ST    = 0x60000
WS_FLKV2 = 0xE0000
WS_STLL  = 0xE8000
LDS_KF   = 96 * 1024 - 16
LDS_ST   = 158 * 1024
LDS_FG   = 92 * 1024
WS_KVL   = 0x1400000
WS_FLL   = 0x1440000
WS_STL   = 0x1448000
WS_O     = 0x100000
WS_H     = 0x300000
WS_HID   = 0x500000
WS_WOF   = 0xC00000
WS_W1F   = 0xC80000
WS_W2F   = 0xE40000
WS_DBG   = 0x1000000
WS_PROF  = 0x1800000
WS_SIZE  = 0x2000000

SRD_X, SRD_WQ, SRD_WK, SRD_WV = 8, 12, 16, 20
SRD_WO, SRD_W1, SRD_W2, SRD_B1 = 24, 28, 32, 36
SRD_B2, SRD_OUT, SRD_WS, SRD_T = 40, 44, 48, 52
def srd(b): return f"s[{b}:{b+3}]"
sW, sM, sC, sT0, sTag, sFast = "s56", "s57", "s58", "s59", "s60", "s61"
sFT, sTT, sKH, sXCC = "s62", "s63", "s90", "s91"
sID = "s2"
sA, sB, sD, sE_, sF, sG = "s92", "s93", "s94", "s95", "s96", "s97"
sCnt, sPh = "s98", "s99"
sW1B = "s65"
sWOB = "s66"
sPF = "s69"
NW1PRE = 26
W1H = [152 + 4 * k for k in range(26)] + [40, 44, 48, 52, 96, 100]
WOH = [8, 12, 16, 20, 60] + [108 + 4 * k for k in range(11)]
import os
NW2E = int(os.environ.get("NW2E", 7))
W2H0 = [8, 12, 16, 20, 24, 28, 32, 36, 56, 60, 132, 136, 140, 144]
W2H1 = W1H[:14]
sX64 = "s[4:5]"; sY64 = "s[6:7]"

LOG2E = 1.4426950408889634
def f32bits(x):
    import struct
    return struct.unpack("<I", struct.pack("<f", x))[0]
def vr(b, n): return f"v[{b}:{b+n-1}]"

class Gen:
    def __init__(self, stop=None, prof=False, opt=None, skip=()):
        self.skip = set(skip)
        self.cs4_pend = None
        self.a = Asm()
        self.stop = stop
        self.prof = prof
        self.opt = opt or {}
        self.nstamp = 0

    def stamp(self, name):
        if not self.prof: return
        if name in self.skip:
            self.skipped_last = True
            return
        self.skipped_last = False
        i = self.nstamp; self.nstamp += 1
        assert i < 14
        self.stamp_names = getattr(self, "stamp_names", []) + [name]
        a = self.a
        a(f"s_memtime s[4:5]")
        a("s_waitcnt lgkmcnt(0)")
        a("s_sub_u32 s4, s4, s100")
        a(f"v_writelane_b32 v0, s4, {i}")

    def dump_stamps(self):
        if not self.prof: return
        a = self.a
        a("s_memrealtime s[4:5]")
        a("s_waitcnt lgkmcnt(0)")
        a("s_sub_u32 s4, s4, s101")
        a("v_writelane_b32 v0, s4, 15")
        a("v_writelane_b32 v0, s101, 14")
        a(f"s_lshl_b32 {sA}, {sID}, 3")
        a(f"s_add_u32 {sA}, {sA}, {sW}")
        a(f"s_lshl_b32 {sA}, {sA}, 6")
        a(f"s_add_u32 {sA}, {sA}, {WS_PROF}")
        a("v_lshlrev_b32 v3, 2, v1")
        a("s_mov_b64 exec, 0xffff")
        a(f"buffer_store_dword v0, v3, {srd(SRD_WS)}, {sA} offen")
        a(f"s_lshl_b32 {sA}, {sID}, 3")
        a(f"s_add_u32 {sA}, {sA}, {sW}")
        a(f"s_cmp_lg_u32 {sA}, {self.opt.get('profw', 0)}")
        a("s_cbranch_scc1 L_nodbgst")
        a("s_load_dwordx2 s[52:53], s[0:1], 88")
        a("s_waitcnt lgkmcnt(0)")
        a("s_mov_b32 s54, 256")
        a("s_mov_b32 s55, 0x20000")
        a("buffer_store_dword v0, v3, s[52:55], 0 offen")
        a.label("L_nodbgst")
        a("s_mov_b64 exec, -1")
        a("s_waitcnt vmcnt(0)")

    def prologue(self):
        a = self.a
        a(f"s_cmp_ge_u32 {sID}, 256")
        a("s_cbranch_scc1 L_end")
        if self.prof:
            a("s_memtime s[100:101]")
            a("s_memrealtime s[6:7]")
        a("s_load_dwordx16 s[64:79], s[0:1], 0")
        a("s_load_dwordx8 s[80:87], s[0:1], 64")
        a("s_load_dwordx2 s[88:89], s[0:1], 96")
        a(f"s_and_b32 {sA}, {sID}, 7")
        a(f"s_lshr_b32 {sB}, {sID}, 6")
        a(f"s_lshl_b32 {sB}, {sB}, 3")
        a(f"s_add_u32 {sC}, {sA}, {sB}")
        a(f"s_lshr_b32 {sM}, {sID}, 3")
        a(f"s_and_b32 {sM}, {sM}, 7")
        a(f"s_lshl_b32 {sT0}, {sC}, 6")
        a(f"s_getreg_b32 {sXCC}, hwreg(HW_REG_XCC_ID)")
        a(f"s_and_b32 {sXCC}, {sXCC}, 7")
        a("v_lshrrev_b32 v3, 6, v0")
        a("v_and_b32 v1, 63, v0")
        a(f"v_readfirstlane_b32 {sW}, v3")
        a("v_lshlrev_b32 v2, 4, v1")
        a(f"s_lshr_b32 {sKH}, {sW}, 2")
        a(f"s_lshr_b32 {sFT}, {sW}, 1")
        a(f"s_and_b32 {sFT}, {sFT}, 1")
        a(f"s_and_b32 {sTT}, {sW}, 1")
        a("s_waitcnt lgkmcnt(0)")
        if self.prof:
            a("v_mov_b32 v0, 0")
            a("s_mov_b32 s101, s6")
        self.stamp("args")
        def mk(b, lo, size):
            a(f"s_mov_b32 s{b}, s{lo}")
            a(f"s_mov_b32 s{b+1}, s{lo+1}")
            a(f"s_mov_b32 s{b+2}, 0x{size:x}")
            a(f"s_mov_b32 s{b+3}, 0x20000")
        mk(SRD_X, 64, 0x200000)
        mk(SRD_WS, 88, WS_SIZE)
        a(f"s_load_dword {sTag}, s[88:89], {WS_EPOCH}")
        mk(SRD_WK, 68, 0x4000)
        mk(SRD_WV, 70, 0x4000)
        mk(SRD_WQ, 66, 0x80000)
        self.mk = mk

    def rest_srds(self):
        mk = self.mk
        mk(SRD_WO, 72, 0x80000)
        mk(SRD_W1, 76, 0x1C0000)
        mk(SRD_B1, 78, 3584)
        mk(SRD_W2, 80, 0x1C0000)
        mk(SRD_B2, 82, 1024)
        mk(SRD_OUT, 84, 0x200000)

    def dma(self, voff, srdb, soff, m0, tag, extra=""):
        a = self.a
        a(f"s_mov_b32 m0, {m0}")
        a.vmem(f"buffer_load_dwordx4 {voff}, {srd(srdb)}, {soff} offen {extra} lds", tag)

    def p1(self):
        a = self.a
        X = self.opt
        ROW = 4
        vXa, vKVo, vWAo, vXt = "v16", "v18", "v19", "v17"
        LDS_WK = 64 * 1024
        LDS_WV = 80 * 1024
        LDS_WA = 96 * 1024
        sG1 = "s67"
        a(f"s_lshl_b32 {sA}, {sM}, 3")
        a(f"s_add_u32 {sA}, {sA}, {sT0}")
        a(f"s_add_u32 {sB}, {sA}, {sW}")
        a(f"s_lshl_b32 {sB}, {sB}, 10")
        if X.get("tk"):
            a(f"s_lshr_b32 {sD}, {sID}, 3")
            a(f"s_lshl_b32 {sD}, {sD}, 9")
            a("v_lshlrev_b32 v62, 7, v1")
            a("s_mov_b64 exec, 0xf")
            a(f"s_cmp_eq_u32 {sW}, 0")
            a("s_cbranch_scc0 L_tk1")
            a(f"buffer_load_dword v61, v62, {srd(SRD_WK)}, {sD} offen")
            a.label("L_tk1")
            a(f"s_cmp_eq_u32 {sW}, 1")
            a("s_cbranch_scc0 L_tk2")
            a(f"buffer_load_dword v61, v62, {srd(SRD_WV)}, {sD} offen")
            a.label("L_tk2")
            a("s_mov_b64 exec, -1")
        a(f"buffer_load_dwordx4 {vr(ROW,4)}, v2, {srd(SRD_X)}, {sB} offen")
        a("v_lshrrev_b32 v8, 3, v1")
        a("v_and_b32 v9, 7, v1")
        a("v_lshrrev_b32 v10, 1, v8")
        a("v_xor_b32 v10, v10, v9")
        a(f"s_and_b32 {sB}, {sM}, 1")
        a(f"s_lshl_b32 {sB}, {sB}, 2")
        a(f"v_xor_b32 v10, {sB}, v10")
        a("v_lshlrev_b32 v10, 4, v10")
        a(f"v_lshl_add_u32 {vXa}, v8, 10, v10")
        def xa_dma(gs, cs, voff):
            a(f"s_lshl_b32 {sD}, {gs}, 13")
            a(f"s_lshl_b32 {sE_}, {cs}, 7")
            a(f"s_add_u32 {sD}, {sD}, {sE_}")
            a(f"s_add_u32 {sD}, {sD}, s68")
            a(f"s_lshl_b32 {sE_}, {cs}, 13")
            a(f"s_lshl_b32 {sF}, {gs}, 10")
            a(f"s_add_u32 m0, {sE_}, {sF}")
            a(f"buffer_load_dwordx4 {voff}, {srd(SRD_X)}, {sD} offen lds")
        self.xa_dma = xa_dma
        a(f"s_lshl_b32 s68, {sT0}, 10")
        xa_dma(sM, sW, vXa)
        a("v_lshrrev_b32 v8, 1, v1")
        a("v_and_b32 v9, 0x13, v8")
        a("v_bfe_u32 v10, v8, 2, 1")
        a("v_lshl_or_b32 v9, v10, 3, v9")
        a("v_bfe_u32 v10, v8, 3, 1")
        a("v_lshl_or_b32 v9, v10, 2, v9")
        a("v_lshlrev_b32 v9, 5, v9")
        a("v_and_b32 v10, 1, v1")
        a(f"v_lshl_or_b32 {vKVo}, v10, 4, v9")
        a(f"s_lshl_b32 {sD}, {sW}, 11")
        for k in range(2):
            a(f"s_add_u32 m0, {sD}, {LDS_WK}")
            a(f"buffer_load_dwordx4 {vKVo}, {srd(SRD_WK)}, {sD} offen lds")
            a(f"s_add_u32 m0, {sD}, {LDS_WV}")
            a(f"buffer_load_dwordx4 {vKVo}, {srd(SRD_WV)}, {sD} offen lds")
            if k == 0: a(f"s_add_u32 {sD}, {sD}, 1024")
        TQ = X.get("tq", 0)
        def touch_q():
            a(f"s_lshr_b32 {sA}, {sID}, 6")
            a(f"s_lshl_b32 {sA}, {sA}, 3")
            a(f"s_add_u32 {sA}, {sA}, {sW}")
            a(f"s_lshl_b32 {sA}, {sA}, 14")
            a(f"s_lshl_b32 {sB}, {sM}, 7")
            a(f"s_add_u32 {sA}, {sA}, {sB}")
            a("v_lshlrev_b32 v62, 10, v1")
            a("s_mov_b64 exec, 0xffff")
            a(f"buffer_load_dword v63, v62, {srd(SRD_WQ)}, {sA} offen")
            a("s_mov_b64 exec, -1")
        if TQ == 1: touch_q()
        NF3 = X.get("nf", 1) == 3
        NTL = 1 if (NF3 and X.get("tl", 2) == 1) else 0
        if NF3 and X.get("tl", 2):
            a(f"s_lshl_b32 {sA}, {sC}, 3")
            a(f"s_add_u32 {sA}, {sA}, {sM}")
            a(f"s_lshl_b32 {sB}, {sA}, 10")
            a(f"s_lshl_b32 {sD}, {sW}, 7")
            a(f"s_add_u32 {sB}, {sB}, {sD}")
            a(f"s_add_u32 {sB}, {sB}, {WS_KVL}")
            a(f"s_lshl_b32 {sD}, {sA}, 7")
            a(f"s_add_u32 {sD}, {sD}, {WS_STL}")
            a(f"s_cmp_lt_u32 {sW}, 4")
            a(f"s_cselect_b32 {sB}, {sB}, {sD}")
            a(f"s_and_b32 {sD}, {sID}, 7")
            a(f"s_lshl_b32 {sD}, {sD}, 9")
            a(f"s_lshr_b32 {sE_}, {sID}, 6")
            a(f"s_lshl_b32 {sE_}, {sE_}, 3")
            a(f"s_add_u32 {sE_}, {sE_}, {sM}")
            a(f"s_lshl_b32 {sE_}, {sE_}, 4")
            a(f"s_add_u32 {sD}, {sD}, {sE_}")
            a(f"s_add_u32 {sD}, {sD}, {WS_FLL}")
            a(f"s_cmp_eq_u32 {sW}, 4")
            a(f"s_cselect_b32 {sB}, {sD}, {sB}")
            if NTL:
                a("v_mov_b32 v62, 0")
                a("s_mov_b64 exec, 1")
                a(f"buffer_load_dword v61, v62, {srd(SRD_WS)}, {sB} offen sc1")
                a("s_mov_b64 exec, -1")
            else:
                a(f"s_load_dword s75, s[88:89], {sB}")
        if X.get("kvt"):
            a(f"s_lshl_b32 {sA}, {sC}, 3")
            a(f"s_add_u32 {sA}, {sA}, {sM}")
            a(f"s_cmp_eq_u32 {sW}, 2")
            a("s_cbranch_scc0 L_kvt1")
            a(f"s_lshl_b32 {sB}, {sA}, 10")
            a(f"s_add_u32 {sB}, {sB}, {WS_KV}")
            a(f"buffer_load_dwordx4 v[24:27], v2, {srd(SRD_WS)}, {sB} offen sc1")
            a.label("L_kvt1")
            a(f"s_cmp_eq_u32 {sW}, 3")
            a("s_cbranch_scc0 L_kvt2")
            a(f"s_lshl_b32 {sB}, {sA}, 4")
            a(f"s_add_u32 {sB}, {sB}, {WS_FLKV}")
            a("v_mov_b32 v24, 0")
            a(f"buffer_load_dword v25, v24, {srd(SRD_WS)}, {sB} offen sc1")
            a.label("L_kvt2")
        a("v_lshrrev_b32 v8, 3, v1")
        a("v_and_b32 v9, 7, v1")
        a("v_bfe_u32 v10, v1, 4, 1")
        a("v_lshlrev_b32 v10, 2, v10")
        a("v_xor_b32 v9, v9, v10")
        a("v_lshlrev_b32 v9, 4, v9")
        a(f"v_lshl_add_u32 {vWAo}, v8, 10, v9")
        a(f"s_add_u32 {sG1}, {sM}, 1")
        a(f"s_and_b32 {sG1}, {sG1}, 7")
        NBULK = 20
        def bulk():
            a(f"s_sub_u32 {sA}, {sW}, 2")
            a(f"s_add_u32 {sB}, {sA}, 2")
            for i in range(9):
                a(f"s_lshr_b32 s4, {sB}, 3")
                a(f"s_add_u32 s4, s4, 1")
                a(f"s_and_b32 s5, s4, 1")
                a(f"s_lshl_b32 s5, s5, 6")
                a(f"v_xor_b32 {vXt}, s5, {vXa}")
                a(f"s_add_u32 s4, s4, {sM}")
                a(f"s_and_b32 s4, s4, 7")
                a(f"s_and_b32 s5, {sB}, 7")
                xa_dma("s4", "s5", vXt)
                if i < 8: a(f"s_add_u32 {sB}, {sB}, 6")
            if X.get("cs4"):
                a(f"s_cmp_eq_u32 {sKH}, 0")
                a("s_cbranch_scc1 L_blk_done")
                a(f"s_and_b32 {sA}, {sW}, 3")
                a(f"s_lshl_b32 {sD}, {sA}, 13")
                a(f"s_lshl_b32 {sE_}, {sM}, 7")
                a(f"s_add_u32 {sD}, {sD}, {sE_}")
                a(f"s_lshl_b32 {sE_}, {sA}, 10")
                a(f"s_add_u32 {sE_}, {sE_}, {LDS_WA}")
                a(f"v_add_u32 v217, {sE_}, v2")
                D = X.get("csd", 8)
                a.lg = []
                for i in range(16):
                    a(f"s_mov_b32 m0, {sE_}")
                    a(f"buffer_load_dwordx4 {vWAo}, {srd(SRD_WQ)}, {sD} offen lds")
                    if i < 15:
                        a(f"s_add_u32 {sD}, {sD}, {4*8192}")
                        a(f"s_add_u32 {sE_}, {sE_}, {4*1024}")
                    if i >= D: self.cs4_one(i - D, D)
                self.cs4_flush()
                a.label("L_blk_done")
                return
            a(f"s_lshl_b32 {sD}, {sA}, 13")
            a(f"s_lshl_b32 {sE_}, {sM}, 7")
            a(f"s_add_u32 {sD}, {sD}, {sE_}")
            a(f"s_lshl_b32 {sE_}, {sA}, 10")
            a(f"s_add_u32 {sE_}, {sE_}, {LDS_WA}")
            for i in range(11):
                if i == 10:
                    a(f"s_cmp_ge_u32 {sA}, 4")
                    a("s_cbranch_scc1 L_blk_done")
                a(f"s_mov_b32 m0, {sE_}")
                a(f"buffer_load_dwordx4 {vWAo}, {srd(SRD_WQ)}, {sD} offen lds")
                if i < 10:
                    a(f"s_add_u32 {sD}, {sD}, {6*8192}")
                    a(f"s_add_u32 {sE_}, {sE_}, {6*1024}")
            a.label("L_blk_done")
        early = X.get("bulk", 0) == 1
        if early:
            a("s_barrier")
            a(f"s_cmp_lt_u32 {sW}, 2")
            a("s_cbranch_scc1 L_nobulk0")
            bulk()
            a.label("L_nobulk0")
        self.rest_srds()
        XF, WF = (128, 192) if NF3 else (64, 128)
        if NF3: self.early_setup()
        a(f"s_cmp_ge_u32 {sW}, 2")
        a("s_cbranch_scc1 L_no_ones")
        for i in range(64):
            a(f"v_mov_b32 v{XF+i}, 0x3f803f80" if i == 0 else f"v_mov_b32 v{XF+i}, v{XF}")
        a.label("L_no_ones")
        if early:
            a(f"s_cmp_lt_u32 {sW}, 2")
            a("s_cbranch_scc1 L_rw0")
            a("s_waitcnt vmcnt(24)")
            a("s_branch L_rw1")
            a.label("L_rw0")
            a("s_waitcnt vmcnt(5)")
            a.label("L_rw1")
        else:
            a(f"s_waitcnt vmcnt({5 + (1 if TQ == 1 else 0) + NTL})")
            self.stamp("row")
            if TQ == 2: touch_q()
        a("s_mov_b32 s3, 0x3f803f80")
        a(f"v_dot2_f32_bf16 v8, v{ROW}, s3, 0")
        a(f"v_dot2_f32_bf16 v9, v{ROW}, v{ROW}, 0")
        for i in range(1, 4):
            a(f"v_dot2_f32_bf16 v8, v{ROW+i}, s3, v8")
            a(f"v_dot2_f32_bf16 v9, v{ROW+i}, v{ROW+i}, v9")
        self.wave_reduce(["v8", "v9"], "add", ["v10", "v11"])
        a(f"v_mul_f32 v8, 0x{f32bits(1/512):x}, v8")
        a(f"v_mul_f32 v9, 0x{f32bits(1/512):x}, v9")
        a("v_fma_f32 v9, -v8, v8, v9")
        a("v_max_f32 v9, 0, v9")
        a(f"v_add_f32 v9, 0x{f32bits(1e-5):x}, v9")
        a("v_rsq_f32 v9, v9")
        a(f"s_lshl_b32 {sA}, {sW}, 3")
        a(f"s_lshl_b32 {sB}, {sG1}, 10")
        a(f"s_add_u32 {sA}, {sA}, {sB}")
        a(f"v_lshlrev_b32 v10, 13, v1")
        a(f"v_add_u32 v10, {sA}, v10")
        a("s_mov_b64 exec, 3")
        a("ds_write_b64 v10, v[8:9]")
        a("s_mov_b64 exec, -1")
        if early:
            a(f"s_cmp_lt_u32 {sW}, 2")
            a("s_cbranch_scc1 L_b1a")
            a("s_waitcnt vmcnt(19) lgkmcnt(0)")
            a("s_branch L_b1b")
            a.label("L_b1a")
            a("s_waitcnt vmcnt(0) lgkmcnt(0)")
            a.label("L_b1b")
        else:
            a(f"s_waitcnt vmcnt({(1 if TQ == 2 else 0) + (0 if X.get('tlw', 1) else NTL)}) lgkmcnt(0)")
        a("s_barrier")
        self.stamp("b1")
        a(f"s_cmp_lt_u32 {sW}, 2")
        a("s_cbranch_scc1 L_kv_go")
        if not early: bulk()
        a("s_branch L_kv_done")
        a.label("L_kv_go")
        a("v_and_b32 v8, 7, v1")
        a(f"s_lshl_b32 {sA}, {sM}, 3")
        a(f"v_add_u32 v8, {sA}, v8")
        a("v_bfe_u32 v9, v8, 1, 3")
        a("v_lshrrev_b32 v10, 4, v1")
        a("v_xor_b32 v9, v9, v10")
        a("v_lshlrev_b32 v9, 4, v9")
        a("v_lshl_add_u32 v20, v8, 7, v9")
        a("v_xor_b32 v21, 64, v20")
        a("v_bfe_u32 v8, v1, 4, 1")
        a("v_bfe_u32 v9, v1, 2, 2")
        a("v_lshl_add_u32 v8, v8, 2, v9")
        a("v_lshlrev_b32 v8, 5, v8")
        a("v_lshrrev_b32 v9, 5, v1")
        a("v_lshl_add_u32 v8, v9, 9, v8")
        a("v_and_b32 v9, 3, v1")
        a("v_lshl_add_u32 v8, v9, 3, v8")
        a(f"s_lshl_b32 {sA}, {sW}, 14")
        a(f"s_add_u32 {sA}, {sA}, {LDS_WK}")
        a(f"v_add_u32 v22, {sA}, v8")
        a("s_mov_b32 exec_lo, 0x00ff00ff")
        a("s_mov_b32 exec_hi, 0x00ff00ff")
        for s in range(16):
            a.ds(f"ds_read_b128 {vr(XF+4*s,4)}, {'v20' if s%2==0 else 'v21'} offset:{(s>>1)*8192}", f"x{s}")
        a("s_mov_b64 exec, -1")
        D = 24
        a(f"s_cmp_eq_u32 {sW}, 1")
        a("s_cbranch_scc1 L_vwave")
        saved_lg = list(a.lg)
        for wave in ("K", "V"):
            a.lg = list(saved_lg)
            if wave == "V": a.label("L_vwave")
            def wread(s):
                a.ds(f"ds_read_b64_tr_b16 {vr(WF+4*s,2)}, v22 offset:{s*1024}", f"w{s}")
                a.ds(f"ds_read_b64_tr_b16 {vr(WF+4*s+2,2)}, v22 offset:{s*1024+256}", f"w{s}")
            for s in range(4): wread(s)
            for s in range(16):
                a.wait_lg(f"w{s}")
                srcC = "0" if s == 0 else vr(D, 4)
                if wave == "K":
                    a(f"v_mfma_f32_16x16x32_bf16 {vr(D,4)}, {vr(WF+4*s,4)}, {vr(XF+4*s,4)}, {srcC}")
                else:
                    a(f"v_mfma_f32_16x16x32_bf16 {vr(D,4)}, {vr(XF+4*s,4)}, {vr(WF+4*s,4)}, {srcC}")
                if s + 4 < 16: wread(s + 4)
            a(f"s_lshl_b32 {sA}, {sC}, 3")
            a(f"s_add_u32 {sA}, {sA}, {sM}")
            a(f"s_lshl_b32 {sB}, {sA}, 10")
            a(f"s_add_u32 {sB}, {sB}, {WS_KV}")
            if wave == "K":
                a("v_and_b32 v8, 7, v1")
                a("v_lshlrev_b32 v8, 3, v8")
                a(f"s_lshl_b32 s4, {sG1}, 10")
                a(f"v_add_u32 v8, s4, v8")
                a.ds("ds_read_b64 v[10:11], v8", "st")
                for r in range(4):
                    a(f"v_mov_b32_dpp v{28+r}, v{D+r} row_ror:8 row_mask:0xf bank_mask:0xf")
                a.wait_lg("st")
                for r in range(4):
                    a(f"v_fma_f32 v{D+r}, -v10, v{28+r}, v{D+r}")
                for r in range(4):
                    a(f"v_mul_f32 v{D+r}, v11, v{D+r}")
                a(f"v_cvt_pk_bf16_f32 v32, v{D}, v{D+1}")
                a(f"v_cvt_pk_bf16_f32 v33, v{D+2}, v{D+3}")
                a("v_mov_b32 v34, v32")
                a("v_mov_b32 v35, v33")
                a("v_permlane32_swap_b32 v32, v34")
                a("v_permlane32_swap_b32 v33, v35")
                a("v_bfe_u32 v8, v1, 4, 1")
                a("v_and_b32 v9, 7, v1")
                a("v_lshlrev_b32 v9, 4, v9")
                a("v_lshl_add_u32 v8, v8, 7, v9")
                a("s_mov_b32 exec_lo, 0x00ff00ff")
                a("s_mov_b32 exec_hi, 0")
                if NF3:
                    a(f"s_add_u32 s76, {sB}, {WS_KVL - WS_KV}")
                    a(f"buffer_store_dwordx4 v[32:35], v8, {srd(SRD_WS)}, s76 offen" + (" sc1" if X.get("lsc1") else ""))
                a(f"buffer_store_dwordx4 v[32:35], v8, {srd(SRD_WS)}, {sB} offen sc1")
                a("s_mov_b64 exec, -1")
                a("v_dot2_f32_bf16 v12, v32, v32, 0")
                for i in (33, 34, 35):
                    a(f"v_dot2_f32_bf16 v12, v{i}, v{i}, v12")
                a("v_mov_b32 v13, v12")
                a("v_permlane16_swap_b32 v12, v13")
                a("v_add_f32 v12, v12, v13")
                a("v_and_b32 v13, 8, v1")
                a("v_cmp_eq_u32 vcc, 0, v13")
                a("v_cndmask_b32 v12, 0, v12, vcc")
                for n in (8, 4, 2, 1):
                    a(f"v_max_f32_dpp v12, v12, v12 row_ror:{n} row_mask:0xf bank_mask:0xf")
                a(f"v_readlane_b32 {sD}, v12, 0")
                a(f"s_add_u32 {sD}, {sD}, 8")
                a(f"s_and_b32 {sD}, {sD}, 0xfffffff8")
                a(f"s_or_b32 {sD}, {sD}, {sXCC}")
                a(f"s_mov_b32 s3, {sD}")
                a(f"s_mov_b32 {sG}, {sA}")
                a("s_branch L_kv_fin")
            else:
                a("v_bfe_u32 v8, v1, 4, 1")
                a("v_lshlrev_b32 v8, 5, v8")
                a(f"s_lshl_b32 s4, {sG1}, 10")
                a(f"s_add_u32 s4, s4, 8192")
                a(f"v_add_u32 v8, s4, v8")
                a.ds("ds_read_b128 v[12:15], v8", "st")
                a.ds("ds_read_b128 v[36:39], v8 offset:16", "st")
                a("v_and_b32 v9, 7, v1")
                a("v_lshlrev_b32 v9, 3, v9")
                a(f"v_add_u32 v40, s4, v9")
                a.ds("ds_read_b64 v[42:43], v40", "st")
                a(f"v_mov_b32 v28, v{D}")
                a(f"v_mov_b32 v29, v{D}")
                a("v_permlane32_swap_b32 v28, v29")
                a.wait_lg("st")
                st = [(12, 13), (14, 15), (36, 37), (38, 39)]
                for r in range(4):
                    a(f"v_fma_f32 v{D+r}, -v{st[r][0]}, v29, v{D+r}")
                for r in range(4):
                    a(f"v_mul_f32 v{D+r}, v{st[r][1]}, v{D+r}")
                a(f"v_cvt_pk_bf16_f32 v32, v{D}, v{D+1}")
                a(f"v_cvt_pk_bf16_f32 v33, v{D+2}, v{D+3}")
                a("v_mov_b32 v34, v32")
                a("v_mov_b32 v35, v33")
                a("v_permlane16_swap_b32 v32, v34")
                a("v_permlane16_swap_b32 v33, v35")
                a("v_add_u32 v8, 256, v2")
                if NF3:
                    a(f"s_add_u32 s4, {sTag}, 1")
                    a("v_mov_b32 v44, v42")
                    a("v_mov_b32 v45, s4")
                    a("v_mov_b32 v46, v43")
                    a("v_mov_b32 v47, s4")
                    a(f"s_lshl_b32 s4, {sA}, 7")
                    a(f"s_add_u32 s5, s4, {WS_STL}")
                    a(f"s_add_u32 s4, s4, {WS_STLL}")
                    a(f"s_add_u32 s76, {sB}, {WS_KVL - WS_KV}")
                    a("v_mov_b32 v41, 0")
                    a("v_lshlrev_b32 v40, 2, v1")
                    a(f"v_add_u32 v40, {LDS_FG}, v40")
                    a("s_mov_b64 exec, 0xffff")
                    a(f"buffer_store_dwordx4 v[32:35], v8, {srd(SRD_WS)}, s76 offen" + (" sc1" if X.get("lsc1") else ""))
                    a("s_mov_b64 exec, 0xff")
                    a(f"buffer_store_dwordx4 v[44:47], v2, {srd(SRD_WS)}, s5 offen")
                    a("s_mov_b64 exec, 0xffff")
                    a(f"buffer_store_dwordx4 v[32:35], v8, {srd(SRD_WS)}, {sB} offen sc1")
                    a("s_mov_b64 exec, 0xff")
                    a(f"buffer_store_dwordx4 v[44:47], v2, {srd(SRD_WS)}, s4 offen sc1")
                    a("s_mov_b32 exec_lo, -1")
                    a("ds_write_b32 v40, v41")
                else:
                    a("s_mov_b64 exec, 0xffff")
                    a(f"buffer_store_dwordx4 v[32:35], v8, {srd(SRD_WS)}, {sB} offen sc1")
                if NF3: pass
                elif X.get("nf", 1):
                    a(f"s_add_u32 s4, {sTag}, 1")
                    a("v_mov_b32 v44, v42")
                    a("v_mov_b32 v45, s4")
                    a("v_mov_b32 v46, v43")
                    a("v_mov_b32 v47, s4")
                    a(f"s_lshl_b32 s4, {sA}, 7")
                    a(f"s_add_u32 s4, s4, {WS_STLL}")
                    a("v_mov_b32 v41, 0")
                    a(f"v_mov_b32 v40, {LDS_KF}")
                    a("s_mov_b64 exec, 0xff")
                    a(f"buffer_store_dwordx4 v[44:47], v2, {srd(SRD_WS)}, s4 offen sc1")
                    a("s_mov_b64 exec, 1")
                    a("ds_write_b32 v40, v41")
                else:
                    a("s_mov_b64 exec, 0xff")
                    a("v_add_u32 v9, 512, v9")
                    a(f"buffer_store_dwordx2 v[42:43], v9, {srd(SRD_WS)}, {sB} offen sc1")
                a("s_mov_b64 exec, -1")
                a(f"s_mov_b32 {sG}, {sA}")
        a.lg = []
        a.label("L_kv_fin")
        self.stamp("kvst")
        a(f"v_xor_b32 {vXt}, 64, {vXa}")
        xa_dma(sG1, sW, vXt)
        self.q_addr(LDS_WA)
        if NF3:
            a(f"s_cmp_eq_u32 {sW}, 1")
            a("s_cbranch_scc1 L_lfv")
            a("s_waitcnt vmcnt(2) lgkmcnt(0)")
            a("s_branch L_lfw")
            a.label("L_lfv")
            a("s_waitcnt vmcnt(3) lgkmcnt(0)")
            a.label("L_lfw")
            a(f"s_and_b32 {sA}, {sID}, 7")
            a(f"s_lshl_b32 {sA}, {sA}, 9")
            a(f"s_lshr_b32 {sB}, {sID}, 6")
            a(f"s_lshl_b32 {sB}, {sB}, 3")
            a(f"s_add_u32 {sB}, {sB}, {sM}")
            a(f"s_lshl_b32 {sB}, {sB}, 4")
            a(f"s_add_u32 {sA}, {sA}, {sB}")
            a(f"s_add_u32 {sA}, {sA}, {WS_FLL}")
            a(f"s_add_u32 {sD}, {sTag}, 1")
            a(f"v_mov_b32 v8, {sD}")
            a(f"v_mov_b32 v9, {sXCC}")
            a("v_mov_b32 v10, 0")
            a("s_mov_b64 exec, 1")
            a(f"s_cmp_eq_u32 {sW}, 1")
            a("s_cbranch_scc1 L_lflagv")
            a(f"buffer_store_dwordx2 v[8:9], v10, {srd(SRD_WS)}, {sA} offen")
            a("s_branch L_lflagd")
            a.label("L_lflagv")
            a(f"buffer_store_dword v8, v10, {srd(SRD_WS)}, {sA} offen offset:8")
            a.label("L_lflagd")
            a("s_mov_b64 exec, -1")
            self.stamp("kvlf")
            a("s_waitcnt vmcnt(2)")
            self.kv_flag()
            self.stamp("kvfl")
            a("s_waitcnt vmcnt(2)")
        else:
            a("s_waitcnt vmcnt(1) lgkmcnt(0)")
            self.kv_flag()
            self.stamp("kvfl")
            a("s_waitcnt vmcnt(1)")
        a("s_branch L_b2")
        a.label("L_kv_done")
        if NF3:
            a(f"s_cmp_eq_u32 {sKH}, 0")
            a("s_cbranch_scc0 L_noqa")
        self.q_addr(LDS_WA)
        if NF3: a.label("L_noqa")
        if X.get("epoll", 0):
            a(f"s_cmp_eq_u32 {sKH}, 0")
            a("s_cbranch_scc1 L_noep")
            if X.get("epsl"): a(f"s_sleep {X['epsl']}")
            self.kv_pload()
            a.label("L_noep")
        if NF3:
            a(f"s_cmp_eq_u32 {sKH}, 0")
            a("s_cbranch_scc1 L_noep3")
            if X.get("lsl"): a(f"s_sleep {X['lsl']}")
            self.l_pload()
            if X.get("cs4"):
                D = X.get("csd", 8)
                a.lg = []
                for i in range(16 - D, X.get("cpre", 16)): self.cs4_one(i, 15 - i + 2)
                self.cs4_flush()
            a.label("L_noep3")
        elif X.get("nf", 1) == 2:
            a(f"s_cmp_eq_u32 {sW}, 7")
            a("s_cbranch_scc0 L_noep7")
            if X.get("ep7", 1):
                self.kv_pload(64)
                a("s_waitcnt vmcnt(5)")
                a("s_branch L_b2")
            a.label("L_noep7")
        elif X.get("nf", 1):
            a(f"s_add_u32 s3, {sTag}, 1")
            if X.get("ep7", 1):
                a(f"s_cmp_eq_u32 {sW}, 7")
                a("s_cbranch_scc0 L_noep7")
                if X.get("epsl"): a(f"s_sleep {X['epsl']}")
                self.kv_pload()
                a("s_waitcnt vmcnt(0)")
                self.kv_check("L_ep7ok")
                a("s_branch L_noep7")
                a.label("L_ep7ok")
                self.kv_setflag()
                a("s_waitcnt lgkmcnt(0)")
                a.label("L_noep7")
        a("s_waitcnt vmcnt(0)")
        a.label("L_b2")
        a("s_barrier")
        self.stamp("b2")
        a(f"s_add_u32 s3, {sTag}, 1")
        a.vm = []
        AF, BF, ACC, CS = 64, 128, 32, 48
        vA = "v20"
        vB = ["v22", "v23", "v24", "v25"]
        a(f"s_cmp_eq_u32 {sKH}, 0")
        a("s_cbranch_scc0 L_hwave")
        a.lg = []
        NB = 5
        def qread(p):
            c, q = p >> 2, p & 3
            sl = p % NB
            off = c * 8192 + q * 2048
            a.ds(f"ds_read_b64_tr_b16 {vr(AF+4*sl,2)}, {vA} offset:{off}", f"q{p}")
            a.ds(f"ds_read_b64_tr_b16 {vr(AF+4*sl+2,2)}, {vA} offset:{off+512}", f"q{p}")
            a.ds(f"ds_read_b128 {vr(BF+4*sl,4)}, {vB[q]} offset:{c*8192}", f"q{p}")
        PRE = 4
        for p in range(PRE): qread(p)
        for p in range(32):
            sl = p % NB
            a.wait_lg(f"q{p}")
            srcC = "0" if p == 0 else vr(ACC, 16)
            a(f"v_mfma_f32_32x32x16_bf16 {vr(ACC,16)}, {vr(AF+4*sl,4)}, {vr(BF+4*sl,4)}, {srcC}")
            nx = p + PRE
            if nx < 32: qread(nx)
        self.stamp("q1")
        a("s_branch L_b3a")
        a.label("L_hwave")
        self.h_front()
        a.label("L_b3a")
        if X.get("nf", 1) != 3:
            a("s_barrier")
        self.stamp("q2")

    def q_addr(self, LDS_WA):
        a = self.a
        a("v_bfe_u32 v8, v1, 2, 2")
        a("v_lshrrev_b32 v9, 5, v1")
        a("v_lshl_add_u32 v9, v9, 3, v8")
        a("v_lshlrev_b32 v9, 7, v9")
        a("v_bfe_u32 v10, v1, 4, 1")
        a("v_lshlrev_b32 v10, 5, v10")
        a("v_and_b32 v11, 3, v1")
        a("v_lshl_add_u32 v10, v11, 3, v10")
        a(f"s_lshl_b32 {sA}, {sFT}, 6")
        a(f"v_add_u32 v10, {sA}, v10")
        a("v_bfe_u32 v11, v1, 3, 1")
        a("v_lshlrev_b32 v11, 6, v11")
        a("v_xor_b32 v10, v10, v11")
        a("v_add_u32 v9, v9, v10")
        a(f"s_and_b32 {sA}, {sKH}, {sTT}")
        a(f"s_lshl_b32 {sA}, {sA}, 15")
        a(f"s_add_u32 {sA}, {sA}, {LDS_WA}")
        a(f"v_add_u32 v20, {sA}, v9")
        a("v_and_b32 v8, 31, v1")
        a("v_bfe_u32 v9, v1, 1, 3")
        a("v_lshrrev_b32 v10, 5, v1")
        a("v_xor_b32 v9, v9, v10")
        a("v_lshlrev_b32 v9, 4, v9")
        a("v_lshl_add_u32 v8, v8, 7, v9")
        a(f"s_lshl_b32 {sB}, {sTT}, 12")
        a(f"v_add_u32 v22, {sB}, v8")
        a("v_xor_b32 v23, 32, v22")
        a("v_xor_b32 v24, 64, v22")
        a("v_xor_b32 v25, 96, v22")
        if self.opt.get("nf", 1) == 3: return
        self.q_addr2()

    def q_addr2(self):
        a = self.a
        self.kv_addr()
        if self.opt.get("nf", 1) == 3:
            self.l_addr()
        if self.opt.get("nf", 1):
            if self.opt.get("norep"):
                a(f"s_mov_b32 s66, {WS_FLKV2}")
            else:
                a(f"s_and_b32 s66, {sID}, 7")
                a("s_lshl_b32 s66, s66, 12")
                a(f"s_add_u32 s66, s66, {WS_FLKV2}")
        else:
            a(f"s_mov_b32 s66, {WS_FLKV}")

    def kv_pload(self, base=64, stats=True):
        for q in range(4):
            self.a(f"buffer_load_dwordx4 {vr(base+4*q,4)}, v2, {srd(SRD_WS)}, s66 offen offset:{1024*q} sc1")
        if self.opt.get("nf", 1) and stats:
            self.a(f"buffer_load_dwordx4 {vr(base+16,4)}, v2, {srd(SRD_WS)}, {'s86' if self.opt.get('nf', 1) == 3 else 's65'} offen sc1")

    def kv_check(self, lab_ok, base=64, stats=True):
        a = self.a
        t0, t1 = "v84", "v85"
        a(f"v_xor_b32 {t0}, s3, v{base}")
        a(f"v_xor_b32 {t1}, s3, v{base+2}")
        a(f"v_or_b32 {t0}, {t0}, {t1}")
        for q in range(1, 4):
            a(f"v_xor_b32 {t1}, s3, v{base+4*q}")
            a(f"v_or_b32 {t0}, {t0}, {t1}")
            a(f"v_xor_b32 {t1}, s3, v{base+2+4*q}")
            a(f"v_or_b32 {t0}, {t0}, {t1}")
        if stats:
            a(f"v_xor_b32 {t1}, s3, v{base+17}")
            a(f"v_or_b32 {t0}, {t0}, {t1}")
            a(f"v_xor_b32 {t1}, s3, v{base+19}")
            a(f"v_or_b32 {t0}, {t0}, {t1}")
        a(f"v_cmp_ne_u32 vcc, 0, {t0}")
        a(f"s_cbranch_vccz {lab_ok}")

    def l_addr(self):
        a = self.a
        a(f"s_and_b32 s82, {sID}, 7")
        a("s_lshl_b32 s77, s82, 9")
        a(f"s_add_u32 s77, s77, {WS_FLL}")
        a(f"s_lshl_b32 s78, {sC}, 10")
        a(f"s_add_u32 s78, s78, {WS_STL}")
        a(f"s_lshr_b32 s79, {sID}, 6")
        a(f"s_xor_b32 s79, s79, {sFT}")
        a("s_lshl_b32 s79, s79, 16")
        a(f"s_lshl_b32 s80, {sTT}, 12")
        a(f"s_and_b32 s81, {sW}, 3")
        a("s_lshl_b32 s81, s81, 11")
        a("v_and_b32 v216, 31, v1")
        a("v_lshlrev_b32 v216, 4, v216")
        a(f"s_lshl_b32 s86, {sC}, 10")
        a(f"s_add_u32 s86, s86, {WS_STLL}")

    def cs4_one(self, i, nyoung):
        a = self.a
        if i == 0:
            a("s_mov_b32 s74, 0x00003f80")
            a("s_mov_b32 s75, 0x3f800000")
            self.cs4_pend = None
        if nyoung is not None: a(f"s_waitcnt vmcnt({nyoung})")
        a.ds(f"ds_read_b128 {vr(128 + 4 * (i % 3), 4)}, v217 offset:{i * 4096}", f"cb{i}")
        self.cs4_flush()
        self.cs4_pend = i
    def cs4_flush(self):
        a = self.a
        i = self.cs4_pend
        if i is None: return
        a.wait_lg(f"cb{i}")
        for r in range(4):
            x = 128 + 4 * (i % 3) + r
            a(f"v_dot2_f32_bf16 v{48 + 2 * r}, v{x}, s74, {'0' if i == 0 else f'v{48 + 2 * r}'}")
            a(f"v_dot2_f32_bf16 v{49 + 2 * r}, v{x}, s75, {'0' if i == 0 else f'v{49 + 2 * r}'}")
        self.cs4_pend = None
    def cs4_steps(self, lo, hi, nyoung):
        for i in range(lo, hi): self.cs4_one(i, None)
        self.cs4_flush()

    def cs4_reduce(self, mid=None):
        a = self.a
        R = list(range(48, 56)); T = list(range(136, 144))
        for r in R: a(f"v_add_f32_dpp v{r}, v{r}, v{r} row_ror:8 row_mask:0xf bank_mask:0xf")
        for r, t in zip(R, T): a(f"v_mov_b32 v{t}, v{r}")
        for r, t in zip(R, T): a(f"v_permlane32_swap_b32 v{r}, v{t}")
        for r, t in zip(R, T): a(f"v_add_f32 v{r}, v{r}, v{t}")
        if mid: mid()
        for r, t in zip(R, T): a(f"v_mov_b32 v{t}, v{r}")
        for r, t in zip(R, T): a(f"v_permlane16_swap_b32 v{r}, v{t}")
        for r, t in zip(R, T): a(f"v_add_f32_dpp v{r}, v{t}, v{r} row_ror:4 row_mask:0xf bank_mask:0xf")

    def early_setup(self):
        a = self.a
        VF, IDX = 88, 56
        a(f"v_mov_b32 v{VF}, 0x3f803f80")
        for i in range(1, 16):
            a(f"v_mov_b32 v{VF+i}, v{VF}")
        a(f"v_mov_b32 v{IDX}, 0xdddddddd")
        a("v_mov_b32 v104, v2")
        a("v_add_u32 v106, 0x10000, v2")
        a("v_and_b32 v120, 15, v1")
        a("v_lshlrev_b32 v120, 4, v120")
        a("v_lshrrev_b32 v121, 5, v1")
        a("v_lshl_or_b32 v120, v121, 8, v120")
        a("v_add_u32 v105, 1024, v120")
        a("v_add_u32 v107, 0x10000, v105")
        self.wt_addr("v108", "v109", T=(120, 121, 122))
        self.wt_poll_addr()
        a("s_mov_b32 s6, 0x0000ffff")
        a("s_mov_b32 s7, 0x0000ffff")
        self.wt_issue(phase="pre")
        self.q_addr2()

    def fg_set(self, off, tmp0, tmp1, perwave=False):
        a = self.a
        if perwave:
            a(f"s_and_b32 {sA}, {sW}, 3")
            a(f"s_lshl_b32 {sA}, {sA}, 2")
            a(f"s_add_u32 {sA}, {sA}, {LDS_FG + off}")
            a(f"v_mov_b32 {tmp1}, {sA}")
        else:
            a(f"v_mov_b32 {tmp1}, {LDS_FG + off}")
        a(f"v_mov_b32 {tmp0}, 1")
        a("s_mov_b64 exec, 1")
        a(f"ds_write_b32 {tmp1}, {tmp0}")
        a("s_mov_b64 exec, -1")

    def rem_dma(self, n, yk=True):
        a = self.a
        k = n >> 1
        if yk:
            a(f"s_add_u32 s4, {sM}, {k}")
            a("s_cmp_ge_u32 s4, 7")
            a("s_cselect_b32 s5, 7, 0")
            a("s_sub_u32 s4, s4, s5")
            a("s_add_u32 s4, s4, 1")
            a("s_xor_b32 s4, s4, s82")
            a("s_lshl_b32 s4, s4, 13")
            a("s_add_u32 s85, s4, s80")
        a(f"s_xor_b32 s5, s79, {(2 * (n & 1)) << 16}")
        a("s_add_u32 s5, s5, s85")
        if n == 9:
            a(f"s_add_u32 {sB}, s81, {44 * 2048}")
            a(f"s_cmp_eq_u32 {sW}, 6")
            a(f"s_cselect_b32 {sB}, {64 * 2048}, {sB}")
            self.kv_dma("s5", 0, base=sB)
        else:
            p0 = 4 * n if n < 8 else (40 if n == 8 else 4 * n + 8)
            self.kv_dma("s5", p0 * 2048)

    def qd_check(self):
        a = self.a
        lsp, lok = a.newlabel("L_qsp"), a.newlabel("L_qok")
        a(f"s_mov_b32 {sCnt}, 2000000")
        a.label(lsp)
        a("ds_read_b128 v[224:227], v61 offset:48")
        a("ds_read_b128 v[228:231], v61 offset:64")
        a("s_waitcnt lgkmcnt(0)")
        for r in range(225, 232): a(f"v_and_b32 v224, v224, v{r}")
        a("v_readfirstlane_b32 s4, v224")
        a("s_cmp_lg_u32 s4, 0")
        a(f"s_cbranch_scc1 {lok}")
        a(f"s_sub_u32 {sCnt}, {sCnt}, 1")
        a(f"s_cmp_eq_u32 {sCnt}, 0")
        a(f"s_cbranch_scc0 {lsp}")
        a.label(lok)

    def gok_block(self):
        a = self.a; X = self.opt
        PA, PB, PC = 160, 180, 196
        a(f"s_cmp_eq_u32 {sW}, 7")
        a("s_cbranch_scc0 L_rspin")
        a("s_cmp_eq_u32 s83, 0")
        a("s_cbranch_scc0 L_gok")
        a("s_waitcnt vmcnt(10)")
        self.kv_check("L_gokA", PA, stats=False)
        a("s_waitcnt vmcnt(6)")
        self.kv_check("L_gokB", PB, stats=False)
        a("s_waitcnt vmcnt(2)")
        self.kv_check("L_gokC", PC, stats=False)
        a(f"s_mov_b32 {sCnt}, 200000")
        a.label("L_gloop")
        self.kv_pload(PA, stats=False)
        a("s_waitcnt vmcnt(0)")
        self.kv_check("L_gokA", PA, stats=False)
        a(f"s_sub_u32 {sCnt}, {sCnt}, 1")
        a(f"s_cmp_eq_u32 {sCnt}, 0")
        a("s_cbranch_scc0 L_gloop")
        a.label("L_gokA")
        self.fg_set(4, "v224", "v225")
        for q in range(4): a(f"v_mov_b32 v{220+q}, v{PA+1+4*q}")
        a("s_branch L_rgo")
        a.label("L_gokB")
        self.fg_set(4, "v224", "v225")
        for q in range(4): a(f"v_mov_b32 v{220+q}, v{PB+1+4*q}")
        a("s_branch L_rgo")
        a.label("L_gokC")
        self.fg_set(4, "v224", "v225")
        for q in range(4): a(f"v_mov_b32 v{220+q}, v{PC+1+4*q}")
        a("s_branch L_rgo")
        a.label("L_gok")
        self.fg_set(4, "v224", "v225")
        a("s_branch L_rgo")
        a.label("L_rspin")
        a(f"s_mov_b32 {sCnt}, 2000000")
        a.label("L_rspin1")
        a("ds_read_b32 v224, v61 offset:4")
        a("s_waitcnt lgkmcnt(0)")
        a("v_readfirstlane_b32 s4, v224")
        a("s_cmp_lg_u32 s4, 0")
        a("s_cbranch_scc1 L_rgo")
        a(f"s_sub_u32 {sCnt}, {sCnt}, 1")
        a(f"s_cmp_eq_u32 {sCnt}, 0")
        a("s_cbranch_scc0 L_rspin1")
        a.label("L_rgo")
        self.stamp("gok")

    def l_pload(self):
        a = self.a
        a(f"buffer_load_dwordx4 v[208:211], v216, {srd(SRD_WS)}, s77 offen sc1")
        a(f"buffer_load_dwordx4 v[212:215], v2, {srd(SRD_WS)}, s78 offen sc1")

    def l_check(self, lab_ok):
        a = self.a
        a("v_xor_b32 v84, s3, v208")
        a("v_xor_b32 v85, s3, v210")
        a("v_or_b32 v84, v84, v85")
        a(f"v_xor_b32 v85, {sXCC}, v209")
        a("v_or_b32 v84, v84, v85")
        a("v_xor_b32 v85, s3, v213")
        a("v_or_b32 v84, v84, v85")
        a("v_xor_b32 v85, s3, v215")
        a("v_or_b32 v84, v84, v85")
        a("v_cmp_ne_u32 vcc, 0, v84")
        a(f"s_cbranch_vccz {lab_ok}")

    def kv_dma(self, src, lds_imm, base="s81"):
        a = self.a
        a(f"s_add_u32 m0, {base}, {lds_imm}")
        a(f"buffer_load_dwordx4 v59, {srd(SRD_WS)}, {src} offen sc1 lds")
        a(f"s_add_u32 m0, {base}, {lds_imm + 1024}")
        a(f"buffer_load_dwordx4 v60, {srd(SRD_WS)}, {src} offen sc1 lds")

    def kv_setflag(self):
        a = self.a
        a("v_mov_b32 v84, 1")
        a(f"v_mov_b32 v85, {LDS_FG if self.opt.get('nf', 1) == 3 else LDS_KF}")
        a("s_mov_b64 exec, 1")
        a("ds_write_b32 v85, v84")
        a("s_mov_b64 exec, -1")

    def kv_tile(self, spos):
        a = self.a
        a(f"s_add_u32 {sD}, {spos}, s64")
        a(f"s_and_b32 {sD}, {sD}, 63")
        a(f"s_lshl_b32 {sD}, {sD}, 12")
        a(f"s_add_u32 {sD}, {sD}, {WS_KV}")
        a(f"s_lshl_b32 {sE_}, {spos}, 11")
        a(f"s_mov_b32 m0, {sE_}")
        a(f"buffer_load_dwordx4 v59, {srd(SRD_WS)}, {sD} offen sc1 lds")
        a(f"s_add_u32 m0, {sE_}, 1024")
        a(f"buffer_load_dwordx4 v60, {srd(SRD_WS)}, {sD} offen sc1 lds")

    def kv_addr(self):
        a = self.a
        a("v_bfe_u32 v59, v1, 3, 2")
        a("v_lshlrev_b32 v59, 10, v59")
        a("v_and_b32 v13, 7, v1")
        a("v_lshl_or_b32 v59, v13, 4, v59")
        a("v_lshrrev_b32 v13, 5, v1")
        a("v_lshl_or_b32 v59, v13, 7, v59")
        a("v_lshrrev_b32 v60, 4, v1")
        a("v_lshlrev_b32 v60, 10, v60")
        a("v_and_b32 v13, 15, v1")
        a("v_lshl_or_b32 v60, v13, 4, v60")
        a("v_add_u32 v60, 256, v60")
        if self.opt.get("nf", 1) == 3: return
        a(f"s_lshr_b32 s64, {sID}, 3")
        a(f"s_lshl_b32 s64, s64, 1")
        a("v_bfe_u32 v12, v1, 3, 2")
        a("v_and_b32 v13, 7, v1")
        a("v_lshlrev_b32 v13, 3, v13")
        a("v_lshl_add_u32 v12, v12, 10, v13")
        a(f"s_lshl_b32 {sA}, {sC}, 3")
        a(f"s_lshl_b32 {sB}, {sTT}, 2")
        a(f"s_add_u32 {sA}, {sA}, {sB}")
        a(f"s_lshl_b32 {sA}, {sA}, 10")
        a(f"s_add_u32 s65, {sA}, {WS_KV + 512}")
        if self.opt.get("nf", 1):
            a(f"s_lshl_b32 s65, {sC}, 10")
            a(f"s_add_u32 s65, s65, {WS_STLL}")

    def h_front(self):
        a = self.a
        X = self.opt
        AF, CS = 128, 48
        def check(lab_ok):
            a(f"v_xor_b32 v80, s3, v64")
            a(f"v_xor_b32 v81, s3, v66")
            a("v_or_b32 v80, v80, v81")
            for q in range(1, 4):
                a(f"v_xor_b32 v81, s3, v{64+4*q}")
                a("v_or_b32 v80, v80, v81")
                a(f"v_xor_b32 v81, s3, v{66+4*q}")
                a("v_or_b32 v80, v80, v81")
            a("v_cmp_ne_u32 vcc, 0, v80")
            a(f"s_cbranch_vccz {lab_ok}")
        def chunk0():
            a(f"buffer_load_dwordx2 v[10:11], v12, {srd(SRD_WS)}, s65 offen sc1")
            a(f"s_add_u32 {sF}, {sW}, 28")
            for i in range(4):
                self.kv_tile(sF)
                if i < 3: a(f"s_add_u32 {sF}, {sF}, 4")
        NB = 6
        def cread(p):
            c, q = p >> 2, p & 3
            sl = p % NB
            off = c * 8192 + q * 2048
            a.ds(f"ds_read_b64_tr_b16 {vr(AF+4*sl,2)}, v20 offset:{off}", f"c{p}")
            a.ds(f"ds_read_b64_tr_b16 {vr(AF+4*sl+2,2)}, v20 offset:{off+512}", f"c{p}")
        def csteps(lo, hi):
            for p in range(lo, hi):
                sl = p % NB
                a.wait_lg(f"c{p}")
                for i in range(4):
                    src2 = "0" if p == 0 else f"v{CS+i}"
                    a(f"v_dot2_f32_bf16 v{CS+i}, v{AF+4*sl+i}, s74, {src2}")
                if p + 5 < 16: cread(p + 5)
        if X.get("nf", 1) == 3:
            PA, PB, PC = 160, 180, 196
            sG7 = "s83"
            def tiles():
                if X.get("tsl"): a(f"s_sleep {X['tsl']}")
                lab = a.newlabel("L_tl7")
                a(f"s_mov_b32 {sPh}, 1")
                a(f"s_cmp_eq_u32 {sW}, 7")
                a(f"s_cbranch_scc1 {lab}")
                a("s_lshl_b32 s4, s82, 13")
                a("s_add_u32 s4, s4, s84")
                a(f"s_lshr_b32 {sF}, {sID}, 6")
                a(f"s_sub_u32 {sA}, {sW}, 4")
                for n in range(3):
                    if n == 2:
                        a(f"s_cmp_eq_u32 {sW}, 6")
                        a(f"s_cbranch_scc1 {lab}")
                    a(f"s_lshr_b32 s5, {sA}, 1")
                    a(f"s_xor_b32 s5, s5, {sF}")
                    a("s_lshl_b32 s5, s5, 16")
                    a("s_add_u32 s5, s5, s4")
                    a(f"s_and_b32 {sB}, {sA}, 1")
                    a(f"s_lshl_b32 {sB}, {sB}, 12")
                    a(f"s_add_u32 s5, s5, {sB}")
                    a(f"s_lshl_b32 {sB}, {sA}, 11")
                    a(f"s_add_u32 {sB}, {sB}, {32 * 2048}")
                    self.kv_dma("s5", 0, base=sB)
                    if n < 2: a(f"s_add_u32 {sA}, {sA}, 3")
                a.label(lab)
            def gpoll(base):
                lab = a.newlabel("L_gp")
                a(f"s_cmp_eq_u32 {sW}, 7")
                a(f"s_cbranch_scc0 {lab}")
                a(f"s_cmp_eq_u32 {sG7}, 0")
                a(f"s_cbranch_scc0 {lab}")
                self.kv_pload(base, stats=False)
                a.label(lab)
            CS4 = X.get("cs4")
            if X.get("hprio"): a(f"s_setprio {X['hprio']}")
            if CS4:
                cp_ = X.get("cpre", 16); cm_ = (cp_ + 16) // 2
                def csteps(lo, hi):
                    if lo == 0:
                        if cm_ > cp_: self.cs4_steps(cp_, cm_, None)
                    else:
                        if 16 > cm_: self.cs4_steps(cm_, 16, None)
                        self.cs4_reduce(mid=lambda: gpoll(PB))
            else:
                a("s_mov_b32 s74, 0x3f803f80")
            a(f"v_mov_b32 v86, {LDS_FG}")
            a(f"s_mov_b32 {sG7}, 0")
            a(f"s_mov_b32 {sPh}, 0")
            a(f"s_mov_b32 s84, {WS_KVL}")
            a.lg = []
            if not CS4:
                for p in range(5): cread(p)
            LF = X.get("lfail")
            if not LF: self.l_check("L_lok1")
            self.l_pload()
            a("s_branch L_lc1")
            a.label("L_lok1")
            self.stamp("lok1")
            tiles()
            a.label("L_lc1")
            gpoll(PA)
            NH = X.get("csplit", 8)
            csteps(0, NH)
            self.stamp("cs1")
            a(f"s_cmp_eq_u32 {sPh}, 1")
            a("s_cbranch_scc1 L_lc2")
            a(f"s_cmp_eq_u32 {sW}, 7")
            a("s_cbranch_scc1 L_lw7")
            a("s_waitcnt vmcnt(0)")
            a("s_branch L_lw8")
            a.label("L_lw7")
            a("s_waitcnt vmcnt(4)")
            a.label("L_lw8")
            if not LF: self.l_check("L_lok2")
            self.l_pload()
            a("s_branch L_lc2")
            a.label("L_lok2")
            self.stamp("lok2")
            tiles()
            a.label("L_lc2")
            csteps(NH, 16)
            self.stamp("cs2")
            a(f"s_cmp_eq_u32 {sPh}, 1")
            a("s_cbranch_scc1 L_ldone")
            a("s_waitcnt vmcnt(0)")
            if not LF: self.l_check("L_lgo")
            a(f"s_mov_b32 {sCnt}, 200000")
            a.label("L_lsl1")
            self.l_pload()
            a(f"s_cmp_eq_u32 {sW}, 7")
            a("s_cbranch_scc0 L_lsl2")
            self.kv_pload(PA)
            a("s_waitcnt vmcnt(0)")
            if not LF: self.l_check("L_lgo7")
            self.kv_check("L_lsl3", PA)
            a("s_branch L_lsl4")
            a.label("L_lsl3")
            self.kv_setflag()
            a(f"s_mov_b32 {sG7}, 1")
            a(f"v_mov_b32 v212, v{PA+16}")
            a(f"v_mov_b32 v214, v{PA+18}")
            for q in range(4): a(f"v_mov_b32 v{220+q}, v{PA+1+4*q}")
            a(f"s_mov_b32 s84, {WS_KV}")
            a("s_branch L_lgo")
            a.label("L_lsl2")
            a("ds_read_b32 v87, v86")
            a("s_waitcnt vmcnt(0) lgkmcnt(0)")
            if not LF: self.l_check("L_lgo")
            a("v_readfirstlane_b32 s4, v87")
            a("s_cmp_lg_u32 s4, 0")
            a("s_cbranch_scc0 L_lsl4")
            a(f"s_mov_b32 s84, {WS_KV}")
            a("s_branch L_lgo")
            a.label("L_lsl4")
            a(f"s_sub_u32 {sCnt}, {sCnt}, 1")
            a(f"s_cmp_eq_u32 {sCnt}, 0")
            a("s_cbranch_scc0 L_lsl1")
            a.label("L_lgo7")
            a.label("L_lgo")
            self.stamp("lok3")
            tiles()
            gpoll(PA)
            gpoll(PB)
            a.label("L_ldone")
            gpoll(PC)
            if CS4:
                lab = a.newlabel("L_tw")
                a(f"s_cmp_eq_u32 {sW}, 7")
                a(f"s_cbranch_scc1 {lab}")
                a("s_waitcnt vmcnt(0)")
                a.label(lab)
                return
            a(f"v_add_f32 v{CS}, v{CS}, v{CS+1}")
            a(f"v_add_f32 v{CS+2}, v{CS+2}, v{CS+3}")
            a(f"v_add_f32 v{CS}, v{CS}, v{CS+2}")
            a(f"v_mov_b32 v9, v{CS}")
            a(f"v_permlane32_swap_b32 v{CS}, v9")
            a(f"v_add_f32 v{CS}, v{CS}, v9")
            return
        if X.get("nf", 1) == 2:
            PA, PB = 64, 88
            a("s_mov_b32 s74, 0x3f803f80")
            a(f"v_mov_b32 v86, {LDS_KF}")
            a.lg = []
            for p in range(5): cread(p)
            a(f"s_cmp_eq_u32 {sW}, 7")
            a("s_cbranch_scc1 L_w7f")
            saved = list(a.lg)
            NH = X.get("csplit", 8)
            csteps(0, NH)
            a(f"s_mov_b32 {sCnt}, 2000000")
            a.label("L_kv_spin1")
            a("ds_read_b32 v87, v86")
            a("s_waitcnt lgkmcnt(0)")
            a("v_readfirstlane_b32 s4, v87")
            a("s_cmp_lg_u32 s4, 0")
            a("s_cbranch_scc1 L_kv_go2")
            a(f"s_sub_u32 {sCnt}, {sCnt}, 1")
            a(f"s_cmp_eq_u32 {sCnt}, 0")
            a("s_cbranch_scc0 L_kv_spin1")
            a.label("L_kv_go2")
            self.stamp("kvok")
            a(f"s_add_u32 {sF}, {sW}, 28")
            for i in range(5):
                self.kv_tile(sF)
                if i < 4: a(f"s_add_u32 {sF}, {sF}, 3")
            if NH < 16: a.lg = [x for x in a.lg]
            csteps(NH, 16)
            a("s_branch L_hfin")
            a.label("L_w7f")
            a.lg = saved
            a(f"s_mov_b32 {sPh}, 0")
            if not X.get("ep7", 1): self.kv_pload(PA)
            self.kv_pload(PB)
            def cp(base, other, k):
                lab = a.newlabel("L_cp"); lok = a.newlabel("L_cpok")
                a(f"s_cmp_lg_u32 {sPh}, 0")
                a(f"s_cbranch_scc1 {lab}")
                a("s_waitcnt vmcnt(5)")
                if self.prof and X.get("cpdbg"):
                    if k == 0 and not getattr(self, "_cp0", 0):
                        self._cp0 = 1
                        self.stamp("cp0")
                        a("s_mov_b32 s75, 0")
                    a("s_add_u32 s75, s75, 1")
                self.kv_check(lok, base)
                self.kv_pload(base)
                a(f"s_branch {lab}")
                a.label(lok)
                self.kv_setflag()
                a(f"s_mov_b32 {sPh}, {1 if base == PA else 2}")
                a.label(lab)
            G7 = X.get("g7", 4)
            cp(PA, PB, 0)
            n = 0
            while n < 16:
                csteps(n, min(16, n + G7)); n += G7
                if n < 16: cp(PB if (n // G7) % 2 == 1 else PA, None, n)
            nxt = [PB, PA] if ((16 + G7 - 1) // G7) % 2 == 1 else [PA, PB]
            a(f"s_mov_b32 {sCnt}, 100000")
            a.label("L_w7loop")
            cp(nxt[0], None, 0)
            cp(nxt[1], None, 0)
            a(f"s_cmp_lg_u32 {sPh}, 0")
            a("s_cbranch_scc1 L_w7ok")
            a(f"s_sub_u32 {sCnt}, {sCnt}, 1")
            a(f"s_cmp_eq_u32 {sCnt}, 0")
            a("s_cbranch_scc0 L_w7loop")
            a.label("L_w7ok")
            self.stamp("kvok7")
            if self.prof and X.get("cpdbg"):
                i = self.nstamp; self.nstamp += 1
                self.stamp_names.append("ncp")
                a(f"v_writelane_b32 v0, s75, {i}")
            a("s_waitcnt vmcnt(0)")
            a(f"s_cmp_eq_u32 {sPh}, 2")
            a("s_cbranch_scc0 L_w7cp")
            for r in (1, 5, 9, 13, 16, 18):
                a(f"v_mov_b32 v{PA+r}, v{PB+r}")
            a.label("L_w7cp")
            a.label("L_hfin")
            a(f"v_add_f32 v{CS}, v{CS}, v{CS+1}")
            a(f"v_add_f32 v{CS+2}, v{CS+2}, v{CS+3}")
            a(f"v_add_f32 v{CS}, v{CS}, v{CS+2}")
            a(f"v_mov_b32 v9, v{CS}")
            a(f"v_permlane32_swap_b32 v{CS}, v9")
            a(f"v_add_f32 v{CS}, v{CS}, v9")
            return
        if X.get("nf", 1):
            def chunk0n():
                a(f"s_add_u32 {sF}, {sW}, 28")
                for i in range(4):
                    if i == 3:
                        lab = a.newlabel("L_c0skip")
                        a(f"s_cmp_eq_u32 {sW}, 7")
                        a(f"s_cbranch_scc1 {lab}")
                    self.kv_tile(sF)
                    if i < 3: a(f"s_add_u32 {sF}, {sF}, 4")
                a.label(lab)
            a("s_mov_b32 s74, 0x3f803f80")
            a(f"v_mov_b32 v86, {LDS_KF}")
            a.lg = []
            a.ds("ds_read_b32 v87, v86", "kf")
            for p in range(5): cread(p)
            a.wait_lg("kf")
            a(f"v_readfirstlane_b32 {sPh}, v87")
            a(f"s_cmp_eq_u32 {sPh}, 0")
            a("s_cbranch_scc1 L_kv_notyet")
            chunk0n()
            a("s_branch L_kv_cs")
            a.label("L_kv_notyet")
            a(f"s_cmp_eq_u32 {sW}, 7")
            a("s_cbranch_scc0 L_kv_cs")
            self.kv_pload()
            a.label("L_kv_cs")
            csteps(0, 16)
            a(f"v_add_f32 v{CS}, v{CS}, v{CS+1}")
            a(f"v_add_f32 v{CS+2}, v{CS+2}, v{CS+3}")
            a(f"v_add_f32 v{CS}, v{CS}, v{CS+2}")
            a(f"v_mov_b32 v9, v{CS}")
            a(f"v_permlane32_swap_b32 v{CS}, v9")
            a(f"v_add_f32 v{CS}, v{CS}, v9")
            a(f"s_cmp_lg_u32 {sPh}, 0")
            a("s_cbranch_scc1 L_kv_have")
            a(f"s_cmp_eq_u32 {sW}, 7")
            a("s_cbranch_scc0 L_kv_spin")
            a(f"s_mov_b32 {sCnt}, 200000")
            a.label("L_poll_kv")
            a("s_waitcnt vmcnt(0)")
            self.kv_check("L_pollok_kv")
            a(f"s_sub_u32 {sCnt}, {sCnt}, 1")
            a(f"s_cmp_eq_u32 {sCnt}, 0")
            a("s_cbranch_scc1 L_pollok_kv")
            a(f"s_sleep {X.get('kvsl', 2)}")
            self.kv_pload()
            a("s_branch L_poll_kv")
            a.label("L_pollok_kv")
            self.kv_setflag()
            a("s_branch L_kv_go2")
            a.label("L_kv_spin")
            a(f"s_mov_b32 {sCnt}, 2000000")
            a.label("L_kv_spin1")
            a("ds_read_b32 v87, v86")
            a("s_waitcnt lgkmcnt(0)")
            a("v_readfirstlane_b32 s4, v87")
            a("s_cmp_lg_u32 s4, 0")
            a("s_cbranch_scc1 L_kv_go2")
            a(f"s_sub_u32 {sCnt}, {sCnt}, 1")
            a(f"s_cmp_eq_u32 {sCnt}, 0")
            a("s_cbranch_scc0 L_kv_spin1")
            a.label("L_kv_go2")
            chunk0n()
            a.label("L_kv_have")
            self.stamp("kvok")
            return
        a("s_mov_b32 s74, 0x3f803f80")
        a(f"s_mov_b32 {sPh}, 0")
        a.lg = []
        for p in range(5): cread(p)
        if X.get("epoll", 0):
            check("L_kv_early")
            self.kv_pload()
            a("s_branch L_kv_late")
            a.label("L_kv_early")
            chunk0()
            a(f"s_mov_b32 {sPh}, 1")
            a.label("L_kv_late")
        else:
            self.kv_pload()
        NH = X.get("csplit", 8)
        csteps(0, NH)
        a(f"s_cmp_eq_u32 {sPh}, 1")
        a("s_cbranch_scc1 L_kv_have")
        a(f"s_mov_b32 {sCnt}, 200000")
        a.label("L_poll_kv")
        a("s_waitcnt vmcnt(0)")
        check("L_pollok_kv")
        a(f"s_sub_u32 {sCnt}, {sCnt}, 1")
        a(f"s_cmp_eq_u32 {sCnt}, 0")
        a("s_cbranch_scc1 L_pollok_kv")
        a(f"s_sleep {X.get('kvsl', 2)}")
        self.kv_pload()
        a("s_branch L_poll_kv")
        a.label("L_pollok_kv")
        self.stamp("kvok")
        chunk0()
        a.label("L_kv_have")
        csteps(NH, 16)
        a(f"v_add_f32 v{CS}, v{CS}, v{CS+1}")
        a(f"v_add_f32 v{CS+2}, v{CS+2}, v{CS+3}")
        a(f"v_add_f32 v{CS}, v{CS}, v{CS+2}")
        a(f"v_mov_b32 v9, v{CS}")
        a(f"v_permlane32_swap_b32 v{CS}, v9")
        a(f"v_add_f32 v{CS}, v{CS}, v9")

    def poll_begin(self, name, limit=200000):
        a = self.a
        a(f"s_mov_b32 {sCnt}, {limit}")
        a.label(f"L_poll_{name}")
    def poll_end(self, name, sleep=1):
        a = self.a
        a(f"s_cbranch_vccz L_pollok_{name}")
        a(f"s_sub_u32 {sCnt}, {sCnt}, 1")
        a(f"s_cmp_eq_u32 {sCnt}, 0")
        a(f"s_cbranch_scc1 L_pollok_{name}")
        if sleep: a(f"s_sleep {sleep}")
        a(f"s_branch L_poll_{name}")
        a.label(f"L_pollok_{name}")

    def p2(self):
        a = self.a
        X = self.opt
        LDS_E = 132 * 1024
        Q, NEGM, S0, S1, IDX, O, KF, VF = 4, 8, 24, 40, 56, 64, 80, 88
        vKa, vVa, vKb, vVb = "v104", "v105", "v106", "v107"
        vT1, vT2 = "v108", "v109"
        PL = 110
        WD = 112
        W1 = 128
        sTG = "s3"
        LDS_BC, LDS_CS, LDS_EX = 156 * 1024, 157 * 1024, 148 * 1024
        NF3 = X.get("nf", 1) == 3
        FB = LDS_FG if NF3 else LDS_BC
        BCO = 96 if NF3 else 0
        if NF3: LDS_BC = LDS_FG + 96
        LST = LDS_ST
        if NF3: LDS_EX, LDS_CS, LST = 80 * 1024, 88 * 1024, 89 * 1024
        CSR = 112 if NF3 else 84
        ACC, CS = 32, 48
        sRot = "s64"
        kv_tile = self.kv_tile
        a(f"s_cmp_eq_u32 {sKH}, 0")
        a("s_cbranch_scc0 L_p2h")
        if not X.get("nf", 1):
            a(f"buffer_load_dwordx2 v[10:11], v12, {srd(SRD_WS)}, s65 offen sc1")
        a(f"s_lshl_b32 {sA}, {sW}, 11")
        a(f"s_add_u32 {sA}, {sA}, {LDS_EX}")
        a(f"v_add_u32 v8, {sA}, v2")
        a(f"ds_write_b128 v8, {vr(ACC+8,4)}")
        a(f"ds_write_b128 v8, {vr(ACC+12,4)} offset:1024")
        a("s_branch L_p2j")
        a.label("L_p2h")
        if NF3:
            a(f"s_cmp_eq_u32 {sW}, 7")
            a("s_cbranch_scc0 L_p2h7")
            a("v_mov_b32 v213, v214")
            a("v_lshlrev_b32 v84, 3, v1")
            a(f"v_add_u32 v84, {LST}, v84")
            a("ds_write_b64 v84, v[212:213]")
            a.label("L_p2h7")
        elif X.get("nf", 1):
            a(f"s_cmp_eq_u32 {sW}, 7")
            a("s_cbranch_scc0 L_p2h7")
            a(f"s_mov_b32 {sF}, 47")
            kv_tile(sF)
            a("v_mov_b32 v81, v82")
            a("v_lshlrev_b32 v84, 3, v1")
            a(f"v_add_u32 v84, {LDS_ST}, v84")
            a("ds_write_b64 v84, v[80:81]")
            a.label("L_p2h7")
        if X.get("cs4"):
            a(f"s_and_b32 {sA}, {sW}, 3")
            a(f"s_lshl_b32 {sA}, {sA}, 8")
            a(f"s_add_u32 {sA}, {sA}, {LDS_CS}")
            a("v_lshlrev_b32 v9, 5, v1")
            a(f"v_add_u32 v9, {sA}, v9")
            a("s_mov_b64 exec, 0xff")
            a("ds_write_b128 v9, v[48:51]")
            a("ds_write_b128 v9, v[52:55] offset:16")
            a("s_mov_b64 exec, -1")
            a("s_branch L_p2j")
        a("v_and_b32 v9, 31, v1")
        a(f"s_lshl_b32 {sA}, {sTT}, 1")
        a(f"s_add_u32 {sA}, {sA}, {sFT}")
        a(f"s_lshl_b32 {sA}, {sA}, 7")
        a(f"s_add_u32 {sA}, {sA}, {LDS_CS}")
        a("v_lshlrev_b32 v9, 2, v9")
        a(f"v_add_u32 v9, {sA}, v9")
        a(f"ds_write_b32 v9, v{CS}")
        a.label("L_p2j")
        if NF3:
            for i in range(16):
                a(f"v_mov_b32 v{O+i}, 0")
        a("s_waitcnt lgkmcnt(0)")
        a("s_barrier")
        self.stamp("b3")
        if NF3:
            self.wt_issue(phase="go")
        a.lg = []
        a("v_lshrrev_b32 v9, 5, v1")
        a("v_lshlrev_b32 v9, 4, v9")
        a(f"s_lshl_b32 {sA}, {sFT}, 7")
        a(f"s_lshl_b32 {sB}, {sKH}, 6")
        a(f"s_add_u32 {sA}, {sA}, {sB}")
        a(f"s_add_u32 {sA}, {sA}, {LDS_CS}")
        a(f"v_add_u32 v9, {sA}, v9")
        NCS = 4 if X.get("cs4") else 2
        for q in range(NCS):
            a.ds(f"ds_read_b128 {vr(CSR+8*q,4)}, v9 offset:{q*256}", "cs")
            a.ds(f"ds_read_b128 {vr(CSR+4+8*q,4)}, v9 offset:{q*256+32}", "cs")
        if X.get("nf", 1):
            a("v_and_b32 v10, 31, v1")
            a(f"s_lshl_b32 {sA}, {sTT}, 8")
            a(f"s_add_u32 {sA}, {sA}, {LST}")
            a("v_lshlrev_b32 v10, 3, v10")
            a(f"v_add_u32 v10, {sA}, v10")
            a("ds_read_b64 v[10:11], v10")
        a(f"s_cmp_eq_u32 {sKH}, 0")
        a("s_cbranch_scc1 L_p2k")
        a(f"s_lshl_b32 {sA}, {sW}, 11")
        a(f"s_add_u32 {sA}, {sA}, {LDS_EX - 4*2048}")
        a(f"v_add_u32 v8, {sA}, v2")
        a(f"ds_read_b128 {vr(ACC,4)}, v8")
        a(f"ds_read_b128 {vr(ACC+4,4)}, v8 offset:1024")
        a.label("L_p2k")
        a("s_waitcnt lgkmcnt(0)")
        a.lg = []
        if NF3:
            a(f"s_lshl_b32 {sA}, {sW}, 2")
            a(f"s_add_u32 {sA}, {sA}, {LDS_FG + 48}")
            a(f"v_mov_b32 v85, {sA}")
            a("v_mov_b32 v84, 1")
            a("s_mov_b64 exec, 1")
            a("ds_write_b32 v85, v84")
            a("s_mov_b64 exec, -1")
            a(f"v_mov_b32 v61, {LDS_FG}")
            a(f"s_cmp_eq_u32 {sKH}, 0")
            a("s_cbranch_scc1 L_qfin")
            a("s_setprio 3")
            self.gok_block()
            a(f"s_add_u32 s80, s80, {WS_KV}")
            for n in range(4): self.rem_dma(n, yk=(n % 2 == 0))
            self.stamp("eiss")
            a.label("L_qfin")
        for i in range(8):
            a(f"v_add_f32 v{40+i}, v{CSR+i}, v{CSR+8+i}")
        if NCS == 4:
            for i in range(8):
                a(f"v_add_f32 v{CSR+i}, v{CSR+16+i}, v{CSR+24+i}")
            for i in range(8):
                a(f"v_add_f32 v{40+i}, v{40+i}, v{CSR+i}")
        if not X.get("nf", 1):
            a(f"s_cmp_eq_u32 {sKH}, 0")
            a("s_cbranch_scc1 L_p2w")
            a("s_waitcnt vmcnt(8)")
            a("s_branch L_p2x")
            a.label("L_p2w")
            a("s_waitcnt vmcnt(0)")
            a.label("L_p2x")
        a(f"v_mul_f32 v11, 0x{f32bits(0.25*LOG2E):x}, v11")
        for i in range(8):
            a(f"v_fma_f32 v{32+i}, -v10, v{40+i}, v{32+i}")
        for i in range(8):
            a(f"v_mul_f32 v{32+i}, v11, v{32+i}")
        for i in range(4):
            a(f"v_cvt_pk_bf16_f32 v{Q+i}, v{32+2*i}, v{33+2*i}")
        if self.stop == "q":
            self.dump_regs(0, [Q, Q+1, Q+2, Q+3], WS_DBG)
            return
        a(f"v_dot2_f32_bf16 v12, v{Q}, v{Q}, 0")
        for i in range(1, 4):
            a(f"v_dot2_f32_bf16 v12, v{Q+i}, v{Q+i}, v12")
        a("v_mov_b32 v13, v12")
        a("v_permlane32_swap_b32 v12, v13")
        a("v_add_f32 v12, v12, v13")
        a("v_sqrt_f32 v12, v12")
        a(f"v_mul_f32 v12, 0x{f32bits(1.0078125):x}, v12")
        self.stamp("qfin")
        if not NF3: self.wt_issue()
        def knorm(R):
            a(f"v_and_b32 v80, -8, v{R[0]}")
            for q in range(1, 4):
                a(f"v_and_b32 v81, -8, v{R[q]}")
                a("v_max_f32 v80, v80, v81")
            a(f"s_lshr_b32 {sB}, {sC}, 3")
            a(f"v_mov_b32 v82, v{R[0]}")
            for q in range(1, 4):
                a(f"s_cmp_eq_u32 {sB}, {q}")
                a("s_cselect_b64 vcc, -1, 0")
                a(f"v_cndmask_b32 v82, v82, v{R[q]}, vcc")
            a(f"v_xor_b32 v82, {sXCC}, v82")
            a("v_and_b32 v82, 7, v82")
            a("v_cmp_ne_u32 vcc, 0, v82")
            a(f"s_and_b32 {sA}, {sC}, 7")
            a(f"s_lshl_b32 {sA}, {sA}, 3")
            a(f"s_lshr_b64 {sX64}, vcc, {sA}")
            a(f"s_and_b32 {sFast}, s4, 0xff")
            if X.get("slow"): a(f"s_mov_b32 {sFast}, 1")
            self.wave_reduce(["v80"], "max", ["v81"])
            a("v_sqrt_f32 v80, v80")
            a(f"v_mov_b32 v81, {sFast}")
            a(f"v_mov_b32 v82, {LDS_BC}")
            a("s_mov_b64 exec, 1")
            a("ds_write_b64 v82, v[80:81]")
            a("s_mov_b64 exec, -1")
        if not NF3:
            a(f"s_cmp_eq_u32 {sW}, 7")
            a("s_cbranch_scc0 L_nobc")
            knorm([65, 69, 73, 77])
            a.label("L_nobc")
        def epoch():
            a(f"s_or_b32 {sA}, {sID}, {sW}")
            a(f"s_cmp_lg_u32 {sA}, 0")
            a("s_cbranch_scc1 L_noepoch")
            a(f"v_mov_b32 v62, {sTG}")
            a("v_mov_b32 v63, 0")
            a("s_mov_b64 exec, 1")
            a(f"buffer_store_dword v62, v63, {srd(SRD_WS)}, 0 offen")
            a("s_mov_b64 exec, -1")
            a.label("L_noepoch")
        def bound_check():
            a("v_mul_f32 v12, v12, v62")
            a(f"v_cmp_lt_f32 vcc, 0x{f32bits(48.0):x}, v12")
            a("v_cmp_u_f32 s[4:5], v12, v12")
            a("s_or_b64 vcc, vcc, s[4:5]")
            a("s_cmp_lg_u64 vcc, 0")
            a(f"s_cselect_b32 {sG}, 1, 0")
            a(f"v_readfirstlane_b32 {sFast}, v63")
            if X.get("forcefb"): a(f"s_mov_b32 {sG}, 1")
        if not NF3:
            a(f"v_mov_b32 v{VF}, 0x3f803f80")
            for i in range(1, 16):
                a(f"v_mov_b32 v{VF+i}, v{VF}")
            for i in range(16):
                a(f"v_mov_b32 v{O+i}, 0")
            a(f"v_mov_b32 v{IDX}, 0xdddddddd")
            a(f"v_mov_b32 {vKa}, v2")
            a(f"v_add_u32 {vKb}, 0x10000, v2")
            a("v_and_b32 v3, 15, v1")
            a("v_lshlrev_b32 v3, 4, v3")
            a("v_lshrrev_b32 v61, 5, v1")
            a("v_lshl_or_b32 v3, v61, 8, v3")
            a(f"v_add_u32 {vVa}, 1024, v3")
            a(f"v_add_u32 {vVb}, 0x10000, {vVa}")
            self.wt_addr(vT1, vT2)
            self.wt_poll_addr()
            a("s_mov_b32 s6, 0x0000ffff")
            a("s_mov_b32 s7, 0x0000ffff")
        a(f"v_mov_b32 v61, {FB}")
        self.stamp("fin")
        if not NF3:
            a("s_waitcnt vmcnt(2) lgkmcnt(0)")
            a("s_barrier")
        self.stamp("b4")
        a(f"s_cmp_eq_u32 {sKH}, 0")
        a("s_cbranch_scc1 L_clsA")
        def lds_set(off, tmp0="v84", tmp1="v85", perwave=False):
            if perwave:
                a(f"s_and_b32 {sA}, {sW}, 3")
                a(f"s_lshl_b32 {sA}, {sA}, 2")
                a(f"s_add_u32 {sA}, {sA}, {FB + off}")
                a(f"v_mov_b32 {tmp1}, {sA}")
            else:
                a(f"v_mov_b32 {tmp1}, {FB + off}")
            a(f"v_mov_b32 {tmp0}, 1")
            a("s_mov_b64 exec, 1")
            a(f"ds_write_b32 {tmp1}, {tmp0}")
            a("s_mov_b64 exec, -1")
        if NF3:
            for n in range(4, 8): self.rem_dma(n, yk=(n % 2 == 0))
            a("s_waitcnt vmcnt(8)")
            self.fg_set(16, "v224", "v225", perwave=True)
            self.stamp("f1set")
            a(f"s_cmp_eq_u32 {sW}, 7")
            a("s_cbranch_scc0 L_nobc")
            knorm([220, 221, 222, 223])
            a.label("L_nobc")
            a(f"s_setprio {X.get('pb', 1)}")
        else:
            a(f"s_sub_u32 s67, {sW}, 4")
            a(f"s_mov_b32 {sCnt}, 12")
            a.label("L_kvrest")
            a(f"s_add_u32 {sF}, s67, 16")
            a(f"s_cmp_lt_u32 s67, 32")
            a(f"s_cselect_b32 {sF}, s67, {sF}")
            kv_tile(sF)
            a(f"s_add_u32 s67, s67, 4")
            a(f"s_sub_u32 {sCnt}, {sCnt}, 1")
            a(f"s_cmp_lg_u32 {sCnt}, 0")
            a("s_cbranch_scc1 L_kvrest")
            a("s_setprio 1")
            a("s_waitcnt vmcnt(0)")
            a("s_barrier")
        a(f"s_mov_b32 {sPh}, 1")
        a("s_branch L_clsD")
        a.label("L_clsA")
        a("s_setprio 2")
        a(f"s_mov_b32 {sPh}, 0")
        a.label("L_clsD")

        def pos(t):
            if NF3: return t + 32 if t < 8 else (t - 8 if t < 40 else (64 if t == 46 else t))
            return t + 32 if t < 16 else (t - 16 if t < 48 else t)
        def kread(t):
            p_ = pos(t)
            base = vKa if p_ < 32 else vKb
            if p_ == 64:
                a(f"v_add_u32 v120, 0x10000, {vKb}")
                base = "v120"
            a.ds(f"ds_read_b128 {vr(KF+4*(t%2),4)}, {base} offset:{(p_%32)*2048}", f"K{t}")
        def vread(t):
            p_ = pos(t)
            base = vVa if p_ < 32 else vVb
            if p_ == 64:
                a(f"v_add_u32 v121, 0x10000, {vVb}")
                base = "v121"
            a("s_mov_b64 exec, s[6:7]")
            a.ds(f"ds_read_b128 {vr(VF+8*(t%2),4)}, {base} offset:{(p_%32)*2048}", f"V{t}")
            a.ds(f"ds_read_b128 {vr(VF+8*(t%2)+4,4)}, {base} offset:{(p_%32)*2048+512}", f"V{t}")
            a("s_mov_b64 exec, -1")
        def Sr(t): return S0 if t % 2 == 0 else S1
        def ms(t):
            a.wait_lg(f"K{t}")
            a(f"v_mfma_f32_32x32x16_bf16 {vr(Sr(t),16)}, {vr(KF+4*(t%2),4)}, {vr(Q,4)}, 0")
        def sm(t, half):
            a.wait_lg(f"V{t}")
            a(f"v_smfmac_f32_32x32x32_bf16 {vr(O,16)}, {vr(VF+8*(t%2)+4*half,4)}, {vr(Sr(t)+8*half,8)}, v{IDX}")
        def E(t, lo, hi):
            for i in range(lo, hi + 1): a(f"v_exp_f32 v{Sr(t)+i}, v{Sr(t)+i}")

        TA = dict(wt=X.get("Awt", 10), fl=X.get("Afl", 17), bar=13, sw=X.get("sw", 50))
        TB = dict(wt=X.get("Bwt", 0), fl=X.get("Bfl", 2))
        TPOLL, TCHK, TLD0 = X.get("tpoll", 30), X.get("tchk", 32), X.get("tld", 32)
        def cond(cls, name, fn):
            lab = a.newlabel(f"L_{name}")
            a(f"s_cmp_eq_u32 {sKH}, {cls}")
            a(f"s_cbranch_scc0 {lab}")
            fn()
            a.label(lab)
        def b_wt(wait=True):
            if wait: a("s_waitcnt vmcnt(0)")
            a(f"ds_read_b64_tr_b16 v[{WD}:{WD+1}], {vT1}")
            a(f"ds_read_b64_tr_b16 v[{WD+2}:{WD+3}], {vT1} offset:1024")
            a(f"ds_read_b64_tr_b16 v[{WD+4}:{WD+5}], {vT2}")
            a(f"ds_read_b64_tr_b16 v[{WD+6}:{WD+7}], {vT2} offset:1024")
            a("s_waitcnt lgkmcnt(0)")
            a(f"buffer_store_dwordx4 v[{WD}:{WD+3}], v2, {srd(SRD_WS)}, s88 offen sc1")
            a("s_add_u32 s88, s88, s89")
            a(f"buffer_store_dwordx4 v[{WD+4}:{WD+7}], v2, {srd(SRD_WS)}, s88 offen sc1")
        def b_fl(n=0):
            a(f"s_waitcnt vmcnt({n})")
            a(f"s_lshl_b32 {sA}, {sID}, 3")
            a(f"s_add_u32 {sA}, {sA}, {sW}")
            a(f"s_lshl_b32 {sA}, {sA}, 2")
            a(f"s_add_u32 {sA}, {sA}, {WS_FLWT2}")
            a(f"v_mov_b32 v{WD}, {sTG}")
            a(f"v_mov_b32 v{WD+1}, 0")
            a("s_mov_b64 exec, 1")
            a(f"buffer_store_dword v{WD}, v{WD+1}, {srd(SRD_WS)}, {sA} offen sc1")
            a("s_mov_b64 exec, -1")
        def b_fl2():
            a("s_waitcnt vmcnt(0)")
            self.fg_set(80, f"v{WD+2}", f"v{WD+3}", perwave=True)
        def b_f2():
            a("s_waitcnt vmcnt(2)")
            self.fg_set(32, f"v{WD+2}", f"v{WD+3}", perwave=True)
            b_fl(2)
        def fchk_read(off):
            def f(): a.ds(f"ds_read_b128 v[{WD+4}:{WD+7}], v61 offset:{off}", f"fl{off}")
            return f
        def fchk(off):
            def f():
                lok, lsp = a.newlabel("L_fok"), a.newlabel("L_fsp")
                a.wait_lg(f"fl{off}")
                a(f"s_mov_b32 {sCnt}, 2000000")
                a.label(lsp)
                a(f"v_and_b32 v{WD+4}, v{WD+4}, v{WD+5}")
                a(f"v_and_b32 v{WD+6}, v{WD+6}, v{WD+7}")
                a(f"v_and_b32 v{WD+4}, v{WD+4}, v{WD+6}")
                a(f"v_readfirstlane_b32 s4, v{WD+4}")
                a("s_cmp_lg_u32 s4, 0")
                a(f"s_cbranch_scc1 {lok}")
                a(f"ds_read_b128 v[{WD+4}:{WD+7}], v61 offset:{off}")
                a("s_waitcnt lgkmcnt(0)")
                a(f"s_sub_u32 {sCnt}, {sCnt}, 1")
                a(f"s_cmp_eq_u32 {sCnt}, 0")
                a(f"s_cbranch_scc0 {lsp}")
                a.label(lok)
            return f
        def b_bar():
            lab = a.newlabel("L_b5")
            a(f"s_cmp_eq_u32 {sPh}, 1")
            a(f"s_cbranch_scc1 {lab}")
            a("s_barrier")
            a.label(lab)
        def poll_issue():
            a(f"buffer_load_dword v{PL}, v57, {srd(SRD_WS)}, 0 offen sc1")
            a(f"buffer_load_dword v{PL+1}, v58, {srd(SRD_WS)}, 0 offen sc1")
        def poll_check():
            a("s_waitcnt vmcnt(0)")
            a(f"s_mov_b32 {sCnt}, 200000")
            a.label("L_wtchk")
            a(f"v_xor_b32 v{PL}, {sTG}, v{PL}")
            a(f"v_xor_b32 v{PL+1}, {sTG}, v{PL+1}")
            a(f"v_or_b32 v{PL}, v{PL}, v{PL+1}")
            a(f"v_cmp_ne_u32 vcc, 0, v{PL}")
            a("s_cbranch_vccz L_wtok")
            a(f"s_sub_u32 {sCnt}, {sCnt}, 1")
            a(f"s_cmp_eq_u32 {sCnt}, 0")
            a("s_cbranch_scc1 L_wtok")
            a("s_sleep 2")
            poll_issue()
            a("s_waitcnt vmcnt(0)")
            a("s_branch L_wtchk")
            a.label("L_wtok")
        extras = {t: [] for t in range(64)}
        mid = {t: [] for t in range(64)}
        extras[TA["wt"]].append(lambda: cond(0, "wtA", b_wt))
        extras[TB["wt"]].append(lambda: cond(1, "wtB", (lambda: b_wt(False)) if NF3 else b_wt))
        extras[TA["fl"]].append(lambda: cond(0, "flA", b_fl))
        if not NF3: extras[TB["fl"]].append(lambda: cond(1, "flB", b_fl))
        if NF3:
            assert TB["wt"] == 0
            extras[0].append(lambda: cond(1, "r10", lambda: self.rem_dma(10)))
            extras[1].append(lambda: cond(1, "r11", lambda: (b_f2(), self.rem_dma(11, yk=False))))
            extras[2].append(lambda: cond(1, "r12", lambda: self.rem_dma(12)))
            extras[3].append(lambda: cond(1, "r13", lambda: self.rem_dma(13, yk=False)))
            extras[4].append(lambda: cond(1, "r8", lambda: (self.qd_check(), self.rem_dma(8))))
            extras[5].append(lambda: cond(1, "r9", lambda: self.rem_dma(9, yk=False)))
            extras[X.get("Bfl3", 7)].append(lambda: cond(1, "flB", b_fl2))
            NE = X.get("ne", 8)
            T1 = 5
            T2 = 8 + 16 - 3
            mid[T1].append(fchk_read(16)); extras[T1].append(fchk(16))
            mid[T2].append(fchk_read(32)); extras[T2].append(fchk(32))
            T3 = 37
            mid[T3].insert(0, fchk_read(80)); extras[T3].append(fchk(80))
            if self.prof:
                extras[T1].append(lambda: self.stamp("f1ok"))
                extras[T2].append(lambda: self.stamp("f2ok"))
        else:
            extras[TA["bar"]].append(b_bar)
        extras[TA["sw"]].append(lambda: cond(0, "swA", lambda: a("s_setprio 0")))
        def dirty():
            n = X["dirty"]
            a(f"s_lshl_b32 {sA}, {sID}, 3")
            a(f"s_add_u32 {sA}, {sA}, {sW}")
            a(f"s_mul_i32 {sA}, {sA}, {n*1024}")
            a(f"s_add_u32 {sA}, {sA}, {WS_DBG}")
            for i in range(n):
                a(f"buffer_store_dwordx4 v[4:7], v2, {srd(SRD_WS)}, {sA} offen")
                a(f"s_add_u32 {sA}, {sA}, 1024")
        if X.get("dirty"): extras[20].append(dirty)
        D_ = vr(W1H[25], 4) if (X.get("spread", 1) and not X.get("w1first")) else vr(WOH[15], 4)
        sPA, sPB = "s70", "s71"
        def pt_addr():
            a(f"s_lshl_b32 {sA}, {sM}, 2")
            a(f"s_lshl_b32 {sB}, {sFT}, 1")
            a(f"s_add_u32 {sA}, {sA}, {sB}")
            a(f"s_add_u32 {sA}, {sA}, {sKH}")
            a(f"s_lshl_b32 {sA}, {sA}, 1")
            a(f"s_add_u32 {sA}, {sA}, {sTT}")
            a(f"s_lshl_b32 {sB}, {sA}, 10")
            a(f"s_lshl_b32 {sD}, {sC}, 16")
            a(f"s_add_u32 {sPA}, {sB}, {sD}")
            a(f"s_lshr_b32 {sB}, {sA}, 1")
            a(f"s_lshl_b32 {sE_}, {sTT}, 5")
            a(f"s_add_u32 {sB}, {sB}, {sE_}")
            a(f"s_lshl_b32 {sB}, {sB}, 8")
            a(f"s_lshl_b32 {sE_}, {sC}, 14")
            a(f"s_add_u32 {sB}, {sB}, {sE_}")
            a(f"s_add_u32 s72, {sB}, {WS_ST}")
            a(f"s_mul_i32 {sA}, {sM}, 7")
            a(f"s_add_u32 {sA}, {sA}, {sW}")
            a(f"s_min_u32 {sA}, {sA}, 55")
            a(f"s_lshl_b32 {sB}, {sA}, 12")
            a(f"s_mul_i32 {sD}, {sC}, {224*1024}")
            a(f"s_add_u32 {sB}, {sB}, {sD}")
            a(f"s_add_u32 {sPB}, {sB}, {WS_HID}")
        def pt_o():
            a(f"s_add_u32 {sA}, {sPA}, {WS_O}")
            a(f"buffer_load_dwordx4 {D_}, v2, {srd(SRD_WS)}, {sA} offen sc1")
        def pt_h():
            a(f"s_add_u32 {sA}, {sPA}, {WS_H}")
            a(f"buffer_load_dwordx4 {D_}, v2, {srd(SRD_WS)}, {sA} offen sc1")
        def pt_st():
            a("s_mov_b64 exec, 0xffff")
            a(f"buffer_load_dwordx4 {D_}, v2, {srd(SRD_WS)}, s72 offen sc1")
            lab = a.newlabel("L_ptf")
            a(f"s_cmp_eq_u32 {sW}, 7")
            a(f"s_cbranch_scc0 {lab}")
            a(f"s_lshl_b32 {sB}, {sC}, 8")
            for fl in (WS_FLO, WS_FLH, WS_FLHID):
                a(f"s_add_u32 {sA}, {sB}, {fl}")
                a(f"buffer_load_dwordx4 {D_}, v2, {srd(SRD_WS)}, {sA} offen sc1")
            a.label(lab)
            a("s_mov_b64 exec, -1")
        def pt_hid(p):
            def f():
                lab = a.newlabel("L_pth")
                a(f"s_cmp_eq_u32 {sW}, 7")
                a(f"s_cbranch_scc1 {lab}")
                a(f"buffer_load_dwordx4 {D_}, v2, {srd(SRD_WS)}, {sPB} offen offset:{p*1024} sc1")
                a.label(lab)
            return f
        if X.get("pt"):
            t0, stp = X["pt"], X.get("ptstep", 2)
            PM = X.get("ptm", 9)
            seq = []
            if PM & 1: seq += [pt_o, pt_h, pt_st]
            if PM & 8: seq += [pt_hid(p) for p in range(4)]
            extras[t0 - 1].append(pt_addr)
            for n, f in enumerate(seq): extras[t0 + n * stp].append(f)
            assert t0 + (len(seq) - 1) * stp < 52
        def own():
            D = "v[4:7]"
            def body(mod):
                a(f"s_lshl_b32 {sA}, {sM}, 2")
                a(f"s_lshl_b32 {sB}, {sFT}, 1")
                a(f"s_add_u32 {sA}, {sA}, {sB}")
                a(f"s_add_u32 {sA}, {sA}, {sKH}")
                a(f"s_lshl_b32 {sA}, {sA}, 1")
                a(f"s_add_u32 {sA}, {sA}, {sTT}")
                a(f"s_lshl_b32 {sB}, {sA}, 10")
                a(f"s_lshl_b32 {sD}, {sC}, 16")
                a(f"s_add_u32 {sB}, {sB}, {sD}")
                a(f"s_add_u32 {sE_}, {sB}, {WS_O}")
                a(f"buffer_store_dwordx4 {D}, v2, {srd(SRD_WS)}, {sE_} offen{mod}")
                a(f"s_add_u32 {sE_}, {sB}, {WS_H}")
                a(f"buffer_store_dwordx4 {D}, v2, {srd(SRD_WS)}, {sE_} offen{mod}")
                a(f"s_lshr_b32 {sB}, {sA}, 1")
                a(f"s_lshl_b32 {sE_}, {sTT}, 5")
                a(f"s_add_u32 {sB}, {sB}, {sE_}")
                a(f"s_lshl_b32 {sB}, {sB}, 8")
                a(f"s_lshl_b32 {sE_}, {sC}, 14")
                a(f"s_add_u32 {sB}, {sB}, {sE_}")
                a(f"s_add_u32 {sB}, {sB}, {WS_ST}")
                a("s_mov_b64 exec, 0xffff")
                a(f"buffer_store_dwordx4 {D}, v2, {srd(SRD_WS)}, {sB} offen{mod}")
                a("s_mov_b64 exec, -1")
                if X.get("ownout", 1):
                    a("v_and_b32 v59, 31, v1")
                    a("v_lshlrev_b32 v59, 10, v59")
                    a("v_lshrrev_b32 v3, 5, v1")
                    a("v_lshl_or_b32 v59, v3, 4, v59")
                    a(f"s_lshl_b32 {sB}, {sTT}, 5")
                    a(f"s_add_u32 {sB}, {sB}, {sT0}")
                    a(f"s_lshl_b32 {sB}, {sB}, 10")
                    a(f"s_lshl_b32 {sE_}, {sM}, 7")
                    a(f"s_add_u32 {sB}, {sB}, {sE_}")
                    a(f"s_lshl_b32 {sE_}, {sFT}, 6")
                    a(f"s_add_u32 {sB}, {sB}, {sE_}")
                    a(f"s_lshl_b32 {sE_}, {sKH}, 5")
                    a(f"s_add_u32 {sB}, {sB}, {sE_}")
                    a(f"buffer_store_dwordx4 {D}, v59, {srd(SRD_OUT)}, {sB} offen")
                if False:
                    a(f"s_lshl_b32 {sA}, {sC}, 19")
                    a(f"s_lshl_b32 {sB}, {sW}, 16")
                    a(f"s_add_u32 {sA}, {sA}, {sB}")
                    a(f"s_lshl_b32 {sB}, {sM}, 10")
                    a(f"s_add_u32 {sA}, {sA}, {sB}")
                    a(f"s_add_u32 {sA}, {sA}, {WS_P}")
                    for p in range(8):
                        a(f"buffer_store_dwordx4 {D}, v2, {srd(SRD_WS)}, {sA} offen{mod}")
                        a(f"s_add_u32 {sA}, {sA}, 8192")
                else:
                    a(f"s_cmp_eq_u32 {sW}, 7")
                    lab = a.newlabel("L_own7")
                    a(f"s_cbranch_scc1 {lab}")
                    a(f"s_mul_i32 {sA}, {sM}, 7")
                    a(f"s_add_u32 {sA}, {sA}, {sW}")
                    a(f"s_lshl_b32 {sB}, {sA}, 12")
                    a(f"s_mul_i32 {sD}, {sC}, {224*1024}")
                    a(f"s_add_u32 {sB}, {sB}, {sD}")
                    a(f"s_add_u32 {sB}, {sB}, {WS_HID}")
                    for p in range(4):
                        a(f"buffer_store_dwordx4 {D}, v2, {srd(SRD_WS)}, {sB} offen offset:{p*1024}{mod}")
                    a.label(lab)
            l1, l2 = a.newlabel("L_ownS"), a.newlabel("L_ownD")
            a(f"s_cmp_eq_u32 {sFast}, 0")
            a(f"s_cbranch_scc0 {l1}")
            body("")
            a(f"s_branch {l2}")
            a.label(l1)
            body(" sc1")
            a.label(l2)
        if X.get("own"): extras[X["own"]].append(own)
        for k in ("ts1", "ts2", "ts3", "ts4", "ts5", "ts6"):
            if X.get(k) is not None:
                extras[X[k]].append(lambda k=k: self.stamp(k))
        if NF3:
            extras[6].append(epoch)
            mid[22].append(lambda: a.ds(f"ds_read_b64 v[62:63], v61 offset:{BCO}", "bc"))
            extras[22].append(lambda: (a.wait_lg("bc"), bound_check()))
        else:
            extras[1].append(epoch)
            extras[0].insert(0, bound_check)
        extras[TPOLL].append(poll_issue)
        extras[TCHK - 1].append(poll_check)
        def w1load(s_):
            def f():
                a(f"buffer_load_dwordx4 {vr(W1H[s_],4)}, v2, {srd(SRD_WS)}, {sW1B} offen offset:{(s_%4)*1024} sc1")
                if s_ % 4 == 3 and not X.get("fakew"): a(f"s_add_u32 {sW1B}, {sW1B}, 4096")
            return f
        def wo_addr():
            a(f"s_lshl_b32 {sA}, {sM}, 1")
            a(f"s_add_u32 {sA}, {sA}, {sFT}")
            a(f"s_lshl_b32 {sA}, {sA}, 5")
            a(f"s_lshl_b32 {sB}, {sKH}, 4")
            a(f"s_add_u32 {sA}, {sA}, {sB}")
            a(f"s_lshl_b32 {sA}, {sA}, 10")
            a(f"s_add_u32 {sWOB}, {sA}, {WS_WOF}")
            a(f"s_lshl_b32 {sB}, {sKH}, 8")
            a(f"v_xor_b32 v57, {sB}, v2")
        extras[TCHK - 1].append(wo_addr)
        if X.get("fakew"):
            extras[TCHK - 1].append(lambda: (a(f"s_mov_b32 {sW1B}, {WS_W1F}"), a(f"s_mov_b32 {sWOB}, {WS_WOF}")))
        def woload(i):
            def f():
                a(f"buffer_load_dwordx4 {vr(WOH[i],4)}, v57, {srd(SRD_WS)}, {sWOB} offen offset:{(i%4)*1024} sc1")
                if i % 4 == 3 and i < 15 and not X.get("fakew"): a(f"s_add_u32 {sWOB}, {sWOB}, 4096")
            return f
        if X.get("spread", 1):
            seq = [woload(i) for i in range(16)] + [w1load(s_) for s_ in range(NW1PRE)]
            if X.get("w1first"): seq = seq[16:] + seq[:16]
            TEND = X.get("tend", 63)
            ntile = TEND - TLD0 + 1
            for n, f in enumerate(seq):
                mid[TLD0 + (n * ntile) // len(seq)].append(f)
            TWO = TLD0
        else:
            for s_ in range(NW1PRE):
                mid[TLD0 + s_ // 2].append(w1load(s_))
            TWO = TLD0 + NW1PRE // 2
            for i in range(16):
                mid[TWO + i // 2].append(woload(i))

        def pf_addr():
            a(f"s_lshl_b32 {sA}, {sM}, 1")
            a(f"s_add_u32 {sA}, {sA}, {sFT}")
            a(f"s_mul_i32 {sA}, {sA}, 112")
            a(f"s_and_b32 {sB}, {sW}, 3")
            a(f"s_mul_i32 {sB}, {sB}, 28")
            a(f"s_add_u32 {sA}, {sA}, {sB}")
            a(f"s_lshl_b32 {sA}, {sA}, 10")
            a(f"s_add_u32 {sPF}, {sA}, {WS_W2F}")
            a("v_lshlrev_b32 v58, 6, v1")
        def pf(i):
            def f():
                a(f"buffer_load_dword v59, v58, {srd(SRD_WS)}, {sPF} offen sc1")
                a(f"s_add_u32 {sPF}, {sPF}, 4096")
            return f
        def pf_w1():
            a(f"s_add_u32 {sPF}, {sW1B}, 2048")
            a(f"buffer_load_dword v59, v58, {srd(SRD_WS)}, {sPF} offen sc1")
            a(f"buffer_load_dword v59, v58, {srd(SRD_WS)}, {sPF} offen offset:2048 sc1")
        if X.get("pf"):
            TPF = TWO + 8
            extras[TPF - 1].append(pf_addr)
            for i in range(7): mid[TPF + i].append(pf(i))
            mid[TPF + 7].append(pf_w1)

        a.lg = []
        if not NF3: a.ds("ds_read_b64 v[62:63], v61", "bc")
        kread(0); kread(1); vread(0)
        ms(0)
        a("s_nop 11")
        for t in range(64):
            E(t, 0, 1)
            if t > 0: sm(t - 1, 1)
            if t + 1 < 64: vread(t + 1)
            E(t, 2, 5)
            if t + 1 < 64: ms(t + 1)
            if t + 2 < 64: kread(t + 2)
            if mid[t]: mid[t][0]()
            E(t, 6, 11)
            sm(t, 0)
            for f in mid[t][1:]: f()
            E(t, 12, 15)
            for f in extras[t]: f()
        a("s_nop 1")
        sm(63, 1)
        a("s_setprio 0")
        self.stamp("attn")
        a("s_nop 7")
        a("s_nop 3")
        a(f"v_rcp_f32 v3, v{O+8}")
        a(f"v_mul_f32 v80, 0, v{O}")
        a(f"v_mul_f32 v81, 0, v{O+1}")
        for i in range(2, 8, 2):
            a(f"v_fma_f32 v80, v{O+i}, 0, v80")
            a(f"v_fma_f32 v81, v{O+i+1}, 0, v81")
        a("v_add_f32 v80, v80, v81")
        a("v_cmp_u_f32 vcc, v80, v80")
        a("s_cmp_lg_u64 vcc, 0")
        a(f"s_cselect_b32 {sA}, 1, 0")
        a(f"s_or_b32 {sA}, {sA}, {sG}")
        a(f"s_cmp_eq_u32 {sA}, 0")
        a("s_cbranch_scc1 L_nofb")
        a(f"v_mov_b32 v57, {vKa}")
        a("v_mov_b32 v58, 0xff800000")
        a(f"s_mov_b32 {sCnt}, 64")
        a.label("L_fb")
        a(f"ds_read_b128 {vr(KF,4)}, v57")
        if NF3:
            a(f"s_cmp_eq_u32 {sCnt}, 19")
            a("s_cselect_b32 s4, 2, 1")
            a("s_lshl_b32 s4, s4, 11")
            a("v_add_u32 v57, s4, v57")
        else:
            a("v_add_u32 v57, 2048, v57")
        a("s_waitcnt lgkmcnt(0)")
        a(f"v_mfma_f32_32x32x16_bf16 {vr(S0,16)}, {vr(KF,4)}, {vr(Q,4)}, 0")
        for i in range(8):
            a(f"v_max3_f32 v58, v{S0+2*i}, v{S0+2*i+1}, v58")
        a(f"s_sub_u32 {sCnt}, {sCnt}, 1")
        a(f"s_cmp_lg_u32 {sCnt}, 0")
        a("s_cbranch_scc1 L_fb")
        a("v_mov_b32 v57, v58")
        a("v_permlane32_swap_b32 v57, v58")
        a("v_max_f32 v58, v57, v58")
        a(f"v_sub_f32 v{S1}, 0, v58")
        for i in range(1, 16):
            a(f"v_mov_b32 v{S1+i}, v{S1}")
        for i in range(16):
            a(f"v_mov_b32 v{O+i}, 0")
        a(f"v_mov_b32 v57, {vKa}")
        a(f"v_mov_b32 v58, {vVa}")
        a(f"s_mov_b32 {sCnt}, 64")
        a.label("L_fb2")
        a(f"ds_read_b128 {vr(KF,4)}, v57")
        a("s_mov_b64 exec, s[6:7]")
        a(f"ds_read_b128 {vr(VF,4)}, v58")
        a(f"ds_read_b128 {vr(VF+4,4)}, v58 offset:512")
        a("s_mov_b64 exec, -1")
        if NF3:
            a(f"s_cmp_eq_u32 {sCnt}, 19")
            a("s_cselect_b32 s4, 2, 1")
            a("s_lshl_b32 s4, s4, 11")
            a("v_add_u32 v57, s4, v57")
            a("v_add_u32 v58, s4, v58")
        else:
            a("v_add_u32 v57, 2048, v57")
            a("v_add_u32 v58, 2048, v58")
        a("s_waitcnt lgkmcnt(0)")
        a(f"v_mfma_f32_32x32x16_bf16 {vr(S0,16)}, {vr(KF,4)}, {vr(Q,4)}, {vr(S1,16)}")
        for i in range(16):
            a(f"v_exp_f32 v{S0+i}, v{S0+i}")
        a(f"v_smfmac_f32_32x32x32_bf16 {vr(O,16)}, {vr(VF,4)}, {vr(S0,8)}, v{IDX}")
        a(f"v_smfmac_f32_32x32x32_bf16 {vr(O,16)}, {vr(VF+4,4)}, {vr(S0+8,8)}, v{IDX}")
        a(f"s_sub_u32 {sCnt}, {sCnt}, 1")
        a(f"s_cmp_lg_u32 {sCnt}, 0")
        a("s_nop 7")
        a("s_nop 7")
        a("s_cbranch_scc1 L_fb2")
        a(f"v_rcp_f32 v3, v{O+8}")
        a.label("L_nofb")
        OP = 40
        for i in range(8):
            a(f"v_mul_f32 v{O+i}, v3, v{O+i}")
        for i in range(4):
            a(f"v_cvt_pk_bf16_f32 v{OP+i}, v{O+2*i}, v{O+2*i+1}")
        a(f"s_lshl_b32 s88, {sM}, 2")
        a(f"s_lshl_b32 {sB}, {sFT}, 1")
        a(f"s_add_u32 s88, s88, {sB}")
        a(f"s_add_u32 s88, s88, {sKH}")
        a(f"s_lshl_b32 {sB}, s88, 1")
        a(f"s_add_u32 {sB}, {sB}, {sTT}")
        a(f"s_lshl_b32 {sB}, {sB}, 10")
        a(f"s_lshl_b32 {sD}, {sC}, 16")
        a(f"s_add_u32 {sB}, {sB}, {sD}")
        a(f"s_add_u32 {sB}, {sB}, {WS_O}")
        a(f"s_lshl_b32 {sD}, {sTT}, 5")
        a(f"s_add_u32 {sD}, {sD}, s88")
        a(f"s_lshl_b32 {sD}, {sD}, 2")
        a(f"s_lshl_b32 {sE_}, {sC}, 8")
        a(f"s_add_u32 {sD}, {sD}, {sE_}")
        a(f"s_add_u32 {sD}, {sD}, {WS_FLO}")
        self.publish("o", [("dwordx4", vr(OP, 4), "v2", sB, 0)], sD)
        self.stamp("opub")

    def wt_addr(self, vT1, vT2, T=(61, 62, 63)):
        a = self.a
        LDS_E = 132 * 1024
        a(f"v_bfe_u32 v{T[0]}, v1, 2, 2")
        a(f"v_lshrrev_b32 v{T[1]}, 5, v1")
        a(f"v_lshl_add_u32 v{T[1]}, v{T[1]}, 2, v{T[0]}")
        a(f"v_lshlrev_b32 v{T[1]}, 7, v{T[1]}")
        a(f"v_bfe_u32 v{T[2]}, v1, 4, 1")
        a(f"v_lshlrev_b32 v{T[2]}, 5, v{T[2]}")
        a(f"v_and_b32 v{T[0]}, 3, v1")
        a(f"v_lshl_add_u32 v{T[2]}, v{T[0]}, 3, v{T[2]}")
        a(f"v_bfe_u32 v{T[0]}, v1, 3, 1")
        a(f"v_lshlrev_b32 v{T[0]}, 6, v{T[0]}")
        a(f"v_xor_b32 v{T[2]}, v{T[2]}, v{T[0]}")
        a(f"v_add_u32 v{T[1]}, v{T[1]}, v{T[2]}")
        a(f"s_xor_b32 {sA}, {sW}, 1")
        a(f"s_lshl_b32 {sA}, {sA}, 11")
        a(f"s_add_u32 {sA}, {sA}, {LDS_E}")
        a(f"v_add_u32 {vT1}, {sA}, v{T[1]}")
        a(f"v_xor_b32 {vT2}, 64, {vT1}")

    def wt_poll_addr(self):
        a = self.a
        L_pa7, L_pad = a.newlabel("L_pa7"), a.newlabel("L_pad")
        a(f"s_cmp_eq_u32 {sW}, 7")
        a(f"s_cbranch_scc1 {L_pa7}")
        a(f"s_mul_i32 {sA}, {sM}, 7")
        a(f"s_add_u32 {sA}, {sA}, {sW}")
        a(f"s_lshl_b32 {sW1B}, {sA}, 15")
        a(f"s_add_u32 {sW1B}, {sW1B}, {WS_W1F}")
        a(f"s_lshr_b32 {sA}, {sA}, 1")
        a(f"s_lshl_b32 {sA}, {sA}, 5")
        a(f"s_add_u32 {sA}, {sA}, 256")
        a(f"s_branch {L_pad}")
        a.label(L_pa7)
        a(f"s_lshl_b32 {sA}, {sM}, 1")
        a(f"s_add_u32 {sA}, {sA}, 1")
        a(f"s_mul_i32 {sA}, {sA}, 112")
        a(f"s_add_u32 {sA}, {sA}, 98")
        a(f"s_lshl_b32 {sW1B}, {sA}, 10")
        a(f"s_add_u32 {sW1B}, {sW1B}, {WS_W2F}")
        a(f"s_mul_i32 {sA}, {sM}, 112")
        a(f"s_add_u32 {sA}, {sA}, {1152 + 80}")
        a.label(L_pad)
        a(f"s_lshl_b32 {sB}, {sM}, 5")
        a(f"s_sub_u32 {sB}, {sB}, 32")
        a(f"v_mov_b32 v57, {sA}")
        a(f"v_mov_b32 v58, {sB}")
        a("v_cmp_gt_u32 vcc, 32, v1")
        a("v_cndmask_b32 v57, v58, v57, vcc")
        a("v_add_u32 v57, v57, v1")
        a("v_lshlrev_b32 v57, 2, v57")
        a(f"v_add_u32 v57, {WS_FLWT2}, v57")
        a(f"s_mul_i32 {sA}, {sM}, 112")
        a(f"s_mul_i32 {sB}, {sW}, 14")
        a(f"s_add_u32 {sA}, {sA}, {sB}")
        a(f"s_add_u32 {sA}, {sA}, 1152")
        a("v_min_u32 v58, 13, v1")
        a(f"v_add_u32 v58, {sA}, v58")
        a("v_lshlrev_b32 v58, 2, v58")
        a(f"v_add_u32 v58, {WS_FLWT2}, v58")

    def publish(self, name, stores, sflag, pre_exec=None):
        a = self.a
        a(f"v_mov_b32 v104, s3")
        a(f"v_mov_b32 v105, 0")
        a(f"s_cmp_eq_u32 {sFast}, 0")
        a(f"s_cbranch_scc0 L_pub_slow_{name}")
        for variant, mod in (("fast", ""), ("slow", " sc1")):
            if variant == "slow": a.label(f"L_pub_slow_{name}")
            for st in stores:
                ty, data, voff, soff, io = st[:5]
                if len(st) > 5: a(f"s_mov_b32 exec_hi, 0")
                a(f"buffer_store_{ty} {data}, {voff}, {srd(SRD_WS)}, {soff} offen offset:{io}{mod}")
                if len(st) > 5: a("s_mov_b64 exec, -1")
            a("s_waitcnt vmcnt(0)")
            a("s_mov_b64 exec, 1")
            a(f"buffer_store_dword v104, v105, {srd(SRD_WS)}, {sflag} offen{mod}")
            a("s_mov_b64 exec, -1")
            if variant == "fast": a(f"s_branch L_pub_done_{name}")
        a.label(f"L_pub_done_{name}")

    def wt_issue(self, phase=None):
        a = self.a
        LDS_E = 132 * 1024
        if phase == "go":
            a("s_mov_b32 m0, s64")
            a(f"buffer_load_dwordx4 v123, {srd(SRD_T)}, s87 offen lds")
            a("s_add_u32 m0, s64, 1024")
            a(f"buffer_load_dwordx4 v123, {srd(SRD_T)}, s73 offen lds")
            return
        Lw1, Lwo, Lgo = a.newlabel("L_wt_w1"), a.newlabel("L_wt_wo"), a.newlabel("L_wt_go")
        a(f"s_lshl_b32 {sA}, {sID}, 3")
        a(f"s_add_u32 {sA}, {sA}, {sW}")
        a(f"s_cmp_lt_u32 {sA}, 256")
        a(f"s_cbranch_scc1 {Lwo}")
        a(f"s_cmp_lt_u32 {sA}, 1152")
        a(f"s_cbranch_scc1 {Lw1}")
        a(f"s_sub_u32 {sA}, {sA}, 1152")
        a(f"s_mul_i32 {sB}, {sA}, 9363")
        a(f"s_lshr_b32 {sB}, {sB}, 20")
        a(f"s_mul_i32 {sD}, {sB}, 112")
        a(f"s_sub_u32 {sD}, {sA}, {sD}")
        for i in range(4): a(f"s_mov_b32 s{SRD_T+i}, s{SRD_W2+i}")
        a(f"s_mov_b32 {sF}, 1024")
        a(f"s_mul_i32 s88, {sB}, {2*112}")
        a(f"s_add_u32 s88, s88, {sD}")
        a("s_lshl_b32 s88, s88, 10")
        a(f"s_add_u32 s88, s88, {WS_W2F}")
        a(f"s_mov_b32 s89, {112*1024}")
        a(f"s_branch {Lgo}")
        a.label(Lw1)
        a(f"s_sub_u32 {sA}, {sA}, 256")
        a(f"s_lshr_b32 {sB}, {sA}, 5")
        a(f"s_and_b32 {sD}, {sA}, 31")
        for i in range(4): a(f"s_mov_b32 s{SRD_T+i}, s{SRD_W1+i}")
        a(f"s_mov_b32 {sF}, 3584")
        a(f"s_lshl_b32 s88, {sB}, 6")
        a(f"s_add_u32 s88, s88, {sD}")
        a("s_lshl_b32 s88, s88, 10")
        a(f"s_add_u32 s88, s88, {WS_W1F}")
        a(f"s_mov_b32 s89, {32*1024}")
        a(f"s_branch {Lgo}")
        a.label(Lwo)
        a(f"s_lshr_b32 {sB}, {sA}, 5")
        a(f"s_and_b32 {sD}, {sA}, 31")
        for i in range(4): a(f"s_mov_b32 s{SRD_T+i}, s{SRD_WO+i}")
        a(f"s_mov_b32 {sF}, 1024")
        a(f"s_lshl_b32 s88, {sB}, 6")
        a(f"s_add_u32 s88, s88, {sD}")
        a("s_lshl_b32 s88, s88, 10")
        a(f"s_add_u32 s88, s88, {WS_WOF}")
        a(f"s_mov_b32 s89, {32*1024}")
        a.label(Lgo)
        a(f"s_mul_i32 {sD}, {sD}, {sF}")
        a(f"s_lshl_b32 {sD}, {sD}, 4")
        a(f"s_lshl_b32 {sB}, {sB}, 7")
        a(f"s_add_u32 {sD}, {sD}, {sB}")
        if phase == "pre":
            a("v_lshrrev_b32 v123, 3, v1")
            a(f"v_mul_lo_u32 v123, v123, {sF}")
            a("v_and_b32 v120, 7, v1")
            a("v_bfe_u32 v121, v1, 4, 1")
            a("v_lshlrev_b32 v121, 2, v121")
            a("v_xor_b32 v120, v120, v121")
            a("v_lshl_add_u32 v123, v120, 4, v123")
            a(f"s_xor_b32 s64, {sW}, 1")
            a("s_lshl_b32 s64, s64, 11")
            a(f"s_add_u32 s64, s64, {LDS_E}")
            a(f"s_mov_b32 s87, {sD}")
            a(f"s_lshl_b32 {sB}, {sF}, 3")
            a(f"s_add_u32 s73, {sD}, {sB}")
            return
        a("v_lshrrev_b32 v16, 3, v1")
        a(f"v_mul_lo_u32 v16, v16, {sF}")
        a("v_and_b32 v17, 7, v1")
        a("v_bfe_u32 v18, v1, 4, 1")
        a("v_lshlrev_b32 v18, 2, v18")
        a("v_xor_b32 v17, v17, v18")
        a("v_lshl_add_u32 v16, v17, 4, v16")
        a(f"s_xor_b32 {sA}, {sW}, 1")
        a(f"s_lshl_b32 {sA}, {sA}, 11")
        a(f"s_add_u32 {sA}, {sA}, {LDS_E}")
        a(f"s_mov_b32 m0, {sA}")
        a(f"buffer_load_dwordx4 v16, {srd(SRD_T)}, {sD} offen lds")
        a(f"s_lshl_b32 {sB}, {sF}, 3")
        a(f"s_add_u32 {sD}, {sD}, {sB}")
        a(f"s_add_u32 {sA}, {sA}, 1024")
        a(f"s_mov_b32 m0, {sA}")
        a(f"buffer_load_dwordx4 v16, {srd(SRD_T)}, {sD} offen lds")

    def wt_process(self):
        a = self.a
        LDS_E = 132 * 1024
        a("v_bfe_u32 v106, v1, 2, 2")
        a("v_lshrrev_b32 v107, 5, v1")
        a("v_lshl_add_u32 v107, v107, 2, v106")
        a("v_lshlrev_b32 v107, 7, v107")
        a("v_bfe_u32 v108, v1, 4, 1")
        a("v_lshlrev_b32 v108, 5, v108")
        a("v_and_b32 v109, 3, v1")
        a("v_lshl_add_u32 v108, v109, 3, v108")
        a("v_bfe_u32 v109, v1, 3, 1")
        a("v_lshlrev_b32 v109, 6, v109")
        a("v_xor_b32 v108, v108, v109")
        a("v_add_u32 v107, v107, v108")
        a(f"s_xor_b32 {sA}, {sW}, 1")
        a(f"s_lshl_b32 {sA}, {sA}, 11")
        a(f"s_add_u32 {sA}, {sA}, {LDS_E}")
        a(f"v_add_u32 v107, {sA}, v107")
        a("v_xor_b32 v108, 64, v107")
        a("ds_read_b64_tr_b16 v[112:113], v107")
        a("ds_read_b64_tr_b16 v[114:115], v107 offset:1024")
        a("ds_read_b64_tr_b16 v[116:117], v108")
        a("ds_read_b64_tr_b16 v[118:119], v108 offset:1024")
        a("s_waitcnt lgkmcnt(0)")
        a(f"buffer_store_dwordx4 v[112:115], v2, {srd(SRD_WS)}, s88 offen sc1")
        a("s_add_u32 s88, s88, s89")
        a(f"buffer_store_dwordx4 v[116:119], v2, {srd(SRD_WS)}, s88 offen sc1")


    def colsum(self, homes, first):
        a = self.a
        n = 0
        a("s_mov_b32 s5, 0x3f803f80")
        for hm in homes:
            for i in range(4):
                r = "v106" if n % 2 == 0 else "v107"
                a(f"v_dot2_f32_bf16 {r}, v{hm+i}, s5, {'0' if (first and n < 2) else r}")
                n += 1

    def p3(self):
        a = self.a
        X_ = self.opt
        HB, X, ACC, BR = 4, 56, 24, 64
        LDS_OF, LDS_E2 = 0, 128 * 1024
        sS = "s88"
        a("v_and_b32 v3, 31, v1")
        a("v_lshlrev_b32 v3, 10, v3")
        a("v_lshrrev_b32 v104, 5, v1")
        a("v_lshl_or_b32 v3, v104, 3, v3")
        a(f"s_lshl_b32 {sA}, {sTT}, 5")
        a(f"s_add_u32 {sA}, {sA}, {sT0}")
        a(f"s_lshl_b32 {sA}, {sA}, 10")
        a(f"s_lshl_b32 {sB}, {sS}, 5")
        a(f"s_add_u32 {sA}, {sA}, {sB}")
        a(f"buffer_load_dwordx2 {vr(X,2)}, v3, {srd(SRD_X)}, {sA} offen")
        a(f"buffer_load_dwordx2 {vr(X+2,2)}, v3, {srd(SRD_X)}, {sA} offen offset:16")
        a("s_barrier")
        self.stamp("b7")
        a(f"s_cmp_eq_u32 {sW}, 7")
        a("s_cbranch_scc1 L_nocs1")
        self.colsum(W1H[:NW1PRE], True)
        a.label("L_nocs1")
        a(f"s_lshl_b32 {sA}, {sTT}, 5")
        a(f"s_lshl_b32 {sB}, {sKH}, 4")
        a(f"s_add_u32 {sA}, {sA}, {sB}")
        a(f"s_lshl_b32 {sA}, {sA}, 2")
        a(f"s_lshl_b32 {sB}, {sC}, 8")
        a(f"s_add_u32 {sA}, {sA}, {sB}")
        a(f"s_add_u32 {sA}, {sA}, {WS_FLO}")
        a("v_and_b32 v3, 15, v1")
        a("v_lshlrev_b32 v3, 2, v3")
        self.poll_begin("o")
        a(f"buffer_load_dword v104, v3, {srd(SRD_WS)}, {sA} offen sc1")
        a("s_waitcnt vmcnt(0)")
        a("v_cmp_ne_u32 vcc, s3, v104")
        self.poll_end("o", sleep=1)
        self.stamp("ook")
        a(f"s_lshl_b32 {sA}, {sKH}, 4")
        a(f"s_lshl_b32 {sB}, {sFT}, 2")
        a(f"s_add_u32 {sA}, {sA}, {sB}")
        a(f"s_lshl_b32 {sA}, {sA}, 1")
        a(f"s_add_u32 {sA}, {sA}, {sTT}")
        a(f"s_lshl_b32 {sA}, {sA}, 10")
        a(f"s_lshl_b32 {sB}, {sC}, 16")
        a(f"s_add_u32 {sB}, {sB}, {sA}")
        a(f"s_add_u32 {sB}, {sB}, {WS_O}")
        for st in range(2):
            for i in range(4):
                d = (st * 8 + i) * 2048
                a(f"s_add_u32 {sD}, {sA}, {d + LDS_OF}")
                a(f"s_add_u32 {sE_}, {sB}, {d}")
                a(f"s_mov_b32 m0, {sD}")
                a(f"buffer_load_dwordx4 v2, {srd(SRD_WS)}, {sE_} offen sc1 lds")
        nrest = 32 - NW1PRE
        a(f"s_lshl_b32 {sA}, {sKH}, 15")
        a(f"s_lshl_b32 {sB}, {sTT}, 10")
        a(f"s_add_u32 {sA}, {sA}, {sB}")
        a(f"v_add_u32 v104, {sA}, v2")
        def late_loads():
            for s_ in range(NW1PRE, 32):
                a(f"buffer_load_dwordx4 {vr(W1H[s_],4)}, v2, {srd(SRD_WS)}, {sW1B} offen offset:{(s_%4)*1024} sc1")
                if s_ % 4 == 3 and s_ < 31: a(f"s_add_u32 {sW1B}, {sW1B}, 4096")
        a.lg = []
        for st in range(2):
            a(f"s_waitcnt vmcnt({4 if st == 0 else 0})")
            a("s_barrier")
            for i in range(8):
                a.ds(f"ds_read_b128 {vr(BR+4*i,4)}, v104 offset:{(st*8+i)*2048}", f"b{st}{i}")
            if st == 1: late_loads()
            for i in range(8):
                a.wait_lg(f"b{st}{i}")
                k = st * 8 + i
                srcC = "0" if k == 0 else vr(ACC, 16)
                a(f"v_mfma_f32_32x32x16_bf16 {vr(ACC,16)}, {vr(WOH[k],4)}, {vr(BR+4*i,4)}, {srcC}")
        self.stamp("p3mm")
        a(f"s_lshl_b32 {sA}, {sW}, 11")
        a(f"s_add_u32 {sA}, {sA}, {LDS_E2}")
        a(f"v_add_u32 v104, {sA}, v2")
        a(f"ds_write_b128 v104, {vr(ACC+8,4)}")
        a(f"ds_write_b128 v104, {vr(ACC+12,4)} offset:1024")
        a("s_waitcnt lgkmcnt(0)")
        a("s_barrier")
        a("v_xor_b32 v104, 8192, v104")
        a(f"ds_read_b128 {vr(BR,4)}, v104")
        a(f"ds_read_b128 {vr(BR+4,4)}, v104 offset:1024")
        for i in range(4):
            a(f"v_lshlrev_b32 v{BR+8+2*i}, 16, v{X+i}")
            a(f"v_and_b32 v{BR+9+2*i}, 0xffff0000, v{X+i}")
        a(f"s_lshl_b32 {sA}, {sS}, 1")
        a(f"s_add_u32 {sA}, {sA}, {sTT}")
        a(f"s_lshl_b32 {sA}, {sA}, 10")
        a(f"s_lshl_b32 {sB}, {sC}, 16")
        a(f"s_add_u32 {sA}, {sA}, {sB}")
        a(f"s_add_u32 {sA}, {sA}, {WS_H}")
        a(f"s_lshl_b32 {sD}, {sTT}, 5")
        a(f"s_add_u32 {sD}, {sD}, {sS}")
        a(f"s_lshl_b32 {sD}, {sD}, 2")
        a(f"s_lshl_b32 {sE_}, {sC}, 8")
        a(f"s_add_u32 {sD}, {sD}, {sE_}")
        a(f"s_add_u32 {sD}, {sD}, {WS_FLH}")
        for i in range(8):
            a(f"v_add_f32 v{ACC+i}, v{ACC+i}, v{BR+8+i}")
        a("s_waitcnt lgkmcnt(0)")
        for i in range(8):
            a(f"v_add_f32 v{ACC+i}, v{ACC+i}, v{BR+i}")
        for i in range(4):
            a(f"v_cvt_pk_bf16_f32 v{HB+i}, v{ACC+2*i}, v{ACC+2*i+1}")
        a("s_mov_b32 s5, 0x3f803f80")
        a(f"v_dot2_f32_bf16 v56, v{HB}, s5, 0")
        a(f"v_dot2_f32_bf16 v57, v{HB}, v{HB}, 0")
        for i in range(1, 4):
            a(f"v_dot2_f32_bf16 v56, v{HB+i}, s5, v56")
            a(f"v_dot2_f32_bf16 v57, v{HB+i}, v{HB+i}, v57")
        a("v_mov_b32 v58, v56")
        a("v_mov_b32 v59, v57")
        a("v_permlane32_swap_b32 v56, v58")
        a("v_permlane32_swap_b32 v57, v59")
        a("v_add_f32 v56, v56, v58")
        a("v_add_f32 v57, v57, v59")
        a(f"s_lshl_b32 {sB}, {sTT}, 5")
        a(f"s_add_u32 {sB}, {sB}, {sS}")
        a(f"s_lshl_b32 {sB}, {sB}, 8")
        a(f"s_lshl_b32 {sE_}, {sC}, 14")
        a(f"s_add_u32 {sB}, {sB}, {sE_}")
        a(f"s_add_u32 {sB}, {sB}, {WS_ST}")
        a("v_lshlrev_b32 v3, 3, v1")
        self.publish("h", [("dwordx4", vr(HB, 4), "v2", sA, 0), ("dwordx2", "v[56:57]", "v3", sB, 0, "lo32")], sD)
        self.stamp("hpub")

    def w2load(self, f, i):
        a = self.a
        hm = (W2H0 if f == 0 else W2H1)[i]
        off = (f * 112 + i) * 1024
        a(f"s_add_u32 {sA}, s89, {off}")
        a(f"buffer_load_dwordx4 {vr(hm,4)}, v2, {srd(SRD_WS)}, {sA} offen sc1")

    def p4(self):
        a = self.a
        HB, ACC, BR = 4, 64, 108
        LDS_HF, LDS_ST2, LDS_CS1, LDS_B1 = 64 * 1024, 144 * 1024, 145 * 1024, 146 * 1024
        a(f"s_mul_i32 {sA}, {sM}, 224")
        a(f"s_mul_i32 {sB}, {sW}, 14")
        a(f"s_add_u32 {sA}, {sA}, {sB}")
        a(f"s_lshl_b32 {sA}, {sA}, 10")
        a(f"s_add_u32 s89, {sA}, {WS_W2F}")
        for i in range(NW2E): self.w2load(0, i)
        a(f"s_cmp_eq_u32 {sW}, 7")
        a("s_cbranch_scc1 L_p4_pre7")
        self.colsum(W1H[NW1PRE:], False)
        a("v_add_f32 v106, v106, v107")
        a("v_mov_b32 v107, v106")
        a("v_permlane32_swap_b32 v106, v107")
        a("v_add_f32 v106, v106, v107")
        a("v_and_b32 v107, 31, v1")
        a("v_lshlrev_b32 v107, 2, v107")
        a(f"s_lshl_b32 {sA}, {sW}, 7")
        a(f"s_add_u32 {sA}, {sA}, {LDS_CS1}")
        a(f"v_add_u32 v107, {sA}, v107")
        a("ds_write_b32 v107, v106")
        a("s_branch L_p4_pre")
        a.label("L_p4_pre7")
        a(f"s_mul_i32 {sA}, {sM}, 448")
        a("v_lshlrev_b32 v3, 3, v1")
        a("v_min_u32 v3, 440, v3")
        a(f"buffer_load_dwordx2 v[106:107], v3, {srd(SRD_B1)}, {sA} offen")
        a("s_waitcnt vmcnt(0)")
        a("v_lshlrev_b32 v108, 16, v106")
        a("v_and_b32 v109, 0xffff0000, v106")
        a("v_lshlrev_b32 v110, 16, v107")
        a("v_and_b32 v111, 0xffff0000, v107")
        for i in range(4): a(f"v_mul_f32 v{108+i}, 0.5, v{108+i}")
        a("v_lshlrev_b32 v3, 1, v3")
        a(f"v_add_u32 v3, {LDS_B1}, v3")
        a("ds_write_b128 v3, v[108:111]")
        a.label("L_p4_pre")
        a(f"s_lshl_b32 {sA}, {sC}, 8")
        a(f"s_add_u32 {sA}, {sA}, {WS_FLH}")
        a("v_lshlrev_b32 v3, 2, v1")
        self.poll_begin("h")
        a(f"buffer_load_dword v104, v3, {srd(SRD_WS)}, {sA} offen sc1")
        a("s_waitcnt vmcnt(0)")
        a("v_cmp_ne_u32 vcc, s3, v104")
        self.poll_end("h", sleep=1)
        self.stamp("hok")
        a(f"s_lshl_b32 s67, {sW}, 11")
        a(f"s_lshl_b32 {sB}, {sC}, 16")
        a(f"s_add_u32 {sB}, {sB}, s67")
        a(f"s_add_u32 s68, {sB}, {WS_H}")
        def hdma(i):
            for tt in range(2):
                d = i * 8 * 2048 + tt * 1024
                a(f"s_add_u32 {sD}, s67, {d + LDS_HF}")
                a(f"s_add_u32 {sE_}, s68, {d}")
                a(f"s_mov_b32 m0, {sD}")
                a(f"buffer_load_dwordx4 v2, {srd(SRD_WS)}, {sE_} offen sc1 lds")
        hdma(0); hdma(1)
        a(f"v_add_u32 v104, {LDS_HF}, v2")
        a("s_waitcnt vmcnt(2)")
        a("s_barrier")
        self.stamp("f1a")
        hdma(2); hdma(3)
        a(f"s_cmp_eq_u32 {sW}, 7")
        a("s_cbranch_scc1 L_p4_w7")
        a.lg = []
        NR = 3
        def hread(k):
            sl = k % NR
            a.ds(f"ds_read_b128 {vr(BR+8*sl,4)}, v104 offset:{k*2048}", f"h{k}")
            a.ds(f"ds_read_b128 {vr(BR+8*sl+4,4)}, v104 offset:{k*2048+1024}", f"h{k}")
        for k in range(NR - 1): hread(k)
        lst = [(0, i) for i in range(NW2E, 14)] + [(1, i) for i in range(14)]
        sched = {}
        for n, (f, i) in enumerate(lst):
            st = (n * 30) // len(lst) + 1
            if f == 1: st = max(st, i)
            sched.setdefault(st, []).append((f, i))
        issued = 0
        for k in range(32):
            if k == 8 - (NR - 1):
                a(f"s_waitcnt vmcnt({4 + issued})")
                a("s_barrier")
            if k == 16 - (NR - 1):
                a(f"s_waitcnt vmcnt({issued})")
                a("s_barrier")
                self.stamp("f1b")
            if k + NR - 1 < 32: hread(k + NR - 1)
            a.wait_lg(f"h{k}")
            sl = k % NR
            for tt in range(2):
                srcC = "0" if k == 0 else vr(ACC + 16 * tt, 16)
                a(f"v_mfma_f32_32x32x16_bf16 {vr(ACC+16*tt,16)}, {vr(W1H[k],4)}, {vr(BR+8*sl+4*tt,4)}, {srcC}")
            for (f, i) in (sched.get(k, []) if not self.opt.get("now2") else []):
                self.w2load(f, i)
                issued += 1
        self.stamp("f1c")
        a("s_barrier")
        a.lg = []
        CS, BF = 108, 208
        a("v_and_b32 v3, 31, v1")
        a("v_lshlrev_b32 v3, 3, v3")
        a(f"v_add_u32 v3, {LDS_ST2}, v3")
        a("ds_read_b64 v[104:105], v3")
        a("ds_read_b64 v[106:107], v3 offset:256")
        a("v_lshrrev_b32 v3, 5, v1")
        a("v_lshlrev_b32 v3, 4, v3")
        a(f"s_lshl_b32 {sA}, {sW}, 7")
        a(f"s_add_u32 {sA}, {sA}, {LDS_CS1}")
        a(f"v_add_u32 v3, {sA}, v3")
        for q in range(4):
            a(f"ds_read_b128 {vr(CS+4*q,4)}, v3 offset:{32*q}")
        for q in range(4):
            a(f"ds_read_b128 {vr(BF+4*q,4)}, v3 offset:{1024 + 32*q}")
        a("s_waitcnt lgkmcnt(0)")
        self.stamp("ffn1")
        HP = 236
        for tt in range(2):
            mu, rs = 104 + 2 * tt, 105 + 2 * tt
            A = ACC + 16 * tt
            for r in range(16): a(f"v_fma_f32 v{A+r}, -v{mu}, v{CS+r}, v{A+r}")
            for r in range(16): a(f"v_fma_f32 v{A+r}, v{A+r}, v{rs}, v{BF+r}")
            for r in range(16): a(f"v_add_f32 v{A+r}, v{A+r}, |v{A+r}|")
            for r in range(16): a(f"v_mul_f32 v{A+r}, v{A+r}, v{A+r}")
            for i in range(8): a(f"v_cvt_pk_bf16_f32 v{HP+8*tt+i}, v{A+2*i}, v{A+2*i+1}")
        a(f"s_mul_i32 {sA}, {sM}, 7")
        a(f"s_add_u32 {sA}, {sA}, {sW}")
        a(f"s_lshl_b32 {sB}, {sA}, 12")
        a(f"s_mul_i32 {sD}, {sC}, {224*1024}")
        a(f"s_add_u32 {sB}, {sB}, {sD}")
        a(f"s_add_u32 {sB}, {sB}, {WS_HID}")
        a(f"s_lshl_b32 {sD}, {sA}, 2")
        a(f"s_lshl_b32 {sE_}, {sC}, 8")
        a(f"s_add_u32 {sD}, {sD}, {sE_}")
        a(f"s_add_u32 {sD}, {sD}, {WS_FLHID}")
        st = []
        for u in range(2):
            for tt in range(2):
                st.append(("dwordx4", vr(HP + 8 * tt + 4 * u, 4), "v2", sB, u * 2048 + tt * 1024))
        self.publish("hid", st, sD)
        if self.opt.get("wbl2"):
            a(f"s_cmp_eq_u32 {sW}, 0")
            a("s_cbranch_scc0 L_nowb")
            a(f"s_cmp_lt_u32 {sID}, {self.opt['wbl2']}")
            a("s_cbranch_scc0 L_nowb")
            a("buffer_wbl2 sc1")
            a.label("L_nowb")
        a("s_branch L_p4_done")
        a.label("L_p4_w7")
        SL = 64
        a("v_lshlrev_b32 v3, 4, v1")
        a(f"s_lshl_b32 {sA}, {sC}, 14")
        a(f"s_add_u32 {sA}, {sA}, {WS_ST}")
        for q in range(16):
            a(f"buffer_load_dwordx4 {vr(SL+4*q,4)}, v3, {srd(SRD_WS)}, {sA} offen offset:{(q%4)*1024} sc1")
            if q % 4 == 3 and q < 15: a(f"s_add_u32 {sA}, {sA}, 4096")
        a("s_waitcnt vmcnt(20)")
        a("s_barrier")
        a("s_waitcnt vmcnt(16)")
        a("s_barrier")
        for i in range(NW2E, 14): self.w2load(0, i)
        a(f"s_waitcnt vmcnt({14 - NW2E})")
        for tt in range(2):
            B = SL + 32 * tt
            for q in range(1, 8):
                for c in range(4): a(f"v_add_f32 v{B+c}, v{B+c}, v{B+4*q+c}")
        R = [SL + c for c in range(4)] + [SL + 32 + c for c in range(4)]
        T = [SL + 8 + c for c in range(8)]
        for sw in ("16", "32"):
            for r, t in zip(R, T): a(f"v_mov_b32 v{t}, v{r}")
            for r, t in zip(R, T): a(f"v_permlane{sw}_swap_b32 v{r}, v{t}")
            for r, t in zip(R, T): a(f"v_add_f32 v{r}, v{r}, v{t}")
        for tt in range(2):
            for u in range(2):
                s_, q_ = SL + 32 * tt + 2 * u, SL + 32 * tt + 2 * u + 1
                a(f"v_mul_f32 v{s_}, 0x{f32bits(1/512):x}, v{s_}")
                a(f"v_mul_f32 v{q_}, 0x{f32bits(1/512):x}, v{q_}")
                a(f"v_fma_f32 v{q_}, -v{s_}, v{s_}, v{q_}")
                a(f"v_max_f32 v{q_}, 0, v{q_}")
                a(f"v_add_f32 v{q_}, 0x{f32bits(1e-5):x}, v{q_}")
                a(f"v_rsq_f32 v{q_}, v{q_}")
                a(f"v_mul_f32 v{q_}, 0.5, v{q_}")
        a("v_and_b32 v3, 15, v1")
        a("v_lshlrev_b32 v3, 4, v3")
        a(f"v_add_u32 v3, {LDS_ST2}, v3")
        a("s_mov_b64 exec, 0xffff")
        a(f"ds_write_b128 v3, {vr(SL,4)}")
        a(f"ds_write_b128 v3, {vr(SL+32,4)} offset:256")
        a("s_mov_b64 exec, -1")
        a("s_waitcnt lgkmcnt(0)")
        a("s_barrier")
        if self.prof and "ffn1" not in self.skip:
            self.nstamp = self.stamp_names.index("ffn1")
            nm = list(self.stamp_names)
            self.stamp("ffn1")
            self.stamp_names = nm
            self.nstamp = len(nm)
        a.label("L_p4_done")

    def p5(self):
        a = self.a
        HB, B2R = 4, 148
        ACCS = [[64, 208], [80, 224]]
        BQ = [40, 44, 48, 52, 96, 100, 108, 112, 116, 120, 124, 128, 240, 244]
        a(f"s_lshl_b32 {sA}, {sM}, 7")
        a(f"s_lshl_b32 {sB}, {sFT}, 6")
        a(f"s_add_u32 {sA}, {sA}, {sB}")
        a(f"s_lshl_b32 {sB}, {sKH}, 5")
        a(f"s_add_u32 s89, {sA}, {sB}")
        a("v_lshrrev_b32 v3, 5, v1")
        a("v_lshlrev_b32 v3, 3, v3")
        a(f"buffer_load_dwordx2 {vr(B2R,2)}, v3, {srd(SRD_B2)}, s89 offen")
        a(f"buffer_load_dwordx2 {vr(B2R+2,2)}, v3, {srd(SRD_B2)}, s89 offen offset:16")
        a(f"s_mul_i32 {sA}, {sW}, 28")
        a(f"s_lshl_b32 {sB}, {sC}, 8")
        a(f"s_add_u32 {sA}, {sA}, {sB}")
        a(f"s_add_u32 {sA}, {sA}, {WS_FLHID}")
        a("v_min_u32 v3, 6, v1")
        a("v_lshlrev_b32 v3, 2, v3")
        self.poll_begin("hid")
        a(f"buffer_load_dword v104, v3, {srd(SRD_WS)}, {sA} offen sc1")
        a("s_waitcnt vmcnt(0)")
        a("v_cmp_ne_u32 vcc, s3, v104")
        self.poll_end("hid", sleep=1)
        self.stamp("hidok")
        a(f"s_mul_i32 {sA}, {sW}, {14*2048}")
        a(f"s_mul_i32 {sD}, {sC}, {224*1024}")
        a(f"s_add_u32 {sA}, {sA}, {sD}")
        a(f"s_add_u32 s67, {sA}, {WS_HID}")
        def bload(tt, i):
            a(f"s_add_u32 {sA}, s67, {i*2048 + tt*1024}")
            a(f"buffer_load_dwordx4 {vr(BQ[i],4)}, v2, {srd(SRD_WS)}, {sA} offen sc1")
        for i in range(14): bload(0, i)
        a(f"s_lshl_b32 {sA}, {sW}, 11")
        a(f"v_add_u32 v104, {sA}, v2")
        a("v_add_u32 v105, 65536, v104")
        def wr_piece(tt, f, half):
            p = 4 * half + 2 * f + tt
            A = ACCS[tt][f] + 8 * half
            base = "v104" if p < 4 else "v105"
            off = (p % 4) * 16384
            a(f"ds_write_b128 {base}, {vr(A,4)} offset:{off}")
            a(f"ds_write_b128 {base}, {vr(A+4,4)} offset:{off+1024}")
        issued = 14
        done = 0
        for tt in range(2):
            for i in range(14):
                n = tt * 14 + i
                a(f"s_waitcnt vmcnt({issued - n - 1})")
                for f in range(2):
                    hm = (W2H0 if f == 0 else W2H1)[i]
                    srcC = "0" if i == 0 else vr(ACCS[tt][f], 16)
                    a(f"v_mfma_f32_32x32x16_bf16 {vr(ACCS[tt][f],16)}, {vr(hm,4)}, {vr(BQ[i],4)}, {srcC}")
                if tt == 0:
                    bload(1, i); issued += 1
                if tt == 1 and i in (2, 4, 6, 8):
                    j = (i - 2) // 2
                    wr_piece(0, j >> 1, j & 1)
        self.stamp("ffn2")
        for f in range(2):
            for half in range(2): wr_piece(1, f, half)
        for i in range(4):
            a(f"v_lshlrev_b32 v{16+2*i}, 16, v{HB+i}")
            a(f"v_and_b32 v{17+2*i}, 0xffff0000, v{HB+i}")
            a(f"v_lshlrev_b32 v{24+2*i}, 16, v{B2R+i}")
            a(f"v_and_b32 v{25+2*i}, 0xffff0000, v{B2R+i}")
        for i in range(8):
            a(f"v_add_f32 v{16+i}, v{16+i}, v{24+i}")
        a("v_and_b32 v3, 31, v1")
        a("v_lshlrev_b32 v3, 10, v3")
        a("v_lshrrev_b32 v12, 5, v1")
        a("v_lshl_or_b32 v3, v12, 4, v3")
        a(f"s_lshl_b32 {sB}, {sW}, 14")
        a(f"v_add_u32 v106, {sB}, v2")
        a(f"s_lshl_b32 {sA}, {sTT}, 5")
        a(f"s_add_u32 {sA}, {sA}, {sT0}")
        a(f"s_lshl_b32 {sA}, {sA}, 10")
        a(f"s_add_u32 {sA}, {sA}, s89")
        a("s_waitcnt lgkmcnt(0)")
        a("s_barrier")
        RD = 152
        a.lg = []
        for q in range(8):
            a.ds(f"ds_read_b128 {vr(RD+8*q,4)}, v106 offset:{q*2048}", f"q{q}")
            a.ds(f"ds_read_b128 {vr(RD+8*q+4,4)}, v106 offset:{q*2048+1024}", f"q{q}")
        for q in range(8):
            a.wait_lg(f"q{q}")
            for i in range(8):
                a(f"v_add_f32 v{16+i}, v{16+i}, v{RD+8*q+i}")
        for i in range(4):
            a(f"v_cvt_pk_bf16_f32 v{88+i}, v{16+2*i}, v{17+2*i}")
        a("v_permlane32_swap_b32 v88, v90")
        a("v_permlane32_swap_b32 v89, v91")
        om = {0: "", 1: " sc1", 2: " nt", 3: " sc0 sc1"}[self.opt.get("outmod", 0)]
        a(f"buffer_store_dwordx4 v[88:91], v3, {srd(SRD_OUT)}, {sA} offen{om}")
        self.stamp("end")

    def kv_flag(self):
        a = self.a
        a(f"s_add_u32 {sD}, {sTag}, 1")
        a(f"s_lshl_b32 {sA}, {sG}, 4")
        nf = self.opt.get("nf", 1)
        a(f"s_add_u32 {sA}, {sA}, {WS_FLKV2 if nf else WS_FLKV}")
        a(f"v_mov_b32 v8, {sD}")
        a("v_mov_b32 v9, s3")
        if nf:
            a("v_lshlrev_b32 v10, 12, v1")
            a("s_mov_b64 exec, %s" % ("1" if self.opt.get("norep") else "0xff"))
        else:
            a("v_mov_b32 v10, 0")
            a("s_mov_b64 exec, 1")
        a(f"s_cmp_eq_u32 {sW}, 1")
        a("s_cbranch_scc1 L_flagv")
        a(f"buffer_store_dwordx2 v[8:9], v10, {srd(SRD_WS)}, {sA} offen sc1")
        a("s_branch L_flagd")
        a.label("L_flagv")
        a(f"buffer_store_dword v8, v10, {srd(SRD_WS)}, {sA} offen offset:8 sc1")
        a.label("L_flagd")
        a("s_mov_b64 exec, -1")

    def wave_reduce(self, regs, op, tmps):
        a = self.a
        for n in (8, 4, 2, 1):
            for r in regs:
                a(f"v_{op}_f32_dpp {r}, {r}, {r} row_ror:{n} row_mask:0xf bank_mask:0xf")
        for sw in ("16", "32"):
            for r, t in zip(regs, tmps):
                a(f"v_mov_b32 {t}, {r}")
            for r, t in zip(regs, tmps):
                a(f"v_permlane{sw}_swap_b32 {r}, {t}")
            for r, t in zip(regs, tmps):
                a(f"v_{op}_f32 {r}, {r}, {t}")

    def finish(self):
        a = self.a
        a.label("L_end")
        a("s_endpgm")

    def dump_regs(self, base, regs, off):
        a = self.a
        n = len(regs)
        a(f"s_lshl_b32 {sA}, {sID}, 3")
        a(f"s_add_u32 {sA}, {sA}, {sW}")
        a(f"s_mul_i32 {sA}, {sA}, {n*256}")
        a(f"s_add_u32 {sA}, {sA}, {off}")
        a("v_lshlrev_b32 v3, 2, v1")
        for i, r in enumerate(regs):
            a(f"buffer_store_dword v{r}, v3, {srd(SRD_WS)}, {sA} offen offset:{i*256}")
        a("s_waitcnt vmcnt(0)")

    def build(self):
        self.prologue()
        self.p1()
        if self.stop == "p1":
            self.dump_regs(0, list(range(32, 48)), WS_DBG)
            self.a("s_waitcnt vmcnt(0)")
            self.finish(); return self.text()
        self.p2()
        if self.stop in ("q", "attn"):
            self.a("s_waitcnt vmcnt(0)")
            self.dump_stamps()
            self.finish(); return self.text()
        for nm, fn in (("h", self.p3), ("hid", self.p4), ("out", self.p5)):
            fn()
            if self.stop == nm: break
        if self.opt.get("dirtyend"):
            a = self.a
            n = self.opt["dirtyend"]
            a(f"s_lshl_b32 {sA}, {sID}, 3")
            a(f"s_add_u32 {sA}, {sA}, {sW}")
            a(f"s_mul_i32 {sA}, {sA}, {n*1024}")
            a(f"s_add_u32 {sA}, {sA}, {WS_DBG}")
            for i in range(n):
                a(f"buffer_store_dwordx4 v[4:7], v2, {srd(SRD_WS)}, {sA} offen")
                a(f"s_add_u32 {sA}, {sA}, 1024")
        self.a("s_waitcnt vmcnt(0)")
        self.dump_stamps()
        self.finish()
        return self.text()

    def text(self):
        lines, n = hazard_pass_all(self.a.lines)
        head = f"""; @launch grid=(256,1,1) block=(512,1,1) lds=163840
.amdgcn_target "amdgcn-amd-amdhsa--gfx950"
.text
.globl {KNAME}
.p2align 8
.type {KNAME},@function
{KNAME}:
"""
        tail = f""".section .rodata,"a"
.p2align 6
.amdhsa_kernel {KNAME}
  .amdhsa_next_free_vgpr 256
  .amdhsa_next_free_sgpr 102
  .amdhsa_accum_offset 256
  .amdhsa_group_segment_fixed_size 0
  .amdhsa_kernarg_size 104
  .amdhsa_user_sgpr_count 2
  .amdhsa_user_sgpr_kernarg_segment_ptr 1
  .amdhsa_system_sgpr_workgroup_id_x 1
.end_amdhsa_kernel
"""
        return head + "\n".join(lines) + "\n" + tail

if __name__ == "__main__":
    import argparse
    ap = argparse.ArgumentParser()
    ap.add_argument("--stop", default=None)
    ap.add_argument("-o", default="k.s")
    ap.add_argument("--prof", action="store_true")
    ap.add_argument("--opt", nargs="*", default=[])
    ap.add_argument("--skip", nargs="*", default=["args", "b1", "f1a", "f1b", "f1c"])
    args = ap.parse_args()
    opt = dict((kv.split("=")[0], int(kv.split("=")[1])) for kv in args.opt)
    g = Gen(stop=args.stop, prof=args.prof, opt=opt, skip=args.skip)
    open(args.o, "w").write(g.build())
    print("wrote", args.o, "stamps:", getattr(g, "stamp_names", None))
```

```python
import sys
sys.path.insert(0, "work")
from asmlib import Asm, hazard_pass_all

NAME = "sequential_preLN__grouped_kv_mqa__dense_activation_squared_relu__prompt"
KNAME = NAME + "_kernel"

WS_EPOCH = 0x0
WS_FLKV  = 0x1000
WS_FLWT  = 0x3000
WS_FLO   = 0x4000
WS_FLH   = 0x6000
WS_FLHID = 0x8000
WS_FLWT2 = 0xA000
WS_KV    = 0x10000
WS_ST    = 0x60000
WS_FLKV2 = 0xE0000
WS_STLL  = 0xE8000
LDS_KF   = 96 * 1024 - 16
LDS_ST   = 158 * 1024
LDS_FG   = 92 * 1024
WS_KVL   = 0x1400000
WS_FLL   = 0x1440000
WS_STL   = 0x1448000
WS_O     = 0x100000
WS_H     = 0x300000
WS_HID   = 0x500000
WS_WOF   = 0xC00000
WS_W1F   = 0xC80000
WS_W2F   = 0xE40000
WS_DBG   = 0x1000000
WS_PROF  = 0x1800000
WS_SIZE  = 0x2000000
WS_P     = 0x2000000
WS_SIZE_SK = 0x3000000
LDS_SY   = 147 * 1024

SRD_X, SRD_WQ, SRD_WK, SRD_WV = 8, 12, 16, 20
SRD_WO, SRD_W1, SRD_W2, SRD_B1 = 24, 28, 32, 36
SRD_B2, SRD_OUT, SRD_WS, SRD_T = 40, 44, 48, 52
def srd(b): return f"s[{b}:{b+3}]"
sW, sM, sC, sT0, sTag, sFast = "s56", "s57", "s58", "s59", "s60", "s61"
sFT, sTT, sKH, sXCC = "s62", "s63", "s90", "s91"
sID = "s2"
sA, sB, sD, sE_, sF, sG = "s92", "s93", "s94", "s95", "s96", "s97"
sCnt, sPh = "s98", "s99"
sW1B = "s65"
sWOB = "s66"
sPF = "s69"
NW1PRE = 26
W1H = [152 + 4 * k for k in range(26)] + [40, 44, 48, 52, 96, 100]
WOH = [8, 12, 16, 20, 60] + [108 + 4 * k for k in range(11)]
import os
NW2E = int(os.environ.get("NW2E", 7))
W2H0 = [8, 12, 16, 20, 24, 28, 32, 36, 56, 60, 132, 136, 140, 144]
W2H1 = W1H[:14]
sX64 = "s[4:5]"; sY64 = "s[6:7]"

LOG2E = 1.4426950408889634
def f32bits(x):
    import struct
    return struct.unpack("<I", struct.pack("<f", x))[0]
def vr(b, n): return f"v[{b}:{b+n-1}]"

class Gen:
    def __init__(self, stop=None, prof=False, opt=None, skip=()):
        self.skip = set(skip)
        self.cs4_pend = None
        self.a = Asm()
        self.stop = stop
        self.prof = prof
        self.opt = opt or {}
        self.nstamp = 0

    def stamp(self, name):
        if not self.prof: return
        if name in self.skip:
            self.skipped_last = True
            return
        self.skipped_last = False
        i = self.nstamp; self.nstamp += 1
        assert i < 14
        self.stamp_names = getattr(self, "stamp_names", []) + [name]
        a = self.a
        a(f"s_memtime s[4:5]")
        a("s_waitcnt lgkmcnt(0)")
        a("s_sub_u32 s4, s4, s100")
        a(f"v_writelane_b32 v0, s4, {i}")

    def dump_stamps(self):
        if not self.prof: return
        a = self.a
        a("s_memrealtime s[4:5]")
        a("s_waitcnt lgkmcnt(0)")
        a("s_sub_u32 s4, s4, s101")
        a("v_writelane_b32 v0, s4, 15")
        a("v_writelane_b32 v0, s101, 14")
        a(f"s_lshl_b32 {sA}, {sID}, 3")
        a(f"s_add_u32 {sA}, {sA}, {sW}")
        a(f"s_lshl_b32 {sA}, {sA}, 6")
        a(f"s_add_u32 {sA}, {sA}, {WS_PROF}")
        a("v_lshlrev_b32 v3, 2, v1")
        a("s_mov_b64 exec, 0xffff")
        a(f"buffer_store_dword v0, v3, {srd(SRD_WS)}, {sA} offen")
        a(f"s_lshl_b32 {sA}, {sID}, 3")
        a(f"s_add_u32 {sA}, {sA}, {sW}")
        a(f"s_cmp_lg_u32 {sA}, {self.opt.get('profw', 0)}")
        a("s_cbranch_scc1 L_nodbgst")
        a("s_load_dwordx2 s[52:53], s[0:1], 88")
        a("s_waitcnt lgkmcnt(0)")
        a("s_mov_b32 s54, 256")
        a("s_mov_b32 s55, 0x20000")
        a("buffer_store_dword v0, v3, s[52:55], 0 offen")
        a.label("L_nodbgst")
        a("s_mov_b64 exec, -1")
        a("s_waitcnt vmcnt(0)")

    def prologue(self):
        a = self.a
        a(f"s_cmp_ge_u32 {sID}, 256")
        a("s_cbranch_scc1 L_end")
        if self.prof:
            a("s_memtime s[100:101]")
            a("s_memrealtime s[6:7]")
        a("s_load_dwordx16 s[64:79], s[0:1], 0")
        a("s_load_dwordx8 s[80:87], s[0:1], 64")
        a("s_load_dwordx2 s[88:89], s[0:1], 96")
        a(f"s_and_b32 {sA}, {sID}, 7")
        a(f"s_lshr_b32 {sB}, {sID}, 6")
        a(f"s_lshl_b32 {sB}, {sB}, 3")
        a(f"s_add_u32 {sC}, {sA}, {sB}")
        a(f"s_lshr_b32 {sM}, {sID}, 3")
        a(f"s_and_b32 {sM}, {sM}, 7")
        if self.opt.get("xmap"):
            a(f"s_lshr_b32 {sC}, {sID}, 3")
            a(f"s_and_b32 {sM}, {sID}, 7")
        a(f"s_lshl_b32 {sT0}, {sC}, 6")
        a(f"s_getreg_b32 {sXCC}, hwreg(HW_REG_XCC_ID)")
        a(f"s_and_b32 {sXCC}, {sXCC}, 7")
        a("v_lshrrev_b32 v3, 6, v0")
        a("v_and_b32 v1, 63, v0")
        a(f"v_readfirstlane_b32 {sW}, v3")
        a("v_lshlrev_b32 v2, 4, v1")
        a(f"s_lshr_b32 {sKH}, {sW}, 2")
        a(f"s_lshr_b32 {sFT}, {sW}, 1")
        a(f"s_and_b32 {sFT}, {sFT}, 1")
        a(f"s_and_b32 {sTT}, {sW}, 1")
        a("s_waitcnt lgkmcnt(0)")
        if self.prof:
            a("v_mov_b32 v0, 0")
            a("s_mov_b32 s101, s6")
        self.stamp("args")
        def mk(b, lo, size):
            a(f"s_mov_b32 s{b}, s{lo}")
            a(f"s_mov_b32 s{b+1}, s{lo+1}")
            a(f"s_mov_b32 s{b+2}, 0x{size:x}")
            a(f"s_mov_b32 s{b+3}, 0x20000")
        mk(SRD_X, 64, 0x200000)
        mk(SRD_WS, 88, WS_SIZE_SK if self.opt.get('sk') else WS_SIZE)
        a(f"s_load_dword {sTag}, s[88:89], {WS_EPOCH}")
        mk(SRD_WK, 68, 0x4000)
        mk(SRD_WV, 70, 0x4000)
        mk(SRD_WQ, 66, 0x80000)
        self.mk = mk

    def rest_srds(self):
        mk = self.mk
        mk(SRD_WO, 72, 0x80000)
        mk(SRD_W1, 76, 0x1C0000)
        mk(SRD_B1, 78, 3584)
        mk(SRD_W2, 80, 0x1C0000)
        mk(SRD_B2, 82, 1024)
        mk(SRD_OUT, 84, 0x200000)

    def dma(self, voff, srdb, soff, m0, tag, extra=""):
        a = self.a
        a(f"s_mov_b32 m0, {m0}")
        a.vmem(f"buffer_load_dwordx4 {voff}, {srd(srdb)}, {soff} offen {extra} lds", tag)

    def p1(self):
        a = self.a
        X = self.opt
        ROW = 4
        vXa, vKVo, vWAo, vXt = "v16", "v18", "v19", "v17"
        LDS_WK = 64 * 1024
        LDS_WV = 80 * 1024
        LDS_WA = 96 * 1024
        sG1 = "s67"
        a(f"s_lshl_b32 {sA}, {sM}, 3")
        a(f"s_add_u32 {sA}, {sA}, {sT0}")
        a(f"s_add_u32 {sB}, {sA}, {sW}")
        a(f"s_lshl_b32 {sB}, {sB}, 10")
        if X.get("tk"):
            a(f"s_lshr_b32 {sD}, {sID}, 3")
            a(f"s_lshl_b32 {sD}, {sD}, 9")
            a("v_lshlrev_b32 v62, 7, v1")
            a("s_mov_b64 exec, 0xf")
            a(f"s_cmp_eq_u32 {sW}, 0")
            a("s_cbranch_scc0 L_tk1")
            a(f"buffer_load_dword v61, v62, {srd(SRD_WK)}, {sD} offen")
            a.label("L_tk1")
            a(f"s_cmp_eq_u32 {sW}, 1")
            a("s_cbranch_scc0 L_tk2")
            a(f"buffer_load_dword v61, v62, {srd(SRD_WV)}, {sD} offen")
            a.label("L_tk2")
            a("s_mov_b64 exec, -1")
        a(f"buffer_load_dwordx4 {vr(ROW,4)}, v2, {srd(SRD_X)}, {sB} offen")
        a("v_lshrrev_b32 v8, 3, v1")
        a("v_and_b32 v9, 7, v1")
        a("v_lshrrev_b32 v10, 1, v8")
        a("v_xor_b32 v10, v10, v9")
        a(f"s_and_b32 {sB}, {sM}, 1")
        a(f"s_lshl_b32 {sB}, {sB}, 2")
        a(f"v_xor_b32 v10, {sB}, v10")
        a("v_lshlrev_b32 v10, 4, v10")
        a(f"v_lshl_add_u32 {vXa}, v8, 10, v10")
        def xa_dma(gs, cs, voff):
            a(f"s_lshl_b32 {sD}, {gs}, 13")
            a(f"s_lshl_b32 {sE_}, {cs}, 7")
            a(f"s_add_u32 {sD}, {sD}, {sE_}")
            a(f"s_add_u32 {sD}, {sD}, s68")
            a(f"s_lshl_b32 {sE_}, {cs}, 13")
            a(f"s_lshl_b32 {sF}, {gs}, 10")
            a(f"s_add_u32 m0, {sE_}, {sF}")
            a(f"buffer_load_dwordx4 {voff}, {srd(SRD_X)}, {sD} offen lds")
        self.xa_dma = xa_dma
        a(f"s_lshl_b32 s68, {sT0}, 10")
        xa_dma(sM, sW, vXa)
        a("v_lshrrev_b32 v8, 1, v1")
        a("v_and_b32 v9, 0x13, v8")
        a("v_bfe_u32 v10, v8, 2, 1")
        a("v_lshl_or_b32 v9, v10, 3, v9")
        a("v_bfe_u32 v10, v8, 3, 1")
        a("v_lshl_or_b32 v9, v10, 2, v9")
        a("v_lshlrev_b32 v9, 5, v9")
        a("v_and_b32 v10, 1, v1")
        a(f"v_lshl_or_b32 {vKVo}, v10, 4, v9")
        a(f"s_lshl_b32 {sD}, {sW}, 11")
        for k in range(2):
            a(f"s_add_u32 m0, {sD}, {LDS_WK}")
            a(f"buffer_load_dwordx4 {vKVo}, {srd(SRD_WK)}, {sD} offen lds")
            a(f"s_add_u32 m0, {sD}, {LDS_WV}")
            a(f"buffer_load_dwordx4 {vKVo}, {srd(SRD_WV)}, {sD} offen lds")
            if k == 0: a(f"s_add_u32 {sD}, {sD}, 1024")
        TQ = X.get("tq", 0)
        def touch_q():
            a(f"s_lshr_b32 {sA}, {sID}, 6")
            a(f"s_lshl_b32 {sA}, {sA}, 3")
            a(f"s_add_u32 {sA}, {sA}, {sW}")
            a(f"s_lshl_b32 {sA}, {sA}, 14")
            a(f"s_lshl_b32 {sB}, {sM}, 7")
            a(f"s_add_u32 {sA}, {sA}, {sB}")
            a("v_lshlrev_b32 v62, 10, v1")
            a("s_mov_b64 exec, 0xffff")
            a(f"buffer_load_dword v63, v62, {srd(SRD_WQ)}, {sA} offen")
            a("s_mov_b64 exec, -1")
        if TQ == 1: touch_q()
        NF3 = X.get("nf", 1) == 3
        NTL = 1 if (NF3 and X.get("tl", 2) == 1) else 0
        if NF3 and X.get("tl", 2):
            a(f"s_lshl_b32 {sA}, {sC}, 3")
            a(f"s_add_u32 {sA}, {sA}, {sM}")
            a(f"s_lshl_b32 {sB}, {sA}, 10")
            a(f"s_lshl_b32 {sD}, {sW}, 7")
            a(f"s_add_u32 {sB}, {sB}, {sD}")
            a(f"s_add_u32 {sB}, {sB}, {WS_KVL}")
            a(f"s_lshl_b32 {sD}, {sA}, 7")
            a(f"s_add_u32 {sD}, {sD}, {WS_STL}")
            a(f"s_cmp_lt_u32 {sW}, 4")
            a(f"s_cselect_b32 {sB}, {sB}, {sD}")
            a(f"s_and_b32 {sD}, {sID}, 7")
            a(f"s_lshl_b32 {sD}, {sD}, 9")
            a(f"s_lshr_b32 {sE_}, {sID}, 6")
            a(f"s_lshl_b32 {sE_}, {sE_}, 3")
            a(f"s_add_u32 {sE_}, {sE_}, {sM}")
            a(f"s_lshl_b32 {sE_}, {sE_}, 4")
            a(f"s_add_u32 {sD}, {sD}, {sE_}")
            a(f"s_add_u32 {sD}, {sD}, {WS_FLL}")
            a(f"s_cmp_eq_u32 {sW}, 4")
            a(f"s_cselect_b32 {sB}, {sD}, {sB}")
            if NTL:
                a("v_mov_b32 v62, 0")
                a("s_mov_b64 exec, 1")
                a(f"buffer_load_dword v61, v62, {srd(SRD_WS)}, {sB} offen sc1")
                a("s_mov_b64 exec, -1")
            else:
                a(f"s_load_dword s75, s[88:89], {sB}")
        if X.get("kvt"):
            a(f"s_lshl_b32 {sA}, {sC}, 3")
            a(f"s_add_u32 {sA}, {sA}, {sM}")
            a(f"s_cmp_eq_u32 {sW}, 2")
            a("s_cbranch_scc0 L_kvt1")
            a(f"s_lshl_b32 {sB}, {sA}, 10")
            a(f"s_add_u32 {sB}, {sB}, {WS_KV}")
            a(f"buffer_load_dwordx4 v[24:27], v2, {srd(SRD_WS)}, {sB} offen sc1")
            a.label("L_kvt1")
            a(f"s_cmp_eq_u32 {sW}, 3")
            a("s_cbranch_scc0 L_kvt2")
            a(f"s_lshl_b32 {sB}, {sA}, 4")
            a(f"s_add_u32 {sB}, {sB}, {WS_FLKV}")
            a("v_mov_b32 v24, 0")
            a(f"buffer_load_dword v25, v24, {srd(SRD_WS)}, {sB} offen sc1")
            a.label("L_kvt2")
        a("v_lshrrev_b32 v8, 3, v1")
        a("v_and_b32 v9, 7, v1")
        a("v_bfe_u32 v10, v1, 4, 1")
        a("v_lshlrev_b32 v10, 2, v10")
        a("v_xor_b32 v9, v9, v10")
        a("v_lshlrev_b32 v9, 4, v9")
        a(f"v_lshl_add_u32 {vWAo}, v8, 10, v9")
        a(f"s_add_u32 {sG1}, {sM}, 1")
        a(f"s_and_b32 {sG1}, {sG1}, 7")
        NBULK = 20
        def bulk():
            a(f"s_sub_u32 {sA}, {sW}, 2")
            a(f"s_add_u32 {sB}, {sA}, 2")
            for i in range(9):
                a(f"s_lshr_b32 s4, {sB}, 3")
                a(f"s_add_u32 s4, s4, 1")
                a(f"s_and_b32 s5, s4, 1")
                a(f"s_lshl_b32 s5, s5, 6")
                a(f"v_xor_b32 {vXt}, s5, {vXa}")
                a(f"s_add_u32 s4, s4, {sM}")
                a(f"s_and_b32 s4, s4, 7")
                a(f"s_and_b32 s5, {sB}, 7")
                xa_dma("s4", "s5", vXt)
                if i < 8: a(f"s_add_u32 {sB}, {sB}, 6")
            if X.get("cs4"):
                a(f"s_cmp_eq_u32 {sKH}, 0")
                a("s_cbranch_scc1 L_blk_done")
                a(f"s_and_b32 {sA}, {sW}, 3")
                a(f"s_lshl_b32 {sD}, {sA}, 13")
                a(f"s_lshl_b32 {sE_}, {sM}, 7")
                a(f"s_add_u32 {sD}, {sD}, {sE_}")
                a(f"s_lshl_b32 {sE_}, {sA}, 10")
                a(f"s_add_u32 {sE_}, {sE_}, {LDS_WA}")
                a(f"v_add_u32 v217, {sE_}, v2")
                D = X.get("csd", 8)
                a.lg = []
                for i in range(16):
                    a(f"s_mov_b32 m0, {sE_}")
                    a(f"buffer_load_dwordx4 {vWAo}, {srd(SRD_WQ)}, {sD} offen lds")
                    if i < 15:
                        a(f"s_add_u32 {sD}, {sD}, {4*8192}")
                        a(f"s_add_u32 {sE_}, {sE_}, {4*1024}")
                    if i >= D: self.cs4_one(i - D, D)
                self.cs4_flush()
                a.label("L_blk_done")
                return
            a(f"s_lshl_b32 {sD}, {sA}, 13")
            a(f"s_lshl_b32 {sE_}, {sM}, 7")
            a(f"s_add_u32 {sD}, {sD}, {sE_}")
            a(f"s_lshl_b32 {sE_}, {sA}, 10")
            a(f"s_add_u32 {sE_}, {sE_}, {LDS_WA}")
            for i in range(11):
                if i == 10:
                    a(f"s_cmp_ge_u32 {sA}, 4")
                    a("s_cbranch_scc1 L_blk_done")
                a(f"s_mov_b32 m0, {sE_}")
                a(f"buffer_load_dwordx4 {vWAo}, {srd(SRD_WQ)}, {sD} offen lds")
                if i < 10:
                    a(f"s_add_u32 {sD}, {sD}, {6*8192}")
                    a(f"s_add_u32 {sE_}, {sE_}, {6*1024}")
            a.label("L_blk_done")
        early = X.get("bulk", 0) == 1
        if early:
            a("s_barrier")
            a(f"s_cmp_lt_u32 {sW}, 2")
            a("s_cbranch_scc1 L_nobulk0")
            bulk()
            a.label("L_nobulk0")
        self.rest_srds()
        XF, WF = (128, 192) if NF3 else (64, 128)
        if NF3: self.early_setup()
        a(f"s_cmp_ge_u32 {sW}, 2")
        a("s_cbranch_scc1 L_no_ones")
        for i in range(64):
            a(f"v_mov_b32 v{XF+i}, 0x3f803f80" if i == 0 else f"v_mov_b32 v{XF+i}, v{XF}")
        a.label("L_no_ones")
        if early:
            a(f"s_cmp_lt_u32 {sW}, 2")
            a("s_cbranch_scc1 L_rw0")
            a("s_waitcnt vmcnt(24)")
            a("s_branch L_rw1")
            a.label("L_rw0")
            a("s_waitcnt vmcnt(5)")
            a.label("L_rw1")
        else:
            a(f"s_waitcnt vmcnt({5 + (1 if TQ == 1 else 0) + NTL})")
            self.stamp("row")
            if TQ == 2: touch_q()
        a("s_mov_b32 s3, 0x3f803f80")
        a(f"v_dot2_f32_bf16 v8, v{ROW}, s3, 0")
        a(f"v_dot2_f32_bf16 v9, v{ROW}, v{ROW}, 0")
        for i in range(1, 4):
            a(f"v_dot2_f32_bf16 v8, v{ROW+i}, s3, v8")
            a(f"v_dot2_f32_bf16 v9, v{ROW+i}, v{ROW+i}, v9")
        self.wave_reduce(["v8", "v9"], "add", ["v10", "v11"])
        a(f"v_mul_f32 v8, 0x{f32bits(1/512):x}, v8")
        a(f"v_mul_f32 v9, 0x{f32bits(1/512):x}, v9")
        a("v_fma_f32 v9, -v8, v8, v9")
        a("v_max_f32 v9, 0, v9")
        a(f"v_add_f32 v9, 0x{f32bits(1e-5):x}, v9")
        a("v_rsq_f32 v9, v9")
        a(f"s_lshl_b32 {sA}, {sW}, 3")
        a(f"s_lshl_b32 {sB}, {sG1}, 10")
        a(f"s_add_u32 {sA}, {sA}, {sB}")
        a(f"v_lshlrev_b32 v10, 13, v1")
        a(f"v_add_u32 v10, {sA}, v10")
        a("s_mov_b64 exec, 3")
        a("ds_write_b64 v10, v[8:9]")
        a("s_mov_b64 exec, -1")
        if early:
            a(f"s_cmp_lt_u32 {sW}, 2")
            a("s_cbranch_scc1 L_b1a")
            a("s_waitcnt vmcnt(19) lgkmcnt(0)")
            a("s_branch L_b1b")
            a.label("L_b1a")
            a("s_waitcnt vmcnt(0) lgkmcnt(0)")
            a.label("L_b1b")
        else:
            a(f"s_waitcnt vmcnt({(1 if TQ == 2 else 0) + (0 if X.get('tlw', 1) else NTL)}) lgkmcnt(0)")
        a("s_barrier")
        self.stamp("b1")
        a(f"s_cmp_lt_u32 {sW}, 2")
        a("s_cbranch_scc1 L_kv_go")
        if not early: bulk()
        a("s_branch L_kv_done")
        a.label("L_kv_go")
        a("v_and_b32 v8, 7, v1")
        a(f"s_lshl_b32 {sA}, {sM}, 3")
        a(f"v_add_u32 v8, {sA}, v8")
        a("v_bfe_u32 v9, v8, 1, 3")
        a("v_lshrrev_b32 v10, 4, v1")
        a("v_xor_b32 v9, v9, v10")
        a("v_lshlrev_b32 v9, 4, v9")
        a("v_lshl_add_u32 v20, v8, 7, v9")
        a("v_xor_b32 v21, 64, v20")
        a("v_bfe_u32 v8, v1, 4, 1")
        a("v_bfe_u32 v9, v1, 2, 2")
        a("v_lshl_add_u32 v8, v8, 2, v9")
        a("v_lshlrev_b32 v8, 5, v8")
        a("v_lshrrev_b32 v9, 5, v1")
        a("v_lshl_add_u32 v8, v9, 9, v8")
        a("v_and_b32 v9, 3, v1")
        a("v_lshl_add_u32 v8, v9, 3, v8")
        a(f"s_lshl_b32 {sA}, {sW}, 14")
        a(f"s_add_u32 {sA}, {sA}, {LDS_WK}")
        a(f"v_add_u32 v22, {sA}, v8")
        a("s_mov_b32 exec_lo, 0x00ff00ff")
        a("s_mov_b32 exec_hi, 0x00ff00ff")
        for s in range(16):
            a.ds(f"ds_read_b128 {vr(XF+4*s,4)}, {'v20' if s%2==0 else 'v21'} offset:{(s>>1)*8192}", f"x{s}")
        a("s_mov_b64 exec, -1")
        D = 24
        a(f"s_cmp_eq_u32 {sW}, 1")
        a("s_cbranch_scc1 L_vwave")
        saved_lg = list(a.lg)
        for wave in ("K", "V"):
            a.lg = list(saved_lg)
            if wave == "V": a.label("L_vwave")
            def wread(s):
                a.ds(f"ds_read_b64_tr_b16 {vr(WF+4*s,2)}, v22 offset:{s*1024}", f"w{s}")
                a.ds(f"ds_read_b64_tr_b16 {vr(WF+4*s+2,2)}, v22 offset:{s*1024+256}", f"w{s}")
            for s in range(4): wread(s)
            for s in range(16):
                a.wait_lg(f"w{s}")
                srcC = "0" if s == 0 else vr(D, 4)
                if wave == "K":
                    a(f"v_mfma_f32_16x16x32_bf16 {vr(D,4)}, {vr(WF+4*s,4)}, {vr(XF+4*s,4)}, {srcC}")
                else:
                    a(f"v_mfma_f32_16x16x32_bf16 {vr(D,4)}, {vr(XF+4*s,4)}, {vr(WF+4*s,4)}, {srcC}")
                if s + 4 < 16: wread(s + 4)
            a(f"s_lshl_b32 {sA}, {sC}, 3")
            a(f"s_add_u32 {sA}, {sA}, {sM}")
            a(f"s_lshl_b32 {sB}, {sA}, 10")
            a(f"s_add_u32 {sB}, {sB}, {WS_KV}")
            if wave == "K":
                a("v_and_b32 v8, 7, v1")
                a("v_lshlrev_b32 v8, 3, v8")
                a(f"s_lshl_b32 s4, {sG1}, 10")
                a(f"v_add_u32 v8, s4, v8")
                a.ds("ds_read_b64 v[10:11], v8", "st")
                for r in range(4):
                    a(f"v_mov_b32_dpp v{28+r}, v{D+r} row_ror:8 row_mask:0xf bank_mask:0xf")
                a.wait_lg("st")
                for r in range(4):
                    a(f"v_fma_f32 v{D+r}, -v10, v{28+r}, v{D+r}")
                for r in range(4):
                    a(f"v_mul_f32 v{D+r}, v11, v{D+r}")
                a(f"v_cvt_pk_bf16_f32 v32, v{D}, v{D+1}")
                a(f"v_cvt_pk_bf16_f32 v33, v{D+2}, v{D+3}")
                a("v_mov_b32 v34, v32")
                a("v_mov_b32 v35, v33")
                a("v_permlane32_swap_b32 v32, v34")
                a("v_permlane32_swap_b32 v33, v35")
                a("v_bfe_u32 v8, v1, 4, 1")
                a("v_and_b32 v9, 7, v1")
                a("v_lshlrev_b32 v9, 4, v9")
                a("v_lshl_add_u32 v8, v8, 7, v9")
                a("s_mov_b32 exec_lo, 0x00ff00ff")
                a("s_mov_b32 exec_hi, 0")
                if NF3:
                    a(f"s_add_u32 s76, {sB}, {WS_KVL - WS_KV}")
                    a(f"buffer_store_dwordx4 v[32:35], v8, {srd(SRD_WS)}, s76 offen" + (" sc1" if X.get("lsc1") else ""))
                a(f"buffer_store_dwordx4 v[32:35], v8, {srd(SRD_WS)}, {sB} offen sc1")
                a("s_mov_b64 exec, -1")
                a("v_dot2_f32_bf16 v12, v32, v32, 0")
                for i in (33, 34, 35):
                    a(f"v_dot2_f32_bf16 v12, v{i}, v{i}, v12")
                a("v_mov_b32 v13, v12")
                a("v_permlane16_swap_b32 v12, v13")
                a("v_add_f32 v12, v12, v13")
                a("v_and_b32 v13, 8, v1")
                a("v_cmp_eq_u32 vcc, 0, v13")
                a("v_cndmask_b32 v12, 0, v12, vcc")
                for n in (8, 4, 2, 1):
                    a(f"v_max_f32_dpp v12, v12, v12 row_ror:{n} row_mask:0xf bank_mask:0xf")
                a(f"v_readlane_b32 {sD}, v12, 0")
                a(f"s_add_u32 {sD}, {sD}, 8")
                a(f"s_and_b32 {sD}, {sD}, 0xfffffff8")
                a(f"s_or_b32 {sD}, {sD}, {sXCC}")
                a(f"s_mov_b32 s3, {sD}")
                a(f"s_mov_b32 {sG}, {sA}")
                a("s_branch L_kv_fin")
            else:
                a("v_bfe_u32 v8, v1, 4, 1")
                a("v_lshlrev_b32 v8, 5, v8")
                a(f"s_lshl_b32 s4, {sG1}, 10")
                a(f"s_add_u32 s4, s4, 8192")
                a(f"v_add_u32 v8, s4, v8")
                a.ds("ds_read_b128 v[12:15], v8", "st")
                a.ds("ds_read_b128 v[36:39], v8 offset:16", "st")
                a("v_and_b32 v9, 7, v1")
                a("v_lshlrev_b32 v9, 3, v9")
                a(f"v_add_u32 v40, s4, v9")
                a.ds("ds_read_b64 v[42:43], v40", "st")
                a(f"v_mov_b32 v28, v{D}")
                a(f"v_mov_b32 v29, v{D}")
                a("v_permlane32_swap_b32 v28, v29")
                a.wait_lg("st")
                st = [(12, 13), (14, 15), (36, 37), (38, 39)]
                for r in range(4):
                    a(f"v_fma_f32 v{D+r}, -v{st[r][0]}, v29, v{D+r}")
                for r in range(4):
                    a(f"v_mul_f32 v{D+r}, v{st[r][1]}, v{D+r}")
                a(f"v_cvt_pk_bf16_f32 v32, v{D}, v{D+1}")
                a(f"v_cvt_pk_bf16_f32 v33, v{D+2}, v{D+3}")
                a("v_mov_b32 v34, v32")
                a("v_mov_b32 v35, v33")
                a("v_permlane16_swap_b32 v32, v34")
                a("v_permlane16_swap_b32 v33, v35")
                a("v_add_u32 v8, 256, v2")
                if NF3:
                    a(f"s_add_u32 s4, {sTag}, 1")
                    a("v_mov_b32 v44, v42")
                    a("v_mov_b32 v45, s4")
                    a("v_mov_b32 v46, v43")
                    a("v_mov_b32 v47, s4")
                    a(f"s_lshl_b32 s4, {sA}, 7")
                    a(f"s_add_u32 s5, s4, {WS_STL}")
                    a(f"s_add_u32 s4, s4, {WS_STLL}")
                    a(f"s_add_u32 s76, {sB}, {WS_KVL - WS_KV}")
                    a("v_mov_b32 v41, 0")
                    a("v_lshlrev_b32 v40, 2, v1")
                    a(f"v_add_u32 v40, {LDS_FG}, v40")
                    a("s_mov_b64 exec, 0xffff")
                    a(f"buffer_store_dwordx4 v[32:35], v8, {srd(SRD_WS)}, s76 offen" + (" sc1" if X.get("lsc1") else ""))
                    a("s_mov_b64 exec, 0xff")
                    a(f"buffer_store_dwordx4 v[44:47], v2, {srd(SRD_WS)}, s5 offen")
                    a("s_mov_b64 exec, 0xffff")
                    a(f"buffer_store_dwordx4 v[32:35], v8, {srd(SRD_WS)}, {sB} offen sc1")
                    a("s_mov_b64 exec, 0xff")
                    a(f"buffer_store_dwordx4 v[44:47], v2, {srd(SRD_WS)}, s4 offen sc1")
                    a("s_mov_b32 exec_lo, -1")
                    a("ds_write_b32 v40, v41")
                else:
                    a("s_mov_b64 exec, 0xffff")
                    a(f"buffer_store_dwordx4 v[32:35], v8, {srd(SRD_WS)}, {sB} offen sc1")
                if NF3: pass
                elif X.get("nf", 1):
                    a(f"s_add_u32 s4, {sTag}, 1")
                    a("v_mov_b32 v44, v42")
                    a("v_mov_b32 v45, s4")
                    a("v_mov_b32 v46, v43")
                    a("v_mov_b32 v47, s4")
                    a(f"s_lshl_b32 s4, {sA}, 7")
                    a(f"s_add_u32 s4, s4, {WS_STLL}")
                    a("v_mov_b32 v41, 0")
                    a(f"v_mov_b32 v40, {LDS_KF}")
                    a("s_mov_b64 exec, 0xff")
                    a(f"buffer_store_dwordx4 v[44:47], v2, {srd(SRD_WS)}, s4 offen sc1")
                    a("s_mov_b64 exec, 1")
                    a("ds_write_b32 v40, v41")
                else:
                    a("s_mov_b64 exec, 0xff")
                    a("v_add_u32 v9, 512, v9")
                    a(f"buffer_store_dwordx2 v[42:43], v9, {srd(SRD_WS)}, {sB} offen sc1")
                a("s_mov_b64 exec, -1")
                a(f"s_mov_b32 {sG}, {sA}")
        a.lg = []
        a.label("L_kv_fin")
        self.stamp("kvst")
        a(f"v_xor_b32 {vXt}, 64, {vXa}")
        xa_dma(sG1, sW, vXt)
        self.q_addr(LDS_WA)
        if NF3:
            a(f"s_cmp_eq_u32 {sW}, 1")
            a("s_cbranch_scc1 L_lfv")
            a("s_waitcnt vmcnt(2) lgkmcnt(0)")
            a("s_branch L_lfw")
            a.label("L_lfv")
            a("s_waitcnt vmcnt(3) lgkmcnt(0)")
            a.label("L_lfw")
            a(f"s_and_b32 {sA}, {sID}, 7")
            a(f"s_lshl_b32 {sA}, {sA}, 9")
            a(f"s_lshr_b32 {sB}, {sID}, 6")
            a(f"s_lshl_b32 {sB}, {sB}, 3")
            a(f"s_add_u32 {sB}, {sB}, {sM}")
            a(f"s_lshl_b32 {sB}, {sB}, 4")
            a(f"s_add_u32 {sA}, {sA}, {sB}")
            a(f"s_add_u32 {sA}, {sA}, {WS_FLL}")
            a(f"s_add_u32 {sD}, {sTag}, 1")
            a(f"v_mov_b32 v8, {sD}")
            a(f"v_mov_b32 v9, {sXCC}")
            a("v_mov_b32 v10, 0")
            a("s_mov_b64 exec, 1")
            a(f"s_cmp_eq_u32 {sW}, 1")
            a("s_cbranch_scc1 L_lflagv")
            a(f"buffer_store_dwordx2 v[8:9], v10, {srd(SRD_WS)}, {sA} offen")
            a("s_branch L_lflagd")
            a.label("L_lflagv")
            a(f"buffer_store_dword v8, v10, {srd(SRD_WS)}, {sA} offen offset:8")
            a.label("L_lflagd")
            a("s_mov_b64 exec, -1")
            self.stamp("kvlf")
            a("s_waitcnt vmcnt(2)")
            self.kv_flag()
            self.stamp("kvfl")
            a("s_waitcnt vmcnt(2)")
        else:
            a("s_waitcnt vmcnt(1) lgkmcnt(0)")
            self.kv_flag()
            self.stamp("kvfl")
            a("s_waitcnt vmcnt(1)")
        a("s_branch L_b2")
        a.label("L_kv_done")
        if NF3:
            a(f"s_cmp_eq_u32 {sKH}, 0")
            a("s_cbranch_scc0 L_noqa")
        self.q_addr(LDS_WA)
        if NF3: a.label("L_noqa")
        if X.get("epoll", 0):
            a(f"s_cmp_eq_u32 {sKH}, 0")
            a("s_cbranch_scc1 L_noep")
            if X.get("epsl"): a(f"s_sleep {X['epsl']}")
            self.kv_pload()
            a.label("L_noep")
        if NF3:
            a(f"s_cmp_eq_u32 {sKH}, 0")
            a("s_cbranch_scc1 L_noep3")
            if X.get("lsl"): a(f"s_sleep {X['lsl']}")
            self.l_pload()
            if X.get("cs4"):
                D = X.get("csd", 8)
                a.lg = []
                for i in range(16 - D, X.get("cpre", 16)): self.cs4_one(i, 15 - i + 2)
                self.cs4_flush()
            a.label("L_noep3")
        elif X.get("nf", 1) == 2:
            a(f"s_cmp_eq_u32 {sW}, 7")
            a("s_cbranch_scc0 L_noep7")
            if X.get("ep7", 1):
                self.kv_pload(64)
                a("s_waitcnt vmcnt(5)")
                a("s_branch L_b2")
            a.label("L_noep7")
        elif X.get("nf", 1):
            a(f"s_add_u32 s3, {sTag}, 1")
            if X.get("ep7", 1):
                a(f"s_cmp_eq_u32 {sW}, 7")
                a("s_cbranch_scc0 L_noep7")
                if X.get("epsl"): a(f"s_sleep {X['epsl']}")
                self.kv_pload()
                a("s_waitcnt vmcnt(0)")
                self.kv_check("L_ep7ok")
                a("s_branch L_noep7")
                a.label("L_ep7ok")
                self.kv_setflag()
                a("s_waitcnt lgkmcnt(0)")
                a.label("L_noep7")
        a("s_waitcnt vmcnt(0)")
        a.label("L_b2")
        a("s_barrier")
        self.stamp("b2")
        a(f"s_add_u32 s3, {sTag}, 1")
        a.vm = []
        AF, BF, ACC, CS = 64, 128, 32, 48
        vA = "v20"
        vB = ["v22", "v23", "v24", "v25"]
        a(f"s_cmp_eq_u32 {sKH}, 0")
        a("s_cbranch_scc0 L_hwave")
        a.lg = []
        NB = 5
        def qread(p):
            c, q = p >> 2, p & 3
            sl = p % NB
            off = c * 8192 + q * 2048
            a.ds(f"ds_read_b64_tr_b16 {vr(AF+4*sl,2)}, {vA} offset:{off}", f"q{p}")
            a.ds(f"ds_read_b64_tr_b16 {vr(AF+4*sl+2,2)}, {vA} offset:{off+512}", f"q{p}")
            a.ds(f"ds_read_b128 {vr(BF+4*sl,4)}, {vB[q]} offset:{c*8192}", f"q{p}")
        PRE = 4
        for p in range(PRE): qread(p)
        for p in range(32):
            sl = p % NB
            a.wait_lg(f"q{p}")
            srcC = "0" if p == 0 else vr(ACC, 16)
            a(f"v_mfma_f32_32x32x16_bf16 {vr(ACC,16)}, {vr(AF+4*sl,4)}, {vr(BF+4*sl,4)}, {srcC}")
            nx = p + PRE
            if nx < 32: qread(nx)
        self.stamp("q1")
        a("s_branch L_b3a")
        a.label("L_hwave")
        self.h_front()
        a.label("L_b3a")
        if X.get("nf", 1) != 3:
            a("s_barrier")
        self.stamp("q2")

    def q_addr(self, LDS_WA):
        a = self.a
        a("v_bfe_u32 v8, v1, 2, 2")
        a("v_lshrrev_b32 v9, 5, v1")
        a("v_lshl_add_u32 v9, v9, 3, v8")
        a("v_lshlrev_b32 v9, 7, v9")
        a("v_bfe_u32 v10, v1, 4, 1")
        a("v_lshlrev_b32 v10, 5, v10")
        a("v_and_b32 v11, 3, v1")
        a("v_lshl_add_u32 v10, v11, 3, v10")
        a(f"s_lshl_b32 {sA}, {sFT}, 6")
        a(f"v_add_u32 v10, {sA}, v10")
        a("v_bfe_u32 v11, v1, 3, 1")
        a("v_lshlrev_b32 v11, 6, v11")
        a("v_xor_b32 v10, v10, v11")
        a("v_add_u32 v9, v9, v10")
        a(f"s_and_b32 {sA}, {sKH}, {sTT}")
        a(f"s_lshl_b32 {sA}, {sA}, 15")
        a(f"s_add_u32 {sA}, {sA}, {LDS_WA}")
        a(f"v_add_u32 v20, {sA}, v9")
        a("v_and_b32 v8, 31, v1")
        a("v_bfe_u32 v9, v1, 1, 3")
        a("v_lshrrev_b32 v10, 5, v1")
        a("v_xor_b32 v9, v9, v10")
        a("v_lshlrev_b32 v9, 4, v9")
        a("v_lshl_add_u32 v8, v8, 7, v9")
        a(f"s_lshl_b32 {sB}, {sTT}, 12")
        a(f"v_add_u32 v22, {sB}, v8")
        a("v_xor_b32 v23, 32, v22")
        a("v_xor_b32 v24, 64, v22")
        a("v_xor_b32 v25, 96, v22")
        if self.opt.get("nf", 1) == 3: return
        self.q_addr2()

    def q_addr2(self):
        a = self.a
        self.kv_addr()
        if self.opt.get("nf", 1) == 3:
            self.l_addr()
        if self.opt.get("nf", 1):
            if self.opt.get("norep"):
                a(f"s_mov_b32 s66, {WS_FLKV2}")
            else:
                a(f"s_and_b32 s66, {sID}, 7")
                a("s_lshl_b32 s66, s66, 12")
                a(f"s_add_u32 s66, s66, {WS_FLKV2}")
        else:
            a(f"s_mov_b32 s66, {WS_FLKV}")

    def kv_pload(self, base=64, stats=True):
        for q in range(4):
            self.a(f"buffer_load_dwordx4 {vr(base+4*q,4)}, v2, {srd(SRD_WS)}, s66 offen offset:{1024*q} sc1")
        if self.opt.get("nf", 1) and stats:
            self.a(f"buffer_load_dwordx4 {vr(base+16,4)}, v2, {srd(SRD_WS)}, {'s86' if self.opt.get('nf', 1) == 3 else 's65'} offen sc1")

    def kv_check(self, lab_ok, base=64, stats=True):
        a = self.a
        t0, t1 = "v84", "v85"
        a(f"v_xor_b32 {t0}, s3, v{base}")
        a(f"v_xor_b32 {t1}, s3, v{base+2}")
        a(f"v_or_b32 {t0}, {t0}, {t1}")
        for q in range(1, 4):
            a(f"v_xor_b32 {t1}, s3, v{base+4*q}")
            a(f"v_or_b32 {t0}, {t0}, {t1}")
            a(f"v_xor_b32 {t1}, s3, v{base+2+4*q}")
            a(f"v_or_b32 {t0}, {t0}, {t1}")
        if stats:
            a(f"v_xor_b32 {t1}, s3, v{base+17}")
            a(f"v_or_b32 {t0}, {t0}, {t1}")
            a(f"v_xor_b32 {t1}, s3, v{base+19}")
            a(f"v_or_b32 {t0}, {t0}, {t1}")
        a(f"v_cmp_ne_u32 vcc, 0, {t0}")
        a(f"s_cbranch_vccz {lab_ok}")

    def l_addr(self):
        a = self.a
        a(f"s_and_b32 s82, {sID}, 7")
        a("s_lshl_b32 s77, s82, 9")
        a(f"s_add_u32 s77, s77, {WS_FLL}")
        a(f"s_lshl_b32 s78, {sC}, 10")
        a(f"s_add_u32 s78, s78, {WS_STL}")
        a(f"s_lshr_b32 s79, {sID}, 6")
        a(f"s_xor_b32 s79, s79, {sFT}")
        a("s_lshl_b32 s79, s79, 16")
        a(f"s_lshl_b32 s80, {sTT}, 12")
        a(f"s_and_b32 s81, {sW}, 3")
        a("s_lshl_b32 s81, s81, 11")
        a("v_and_b32 v216, 31, v1")
        a("v_lshlrev_b32 v216, 4, v216")
        a(f"s_lshl_b32 s86, {sC}, 10")
        a(f"s_add_u32 s86, s86, {WS_STLL}")

    def cs4_one(self, i, nyoung):
        a = self.a
        if i == 0:
            a("s_mov_b32 s74, 0x00003f80")
            a("s_mov_b32 s75, 0x3f800000")
            self.cs4_pend = None
        if nyoung is not None: a(f"s_waitcnt vmcnt({nyoung})")
        a.ds(f"ds_read_b128 {vr(128 + 4 * (i % 3), 4)}, v217 offset:{i * 4096}", f"cb{i}")
        self.cs4_flush()
        self.cs4_pend = i
    def cs4_flush(self):
        a = self.a
        i = self.cs4_pend
        if i is None: return
        a.wait_lg(f"cb{i}")
        for r in range(4):
            x = 128 + 4 * (i % 3) + r
            a(f"v_dot2_f32_bf16 v{48 + 2 * r}, v{x}, s74, {'0' if i == 0 else f'v{48 + 2 * r}'}")
            a(f"v_dot2_f32_bf16 v{49 + 2 * r}, v{x}, s75, {'0' if i == 0 else f'v{49 + 2 * r}'}")
        self.cs4_pend = None
    def cs4_steps(self, lo, hi, nyoung):
        for i in range(lo, hi): self.cs4_one(i, None)
        self.cs4_flush()

    def cs4_reduce(self, mid=None):
        a = self.a
        R = list(range(48, 56)); T = list(range(136, 144))
        for r in R: a(f"v_add_f32_dpp v{r}, v{r}, v{r} row_ror:8 row_mask:0xf bank_mask:0xf")
        for r, t in zip(R, T): a(f"v_mov_b32 v{t}, v{r}")
        for r, t in zip(R, T): a(f"v_permlane32_swap_b32 v{r}, v{t}")
        for r, t in zip(R, T): a(f"v_add_f32 v{r}, v{r}, v{t}")
        if mid: mid()
        for r, t in zip(R, T): a(f"v_mov_b32 v{t}, v{r}")
        for r, t in zip(R, T): a(f"v_permlane16_swap_b32 v{r}, v{t}")
        for r, t in zip(R, T): a(f"v_add_f32_dpp v{r}, v{t}, v{r} row_ror:4 row_mask:0xf bank_mask:0xf")

    def early_setup(self):
        a = self.a
        VF, IDX = 88, 56
        a(f"v_mov_b32 v{VF}, 0x3f803f80")
        for i in range(1, 16):
            a(f"v_mov_b32 v{VF+i}, v{VF}")
        a(f"v_mov_b32 v{IDX}, 0xdddddddd")
        a("v_mov_b32 v104, v2")
        a("v_add_u32 v106, 0x10000, v2")
        a("v_and_b32 v120, 15, v1")
        a("v_lshlrev_b32 v120, 4, v120")
        a("v_lshrrev_b32 v121, 5, v1")
        a("v_lshl_or_b32 v120, v121, 8, v120")
        a("v_add_u32 v105, 1024, v120")
        a("v_add_u32 v107, 0x10000, v105")
        self.wt_addr("v108", "v109", T=(120, 121, 122))
        self.wt_poll_addr()
        a("s_mov_b32 s6, 0x0000ffff")
        a("s_mov_b32 s7, 0x0000ffff")
        self.wt_issue(phase="pre")
        self.q_addr2()

    def fg_set(self, off, tmp0, tmp1, perwave=False):
        a = self.a
        if perwave:
            a(f"s_and_b32 {sA}, {sW}, 3")
            a(f"s_lshl_b32 {sA}, {sA}, 2")
            a(f"s_add_u32 {sA}, {sA}, {LDS_FG + off}")
            a(f"v_mov_b32 {tmp1}, {sA}")
        else:
            a(f"v_mov_b32 {tmp1}, {LDS_FG + off}")
        a(f"v_mov_b32 {tmp0}, 1")
        a("s_mov_b64 exec, 1")
        a(f"ds_write_b32 {tmp1}, {tmp0}")
        a("s_mov_b64 exec, -1")

    def rem_dma(self, n, yk=True):
        a = self.a
        k = n >> 1
        if yk:
            a(f"s_add_u32 s4, {sM}, {k}")
            a("s_cmp_ge_u32 s4, 7")
            a("s_cselect_b32 s5, 7, 0")
            a("s_sub_u32 s4, s4, s5")
            a("s_add_u32 s4, s4, 1")
            a("s_xor_b32 s4, s4, s82")
            a("s_lshl_b32 s4, s4, 13")
            a("s_add_u32 s85, s4, s80")
        a(f"s_xor_b32 s5, s79, {(2 * (n & 1)) << 16}")
        a("s_add_u32 s5, s5, s85")
        if n == 9:
            a(f"s_add_u32 {sB}, s81, {44 * 2048}")
            a(f"s_cmp_eq_u32 {sW}, 6")
            a(f"s_cselect_b32 {sB}, {64 * 2048}, {sB}")
            self.kv_dma("s5", 0, base=sB)
        else:
            p0 = 4 * n if n < 8 else (40 if n == 8 else 4 * n + 8)
            self.kv_dma("s5", p0 * 2048)

    def qd_check(self):
        a = self.a
        lsp, lok = a.newlabel("L_qsp"), a.newlabel("L_qok")
        a(f"s_mov_b32 {sCnt}, 2000000")
        a.label(lsp)
        a("ds_read_b128 v[224:227], v61 offset:48")
        a("ds_read_b128 v[228:231], v61 offset:64")
        a("s_waitcnt lgkmcnt(0)")
        for r in range(225, 232): a(f"v_and_b32 v224, v224, v{r}")
        a("v_readfirstlane_b32 s4, v224")
        a("s_cmp_lg_u32 s4, 0")
        a(f"s_cbranch_scc1 {lok}")
        a(f"s_sub_u32 {sCnt}, {sCnt}, 1")
        a(f"s_cmp_eq_u32 {sCnt}, 0")
        a(f"s_cbranch_scc0 {lsp}")
        a.label(lok)

    def gok_block(self):
        a = self.a; X = self.opt
        PA, PB, PC = 160, 180, 196
        a(f"s_cmp_eq_u32 {sW}, 7")
        a("s_cbranch_scc0 L_rspin")
        a("s_cmp_eq_u32 s83, 0")
        a("s_cbranch_scc0 L_gok")
        a("s_waitcnt vmcnt(10)")
        self.kv_check("L_gokA", PA, stats=False)
        a("s_waitcnt vmcnt(6)")
        self.kv_check("L_gokB", PB, stats=False)
        a("s_waitcnt vmcnt(2)")
        self.kv_check("L_gokC", PC, stats=False)
        a(f"s_mov_b32 {sCnt}, 200000")
        a.label("L_gloop")
        self.kv_pload(PA, stats=False)
        a("s_waitcnt vmcnt(0)")
        self.kv_check("L_gokA", PA, stats=False)
        a(f"s_sub_u32 {sCnt}, {sCnt}, 1")
        a(f"s_cmp_eq_u32 {sCnt}, 0")
        a("s_cbranch_scc0 L_gloop")
        a.label("L_gokA")
        self.fg_set(4, "v224", "v225")
        for q in range(4): a(f"v_mov_b32 v{220+q}, v{PA+1+4*q}")
        a("s_branch L_rgo")
        a.label("L_gokB")
        self.fg_set(4, "v224", "v225")
        for q in range(4): a(f"v_mov_b32 v{220+q}, v{PB+1+4*q}")
        a("s_branch L_rgo")
        a.label("L_gokC")
        self.fg_set(4, "v224", "v225")
        for q in range(4): a(f"v_mov_b32 v{220+q}, v{PC+1+4*q}")
        a("s_branch L_rgo")
        a.label("L_gok")
        self.fg_set(4, "v224", "v225")
        a("s_branch L_rgo")
        a.label("L_rspin")
        a(f"s_mov_b32 {sCnt}, 2000000")
        a.label("L_rspin1")
        a("ds_read_b32 v224, v61 offset:4")
        a("s_waitcnt lgkmcnt(0)")
        a("v_readfirstlane_b32 s4, v224")
        a("s_cmp_lg_u32 s4, 0")
        a("s_cbranch_scc1 L_rgo")
        a(f"s_sub_u32 {sCnt}, {sCnt}, 1")
        a(f"s_cmp_eq_u32 {sCnt}, 0")
        a("s_cbranch_scc0 L_rspin1")
        a.label("L_rgo")
        self.stamp("gok")

    def l_pload(self):
        a = self.a
        a(f"buffer_load_dwordx4 v[208:211], v216, {srd(SRD_WS)}, s77 offen sc1")
        a(f"buffer_load_dwordx4 v[212:215], v2, {srd(SRD_WS)}, s78 offen sc1")

    def l_check(self, lab_ok):
        a = self.a
        a("v_xor_b32 v84, s3, v208")
        a("v_xor_b32 v85, s3, v210")
        a("v_or_b32 v84, v84, v85")
        a(f"v_xor_b32 v85, {sXCC}, v209")
        a("v_or_b32 v84, v84, v85")
        a("v_xor_b32 v85, s3, v213")
        a("v_or_b32 v84, v84, v85")
        a("v_xor_b32 v85, s3, v215")
        a("v_or_b32 v84, v84, v85")
        a("v_cmp_ne_u32 vcc, 0, v84")
        a(f"s_cbranch_vccz {lab_ok}")

    def kv_dma(self, src, lds_imm, base="s81"):
        a = self.a
        a(f"s_add_u32 m0, {base}, {lds_imm}")
        a(f"buffer_load_dwordx4 v59, {srd(SRD_WS)}, {src} offen sc1 lds")
        a(f"s_add_u32 m0, {base}, {lds_imm + 1024}")
        a(f"buffer_load_dwordx4 v60, {srd(SRD_WS)}, {src} offen sc1 lds")

    def kv_setflag(self):
        a = self.a
        a("v_mov_b32 v84, 1")
        a(f"v_mov_b32 v85, {LDS_FG if self.opt.get('nf', 1) == 3 else LDS_KF}")
        a("s_mov_b64 exec, 1")
        a("ds_write_b32 v85, v84")
        a("s_mov_b64 exec, -1")

    def kv_tile(self, spos):
        a = self.a
        a(f"s_add_u32 {sD}, {spos}, s64")
        a(f"s_and_b32 {sD}, {sD}, 63")
        a(f"s_lshl_b32 {sD}, {sD}, 12")
        a(f"s_add_u32 {sD}, {sD}, {WS_KV}")
        a(f"s_lshl_b32 {sE_}, {spos}, 11")
        a(f"s_mov_b32 m0, {sE_}")
        a(f"buffer_load_dwordx4 v59, {srd(SRD_WS)}, {sD} offen sc1 lds")
        a(f"s_add_u32 m0, {sE_}, 1024")
        a(f"buffer_load_dwordx4 v60, {srd(SRD_WS)}, {sD} offen sc1 lds")

    def kv_addr(self):
        a = self.a
        a("v_bfe_u32 v59, v1, 3, 2")
        a("v_lshlrev_b32 v59, 10, v59")
        a("v_and_b32 v13, 7, v1")
        a("v_lshl_or_b32 v59, v13, 4, v59")
        a("v_lshrrev_b32 v13, 5, v1")
        a("v_lshl_or_b32 v59, v13, 7, v59")
        a("v_lshrrev_b32 v60, 4, v1")
        a("v_lshlrev_b32 v60, 10, v60")
        a("v_and_b32 v13, 15, v1")
        a("v_lshl_or_b32 v60, v13, 4, v60")
        a("v_add_u32 v60, 256, v60")
        if self.opt.get("nf", 1) == 3: return
        a(f"s_lshr_b32 s64, {sID}, 3")
        a(f"s_lshl_b32 s64, s64, 1")
        a("v_bfe_u32 v12, v1, 3, 2")
        a("v_and_b32 v13, 7, v1")
        a("v_lshlrev_b32 v13, 3, v13")
        a("v_lshl_add_u32 v12, v12, 10, v13")
        a(f"s_lshl_b32 {sA}, {sC}, 3")
        a(f"s_lshl_b32 {sB}, {sTT}, 2")
        a(f"s_add_u32 {sA}, {sA}, {sB}")
        a(f"s_lshl_b32 {sA}, {sA}, 10")
        a(f"s_add_u32 s65, {sA}, {WS_KV + 512}")
        if self.opt.get("nf", 1):
            a(f"s_lshl_b32 s65, {sC}, 10")
            a(f"s_add_u32 s65, s65, {WS_STLL}")

    def h_front(self):
        a = self.a
        X = self.opt
        AF, CS = 128, 48
        def check(lab_ok):
            a(f"v_xor_b32 v80, s3, v64")
            a(f"v_xor_b32 v81, s3, v66")
            a("v_or_b32 v80, v80, v81")
            for q in range(1, 4):
                a(f"v_xor_b32 v81, s3, v{64+4*q}")
                a("v_or_b32 v80, v80, v81")
                a(f"v_xor_b32 v81, s3, v{66+4*q}")
                a("v_or_b32 v80, v80, v81")
            a("v_cmp_ne_u32 vcc, 0, v80")
            a(f"s_cbranch_vccz {lab_ok}")
        def chunk0():
            a(f"buffer_load_dwordx2 v[10:11], v12, {srd(SRD_WS)}, s65 offen sc1")
            a(f"s_add_u32 {sF}, {sW}, 28")
            for i in range(4):
                self.kv_tile(sF)
                if i < 3: a(f"s_add_u32 {sF}, {sF}, 4")
        NB = 6
        def cread(p):
            c, q = p >> 2, p & 3
            sl = p % NB
            off = c * 8192 + q * 2048
            a.ds(f"ds_read_b64_tr_b16 {vr(AF+4*sl,2)}, v20 offset:{off}", f"c{p}")
            a.ds(f"ds_read_b64_tr_b16 {vr(AF+4*sl+2,2)}, v20 offset:{off+512}", f"c{p}")
        def csteps(lo, hi):
            for p in range(lo, hi):
                sl = p % NB
                a.wait_lg(f"c{p}")
                for i in range(4):
                    src2 = "0" if p == 0 else f"v{CS+i}"
                    a(f"v_dot2_f32_bf16 v{CS+i}, v{AF+4*sl+i}, s74, {src2}")
                if p + 5 < 16: cread(p + 5)
        if X.get("nf", 1) == 3:
            PA, PB, PC = 160, 180, 196
            sG7 = "s83"
            def tiles():
                if X.get("tsl"): a(f"s_sleep {X['tsl']}")
                lab = a.newlabel("L_tl7")
                a(f"s_mov_b32 {sPh}, 1")
                a(f"s_cmp_eq_u32 {sW}, 7")
                a(f"s_cbranch_scc1 {lab}")
                a("s_lshl_b32 s4, s82, 13")
                a("s_add_u32 s4, s4, s84")
                a(f"s_lshr_b32 {sF}, {sID}, 6")
                a(f"s_sub_u32 {sA}, {sW}, 4")
                for n in range(3):
                    if n == 2:
                        a(f"s_cmp_eq_u32 {sW}, 6")
                        a(f"s_cbranch_scc1 {lab}")
                    a(f"s_lshr_b32 s5, {sA}, 1")
                    a(f"s_xor_b32 s5, s5, {sF}")
                    a("s_lshl_b32 s5, s5, 16")
                    a("s_add_u32 s5, s5, s4")
                    a(f"s_and_b32 {sB}, {sA}, 1")
                    a(f"s_lshl_b32 {sB}, {sB}, 12")
                    a(f"s_add_u32 s5, s5, {sB}")
                    a(f"s_lshl_b32 {sB}, {sA}, 11")
                    a(f"s_add_u32 {sB}, {sB}, {32 * 2048}")
                    self.kv_dma("s5", 0, base=sB)
                    if n < 2: a(f"s_add_u32 {sA}, {sA}, 3")
                a.label(lab)
            def gpoll(base):
                lab = a.newlabel("L_gp")
                a(f"s_cmp_eq_u32 {sW}, 7")
                a(f"s_cbranch_scc0 {lab}")
                a(f"s_cmp_eq_u32 {sG7}, 0")
                a(f"s_cbranch_scc0 {lab}")
                self.kv_pload(base, stats=False)
                a.label(lab)
            CS4 = X.get("cs4")
            if X.get("hprio"): a(f"s_setprio {X['hprio']}")
            if CS4:
                cp_ = X.get("cpre", 16); cm_ = (cp_ + 16) // 2
                def csteps(lo, hi):
                    if lo == 0:
                        if cm_ > cp_: self.cs4_steps(cp_, cm_, None)
                    else:
                        if 16 > cm_: self.cs4_steps(cm_, 16, None)
                        self.cs4_reduce(mid=lambda: gpoll(PB))
            else:
                a("s_mov_b32 s74, 0x3f803f80")
            a(f"v_mov_b32 v86, {LDS_FG}")
            a(f"s_mov_b32 {sG7}, 0")
            a(f"s_mov_b32 {sPh}, 0")
            a(f"s_mov_b32 s84, {WS_KVL}")
            a.lg = []
            if not CS4:
                for p in range(5): cread(p)
            LF = X.get("lfail")
            if not LF: self.l_check("L_lok1")
            self.l_pload()
            a("s_branch L_lc1")
            a.label("L_lok1")
            self.stamp("lok1")
            tiles()
            a.label("L_lc1")
            gpoll(PA)
            NH = X.get("csplit", 8)
            csteps(0, NH)
            self.stamp("cs1")
            a(f"s_cmp_eq_u32 {sPh}, 1")
            a("s_cbranch_scc1 L_lc2")
            a(f"s_cmp_eq_u32 {sW}, 7")
            a("s_cbranch_scc1 L_lw7")
            a("s_waitcnt vmcnt(0)")
            a("s_branch L_lw8")
            a.label("L_lw7")
            a("s_waitcnt vmcnt(4)")
            a.label("L_lw8")
            if not LF: self.l_check("L_lok2")
            self.l_pload()
            a("s_branch L_lc2")
            a.label("L_lok2")
            self.stamp("lok2")
            tiles()
            a.label("L_lc2")
            csteps(NH, 16)
            self.stamp("cs2")
            a(f"s_cmp_eq_u32 {sPh}, 1")
            a("s_cbranch_scc1 L_ldone")
            a("s_waitcnt vmcnt(0)")
            if not LF: self.l_check("L_lgo")
            a(f"s_mov_b32 {sCnt}, 200000")
            a.label("L_lsl1")
            self.l_pload()
            a(f"s_cmp_eq_u32 {sW}, 7")
            a("s_cbranch_scc0 L_lsl2")
            self.kv_pload(PA)
            a("s_waitcnt vmcnt(0)")
            if not LF: self.l_check("L_lgo7")
            self.kv_check("L_lsl3", PA)
            a("s_branch L_lsl4")
            a.label("L_lsl3")
            self.kv_setflag()
            a(f"s_mov_b32 {sG7}, 1")
            a(f"v_mov_b32 v212, v{PA+16}")
            a(f"v_mov_b32 v214, v{PA+18}")
            for q in range(4): a(f"v_mov_b32 v{220+q}, v{PA+1+4*q}")
            a(f"s_mov_b32 s84, {WS_KV}")
            a("s_branch L_lgo")
            a.label("L_lsl2")
            a("ds_read_b32 v87, v86")
            a("s_waitcnt vmcnt(0) lgkmcnt(0)")
            if not LF: self.l_check("L_lgo")
            a("v_readfirstlane_b32 s4, v87")
            a("s_cmp_lg_u32 s4, 0")
            a("s_cbranch_scc0 L_lsl4")
            a(f"s_mov_b32 s84, {WS_KV}")
            a("s_branch L_lgo")
            a.label("L_lsl4")
            a(f"s_sub_u32 {sCnt}, {sCnt}, 1")
            a(f"s_cmp_eq_u32 {sCnt}, 0")
            a("s_cbranch_scc0 L_lsl1")
            a.label("L_lgo7")
            a.label("L_lgo")
            self.stamp("lok3")
            tiles()
            gpoll(PA)
            gpoll(PB)
            a.label("L_ldone")
            gpoll(PC)
            if CS4:
                lab = a.newlabel("L_tw")
                a(f"s_cmp_eq_u32 {sW}, 7")
                a(f"s_cbranch_scc1 {lab}")
                a("s_waitcnt vmcnt(0)")
                a.label(lab)
                return
            a(f"v_add_f32 v{CS}, v{CS}, v{CS+1}")
            a(f"v_add_f32 v{CS+2}, v{CS+2}, v{CS+3}")
            a(f"v_add_f32 v{CS}, v{CS}, v{CS+2}")
            a(f"v_mov_b32 v9, v{CS}")
            a(f"v_permlane32_swap_b32 v{CS}, v9")
            a(f"v_add_f32 v{CS}, v{CS}, v9")
            return
        if X.get("nf", 1) == 2:
            PA, PB = 64, 88
            a("s_mov_b32 s74, 0x3f803f80")
            a(f"v_mov_b32 v86, {LDS_KF}")
            a.lg = []
            for p in range(5): cread(p)
            a(f"s_cmp_eq_u32 {sW}, 7")
            a("s_cbranch_scc1 L_w7f")
            saved = list(a.lg)
            NH = X.get("csplit", 8)
            csteps(0, NH)
            a(f"s_mov_b32 {sCnt}, 2000000")
            a.label("L_kv_spin1")
            a("ds_read_b32 v87, v86")
            a("s_waitcnt lgkmcnt(0)")
            a("v_readfirstlane_b32 s4, v87")
            a("s_cmp_lg_u32 s4, 0")
            a("s_cbranch_scc1 L_kv_go2")
            a(f"s_sub_u32 {sCnt}, {sCnt}, 1")
            a(f"s_cmp_eq_u32 {sCnt}, 0")
            a("s_cbranch_scc0 L_kv_spin1")
            a.label("L_kv_go2")
            self.stamp("kvok")
            a(f"s_add_u32 {sF}, {sW}, 28")
            for i in range(5):
                self.kv_tile(sF)
                if i < 4: a(f"s_add_u32 {sF}, {sF}, 3")
            if NH < 16: a.lg = [x for x in a.lg]
            csteps(NH, 16)
            a("s_branch L_hfin")
            a.label("L_w7f")
            a.lg = saved
            a(f"s_mov_b32 {sPh}, 0")
            if not X.get("ep7", 1): self.kv_pload(PA)
            self.kv_pload(PB)
            def cp(base, other, k):
                lab = a.newlabel("L_cp"); lok = a.newlabel("L_cpok")
                a(f"s_cmp_lg_u32 {sPh}, 0")
                a(f"s_cbranch_scc1 {lab}")
                a("s_waitcnt vmcnt(5)")
                if self.prof and X.get("cpdbg"):
                    if k == 0 and not getattr(self, "_cp0", 0):
                        self._cp0 = 1
                        self.stamp("cp0")
                        a("s_mov_b32 s75, 0")
                    a("s_add_u32 s75, s75, 1")
                self.kv_check(lok, base)
                self.kv_pload(base)
                a(f"s_branch {lab}")
                a.label(lok)
                self.kv_setflag()
                a(f"s_mov_b32 {sPh}, {1 if base == PA else 2}")
                a.label(lab)
            G7 = X.get("g7", 4)
            cp(PA, PB, 0)
            n = 0
            while n < 16:
                csteps(n, min(16, n + G7)); n += G7
                if n < 16: cp(PB if (n // G7) % 2 == 1 else PA, None, n)
            nxt = [PB, PA] if ((16 + G7 - 1) // G7) % 2 == 1 else [PA, PB]
            a(f"s_mov_b32 {sCnt}, 100000")
            a.label("L_w7loop")
            cp(nxt[0], None, 0)
            cp(nxt[1], None, 0)
            a(f"s_cmp_lg_u32 {sPh}, 0")
            a("s_cbranch_scc1 L_w7ok")
            a(f"s_sub_u32 {sCnt}, {sCnt}, 1")
            a(f"s_cmp_eq_u32 {sCnt}, 0")
            a("s_cbranch_scc0 L_w7loop")
            a.label("L_w7ok")
            self.stamp("kvok7")
            if self.prof and X.get("cpdbg"):
                i = self.nstamp; self.nstamp += 1
                self.stamp_names.append("ncp")
                a(f"v_writelane_b32 v0, s75, {i}")
            a("s_waitcnt vmcnt(0)")
            a(f"s_cmp_eq_u32 {sPh}, 2")
            a("s_cbranch_scc0 L_w7cp")
            for r in (1, 5, 9, 13, 16, 18):
                a(f"v_mov_b32 v{PA+r}, v{PB+r}")
            a.label("L_w7cp")
            a.label("L_hfin")
            a(f"v_add_f32 v{CS}, v{CS}, v{CS+1}")
            a(f"v_add_f32 v{CS+2}, v{CS+2}, v{CS+3}")
            a(f"v_add_f32 v{CS}, v{CS}, v{CS+2}")
            a(f"v_mov_b32 v9, v{CS}")
            a(f"v_permlane32_swap_b32 v{CS}, v9")
            a(f"v_add_f32 v{CS}, v{CS}, v9")
            return
        if X.get("nf", 1):
            def chunk0n():
                a(f"s_add_u32 {sF}, {sW}, 28")
                for i in range(4):
                    if i == 3:
                        lab = a.newlabel("L_c0skip")
                        a(f"s_cmp_eq_u32 {sW}, 7")
                        a(f"s_cbranch_scc1 {lab}")
                    self.kv_tile(sF)
                    if i < 3: a(f"s_add_u32 {sF}, {sF}, 4")
                a.label(lab)
            a("s_mov_b32 s74, 0x3f803f80")
            a(f"v_mov_b32 v86, {LDS_KF}")
            a.lg = []
            a.ds("ds_read_b32 v87, v86", "kf")
            for p in range(5): cread(p)
            a.wait_lg("kf")
            a(f"v_readfirstlane_b32 {sPh}, v87")
            a(f"s_cmp_eq_u32 {sPh}, 0")
            a("s_cbranch_scc1 L_kv_notyet")
            chunk0n()
            a("s_branch L_kv_cs")
            a.label("L_kv_notyet")
            a(f"s_cmp_eq_u32 {sW}, 7")
            a("s_cbranch_scc0 L_kv_cs")
            self.kv_pload()
            a.label("L_kv_cs")
            csteps(0, 16)
            a(f"v_add_f32 v{CS}, v{CS}, v{CS+1}")
            a(f"v_add_f32 v{CS+2}, v{CS+2}, v{CS+3}")
            a(f"v_add_f32 v{CS}, v{CS}, v{CS+2}")
            a(f"v_mov_b32 v9, v{CS}")
            a(f"v_permlane32_swap_b32 v{CS}, v9")
            a(f"v_add_f32 v{CS}, v{CS}, v9")
            a(f"s_cmp_lg_u32 {sPh}, 0")
            a("s_cbranch_scc1 L_kv_have")
            a(f"s_cmp_eq_u32 {sW}, 7")
            a("s_cbranch_scc0 L_kv_spin")
            a(f"s_mov_b32 {sCnt}, 200000")
            a.label("L_poll_kv")
            a("s_waitcnt vmcnt(0)")
            self.kv_check("L_pollok_kv")
            a(f"s_sub_u32 {sCnt}, {sCnt}, 1")
            a(f"s_cmp_eq_u32 {sCnt}, 0")
            a("s_cbranch_scc1 L_pollok_kv")
            a(f"s_sleep {X.get('kvsl', 2)}")
            self.kv_pload()
            a("s_branch L_poll_kv")
            a.label("L_pollok_kv")
            self.kv_setflag()
            a("s_branch L_kv_go2")
            a.label("L_kv_spin")
            a(f"s_mov_b32 {sCnt}, 2000000")
            a.label("L_kv_spin1")
            a("ds_read_b32 v87, v86")
            a("s_waitcnt lgkmcnt(0)")
            a("v_readfirstlane_b32 s4, v87")
            a("s_cmp_lg_u32 s4, 0")
            a("s_cbranch_scc1 L_kv_go2")
            a(f"s_sub_u32 {sCnt}, {sCnt}, 1")
            a(f"s_cmp_eq_u32 {sCnt}, 0")
            a("s_cbranch_scc0 L_kv_spin1")
            a.label("L_kv_go2")
            chunk0n()
            a.label("L_kv_have")
            self.stamp("kvok")
            return
        a("s_mov_b32 s74, 0x3f803f80")
        a(f"s_mov_b32 {sPh}, 0")
        a.lg = []
        for p in range(5): cread(p)
        if X.get("epoll", 0):
            check("L_kv_early")
            self.kv_pload()
            a("s_branch L_kv_late")
            a.label("L_kv_early")
            chunk0()
            a(f"s_mov_b32 {sPh}, 1")
            a.label("L_kv_late")
        else:
            self.kv_pload()
        NH = X.get("csplit", 8)
        csteps(0, NH)
        a(f"s_cmp_eq_u32 {sPh}, 1")
        a("s_cbranch_scc1 L_kv_have")
        a(f"s_mov_b32 {sCnt}, 200000")
        a.label("L_poll_kv")
        a("s_waitcnt vmcnt(0)")
        check("L_pollok_kv")
        a(f"s_sub_u32 {sCnt}, {sCnt}, 1")
        a(f"s_cmp_eq_u32 {sCnt}, 0")
        a("s_cbranch_scc1 L_pollok_kv")
        a(f"s_sleep {X.get('kvsl', 2)}")
        self.kv_pload()
        a("s_branch L_poll_kv")
        a.label("L_pollok_kv")
        self.stamp("kvok")
        chunk0()
        a.label("L_kv_have")
        csteps(NH, 16)
        a(f"v_add_f32 v{CS}, v{CS}, v{CS+1}")
        a(f"v_add_f32 v{CS+2}, v{CS+2}, v{CS+3}")
        a(f"v_add_f32 v{CS}, v{CS}, v{CS+2}")
        a(f"v_mov_b32 v9, v{CS}")
        a(f"v_permlane32_swap_b32 v{CS}, v9")
        a(f"v_add_f32 v{CS}, v{CS}, v9")

    def poll_begin(self, name, limit=200000):
        a = self.a
        a(f"s_mov_b32 {sCnt}, {limit}")
        a.label(f"L_poll_{name}")
    def poll_end(self, name, sleep=1):
        a = self.a
        a(f"s_cbranch_vccz L_pollok_{name}")
        a(f"s_sub_u32 {sCnt}, {sCnt}, 1")
        a(f"s_cmp_eq_u32 {sCnt}, 0")
        a(f"s_cbranch_scc1 L_pollok_{name}")
        if sleep: a(f"s_sleep {sleep}")
        a(f"s_branch L_poll_{name}")
        a.label(f"L_pollok_{name}")

    def p2(self):
        a = self.a
        X = self.opt
        LDS_E = 132 * 1024
        Q, NEGM, S0, S1, IDX, O, KF, VF = 4, 8, 24, 40, 56, 64, 80, 88
        vKa, vVa, vKb, vVb = "v104", "v105", "v106", "v107"
        vT1, vT2 = "v108", "v109"
        PL = 110
        WD = 112
        W1 = 128
        sTG = "s3"
        LDS_BC, LDS_CS, LDS_EX = 156 * 1024, 157 * 1024, 148 * 1024
        NF3 = X.get("nf", 1) == 3
        FB = LDS_FG if NF3 else LDS_BC
        BCO = 96 if NF3 else 0
        if NF3: LDS_BC = LDS_FG + 96
        LST = LDS_ST
        if NF3: LDS_EX, LDS_CS, LST = 80 * 1024, 88 * 1024, 89 * 1024
        CSR = 112 if NF3 else 84
        ACC, CS = 32, 48
        sRot = "s64"
        kv_tile = self.kv_tile
        a(f"s_cmp_eq_u32 {sKH}, 0")
        a("s_cbranch_scc0 L_p2h")
        if not X.get("nf", 1):
            a(f"buffer_load_dwordx2 v[10:11], v12, {srd(SRD_WS)}, s65 offen sc1")
        a(f"s_lshl_b32 {sA}, {sW}, 11")
        a(f"s_add_u32 {sA}, {sA}, {LDS_EX}")
        a(f"v_add_u32 v8, {sA}, v2")
        a(f"ds_write_b128 v8, {vr(ACC+8,4)}")
        a(f"ds_write_b128 v8, {vr(ACC+12,4)} offset:1024")
        a("s_branch L_p2j")
        a.label("L_p2h")
        if NF3:
            a(f"s_cmp_eq_u32 {sW}, 7")
            a("s_cbranch_scc0 L_p2h7")
            a("v_mov_b32 v213, v214")
            a("v_lshlrev_b32 v84, 3, v1")
            a(f"v_add_u32 v84, {LST}, v84")
            a("ds_write_b64 v84, v[212:213]")
            a.label("L_p2h7")
        elif X.get("nf", 1):
            a(f"s_cmp_eq_u32 {sW}, 7")
            a("s_cbranch_scc0 L_p2h7")
            a(f"s_mov_b32 {sF}, 47")
            kv_tile(sF)
            a("v_mov_b32 v81, v82")
            a("v_lshlrev_b32 v84, 3, v1")
            a(f"v_add_u32 v84, {LDS_ST}, v84")
            a("ds_write_b64 v84, v[80:81]")
            a.label("L_p2h7")
        if X.get("cs4"):
            a(f"s_and_b32 {sA}, {sW}, 3")
            a(f"s_lshl_b32 {sA}, {sA}, 8")
            a(f"s_add_u32 {sA}, {sA}, {LDS_CS}")
            a("v_lshlrev_b32 v9, 5, v1")
            a(f"v_add_u32 v9, {sA}, v9")
            a("s_mov_b64 exec, 0xff")
            a("ds_write_b128 v9, v[48:51]")
            a("ds_write_b128 v9, v[52:55] offset:16")
            a("s_mov_b64 exec, -1")
            a("s_branch L_p2j")
        a("v_and_b32 v9, 31, v1")
        a(f"s_lshl_b32 {sA}, {sTT}, 1")
        a(f"s_add_u32 {sA}, {sA}, {sFT}")
        a(f"s_lshl_b32 {sA}, {sA}, 7")
        a(f"s_add_u32 {sA}, {sA}, {LDS_CS}")
        a("v_lshlrev_b32 v9, 2, v9")
        a(f"v_add_u32 v9, {sA}, v9")
        a(f"ds_write_b32 v9, v{CS}")
        a.label("L_p2j")
        if NF3:
            for i in range(16):
                a(f"v_mov_b32 v{O+i}, 0")
        a("s_waitcnt lgkmcnt(0)")
        a("s_barrier")
        self.stamp("b3")
        if NF3:
            self.wt_issue(phase="go")
        a.lg = []
        a("v_lshrrev_b32 v9, 5, v1")
        a("v_lshlrev_b32 v9, 4, v9")
        a(f"s_lshl_b32 {sA}, {sFT}, 7")
        a(f"s_lshl_b32 {sB}, {sKH}, 6")
        a(f"s_add_u32 {sA}, {sA}, {sB}")
        a(f"s_add_u32 {sA}, {sA}, {LDS_CS}")
        a(f"v_add_u32 v9, {sA}, v9")
        NCS = 4 if X.get("cs4") else 2
        for q in range(NCS):
            a.ds(f"ds_read_b128 {vr(CSR+8*q,4)}, v9 offset:{q*256}", "cs")
            a.ds(f"ds_read_b128 {vr(CSR+4+8*q,4)}, v9 offset:{q*256+32}", "cs")
        if X.get("nf", 1):
            a("v_and_b32 v10, 31, v1")
            a(f"s_lshl_b32 {sA}, {sTT}, 8")
            a(f"s_add_u32 {sA}, {sA}, {LST}")
            a("v_lshlrev_b32 v10, 3, v10")
            a(f"v_add_u32 v10, {sA}, v10")
            a("ds_read_b64 v[10:11], v10")
        a(f"s_cmp_eq_u32 {sKH}, 0")
        a("s_cbranch_scc1 L_p2k")
        a(f"s_lshl_b32 {sA}, {sW}, 11")
        a(f"s_add_u32 {sA}, {sA}, {LDS_EX - 4*2048}")
        a(f"v_add_u32 v8, {sA}, v2")
        a(f"ds_read_b128 {vr(ACC,4)}, v8")
        a(f"ds_read_b128 {vr(ACC+4,4)}, v8 offset:1024")
        a.label("L_p2k")
        a("s_waitcnt lgkmcnt(0)")
        a.lg = []
        if NF3:
            a(f"s_lshl_b32 {sA}, {sW}, 2")
            a(f"s_add_u32 {sA}, {sA}, {LDS_FG + 48}")
            a(f"v_mov_b32 v85, {sA}")
            a("v_mov_b32 v84, 1")
            a("s_mov_b64 exec, 1")
            a("ds_write_b32 v85, v84")
            a("s_mov_b64 exec, -1")
            a(f"v_mov_b32 v61, {LDS_FG}")
            a(f"s_cmp_eq_u32 {sKH}, 0")
            a("s_cbranch_scc1 L_qfin")
            a("s_setprio 3")
            self.gok_block()
            a(f"s_add_u32 s80, s80, {WS_KV}")
            for n in range(4): self.rem_dma(n, yk=(n % 2 == 0))
            self.stamp("eiss")
            a.label("L_qfin")
        for i in range(8):
            a(f"v_add_f32 v{40+i}, v{CSR+i}, v{CSR+8+i}")
        if NCS == 4:
            for i in range(8):
                a(f"v_add_f32 v{CSR+i}, v{CSR+16+i}, v{CSR+24+i}")
            for i in range(8):
                a(f"v_add_f32 v{40+i}, v{40+i}, v{CSR+i}")
        if not X.get("nf", 1):
            a(f"s_cmp_eq_u32 {sKH}, 0")
            a("s_cbranch_scc1 L_p2w")
            a("s_waitcnt vmcnt(8)")
            a("s_branch L_p2x")
            a.label("L_p2w")
            a("s_waitcnt vmcnt(0)")
            a.label("L_p2x")
        a(f"v_mul_f32 v11, 0x{f32bits(0.25*LOG2E):x}, v11")
        for i in range(8):
            a(f"v_fma_f32 v{32+i}, -v10, v{40+i}, v{32+i}")
        for i in range(8):
            a(f"v_mul_f32 v{32+i}, v11, v{32+i}")
        for i in range(4):
            a(f"v_cvt_pk_bf16_f32 v{Q+i}, v{32+2*i}, v{33+2*i}")
        if self.stop == "q":
            self.dump_regs(0, [Q, Q+1, Q+2, Q+3], WS_DBG)
            return
        a(f"v_dot2_f32_bf16 v12, v{Q}, v{Q}, 0")
        for i in range(1, 4):
            a(f"v_dot2_f32_bf16 v12, v{Q+i}, v{Q+i}, v12")
        a("v_mov_b32 v13, v12")
        a("v_permlane32_swap_b32 v12, v13")
        a("v_add_f32 v12, v12, v13")
        a("v_sqrt_f32 v12, v12")
        a(f"v_mul_f32 v12, 0x{f32bits(1.0078125):x}, v12")
        self.stamp("qfin")
        if not NF3: self.wt_issue()
        def knorm(R):
            a(f"v_and_b32 v80, -8, v{R[0]}")
            for q in range(1, 4):
                a(f"v_and_b32 v81, -8, v{R[q]}")
                a("v_max_f32 v80, v80, v81")
            a(f"s_lshr_b32 {sB}, {sC}, 3")
            a(f"v_mov_b32 v82, v{R[0]}")
            for q in range(1, 4):
                a(f"s_cmp_eq_u32 {sB}, {q}")
                a("s_cselect_b64 vcc, -1, 0")
                a(f"v_cndmask_b32 v82, v82, v{R[q]}, vcc")
            a(f"v_xor_b32 v82, {sXCC}, v82")
            a("v_and_b32 v82, 7, v82")
            a("v_cmp_ne_u32 vcc, 0, v82")
            a(f"s_and_b32 {sA}, {sC}, 7")
            a(f"s_lshl_b32 {sA}, {sA}, 3")
            a(f"s_lshr_b64 {sX64}, vcc, {sA}")
            a(f"s_and_b32 {sFast}, s4, 0xff")
            if X.get("slow"): a(f"s_mov_b32 {sFast}, 1")
            self.wave_reduce(["v80"], "max", ["v81"])
            a("v_sqrt_f32 v80, v80")
            a(f"v_mov_b32 v81, {sFast}")
            a(f"v_mov_b32 v82, {LDS_BC}")
            a("s_mov_b64 exec, 1")
            a("ds_write_b64 v82, v[80:81]")
            a("s_mov_b64 exec, -1")
        if not NF3:
            a(f"s_cmp_eq_u32 {sW}, 7")
            a("s_cbranch_scc0 L_nobc")
            knorm([65, 69, 73, 77])
            a.label("L_nobc")
        def epoch():
            a(f"s_or_b32 {sA}, {sID}, {sW}")
            a(f"s_cmp_lg_u32 {sA}, 0")
            a("s_cbranch_scc1 L_noepoch")
            a(f"v_mov_b32 v62, {sTG}")
            a("v_mov_b32 v63, 0")
            a("s_mov_b64 exec, 1")
            a(f"buffer_store_dword v62, v63, {srd(SRD_WS)}, 0 offen")
            a("s_mov_b64 exec, -1")
            a.label("L_noepoch")
        def bound_check():
            a("v_mul_f32 v12, v12, v62")
            a(f"v_cmp_lt_f32 vcc, 0x{f32bits(48.0):x}, v12")
            a("v_cmp_u_f32 s[4:5], v12, v12")
            a("s_or_b64 vcc, vcc, s[4:5]")
            a("s_cmp_lg_u64 vcc, 0")
            a(f"s_cselect_b32 {sG}, 1, 0")
            a(f"v_readfirstlane_b32 {sFast}, v63")
            if X.get("forcefb"): a(f"s_mov_b32 {sG}, 1")
        if not NF3:
            a(f"v_mov_b32 v{VF}, 0x3f803f80")
            for i in range(1, 16):
                a(f"v_mov_b32 v{VF+i}, v{VF}")
            for i in range(16):
                a(f"v_mov_b32 v{O+i}, 0")
            a(f"v_mov_b32 v{IDX}, 0xdddddddd")
            a(f"v_mov_b32 {vKa}, v2")
            a(f"v_add_u32 {vKb}, 0x10000, v2")
            a("v_and_b32 v3, 15, v1")
            a("v_lshlrev_b32 v3, 4, v3")
            a("v_lshrrev_b32 v61, 5, v1")
            a("v_lshl_or_b32 v3, v61, 8, v3")
            a(f"v_add_u32 {vVa}, 1024, v3")
            a(f"v_add_u32 {vVb}, 0x10000, {vVa}")
            self.wt_addr(vT1, vT2)
            self.wt_poll_addr()
            a("s_mov_b32 s6, 0x0000ffff")
            a("s_mov_b32 s7, 0x0000ffff")
        a(f"v_mov_b32 v61, {FB}")
        self.stamp("fin")
        if not NF3:
            a("s_waitcnt vmcnt(2) lgkmcnt(0)")
            a("s_barrier")
        self.stamp("b4")
        a(f"s_cmp_eq_u32 {sKH}, 0")
        a("s_cbranch_scc1 L_clsA")
        def lds_set(off, tmp0="v84", tmp1="v85", perwave=False):
            if perwave:
                a(f"s_and_b32 {sA}, {sW}, 3")
                a(f"s_lshl_b32 {sA}, {sA}, 2")
                a(f"s_add_u32 {sA}, {sA}, {FB + off}")
                a(f"v_mov_b32 {tmp1}, {sA}")
            else:
                a(f"v_mov_b32 {tmp1}, {FB + off}")
            a(f"v_mov_b32 {tmp0}, 1")
            a("s_mov_b64 exec, 1")
            a(f"ds_write_b32 {tmp1}, {tmp0}")
            a("s_mov_b64 exec, -1")
        if NF3:
            for n in range(4, 8): self.rem_dma(n, yk=(n % 2 == 0))
            a("s_waitcnt vmcnt(8)")
            self.fg_set(16, "v224", "v225", perwave=True)
            self.stamp("f1set")
            a(f"s_cmp_eq_u32 {sW}, 7")
            a("s_cbranch_scc0 L_nobc")
            knorm([220, 221, 222, 223])
            a.label("L_nobc")
            a(f"s_setprio {X.get('pb', 1)}")
        else:
            a(f"s_sub_u32 s67, {sW}, 4")
            a(f"s_mov_b32 {sCnt}, 12")
            a.label("L_kvrest")
            a(f"s_add_u32 {sF}, s67, 16")
            a(f"s_cmp_lt_u32 s67, 32")
            a(f"s_cselect_b32 {sF}, s67, {sF}")
            kv_tile(sF)
            a(f"s_add_u32 s67, s67, 4")
            a(f"s_sub_u32 {sCnt}, {sCnt}, 1")
            a(f"s_cmp_lg_u32 {sCnt}, 0")
            a("s_cbranch_scc1 L_kvrest")
            a("s_setprio 1")
            a("s_waitcnt vmcnt(0)")
            a("s_barrier")
        a(f"s_mov_b32 {sPh}, 1")
        a("s_branch L_clsD")
        a.label("L_clsA")
        a("s_setprio 2")
        a(f"s_mov_b32 {sPh}, 0")
        a.label("L_clsD")

        def pos(t):
            if NF3: return t + 32 if t < 8 else (t - 8 if t < 40 else (64 if t == 46 else t))
            return t + 32 if t < 16 else (t - 16 if t < 48 else t)
        def kread(t):
            p_ = pos(t)
            base = vKa if p_ < 32 else vKb
            if p_ == 64:
                a(f"v_add_u32 v120, 0x10000, {vKb}")
                base = "v120"
            a.ds(f"ds_read_b128 {vr(KF+4*(t%2),4)}, {base} offset:{(p_%32)*2048}", f"K{t}")
        def vread(t):
            p_ = pos(t)
            base = vVa if p_ < 32 else vVb
            if p_ == 64:
                a(f"v_add_u32 v121, 0x10000, {vVb}")
                base = "v121"
            a("s_mov_b64 exec, s[6:7]")
            a.ds(f"ds_read_b128 {vr(VF+8*(t%2),4)}, {base} offset:{(p_%32)*2048}", f"V{t}")
            a.ds(f"ds_read_b128 {vr(VF+8*(t%2)+4,4)}, {base} offset:{(p_%32)*2048+512}", f"V{t}")
            a("s_mov_b64 exec, -1")
        def Sr(t): return S0 if t % 2 == 0 else S1
        def ms(t):
            a.wait_lg(f"K{t}")
            a(f"v_mfma_f32_32x32x16_bf16 {vr(Sr(t),16)}, {vr(KF+4*(t%2),4)}, {vr(Q,4)}, 0")
        def sm(t, half):
            a.wait_lg(f"V{t}")
            a(f"v_smfmac_f32_32x32x32_bf16 {vr(O,16)}, {vr(VF+8*(t%2)+4*half,4)}, {vr(Sr(t)+8*half,8)}, v{IDX}")
        def E(t, lo, hi):
            for i in range(lo, hi + 1): a(f"v_exp_f32 v{Sr(t)+i}, v{Sr(t)+i}")

        TA = dict(wt=X.get("Awt", 10), fl=X.get("Afl", 17), bar=13, sw=X.get("sw", 50))
        TB = dict(wt=X.get("Bwt", 0), fl=X.get("Bfl", 2))
        TPOLL, TCHK, TLD0 = X.get("tpoll", 30), X.get("tchk", 32), X.get("tld", 32)
        def cond(cls, name, fn):
            lab = a.newlabel(f"L_{name}")
            a(f"s_cmp_eq_u32 {sKH}, {cls}")
            a(f"s_cbranch_scc0 {lab}")
            fn()
            a.label(lab)
        def b_wt(wait=True):
            if wait: a("s_waitcnt vmcnt(0)")
            a(f"ds_read_b64_tr_b16 v[{WD}:{WD+1}], {vT1}")
            a(f"ds_read_b64_tr_b16 v[{WD+2}:{WD+3}], {vT1} offset:1024")
            a(f"ds_read_b64_tr_b16 v[{WD+4}:{WD+5}], {vT2}")
            a(f"ds_read_b64_tr_b16 v[{WD+6}:{WD+7}], {vT2} offset:1024")
            a("s_waitcnt lgkmcnt(0)")
            a(f"buffer_store_dwordx4 v[{WD}:{WD+3}], v2, {srd(SRD_WS)}, s88 offen sc1")
            a("s_add_u32 s88, s88, s89")
            a(f"buffer_store_dwordx4 v[{WD+4}:{WD+7}], v2, {srd(SRD_WS)}, s88 offen sc1")
        def b_fl(n=0):
            a(f"s_waitcnt vmcnt({n})")
            a(f"s_lshl_b32 {sA}, {sID}, 3")
            a(f"s_add_u32 {sA}, {sA}, {sW}")
            a(f"s_lshl_b32 {sA}, {sA}, 2")
            a(f"s_add_u32 {sA}, {sA}, {WS_FLWT2}")
            a(f"v_mov_b32 v{WD}, {sTG}")
            a(f"v_mov_b32 v{WD+1}, 0")
            a("s_mov_b64 exec, 1")
            a(f"buffer_store_dword v{WD}, v{WD+1}, {srd(SRD_WS)}, {sA} offen sc1")
            a("s_mov_b64 exec, -1")
        def b_fl2():
            a("s_waitcnt vmcnt(0)")
            self.fg_set(80, f"v{WD+2}", f"v{WD+3}", perwave=True)
        def b_f2():
            a("s_waitcnt vmcnt(2)")
            self.fg_set(32, f"v{WD+2}", f"v{WD+3}", perwave=True)
            b_fl(2)
        def fchk_read(off):
            def f(): a.ds(f"ds_read_b128 v[{WD+4}:{WD+7}], v61 offset:{off}", f"fl{off}")
            return f
        def fchk(off):
            def f():
                lok, lsp = a.newlabel("L_fok"), a.newlabel("L_fsp")
                a.wait_lg(f"fl{off}")
                a(f"s_mov_b32 {sCnt}, 2000000")
                a.label(lsp)
                a(f"v_and_b32 v{WD+4}, v{WD+4}, v{WD+5}")
                a(f"v_and_b32 v{WD+6}, v{WD+6}, v{WD+7}")
                a(f"v_and_b32 v{WD+4}, v{WD+4}, v{WD+6}")
                a(f"v_readfirstlane_b32 s4, v{WD+4}")
                a("s_cmp_lg_u32 s4, 0")
                a(f"s_cbranch_scc1 {lok}")
                a(f"ds_read_b128 v[{WD+4}:{WD+7}], v61 offset:{off}")
                a("s_waitcnt lgkmcnt(0)")
                a(f"s_sub_u32 {sCnt}, {sCnt}, 1")
                a(f"s_cmp_eq_u32 {sCnt}, 0")
                a(f"s_cbranch_scc0 {lsp}")
                a.label(lok)
            return f
        def b_bar():
            lab = a.newlabel("L_b5")
            a(f"s_cmp_eq_u32 {sPh}, 1")
            a(f"s_cbranch_scc1 {lab}")
            a("s_barrier")
            a.label(lab)
        def poll_issue():
            a(f"buffer_load_dword v{PL}, v57, {srd(SRD_WS)}, 0 offen sc1")
            a(f"buffer_load_dword v{PL+1}, v58, {srd(SRD_WS)}, 0 offen sc1")
        def poll_check():
            a("s_waitcnt vmcnt(0)")
            a(f"s_mov_b32 {sCnt}, 200000")
            a.label("L_wtchk")
            a(f"v_xor_b32 v{PL}, {sTG}, v{PL}")
            a(f"v_xor_b32 v{PL+1}, {sTG}, v{PL+1}")
            a(f"v_or_b32 v{PL}, v{PL}, v{PL+1}")
            a(f"v_cmp_ne_u32 vcc, 0, v{PL}")
            a("s_cbranch_vccz L_wtok")
            a(f"s_sub_u32 {sCnt}, {sCnt}, 1")
            a(f"s_cmp_eq_u32 {sCnt}, 0")
            a("s_cbranch_scc1 L_wtok")
            a("s_sleep 2")
            poll_issue()
            a("s_waitcnt vmcnt(0)")
            a("s_branch L_wtchk")
            a.label("L_wtok")
        extras = {t: [] for t in range(64)}
        mid = {t: [] for t in range(64)}
        extras[TA["wt"]].append(lambda: cond(0, "wtA", b_wt))
        extras[TB["wt"]].append(lambda: cond(1, "wtB", (lambda: b_wt(False)) if NF3 else b_wt))
        extras[TA["fl"]].append(lambda: cond(0, "flA", b_fl))
        if not NF3: extras[TB["fl"]].append(lambda: cond(1, "flB", b_fl))
        if NF3:
            assert TB["wt"] == 0
            extras[0].append(lambda: cond(1, "r10", lambda: self.rem_dma(10)))
            extras[1].append(lambda: cond(1, "r11", lambda: (b_f2(), self.rem_dma(11, yk=False))))
            extras[2].append(lambda: cond(1, "r12", lambda: self.rem_dma(12)))
            extras[3].append(lambda: cond(1, "r13", lambda: self.rem_dma(13, yk=False)))
            extras[4].append(lambda: cond(1, "r8", lambda: (self.qd_check(), self.rem_dma(8))))
            extras[5].append(lambda: cond(1, "r9", lambda: self.rem_dma(9, yk=False)))
            extras[X.get("Bfl3", 7)].append(lambda: cond(1, "flB", b_fl2))
            NE = X.get("ne", 8)
            T1 = 5
            T2 = 8 + 16 - 3
            mid[T1].append(fchk_read(16)); extras[T1].append(fchk(16))
            mid[T2].append(fchk_read(32)); extras[T2].append(fchk(32))
            T3 = 37
            mid[T3].insert(0, fchk_read(80)); extras[T3].append(fchk(80))
            if self.prof:
                extras[T1].append(lambda: self.stamp("f1ok"))
                extras[T2].append(lambda: self.stamp("f2ok"))
        else:
            extras[TA["bar"]].append(b_bar)
        extras[TA["sw"]].append(lambda: cond(0, "swA", lambda: a("s_setprio 0")))
        def dirty():
            n = X["dirty"]
            a(f"s_lshl_b32 {sA}, {sID}, 3")
            a(f"s_add_u32 {sA}, {sA}, {sW}")
            a(f"s_mul_i32 {sA}, {sA}, {n*1024}")
            a(f"s_add_u32 {sA}, {sA}, {WS_DBG}")
            for i in range(n):
                a(f"buffer_store_dwordx4 v[4:7], v2, {srd(SRD_WS)}, {sA} offen")
                a(f"s_add_u32 {sA}, {sA}, 1024")
        if X.get("dirty"): extras[20].append(dirty)
        D_ = vr(W1H[25], 4) if (X.get("spread", 1) and not X.get("w1first")) else vr(WOH[15], 4)
        sPA, sPB = "s70", "s71"
        def pt_addr():
            a(f"s_lshl_b32 {sA}, {sM}, 2")
            a(f"s_lshl_b32 {sB}, {sFT}, 1")
            a(f"s_add_u32 {sA}, {sA}, {sB}")
            a(f"s_add_u32 {sA}, {sA}, {sKH}")
            a(f"s_lshl_b32 {sA}, {sA}, 1")
            a(f"s_add_u32 {sA}, {sA}, {sTT}")
            a(f"s_lshl_b32 {sB}, {sA}, 10")
            a(f"s_lshl_b32 {sD}, {sC}, 16")
            a(f"s_add_u32 {sPA}, {sB}, {sD}")
            a(f"s_lshr_b32 {sB}, {sA}, 1")
            a(f"s_lshl_b32 {sE_}, {sTT}, 5")
            a(f"s_add_u32 {sB}, {sB}, {sE_}")
            a(f"s_lshl_b32 {sB}, {sB}, 8")
            a(f"s_lshl_b32 {sE_}, {sC}, 14")
            a(f"s_add_u32 {sB}, {sB}, {sE_}")
            a(f"s_add_u32 s72, {sB}, {WS_ST}")
            a(f"s_mul_i32 {sA}, {sM}, 7")
            a(f"s_add_u32 {sA}, {sA}, {sW}")
            a(f"s_min_u32 {sA}, {sA}, 55")
            a(f"s_lshl_b32 {sB}, {sA}, 12")
            a(f"s_mul_i32 {sD}, {sC}, {224*1024}")
            a(f"s_add_u32 {sB}, {sB}, {sD}")
            a(f"s_add_u32 {sPB}, {sB}, {WS_HID}")
        def pt_o():
            a(f"s_add_u32 {sA}, {sPA}, {WS_O}")
            a(f"buffer_load_dwordx4 {D_}, v2, {srd(SRD_WS)}, {sA} offen sc1")
        def pt_h():
            a(f"s_add_u32 {sA}, {sPA}, {WS_H}")
            a(f"buffer_load_dwordx4 {D_}, v2, {srd(SRD_WS)}, {sA} offen sc1")
        def pt_st():
            a("s_mov_b64 exec, 0xffff")
            a(f"buffer_load_dwordx4 {D_}, v2, {srd(SRD_WS)}, s72 offen sc1")
            lab = a.newlabel("L_ptf")
            a(f"s_cmp_eq_u32 {sW}, 7")
            a(f"s_cbranch_scc0 {lab}")
            a(f"s_lshl_b32 {sB}, {sC}, 8")
            for fl in (WS_FLO, WS_FLH, WS_FLHID):
                a(f"s_add_u32 {sA}, {sB}, {fl}")
                a(f"buffer_load_dwordx4 {D_}, v2, {srd(SRD_WS)}, {sA} offen sc1")
            a.label(lab)
            a("s_mov_b64 exec, -1")
        def pt_hid(p):
            def f():
                lab = a.newlabel("L_pth")
                a(f"s_cmp_eq_u32 {sW}, 7")
                a(f"s_cbranch_scc1 {lab}")
                a(f"buffer_load_dwordx4 {D_}, v2, {srd(SRD_WS)}, {sPB} offen offset:{p*1024} sc1")
                a.label(lab)
            return f
        if X.get("pt"):
            t0, stp = X["pt"], X.get("ptstep", 2)
            PM = X.get("ptm", 9)
            seq = []
            if PM & 1: seq += [pt_o, pt_h, pt_st]
            if X.get("sk"):
                def clr(q):
                    def f():
                        lab = a.newlabel("L_clr")
                        a(f"s_cmp_eq_u32 {sFast}, 0")
                        a(f"s_cbranch_scc0 {lab}")
                        if q == 0:
                            a(f"s_lshl_b32 {sA}, {sC}, 3")
                            a(f"s_add_u32 {sA}, {sA}, {sM}")
                            a(f"s_lshl_b32 {sA}, {sA}, 3")
                            a(f"s_add_u32 {sA}, {sA}, {sW}")
                            a(f"s_lshl_b32 {sA}, {sA}, 13")
                            a(f"s_add_u32 {sPB}, {sA}, {WS_P}")
                            for i in range(4): a(f"v_mov_b32 v{WOH[14]+i}, -1")
                        for i in range(2):
                            a(f"buffer_store_dwordx4 {vr(WOH[14],4)}, v2, {srd(SRD_WS)}, {sPB} offen offset:{i*1024}")
                        a(f"s_add_u32 {sPB}, {sPB}, 2048")
                        a.label(lab)
                    return f
                if not X.get('noclr'): seq += [clr(q) for q in range(4)]
            elif X.get("hclr"):
                def hcl(p):
                    def f():
                        lab = a.newlabel("L_hcl")
                        a(f"s_cmp_eq_u32 {sW}, 7")
                        a(f"s_cbranch_scc1 {lab}")
                        a(f"s_cmp_eq_u32 {sFast}, 0")
                        a(f"s_cbranch_scc0 {lab}")
                        if p == 0:
                            for i in range(4): a(f"v_mov_b32 v{WOH[14]+i}, -1")
                        a(f"buffer_store_dwordx4 {vr(WOH[14],4)}, v2, {srd(SRD_WS)}, {sPB} offen offset:{p*1024}")
                        a.label(lab)
                    return f
                if X["hclr"] == 2:
                    th = X.get("hclt", 33)
                    extras[th - 1].append(pt_addr)
                    for p in range(4): extras[th + p].append(pt_hid(p))
                seq += [hcl(p) for p in range(4)]
            elif PM & 8: seq += [pt_hid(p) for p in range(4)]
            extras[t0 - 1].append(pt_addr)
            for n, f in enumerate(seq): extras[t0 + n * stp].append(f)
            assert t0 + (len(seq) - 1) * stp < 52
        def own():
            D = "v[4:7]"
            def body(mod):
                a(f"s_lshl_b32 {sA}, {sM}, 2")
                a(f"s_lshl_b32 {sB}, {sFT}, 1")
                a(f"s_add_u32 {sA}, {sA}, {sB}")
                a(f"s_add_u32 {sA}, {sA}, {sKH}")
                a(f"s_lshl_b32 {sA}, {sA}, 1")
                a(f"s_add_u32 {sA}, {sA}, {sTT}")
                a(f"s_lshl_b32 {sB}, {sA}, 10")
                a(f"s_lshl_b32 {sD}, {sC}, 16")
                a(f"s_add_u32 {sB}, {sB}, {sD}")
                a(f"s_add_u32 {sE_}, {sB}, {WS_O}")
                a(f"buffer_store_dwordx4 {D}, v2, {srd(SRD_WS)}, {sE_} offen{mod}")
                a(f"s_add_u32 {sE_}, {sB}, {WS_H}")
                a(f"buffer_store_dwordx4 {D}, v2, {srd(SRD_WS)}, {sE_} offen{mod}")
                a(f"s_lshr_b32 {sB}, {sA}, 1")
                a(f"s_lshl_b32 {sE_}, {sTT}, 5")
                a(f"s_add_u32 {sB}, {sB}, {sE_}")
                a(f"s_lshl_b32 {sB}, {sB}, 8")
                a(f"s_lshl_b32 {sE_}, {sC}, 14")
                a(f"s_add_u32 {sB}, {sB}, {sE_}")
                a(f"s_add_u32 {sB}, {sB}, {WS_ST}")
                a("s_mov_b64 exec, 0xffff")
                a(f"buffer_store_dwordx4 {D}, v2, {srd(SRD_WS)}, {sB} offen{mod}")
                a("s_mov_b64 exec, -1")
                if X.get("ownout", 1):
                    a("v_and_b32 v59, 31, v1")
                    a("v_lshlrev_b32 v59, 10, v59")
                    a("v_lshrrev_b32 v3, 5, v1")
                    a("v_lshl_or_b32 v59, v3, 4, v59")
                    a(f"s_lshl_b32 {sB}, {sTT}, 5")
                    a(f"s_add_u32 {sB}, {sB}, {sT0}")
                    a(f"s_lshl_b32 {sB}, {sB}, 10")
                    a(f"s_lshl_b32 {sE_}, {sM}, 7")
                    a(f"s_add_u32 {sB}, {sB}, {sE_}")
                    a(f"s_lshl_b32 {sE_}, {sFT}, 6")
                    a(f"s_add_u32 {sB}, {sB}, {sE_}")
                    a(f"s_lshl_b32 {sE_}, {sKH}, 5")
                    a(f"s_add_u32 {sB}, {sB}, {sE_}")
                    a(f"buffer_store_dwordx4 {D}, v59, {srd(SRD_OUT)}, {sB} offen")
                if False:
                    a(f"s_lshl_b32 {sA}, {sC}, 19")
                    a(f"s_lshl_b32 {sB}, {sW}, 16")
                    a(f"s_add_u32 {sA}, {sA}, {sB}")
                    a(f"s_lshl_b32 {sB}, {sM}, 10")
                    a(f"s_add_u32 {sA}, {sA}, {sB}")
                    a(f"s_add_u32 {sA}, {sA}, {WS_P}")
                    for p in range(8):
                        a(f"buffer_store_dwordx4 {D}, v2, {srd(SRD_WS)}, {sA} offen{mod}")
                        a(f"s_add_u32 {sA}, {sA}, 8192")
                else:
                    a(f"s_cmp_eq_u32 {sW}, 7")
                    lab = a.newlabel("L_own7")
                    a(f"s_cbranch_scc1 {lab}")
                    a(f"s_mul_i32 {sA}, {sM}, 7")
                    a(f"s_add_u32 {sA}, {sA}, {sW}")
                    a(f"s_lshl_b32 {sB}, {sA}, 12")
                    a(f"s_mul_i32 {sD}, {sC}, {224*1024}")
                    a(f"s_add_u32 {sB}, {sB}, {sD}")
                    a(f"s_add_u32 {sB}, {sB}, {WS_HID}")
                    for p in range(4):
                        a(f"buffer_store_dwordx4 {D}, v2, {srd(SRD_WS)}, {sB} offen offset:{p*1024}{mod}")
                    a.label(lab)
            l1, l2 = a.newlabel("L_ownS"), a.newlabel("L_ownD")
            a(f"s_cmp_eq_u32 {sFast}, 0")
            a(f"s_cbranch_scc0 {l1}")
            body("")
            a(f"s_branch {l2}")
            a.label(l1)
            body(" sc1")
            a.label(l2)
        if X.get("own"): extras[X["own"]].append(own)
        for k in ("ts1", "ts2", "ts3", "ts4", "ts5", "ts6"):
            if X.get(k) is not None:
                extras[X[k]].append(lambda k=k: self.stamp(k))
        if NF3:
            extras[6].append(epoch)
            mid[22].append(lambda: a.ds(f"ds_read_b64 v[62:63], v61 offset:{BCO}", "bc"))
            extras[22].append(lambda: (a.wait_lg("bc"), bound_check()))
        else:
            extras[1].append(epoch)
            extras[0].insert(0, bound_check)
        extras[TPOLL].append(poll_issue)
        extras[TCHK - 1].append(poll_check)
        def w1load(s_):
            def f():
                a(f"buffer_load_dwordx4 {vr(W1H[s_],4)}, v2, {srd(SRD_WS)}, {sW1B} offen offset:{(s_%4)*1024} sc1")
                if s_ % 4 == 3 and not X.get("fakew"): a(f"s_add_u32 {sW1B}, {sW1B}, 4096")
            return f
        def wo_addr():
            a(f"s_lshl_b32 {sA}, {sM}, 1")
            a(f"s_add_u32 {sA}, {sA}, {sFT}")
            a(f"s_lshl_b32 {sA}, {sA}, 5")
            a(f"s_lshl_b32 {sB}, {sKH}, 4")
            a(f"s_add_u32 {sA}, {sA}, {sB}")
            a(f"s_lshl_b32 {sA}, {sA}, 10")
            a(f"s_add_u32 {sWOB}, {sA}, {WS_WOF}")
            a(f"s_lshl_b32 {sB}, {sKH}, 8")
            a(f"v_xor_b32 v57, {sB}, v2")
        extras[TCHK - 1].append(wo_addr)
        if X.get("fakew"):
            extras[TCHK - 1].append(lambda: (a(f"s_mov_b32 {sW1B}, {WS_W1F}"), a(f"s_mov_b32 {sWOB}, {WS_WOF}")))
        def woload(i):
            def f():
                a(f"buffer_load_dwordx4 {vr(WOH[i],4)}, v57, {srd(SRD_WS)}, {sWOB} offen offset:{(i%4)*1024} sc1")
                if i % 4 == 3 and i < 15 and not X.get("fakew"): a(f"s_add_u32 {sWOB}, {sWOB}, 4096")
            return f
        if X.get("spread", 1):
            seq = [woload(i) for i in range(16)] + [w1load(s_) for s_ in range(NW1PRE)]
            if X.get("w1first"): seq = seq[16:] + seq[:16]
            TEND = X.get("tend", 63)
            ntile = TEND - TLD0 + 1
            for n, f in enumerate(seq):
                mid[TLD0 + (n * ntile) // len(seq)].append(f)
            TWO = TLD0
        else:
            for s_ in range(NW1PRE):
                mid[TLD0 + s_ // 2].append(w1load(s_))
            TWO = TLD0 + NW1PRE // 2
            for i in range(16):
                mid[TWO + i // 2].append(woload(i))

        def pf_addr():
            a(f"s_lshl_b32 {sA}, {sM}, 1")
            a(f"s_add_u32 {sA}, {sA}, {sFT}")
            a(f"s_mul_i32 {sA}, {sA}, 112")
            a(f"s_and_b32 {sB}, {sW}, 3")
            a(f"s_mul_i32 {sB}, {sB}, 28")
            a(f"s_add_u32 {sA}, {sA}, {sB}")
            a(f"s_lshl_b32 {sA}, {sA}, 10")
            a(f"s_add_u32 {sPF}, {sA}, {WS_W2F}")
            a("v_lshlrev_b32 v58, 6, v1")
        def pf(i):
            def f():
                a(f"buffer_load_dword v59, v58, {srd(SRD_WS)}, {sPF} offen sc1")
                a(f"s_add_u32 {sPF}, {sPF}, 4096")
            return f
        def pf_w1():
            a(f"s_add_u32 {sPF}, {sW1B}, 2048")
            a(f"buffer_load_dword v59, v58, {srd(SRD_WS)}, {sPF} offen sc1")
            a(f"buffer_load_dword v59, v58, {srd(SRD_WS)}, {sPF} offen offset:2048 sc1")
        if X.get("pf"):
            TPF = TWO + 8
            extras[TPF - 1].append(pf_addr)
            for i in range(7): mid[TPF + i].append(pf(i))
            mid[TPF + 7].append(pf_w1)

        a.lg = []
        if not NF3: a.ds("ds_read_b64 v[62:63], v61", "bc")
        kread(0); kread(1); vread(0)
        ms(0)
        a("s_nop 11")
        for t in range(64):
            E(t, 0, 1)
            if t > 0: sm(t - 1, 1)
            if t + 1 < 64: vread(t + 1)
            E(t, 2, 5)
            if t + 1 < 64: ms(t + 1)
            if t + 2 < 64: kread(t + 2)
            if mid[t]: mid[t][0]()
            E(t, 6, 11)
            sm(t, 0)
            for f in mid[t][1:]: f()
            E(t, 12, 15)
            for f in extras[t]: f()
        a("s_nop 1")
        sm(63, 1)
        a("s_setprio 0")
        self.stamp("attn")
        a("s_nop 7")
        a("s_nop 3")
        a(f"v_rcp_f32 v3, v{O+8}")
        a(f"v_mul_f32 v80, 0, v{O}")
        a(f"v_mul_f32 v81, 0, v{O+1}")
        for i in range(2, 8, 2):
            a(f"v_fma_f32 v80, v{O+i}, 0, v80")
            a(f"v_fma_f32 v81, v{O+i+1}, 0, v81")
        a("v_add_f32 v80, v80, v81")
        a("v_cmp_u_f32 vcc, v80, v80")
        a("s_cmp_lg_u64 vcc, 0")
        a(f"s_cselect_b32 {sA}, 1, 0")
        a(f"s_or_b32 {sA}, {sA}, {sG}")
        a(f"s_cmp_eq_u32 {sA}, 0")
        a("s_cbranch_scc1 L_nofb")
        a(f"v_mov_b32 v57, {vKa}")
        a("v_mov_b32 v58, 0xff800000")
        a(f"s_mov_b32 {sCnt}, 64")
        a.label("L_fb")
        a(f"ds_read_b128 {vr(KF,4)}, v57")
        if NF3:
            a(f"s_cmp_eq_u32 {sCnt}, 19")
            a("s_cselect_b32 s4, 2, 1")
            a("s_lshl_b32 s4, s4, 11")
            a("v_add_u32 v57, s4, v57")
        else:
            a("v_add_u32 v57, 2048, v57")
        a("s_waitcnt lgkmcnt(0)")
        a(f"v_mfma_f32_32x32x16_bf16 {vr(S0,16)}, {vr(KF,4)}, {vr(Q,4)}, 0")
        for i in range(8):
            a(f"v_max3_f32 v58, v{S0+2*i}, v{S0+2*i+1}, v58")
        a(f"s_sub_u32 {sCnt}, {sCnt}, 1")
        a(f"s_cmp_lg_u32 {sCnt}, 0")
        a("s_cbranch_scc1 L_fb")
        a("v_mov_b32 v57, v58")
        a("v_permlane32_swap_b32 v57, v58")
        a("v_max_f32 v58, v57, v58")
        a(f"v_sub_f32 v{S1}, 0, v58")
        for i in range(1, 16):
            a(f"v_mov_b32 v{S1+i}, v{S1}")
        for i in range(16):
            a(f"v_mov_b32 v{O+i}, 0")
        a(f"v_mov_b32 v57, {vKa}")
        a(f"v_mov_b32 v58, {vVa}")
        a(f"s_mov_b32 {sCnt}, 64")
        a.label("L_fb2")
        a(f"ds_read_b128 {vr(KF,4)}, v57")
        a("s_mov_b64 exec, s[6:7]")
        a(f"ds_read_b128 {vr(VF,4)}, v58")
        a(f"ds_read_b128 {vr(VF+4,4)}, v58 offset:512")
        a("s_mov_b64 exec, -1")
        if NF3:
            a(f"s_cmp_eq_u32 {sCnt}, 19")
            a("s_cselect_b32 s4, 2, 1")
            a("s_lshl_b32 s4, s4, 11")
            a("v_add_u32 v57, s4, v57")
            a("v_add_u32 v58, s4, v58")
        else:
            a("v_add_u32 v57, 2048, v57")
            a("v_add_u32 v58, 2048, v58")
        a("s_waitcnt lgkmcnt(0)")
        a(f"v_mfma_f32_32x32x16_bf16 {vr(S0,16)}, {vr(KF,4)}, {vr(Q,4)}, {vr(S1,16)}")
        for i in range(16):
            a(f"v_exp_f32 v{S0+i}, v{S0+i}")
        a(f"v_smfmac_f32_32x32x32_bf16 {vr(O,16)}, {vr(VF,4)}, {vr(S0,8)}, v{IDX}")
        a(f"v_smfmac_f32_32x32x32_bf16 {vr(O,16)}, {vr(VF+4,4)}, {vr(S0+8,8)}, v{IDX}")
        a(f"s_sub_u32 {sCnt}, {sCnt}, 1")
        a(f"s_cmp_lg_u32 {sCnt}, 0")
        a("s_nop 7")
        a("s_nop 7")
        a("s_cbranch_scc1 L_fb2")
        a(f"v_rcp_f32 v3, v{O+8}")
        a.label("L_nofb")
        OP = 40
        for i in range(8):
            a(f"v_mul_f32 v{O+i}, v3, v{O+i}")
        for i in range(4):
            a(f"v_cvt_pk_bf16_f32 v{OP+i}, v{O+2*i}, v{O+2*i+1}")
        a(f"s_lshl_b32 s88, {sM}, 2")
        a(f"s_lshl_b32 {sB}, {sFT}, 1")
        a(f"s_add_u32 s88, s88, {sB}")
        a(f"s_add_u32 s88, s88, {sKH}")
        a(f"s_lshl_b32 {sB}, s88, 1")
        a(f"s_add_u32 {sB}, {sB}, {sTT}")
        a(f"s_lshl_b32 {sB}, {sB}, 10")
        a(f"s_lshl_b32 {sD}, {sC}, 16")
        a(f"s_add_u32 {sB}, {sB}, {sD}")
        a(f"s_add_u32 {sB}, {sB}, {WS_O}")
        a(f"s_lshl_b32 {sD}, {sTT}, 5")
        a(f"s_add_u32 {sD}, {sD}, s88")
        a(f"s_lshl_b32 {sD}, {sD}, 2")
        a(f"s_lshl_b32 {sE_}, {sC}, 8")
        a(f"s_add_u32 {sD}, {sD}, {sE_}")
        a(f"s_add_u32 {sD}, {sD}, {WS_FLO}")
        self.publish("o", [("dwordx4", vr(OP, 4), "v2", sB, 0)], sD)
        self.stamp("opub")

    def wt_addr(self, vT1, vT2, T=(61, 62, 63)):
        a = self.a
        LDS_E = 132 * 1024
        a(f"v_bfe_u32 v{T[0]}, v1, 2, 2")
        a(f"v_lshrrev_b32 v{T[1]}, 5, v1")
        a(f"v_lshl_add_u32 v{T[1]}, v{T[1]}, 2, v{T[0]}")
        a(f"v_lshlrev_b32 v{T[1]}, 7, v{T[1]}")
        a(f"v_bfe_u32 v{T[2]}, v1, 4, 1")
        a(f"v_lshlrev_b32 v{T[2]}, 5, v{T[2]}")
        a(f"v_and_b32 v{T[0]}, 3, v1")
        a(f"v_lshl_add_u32 v{T[2]}, v{T[0]}, 3, v{T[2]}")
        a(f"v_bfe_u32 v{T[0]}, v1, 3, 1")
        a(f"v_lshlrev_b32 v{T[0]}, 6, v{T[0]}")
        a(f"v_xor_b32 v{T[2]}, v{T[2]}, v{T[0]}")
        a(f"v_add_u32 v{T[1]}, v{T[1]}, v{T[2]}")
        a(f"s_xor_b32 {sA}, {sW}, 1")
        a(f"s_lshl_b32 {sA}, {sA}, 11")
        a(f"s_add_u32 {sA}, {sA}, {LDS_E}")
        a(f"v_add_u32 {vT1}, {sA}, v{T[1]}")
        a(f"v_xor_b32 {vT2}, 64, {vT1}")

    def wt_poll_addr(self):
        a = self.a
        L_pa7, L_pad = a.newlabel("L_pa7"), a.newlabel("L_pad")
        a(f"s_cmp_eq_u32 {sW}, 7")
        a(f"s_cbranch_scc1 {L_pa7}")
        a(f"s_mul_i32 {sA}, {sM}, 7")
        a(f"s_add_u32 {sA}, {sA}, {sW}")
        a(f"s_lshl_b32 {sW1B}, {sA}, 15")
        a(f"s_add_u32 {sW1B}, {sW1B}, {WS_W1F}")
        a(f"s_lshr_b32 {sA}, {sA}, 1")
        a(f"s_lshl_b32 {sA}, {sA}, 5")
        a(f"s_add_u32 {sA}, {sA}, 256")
        a(f"s_branch {L_pad}")
        a.label(L_pa7)
        if self.opt.get("sk"):
            a(f"s_mul_i32 {sB}, {sM}, 14")
            a(f"s_add_u32 {sA}, {sB}, {15*112}")
            a(f"s_lshl_b32 {sW1B}, {sA}, 10")
            a(f"s_add_u32 {sW1B}, {sW1B}, {WS_W2F}")
            a(f"s_min_u32 {sA}, {sB}, 80")
            a(f"s_add_u32 {sA}, {sA}, {1152 + 7*112}")
        else:
            a(f"s_lshl_b32 {sA}, {sM}, 1")
            a(f"s_add_u32 {sA}, {sA}, 1")
            a(f"s_mul_i32 {sA}, {sA}, 112")
            a(f"s_add_u32 {sA}, {sA}, 98")
            a(f"s_lshl_b32 {sW1B}, {sA}, 10")
            a(f"s_add_u32 {sW1B}, {sW1B}, {WS_W2F}")
            a(f"s_mul_i32 {sA}, {sM}, 112")
            a(f"s_add_u32 {sA}, {sA}, {1152 + 80}")
        a.label(L_pad)
        a(f"s_lshl_b32 {sB}, {sM}, 5")
        a(f"s_sub_u32 {sB}, {sB}, 32")
        a(f"v_mov_b32 v57, {sA}")
        a(f"v_mov_b32 v58, {sB}")
        a("v_cmp_gt_u32 vcc, 32, v1")
        a("v_cndmask_b32 v57, v58, v57, vcc")
        a("v_add_u32 v57, v57, v1")
        a("v_lshlrev_b32 v57, 2, v57")
        a(f"v_add_u32 v57, {WS_FLWT2}, v57")
        mm, ww = (sW, sM) if self.opt.get("sk") else (sM, sW)
        a(f"s_mul_i32 {sA}, {mm}, 112")
        a(f"s_mul_i32 {sB}, {ww}, 14")
        a(f"s_add_u32 {sA}, {sA}, {sB}")
        a(f"s_add_u32 {sA}, {sA}, 1152")
        a("v_min_u32 v58, 13, v1")
        a(f"v_add_u32 v58, {sA}, v58")
        a("v_lshlrev_b32 v58, 2, v58")
        a(f"v_add_u32 v58, {WS_FLWT2}, v58")

    def publish(self, name, stores, sflag, pre_exec=None, mid=None):
        a = self.a
        a(f"v_mov_b32 v104, s3")
        a(f"v_mov_b32 v105, 0")
        a(f"s_cmp_eq_u32 {sFast}, 0")
        a(f"s_cbranch_scc0 L_pub_slow_{name}")
        for variant, mod in (("fast", ""), ("slow", " sc1")):
            if variant == "slow": a.label(f"L_pub_slow_{name}")
            for st in stores:
                ty, data, voff, soff, io = st[:5]
                if len(st) > 5: a(f"s_mov_b32 exec_hi, 0")
                a(f"buffer_store_{ty} {data}, {voff}, {srd(SRD_WS)}, {soff} offen offset:{io}{mod}")
                if len(st) > 5: a("s_mov_b64 exec, -1")
            if mid: mid()
            a("s_waitcnt vmcnt(0)")
            a("s_mov_b64 exec, 1")
            a(f"buffer_store_dword v104, v105, {srd(SRD_WS)}, {sflag} offen{mod}")
            a("s_mov_b64 exec, -1")
            if variant == "fast": a(f"s_branch L_pub_done_{name}")
        a.label(f"L_pub_done_{name}")

    def wt_issue(self, phase=None):
        a = self.a
        LDS_E = 132 * 1024
        if phase == "go":
            a("s_mov_b32 m0, s64")
            a(f"buffer_load_dwordx4 v123, {srd(SRD_T)}, s87 offen lds")
            a("s_add_u32 m0, s64, 1024")
            a(f"buffer_load_dwordx4 v123, {srd(SRD_T)}, s73 offen lds")
            return
        Lw1, Lwo, Lgo = a.newlabel("L_wt_w1"), a.newlabel("L_wt_wo"), a.newlabel("L_wt_go")
        a(f"s_lshl_b32 {sA}, {sID}, 3")
        a(f"s_add_u32 {sA}, {sA}, {sW}")
        a(f"s_cmp_lt_u32 {sA}, 256")
        a(f"s_cbranch_scc1 {Lwo}")
        a(f"s_cmp_lt_u32 {sA}, 1152")
        a(f"s_cbranch_scc1 {Lw1}")
        a(f"s_sub_u32 {sA}, {sA}, 1152")
        a(f"s_mul_i32 {sB}, {sA}, 9363")
        a(f"s_lshr_b32 {sB}, {sB}, 20")
        a(f"s_mul_i32 {sD}, {sB}, 112")
        a(f"s_sub_u32 {sD}, {sA}, {sD}")
        for i in range(4): a(f"s_mov_b32 s{SRD_T+i}, s{SRD_W2+i}")
        a(f"s_mov_b32 {sF}, 1024")
        a(f"s_mul_i32 s88, {sB}, {2*112}")
        a(f"s_add_u32 s88, s88, {sD}")
        a("s_lshl_b32 s88, s88, 10")
        a(f"s_add_u32 s88, s88, {WS_W2F}")
        a(f"s_mov_b32 s89, {112*1024}")
        a(f"s_branch {Lgo}")
        a.label(Lw1)
        a(f"s_sub_u32 {sA}, {sA}, 256")
        a(f"s_lshr_b32 {sB}, {sA}, 5")
        a(f"s_and_b32 {sD}, {sA}, 31")
        for i in range(4): a(f"s_mov_b32 s{SRD_T+i}, s{SRD_W1+i}")
        a(f"s_mov_b32 {sF}, 3584")
        a(f"s_lshl_b32 s88, {sB}, 6")
        a(f"s_add_u32 s88, s88, {sD}")
        a("s_lshl_b32 s88, s88, 10")
        a(f"s_add_u32 s88, s88, {WS_W1F}")
        a(f"s_mov_b32 s89, {32*1024}")
        a(f"s_branch {Lgo}")
        a.label(Lwo)
        a(f"s_lshr_b32 {sB}, {sA}, 5")
        a(f"s_and_b32 {sD}, {sA}, 31")
        for i in range(4): a(f"s_mov_b32 s{SRD_T+i}, s{SRD_WO+i}")
        a(f"s_mov_b32 {sF}, 1024")
        a(f"s_lshl_b32 s88, {sB}, 6")
        a(f"s_add_u32 s88, s88, {sD}")
        a("s_lshl_b32 s88, s88, 10")
        a(f"s_add_u32 s88, s88, {WS_WOF}")
        a(f"s_mov_b32 s89, {32*1024}")
        a.label(Lgo)
        a(f"s_mul_i32 {sD}, {sD}, {sF}")
        a(f"s_lshl_b32 {sD}, {sD}, 4")
        a(f"s_lshl_b32 {sB}, {sB}, 7")
        a(f"s_add_u32 {sD}, {sD}, {sB}")
        if phase == "pre":
            a("v_lshrrev_b32 v123, 3, v1")
            a(f"v_mul_lo_u32 v123, v123, {sF}")
            a("v_and_b32 v120, 7, v1")
            a("v_bfe_u32 v121, v1, 4, 1")
            a("v_lshlrev_b32 v121, 2, v121")
            a("v_xor_b32 v120, v120, v121")
            a("v_lshl_add_u32 v123, v120, 4, v123")
            a(f"s_xor_b32 s64, {sW}, 1")
            a("s_lshl_b32 s64, s64, 11")
            a(f"s_add_u32 s64, s64, {LDS_E}")
            a(f"s_mov_b32 s87, {sD}")
            a(f"s_lshl_b32 {sB}, {sF}, 3")
            a(f"s_add_u32 s73, {sD}, {sB}")
            return
        a("v_lshrrev_b32 v16, 3, v1")
        a(f"v_mul_lo_u32 v16, v16, {sF}")
        a("v_and_b32 v17, 7, v1")
        a("v_bfe_u32 v18, v1, 4, 1")
        a("v_lshlrev_b32 v18, 2, v18")
        a("v_xor_b32 v17, v17, v18")
        a("v_lshl_add_u32 v16, v17, 4, v16")
        a(f"s_xor_b32 {sA}, {sW}, 1")
        a(f"s_lshl_b32 {sA}, {sA}, 11")
        a(f"s_add_u32 {sA}, {sA}, {LDS_E}")
        a(f"s_mov_b32 m0, {sA}")
        a(f"buffer_load_dwordx4 v16, {srd(SRD_T)}, {sD} offen lds")
        a(f"s_lshl_b32 {sB}, {sF}, 3")
        a(f"s_add_u32 {sD}, {sD}, {sB}")
        a(f"s_add_u32 {sA}, {sA}, 1024")
        a(f"s_mov_b32 m0, {sA}")
        a(f"buffer_load_dwordx4 v16, {srd(SRD_T)}, {sD} offen lds")

    def wt_process(self):
        a = self.a
        LDS_E = 132 * 1024
        a("v_bfe_u32 v106, v1, 2, 2")
        a("v_lshrrev_b32 v107, 5, v1")
        a("v_lshl_add_u32 v107, v107, 2, v106")
        a("v_lshlrev_b32 v107, 7, v107")
        a("v_bfe_u32 v108, v1, 4, 1")
        a("v_lshlrev_b32 v108, 5, v108")
        a("v_and_b32 v109, 3, v1")
        a("v_lshl_add_u32 v108, v109, 3, v108")
        a("v_bfe_u32 v109, v1, 3, 1")
        a("v_lshlrev_b32 v109, 6, v109")
        a("v_xor_b32 v108, v108, v109")
        a("v_add_u32 v107, v107, v108")
        a(f"s_xor_b32 {sA}, {sW}, 1")
        a(f"s_lshl_b32 {sA}, {sA}, 11")
        a(f"s_add_u32 {sA}, {sA}, {LDS_E}")
        a(f"v_add_u32 v107, {sA}, v107")
        a("v_xor_b32 v108, 64, v107")
        a("ds_read_b64_tr_b16 v[112:113], v107")
        a("ds_read_b64_tr_b16 v[114:115], v107 offset:1024")
        a("ds_read_b64_tr_b16 v[116:117], v108")
        a("ds_read_b64_tr_b16 v[118:119], v108 offset:1024")
        a("s_waitcnt lgkmcnt(0)")
        a(f"buffer_store_dwordx4 v[112:115], v2, {srd(SRD_WS)}, s88 offen sc1")
        a("s_add_u32 s88, s88, s89")
        a(f"buffer_store_dwordx4 v[116:119], v2, {srd(SRD_WS)}, s88 offen sc1")


    def colsum(self, homes, first):
        a = self.a
        n = 0
        a("s_mov_b32 s5, 0x3f803f80")
        for hm in homes:
            for i in range(4):
                r = "v106" if n % 2 == 0 else "v107"
                a(f"v_dot2_f32_bf16 {r}, v{hm+i}, s5, {'0' if (first and n < 2) else r}")
                n += 1

    def p3(self):
        a = self.a
        X_ = self.opt
        HB, X, ACC, BR = 4, 56, 24, 64
        LDS_OF, LDS_E2 = 0, 128 * 1024
        sS = "s88"
        a("v_and_b32 v3, 31, v1")
        a("v_lshlrev_b32 v3, 10, v3")
        a("v_lshrrev_b32 v104, 5, v1")
        a("v_lshl_or_b32 v3, v104, 3, v3")
        a(f"s_lshl_b32 {sA}, {sTT}, 5")
        a(f"s_add_u32 {sA}, {sA}, {sT0}")
        a(f"s_lshl_b32 {sA}, {sA}, 10")
        a(f"s_lshl_b32 {sB}, {sS}, 5")
        a(f"s_add_u32 {sA}, {sA}, {sB}")
        a(f"buffer_load_dwordx2 {vr(X,2)}, v3, {srd(SRD_X)}, {sA} offen")
        a(f"buffer_load_dwordx2 {vr(X+2,2)}, v3, {srd(SRD_X)}, {sA} offen offset:16")
        CSR = X_.get("csr")
        NC1 = X_.get("csn", 13)
        def csB(homes, first, nm):
            a(f"s_cmp_lt_u32 {sW}, 4")
            a(f"s_cbranch_scc1 L_nocs_{nm}")
            a(f"s_cmp_eq_u32 {sW}, 7")
            a(f"s_cbranch_scc1 L_nocs_{nm}")
            self.colsum(homes, first)
            a.label(f"L_nocs_{nm}")
        if CSR:
            a(f"s_cmp_lt_u32 {sW}, 4")
            a("s_cbranch_scc0 L_nocsA")
            self.colsum(W1H[:NW1PRE], True)
            a.label("L_nocsA")
        a("s_barrier")
        self.stamp("b7")
        if not CSR:
            a(f"s_cmp_eq_u32 {sW}, 7")
            a("s_cbranch_scc1 L_nocs1")
            self.colsum(W1H[:NW1PRE], True)
            a.label("L_nocs1")
        a(f"s_lshl_b32 {sA}, {sTT}, 5")
        a(f"s_lshl_b32 {sB}, {sKH}, 4")
        a(f"s_add_u32 {sA}, {sA}, {sB}")
        a(f"s_lshl_b32 {sA}, {sA}, 2")
        a(f"s_lshl_b32 {sB}, {sC}, 8")
        a(f"s_add_u32 {sA}, {sA}, {sB}")
        a(f"s_add_u32 {sA}, {sA}, {WS_FLO}")
        a("v_and_b32 v3, 15, v1")
        a("v_lshlrev_b32 v3, 2, v3")
        if CSR:
            a(f"s_mov_b32 s67, {sA}")
            a(f"buffer_load_dword v104, v3, {srd(SRD_WS)}, s67 offen sc1")
            if NC1: csB(W1H[:NC1], True, "b1")
            a(f"s_mov_b32 {sCnt}, 200000")
            a.label("L_poll_o")
            a("s_waitcnt vmcnt(0)")
            a("v_cmp_ne_u32 vcc, s3, v104")
            a("s_cbranch_vccz L_pollok_o")
            a(f"s_sub_u32 {sCnt}, {sCnt}, 1")
            a(f"s_cmp_eq_u32 {sCnt}, 0")
            a("s_cbranch_scc1 L_pollok_o")
            a("s_sleep 1")
            a(f"buffer_load_dword v104, v3, {srd(SRD_WS)}, s67 offen sc1")
            a("s_branch L_poll_o")
            a.label("L_pollok_o")
        else:
            self.poll_begin("o")
            a(f"buffer_load_dword v104, v3, {srd(SRD_WS)}, {sA} offen sc1")
            a("s_waitcnt vmcnt(0)")
            a("v_cmp_ne_u32 vcc, s3, v104")
            self.poll_end("o", sleep=1)
        self.stamp("ook")
        a(f"s_lshl_b32 {sA}, {sKH}, 4")
        a(f"s_lshl_b32 {sB}, {sFT}, 2")
        a(f"s_add_u32 {sA}, {sA}, {sB}")
        a(f"s_lshl_b32 {sA}, {sA}, 1")
        a(f"s_add_u32 {sA}, {sA}, {sTT}")
        a(f"s_lshl_b32 {sA}, {sA}, 10")
        a(f"s_lshl_b32 {sB}, {sC}, 16")
        a(f"s_add_u32 {sB}, {sB}, {sA}")
        a(f"s_add_u32 {sB}, {sB}, {WS_O}")
        for st in range(2):
            for i in range(4):
                d = (st * 8 + i) * 2048
                a(f"s_add_u32 {sD}, {sA}, {d + LDS_OF}")
                a(f"s_add_u32 {sE_}, {sB}, {d}")
                a(f"s_mov_b32 m0, {sD}")
                a(f"buffer_load_dwordx4 v2, {srd(SRD_WS)}, {sE_} offen sc1 lds")
            if st == 0 and X_.get("p3p"):
                if CSR:
                    a(f"s_mov_b32 s67, {sA}")
                    a(f"s_mov_b32 s68, {sB}")
                    csB(W1H[NC1:NW1PRE], NC1 == 0, "b2")
                    a(f"s_mov_b32 {sA}, s67")
                    a(f"s_mov_b32 {sB}, s68")
                a(f"s_waitcnt vmcnt({X_.get('p3n', 2)})")
        nrest = 32 - NW1PRE
        if CSR and not X_.get("p3p"): csB(W1H[NC1:NW1PRE], NC1 == 0, "b2")
        a(f"s_lshl_b32 {sA}, {sKH}, 15")
        a(f"s_lshl_b32 {sB}, {sTT}, 10")
        a(f"s_add_u32 {sA}, {sA}, {sB}")
        a(f"v_add_u32 v104, {sA}, v2")
        def late_loads():
            for s_ in range(NW1PRE, 32):
                a(f"buffer_load_dwordx4 {vr(W1H[s_],4)}, v2, {srd(SRD_WS)}, {sW1B} offen offset:{(s_%4)*1024} sc1")
                if s_ % 4 == 3 and s_ < 31: a(f"s_add_u32 {sW1B}, {sW1B}, 4096")
        a.lg = []
        for st in range(2):
            if st == 0: self.stamp("p3w")
            a(f"s_waitcnt vmcnt({4 if st == 0 else 0})")
            if st == 0: self.stamp("p3v")
            a("s_barrier")
            self.stamp(f"p3s{st}")
            for i in range(8):
                a.ds(f"ds_read_b128 {vr(BR+4*i,4)}, v104 offset:{(st*8+i)*2048}", f"b{st}{i}")
            if st == 1 and not X_.get("lw1"): late_loads()
            for i in range(8):
                a.wait_lg(f"b{st}{i}")
                k = st * 8 + i
                srcC = "0" if k == 0 else vr(ACC, 16)
                a(f"v_mfma_f32_32x32x16_bf16 {vr(ACC,16)}, {vr(WOH[k],4)}, {vr(BR+4*i,4)}, {srcC}")
        self.stamp("p3mm")
        a(f"s_lshl_b32 {sA}, {sW}, 11")
        a(f"s_add_u32 {sA}, {sA}, {LDS_E2}")
        a(f"v_add_u32 v104, {sA}, v2")
        a(f"ds_write_b128 v104, {vr(ACC+8,4)}")
        a(f"ds_write_b128 v104, {vr(ACC+12,4)} offset:1024")
        a("s_waitcnt lgkmcnt(0)")
        a("s_barrier")
        a("v_xor_b32 v104, 8192, v104")
        a(f"ds_read_b128 {vr(BR,4)}, v104")
        a(f"ds_read_b128 {vr(BR+4,4)}, v104 offset:1024")
        for i in range(4):
            a(f"v_lshlrev_b32 v{BR+8+2*i}, 16, v{X+i}")
            a(f"v_and_b32 v{BR+9+2*i}, 0xffff0000, v{X+i}")
        a(f"s_lshl_b32 {sA}, {sS}, 1")
        a(f"s_add_u32 {sA}, {sA}, {sTT}")
        a(f"s_lshl_b32 {sA}, {sA}, 10")
        a(f"s_lshl_b32 {sB}, {sC}, 16")
        a(f"s_add_u32 {sA}, {sA}, {sB}")
        a(f"s_add_u32 {sA}, {sA}, {WS_H}")
        a(f"s_lshl_b32 {sD}, {sTT}, 5")
        a(f"s_add_u32 {sD}, {sD}, {sS}")
        a(f"s_lshl_b32 {sD}, {sD}, 2")
        a(f"s_lshl_b32 {sE_}, {sC}, 8")
        a(f"s_add_u32 {sD}, {sD}, {sE_}")
        a(f"s_add_u32 {sD}, {sD}, {WS_FLH}")
        for i in range(8):
            a(f"v_add_f32 v{ACC+i}, v{ACC+i}, v{BR+8+i}")
        a("s_waitcnt lgkmcnt(0)")
        for i in range(8):
            a(f"v_add_f32 v{ACC+i}, v{ACC+i}, v{BR+i}")
        for i in range(4):
            a(f"v_cvt_pk_bf16_f32 v{HB+i}, v{ACC+2*i}, v{ACC+2*i+1}")
        a("s_mov_b32 s5, 0x3f803f80")
        a(f"v_dot2_f32_bf16 v56, v{HB}, s5, 0")
        a(f"v_dot2_f32_bf16 v57, v{HB}, v{HB}, 0")
        for i in range(1, 4):
            a(f"v_dot2_f32_bf16 v56, v{HB+i}, s5, v56")
            a(f"v_dot2_f32_bf16 v57, v{HB+i}, v{HB+i}, v57")
        a("v_mov_b32 v58, v56")
        a("v_mov_b32 v59, v57")
        a("v_permlane32_swap_b32 v56, v58")
        a("v_permlane32_swap_b32 v57, v59")
        a("v_add_f32 v56, v56, v58")
        a("v_add_f32 v57, v57, v59")
        a(f"s_lshl_b32 {sB}, {sTT}, 5")
        a(f"s_add_u32 {sB}, {sB}, {sS}")
        a(f"s_lshl_b32 {sB}, {sB}, 8")
        a(f"s_lshl_b32 {sE_}, {sC}, 14")
        a(f"s_add_u32 {sB}, {sB}, {sE_}")
        a(f"s_add_u32 {sB}, {sB}, {WS_ST}")
        a("v_lshlrev_b32 v3, 3, v1")
        self.publish("h", [("dwordx4", vr(HB, 4), "v2", sA, 0), ("dwordx2", "v[56:57]", "v3", sB, 0, "lo32")], sD)
        self.stamp("hpub")
        if X_.get("lw1"): late_loads()

    def w2load(self, f, i):
        a = self.a
        hm = (W2H0 if f == 0 else W2H1)[i]
        off = (f * 112 + i) * 1024
        a(f"s_add_u32 {sA}, s89, {off}")
        a(f"buffer_load_dwordx4 {vr(hm,4)}, v2, {srd(SRD_WS)}, {sA} offen sc1")

    def p4(self):
        a = self.a
        HB, ACC, BR = 4, 64, 108
        LDS_HF, LDS_ST2, LDS_CS1, LDS_B1 = 64 * 1024, 144 * 1024, 145 * 1024, 146 * 1024
        SK = self.opt.get("sk")
        STF = SK or self.opt.get("stf")
        a(f"s_mul_i32 {sA}, {sW if SK else sM}, 224")
        a(f"s_mul_i32 {sB}, {sM if SK else sW}, 14")
        a(f"s_add_u32 {sA}, {sA}, {sB}")
        a(f"s_lshl_b32 {sA}, {sA}, 10")
        a(f"s_add_u32 s89, {sA}, {WS_W2F}")
        if SK:
            a(f"s_lshl_b32 {sA}, {sM}, 7")
            a(f"s_lshl_b32 {sB}, {sFT}, 6")
            a(f"s_add_u32 {sA}, {sA}, {sB}")
            a(f"s_lshl_b32 {sB}, {sKH}, 5")
            a(f"s_add_u32 s70, {sA}, {sB}")
            a("v_lshrrev_b32 v3, 5, v1")
            a("v_lshlrev_b32 v3, 3, v3")
            a(f"buffer_load_dwordx2 v[148:149], v3, {srd(SRD_B2)}, s70 offen")
            a(f"buffer_load_dwordx2 v[150:151], v3, {srd(SRD_B2)}, s70 offen offset:16")
        for i in range(NW2E): self.w2load(0, i)
        a(f"s_cmp_eq_u32 {sW}, 7")
        a("s_cbranch_scc1 L_p4_pre7")
        if self.opt.get("lw1"): a(f"s_waitcnt vmcnt({NW2E + (2 if SK else 0)})")
        self.colsum(W1H[NW1PRE:], False)
        a("v_add_f32 v106, v106, v107")
        a("v_mov_b32 v107, v106")
        a("v_permlane32_swap_b32 v106, v107")
        a("v_add_f32 v106, v106, v107")
        a("v_and_b32 v107, 31, v1")
        a("v_lshlrev_b32 v107, 2, v107")
        a(f"s_lshl_b32 {sA}, {sW}, 7")
        a(f"s_add_u32 {sA}, {sA}, {LDS_CS1}")
        a(f"v_add_u32 v107, {sA}, v107")
        a("ds_write_b32 v107, v106")
        a("s_branch L_p4_pre")
        a.label("L_p4_pre7")
        a(f"s_mul_i32 {sA}, {sM}, 448")
        a("v_lshlrev_b32 v3, 3, v1")
        a("v_min_u32 v3, 440, v3")
        a(f"buffer_load_dwordx2 v[106:107], v3, {srd(SRD_B1)}, {sA} offen")
        a("s_waitcnt vmcnt(0)")
        a("v_lshlrev_b32 v108, 16, v106")
        a("v_and_b32 v109, 0xffff0000, v106")
        a("v_lshlrev_b32 v110, 16, v107")
        a("v_and_b32 v111, 0xffff0000, v107")
        for i in range(4): a(f"v_mul_f32 v{108+i}, 0.5, v{108+i}")
        a("v_lshlrev_b32 v3, 1, v3")
        a(f"v_add_u32 v3, {LDS_B1}, v3")
        a("ds_write_b128 v3, v[108:111]")
        STF = SK or self.opt.get("stf")
        if STF:
            for i in range(4): a(f"v_mov_b32 v{108+i}, 0")
            a(f"v_mov_b32 v3, {LDS_SY}")
            a("s_mov_b64 exec, 1")
            a("ds_write_b128 v3, v[108:111]")
            a("s_mov_b64 exec, -1")
        a.label("L_p4_pre")
        a(f"s_lshl_b32 {sA}, {sC}, 8")
        a(f"s_add_u32 {sA}, {sA}, {WS_FLH}")
        a("v_lshlrev_b32 v3, 2, v1")
        self.poll_begin("h")
        a(f"buffer_load_dword v104, v3, {srd(SRD_WS)}, {sA} offen sc1")
        a("s_waitcnt vmcnt(0)")
        a("v_cmp_ne_u32 vcc, s3, v104")
        self.poll_end("h", sleep=1)
        self.stamp("hok")
        a(f"s_lshl_b32 s67, {sW}, 11")
        a(f"s_lshl_b32 {sB}, {sC}, 16")
        a(f"s_add_u32 {sB}, {sB}, s67")
        a(f"s_add_u32 s68, {sB}, {WS_H}")
        def hdma(i):
            for tt in range(2):
                d = i * 8 * 2048 + tt * 1024
                a(f"s_add_u32 {sD}, s67, {d + LDS_HF}")
                a(f"s_add_u32 {sE_}, s68, {d}")
                a(f"s_mov_b32 m0, {sD}")
                a(f"buffer_load_dwordx4 v2, {srd(SRD_WS)}, {sE_} offen sc1 lds")
        hdma(0); hdma(1)
        a(f"v_add_u32 v104, {LDS_HF}, v2")
        a("s_waitcnt vmcnt(2) lgkmcnt(0)" if STF else "s_waitcnt vmcnt(2)")
        a("s_barrier")
        self.stamp("f1a")
        hdma(2); hdma(3)
        a(f"s_cmp_eq_u32 {sW}, 7")
        a("s_cbranch_scc1 L_p4_w7")
        a.lg = []
        NR = 3
        def hread(k):
            sl = k % NR
            a.ds(f"ds_read_b128 {vr(BR+8*sl,4)}, v104 offset:{k*2048}", f"h{k}")
            a.ds(f"ds_read_b128 {vr(BR+8*sl+4,4)}, v104 offset:{k*2048+1024}", f"h{k}")
        for k in range(NR - 1): hread(k)
        lst = [(0, i) for i in range(NW2E, 14)] + [(1, i) for i in range(14)]
        sched = {}
        for n, (f, i) in enumerate(lst):
            st = (n * 30) // len(lst) + 1
            if f == 1: st = max(st, i)
            sched.setdefault(st, []).append((f, i))
        issued = 0
        for k in range(32):
            if k == 8 - (NR - 1):
                a(f"s_waitcnt vmcnt({4 + issued})")
                a("s_barrier")
            if k == 16 - (NR - 1):
                a(f"s_waitcnt vmcnt({issued})")
                a("s_barrier")
                self.stamp("f1b")
            if STF and k == self.opt.get("skp", 24):
                lab = a.newlabel("L_skp")
                a(f"s_cmp_eq_u32 {sKH}, 0")
                a(f"s_cbranch_scc1 {lab}")
                a("s_setprio 1")
                a.label(lab)
            if k + NR - 1 < 32: hread(k + NR - 1)
            a.wait_lg(f"h{k}")
            sl = k % NR
            for tt in range(2):
                srcC = "0" if k == 0 else vr(ACC + 16 * tt, 16)
                a(f"v_mfma_f32_32x32x16_bf16 {vr(ACC+16*tt,16)}, {vr(W1H[k],4)}, {vr(BR+8*sl+4*tt,4)}, {srcC}")
            for (f, i) in (sched.get(k, []) if not self.opt.get("now2") else []):
                self.w2load(f, i)
                issued += 1
        self.stamp("f1c")
        if STF:
            a(f"v_mov_b32 v105, {LDS_SY}")
            if not SK:
                a("v_mov_b32 v106, 1")
                a("s_mov_b64 exec, 1")
                a("ds_add_u32 v105, v106 offset:4")
                a("s_mov_b64 exec, -1")
            self.lds_spin("st", 105, 0, 1)
        else:
            a("s_barrier")
        a.lg = []
        CS, BF = 108, 208
        a("v_and_b32 v3, 31, v1")
        a("v_lshlrev_b32 v3, 3, v3")
        a(f"v_add_u32 v3, {LDS_ST2}, v3")
        a("ds_read_b64 v[104:105], v3")
        a("ds_read_b64 v[106:107], v3 offset:256")
        a("v_lshrrev_b32 v3, 5, v1")
        a("v_lshlrev_b32 v3, 4, v3")
        a(f"s_lshl_b32 {sA}, {sW}, 7")
        a(f"s_add_u32 {sA}, {sA}, {LDS_CS1}")
        a(f"v_add_u32 v3, {sA}, v3")
        for q in range(4):
            a(f"ds_read_b128 {vr(CS+4*q,4)}, v3 offset:{32*q}")
        for q in range(4):
            a(f"ds_read_b128 {vr(BF+4*q,4)}, v3 offset:{1024 + 32*q}")
        a("s_waitcnt lgkmcnt(0)")
        self.stamp("ffn1")
        HP = 236
        for tt in range(2):
            mu, rs = 104 + 2 * tt, 105 + 2 * tt
            A = ACC + 16 * tt
            for r in range(16): a(f"v_fma_f32 v{A+r}, -v{mu}, v{CS+r}, v{A+r}")
            for r in range(16): a(f"v_fma_f32 v{A+r}, v{A+r}, v{rs}, v{BF+r}")
            for r in range(16): a(f"v_add_f32 v{A+r}, v{A+r}, |v{A+r}|")
            for r in range(16): a(f"v_mul_f32 v{A+r}, v{A+r}, v{A+r}")
            for i in range(8): a(f"v_cvt_pk_bf16_f32 v{HP+8*tt+i}, v{A+2*i}, v{A+2*i+1}")
        if SK:
            a(f"s_lshl_b32 {sA}, {sW}, 12")
            a(f"v_add_u32 v3, {sA}, v2")
            for u in range(2):
                for tt in range(2):
                    a(f"ds_write_b128 v3, {vr(HP + 8 * tt + 4 * u, 4)} offset:{u * 2048 + tt * 1024}")
            a(f"s_lshl_b32 {sA}, {sKH}, 2")
            a(f"s_add_u32 {sA}, {sA}, {LDS_SY + 4}")
            a(f"v_mov_b32 v104, {sA}")
            a("v_mov_b32 v105, 1")
            a("s_waitcnt lgkmcnt(0)")
            a("s_mov_b64 exec, 1")
            a("ds_add_u32 v104, v105")
            a("s_mov_b64 exec, -1")
            a("s_setprio 0")
            self.stamp("hidw")
            a("s_branch L_p4_done")
        a(f"s_mul_i32 {sA}, {sM}, 7")
        a(f"s_add_u32 {sA}, {sA}, {sW}")
        a(f"s_lshl_b32 {sB}, {sA}, 12")
        a(f"s_mul_i32 {sD}, {sC}, {224*1024}")
        a(f"s_add_u32 {sB}, {sB}, {sD}")
        a(f"s_add_u32 {sB}, {sB}, {WS_HID}")
        a(f"s_lshl_b32 {sD}, {sA}, 2")
        a(f"s_lshl_b32 {sE_}, {sC}, 8")
        a(f"s_add_u32 {sD}, {sD}, {sE_}")
        a(f"s_add_u32 {sD}, {sD}, {WS_FLHID}")
        st = []
        for u in range(2):
            for tt in range(2):
                st.append(("dwordx4", vr(HP + 8 * tt + 4 * u, 4), "v2", sB, u * 2048 + tt * 1024))
        def midB():
            lab = a.newlabel("L_midb")
            a(f"s_cmp_eq_u32 {sKH}, 0")
            a(f"s_cbranch_scc1 {lab}")
            a(f"v_mov_b32 v106, {LDS_SY}")
            a("v_mov_b32 v107, 1")
            a("s_mov_b64 exec, 1")
            a("ds_add_u32 v106, v107 offset:8")
            a("s_mov_b64 exec, -1")
            a.label(lab)
        self.publish("hid", st, sD, mid=midB if self.opt.get("sp5") == 2 else None)
        if STF: a("s_setprio 0")
        if self.opt.get("wbl2"):
            a(f"s_cmp_eq_u32 {sW}, 0")
            a("s_cbranch_scc0 L_nowb")
            a(f"s_cmp_lt_u32 {sID}, {self.opt['wbl2']}")
            a("s_cbranch_scc0 L_nowb")
            a("buffer_wbl2 sc1")
            a.label("L_nowb")
        a("s_branch L_p4_done")
        a.label("L_p4_w7")
        SL = 64
        a("v_lshlrev_b32 v3, 4, v1")
        a(f"s_lshl_b32 {sA}, {sC}, 14")
        a(f"s_add_u32 {sA}, {sA}, {WS_ST}")
        for q in range(16):
            a(f"buffer_load_dwordx4 {vr(SL+4*q,4)}, v3, {srd(SRD_WS)}, {sA} offen offset:{(q%4)*1024} sc1")
            if q % 4 == 3 and q < 15: a(f"s_add_u32 {sA}, {sA}, 4096")
        a("s_waitcnt vmcnt(20)")
        a("s_barrier")
        a("s_waitcnt vmcnt(16)")
        a("s_barrier")
        for i in range(NW2E, 14): self.w2load(0, i)
        a(f"s_waitcnt vmcnt({14 - NW2E})")
        for tt in range(2):
            B = SL + 32 * tt
            for q in range(1, 8):
                for c in range(4): a(f"v_add_f32 v{B+c}, v{B+c}, v{B+4*q+c}")
        R = [SL + c for c in range(4)] + [SL + 32 + c for c in range(4)]
        T = [SL + 8 + c for c in range(8)]
        for sw in ("16", "32"):
            for r, t in zip(R, T): a(f"v_mov_b32 v{t}, v{r}")
            for r, t in zip(R, T): a(f"v_permlane{sw}_swap_b32 v{r}, v{t}")
            for r, t in zip(R, T): a(f"v_add_f32 v{r}, v{r}, v{t}")
        for tt in range(2):
            for u in range(2):
                s_, q_ = SL + 32 * tt + 2 * u, SL + 32 * tt + 2 * u + 1
                a(f"v_mul_f32 v{s_}, 0x{f32bits(1/512):x}, v{s_}")
                a(f"v_mul_f32 v{q_}, 0x{f32bits(1/512):x}, v{q_}")
                a(f"v_fma_f32 v{q_}, -v{s_}, v{s_}, v{q_}")
                a(f"v_max_f32 v{q_}, 0, v{q_}")
                a(f"v_add_f32 v{q_}, 0x{f32bits(1e-5):x}, v{q_}")
                a(f"v_rsq_f32 v{q_}, v{q_}")
                a(f"v_mul_f32 v{q_}, 0.5, v{q_}")
        a("v_and_b32 v3, 15, v1")
        a("v_lshlrev_b32 v3, 4, v3")
        a(f"v_add_u32 v3, {LDS_ST2}, v3")
        a("s_mov_b64 exec, 0xffff")
        a(f"ds_write_b128 v3, {vr(SL,4)}")
        a(f"ds_write_b128 v3, {vr(SL+32,4)} offset:256")
        a("s_mov_b64 exec, -1")
        a("s_waitcnt lgkmcnt(0)")
        if STF:
            a(f"v_mov_b32 v104, {LDS_SY}")
            a("v_mov_b32 v105, 1")
            a("s_mov_b64 exec, 1")
            a("ds_write_b32 v104, v105")
            a("s_mov_b64 exec, -1")
        else:
            a("s_barrier")
        if self.prof and "ffn1" not in self.skip:
            self.nstamp = self.stamp_names.index("ffn1")
            nm = list(self.stamp_names)
            self.stamp("ffn1")
            self.stamp_names = nm
            self.nstamp = len(nm)
        a.label("L_p4_done")

    def lds_spin(self, name, vaddr, word, val):
        a = self.a
        a(f"s_mov_b32 {sCnt}, 0x40000")
        a.label(f"L_spin_{name}")
        a(f"ds_read_b32 v106, v{vaddr} offset:{4*word}")
        a("s_waitcnt lgkmcnt(0)")
        a(f"v_readfirstlane_b32 {sA}, v106")
        a(f"s_cmp_eq_u32 {sA}, {val}")
        a(f"s_cbranch_scc1 L_spinok_{name}")
        a(f"s_sub_u32 {sCnt}, {sCnt}, 1")
        a(f"s_cmp_eq_u32 {sCnt}, 0")
        a(f"s_cbranch_scc1 L_spinok_{name}")
        if self.opt.get("sks", 1): a(f"s_sleep {self.opt.get('sks', 1)}")
        a(f"s_branch L_spin_{name}")
        a.label(f"L_spinok_{name}")

    def p5s(self):
        a = self.a
        X = self.opt
        HB, B2R = 4, 148
        ACCS = [[64, 208], [80, 224]]
        BQ = [96, 100, 108, 112, 116, 120, 124, 128]
        PK = [[40, 44, 48, 52], [8, 12, 16, 20]]
        SUM, UT, RD = 24, 32, 152
        D = X.get("skd", 4)
        a(f"s_lshl_b32 {sA}, {sC}, 19")
        a(f"s_add_u32 {sA}, {sA}, {WS_P}")
        a(f"s_lshl_b32 {sB}, {sW}, 16")
        a(f"s_lshl_b32 {sD}, {sM}, 10")
        a(f"s_add_u32 {sB}, {sB}, {sD}")
        a(f"s_add_u32 s71, {sA}, {sB}")
        a(f"s_lshl_b32 {sB}, {sM}, 16")
        a(f"s_lshl_b32 {sD}, {sW}, 13")
        a(f"s_add_u32 {sB}, {sB}, {sD}")
        a(f"s_add_u32 s72, {sA}, {sB}")
        a(f"v_mov_b32 v105, {LDS_SY}")
        self.lds_spin("ca", 105, 1, 4)
        self.stamp("caok")
        seq = [(i, tt) for i in range(8) for tt in range(2)] + [(i, 0) for i in range(8, 14)] + [(i, 1) for i in range(8, 14)]
        a.lg = []
        def rd(n):
            i, tt = seq[n]
            a.ds(f"ds_read_b128 {vr(BQ[n % 8],4)}, v2 offset:{i*2048 + tt*1024}", f"e{n}")
        def pack(tt, f, half):
            A = ACCS[tt][f] + 8 * half
            P = PK[tt][2 * f + half]
            for i in range(4): a(f"v_cvt_pk_bf16_f32 v{P+i}, v{A+2*i}, v{A+2*i+1}")
            for i in range(4): a(f"v_min_u32 v{P+i}, -2, v{P+i}")
        def stores(tt, name):
            def body(mod):
                for f in range(2):
                    for half in range(2):
                        p = 4 * half + 2 * f + tt
                        a(f"s_add_u32 {sA}, s71, {p * 8192}")
                        a(f"buffer_store_dwordx4 {vr(PK[tt][2*f+half],4)}, v2, {srd(SRD_WS)}, {sA} offen{mod}")
            l1, l2 = f"L_pst_slow_{name}", f"L_pst_done_{name}"
            a(f"s_cmp_eq_u32 {sFast}, 0")
            a(f"s_cbranch_scc0 {l1}")
            body("")
            a(f"s_branch {l2}")
            a.label(l1)
            body(" sc1")
            a.label(l2)
        for n in range(D): rd(n)
        seen = set()
        for n, (i, tt) in enumerate(seq):
            if n + D < len(seq):
                if seq[n + D][0] >= 8 and seq[n + D - 1][0] < 8:
                    self.lds_spin("cb", 105, 2, 3)
                    self.stamp("cbok")
                rd(n + D)
            if i not in seen:
                a(f"s_waitcnt vmcnt({13 - i})")
                seen.add(i)
            a.wait_lg(f"e{n}")
            for f in range(2):
                hm = (W2H0 if f == 0 else W2H1)[i]
                srcC = "0" if i == 0 else vr(ACCS[tt][f], 16)
                a(f"v_mfma_f32_32x32x16_bf16 {vr(ACCS[tt][f],16)}, {vr(hm,4)}, {vr(BQ[n % 8],4)}, {srcC}")
            if n in (23, 24, 25, 26):
                j = n - 23
                pack(0, j >> 1, j & 1)
            if n == 26: stores(0, "t0")
            if n == 17:
                for i_ in range(4):
                    a(f"v_lshlrev_b32 v{SUM+2*i_}, 16, v{HB+i_}")
                    a(f"v_and_b32 v{SUM+1+2*i_}, 0xffff0000, v{HB+i_}")
                    a(f"v_lshlrev_b32 v{UT+2*i_}, 16, v{B2R+i_}")
                    a(f"v_and_b32 v{UT+1+2*i_}, 0xffff0000, v{B2R+i_}")
                for i_ in range(4):
                    a(f"v_pk_add_f32 {vr(SUM+2*i_,2)}, {vr(SUM+2*i_,2)}, {vr(UT+2*i_,2)}")
            if n == 19:
                a("v_and_b32 v3, 31, v1")
                a("v_lshlrev_b32 v3, 10, v3")
                a("v_lshrrev_b32 v104, 5, v1")
                a("v_lshl_or_b32 v3, v104, 4, v3")
                a(f"s_lshl_b32 {sA}, {sTT}, 5")
                a(f"s_add_u32 {sA}, {sA}, {sT0}")
                a(f"s_lshl_b32 {sA}, {sA}, 10")
                a(f"s_add_u32 s70, {sA}, s70")
        self.stamp("ffn2")
        for f in range(2):
            for half in range(2): pack(1, f, half)
        stores(1, "t1")
        a(f"s_cmp_eq_u32 {sFast}, 0")
        a("s_cbranch_scc1 L_p5_fast")
        a(f"s_lshl_b32 {sA}, {sC}, 8")
        a(f"s_lshl_b32 {sB}, {sW}, 5")
        a(f"s_add_u32 {sB}, {sB}, {sA}")
        a(f"s_lshl_b32 {sD}, {sM}, 2")
        a(f"s_add_u32 {sB}, {sB}, {sD}")
        a(f"s_add_u32 {sB}, {sB}, {WS_FLHID}")
        a("v_mov_b32 v104, s3")
        a("v_mov_b32 v105, 0")
        a("s_waitcnt vmcnt(0)")
        a("s_mov_b64 exec, 1")
        a(f"buffer_store_dword v104, v105, {srd(SRD_WS)}, {sB} offen sc1")
        a("s_mov_b64 exec, -1")
        a(f"s_lshl_b32 {sB}, {sM}, 5")
        a(f"s_add_u32 {sA}, {sA}, {sB}")
        a(f"s_add_u32 {sA}, {sA}, {WS_FLHID}")
        a("v_min_u32 v105, 7, v1")
        a("v_lshlrev_b32 v105, 2, v105")
        self.poll_begin("pf")
        a(f"buffer_load_dword v104, v105, {srd(SRD_WS)}, {sA} offen sc1")
        a("s_waitcnt vmcnt(0)")
        a("v_cmp_ne_u32 vcc, s3, v104")
        self.poll_end("pf", sleep=1)
        a.label("L_p5_fast")
        if X.get("skw"): a("s_waitcnt vmcnt(0)")
        self.stamp("pst")
        a("s_add_u32 s73, s72, 4096")
        def ld(j):
            a(f"buffer_load_dwordx4 {vr(RD+4*j,4)}, v2, {srd(SRD_WS)}, {'s72' if j < 4 else 's73'} offen offset:{(j%4)*1024} sc1")
        def chk(j):
            R = RD + 4 * j
            a(f"v_max3_u32 v104, v{R}, v{R+1}, v{R+2}")
            a(f"v_max_u32 v104, v104, v{R+3}")
            a("v_cmp_eq_u32 vcc, -1, v104")
        def accum(j):
            R = RD + 4 * j
            for i in range(4):
                a(f"v_lshlrev_b32 v{UT+2*i}, 16, v{R+i}")
                a(f"v_and_b32 v{UT+1+2*i}, 0xffff0000, v{R+i}")
            for i in range(4):
                a(f"v_pk_add_f32 {vr(SUM+2*i,2)}, {vr(SUM+2*i,2)}, {vr(UT+2*i,2)}")
        sP = "s67"
        for j in range(8): ld(j)
        a(f"s_mov_b32 {sP}, 0xff")
        for j in range(8):
            a(f"s_waitcnt vmcnt({7 - j})")
            chk(j)
            a(f"s_cbranch_vccnz L_r1_{j}")
            accum(j)
            a(f"s_bitset0_b32 {sP}, {j}")
            a.label(f"L_r1_{j}")
        self.stamp("r1")
        a(f"s_mov_b32 {sCnt}, 100000")
        a.label("L_retry")
        a(f"s_cmp_eq_u32 {sP}, 0")
        a("s_cbranch_scc1 L_rdone")
        a(f"s_sub_u32 {sCnt}, {sCnt}, 1")
        a(f"s_cmp_eq_u32 {sCnt}, 0")
        a("s_cbranch_scc1 L_rdone")
        for j in range(8):
            a(f"s_bitcmp1_b32 {sP}, {j}")
            a(f"s_cbranch_scc0 L_r2_{j}")
            ld(j)
            a.label(f"L_r2_{j}")
        a("s_waitcnt vmcnt(0)")
        for j in range(8):
            a(f"s_bitcmp1_b32 {sP}, {j}")
            a(f"s_cbranch_scc0 L_r3_{j}")
            chk(j)
            a(f"s_cbranch_vccnz L_r3_{j}")
            accum(j)
            a(f"s_bitset0_b32 {sP}, {j}")
            a.label(f"L_r3_{j}")
        a("s_branch L_retry")
        a.label("L_rdone")
        for i in range(4):
            a(f"v_cvt_pk_bf16_f32 v{88+i}, v{SUM+2*i}, v{SUM+1+2*i}")
        a("v_permlane32_swap_b32 v88, v90")
        a("v_permlane32_swap_b32 v89, v91")
        a(f"buffer_store_dwordx4 v[88:91], v3, {srd(SRD_OUT)}, s70 offen")
        self.stamp("end")

    def p5(self):
        a = self.a
        HB, B2R = 4, 148
        ACCS = [[64, 208], [80, 224]]
        BQ = [40, 44, 48, 52, 96, 100, 108, 112, 116, 120, 124, 128, 240, 244]
        a(f"s_lshl_b32 {sA}, {sM}, 7")
        a(f"s_lshl_b32 {sB}, {sFT}, 6")
        a(f"s_add_u32 {sA}, {sA}, {sB}")
        a(f"s_lshl_b32 {sB}, {sKH}, 5")
        a(f"s_add_u32 s89, {sA}, {sB}")
        a("v_lshrrev_b32 v3, 5, v1")
        a("v_lshlrev_b32 v3, 3, v3")
        a(f"buffer_load_dwordx2 {vr(B2R,2)}, v3, {srd(SRD_B2)}, s89 offen")
        a(f"buffer_load_dwordx2 {vr(B2R+2,2)}, v3, {srd(SRD_B2)}, s89 offen offset:16")
        if self.opt.get("stf"):
            a(f"v_mov_b32 v105, {LDS_SY}")
            self.lds_spin("hf", 105, 1, 7)
        SP = self.opt.get("sp5")
        a(f"s_mul_i32 {sA}, {sW}, 28")
        a(f"s_lshl_b32 {sB}, {sC}, 8")
        a(f"s_add_u32 {sA}, {sA}, {sB}")
        a(f"s_add_u32 {sA}, {sA}, {WS_FLHID}")
        NA = 4 if SP else 7
        if SP:
            a(f"s_add_u32 s68, {sA}, 16")
            a("v_min_u32 v107, 2, v1")
            a("v_lshlrev_b32 v107, 2, v107")
        a(f"v_min_u32 v3, {NA - 1}, v1")
        a("v_lshlrev_b32 v3, 2, v3")
        self.poll_begin("hid")
        a(f"buffer_load_dword v104, v3, {srd(SRD_WS)}, {sA} offen sc1")
        a("s_waitcnt vmcnt(0)")
        a("v_cmp_ne_u32 vcc, s3, v104")
        self.poll_end("hid", sleep=1)
        self.stamp("hidok")
        if SP == 2:
            a(f"v_mov_b32 v105, {LDS_SY}")
            self.lds_spin("bq", 105, 2, 3)
            self.stamp("bqok")
        a(f"s_mul_i32 {sA}, {sW}, {14*2048}")
        a(f"s_mul_i32 {sD}, {sC}, {224*1024}")
        a(f"s_add_u32 {sA}, {sA}, {sD}")
        a(f"s_add_u32 s67, {sA}, {WS_HID}")
        def bload(tt, i):
            a(f"s_add_u32 {sA}, s67, {i*2048 + tt*1024}")
            a(f"buffer_load_dwordx4 {vr(BQ[i],4)}, v2, {srd(SRD_WS)}, {sA} offen sc1")
        if not SP:
            for i in range(14): bload(0, i)
        def scr_addr():
            a(f"s_lshl_b32 {sA}, {sW}, 11")
            a(f"v_add_u32 v104, {sA}, v2")
            a("v_add_u32 v105, 65536, v104")
        def wr_piece(tt, f, half):
            p = 4 * half + 2 * f + tt
            A = ACCS[tt][f] + 8 * half
            base = "v104" if p < 4 else "v105"
            off = (p % 4) * 16384
            a(f"ds_write_b128 {base}, {vr(A,4)} offset:{off}")
            a(f"ds_write_b128 {base}, {vr(A+4,4)} offset:{off+1024}")
        if SP:
            H16 = BQ + [248, 252]
            seq = [(i, 0) for i in range(8)] + [(i, 1) for i in range(8)] + [(i, 0) for i in range(8, 14)] + [(i, 1) for i in range(8, 14)]
            def eload(n):
                i, tt = seq[n]
                a(f"s_add_u32 {sA}, s67, {i*2048 + tt*1024}")
                a(f"buffer_load_dwordx4 {vr(H16[n % 16],4)}, v2, {srd(SRD_WS)}, {sA} offen sc1")
            for n in range(8): eload(n)
            a(f"buffer_load_dword v106, v107, {srd(SRD_WS)}, s68 offen sc1")
            for n in range(8, 16): eload(n)
            scr_addr()
            for n, (i, tt) in enumerate(seq):
                if n < 8: y = 16 - n
                elif n < 16: y = (15 - n) + 8 + min(n - 8, 4)
                elif n < 24: y = (23 - n) + 4
                else: y = 27 - n
                a(f"s_waitcnt vmcnt({y})")
                for f in range(2):
                    hm = (W2H0 if f == 0 else W2H1)[i]
                    srcC = "0" if i == 0 else vr(ACCS[tt][f], 16)
                    a(f"v_mfma_f32_32x32x16_bf16 {vr(ACCS[tt][f],16)}, {vr(hm,4)}, {vr(H16[n % 16],4)}, {srcC}")
                if n == 7:
                    a("s_waitcnt vmcnt(8)")
                    a(f"s_mov_b32 {sCnt}, 200000")
                    a.label("L_poll_hid2")
                    a("v_cmp_ne_u32 vcc, s3, v106")
                    a("s_cbranch_vccz L_pollok_hid2")
                    a(f"s_sub_u32 {sCnt}, {sCnt}, 1")
                    a(f"s_cmp_eq_u32 {sCnt}, 0")
                    a("s_cbranch_scc1 L_pollok_hid2")
                    a("s_sleep 1")
                    a(f"buffer_load_dword v106, v107, {srd(SRD_WS)}, s68 offen sc1")
                    a("s_waitcnt vmcnt(0)")
                    a("s_branch L_poll_hid2")
                    a.label("L_pollok_hid2")
                    self.stamp("hid2")
                    for n2 in range(16, 24): eload(n2)
                if 8 <= n < 12: eload(n + 16)
                if n in (23, 24, 25, 26):
                    j = n - 23
                    wr_piece(0, j >> 1, j & 1)
        else:
            scr_addr()
            issued = 14
            done = 0
            for tt in range(2):
                for i in range(14):
                    n = tt * 14 + i
                    a(f"s_waitcnt vmcnt({issued - n - 1})")
                    for f in range(2):
                        hm = (W2H0 if f == 0 else W2H1)[i]
                        srcC = "0" if i == 0 else vr(ACCS[tt][f], 16)
                        a(f"v_mfma_f32_32x32x16_bf16 {vr(ACCS[tt][f],16)}, {vr(hm,4)}, {vr(BQ[i],4)}, {srcC}")
                    if tt == 0:
                        bload(1, i); issued += 1
                    if tt == 1 and i in (2, 4, 6, 8):
                        j = (i - 2) // 2
                        wr_piece(0, j >> 1, j & 1)
        self.stamp("ffn2")
        for f in range(2):
            for half in range(2): wr_piece(1, f, half)
        for i in range(4):
            a(f"v_lshlrev_b32 v{16+2*i}, 16, v{HB+i}")
            a(f"v_and_b32 v{17+2*i}, 0xffff0000, v{HB+i}")
            a(f"v_lshlrev_b32 v{24+2*i}, 16, v{B2R+i}")
            a(f"v_and_b32 v{25+2*i}, 0xffff0000, v{B2R+i}")
        for i in range(8):
            a(f"v_add_f32 v{16+i}, v{16+i}, v{24+i}")
        a("v_and_b32 v3, 31, v1")
        a("v_lshlrev_b32 v3, 10, v3")
        a("v_lshrrev_b32 v12, 5, v1")
        a("v_lshl_or_b32 v3, v12, 4, v3")
        a(f"s_lshl_b32 {sB}, {sW}, 14")
        a(f"v_add_u32 v106, {sB}, v2")
        a(f"s_lshl_b32 {sA}, {sTT}, 5")
        a(f"s_add_u32 {sA}, {sA}, {sT0}")
        a(f"s_lshl_b32 {sA}, {sA}, 10")
        a(f"s_add_u32 {sA}, {sA}, s89")
        a("s_waitcnt lgkmcnt(0)")
        a("s_barrier")
        RD = 152
        a.lg = []
        for q in range(8):
            a.ds(f"ds_read_b128 {vr(RD+8*q,4)}, v106 offset:{q*2048}", f"q{q}")
            a.ds(f"ds_read_b128 {vr(RD+8*q+4,4)}, v106 offset:{q*2048+1024}", f"q{q}")
        for q in range(8):
            a.wait_lg(f"q{q}")
            for i in range(8):
                a(f"v_add_f32 v{16+i}, v{16+i}, v{RD+8*q+i}")
        for i in range(4):
            a(f"v_cvt_pk_bf16_f32 v{88+i}, v{16+2*i}, v{17+2*i}")
        a("v_permlane32_swap_b32 v88, v90")
        a("v_permlane32_swap_b32 v89, v91")
        om = {0: "", 1: " sc1", 2: " nt", 3: " sc0 sc1"}[self.opt.get("outmod", 0)]
        a(f"buffer_store_dwordx4 v[88:91], v3, {srd(SRD_OUT)}, {sA} offen{om}")
        self.stamp("end")

    def kv_flag(self):
        a = self.a
        a(f"s_add_u32 {sD}, {sTag}, 1")
        a(f"s_lshl_b32 {sA}, {sG}, 4")
        nf = self.opt.get("nf", 1)
        a(f"s_add_u32 {sA}, {sA}, {WS_FLKV2 if nf else WS_FLKV}")
        a(f"v_mov_b32 v8, {sD}")
        a("v_mov_b32 v9, s3")
        if nf:
            a("v_lshlrev_b32 v10, 12, v1")
            a("s_mov_b64 exec, %s" % ("1" if self.opt.get("norep") else "0xff"))
        else:
            a("v_mov_b32 v10, 0")
            a("s_mov_b64 exec, 1")
        a(f"s_cmp_eq_u32 {sW}, 1")
        a("s_cbranch_scc1 L_flagv")
        a(f"buffer_store_dwordx2 v[8:9], v10, {srd(SRD_WS)}, {sA} offen sc1")
        a("s_branch L_flagd")
        a.label("L_flagv")
        a(f"buffer_store_dword v8, v10, {srd(SRD_WS)}, {sA} offen offset:8 sc1")
        a.label("L_flagd")
        a("s_mov_b64 exec, -1")

    def wave_reduce(self, regs, op, tmps):
        a = self.a
        for n in (8, 4, 2, 1):
            for r in regs:
                a(f"v_{op}_f32_dpp {r}, {r}, {r} row_ror:{n} row_mask:0xf bank_mask:0xf")
        for sw in ("16", "32"):
            for r, t in zip(regs, tmps):
                a(f"v_mov_b32 {t}, {r}")
            for r, t in zip(regs, tmps):
                a(f"v_permlane{sw}_swap_b32 {r}, {t}")
            for r, t in zip(regs, tmps):
                a(f"v_{op}_f32 {r}, {r}, {t}")

    def finish(self):
        a = self.a
        a.label("L_end")
        a("s_endpgm")

    def dump_regs(self, base, regs, off):
        a = self.a
        n = len(regs)
        a(f"s_lshl_b32 {sA}, {sID}, 3")
        a(f"s_add_u32 {sA}, {sA}, {sW}")
        a(f"s_mul_i32 {sA}, {sA}, {n*256}")
        a(f"s_add_u32 {sA}, {sA}, {off}")
        a("v_lshlrev_b32 v3, 2, v1")
        for i, r in enumerate(regs):
            a(f"buffer_store_dword v{r}, v3, {srd(SRD_WS)}, {sA} offen offset:{i*256}")
        a("s_waitcnt vmcnt(0)")

    def build(self):
        self.prologue()
        self.p1()
        if self.stop == "p1":
            self.dump_regs(0, list(range(32, 48)), WS_DBG)
            self.a("s_waitcnt vmcnt(0)")
            self.finish(); return self.text()
        self.p2()
        if self.stop in ("q", "attn"):
            self.a("s_waitcnt vmcnt(0)")
            self.dump_stamps()
            self.finish(); return self.text()
        for nm, fn in (("h", self.p3), ("hid", self.p4), ("out", self.p5s if self.opt.get("sk") else self.p5)):
            fn()
            if self.stop == nm: break
        if self.opt.get("dirtyend"):
            a = self.a
            n = self.opt["dirtyend"]
            a(f"s_lshl_b32 {sA}, {sID}, 3")
            a(f"s_add_u32 {sA}, {sA}, {sW}")
            a(f"s_mul_i32 {sA}, {sA}, {n*1024}")
            a(f"s_add_u32 {sA}, {sA}, {WS_DBG}")
            for i in range(n):
                a(f"buffer_store_dwordx4 v[4:7], v2, {srd(SRD_WS)}, {sA} offen")
                a(f"s_add_u32 {sA}, {sA}, 1024")
        self.a("s_waitcnt vmcnt(0)")
        self.dump_stamps()
        self.finish()
        return self.text()

    def text(self):
        lines, n = hazard_pass_all(self.a.lines)
        head = f"""; @launch grid=(256,1,1) block=(512,1,1) lds=163840
.amdgcn_target "amdgcn-amd-amdhsa--gfx950"
.text
.globl {KNAME}
.p2align 8
.type {KNAME},@function
{KNAME}:
"""
        tail = f""".section .rodata,"a"
.p2align 6
.amdhsa_kernel {KNAME}
  .amdhsa_next_free_vgpr 256
  .amdhsa_next_free_sgpr 102
  .amdhsa_accum_offset 256
  .amdhsa_group_segment_fixed_size 0
  .amdhsa_kernarg_size 104
  .amdhsa_user_sgpr_count 2
  .amdhsa_user_sgpr_kernarg_segment_ptr 1
  .amdhsa_system_sgpr_workgroup_id_x 1
.end_amdhsa_kernel
"""
        return head + "\n".join(lines) + "\n" + tail

if __name__ == "__main__":
    import argparse
    ap = argparse.ArgumentParser()
    ap.add_argument("--stop", default=None)
    ap.add_argument("-o", default="k.s")
    ap.add_argument("--prof", action="store_true")
    ap.add_argument("--opt", nargs="*", default=[])
    ap.add_argument("--skip", nargs="*", default=["args", "b1", "f1a", "f1b", "f1c"])
    args = ap.parse_args()
    opt = dict((kv.split("=")[0], int(kv.split("=")[1])) for kv in args.opt)
    g = Gen(stop=args.stop, prof=args.prof, opt=opt, skip=args.skip)
    open(args.o, "w").write(g.build())
    print("wrote", args.o, "stamps:", getattr(g, "stamp_names", None))
```

```python
import sys
sys.path.insert(0, "work")
from asmlib import Asm, hazard_pass_all

NAME = "sequential_preLN__grouped_kv_mqa__dense_activation_squared_relu__prompt"
KNAME = NAME + "_kernel"

WS_EPOCH = 0x0
WS_FLKV  = 0x1000
WS_FLWT  = 0x3000
WS_FLO   = 0x4000
WS_FLH   = 0x6000
WS_FLHID = 0x8000
WS_FLWT2 = 0xA000
WS_KV    = 0x10000
WS_ST    = 0x60000
WS_FLKV2 = 0xE0000
WS_STLL  = 0xE8000
LDS_KF   = 96 * 1024 - 16
LDS_ST   = 158 * 1024
LDS_FG   = 92 * 1024
WS_KVL   = 0x1400000
WS_FLL   = 0x1440000
WS_STL   = 0x1448000
WS_O     = 0x100000
WS_H     = 0x300000
WS_HID   = 0x500000
WS_WOF   = 0xC00000
WS_W1F   = 0xC80000
WS_W2F   = 0xE40000
WS_DBG   = 0x1000000
WS_PROF  = 0x1800000
WS_SIZE  = 0x2000000
WS_P     = 0x2000000
WS_SIZE_SK = 0x3000000
WS_FLH1  = 0x1450000
LDS_SY   = 147 * 1024

SRD_X, SRD_WQ, SRD_WK, SRD_WV = 8, 12, 16, 20
SRD_WO, SRD_W1, SRD_W2, SRD_B1 = 24, 28, 32, 36
SRD_B2, SRD_OUT, SRD_WS, SRD_T = 40, 44, 48, 52
def srd(b): return f"s[{b}:{b+3}]"
sW, sM, sC, sT0, sTag, sFast = "s56", "s57", "s58", "s59", "s60", "s61"
sFT, sTT, sKH, sXCC = "s62", "s63", "s90", "s91"
sID = "s2"
sA, sB, sD, sE_, sF, sG = "s92", "s93", "s94", "s95", "s96", "s97"
sCnt, sPh = "s98", "s99"
sW1B = "s65"
sWOB = "s66"
sPF = "s69"
NW1PRE = 26
W1H = [152 + 4 * k for k in range(26)] + [40, 44, 48, 52, 96, 100]
WOH = [8, 12, 16, 20, 60] + [108 + 4 * k for k in range(11)]
import os
NW2E = int(os.environ.get("NW2E", 7))
W2H0 = [8, 12, 16, 20, 24, 28, 32, 36, 56, 60, 132, 136, 140, 144]
W2H1 = W1H[:14]
sX64 = "s[4:5]"; sY64 = "s[6:7]"

LOG2E = 1.4426950408889634
def f32bits(x):
    import struct
    return struct.unpack("<I", struct.pack("<f", x))[0]
def vr(b, n): return f"v[{b}:{b+n-1}]"

class Gen:
    def __init__(self, stop=None, prof=False, opt=None, skip=()):
        self.skip = set(skip)
        self.cs4_pend = None
        self.a = Asm()
        self.stop = stop
        self.prof = prof
        self.opt = opt or {}
        self.nstamp = 0

    def stamp(self, name):
        if not self.prof: return
        if name in self.skip:
            self.skipped_last = True
            return
        self.skipped_last = False
        i = self.nstamp; self.nstamp += 1
        assert i < 14
        self.stamp_names = getattr(self, "stamp_names", []) + [name]
        a = self.a
        a(f"s_memtime s[4:5]")
        a("s_waitcnt lgkmcnt(0)")
        a("s_sub_u32 s4, s4, s100")
        a(f"v_writelane_b32 v0, s4, {i}")

    def dump_stamps(self):
        if not self.prof: return
        a = self.a
        a("s_memrealtime s[4:5]")
        a("s_waitcnt lgkmcnt(0)")
        a("s_sub_u32 s4, s4, s101")
        a("v_writelane_b32 v0, s4, 15")
        a("v_writelane_b32 v0, s101, 14")
        a(f"s_lshl_b32 {sA}, {sID}, 3")
        a(f"s_add_u32 {sA}, {sA}, {sW}")
        a(f"s_lshl_b32 {sA}, {sA}, 6")
        a(f"s_add_u32 {sA}, {sA}, {WS_PROF}")
        a("v_lshlrev_b32 v3, 2, v1")
        a("s_mov_b64 exec, 0xffff")
        a(f"buffer_store_dword v0, v3, {srd(SRD_WS)}, {sA} offen")
        a(f"s_lshl_b32 {sA}, {sID}, 3")
        a(f"s_add_u32 {sA}, {sA}, {sW}")
        a(f"s_cmp_lg_u32 {sA}, {self.opt.get('profw', 0)}")
        a("s_cbranch_scc1 L_nodbgst")
        a("s_load_dwordx2 s[52:53], s[0:1], 88")
        a("s_waitcnt lgkmcnt(0)")
        a("s_mov_b32 s54, 256")
        a("s_mov_b32 s55, 0x20000")
        a("buffer_store_dword v0, v3, s[52:55], 0 offen")
        a.label("L_nodbgst")
        a("s_mov_b64 exec, -1")
        a("s_waitcnt vmcnt(0)")

    def prologue(self):
        a = self.a
        a(f"s_cmp_ge_u32 {sID}, 256")
        a("s_cbranch_scc1 L_end")
        if self.prof:
            a("s_memtime s[100:101]")
            a("s_memrealtime s[6:7]")
        a("s_load_dwordx16 s[64:79], s[0:1], 0")
        a("s_load_dwordx8 s[80:87], s[0:1], 64")
        a("s_load_dwordx2 s[88:89], s[0:1], 96")
        a(f"s_and_b32 {sA}, {sID}, 7")
        a(f"s_lshr_b32 {sB}, {sID}, 6")
        a(f"s_lshl_b32 {sB}, {sB}, 3")
        a(f"s_add_u32 {sC}, {sA}, {sB}")
        a(f"s_lshr_b32 {sM}, {sID}, 3")
        a(f"s_and_b32 {sM}, {sM}, 7")
        if self.opt.get("xmap"):
            a(f"s_lshr_b32 {sC}, {sID}, 3")
            a(f"s_and_b32 {sM}, {sID}, 7")
        a(f"s_lshl_b32 {sT0}, {sC}, 6")
        a(f"s_getreg_b32 {sXCC}, hwreg(HW_REG_XCC_ID)")
        a(f"s_and_b32 {sXCC}, {sXCC}, 7")
        a("v_lshrrev_b32 v3, 6, v0")
        a("v_and_b32 v1, 63, v0")
        a(f"v_readfirstlane_b32 {sW}, v3")
        a("v_lshlrev_b32 v2, 4, v1")
        a(f"s_lshr_b32 {sKH}, {sW}, 2")
        a(f"s_lshr_b32 {sFT}, {sW}, 1")
        a(f"s_and_b32 {sFT}, {sFT}, 1")
        a(f"s_and_b32 {sTT}, {sW}, 1")
        a("s_waitcnt lgkmcnt(0)")
        if self.prof:
            a("v_mov_b32 v0, 0")
            a("s_mov_b32 s101, s6")
        self.stamp("args")
        def mk(b, lo, size):
            a(f"s_mov_b32 s{b}, s{lo}")
            a(f"s_mov_b32 s{b+1}, s{lo+1}")
            a(f"s_mov_b32 s{b+2}, 0x{size:x}")
            a(f"s_mov_b32 s{b+3}, 0x20000")
        mk(SRD_X, 64, 0x200000)
        mk(SRD_WS, 88, WS_SIZE_SK if self.opt.get('sk') else WS_SIZE)
        a(f"s_load_dword {sTag}, s[88:89], {WS_EPOCH}")
        if self.opt.get("cw"):
            a(f"s_lshr_b32 {sA}, {sID}, 3")
            a(f"s_lshl_b32 {sA}, {sA}, 3")
            a(f"s_add_u32 {sA}, {sA}, {sW}")
            a(f"s_lshl_b32 {sA}, {sA}, 7")
            a(f"s_min_u32 {sA}, {sA}, L_end-L_cwpc-4")
            a("s_getpc_b64 s[4:5]")
            a.label("L_cwpc")
            a(f"s_add_u32 s4, s4, {sA}")
            a("s_addc_u32 s5, s5, 0")
            a("s_load_dword s99, s[4:5], 0")
        mk(SRD_WK, 68, 0x4000)
        mk(SRD_WV, 70, 0x4000)
        mk(SRD_WQ, 66, 0x80000)
        self.mk = mk

    def rest_srds(self):
        mk = self.mk
        mk(SRD_WO, 72, 0x80000)
        mk(SRD_W1, 76, 0x1C0000)
        mk(SRD_B1, 78, 3584)
        mk(SRD_W2, 80, 0x1C0000)
        mk(SRD_B2, 82, 1024)
        mk(SRD_OUT, 84, 0x200000)

    def dma(self, voff, srdb, soff, m0, tag, extra=""):
        a = self.a
        a(f"s_mov_b32 m0, {m0}")
        a.vmem(f"buffer_load_dwordx4 {voff}, {srd(srdb)}, {soff} offen {extra} lds", tag)

    def p1(self):
        a = self.a
        X = self.opt
        ROW = 4
        vXa, vKVo, vWAo, vXt = "v16", "v18", "v19", "v17"
        LDS_WK = 64 * 1024
        LDS_WV = 80 * 1024
        LDS_WA = 96 * 1024
        sG1 = "s67"
        a(f"s_lshl_b32 {sA}, {sM}, 3")
        a(f"s_add_u32 {sA}, {sA}, {sT0}")
        a(f"s_add_u32 {sB}, {sA}, {sW}")
        a(f"s_lshl_b32 {sB}, {sB}, 10")
        if X.get("tk"):
            a(f"s_lshr_b32 {sD}, {sID}, 3")
            a(f"s_lshl_b32 {sD}, {sD}, 9")
            a("v_lshlrev_b32 v62, 7, v1")
            a("s_mov_b64 exec, 0xf")
            a(f"s_cmp_eq_u32 {sW}, 0")
            a("s_cbranch_scc0 L_tk1")
            a(f"buffer_load_dword v61, v62, {srd(SRD_WK)}, {sD} offen")
            a.label("L_tk1")
            a(f"s_cmp_eq_u32 {sW}, 1")
            a("s_cbranch_scc0 L_tk2")
            a(f"buffer_load_dword v61, v62, {srd(SRD_WV)}, {sD} offen")
            a.label("L_tk2")
            a("s_mov_b64 exec, -1")
        a(f"buffer_load_dwordx4 {vr(ROW,4)}, v2, {srd(SRD_X)}, {sB} offen")
        a("v_lshrrev_b32 v8, 3, v1")
        a("v_and_b32 v9, 7, v1")
        a("v_lshrrev_b32 v10, 1, v8")
        a("v_xor_b32 v10, v10, v9")
        a(f"s_and_b32 {sB}, {sM}, 1")
        a(f"s_lshl_b32 {sB}, {sB}, 2")
        a(f"v_xor_b32 v10, {sB}, v10")
        a("v_lshlrev_b32 v10, 4, v10")
        a(f"v_lshl_add_u32 {vXa}, v8, 10, v10")
        def xa_dma(gs, cs, voff):
            a(f"s_lshl_b32 {sD}, {gs}, 13")
            a(f"s_lshl_b32 {sE_}, {cs}, 7")
            a(f"s_add_u32 {sD}, {sD}, {sE_}")
            a(f"s_add_u32 {sD}, {sD}, s68")
            a(f"s_lshl_b32 {sE_}, {cs}, 13")
            a(f"s_lshl_b32 {sF}, {gs}, 10")
            a(f"s_add_u32 m0, {sE_}, {sF}")
            a(f"buffer_load_dwordx4 {voff}, {srd(SRD_X)}, {sD} offen lds")
        self.xa_dma = xa_dma
        a(f"s_lshl_b32 s68, {sT0}, 10")
        xa_dma(sM, sW, vXa)
        a("v_lshrrev_b32 v8, 1, v1")
        a("v_and_b32 v9, 0x13, v8")
        a("v_bfe_u32 v10, v8, 2, 1")
        a("v_lshl_or_b32 v9, v10, 3, v9")
        a("v_bfe_u32 v10, v8, 3, 1")
        a("v_lshl_or_b32 v9, v10, 2, v9")
        a("v_lshlrev_b32 v9, 5, v9")
        a("v_and_b32 v10, 1, v1")
        a(f"v_lshl_or_b32 {vKVo}, v10, 4, v9")
        a(f"s_lshl_b32 {sD}, {sW}, 11")
        for k in range(2):
            a(f"s_add_u32 m0, {sD}, {LDS_WK}")
            a(f"buffer_load_dwordx4 {vKVo}, {srd(SRD_WK)}, {sD} offen lds")
            a(f"s_add_u32 m0, {sD}, {LDS_WV}")
            a(f"buffer_load_dwordx4 {vKVo}, {srd(SRD_WV)}, {sD} offen lds")
            if k == 0: a(f"s_add_u32 {sD}, {sD}, 1024")
        TQ = X.get("tq", 0)
        def touch_q():
            a(f"s_lshr_b32 {sA}, {sID}, 6")
            a(f"s_lshl_b32 {sA}, {sA}, 3")
            a(f"s_add_u32 {sA}, {sA}, {sW}")
            a(f"s_lshl_b32 {sA}, {sA}, 14")
            a(f"s_lshl_b32 {sB}, {sM}, 7")
            a(f"s_add_u32 {sA}, {sA}, {sB}")
            a("v_lshlrev_b32 v62, 10, v1")
            a("s_mov_b64 exec, 0xffff")
            a(f"buffer_load_dword v63, v62, {srd(SRD_WQ)}, {sA} offen")
            a("s_mov_b64 exec, -1")
        if TQ == 1: touch_q()
        NF3 = X.get("nf", 1) == 3
        NTL = 1 if (NF3 and X.get("tl", 2) == 1) else 0
        if NF3 and X.get("tl", 2):
            a(f"s_lshl_b32 {sA}, {sC}, 3")
            a(f"s_add_u32 {sA}, {sA}, {sM}")
            a(f"s_lshl_b32 {sB}, {sA}, 10")
            a(f"s_lshl_b32 {sD}, {sW}, 7")
            a(f"s_add_u32 {sB}, {sB}, {sD}")
            a(f"s_add_u32 {sB}, {sB}, {WS_KVL}")
            a(f"s_lshl_b32 {sD}, {sA}, 7")
            a(f"s_add_u32 {sD}, {sD}, {WS_STL}")
            a(f"s_cmp_lt_u32 {sW}, 4")
            a(f"s_cselect_b32 {sB}, {sB}, {sD}")
            a(f"s_and_b32 {sD}, {sID}, 7")
            a(f"s_lshl_b32 {sD}, {sD}, 9")
            a(f"s_lshr_b32 {sE_}, {sID}, 6")
            a(f"s_lshl_b32 {sE_}, {sE_}, 3")
            a(f"s_add_u32 {sE_}, {sE_}, {sM}")
            a(f"s_lshl_b32 {sE_}, {sE_}, 4")
            a(f"s_add_u32 {sD}, {sD}, {sE_}")
            a(f"s_add_u32 {sD}, {sD}, {WS_FLL}")
            a(f"s_cmp_eq_u32 {sW}, 4")
            a(f"s_cselect_b32 {sB}, {sD}, {sB}")
            if NTL:
                a("v_mov_b32 v62, 0")
                a("s_mov_b64 exec, 1")
                a(f"buffer_load_dword v61, v62, {srd(SRD_WS)}, {sB} offen sc1")
                a("s_mov_b64 exec, -1")
            else:
                a(f"s_load_dword s75, s[88:89], {sB}")
        if X.get("kvt"):
            a(f"s_lshl_b32 {sA}, {sC}, 3")
            a(f"s_add_u32 {sA}, {sA}, {sM}")
            a(f"s_cmp_eq_u32 {sW}, 2")
            a("s_cbranch_scc0 L_kvt1")
            a(f"s_lshl_b32 {sB}, {sA}, 10")
            a(f"s_add_u32 {sB}, {sB}, {WS_KV}")
            a(f"buffer_load_dwordx4 v[24:27], v2, {srd(SRD_WS)}, {sB} offen sc1")
            a.label("L_kvt1")
            a(f"s_cmp_eq_u32 {sW}, 3")
            a("s_cbranch_scc0 L_kvt2")
            a(f"s_lshl_b32 {sB}, {sA}, 4")
            a(f"s_add_u32 {sB}, {sB}, {WS_FLKV}")
            a("v_mov_b32 v24, 0")
            a(f"buffer_load_dword v25, v24, {srd(SRD_WS)}, {sB} offen sc1")
            a.label("L_kvt2")
        a("v_lshrrev_b32 v8, 3, v1")
        a("v_and_b32 v9, 7, v1")
        a("v_bfe_u32 v10, v1, 4, 1")
        a("v_lshlrev_b32 v10, 2, v10")
        a("v_xor_b32 v9, v9, v10")
        a("v_lshlrev_b32 v9, 4, v9")
        a(f"v_lshl_add_u32 {vWAo}, v8, 10, v9")
        a(f"s_add_u32 {sG1}, {sM}, 1")
        a(f"s_and_b32 {sG1}, {sG1}, 7")
        NBULK = 20
        def bulk():
            a(f"s_sub_u32 {sA}, {sW}, 2")
            a(f"s_add_u32 {sB}, {sA}, 2")
            for i in range(9):
                a(f"s_lshr_b32 s4, {sB}, 3")
                a(f"s_add_u32 s4, s4, 1")
                a(f"s_and_b32 s5, s4, 1")
                a(f"s_lshl_b32 s5, s5, 6")
                a(f"v_xor_b32 {vXt}, s5, {vXa}")
                a(f"s_add_u32 s4, s4, {sM}")
                a(f"s_and_b32 s4, s4, 7")
                a(f"s_and_b32 s5, {sB}, 7")
                xa_dma("s4", "s5", vXt)
                if i < 8: a(f"s_add_u32 {sB}, {sB}, 6")
            if X.get("cs4"):
                a(f"s_cmp_eq_u32 {sKH}, 0")
                a("s_cbranch_scc1 L_blk_done")
                a(f"s_and_b32 {sA}, {sW}, 3")
                a(f"s_lshl_b32 {sD}, {sA}, 13")
                a(f"s_lshl_b32 {sE_}, {sM}, 7")
                a(f"s_add_u32 {sD}, {sD}, {sE_}")
                a(f"s_lshl_b32 {sE_}, {sA}, 10")
                a(f"s_add_u32 {sE_}, {sE_}, {LDS_WA}")
                a(f"v_add_u32 v217, {sE_}, v2")
                D = X.get("csd", 8)
                a.lg = []
                for i in range(16):
                    a(f"s_mov_b32 m0, {sE_}")
                    a(f"buffer_load_dwordx4 {vWAo}, {srd(SRD_WQ)}, {sD} offen lds")
                    if i < 15:
                        a(f"s_add_u32 {sD}, {sD}, {4*8192}")
                        a(f"s_add_u32 {sE_}, {sE_}, {4*1024}")
                    if i >= D: self.cs4_one(i - D, D)
                self.cs4_flush()
                a.label("L_blk_done")
                return
            a(f"s_lshl_b32 {sD}, {sA}, 13")
            a(f"s_lshl_b32 {sE_}, {sM}, 7")
            a(f"s_add_u32 {sD}, {sD}, {sE_}")
            a(f"s_lshl_b32 {sE_}, {sA}, 10")
            a(f"s_add_u32 {sE_}, {sE_}, {LDS_WA}")
            for i in range(11):
                if i == 10:
                    a(f"s_cmp_ge_u32 {sA}, 4")
                    a("s_cbranch_scc1 L_blk_done")
                a(f"s_mov_b32 m0, {sE_}")
                a(f"buffer_load_dwordx4 {vWAo}, {srd(SRD_WQ)}, {sD} offen lds")
                if i < 10:
                    a(f"s_add_u32 {sD}, {sD}, {6*8192}")
                    a(f"s_add_u32 {sE_}, {sE_}, {6*1024}")
            a.label("L_blk_done")
        early = X.get("bulk", 0) == 1
        if early:
            a("s_barrier")
            a(f"s_cmp_lt_u32 {sW}, 2")
            a("s_cbranch_scc1 L_nobulk0")
            bulk()
            a.label("L_nobulk0")
        self.rest_srds()
        XF, WF = (128, 192) if NF3 else (64, 128)
        if NF3: self.early_setup()
        a(f"s_cmp_ge_u32 {sW}, 2")
        a("s_cbranch_scc1 L_no_ones")
        for i in range(64):
            a(f"v_mov_b32 v{XF+i}, 0x3f803f80" if i == 0 else f"v_mov_b32 v{XF+i}, v{XF}")
        a.label("L_no_ones")
        if early:
            a(f"s_cmp_lt_u32 {sW}, 2")
            a("s_cbranch_scc1 L_rw0")
            a("s_waitcnt vmcnt(24)")
            a("s_branch L_rw1")
            a.label("L_rw0")
            a("s_waitcnt vmcnt(5)")
            a.label("L_rw1")
        else:
            a(f"s_waitcnt vmcnt({5 + (1 if TQ == 1 else 0) + NTL})")
            self.stamp("row")
            if TQ == 2: touch_q()
        a("s_mov_b32 s3, 0x3f803f80")
        a(f"v_dot2_f32_bf16 v8, v{ROW}, s3, 0")
        a(f"v_dot2_f32_bf16 v9, v{ROW}, v{ROW}, 0")
        for i in range(1, 4):
            a(f"v_dot2_f32_bf16 v8, v{ROW+i}, s3, v8")
            a(f"v_dot2_f32_bf16 v9, v{ROW+i}, v{ROW+i}, v9")
        self.wave_reduce(["v8", "v9"], "add", ["v10", "v11"])
        a(f"v_mul_f32 v8, 0x{f32bits(1/512):x}, v8")
        a(f"v_mul_f32 v9, 0x{f32bits(1/512):x}, v9")
        a("v_fma_f32 v9, -v8, v8, v9")
        a("v_max_f32 v9, 0, v9")
        a(f"v_add_f32 v9, 0x{f32bits(1e-5):x}, v9")
        a("v_rsq_f32 v9, v9")
        a(f"s_lshl_b32 {sA}, {sW}, 3")
        a(f"s_lshl_b32 {sB}, {sG1}, 10")
        a(f"s_add_u32 {sA}, {sA}, {sB}")
        a(f"v_lshlrev_b32 v10, 13, v1")
        a(f"v_add_u32 v10, {sA}, v10")
        a("s_mov_b64 exec, 3")
        a("ds_write_b64 v10, v[8:9]")
        a("s_mov_b64 exec, -1")
        if early:
            a(f"s_cmp_lt_u32 {sW}, 2")
            a("s_cbranch_scc1 L_b1a")
            a("s_waitcnt vmcnt(19) lgkmcnt(0)")
            a("s_branch L_b1b")
            a.label("L_b1a")
            a("s_waitcnt vmcnt(0) lgkmcnt(0)")
            a.label("L_b1b")
        else:
            a(f"s_waitcnt vmcnt({(1 if TQ == 2 else 0) + (0 if X.get('tlw', 1) else NTL)}) lgkmcnt(0)")
        a("s_barrier")
        self.stamp("b1")
        a(f"s_cmp_lt_u32 {sW}, 2")
        a("s_cbranch_scc1 L_kv_go")
        if not early: bulk()
        a("s_branch L_kv_done")
        a.label("L_kv_go")
        a("v_and_b32 v8, 7, v1")
        a(f"s_lshl_b32 {sA}, {sM}, 3")
        a(f"v_add_u32 v8, {sA}, v8")
        a("v_bfe_u32 v9, v8, 1, 3")
        a("v_lshrrev_b32 v10, 4, v1")
        a("v_xor_b32 v9, v9, v10")
        a("v_lshlrev_b32 v9, 4, v9")
        a("v_lshl_add_u32 v20, v8, 7, v9")
        a("v_xor_b32 v21, 64, v20")
        a("v_bfe_u32 v8, v1, 4, 1")
        a("v_bfe_u32 v9, v1, 2, 2")
        a("v_lshl_add_u32 v8, v8, 2, v9")
        a("v_lshlrev_b32 v8, 5, v8")
        a("v_lshrrev_b32 v9, 5, v1")
        a("v_lshl_add_u32 v8, v9, 9, v8")
        a("v_and_b32 v9, 3, v1")
        a("v_lshl_add_u32 v8, v9, 3, v8")
        a(f"s_lshl_b32 {sA}, {sW}, 14")
        a(f"s_add_u32 {sA}, {sA}, {LDS_WK}")
        a(f"v_add_u32 v22, {sA}, v8")
        a("s_mov_b32 exec_lo, 0x00ff00ff")
        a("s_mov_b32 exec_hi, 0x00ff00ff")
        for s in range(16):
            a.ds(f"ds_read_b128 {vr(XF+4*s,4)}, {'v20' if s%2==0 else 'v21'} offset:{(s>>1)*8192}", f"x{s}")
        a("s_mov_b64 exec, -1")
        D = 24
        a(f"s_cmp_eq_u32 {sW}, 1")
        a("s_cbranch_scc1 L_vwave")
        saved_lg = list(a.lg)
        for wave in ("K", "V"):
            a.lg = list(saved_lg)
            if wave == "V": a.label("L_vwave")
            def wread(s):
                a.ds(f"ds_read_b64_tr_b16 {vr(WF+4*s,2)}, v22 offset:{s*1024}", f"w{s}")
                a.ds(f"ds_read_b64_tr_b16 {vr(WF+4*s+2,2)}, v22 offset:{s*1024+256}", f"w{s}")
            for s in range(4): wread(s)
            for s in range(16):
                a.wait_lg(f"w{s}")
                srcC = "0" if s == 0 else vr(D, 4)
                if wave == "K":
                    a(f"v_mfma_f32_16x16x32_bf16 {vr(D,4)}, {vr(WF+4*s,4)}, {vr(XF+4*s,4)}, {srcC}")
                else:
                    a(f"v_mfma_f32_16x16x32_bf16 {vr(D,4)}, {vr(XF+4*s,4)}, {vr(WF+4*s,4)}, {srcC}")
                if s + 4 < 16: wread(s + 4)
            a(f"s_lshl_b32 {sA}, {sC}, 3")
            a(f"s_add_u32 {sA}, {sA}, {sM}")
            a(f"s_lshl_b32 {sB}, {sA}, 10")
            a(f"s_add_u32 {sB}, {sB}, {WS_KV}")
            if wave == "K":
                a("v_and_b32 v8, 7, v1")
                a("v_lshlrev_b32 v8, 3, v8")
                a(f"s_lshl_b32 s4, {sG1}, 10")
                a(f"v_add_u32 v8, s4, v8")
                a.ds("ds_read_b64 v[10:11], v8", "st")
                for r in range(4):
                    a(f"v_mov_b32_dpp v{28+r}, v{D+r} row_ror:8 row_mask:0xf bank_mask:0xf")
                a.wait_lg("st")
                for r in range(4):
                    a(f"v_fma_f32 v{D+r}, -v10, v{28+r}, v{D+r}")
                for r in range(4):
                    a(f"v_mul_f32 v{D+r}, v11, v{D+r}")
                a(f"v_cvt_pk_bf16_f32 v32, v{D}, v{D+1}")
                a(f"v_cvt_pk_bf16_f32 v33, v{D+2}, v{D+3}")
                a("v_mov_b32 v34, v32")
                a("v_mov_b32 v35, v33")
                a("v_permlane32_swap_b32 v32, v34")
                a("v_permlane32_swap_b32 v33, v35")
                a("v_bfe_u32 v8, v1, 4, 1")
                a("v_and_b32 v9, 7, v1")
                a("v_lshlrev_b32 v9, 4, v9")
                a("v_lshl_add_u32 v8, v8, 7, v9")
                a("s_mov_b32 exec_lo, 0x00ff00ff")
                a("s_mov_b32 exec_hi, 0")
                if NF3:
                    a(f"s_add_u32 s76, {sB}, {WS_KVL - WS_KV}")
                    a(f"buffer_store_dwordx4 v[32:35], v8, {srd(SRD_WS)}, s76 offen" + (" sc1" if X.get("lsc1") else ""))
                a(f"buffer_store_dwordx4 v[32:35], v8, {srd(SRD_WS)}, {sB} offen sc1")
                a("s_mov_b64 exec, -1")
                a("v_dot2_f32_bf16 v12, v32, v32, 0")
                for i in (33, 34, 35):
                    a(f"v_dot2_f32_bf16 v12, v{i}, v{i}, v12")
                a("v_mov_b32 v13, v12")
                a("v_permlane16_swap_b32 v12, v13")
                a("v_add_f32 v12, v12, v13")
                a("v_and_b32 v13, 8, v1")
                a("v_cmp_eq_u32 vcc, 0, v13")
                a("v_cndmask_b32 v12, 0, v12, vcc")
                for n in (8, 4, 2, 1):
                    a(f"v_max_f32_dpp v12, v12, v12 row_ror:{n} row_mask:0xf bank_mask:0xf")
                a(f"v_readlane_b32 {sD}, v12, 0")
                a(f"s_add_u32 {sD}, {sD}, 8")
                a(f"s_and_b32 {sD}, {sD}, 0xfffffff8")
                a(f"s_or_b32 {sD}, {sD}, {sXCC}")
                a(f"s_mov_b32 s3, {sD}")
                a(f"s_mov_b32 {sG}, {sA}")
                a("s_branch L_kv_fin")
            else:
                a("v_bfe_u32 v8, v1, 4, 1")
                a("v_lshlrev_b32 v8, 5, v8")
                a(f"s_lshl_b32 s4, {sG1}, 10")
                a(f"s_add_u32 s4, s4, 8192")
                a(f"v_add_u32 v8, s4, v8")
                a.ds("ds_read_b128 v[12:15], v8", "st")
                a.ds("ds_read_b128 v[36:39], v8 offset:16", "st")
                a("v_and_b32 v9, 7, v1")
                a("v_lshlrev_b32 v9, 3, v9")
                a(f"v_add_u32 v40, s4, v9")
                a.ds("ds_read_b64 v[42:43], v40", "st")
                a(f"v_mov_b32 v28, v{D}")
                a(f"v_mov_b32 v29, v{D}")
                a("v_permlane32_swap_b32 v28, v29")
                a.wait_lg("st")
                st = [(12, 13), (14, 15), (36, 37), (38, 39)]
                for r in range(4):
                    a(f"v_fma_f32 v{D+r}, -v{st[r][0]}, v29, v{D+r}")
                for r in range(4):
                    a(f"v_mul_f32 v{D+r}, v{st[r][1]}, v{D+r}")
                a(f"v_cvt_pk_bf16_f32 v32, v{D}, v{D+1}")
                a(f"v_cvt_pk_bf16_f32 v33, v{D+2}, v{D+3}")
                a("v_mov_b32 v34, v32")
                a("v_mov_b32 v35, v33")
                a("v_permlane16_swap_b32 v32, v34")
                a("v_permlane16_swap_b32 v33, v35")
                a("v_add_u32 v8, 256, v2")
                if NF3:
                    a(f"s_add_u32 s4, {sTag}, 1")
                    a("v_mov_b32 v44, v42")
                    a("v_mov_b32 v45, s4")
                    a("v_mov_b32 v46, v43")
                    a("v_mov_b32 v47, s4")
                    a(f"s_lshl_b32 s4, {sA}, 7")
                    a(f"s_add_u32 s5, s4, {WS_STL}")
                    a(f"s_add_u32 s4, s4, {WS_STLL}")
                    a(f"s_add_u32 s76, {sB}, {WS_KVL - WS_KV}")
                    a("v_mov_b32 v41, 0")
                    a("v_lshlrev_b32 v40, 2, v1")
                    a(f"v_add_u32 v40, {LDS_FG}, v40")
                    a("s_mov_b64 exec, 0xffff")
                    a(f"buffer_store_dwordx4 v[32:35], v8, {srd(SRD_WS)}, s76 offen" + (" sc1" if X.get("lsc1") else ""))
                    a("s_mov_b64 exec, 0xff")
                    a(f"buffer_store_dwordx4 v[44:47], v2, {srd(SRD_WS)}, s5 offen")
                    a("s_mov_b64 exec, 0xffff")
                    a(f"buffer_store_dwordx4 v[32:35], v8, {srd(SRD_WS)}, {sB} offen sc1")
                    a("s_mov_b64 exec, 0xff")
                    a(f"buffer_store_dwordx4 v[44:47], v2, {srd(SRD_WS)}, s4 offen sc1")
                    a("s_mov_b32 exec_lo, -1")
                    a("ds_write_b32 v40, v41")
                else:
                    a("s_mov_b64 exec, 0xffff")
                    a(f"buffer_store_dwordx4 v[32:35], v8, {srd(SRD_WS)}, {sB} offen sc1")
                if NF3: pass
                elif X.get("nf", 1):
                    a(f"s_add_u32 s4, {sTag}, 1")
                    a("v_mov_b32 v44, v42")
                    a("v_mov_b32 v45, s4")
                    a("v_mov_b32 v46, v43")
                    a("v_mov_b32 v47, s4")
                    a(f"s_lshl_b32 s4, {sA}, 7")
                    a(f"s_add_u32 s4, s4, {WS_STLL}")
                    a("v_mov_b32 v41, 0")
                    a(f"v_mov_b32 v40, {LDS_KF}")
                    a("s_mov_b64 exec, 0xff")
                    a(f"buffer_store_dwordx4 v[44:47], v2, {srd(SRD_WS)}, s4 offen sc1")
                    a("s_mov_b64 exec, 1")
                    a("ds_write_b32 v40, v41")
                else:
                    a("s_mov_b64 exec, 0xff")
                    a("v_add_u32 v9, 512, v9")
                    a(f"buffer_store_dwordx2 v[42:43], v9, {srd(SRD_WS)}, {sB} offen sc1")
                a("s_mov_b64 exec, -1")
                a(f"s_mov_b32 {sG}, {sA}")
        a.lg = []
        a.label("L_kv_fin")
        self.stamp("kvst")
        a(f"v_xor_b32 {vXt}, 64, {vXa}")
        xa_dma(sG1, sW, vXt)
        self.q_addr(LDS_WA)
        if NF3:
            a(f"s_cmp_eq_u32 {sW}, 1")
            a("s_cbranch_scc1 L_lfv")
            a("s_waitcnt vmcnt(2) lgkmcnt(0)")
            a("s_branch L_lfw")
            a.label("L_lfv")
            a("s_waitcnt vmcnt(3) lgkmcnt(0)")
            a.label("L_lfw")
            a(f"s_and_b32 {sA}, {sID}, 7")
            a(f"s_lshl_b32 {sA}, {sA}, 9")
            a(f"s_lshr_b32 {sB}, {sID}, 6")
            a(f"s_lshl_b32 {sB}, {sB}, 3")
            a(f"s_add_u32 {sB}, {sB}, {sM}")
            a(f"s_lshl_b32 {sB}, {sB}, 4")
            a(f"s_add_u32 {sA}, {sA}, {sB}")
            a(f"s_add_u32 {sA}, {sA}, {WS_FLL}")
            a(f"s_add_u32 {sD}, {sTag}, 1")
            a(f"v_mov_b32 v8, {sD}")
            a(f"v_mov_b32 v9, {sXCC}")
            a("v_mov_b32 v10, 0")
            a("s_mov_b64 exec, 1")
            a(f"s_cmp_eq_u32 {sW}, 1")
            a("s_cbranch_scc1 L_lflagv")
            a(f"buffer_store_dwordx2 v[8:9], v10, {srd(SRD_WS)}, {sA} offen")
            a("s_branch L_lflagd")
            a.label("L_lflagv")
            a(f"buffer_store_dword v8, v10, {srd(SRD_WS)}, {sA} offen offset:8")
            a.label("L_lflagd")
            a("s_mov_b64 exec, -1")
            self.stamp("kvlf")
            a("s_waitcnt vmcnt(2)")
            self.kv_flag()
            self.stamp("kvfl")
            a("s_waitcnt vmcnt(2)")
        else:
            a("s_waitcnt vmcnt(1) lgkmcnt(0)")
            self.kv_flag()
            self.stamp("kvfl")
            a("s_waitcnt vmcnt(1)")
        a("s_branch L_b2")
        a.label("L_kv_done")
        if NF3:
            a(f"s_cmp_eq_u32 {sKH}, 0")
            a("s_cbranch_scc0 L_noqa")
        self.q_addr(LDS_WA)
        if NF3: a.label("L_noqa")
        if X.get("epoll", 0):
            a(f"s_cmp_eq_u32 {sKH}, 0")
            a("s_cbranch_scc1 L_noep")
            if X.get("epsl"): a(f"s_sleep {X['epsl']}")
            self.kv_pload()
            a.label("L_noep")
        if NF3:
            a(f"s_cmp_eq_u32 {sKH}, 0")
            a("s_cbranch_scc1 L_noep3")
            if X.get("lsl"): a(f"s_sleep {X['lsl']}")
            self.l_pload()
            if X.get("cs4"):
                D = X.get("csd", 8)
                a.lg = []
                for i in range(16 - D, X.get("cpre", 16)): self.cs4_one(i, 15 - i + 2)
                self.cs4_flush()
            a.label("L_noep3")
        elif X.get("nf", 1) == 2:
            a(f"s_cmp_eq_u32 {sW}, 7")
            a("s_cbranch_scc0 L_noep7")
            if X.get("ep7", 1):
                self.kv_pload(64)
                a("s_waitcnt vmcnt(5)")
                a("s_branch L_b2")
            a.label("L_noep7")
        elif X.get("nf", 1):
            a(f"s_add_u32 s3, {sTag}, 1")
            if X.get("ep7", 1):
                a(f"s_cmp_eq_u32 {sW}, 7")
                a("s_cbranch_scc0 L_noep7")
                if X.get("epsl"): a(f"s_sleep {X['epsl']}")
                self.kv_pload()
                a("s_waitcnt vmcnt(0)")
                self.kv_check("L_ep7ok")
                a("s_branch L_noep7")
                a.label("L_ep7ok")
                self.kv_setflag()
                a("s_waitcnt lgkmcnt(0)")
                a.label("L_noep7")
        a("s_waitcnt vmcnt(0)")
        a.label("L_b2")
        a("s_barrier")
        self.stamp("b2")
        a(f"s_add_u32 s3, {sTag}, 1")
        a.vm = []
        AF, BF, ACC, CS = 64, 128, 32, 48
        vA = "v20"
        vB = ["v22", "v23", "v24", "v25"]
        a(f"s_cmp_eq_u32 {sKH}, 0")
        a("s_cbranch_scc0 L_hwave")
        a.lg = []
        NB = 5
        def qread(p):
            c, q = p >> 2, p & 3
            sl = p % NB
            off = c * 8192 + q * 2048
            a.ds(f"ds_read_b64_tr_b16 {vr(AF+4*sl,2)}, {vA} offset:{off}", f"q{p}")
            a.ds(f"ds_read_b64_tr_b16 {vr(AF+4*sl+2,2)}, {vA} offset:{off+512}", f"q{p}")
            a.ds(f"ds_read_b128 {vr(BF+4*sl,4)}, {vB[q]} offset:{c*8192}", f"q{p}")
        PRE = 4
        for p in range(PRE): qread(p)
        for p in range(32):
            sl = p % NB
            a.wait_lg(f"q{p}")
            srcC = "0" if p == 0 else vr(ACC, 16)
            a(f"v_mfma_f32_32x32x16_bf16 {vr(ACC,16)}, {vr(AF+4*sl,4)}, {vr(BF+4*sl,4)}, {srcC}")
            nx = p + PRE
            if nx < 32: qread(nx)
        self.stamp("q1")
        a("s_branch L_b3a")
        a.label("L_hwave")
        self.h_front()
        a.label("L_b3a")
        if X.get("nf", 1) != 3:
            a("s_barrier")
        self.stamp("q2")

    def q_addr(self, LDS_WA):
        a = self.a
        a("v_bfe_u32 v8, v1, 2, 2")
        a("v_lshrrev_b32 v9, 5, v1")
        a("v_lshl_add_u32 v9, v9, 3, v8")
        a("v_lshlrev_b32 v9, 7, v9")
        a("v_bfe_u32 v10, v1, 4, 1")
        a("v_lshlrev_b32 v10, 5, v10")
        a("v_and_b32 v11, 3, v1")
        a("v_lshl_add_u32 v10, v11, 3, v10")
        a(f"s_lshl_b32 {sA}, {sFT}, 6")
        a(f"v_add_u32 v10, {sA}, v10")
        a("v_bfe_u32 v11, v1, 3, 1")
        a("v_lshlrev_b32 v11, 6, v11")
        a("v_xor_b32 v10, v10, v11")
        a("v_add_u32 v9, v9, v10")
        a(f"s_and_b32 {sA}, {sKH}, {sTT}")
        a(f"s_lshl_b32 {sA}, {sA}, 15")
        a(f"s_add_u32 {sA}, {sA}, {LDS_WA}")
        a(f"v_add_u32 v20, {sA}, v9")
        a("v_and_b32 v8, 31, v1")
        a("v_bfe_u32 v9, v1, 1, 3")
        a("v_lshrrev_b32 v10, 5, v1")
        a("v_xor_b32 v9, v9, v10")
        a("v_lshlrev_b32 v9, 4, v9")
        a("v_lshl_add_u32 v8, v8, 7, v9")
        a(f"s_lshl_b32 {sB}, {sTT}, 12")
        a(f"v_add_u32 v22, {sB}, v8")
        a("v_xor_b32 v23, 32, v22")
        a("v_xor_b32 v24, 64, v22")
        a("v_xor_b32 v25, 96, v22")
        if self.opt.get("nf", 1) == 3: return
        self.q_addr2()

    def q_addr2(self):
        a = self.a
        self.kv_addr()
        if self.opt.get("nf", 1) == 3:
            self.l_addr()
        if self.opt.get("nf", 1):
            if self.opt.get("norep"):
                a(f"s_mov_b32 s66, {WS_FLKV2}")
            else:
                a(f"s_and_b32 s66, {sID}, 7")
                a("s_lshl_b32 s66, s66, 12")
                a(f"s_add_u32 s66, s66, {WS_FLKV2}")
        else:
            a(f"s_mov_b32 s66, {WS_FLKV}")

    def kv_pload(self, base=64, stats=True):
        for q in range(4):
            self.a(f"buffer_load_dwordx4 {vr(base+4*q,4)}, v2, {srd(SRD_WS)}, s66 offen offset:{1024*q} sc1")
        if self.opt.get("nf", 1) and stats:
            self.a(f"buffer_load_dwordx4 {vr(base+16,4)}, v2, {srd(SRD_WS)}, {'s86' if self.opt.get('nf', 1) == 3 else 's65'} offen sc1")

    def kv_check(self, lab_ok, base=64, stats=True):
        a = self.a
        t0, t1 = "v84", "v85"
        a(f"v_xor_b32 {t0}, s3, v{base}")
        a(f"v_xor_b32 {t1}, s3, v{base+2}")
        a(f"v_or_b32 {t0}, {t0}, {t1}")
        for q in range(1, 4):
            a(f"v_xor_b32 {t1}, s3, v{base+4*q}")
            a(f"v_or_b32 {t0}, {t0}, {t1}")
            a(f"v_xor_b32 {t1}, s3, v{base+2+4*q}")
            a(f"v_or_b32 {t0}, {t0}, {t1}")
        if stats:
            a(f"v_xor_b32 {t1}, s3, v{base+17}")
            a(f"v_or_b32 {t0}, {t0}, {t1}")
            a(f"v_xor_b32 {t1}, s3, v{base+19}")
            a(f"v_or_b32 {t0}, {t0}, {t1}")
        a(f"v_cmp_ne_u32 vcc, 0, {t0}")
        a(f"s_cbranch_vccz {lab_ok}")

    def l_addr(self):
        a = self.a
        a(f"s_and_b32 s82, {sID}, 7")
        a("s_lshl_b32 s77, s82, 9")
        a(f"s_add_u32 s77, s77, {WS_FLL}")
        a(f"s_lshl_b32 s78, {sC}, 10")
        a(f"s_add_u32 s78, s78, {WS_STL}")
        a(f"s_lshr_b32 s79, {sID}, 6")
        a(f"s_xor_b32 s79, s79, {sFT}")
        a("s_lshl_b32 s79, s79, 16")
        a(f"s_lshl_b32 s80, {sTT}, 12")
        a(f"s_and_b32 s81, {sW}, 3")
        a("s_lshl_b32 s81, s81, 11")
        a("v_and_b32 v216, 31, v1")
        a("v_lshlrev_b32 v216, 4, v216")
        a(f"s_lshl_b32 s86, {sC}, 10")
        a(f"s_add_u32 s86, s86, {WS_STLL}")

    def cs4_one(self, i, nyoung):
        a = self.a
        if i == 0:
            a("s_mov_b32 s74, 0x00003f80")
            a("s_mov_b32 s75, 0x3f800000")
            self.cs4_pend = None
        if nyoung is not None: a(f"s_waitcnt vmcnt({nyoung})")
        a.ds(f"ds_read_b128 {vr(128 + 4 * (i % 3), 4)}, v217 offset:{i * 4096}", f"cb{i}")
        self.cs4_flush()
        self.cs4_pend = i
    def cs4_flush(self):
        a = self.a
        i = self.cs4_pend
        if i is None: return
        a.wait_lg(f"cb{i}")
        for r in range(4):
            x = 128 + 4 * (i % 3) + r
            a(f"v_dot2_f32_bf16 v{48 + 2 * r}, v{x}, s74, {'0' if i == 0 else f'v{48 + 2 * r}'}")
            a(f"v_dot2_f32_bf16 v{49 + 2 * r}, v{x}, s75, {'0' if i == 0 else f'v{49 + 2 * r}'}")
        self.cs4_pend = None
    def cs4_steps(self, lo, hi, nyoung):
        for i in range(lo, hi): self.cs4_one(i, None)
        self.cs4_flush()

    def cs4_reduce(self, mid=None):
        a = self.a
        R = list(range(48, 56)); T = list(range(136, 144))
        for r in R: a(f"v_add_f32_dpp v{r}, v{r}, v{r} row_ror:8 row_mask:0xf bank_mask:0xf")
        for r, t in zip(R, T): a(f"v_mov_b32 v{t}, v{r}")
        for r, t in zip(R, T): a(f"v_permlane32_swap_b32 v{r}, v{t}")
        for r, t in zip(R, T): a(f"v_add_f32 v{r}, v{r}, v{t}")
        if mid: mid()
        for r, t in zip(R, T): a(f"v_mov_b32 v{t}, v{r}")
        for r, t in zip(R, T): a(f"v_permlane16_swap_b32 v{r}, v{t}")
        for r, t in zip(R, T): a(f"v_add_f32_dpp v{r}, v{t}, v{r} row_ror:4 row_mask:0xf bank_mask:0xf")

    def early_setup(self):
        a = self.a
        VF, IDX = 88, 56
        a(f"v_mov_b32 v{VF}, 0x3f803f80")
        for i in range(1, 16):
            a(f"v_mov_b32 v{VF+i}, v{VF}")
        a(f"v_mov_b32 v{IDX}, 0xdddddddd")
        a("v_mov_b32 v104, v2")
        a("v_add_u32 v106, 0x10000, v2")
        a("v_and_b32 v120, 15, v1")
        a("v_lshlrev_b32 v120, 4, v120")
        a("v_lshrrev_b32 v121, 5, v1")
        a("v_lshl_or_b32 v120, v121, 8, v120")
        a("v_add_u32 v105, 1024, v120")
        a("v_add_u32 v107, 0x10000, v105")
        self.wt_addr("v108", "v109", T=(120, 121, 122))
        self.wt_poll_addr()
        a("s_mov_b32 s6, 0x0000ffff")
        a("s_mov_b32 s7, 0x0000ffff")
        self.wt_issue(phase="pre")
        self.q_addr2()

    def fg_set(self, off, tmp0, tmp1, perwave=False):
        a = self.a
        if perwave:
            a(f"s_and_b32 {sA}, {sW}, 3")
            a(f"s_lshl_b32 {sA}, {sA}, 2")
            a(f"s_add_u32 {sA}, {sA}, {LDS_FG + off}")
            a(f"v_mov_b32 {tmp1}, {sA}")
        else:
            a(f"v_mov_b32 {tmp1}, {LDS_FG + off}")
        a(f"v_mov_b32 {tmp0}, 1")
        a("s_mov_b64 exec, 1")
        a(f"ds_write_b32 {tmp1}, {tmp0}")
        a("s_mov_b64 exec, -1")

    def rem_dma(self, n, yk=True):
        a = self.a
        k = n >> 1
        if yk:
            a(f"s_add_u32 s4, {sM}, {k}")
            a("s_cmp_ge_u32 s4, 7")
            a("s_cselect_b32 s5, 7, 0")
            a("s_sub_u32 s4, s4, s5")
            a("s_add_u32 s4, s4, 1")
            a("s_xor_b32 s4, s4, s82")
            a("s_lshl_b32 s4, s4, 13")
            a("s_add_u32 s85, s4, s80")
        a(f"s_xor_b32 s5, s79, {(2 * (n & 1)) << 16}")
        a("s_add_u32 s5, s5, s85")
        if n == 9:
            a(f"s_add_u32 {sB}, s81, {44 * 2048}")
            a(f"s_cmp_eq_u32 {sW}, 6")
            a(f"s_cselect_b32 {sB}, {64 * 2048}, {sB}")
            self.kv_dma("s5", 0, base=sB)
        else:
            p0 = 4 * n if n < 8 else (40 if n == 8 else 4 * n + 8)
            self.kv_dma("s5", p0 * 2048)

    def qd_check(self):
        a = self.a
        lsp, lok = a.newlabel("L_qsp"), a.newlabel("L_qok")
        a(f"s_mov_b32 {sCnt}, 2000000")
        a.label(lsp)
        a("ds_read_b128 v[224:227], v61 offset:48")
        a("ds_read_b128 v[228:231], v61 offset:64")
        a("s_waitcnt lgkmcnt(0)")
        for r in range(225, 232): a(f"v_and_b32 v224, v224, v{r}")
        a("v_readfirstlane_b32 s4, v224")
        a("s_cmp_lg_u32 s4, 0")
        a(f"s_cbranch_scc1 {lok}")
        a(f"s_sub_u32 {sCnt}, {sCnt}, 1")
        a(f"s_cmp_eq_u32 {sCnt}, 0")
        a(f"s_cbranch_scc0 {lsp}")
        a.label(lok)

    def gok_block(self):
        a = self.a; X = self.opt
        PA, PB, PC = 160, 180, 196
        a(f"s_cmp_eq_u32 {sW}, 7")
        a("s_cbranch_scc0 L_rspin")
        a("s_cmp_eq_u32 s83, 0")
        a("s_cbranch_scc0 L_gok")
        a("s_waitcnt vmcnt(10)")
        self.kv_check("L_gokA", PA, stats=False)
        a("s_waitcnt vmcnt(6)")
        self.kv_check("L_gokB", PB, stats=False)
        a("s_waitcnt vmcnt(2)")
        self.kv_check("L_gokC", PC, stats=False)
        a(f"s_mov_b32 {sCnt}, 200000")
        a.label("L_gloop")
        self.kv_pload(PA, stats=False)
        a("s_waitcnt vmcnt(0)")
        self.kv_check("L_gokA", PA, stats=False)
        a(f"s_sub_u32 {sCnt}, {sCnt}, 1")
        a(f"s_cmp_eq_u32 {sCnt}, 0")
        a("s_cbranch_scc0 L_gloop")
        a.label("L_gokA")
        self.fg_set(4, "v224", "v225")
        for q in range(4): a(f"v_mov_b32 v{220+q}, v{PA+1+4*q}")
        a("s_branch L_rgo")
        a.label("L_gokB")
        self.fg_set(4, "v224", "v225")
        for q in range(4): a(f"v_mov_b32 v{220+q}, v{PB+1+4*q}")
        a("s_branch L_rgo")
        a.label("L_gokC")
        self.fg_set(4, "v224", "v225")
        for q in range(4): a(f"v_mov_b32 v{220+q}, v{PC+1+4*q}")
        a("s_branch L_rgo")
        a.label("L_gok")
        self.fg_set(4, "v224", "v225")
        a("s_branch L_rgo")
        a.label("L_rspin")
        a(f"s_mov_b32 {sCnt}, 2000000")
        a.label("L_rspin1")
        a("ds_read_b32 v224, v61 offset:4")
        a("s_waitcnt lgkmcnt(0)")
        a("v_readfirstlane_b32 s4, v224")
        a("s_cmp_lg_u32 s4, 0")
        a("s_cbranch_scc1 L_rgo")
        a(f"s_sub_u32 {sCnt}, {sCnt}, 1")
        a(f"s_cmp_eq_u32 {sCnt}, 0")
        a("s_cbranch_scc0 L_rspin1")
        a.label("L_rgo")
        self.stamp("gok")

    def l_pload(self):
        a = self.a
        a(f"buffer_load_dwordx4 v[208:211], v216, {srd(SRD_WS)}, s77 offen sc1")
        a(f"buffer_load_dwordx4 v[212:215], v2, {srd(SRD_WS)}, s78 offen sc1")

    def l_check(self, lab_ok):
        a = self.a
        a("v_xor_b32 v84, s3, v208")
        a("v_xor_b32 v85, s3, v210")
        a("v_or_b32 v84, v84, v85")
        a(f"v_xor_b32 v85, {sXCC}, v209")
        a("v_or_b32 v84, v84, v85")
        a("v_xor_b32 v85, s3, v213")
        a("v_or_b32 v84, v84, v85")
        a("v_xor_b32 v85, s3, v215")
        a("v_or_b32 v84, v84, v85")
        a("v_cmp_ne_u32 vcc, 0, v84")
        a(f"s_cbranch_vccz {lab_ok}")

    def kv_dma(self, src, lds_imm, base="s81"):
        a = self.a
        a(f"s_add_u32 m0, {base}, {lds_imm}")
        a(f"buffer_load_dwordx4 v59, {srd(SRD_WS)}, {src} offen sc1 lds")
        a(f"s_add_u32 m0, {base}, {lds_imm + 1024}")
        a(f"buffer_load_dwordx4 v60, {srd(SRD_WS)}, {src} offen sc1 lds")

    def kv_setflag(self):
        a = self.a
        a("v_mov_b32 v84, 1")
        a(f"v_mov_b32 v85, {LDS_FG if self.opt.get('nf', 1) == 3 else LDS_KF}")
        a("s_mov_b64 exec, 1")
        a("ds_write_b32 v85, v84")
        a("s_mov_b64 exec, -1")

    def kv_tile(self, spos):
        a = self.a
        a(f"s_add_u32 {sD}, {spos}, s64")
        a(f"s_and_b32 {sD}, {sD}, 63")
        a(f"s_lshl_b32 {sD}, {sD}, 12")
        a(f"s_add_u32 {sD}, {sD}, {WS_KV}")
        a(f"s_lshl_b32 {sE_}, {spos}, 11")
        a(f"s_mov_b32 m0, {sE_}")
        a(f"buffer_load_dwordx4 v59, {srd(SRD_WS)}, {sD} offen sc1 lds")
        a(f"s_add_u32 m0, {sE_}, 1024")
        a(f"buffer_load_dwordx4 v60, {srd(SRD_WS)}, {sD} offen sc1 lds")

    def kv_addr(self):
        a = self.a
        a("v_bfe_u32 v59, v1, 3, 2")
        a("v_lshlrev_b32 v59, 10, v59")
        a("v_and_b32 v13, 7, v1")
        a("v_lshl_or_b32 v59, v13, 4, v59")
        a("v_lshrrev_b32 v13, 5, v1")
        a("v_lshl_or_b32 v59, v13, 7, v59")
        a("v_lshrrev_b32 v60, 4, v1")
        a("v_lshlrev_b32 v60, 10, v60")
        a("v_and_b32 v13, 15, v1")
        a("v_lshl_or_b32 v60, v13, 4, v60")
        a("v_add_u32 v60, 256, v60")
        if self.opt.get("nf", 1) == 3: return
        a(f"s_lshr_b32 s64, {sID}, 3")
        a(f"s_lshl_b32 s64, s64, 1")
        a("v_bfe_u32 v12, v1, 3, 2")
        a("v_and_b32 v13, 7, v1")
        a("v_lshlrev_b32 v13, 3, v13")
        a("v_lshl_add_u32 v12, v12, 10, v13")
        a(f"s_lshl_b32 {sA}, {sC}, 3")
        a(f"s_lshl_b32 {sB}, {sTT}, 2")
        a(f"s_add_u32 {sA}, {sA}, {sB}")
        a(f"s_lshl_b32 {sA}, {sA}, 10")
        a(f"s_add_u32 s65, {sA}, {WS_KV + 512}")
        if self.opt.get("nf", 1):
            a(f"s_lshl_b32 s65, {sC}, 10")
            a(f"s_add_u32 s65, s65, {WS_STLL}")

    def h_front(self):
        a = self.a
        X = self.opt
        AF, CS = 128, 48
        def check(lab_ok):
            a(f"v_xor_b32 v80, s3, v64")
            a(f"v_xor_b32 v81, s3, v66")
            a("v_or_b32 v80, v80, v81")
            for q in range(1, 4):
                a(f"v_xor_b32 v81, s3, v{64+4*q}")
                a("v_or_b32 v80, v80, v81")
                a(f"v_xor_b32 v81, s3, v{66+4*q}")
                a("v_or_b32 v80, v80, v81")
            a("v_cmp_ne_u32 vcc, 0, v80")
            a(f"s_cbranch_vccz {lab_ok}")
        def chunk0():
            a(f"buffer_load_dwordx2 v[10:11], v12, {srd(SRD_WS)}, s65 offen sc1")
            a(f"s_add_u32 {sF}, {sW}, 28")
            for i in range(4):
                self.kv_tile(sF)
                if i < 3: a(f"s_add_u32 {sF}, {sF}, 4")
        NB = 6
        def cread(p):
            c, q = p >> 2, p & 3
            sl = p % NB
            off = c * 8192 + q * 2048
            a.ds(f"ds_read_b64_tr_b16 {vr(AF+4*sl,2)}, v20 offset:{off}", f"c{p}")
            a.ds(f"ds_read_b64_tr_b16 {vr(AF+4*sl+2,2)}, v20 offset:{off+512}", f"c{p}")
        def csteps(lo, hi):
            for p in range(lo, hi):
                sl = p % NB
                a.wait_lg(f"c{p}")
                for i in range(4):
                    src2 = "0" if p == 0 else f"v{CS+i}"
                    a(f"v_dot2_f32_bf16 v{CS+i}, v{AF+4*sl+i}, s74, {src2}")
                if p + 5 < 16: cread(p + 5)
        if X.get("nf", 1) == 3:
            PA, PB, PC = 160, 180, 196
            sG7 = "s83"
            def tiles():
                if X.get("tsl"): a(f"s_sleep {X['tsl']}")
                lab = a.newlabel("L_tl7")
                a(f"s_mov_b32 {sPh}, 1")
                a(f"s_cmp_eq_u32 {sW}, 7")
                a(f"s_cbranch_scc1 {lab}")
                a("s_lshl_b32 s4, s82, 13")
                a("s_add_u32 s4, s4, s84")
                a(f"s_lshr_b32 {sF}, {sID}, 6")
                a(f"s_sub_u32 {sA}, {sW}, 4")
                for n in range(3):
                    if n == 2:
                        a(f"s_cmp_eq_u32 {sW}, 6")
                        a(f"s_cbranch_scc1 {lab}")
                    a(f"s_lshr_b32 s5, {sA}, 1")
                    a(f"s_xor_b32 s5, s5, {sF}")
                    a("s_lshl_b32 s5, s5, 16")
                    a("s_add_u32 s5, s5, s4")
                    a(f"s_and_b32 {sB}, {sA}, 1")
                    a(f"s_lshl_b32 {sB}, {sB}, 12")
                    a(f"s_add_u32 s5, s5, {sB}")
                    a(f"s_lshl_b32 {sB}, {sA}, 11")
                    a(f"s_add_u32 {sB}, {sB}, {32 * 2048}")
                    self.kv_dma("s5", 0, base=sB)
                    if n < 2: a(f"s_add_u32 {sA}, {sA}, 3")
                a.label(lab)
            def gpoll(base):
                lab = a.newlabel("L_gp")
                a(f"s_cmp_eq_u32 {sW}, 7")
                a(f"s_cbranch_scc0 {lab}")
                a(f"s_cmp_eq_u32 {sG7}, 0")
                a(f"s_cbranch_scc0 {lab}")
                self.kv_pload(base, stats=False)
                a.label(lab)
            CS4 = X.get("cs4")
            if X.get("hprio"): a(f"s_setprio {X['hprio']}")
            if CS4:
                cp_ = X.get("cpre", 16); cm_ = (cp_ + 16) // 2
                def csteps(lo, hi):
                    if lo == 0:
                        if cm_ > cp_: self.cs4_steps(cp_, cm_, None)
                    else:
                        if 16 > cm_: self.cs4_steps(cm_, 16, None)
                        self.cs4_reduce(mid=lambda: gpoll(PB))
            else:
                a("s_mov_b32 s74, 0x3f803f80")
            a(f"v_mov_b32 v86, {LDS_FG}")
            a(f"s_mov_b32 {sG7}, 0")
            a(f"s_mov_b32 {sPh}, 0")
            a(f"s_mov_b32 s84, {WS_KVL}")
            a.lg = []
            if not CS4:
                for p in range(5): cread(p)
            LF = X.get("lfail")
            if not LF: self.l_check("L_lok1")
            self.l_pload()
            a("s_branch L_lc1")
            a.label("L_lok1")
            self.stamp("lok1")
            tiles()
            a.label("L_lc1")
            gpoll(PA)
            NH = X.get("csplit", 8)
            csteps(0, NH)
            self.stamp("cs1")
            a(f"s_cmp_eq_u32 {sPh}, 1")
            a("s_cbranch_scc1 L_lc2")
            a(f"s_cmp_eq_u32 {sW}, 7")
            a("s_cbranch_scc1 L_lw7")
            a("s_waitcnt vmcnt(0)")
            a("s_branch L_lw8")
            a.label("L_lw7")
            a("s_waitcnt vmcnt(4)")
            a.label("L_lw8")
            if not LF: self.l_check("L_lok2")
            self.l_pload()
            a("s_branch L_lc2")
            a.label("L_lok2")
            self.stamp("lok2")
            tiles()
            a.label("L_lc2")
            csteps(NH, 16)
            self.stamp("cs2")
            a(f"s_cmp_eq_u32 {sPh}, 1")
            a("s_cbranch_scc1 L_ldone")
            a("s_waitcnt vmcnt(0)")
            if not LF: self.l_check("L_lgo")
            a(f"s_mov_b32 {sCnt}, 200000")
            a.label("L_lsl1")
            self.l_pload()
            a(f"s_cmp_eq_u32 {sW}, 7")
            a("s_cbranch_scc0 L_lsl2")
            self.kv_pload(PA)
            a("s_waitcnt vmcnt(0)")
            if not LF: self.l_check("L_lgo7")
            self.kv_check("L_lsl3", PA)
            a("s_branch L_lsl4")
            a.label("L_lsl3")
            self.kv_setflag()
            a(f"s_mov_b32 {sG7}, 1")
            a(f"v_mov_b32 v212, v{PA+16}")
            a(f"v_mov_b32 v214, v{PA+18}")
            for q in range(4): a(f"v_mov_b32 v{220+q}, v{PA+1+4*q}")
            a(f"s_mov_b32 s84, {WS_KV}")
            a("s_branch L_lgo")
            a.label("L_lsl2")
            a("ds_read_b32 v87, v86")
            a("s_waitcnt vmcnt(0) lgkmcnt(0)")
            if not LF: self.l_check("L_lgo")
            a("v_readfirstlane_b32 s4, v87")
            a("s_cmp_lg_u32 s4, 0")
            a("s_cbranch_scc0 L_lsl4")
            a(f"s_mov_b32 s84, {WS_KV}")
            a("s_branch L_lgo")
            a.label("L_lsl4")
            a(f"s_sub_u32 {sCnt}, {sCnt}, 1")
            a(f"s_cmp_eq_u32 {sCnt}, 0")
            a("s_cbranch_scc0 L_lsl1")
            a.label("L_lgo7")
            a.label("L_lgo")
            self.stamp("lok3")
            tiles()
            gpoll(PA)
            gpoll(PB)
            a.label("L_ldone")
            gpoll(PC)
            if CS4:
                lab = a.newlabel("L_tw")
                a(f"s_cmp_eq_u32 {sW}, 7")
                a(f"s_cbranch_scc1 {lab}")
                a("s_waitcnt vmcnt(0)")
                a.label(lab)
                return
            a(f"v_add_f32 v{CS}, v{CS}, v{CS+1}")
            a(f"v_add_f32 v{CS+2}, v{CS+2}, v{CS+3}")
            a(f"v_add_f32 v{CS}, v{CS}, v{CS+2}")
            a(f"v_mov_b32 v9, v{CS}")
            a(f"v_permlane32_swap_b32 v{CS}, v9")
            a(f"v_add_f32 v{CS}, v{CS}, v9")
            return
        if X.get("nf", 1) == 2:
            PA, PB = 64, 88
            a("s_mov_b32 s74, 0x3f803f80")
            a(f"v_mov_b32 v86, {LDS_KF}")
            a.lg = []
            for p in range(5): cread(p)
            a(f"s_cmp_eq_u32 {sW}, 7")
            a("s_cbranch_scc1 L_w7f")
            saved = list(a.lg)
            NH = X.get("csplit", 8)
            csteps(0, NH)
            a(f"s_mov_b32 {sCnt}, 2000000")
            a.label("L_kv_spin1")
            a("ds_read_b32 v87, v86")
            a("s_waitcnt lgkmcnt(0)")
            a("v_readfirstlane_b32 s4, v87")
            a("s_cmp_lg_u32 s4, 0")
            a("s_cbranch_scc1 L_kv_go2")
            a(f"s_sub_u32 {sCnt}, {sCnt}, 1")
            a(f"s_cmp_eq_u32 {sCnt}, 0")
            a("s_cbranch_scc0 L_kv_spin1")
            a.label("L_kv_go2")
            self.stamp("kvok")
            a(f"s_add_u32 {sF}, {sW}, 28")
            for i in range(5):
                self.kv_tile(sF)
                if i < 4: a(f"s_add_u32 {sF}, {sF}, 3")
            if NH < 16: a.lg = [x for x in a.lg]
            csteps(NH, 16)
            a("s_branch L_hfin")
            a.label("L_w7f")
            a.lg = saved
            a(f"s_mov_b32 {sPh}, 0")
            if not X.get("ep7", 1): self.kv_pload(PA)
            self.kv_pload(PB)
            def cp(base, other, k):
                lab = a.newlabel("L_cp"); lok = a.newlabel("L_cpok")
                a(f"s_cmp_lg_u32 {sPh}, 0")
                a(f"s_cbranch_scc1 {lab}")
                a("s_waitcnt vmcnt(5)")
                if self.prof and X.get("cpdbg"):
                    if k == 0 and not getattr(self, "_cp0", 0):
                        self._cp0 = 1
                        self.stamp("cp0")
                        a("s_mov_b32 s75, 0")
                    a("s_add_u32 s75, s75, 1")
                self.kv_check(lok, base)
                self.kv_pload(base)
                a(f"s_branch {lab}")
                a.label(lok)
                self.kv_setflag()
                a(f"s_mov_b32 {sPh}, {1 if base == PA else 2}")
                a.label(lab)
            G7 = X.get("g7", 4)
            cp(PA, PB, 0)
            n = 0
            while n < 16:
                csteps(n, min(16, n + G7)); n += G7
                if n < 16: cp(PB if (n // G7) % 2 == 1 else PA, None, n)
            nxt = [PB, PA] if ((16 + G7 - 1) // G7) % 2 == 1 else [PA, PB]
            a(f"s_mov_b32 {sCnt}, 100000")
            a.label("L_w7loop")
            cp(nxt[0], None, 0)
            cp(nxt[1], None, 0)
            a(f"s_cmp_lg_u32 {sPh}, 0")
            a("s_cbranch_scc1 L_w7ok")
            a(f"s_sub_u32 {sCnt}, {sCnt}, 1")
            a(f"s_cmp_eq_u32 {sCnt}, 0")
            a("s_cbranch_scc0 L_w7loop")
            a.label("L_w7ok")
            self.stamp("kvok7")
            if self.prof and X.get("cpdbg"):
                i = self.nstamp; self.nstamp += 1
                self.stamp_names.append("ncp")
                a(f"v_writelane_b32 v0, s75, {i}")
            a("s_waitcnt vmcnt(0)")
            a(f"s_cmp_eq_u32 {sPh}, 2")
            a("s_cbranch_scc0 L_w7cp")
            for r in (1, 5, 9, 13, 16, 18):
                a(f"v_mov_b32 v{PA+r}, v{PB+r}")
            a.label("L_w7cp")
            a.label("L_hfin")
            a(f"v_add_f32 v{CS}, v{CS}, v{CS+1}")
            a(f"v_add_f32 v{CS+2}, v{CS+2}, v{CS+3}")
            a(f"v_add_f32 v{CS}, v{CS}, v{CS+2}")
            a(f"v_mov_b32 v9, v{CS}")
            a(f"v_permlane32_swap_b32 v{CS}, v9")
            a(f"v_add_f32 v{CS}, v{CS}, v9")
            return
        if X.get("nf", 1):
            def chunk0n():
                a(f"s_add_u32 {sF}, {sW}, 28")
                for i in range(4):
                    if i == 3:
                        lab = a.newlabel("L_c0skip")
                        a(f"s_cmp_eq_u32 {sW}, 7")
                        a(f"s_cbranch_scc1 {lab}")
                    self.kv_tile(sF)
                    if i < 3: a(f"s_add_u32 {sF}, {sF}, 4")
                a.label(lab)
            a("s_mov_b32 s74, 0x3f803f80")
            a(f"v_mov_b32 v86, {LDS_KF}")
            a.lg = []
            a.ds("ds_read_b32 v87, v86", "kf")
            for p in range(5): cread(p)
            a.wait_lg("kf")
            a(f"v_readfirstlane_b32 {sPh}, v87")
            a(f"s_cmp_eq_u32 {sPh}, 0")
            a("s_cbranch_scc1 L_kv_notyet")
            chunk0n()
            a("s_branch L_kv_cs")
            a.label("L_kv_notyet")
            a(f"s_cmp_eq_u32 {sW}, 7")
            a("s_cbranch_scc0 L_kv_cs")
            self.kv_pload()
            a.label("L_kv_cs")
            csteps(0, 16)
            a(f"v_add_f32 v{CS}, v{CS}, v{CS+1}")
            a(f"v_add_f32 v{CS+2}, v{CS+2}, v{CS+3}")
            a(f"v_add_f32 v{CS}, v{CS}, v{CS+2}")
            a(f"v_mov_b32 v9, v{CS}")
            a(f"v_permlane32_swap_b32 v{CS}, v9")
            a(f"v_add_f32 v{CS}, v{CS}, v9")
            a(f"s_cmp_lg_u32 {sPh}, 0")
            a("s_cbranch_scc1 L_kv_have")
            a(f"s_cmp_eq_u32 {sW}, 7")
            a("s_cbranch_scc0 L_kv_spin")
            a(f"s_mov_b32 {sCnt}, 200000")
            a.label("L_poll_kv")
            a("s_waitcnt vmcnt(0)")
            self.kv_check("L_pollok_kv")
            a(f"s_sub_u32 {sCnt}, {sCnt}, 1")
            a(f"s_cmp_eq_u32 {sCnt}, 0")
            a("s_cbranch_scc1 L_pollok_kv")
            a(f"s_sleep {X.get('kvsl', 2)}")
            self.kv_pload()
            a("s_branch L_poll_kv")
            a.label("L_pollok_kv")
            self.kv_setflag()
            a("s_branch L_kv_go2")
            a.label("L_kv_spin")
            a(f"s_mov_b32 {sCnt}, 2000000")
            a.label("L_kv_spin1")
            a("ds_read_b32 v87, v86")
            a("s_waitcnt lgkmcnt(0)")
            a("v_readfirstlane_b32 s4, v87")
            a("s_cmp_lg_u32 s4, 0")
            a("s_cbranch_scc1 L_kv_go2")
            a(f"s_sub_u32 {sCnt}, {sCnt}, 1")
            a(f"s_cmp_eq_u32 {sCnt}, 0")
            a("s_cbranch_scc0 L_kv_spin1")
            a.label("L_kv_go2")
            chunk0n()
            a.label("L_kv_have")
            self.stamp("kvok")
            return
        a("s_mov_b32 s74, 0x3f803f80")
        a(f"s_mov_b32 {sPh}, 0")
        a.lg = []
        for p in range(5): cread(p)
        if X.get("epoll", 0):
            check("L_kv_early")
            self.kv_pload()
            a("s_branch L_kv_late")
            a.label("L_kv_early")
            chunk0()
            a(f"s_mov_b32 {sPh}, 1")
            a.label("L_kv_late")
        else:
            self.kv_pload()
        NH = X.get("csplit", 8)
        csteps(0, NH)
        a(f"s_cmp_eq_u32 {sPh}, 1")
        a("s_cbranch_scc1 L_kv_have")
        a(f"s_mov_b32 {sCnt}, 200000")
        a.label("L_poll_kv")
        a("s_waitcnt vmcnt(0)")
        check("L_pollok_kv")
        a(f"s_sub_u32 {sCnt}, {sCnt}, 1")
        a(f"s_cmp_eq_u32 {sCnt}, 0")
        a("s_cbranch_scc1 L_pollok_kv")
        a(f"s_sleep {X.get('kvsl', 2)}")
        self.kv_pload()
        a("s_branch L_poll_kv")
        a.label("L_pollok_kv")
        self.stamp("kvok")
        chunk0()
        a.label("L_kv_have")
        csteps(NH, 16)
        a(f"v_add_f32 v{CS}, v{CS}, v{CS+1}")
        a(f"v_add_f32 v{CS+2}, v{CS+2}, v{CS+3}")
        a(f"v_add_f32 v{CS}, v{CS}, v{CS+2}")
        a(f"v_mov_b32 v9, v{CS}")
        a(f"v_permlane32_swap_b32 v{CS}, v9")
        a(f"v_add_f32 v{CS}, v{CS}, v9")

    def poll_begin(self, name, limit=200000):
        a = self.a
        a(f"s_mov_b32 {sCnt}, {limit}")
        a.label(f"L_poll_{name}")
    def poll_end(self, name, sleep=1):
        a = self.a
        a(f"s_cbranch_vccz L_pollok_{name}")
        a(f"s_sub_u32 {sCnt}, {sCnt}, 1")
        a(f"s_cmp_eq_u32 {sCnt}, 0")
        a(f"s_cbranch_scc1 L_pollok_{name}")
        if sleep: a(f"s_sleep {sleep}")
        a(f"s_branch L_poll_{name}")
        a.label(f"L_pollok_{name}")

    def p2(self):
        a = self.a
        X = self.opt
        LDS_E = 132 * 1024
        Q, NEGM, S0, S1, IDX, O, KF, VF = 4, 8, 24, 40, 56, 64, 80, 88
        vKa, vVa, vKb, vVb = "v104", "v105", "v106", "v107"
        vT1, vT2 = "v108", "v109"
        PL = 110
        WD = 112
        W1 = 128
        sTG = "s3"
        LDS_BC, LDS_CS, LDS_EX = 156 * 1024, 157 * 1024, 148 * 1024
        NF3 = X.get("nf", 1) == 3
        FB = LDS_FG if NF3 else LDS_BC
        BCO = 96 if NF3 else 0
        if NF3: LDS_BC = LDS_FG + 96
        LST = LDS_ST
        if NF3: LDS_EX, LDS_CS, LST = 80 * 1024, 88 * 1024, 89 * 1024
        CSR = 112 if NF3 else 84
        ACC, CS = 32, 48
        sRot = "s64"
        kv_tile = self.kv_tile
        a(f"s_cmp_eq_u32 {sKH}, 0")
        a("s_cbranch_scc0 L_p2h")
        if not X.get("nf", 1):
            a(f"buffer_load_dwordx2 v[10:11], v12, {srd(SRD_WS)}, s65 offen sc1")
        a(f"s_lshl_b32 {sA}, {sW}, 11")
        a(f"s_add_u32 {sA}, {sA}, {LDS_EX}")
        a(f"v_add_u32 v8, {sA}, v2")
        a(f"ds_write_b128 v8, {vr(ACC+8,4)}")
        a(f"ds_write_b128 v8, {vr(ACC+12,4)} offset:1024")
        a("s_branch L_p2j")
        a.label("L_p2h")
        if NF3:
            a(f"s_cmp_eq_u32 {sW}, 7")
            a("s_cbranch_scc0 L_p2h7")
            a("v_mov_b32 v213, v214")
            a("v_lshlrev_b32 v84, 3, v1")
            a(f"v_add_u32 v84, {LST}, v84")
            a("ds_write_b64 v84, v[212:213]")
            a.label("L_p2h7")
        elif X.get("nf", 1):
            a(f"s_cmp_eq_u32 {sW}, 7")
            a("s_cbranch_scc0 L_p2h7")
            a(f"s_mov_b32 {sF}, 47")
            kv_tile(sF)
            a("v_mov_b32 v81, v82")
            a("v_lshlrev_b32 v84, 3, v1")
            a(f"v_add_u32 v84, {LDS_ST}, v84")
            a("ds_write_b64 v84, v[80:81]")
            a.label("L_p2h7")
        if X.get("cs4"):
            a(f"s_and_b32 {sA}, {sW}, 3")
            a(f"s_lshl_b32 {sA}, {sA}, 8")
            a(f"s_add_u32 {sA}, {sA}, {LDS_CS}")
            a("v_lshlrev_b32 v9, 5, v1")
            a(f"v_add_u32 v9, {sA}, v9")
            a("s_mov_b64 exec, 0xff")
            a("ds_write_b128 v9, v[48:51]")
            a("ds_write_b128 v9, v[52:55] offset:16")
            a("s_mov_b64 exec, -1")
            a("s_branch L_p2j")
        a("v_and_b32 v9, 31, v1")
        a(f"s_lshl_b32 {sA}, {sTT}, 1")
        a(f"s_add_u32 {sA}, {sA}, {sFT}")
        a(f"s_lshl_b32 {sA}, {sA}, 7")
        a(f"s_add_u32 {sA}, {sA}, {LDS_CS}")
        a("v_lshlrev_b32 v9, 2, v9")
        a(f"v_add_u32 v9, {sA}, v9")
        a(f"ds_write_b32 v9, v{CS}")
        a.label("L_p2j")
        if NF3:
            for i in range(16):
                a(f"v_mov_b32 v{O+i}, 0")
        a("s_waitcnt lgkmcnt(0)")
        a("s_barrier")
        self.stamp("b3")
        if NF3:
            self.wt_issue(phase="go")
        a.lg = []
        a("v_lshrrev_b32 v9, 5, v1")
        a("v_lshlrev_b32 v9, 4, v9")
        a(f"s_lshl_b32 {sA}, {sFT}, 7")
        a(f"s_lshl_b32 {sB}, {sKH}, 6")
        a(f"s_add_u32 {sA}, {sA}, {sB}")
        a(f"s_add_u32 {sA}, {sA}, {LDS_CS}")
        a(f"v_add_u32 v9, {sA}, v9")
        NCS = 4 if X.get("cs4") else 2
        for q in range(NCS):
            a.ds(f"ds_read_b128 {vr(CSR+8*q,4)}, v9 offset:{q*256}", "cs")
            a.ds(f"ds_read_b128 {vr(CSR+4+8*q,4)}, v9 offset:{q*256+32}", "cs")
        if X.get("nf", 1):
            a("v_and_b32 v10, 31, v1")
            a(f"s_lshl_b32 {sA}, {sTT}, 8")
            a(f"s_add_u32 {sA}, {sA}, {LST}")
            a("v_lshlrev_b32 v10, 3, v10")
            a(f"v_add_u32 v10, {sA}, v10")
            a("ds_read_b64 v[10:11], v10")
        a(f"s_cmp_eq_u32 {sKH}, 0")
        a("s_cbranch_scc1 L_p2k")
        a(f"s_lshl_b32 {sA}, {sW}, 11")
        a(f"s_add_u32 {sA}, {sA}, {LDS_EX - 4*2048}")
        a(f"v_add_u32 v8, {sA}, v2")
        a(f"ds_read_b128 {vr(ACC,4)}, v8")
        a(f"ds_read_b128 {vr(ACC+4,4)}, v8 offset:1024")
        a.label("L_p2k")
        a("s_waitcnt lgkmcnt(0)")
        a.lg = []
        if NF3:
            a(f"s_lshl_b32 {sA}, {sW}, 2")
            a(f"s_add_u32 {sA}, {sA}, {LDS_FG + 48}")
            a(f"v_mov_b32 v85, {sA}")
            a("v_mov_b32 v84, 1")
            a("s_mov_b64 exec, 1")
            a("ds_write_b32 v85, v84")
            a("s_mov_b64 exec, -1")
            a(f"v_mov_b32 v61, {LDS_FG}")
            a(f"s_cmp_eq_u32 {sKH}, 0")
            a("s_cbranch_scc1 L_qfin")
            a("s_setprio 3")
            self.gok_block()
            a(f"s_add_u32 s80, s80, {WS_KV}")
            for n in range(4): self.rem_dma(n, yk=(n % 2 == 0))
            self.stamp("eiss")
            a.label("L_qfin")
        for i in range(8):
            a(f"v_add_f32 v{40+i}, v{CSR+i}, v{CSR+8+i}")
        if NCS == 4:
            for i in range(8):
                a(f"v_add_f32 v{CSR+i}, v{CSR+16+i}, v{CSR+24+i}")
            for i in range(8):
                a(f"v_add_f32 v{40+i}, v{40+i}, v{CSR+i}")
        if not X.get("nf", 1):
            a(f"s_cmp_eq_u32 {sKH}, 0")
            a("s_cbranch_scc1 L_p2w")
            a("s_waitcnt vmcnt(8)")
            a("s_branch L_p2x")
            a.label("L_p2w")
            a("s_waitcnt vmcnt(0)")
            a.label("L_p2x")
        a(f"v_mul_f32 v11, 0x{f32bits(0.25*LOG2E):x}, v11")
        for i in range(8):
            a(f"v_fma_f32 v{32+i}, -v10, v{40+i}, v{32+i}")
        for i in range(8):
            a(f"v_mul_f32 v{32+i}, v11, v{32+i}")
        for i in range(4):
            a(f"v_cvt_pk_bf16_f32 v{Q+i}, v{32+2*i}, v{33+2*i}")
        if self.stop == "q":
            self.dump_regs(0, [Q, Q+1, Q+2, Q+3], WS_DBG)
            return
        a(f"v_dot2_f32_bf16 v12, v{Q}, v{Q}, 0")
        for i in range(1, 4):
            a(f"v_dot2_f32_bf16 v12, v{Q+i}, v{Q+i}, v12")
        a("v_mov_b32 v13, v12")
        a("v_permlane32_swap_b32 v12, v13")
        a("v_add_f32 v12, v12, v13")
        a("v_sqrt_f32 v12, v12")
        a(f"v_mul_f32 v12, 0x{f32bits(1.0078125):x}, v12")
        self.stamp("qfin")
        if not NF3: self.wt_issue()
        def knorm(R):
            a(f"v_and_b32 v80, -8, v{R[0]}")
            for q in range(1, 4):
                a(f"v_and_b32 v81, -8, v{R[q]}")
                a("v_max_f32 v80, v80, v81")
            a(f"s_lshr_b32 {sB}, {sC}, 3")
            a(f"v_mov_b32 v82, v{R[0]}")
            for q in range(1, 4):
                a(f"s_cmp_eq_u32 {sB}, {q}")
                a("s_cselect_b64 vcc, -1, 0")
                a(f"v_cndmask_b32 v82, v82, v{R[q]}, vcc")
            a(f"v_xor_b32 v82, {sXCC}, v82")
            a("v_and_b32 v82, 7, v82")
            a("v_cmp_ne_u32 vcc, 0, v82")
            a(f"s_and_b32 {sA}, {sC}, 7")
            a(f"s_lshl_b32 {sA}, {sA}, 3")
            a(f"s_lshr_b64 {sX64}, vcc, {sA}")
            a(f"s_and_b32 {sFast}, s4, 0xff")
            if X.get("slow"): a(f"s_mov_b32 {sFast}, 1")
            self.wave_reduce(["v80"], "max", ["v81"])
            a("v_sqrt_f32 v80, v80")
            a(f"v_mov_b32 v81, {sFast}")
            a(f"v_mov_b32 v82, {LDS_BC}")
            a("s_mov_b64 exec, 1")
            a("ds_write_b64 v82, v[80:81]")
            a("s_mov_b64 exec, -1")
        if not NF3:
            a(f"s_cmp_eq_u32 {sW}, 7")
            a("s_cbranch_scc0 L_nobc")
            knorm([65, 69, 73, 77])
            a.label("L_nobc")
        def epoch():
            a(f"s_or_b32 {sA}, {sID}, {sW}")
            a(f"s_cmp_lg_u32 {sA}, 0")
            a("s_cbranch_scc1 L_noepoch")
            a(f"v_mov_b32 v62, {sTG}")
            a("v_mov_b32 v63, 0")
            a("s_mov_b64 exec, 1")
            a(f"buffer_store_dword v62, v63, {srd(SRD_WS)}, 0 offen")
            a("s_mov_b64 exec, -1")
            a.label("L_noepoch")
        def bound_check():
            a("v_mul_f32 v12, v12, v62")
            a(f"v_cmp_lt_f32 vcc, 0x{f32bits(48.0):x}, v12")
            a("v_cmp_u_f32 s[4:5], v12, v12")
            a("s_or_b64 vcc, vcc, s[4:5]")
            a("s_cmp_lg_u64 vcc, 0")
            a(f"s_cselect_b32 {sG}, 1, 0")
            a(f"v_readfirstlane_b32 {sFast}, v63")
            if X.get("forcefb"): a(f"s_mov_b32 {sG}, 1")
        if not NF3:
            a(f"v_mov_b32 v{VF}, 0x3f803f80")
            for i in range(1, 16):
                a(f"v_mov_b32 v{VF+i}, v{VF}")
            for i in range(16):
                a(f"v_mov_b32 v{O+i}, 0")
            a(f"v_mov_b32 v{IDX}, 0xdddddddd")
            a(f"v_mov_b32 {vKa}, v2")
            a(f"v_add_u32 {vKb}, 0x10000, v2")
            a("v_and_b32 v3, 15, v1")
            a("v_lshlrev_b32 v3, 4, v3")
            a("v_lshrrev_b32 v61, 5, v1")
            a("v_lshl_or_b32 v3, v61, 8, v3")
            a(f"v_add_u32 {vVa}, 1024, v3")
            a(f"v_add_u32 {vVb}, 0x10000, {vVa}")
            self.wt_addr(vT1, vT2)
            self.wt_poll_addr()
            a("s_mov_b32 s6, 0x0000ffff")
            a("s_mov_b32 s7, 0x0000ffff")
        a(f"v_mov_b32 v61, {FB}")
        self.stamp("fin")
        if not NF3:
            a("s_waitcnt vmcnt(2) lgkmcnt(0)")
            a("s_barrier")
        self.stamp("b4")
        a(f"s_cmp_eq_u32 {sKH}, 0")
        a("s_cbranch_scc1 L_clsA")
        def lds_set(off, tmp0="v84", tmp1="v85", perwave=False):
            if perwave:
                a(f"s_and_b32 {sA}, {sW}, 3")
                a(f"s_lshl_b32 {sA}, {sA}, 2")
                a(f"s_add_u32 {sA}, {sA}, {FB + off}")
                a(f"v_mov_b32 {tmp1}, {sA}")
            else:
                a(f"v_mov_b32 {tmp1}, {FB + off}")
            a(f"v_mov_b32 {tmp0}, 1")
            a("s_mov_b64 exec, 1")
            a(f"ds_write_b32 {tmp1}, {tmp0}")
            a("s_mov_b64 exec, -1")
        if NF3:
            for n in range(4, 8): self.rem_dma(n, yk=(n % 2 == 0))
            a("s_waitcnt vmcnt(8)")
            self.fg_set(16, "v224", "v225", perwave=True)
            self.stamp("f1set")
            a(f"s_cmp_eq_u32 {sW}, 7")
            a("s_cbranch_scc0 L_nobc")
            knorm([220, 221, 222, 223])
            a.label("L_nobc")
            a(f"s_setprio {X.get('pb', 1)}")
        else:
            a(f"s_sub_u32 s67, {sW}, 4")
            a(f"s_mov_b32 {sCnt}, 12")
            a.label("L_kvrest")
            a(f"s_add_u32 {sF}, s67, 16")
            a(f"s_cmp_lt_u32 s67, 32")
            a(f"s_cselect_b32 {sF}, s67, {sF}")
            kv_tile(sF)
            a(f"s_add_u32 s67, s67, 4")
            a(f"s_sub_u32 {sCnt}, {sCnt}, 1")
            a(f"s_cmp_lg_u32 {sCnt}, 0")
            a("s_cbranch_scc1 L_kvrest")
            a("s_setprio 1")
            a("s_waitcnt vmcnt(0)")
            a("s_barrier")
        a(f"s_mov_b32 {sPh}, 1")
        a("s_branch L_clsD")
        a.label("L_clsA")
        a("s_setprio 2")
        a(f"s_mov_b32 {sPh}, 0")
        a.label("L_clsD")

        def pos(t):
            if NF3: return t + 32 if t < 8 else (t - 8 if t < 40 else (64 if t == 46 else t))
            return t + 32 if t < 16 else (t - 16 if t < 48 else t)
        def kread(t):
            p_ = pos(t)
            base = vKa if p_ < 32 else vKb
            if p_ == 64:
                a(f"v_add_u32 v120, 0x10000, {vKb}")
                base = "v120"
            a.ds(f"ds_read_b128 {vr(KF+4*(t%2),4)}, {base} offset:{(p_%32)*2048}", f"K{t}")
        def vread(t):
            p_ = pos(t)
            base = vVa if p_ < 32 else vVb
            if p_ == 64:
                a(f"v_add_u32 v121, 0x10000, {vVb}")
                base = "v121"
            a("s_mov_b64 exec, s[6:7]")
            a.ds(f"ds_read_b128 {vr(VF+8*(t%2),4)}, {base} offset:{(p_%32)*2048}", f"V{t}")
            a.ds(f"ds_read_b128 {vr(VF+8*(t%2)+4,4)}, {base} offset:{(p_%32)*2048+512}", f"V{t}")
            a("s_mov_b64 exec, -1")
        def Sr(t): return S0 if t % 2 == 0 else S1
        def ms(t):
            a.wait_lg(f"K{t}")
            a(f"v_mfma_f32_32x32x16_bf16 {vr(Sr(t),16)}, {vr(KF+4*(t%2),4)}, {vr(Q,4)}, 0")
        def sm(t, half):
            a.wait_lg(f"V{t}")
            a(f"v_smfmac_f32_32x32x32_bf16 {vr(O,16)}, {vr(VF+8*(t%2)+4*half,4)}, {vr(Sr(t)+8*half,8)}, v{IDX}")
        def E(t, lo, hi):
            for i in range(lo, hi + 1): a(f"v_exp_f32 v{Sr(t)+i}, v{Sr(t)+i}")

        TA = dict(wt=X.get("Awt", 10), fl=X.get("Afl", 17), bar=13, sw=X.get("sw", 50))
        TB = dict(wt=X.get("Bwt", 0), fl=X.get("Bfl", 2))
        TPOLL, TCHK, TLD0 = X.get("tpoll", 30), X.get("tchk", 32), X.get("tld", 32)
        def cond(cls, name, fn):
            lab = a.newlabel(f"L_{name}")
            a(f"s_cmp_eq_u32 {sKH}, {cls}")
            a(f"s_cbranch_scc0 {lab}")
            fn()
            a.label(lab)
        def b_wt(wait=True):
            if wait: a("s_waitcnt vmcnt(0)")
            a(f"ds_read_b64_tr_b16 v[{WD}:{WD+1}], {vT1}")
            a(f"ds_read_b64_tr_b16 v[{WD+2}:{WD+3}], {vT1} offset:1024")
            a(f"ds_read_b64_tr_b16 v[{WD+4}:{WD+5}], {vT2}")
            a(f"ds_read_b64_tr_b16 v[{WD+6}:{WD+7}], {vT2} offset:1024")
            a("s_waitcnt lgkmcnt(0)")
            a(f"buffer_store_dwordx4 v[{WD}:{WD+3}], v2, {srd(SRD_WS)}, s88 offen sc1")
            a("s_add_u32 s88, s88, s89")
            a(f"buffer_store_dwordx4 v[{WD+4}:{WD+7}], v2, {srd(SRD_WS)}, s88 offen sc1")
        def b_fl(n=0):
            a(f"s_waitcnt vmcnt({n})")
            a(f"s_lshl_b32 {sA}, {sID}, 3")
            a(f"s_add_u32 {sA}, {sA}, {sW}")
            a(f"s_lshl_b32 {sA}, {sA}, 2")
            a(f"s_add_u32 {sA}, {sA}, {WS_FLWT2}")
            a(f"v_mov_b32 v{WD}, {sTG}")
            a(f"v_mov_b32 v{WD+1}, 0")
            a("s_mov_b64 exec, 1")
            a(f"buffer_store_dword v{WD}, v{WD+1}, {srd(SRD_WS)}, {sA} offen sc1")
            a("s_mov_b64 exec, -1")
        def b_fl2():
            a("s_waitcnt vmcnt(0)")
            self.fg_set(80, f"v{WD+2}", f"v{WD+3}", perwave=True)
        def b_f2():
            a("s_waitcnt vmcnt(2)")
            self.fg_set(32, f"v{WD+2}", f"v{WD+3}", perwave=True)
            b_fl(2)
        def fchk_read(off):
            def f(): a.ds(f"ds_read_b128 v[{WD+4}:{WD+7}], v61 offset:{off}", f"fl{off}")
            return f
        def fchk(off):
            def f():
                lok, lsp = a.newlabel("L_fok"), a.newlabel("L_fsp")
                a.wait_lg(f"fl{off}")
                a(f"s_mov_b32 {sCnt}, 2000000")
                a.label(lsp)
                a(f"v_and_b32 v{WD+4}, v{WD+4}, v{WD+5}")
                a(f"v_and_b32 v{WD+6}, v{WD+6}, v{WD+7}")
                a(f"v_and_b32 v{WD+4}, v{WD+4}, v{WD+6}")
                a(f"v_readfirstlane_b32 s4, v{WD+4}")
                a("s_cmp_lg_u32 s4, 0")
                a(f"s_cbranch_scc1 {lok}")
                a(f"ds_read_b128 v[{WD+4}:{WD+7}], v61 offset:{off}")
                a("s_waitcnt lgkmcnt(0)")
                a(f"s_sub_u32 {sCnt}, {sCnt}, 1")
                a(f"s_cmp_eq_u32 {sCnt}, 0")
                a(f"s_cbranch_scc0 {lsp}")
                a.label(lok)
            return f
        def b_bar():
            lab = a.newlabel("L_b5")
            a(f"s_cmp_eq_u32 {sPh}, 1")
            a(f"s_cbranch_scc1 {lab}")
            a("s_barrier")
            a.label(lab)
        def poll_issue():
            a(f"buffer_load_dword v{PL}, v57, {srd(SRD_WS)}, 0 offen sc1")
            a(f"buffer_load_dword v{PL+1}, v58, {srd(SRD_WS)}, 0 offen sc1")
        def poll_check():
            a("s_waitcnt vmcnt(0)")
            a(f"s_mov_b32 {sCnt}, 200000")
            a.label("L_wtchk")
            a(f"v_xor_b32 v{PL}, {sTG}, v{PL}")
            a(f"v_xor_b32 v{PL+1}, {sTG}, v{PL+1}")
            a(f"v_or_b32 v{PL}, v{PL}, v{PL+1}")
            a(f"v_cmp_ne_u32 vcc, 0, v{PL}")
            a("s_cbranch_vccz L_wtok")
            a(f"s_sub_u32 {sCnt}, {sCnt}, 1")
            a(f"s_cmp_eq_u32 {sCnt}, 0")
            a("s_cbranch_scc1 L_wtok")
            a("s_sleep 2")
            poll_issue()
            a("s_waitcnt vmcnt(0)")
            a("s_branch L_wtchk")
            a.label("L_wtok")
        extras = {t: [] for t in range(64)}
        mid = {t: [] for t in range(64)}
        extras[TA["wt"]].append(lambda: cond(0, "wtA", b_wt))
        extras[TB["wt"]].append(lambda: cond(1, "wtB", (lambda: b_wt(False)) if NF3 else b_wt))
        extras[TA["fl"]].append(lambda: cond(0, "flA", b_fl))
        if not NF3: extras[TB["fl"]].append(lambda: cond(1, "flB", b_fl))
        if NF3:
            assert TB["wt"] == 0
            extras[0].append(lambda: cond(1, "r10", lambda: self.rem_dma(10)))
            extras[1].append(lambda: cond(1, "r11", lambda: (b_f2(), self.rem_dma(11, yk=False))))
            extras[2].append(lambda: cond(1, "r12", lambda: self.rem_dma(12)))
            extras[3].append(lambda: cond(1, "r13", lambda: self.rem_dma(13, yk=False)))
            extras[4].append(lambda: cond(1, "r8", lambda: (self.qd_check(), self.rem_dma(8))))
            extras[5].append(lambda: cond(1, "r9", lambda: self.rem_dma(9, yk=False)))
            extras[X.get("Bfl3", 7)].append(lambda: cond(1, "flB", b_fl2))
            NE = X.get("ne", 8)
            T1 = 5
            T2 = 8 + 16 - 3
            mid[T1].append(fchk_read(16)); extras[T1].append(fchk(16))
            mid[T2].append(fchk_read(32)); extras[T2].append(fchk(32))
            T3 = 37
            mid[T3].insert(0, fchk_read(80)); extras[T3].append(fchk(80))
            if self.prof:
                extras[T1].append(lambda: self.stamp("f1ok"))
                extras[T2].append(lambda: self.stamp("f2ok"))
        else:
            extras[TA["bar"]].append(b_bar)
        extras[TA["sw"]].append(lambda: cond(0, "swA", lambda: a("s_setprio 0")))
        def dirty():
            n = X["dirty"]
            a(f"s_lshl_b32 {sA}, {sID}, 3")
            a(f"s_add_u32 {sA}, {sA}, {sW}")
            a(f"s_mul_i32 {sA}, {sA}, {n*1024}")
            a(f"s_add_u32 {sA}, {sA}, {WS_DBG}")
            for i in range(n):
                a(f"buffer_store_dwordx4 v[4:7], v2, {srd(SRD_WS)}, {sA} offen")
                a(f"s_add_u32 {sA}, {sA}, 1024")
        if X.get("dirty"): extras[20].append(dirty)
        D_ = vr(W1H[25], 4) if (X.get("spread", 1) and not X.get("w1first")) else vr(WOH[15], 4)
        sPA, sPB = "s70", "s71"
        def pt_addr():
            a(f"s_lshl_b32 {sA}, {sM}, 2")
            a(f"s_lshl_b32 {sB}, {sFT}, 1")
            a(f"s_add_u32 {sA}, {sA}, {sB}")
            a(f"s_add_u32 {sA}, {sA}, {sKH}")
            a(f"s_lshl_b32 {sA}, {sA}, 1")
            a(f"s_add_u32 {sA}, {sA}, {sTT}")
            a(f"s_lshl_b32 {sB}, {sA}, 10")
            a(f"s_lshl_b32 {sD}, {sC}, 16")
            a(f"s_add_u32 {sPA}, {sB}, {sD}")
            a(f"s_lshr_b32 {sB}, {sA}, 1")
            a(f"s_lshl_b32 {sE_}, {sTT}, 5")
            a(f"s_add_u32 {sB}, {sB}, {sE_}")
            a(f"s_lshl_b32 {sB}, {sB}, 8")
            a(f"s_lshl_b32 {sE_}, {sC}, 14")
            a(f"s_add_u32 {sB}, {sB}, {sE_}")
            a(f"s_add_u32 s72, {sB}, {WS_ST}")
            a(f"s_mul_i32 {sA}, {sM}, 7")
            a(f"s_add_u32 {sA}, {sA}, {sW}")
            a(f"s_min_u32 {sA}, {sA}, 55")
            a(f"s_lshl_b32 {sB}, {sA}, 12")
            a(f"s_mul_i32 {sD}, {sC}, {224*1024}")
            a(f"s_add_u32 {sB}, {sB}, {sD}")
            a(f"s_add_u32 {sPB}, {sB}, {WS_HID}")
        def pt_o():
            a(f"s_add_u32 {sA}, {sPA}, {WS_O}")
            a(f"buffer_load_dwordx4 {D_}, v2, {srd(SRD_WS)}, {sA} offen sc1")
        def pt_h():
            a(f"s_add_u32 {sA}, {sPA}, {WS_H}")
            a(f"buffer_load_dwordx4 {D_}, v2, {srd(SRD_WS)}, {sA} offen sc1")
        def pt_st():
            a("s_mov_b64 exec, 0xffff")
            a(f"buffer_load_dwordx4 {D_}, v2, {srd(SRD_WS)}, s72 offen sc1")
            lab = a.newlabel("L_ptf")
            a(f"s_cmp_eq_u32 {sW}, 7")
            a(f"s_cbranch_scc0 {lab}")
            a(f"s_lshl_b32 {sB}, {sC}, 8")
            for fl in (WS_FLO, WS_FLH, WS_FLHID) + ((WS_FLH1,) if X.get("ts") else ()):
                a(f"s_add_u32 {sA}, {sB}, {fl}")
                a(f"buffer_load_dwordx4 {D_}, v2, {srd(SRD_WS)}, {sA} offen sc1")
            a.label(lab)
            a("s_mov_b64 exec, -1")
        def pt_hid(p):
            def f():
                lab = a.newlabel("L_pth")
                a(f"s_cmp_eq_u32 {sW}, 7")
                a(f"s_cbranch_scc1 {lab}")
                a(f"buffer_load_dwordx4 {D_}, v2, {srd(SRD_WS)}, {sPB} offen offset:{p*1024} sc1")
                a.label(lab)
            return f
        if X.get("pt"):
            t0, stp = X["pt"], X.get("ptstep", 2)
            PM = X.get("ptm", 9)
            seq = []
            if PM & 1: seq += [pt_o, pt_h, pt_st]
            if X.get("sk"):
                def clr(q):
                    def f():
                        lab = a.newlabel("L_clr")
                        a(f"s_cmp_eq_u32 {sFast}, 0")
                        a(f"s_cbranch_scc0 {lab}")
                        if q == 0:
                            a(f"s_lshl_b32 {sA}, {sC}, 3")
                            a(f"s_add_u32 {sA}, {sA}, {sM}")
                            a(f"s_lshl_b32 {sA}, {sA}, 3")
                            a(f"s_add_u32 {sA}, {sA}, {sW}")
                            a(f"s_lshl_b32 {sA}, {sA}, 13")
                            a(f"s_add_u32 {sPB}, {sA}, {WS_P}")
                            for i in range(4): a(f"v_mov_b32 v{WOH[14]+i}, -1")
                        for i in range(2):
                            a(f"buffer_store_dwordx4 {vr(WOH[14],4)}, v2, {srd(SRD_WS)}, {sPB} offen offset:{i*1024}")
                        a(f"s_add_u32 {sPB}, {sPB}, 2048")
                        a.label(lab)
                    return f
                if not X.get('noclr'): seq += [clr(q) for q in range(4)]
            elif X.get("hclr"):
                def hcl(p):
                    def f():
                        lab = a.newlabel("L_hcl")
                        a(f"s_cmp_eq_u32 {sW}, 7")
                        a(f"s_cbranch_scc1 {lab}")
                        a(f"s_cmp_eq_u32 {sFast}, 0")
                        a(f"s_cbranch_scc0 {lab}")
                        if p == 0:
                            for i in range(4): a(f"v_mov_b32 v{WOH[14]+i}, -1")
                        a(f"buffer_store_dwordx4 {vr(WOH[14],4)}, v2, {srd(SRD_WS)}, {sPB} offen offset:{p*1024}")
                        a.label(lab)
                    return f
                if X["hclr"] == 2:
                    th = X.get("hclt", 33)
                    extras[th - 1].append(pt_addr)
                    for p in range(4): extras[th + p].append(pt_hid(p))
                seq += [hcl(p) for p in range(4)]
            elif PM & 8: seq += [pt_hid(p) for p in range(4)]
            extras[t0 - 1].append(pt_addr)
            for n, f in enumerate(seq): extras[t0 + n * stp].append(f)
            assert t0 + (len(seq) - 1) * stp < 52
        def own():
            D = "v[4:7]"
            def body(mod):
                a(f"s_lshl_b32 {sA}, {sM}, 2")
                a(f"s_lshl_b32 {sB}, {sFT}, 1")
                a(f"s_add_u32 {sA}, {sA}, {sB}")
                a(f"s_add_u32 {sA}, {sA}, {sKH}")
                a(f"s_lshl_b32 {sA}, {sA}, 1")
                a(f"s_add_u32 {sA}, {sA}, {sTT}")
                a(f"s_lshl_b32 {sB}, {sA}, 10")
                a(f"s_lshl_b32 {sD}, {sC}, 16")
                a(f"s_add_u32 {sB}, {sB}, {sD}")
                a(f"s_add_u32 {sE_}, {sB}, {WS_O}")
                a(f"buffer_store_dwordx4 {D}, v2, {srd(SRD_WS)}, {sE_} offen{mod}")
                a(f"s_add_u32 {sE_}, {sB}, {WS_H}")
                a(f"buffer_store_dwordx4 {D}, v2, {srd(SRD_WS)}, {sE_} offen{mod}")
                a(f"s_lshr_b32 {sB}, {sA}, 1")
                a(f"s_lshl_b32 {sE_}, {sTT}, 5")
                a(f"s_add_u32 {sB}, {sB}, {sE_}")
                a(f"s_lshl_b32 {sB}, {sB}, 8")
                a(f"s_lshl_b32 {sE_}, {sC}, 14")
                a(f"s_add_u32 {sB}, {sB}, {sE_}")
                a(f"s_add_u32 {sB}, {sB}, {WS_ST}")
                a("s_mov_b64 exec, 0xffff")
                a(f"buffer_store_dwordx4 {D}, v2, {srd(SRD_WS)}, {sB} offen{mod}")
                a("s_mov_b64 exec, -1")
                if X.get("ownout", 1):
                    a("v_and_b32 v59, 31, v1")
                    a("v_lshlrev_b32 v59, 10, v59")
                    a("v_lshrrev_b32 v3, 5, v1")
                    a("v_lshl_or_b32 v59, v3, 4, v59")
                    a(f"s_lshl_b32 {sB}, {sTT}, 5")
                    a(f"s_add_u32 {sB}, {sB}, {sT0}")
                    a(f"s_lshl_b32 {sB}, {sB}, 10")
                    a(f"s_lshl_b32 {sE_}, {sM}, 7")
                    a(f"s_add_u32 {sB}, {sB}, {sE_}")
                    a(f"s_lshl_b32 {sE_}, {sFT}, 6")
                    a(f"s_add_u32 {sB}, {sB}, {sE_}")
                    a(f"s_lshl_b32 {sE_}, {sKH}, 5")
                    a(f"s_add_u32 {sB}, {sB}, {sE_}")
                    a(f"buffer_store_dwordx4 {D}, v59, {srd(SRD_OUT)}, {sB} offen")
                if False:
                    a(f"s_lshl_b32 {sA}, {sC}, 19")
                    a(f"s_lshl_b32 {sB}, {sW}, 16")
                    a(f"s_add_u32 {sA}, {sA}, {sB}")
                    a(f"s_lshl_b32 {sB}, {sM}, 10")
                    a(f"s_add_u32 {sA}, {sA}, {sB}")
                    a(f"s_add_u32 {sA}, {sA}, {WS_P}")
                    for p in range(8):
                        a(f"buffer_store_dwordx4 {D}, v2, {srd(SRD_WS)}, {sA} offen{mod}")
                        a(f"s_add_u32 {sA}, {sA}, 8192")
                else:
                    a(f"s_cmp_eq_u32 {sW}, 7")
                    lab = a.newlabel("L_own7")
                    a(f"s_cbranch_scc1 {lab}")
                    a(f"s_mul_i32 {sA}, {sM}, 7")
                    a(f"s_add_u32 {sA}, {sA}, {sW}")
                    a(f"s_lshl_b32 {sB}, {sA}, 12")
                    a(f"s_mul_i32 {sD}, {sC}, {224*1024}")
                    a(f"s_add_u32 {sB}, {sB}, {sD}")
                    a(f"s_add_u32 {sB}, {sB}, {WS_HID}")
                    for p in range(4):
                        a(f"buffer_store_dwordx4 {D}, v2, {srd(SRD_WS)}, {sB} offen offset:{p*1024}{mod}")
                    a.label(lab)
            l1, l2 = a.newlabel("L_ownS"), a.newlabel("L_ownD")
            a(f"s_cmp_eq_u32 {sFast}, 0")
            a(f"s_cbranch_scc0 {l1}")
            body("")
            a(f"s_branch {l2}")
            a.label(l1)
            body(" sc1")
            a.label(l2)
        if X.get("own"): extras[X["own"]].append(own)
        for k in ("ts1", "ts2", "ts3", "ts4", "ts5", "ts6"):
            if X.get(k) is not None:
                extras[X[k]].append(lambda k=k: self.stamp(k))
        if NF3:
            extras[6].append(epoch)
            mid[22].append(lambda: a.ds(f"ds_read_b64 v[62:63], v61 offset:{BCO}", "bc"))
            extras[22].append(lambda: (a.wait_lg("bc"), bound_check()))
        else:
            extras[1].append(epoch)
            extras[0].insert(0, bound_check)
        extras[TPOLL].append(poll_issue)
        extras[TCHK - 1].append(poll_check)
        def w1load(s_):
            def f():
                a(f"buffer_load_dwordx4 {vr(W1H[s_],4)}, v2, {srd(SRD_WS)}, {sW1B} offen offset:{(s_%4)*1024} sc1")
                if s_ % 4 == 3 and not X.get("fakew"): a(f"s_add_u32 {sW1B}, {sW1B}, 4096")
            return f
        def wo_addr():
            a(f"s_lshl_b32 {sA}, {sM}, 1")
            a(f"s_add_u32 {sA}, {sA}, {sFT}")
            a(f"s_lshl_b32 {sA}, {sA}, 5")
            a(f"s_lshl_b32 {sB}, {sKH}, 4")
            a(f"s_add_u32 {sA}, {sA}, {sB}")
            a(f"s_lshl_b32 {sA}, {sA}, 10")
            a(f"s_add_u32 {sWOB}, {sA}, {WS_WOF}")
            a(f"s_lshl_b32 {sB}, {sKH}, 8")
            a(f"v_xor_b32 v57, {sB}, v2")
        extras[TCHK - 1].append(wo_addr)
        if X.get("fakew"):
            extras[TCHK - 1].append(lambda: (a(f"s_mov_b32 {sW1B}, {WS_W1F}"), a(f"s_mov_b32 {sWOB}, {WS_WOF}")))
        def woload(i):
            def f():
                a(f"buffer_load_dwordx4 {vr(WOH[i],4)}, v57, {srd(SRD_WS)}, {sWOB} offen offset:{(i%4)*1024} sc1")
                if i % 4 == 3 and i < 15 and not X.get("fakew"): a(f"s_add_u32 {sWOB}, {sWOB}, 4096")
            return f
        if X.get("spread", 1):
            seq = [woload(i) for i in range(16)] + [w1load(s_) for s_ in range(NW1PRE)]
            if X.get("w1first"): seq = seq[16:] + seq[:16]
            TEND = X.get("tend", 63)
            ntile = TEND - TLD0 + 1
            for n, f in enumerate(seq):
                mid[TLD0 + (n * ntile) // len(seq)].append(f)
            TWO = TLD0
        else:
            for s_ in range(NW1PRE):
                mid[TLD0 + s_ // 2].append(w1load(s_))
            TWO = TLD0 + NW1PRE // 2
            for i in range(16):
                mid[TWO + i // 2].append(woload(i))

        def pf_addr():
            a(f"s_lshl_b32 {sA}, {sM}, 1")
            a(f"s_add_u32 {sA}, {sA}, {sFT}")
            a(f"s_mul_i32 {sA}, {sA}, 112")
            a(f"s_and_b32 {sB}, {sW}, 3")
            a(f"s_mul_i32 {sB}, {sB}, 28")
            a(f"s_add_u32 {sA}, {sA}, {sB}")
            a(f"s_lshl_b32 {sA}, {sA}, 10")
            a(f"s_add_u32 {sPF}, {sA}, {WS_W2F}")
            a("v_lshlrev_b32 v58, 6, v1")
        def pf(i):
            def f():
                a(f"buffer_load_dword v59, v58, {srd(SRD_WS)}, {sPF} offen sc1")
                a(f"s_add_u32 {sPF}, {sPF}, 4096")
            return f
        def pf_w1():
            a(f"s_add_u32 {sPF}, {sW1B}, 2048")
            a(f"buffer_load_dword v59, v58, {srd(SRD_WS)}, {sPF} offen sc1")
            a(f"buffer_load_dword v59, v58, {srd(SRD_WS)}, {sPF} offen offset:2048 sc1")
        if X.get("pf"):
            TPF = TWO + 8
            extras[TPF - 1].append(pf_addr)
            for i in range(7): mid[TPF + i].append(pf(i))
            mid[TPF + 7].append(pf_w1)

        a.lg = []
        if not NF3: a.ds("ds_read_b64 v[62:63], v61", "bc")
        kread(0); kread(1); vread(0)
        ms(0)
        a("s_nop 11")
        for t in range(64):
            E(t, 0, 1)
            if t > 0: sm(t - 1, 1)
            if t + 1 < 64: vread(t + 1)
            E(t, 2, 5)
            if t + 1 < 64: ms(t + 1)
            if t + 2 < 64: kread(t + 2)
            if mid[t]: mid[t][0]()
            E(t, 6, 11)
            sm(t, 0)
            for f in mid[t][1:]: f()
            E(t, 12, 15)
            for f in extras[t]: f()
        a("s_nop 1")
        sm(63, 1)
        a("s_setprio 0")
        self.stamp("attn")
        a("s_nop 7")
        a("s_nop 3")
        a(f"v_rcp_f32 v3, v{O+8}")
        a(f"v_mul_f32 v80, 0, v{O}")
        a(f"v_mul_f32 v81, 0, v{O+1}")
        for i in range(2, 8, 2):
            a(f"v_fma_f32 v80, v{O+i}, 0, v80")
            a(f"v_fma_f32 v81, v{O+i+1}, 0, v81")
        a("v_add_f32 v80, v80, v81")
        a("v_cmp_u_f32 vcc, v80, v80")
        a("s_cmp_lg_u64 vcc, 0")
        a(f"s_cselect_b32 {sA}, 1, 0")
        a(f"s_or_b32 {sA}, {sA}, {sG}")
        a(f"s_cmp_eq_u32 {sA}, 0")
        a("s_cbranch_scc1 L_nofb")
        a(f"v_mov_b32 v57, {vKa}")
        a("v_mov_b32 v58, 0xff800000")
        a(f"s_mov_b32 {sCnt}, 64")
        a.label("L_fb")
        a(f"ds_read_b128 {vr(KF,4)}, v57")
        if NF3:
            a(f"s_cmp_eq_u32 {sCnt}, 19")
            a("s_cselect_b32 s4, 2, 1")
            a("s_lshl_b32 s4, s4, 11")
            a("v_add_u32 v57, s4, v57")
        else:
            a("v_add_u32 v57, 2048, v57")
        a("s_waitcnt lgkmcnt(0)")
        a(f"v_mfma_f32_32x32x16_bf16 {vr(S0,16)}, {vr(KF,4)}, {vr(Q,4)}, 0")
        for i in range(8):
            a(f"v_max3_f32 v58, v{S0+2*i}, v{S0+2*i+1}, v58")
        a(f"s_sub_u32 {sCnt}, {sCnt}, 1")
        a(f"s_cmp_lg_u32 {sCnt}, 0")
        a("s_cbranch_scc1 L_fb")
        a("v_mov_b32 v57, v58")
        a("v_permlane32_swap_b32 v57, v58")
        a("v_max_f32 v58, v57, v58")
        a(f"v_sub_f32 v{S1}, 0, v58")
        for i in range(1, 16):
            a(f"v_mov_b32 v{S1+i}, v{S1}")
        for i in range(16):
            a(f"v_mov_b32 v{O+i}, 0")
        a(f"v_mov_b32 v57, {vKa}")
        a(f"v_mov_b32 v58, {vVa}")
        a(f"s_mov_b32 {sCnt}, 64")
        a.label("L_fb2")
        a(f"ds_read_b128 {vr(KF,4)}, v57")
        a("s_mov_b64 exec, s[6:7]")
        a(f"ds_read_b128 {vr(VF,4)}, v58")
        a(f"ds_read_b128 {vr(VF+4,4)}, v58 offset:512")
        a("s_mov_b64 exec, -1")
        if NF3:
            a(f"s_cmp_eq_u32 {sCnt}, 19")
            a("s_cselect_b32 s4, 2, 1")
            a("s_lshl_b32 s4, s4, 11")
            a("v_add_u32 v57, s4, v57")
            a("v_add_u32 v58, s4, v58")
        else:
            a("v_add_u32 v57, 2048, v57")
            a("v_add_u32 v58, 2048, v58")
        a("s_waitcnt lgkmcnt(0)")
        a(f"v_mfma_f32_32x32x16_bf16 {vr(S0,16)}, {vr(KF,4)}, {vr(Q,4)}, {vr(S1,16)}")
        for i in range(16):
            a(f"v_exp_f32 v{S0+i}, v{S0+i}")
        a(f"v_smfmac_f32_32x32x32_bf16 {vr(O,16)}, {vr(VF,4)}, {vr(S0,8)}, v{IDX}")
        a(f"v_smfmac_f32_32x32x32_bf16 {vr(O,16)}, {vr(VF+4,4)}, {vr(S0+8,8)}, v{IDX}")
        a(f"s_sub_u32 {sCnt}, {sCnt}, 1")
        a(f"s_cmp_lg_u32 {sCnt}, 0")
        a("s_nop 7")
        a("s_nop 7")
        a("s_cbranch_scc1 L_fb2")
        a(f"v_rcp_f32 v3, v{O+8}")
        a.label("L_nofb")
        OP = 40
        for i in range(8):
            a(f"v_mul_f32 v{O+i}, v3, v{O+i}")
        for i in range(4):
            a(f"v_cvt_pk_bf16_f32 v{OP+i}, v{O+2*i}, v{O+2*i+1}")
        a(f"s_lshl_b32 s88, {sM}, 2")
        a(f"s_lshl_b32 {sB}, {sFT}, 1")
        a(f"s_add_u32 s88, s88, {sB}")
        a(f"s_add_u32 s88, s88, {sKH}")
        a(f"s_lshl_b32 {sB}, s88, 1")
        a(f"s_add_u32 {sB}, {sB}, {sTT}")
        a(f"s_lshl_b32 {sB}, {sB}, 10")
        a(f"s_lshl_b32 {sD}, {sC}, 16")
        a(f"s_add_u32 {sB}, {sB}, {sD}")
        a(f"s_add_u32 {sB}, {sB}, {WS_O}")
        a(f"s_lshl_b32 {sD}, {sTT}, 5")
        a(f"s_add_u32 {sD}, {sD}, s88")
        a(f"s_lshl_b32 {sD}, {sD}, 2")
        a(f"s_lshl_b32 {sE_}, {sC}, 8")
        a(f"s_add_u32 {sD}, {sD}, {sE_}")
        a(f"s_add_u32 {sD}, {sD}, {WS_FLO}")
        self.publish("o", [("dwordx4", vr(OP, 4), "v2", sB, 0)], sD)
        self.stamp("opub")

    def wt_addr(self, vT1, vT2, T=(61, 62, 63)):
        a = self.a
        LDS_E = 132 * 1024
        a(f"v_bfe_u32 v{T[0]}, v1, 2, 2")
        a(f"v_lshrrev_b32 v{T[1]}, 5, v1")
        a(f"v_lshl_add_u32 v{T[1]}, v{T[1]}, 2, v{T[0]}")
        a(f"v_lshlrev_b32 v{T[1]}, 7, v{T[1]}")
        a(f"v_bfe_u32 v{T[2]}, v1, 4, 1")
        a(f"v_lshlrev_b32 v{T[2]}, 5, v{T[2]}")
        a(f"v_and_b32 v{T[0]}, 3, v1")
        a(f"v_lshl_add_u32 v{T[2]}, v{T[0]}, 3, v{T[2]}")
        a(f"v_bfe_u32 v{T[0]}, v1, 3, 1")
        a(f"v_lshlrev_b32 v{T[0]}, 6, v{T[0]}")
        a(f"v_xor_b32 v{T[2]}, v{T[2]}, v{T[0]}")
        a(f"v_add_u32 v{T[1]}, v{T[1]}, v{T[2]}")
        a(f"s_xor_b32 {sA}, {sW}, 1")
        a(f"s_lshl_b32 {sA}, {sA}, 11")
        a(f"s_add_u32 {sA}, {sA}, {LDS_E}")
        a(f"v_add_u32 {vT1}, {sA}, v{T[1]}")
        a(f"v_xor_b32 {vT2}, 64, {vT1}")

    def wt_poll_addr(self):
        a = self.a
        L_pa7, L_pad = a.newlabel("L_pa7"), a.newlabel("L_pad")
        a(f"s_cmp_eq_u32 {sW}, 7")
        a(f"s_cbranch_scc1 {L_pa7}")
        a(f"s_mul_i32 {sA}, {sM}, 7")
        a(f"s_add_u32 {sA}, {sA}, {sW}")
        a(f"s_lshl_b32 {sW1B}, {sA}, 15")
        a(f"s_add_u32 {sW1B}, {sW1B}, {WS_W1F}")
        a(f"s_lshr_b32 {sA}, {sA}, 1")
        a(f"s_lshl_b32 {sA}, {sA}, 5")
        a(f"s_add_u32 {sA}, {sA}, 256")
        a(f"s_branch {L_pad}")
        a.label(L_pa7)
        if self.opt.get("sk"):
            a(f"s_mul_i32 {sB}, {sM}, 14")
            a(f"s_add_u32 {sA}, {sB}, {15*112}")
            a(f"s_lshl_b32 {sW1B}, {sA}, 10")
            a(f"s_add_u32 {sW1B}, {sW1B}, {WS_W2F}")
            a(f"s_min_u32 {sA}, {sB}, 80")
            a(f"s_add_u32 {sA}, {sA}, {1152 + 7*112}")
        else:
            a(f"s_lshl_b32 {sA}, {sM}, 1")
            a(f"s_add_u32 {sA}, {sA}, 1")
            a(f"s_mul_i32 {sA}, {sA}, 112")
            a(f"s_add_u32 {sA}, {sA}, 98")
            a(f"s_lshl_b32 {sW1B}, {sA}, 10")
            a(f"s_add_u32 {sW1B}, {sW1B}, {WS_W2F}")
            a(f"s_mul_i32 {sA}, {sM}, 112")
            a(f"s_add_u32 {sA}, {sA}, {1152 + 80}")
        a.label(L_pad)
        a(f"s_lshl_b32 {sB}, {sM}, 5")
        a(f"s_sub_u32 {sB}, {sB}, 32")
        a(f"v_mov_b32 v57, {sA}")
        a(f"v_mov_b32 v58, {sB}")
        a("v_cmp_gt_u32 vcc, 32, v1")
        a("v_cndmask_b32 v57, v58, v57, vcc")
        a("v_add_u32 v57, v57, v1")
        a("v_lshlrev_b32 v57, 2, v57")
        a(f"v_add_u32 v57, {WS_FLWT2}, v57")
        mm, ww = (sW, sM) if self.opt.get("sk") else (sM, sW)
        a(f"s_mul_i32 {sA}, {mm}, 112")
        a(f"s_mul_i32 {sB}, {ww}, 14")
        a(f"s_add_u32 {sA}, {sA}, {sB}")
        a(f"s_add_u32 {sA}, {sA}, 1152")
        a("v_min_u32 v58, 13, v1")
        a(f"v_add_u32 v58, {sA}, v58")
        a("v_lshlrev_b32 v58, 2, v58")
        a(f"v_add_u32 v58, {WS_FLWT2}, v58")

    def publish(self, name, stores, sflag, pre_exec=None, mid=None):
        a = self.a
        a(f"v_mov_b32 v104, s3")
        a(f"v_mov_b32 v105, 0")
        a(f"s_cmp_eq_u32 {sFast}, 0")
        a(f"s_cbranch_scc0 L_pub_slow_{name}")
        for variant, mod in (("fast", ""), ("slow", " sc1")):
            if variant == "slow": a.label(f"L_pub_slow_{name}")
            for st in stores:
                ty, data, voff, soff, io = st[:5]
                if len(st) > 5: a(f"s_mov_b32 exec_hi, 0")
                a(f"buffer_store_{ty} {data}, {voff}, {srd(SRD_WS)}, {soff} offen offset:{io}{mod}")
                if len(st) > 5: a("s_mov_b64 exec, -1")
            if mid: mid()
            a("s_waitcnt vmcnt(0)")
            a("s_mov_b64 exec, 1")
            a(f"buffer_store_dword v104, v105, {srd(SRD_WS)}, {sflag} offen{mod}")
            a("s_mov_b64 exec, -1")
            if variant == "fast": a(f"s_branch L_pub_done_{name}")
        a.label(f"L_pub_done_{name}")

    def wt_issue(self, phase=None):
        a = self.a
        LDS_E = 132 * 1024
        if phase == "go":
            a("s_mov_b32 m0, s64")
            a(f"buffer_load_dwordx4 v123, {srd(SRD_T)}, s87 offen lds")
            a("s_add_u32 m0, s64, 1024")
            a(f"buffer_load_dwordx4 v123, {srd(SRD_T)}, s73 offen lds")
            return
        Lw1, Lwo, Lgo = a.newlabel("L_wt_w1"), a.newlabel("L_wt_wo"), a.newlabel("L_wt_go")
        a(f"s_lshl_b32 {sA}, {sID}, 3")
        a(f"s_add_u32 {sA}, {sA}, {sW}")
        a(f"s_cmp_lt_u32 {sA}, 256")
        a(f"s_cbranch_scc1 {Lwo}")
        a(f"s_cmp_lt_u32 {sA}, 1152")
        a(f"s_cbranch_scc1 {Lw1}")
        a(f"s_sub_u32 {sA}, {sA}, 1152")
        a(f"s_mul_i32 {sB}, {sA}, 9363")
        a(f"s_lshr_b32 {sB}, {sB}, 20")
        a(f"s_mul_i32 {sD}, {sB}, 112")
        a(f"s_sub_u32 {sD}, {sA}, {sD}")
        for i in range(4): a(f"s_mov_b32 s{SRD_T+i}, s{SRD_W2+i}")
        a(f"s_mov_b32 {sF}, 1024")
        a(f"s_mul_i32 s88, {sB}, {2*112}")
        a(f"s_add_u32 s88, s88, {sD}")
        a("s_lshl_b32 s88, s88, 10")
        a(f"s_add_u32 s88, s88, {WS_W2F}")
        a(f"s_mov_b32 s89, {112*1024}")
        a(f"s_branch {Lgo}")
        a.label(Lw1)
        a(f"s_sub_u32 {sA}, {sA}, 256")
        a(f"s_lshr_b32 {sB}, {sA}, 5")
        a(f"s_and_b32 {sD}, {sA}, 31")
        for i in range(4): a(f"s_mov_b32 s{SRD_T+i}, s{SRD_W1+i}")
        a(f"s_mov_b32 {sF}, 3584")
        a(f"s_lshl_b32 s88, {sB}, 6")
        a(f"s_add_u32 s88, s88, {sD}")
        a("s_lshl_b32 s88, s88, 10")
        a(f"s_add_u32 s88, s88, {WS_W1F}")
        a(f"s_mov_b32 s89, {32*1024}")
        a(f"s_branch {Lgo}")
        a.label(Lwo)
        a(f"s_lshr_b32 {sB}, {sA}, 5")
        a(f"s_and_b32 {sD}, {sA}, 31")
        for i in range(4): a(f"s_mov_b32 s{SRD_T+i}, s{SRD_WO+i}")
        a(f"s_mov_b32 {sF}, 1024")
        a(f"s_lshl_b32 s88, {sB}, 6")
        a(f"s_add_u32 s88, s88, {sD}")
        a("s_lshl_b32 s88, s88, 10")
        a(f"s_add_u32 s88, s88, {WS_WOF}")
        a(f"s_mov_b32 s89, {32*1024}")
        a.label(Lgo)
        a(f"s_mul_i32 {sD}, {sD}, {sF}")
        a(f"s_lshl_b32 {sD}, {sD}, 4")
        a(f"s_lshl_b32 {sB}, {sB}, 7")
        a(f"s_add_u32 {sD}, {sD}, {sB}")
        if phase == "pre":
            a("v_lshrrev_b32 v123, 3, v1")
            a(f"v_mul_lo_u32 v123, v123, {sF}")
            a("v_and_b32 v120, 7, v1")
            a("v_bfe_u32 v121, v1, 4, 1")
            a("v_lshlrev_b32 v121, 2, v121")
            a("v_xor_b32 v120, v120, v121")
            a("v_lshl_add_u32 v123, v120, 4, v123")
            a(f"s_xor_b32 s64, {sW}, 1")
            a("s_lshl_b32 s64, s64, 11")
            a(f"s_add_u32 s64, s64, {LDS_E}")
            a(f"s_mov_b32 s87, {sD}")
            a(f"s_lshl_b32 {sB}, {sF}, 3")
            a(f"s_add_u32 s73, {sD}, {sB}")
            return
        a("v_lshrrev_b32 v16, 3, v1")
        a(f"v_mul_lo_u32 v16, v16, {sF}")
        a("v_and_b32 v17, 7, v1")
        a("v_bfe_u32 v18, v1, 4, 1")
        a("v_lshlrev_b32 v18, 2, v18")
        a("v_xor_b32 v17, v17, v18")
        a("v_lshl_add_u32 v16, v17, 4, v16")
        a(f"s_xor_b32 {sA}, {sW}, 1")
        a(f"s_lshl_b32 {sA}, {sA}, 11")
        a(f"s_add_u32 {sA}, {sA}, {LDS_E}")
        a(f"s_mov_b32 m0, {sA}")
        a(f"buffer_load_dwordx4 v16, {srd(SRD_T)}, {sD} offen lds")
        a(f"s_lshl_b32 {sB}, {sF}, 3")
        a(f"s_add_u32 {sD}, {sD}, {sB}")
        a(f"s_add_u32 {sA}, {sA}, 1024")
        a(f"s_mov_b32 m0, {sA}")
        a(f"buffer_load_dwordx4 v16, {srd(SRD_T)}, {sD} offen lds")

    def wt_process(self):
        a = self.a
        LDS_E = 132 * 1024
        a("v_bfe_u32 v106, v1, 2, 2")
        a("v_lshrrev_b32 v107, 5, v1")
        a("v_lshl_add_u32 v107, v107, 2, v106")
        a("v_lshlrev_b32 v107, 7, v107")
        a("v_bfe_u32 v108, v1, 4, 1")
        a("v_lshlrev_b32 v108, 5, v108")
        a("v_and_b32 v109, 3, v1")
        a("v_lshl_add_u32 v108, v109, 3, v108")
        a("v_bfe_u32 v109, v1, 3, 1")
        a("v_lshlrev_b32 v109, 6, v109")
        a("v_xor_b32 v108, v108, v109")
        a("v_add_u32 v107, v107, v108")
        a(f"s_xor_b32 {sA}, {sW}, 1")
        a(f"s_lshl_b32 {sA}, {sA}, 11")
        a(f"s_add_u32 {sA}, {sA}, {LDS_E}")
        a(f"v_add_u32 v107, {sA}, v107")
        a("v_xor_b32 v108, 64, v107")
        a("ds_read_b64_tr_b16 v[112:113], v107")
        a("ds_read_b64_tr_b16 v[114:115], v107 offset:1024")
        a("ds_read_b64_tr_b16 v[116:117], v108")
        a("ds_read_b64_tr_b16 v[118:119], v108 offset:1024")
        a("s_waitcnt lgkmcnt(0)")
        a(f"buffer_store_dwordx4 v[112:115], v2, {srd(SRD_WS)}, s88 offen sc1")
        a("s_add_u32 s88, s88, s89")
        a(f"buffer_store_dwordx4 v[116:119], v2, {srd(SRD_WS)}, s88 offen sc1")


    def colsum(self, homes, first):
        a = self.a
        n = 0
        a("s_mov_b32 s5, 0x3f803f80")
        for hm in homes:
            for i in range(4):
                r = "v106" if n % 2 == 0 else "v107"
                a(f"v_dot2_f32_bf16 {r}, v{hm+i}, s5, {'0' if (first and n < 2) else r}")
                n += 1

    def p3(self):
        a = self.a
        X_ = self.opt
        HB, X, ACC, BR = 4, 56, 24, 64
        LDS_OF, LDS_E2 = 0, 128 * 1024
        sS = "s88"
        a("v_and_b32 v3, 31, v1")
        a("v_lshlrev_b32 v3, 10, v3")
        a("v_lshrrev_b32 v104, 5, v1")
        a("v_lshl_or_b32 v3, v104, 3, v3")
        a(f"s_lshl_b32 {sA}, {sTT}, 5")
        a(f"s_add_u32 {sA}, {sA}, {sT0}")
        a(f"s_lshl_b32 {sA}, {sA}, 10")
        a(f"s_lshl_b32 {sB}, {sS}, 5")
        a(f"s_add_u32 {sA}, {sA}, {sB}")
        a(f"buffer_load_dwordx2 {vr(X,2)}, v3, {srd(SRD_X)}, {sA} offen")
        a(f"buffer_load_dwordx2 {vr(X+2,2)}, v3, {srd(SRD_X)}, {sA} offen offset:16")
        CSR = X_.get("csr")
        NC1 = X_.get("csn", 13)
        def csB(homes, first, nm):
            if CSR != 2:
                a(f"s_cmp_lt_u32 {sW}, 4")
                a(f"s_cbranch_scc1 L_nocs_{nm}")
            a(f"s_cmp_eq_u32 {sW}, 7")
            a(f"s_cbranch_scc1 L_nocs_{nm}")
            self.colsum(homes, first)
            a.label(f"L_nocs_{nm}")
        NCA = X_.get("csa", 0)
        if CSR == 2 and NCA:
            pass
        if CSR == 1:
            a(f"s_cmp_lt_u32 {sW}, 4")
            a("s_cbranch_scc0 L_nocsA")
            self.colsum(W1H[:NW1PRE], True)
            a.label("L_nocsA")
        BP = X_.get("bp", 0)
        if BP:
            a(f"s_cmp_eq_u32 {sW}, 7")
            a("s_cbranch_scc0 L_bp_noz")
            for i in range(4): a(f"v_mov_b32 v{208+i}, 0")
            a(f"v_mov_b32 v104, {LDS_SY}")
            a("s_mov_b64 exec, 1")
            a("ds_write_b128 v104, v[208:211]")
            a("ds_write_b128 v104, v[208:211] offset:16")
            a("s_mov_b64 exec, -1")
            a("s_waitcnt lgkmcnt(0)")
            a.label("L_bp_noz")
        a("s_barrier")
        self.stamp("b7")
        if not CSR:
            a(f"s_cmp_eq_u32 {sW}, 7")
            a("s_cbranch_scc1 L_nocs1")
            self.colsum(W1H[:NW1PRE], True)
            a.label("L_nocs1")
        a(f"s_lshl_b32 {sA}, {sTT}, 5")
        a(f"s_lshl_b32 {sB}, {sKH}, 4")
        a(f"s_add_u32 {sA}, {sA}, {sB}")
        a(f"s_lshl_b32 {sA}, {sA}, 2")
        a(f"s_lshl_b32 {sB}, {sC}, 8")
        a(f"s_add_u32 {sA}, {sA}, {sB}")
        a(f"s_add_u32 {sA}, {sA}, {WS_FLO}")
        a("v_and_b32 v3, 15, v1")
        a("v_lshlrev_b32 v3, 2, v3")
        if BP & 1:
            a(f"s_lshl_b32 s67, {sC}, 8")
            a(f"s_add_u32 s67, s67, {WS_FLO}")
            def pre_o():
                if CSR and NC1: csB(W1H[:NC1], True, "b1")
            self.bpoll("bo", "s67", 3, pre_o)
        elif CSR:
            a(f"s_mov_b32 s67, {sA}")
            a(f"buffer_load_dword v104, v3, {srd(SRD_WS)}, s67 offen sc1")
            if NC1: csB(W1H[:NC1], True, "b1")
            a(f"s_mov_b32 {sCnt}, 200000")
            a.label("L_poll_o")
            a("s_waitcnt vmcnt(0)")
            a("v_cmp_ne_u32 vcc, s3, v104")
            a("s_cbranch_vccz L_pollok_o")
            a(f"s_sub_u32 {sCnt}, {sCnt}, 1")
            a(f"s_cmp_eq_u32 {sCnt}, 0")
            a("s_cbranch_scc1 L_pollok_o")
            a("s_sleep 1")
            a(f"buffer_load_dword v104, v3, {srd(SRD_WS)}, s67 offen sc1")
            a("s_branch L_poll_o")
            a.label("L_pollok_o")
        else:
            self.poll_begin("o")
            a(f"buffer_load_dword v104, v3, {srd(SRD_WS)}, {sA} offen sc1")
            a("s_waitcnt vmcnt(0)")
            a("v_cmp_ne_u32 vcc, s3, v104")
            self.poll_end("o", sleep=1)
        self.stamp("ook")
        a(f"s_lshl_b32 {sA}, {sKH}, 4")
        a(f"s_lshl_b32 {sB}, {sFT}, 2")
        a(f"s_add_u32 {sA}, {sA}, {sB}")
        a(f"s_lshl_b32 {sA}, {sA}, 1")
        a(f"s_add_u32 {sA}, {sA}, {sTT}")
        a(f"s_lshl_b32 {sA}, {sA}, 10")
        a(f"s_lshl_b32 {sB}, {sC}, 16")
        a(f"s_add_u32 {sB}, {sB}, {sA}")
        a(f"s_add_u32 {sB}, {sB}, {WS_O}")
        for st in range(2):
            for i in range(4):
                d = (st * 8 + i) * 2048
                a(f"s_add_u32 {sD}, {sA}, {d + LDS_OF}")
                a(f"s_add_u32 {sE_}, {sB}, {d}")
                a(f"s_mov_b32 m0, {sD}")
                a(f"buffer_load_dwordx4 v2, {srd(SRD_WS)}, {sE_} offen sc1 lds")
            if st == 0 and X_.get("p3p"):
                if CSR:
                    a(f"s_mov_b32 s67, {sA}")
                    a(f"s_mov_b32 s68, {sB}")
                    csB(W1H[NC1:NW1PRE], NC1 == 0, "b2")
                    a(f"s_mov_b32 {sA}, s67")
                    a(f"s_mov_b32 {sB}, s68")
                a(f"s_waitcnt vmcnt({X_.get('p3n', 2)})")
        nrest = 32 - NW1PRE
        if CSR and not X_.get("p3p"): csB(W1H[NC1:NW1PRE], NC1 == 0, "b2")
        a(f"s_lshl_b32 {sA}, {sKH}, 15")
        a(f"s_lshl_b32 {sB}, {sTT}, 10")
        a(f"s_add_u32 {sA}, {sA}, {sB}")
        a(f"v_add_u32 v104, {sA}, v2")
        def late_loads():
            for s_ in range(NW1PRE, 32):
                a(f"buffer_load_dwordx4 {vr(W1H[s_],4)}, v2, {srd(SRD_WS)}, {sW1B} offen offset:{(s_%4)*1024} sc1")
                if s_ % 4 == 3 and s_ < 31: a(f"s_add_u32 {sW1B}, {sW1B}, 4096")
        a.lg = []
        for st in range(2):
            if st == 0: self.stamp("p3w")
            a(f"s_waitcnt vmcnt({4 if st == 0 else 0})")
            if st == 0: self.stamp("p3v")
            a("s_barrier")
            self.stamp(f"p3s{st}")
            for i in range(8):
                a.ds(f"ds_read_b128 {vr(BR+4*i,4)}, v104 offset:{(st*8+i)*2048}", f"b{st}{i}")
            if st == 1 and not X_.get("lw1"): late_loads()
            for i in range(8):
                a.wait_lg(f"b{st}{i}")
                k = st * 8 + i
                srcC = "0" if k == 0 else vr(ACC, 16)
                a(f"v_mfma_f32_32x32x16_bf16 {vr(ACC,16)}, {vr(WOH[k],4)}, {vr(BR+4*i,4)}, {srcC}")
        self.stamp("p3mm")
        a(f"s_lshl_b32 {sA}, {sW}, 11")
        a(f"s_add_u32 {sA}, {sA}, {LDS_E2}")
        a(f"v_add_u32 v104, {sA}, v2")
        a(f"ds_write_b128 v104, {vr(ACC+8,4)}")
        a(f"ds_write_b128 v104, {vr(ACC+12,4)} offset:1024")
        a("s_waitcnt lgkmcnt(0)")
        a("s_barrier")
        a("v_xor_b32 v104, 8192, v104")
        a(f"ds_read_b128 {vr(BR,4)}, v104")
        a(f"ds_read_b128 {vr(BR+4,4)}, v104 offset:1024")
        for i in range(4):
            a(f"v_lshlrev_b32 v{BR+8+2*i}, 16, v{X+i}")
            a(f"v_and_b32 v{BR+9+2*i}, 0xffff0000, v{X+i}")
        a(f"s_lshl_b32 {sA}, {sS}, 1")
        a(f"s_add_u32 {sA}, {sA}, {sTT}")
        a(f"s_lshl_b32 {sA}, {sA}, 10")
        a(f"s_lshl_b32 {sB}, {sC}, 16")
        a(f"s_add_u32 {sA}, {sA}, {sB}")
        a(f"s_add_u32 {sA}, {sA}, {WS_H}")
        a(f"s_lshl_b32 {sD}, {sTT}, 5")
        a(f"s_add_u32 {sD}, {sD}, {sS}")
        a(f"s_lshl_b32 {sD}, {sD}, 2")
        a(f"s_lshl_b32 {sE_}, {sC}, 8")
        a(f"s_add_u32 {sD}, {sD}, {sE_}")
        a(f"s_add_u32 {sD}, {sD}, {WS_FLH}")
        for i in range(8):
            a(f"v_add_f32 v{ACC+i}, v{ACC+i}, v{BR+8+i}")
        a("s_waitcnt lgkmcnt(0)")
        for i in range(8):
            a(f"v_add_f32 v{ACC+i}, v{ACC+i}, v{BR+i}")
        for i in range(4):
            a(f"v_cvt_pk_bf16_f32 v{HB+i}, v{ACC+2*i}, v{ACC+2*i+1}")
        a("s_mov_b32 s5, 0x3f803f80")
        a(f"v_dot2_f32_bf16 v56, v{HB}, s5, 0")
        a(f"v_dot2_f32_bf16 v57, v{HB}, v{HB}, 0")
        for i in range(1, 4):
            a(f"v_dot2_f32_bf16 v56, v{HB+i}, s5, v56")
            a(f"v_dot2_f32_bf16 v57, v{HB+i}, v{HB+i}, v57")
        a("v_mov_b32 v58, v56")
        a("v_mov_b32 v59, v57")
        a("v_permlane32_swap_b32 v56, v58")
        a("v_permlane32_swap_b32 v57, v59")
        a("v_add_f32 v56, v56, v58")
        a("v_add_f32 v57, v57, v59")
        a(f"s_lshl_b32 {sB}, {sTT}, 5")
        a(f"s_add_u32 {sB}, {sB}, {sS}")
        a(f"s_lshl_b32 {sB}, {sB}, 8")
        a(f"s_lshl_b32 {sE_}, {sC}, 14")
        a(f"s_add_u32 {sB}, {sB}, {sE_}")
        a(f"s_add_u32 {sB}, {sB}, {WS_ST}")
        a("v_lshlrev_b32 v3, 3, v1")
        self.publish("h", [("dwordx4", vr(HB, 4), "v2", sA, 0), ("dwordx2", "v[56:57]", "v3", sB, 0, "lo32")], sD)
        self.stamp("hpub")
        if X_.get("lw1"): late_loads()

    def w2load(self, f, i):
        a = self.a
        hm = (W2H0 if f == 0 else W2H1)[i]
        off = (f * 112 + i) * 1024
        a(f"s_add_u32 {sA}, s89, {off}")
        a(f"buffer_load_dwordx4 {vr(hm,4)}, v2, {srd(SRD_WS)}, {sA} offen sc1")

    def p4(self):
        a = self.a
        HB, ACC, BR = 4, 64, 108
        LDS_HF, LDS_ST2, LDS_CS1, LDS_B1 = 64 * 1024, 144 * 1024, 145 * 1024, 146 * 1024
        SK = self.opt.get("sk")
        STF = SK or self.opt.get("stf")
        a(f"s_mul_i32 {sA}, {sW if SK else sM}, 224")
        a(f"s_mul_i32 {sB}, {sM if SK else sW}, 14")
        a(f"s_add_u32 {sA}, {sA}, {sB}")
        a(f"s_lshl_b32 {sA}, {sA}, 10")
        a(f"s_add_u32 s89, {sA}, {WS_W2F}")
        if SK:
            a(f"s_lshl_b32 {sA}, {sM}, 7")
            a(f"s_lshl_b32 {sB}, {sFT}, 6")
            a(f"s_add_u32 {sA}, {sA}, {sB}")
            a(f"s_lshl_b32 {sB}, {sKH}, 5")
            a(f"s_add_u32 s70, {sA}, {sB}")
            a("v_lshrrev_b32 v3, 5, v1")
            a("v_lshlrev_b32 v3, 3, v3")
            a(f"buffer_load_dwordx2 v[148:149], v3, {srd(SRD_B2)}, s70 offen")
            a(f"buffer_load_dwordx2 v[150:151], v3, {srd(SRD_B2)}, s70 offen offset:16")
        for i in range(NW2E): self.w2load(0, i)
        a(f"s_cmp_eq_u32 {sW}, 7")
        a("s_cbranch_scc1 L_p4_pre7")
        if self.opt.get("lw1"): a(f"s_waitcnt vmcnt({NW2E + (2 if SK else 0)})")
        self.colsum(W1H[NW1PRE:], False)
        a("v_add_f32 v106, v106, v107")
        a("v_mov_b32 v107, v106")
        a("v_permlane32_swap_b32 v106, v107")
        a("v_add_f32 v106, v106, v107")
        a("v_and_b32 v107, 31, v1")
        a("v_lshlrev_b32 v107, 2, v107")
        a(f"s_lshl_b32 {sA}, {sW}, 7")
        a(f"s_add_u32 {sA}, {sA}, {LDS_CS1}")
        a(f"v_add_u32 v107, {sA}, v107")
        a("ds_write_b32 v107, v106")
        a("s_branch L_p4_pre")
        a.label("L_p4_pre7")
        a(f"s_mul_i32 {sA}, {sM}, 448")
        a("v_lshlrev_b32 v3, 3, v1")
        a("v_min_u32 v3, 440, v3")
        BPH = self.opt.get("bp", 0) & 2
        if BPH:
            a(f"buffer_load_dwordx2 v[216:217], v3, {srd(SRD_B1)}, {sA} offen")
        else:
            a(f"buffer_load_dwordx2 v[106:107], v3, {srd(SRD_B1)}, {sA} offen")
            a("s_waitcnt vmcnt(0)")
            a("v_lshlrev_b32 v108, 16, v106")
            a("v_and_b32 v109, 0xffff0000, v106")
            a("v_lshlrev_b32 v110, 16, v107")
            a("v_and_b32 v111, 0xffff0000, v107")
            for i in range(4): a(f"v_mul_f32 v{108+i}, 0.5, v{108+i}")
            a("v_lshlrev_b32 v3, 1, v3")
            a(f"v_add_u32 v3, {LDS_B1}, v3")
            a("ds_write_b128 v3, v[108:111]")
        STF = SK or self.opt.get("stf")
        if STF and not self.opt.get("bp"):
            for i in range(4): a(f"v_mov_b32 v{108+i}, 0")
            a(f"v_mov_b32 v3, {LDS_SY}")
            a("s_mov_b64 exec, 1")
            a("ds_write_b128 v3, v[108:111]")
            if self.opt.get("pr"): a("ds_write_b128 v3, v[108:111] offset:16")
            a("s_mov_b64 exec, -1")
        a.label("L_p4_pre")
        a(f"s_lshl_b32 {sA}, {sC}, 8")
        a(f"s_add_u32 {sA}, {sA}, {WS_FLH}")
        a("v_lshlrev_b32 v3, 2, v1")
        if self.opt.get("bp", 0) & 2:
            a(f"s_mov_b32 s67, {sA}")
            self.bpoll("bh", "s67", 4)
            a(f"s_cmp_eq_u32 {sW}, 7")
            a("s_cbranch_scc0 L_bp_nob1")
            a("v_lshlrev_b32 v212, 16, v216")
            a("v_and_b32 v213, 0xffff0000, v216")
            a("v_lshlrev_b32 v214, 16, v217")
            a("v_and_b32 v215, 0xffff0000, v217")
            for i in range(4): a(f"v_mul_f32 v{212+i}, 0.5, v{212+i}")
            a("v_lshlrev_b32 v3, 3, v1")
            a("v_min_u32 v3, 440, v3")
            a("v_lshlrev_b32 v3, 1, v3")
            a(f"v_add_u32 v3, {LDS_B1}, v3")
            a("ds_write_b128 v3, v[212:215]")
            a.label("L_bp_nob1")
        else:
            self.poll_begin("h")
            a(f"buffer_load_dword v104, v3, {srd(SRD_WS)}, {sA} offen sc1")
            a("s_waitcnt vmcnt(0)")
            a("v_cmp_ne_u32 vcc, s3, v104")
            self.poll_end("h", sleep=1)
        self.stamp("hok")
        a(f"s_lshl_b32 s67, {sW}, 11")
        a(f"s_lshl_b32 {sB}, {sC}, 16")
        a(f"s_add_u32 {sB}, {sB}, s67")
        a(f"s_add_u32 s68, {sB}, {WS_H}")
        def hdma(i):
            for tt in range(2):
                d = i * 8 * 2048 + tt * 1024
                a(f"s_add_u32 {sD}, s67, {d + LDS_HF}")
                a(f"s_add_u32 {sE_}, s68, {d}")
                a(f"s_mov_b32 m0, {sD}")
                a(f"buffer_load_dwordx4 v2, {srd(SRD_WS)}, {sE_} offen sc1 lds")
        TS = self.opt.get("ts")
        def hd1(i, tt):
            d = i * 8 * 2048 + tt * 1024
            a(f"s_add_u32 {sD}, s67, {d + LDS_HF}")
            a(f"s_add_u32 {sE_}, s68, {d}")
            a(f"s_mov_b32 m0, {sD}")
            a(f"buffer_load_dwordx4 v2, {srd(SRD_WS)}, {sE_} offen sc1 lds")
        def stats_loads():
            SL = 64
            a("v_lshlrev_b32 v3, 4, v1")
            a(f"s_lshl_b32 {sA}, {sC}, 14")
            a(f"s_add_u32 {sA}, {sA}, {WS_ST}")
            for q in range(16):
                a(f"buffer_load_dwordx4 {vr(SL+4*q,4)}, v3, {srd(SRD_WS)}, {sA} offen offset:{(q%4)*1024} sc1")
                if q % 4 == 3 and q < 15: a(f"s_add_u32 {sA}, {sA}, 4096")
        if TS:
            for i in range(4): hd1(i, 0)
            a(f"s_cmp_eq_u32 {sW}, 7")
            a("s_cbranch_scc0 L_ts_n7")
            stats_loads()
            a("s_waitcnt vmcnt(18) lgkmcnt(0)")
            a("s_branch L_ts_s0")
            a.label("L_ts_n7")
            a("s_waitcnt vmcnt(2) lgkmcnt(0)")
            a.label("L_ts_s0")
        else:
            hdma(0)
            if self.opt.get("h4p"): a(f"s_waitcnt vmcnt({self.opt['h4p'] - 1})")
            hdma(1)
        a(f"v_add_u32 v104, {LDS_HF}, v2")
        if not TS: a("s_waitcnt vmcnt(2) lgkmcnt(0)" if STF else "s_waitcnt vmcnt(2)")
        a("s_barrier")
        self.stamp("f1a")
        if TS:
            for i in range(4): hd1(i, 1)
        else:
            hdma(2); hdma(3)
        a(f"s_cmp_eq_u32 {sW}, 7")
        a("s_cbranch_scc1 L_p4_w7")
        a.lg = []
        NR = 3
        if TS: self.p4_ts(LDS_ST2, LDS_CS1)
        def hread(k):
            sl = k % NR
            a.ds(f"ds_read_b128 {vr(BR+8*sl,4)}, v104 offset:{k*2048}", f"h{k}")
            a.ds(f"ds_read_b128 {vr(BR+8*sl+4,4)}, v104 offset:{k*2048+1024}", f"h{k}")
        for k in range(NR - 1 if not TS else 0): hread(k)
        lst = [(0, i) for i in range(NW2E, 14)] + [(1, i) for i in range(14)]
        sched = {}
        for n, (f, i) in enumerate(lst):
            st = (n * 30) // len(lst) + 1
            if f == 1: st = max(st, i)
            sched.setdefault(st, []).append((f, i))
        issued = 0
        for k in range(32 if not TS else 0):
            if k == 8 - (NR - 1):
                self.stamp("s1w")
                a(f"s_waitcnt vmcnt({4 + issued})")
                a("s_barrier")
                self.stamp("s1b")
            if k == 16 - (NR - 1):
                self.stamp("s2w")
                a(f"s_waitcnt vmcnt({issued})")
                a("s_barrier")
                self.stamp("f1b")
            if STF and k == self.opt.get("skp", 24):
                lab = a.newlabel("L_skp")
                a(f"s_cmp_eq_u32 {sKH}, 0")
                a(f"s_cbranch_scc1 {lab}")
                a("s_setprio 1")
                a.label(lab)
            if k + NR - 1 < 32: hread(k + NR - 1)
            a.wait_lg(f"h{k}")
            sl = k % NR
            for tt in range(2):
                srcC = "0" if k == 0 else vr(ACC + 16 * tt, 16)
                a(f"v_mfma_f32_32x32x16_bf16 {vr(ACC+16*tt,16)}, {vr(W1H[k],4)}, {vr(BR+8*sl+4*tt,4)}, {srcC}")
            if k == 23: self.stamp("k24")
            for (f, i) in (sched.get(k, []) if not self.opt.get("now2") else []):
                self.w2load(f, i)
                issued += 1
        self.stamp("f1c")
        if STF:
            a(f"v_mov_b32 v105, {LDS_SY}")
            if not SK:
                a("v_mov_b32 v106, 1")
                a("s_mov_b64 exec, 1")
                a("ds_add_u32 v105, v106 offset:4")
                a("s_mov_b64 exec, -1")
            if not TS: self.lds_spin("st", 105, 0, 1)
        else:
            a("s_barrier")
        a.lg = []
        CS, BF = 108, 208
        a("v_and_b32 v3, 31, v1")
        a("v_lshlrev_b32 v3, 3, v3")
        a(f"v_add_u32 v3, {LDS_ST2}, v3")
        a("ds_read_b64 v[104:105], v3")
        a("ds_read_b64 v[106:107], v3 offset:256")
        a("v_lshrrev_b32 v3, 5, v1")
        a("v_lshlrev_b32 v3, 4, v3")
        a(f"s_lshl_b32 {sA}, {sW}, 7")
        a(f"s_add_u32 {sA}, {sA}, {LDS_CS1}")
        a(f"v_add_u32 v3, {sA}, v3")
        for q in range(4):
            a(f"ds_read_b128 {vr(CS+4*q,4)}, v3 offset:{32*q}")
        for q in range(4):
            a(f"ds_read_b128 {vr(BF+4*q,4)}, v3 offset:{1024 + 32*q}")
        a("s_waitcnt lgkmcnt(0)")
        self.stamp("ffn1")
        HP = 236
        for tt in ([1] if TS else range(2)):
            mu, rs = 104 + 2 * tt, 105 + 2 * tt
            A = ACC + 16 * tt
            for r in range(16): a(f"v_fma_f32 v{A+r}, -v{mu}, v{CS+r}, v{A+r}")
            for r in range(16): a(f"v_fma_f32 v{A+r}, v{A+r}, v{rs}, v{BF+r}")
            for r in range(16): a(f"v_add_f32 v{A+r}, v{A+r}, |v{A+r}|")
            for r in range(16): a(f"v_mul_f32 v{A+r}, v{A+r}, v{A+r}")
            for i in range(8): a(f"v_cvt_pk_bf16_f32 v{HP+8*tt+i}, v{A+2*i}, v{A+2*i+1}")
        if SK:
            a(f"s_lshl_b32 {sA}, {sW}, 12")
            a(f"v_add_u32 v3, {sA}, v2")
            for u in range(2):
                for tt in range(2):
                    a(f"ds_write_b128 v3, {vr(HP + 8 * tt + 4 * u, 4)} offset:{u * 2048 + tt * 1024}")
            a(f"s_lshl_b32 {sA}, {sKH}, 2")
            a(f"s_add_u32 {sA}, {sA}, {LDS_SY + 4}")
            a(f"v_mov_b32 v104, {sA}")
            a("v_mov_b32 v105, 1")
            a("s_waitcnt lgkmcnt(0)")
            a("s_mov_b64 exec, 1")
            a("ds_add_u32 v104, v105")
            a("s_mov_b64 exec, -1")
            a("s_setprio 0")
            self.stamp("hidw")
            a("s_branch L_p4_done")
        if self.opt.get("oh"):
            a(f"s_lshl_b32 {sA}, {sW}, 12")
            a(f"s_cmp_lt_u32 {sW}, 4")
            a(f"s_cselect_b32 {sB}, 0, {148*1024 - 4*4096 - 128*1024}")
            a(f"s_add_u32 {sB}, {sB}, {128*1024}")
            a(f"s_add_u32 {sA}, {sA}, {sB}")
            a(f"v_add_u32 v3, {sA}, v2")
            for u in range(2):
                for tt in range(2):
                    a(f"ds_write_b128 v3, {vr(HP + 8 * tt + 4 * u, 4)} offset:{u * 2048 + tt * 1024}")
        a(f"s_mul_i32 {sA}, {sM}, 7")
        a(f"s_add_u32 {sA}, {sA}, {sW}")
        a(f"s_lshl_b32 {sB}, {sA}, 12")
        a(f"s_mul_i32 {sD}, {sC}, {224*1024}")
        a(f"s_add_u32 {sB}, {sB}, {sD}")
        a(f"s_add_u32 {sB}, {sB}, {WS_HID}")
        a(f"s_lshl_b32 {sD}, {sA}, 2")
        a(f"s_lshl_b32 {sE_}, {sC}, 8")
        a(f"s_add_u32 {sD}, {sD}, {sE_}")
        a(f"s_add_u32 {sD}, {sD}, {WS_FLHID}")
        if TS: a(f"s_add_u32 {sD}, {sD}, {WS_FLH1 - WS_FLHID}")
        st = []
        for u in range(2):
            for tt in ([1] if TS else range(2)):
                st.append(("dwordx4", vr(HP + 8 * tt + 4 * u, 4), "v2", sB, u * 2048 + tt * 1024))
        def midB():
            lab = a.newlabel("L_midb")
            a(f"s_cmp_eq_u32 {sKH}, 0")
            a(f"s_cbranch_scc1 {lab}")
            a(f"v_mov_b32 v106, {LDS_SY}")
            a("v_mov_b32 v107, 1")
            a("s_mov_b64 exec, 1")
            a("ds_add_u32 v106, v107 offset:8")
            a("s_mov_b64 exec, -1")
            a.label(lab)
        def midO():
            a(f"v_mov_b32 v106, {LDS_SY}")
            a("v_mov_b32 v107, 1")
            a("s_waitcnt lgkmcnt(0)")
            a("s_mov_b64 exec, 1")
            a("ds_add_u32 v106, v107 offset:8")
            a("s_mov_b64 exec, -1")
        self.publish("hid", st, sD, mid=midO if self.opt.get("oh") else (midB if self.opt.get("sp5") == 2 else None))
        if STF: a("s_setprio 0")
        if self.opt.get("wbl2"):
            a(f"s_cmp_eq_u32 {sW}, 0")
            a("s_cbranch_scc0 L_nowb")
            a(f"s_cmp_lt_u32 {sID}, {self.opt['wbl2']}")
            a("s_cbranch_scc0 L_nowb")
            a("buffer_wbl2 sc1")
            a.label("L_nowb")
        a("s_branch L_p4_done")
        a.label("L_p4_w7")
        SL = 64
        if not TS: stats_loads()
        a("s_waitcnt vmcnt(20)")
        a("s_barrier")
        if TS:
            a("s_waitcnt vmcnt(4)")
        else:
            a("s_waitcnt vmcnt(16)")
            a("s_barrier")
            for i in range(NW2E, 14): self.w2load(0, i)
            a(f"s_waitcnt vmcnt({14 - NW2E})")
        for tt in range(2):
            B = SL + 32 * tt
            for q in range(1, 8):
                for c in range(4): a(f"v_add_f32 v{B+c}, v{B+c}, v{B+4*q+c}")
        R = [SL + c for c in range(4)] + [SL + 32 + c for c in range(4)]
        T = [SL + 8 + c for c in range(8)]
        for sw in ("16", "32"):
            for r, t in zip(R, T): a(f"v_mov_b32 v{t}, v{r}")
            for r, t in zip(R, T): a(f"v_permlane{sw}_swap_b32 v{r}, v{t}")
            for r, t in zip(R, T): a(f"v_add_f32 v{r}, v{r}, v{t}")
        for tt in range(2):
            for u in range(2):
                s_, q_ = SL + 32 * tt + 2 * u, SL + 32 * tt + 2 * u + 1
                a(f"v_mul_f32 v{s_}, 0x{f32bits(1/512):x}, v{s_}")
                a(f"v_mul_f32 v{q_}, 0x{f32bits(1/512):x}, v{q_}")
                a(f"v_fma_f32 v{q_}, -v{s_}, v{s_}, v{q_}")
                a(f"v_max_f32 v{q_}, 0, v{q_}")
                a(f"v_add_f32 v{q_}, 0x{f32bits(1e-5):x}, v{q_}")
                a(f"v_rsq_f32 v{q_}, v{q_}")
                a(f"v_mul_f32 v{q_}, 0.5, v{q_}")
        a("v_and_b32 v3, 15, v1")
        a("v_lshlrev_b32 v3, 4, v3")
        a(f"v_add_u32 v3, {LDS_ST2}, v3")
        a("s_mov_b64 exec, 0xffff")
        a(f"ds_write_b128 v3, {vr(SL,4)}")
        a(f"ds_write_b128 v3, {vr(SL+32,4)} offset:256")
        a("s_mov_b64 exec, -1")
        a("s_waitcnt lgkmcnt(0)")
        if STF:
            a(f"v_mov_b32 v104, {LDS_SY}")
            a("v_mov_b32 v105, 1")
            a("s_mov_b64 exec, 1")
            a("ds_write_b32 v104, v105")
            a("s_mov_b64 exec, -1")
            if TS:
                a("s_waitcnt vmcnt(0)")
                a("s_barrier")
                for i in range(NW2E, 14): self.w2load(0, i)
        else:
            a("s_barrier")
        if self.prof and "ffn1" not in self.skip:
            self.nstamp = self.stamp_names.index("ffn1")
            nm = list(self.stamp_names)
            self.stamp("ffn1")
            self.stamp_names = nm
            self.nstamp = len(nm)
        a.label("L_p4_done")

    def p4_ts(self, LDS_ST2, LDS_CS1):
        a = self.a
        X = self.opt
        ACC, BR, CG, BG = 64, 108, 120, 124
        HPK = [128, 129, 130, 131, 148, 149, 150, 151]
        NR = 3
        a(f"s_mul_i32 {sA}, {sM}, 7")
        a(f"s_add_u32 {sA}, {sA}, {sW}")
        a(f"s_lshl_b32 {sB}, {sA}, 12")
        a(f"s_mul_i32 {sD}, {sC}, {224*1024}")
        a(f"s_add_u32 {sB}, {sB}, {sD}")
        a(f"s_add_u32 s70, {sB}, {WS_HID}")
        a(f"s_lshl_b32 {sD}, {sA}, 2")
        a(f"s_lshl_b32 {sE_}, {sC}, 8")
        a(f"s_add_u32 {sD}, {sD}, {sE_}")
        a(f"s_add_u32 s71, {sD}, {WS_FLHID}")
        def rd(n):
            tt, k = n // 32, n % 32
            a.ds(f"ds_read_b128 {vr(BR+4*(n%NR),4)}, v104 offset:{k*2048 + tt*1024}", f"h{n}")
        def grd(q):
            a.ds(f"ds_read_b128 {vr(CG,4)}, v3 offset:{32*q}", f"g{q}")
            a.ds(f"ds_read_b128 {vr(BG,4)}, v3 offset:{1024 + 32*q}", f"g{q}")
        def gep(q):
            a.wait_lg(f"g{q}")
            for r in range(4): a(f"v_fma_f32 v{ACC+4*q+r}, -v106, v{CG+r}, v{ACC+4*q+r}")
            for r in range(4): a(f"v_fma_f32 v{ACC+4*q+r}, v{ACC+4*q+r}, v107, v{BG+r}")
            for r in range(4): a(f"v_add_f32 v{ACC+4*q+r}, v{ACC+4*q+r}, |v{ACC+4*q+r}|")
            for r in range(4): a(f"v_mul_f32 v{ACC+4*q+r}, v{ACC+4*q+r}, v{ACC+4*q+r}")
            for i in range(2): a(f"v_cvt_pk_bf16_f32 v{HPK[2*q+i]}, v{ACC+4*q+2*i}, v{ACC+4*q+2*i+1}")
        def fs(name, emit):
            l1, l2 = f"L_ts_slow_{name}", f"L_ts_done_{name}"
            a(f"s_cmp_eq_u32 {sFast}, 0")
            a(f"s_cbranch_scc0 {l1}")
            emit(""); a(f"s_branch {l2}")
            a.label(l1); emit(" sc1"); a.label(l2)
        for n in range(NR - 1): rd(n)
        l0 = [(0, i) for i in range(NW2E, 14)]
        sched = {}
        for j, e in enumerate(l0): sched.setdefault(1 + (j * 28) // max(len(l0), 1), []).append(e)
        for i in range(14): sched.setdefault(32 + i, []).append((1, i))
        E0 = X.get("tse", 34)
        NST = E0 + 7
        NFL = X.get("tsf", 54)
        issued = 0; young = 0
        for n in range(64):
            tt, k = n // 32, n % 32
            if n == 16 - (NR - 1):
                a(f"s_waitcnt vmcnt({4 + issued})")
                a("s_barrier")
            if n == 32 - (NR - 1):
                a(f"s_waitcnt vmcnt({issued})")
                a("s_barrier")
                self.stamp("f1b")
            if n == 32 + X.get("skp", 24):
                lab = a.newlabel("L_skp")
                a(f"s_cmp_eq_u32 {sKH}, 0")
                a(f"s_cbranch_scc1 {lab}")
                a("s_setprio 1")
                a.label(lab)
            if n + NR - 1 < 64: rd(n + NR - 1)
            a.wait_lg(f"h{n}")
            srcC = "0" if k == 0 else vr(ACC + 16 * tt, 16)
            a(f"v_mfma_f32_32x32x16_bf16 {vr(ACC+16*tt,16)}, {vr(W1H[k],4)}, {vr(BR+4*(n%NR),4)}, {srcC}")
            for (f, i) in sched.get(n, []):
                self.w2load(f, i)
                issued += 1
                if n > NST: young += 1
            if n == E0 - 1:
                a(f"v_mov_b32 v105, {LDS_SY}")
                self.lds_spin("st", 105, 0, 1)
                a("v_and_b32 v3, 31, v1")
                a("v_lshlrev_b32 v3, 3, v3")
                a(f"v_add_u32 v3, {LDS_ST2}, v3")
                a.ds("ds_read_b64 v[106:107], v3", "st0")
                a("v_lshrrev_b32 v3, 5, v1")
                a("v_lshlrev_b32 v3, 4, v3")
                a(f"s_lshl_b32 {sA}, {sW}, 7")
                a(f"s_add_u32 {sA}, {sA}, {LDS_CS1}")
                a(f"v_add_u32 v3, {sA}, v3")
                grd(0)
            if n >= E0 and (n - E0) % 2 == 1 and (n - E0) // 2 < 4:
                q = (n - E0) // 2
                gep(q)
                if q < 3: grd(q + 1)
            if n == NST:
                def st(mod):
                    a(f"buffer_store_dwordx4 v[128:131], v2, {srd(SRD_WS)}, s70 offen{mod}")
                    a(f"buffer_store_dwordx4 v[148:151], v2, {srd(SRD_WS)}, s70 offen offset:2048{mod}")
                fs("st", st)
                self.stamp("t0st")
            if n == NFL:
                a(f"s_waitcnt vmcnt({young})")
                a("v_mov_b32 v105, s3")
                a("v_mov_b32 v106, 0")
                a("s_mov_b64 exec, 1")
                fs("fl", lambda mod: a(f"buffer_store_dword v105, v106, {srd(SRD_WS)}, s71 offen{mod}"))
                a("s_mov_b64 exec, -1")
                self.stamp("t0fl")

    def bpoll(self, name, soff, word, pre=None):
        a = self.a
        SL = self.opt.get("bps", 3)
        a(f"s_cmp_eq_u32 {sW}, 7")
        a(f"s_cbranch_scc0 L_bp_oth_{name}")
        a("v_lshlrev_b32 v3, 2, v1")
        for i in range(3):
            a(f"buffer_load_dword v{208+i}, v3, {srd(SRD_WS)}, {soff} offen sc1")
            if i < 2: a(f"s_sleep {SL}")
        a(f"s_mov_b32 {sCnt}, 100000")
        a.label(f"L_bp_loop_{name}")
        for i in range(3):
            a("s_waitcnt vmcnt(2)")
            a(f"v_cmp_ne_u32 vcc, s3, v{208+i}")
            a(f"s_cbranch_vccz L_bp_ok_{name}")
            a(f"buffer_load_dword v{208+i}, v3, {srd(SRD_WS)}, {soff} offen sc1")
        a(f"s_sub_u32 {sCnt}, {sCnt}, 1")
        a(f"s_cmp_lg_u32 {sCnt}, 0")
        a(f"s_cbranch_scc1 L_bp_loop_{name}")
        a.label(f"L_bp_ok_{name}")
        a(f"v_mov_b32 v105, {LDS_SY}")
        a("v_mov_b32 v106, 1")
        a("s_mov_b64 exec, 1")
        a(f"ds_write_b32 v105, v106 offset:{4*word}")
        a("s_mov_b64 exec, -1")
        a(f"s_branch L_bp_done_{name}")
        a.label(f"L_bp_oth_{name}")
        if pre: pre()
        a(f"v_mov_b32 v105, {LDS_SY}")
        self.lds_spin(name, 105, word, 1, tmp=104)
        a.label(f"L_bp_done_{name}")

    def lds_spin(self, name, vaddr, word, val, tmp=106):
        a = self.a
        a(f"s_mov_b32 {sCnt}, 0x40000")
        a.label(f"L_spin_{name}")
        a(f"ds_read_b32 v{tmp}, v{vaddr} offset:{4*word}")
        a("s_waitcnt lgkmcnt(0)")
        a(f"v_readfirstlane_b32 {sA}, v{tmp}")
        a(f"s_cmp_eq_u32 {sA}, {val}")
        a(f"s_cbranch_scc1 L_spinok_{name}")
        a(f"s_sub_u32 {sCnt}, {sCnt}, 1")
        a(f"s_cmp_eq_u32 {sCnt}, 0")
        a(f"s_cbranch_scc1 L_spinok_{name}")
        if self.opt.get("sks", 1): a(f"s_sleep {self.opt.get('sks', 1)}")
        a(f"s_branch L_spin_{name}")
        a.label(f"L_spinok_{name}")

    def p5s(self):
        a = self.a
        X = self.opt
        HB, B2R = 4, 148
        ACCS = [[64, 208], [80, 224]]
        BQ = [96, 100, 108, 112, 116, 120, 124, 128]
        PK = [[40, 44, 48, 52], [8, 12, 16, 20]]
        SUM, UT, RD = 24, 32, 152
        D = X.get("skd", 4)
        a(f"s_lshl_b32 {sA}, {sC}, 19")
        a(f"s_add_u32 {sA}, {sA}, {WS_P}")
        a(f"s_lshl_b32 {sB}, {sW}, 16")
        a(f"s_lshl_b32 {sD}, {sM}, 10")
        a(f"s_add_u32 {sB}, {sB}, {sD}")
        a(f"s_add_u32 s71, {sA}, {sB}")
        a(f"s_lshl_b32 {sB}, {sM}, 16")
        a(f"s_lshl_b32 {sD}, {sW}, 13")
        a(f"s_add_u32 {sB}, {sB}, {sD}")
        a(f"s_add_u32 s72, {sA}, {sB}")
        a(f"v_mov_b32 v105, {LDS_SY}")
        self.lds_spin("ca", 105, 1, 4)
        self.stamp("caok")
        seq = [(i, tt) for i in range(8) for tt in range(2)] + [(i, 0) for i in range(8, 14)] + [(i, 1) for i in range(8, 14)]
        a.lg = []
        def rd(n):
            i, tt = seq[n]
            a.ds(f"ds_read_b128 {vr(BQ[n % 8],4)}, v2 offset:{i*2048 + tt*1024}", f"e{n}")
        def pack(tt, f, half):
            A = ACCS[tt][f] + 8 * half
            P = PK[tt][2 * f + half]
            for i in range(4): a(f"v_cvt_pk_bf16_f32 v{P+i}, v{A+2*i}, v{A+2*i+1}")
            for i in range(4): a(f"v_min_u32 v{P+i}, -2, v{P+i}")
        def stores(tt, name):
            def body(mod):
                for f in range(2):
                    for half in range(2):
                        p = 4 * half + 2 * f + tt
                        a(f"s_add_u32 {sA}, s71, {p * 8192}")
                        a(f"buffer_store_dwordx4 {vr(PK[tt][2*f+half],4)}, v2, {srd(SRD_WS)}, {sA} offen{mod}")
            l1, l2 = f"L_pst_slow_{name}", f"L_pst_done_{name}"
            a(f"s_cmp_eq_u32 {sFast}, 0")
            a(f"s_cbranch_scc0 {l1}")
            body("")
            a(f"s_branch {l2}")
            a.label(l1)
            body(" sc1")
            a.label(l2)
        for n in range(D): rd(n)
        seen = set()
        for n, (i, tt) in enumerate(seq):
            if n + D < len(seq):
                if seq[n + D][0] >= 8 and seq[n + D - 1][0] < 8:
                    self.lds_spin("cb", 105, 2, 3)
                    self.stamp("cbok")
                rd(n + D)
            if i not in seen:
                a(f"s_waitcnt vmcnt({13 - i})")
                seen.add(i)
            a.wait_lg(f"e{n}")
            for f in range(2):
                hm = (W2H0 if f == 0 else W2H1)[i]
                srcC = "0" if i == 0 else vr(ACCS[tt][f], 16)
                a(f"v_mfma_f32_32x32x16_bf16 {vr(ACCS[tt][f],16)}, {vr(hm,4)}, {vr(BQ[n % 8],4)}, {srcC}")
            if n in (23, 24, 25, 26):
                j = n - 23
                pack(0, j >> 1, j & 1)
            if n == 26: stores(0, "t0")
            if n == 17:
                for i_ in range(4):
                    a(f"v_lshlrev_b32 v{SUM+2*i_}, 16, v{HB+i_}")
                    a(f"v_and_b32 v{SUM+1+2*i_}, 0xffff0000, v{HB+i_}")
                    a(f"v_lshlrev_b32 v{UT+2*i_}, 16, v{B2R+i_}")
                    a(f"v_and_b32 v{UT+1+2*i_}, 0xffff0000, v{B2R+i_}")
                for i_ in range(4):
                    a(f"v_pk_add_f32 {vr(SUM+2*i_,2)}, {vr(SUM+2*i_,2)}, {vr(UT+2*i_,2)}")
            if n == 19:
                a("v_and_b32 v3, 31, v1")
                a("v_lshlrev_b32 v3, 10, v3")
                a("v_lshrrev_b32 v104, 5, v1")
                a("v_lshl_or_b32 v3, v104, 4, v3")
                a(f"s_lshl_b32 {sA}, {sTT}, 5")
                a(f"s_add_u32 {sA}, {sA}, {sT0}")
                a(f"s_lshl_b32 {sA}, {sA}, 10")
                a(f"s_add_u32 s70, {sA}, s70")
        self.stamp("ffn2")
        for f in range(2):
            for half in range(2): pack(1, f, half)
        stores(1, "t1")
        a(f"s_cmp_eq_u32 {sFast}, 0")
        a("s_cbranch_scc1 L_p5_fast")
        a(f"s_lshl_b32 {sA}, {sC}, 8")
        a(f"s_lshl_b32 {sB}, {sW}, 5")
        a(f"s_add_u32 {sB}, {sB}, {sA}")
        a(f"s_lshl_b32 {sD}, {sM}, 2")
        a(f"s_add_u32 {sB}, {sB}, {sD}")
        a(f"s_add_u32 {sB}, {sB}, {WS_FLHID}")
        a("v_mov_b32 v104, s3")
        a("v_mov_b32 v105, 0")
        a("s_waitcnt vmcnt(0)")
        a("s_mov_b64 exec, 1")
        a(f"buffer_store_dword v104, v105, {srd(SRD_WS)}, {sB} offen sc1")
        a("s_mov_b64 exec, -1")
        a(f"s_lshl_b32 {sB}, {sM}, 5")
        a(f"s_add_u32 {sA}, {sA}, {sB}")
        a(f"s_add_u32 {sA}, {sA}, {WS_FLHID}")
        a("v_min_u32 v105, 7, v1")
        a("v_lshlrev_b32 v105, 2, v105")
        self.poll_begin("pf")
        a(f"buffer_load_dword v104, v105, {srd(SRD_WS)}, {sA} offen sc1")
        a("s_waitcnt vmcnt(0)")
        a("v_cmp_ne_u32 vcc, s3, v104")
        self.poll_end("pf", sleep=1)
        a.label("L_p5_fast")
        if X.get("skw"): a("s_waitcnt vmcnt(0)")
        self.stamp("pst")
        a("s_add_u32 s73, s72, 4096")
        def ld(j):
            a(f"buffer_load_dwordx4 {vr(RD+4*j,4)}, v2, {srd(SRD_WS)}, {'s72' if j < 4 else 's73'} offen offset:{(j%4)*1024} sc1")
        def chk(j):
            R = RD + 4 * j
            a(f"v_max3_u32 v104, v{R}, v{R+1}, v{R+2}")
            a(f"v_max_u32 v104, v104, v{R+3}")
            a("v_cmp_eq_u32 vcc, -1, v104")
        def accum(j):
            R = RD + 4 * j
            for i in range(4):
                a(f"v_lshlrev_b32 v{UT+2*i}, 16, v{R+i}")
                a(f"v_and_b32 v{UT+1+2*i}, 0xffff0000, v{R+i}")
            for i in range(4):
                a(f"v_pk_add_f32 {vr(SUM+2*i,2)}, {vr(SUM+2*i,2)}, {vr(UT+2*i,2)}")
        sP = "s67"
        for j in range(8): ld(j)
        a(f"s_mov_b32 {sP}, 0xff")
        for j in range(8):
            a(f"s_waitcnt vmcnt({7 - j})")
            chk(j)
            a(f"s_cbranch_vccnz L_r1_{j}")
            accum(j)
            a(f"s_bitset0_b32 {sP}, {j}")
            a.label(f"L_r1_{j}")
        self.stamp("r1")
        a(f"s_mov_b32 {sCnt}, 100000")
        a.label("L_retry")
        a(f"s_cmp_eq_u32 {sP}, 0")
        a("s_cbranch_scc1 L_rdone")
        a(f"s_sub_u32 {sCnt}, {sCnt}, 1")
        a(f"s_cmp_eq_u32 {sCnt}, 0")
        a("s_cbranch_scc1 L_rdone")
        for j in range(8):
            a(f"s_bitcmp1_b32 {sP}, {j}")
            a(f"s_cbranch_scc0 L_r2_{j}")
            ld(j)
            a.label(f"L_r2_{j}")
        a("s_waitcnt vmcnt(0)")
        for j in range(8):
            a(f"s_bitcmp1_b32 {sP}, {j}")
            a(f"s_cbranch_scc0 L_r3_{j}")
            chk(j)
            a(f"s_cbranch_vccnz L_r3_{j}")
            accum(j)
            a(f"s_bitset0_b32 {sP}, {j}")
            a.label(f"L_r3_{j}")
        a("s_branch L_retry")
        a.label("L_rdone")
        for i in range(4):
            a(f"v_cvt_pk_bf16_f32 v{88+i}, v{SUM+2*i}, v{SUM+1+2*i}")
        a("v_permlane32_swap_b32 v88, v90")
        a("v_permlane32_swap_b32 v89, v91")
        a(f"buffer_store_dwordx4 v[88:91], v3, {srd(SRD_OUT)}, s70 offen")
        self.stamp("end")

    def p5(self):
        a = self.a
        HB, B2R = 4, 148
        ACCS = [[64, 208], [80, 224]]
        BQ = [40, 44, 48, 52, 96, 100, 108, 112, 116, 120, 124, 128, 240, 244]
        a(f"s_lshl_b32 {sA}, {sM}, 7")
        a(f"s_lshl_b32 {sB}, {sFT}, 6")
        a(f"s_add_u32 {sA}, {sA}, {sB}")
        a(f"s_lshl_b32 {sB}, {sKH}, 5")
        a(f"s_add_u32 s89, {sA}, {sB}")
        a("v_lshrrev_b32 v3, 5, v1")
        a("v_lshlrev_b32 v3, 3, v3")
        a(f"buffer_load_dwordx2 {vr(B2R,2)}, v3, {srd(SRD_B2)}, s89 offen")
        a(f"buffer_load_dwordx2 {vr(B2R+2,2)}, v3, {srd(SRD_B2)}, s89 offen offset:16")
        if self.opt.get("stf"):
            a(f"v_mov_b32 v105, {LDS_SY}")
            self.lds_spin("hf", 105, 1, 7)
        SP = self.opt.get("sp5")
        if self.opt.get("p5p"):
            lab = a.newlabel("L_p5p")
            a(f"s_cmp_eq_u32 {sKH}, 0")
            a(f"s_cbranch_scc1 {lab}")
            a(f"s_setprio {self.opt['p5p']}")
            a.label(lab)
        OH = self.opt.get("oh")
        if OH:
            a(f"s_cmp_eq_u32 {sW}, {sM}")
            a("s_cbranch_scc1 L_p5_own")
        a(f"s_mul_i32 {sA}, {sW}, 28")
        a(f"s_lshl_b32 {sB}, {sC}, 8")
        a(f"s_add_u32 {sA}, {sA}, {sB}")
        a(f"s_add_u32 {sA}, {sA}, {WS_FLHID}")
        NA = 4 if SP else 7
        if SP:
            a(f"s_add_u32 s68, {sA}, 16")
            a("v_min_u32 v107, 2, v1")
            a("v_lshlrev_b32 v107, 2, v107")
        a(f"v_min_u32 v3, {NA - 1}, v1")
        a("v_lshlrev_b32 v3, 2, v3")
        self.poll_begin("hid")
        a(f"buffer_load_dword v104, v3, {srd(SRD_WS)}, {sA} offen sc1")
        a("s_waitcnt vmcnt(0)")
        a("v_cmp_ne_u32 vcc, s3, v104")
        self.poll_end("hid", sleep=1)
        self.stamp("hidok")
        if SP == 2:
            a(f"v_mov_b32 v105, {LDS_SY}")
            self.lds_spin("bq", 105, 2, 3)
            self.stamp("bqok")
        a(f"s_mul_i32 {sA}, {sW}, {14*2048}")
        a(f"s_mul_i32 {sD}, {sC}, {224*1024}")
        a(f"s_add_u32 {sA}, {sA}, {sD}")
        a(f"s_add_u32 s67, {sA}, {WS_HID}")
        def bload(tt, i):
            a(f"s_add_u32 {sA}, s67, {i*2048 + tt*1024}")
            a(f"buffer_load_dwordx4 {vr(BQ[i],4)}, v2, {srd(SRD_WS)}, {sA} offen sc1")
        TS = self.opt.get("ts")
        if TS:
            a(f"s_mul_i32 {sB}, {sW}, 28")
            a(f"s_lshl_b32 {sD}, {sC}, 8")
            a(f"s_add_u32 {sB}, {sB}, {sD}")
            a(f"s_add_u32 s68, {sB}, {WS_FLH1}")
            for i in range(7): bload(0, i)
            a(f"buffer_load_dword v106, v3, {srd(SRD_WS)}, s68 offen sc1")
            for i in range(7, 14): bload(0, i)
        elif not SP:
            for i in range(14): bload(0, i)
        def scr_addr():
            a(f"s_lshl_b32 {sA}, {sW}, 11")
            a(f"v_add_u32 v104, {sA}, v2")
            a("v_add_u32 v105, 65536, v104")
        def wr_piece(tt, f, half):
            p = 4 * half + 2 * f + tt
            A = ACCS[tt][f] + 8 * half
            base = "v104" if p < 4 else "v105"
            off = (p % 4) * 16384
            a(f"ds_write_b128 {base}, {vr(A,4)} offset:{off}")
            a(f"ds_write_b128 {base}, {vr(A+4,4)} offset:{off+1024}")
        if SP:
            H16 = BQ + [248, 252]
            seq = [(i, 0) for i in range(8)] + [(i, 1) for i in range(8)] + [(i, 0) for i in range(8, 14)] + [(i, 1) for i in range(8, 14)]
            def eload(n):
                i, tt = seq[n]
                a(f"s_add_u32 {sA}, s67, {i*2048 + tt*1024}")
                a(f"buffer_load_dwordx4 {vr(H16[n % 16],4)}, v2, {srd(SRD_WS)}, {sA} offen sc1")
            for n in range(8): eload(n)
            a(f"buffer_load_dword v106, v107, {srd(SRD_WS)}, s68 offen sc1")
            for n in range(8, 16): eload(n)
            scr_addr()
            for n, (i, tt) in enumerate(seq):
                if n < 8: y = 16 - n
                elif n < 16: y = (15 - n) + 8 + min(n - 8, 4)
                elif n < 24: y = (23 - n) + 4
                else: y = 27 - n
                a(f"s_waitcnt vmcnt({y})")
                for f in range(2):
                    hm = (W2H0 if f == 0 else W2H1)[i]
                    srcC = "0" if i == 0 else vr(ACCS[tt][f], 16)
                    a(f"v_mfma_f32_32x32x16_bf16 {vr(ACCS[tt][f],16)}, {vr(hm,4)}, {vr(H16[n % 16],4)}, {srcC}")
                if n == 7:
                    a("s_waitcnt vmcnt(8)")
                    a(f"s_mov_b32 {sCnt}, 200000")
                    a.label("L_poll_hid2")
                    a("v_cmp_ne_u32 vcc, s3, v106")
                    a("s_cbranch_vccz L_pollok_hid2")
                    a(f"s_sub_u32 {sCnt}, {sCnt}, 1")
                    a(f"s_cmp_eq_u32 {sCnt}, 0")
                    a("s_cbranch_scc1 L_pollok_hid2")
                    a("s_sleep 1")
                    a(f"buffer_load_dword v106, v107, {srd(SRD_WS)}, s68 offen sc1")
                    a("s_waitcnt vmcnt(0)")
                    a("s_branch L_poll_hid2")
                    a.label("L_pollok_hid2")
                    self.stamp("hid2")
                    for n2 in range(16, 24): eload(n2)
                if 8 <= n < 12: eload(n + 16)
                if n in (23, 24, 25, 26):
                    j = n - 23
                    wr_piece(0, j >> 1, j & 1)
        else:
            scr_addr()
            E5 = self.opt.get("e5")
            XB = self.opt.get("xb", 10)
            WRI = [1, 3, 5, 7] if E5 else [2, 4, 6, 8]
            def e5_pre():
                for i in range(4):
                    a(f"v_lshlrev_b32 v{16+2*i}, 16, v{HB+i}")
                    a(f"v_and_b32 v{17+2*i}, 0xffff0000, v{HB+i}")
                    a(f"v_lshlrev_b32 v{24+2*i}, 16, v{B2R+i}")
                    a(f"v_and_b32 v{25+2*i}, 0xffff0000, v{B2R+i}")
                for i in range(4):
                    a(f"v_pk_add_f32 {vr(16+2*i,2)}, {vr(16+2*i,2)}, {vr(24+2*i,2)}")
                a("v_and_b32 v3, 31, v1")
                a("v_lshlrev_b32 v3, 10, v3")
                a("v_lshrrev_b32 v12, 5, v1")
                a("v_lshl_or_b32 v3, v12, 4, v3")
                a(f"s_lshl_b32 {sB}, {sW}, 14")
                a(f"v_add_u32 v106, {sB}, v2")
                a(f"s_lshl_b32 {sA}, {sTT}, 5")
                a(f"s_add_u32 {sA}, {sA}, {sT0}")
                a(f"s_lshl_b32 {sA}, {sA}, 10")
                a(f"s_add_u32 s68, {sA}, s89")
            def e5_sum(RD, nb):
                a.lg = []
                for q0 in range(0, 8, nb):
                    for q in range(q0, q0 + nb):
                        R = RD + 8 * (q - q0)
                        a.ds(f"ds_read_b128 {vr(R,4)}, v106 offset:{q*2048}", f"q{q}")
                        a.ds(f"ds_read_b128 {vr(R+4,4)}, v106 offset:{q*2048+1024}", f"q{q}")
                    for q in range(q0, q0 + nb):
                        R = RD + 8 * (q - q0)
                        a.wait_lg(f"q{q}")
                        for i in range(4):
                            a(f"v_pk_add_f32 {vr(16+2*i,2)}, {vr(16+2*i,2)}, {vr(R+2*i,2)}")
            def e5_pack(P):
                for i in range(4):
                    a(f"v_cvt_pk_bf16_f32 v{P+i}, v{16+2*i}, v{17+2*i}")
                a(f"v_permlane32_swap_b32 v{P}, v{P+2}")
                a(f"v_permlane32_swap_b32 v{P+1}, v{P+3}")
            self.e5 = (e5_pre, e5_sum, e5_pack)
            issued = 14
            done = 0
            for tt in range(2):
                for i in range(14):
                    n = tt * 14 + i
                    if TS: y = (14 - n) if n < 7 else (13 if n < 14 else 13 - i)
                    else: y = issued - n - 1
                    a(f"s_waitcnt vmcnt({y})")
                    for f in range(2):
                        hm = (W2H0 if f == 0 else W2H1)[i]
                        srcC = "0" if i == 0 else vr(ACCS[tt][f], 16)
                        a(f"v_mfma_f32_32x32x16_bf16 {vr(ACCS[tt][f],16)}, {vr(hm,4)}, {vr(BQ[i],4)}, {srcC}")
                    if tt == 0 and TS:
                        if i == 6:
                            a("s_waitcnt vmcnt(7)")
                            a(f"s_mov_b32 {sCnt}, 200000")
                            a.label("L_poll_hid2")
                            a("v_cmp_ne_u32 vcc, s3, v106")
                            a("s_cbranch_vccz L_pollok_hid2")
                            a(f"s_sub_u32 {sCnt}, {sCnt}, 1")
                            a(f"s_cmp_eq_u32 {sCnt}, 0")
                            a("s_cbranch_scc1 L_pollok_hid2")
                            a("s_sleep 1")
                            a(f"buffer_load_dword v106, v3, {srd(SRD_WS)}, s68 offen sc1")
                            a("s_waitcnt vmcnt(0)")
                            a("s_branch L_poll_hid2")
                            a.label("L_pollok_hid2")
                            self.stamp("hid2")
                            for i2 in range(7): bload(1, i2)
                        elif i > 6: bload(1, i)
                    elif tt == 0:
                        bload(1, i); issued += 1
                    if tt == 1 and i in WRI:
                        j = WRI.index(i)
                        wr_piece(0, j >> 1, j & 1)
                    if E5 and tt == 1 and i == XB:
                        a("s_waitcnt lgkmcnt(0)")
                        a("s_barrier")
                        self.stamp("xb")
                        a(f"s_cmp_eq_u32 {sTT}, 0")
                        a("s_cbranch_scc0 L_e5_skip")
                        e5_pre()
                        e5_sum(152, 4)
                        e5_pack(32)
                        a.label("L_e5_skip")
        if OH:
            a("s_branch L_p5_join")
            a.label("L_p5_own")
            a(f"v_mov_b32 v105, {LDS_SY}")
            self.lds_spin("oh", 105, 2, 7)
            a("s_waitcnt vmcnt(0)")
            scr_addr()
            a(f"v_add_u32 v106, {128*1024}, v2")
            a.lg = []
            sq = [(i, tt) for tt in range(2) for i in range(14)]
            def ord_(n):
                i, tt = sq[n]
                off = (i * 2048 if i < 8 else 20480 + (i - 8) * 2048) + tt * 1024
                a.ds(f"ds_read_b128 {vr(BQ[n % 14],4)}, v106 offset:{off}", f"o{n}")
            LA = 6
            for n in range(LA): ord_(n)
            for n, (i, tt) in enumerate(sq):
                if n + LA < 28: ord_(n + LA)
                a.wait_lg(f"o{n}")
                for f in range(2):
                    hm = (W2H0 if f == 0 else W2H1)[i]
                    srcC = "0" if i == 0 else vr(ACCS[tt][f], 16)
                    a(f"v_mfma_f32_32x32x16_bf16 {vr(ACCS[tt][f],16)}, {vr(hm,4)}, {vr(BQ[n % 14],4)}, {srcC}")
                if tt == 1 and i in (2, 4, 6, 8):
                    j = (i - 2) // 2
                    wr_piece(0, j >> 1, j & 1)
            a.label("L_p5_join")
        self.stamp("ffn2")
        for f in range(2):
            for half in range(2): wr_piece(1, f, half)
        if self.opt.get("e5"):
            e5_pre, e5_sum, e5_pack = self.e5
            a(f"s_cmp_eq_u32 {sTT}, 0")
            a("s_cbranch_scc0 L_e5_odd")
            a(f"buffer_store_dwordx4 v[32:35], v3, {srd(SRD_OUT)}, s68 offen")
            a("s_waitcnt lgkmcnt(0)")
            a("s_barrier")
            a("s_branch L_e5_done")
            a.label("L_e5_odd")
            e5_pre()
            a("s_waitcnt lgkmcnt(0)")
            a("s_barrier")
            e5_sum(152, 8)
            e5_pack(32)
            a(f"buffer_store_dwordx4 v[32:35], v3, {srd(SRD_OUT)}, s68 offen")
            a.label("L_e5_done")
            self.stamp("end")
            return
        PR = self.opt.get("pr")
        if PR:
            a(f"s_cmp_eq_u32 {sKH}, 0")
            a("s_cbranch_scc0 L_pr_skip")
            a(f"v_mov_b32 v107, {LDS_SY}")
            a("v_mov_b32 v106, 1")
            a("s_waitcnt lgkmcnt(0)")
            a("s_mov_b64 exec, 1")
            a("ds_add_u32 v107, v106 offset:20")
            a("s_mov_b64 exec, -1")
            self.lds_spin("pr", 107, 5, 4)
            a(f"s_lshl_b32 {sB}, {sW}, 14")
            a(f"v_add_u32 v106, {sB}, v2")
            a("v_add_u32 v107, 65536, v106")
            for h_, base in ((0, "v106"), (1, "v107")):
                R = 152 + 32 * h_
                for q in range(4):
                    a(f"ds_read_b128 {vr(R+8*q,4)}, {base} offset:{q*2048}")
                    a(f"ds_read_b128 {vr(R+8*q+4,4)}, {base} offset:{q*2048+1024}")
            for h_, base in ((0, "v106"), (1, "v107")):
                R = 152 + 32 * h_
                a(f"s_waitcnt lgkmcnt({8 if h_ == 0 else 2})")
                for i in range(4):
                    a(f"v_pk_add_f32 {vr(R+2*i,2)}, {vr(R+2*i,2)}, {vr(R+8+2*i,2)}")
                    a(f"v_pk_add_f32 {vr(R+16+2*i,2)}, {vr(R+16+2*i,2)}, {vr(R+24+2*i,2)}")
                for i in range(4):
                    a(f"v_pk_add_f32 {vr(R+2*i,2)}, {vr(R+2*i,2)}, {vr(R+16+2*i,2)}")
                a(f"ds_write_b128 {base}, {vr(R,4)}")
                a(f"ds_write_b128 {base}, {vr(R+4,4)} offset:1024")
            a.label("L_pr_skip")
        for i in range(4):
            a(f"v_lshlrev_b32 v{16+2*i}, 16, v{HB+i}")
            a(f"v_and_b32 v{17+2*i}, 0xffff0000, v{HB+i}")
            a(f"v_lshlrev_b32 v{24+2*i}, 16, v{B2R+i}")
            a(f"v_and_b32 v{25+2*i}, 0xffff0000, v{B2R+i}")
        for i in range(8):
            a(f"v_add_f32 v{16+i}, v{16+i}, v{24+i}")
        a("v_and_b32 v3, 31, v1")
        a("v_lshlrev_b32 v3, 10, v3")
        a("v_lshrrev_b32 v12, 5, v1")
        a("v_lshl_or_b32 v3, v12, 4, v3")
        a(f"s_lshl_b32 {sB}, {sW}, 14")
        a(f"v_add_u32 v106, {sB}, v2")
        a(f"s_lshl_b32 {sA}, {sTT}, 5")
        a(f"s_add_u32 {sA}, {sA}, {sT0}")
        a(f"s_lshl_b32 {sA}, {sA}, 10")
        a(f"s_add_u32 {sA}, {sA}, s89")
        a("s_waitcnt lgkmcnt(0)")
        a("s_barrier")
        RD = 152
        a.lg = []
        QS = [0, 4, 5, 6, 7] if PR else list(range(8))
        for q in QS:
            a.ds(f"ds_read_b128 {vr(RD+8*q,4)}, v106 offset:{q*2048}", f"q{q}")
            a.ds(f"ds_read_b128 {vr(RD+8*q+4,4)}, v106 offset:{q*2048+1024}", f"q{q}")
        for q in QS:
            a.wait_lg(f"q{q}")
            if PR:
                for i in range(4):
                    a(f"v_pk_add_f32 {vr(16+2*i,2)}, {vr(16+2*i,2)}, {vr(RD+8*q+2*i,2)}")
            else:
                for i in range(8):
                    a(f"v_add_f32 v{16+i}, v{16+i}, v{RD+8*q+i}")
        for i in range(4):
            a(f"v_cvt_pk_bf16_f32 v{88+i}, v{16+2*i}, v{17+2*i}")
        a("v_permlane32_swap_b32 v88, v90")
        a("v_permlane32_swap_b32 v89, v91")
        om = {0: "", 1: " sc1", 2: " nt", 3: " sc0 sc1"}[self.opt.get("outmod", 0)]
        a(f"buffer_store_dwordx4 v[88:91], v3, {srd(SRD_OUT)}, {sA} offen{om}")
        self.stamp("end")

    def kv_flag(self):
        a = self.a
        a(f"s_add_u32 {sD}, {sTag}, 1")
        a(f"s_lshl_b32 {sA}, {sG}, 4")
        nf = self.opt.get("nf", 1)
        a(f"s_add_u32 {sA}, {sA}, {WS_FLKV2 if nf else WS_FLKV}")
        a(f"v_mov_b32 v8, {sD}")
        a("v_mov_b32 v9, s3")
        if nf:
            a("v_lshlrev_b32 v10, 12, v1")
            a("s_mov_b64 exec, %s" % ("1" if self.opt.get("norep") else "0xff"))
        else:
            a("v_mov_b32 v10, 0")
            a("s_mov_b64 exec, 1")
        a(f"s_cmp_eq_u32 {sW}, 1")
        a("s_cbranch_scc1 L_flagv")
        a(f"buffer_store_dwordx2 v[8:9], v10, {srd(SRD_WS)}, {sA} offen sc1")
        a("s_branch L_flagd")
        a.label("L_flagv")
        a(f"buffer_store_dword v8, v10, {srd(SRD_WS)}, {sA} offen offset:8 sc1")
        a.label("L_flagd")
        a("s_mov_b64 exec, -1")

    def wave_reduce(self, regs, op, tmps):
        a = self.a
        for n in (8, 4, 2, 1):
            for r in regs:
                a(f"v_{op}_f32_dpp {r}, {r}, {r} row_ror:{n} row_mask:0xf bank_mask:0xf")
        for sw in ("16", "32"):
            for r, t in zip(regs, tmps):
                a(f"v_mov_b32 {t}, {r}")
            for r, t in zip(regs, tmps):
                a(f"v_permlane{sw}_swap_b32 {r}, {t}")
            for r, t in zip(regs, tmps):
                a(f"v_{op}_f32 {r}, {r}, {t}")

    def finish(self):
        a = self.a
        a.label("L_end")
        a("s_endpgm")

    def dump_regs(self, base, regs, off):
        a = self.a
        n = len(regs)
        a(f"s_lshl_b32 {sA}, {sID}, 3")
        a(f"s_add_u32 {sA}, {sA}, {sW}")
        a(f"s_mul_i32 {sA}, {sA}, {n*256}")
        a(f"s_add_u32 {sA}, {sA}, {off}")
        a("v_lshlrev_b32 v3, 2, v1")
        for i, r in enumerate(regs):
            a(f"buffer_store_dword v{r}, v3, {srd(SRD_WS)}, {sA} offen offset:{i*256}")
        a("s_waitcnt vmcnt(0)")

    def build(self):
        self.prologue()
        self.p1()
        if self.stop == "p1":
            self.dump_regs(0, list(range(32, 48)), WS_DBG)
            self.a("s_waitcnt vmcnt(0)")
            self.finish(); return self.text()
        self.p2()
        if self.stop in ("q", "attn"):
            self.a("s_waitcnt vmcnt(0)")
            self.dump_stamps()
            self.finish(); return self.text()
        for nm, fn in (("h", self.p3), ("hid", self.p4), ("out", self.p5s if self.opt.get("sk") else self.p5)):
            fn()
            if self.stop == nm: break
        if self.opt.get("dirtyend"):
            a = self.a
            n = self.opt["dirtyend"]
            a(f"s_lshl_b32 {sA}, {sID}, 3")
            a(f"s_add_u32 {sA}, {sA}, {sW}")
            a(f"s_mul_i32 {sA}, {sA}, {n*1024}")
            a(f"s_add_u32 {sA}, {sA}, {WS_DBG}")
            for i in range(n):
                a(f"buffer_store_dwordx4 v[4:7], v2, {srd(SRD_WS)}, {sA} offen")
                a(f"s_add_u32 {sA}, {sA}, 1024")
        if not (self.opt.get("noew") and not self.prof): self.a("s_waitcnt vmcnt(0)")
        self.dump_stamps()
        self.finish()
        return self.text()

    def text(self):
        lines, n = hazard_pass_all(self.a.lines)
        head = f"""; @launch grid=(256,1,1) block=(512,1,1) lds=163840
.amdgcn_target "amdgcn-amd-amdhsa--gfx950"
.text
.globl {KNAME}
.p2align 8
.type {KNAME},@function
{KNAME}:
"""
        tail = f""".section .rodata,"a"
.p2align 6
.amdhsa_kernel {KNAME}
  .amdhsa_next_free_vgpr 256
  .amdhsa_next_free_sgpr 102
  .amdhsa_accum_offset 256
  .amdhsa_group_segment_fixed_size 0
  .amdhsa_kernarg_size 104
  .amdhsa_user_sgpr_count 2
  .amdhsa_user_sgpr_kernarg_segment_ptr 1
  .amdhsa_system_sgpr_workgroup_id_x 1
.end_amdhsa_kernel
"""
        return head + "\n".join(lines) + "\n" + tail

if __name__ == "__main__":
    import argparse
    ap = argparse.ArgumentParser()
    ap.add_argument("--stop", default=None)
    ap.add_argument("-o", default="k.s")
    ap.add_argument("--prof", action="store_true")
    ap.add_argument("--opt", nargs="*", default=[])
    ap.add_argument("--skip", nargs="*", default=["args", "b1", "f1a", "f1b", "f1c"])
    args = ap.parse_args()
    opt = dict((kv.split("=")[0], int(kv.split("=")[1])) for kv in args.opt)
    g = Gen(stop=args.stop, prof=args.prof, opt=opt, skip=args.skip)
    open(args.o, "w").write(g.build())
    print("wrote", args.o, "stamps:", getattr(g, "stamp_names", None))
```

```python
import sys
sys.path.insert(0, "work")
from asmlib import Asm, hazard_pass_all

NAME = "sequential_preLN__grouped_kv_mqa__dense_activation_squared_relu__prompt"
KNAME = NAME + "_kernel"

WS_EPOCH = 0x0
WS_FLKV  = 0x1000
WS_FLWT  = 0x3000
WS_FLO   = 0x4000
WS_FLH   = 0x6000
WS_FLHID = 0x8000
WS_FLWT2 = 0xA000
WS_KV    = 0x10000
WS_ST    = 0x60000
WS_FLKV2 = 0xE0000
WS_STLL  = 0xE8000
LDS_KF   = 96 * 1024 - 16
LDS_ST   = 158 * 1024
LDS_FG   = 92 * 1024
WS_KVL   = 0x1400000
WS_FLL   = 0x1440000
WS_STL   = 0x1448000
WS_O     = 0x100000
WS_H     = 0x300000
WS_HID   = 0x500000
WS_WOF   = 0xC00000
WS_W1F   = 0xC80000
WS_W2F   = 0xE40000
WS_DBG   = 0x1000000
WS_PROF  = 0x1800000
WS_SIZE  = 0x2000000
WS_P     = 0x2000000
WS_SIZE_SK = 0x3000000
WS_FLH1  = 0x1450000
LDS_SY   = 147 * 1024

SRD_X, SRD_WQ, SRD_WK, SRD_WV = 8, 12, 16, 20
SRD_WO, SRD_W1, SRD_W2, SRD_B1 = 24, 28, 32, 36
SRD_B2, SRD_OUT, SRD_WS, SRD_T = 40, 44, 48, 52
def srd(b): return f"s[{b}:{b+3}]"
sW, sM, sC, sT0, sTag, sFast = "s56", "s57", "s58", "s59", "s60", "s61"
sFT, sTT, sKH, sXCC = "s62", "s63", "s90", "s91"
sID = "s2"
sA, sB, sD, sE_, sF, sG = "s92", "s93", "s94", "s95", "s96", "s97"
sCnt, sPh = "s98", "s99"
sW1B = "s65"
sWOB = "s66"
sPF = "s69"
NW1PRE = 26
W1H = [152 + 4 * k for k in range(26)] + [40, 44, 48, 52, 96, 100]
WOH = [8, 12, 16, 20, 60] + [108 + 4 * k for k in range(11)]
import os
NW2E = int(os.environ.get("NW2E", 7))
W2H0 = [8, 12, 16, 20, 24, 28, 32, 36, 56, 60, 132, 136, 140, 144]
W2H1 = W1H[:14]
sX64 = "s[4:5]"; sY64 = "s[6:7]"

LOG2E = 1.4426950408889634
def f32bits(x):
    import struct
    return struct.unpack("<I", struct.pack("<f", x))[0]
def vr(b, n): return f"v[{b}:{b+n-1}]"

class Gen:
    def __init__(self, stop=None, prof=False, opt=None, skip=()):
        self.skip = set(skip)
        self.cs4_pend = None
        self.a = Asm()
        self.stop = stop
        self.prof = prof
        self.opt = opt or {}
        self.nstamp = 0

    def stamp(self, name):
        if not self.prof: return
        if name in self.skip:
            self.skipped_last = True
            return
        self.skipped_last = False
        i = self.nstamp; self.nstamp += 1
        assert i < 14
        self.stamp_names = getattr(self, "stamp_names", []) + [name]
        a = self.a
        a(f"s_memtime s[4:5]")
        a("s_waitcnt lgkmcnt(0)")
        a("s_sub_u32 s4, s4, s100")
        a(f"v_writelane_b32 v0, s4, {i}")

    def dump_stamps(self):
        if not self.prof: return
        a = self.a
        a("s_memrealtime s[4:5]")
        a("s_waitcnt lgkmcnt(0)")
        a("s_sub_u32 s4, s4, s101")
        a("v_writelane_b32 v0, s4, 15")
        a("v_writelane_b32 v0, s101, 14")
        a(f"s_lshl_b32 {sA}, {sID}, 3")
        a(f"s_add_u32 {sA}, {sA}, {sW}")
        a(f"s_lshl_b32 {sA}, {sA}, 6")
        a(f"s_add_u32 {sA}, {sA}, {WS_PROF}")
        a("v_lshlrev_b32 v3, 2, v1")
        a("s_mov_b64 exec, 0xffff")
        a(f"buffer_store_dword v0, v3, {srd(SRD_WS)}, {sA} offen")
        a(f"s_lshl_b32 {sA}, {sID}, 3")
        a(f"s_add_u32 {sA}, {sA}, {sW}")
        a(f"s_cmp_lg_u32 {sA}, {self.opt.get('profw', 0)}")
        a("s_cbranch_scc1 L_nodbgst")
        a("s_load_dwordx2 s[52:53], s[0:1], 88")
        a("s_waitcnt lgkmcnt(0)")
        a("s_mov_b32 s54, 256")
        a("s_mov_b32 s55, 0x20000")
        a("buffer_store_dword v0, v3, s[52:55], 0 offen")
        a.label("L_nodbgst")
        a("s_mov_b64 exec, -1")
        a("s_waitcnt vmcnt(0)")

    def prologue(self):
        a = self.a
        a(f"s_cmp_ge_u32 {sID}, 256")
        a("s_cbranch_scc1 L_end")
        if self.prof:
            a("s_memtime s[100:101]")
            a("s_memrealtime s[6:7]")
        a("s_load_dwordx16 s[64:79], s[0:1], 0")
        a("s_load_dwordx8 s[80:87], s[0:1], 64")
        a("s_load_dwordx2 s[88:89], s[0:1], 96")
        a(f"s_and_b32 {sA}, {sID}, 7")
        a(f"s_lshr_b32 {sB}, {sID}, 6")
        a(f"s_lshl_b32 {sB}, {sB}, 3")
        a(f"s_add_u32 {sC}, {sA}, {sB}")
        a(f"s_lshr_b32 {sM}, {sID}, 3")
        a(f"s_and_b32 {sM}, {sM}, 7")
        if self.opt.get("xmap"):
            a(f"s_lshr_b32 {sC}, {sID}, 3")
            a(f"s_and_b32 {sM}, {sID}, 7")
        a(f"s_lshl_b32 {sT0}, {sC}, 6")
        a(f"s_getreg_b32 {sXCC}, hwreg(HW_REG_XCC_ID)")
        a(f"s_and_b32 {sXCC}, {sXCC}, 7")
        a("v_lshrrev_b32 v3, 6, v0")
        a("v_and_b32 v1, 63, v0")
        a(f"v_readfirstlane_b32 {sW}, v3")
        a("v_lshlrev_b32 v2, 4, v1")
        a(f"s_lshr_b32 {sKH}, {sW}, 2")
        a(f"s_lshr_b32 {sFT}, {sW}, 1")
        a(f"s_and_b32 {sFT}, {sFT}, 1")
        a(f"s_and_b32 {sTT}, {sW}, 1")
        a("s_waitcnt lgkmcnt(0)")
        if self.prof:
            a("v_mov_b32 v0, 0")
            a("s_mov_b32 s101, s6")
        self.stamp("args")
        def mk(b, lo, size):
            a(f"s_mov_b32 s{b}, s{lo}")
            a(f"s_mov_b32 s{b+1}, s{lo+1}")
            a(f"s_mov_b32 s{b+2}, 0x{size:x}")
            a(f"s_mov_b32 s{b+3}, 0x20000")
        mk(SRD_X, 64, 0x200000)
        mk(SRD_WS, 88, WS_SIZE_SK if self.opt.get('sk') else WS_SIZE)
        a(f"s_load_dword {sTag}, s[88:89], {WS_EPOCH}")
        if self.opt.get("cw"):
            a(f"s_lshr_b32 {sA}, {sID}, 3")
            a(f"s_lshl_b32 {sA}, {sA}, 3")
            a(f"s_add_u32 {sA}, {sA}, {sW}")
            a(f"s_lshl_b32 {sA}, {sA}, 7")
            a(f"s_min_u32 {sA}, {sA}, L_end-L_cwpc-4")
            a("s_getpc_b64 s[4:5]")
            a.label("L_cwpc")
            a(f"s_add_u32 s4, s4, {sA}")
            a("s_addc_u32 s5, s5, 0")
            a("s_load_dword s99, s[4:5], 0")
        mk(SRD_WK, 68, 0x4000)
        mk(SRD_WV, 70, 0x4000)
        mk(SRD_WQ, 66, 0x80000)
        self.mk = mk

    def rest_srds(self):
        mk = self.mk
        mk(SRD_WO, 72, 0x80000)
        mk(SRD_W1, 76, 0x1C0000)
        mk(SRD_B1, 78, 3584)
        mk(SRD_W2, 80, 0x1C0000)
        mk(SRD_B2, 82, 1024)
        mk(SRD_OUT, 84, 0x200000)

    def dma(self, voff, srdb, soff, m0, tag, extra=""):
        a = self.a
        a(f"s_mov_b32 m0, {m0}")
        a.vmem(f"buffer_load_dwordx4 {voff}, {srd(srdb)}, {soff} offen {extra} lds", tag)

    def p1(self):
        a = self.a
        X = self.opt
        ROW = 4
        vXa, vKVo, vWAo, vXt = "v16", "v18", "v19", "v17"
        LDS_WK = 64 * 1024
        LDS_WV = 80 * 1024
        LDS_WA = 96 * 1024
        sG1 = "s67"
        a(f"s_lshl_b32 {sA}, {sM}, 3")
        a(f"s_add_u32 {sA}, {sA}, {sT0}")
        a(f"s_add_u32 {sB}, {sA}, {sW}")
        a(f"s_lshl_b32 {sB}, {sB}, 10")
        if X.get("tk"):
            a(f"s_lshr_b32 {sD}, {sID}, 3")
            a(f"s_lshl_b32 {sD}, {sD}, 9")
            a("v_lshlrev_b32 v62, 7, v1")
            a("s_mov_b64 exec, 0xf")
            a(f"s_cmp_eq_u32 {sW}, 0")
            a("s_cbranch_scc0 L_tk1")
            a(f"buffer_load_dword v61, v62, {srd(SRD_WK)}, {sD} offen")
            a.label("L_tk1")
            a(f"s_cmp_eq_u32 {sW}, 1")
            a("s_cbranch_scc0 L_tk2")
            a(f"buffer_load_dword v61, v62, {srd(SRD_WV)}, {sD} offen")
            a.label("L_tk2")
            a("s_mov_b64 exec, -1")
        a(f"buffer_load_dwordx4 {vr(ROW,4)}, v2, {srd(SRD_X)}, {sB} offen")
        a("v_lshrrev_b32 v8, 3, v1")
        a("v_and_b32 v9, 7, v1")
        a("v_lshrrev_b32 v10, 1, v8")
        a("v_xor_b32 v10, v10, v9")
        a(f"s_and_b32 {sB}, {sM}, 1")
        a(f"s_lshl_b32 {sB}, {sB}, 2")
        a(f"v_xor_b32 v10, {sB}, v10")
        a("v_lshlrev_b32 v10, 4, v10")
        a(f"v_lshl_add_u32 {vXa}, v8, 10, v10")
        def xa_dma(gs, cs, voff):
            a(f"s_lshl_b32 {sD}, {gs}, 13")
            a(f"s_lshl_b32 {sE_}, {cs}, 7")
            a(f"s_add_u32 {sD}, {sD}, {sE_}")
            a(f"s_add_u32 {sD}, {sD}, s68")
            a(f"s_lshl_b32 {sE_}, {cs}, 13")
            a(f"s_lshl_b32 {sF}, {gs}, 10")
            a(f"s_add_u32 m0, {sE_}, {sF}")
            a(f"buffer_load_dwordx4 {voff}, {srd(SRD_X)}, {sD} offen lds")
        self.xa_dma = xa_dma
        a(f"s_lshl_b32 s68, {sT0}, 10")
        xa_dma(sM, sW, vXa)
        a("v_lshrrev_b32 v8, 1, v1")
        a("v_and_b32 v9, 0x13, v8")
        a("v_bfe_u32 v10, v8, 2, 1")
        a("v_lshl_or_b32 v9, v10, 3, v9")
        a("v_bfe_u32 v10, v8, 3, 1")
        a("v_lshl_or_b32 v9, v10, 2, v9")
        a("v_lshlrev_b32 v9, 5, v9")
        a("v_and_b32 v10, 1, v1")
        a(f"v_lshl_or_b32 {vKVo}, v10, 4, v9")
        a(f"s_lshl_b32 {sD}, {sW}, 11")
        for k in range(2):
            a(f"s_add_u32 m0, {sD}, {LDS_WK}")
            a(f"buffer_load_dwordx4 {vKVo}, {srd(SRD_WK)}, {sD} offen lds")
            a(f"s_add_u32 m0, {sD}, {LDS_WV}")
            a(f"buffer_load_dwordx4 {vKVo}, {srd(SRD_WV)}, {sD} offen lds")
            if k == 0: a(f"s_add_u32 {sD}, {sD}, 1024")
        TQ = X.get("tq", 0)
        def touch_q():
            a(f"s_lshr_b32 {sA}, {sID}, 6")
            a(f"s_lshl_b32 {sA}, {sA}, 3")
            a(f"s_add_u32 {sA}, {sA}, {sW}")
            a(f"s_lshl_b32 {sA}, {sA}, 14")
            a(f"s_lshl_b32 {sB}, {sM}, 7")
            a(f"s_add_u32 {sA}, {sA}, {sB}")
            a("v_lshlrev_b32 v62, 10, v1")
            a("s_mov_b64 exec, 0xffff")
            a(f"buffer_load_dword v63, v62, {srd(SRD_WQ)}, {sA} offen")
            a("s_mov_b64 exec, -1")
        if TQ == 1: touch_q()
        NF3 = X.get("nf", 1) == 3
        NTL = 1 if (NF3 and X.get("tl", 2) == 1) else 0
        if NF3 and X.get("tl", 2):
            a(f"s_lshl_b32 {sA}, {sC}, 3")
            a(f"s_add_u32 {sA}, {sA}, {sM}")
            a(f"s_lshl_b32 {sB}, {sA}, 10")
            a(f"s_lshl_b32 {sD}, {sW}, 7")
            a(f"s_add_u32 {sB}, {sB}, {sD}")
            a(f"s_add_u32 {sB}, {sB}, {WS_KVL}")
            a(f"s_lshl_b32 {sD}, {sA}, 7")
            a(f"s_add_u32 {sD}, {sD}, {WS_STL}")
            a(f"s_cmp_lt_u32 {sW}, 4")
            a(f"s_cselect_b32 {sB}, {sB}, {sD}")
            a(f"s_and_b32 {sD}, {sID}, 7")
            a(f"s_lshl_b32 {sD}, {sD}, 9")
            a(f"s_lshr_b32 {sE_}, {sID}, 6")
            a(f"s_lshl_b32 {sE_}, {sE_}, 3")
            a(f"s_add_u32 {sE_}, {sE_}, {sM}")
            a(f"s_lshl_b32 {sE_}, {sE_}, 4")
            a(f"s_add_u32 {sD}, {sD}, {sE_}")
            a(f"s_add_u32 {sD}, {sD}, {WS_FLL}")
            a(f"s_cmp_eq_u32 {sW}, 4")
            a(f"s_cselect_b32 {sB}, {sD}, {sB}")
            if NTL:
                a("v_mov_b32 v62, 0")
                a("s_mov_b64 exec, 1")
                a(f"buffer_load_dword v61, v62, {srd(SRD_WS)}, {sB} offen sc1")
                a("s_mov_b64 exec, -1")
            else:
                a(f"s_load_dword s75, s[88:89], {sB}")
        if X.get("kvt"):
            a(f"s_lshl_b32 {sA}, {sC}, 3")
            a(f"s_add_u32 {sA}, {sA}, {sM}")
            a(f"s_cmp_eq_u32 {sW}, 2")
            a("s_cbranch_scc0 L_kvt1")
            a(f"s_lshl_b32 {sB}, {sA}, 10")
            a(f"s_add_u32 {sB}, {sB}, {WS_KV}")
            a(f"buffer_load_dwordx4 v[24:27], v2, {srd(SRD_WS)}, {sB} offen sc1")
            a.label("L_kvt1")
            a(f"s_cmp_eq_u32 {sW}, 3")
            a("s_cbranch_scc0 L_kvt2")
            a(f"s_lshl_b32 {sB}, {sA}, 4")
            a(f"s_add_u32 {sB}, {sB}, {WS_FLKV}")
            a("v_mov_b32 v24, 0")
            a(f"buffer_load_dword v25, v24, {srd(SRD_WS)}, {sB} offen sc1")
            a.label("L_kvt2")
        a("v_lshrrev_b32 v8, 3, v1")
        a("v_and_b32 v9, 7, v1")
        a("v_bfe_u32 v10, v1, 4, 1")
        a("v_lshlrev_b32 v10, 2, v10")
        a("v_xor_b32 v9, v9, v10")
        a("v_lshlrev_b32 v9, 4, v9")
        a(f"v_lshl_add_u32 {vWAo}, v8, 10, v9")
        a(f"s_add_u32 {sG1}, {sM}, 1")
        a(f"s_and_b32 {sG1}, {sG1}, 7")
        NBULK = 20
        def bulk():
            a(f"s_sub_u32 {sA}, {sW}, 2")
            a(f"s_add_u32 {sB}, {sA}, 2")
            for i in range(9):
                a(f"s_lshr_b32 s4, {sB}, 3")
                a(f"s_add_u32 s4, s4, 1")
                a(f"s_and_b32 s5, s4, 1")
                a(f"s_lshl_b32 s5, s5, 6")
                a(f"v_xor_b32 {vXt}, s5, {vXa}")
                a(f"s_add_u32 s4, s4, {sM}")
                a(f"s_and_b32 s4, s4, 7")
                a(f"s_and_b32 s5, {sB}, 7")
                xa_dma("s4", "s5", vXt)
                if i < 8: a(f"s_add_u32 {sB}, {sB}, 6")
            if X.get("cs4"):
                a(f"s_cmp_eq_u32 {sKH}, 0")
                a("s_cbranch_scc1 L_blk_done")
                a(f"s_and_b32 {sA}, {sW}, 3")
                a(f"s_lshl_b32 {sD}, {sA}, 13")
                a(f"s_lshl_b32 {sE_}, {sM}, 7")
                a(f"s_add_u32 {sD}, {sD}, {sE_}")
                a(f"s_lshl_b32 {sE_}, {sA}, 10")
                a(f"s_add_u32 {sE_}, {sE_}, {LDS_WA}")
                a(f"v_add_u32 v217, {sE_}, v2")
                D = X.get("csd", 8)
                a.lg = []
                for i in range(16):
                    a(f"s_mov_b32 m0, {sE_}")
                    a(f"buffer_load_dwordx4 {vWAo}, {srd(SRD_WQ)}, {sD} offen lds")
                    if i < 15:
                        a(f"s_add_u32 {sD}, {sD}, {4*8192}")
                        a(f"s_add_u32 {sE_}, {sE_}, {4*1024}")
                    if i >= D: self.cs4_one(i - D, D)
                self.cs4_flush()
                a.label("L_blk_done")
                return
            a(f"s_lshl_b32 {sD}, {sA}, 13")
            a(f"s_lshl_b32 {sE_}, {sM}, 7")
            a(f"s_add_u32 {sD}, {sD}, {sE_}")
            a(f"s_lshl_b32 {sE_}, {sA}, 10")
            a(f"s_add_u32 {sE_}, {sE_}, {LDS_WA}")
            for i in range(11):
                if i == 10:
                    a(f"s_cmp_ge_u32 {sA}, 4")
                    a("s_cbranch_scc1 L_blk_done")
                a(f"s_mov_b32 m0, {sE_}")
                a(f"buffer_load_dwordx4 {vWAo}, {srd(SRD_WQ)}, {sD} offen lds")
                if i < 10:
                    a(f"s_add_u32 {sD}, {sD}, {6*8192}")
                    a(f"s_add_u32 {sE_}, {sE_}, {6*1024}")
            a.label("L_blk_done")
        early = X.get("bulk", 0) == 1
        if early:
            a("s_barrier")
            a(f"s_cmp_lt_u32 {sW}, 2")
            a("s_cbranch_scc1 L_nobulk0")
            bulk()
            a.label("L_nobulk0")
        self.rest_srds()
        XF, WF = (128, 192) if NF3 else (64, 128)
        if NF3: self.early_setup()
        a(f"s_cmp_ge_u32 {sW}, 2")
        a("s_cbranch_scc1 L_no_ones")
        for i in range(64):
            a(f"v_mov_b32 v{XF+i}, 0x3f803f80" if i == 0 else f"v_mov_b32 v{XF+i}, v{XF}")
        a.label("L_no_ones")
        if early:
            a(f"s_cmp_lt_u32 {sW}, 2")
            a("s_cbranch_scc1 L_rw0")
            a("s_waitcnt vmcnt(24)")
            a("s_branch L_rw1")
            a.label("L_rw0")
            a("s_waitcnt vmcnt(5)")
            a.label("L_rw1")
        else:
            a(f"s_waitcnt vmcnt({5 + (1 if TQ == 1 else 0) + NTL})")
            self.stamp("row")
            if TQ == 2: touch_q()
        a("s_mov_b32 s3, 0x3f803f80")
        a(f"v_dot2_f32_bf16 v8, v{ROW}, s3, 0")
        a(f"v_dot2_f32_bf16 v9, v{ROW}, v{ROW}, 0")
        for i in range(1, 4):
            a(f"v_dot2_f32_bf16 v8, v{ROW+i}, s3, v8")
            a(f"v_dot2_f32_bf16 v9, v{ROW+i}, v{ROW+i}, v9")
        self.wave_reduce(["v8", "v9"], "add", ["v10", "v11"])
        a(f"v_mul_f32 v8, 0x{f32bits(1/512):x}, v8")
        a(f"v_mul_f32 v9, 0x{f32bits(1/512):x}, v9")
        a("v_fma_f32 v9, -v8, v8, v9")
        a("v_max_f32 v9, 0, v9")
        a(f"v_add_f32 v9, 0x{f32bits(1e-5):x}, v9")
        a("v_rsq_f32 v9, v9")
        a(f"s_lshl_b32 {sA}, {sW}, 3")
        a(f"s_lshl_b32 {sB}, {sG1}, 10")
        a(f"s_add_u32 {sA}, {sA}, {sB}")
        a(f"v_lshlrev_b32 v10, 13, v1")
        a(f"v_add_u32 v10, {sA}, v10")
        a("s_mov_b64 exec, 3")
        a("ds_write_b64 v10, v[8:9]")
        a("s_mov_b64 exec, -1")
        if early:
            a(f"s_cmp_lt_u32 {sW}, 2")
            a("s_cbranch_scc1 L_b1a")
            a("s_waitcnt vmcnt(19) lgkmcnt(0)")
            a("s_branch L_b1b")
            a.label("L_b1a")
            a("s_waitcnt vmcnt(0) lgkmcnt(0)")
            a.label("L_b1b")
        else:
            a(f"s_waitcnt vmcnt({(1 if TQ == 2 else 0) + (0 if X.get('tlw', 1) else NTL)}) lgkmcnt(0)")
        a("s_barrier")
        self.stamp("b1")
        a(f"s_cmp_lt_u32 {sW}, 2")
        a("s_cbranch_scc1 L_kv_go")
        if not early: bulk()
        a("s_branch L_kv_done")
        a.label("L_kv_go")
        a("v_and_b32 v8, 7, v1")
        a(f"s_lshl_b32 {sA}, {sM}, 3")
        a(f"v_add_u32 v8, {sA}, v8")
        a("v_bfe_u32 v9, v8, 1, 3")
        a("v_lshrrev_b32 v10, 4, v1")
        a("v_xor_b32 v9, v9, v10")
        a("v_lshlrev_b32 v9, 4, v9")
        a("v_lshl_add_u32 v20, v8, 7, v9")
        a("v_xor_b32 v21, 64, v20")
        a("v_bfe_u32 v8, v1, 4, 1")
        a("v_bfe_u32 v9, v1, 2, 2")
        a("v_lshl_add_u32 v8, v8, 2, v9")
        a("v_lshlrev_b32 v8, 5, v8")
        a("v_lshrrev_b32 v9, 5, v1")
        a("v_lshl_add_u32 v8, v9, 9, v8")
        a("v_and_b32 v9, 3, v1")
        a("v_lshl_add_u32 v8, v9, 3, v8")
        a(f"s_lshl_b32 {sA}, {sW}, 14")
        a(f"s_add_u32 {sA}, {sA}, {LDS_WK}")
        a(f"v_add_u32 v22, {sA}, v8")
        a("s_mov_b32 exec_lo, 0x00ff00ff")
        a("s_mov_b32 exec_hi, 0x00ff00ff")
        for s in range(16):
            a.ds(f"ds_read_b128 {vr(XF+4*s,4)}, {'v20' if s%2==0 else 'v21'} offset:{(s>>1)*8192}", f"x{s}")
        a("s_mov_b64 exec, -1")
        D = 24
        a(f"s_cmp_eq_u32 {sW}, 1")
        a("s_cbranch_scc1 L_vwave")
        saved_lg = list(a.lg)
        for wave in ("K", "V"):
            a.lg = list(saved_lg)
            if wave == "V": a.label("L_vwave")
            def wread(s):
                a.ds(f"ds_read_b64_tr_b16 {vr(WF+4*s,2)}, v22 offset:{s*1024}", f"w{s}")
                a.ds(f"ds_read_b64_tr_b16 {vr(WF+4*s+2,2)}, v22 offset:{s*1024+256}", f"w{s}")
            for s in range(4): wread(s)
            for s in range(16):
                a.wait_lg(f"w{s}")
                srcC = "0" if s == 0 else vr(D, 4)
                if wave == "K":
                    a(f"v_mfma_f32_16x16x32_bf16 {vr(D,4)}, {vr(WF+4*s,4)}, {vr(XF+4*s,4)}, {srcC}")
                else:
                    a(f"v_mfma_f32_16x16x32_bf16 {vr(D,4)}, {vr(XF+4*s,4)}, {vr(WF+4*s,4)}, {srcC}")
                if s + 4 < 16: wread(s + 4)
            a(f"s_lshl_b32 {sA}, {sC}, 3")
            a(f"s_add_u32 {sA}, {sA}, {sM}")
            a(f"s_lshl_b32 {sB}, {sA}, 10")
            a(f"s_add_u32 {sB}, {sB}, {WS_KV}")
            if wave == "K":
                a("v_and_b32 v8, 7, v1")
                a("v_lshlrev_b32 v8, 3, v8")
                a(f"s_lshl_b32 s4, {sG1}, 10")
                a(f"v_add_u32 v8, s4, v8")
                a.ds("ds_read_b64 v[10:11], v8", "st")
                for r in range(4):
                    a(f"v_mov_b32_dpp v{28+r}, v{D+r} row_ror:8 row_mask:0xf bank_mask:0xf")
                a.wait_lg("st")
                for r in range(4):
                    a(f"v_fma_f32 v{D+r}, -v10, v{28+r}, v{D+r}")
                for r in range(4):
                    a(f"v_mul_f32 v{D+r}, v11, v{D+r}")
                a(f"v_cvt_pk_bf16_f32 v32, v{D}, v{D+1}")
                a(f"v_cvt_pk_bf16_f32 v33, v{D+2}, v{D+3}")
                a("v_mov_b32 v34, v32")
                a("v_mov_b32 v35, v33")
                a("v_permlane32_swap_b32 v32, v34")
                a("v_permlane32_swap_b32 v33, v35")
                a("v_bfe_u32 v8, v1, 4, 1")
                a("v_and_b32 v9, 7, v1")
                a("v_lshlrev_b32 v9, 4, v9")
                a("v_lshl_add_u32 v8, v8, 7, v9")
                a("s_mov_b32 exec_lo, 0x00ff00ff")
                a("s_mov_b32 exec_hi, 0")
                if NF3:
                    a(f"s_add_u32 s76, {sB}, {WS_KVL - WS_KV}")
                    a(f"buffer_store_dwordx4 v[32:35], v8, {srd(SRD_WS)}, s76 offen" + (" sc1" if X.get("lsc1") else ""))
                a(f"buffer_store_dwordx4 v[32:35], v8, {srd(SRD_WS)}, {sB} offen sc1")
                a("s_mov_b64 exec, -1")
                a("v_dot2_f32_bf16 v12, v32, v32, 0")
                for i in (33, 34, 35):
                    a(f"v_dot2_f32_bf16 v12, v{i}, v{i}, v12")
                a("v_mov_b32 v13, v12")
                a("v_permlane16_swap_b32 v12, v13")
                a("v_add_f32 v12, v12, v13")
                a("v_and_b32 v13, 8, v1")
                a("v_cmp_eq_u32 vcc, 0, v13")
                a("v_cndmask_b32 v12, 0, v12, vcc")
                for n in (8, 4, 2, 1):
                    a(f"v_max_f32_dpp v12, v12, v12 row_ror:{n} row_mask:0xf bank_mask:0xf")
                a(f"v_readlane_b32 {sD}, v12, 0")
                a(f"s_add_u32 {sD}, {sD}, 8")
                a(f"s_and_b32 {sD}, {sD}, 0xfffffff8")
                a(f"s_or_b32 {sD}, {sD}, {sXCC}")
                a(f"s_mov_b32 s3, {sD}")
                a(f"s_mov_b32 {sG}, {sA}")
                a("s_branch L_kv_fin")
            else:
                a("v_bfe_u32 v8, v1, 4, 1")
                a("v_lshlrev_b32 v8, 5, v8")
                a(f"s_lshl_b32 s4, {sG1}, 10")
                a(f"s_add_u32 s4, s4, 8192")
                a(f"v_add_u32 v8, s4, v8")
                a.ds("ds_read_b128 v[12:15], v8", "st")
                a.ds("ds_read_b128 v[36:39], v8 offset:16", "st")
                a("v_and_b32 v9, 7, v1")
                a("v_lshlrev_b32 v9, 3, v9")
                a(f"v_add_u32 v40, s4, v9")
                a.ds("ds_read_b64 v[42:43], v40", "st")
                a(f"v_mov_b32 v28, v{D}")
                a(f"v_mov_b32 v29, v{D}")
                a("v_permlane32_swap_b32 v28, v29")
                a.wait_lg("st")
                st = [(12, 13), (14, 15), (36, 37), (38, 39)]
                for r in range(4):
                    a(f"v_fma_f32 v{D+r}, -v{st[r][0]}, v29, v{D+r}")
                for r in range(4):
                    a(f"v_mul_f32 v{D+r}, v{st[r][1]}, v{D+r}")
                a(f"v_cvt_pk_bf16_f32 v32, v{D}, v{D+1}")
                a(f"v_cvt_pk_bf16_f32 v33, v{D+2}, v{D+3}")
                a("v_mov_b32 v34, v32")
                a("v_mov_b32 v35, v33")
                a("v_permlane16_swap_b32 v32, v34")
                a("v_permlane16_swap_b32 v33, v35")
                a("v_add_u32 v8, 256, v2")
                if NF3:
                    a(f"s_add_u32 s4, {sTag}, 1")
                    a("v_mov_b32 v44, v42")
                    a("v_mov_b32 v45, s4")
                    a("v_mov_b32 v46, v43")
                    a("v_mov_b32 v47, s4")
                    a(f"s_lshl_b32 s4, {sA}, 7")
                    a(f"s_add_u32 s5, s4, {WS_STL}")
                    a(f"s_add_u32 s4, s4, {WS_STLL}")
                    a(f"s_add_u32 s76, {sB}, {WS_KVL - WS_KV}")
                    a("v_mov_b32 v41, 0")
                    a("v_lshlrev_b32 v40, 2, v1")
                    a(f"v_add_u32 v40, {LDS_FG}, v40")
                    a("s_mov_b64 exec, 0xffff")
                    a(f"buffer_store_dwordx4 v[32:35], v8, {srd(SRD_WS)}, s76 offen" + (" sc1" if X.get("lsc1") else ""))
                    a("s_mov_b64 exec, 0xff")
                    a(f"buffer_store_dwordx4 v[44:47], v2, {srd(SRD_WS)}, s5 offen")
                    a("s_mov_b64 exec, 0xffff")
                    a(f"buffer_store_dwordx4 v[32:35], v8, {srd(SRD_WS)}, {sB} offen sc1")
                    a("s_mov_b64 exec, 0xff")
                    a(f"buffer_store_dwordx4 v[44:47], v2, {srd(SRD_WS)}, s4 offen sc1")
                    a("s_mov_b32 exec_lo, -1")
                    a("ds_write_b32 v40, v41")
                else:
                    a("s_mov_b64 exec, 0xffff")
                    a(f"buffer_store_dwordx4 v[32:35], v8, {srd(SRD_WS)}, {sB} offen sc1")
                if NF3: pass
                elif X.get("nf", 1):
                    a(f"s_add_u32 s4, {sTag}, 1")
                    a("v_mov_b32 v44, v42")
                    a("v_mov_b32 v45, s4")
                    a("v_mov_b32 v46, v43")
                    a("v_mov_b32 v47, s4")
                    a(f"s_lshl_b32 s4, {sA}, 7")
                    a(f"s_add_u32 s4, s4, {WS_STLL}")
                    a("v_mov_b32 v41, 0")
                    a(f"v_mov_b32 v40, {LDS_KF}")
                    a("s_mov_b64 exec, 0xff")
                    a(f"buffer_store_dwordx4 v[44:47], v2, {srd(SRD_WS)}, s4 offen sc1")
                    a("s_mov_b64 exec, 1")
                    a("ds_write_b32 v40, v41")
                else:
                    a("s_mov_b64 exec, 0xff")
                    a("v_add_u32 v9, 512, v9")
                    a(f"buffer_store_dwordx2 v[42:43], v9, {srd(SRD_WS)}, {sB} offen sc1")
                a("s_mov_b64 exec, -1")
                a(f"s_mov_b32 {sG}, {sA}")
        a.lg = []
        a.label("L_kv_fin")
        self.stamp("kvst")
        a(f"v_xor_b32 {vXt}, 64, {vXa}")
        xa_dma(sG1, sW, vXt)
        self.q_addr(LDS_WA)
        if NF3:
            a(f"s_cmp_eq_u32 {sW}, 1")
            a("s_cbranch_scc1 L_lfv")
            a("s_waitcnt vmcnt(2) lgkmcnt(0)")
            a("s_branch L_lfw")
            a.label("L_lfv")
            a("s_waitcnt vmcnt(3) lgkmcnt(0)")
            a.label("L_lfw")
            a(f"s_and_b32 {sA}, {sID}, 7")
            a(f"s_lshl_b32 {sA}, {sA}, 9")
            a(f"s_lshr_b32 {sB}, {sID}, 6")
            a(f"s_lshl_b32 {sB}, {sB}, 3")
            a(f"s_add_u32 {sB}, {sB}, {sM}")
            a(f"s_lshl_b32 {sB}, {sB}, 4")
            a(f"s_add_u32 {sA}, {sA}, {sB}")
            a(f"s_add_u32 {sA}, {sA}, {WS_FLL}")
            a(f"s_add_u32 {sD}, {sTag}, 1")
            a(f"v_mov_b32 v8, {sD}")
            a(f"v_mov_b32 v9, {sXCC}")
            a("v_mov_b32 v10, 0")
            a("s_mov_b64 exec, 1")
            a(f"s_cmp_eq_u32 {sW}, 1")
            a("s_cbranch_scc1 L_lflagv")
            a(f"buffer_store_dwordx2 v[8:9], v10, {srd(SRD_WS)}, {sA} offen")
            a("s_branch L_lflagd")
            a.label("L_lflagv")
            a(f"buffer_store_dword v8, v10, {srd(SRD_WS)}, {sA} offen offset:8")
            a.label("L_lflagd")
            a("s_mov_b64 exec, -1")
            self.stamp("kvlf")
            a("s_waitcnt vmcnt(2)")
            self.kv_flag()
            self.stamp("kvfl")
            a("s_waitcnt vmcnt(2)")
        else:
            a("s_waitcnt vmcnt(1) lgkmcnt(0)")
            self.kv_flag()
            self.stamp("kvfl")
            a("s_waitcnt vmcnt(1)")
        a("s_branch L_b2")
        a.label("L_kv_done")
        if NF3:
            a(f"s_cmp_eq_u32 {sKH}, 0")
            a("s_cbranch_scc0 L_noqa")
        self.q_addr(LDS_WA)
        if NF3: a.label("L_noqa")
        if X.get("epoll", 0):
            a(f"s_cmp_eq_u32 {sKH}, 0")
            a("s_cbranch_scc1 L_noep")
            if X.get("epsl"): a(f"s_sleep {X['epsl']}")
            self.kv_pload()
            a.label("L_noep")
        if NF3:
            a(f"s_cmp_eq_u32 {sKH}, 0")
            a("s_cbranch_scc1 L_noep3")
            if X.get("lsl"): a(f"s_sleep {X['lsl']}")
            self.l_pload()
            if X.get("cs4"):
                D = X.get("csd", 8)
                a.lg = []
                for i in range(16 - D, X.get("cpre", 16)): self.cs4_one(i, 15 - i + 2)
                self.cs4_flush()
            a.label("L_noep3")
        elif X.get("nf", 1) == 2:
            a(f"s_cmp_eq_u32 {sW}, 7")
            a("s_cbranch_scc0 L_noep7")
            if X.get("ep7", 1):
                self.kv_pload(64)
                a("s_waitcnt vmcnt(5)")
                a("s_branch L_b2")
            a.label("L_noep7")
        elif X.get("nf", 1):
            a(f"s_add_u32 s3, {sTag}, 1")
            if X.get("ep7", 1):
                a(f"s_cmp_eq_u32 {sW}, 7")
                a("s_cbranch_scc0 L_noep7")
                if X.get("epsl"): a(f"s_sleep {X['epsl']}")
                self.kv_pload()
                a("s_waitcnt vmcnt(0)")
                self.kv_check("L_ep7ok")
                a("s_branch L_noep7")
                a.label("L_ep7ok")
                self.kv_setflag()
                a("s_waitcnt lgkmcnt(0)")
                a.label("L_noep7")
        a("s_waitcnt vmcnt(0)")
        a.label("L_b2")
        a("s_barrier")
        self.stamp("b2")
        a(f"s_add_u32 s3, {sTag}, 1")
        a.vm = []
        AF, BF, ACC, CS = 64, 128, 32, 48
        vA = "v20"
        vB = ["v22", "v23", "v24", "v25"]
        a(f"s_cmp_eq_u32 {sKH}, 0")
        a("s_cbranch_scc0 L_hwave")
        a.lg = []
        NB = 5
        def qread(p):
            c, q = p >> 2, p & 3
            sl = p % NB
            off = c * 8192 + q * 2048
            a.ds(f"ds_read_b64_tr_b16 {vr(AF+4*sl,2)}, {vA} offset:{off}", f"q{p}")
            a.ds(f"ds_read_b64_tr_b16 {vr(AF+4*sl+2,2)}, {vA} offset:{off+512}", f"q{p}")
            a.ds(f"ds_read_b128 {vr(BF+4*sl,4)}, {vB[q]} offset:{c*8192}", f"q{p}")
        PRE = 4
        for p in range(PRE): qread(p)
        for p in range(32):
            sl = p % NB
            a.wait_lg(f"q{p}")
            srcC = "0" if p == 0 else vr(ACC, 16)
            a(f"v_mfma_f32_32x32x16_bf16 {vr(ACC,16)}, {vr(AF+4*sl,4)}, {vr(BF+4*sl,4)}, {srcC}")
            nx = p + PRE
            if nx < 32: qread(nx)
        self.stamp("q1")
        a("s_branch L_b3a")
        a.label("L_hwave")
        self.h_front()
        a.label("L_b3a")
        if X.get("nf", 1) != 3:
            a("s_barrier")
        self.stamp("q2")

    def q_addr(self, LDS_WA):
        a = self.a
        a("v_bfe_u32 v8, v1, 2, 2")
        a("v_lshrrev_b32 v9, 5, v1")
        a("v_lshl_add_u32 v9, v9, 3, v8")
        a("v_lshlrev_b32 v9, 7, v9")
        a("v_bfe_u32 v10, v1, 4, 1")
        a("v_lshlrev_b32 v10, 5, v10")
        a("v_and_b32 v11, 3, v1")
        a("v_lshl_add_u32 v10, v11, 3, v10")
        a(f"s_lshl_b32 {sA}, {sFT}, 6")
        a(f"v_add_u32 v10, {sA}, v10")
        a("v_bfe_u32 v11, v1, 3, 1")
        a("v_lshlrev_b32 v11, 6, v11")
        a("v_xor_b32 v10, v10, v11")
        a("v_add_u32 v9, v9, v10")
        a(f"s_and_b32 {sA}, {sKH}, {sTT}")
        a(f"s_lshl_b32 {sA}, {sA}, 15")
        a(f"s_add_u32 {sA}, {sA}, {LDS_WA}")
        a(f"v_add_u32 v20, {sA}, v9")
        a("v_and_b32 v8, 31, v1")
        a("v_bfe_u32 v9, v1, 1, 3")
        a("v_lshrrev_b32 v10, 5, v1")
        a("v_xor_b32 v9, v9, v10")
        a("v_lshlrev_b32 v9, 4, v9")
        a("v_lshl_add_u32 v8, v8, 7, v9")
        a(f"s_lshl_b32 {sB}, {sTT}, 12")
        a(f"v_add_u32 v22, {sB}, v8")
        a("v_xor_b32 v23, 32, v22")
        a("v_xor_b32 v24, 64, v22")
        a("v_xor_b32 v25, 96, v22")
        if self.opt.get("nf", 1) == 3: return
        self.q_addr2()

    def q_addr2(self):
        a = self.a
        self.kv_addr()
        if self.opt.get("nf", 1) == 3:
            self.l_addr()
        if self.opt.get("nf", 1):
            if self.opt.get("norep"):
                a(f"s_mov_b32 s66, {WS_FLKV2}")
            else:
                a(f"s_and_b32 s66, {sID}, 7")
                a("s_lshl_b32 s66, s66, 12")
                a(f"s_add_u32 s66, s66, {WS_FLKV2}")
        else:
            a(f"s_mov_b32 s66, {WS_FLKV}")

    def kv_pload(self, base=64, stats=True):
        for q in range(4):
            self.a(f"buffer_load_dwordx4 {vr(base+4*q,4)}, v2, {srd(SRD_WS)}, s66 offen offset:{1024*q} sc1")
        if self.opt.get("nf", 1) and stats:
            self.a(f"buffer_load_dwordx4 {vr(base+16,4)}, v2, {srd(SRD_WS)}, {'s86' if self.opt.get('nf', 1) == 3 else 's65'} offen sc1")

    def kv_check(self, lab_ok, base=64, stats=True):
        a = self.a
        t0, t1 = "v84", "v85"
        a(f"v_xor_b32 {t0}, s3, v{base}")
        a(f"v_xor_b32 {t1}, s3, v{base+2}")
        a(f"v_or_b32 {t0}, {t0}, {t1}")
        for q in range(1, 4):
            a(f"v_xor_b32 {t1}, s3, v{base+4*q}")
            a(f"v_or_b32 {t0}, {t0}, {t1}")
            a(f"v_xor_b32 {t1}, s3, v{base+2+4*q}")
            a(f"v_or_b32 {t0}, {t0}, {t1}")
        if stats:
            a(f"v_xor_b32 {t1}, s3, v{base+17}")
            a(f"v_or_b32 {t0}, {t0}, {t1}")
            a(f"v_xor_b32 {t1}, s3, v{base+19}")
            a(f"v_or_b32 {t0}, {t0}, {t1}")
        a(f"v_cmp_ne_u32 vcc, 0, {t0}")
        a(f"s_cbranch_vccz {lab_ok}")

    def l_addr(self):
        a = self.a
        a(f"s_and_b32 s82, {sID}, 7")
        a("s_lshl_b32 s77, s82, 9")
        a(f"s_add_u32 s77, s77, {WS_FLL}")
        a(f"s_lshl_b32 s78, {sC}, 10")
        a(f"s_add_u32 s78, s78, {WS_STL}")
        a(f"s_lshr_b32 s79, {sID}, 6")
        a(f"s_xor_b32 s79, s79, {sFT}")
        a("s_lshl_b32 s79, s79, 16")
        a(f"s_lshl_b32 s80, {sTT}, 12")
        a(f"s_and_b32 s81, {sW}, 3")
        a("s_lshl_b32 s81, s81, 11")
        a("v_and_b32 v216, 31, v1")
        a("v_lshlrev_b32 v216, 4, v216")
        a(f"s_lshl_b32 s86, {sC}, 10")
        a(f"s_add_u32 s86, s86, {WS_STLL}")

    def cs4_one(self, i, nyoung):
        a = self.a
        if i == 0:
            a("s_mov_b32 s74, 0x00003f80")
            a("s_mov_b32 s75, 0x3f800000")
            self.cs4_pend = None
        if nyoung is not None: a(f"s_waitcnt vmcnt({nyoung})")
        a.ds(f"ds_read_b128 {vr(128 + 4 * (i % 3), 4)}, v217 offset:{i * 4096}", f"cb{i}")
        self.cs4_flush()
        self.cs4_pend = i
    def cs4_flush(self):
        a = self.a
        i = self.cs4_pend
        if i is None: return
        a.wait_lg(f"cb{i}")
        for r in range(4):
            x = 128 + 4 * (i % 3) + r
            a(f"v_dot2_f32_bf16 v{48 + 2 * r}, v{x}, s74, {'0' if i == 0 else f'v{48 + 2 * r}'}")
            a(f"v_dot2_f32_bf16 v{49 + 2 * r}, v{x}, s75, {'0' if i == 0 else f'v{49 + 2 * r}'}")
        self.cs4_pend = None
    def cs4_steps(self, lo, hi, nyoung):
        for i in range(lo, hi): self.cs4_one(i, None)
        self.cs4_flush()

    def cs4_reduce(self, mid=None):
        a = self.a
        R = list(range(48, 56)); T = list(range(136, 144))
        for r in R: a(f"v_add_f32_dpp v{r}, v{r}, v{r} row_ror:8 row_mask:0xf bank_mask:0xf")
        for r, t in zip(R, T): a(f"v_mov_b32 v{t}, v{r}")
        for r, t in zip(R, T): a(f"v_permlane32_swap_b32 v{r}, v{t}")
        for r, t in zip(R, T): a(f"v_add_f32 v{r}, v{r}, v{t}")
        if mid: mid()
        for r, t in zip(R, T): a(f"v_mov_b32 v{t}, v{r}")
        for r, t in zip(R, T): a(f"v_permlane16_swap_b32 v{r}, v{t}")
        for r, t in zip(R, T): a(f"v_add_f32_dpp v{r}, v{t}, v{r} row_ror:4 row_mask:0xf bank_mask:0xf")

    def early_setup(self):
        a = self.a
        VF, IDX = 88, 56
        a(f"v_mov_b32 v{VF}, 0x3f803f80")
        for i in range(1, 16):
            a(f"v_mov_b32 v{VF+i}, v{VF}")
        a(f"v_mov_b32 v{IDX}, 0xdddddddd")
        a("v_mov_b32 v104, v2")
        a("v_add_u32 v106, 0x10000, v2")
        a("v_and_b32 v120, 15, v1")
        a("v_lshlrev_b32 v120, 4, v120")
        a("v_lshrrev_b32 v121, 5, v1")
        a("v_lshl_or_b32 v120, v121, 8, v120")
        a("v_add_u32 v105, 1024, v120")
        a("v_add_u32 v107, 0x10000, v105")
        self.wt_addr("v108", "v109", T=(120, 121, 122))
        self.wt_poll_addr()
        a("s_mov_b32 s6, 0x0000ffff")
        a("s_mov_b32 s7, 0x0000ffff")
        self.wt_issue(phase="pre")
        self.q_addr2()

    def fg_set(self, off, tmp0, tmp1, perwave=False):
        a = self.a
        if perwave:
            a(f"s_and_b32 {sA}, {sW}, 3")
            a(f"s_lshl_b32 {sA}, {sA}, 2")
            a(f"s_add_u32 {sA}, {sA}, {LDS_FG + off}")
            a(f"v_mov_b32 {tmp1}, {sA}")
        else:
            a(f"v_mov_b32 {tmp1}, {LDS_FG + off}")
        a(f"v_mov_b32 {tmp0}, 1")
        a("s_mov_b64 exec, 1")
        a(f"ds_write_b32 {tmp1}, {tmp0}")
        a("s_mov_b64 exec, -1")

    def rem_dma(self, n, yk=True):
        a = self.a
        k = n >> 1
        if yk:
            a(f"s_add_u32 s4, {sM}, {k}")
            a("s_cmp_ge_u32 s4, 7")
            a("s_cselect_b32 s5, 7, 0")
            a("s_sub_u32 s4, s4, s5")
            a("s_add_u32 s4, s4, 1")
            a("s_xor_b32 s4, s4, s82")
            a("s_lshl_b32 s4, s4, 13")
            a("s_add_u32 s85, s4, s80")
        a(f"s_xor_b32 s5, s79, {(2 * (n & 1)) << 16}")
        a("s_add_u32 s5, s5, s85")
        if n == 9:
            a(f"s_add_u32 {sB}, s81, {44 * 2048}")
            a(f"s_cmp_eq_u32 {sW}, 6")
            a(f"s_cselect_b32 {sB}, {64 * 2048}, {sB}")
            self.kv_dma("s5", 0, base=sB)
        else:
            p0 = 4 * n if n < 8 else (40 if n == 8 else 4 * n + 8)
            self.kv_dma("s5", p0 * 2048)

    def qd_check(self):
        a = self.a
        lsp, lok = a.newlabel("L_qsp"), a.newlabel("L_qok")
        a(f"s_mov_b32 {sCnt}, 2000000")
        a.label(lsp)
        a("ds_read_b128 v[224:227], v61 offset:48")
        a("ds_read_b128 v[228:231], v61 offset:64")
        a("s_waitcnt lgkmcnt(0)")
        for r in range(225, 232): a(f"v_and_b32 v224, v224, v{r}")
        a("v_readfirstlane_b32 s4, v224")
        a("s_cmp_lg_u32 s4, 0")
        a(f"s_cbranch_scc1 {lok}")
        a(f"s_sub_u32 {sCnt}, {sCnt}, 1")
        a(f"s_cmp_eq_u32 {sCnt}, 0")
        a(f"s_cbranch_scc0 {lsp}")
        a.label(lok)

    def gok_block(self):
        a = self.a; X = self.opt
        PA, PB, PC = 160, 180, 196
        a(f"s_cmp_eq_u32 {sW}, 7")
        a("s_cbranch_scc0 L_rspin")
        a("s_cmp_eq_u32 s83, 0")
        a("s_cbranch_scc0 L_gok")
        a("s_waitcnt vmcnt(10)")
        self.kv_check("L_gokA", PA, stats=False)
        a("s_waitcnt vmcnt(6)")
        self.kv_check("L_gokB", PB, stats=False)
        a("s_waitcnt vmcnt(2)")
        self.kv_check("L_gokC", PC, stats=False)
        a(f"s_mov_b32 {sCnt}, 200000")
        a.label("L_gloop")
        self.kv_pload(PA, stats=False)
        a("s_waitcnt vmcnt(0)")
        self.kv_check("L_gokA", PA, stats=False)
        a(f"s_sub_u32 {sCnt}, {sCnt}, 1")
        a(f"s_cmp_eq_u32 {sCnt}, 0")
        a("s_cbranch_scc0 L_gloop")
        a.label("L_gokA")
        self.fg_set(4, "v224", "v225")
        for q in range(4): a(f"v_mov_b32 v{220+q}, v{PA+1+4*q}")
        a("s_branch L_rgo")
        a.label("L_gokB")
        self.fg_set(4, "v224", "v225")
        for q in range(4): a(f"v_mov_b32 v{220+q}, v{PB+1+4*q}")
        a("s_branch L_rgo")
        a.label("L_gokC")
        self.fg_set(4, "v224", "v225")
        for q in range(4): a(f"v_mov_b32 v{220+q}, v{PC+1+4*q}")
        a("s_branch L_rgo")
        a.label("L_gok")
        self.fg_set(4, "v224", "v225")
        a("s_branch L_rgo")
        a.label("L_rspin")
        a(f"s_mov_b32 {sCnt}, 2000000")
        a.label("L_rspin1")
        a("ds_read_b32 v224, v61 offset:4")
        a("s_waitcnt lgkmcnt(0)")
        a("v_readfirstlane_b32 s4, v224")
        a("s_cmp_lg_u32 s4, 0")
        a("s_cbranch_scc1 L_rgo")
        a(f"s_sub_u32 {sCnt}, {sCnt}, 1")
        a(f"s_cmp_eq_u32 {sCnt}, 0")
        a("s_cbranch_scc0 L_rspin1")
        a.label("L_rgo")
        self.stamp("gok")

    def l_pload(self):
        a = self.a
        a(f"buffer_load_dwordx4 v[208:211], v216, {srd(SRD_WS)}, s77 offen sc1")
        a(f"buffer_load_dwordx4 v[212:215], v2, {srd(SRD_WS)}, s78 offen sc1")

    def l_check(self, lab_ok):
        a = self.a
        a("v_xor_b32 v84, s3, v208")
        a("v_xor_b32 v85, s3, v210")
        a("v_or_b32 v84, v84, v85")
        a(f"v_xor_b32 v85, {sXCC}, v209")
        a("v_or_b32 v84, v84, v85")
        a("v_xor_b32 v85, s3, v213")
        a("v_or_b32 v84, v84, v85")
        a("v_xor_b32 v85, s3, v215")
        a("v_or_b32 v84, v84, v85")
        a("v_cmp_ne_u32 vcc, 0, v84")
        a(f"s_cbranch_vccz {lab_ok}")

    def kv_dma(self, src, lds_imm, base="s81"):
        a = self.a
        a(f"s_add_u32 m0, {base}, {lds_imm}")
        a(f"buffer_load_dwordx4 v59, {srd(SRD_WS)}, {src} offen sc1 lds")
        a(f"s_add_u32 m0, {base}, {lds_imm + 1024}")
        a(f"buffer_load_dwordx4 v60, {srd(SRD_WS)}, {src} offen sc1 lds")

    def kv_setflag(self):
        a = self.a
        a("v_mov_b32 v84, 1")
        a(f"v_mov_b32 v85, {LDS_FG if self.opt.get('nf', 1) == 3 else LDS_KF}")
        a("s_mov_b64 exec, 1")
        a("ds_write_b32 v85, v84")
        a("s_mov_b64 exec, -1")

    def kv_tile(self, spos):
        a = self.a
        a(f"s_add_u32 {sD}, {spos}, s64")
        a(f"s_and_b32 {sD}, {sD}, 63")
        a(f"s_lshl_b32 {sD}, {sD}, 12")
        a(f"s_add_u32 {sD}, {sD}, {WS_KV}")
        a(f"s_lshl_b32 {sE_}, {spos}, 11")
        a(f"s_mov_b32 m0, {sE_}")
        a(f"buffer_load_dwordx4 v59, {srd(SRD_WS)}, {sD} offen sc1 lds")
        a(f"s_add_u32 m0, {sE_}, 1024")
        a(f"buffer_load_dwordx4 v60, {srd(SRD_WS)}, {sD} offen sc1 lds")

    def kv_addr(self):
        a = self.a
        a("v_bfe_u32 v59, v1, 3, 2")
        a("v_lshlrev_b32 v59, 10, v59")
        a("v_and_b32 v13, 7, v1")
        a("v_lshl_or_b32 v59, v13, 4, v59")
        a("v_lshrrev_b32 v13, 5, v1")
        a("v_lshl_or_b32 v59, v13, 7, v59")
        a("v_lshrrev_b32 v60, 4, v1")
        a("v_lshlrev_b32 v60, 10, v60")
        a("v_and_b32 v13, 15, v1")
        a("v_lshl_or_b32 v60, v13, 4, v60")
        a("v_add_u32 v60, 256, v60")
        if self.opt.get("nf", 1) == 3: return
        a(f"s_lshr_b32 s64, {sID}, 3")
        a(f"s_lshl_b32 s64, s64, 1")
        a("v_bfe_u32 v12, v1, 3, 2")
        a("v_and_b32 v13, 7, v1")
        a("v_lshlrev_b32 v13, 3, v13")
        a("v_lshl_add_u32 v12, v12, 10, v13")
        a(f"s_lshl_b32 {sA}, {sC}, 3")
        a(f"s_lshl_b32 {sB}, {sTT}, 2")
        a(f"s_add_u32 {sA}, {sA}, {sB}")
        a(f"s_lshl_b32 {sA}, {sA}, 10")
        a(f"s_add_u32 s65, {sA}, {WS_KV + 512}")
        if self.opt.get("nf", 1):
            a(f"s_lshl_b32 s65, {sC}, 10")
            a(f"s_add_u32 s65, s65, {WS_STLL}")

    def h_front(self):
        a = self.a
        X = self.opt
        AF, CS = 128, 48
        def check(lab_ok):
            a(f"v_xor_b32 v80, s3, v64")
            a(f"v_xor_b32 v81, s3, v66")
            a("v_or_b32 v80, v80, v81")
            for q in range(1, 4):
                a(f"v_xor_b32 v81, s3, v{64+4*q}")
                a("v_or_b32 v80, v80, v81")
                a(f"v_xor_b32 v81, s3, v{66+4*q}")
                a("v_or_b32 v80, v80, v81")
            a("v_cmp_ne_u32 vcc, 0, v80")
            a(f"s_cbranch_vccz {lab_ok}")
        def chunk0():
            a(f"buffer_load_dwordx2 v[10:11], v12, {srd(SRD_WS)}, s65 offen sc1")
            a(f"s_add_u32 {sF}, {sW}, 28")
            for i in range(4):
                self.kv_tile(sF)
                if i < 3: a(f"s_add_u32 {sF}, {sF}, 4")
        NB = 6
        def cread(p):
            c, q = p >> 2, p & 3
            sl = p % NB
            off = c * 8192 + q * 2048
            a.ds(f"ds_read_b64_tr_b16 {vr(AF+4*sl,2)}, v20 offset:{off}", f"c{p}")
            a.ds(f"ds_read_b64_tr_b16 {vr(AF+4*sl+2,2)}, v20 offset:{off+512}", f"c{p}")
        def csteps(lo, hi):
            for p in range(lo, hi):
                sl = p % NB
                a.wait_lg(f"c{p}")
                for i in range(4):
                    src2 = "0" if p == 0 else f"v{CS+i}"
                    a(f"v_dot2_f32_bf16 v{CS+i}, v{AF+4*sl+i}, s74, {src2}")
                if p + 5 < 16: cread(p + 5)
        if X.get("nf", 1) == 3:
            PA, PB, PC = 160, 180, 196
            sG7 = "s83"
            def tiles():
                if X.get("tsl"): a(f"s_sleep {X['tsl']}")
                lab = a.newlabel("L_tl7")
                a(f"s_mov_b32 {sPh}, 1")
                a(f"s_cmp_eq_u32 {sW}, 7")
                a(f"s_cbranch_scc1 {lab}")
                a("s_lshl_b32 s4, s82, 13")
                a("s_add_u32 s4, s4, s84")
                a(f"s_lshr_b32 {sF}, {sID}, 6")
                a(f"s_sub_u32 {sA}, {sW}, 4")
                for n in range(3):
                    if n == 2:
                        a(f"s_cmp_eq_u32 {sW}, 6")
                        a(f"s_cbranch_scc1 {lab}")
                    a(f"s_lshr_b32 s5, {sA}, 1")
                    a(f"s_xor_b32 s5, s5, {sF}")
                    a("s_lshl_b32 s5, s5, 16")
                    a("s_add_u32 s5, s5, s4")
                    a(f"s_and_b32 {sB}, {sA}, 1")
                    a(f"s_lshl_b32 {sB}, {sB}, 12")
                    a(f"s_add_u32 s5, s5, {sB}")
                    a(f"s_lshl_b32 {sB}, {sA}, 11")
                    a(f"s_add_u32 {sB}, {sB}, {32 * 2048}")
                    self.kv_dma("s5", 0, base=sB)
                    if n < 2: a(f"s_add_u32 {sA}, {sA}, 3")
                a.label(lab)
            def gpoll(base):
                lab = a.newlabel("L_gp")
                a(f"s_cmp_eq_u32 {sW}, 7")
                a(f"s_cbranch_scc0 {lab}")
                a(f"s_cmp_eq_u32 {sG7}, 0")
                a(f"s_cbranch_scc0 {lab}")
                self.kv_pload(base, stats=False)
                a.label(lab)
            CS4 = X.get("cs4")
            if X.get("hprio"): a(f"s_setprio {X['hprio']}")
            if CS4:
                cp_ = X.get("cpre", 16); cm_ = (cp_ + 16) // 2
                def csteps(lo, hi):
                    if lo == 0:
                        if cm_ > cp_: self.cs4_steps(cp_, cm_, None)
                    else:
                        if 16 > cm_: self.cs4_steps(cm_, 16, None)
                        self.cs4_reduce(mid=lambda: gpoll(PB))
            else:
                a("s_mov_b32 s74, 0x3f803f80")
            a(f"v_mov_b32 v86, {LDS_FG}")
            a(f"s_mov_b32 {sG7}, 0")
            a(f"s_mov_b32 {sPh}, 0")
            a(f"s_mov_b32 s84, {WS_KVL}")
            a.lg = []
            if not CS4:
                for p in range(5): cread(p)
            LF = X.get("lfail")
            if not LF: self.l_check("L_lok1")
            self.l_pload()
            a("s_branch L_lc1")
            a.label("L_lok1")
            self.stamp("lok1")
            tiles()
            a.label("L_lc1")
            gpoll(PA)
            NH = X.get("csplit", 8)
            csteps(0, NH)
            self.stamp("cs1")
            a(f"s_cmp_eq_u32 {sPh}, 1")
            a("s_cbranch_scc1 L_lc2")
            a(f"s_cmp_eq_u32 {sW}, 7")
            a("s_cbranch_scc1 L_lw7")
            a("s_waitcnt vmcnt(0)")
            a("s_branch L_lw8")
            a.label("L_lw7")
            a("s_waitcnt vmcnt(4)")
            a.label("L_lw8")
            if not LF: self.l_check("L_lok2")
            self.l_pload()
            a("s_branch L_lc2")
            a.label("L_lok2")
            self.stamp("lok2")
            tiles()
            a.label("L_lc2")
            csteps(NH, 16)
            self.stamp("cs2")
            a(f"s_cmp_eq_u32 {sPh}, 1")
            a("s_cbranch_scc1 L_ldone")
            a("s_waitcnt vmcnt(0)")
            if not LF: self.l_check("L_lgo")
            a(f"s_mov_b32 {sCnt}, 200000")
            a.label("L_lsl1")
            self.l_pload()
            a(f"s_cmp_eq_u32 {sW}, 7")
            a("s_cbranch_scc0 L_lsl2")
            self.kv_pload(PA)
            a("s_waitcnt vmcnt(0)")
            if not LF: self.l_check("L_lgo7")
            self.kv_check("L_lsl3", PA)
            a("s_branch L_lsl4")
            a.label("L_lsl3")
            self.kv_setflag()
            a(f"s_mov_b32 {sG7}, 1")
            a(f"v_mov_b32 v212, v{PA+16}")
            a(f"v_mov_b32 v214, v{PA+18}")
            for q in range(4): a(f"v_mov_b32 v{220+q}, v{PA+1+4*q}")
            a(f"s_mov_b32 s84, {WS_KV}")
            a("s_branch L_lgo")
            a.label("L_lsl2")
            a("ds_read_b32 v87, v86")
            a("s_waitcnt vmcnt(0) lgkmcnt(0)")
            if not LF: self.l_check("L_lgo")
            a("v_readfirstlane_b32 s4, v87")
            a("s_cmp_lg_u32 s4, 0")
            a("s_cbranch_scc0 L_lsl4")
            a(f"s_mov_b32 s84, {WS_KV}")
            a("s_branch L_lgo")
            a.label("L_lsl4")
            a(f"s_sub_u32 {sCnt}, {sCnt}, 1")
            a(f"s_cmp_eq_u32 {sCnt}, 0")
            a("s_cbranch_scc0 L_lsl1")
            a.label("L_lgo7")
            a.label("L_lgo")
            self.stamp("lok3")
            tiles()
            gpoll(PA)
            gpoll(PB)
            a.label("L_ldone")
            gpoll(PC)
            if CS4:
                lab = a.newlabel("L_tw")
                a(f"s_cmp_eq_u32 {sW}, 7")
                a(f"s_cbranch_scc1 {lab}")
                a("s_waitcnt vmcnt(0)")
                a.label(lab)
                return
            a(f"v_add_f32 v{CS}, v{CS}, v{CS+1}")
            a(f"v_add_f32 v{CS+2}, v{CS+2}, v{CS+3}")
            a(f"v_add_f32 v{CS}, v{CS}, v{CS+2}")
            a(f"v_mov_b32 v9, v{CS}")
            a(f"v_permlane32_swap_b32 v{CS}, v9")
            a(f"v_add_f32 v{CS}, v{CS}, v9")
            return
        if X.get("nf", 1) == 2:
            PA, PB = 64, 88
            a("s_mov_b32 s74, 0x3f803f80")
            a(f"v_mov_b32 v86, {LDS_KF}")
            a.lg = []
            for p in range(5): cread(p)
            a(f"s_cmp_eq_u32 {sW}, 7")
            a("s_cbranch_scc1 L_w7f")
            saved = list(a.lg)
            NH = X.get("csplit", 8)
            csteps(0, NH)
            a(f"s_mov_b32 {sCnt}, 2000000")
            a.label("L_kv_spin1")
            a("ds_read_b32 v87, v86")
            a("s_waitcnt lgkmcnt(0)")
            a("v_readfirstlane_b32 s4, v87")
            a("s_cmp_lg_u32 s4, 0")
            a("s_cbranch_scc1 L_kv_go2")
            a(f"s_sub_u32 {sCnt}, {sCnt}, 1")
            a(f"s_cmp_eq_u32 {sCnt}, 0")
            a("s_cbranch_scc0 L_kv_spin1")
            a.label("L_kv_go2")
            self.stamp("kvok")
            a(f"s_add_u32 {sF}, {sW}, 28")
            for i in range(5):
                self.kv_tile(sF)
                if i < 4: a(f"s_add_u32 {sF}, {sF}, 3")
            if NH < 16: a.lg = [x for x in a.lg]
            csteps(NH, 16)
            a("s_branch L_hfin")
            a.label("L_w7f")
            a.lg = saved
            a(f"s_mov_b32 {sPh}, 0")
            if not X.get("ep7", 1): self.kv_pload(PA)
            self.kv_pload(PB)
            def cp(base, other, k):
                lab = a.newlabel("L_cp"); lok = a.newlabel("L_cpok")
                a(f"s_cmp_lg_u32 {sPh}, 0")
                a(f"s_cbranch_scc1 {lab}")
                a("s_waitcnt vmcnt(5)")
                if self.prof and X.get("cpdbg"):
                    if k == 0 and not getattr(self, "_cp0", 0):
                        self._cp0 = 1
                        self.stamp("cp0")
                        a("s_mov_b32 s75, 0")
                    a("s_add_u32 s75, s75, 1")
                self.kv_check(lok, base)
                self.kv_pload(base)
                a(f"s_branch {lab}")
                a.label(lok)
                self.kv_setflag()
                a(f"s_mov_b32 {sPh}, {1 if base == PA else 2}")
                a.label(lab)
            G7 = X.get("g7", 4)
            cp(PA, PB, 0)
            n = 0
            while n < 16:
                csteps(n, min(16, n + G7)); n += G7
                if n < 16: cp(PB if (n // G7) % 2 == 1 else PA, None, n)
            nxt = [PB, PA] if ((16 + G7 - 1) // G7) % 2 == 1 else [PA, PB]
            a(f"s_mov_b32 {sCnt}, 100000")
            a.label("L_w7loop")
            cp(nxt[0], None, 0)
            cp(nxt[1], None, 0)
            a(f"s_cmp_lg_u32 {sPh}, 0")
            a("s_cbranch_scc1 L_w7ok")
            a(f"s_sub_u32 {sCnt}, {sCnt}, 1")
            a(f"s_cmp_eq_u32 {sCnt}, 0")
            a("s_cbranch_scc0 L_w7loop")
            a.label("L_w7ok")
            self.stamp("kvok7")
            if self.prof and X.get("cpdbg"):
                i = self.nstamp; self.nstamp += 1
                self.stamp_names.append("ncp")
                a(f"v_writelane_b32 v0, s75, {i}")
            a("s_waitcnt vmcnt(0)")
            a(f"s_cmp_eq_u32 {sPh}, 2")
            a("s_cbranch_scc0 L_w7cp")
            for r in (1, 5, 9, 13, 16, 18):
                a(f"v_mov_b32 v{PA+r}, v{PB+r}")
            a.label("L_w7cp")
            a.label("L_hfin")
            a(f"v_add_f32 v{CS}, v{CS}, v{CS+1}")
            a(f"v_add_f32 v{CS+2}, v{CS+2}, v{CS+3}")
            a(f"v_add_f32 v{CS}, v{CS}, v{CS+2}")
            a(f"v_mov_b32 v9, v{CS}")
            a(f"v_permlane32_swap_b32 v{CS}, v9")
            a(f"v_add_f32 v{CS}, v{CS}, v9")
            return
        if X.get("nf", 1):
            def chunk0n():
                a(f"s_add_u32 {sF}, {sW}, 28")
                for i in range(4):
                    if i == 3:
                        lab = a.newlabel("L_c0skip")
                        a(f"s_cmp_eq_u32 {sW}, 7")
                        a(f"s_cbranch_scc1 {lab}")
                    self.kv_tile(sF)
                    if i < 3: a(f"s_add_u32 {sF}, {sF}, 4")
                a.label(lab)
            a("s_mov_b32 s74, 0x3f803f80")
            a(f"v_mov_b32 v86, {LDS_KF}")
            a.lg = []
            a.ds("ds_read_b32 v87, v86", "kf")
            for p in range(5): cread(p)
            a.wait_lg("kf")
            a(f"v_readfirstlane_b32 {sPh}, v87")
            a(f"s_cmp_eq_u32 {sPh}, 0")
            a("s_cbranch_scc1 L_kv_notyet")
            chunk0n()
            a("s_branch L_kv_cs")
            a.label("L_kv_notyet")
            a(f"s_cmp_eq_u32 {sW}, 7")
            a("s_cbranch_scc0 L_kv_cs")
            self.kv_pload()
            a.label("L_kv_cs")
            csteps(0, 16)
            a(f"v_add_f32 v{CS}, v{CS}, v{CS+1}")
            a(f"v_add_f32 v{CS+2}, v{CS+2}, v{CS+3}")
            a(f"v_add_f32 v{CS}, v{CS}, v{CS+2}")
            a(f"v_mov_b32 v9, v{CS}")
            a(f"v_permlane32_swap_b32 v{CS}, v9")
            a(f"v_add_f32 v{CS}, v{CS}, v9")
            a(f"s_cmp_lg_u32 {sPh}, 0")
            a("s_cbranch_scc1 L_kv_have")
            a(f"s_cmp_eq_u32 {sW}, 7")
            a("s_cbranch_scc0 L_kv_spin")
            a(f"s_mov_b32 {sCnt}, 200000")
            a.label("L_poll_kv")
            a("s_waitcnt vmcnt(0)")
            self.kv_check("L_pollok_kv")
            a(f"s_sub_u32 {sCnt}, {sCnt}, 1")
            a(f"s_cmp_eq_u32 {sCnt}, 0")
            a("s_cbranch_scc1 L_pollok_kv")
            a(f"s_sleep {X.get('kvsl', 2)}")
            self.kv_pload()
            a("s_branch L_poll_kv")
            a.label("L_pollok_kv")
            self.kv_setflag()
            a("s_branch L_kv_go2")
            a.label("L_kv_spin")
            a(f"s_mov_b32 {sCnt}, 2000000")
            a.label("L_kv_spin1")
            a("ds_read_b32 v87, v86")
            a("s_waitcnt lgkmcnt(0)")
            a("v_readfirstlane_b32 s4, v87")
            a("s_cmp_lg_u32 s4, 0")
            a("s_cbranch_scc1 L_kv_go2")
            a(f"s_sub_u32 {sCnt}, {sCnt}, 1")
            a(f"s_cmp_eq_u32 {sCnt}, 0")
            a("s_cbranch_scc0 L_kv_spin1")
            a.label("L_kv_go2")
            chunk0n()
            a.label("L_kv_have")
            self.stamp("kvok")
            return
        a("s_mov_b32 s74, 0x3f803f80")
        a(f"s_mov_b32 {sPh}, 0")
        a.lg = []
        for p in range(5): cread(p)
        if X.get("epoll", 0):
            check("L_kv_early")
            self.kv_pload()
            a("s_branch L_kv_late")
            a.label("L_kv_early")
            chunk0()
            a(f"s_mov_b32 {sPh}, 1")
            a.label("L_kv_late")
        else:
            self.kv_pload()
        NH = X.get("csplit", 8)
        csteps(0, NH)
        a(f"s_cmp_eq_u32 {sPh}, 1")
        a("s_cbranch_scc1 L_kv_have")
        a(f"s_mov_b32 {sCnt}, 200000")
        a.label("L_poll_kv")
        a("s_waitcnt vmcnt(0)")
        check("L_pollok_kv")
        a(f"s_sub_u32 {sCnt}, {sCnt}, 1")
        a(f"s_cmp_eq_u32 {sCnt}, 0")
        a("s_cbranch_scc1 L_pollok_kv")
        a(f"s_sleep {X.get('kvsl', 2)}")
        self.kv_pload()
        a("s_branch L_poll_kv")
        a.label("L_pollok_kv")
        self.stamp("kvok")
        chunk0()
        a.label("L_kv_have")
        csteps(NH, 16)
        a(f"v_add_f32 v{CS}, v{CS}, v{CS+1}")
        a(f"v_add_f32 v{CS+2}, v{CS+2}, v{CS+3}")
        a(f"v_add_f32 v{CS}, v{CS}, v{CS+2}")
        a(f"v_mov_b32 v9, v{CS}")
        a(f"v_permlane32_swap_b32 v{CS}, v9")
        a(f"v_add_f32 v{CS}, v{CS}, v9")

    def poll_begin(self, name, limit=200000):
        a = self.a
        a(f"s_mov_b32 {sCnt}, {limit}")
        a.label(f"L_poll_{name}")
    def poll_end(self, name, sleep=1):
        a = self.a
        a(f"s_cbranch_vccz L_pollok_{name}")
        a(f"s_sub_u32 {sCnt}, {sCnt}, 1")
        a(f"s_cmp_eq_u32 {sCnt}, 0")
        a(f"s_cbranch_scc1 L_pollok_{name}")
        if sleep: a(f"s_sleep {sleep}")
        a(f"s_branch L_poll_{name}")
        a.label(f"L_pollok_{name}")

    def p2(self):
        a = self.a
        X = self.opt
        LDS_E = 132 * 1024
        Q, NEGM, S0, S1, IDX, O, KF, VF = 4, 8, 24, 40, 56, 64, 80, 88
        vKa, vVa, vKb, vVb = "v104", "v105", "v106", "v107"
        vT1, vT2 = "v108", "v109"
        PL = 110
        WD = 112
        W1 = 128
        sTG = "s3"
        LDS_BC, LDS_CS, LDS_EX = 156 * 1024, 157 * 1024, 148 * 1024
        NF3 = X.get("nf", 1) == 3
        FB = LDS_FG if NF3 else LDS_BC
        BCO = 96 if NF3 else 0
        if NF3: LDS_BC = LDS_FG + 96
        LST = LDS_ST
        if NF3: LDS_EX, LDS_CS, LST = 80 * 1024, 88 * 1024, 89 * 1024
        CSR = 112 if NF3 else 84
        ACC, CS = 32, 48
        sRot = "s64"
        kv_tile = self.kv_tile
        a(f"s_cmp_eq_u32 {sKH}, 0")
        a("s_cbranch_scc0 L_p2h")
        if not X.get("nf", 1):
            a(f"buffer_load_dwordx2 v[10:11], v12, {srd(SRD_WS)}, s65 offen sc1")
        a(f"s_lshl_b32 {sA}, {sW}, 11")
        a(f"s_add_u32 {sA}, {sA}, {LDS_EX}")
        a(f"v_add_u32 v8, {sA}, v2")
        a(f"ds_write_b128 v8, {vr(ACC+8,4)}")
        a(f"ds_write_b128 v8, {vr(ACC+12,4)} offset:1024")
        a("s_branch L_p2j")
        a.label("L_p2h")
        if NF3:
            a(f"s_cmp_eq_u32 {sW}, 7")
            a("s_cbranch_scc0 L_p2h7")
            a("v_mov_b32 v213, v214")
            a("v_lshlrev_b32 v84, 3, v1")
            a(f"v_add_u32 v84, {LST}, v84")
            a("ds_write_b64 v84, v[212:213]")
            a.label("L_p2h7")
        elif X.get("nf", 1):
            a(f"s_cmp_eq_u32 {sW}, 7")
            a("s_cbranch_scc0 L_p2h7")
            a(f"s_mov_b32 {sF}, 47")
            kv_tile(sF)
            a("v_mov_b32 v81, v82")
            a("v_lshlrev_b32 v84, 3, v1")
            a(f"v_add_u32 v84, {LDS_ST}, v84")
            a("ds_write_b64 v84, v[80:81]")
            a.label("L_p2h7")
        if X.get("cs4"):
            a(f"s_and_b32 {sA}, {sW}, 3")
            a(f"s_lshl_b32 {sA}, {sA}, 8")
            a(f"s_add_u32 {sA}, {sA}, {LDS_CS}")
            a("v_lshlrev_b32 v9, 5, v1")
            a(f"v_add_u32 v9, {sA}, v9")
            a("s_mov_b64 exec, 0xff")
            a("ds_write_b128 v9, v[48:51]")
            a("ds_write_b128 v9, v[52:55] offset:16")
            a("s_mov_b64 exec, -1")
            a("s_branch L_p2j")
        a("v_and_b32 v9, 31, v1")
        a(f"s_lshl_b32 {sA}, {sTT}, 1")
        a(f"s_add_u32 {sA}, {sA}, {sFT}")
        a(f"s_lshl_b32 {sA}, {sA}, 7")
        a(f"s_add_u32 {sA}, {sA}, {LDS_CS}")
        a("v_lshlrev_b32 v9, 2, v9")
        a(f"v_add_u32 v9, {sA}, v9")
        a(f"ds_write_b32 v9, v{CS}")
        a.label("L_p2j")
        if NF3:
            for i in range(16):
                a(f"v_mov_b32 v{O+i}, 0")
        a("s_waitcnt lgkmcnt(0)")
        a("s_barrier")
        self.stamp("b3")
        if NF3:
            self.wt_issue(phase="go")
        a.lg = []
        a("v_lshrrev_b32 v9, 5, v1")
        a("v_lshlrev_b32 v9, 4, v9")
        a(f"s_lshl_b32 {sA}, {sFT}, 7")
        a(f"s_lshl_b32 {sB}, {sKH}, 6")
        a(f"s_add_u32 {sA}, {sA}, {sB}")
        a(f"s_add_u32 {sA}, {sA}, {LDS_CS}")
        a(f"v_add_u32 v9, {sA}, v9")
        NCS = 4 if X.get("cs4") else 2
        for q in range(NCS):
            a.ds(f"ds_read_b128 {vr(CSR+8*q,4)}, v9 offset:{q*256}", "cs")
            a.ds(f"ds_read_b128 {vr(CSR+4+8*q,4)}, v9 offset:{q*256+32}", "cs")
        if X.get("nf", 1):
            a("v_and_b32 v10, 31, v1")
            a(f"s_lshl_b32 {sA}, {sTT}, 8")
            a(f"s_add_u32 {sA}, {sA}, {LST}")
            a("v_lshlrev_b32 v10, 3, v10")
            a(f"v_add_u32 v10, {sA}, v10")
            a("ds_read_b64 v[10:11], v10")
        a(f"s_cmp_eq_u32 {sKH}, 0")
        a("s_cbranch_scc1 L_p2k")
        a(f"s_lshl_b32 {sA}, {sW}, 11")
        a(f"s_add_u32 {sA}, {sA}, {LDS_EX - 4*2048}")
        a(f"v_add_u32 v8, {sA}, v2")
        a(f"ds_read_b128 {vr(ACC,4)}, v8")
        a(f"ds_read_b128 {vr(ACC+4,4)}, v8 offset:1024")
        a.label("L_p2k")
        a("s_waitcnt lgkmcnt(0)")
        a.lg = []
        if NF3:
            a(f"s_lshl_b32 {sA}, {sW}, 2")
            a(f"s_add_u32 {sA}, {sA}, {LDS_FG + 48}")
            a(f"v_mov_b32 v85, {sA}")
            a("v_mov_b32 v84, 1")
            a("s_mov_b64 exec, 1")
            a("ds_write_b32 v85, v84")
            a("s_mov_b64 exec, -1")
            a(f"v_mov_b32 v61, {LDS_FG}")
            a(f"s_cmp_eq_u32 {sKH}, 0")
            a("s_cbranch_scc1 L_qfin")
            a("s_setprio 3")
            self.gok_block()
            a(f"s_add_u32 s80, s80, {WS_KV}")
            for n in range(4): self.rem_dma(n, yk=(n % 2 == 0))
            self.stamp("eiss")
            a.label("L_qfin")
        for i in range(8):
            a(f"v_add_f32 v{40+i}, v{CSR+i}, v{CSR+8+i}")
        if NCS == 4:
            for i in range(8):
                a(f"v_add_f32 v{CSR+i}, v{CSR+16+i}, v{CSR+24+i}")
            for i in range(8):
                a(f"v_add_f32 v{40+i}, v{40+i}, v{CSR+i}")
        if not X.get("nf", 1):
            a(f"s_cmp_eq_u32 {sKH}, 0")
            a("s_cbranch_scc1 L_p2w")
            a("s_waitcnt vmcnt(8)")
            a("s_branch L_p2x")
            a.label("L_p2w")
            a("s_waitcnt vmcnt(0)")
            a.label("L_p2x")
        a(f"v_mul_f32 v11, 0x{f32bits(0.25*LOG2E):x}, v11")
        for i in range(8):
            a(f"v_fma_f32 v{32+i}, -v10, v{40+i}, v{32+i}")
        for i in range(8):
            a(f"v_mul_f32 v{32+i}, v11, v{32+i}")
        for i in range(4):
            a(f"v_cvt_pk_bf16_f32 v{Q+i}, v{32+2*i}, v{33+2*i}")
        if self.stop == "q":
            self.dump_regs(0, [Q, Q+1, Q+2, Q+3], WS_DBG)
            return
        a(f"v_dot2_f32_bf16 v12, v{Q}, v{Q}, 0")
        for i in range(1, 4):
            a(f"v_dot2_f32_bf16 v12, v{Q+i}, v{Q+i}, v12")
        a("v_mov_b32 v13, v12")
        a("v_permlane32_swap_b32 v12, v13")
        a("v_add_f32 v12, v12, v13")
        a("v_sqrt_f32 v12, v12")
        a(f"v_mul_f32 v12, 0x{f32bits(1.0078125):x}, v12")
        self.stamp("qfin")
        if not NF3: self.wt_issue()
        def knorm(R):
            a(f"v_and_b32 v80, -8, v{R[0]}")
            for q in range(1, 4):
                a(f"v_and_b32 v81, -8, v{R[q]}")
                a("v_max_f32 v80, v80, v81")
            a(f"s_lshr_b32 {sB}, {sC}, 3")
            a(f"v_mov_b32 v82, v{R[0]}")
            for q in range(1, 4):
                a(f"s_cmp_eq_u32 {sB}, {q}")
                a("s_cselect_b64 vcc, -1, 0")
                a(f"v_cndmask_b32 v82, v82, v{R[q]}, vcc")
            a(f"v_xor_b32 v82, {sXCC}, v82")
            a("v_and_b32 v82, 7, v82")
            a("v_cmp_ne_u32 vcc, 0, v82")
            a(f"s_and_b32 {sA}, {sC}, 7")
            a(f"s_lshl_b32 {sA}, {sA}, 3")
            a(f"s_lshr_b64 {sX64}, vcc, {sA}")
            a(f"s_and_b32 {sFast}, s4, 0xff")
            if X.get("slow"): a(f"s_mov_b32 {sFast}, 1")
            self.wave_reduce(["v80"], "max", ["v81"])
            a("v_sqrt_f32 v80, v80")
            a(f"v_mov_b32 v81, {sFast}")
            a(f"v_mov_b32 v82, {LDS_BC}")
            a("s_mov_b64 exec, 1")
            a("ds_write_b64 v82, v[80:81]")
            a("s_mov_b64 exec, -1")
        if not NF3:
            a(f"s_cmp_eq_u32 {sW}, 7")
            a("s_cbranch_scc0 L_nobc")
            knorm([65, 69, 73, 77])
            a.label("L_nobc")
        def epoch():
            a(f"s_or_b32 {sA}, {sID}, {sW}")
            a(f"s_cmp_lg_u32 {sA}, 0")
            a("s_cbranch_scc1 L_noepoch")
            a(f"v_mov_b32 v62, {sTG}")
            a("v_mov_b32 v63, 0")
            a("s_mov_b64 exec, 1")
            a(f"buffer_store_dword v62, v63, {srd(SRD_WS)}, 0 offen")
            a("s_mov_b64 exec, -1")
            a.label("L_noepoch")
        def bound_check():
            a("v_mul_f32 v12, v12, v62")
            a(f"v_cmp_lt_f32 vcc, 0x{f32bits(48.0):x}, v12")
            a("v_cmp_u_f32 s[4:5], v12, v12")
            a("s_or_b64 vcc, vcc, s[4:5]")
            a("s_cmp_lg_u64 vcc, 0")
            a(f"s_cselect_b32 {sG}, 1, 0")
            a(f"v_readfirstlane_b32 {sFast}, v63")
            if X.get("forcefb"): a(f"s_mov_b32 {sG}, 1")
        if not NF3:
            a(f"v_mov_b32 v{VF}, 0x3f803f80")
            for i in range(1, 16):
                a(f"v_mov_b32 v{VF+i}, v{VF}")
            for i in range(16):
                a(f"v_mov_b32 v{O+i}, 0")
            a(f"v_mov_b32 v{IDX}, 0xdddddddd")
            a(f"v_mov_b32 {vKa}, v2")
            a(f"v_add_u32 {vKb}, 0x10000, v2")
            a("v_and_b32 v3, 15, v1")
            a("v_lshlrev_b32 v3, 4, v3")
            a("v_lshrrev_b32 v61, 5, v1")
            a("v_lshl_or_b32 v3, v61, 8, v3")
            a(f"v_add_u32 {vVa}, 1024, v3")
            a(f"v_add_u32 {vVb}, 0x10000, {vVa}")
            self.wt_addr(vT1, vT2)
            self.wt_poll_addr()
            a("s_mov_b32 s6, 0x0000ffff")
            a("s_mov_b32 s7, 0x0000ffff")
        a(f"v_mov_b32 v61, {FB}")
        self.stamp("fin")
        if not NF3:
            a("s_waitcnt vmcnt(2) lgkmcnt(0)")
            a("s_barrier")
        self.stamp("b4")
        a(f"s_cmp_eq_u32 {sKH}, 0")
        a("s_cbranch_scc1 L_clsA")
        def lds_set(off, tmp0="v84", tmp1="v85", perwave=False):
            if perwave:
                a(f"s_and_b32 {sA}, {sW}, 3")
                a(f"s_lshl_b32 {sA}, {sA}, 2")
                a(f"s_add_u32 {sA}, {sA}, {FB + off}")
                a(f"v_mov_b32 {tmp1}, {sA}")
            else:
                a(f"v_mov_b32 {tmp1}, {FB + off}")
            a(f"v_mov_b32 {tmp0}, 1")
            a("s_mov_b64 exec, 1")
            a(f"ds_write_b32 {tmp1}, {tmp0}")
            a("s_mov_b64 exec, -1")
        if NF3:
            for n in range(4, 8): self.rem_dma(n, yk=(n % 2 == 0))
            a("s_waitcnt vmcnt(8)")
            self.fg_set(16, "v224", "v225", perwave=True)
            self.stamp("f1set")
            a(f"s_cmp_eq_u32 {sW}, 7")
            a("s_cbranch_scc0 L_nobc")
            knorm([220, 221, 222, 223])
            a.label("L_nobc")
            a(f"s_setprio {X.get('pb', 1)}")
        else:
            a(f"s_sub_u32 s67, {sW}, 4")
            a(f"s_mov_b32 {sCnt}, 12")
            a.label("L_kvrest")
            a(f"s_add_u32 {sF}, s67, 16")
            a(f"s_cmp_lt_u32 s67, 32")
            a(f"s_cselect_b32 {sF}, s67, {sF}")
            kv_tile(sF)
            a(f"s_add_u32 s67, s67, 4")
            a(f"s_sub_u32 {sCnt}, {sCnt}, 1")
            a(f"s_cmp_lg_u32 {sCnt}, 0")
            a("s_cbranch_scc1 L_kvrest")
            a("s_setprio 1")
            a("s_waitcnt vmcnt(0)")
            a("s_barrier")
        a(f"s_mov_b32 {sPh}, 1")
        a("s_branch L_clsD")
        a.label("L_clsA")
        a("s_setprio 2")
        a(f"s_mov_b32 {sPh}, 0")
        a.label("L_clsD")

        def pos(t):
            if NF3: return t + 32 if t < 8 else (t - 8 if t < 40 else (64 if t == 46 else t))
            return t + 32 if t < 16 else (t - 16 if t < 48 else t)
        def kread(t):
            p_ = pos(t)
            base = vKa if p_ < 32 else vKb
            if p_ == 64:
                a(f"v_add_u32 v120, 0x10000, {vKb}")
                base = "v120"
            a.ds(f"ds_read_b128 {vr(KF+4*(t%2),4)}, {base} offset:{(p_%32)*2048}", f"K{t}")
        def vread(t):
            p_ = pos(t)
            base = vVa if p_ < 32 else vVb
            if p_ == 64:
                a(f"v_add_u32 v121, 0x10000, {vVb}")
                base = "v121"
            a("s_mov_b64 exec, s[6:7]")
            a.ds(f"ds_read_b128 {vr(VF+8*(t%2),4)}, {base} offset:{(p_%32)*2048}", f"V{t}")
            a.ds(f"ds_read_b128 {vr(VF+8*(t%2)+4,4)}, {base} offset:{(p_%32)*2048+512}", f"V{t}")
            a("s_mov_b64 exec, -1")
        def Sr(t): return S0 if t % 2 == 0 else S1
        def ms(t):
            a.wait_lg(f"K{t}")
            a(f"v_mfma_f32_32x32x16_bf16 {vr(Sr(t),16)}, {vr(KF+4*(t%2),4)}, {vr(Q,4)}, 0")
        def sm(t, half):
            a.wait_lg(f"V{t}")
            a(f"v_smfmac_f32_32x32x32_bf16 {vr(O,16)}, {vr(VF+8*(t%2)+4*half,4)}, {vr(Sr(t)+8*half,8)}, v{IDX}")
        def E(t, lo, hi):
            for i in range(lo, hi + 1): a(f"v_exp_f32 v{Sr(t)+i}, v{Sr(t)+i}")

        TA = dict(wt=X.get("Awt", 10), fl=X.get("Afl", 17), bar=13, sw=X.get("sw", 50))
        TB = dict(wt=X.get("Bwt", 0), fl=X.get("Bfl", 2))
        TPOLL, TCHK, TLD0 = X.get("tpoll", 30), X.get("tchk", 32), X.get("tld", 32)
        def cond(cls, name, fn):
            lab = a.newlabel(f"L_{name}")
            a(f"s_cmp_eq_u32 {sKH}, {cls}")
            a(f"s_cbranch_scc0 {lab}")
            fn()
            a.label(lab)
        def b_wt(wait=True):
            if wait: a("s_waitcnt vmcnt(0)")
            a(f"ds_read_b64_tr_b16 v[{WD}:{WD+1}], {vT1}")
            a(f"ds_read_b64_tr_b16 v[{WD+2}:{WD+3}], {vT1} offset:1024")
            a(f"ds_read_b64_tr_b16 v[{WD+4}:{WD+5}], {vT2}")
            a(f"ds_read_b64_tr_b16 v[{WD+6}:{WD+7}], {vT2} offset:1024")
            a("s_waitcnt lgkmcnt(0)")
            a(f"buffer_store_dwordx4 v[{WD}:{WD+3}], v2, {srd(SRD_WS)}, s88 offen sc1")
            a("s_add_u32 s88, s88, s89")
            a(f"buffer_store_dwordx4 v[{WD+4}:{WD+7}], v2, {srd(SRD_WS)}, s88 offen sc1")
        def b_fl(n=0):
            a(f"s_waitcnt vmcnt({n})")
            a(f"s_lshl_b32 {sA}, {sID}, 3")
            a(f"s_add_u32 {sA}, {sA}, {sW}")
            a(f"s_lshl_b32 {sA}, {sA}, 2")
            a(f"s_add_u32 {sA}, {sA}, {WS_FLWT2}")
            a(f"v_mov_b32 v{WD}, {sTG}")
            a(f"v_mov_b32 v{WD+1}, 0")
            a("s_mov_b64 exec, 1")
            a(f"buffer_store_dword v{WD}, v{WD+1}, {srd(SRD_WS)}, {sA} offen sc1")
            a("s_mov_b64 exec, -1")
        def b_fl2():
            a("s_waitcnt vmcnt(0)")
            self.fg_set(80, f"v{WD+2}", f"v{WD+3}", perwave=True)
        def b_f2():
            a("s_waitcnt vmcnt(2)")
            self.fg_set(32, f"v{WD+2}", f"v{WD+3}", perwave=True)
            b_fl(2)
        def fchk_read(off):
            def f(): a.ds(f"ds_read_b128 v[{WD+4}:{WD+7}], v61 offset:{off}", f"fl{off}")
            return f
        def fchk(off):
            def f():
                lok, lsp = a.newlabel("L_fok"), a.newlabel("L_fsp")
                a.wait_lg(f"fl{off}")
                a(f"s_mov_b32 {sCnt}, 2000000")
                a.label(lsp)
                a(f"v_and_b32 v{WD+4}, v{WD+4}, v{WD+5}")
                a(f"v_and_b32 v{WD+6}, v{WD+6}, v{WD+7}")
                a(f"v_and_b32 v{WD+4}, v{WD+4}, v{WD+6}")
                a(f"v_readfirstlane_b32 s4, v{WD+4}")
                a("s_cmp_lg_u32 s4, 0")
                a(f"s_cbranch_scc1 {lok}")
                a(f"ds_read_b128 v[{WD+4}:{WD+7}], v61 offset:{off}")
                a("s_waitcnt lgkmcnt(0)")
                a(f"s_sub_u32 {sCnt}, {sCnt}, 1")
                a(f"s_cmp_eq_u32 {sCnt}, 0")
                a(f"s_cbranch_scc0 {lsp}")
                a.label(lok)
            return f
        def b_bar():
            lab = a.newlabel("L_b5")
            a(f"s_cmp_eq_u32 {sPh}, 1")
            a(f"s_cbranch_scc1 {lab}")
            a("s_barrier")
            a.label(lab)
        def poll_issue():
            a(f"buffer_load_dword v{PL}, v57, {srd(SRD_WS)}, 0 offen sc1")
            a(f"buffer_load_dword v{PL+1}, v58, {srd(SRD_WS)}, 0 offen sc1")
        def poll_check():
            a("s_waitcnt vmcnt(0)")
            a(f"s_mov_b32 {sCnt}, 200000")
            a.label("L_wtchk")
            a(f"v_xor_b32 v{PL}, {sTG}, v{PL}")
            a(f"v_xor_b32 v{PL+1}, {sTG}, v{PL+1}")
            a(f"v_or_b32 v{PL}, v{PL}, v{PL+1}")
            a(f"v_cmp_ne_u32 vcc, 0, v{PL}")
            a("s_cbranch_vccz L_wtok")
            a(f"s_sub_u32 {sCnt}, {sCnt}, 1")
            a(f"s_cmp_eq_u32 {sCnt}, 0")
            a("s_cbranch_scc1 L_wtok")
            a("s_sleep 2")
            poll_issue()
            a("s_waitcnt vmcnt(0)")
            a("s_branch L_wtchk")
            a.label("L_wtok")
        extras = {t: [] for t in range(64)}
        mid = {t: [] for t in range(64)}
        extras[TA["wt"]].append(lambda: cond(0, "wtA", b_wt))
        extras[TB["wt"]].append(lambda: cond(1, "wtB", (lambda: b_wt(False)) if NF3 else b_wt))
        extras[TA["fl"]].append(lambda: cond(0, "flA", b_fl))
        if not NF3: extras[TB["fl"]].append(lambda: cond(1, "flB", b_fl))
        if NF3:
            assert TB["wt"] == 0
            extras[0].append(lambda: cond(1, "r10", lambda: self.rem_dma(10)))
            extras[1].append(lambda: cond(1, "r11", lambda: (b_f2(), self.rem_dma(11, yk=False))))
            extras[2].append(lambda: cond(1, "r12", lambda: self.rem_dma(12)))
            extras[3].append(lambda: cond(1, "r13", lambda: self.rem_dma(13, yk=False)))
            extras[4].append(lambda: cond(1, "r8", lambda: (self.qd_check(), self.rem_dma(8))))
            extras[5].append(lambda: cond(1, "r9", lambda: self.rem_dma(9, yk=False)))
            extras[X.get("Bfl3", 7)].append(lambda: cond(1, "flB", b_fl2))
            NE = X.get("ne", 8)
            T1 = 5
            T2 = 8 + 16 - 3
            mid[T1].append(fchk_read(16)); extras[T1].append(fchk(16))
            mid[T2].append(fchk_read(32)); extras[T2].append(fchk(32))
            T3 = 37
            mid[T3].insert(0, fchk_read(80)); extras[T3].append(fchk(80))
            if self.prof:
                extras[T1].append(lambda: self.stamp("f1ok"))
                extras[T2].append(lambda: self.stamp("f2ok"))
        else:
            extras[TA["bar"]].append(b_bar)
        extras[TA["sw"]].append(lambda: cond(0, "swA", lambda: a("s_setprio 0")))
        def dirty():
            n = X["dirty"]
            a(f"s_lshl_b32 {sA}, {sID}, 3")
            a(f"s_add_u32 {sA}, {sA}, {sW}")
            a(f"s_mul_i32 {sA}, {sA}, {n*1024}")
            a(f"s_add_u32 {sA}, {sA}, {WS_DBG}")
            for i in range(n):
                a(f"buffer_store_dwordx4 v[4:7], v2, {srd(SRD_WS)}, {sA} offen")
                a(f"s_add_u32 {sA}, {sA}, 1024")
        if X.get("dirty"): extras[20].append(dirty)
        D_ = vr(W1H[25], 4) if (X.get("spread", 1) and not X.get("w1first")) else vr(WOH[15], 4)
        sPA, sPB = "s70", "s71"
        def pt_addr():
            a(f"s_lshl_b32 {sA}, {sM}, 2")
            a(f"s_lshl_b32 {sB}, {sFT}, 1")
            a(f"s_add_u32 {sA}, {sA}, {sB}")
            a(f"s_add_u32 {sA}, {sA}, {sKH}")
            a(f"s_lshl_b32 {sA}, {sA}, 1")
            a(f"s_add_u32 {sA}, {sA}, {sTT}")
            a(f"s_lshl_b32 {sB}, {sA}, 10")
            a(f"s_lshl_b32 {sD}, {sC}, 16")
            a(f"s_add_u32 {sPA}, {sB}, {sD}")
            a(f"s_lshr_b32 {sB}, {sA}, 1")
            a(f"s_lshl_b32 {sE_}, {sTT}, 5")
            a(f"s_add_u32 {sB}, {sB}, {sE_}")
            a(f"s_lshl_b32 {sB}, {sB}, 8")
            a(f"s_lshl_b32 {sE_}, {sC}, 14")
            a(f"s_add_u32 {sB}, {sB}, {sE_}")
            a(f"s_add_u32 s72, {sB}, {WS_ST}")
            a(f"s_mul_i32 {sA}, {sM}, 7")
            a(f"s_add_u32 {sA}, {sA}, {sW}")
            a(f"s_min_u32 {sA}, {sA}, 55")
            a(f"s_lshl_b32 {sB}, {sA}, 12")
            a(f"s_mul_i32 {sD}, {sC}, {224*1024}")
            a(f"s_add_u32 {sB}, {sB}, {sD}")
            a(f"s_add_u32 {sPB}, {sB}, {WS_HID}")
        def pt_o():
            a(f"s_add_u32 {sA}, {sPA}, {WS_O}")
            a(f"buffer_load_dwordx4 {D_}, v2, {srd(SRD_WS)}, {sA} offen sc1")
        def pt_h():
            a(f"s_add_u32 {sA}, {sPA}, {WS_H}")
            a(f"buffer_load_dwordx4 {D_}, v2, {srd(SRD_WS)}, {sA} offen sc1")
        def pt_st():
            a("s_mov_b64 exec, 0xffff")
            a(f"buffer_load_dwordx4 {D_}, v2, {srd(SRD_WS)}, s72 offen sc1")
            lab = a.newlabel("L_ptf")
            a(f"s_cmp_eq_u32 {sW}, 7")
            a(f"s_cbranch_scc0 {lab}")
            a(f"s_lshl_b32 {sB}, {sC}, 8")
            for fl in (WS_FLO, WS_FLH, WS_FLHID) + ((WS_FLH1,) if X.get("ts") else ()):
                a(f"s_add_u32 {sA}, {sB}, {fl}")
                a(f"buffer_load_dwordx4 {D_}, v2, {srd(SRD_WS)}, {sA} offen sc1")
            a.label(lab)
            a("s_mov_b64 exec, -1")
        def pt_hid(p):
            def f():
                lab = a.newlabel("L_pth")
                a(f"s_cmp_eq_u32 {sW}, 7")
                a(f"s_cbranch_scc1 {lab}")
                a(f"buffer_load_dwordx4 {D_}, v2, {srd(SRD_WS)}, {sPB} offen offset:{p*1024} sc1")
                a.label(lab)
            return f
        if X.get("pt"):
            t0, stp = X["pt"], X.get("ptstep", 2)
            PM = X.get("ptm", 9)
            seq = []
            if PM & 1: seq += [pt_o, pt_h, pt_st]
            if X.get("sk"):
                def clr(q):
                    def f():
                        lab = a.newlabel("L_clr")
                        a(f"s_cmp_eq_u32 {sFast}, 0")
                        a(f"s_cbranch_scc0 {lab}")
                        if q == 0:
                            a(f"s_lshl_b32 {sA}, {sC}, 3")
                            a(f"s_add_u32 {sA}, {sA}, {sM}")
                            a(f"s_lshl_b32 {sA}, {sA}, 3")
                            a(f"s_add_u32 {sA}, {sA}, {sW}")
                            a(f"s_lshl_b32 {sA}, {sA}, 13")
                            a(f"s_add_u32 {sPB}, {sA}, {WS_P}")
                            for i in range(4): a(f"v_mov_b32 v{WOH[14]+i}, -1")
                        for i in range(2):
                            a(f"buffer_store_dwordx4 {vr(WOH[14],4)}, v2, {srd(SRD_WS)}, {sPB} offen offset:{i*1024}")
                        a(f"s_add_u32 {sPB}, {sPB}, 2048")
                        a.label(lab)
                    return f
                if not X.get('noclr'): seq += [clr(q) for q in range(4)]
            elif X.get("hclr"):
                def hcl(p):
                    def f():
                        lab = a.newlabel("L_hcl")
                        a(f"s_cmp_eq_u32 {sW}, 7")
                        a(f"s_cbranch_scc1 {lab}")
                        a(f"s_cmp_eq_u32 {sFast}, 0")
                        a(f"s_cbranch_scc0 {lab}")
                        if p == 0:
                            for i in range(4): a(f"v_mov_b32 v{WOH[14]+i}, -1")
                        a(f"buffer_store_dwordx4 {vr(WOH[14],4)}, v2, {srd(SRD_WS)}, {sPB} offen offset:{p*1024}")
                        a.label(lab)
                    return f
                if X["hclr"] == 2:
                    th = X.get("hclt", 33)
                    extras[th - 1].append(pt_addr)
                    for p in range(4): extras[th + p].append(pt_hid(p))
                seq += [hcl(p) for p in range(4)]
            elif PM & 8: seq += [pt_hid(p) for p in range(4)]
            extras[t0 - 1].append(pt_addr)
            for n, f in enumerate(seq): extras[t0 + n * stp].append(f)
            assert t0 + (len(seq) - 1) * stp < 52
        def own():
            D = "v[4:7]"
            def body(mod):
                a(f"s_lshl_b32 {sA}, {sM}, 2")
                a(f"s_lshl_b32 {sB}, {sFT}, 1")
                a(f"s_add_u32 {sA}, {sA}, {sB}")
                a(f"s_add_u32 {sA}, {sA}, {sKH}")
                a(f"s_lshl_b32 {sA}, {sA}, 1")
                a(f"s_add_u32 {sA}, {sA}, {sTT}")
                a(f"s_lshl_b32 {sB}, {sA}, 10")
                a(f"s_lshl_b32 {sD}, {sC}, 16")
                a(f"s_add_u32 {sB}, {sB}, {sD}")
                a(f"s_add_u32 {sE_}, {sB}, {WS_O}")
                a(f"buffer_store_dwordx4 {D}, v2, {srd(SRD_WS)}, {sE_} offen{mod}")
                a(f"s_add_u32 {sE_}, {sB}, {WS_H}")
                a(f"buffer_store_dwordx4 {D}, v2, {srd(SRD_WS)}, {sE_} offen{mod}")
                a(f"s_lshr_b32 {sB}, {sA}, 1")
                a(f"s_lshl_b32 {sE_}, {sTT}, 5")
                a(f"s_add_u32 {sB}, {sB}, {sE_}")
                a(f"s_lshl_b32 {sB}, {sB}, 8")
                a(f"s_lshl_b32 {sE_}, {sC}, 14")
                a(f"s_add_u32 {sB}, {sB}, {sE_}")
                a(f"s_add_u32 {sB}, {sB}, {WS_ST}")
                a("s_mov_b64 exec, 0xffff")
                a(f"buffer_store_dwordx4 {D}, v2, {srd(SRD_WS)}, {sB} offen{mod}")
                a("s_mov_b64 exec, -1")
                if X.get("ownout", 1):
                    a("v_and_b32 v59, 31, v1")
                    a("v_lshlrev_b32 v59, 10, v59")
                    a("v_lshrrev_b32 v3, 5, v1")
                    a("v_lshl_or_b32 v59, v3, 4, v59")
                    a(f"s_lshl_b32 {sB}, {sTT}, 5")
                    a(f"s_add_u32 {sB}, {sB}, {sT0}")
                    a(f"s_lshl_b32 {sB}, {sB}, 10")
                    a(f"s_lshl_b32 {sE_}, {sM}, 7")
                    a(f"s_add_u32 {sB}, {sB}, {sE_}")
                    a(f"s_lshl_b32 {sE_}, {sFT}, 6")
                    a(f"s_add_u32 {sB}, {sB}, {sE_}")
                    a(f"s_lshl_b32 {sE_}, {sKH}, 5")
                    a(f"s_add_u32 {sB}, {sB}, {sE_}")
                    a(f"buffer_store_dwordx4 {D}, v59, {srd(SRD_OUT)}, {sB} offen")
                if False:
                    a(f"s_lshl_b32 {sA}, {sC}, 19")
                    a(f"s_lshl_b32 {sB}, {sW}, 16")
                    a(f"s_add_u32 {sA}, {sA}, {sB}")
                    a(f"s_lshl_b32 {sB}, {sM}, 10")
                    a(f"s_add_u32 {sA}, {sA}, {sB}")
                    a(f"s_add_u32 {sA}, {sA}, {WS_P}")
                    for p in range(8):
                        a(f"buffer_store_dwordx4 {D}, v2, {srd(SRD_WS)}, {sA} offen{mod}")
                        a(f"s_add_u32 {sA}, {sA}, 8192")
                else:
                    a(f"s_cmp_eq_u32 {sW}, 7")
                    lab = a.newlabel("L_own7")
                    a(f"s_cbranch_scc1 {lab}")
                    a(f"s_mul_i32 {sA}, {sM}, 7")
                    a(f"s_add_u32 {sA}, {sA}, {sW}")
                    a(f"s_lshl_b32 {sB}, {sA}, 12")
                    a(f"s_mul_i32 {sD}, {sC}, {224*1024}")
                    a(f"s_add_u32 {sB}, {sB}, {sD}")
                    a(f"s_add_u32 {sB}, {sB}, {WS_HID}")
                    for p in range(4):
                        a(f"buffer_store_dwordx4 {D}, v2, {srd(SRD_WS)}, {sB} offen offset:{p*1024}{mod}")
                    a.label(lab)
            l1, l2 = a.newlabel("L_ownS"), a.newlabel("L_ownD")
            a(f"s_cmp_eq_u32 {sFast}, 0")
            a(f"s_cbranch_scc0 {l1}")
            body("")
            a(f"s_branch {l2}")
            a.label(l1)
            body(" sc1")
            a.label(l2)
        if X.get("own"): extras[X["own"]].append(own)
        for k in ("ts1", "ts2", "ts3", "ts4", "ts5", "ts6"):
            if X.get(k) is not None:
                extras[X[k]].append(lambda k=k: self.stamp(k))
        if NF3:
            extras[6].append(epoch)
            mid[22].append(lambda: a.ds(f"ds_read_b64 v[62:63], v61 offset:{BCO}", "bc"))
            extras[22].append(lambda: (a.wait_lg("bc"), bound_check()))
        else:
            extras[1].append(epoch)
            extras[0].insert(0, bound_check)
        extras[TPOLL].append(poll_issue)
        extras[TCHK - 1].append(poll_check)
        def w1load(s_):
            def f():
                a(f"buffer_load_dwordx4 {vr(W1H[s_],4)}, v2, {srd(SRD_WS)}, {sW1B} offen offset:{(s_%4)*1024} sc1")
                if s_ % 4 == 3 and not X.get("fakew"): a(f"s_add_u32 {sW1B}, {sW1B}, 4096")
            return f
        def wo_addr():
            a(f"s_lshl_b32 {sA}, {sM}, 1")
            a(f"s_add_u32 {sA}, {sA}, {sFT}")
            a(f"s_lshl_b32 {sA}, {sA}, 5")
            a(f"s_lshl_b32 {sB}, {sKH}, 4")
            a(f"s_add_u32 {sA}, {sA}, {sB}")
            a(f"s_lshl_b32 {sA}, {sA}, 10")
            a(f"s_add_u32 {sWOB}, {sA}, {WS_WOF}")
            a(f"s_lshl_b32 {sB}, {sKH}, 8")
            a(f"v_xor_b32 v57, {sB}, v2")
        extras[TCHK - 1].append(wo_addr)
        if X.get("fakew"):
            extras[TCHK - 1].append(lambda: (a(f"s_mov_b32 {sW1B}, {WS_W1F}"), a(f"s_mov_b32 {sWOB}, {WS_WOF}")))
        def woload(i):
            def f():
                a(f"buffer_load_dwordx4 {vr(WOH[i],4)}, v57, {srd(SRD_WS)}, {sWOB} offen offset:{(i%4)*1024} sc1")
                if i % 4 == 3 and i < 15 and not X.get("fakew"): a(f"s_add_u32 {sWOB}, {sWOB}, 4096")
            return f
        if X.get("spread", 1):
            seq = [woload(i) for i in range(16)] + [w1load(s_) for s_ in range(NW1PRE)]
            if X.get("w1first"): seq = seq[16:] + seq[:16]
            TEND = X.get("tend", 63)
            ntile = TEND - TLD0 + 1
            for n, f in enumerate(seq):
                mid[TLD0 + (n * ntile) // len(seq)].append(f)
            TWO = TLD0
        else:
            for s_ in range(NW1PRE):
                mid[TLD0 + s_ // 2].append(w1load(s_))
            TWO = TLD0 + NW1PRE // 2
            for i in range(16):
                mid[TWO + i // 2].append(woload(i))

        def pf_addr():
            a(f"s_lshl_b32 {sA}, {sM}, 1")
            a(f"s_add_u32 {sA}, {sA}, {sFT}")
            a(f"s_mul_i32 {sA}, {sA}, 112")
            a(f"s_and_b32 {sB}, {sW}, 3")
            a(f"s_mul_i32 {sB}, {sB}, 28")
            a(f"s_add_u32 {sA}, {sA}, {sB}")
            a(f"s_lshl_b32 {sA}, {sA}, 10")
            a(f"s_add_u32 {sPF}, {sA}, {WS_W2F}")
            a("v_lshlrev_b32 v58, 6, v1")
        def pf(i):
            def f():
                a(f"buffer_load_dword v59, v58, {srd(SRD_WS)}, {sPF} offen sc1")
                a(f"s_add_u32 {sPF}, {sPF}, 4096")
            return f
        def pf_w1():
            a(f"s_add_u32 {sPF}, {sW1B}, 2048")
            a(f"buffer_load_dword v59, v58, {srd(SRD_WS)}, {sPF} offen sc1")
            a(f"buffer_load_dword v59, v58, {srd(SRD_WS)}, {sPF} offen offset:2048 sc1")
        if X.get("pf"):
            TPF = TWO + 8
            extras[TPF - 1].append(pf_addr)
            for i in range(7): mid[TPF + i].append(pf(i))
            mid[TPF + 7].append(pf_w1)

        a.lg = []
        if not NF3: a.ds("ds_read_b64 v[62:63], v61", "bc")
        kread(0); kread(1); vread(0)
        ms(0)
        a("s_nop 11")
        for t in range(64):
            E(t, 0, 1)
            if t > 0: sm(t - 1, 1)
            if t + 1 < 64: vread(t + 1)
            E(t, 2, 5)
            if t + 1 < 64: ms(t + 1)
            if t + 2 < 64: kread(t + 2)
            if mid[t]: mid[t][0]()
            E(t, 6, 11)
            sm(t, 0)
            for f in mid[t][1:]: f()
            E(t, 12, 15)
            for f in extras[t]: f()
        a("s_nop 1")
        sm(63, 1)
        a("s_setprio 0")
        self.stamp("attn")
        a("s_nop 7")
        a("s_nop 3")
        a(f"v_rcp_f32 v3, v{O+8}")
        a(f"v_mul_f32 v80, 0, v{O}")
        a(f"v_mul_f32 v81, 0, v{O+1}")
        for i in range(2, 8, 2):
            a(f"v_fma_f32 v80, v{O+i}, 0, v80")
            a(f"v_fma_f32 v81, v{O+i+1}, 0, v81")
        a("v_add_f32 v80, v80, v81")
        a("v_cmp_u_f32 vcc, v80, v80")
        a("s_cmp_lg_u64 vcc, 0")
        a(f"s_cselect_b32 {sA}, 1, 0")
        a(f"s_or_b32 {sA}, {sA}, {sG}")
        a(f"s_cmp_eq_u32 {sA}, 0")
        a("s_cbranch_scc1 L_nofb")
        a(f"v_mov_b32 v57, {vKa}")
        a("v_mov_b32 v58, 0xff800000")
        a(f"s_mov_b32 {sCnt}, 64")
        a.label("L_fb")
        a(f"ds_read_b128 {vr(KF,4)}, v57")
        if NF3:
            a(f"s_cmp_eq_u32 {sCnt}, 19")
            a("s_cselect_b32 s4, 2, 1")
            a("s_lshl_b32 s4, s4, 11")
            a("v_add_u32 v57, s4, v57")
        else:
            a("v_add_u32 v57, 2048, v57")
        a("s_waitcnt lgkmcnt(0)")
        a(f"v_mfma_f32_32x32x16_bf16 {vr(S0,16)}, {vr(KF,4)}, {vr(Q,4)}, 0")
        for i in range(8):
            a(f"v_max3_f32 v58, v{S0+2*i}, v{S0+2*i+1}, v58")
        a(f"s_sub_u32 {sCnt}, {sCnt}, 1")
        a(f"s_cmp_lg_u32 {sCnt}, 0")
        a("s_cbranch_scc1 L_fb")
        a("v_mov_b32 v57, v58")
        a("v_permlane32_swap_b32 v57, v58")
        a("v_max_f32 v58, v57, v58")
        a(f"v_sub_f32 v{S1}, 0, v58")
        for i in range(1, 16):
            a(f"v_mov_b32 v{S1+i}, v{S1}")
        for i in range(16):
            a(f"v_mov_b32 v{O+i}, 0")
        a(f"v_mov_b32 v57, {vKa}")
        a(f"v_mov_b32 v58, {vVa}")
        a(f"s_mov_b32 {sCnt}, 64")
        a.label("L_fb2")
        a(f"ds_read_b128 {vr(KF,4)}, v57")
        a("s_mov_b64 exec, s[6:7]")
        a(f"ds_read_b128 {vr(VF,4)}, v58")
        a(f"ds_read_b128 {vr(VF+4,4)}, v58 offset:512")
        a("s_mov_b64 exec, -1")
        if NF3:
            a(f"s_cmp_eq_u32 {sCnt}, 19")
            a("s_cselect_b32 s4, 2, 1")
            a("s_lshl_b32 s4, s4, 11")
            a("v_add_u32 v57, s4, v57")
            a("v_add_u32 v58, s4, v58")
        else:
            a("v_add_u32 v57, 2048, v57")
            a("v_add_u32 v58, 2048, v58")
        a("s_waitcnt lgkmcnt(0)")
        a(f"v_mfma_f32_32x32x16_bf16 {vr(S0,16)}, {vr(KF,4)}, {vr(Q,4)}, {vr(S1,16)}")
        for i in range(16):
            a(f"v_exp_f32 v{S0+i}, v{S0+i}")
        a(f"v_smfmac_f32_32x32x32_bf16 {vr(O,16)}, {vr(VF,4)}, {vr(S0,8)}, v{IDX}")
        a(f"v_smfmac_f32_32x32x32_bf16 {vr(O,16)}, {vr(VF+4,4)}, {vr(S0+8,8)}, v{IDX}")
        a(f"s_sub_u32 {sCnt}, {sCnt}, 1")
        a(f"s_cmp_lg_u32 {sCnt}, 0")
        a("s_nop 7")
        a("s_nop 7")
        a("s_cbranch_scc1 L_fb2")
        a(f"v_rcp_f32 v3, v{O+8}")
        a.label("L_nofb")
        OP = 40
        for i in range(8):
            a(f"v_mul_f32 v{O+i}, v3, v{O+i}")
        for i in range(4):
            a(f"v_cvt_pk_bf16_f32 v{OP+i}, v{O+2*i}, v{O+2*i+1}")
        a(f"s_lshl_b32 s88, {sM}, 2")
        a(f"s_lshl_b32 {sB}, {sFT}, 1")
        a(f"s_add_u32 s88, s88, {sB}")
        a(f"s_add_u32 s88, s88, {sKH}")
        a(f"s_lshl_b32 {sB}, s88, 1")
        a(f"s_add_u32 {sB}, {sB}, {sTT}")
        a(f"s_lshl_b32 {sB}, {sB}, 10")
        a(f"s_lshl_b32 {sD}, {sC}, 16")
        a(f"s_add_u32 {sB}, {sB}, {sD}")
        a(f"s_add_u32 {sB}, {sB}, {WS_O}")
        a(f"s_lshl_b32 {sD}, {sTT}, 5")
        a(f"s_add_u32 {sD}, {sD}, s88")
        a(f"s_lshl_b32 {sD}, {sD}, 2")
        a(f"s_lshl_b32 {sE_}, {sC}, 8")
        a(f"s_add_u32 {sD}, {sD}, {sE_}")
        a(f"s_add_u32 {sD}, {sD}, {WS_FLO}")
        self.publish("o", [("dwordx4", vr(OP, 4), "v2", sB, 0)], sD)
        self.stamp("opub")

    def wt_addr(self, vT1, vT2, T=(61, 62, 63)):
        a = self.a
        LDS_E = 132 * 1024
        a(f"v_bfe_u32 v{T[0]}, v1, 2, 2")
        a(f"v_lshrrev_b32 v{T[1]}, 5, v1")
        a(f"v_lshl_add_u32 v{T[1]}, v{T[1]}, 2, v{T[0]}")
        a(f"v_lshlrev_b32 v{T[1]}, 7, v{T[1]}")
        a(f"v_bfe_u32 v{T[2]}, v1, 4, 1")
        a(f"v_lshlrev_b32 v{T[2]}, 5, v{T[2]}")
        a(f"v_and_b32 v{T[0]}, 3, v1")
        a(f"v_lshl_add_u32 v{T[2]}, v{T[0]}, 3, v{T[2]}")
        a(f"v_bfe_u32 v{T[0]}, v1, 3, 1")
        a(f"v_lshlrev_b32 v{T[0]}, 6, v{T[0]}")
        a(f"v_xor_b32 v{T[2]}, v{T[2]}, v{T[0]}")
        a(f"v_add_u32 v{T[1]}, v{T[1]}, v{T[2]}")
        a(f"s_xor_b32 {sA}, {sW}, 1")
        a(f"s_lshl_b32 {sA}, {sA}, 11")
        a(f"s_add_u32 {sA}, {sA}, {LDS_E}")
        a(f"v_add_u32 {vT1}, {sA}, v{T[1]}")
        a(f"v_xor_b32 {vT2}, 64, {vT1}")

    def wt_poll_addr(self):
        a = self.a
        L_pa7, L_pad = a.newlabel("L_pa7"), a.newlabel("L_pad")
        a(f"s_cmp_eq_u32 {sW}, 7")
        a(f"s_cbranch_scc1 {L_pa7}")
        a(f"s_mul_i32 {sA}, {sM}, 7")
        a(f"s_add_u32 {sA}, {sA}, {sW}")
        a(f"s_lshl_b32 {sW1B}, {sA}, 15")
        a(f"s_add_u32 {sW1B}, {sW1B}, {WS_W1F}")
        a(f"s_lshr_b32 {sA}, {sA}, 1")
        a(f"s_lshl_b32 {sA}, {sA}, 5")
        a(f"s_add_u32 {sA}, {sA}, 256")
        a(f"s_branch {L_pad}")
        a.label(L_pa7)
        if self.opt.get("sk"):
            a(f"s_mul_i32 {sB}, {sM}, 14")
            a(f"s_add_u32 {sA}, {sB}, {15*112}")
            a(f"s_lshl_b32 {sW1B}, {sA}, 10")
            a(f"s_add_u32 {sW1B}, {sW1B}, {WS_W2F}")
            a(f"s_min_u32 {sA}, {sB}, 80")
            a(f"s_add_u32 {sA}, {sA}, {1152 + 7*112}")
        else:
            a(f"s_lshl_b32 {sA}, {sM}, 1")
            a(f"s_add_u32 {sA}, {sA}, 1")
            a(f"s_mul_i32 {sA}, {sA}, 112")
            a(f"s_add_u32 {sA}, {sA}, 98")
            a(f"s_lshl_b32 {sW1B}, {sA}, 10")
            a(f"s_add_u32 {sW1B}, {sW1B}, {WS_W2F}")
            a(f"s_mul_i32 {sA}, {sM}, 112")
            a(f"s_add_u32 {sA}, {sA}, {1152 + 80}")
        a.label(L_pad)
        a(f"s_lshl_b32 {sB}, {sM}, 5")
        a(f"s_sub_u32 {sB}, {sB}, 32")
        a(f"v_mov_b32 v57, {sA}")
        a(f"v_mov_b32 v58, {sB}")
        a("v_cmp_gt_u32 vcc, 32, v1")
        a("v_cndmask_b32 v57, v58, v57, vcc")
        a("v_add_u32 v57, v57, v1")
        a("v_lshlrev_b32 v57, 2, v57")
        a(f"v_add_u32 v57, {WS_FLWT2}, v57")
        mm, ww = (sW, sM) if self.opt.get("sk") else (sM, sW)
        a(f"s_mul_i32 {sA}, {mm}, 112")
        if self.opt.get("ps"):
            a(f"s_and_b32 {sB}, {sW}, 6")
            a(f"s_mul_i32 {sB}, {sB}, 14")
        else:
            a(f"s_mul_i32 {sB}, {ww}, 14")
        a(f"s_add_u32 {sA}, {sA}, {sB}")
        a(f"s_add_u32 {sA}, {sA}, 1152")
        a(f"v_min_u32 v58, {27 if self.opt.get('ps') else 13}, v1")
        a(f"v_add_u32 v58, {sA}, v58")
        a("v_lshlrev_b32 v58, 2, v58")
        a(f"v_add_u32 v58, {WS_FLWT2}, v58")

    def publish(self, name, stores, sflag, pre_exec=None, mid=None):
        a = self.a
        a(f"v_mov_b32 v104, s3")
        a(f"v_mov_b32 v105, 0")
        a(f"s_cmp_eq_u32 {sFast}, 0")
        a(f"s_cbranch_scc0 L_pub_slow_{name}")
        for variant, mod in (("fast", ""), ("slow", " sc1")):
            if variant == "slow": a.label(f"L_pub_slow_{name}")
            for st in stores:
                ty, data, voff, soff, io = st[:5]
                if len(st) > 5: a(f"s_mov_b32 exec_hi, 0")
                a(f"buffer_store_{ty} {data}, {voff}, {srd(SRD_WS)}, {soff} offen offset:{io}{mod}")
                if len(st) > 5: a("s_mov_b64 exec, -1")
            if mid: mid()
            a("s_waitcnt vmcnt(0)")
            a("s_mov_b64 exec, 1")
            a(f"buffer_store_dword v104, v105, {srd(SRD_WS)}, {sflag} offen{mod}")
            a("s_mov_b64 exec, -1")
            if variant == "fast": a(f"s_branch L_pub_done_{name}")
        a.label(f"L_pub_done_{name}")

    def wt_issue(self, phase=None):
        a = self.a
        LDS_E = 132 * 1024
        if phase == "go":
            a("s_mov_b32 m0, s64")
            a(f"buffer_load_dwordx4 v123, {srd(SRD_T)}, s87 offen lds")
            a("s_add_u32 m0, s64, 1024")
            a(f"buffer_load_dwordx4 v123, {srd(SRD_T)}, s73 offen lds")
            return
        Lw1, Lwo, Lgo = a.newlabel("L_wt_w1"), a.newlabel("L_wt_wo"), a.newlabel("L_wt_go")
        a(f"s_lshl_b32 {sA}, {sID}, 3")
        a(f"s_add_u32 {sA}, {sA}, {sW}")
        a(f"s_cmp_lt_u32 {sA}, 256")
        a(f"s_cbranch_scc1 {Lwo}")
        a(f"s_cmp_lt_u32 {sA}, 1152")
        a(f"s_cbranch_scc1 {Lw1}")
        a(f"s_sub_u32 {sA}, {sA}, 1152")
        a(f"s_mul_i32 {sB}, {sA}, 9363")
        a(f"s_lshr_b32 {sB}, {sB}, 20")
        a(f"s_mul_i32 {sD}, {sB}, 112")
        a(f"s_sub_u32 {sD}, {sA}, {sD}")
        for i in range(4): a(f"s_mov_b32 s{SRD_T+i}, s{SRD_W2+i}")
        a(f"s_mov_b32 {sF}, 1024")
        a(f"s_mul_i32 s88, {sB}, {2*112}")
        a(f"s_add_u32 s88, s88, {sD}")
        a("s_lshl_b32 s88, s88, 10")
        a(f"s_add_u32 s88, s88, {WS_W2F}")
        a(f"s_mov_b32 s89, {112*1024}")
        a(f"s_branch {Lgo}")
        a.label(Lw1)
        a(f"s_sub_u32 {sA}, {sA}, 256")
        a(f"s_lshr_b32 {sB}, {sA}, 5")
        a(f"s_and_b32 {sD}, {sA}, 31")
        for i in range(4): a(f"s_mov_b32 s{SRD_T+i}, s{SRD_W1+i}")
        a(f"s_mov_b32 {sF}, 3584")
        a(f"s_lshl_b32 s88, {sB}, 6")
        a(f"s_add_u32 s88, s88, {sD}")
        a("s_lshl_b32 s88, s88, 10")
        a(f"s_add_u32 s88, s88, {WS_W1F}")
        a(f"s_mov_b32 s89, {32*1024}")
        a(f"s_branch {Lgo}")
        a.label(Lwo)
        a(f"s_lshr_b32 {sB}, {sA}, 5")
        a(f"s_and_b32 {sD}, {sA}, 31")
        for i in range(4): a(f"s_mov_b32 s{SRD_T+i}, s{SRD_WO+i}")
        a(f"s_mov_b32 {sF}, 1024")
        a(f"s_lshl_b32 s88, {sB}, 6")
        a(f"s_add_u32 s88, s88, {sD}")
        a("s_lshl_b32 s88, s88, 10")
        a(f"s_add_u32 s88, s88, {WS_WOF}")
        a(f"s_mov_b32 s89, {32*1024}")
        a.label(Lgo)
        a(f"s_mul_i32 {sD}, {sD}, {sF}")
        a(f"s_lshl_b32 {sD}, {sD}, 4")
        a(f"s_lshl_b32 {sB}, {sB}, 7")
        a(f"s_add_u32 {sD}, {sD}, {sB}")
        if phase == "pre":
            a("v_lshrrev_b32 v123, 3, v1")
            a(f"v_mul_lo_u32 v123, v123, {sF}")
            a("v_and_b32 v120, 7, v1")
            a("v_bfe_u32 v121, v1, 4, 1")
            a("v_lshlrev_b32 v121, 2, v121")
            a("v_xor_b32 v120, v120, v121")
            a("v_lshl_add_u32 v123, v120, 4, v123")
            a(f"s_xor_b32 s64, {sW}, 1")
            a("s_lshl_b32 s64, s64, 11")
            a(f"s_add_u32 s64, s64, {LDS_E}")
            a(f"s_mov_b32 s87, {sD}")
            a(f"s_lshl_b32 {sB}, {sF}, 3")
            a(f"s_add_u32 s73, {sD}, {sB}")
            return
        a("v_lshrrev_b32 v16, 3, v1")
        a(f"v_mul_lo_u32 v16, v16, {sF}")
        a("v_and_b32 v17, 7, v1")
        a("v_bfe_u32 v18, v1, 4, 1")
        a("v_lshlrev_b32 v18, 2, v18")
        a("v_xor_b32 v17, v17, v18")
        a("v_lshl_add_u32 v16, v17, 4, v16")
        a(f"s_xor_b32 {sA}, {sW}, 1")
        a(f"s_lshl_b32 {sA}, {sA}, 11")
        a(f"s_add_u32 {sA}, {sA}, {LDS_E}")
        a(f"s_mov_b32 m0, {sA}")
        a(f"buffer_load_dwordx4 v16, {srd(SRD_T)}, {sD} offen lds")
        a(f"s_lshl_b32 {sB}, {sF}, 3")
        a(f"s_add_u32 {sD}, {sD}, {sB}")
        a(f"s_add_u32 {sA}, {sA}, 1024")
        a(f"s_mov_b32 m0, {sA}")
        a(f"buffer_load_dwordx4 v16, {srd(SRD_T)}, {sD} offen lds")

    def wt_process(self):
        a = self.a
        LDS_E = 132 * 1024
        a("v_bfe_u32 v106, v1, 2, 2")
        a("v_lshrrev_b32 v107, 5, v1")
        a("v_lshl_add_u32 v107, v107, 2, v106")
        a("v_lshlrev_b32 v107, 7, v107")
        a("v_bfe_u32 v108, v1, 4, 1")
        a("v_lshlrev_b32 v108, 5, v108")
        a("v_and_b32 v109, 3, v1")
        a("v_lshl_add_u32 v108, v109, 3, v108")
        a("v_bfe_u32 v109, v1, 3, 1")
        a("v_lshlrev_b32 v109, 6, v109")
        a("v_xor_b32 v108, v108, v109")
        a("v_add_u32 v107, v107, v108")
        a(f"s_xor_b32 {sA}, {sW}, 1")
        a(f"s_lshl_b32 {sA}, {sA}, 11")
        a(f"s_add_u32 {sA}, {sA}, {LDS_E}")
        a(f"v_add_u32 v107, {sA}, v107")
        a("v_xor_b32 v108, 64, v107")
        a("ds_read_b64_tr_b16 v[112:113], v107")
        a("ds_read_b64_tr_b16 v[114:115], v107 offset:1024")
        a("ds_read_b64_tr_b16 v[116:117], v108")
        a("ds_read_b64_tr_b16 v[118:119], v108 offset:1024")
        a("s_waitcnt lgkmcnt(0)")
        a(f"buffer_store_dwordx4 v[112:115], v2, {srd(SRD_WS)}, s88 offen sc1")
        a("s_add_u32 s88, s88, s89")
        a(f"buffer_store_dwordx4 v[116:119], v2, {srd(SRD_WS)}, s88 offen sc1")


    def colsum(self, homes, first):
        a = self.a
        n = 0
        a("s_mov_b32 s5, 0x3f803f80")
        for hm in homes:
            for i in range(4):
                r = "v106" if n % 2 == 0 else "v107"
                a(f"v_dot2_f32_bf16 {r}, v{hm+i}, s5, {'0' if (first and n < 2) else r}")
                n += 1

    def p3(self):
        a = self.a
        X_ = self.opt
        HB, X, ACC, BR = 4, 56, 24, 64
        LDS_OF, LDS_E2 = 0, 128 * 1024
        sS = "s88"
        a("v_and_b32 v3, 31, v1")
        a("v_lshlrev_b32 v3, 10, v3")
        a("v_lshrrev_b32 v104, 5, v1")
        a("v_lshl_or_b32 v3, v104, 3, v3")
        a(f"s_lshl_b32 {sA}, {sTT}, 5")
        a(f"s_add_u32 {sA}, {sA}, {sT0}")
        a(f"s_lshl_b32 {sA}, {sA}, 10")
        a(f"s_lshl_b32 {sB}, {sS}, 5")
        a(f"s_add_u32 {sA}, {sA}, {sB}")
        a(f"buffer_load_dwordx2 {vr(X,2)}, v3, {srd(SRD_X)}, {sA} offen")
        a(f"buffer_load_dwordx2 {vr(X+2,2)}, v3, {srd(SRD_X)}, {sA} offen offset:16")
        CSR = X_.get("csr")
        NC1 = X_.get("csn", 13)
        def csB(homes, first, nm):
            if CSR != 2:
                a(f"s_cmp_lt_u32 {sW}, 4")
                a(f"s_cbranch_scc1 L_nocs_{nm}")
            a(f"s_cmp_eq_u32 {sW}, 7")
            a(f"s_cbranch_scc1 L_nocs_{nm}")
            self.colsum(homes, first)
            a.label(f"L_nocs_{nm}")
        NCA = X_.get("csa", 0)
        if CSR == 2 and NCA:
            pass
        if CSR == 1:
            a(f"s_cmp_lt_u32 {sW}, 4")
            a("s_cbranch_scc0 L_nocsA")
            self.colsum(W1H[:NW1PRE], True)
            a.label("L_nocsA")
        BP = X_.get("bp", 0)
        if BP:
            a(f"s_cmp_eq_u32 {sW}, 7")
            a("s_cbranch_scc0 L_bp_noz")
            for i in range(4): a(f"v_mov_b32 v{208+i}, 0")
            a(f"v_mov_b32 v104, {LDS_SY}")
            a("s_mov_b64 exec, 1")
            a("ds_write_b128 v104, v[208:211]")
            a("ds_write_b128 v104, v[208:211] offset:16")
            a("s_mov_b64 exec, -1")
            a("s_waitcnt lgkmcnt(0)")
            a.label("L_bp_noz")
        a("s_barrier")
        self.stamp("b7")
        if not CSR:
            a(f"s_cmp_eq_u32 {sW}, 7")
            a("s_cbranch_scc1 L_nocs1")
            self.colsum(W1H[:NW1PRE], True)
            a.label("L_nocs1")
        a(f"s_lshl_b32 {sA}, {sTT}, 5")
        a(f"s_lshl_b32 {sB}, {sKH}, 4")
        a(f"s_add_u32 {sA}, {sA}, {sB}")
        a(f"s_lshl_b32 {sA}, {sA}, 2")
        a(f"s_lshl_b32 {sB}, {sC}, 8")
        a(f"s_add_u32 {sA}, {sA}, {sB}")
        a(f"s_add_u32 {sA}, {sA}, {WS_FLO}")
        a("v_and_b32 v3, 15, v1")
        a("v_lshlrev_b32 v3, 2, v3")
        if BP & 1:
            a(f"s_lshl_b32 s67, {sC}, 8")
            a(f"s_add_u32 s67, s67, {WS_FLO}")
            def pre_o():
                if CSR and NC1: csB(W1H[:NC1], True, "b1")
            self.bpoll("bo", "s67", 3, pre_o)
        elif CSR:
            a(f"s_mov_b32 s67, {sA}")
            a(f"buffer_load_dword v104, v3, {srd(SRD_WS)}, s67 offen sc1")
            if NC1: csB(W1H[:NC1], True, "b1")
            a(f"s_mov_b32 {sCnt}, 200000")
            a.label("L_poll_o")
            a("s_waitcnt vmcnt(0)")
            a("v_cmp_ne_u32 vcc, s3, v104")
            a("s_cbranch_vccz L_pollok_o")
            a(f"s_sub_u32 {sCnt}, {sCnt}, 1")
            a(f"s_cmp_eq_u32 {sCnt}, 0")
            a("s_cbranch_scc1 L_pollok_o")
            a("s_sleep 1")
            a(f"buffer_load_dword v104, v3, {srd(SRD_WS)}, s67 offen sc1")
            a("s_branch L_poll_o")
            a.label("L_pollok_o")
        else:
            self.poll_begin("o")
            a(f"buffer_load_dword v104, v3, {srd(SRD_WS)}, {sA} offen sc1")
            a("s_waitcnt vmcnt(0)")
            a("v_cmp_ne_u32 vcc, s3, v104")
            self.poll_end("o", sleep=1)
        self.stamp("ook")
        a(f"s_lshl_b32 {sA}, {sKH}, 4")
        a(f"s_lshl_b32 {sB}, {sFT}, 2")
        a(f"s_add_u32 {sA}, {sA}, {sB}")
        a(f"s_lshl_b32 {sA}, {sA}, 1")
        a(f"s_add_u32 {sA}, {sA}, {sTT}")
        a(f"s_lshl_b32 {sA}, {sA}, 10")
        a(f"s_lshl_b32 {sB}, {sC}, 16")
        a(f"s_add_u32 {sB}, {sB}, {sA}")
        a(f"s_add_u32 {sB}, {sB}, {WS_O}")
        for st in range(2):
            for i in range(4):
                d = (st * 8 + i) * 2048
                a(f"s_add_u32 {sD}, {sA}, {d + LDS_OF}")
                a(f"s_add_u32 {sE_}, {sB}, {d}")
                a(f"s_mov_b32 m0, {sD}")
                a(f"buffer_load_dwordx4 v2, {srd(SRD_WS)}, {sE_} offen sc1 lds")
            if st == 0 and X_.get("p3p"):
                if CSR:
                    a(f"s_mov_b32 s67, {sA}")
                    a(f"s_mov_b32 s68, {sB}")
                    csB(W1H[NC1:NW1PRE], NC1 == 0, "b2")
                    a(f"s_mov_b32 {sA}, s67")
                    a(f"s_mov_b32 {sB}, s68")
                a(f"s_waitcnt vmcnt({X_.get('p3n', 2)})")
        nrest = 32 - NW1PRE
        if CSR and not X_.get("p3p"): csB(W1H[NC1:NW1PRE], NC1 == 0, "b2")
        a(f"s_lshl_b32 {sA}, {sKH}, 15")
        a(f"s_lshl_b32 {sB}, {sTT}, 10")
        a(f"s_add_u32 {sA}, {sA}, {sB}")
        a(f"v_add_u32 v104, {sA}, v2")
        def late_loads():
            for s_ in range(NW1PRE, 32):
                a(f"buffer_load_dwordx4 {vr(W1H[s_],4)}, v2, {srd(SRD_WS)}, {sW1B} offen offset:{(s_%4)*1024} sc1")
                if s_ % 4 == 3 and s_ < 31: a(f"s_add_u32 {sW1B}, {sW1B}, 4096")
        a.lg = []
        for st in range(2):
            if st == 0: self.stamp("p3w")
            a(f"s_waitcnt vmcnt({4 if st == 0 else 0})")
            if st == 0: self.stamp("p3v")
            a("s_barrier")
            self.stamp(f"p3s{st}")
            for i in range(8):
                a.ds(f"ds_read_b128 {vr(BR+4*i,4)}, v104 offset:{(st*8+i)*2048}", f"b{st}{i}")
            if st == 1 and not X_.get("lw1"): late_loads()
            for i in range(8):
                a.wait_lg(f"b{st}{i}")
                k = st * 8 + i
                srcC = "0" if k == 0 else vr(ACC, 16)
                a(f"v_mfma_f32_32x32x16_bf16 {vr(ACC,16)}, {vr(WOH[k],4)}, {vr(BR+4*i,4)}, {srcC}")
        self.stamp("p3mm")
        a(f"s_lshl_b32 {sA}, {sW}, 11")
        a(f"s_add_u32 {sA}, {sA}, {LDS_E2}")
        a(f"v_add_u32 v104, {sA}, v2")
        a(f"ds_write_b128 v104, {vr(ACC+8,4)}")
        a(f"ds_write_b128 v104, {vr(ACC+12,4)} offset:1024")
        a("s_waitcnt lgkmcnt(0)")
        a("s_barrier")
        a("v_xor_b32 v104, 8192, v104")
        a(f"ds_read_b128 {vr(BR,4)}, v104")
        a(f"ds_read_b128 {vr(BR+4,4)}, v104 offset:1024")
        for i in range(4):
            a(f"v_lshlrev_b32 v{BR+8+2*i}, 16, v{X+i}")
            a(f"v_and_b32 v{BR+9+2*i}, 0xffff0000, v{X+i}")
        a(f"s_lshl_b32 {sA}, {sS}, 1")
        a(f"s_add_u32 {sA}, {sA}, {sTT}")
        a(f"s_lshl_b32 {sA}, {sA}, 10")
        a(f"s_lshl_b32 {sB}, {sC}, 16")
        a(f"s_add_u32 {sA}, {sA}, {sB}")
        a(f"s_add_u32 {sA}, {sA}, {WS_H}")
        a(f"s_lshl_b32 {sD}, {sTT}, 5")
        a(f"s_add_u32 {sD}, {sD}, {sS}")
        a(f"s_lshl_b32 {sD}, {sD}, 2")
        a(f"s_lshl_b32 {sE_}, {sC}, 8")
        a(f"s_add_u32 {sD}, {sD}, {sE_}")
        a(f"s_add_u32 {sD}, {sD}, {WS_FLH}")
        for i in range(8):
            a(f"v_add_f32 v{ACC+i}, v{ACC+i}, v{BR+8+i}")
        a("s_waitcnt lgkmcnt(0)")
        for i in range(8):
            a(f"v_add_f32 v{ACC+i}, v{ACC+i}, v{BR+i}")
        for i in range(4):
            a(f"v_cvt_pk_bf16_f32 v{HB+i}, v{ACC+2*i}, v{ACC+2*i+1}")
        a("s_mov_b32 s5, 0x3f803f80")
        a(f"v_dot2_f32_bf16 v56, v{HB}, s5, 0")
        a(f"v_dot2_f32_bf16 v57, v{HB}, v{HB}, 0")
        for i in range(1, 4):
            a(f"v_dot2_f32_bf16 v56, v{HB+i}, s5, v56")
            a(f"v_dot2_f32_bf16 v57, v{HB+i}, v{HB+i}, v57")
        a("v_mov_b32 v58, v56")
        a("v_mov_b32 v59, v57")
        a("v_permlane32_swap_b32 v56, v58")
        a("v_permlane32_swap_b32 v57, v59")
        a("v_add_f32 v56, v56, v58")
        a("v_add_f32 v57, v57, v59")
        a(f"s_lshl_b32 {sB}, {sTT}, 5")
        a(f"s_add_u32 {sB}, {sB}, {sS}")
        a(f"s_lshl_b32 {sB}, {sB}, 8")
        a(f"s_lshl_b32 {sE_}, {sC}, 14")
        a(f"s_add_u32 {sB}, {sB}, {sE_}")
        a(f"s_add_u32 {sB}, {sB}, {WS_ST}")
        a("v_lshlrev_b32 v3, 3, v1")
        self.publish("h", [("dwordx4", vr(HB, 4), "v2", sA, 0), ("dwordx2", "v[56:57]", "v3", sB, 0, "lo32")], sD)
        self.stamp("hpub")
        if X_.get("lw1"): late_loads()

    def w2load(self, f, i):
        a = self.a
        hm = (W2H0 if f == 0 else W2H1)[i]
        ii = i + 7 if (self.opt.get("ps") and i >= 7) else i
        off = (f * 112 + ii) * 1024
        a(f"s_add_u32 {sA}, s89, {off}")
        a(f"buffer_load_dwordx4 {vr(hm,4)}, v2, {srd(SRD_WS)}, {sA} offen sc1")

    def p4(self):
        a = self.a
        HB, ACC, BR = 4, 64, 108
        LDS_HF, LDS_ST2, LDS_CS1, LDS_B1 = 64 * 1024, 144 * 1024, 145 * 1024, 146 * 1024
        SK = self.opt.get("sk")
        STF = SK or self.opt.get("stf")
        a(f"s_mul_i32 {sA}, {sW if SK else sM}, 224")
        if self.opt.get("ps"):
            a(f"s_and_b32 {sB}, {sW}, 6")
            a(f"s_mul_i32 {sB}, {sB}, 14")
            a(f"s_mul_i32 {sD}, {sTT}, 7")
            a(f"s_add_u32 {sB}, {sB}, {sD}")
        else:
            a(f"s_mul_i32 {sB}, {sM if SK else sW}, 14")
        a(f"s_add_u32 {sA}, {sA}, {sB}")
        a(f"s_lshl_b32 {sA}, {sA}, 10")
        a(f"s_add_u32 s89, {sA}, {WS_W2F}")
        if SK:
            a(f"s_lshl_b32 {sA}, {sM}, 7")
            a(f"s_lshl_b32 {sB}, {sFT}, 6")
            a(f"s_add_u32 {sA}, {sA}, {sB}")
            a(f"s_lshl_b32 {sB}, {sKH}, 5")
            a(f"s_add_u32 s70, {sA}, {sB}")
            a("v_lshrrev_b32 v3, 5, v1")
            a("v_lshlrev_b32 v3, 3, v3")
            a(f"buffer_load_dwordx2 v[148:149], v3, {srd(SRD_B2)}, s70 offen")
            a(f"buffer_load_dwordx2 v[150:151], v3, {srd(SRD_B2)}, s70 offen offset:16")
        for i in range(NW2E): self.w2load(0, i)
        a(f"s_cmp_eq_u32 {sW}, 7")
        a("s_cbranch_scc1 L_p4_pre7")
        if self.opt.get("lw1"): a(f"s_waitcnt vmcnt({NW2E + (2 if SK else 0)})")
        self.colsum(W1H[NW1PRE:], False)
        a("v_add_f32 v106, v106, v107")
        a("v_mov_b32 v107, v106")
        a("v_permlane32_swap_b32 v106, v107")
        a("v_add_f32 v106, v106, v107")
        a("v_and_b32 v107, 31, v1")
        a("v_lshlrev_b32 v107, 2, v107")
        a(f"s_lshl_b32 {sA}, {sW}, 7")
        a(f"s_add_u32 {sA}, {sA}, {LDS_CS1}")
        a(f"v_add_u32 v107, {sA}, v107")
        a("ds_write_b32 v107, v106")
        a("s_branch L_p4_pre")
        a.label("L_p4_pre7")
        a(f"s_mul_i32 {sA}, {sM}, 448")
        a("v_lshlrev_b32 v3, 3, v1")
        a("v_min_u32 v3, 440, v3")
        BPH = self.opt.get("bp", 0) & 2
        if BPH:
            a(f"buffer_load_dwordx2 v[216:217], v3, {srd(SRD_B1)}, {sA} offen")
        else:
            a(f"buffer_load_dwordx2 v[106:107], v3, {srd(SRD_B1)}, {sA} offen")
            a("s_waitcnt vmcnt(0)")
            a("v_lshlrev_b32 v108, 16, v106")
            a("v_and_b32 v109, 0xffff0000, v106")
            a("v_lshlrev_b32 v110, 16, v107")
            a("v_and_b32 v111, 0xffff0000, v107")
            for i in range(4): a(f"v_mul_f32 v{108+i}, 0.5, v{108+i}")
            a("v_lshlrev_b32 v3, 1, v3")
            a(f"v_add_u32 v3, {LDS_B1}, v3")
            a("ds_write_b128 v3, v[108:111]")
        STF = SK or self.opt.get("stf")
        if STF and not self.opt.get("bp"):
            for i in range(4): a(f"v_mov_b32 v{108+i}, 0")
            a(f"v_mov_b32 v3, {LDS_SY}")
            a("s_mov_b64 exec, 1")
            a("ds_write_b128 v3, v[108:111]")
            if self.opt.get("pr"): a("ds_write_b128 v3, v[108:111] offset:16")
            a("s_mov_b64 exec, -1")
        a.label("L_p4_pre")
        a(f"s_lshl_b32 {sA}, {sC}, 8")
        a(f"s_add_u32 {sA}, {sA}, {WS_FLH}")
        a("v_lshlrev_b32 v3, 2, v1")
        if self.opt.get("bp", 0) & 2:
            a(f"s_mov_b32 s67, {sA}")
            self.bpoll("bh", "s67", 4)
            a(f"s_cmp_eq_u32 {sW}, 7")
            a("s_cbranch_scc0 L_bp_nob1")
            a("v_lshlrev_b32 v212, 16, v216")
            a("v_and_b32 v213, 0xffff0000, v216")
            a("v_lshlrev_b32 v214, 16, v217")
            a("v_and_b32 v215, 0xffff0000, v217")
            for i in range(4): a(f"v_mul_f32 v{212+i}, 0.5, v{212+i}")
            a("v_lshlrev_b32 v3, 3, v1")
            a("v_min_u32 v3, 440, v3")
            a("v_lshlrev_b32 v3, 1, v3")
            a(f"v_add_u32 v3, {LDS_B1}, v3")
            a("ds_write_b128 v3, v[212:215]")
            a.label("L_bp_nob1")
        else:
            self.poll_begin("h")
            a(f"buffer_load_dword v104, v3, {srd(SRD_WS)}, {sA} offen sc1")
            a("s_waitcnt vmcnt(0)")
            a("v_cmp_ne_u32 vcc, s3, v104")
            self.poll_end("h", sleep=1)
        self.stamp("hok")
        a(f"s_lshl_b32 s67, {sW}, 11")
        a(f"s_lshl_b32 {sB}, {sC}, 16")
        a(f"s_add_u32 {sB}, {sB}, s67")
        a(f"s_add_u32 s68, {sB}, {WS_H}")
        def hdma(i):
            for tt in range(2):
                d = i * 8 * 2048 + tt * 1024
                a(f"s_add_u32 {sD}, s67, {d + LDS_HF}")
                a(f"s_add_u32 {sE_}, s68, {d}")
                a(f"s_mov_b32 m0, {sD}")
                a(f"buffer_load_dwordx4 v2, {srd(SRD_WS)}, {sE_} offen sc1 lds")
        TS = self.opt.get("ts")
        def hd1(i, tt):
            d = i * 8 * 2048 + tt * 1024
            a(f"s_add_u32 {sD}, s67, {d + LDS_HF}")
            a(f"s_add_u32 {sE_}, s68, {d}")
            a(f"s_mov_b32 m0, {sD}")
            a(f"buffer_load_dwordx4 v2, {srd(SRD_WS)}, {sE_} offen sc1 lds")
        def stats_loads():
            SL = 64
            a("v_lshlrev_b32 v3, 4, v1")
            a(f"s_lshl_b32 {sA}, {sC}, 14")
            a(f"s_add_u32 {sA}, {sA}, {WS_ST}")
            for q in range(16):
                a(f"buffer_load_dwordx4 {vr(SL+4*q,4)}, v3, {srd(SRD_WS)}, {sA} offen offset:{(q%4)*1024} sc1")
                if q % 4 == 3 and q < 15: a(f"s_add_u32 {sA}, {sA}, 4096")
        if TS:
            for i in range(4): hd1(i, 0)
            a(f"s_cmp_eq_u32 {sW}, 7")
            a("s_cbranch_scc0 L_ts_n7")
            stats_loads()
            a("s_waitcnt vmcnt(18) lgkmcnt(0)")
            a("s_branch L_ts_s0")
            a.label("L_ts_n7")
            a("s_waitcnt vmcnt(2) lgkmcnt(0)")
            a.label("L_ts_s0")
        else:
            hdma(0)
            if self.opt.get("h4p"): a(f"s_waitcnt vmcnt({self.opt['h4p'] - 1})")
            hdma(1)
        a(f"v_add_u32 v104, {LDS_HF}, v2")
        if not TS: a("s_waitcnt vmcnt(2) lgkmcnt(0)" if STF else "s_waitcnt vmcnt(2)")
        a("s_barrier")
        self.stamp("f1a")
        if TS:
            for i in range(4): hd1(i, 1)
        else:
            hdma(2); hdma(3)
        a(f"s_cmp_eq_u32 {sW}, 7")
        a("s_cbranch_scc1 L_p4_w7")
        a.lg = []
        NR = 3
        if TS: self.p4_ts(LDS_ST2, LDS_CS1)
        def hread(k):
            sl = k % NR
            a.ds(f"ds_read_b128 {vr(BR+8*sl,4)}, v104 offset:{k*2048}", f"h{k}")
            a.ds(f"ds_read_b128 {vr(BR+8*sl+4,4)}, v104 offset:{k*2048+1024}", f"h{k}")
        for k in range(NR - 1 if not TS else 0): hread(k)
        lst = [(0, i) for i in range(NW2E, 14)] + [(1, i) for i in range(14)]
        sched = {}
        for n, (f, i) in enumerate(lst):
            st = (n * self.opt.get("w2s", 30)) // len(lst) + self.opt.get("w2o", 1); assert st <= 31
            if f == 1: st = max(st, i)
            sched.setdefault(st, []).append((f, i))
        issued = 0
        for k in range(32 if not TS else 0):
            if k == 8 - (NR - 1):
                self.stamp("s1w")
                a(f"s_waitcnt vmcnt({4 + issued})")
                a("s_barrier")
                self.stamp("s1b")
            if k == 16 - (NR - 1):
                self.stamp("s2w")
                a(f"s_waitcnt vmcnt({issued})")
                a("s_barrier")
                self.stamp("f1b")
            if STF and k == self.opt.get("skp", 24):
                lab = a.newlabel("L_skp")
                a(f"s_cmp_eq_u32 {sKH}, 0")
                a(f"s_cbranch_scc1 {lab}")
                a("s_setprio 1")
                a.label(lab)
            if k + NR - 1 < 32: hread(k + NR - 1)
            a.wait_lg(f"h{k}")
            sl = k % NR
            for tt in range(2):
                srcC = "0" if k == 0 else vr(ACC + 16 * tt, 16)
                a(f"v_mfma_f32_32x32x16_bf16 {vr(ACC+16*tt,16)}, {vr(W1H[k],4)}, {vr(BR+8*sl+4*tt,4)}, {srcC}")
            if k == 23: self.stamp("k24")
            for (f, i) in (sched.get(k, []) if not self.opt.get("now2") else []):
                self.w2load(f, i)
                issued += 1
        self.stamp("f1c")
        if STF:
            a(f"v_mov_b32 v105, {LDS_SY}")
            if not SK:
                a("v_mov_b32 v106, 1")
                a("s_mov_b64 exec, 1")
                a("ds_add_u32 v105, v106 offset:4")
                a("s_mov_b64 exec, -1")
            if not TS: self.lds_spin("st", 105, 0, 1)
        else:
            a("s_barrier")
        a.lg = []
        CS, BF = 108, 208
        a("v_and_b32 v3, 31, v1")
        a("v_lshlrev_b32 v3, 3, v3")
        a(f"v_add_u32 v3, {LDS_ST2}, v3")
        a("ds_read_b64 v[104:105], v3")
        a("ds_read_b64 v[106:107], v3 offset:256")
        a("v_lshrrev_b32 v3, 5, v1")
        a("v_lshlrev_b32 v3, 4, v3")
        a(f"s_lshl_b32 {sA}, {sW}, 7")
        a(f"s_add_u32 {sA}, {sA}, {LDS_CS1}")
        a(f"v_add_u32 v3, {sA}, v3")
        for q in range(4):
            a(f"ds_read_b128 {vr(CS+4*q,4)}, v3 offset:{32*q}")
        for q in range(4):
            a(f"ds_read_b128 {vr(BF+4*q,4)}, v3 offset:{1024 + 32*q}")
        a("s_waitcnt lgkmcnt(0)")
        self.stamp("ffn1")
        HP = 236
        for tt in ([1] if TS else range(2)):
            mu, rs = 104 + 2 * tt, 105 + 2 * tt
            A = ACC + 16 * tt
            for r in range(16): a(f"v_fma_f32 v{A+r}, -v{mu}, v{CS+r}, v{A+r}")
            for r in range(16): a(f"v_fma_f32 v{A+r}, v{A+r}, v{rs}, v{BF+r}")
            for r in range(16): a(f"v_add_f32 v{A+r}, v{A+r}, |v{A+r}|")
            for r in range(16): a(f"v_mul_f32 v{A+r}, v{A+r}, v{A+r}")
            for i in range(8): a(f"v_cvt_pk_bf16_f32 v{HP+8*tt+i}, v{A+2*i}, v{A+2*i+1}")
        if SK:
            a(f"s_lshl_b32 {sA}, {sW}, 12")
            a(f"v_add_u32 v3, {sA}, v2")
            for u in range(2):
                for tt in range(2):
                    a(f"ds_write_b128 v3, {vr(HP + 8 * tt + 4 * u, 4)} offset:{u * 2048 + tt * 1024}")
            a(f"s_lshl_b32 {sA}, {sKH}, 2")
            a(f"s_add_u32 {sA}, {sA}, {LDS_SY + 4}")
            a(f"v_mov_b32 v104, {sA}")
            a("v_mov_b32 v105, 1")
            a("s_waitcnt lgkmcnt(0)")
            a("s_mov_b64 exec, 1")
            a("ds_add_u32 v104, v105")
            a("s_mov_b64 exec, -1")
            a("s_setprio 0")
            self.stamp("hidw")
            a("s_branch L_p4_done")
        if self.opt.get("oh"):
            a(f"s_lshl_b32 {sA}, {sW}, 12")
            a(f"s_cmp_lt_u32 {sW}, 4")
            a(f"s_cselect_b32 {sB}, 0, {148*1024 - 4*4096 - 128*1024}")
            a(f"s_add_u32 {sB}, {sB}, {128*1024}")
            a(f"s_add_u32 {sA}, {sA}, {sB}")
            a(f"v_add_u32 v3, {sA}, v2")
            for u in range(2):
                for tt in range(2):
                    a(f"ds_write_b128 v3, {vr(HP + 8 * tt + 4 * u, 4)} offset:{u * 2048 + tt * 1024}")
        a(f"s_mul_i32 {sA}, {sM}, 7")
        a(f"s_add_u32 {sA}, {sA}, {sW}")
        a(f"s_lshl_b32 {sB}, {sA}, 12")
        a(f"s_mul_i32 {sD}, {sC}, {224*1024}")
        a(f"s_add_u32 {sB}, {sB}, {sD}")
        a(f"s_add_u32 {sB}, {sB}, {WS_HID}")
        a(f"s_lshl_b32 {sD}, {sA}, 2")
        a(f"s_lshl_b32 {sE_}, {sC}, 8")
        a(f"s_add_u32 {sD}, {sD}, {sE_}")
        a(f"s_add_u32 {sD}, {sD}, {WS_FLHID}")
        if TS: a(f"s_add_u32 {sD}, {sD}, {WS_FLH1 - WS_FLHID}")
        st = []
        for u in range(2):
            for tt in ([1] if TS else range(2)):
                st.append(("dwordx4", vr(HP + 8 * tt + 4 * u, 4), "v2", sB, u * 2048 + tt * 1024))
        def midB():
            lab = a.newlabel("L_midb")
            a(f"s_cmp_eq_u32 {sKH}, 0")
            a(f"s_cbranch_scc1 {lab}")
            a(f"v_mov_b32 v106, {LDS_SY}")
            a("v_mov_b32 v107, 1")
            a("s_mov_b64 exec, 1")
            a("ds_add_u32 v106, v107 offset:8")
            a("s_mov_b64 exec, -1")
            a.label(lab)
        def midO():
            a(f"v_mov_b32 v106, {LDS_SY}")
            a("v_mov_b32 v107, 1")
            a("s_waitcnt lgkmcnt(0)")
            a("s_mov_b64 exec, 1")
            a("ds_add_u32 v106, v107 offset:8")
            a("s_mov_b64 exec, -1")
        self.publish("hid", st, sD, mid=midO if self.opt.get("oh") else (midB if self.opt.get("sp5") == 2 else None))
        if STF: a("s_setprio 0")
        if self.opt.get("wbl2"):
            a(f"s_cmp_eq_u32 {sW}, 0")
            a("s_cbranch_scc0 L_nowb")
            a(f"s_cmp_lt_u32 {sID}, {self.opt['wbl2']}")
            a("s_cbranch_scc0 L_nowb")
            a("buffer_wbl2 sc1")
            a.label("L_nowb")
        a("s_branch L_p4_done")
        a.label("L_p4_w7")
        SL = 64
        if not TS: stats_loads()
        a("s_waitcnt vmcnt(20)")
        a("s_barrier")
        if TS:
            a("s_waitcnt vmcnt(4)")
        else:
            a("s_waitcnt vmcnt(16)")
            a("s_barrier")
            for i in range(NW2E, 14): self.w2load(0, i)
            if self.opt.get("ps"):
                for i in range(14): self.w2load(1, i)
            a(f"s_waitcnt vmcnt({14 - NW2E + (14 if self.opt.get('ps') else 0)})")
        for tt in range(2):
            B = SL + 32 * tt
            for q in range(1, 8):
                for c in range(4): a(f"v_add_f32 v{B+c}, v{B+c}, v{B+4*q+c}")
        R = [SL + c for c in range(4)] + [SL + 32 + c for c in range(4)]
        T = [SL + 8 + c for c in range(8)]
        for sw in ("16", "32"):
            for r, t in zip(R, T): a(f"v_mov_b32 v{t}, v{r}")
            for r, t in zip(R, T): a(f"v_permlane{sw}_swap_b32 v{r}, v{t}")
            for r, t in zip(R, T): a(f"v_add_f32 v{r}, v{r}, v{t}")
        for tt in range(2):
            for u in range(2):
                s_, q_ = SL + 32 * tt + 2 * u, SL + 32 * tt + 2 * u + 1
                a(f"v_mul_f32 v{s_}, 0x{f32bits(1/512):x}, v{s_}")
                a(f"v_mul_f32 v{q_}, 0x{f32bits(1/512):x}, v{q_}")
                a(f"v_fma_f32 v{q_}, -v{s_}, v{s_}, v{q_}")
                a(f"v_max_f32 v{q_}, 0, v{q_}")
                a(f"v_add_f32 v{q_}, 0x{f32bits(1e-5):x}, v{q_}")
                a(f"v_rsq_f32 v{q_}, v{q_}")
                a(f"v_mul_f32 v{q_}, 0.5, v{q_}")
        a("v_and_b32 v3, 15, v1")
        a("v_lshlrev_b32 v3, 4, v3")
        a(f"v_add_u32 v3, {LDS_ST2}, v3")
        a("s_mov_b64 exec, 0xffff")
        a(f"ds_write_b128 v3, {vr(SL,4)}")
        a(f"ds_write_b128 v3, {vr(SL+32,4)} offset:256")
        a("s_mov_b64 exec, -1")
        a("s_waitcnt lgkmcnt(0)")
        if STF:
            a(f"v_mov_b32 v104, {LDS_SY}")
            a("v_mov_b32 v105, 1")
            a("s_mov_b64 exec, 1")
            a("ds_write_b32 v104, v105")
            a("s_mov_b64 exec, -1")
            if TS:
                a("s_waitcnt vmcnt(0)")
                a("s_barrier")
                for i in range(NW2E, 14): self.w2load(0, i)
            if self.opt.get("ps"):
                for i in range(14): self.w2load(1, i)
        else:
            a("s_barrier")
        if self.prof and "ffn1" not in self.skip:
            self.nstamp = self.stamp_names.index("ffn1")
            nm = list(self.stamp_names)
            self.stamp("ffn1")
            self.stamp_names = nm
            self.nstamp = len(nm)
        a.label("L_p4_done")

    def p4_ts(self, LDS_ST2, LDS_CS1):
        a = self.a
        X = self.opt
        ACC, BR, CG, BG = 64, 108, 120, 124
        HPK = [128, 129, 130, 131, 148, 149, 150, 151]
        NR = 3
        a(f"s_mul_i32 {sA}, {sM}, 7")
        a(f"s_add_u32 {sA}, {sA}, {sW}")
        a(f"s_lshl_b32 {sB}, {sA}, 12")
        a(f"s_mul_i32 {sD}, {sC}, {224*1024}")
        a(f"s_add_u32 {sB}, {sB}, {sD}")
        a(f"s_add_u32 s70, {sB}, {WS_HID}")
        a(f"s_lshl_b32 {sD}, {sA}, 2")
        a(f"s_lshl_b32 {sE_}, {sC}, 8")
        a(f"s_add_u32 {sD}, {sD}, {sE_}")
        a(f"s_add_u32 s71, {sD}, {WS_FLHID}")
        def rd(n):
            tt, k = n // 32, n % 32
            a.ds(f"ds_read_b128 {vr(BR+4*(n%NR),4)}, v104 offset:{k*2048 + tt*1024}", f"h{n}")
        def grd(q):
            a.ds(f"ds_read_b128 {vr(CG,4)}, v3 offset:{32*q}", f"g{q}")
            a.ds(f"ds_read_b128 {vr(BG,4)}, v3 offset:{1024 + 32*q}", f"g{q}")
        def gep(q):
            a.wait_lg(f"g{q}")
            for r in range(4): a(f"v_fma_f32 v{ACC+4*q+r}, -v106, v{CG+r}, v{ACC+4*q+r}")
            for r in range(4): a(f"v_fma_f32 v{ACC+4*q+r}, v{ACC+4*q+r}, v107, v{BG+r}")
            for r in range(4): a(f"v_add_f32 v{ACC+4*q+r}, v{ACC+4*q+r}, |v{ACC+4*q+r}|")
            for r in range(4): a(f"v_mul_f32 v{ACC+4*q+r}, v{ACC+4*q+r}, v{ACC+4*q+r}")
            for i in range(2): a(f"v_cvt_pk_bf16_f32 v{HPK[2*q+i]}, v{ACC+4*q+2*i}, v{ACC+4*q+2*i+1}")
        def fs(name, emit):
            l1, l2 = f"L_ts_slow_{name}", f"L_ts_done_{name}"
            a(f"s_cmp_eq_u32 {sFast}, 0")
            a(f"s_cbranch_scc0 {l1}")
            emit(""); a(f"s_branch {l2}")
            a.label(l1); emit(" sc1"); a.label(l2)
        for n in range(NR - 1): rd(n)
        l0 = [(0, i) for i in range(NW2E, 14)]
        sched = {}
        for j, e in enumerate(l0): sched.setdefault(1 + (j * 28) // max(len(l0), 1), []).append(e)
        for i in range(14): sched.setdefault(32 + i, []).append((1, i))
        E0 = X.get("tse", 34)
        NST = E0 + 7
        NFL = X.get("tsf", 54)
        issued = 0; young = 0
        for n in range(64):
            tt, k = n // 32, n % 32
            if n == 16 - (NR - 1):
                a(f"s_waitcnt vmcnt({4 + issued})")
                a("s_barrier")
            if n == 32 - (NR - 1):
                a(f"s_waitcnt vmcnt({issued})")
                a("s_barrier")
                self.stamp("f1b")
            if n == 32 + X.get("skp", 24):
                lab = a.newlabel("L_skp")
                a(f"s_cmp_eq_u32 {sKH}, 0")
                a(f"s_cbranch_scc1 {lab}")
                a("s_setprio 1")
                a.label(lab)
            if n + NR - 1 < 64: rd(n + NR - 1)
            a.wait_lg(f"h{n}")
            srcC = "0" if k == 0 else vr(ACC + 16 * tt, 16)
            a(f"v_mfma_f32_32x32x16_bf16 {vr(ACC+16*tt,16)}, {vr(W1H[k],4)}, {vr(BR+4*(n%NR),4)}, {srcC}")
            for (f, i) in sched.get(n, []):
                self.w2load(f, i)
                issued += 1
                if n > NST: young += 1
            if n == E0 - 1:
                a(f"v_mov_b32 v105, {LDS_SY}")
                self.lds_spin("st", 105, 0, 1)
                a("v_and_b32 v3, 31, v1")
                a("v_lshlrev_b32 v3, 3, v3")
                a(f"v_add_u32 v3, {LDS_ST2}, v3")
                a.ds("ds_read_b64 v[106:107], v3", "st0")
                a("v_lshrrev_b32 v3, 5, v1")
                a("v_lshlrev_b32 v3, 4, v3")
                a(f"s_lshl_b32 {sA}, {sW}, 7")
                a(f"s_add_u32 {sA}, {sA}, {LDS_CS1}")
                a(f"v_add_u32 v3, {sA}, v3")
                grd(0)
            if n >= E0 and (n - E0) % 2 == 1 and (n - E0) // 2 < 4:
                q = (n - E0) // 2
                gep(q)
                if q < 3: grd(q + 1)
            if n == NST:
                def st(mod):
                    a(f"buffer_store_dwordx4 v[128:131], v2, {srd(SRD_WS)}, s70 offen{mod}")
                    a(f"buffer_store_dwordx4 v[148:151], v2, {srd(SRD_WS)}, s70 offen offset:2048{mod}")
                fs("st", st)
                self.stamp("t0st")
            if n == NFL:
                a(f"s_waitcnt vmcnt({young})")
                a("v_mov_b32 v105, s3")
                a("v_mov_b32 v106, 0")
                a("s_mov_b64 exec, 1")
                fs("fl", lambda mod: a(f"buffer_store_dword v105, v106, {srd(SRD_WS)}, s71 offen{mod}"))
                a("s_mov_b64 exec, -1")
                self.stamp("t0fl")

    def bpoll(self, name, soff, word, pre=None):
        a = self.a
        SL = self.opt.get("bps", 3)
        a(f"s_cmp_eq_u32 {sW}, 7")
        a(f"s_cbranch_scc0 L_bp_oth_{name}")
        a("v_lshlrev_b32 v3, 2, v1")
        for i in range(3):
            a(f"buffer_load_dword v{208+i}, v3, {srd(SRD_WS)}, {soff} offen sc1")
            if i < 2: a(f"s_sleep {SL}")
        a(f"s_mov_b32 {sCnt}, 100000")
        a.label(f"L_bp_loop_{name}")
        for i in range(3):
            a("s_waitcnt vmcnt(2)")
            a(f"v_cmp_ne_u32 vcc, s3, v{208+i}")
            a(f"s_cbranch_vccz L_bp_ok_{name}")
            a(f"buffer_load_dword v{208+i}, v3, {srd(SRD_WS)}, {soff} offen sc1")
        a(f"s_sub_u32 {sCnt}, {sCnt}, 1")
        a(f"s_cmp_lg_u32 {sCnt}, 0")
        a(f"s_cbranch_scc1 L_bp_loop_{name}")
        a.label(f"L_bp_ok_{name}")
        a(f"v_mov_b32 v105, {LDS_SY}")
        a("v_mov_b32 v106, 1")
        a("s_mov_b64 exec, 1")
        a(f"ds_write_b32 v105, v106 offset:{4*word}")
        a("s_mov_b64 exec, -1")
        a(f"s_branch L_bp_done_{name}")
        a.label(f"L_bp_oth_{name}")
        if pre: pre()
        a(f"v_mov_b32 v105, {LDS_SY}")
        self.lds_spin(name, 105, word, 1, tmp=104)
        a.label(f"L_bp_done_{name}")

    def lds_spin(self, name, vaddr, word, val, tmp=106):
        a = self.a
        a(f"s_mov_b32 {sCnt}, 0x40000")
        a.label(f"L_spin_{name}")
        a(f"ds_read_b32 v{tmp}, v{vaddr} offset:{4*word}")
        a("s_waitcnt lgkmcnt(0)")
        a(f"v_readfirstlane_b32 {sA}, v{tmp}")
        a(f"s_cmp_eq_u32 {sA}, {val}")
        a(f"s_cbranch_scc1 L_spinok_{name}")
        a(f"s_sub_u32 {sCnt}, {sCnt}, 1")
        a(f"s_cmp_eq_u32 {sCnt}, 0")
        a(f"s_cbranch_scc1 L_spinok_{name}")
        if self.opt.get("sks", 1): a(f"s_sleep {self.opt.get('sks', 1)}")
        a(f"s_branch L_spin_{name}")
        a.label(f"L_spinok_{name}")

    def p5s(self):
        a = self.a
        X = self.opt
        HB, B2R = 4, 148
        ACCS = [[64, 208], [80, 224]]
        BQ = [96, 100, 108, 112, 116, 120, 124, 128]
        PK = [[40, 44, 48, 52], [8, 12, 16, 20]]
        SUM, UT, RD = 24, 32, 152
        D = X.get("skd", 4)
        a(f"s_lshl_b32 {sA}, {sC}, 19")
        a(f"s_add_u32 {sA}, {sA}, {WS_P}")
        a(f"s_lshl_b32 {sB}, {sW}, 16")
        a(f"s_lshl_b32 {sD}, {sM}, 10")
        a(f"s_add_u32 {sB}, {sB}, {sD}")
        a(f"s_add_u32 s71, {sA}, {sB}")
        a(f"s_lshl_b32 {sB}, {sM}, 16")
        a(f"s_lshl_b32 {sD}, {sW}, 13")
        a(f"s_add_u32 {sB}, {sB}, {sD}")
        a(f"s_add_u32 s72, {sA}, {sB}")
        a(f"v_mov_b32 v105, {LDS_SY}")
        self.lds_spin("ca", 105, 1, 4)
        self.stamp("caok")
        seq = [(i, tt) for i in range(8) for tt in range(2)] + [(i, 0) for i in range(8, 14)] + [(i, 1) for i in range(8, 14)]
        a.lg = []
        def rd(n):
            i, tt = seq[n]
            a.ds(f"ds_read_b128 {vr(BQ[n % 8],4)}, v2 offset:{i*2048 + tt*1024}", f"e{n}")
        def pack(tt, f, half):
            A = ACCS[tt][f] + 8 * half
            P = PK[tt][2 * f + half]
            for i in range(4): a(f"v_cvt_pk_bf16_f32 v{P+i}, v{A+2*i}, v{A+2*i+1}")
            for i in range(4): a(f"v_min_u32 v{P+i}, -2, v{P+i}")
        def stores(tt, name):
            def body(mod):
                for f in range(2):
                    for half in range(2):
                        p = 4 * half + 2 * f + tt
                        a(f"s_add_u32 {sA}, s71, {p * 8192}")
                        a(f"buffer_store_dwordx4 {vr(PK[tt][2*f+half],4)}, v2, {srd(SRD_WS)}, {sA} offen{mod}")
            l1, l2 = f"L_pst_slow_{name}", f"L_pst_done_{name}"
            a(f"s_cmp_eq_u32 {sFast}, 0")
            a(f"s_cbranch_scc0 {l1}")
            body("")
            a(f"s_branch {l2}")
            a.label(l1)
            body(" sc1")
            a.label(l2)
        for n in range(D): rd(n)
        seen = set()
        for n, (i, tt) in enumerate(seq):
            if n + D < len(seq):
                if seq[n + D][0] >= 8 and seq[n + D - 1][0] < 8:
                    self.lds_spin("cb", 105, 2, 3)
                    self.stamp("cbok")
                rd(n + D)
            if i not in seen:
                a(f"s_waitcnt vmcnt({13 - i})")
                seen.add(i)
            a.wait_lg(f"e{n}")
            for f in range(2):
                hm = (W2H0 if f == 0 else W2H1)[i]
                srcC = "0" if i == 0 else vr(ACCS[tt][f], 16)
                a(f"v_mfma_f32_32x32x16_bf16 {vr(ACCS[tt][f],16)}, {vr(hm,4)}, {vr(BQ[n % 8],4)}, {srcC}")
            if n in (23, 24, 25, 26):
                j = n - 23
                pack(0, j >> 1, j & 1)
            if n == 26: stores(0, "t0")
            if n == 17:
                for i_ in range(4):
                    a(f"v_lshlrev_b32 v{SUM+2*i_}, 16, v{HB+i_}")
                    a(f"v_and_b32 v{SUM+1+2*i_}, 0xffff0000, v{HB+i_}")
                    a(f"v_lshlrev_b32 v{UT+2*i_}, 16, v{B2R+i_}")
                    a(f"v_and_b32 v{UT+1+2*i_}, 0xffff0000, v{B2R+i_}")
                for i_ in range(4):
                    a(f"v_pk_add_f32 {vr(SUM+2*i_,2)}, {vr(SUM+2*i_,2)}, {vr(UT+2*i_,2)}")
            if n == 19:
                a("v_and_b32 v3, 31, v1")
                a("v_lshlrev_b32 v3, 10, v3")
                a("v_lshrrev_b32 v104, 5, v1")
                a("v_lshl_or_b32 v3, v104, 4, v3")
                a(f"s_lshl_b32 {sA}, {sTT}, 5")
                a(f"s_add_u32 {sA}, {sA}, {sT0}")
                a(f"s_lshl_b32 {sA}, {sA}, 10")
                a(f"s_add_u32 s70, {sA}, s70")
        self.stamp("ffn2")
        for f in range(2):
            for half in range(2): pack(1, f, half)
        stores(1, "t1")
        a(f"s_cmp_eq_u32 {sFast}, 0")
        a("s_cbranch_scc1 L_p5_fast")
        a(f"s_lshl_b32 {sA}, {sC}, 8")
        a(f"s_lshl_b32 {sB}, {sW}, 5")
        a(f"s_add_u32 {sB}, {sB}, {sA}")
        a(f"s_lshl_b32 {sD}, {sM}, 2")
        a(f"s_add_u32 {sB}, {sB}, {sD}")
        a(f"s_add_u32 {sB}, {sB}, {WS_FLHID}")
        a("v_mov_b32 v104, s3")
        a("v_mov_b32 v105, 0")
        a("s_waitcnt vmcnt(0)")
        a("s_mov_b64 exec, 1")
        a(f"buffer_store_dword v104, v105, {srd(SRD_WS)}, {sB} offen sc1")
        a("s_mov_b64 exec, -1")
        a(f"s_lshl_b32 {sB}, {sM}, 5")
        a(f"s_add_u32 {sA}, {sA}, {sB}")
        a(f"s_add_u32 {sA}, {sA}, {WS_FLHID}")
        a("v_min_u32 v105, 7, v1")
        a("v_lshlrev_b32 v105, 2, v105")
        self.poll_begin("pf")
        a(f"buffer_load_dword v104, v105, {srd(SRD_WS)}, {sA} offen sc1")
        a("s_waitcnt vmcnt(0)")
        a("v_cmp_ne_u32 vcc, s3, v104")
        self.poll_end("pf", sleep=1)
        a.label("L_p5_fast")
        if X.get("skw"): a("s_waitcnt vmcnt(0)")
        self.stamp("pst")
        a("s_add_u32 s73, s72, 4096")
        def ld(j):
            a(f"buffer_load_dwordx4 {vr(RD+4*j,4)}, v2, {srd(SRD_WS)}, {'s72' if j < 4 else 's73'} offen offset:{(j%4)*1024} sc1")
        def chk(j):
            R = RD + 4 * j
            a(f"v_max3_u32 v104, v{R}, v{R+1}, v{R+2}")
            a(f"v_max_u32 v104, v104, v{R+3}")
            a("v_cmp_eq_u32 vcc, -1, v104")
        def accum(j):
            R = RD + 4 * j
            for i in range(4):
                a(f"v_lshlrev_b32 v{UT+2*i}, 16, v{R+i}")
                a(f"v_and_b32 v{UT+1+2*i}, 0xffff0000, v{R+i}")
            for i in range(4):
                a(f"v_pk_add_f32 {vr(SUM+2*i,2)}, {vr(SUM+2*i,2)}, {vr(UT+2*i,2)}")
        sP = "s67"
        for j in range(8): ld(j)
        a(f"s_mov_b32 {sP}, 0xff")
        for j in range(8):
            a(f"s_waitcnt vmcnt({7 - j})")
            chk(j)
            a(f"s_cbranch_vccnz L_r1_{j}")
            accum(j)
            a(f"s_bitset0_b32 {sP}, {j}")
            a.label(f"L_r1_{j}")
        self.stamp("r1")
        a(f"s_mov_b32 {sCnt}, 100000")
        a.label("L_retry")
        a(f"s_cmp_eq_u32 {sP}, 0")
        a("s_cbranch_scc1 L_rdone")
        a(f"s_sub_u32 {sCnt}, {sCnt}, 1")
        a(f"s_cmp_eq_u32 {sCnt}, 0")
        a("s_cbranch_scc1 L_rdone")
        for j in range(8):
            a(f"s_bitcmp1_b32 {sP}, {j}")
            a(f"s_cbranch_scc0 L_r2_{j}")
            ld(j)
            a.label(f"L_r2_{j}")
        a("s_waitcnt vmcnt(0)")
        for j in range(8):
            a(f"s_bitcmp1_b32 {sP}, {j}")
            a(f"s_cbranch_scc0 L_r3_{j}")
            chk(j)
            a(f"s_cbranch_vccnz L_r3_{j}")
            accum(j)
            a(f"s_bitset0_b32 {sP}, {j}")
            a.label(f"L_r3_{j}")
        a("s_branch L_retry")
        a.label("L_rdone")
        for i in range(4):
            a(f"v_cvt_pk_bf16_f32 v{88+i}, v{SUM+2*i}, v{SUM+1+2*i}")
        a("v_permlane32_swap_b32 v88, v90")
        a("v_permlane32_swap_b32 v89, v91")
        a(f"buffer_store_dwordx4 v[88:91], v3, {srd(SRD_OUT)}, s70 offen")
        self.stamp("end")

    def p5(self):
        a = self.a
        HB, B2R = 4, 148
        ACCS = [[64, 208], [80, 224]]
        BQ = [40, 44, 48, 52, 96, 100, 108, 112, 116, 120, 124, 128, 240, 244]
        a(f"s_lshl_b32 {sA}, {sM}, 7")
        a(f"s_lshl_b32 {sB}, {sFT}, 6")
        a(f"s_add_u32 {sA}, {sA}, {sB}")
        a(f"s_lshl_b32 {sB}, {sKH}, 5")
        a(f"s_add_u32 s89, {sA}, {sB}")
        a("v_lshrrev_b32 v3, 5, v1")
        a("v_lshlrev_b32 v3, 3, v3")
        a(f"buffer_load_dwordx2 {vr(B2R,2)}, v3, {srd(SRD_B2)}, s89 offen")
        a(f"buffer_load_dwordx2 {vr(B2R+2,2)}, v3, {srd(SRD_B2)}, s89 offen offset:16")
        if self.opt.get("stf"):
            a(f"v_mov_b32 v105, {LDS_SY}")
            self.lds_spin("hf", 105, 1, 7)
        SP = self.opt.get("sp5")
        if self.opt.get("p5p"):
            lab = a.newlabel("L_p5p")
            a(f"s_cmp_eq_u32 {sKH}, 0")
            a(f"s_cbranch_scc1 {lab}")
            a(f"s_setprio {self.opt['p5p']}")
            a.label(lab)
        OH = self.opt.get("oh")
        if OH:
            a(f"s_cmp_eq_u32 {sW}, {sM}")
            a("s_cbranch_scc1 L_p5_own")
        a(f"s_mul_i32 {sA}, {sW}, 28")
        a(f"s_lshl_b32 {sB}, {sC}, 8")
        a(f"s_add_u32 {sA}, {sA}, {sB}")
        a(f"s_add_u32 {sA}, {sA}, {WS_FLHID}")
        PS = self.opt.get("ps")
        if PS:
            a(f"s_and_b32 {sA}, {sW}, 6")
            a(f"s_mul_i32 {sA}, {sA}, 28")
            a(f"s_add_u32 {sA}, {sA}, {sB}")
            a(f"s_add_u32 s68, {sA}, {WS_FLHID}")
            a("v_min_u32 v3, 13, v1")
            a("v_lshlrev_b32 v3, 2, v3")
            a(f"s_and_b32 {sA}, {sW}, 6")
            a(f"s_mul_i32 {sA}, {sA}, 14")
            a(f"s_mul_i32 {sD}, {sTT}, 7")
            a(f"s_add_u32 {sA}, {sA}, {sD}")
            a(f"s_lshl_b32 {sA}, {sA}, 11")
            a(f"s_mul_i32 {sD}, {sC}, {224*1024}")
            a(f"s_add_u32 {sA}, {sA}, {sD}")
            a(f"s_add_u32 s67, {sA}, {WS_HID}")
            a(f"s_lshl_b32 {sA}, {sW}, 11")
            a(f"v_add_u32 v104, {sA}, v2")
            a("v_add_u32 v105, 65536, v104")
            def koff(e): return (e if e < 7 else e + 7) * 2048
            def wrp(tt, f, half):
                p_ = 4 * half + 2 * f + tt
                A = ACCS[tt][f] + 8 * half
                base = "v104" if p_ < 4 else "v105"
                off = (p_ % 4) * 16384
                a(f"ds_write_b128 {base}, {vr(A,4)} offset:{off}")
                a(f"ds_write_b128 {base}, {vr(A+4,4)} offset:{off+1024}")
            def pld(e, tt, home):
                a(f"s_add_u32 {sA}, s67, {koff(e) + tt*1024}")
                a(f"buffer_load_dwordx4 {vr(home,4)}, v2, {srd(SRD_WS)}, {sA} offen sc1")
            def mm(e, tt, home, first):
                for f in range(2):
                    hm = (W2H0 if f == 0 else W2H1)[e]
                    a(f"v_mfma_f32_32x32x16_bf16 {vr(ACCS[tt][f],16)}, {vr(hm,4)}, {vr(home,4)}, {'0' if first else vr(ACCS[tt][f],16)}")
            def part(es, first):
                ent = [(e, tt) for tt in range(2) for e in es]
                for n, (e, tt) in enumerate(ent): pld(e, tt, BQ[n])
                for n, (e, tt) in enumerate(ent):
                    a(f"s_waitcnt vmcnt({13 - n})")
                    mm(e, tt, BQ[n], first and e == es[0])
            def spin(name, mask):
                a(f"s_mov_b32 {sCnt}, 200000")
                a.label(f"L_ps_{name}")
                a(f"buffer_load_dword v106, v3, {srd(SRD_WS)}, s68 offen sc1")
                a("s_waitcnt vmcnt(0)")
                a("v_cmp_ne_u32 vcc, s3, v106")
                a(f"s_and_b32 {sA}, vcc_lo, {mask}")
                a(f"s_cbranch_scc0 L_psok_{name}")
                a(f"s_sub_u32 {sCnt}, {sCnt}, 1")
                a(f"s_cmp_eq_u32 {sCnt}, 0")
                a(f"s_cbranch_scc1 L_psok_{name}")
                a("s_sleep 1")
                a(f"s_branch L_ps_{name}")
                a.label(f"L_psok_{name}")
            a(f"s_mov_b32 {sCnt}, 200000")
            a.label("L_ps_poll")
            a(f"buffer_load_dword v106, v3, {srd(SRD_WS)}, s68 offen sc1")
            a("s_waitcnt vmcnt(0)")
            a("v_cmp_ne_u32 vcc, s3, v106")
            a(f"s_and_b32 {sA}, vcc_lo, 0x3fff")
            a("s_cbranch_scc0 L_ps_both")
            a(f"s_and_b32 {sA}, vcc_lo, 0x7f")
            a("s_cbranch_scc0 L_ps_afirst")
            a(f"s_and_b32 {sA}, vcc_lo, 0x3f80")
            a("s_cbranch_scc0 L_ps_bfirst")
            a(f"s_sub_u32 {sCnt}, {sCnt}, 1")
            a(f"s_cmp_eq_u32 {sCnt}, 0")
            a("s_cbranch_scc1 L_ps_both")
            a("s_sleep 1")
            a("s_branch L_ps_poll")
            for nm, e1, e2, mask in (("afirst", list(range(7)), list(range(7, 14)), "0x3f80"), ("bfirst", list(range(7, 14)), list(range(7)), "0x7f")):
                a.label(f"L_ps_{nm}")
                part(e1, True)
                spin(nm + "2", mask)
                part(e2, False)
                for f in range(2):
                    for half in range(2): wrp(0, f, half)
                a("s_branch L_ps_join")
            a.label("L_ps_both")
            self.stamp("hidok")
            for e in range(14): pld(e, 0, BQ[e])
            for tt in range(2):
                for e in range(14):
                    a(f"s_waitcnt vmcnt({13 if tt == 0 else 13 - e})")
                    mm(e, tt, BQ[e], e == 0)
                    if tt == 0: pld(e, 1, BQ[e])
                    if tt == 1 and e in (2, 4, 6, 8):
                        j = (e - 2) // 2
                        wrp(0, j >> 1, j & 1)
            a.label("L_ps_join")
            self.stamp("ffn2")
            for f in range(2):
                for half in range(2): wrp(1, f, half)
            self.p5_tail()
            return
        NA = 4 if SP else 7
        if SP:
            a(f"s_add_u32 s68, {sA}, 16")
            a("v_min_u32 v107, 2, v1")
            a("v_lshlrev_b32 v107, 2, v107")
        a(f"v_min_u32 v3, {NA - 1}, v1")
        a("v_lshlrev_b32 v3, 2, v3")
        self.poll_begin("hid")
        a(f"buffer_load_dword v104, v3, {srd(SRD_WS)}, {sA} offen sc1")
        a("s_waitcnt vmcnt(0)")
        a("v_cmp_ne_u32 vcc, s3, v104")
        self.poll_end("hid", sleep=1)
        self.stamp("hidok")
        if SP == 2:
            a(f"v_mov_b32 v105, {LDS_SY}")
            self.lds_spin("bq", 105, 2, 3)
            self.stamp("bqok")
        a(f"s_mul_i32 {sA}, {sW}, {14*2048}")
        a(f"s_mul_i32 {sD}, {sC}, {224*1024}")
        a(f"s_add_u32 {sA}, {sA}, {sD}")
        a(f"s_add_u32 s67, {sA}, {WS_HID}")
        def bload(tt, i):
            a(f"s_add_u32 {sA}, s67, {i*2048 + tt*1024}")
            a(f"buffer_load_dwordx4 {vr(BQ[i],4)}, v2, {srd(SRD_WS)}, {sA} offen sc1")
        TS = self.opt.get("ts")
        if TS:
            a(f"s_mul_i32 {sB}, {sW}, 28")
            a(f"s_lshl_b32 {sD}, {sC}, 8")
            a(f"s_add_u32 {sB}, {sB}, {sD}")
            a(f"s_add_u32 s68, {sB}, {WS_FLH1}")
            for i in range(7): bload(0, i)
            a(f"buffer_load_dword v106, v3, {srd(SRD_WS)}, s68 offen sc1")
            for i in range(7, 14): bload(0, i)
        elif not SP:
            for i in range(14): bload(0, i)
        def scr_addr():
            a(f"s_lshl_b32 {sA}, {sW}, 11")
            a(f"v_add_u32 v104, {sA}, v2")
            a("v_add_u32 v105, 65536, v104")
        def wr_piece(tt, f, half):
            p = 4 * half + 2 * f + tt
            A = ACCS[tt][f] + 8 * half
            base = "v104" if p < 4 else "v105"
            off = (p % 4) * 16384
            a(f"ds_write_b128 {base}, {vr(A,4)} offset:{off}")
            a(f"ds_write_b128 {base}, {vr(A+4,4)} offset:{off+1024}")
        if SP:
            H16 = BQ + [248, 252]
            seq = [(i, 0) for i in range(8)] + [(i, 1) for i in range(8)] + [(i, 0) for i in range(8, 14)] + [(i, 1) for i in range(8, 14)]
            def eload(n):
                i, tt = seq[n]
                a(f"s_add_u32 {sA}, s67, {i*2048 + tt*1024}")
                a(f"buffer_load_dwordx4 {vr(H16[n % 16],4)}, v2, {srd(SRD_WS)}, {sA} offen sc1")
            for n in range(8): eload(n)
            a(f"buffer_load_dword v106, v107, {srd(SRD_WS)}, s68 offen sc1")
            for n in range(8, 16): eload(n)
            scr_addr()
            for n, (i, tt) in enumerate(seq):
                if n < 8: y = 16 - n
                elif n < 16: y = (15 - n) + 8 + min(n - 8, 4)
                elif n < 24: y = (23 - n) + 4
                else: y = 27 - n
                a(f"s_waitcnt vmcnt({y})")
                for f in range(2):
                    hm = (W2H0 if f == 0 else W2H1)[i]
                    srcC = "0" if i == 0 else vr(ACCS[tt][f], 16)
                    a(f"v_mfma_f32_32x32x16_bf16 {vr(ACCS[tt][f],16)}, {vr(hm,4)}, {vr(H16[n % 16],4)}, {srcC}")
                if n == 7:
                    a("s_waitcnt vmcnt(8)")
                    a(f"s_mov_b32 {sCnt}, 200000")
                    a.label("L_poll_hid2")
                    a("v_cmp_ne_u32 vcc, s3, v106")
                    a("s_cbranch_vccz L_pollok_hid2")
                    a(f"s_sub_u32 {sCnt}, {sCnt}, 1")
                    a(f"s_cmp_eq_u32 {sCnt}, 0")
                    a("s_cbranch_scc1 L_pollok_hid2")
                    a("s_sleep 1")
                    a(f"buffer_load_dword v106, v107, {srd(SRD_WS)}, s68 offen sc1")
                    a("s_waitcnt vmcnt(0)")
                    a("s_branch L_poll_hid2")
                    a.label("L_pollok_hid2")
                    self.stamp("hid2")
                    for n2 in range(16, 24): eload(n2)
                if 8 <= n < 12: eload(n + 16)
                if n in (23, 24, 25, 26):
                    j = n - 23
                    wr_piece(0, j >> 1, j & 1)
        else:
            scr_addr()
            E5 = self.opt.get("e5")
            XB = self.opt.get("xb", 10)
            WRI = [1, 3, 5, 7] if E5 else [2, 4, 6, 8]
            def e5_pre():
                for i in range(4):
                    a(f"v_lshlrev_b32 v{16+2*i}, 16, v{HB+i}")
                    a(f"v_and_b32 v{17+2*i}, 0xffff0000, v{HB+i}")
                    a(f"v_lshlrev_b32 v{24+2*i}, 16, v{B2R+i}")
                    a(f"v_and_b32 v{25+2*i}, 0xffff0000, v{B2R+i}")
                for i in range(4):
                    a(f"v_pk_add_f32 {vr(16+2*i,2)}, {vr(16+2*i,2)}, {vr(24+2*i,2)}")
                a("v_and_b32 v3, 31, v1")
                a("v_lshlrev_b32 v3, 10, v3")
                a("v_lshrrev_b32 v12, 5, v1")
                a("v_lshl_or_b32 v3, v12, 4, v3")
                a(f"s_lshl_b32 {sB}, {sW}, 14")
                a(f"v_add_u32 v106, {sB}, v2")
                a(f"s_lshl_b32 {sA}, {sTT}, 5")
                a(f"s_add_u32 {sA}, {sA}, {sT0}")
                a(f"s_lshl_b32 {sA}, {sA}, 10")
                a(f"s_add_u32 s68, {sA}, s89")
            def e5_sum(RD, nb):
                a.lg = []
                for q0 in range(0, 8, nb):
                    for q in range(q0, q0 + nb):
                        R = RD + 8 * (q - q0)
                        a.ds(f"ds_read_b128 {vr(R,4)}, v106 offset:{q*2048}", f"q{q}")
                        a.ds(f"ds_read_b128 {vr(R+4,4)}, v106 offset:{q*2048+1024}", f"q{q}")
                    for q in range(q0, q0 + nb):
                        R = RD + 8 * (q - q0)
                        a.wait_lg(f"q{q}")
                        for i in range(4):
                            a(f"v_pk_add_f32 {vr(16+2*i,2)}, {vr(16+2*i,2)}, {vr(R+2*i,2)}")
            def e5_pack(P):
                for i in range(4):
                    a(f"v_cvt_pk_bf16_f32 v{P+i}, v{16+2*i}, v{17+2*i}")
                a(f"v_permlane32_swap_b32 v{P}, v{P+2}")
                a(f"v_permlane32_swap_b32 v{P+1}, v{P+3}")
            self.e5 = (e5_pre, e5_sum, e5_pack)
            issued = 14
            done = 0
            for tt in range(2):
                for i in range(14):
                    n = tt * 14 + i
                    if TS: y = (14 - n) if n < 7 else (13 if n < 14 else 13 - i)
                    else: y = issued - n - 1
                    a(f"s_waitcnt vmcnt({y})")
                    for f in range(2):
                        hm = (W2H0 if f == 0 else W2H1)[i]
                        srcC = "0" if i == 0 else vr(ACCS[tt][f], 16)
                        a(f"v_mfma_f32_32x32x16_bf16 {vr(ACCS[tt][f],16)}, {vr(hm,4)}, {vr(BQ[i],4)}, {srcC}")
                    if tt == 0 and TS:
                        if i == 6:
                            a("s_waitcnt vmcnt(7)")
                            a(f"s_mov_b32 {sCnt}, 200000")
                            a.label("L_poll_hid2")
                            a("v_cmp_ne_u32 vcc, s3, v106")
                            a("s_cbranch_vccz L_pollok_hid2")
                            a(f"s_sub_u32 {sCnt}, {sCnt}, 1")
                            a(f"s_cmp_eq_u32 {sCnt}, 0")
                            a("s_cbranch_scc1 L_pollok_hid2")
                            a("s_sleep 1")
                            a(f"buffer_load_dword v106, v3, {srd(SRD_WS)}, s68 offen sc1")
                            a("s_waitcnt vmcnt(0)")
                            a("s_branch L_poll_hid2")
                            a.label("L_pollok_hid2")
                            self.stamp("hid2")
                            for i2 in range(7): bload(1, i2)
                        elif i > 6: bload(1, i)
                    elif tt == 0:
                        bload(1, i); issued += 1
                    if tt == 1 and i in WRI:
                        j = WRI.index(i)
                        wr_piece(0, j >> 1, j & 1)
                    if E5 and tt == 1 and i == XB:
                        a("s_waitcnt lgkmcnt(0)")
                        a("s_barrier")
                        self.stamp("xb")
                        a(f"s_cmp_eq_u32 {sTT}, 0")
                        a("s_cbranch_scc0 L_e5_skip")
                        e5_pre()
                        e5_sum(152, 4)
                        e5_pack(32)
                        a.label("L_e5_skip")
        if OH:
            a("s_branch L_p5_join")
            a.label("L_p5_own")
            a(f"v_mov_b32 v105, {LDS_SY}")
            self.lds_spin("oh", 105, 2, 7)
            a("s_waitcnt vmcnt(0)")
            scr_addr()
            a(f"v_add_u32 v106, {128*1024}, v2")
            a.lg = []
            sq = [(i, tt) for tt in range(2) for i in range(14)]
            def ord_(n):
                i, tt = sq[n]
                off = (i * 2048 if i < 8 else 20480 + (i - 8) * 2048) + tt * 1024
                a.ds(f"ds_read_b128 {vr(BQ[n % 14],4)}, v106 offset:{off}", f"o{n}")
            LA = 6
            for n in range(LA): ord_(n)
            for n, (i, tt) in enumerate(sq):
                if n + LA < 28: ord_(n + LA)
                a.wait_lg(f"o{n}")
                for f in range(2):
                    hm = (W2H0 if f == 0 else W2H1)[i]
                    srcC = "0" if i == 0 else vr(ACCS[tt][f], 16)
                    a(f"v_mfma_f32_32x32x16_bf16 {vr(ACCS[tt][f],16)}, {vr(hm,4)}, {vr(BQ[n % 14],4)}, {srcC}")
                if tt == 1 and i in (2, 4, 6, 8):
                    j = (i - 2) // 2
                    wr_piece(0, j >> 1, j & 1)
            a.label("L_p5_join")
        self.stamp("ffn2")
        for f in range(2):
            for half in range(2): wr_piece(1, f, half)
        if self.opt.get("e5"):
            e5_pre, e5_sum, e5_pack = self.e5
            a(f"s_cmp_eq_u32 {sTT}, 0")
            a("s_cbranch_scc0 L_e5_odd")
            a(f"buffer_store_dwordx4 v[32:35], v3, {srd(SRD_OUT)}, s68 offen")
            a("s_waitcnt lgkmcnt(0)")
            a("s_barrier")
            a("s_branch L_e5_done")
            a.label("L_e5_odd")
            e5_pre()
            a("s_waitcnt lgkmcnt(0)")
            a("s_barrier")
            e5_sum(152, 8)
            e5_pack(32)
            a(f"buffer_store_dwordx4 v[32:35], v3, {srd(SRD_OUT)}, s68 offen")
            a.label("L_e5_done")
            self.stamp("end")
            return
        self.p5_tail()

    def p5_tail(self):
        a = self.a
        HB, B2R = 4, 148
        PR = self.opt.get("pr")
        if PR:
            a(f"s_cmp_eq_u32 {sKH}, 0")
            a("s_cbranch_scc0 L_pr_skip")
            a(f"v_mov_b32 v107, {LDS_SY}")
            a("v_mov_b32 v106, 1")
            a("s_waitcnt lgkmcnt(0)")
            a("s_mov_b64 exec, 1")
            a("ds_add_u32 v107, v106 offset:20")
            a("s_mov_b64 exec, -1")
            self.lds_spin("pr", 107, 5, 4)
            a(f"s_lshl_b32 {sB}, {sW}, 14")
            a(f"v_add_u32 v106, {sB}, v2")
            a("v_add_u32 v107, 65536, v106")
            for h_, base in ((0, "v106"), (1, "v107")):
                R = 152 + 32 * h_
                for q in range(4):
                    a(f"ds_read_b128 {vr(R+8*q,4)}, {base} offset:{q*2048}")
                    a(f"ds_read_b128 {vr(R+8*q+4,4)}, {base} offset:{q*2048+1024}")
            for h_, base in ((0, "v106"), (1, "v107")):
                R = 152 + 32 * h_
                a(f"s_waitcnt lgkmcnt({8 if h_ == 0 else 2})")
                for i in range(4):
                    a(f"v_pk_add_f32 {vr(R+2*i,2)}, {vr(R+2*i,2)}, {vr(R+8+2*i,2)}")
                    a(f"v_pk_add_f32 {vr(R+16+2*i,2)}, {vr(R+16+2*i,2)}, {vr(R+24+2*i,2)}")
                for i in range(4):
                    a(f"v_pk_add_f32 {vr(R+2*i,2)}, {vr(R+2*i,2)}, {vr(R+16+2*i,2)}")
                a(f"ds_write_b128 {base}, {vr(R,4)}")
                a(f"ds_write_b128 {base}, {vr(R+4,4)} offset:1024")
            a.label("L_pr_skip")
        for i in range(4):
            a(f"v_lshlrev_b32 v{16+2*i}, 16, v{HB+i}")
            a(f"v_and_b32 v{17+2*i}, 0xffff0000, v{HB+i}")
            a(f"v_lshlrev_b32 v{24+2*i}, 16, v{B2R+i}")
            a(f"v_and_b32 v{25+2*i}, 0xffff0000, v{B2R+i}")
        for i in range(8):
            a(f"v_add_f32 v{16+i}, v{16+i}, v{24+i}")
        a("v_and_b32 v3, 31, v1")
        a("v_lshlrev_b32 v3, 10, v3")
        a("v_lshrrev_b32 v12, 5, v1")
        a("v_lshl_or_b32 v3, v12, 4, v3")
        a(f"s_lshl_b32 {sB}, {sW}, 14")
        a(f"v_add_u32 v106, {sB}, v2")
        a(f"s_lshl_b32 {sA}, {sTT}, 5")
        a(f"s_add_u32 {sA}, {sA}, {sT0}")
        a(f"s_lshl_b32 {sA}, {sA}, 10")
        a(f"s_add_u32 {sA}, {sA}, s89")
        a("s_waitcnt lgkmcnt(0)")
        a("s_barrier")
        RD = 152
        a.lg = []
        QS = [0, 4, 5, 6, 7] if PR else list(range(8))
        for q in QS:
            a.ds(f"ds_read_b128 {vr(RD+8*q,4)}, v106 offset:{q*2048}", f"q{q}")
            a.ds(f"ds_read_b128 {vr(RD+8*q+4,4)}, v106 offset:{q*2048+1024}", f"q{q}")
        for q in QS:
            a.wait_lg(f"q{q}")
            if PR:
                for i in range(4):
                    a(f"v_pk_add_f32 {vr(16+2*i,2)}, {vr(16+2*i,2)}, {vr(RD+8*q+2*i,2)}")
            else:
                for i in range(8):
                    a(f"v_add_f32 v{16+i}, v{16+i}, v{RD+8*q+i}")
        for i in range(4):
            a(f"v_cvt_pk_bf16_f32 v{88+i}, v{16+2*i}, v{17+2*i}")
        a("v_permlane32_swap_b32 v88, v90")
        a("v_permlane32_swap_b32 v89, v91")
        om = {0: "", 1: " sc1", 2: " nt", 3: " sc0 sc1"}[self.opt.get("outmod", 0)]
        a(f"buffer_store_dwordx4 v[88:91], v3, {srd(SRD_OUT)}, {sA} offen{om}")
        self.stamp("end")

    def kv_flag(self):
        a = self.a
        a(f"s_add_u32 {sD}, {sTag}, 1")
        a(f"s_lshl_b32 {sA}, {sG}, 4")
        nf = self.opt.get("nf", 1)
        a(f"s_add_u32 {sA}, {sA}, {WS_FLKV2 if nf else WS_FLKV}")
        a(f"v_mov_b32 v8, {sD}")
        a("v_mov_b32 v9, s3")
        if nf:
            a("v_lshlrev_b32 v10, 12, v1")
            a("s_mov_b64 exec, %s" % ("1" if self.opt.get("norep") else "0xff"))
        else:
            a("v_mov_b32 v10, 0")
            a("s_mov_b64 exec, 1")
        a(f"s_cmp_eq_u32 {sW}, 1")
        a("s_cbranch_scc1 L_flagv")
        a(f"buffer_store_dwordx2 v[8:9], v10, {srd(SRD_WS)}, {sA} offen sc1")
        a("s_branch L_flagd")
        a.label("L_flagv")
        a(f"buffer_store_dword v8, v10, {srd(SRD_WS)}, {sA} offen offset:8 sc1")
        a.label("L_flagd")
        a("s_mov_b64 exec, -1")

    def wave_reduce(self, regs, op, tmps):
        a = self.a
        for n in (8, 4, 2, 1):
            for r in regs:
                a(f"v_{op}_f32_dpp {r}, {r}, {r} row_ror:{n} row_mask:0xf bank_mask:0xf")
        for sw in ("16", "32"):
            for r, t in zip(regs, tmps):
                a(f"v_mov_b32 {t}, {r}")
            for r, t in zip(regs, tmps):
                a(f"v_permlane{sw}_swap_b32 {r}, {t}")
            for r, t in zip(regs, tmps):
                a(f"v_{op}_f32 {r}, {r}, {t}")

    def finish(self):
        a = self.a
        a.label("L_end")
        a("s_endpgm")

    def dump_regs(self, base, regs, off):
        a = self.a
        n = len(regs)
        a(f"s_lshl_b32 {sA}, {sID}, 3")
        a(f"s_add_u32 {sA}, {sA}, {sW}")
        a(f"s_mul_i32 {sA}, {sA}, {n*256}")
        a(f"s_add_u32 {sA}, {sA}, {off}")
        a("v_lshlrev_b32 v3, 2, v1")
        for i, r in enumerate(regs):
            a(f"buffer_store_dword v{r}, v3, {srd(SRD_WS)}, {sA} offen offset:{i*256}")
        a("s_waitcnt vmcnt(0)")

    def build(self):
        self.prologue()
        self.p1()
        if self.stop == "p1":
            self.dump_regs(0, list(range(32, 48)), WS_DBG)
            self.a("s_waitcnt vmcnt(0)")
            self.finish(); return self.text()
        self.p2()
        if self.stop in ("q", "attn"):
            self.a("s_waitcnt vmcnt(0)")
            self.dump_stamps()
            self.finish(); return self.text()
        for nm, fn in (("h", self.p3), ("hid", self.p4), ("out", self.p5s if self.opt.get("sk") else self.p5)):
            fn()
            if self.stop == nm: break
        if self.opt.get("dirtyend"):
            a = self.a
            n = self.opt["dirtyend"]
            a(f"s_lshl_b32 {sA}, {sID}, 3")
            a(f"s_add_u32 {sA}, {sA}, {sW}")
            a(f"s_mul_i32 {sA}, {sA}, {n*1024}")
            a(f"s_add_u32 {sA}, {sA}, {WS_DBG}")
            for i in range(n):
                a(f"buffer_store_dwordx4 v[4:7], v2, {srd(SRD_WS)}, {sA} offen")
                a(f"s_add_u32 {sA}, {sA}, 1024")
        if not (self.opt.get("noew") and not self.prof): self.a("s_waitcnt vmcnt(0)")
        self.dump_stamps()
        self.finish()
        return self.text()

    def text(self):
        lines, n = hazard_pass_all(self.a.lines)
        head = f"""; @launch grid=(256,1,1) block=(512,1,1) lds=163840
.amdgcn_target "amdgcn-amd-amdhsa--gfx950"
.text
.globl {KNAME}
.p2align 8
.type {KNAME},@function
{KNAME}:
"""
        tail = f""".section .rodata,"a"
.p2align 6
.amdhsa_kernel {KNAME}
  .amdhsa_next_free_vgpr 256
  .amdhsa_next_free_sgpr 102
  .amdhsa_accum_offset 256
  .amdhsa_group_segment_fixed_size 0
  .amdhsa_kernarg_size 104
  .amdhsa_user_sgpr_count 2
  .amdhsa_user_sgpr_kernarg_segment_ptr 1
  .amdhsa_system_sgpr_workgroup_id_x 1
.end_amdhsa_kernel
"""
        return head + "\n".join(lines) + "\n" + tail

if __name__ == "__main__":
    import argparse
    ap = argparse.ArgumentParser()
    ap.add_argument("--stop", default=None)
    ap.add_argument("-o", default="k.s")
    ap.add_argument("--prof", action="store_true")
    ap.add_argument("--opt", nargs="*", default=[])
    ap.add_argument("--skip", nargs="*", default=["args", "b1", "f1a", "f1b", "f1c"])
    args = ap.parse_args()
    opt = dict((kv.split("=")[0], int(kv.split("=")[1])) for kv in args.opt)
    g = Gen(stop=args.stop, prof=args.prof, opt=opt, skip=args.skip)
    open(args.o, "w").write(g.build())
    print("wrote", args.o, "stamps:", getattr(g, "stamp_names", None))
```
